```python
import torch

def _softmax(x, axis=-1):
    return torch.softmax(x, dim=axis)
def _gelu(x):
    return torch.nn.functional.gelu(x, approximate="tanh")
def _silu(x):
    return torch.nn.functional.silu(x)
def _sigmoid(x):
    return torch.sigmoid(x)
def _layernorm(x, axis=-1, eps=1e-5):
    m = x.mean(dim=axis, keepdim=True)
    v = x.var(dim=axis, keepdim=True, unbiased=False)
    return (x - m) / torch.sqrt(v + eps)
def _scatter_add(tgt, idx, src, axis=0):
    return tgt.clone().index_add_(axis, idx, src)
def _segment_sum(src, seg, n):
    out = torch.zeros((n,) + src.shape[1:], dtype=src.dtype)
    return out.index_add_(0, seg, src)
def _pad(x, pw):
    flat = tuple(v for pair in reversed(pw) for v in pair)
    return torch.nn.functional.pad(x, flat)

kernel_name = 'interleave_layers__spectral_fnet__moe_arch_mod__prompt'

def setup_inputs():

    _w = (lambda a: (lambda t: t.to(torch.bfloat16) if t.is_floating_point() else t)(torch.as_tensor(a)))
    def _A_setup():
        B, S, D = 1, 2048, 512
        ns = torch.arange(S)[:, None] * torch.arange(S)[None, :]
        nd = torch.arange(D)[:, None] * torch.arange(D)[None, :]
        Ws_re = torch.cos(-2.0 * torch.pi * ns / S).to(float)
        Ws_im = torch.sin(-2.0 * torch.pi * ns / S).to(float)
        Wd_re = torch.cos(-2.0 * torch.pi * nd / D).to(float)
        Wd_im = torch.sin(-2.0 * torch.pi * nd / D).to(float)
        return {
            "x": _w((lambda *s: torch.randn(*s, dtype=torch.bfloat16) * 0.05)(B, S, D)),
            "dft_seq_re": _w(Ws_re),
            "dft_seq_im": _w(Ws_im),
            "dft_hid_re": _w(Wd_re),
            "dft_hid_im": _w(Wd_im),
        }
    _A_in = _A_setup()

    def _B_setup():
        B, S, D, F, C = 1, 2048, 512, 1792, 1
        return {
            "x": _w((lambda *s: torch.randn(*s, dtype=torch.bfloat16) * 0.05)(B, S, D)),
            "w_r": _w((lambda *s: torch.randn(*s, dtype=torch.bfloat16) * 1.6)(D)),
            "w_gate": _w((lambda *s: torch.randn(*s, dtype=torch.bfloat16) * 0.4)(D, F)),
            "w_up": _w((lambda *s: torch.randn(*s, dtype=torch.bfloat16) * 0.4)(D, F)),
            "w_down": _w((lambda *s: torch.randn(*s, dtype=torch.bfloat16) * 0.4)(F, D)),
        }
    _B_in = _B_setup()

    return {
        "A_x": _A_in["x"],
        "A_dft_seq_re": _A_in["dft_seq_re"],
        "A_dft_seq_im": _A_in["dft_seq_im"],
        "A_dft_hid_re": _A_in["dft_hid_re"],
        "A_dft_hid_im": _A_in["dft_hid_im"],
        "B_x": _B_in["x"],
        "B_w_r": _B_in["w_r"],
        "B_w_gate": _B_in["w_gate"],
        "B_w_up": _B_in["w_up"],
        "B_w_down": _B_in["w_down"],
    }

def reference(A_x, A_dft_seq_re, A_dft_seq_im, A_dft_hid_re, A_dft_hid_im, B_x, B_w_r, B_w_gate, B_w_up, B_w_down):
    def _A_ref(x, dft_seq_re, dft_seq_im, dft_hid_re, dft_hid_im):
        a = torch.einsum("bsd,ed->bse", x, dft_hid_re)
        b = torch.einsum("bsd,ed->bse", x, dft_hid_im)
        y = torch.einsum("ts,bse->bte", dft_seq_re, a) - torch.einsum("ts,bse->bte", dft_seq_im, b)
        return y

    def _B_ref(x, w_r, w_gate, w_up, w_down):
        B, S, D = x.shape
        C = 1
        r = x @ w_r
        idx = torch.argsort(-r, axis=-1)[:, :C]
        idx_e = (lambda x, n, axis: torch.repeat_interleave(x, n, dim=axis))(idx.reshape(B, C, 1), D, axis=2)
        x_sel = (lambda x, i, axis: torch.take_along_dim(x, i, dim=axis))(x, idx_e, axis=1)
        g = _silu(x_sel @ w_gate)
        u = x_sel @ w_up
        y = (g * u) @ w_down
        r_sel = _sigmoid((lambda x, i, axis: torch.take_along_dim(x, i, dim=axis))(r, idx, axis=1))
        y = y * r_sel.reshape(B, C, 1)
        b_off = (torch.arange(B) * S).reshape(B, 1)
        flat_idx = (idx + b_off).reshape(B * C)
        zero = (x * 0.0).reshape(B * S, D)
        upd = _scatter_add(zero, flat_idx, y.reshape(B * C, D), axis=0)
        return x + upd.reshape(B, S, D)

    x = A_x
    x = x + _A_ref(_layernorm(x, axis=-1), A_dft_seq_re, A_dft_seq_im, A_dft_hid_re, A_dft_hid_im)
    x = x + _B_ref(_layernorm(x, axis=-1), B_w_r, B_w_gate, B_w_up, B_w_down)
    x = x + _A_ref(_layernorm(x, axis=-1), A_dft_seq_re, A_dft_seq_im, A_dft_hid_re, A_dft_hid_im)
    x = x + _B_ref(_layernorm(x, axis=-1), B_w_r, B_w_gate, B_w_up, B_w_down)
    return x
```

```python
import re
TRANS = ('v_exp_f32','v_log_f32','v_rcp_f32','v_rsq_f32','v_sqrt_f32','v_sin_f32','v_cos_f32','v_rcp_iflag_f32')
def regs_of(tok):
    tok = tok.strip()
    neg = tok.lstrip('-')
    m = re.fullmatch(r'\|?(?:abs\()?([vs])(\d+)\)?\|?', neg)
    if m: return {(m.group(1), int(m.group(2)))}
    m = re.fullmatch(r'([vs])\[(\d+):(\d+)\]', neg)
    if m: return {(m.group(1), i) for i in range(int(m.group(2)), int(m.group(3))+1)}
    if neg == 'vcc': return {('s',106),('s',107)}
    if neg == 'vcc_lo': return {('s',106)}
    if neg == 'vcc_hi': return {('s',107)}
    if neg == 'exec': return {('s',126),('s',127)}
    if neg == 'm0': return {('s',124)}
    return set()
def split_ops(s):
    out=[]; depth=0; cur=''
    for ch in s:
        if ch=='[': depth+=1
        if ch==']': depth-=1
        if ch==',' and depth==0: out.append(cur.strip()); cur=''
        else: cur+=ch
    if cur.strip(): out.append(cur.strip())
    return out
class Ins:
    def __init__(self, text):
        self.text = text
        t = text.split(';')[0].strip()
        parts = t.split(None,1)
        self.mn = parts[0]
        rest = parts[1] if len(parts)>1 else ''
        ops = split_ops(rest)
        mods = ''
        if ops:
            sp = ops[-1].split(None,1)
            ops[-1] = sp[0]
            if len(sp)>1: mods = sp[1]
        self.ops = ops; self.mods = mods
        mn = self.mn
        self.kind = 'other'
        self.w=set(); self.r=set(); self.A=set(); self.B=set(); self.C=set(); self.sdata=set()
        R = [regs_of(o) for o in ops]
        if mn.startswith('v_mfma'):
            self.kind='mfma'; self.w=R[0]; self.A=R[1]; self.B=R[2]; self.C=R[3]; self.r=R[1]|R[2]|R[3]
            self.passes = 8 if '32x32' in mn else 4
        elif mn.startswith('v_'):
            self.kind='valu'
            self.w=set(R[0]); self.r=set().union(*R[1:]) if len(R)>1 else set()
            if mn.startswith('v_cmp') and not R[0]: pass
            if mn.startswith(('v_fmac','v_dot2c','v_fma_mixlo','v_fma_mixhi','v_writelane','v_pk_fmac')): self.r|=R[0]
            if 'permlane' in mn and 'swap' in mn: self.w|=R[1]; self.r|=R[0]
            if mn.startswith(('v_add_co','v_sub_co','v_addc_co','v_subb_co')): self.w|=R[1]; self.r=set().union(*R[2:])
            if mn.startswith('v_cndmask') and len(ops)==3: self.r|=regs_of('vcc')
            if mn.startswith('v_cmpx'): self.w|=regs_of('exec')
            self.dpp = ('_dpp' in mn) or any(k in mods for k in ('row_','quad_perm','wave_'))
            if self.dpp: self.r|=R[0]
            self.trans = mn.replace('_e32','').replace('_e64','') in TRANS
            self.perm = 'permlane' in mn
            self.rl = mn.startswith(('v_readlane','v_readfirstlane'))
            self.dot = mn.startswith('v_dot')
            self.hi = mn.startswith('v_fma_mixhi') or 'dst_sel:WORD' in mods or 'dst_sel:BYTE' in mods
        elif mn.startswith('ds_'):
            self.kind='ds'
            if mn.startswith(('ds_read','ds_bpermute','ds_permute','ds_swizzle')) or '_rtn' in mn:
                self.w=R[0]; self.r=set().union(*R[1:])
            else: self.r=set().union(*R)
        elif mn.startswith(('buffer_','global_')):
            self.kind='vmem'
            if 'load' in mn: self.w=R[0]; self.r=set().union(*R[1:])
            elif 'store' in mn:
                self.r=set().union(*R)
                d = R[0] if mn.startswith('buffer_') else R[1]
                if mn.endswith(('x3','x4')): self.sdata=d
            else: self.r=set().union(*R) if R else set()
        elif mn.startswith('s_'):
            self.kind='salu'
            if mn.startswith(('s_cmp','s_cbranch','s_branch','s_waitcnt','s_barrier','s_nop','s_sleep','s_endpgm','s_setprio','s_bitcmp')):
                self.r=set().union(*R) if R else set()
            else:
                self.w=R[0] if R else set(); self.r=set().union(*R[1:]) if len(R)>1 else set()
def isv(s): return {x for x in s if x[0]=='v'}
def iss(s): return {x for x in s if x[0]=='s'}
def need(p, c):
    n=0
    if p.kind=='valu':
        pv=isv(p.w); ps=iss(p.w)
        if c.kind=='mfma' and pv & c.r: n=max(n,2)
        if c.kind=='valu':
            if c.dpp and pv & c.r: n=max(n,2)
            if c.perm and pv & (c.r|c.w): n=max(n,2)
            if c.rl and pv & c.r: n=max(n,1)
            if p.trans and pv & c.r: n=max(n,1)
            if p.hi and pv & (c.r|c.w): n=max(n,1)
            if p.dot and pv & (c.r|c.w):
                if not (c.mn==p.mn and not (pv & (regs_of(c.ops[1])|regs_of(c.ops[2])))): n=max(n,3)
            if ps & c.r:
                n=max(n,2)
                if c.mn.startswith(('v_readlane','v_writelane')): n=max(n,4)
            if ps & regs_of('exec'):
                if c.dpp: n=max(n,5)
                if c.rl or c.perm: n=max(n,4)
        if p.trans and c.kind in ('ds','vmem') and pv & c.r: n=max(n,1)
        if p.dot and c.kind in ('ds','vmem','mfma') and pv & c.r: n=max(n,3)
        if c.kind=='vmem' and ps & c.r: n=max(n,5)
        if c.kind=='mfma' and ps & regs_of('exec'): n=max(n,4)
        if c.kind=='salu' and ps & c.r: n=max(n,1)
    if p.kind=='mfma':
        big = {4:8, 8:12}[p.passes]
        if c.kind=='mfma':
            if p.w & (c.A|c.B): n=max(n,big)
            if p.w & c.C and not (p.w==c.C and p.passes==c.passes): n=max(n,big-2)
            if p.w & c.w and not (p.w==c.C): n=max(n,big-2)
        elif c.kind in ('valu','ds','vmem'):
            if p.w & (c.r|c.w): n=max(n,big)
            if c.kind=='valu' and p.C & c.w: n=max(n,{4:3,8:7}[p.passes])
    if p.kind in ('ds','vmem'):
        if c.kind=='valu' and c.dpp and isv(p.w) & c.r: n=max(n,2)
        if p.sdata and p.sdata & c.w: n=max(n,2)
    if p.kind=='salu' and ('s',124) in p.w and c.kind in ('vmem','ds'): n=max(n,1)
    return n
def maxneed(p):
    if p.kind=='mfma': return {4:8,8:12}[p.passes]
    if p.kind=='valu':
        if iss(p.w) - {('s',106),('s',107)}: return 5
        if p.dot: return 3
        return 2
    if p.kind in ('ds','vmem'): return 2 if (p.sdata or p.w) else 0
    return 0
class Asm:
    def __init__(self):
        self.lines=[]; self.hist=[]
        self.nops=0; self.count=0
    def _age(self, k): self.hist=[(p,d+k) for p,d in self.hist if d+k < 13]
    def raw(self, s): self.lines.append(s)
    def nop(self, k):
        while k>0:
            n=min(k,16); self.lines.append(f'    s_nop {n-1}'); self._age(n); k-=n; self.nops+=1
    def __call__(self, text):
        for t in text.strip().split('\n'):
            t=t.strip()
            if not t or t.startswith(';'):
                if t: self.lines.append('    '+t)
                continue
            if t.endswith(':'): self.label(t[:-1]); continue
            c=Ins(t)
            short=0
            for p,d in self.hist: short=max(short, need(p,c)-d)
            isbr = c.mn.startswith(('s_cbranch','s_branch','s_setpc','s_swappc'))
            if isbr and '!nd' not in t:
                for p,d in self.hist:
                    mx = maxneed(p)
                    short=max(short, mx-d-1)
            if short>0: self.nop(short)
            self.lines.append('    '+t); self.count+=1
            if c.mn=='s_nop': self._age(int(c.ops[0])+1)
            else:
                self._age(1); self.hist.append((c,0))
    def label(self, name):
        self.lines.append(name+':')
    def text(self): return '\n'.join(self.lines)+'\n'
```

```python
import sys, struct
from asmlib import Asm
NAME='interleave_layers__spectral_fnet__moe_arch_mod__prompt'
def fbits(x): return '0x%08x' % struct.unpack('<I', struct.pack('<f', x))[0]

class Cfg:
    stamps=False
    tim_arg=6
    tim_y=2
    force_slow=False
cfg=Cfg()

TABG=0x1000; TABL=0x2000
ARGL=0x2000; ARGR=0x800
SLOWF=0x4000; SLOWR=0x800
YHINT=0x5000
STAMP=0xE00000
CLR0=0x8000
HBUF=0x8000; HR=0x1000
YBUF=0xA000
SLOT=0x10000; SLOTR=0x8000; SLOTX=0x1000
LBASE=0x100000; CS=8448; LX=32*CS; LR=0x210000
GBASE=0x600000; GS=262144+768; GR=0x210000
WSSZ=0x1000000
L_STAT=0; L_U=0x400; L_YT=0x2400; L_DH=0x4800; LDS_TOTAL=0x5000
F_ACC=0; F_ACCB=0x800; F_ST=0x1000

def v(a,n=1): return f'v{a}' if n==1 else f'v[{a}:{a+n-1}]'
def s(a,n=1): return f's{a}' if n==1 else f's[{a}:{a+n-1}]'

WS='s[8:11]'; XS='s[12:15]'; OS='s[28:31]'
sW=3; sX=26; sJ=27; sIt=32; sTag=33; sFast=34; sKey=35; sMir=36; sDsc=38
sLst=39; sLst2=40; sLld=41; sLld2=42; sG0=43; sG4=44; sTabSt=45; sTabLd=46; sSlot=47; sRow0=48; sRow1=49; sCnt=50
sXcc=51; sStampI=37
sK512=52
sEps=54
sC16=56
sSc=58
sM7FF=60; sTop=61
sQmask=62
sT=64
sTS=80
X=2; WV=10; A8=14; XA=16; B1C=20; B1S=24; B1N=28; TWC=32; TWS=36; A2R=40; A2I=44; YR0=48; YR1=52; YI0=56; YI1=60
vXoff=64; vStW=65; vStR=66; vUW=67; vUR=68; vLst=69; vLld=70; vLldM=71; vYW=72; vYR=73; vGst=74; vGld=75; vSc0=76
vL8=78; vInv=79; LNP=80; MM=84; RS2=86; vN=88; vQ=89; vSTMP=90; vLane=91
T=92
AD=48; BC=50; ZO=58
a=Asm()
retry=[]
def poll_branch(lbl, sleep=1, pre=''):
    a(f's_cbranch_vccnz {lbl}_r ;!nd')
    retry.append((lbl, sleep, pre))
def emit_retries():
    for lbl,sl,pre in retry:
        a(f'{lbl}_r:')
        a.hist=[]
        a(f's_sub_u32 {s(sCnt)}, {s(sCnt)}, 1\ns_cbranch_scc1 L_end')
        if pre: a(pre)
        if sl: a(f's_sleep {sl}')
        a(f's_branch {lbl}')
    retry.clear()
def stamp():
    if not cfg.stamps: return
    a(f'''s_memrealtime {s(sTS,2)}
    s_waitcnt lgkmcnt(0)
    s_mov_b32 m0, {s(sStampI)}
    s_add_u32 {s(sStampI)}, {s(sStampI)}, 1
    v_writelane_b32 {v(vSTMP)}, {s(sTS)}, m0''')
def dump_stamps():
    if not cfg.stamps: return
    a(f'''s_lshl_b32 {s(sT)}, s2, 11
    s_lshl_b32 {s(sT+1)}, {s(sW)}, 8
    s_add_u32 {s(sT)}, {s(sT)}, {s(sT+1)}
    s_add_u32 {s(sT)}, {s(sT)}, {STAMP}
    v_lshlrev_b32 {v(vLane)}, 2, {v(vLane)}
    buffer_store_dword {v(vSTMP)}, {v(vLane)}, {WS}, {s(sT)} offen''')
def maxchk(regs, t):
    regs=list(regs); first=True
    a(f'v_max3_u32 {v(t)}, {v(regs[0])}, {v(regs[1])}, {v(regs[2])}' if len(regs)>=3 else f'v_max_u32 {v(t)}, {v(regs[0])}, {v(regs[1])}')
    rest=regs[3:] if len(regs)>=3 else []
    while len(rest)>=2:
        a(f'v_max3_u32 {v(t)}, {v(t)}, {v(rest[0])}, {v(rest[1])}'); rest=rest[2:]
    if rest: a(f'v_max_u32 {v(t)}, {v(t)}, {v(rest[0])}')
    a(f'v_cmp_eq_u32 vcc, -1, {v(t)}')

def fft_core(xr, xi, U, V, F, P):
    Ur,Ui=U,U+4
    a(f'v_mfma_f32_16x16x32_f16 {v(Ur,4)}, {v(xr,4)}, {v(B1C,4)}, 0')
    a(f'v_mfma_f32_16x16x32_f16 {v(Ui,4)}, {v(xr,4)}, {v(B1N,4)}, 0')
    if xi is not None:
        a(f'v_mfma_f32_16x16x32_f16 {v(Ur,4)}, {v(xi,4)}, {v(B1S,4)}, {v(Ur,4)}')
        a(f'v_mfma_f32_16x16x32_f16 {v(Ui,4)}, {v(xi,4)}, {v(B1C,4)}, {v(Ui,4)}')
    Vr,Vi=V,V+4
    for h in (0,2):
        a(f'v_pk_mul_f32 {v(Vi+h,2)}, {v(Ur+h,2)}, {v(TWS+h,2)}')
    for h in (0,2):
        a(f'v_pk_mul_f32 {v(Vr+h,2)}, {v(Ui+h,2)}, {v(TWS+h,2)}')
    for h in (0,2):
        a(f'v_pk_fma_f32 {v(Vr+h,2)}, {v(Ur+h,2)}, {v(TWC+h,2)}, {v(Vr+h,2)}')
        a(f'v_pk_fma_f32 {v(Vi+h,2)}, {v(Ui+h,2)}, {v(TWC+h,2)}, {v(Vi+h,2)} neg_lo:[0,0,1] neg_hi:[0,0,1]')
    for r in range(4): a(f'v_cvt_pk_f16_f32 {v(P+r)}, {v(Vr+r)}, {v(Vi+r)}')
    a(f'v_mfma_f32_16x16x32_f16 {v(F,4)}, {v(A2R,4)}, {v(P,4)}, 0')
    a(f'v_mfma_f32_16x16x32_f16 {v(F+4,4)}, {v(A2I,4)}, {v(P,4)}, 0')
    for r in range(4): a(f'v_cvt_pk_f16_f32 {v(P+r)}, {v(F+r)}, {v(F+4+r)}')

def main_prologue():
    t=T
    a(f'''
    s_and_b32 {s(sX)}, s2, 7
    s_lshr_b32 {s(sJ)}, s2, 3
    s_lshl_b32 {s(sRow0)}, s2, 10
    s_add_u32 {s(sRow1)}, {s(sRow0)}, 0x40000
    s_lshl_b32 {s(sT)}, {s(sW)}, 7
    v_lshlrev_b32 {v(t)}, 3, {v(vN)}
    v_add_u32 {v(t)}, {s(sT)}, {v(t)}                 ; 128w+8n
    v_lshl_add_u32 {v(vXoff)}, {v(vQ)}, 19, {v(t)}
    v_lshl_add_u32 {v(vUW)}, {v(vQ)}, 11, {v(t)}
    v_mov_b32 {v(t+4)}, -1
    v_mov_b32 {v(t+5)}, -1
    v_mov_b32 {v(t+6)}, -1
    v_mov_b32 {v(t+7)}, -1
    v_lshrrev_b32 {v(t+1)}, 4, v0
    v_mul_u32_u24 {v(t+2)}, {CS}, {v(t+1)}
    v_lshl_add_u32 {v(t+2)}, {v(vN)}, 4, {v(t+2)}
    v_mul_u32_u24 {v(vYR)}, 272, {v(t+1)}
    v_lshl_add_u32 {v(vYR)}, {v(vN)}, 4, {v(vYR)}
    s_mul_i32 {s(sLld)}, {s(sX)}, {LX}
    s_add_u32 {s(sLld)}, {s(sLld)}, {LBASE}
    s_lshl_b32 {s(sT)}, {s(sJ)}, 8
    s_add_u32 {s(sLst)}, {s(sLld)}, {s(sT)}
    s_add_u32 {s(sLst2)}, {s(sLst)}, {CS}
    s_add_u32 {s(sLld2)}, {s(sLld)}, 4096
    s_mov_b32 {s(sG0)}, {GBASE}
    s_mov_b32 {s(sG4)}, {GBASE+4*GS}
    s_mul_i32 {s(sT)}, {s(sX)}, {GS}
    s_lshr_b32 {s(sT+1)}, {s(sJ)}, 3          ; w'
    s_add_u32 {s(sT+2)}, {s(sT+1)}, 3
    s_and_b32 {s(sT+2)}, {s(sT+2)}, 3         ; (w'-1)&3
    s_lshl_b32 {s(sT+2)}, {s(sT+2)}, 16
    s_add_u32 {s(sT)}, {s(sT)}, {s(sT+2)}
    s_and_b32 {s(sT+2)}, {s(sJ)}, 7
    s_cmp_lt_u32 {s(sJ)}, 8
    s_cselect_b32 {s(sT+3)}, 7, 8
    s_cselect_b32 {s(sT+4)}, 112, 0
    s_lshl_b32 {s(sT+2)}, {s(sT+2)}, {s(sT+3)}
    s_add_u32 {s(sT)}, {s(sT)}, {s(sT+2)}
    v_lshlrev_b32 {v(vGst)}, 11, {v(t+1)}
    v_lshl_add_u32 {v(vGst)}, {v(vN)}, 4, {v(vGst)}
    v_and_b32 {v(t+3)}, 8, {v(vN)}
    v_mad_u32_u24 {v(vGst)}, {v(t+3)}, {s(sT+4)}, {v(vGst)}
    v_add_u32 {v(vGst)}, {s(sT)}, {v(vGst)}
    s_waitcnt lgkmcnt(0)
    s_mov_b32 s8, s24
    s_mov_b32 s9, s25
    s_mov_b32 s10, {WSSZ}
    s_mov_b32 s11, 0x20000
    s_mov_b32 s12, s4
    s_mov_b32 s13, s5
    s_mov_b32 s14, 0x200000
    s_mov_b32 s15, 0x20000
    buffer_load_dwordx2 {v(t+8,2)}, {v(vXoff)}, {XS}, {s(sRow0)} offen
    buffer_load_dwordx2 {v(t+10,2)}, {v(vXoff)}, {XS}, {s(sRow1)} offen
    global_load_dwordx2 {v(t+12,2)}, {v(t)}, s[16:17]
    buffer_load_dword {v(t+14)}, off, {WS}, 0 sc1
    s_add_u32 {s(sT+5)}, {s(sLst)}, {LR}
    s_add_u32 {s(sT+6)}, {s(sG0)}, {GR}
    buffer_store_dwordx4 {v(t+4,4)}, {v(t+2)}, {WS}, {s(sLst)} offen
    buffer_store_dwordx4 {v(t+4,4)}, {v(t+2)}, {WS}, {s(sT+5)} offen
    buffer_store_dwordx4 {v(t+4,4)}, {v(vGst)}, {WS}, {s(sG0)} offen sc1
    buffer_store_dwordx4 {v(t+4,4)}, {v(vGst)}, {WS}, {s(sT+6)} offen sc1
    s_mov_b32 s28, s6
    s_mov_b32 s29, s7
    s_mov_b32 s30, 0x200000
    s_mov_b32 s31, 0x20000
    s_lshl_b32 {s(sT)}, s2, 13
    s_add_u32 {s(sT)}, {s(sT)}, {CLR0}
    s_cmp_lt_u32 s2, 12
    s_cselect_b32 {s(sT)}, {s(sT)}, {WSSZ}
    v_lshlrev_b32 {v(t+1)}, 4, v0
    buffer_store_dwordx4 {v(t+4,4)}, {v(t+1)}, {WS}, {s(sT)} offen sc1
    v_mov_b32 {v(t+15)}, 0
    v_lshlrev_b32 {v(t+1)}, 2, v0
    v_and_b32 {v(t+1)}, 0x1fc, {v(t+1)}
    ds_write_b32 {v(t+1)}, {v(t+15)}
    ''')
    c=t+16
    fn,fq=c,c+1
    a(f'''
    v_cvt_f32_u32 {v(fn)}, {v(vN)}
    v_cvt_f32_u32 {v(fq)}, {v(vQ)}
    s_mov_b32 {s(sK512)}, {fbits(1/512)}
    s_mov_b32 {s(sK512+1)}, {fbits(1/512)}
    s_mov_b32 {s(sEps)}, {fbits(1e-5)}
    s_mov_b32 {s(sEps+1)}, {fbits(1e-5)}
    s_mov_b32 {s(sC16)}, {fbits(1/16)}
    s_mov_b32 {s(sC16+1)}, {fbits(1/16)}
    s_mov_b32 {s(sM7FF)}, 0x7ff
    s_mov_b32 {s(sTop)}, 0x80000000
    s_mov_b32 {s(sQmask)}, 0x11111111
    s_mov_b32 {s(sQmask+1)}, 0x11111111
    s_mov_b32 {s(sIt)}, 0
    s_mov_b32 {s(sFast)}, 1
    ''')
    a(f'''
    v_lshrrev_b32 {v(c+2)}, 2, {v(vN)}            ; w'
    v_and_b32 {v(c+3)}, 2, {v(vN)}
    v_and_b32 {v(c+4)}, 14, {v(vN)}
    v_cmp_eq_u32 vcc, 2, {v(c+4)}                 ; w'==0 && im
    v_cndmask_b32 {v(c+2)}, {v(c+2)}, 4, vcc
    v_cndmask_b32 {v(c+3)}, {v(c+3)}, 0, vcc
    v_mul_u32_u24 {v(c+4)}, {v(c+2)}, {v(vQ)}
    v_lshl_add_u32 {v(c+4)}, {v(c+4)}, 1, {v(c+3)}
    v_add_u32 {v(c+5)}, {v(c+4)}, {v(c+2)}
    v_cvt_f32_u32 {v(c+4)}, {v(c+4)}
    v_cvt_f32_u32 {v(c+5)}, {v(c+5)}
    v_mul_f32 {v(c+4)}, 0x3e000000, {v(c+4)}
    v_mul_f32 {v(c+5)}, 0x3e000000, {v(c+5)}
    v_cos_f32 {v(c+4)}, {v(c+4)}
    v_cos_f32 {v(c+5)}, {v(c+5)}
    v_and_b32 {v(c+3)}, 1, {v(vN)}
    v_cmp_eq_u32 vcc, 0, {v(c+3)}
    v_cvt_pk_f16_f32 {v(c+4)}, {v(c+4)}, {v(c+5)}
    v_cndmask_b32 {v(A8)}, 0, {v(c+4)}, vcc
    v_cndmask_b32 {v(A8+1)}, {v(c+4)}, 0, vcc
    ''')
    a(f'''
    s_mov_b32 {s(sT)}, 0x80008000
    v_mul_lo_u32 {v(c+3)}, {v(c+3)}, {s(sT)}
    s_and_b32 {s(sT+1)}, {s(sW)}, 1
    s_lshl_b32 {s(sT+1)}, {s(sT+1)}, 4
    v_add_u32 {v(c+2)}, {s(sT+1)}, {v(vN)}
    v_cvt_f32_u32 {v(c+2)}, {v(c+2)}
    ''')
    def trig4(step, base_mul, cosd, sind):
        a(f'v_mul_f32 {v(c+6)}, 4.0, {v(fq)}')
        if base_mul: a(f'v_add_f32 {v(c+6)}, {fbits(base_mul)}, {v(c+6)}')
        a(f'v_mul_f32 {v(c+6)}, {v(c+6)}, {v(step)}')
        a(f'v_add_f32 {v(c+7)}, {v(c+6)}, {v(step)}')
        a(f'v_add_f32 {v(c+8)}, {v(c+7)}, {v(step)}')
        a(f'v_add_f32 {v(c+9)}, {v(c+8)}, {v(step)}')
        for r in range(4):
            a(f'v_cos_f32 {v(cosd+r)}, {v(c+6+r)}')
            a(f'v_sin_f32 {v(sind+r)}, {v(c+6+r)}')
    co,si=c+10,c+14
    a(f'v_mul_f32 {v(c+4)}, {fbits(1/32)}, {v(c+2)}')
    trig4(c+4,0,co,si)
    a(f'''
    v_cvt_pk_f16_f32 {v(B1C)}, {v(co)}, {v(co+1)}
    v_cvt_pk_f16_f32 {v(B1C+1)}, {v(co+2)}, {v(co+3)}
    v_cvt_pk_f16_f32 {v(B1S)}, {v(si)}, {v(si+1)}
    v_cvt_pk_f16_f32 {v(B1S+1)}, {v(si+2)}, {v(si+3)}
    v_xor_b32 {v(B1C+2)}, {v(B1C)}, {v(c+3)}
    v_xor_b32 {v(B1C+3)}, {v(B1C+1)}, {v(c+3)}
    v_xor_b32 {v(B1S+2)}, {v(B1S)}, {v(c+3)}
    v_xor_b32 {v(B1S+3)}, {v(B1S+1)}, {v(c+3)}
    ''')
    for r in range(4): a(f'v_xor_b32 {v(B1N+r)}, {s(sT)}, {v(B1S+r)}')
    a(f'v_mul_f32 {v(c+4)}, {fbits(1/512)}, {v(c+2)}')
    trig4(c+4,0,TWC,TWS)
    def packRI(R,I):
        for r in range(4):
            a(f'v_cvt_pk_f16_f32 {v(R+r)}, {v(co+r)}, {v(si+r)}')
            a(f'v_cvt_pk_f16_f32 {v(I+r)}, -{v(si+r)}, {v(co+r)}')
    a(f'v_mul_f32 {v(c+4)}, {fbits(1/16)}, {v(fn)}')
    trig4(c+4,0,co,si); packRI(A2R,A2I)
    a(f'''
    v_add_u32 {v(vUW)}, {L_U}, {v(vUW)}
    s_lshr_b32 {s(sT)}, {s(sW)}, 1
    s_lshl_b32 {s(sT)}, {s(sT)}, 11
    s_add_u32 {s(sT+1)}, {s(sT)}, {L_U}
    v_lshlrev_b32 {v(vUR)}, 3, {v(vLane)}
    v_and_b32 {v(vL8)}, 0xf8, {v(vUR)}
    v_add_u32 {v(vUR)}, {s(sT+1)}, {v(vUR)}
    v_lshlrev_b32 {v(vStR)}, 5, {v(vQ)}
    v_lshrrev_b32 {v(c+4)}, 1, {v(vN)}
    v_and_b32 {v(c+4)}, 4, {v(c+4)}
    v_lshlrev_b32 {v(c+5)}, 1, {v(vN)}
    v_and_b32 {v(c+5)}, 8, {v(c+5)}
    v_add3_u32 {v(vStW)}, {v(vStR)}, {v(c+4)}, {v(c+5)}
    s_lshr_b32 {s(sT)}, {s(sW)}, 1
    s_mul_i32 {s(sT)}, {s(sT)}, {8*CS}
    s_and_b32 {s(sT+1)}, {s(sW)}, 1
    s_lshl_b32 {s(sT+1)}, {s(sT+1)}, 6
    s_add_u32 {s(sT)}, {s(sT)}, {s(sT+1)}
    v_mul_u32_u24 {v(vLst)}, {2*CS}, {v(vQ)}
    v_lshl_add_u32 {v(vLst)}, {v(vN)}, 2, {v(vLst)}
    v_add_u32 {v(vLst)}, {s(sT)}, {v(vLst)}
    s_sub_u32 {s(sT)}, 2047, s2
    v_lshlrev_b32 {v(vInv)}, 9, {v(vQ)}
    v_sub_u32 {v(vInv)}, {s(sT)}, {v(vInv)}
    s_lshl_b32 {s(sTabLd)}, {s(sX)}, 8
    s_add_u32 {s(sTabLd)}, {s(sTabLd)}, {TABL}
    s_lshl_b32 {s(sT)}, {s(sJ)}, 3
    s_add_u32 {s(sTabSt)}, {s(sTabLd)}, {s(sT)}
    s_lshl_b32 {s(sSlot)}, {s(sX)}, 12
    s_add_u32 {s(sSlot)}, {s(sSlot)}, {SLOT-SLOTR}
    s_getreg_b32 {s(sXcc)}, hwreg(HW_REG_XCC_ID)
    s_and_b32 {s(sXcc)}, {s(sXcc)}, 15
    ''')
    if cfg.force_slow: a(f's_mov_b32 {s(sXcc)}, {s(sJ)}')
    a(f'''
    s_lshr_b32 {s(sT)}, {s(sJ)}, 3
    s_and_b32 {s(sT+1)}, {s(sW)}, 2
    s_lshl_b32 {s(sT+1)}, {s(sT+1)}, 1
    s_cmp_lt_u32 {s(sJ)}, 8
    s_cselect_b32 {s(sT)}, {s(sT+1)}, {s(sT)}
    s_and_b32 {s(sT+1)}, {s(sW)}, 4
    s_lshl_b32 {s(sT+1)}, {s(sT+1)}, 5
    s_add_u32 {s(sT)}, {s(sT)}, {s(sT+1)}
    v_lshl_add_u32 {v(c+4)}, {v(vN)}, 3, {s(sT)}
    v_cvt_f32_u32 {v(c+4)}, {v(c+4)}
    v_mul_f32 {v(c+4)}, {fbits(1/256)}, {v(c+4)}
    ''')
    trig4(c+4,0,co,si); packRI(YR0,YI0)
    trig4(c+4,16.0,co,si); packRI(YR1,YI1)
    a(f'''
    s_lshr_b32 {s(sT)}, {s(sW)}, 2
    s_mul_i32 {s(sT)}, {s(sT)}, {16*272}
    s_and_b32 {s(sT+1)}, {s(sW)}, 3
    s_lshl_b32 {s(sT+2)}, {s(sT+1)}, 6
    s_add_u32 {s(sT)}, {s(sT)}, {s(sT+2)}
    s_add_u32 {s(sT)}, {s(sT)}, {L_YT}
    v_mul_u32_u24 {v(vYW)}, 272, {v(vN)}
    v_lshl_add_u32 {v(vYW)}, {v(vQ)}, 4, {v(vYW)}
    v_add_u32 {v(vYW)}, {s(sT)}, {v(vYW)}
    v_add_u32 {v(vYR)}, {L_YT}, {v(vYR)}
    s_lshl_b32 {s(sT)}, {s(sJ)}, 6
    s_lshl_b32 {s(sT+2)}, {s(sT+1)}, 4
    s_add_u32 {s(sT)}, {s(sT)}, {s(sT+2)}
    s_lshl_b32 {s(sT+3)}, {s(sJ)}, 5
    s_and_b32 {s(sT+2)}, {s(sT+2)}, 16
    s_add_u32 {s(sT+3)}, {s(sT+3)}, {s(sT+2)}
    s_add_u32 {s(sT+3)}, {s(sT+3)}, 1
    s_cmp_lt_u32 {s(sJ)}, 8
    s_cselect_b32 {s(sT)}, {s(sT+3)}, {s(sT)}
    v_add_u32 {v(c+4)}, {s(sT)}, {v(vN)}
    v_sub_u32 {v(c+5)}, 512, {v(c+4)}
    v_and_b32 {v(c+5)}, 511, {v(c+5)}
    v_lshrrev_b32 {v(c+6)}, 6, {v(c+4)}
    v_lshrrev_b32 {v(c+7)}, 6, {v(c+5)}
    v_mul_u32_u24 {v(c+6)}, {CS-256}, {v(c+6)}
    v_mul_u32_u24 {v(c+7)}, {CS-256}, {v(c+7)}
    v_lshl_add_u32 {v(c+6)}, {v(c+4)}, 2, {v(c+6)}
    v_lshl_add_u32 {v(c+7)}, {v(c+5)}, 2, {v(c+7)}
    v_lshl_add_u32 {v(vLld)}, {v(vQ)}, 10, {v(c+6)}
    v_lshl_add_u32 {v(vLldM)}, {v(vQ)}, 10, {v(c+7)}
    ''')
    a(f'''
    s_and_b32 {s(sT)}, {s(sX)}, 3                ; 0 => self
    s_lshr_b32 {s(sT+1)}, {s(sW)}, 2
    s_lshr_b32 {s(sT+2)}, {s(sX)}, 2
    s_mov_b32 {s(sSc)}, {fbits(16.0)}
    s_cmp_eq_u32 {s(sT)}, 0
    s_cselect_b32 {s(sMir)}, {s(sT+1)}, {s(sT+2)}
    s_cselect_b32 {s(sSc)}, {fbits(8.0)}, {s(sSc)}
    s_cselect_b32 {s(sDsc)}, {fbits(1/8)}, {s(sC16)}
    s_cselect_b32 {s(sT+3)}, -4, 0
    s_mov_b32 {s(sSc+1)}, {s(sSc)}
    s_sub_u32 {s(sT+4)}, 256, s2
    s_and_b32 {s(sT+4)}, {s(sT+4)}, 255
    s_cmp_eq_u32 {s(sMir)}, 0
    s_cselect_b32 {s(sT+4)}, s2, {s(sT+4)}       ; source g
    s_cselect_b32 {s(sT+5)}, 16, -16
    s_cselect_b32 {s(sT+6)}, 0, {509*4}
    s_add_u32 {s(sT+3)}, {s(sT+3)}, {s(sT+6)}
    s_mul_i32 {s(sT+6)}, {s(sT+5)}, {s(sW)}
    s_lshl_b32 {s(sT+6)}, {s(sT+6)}, 4
    s_add_u32 {s(sT+3)}, {s(sT+3)}, {s(sT+6)}    ; +-256w
    s_lshr_b32 {s(sT+6)}, {s(sT+4)}, 3
    s_lshl_b32 {s(sT+6)}, {s(sT+6)}, 11
    s_add_u32 {s(sT+3)}, {s(sT+3)}, {s(sT+6)}    ; t2*2K
    s_add_u32 {s(sT+6)}, {s(sT+4)}, 3
    s_and_b32 {s(sT+6)}, {s(sT+6)}, 3
    s_lshl_b32 {s(sT+6)}, {s(sT+6)}, 16
    s_add_u32 {s(sT+3)}, {s(sT+3)}, {s(sT+6)}    ; class*64K
    s_and_b32 {s(sT+6)}, {s(sT+4)}, 4
    s_lshl_b32 {s(sT+6)}, {s(sT+6)}, 8
    s_add_u32 {s(sT+3)}, {s(sT+3)}, {s(sT+6)}    ; t1==4 -> +1024
    v_mul_i32_i24 {v(vGld)}, {s(sT+5)}, {v(vN)}
    v_mul_u32_u24 {v(c+4)}, {GS}, {v(vQ)}
    v_add3_u32 {v(vGld)}, {v(vGld)}, {v(c+4)}, {s(sT+3)}
    v_lshrrev_b32 {v(c+4)}, 1, {v(vN)}
    v_and_b32 {v(c+4)}, 6, {v(c+4)}
    v_and_or_b32 {v(c+4)}, {v(vN)}, 1, {v(c+4)}
    v_lshl_add_u32 {v(c+18)}, {v(c+4)}, 8, s2
    v_cvt_f32_u32 {v(c+4)}, {v(c+18)}
    v_mul_f32 {v(c+4)}, {fbits(1/2048)}, {v(c+4)}
    s_cmp_eq_u32 {s(sMir)}, 0
    s_cselect_b32 {s(sT)}, 1.0, -1.0
    v_mul_f32 {v(c+4)}, {s(sT)}, {v(c+4)}
    v_mul_f32 {v(c+5)}, {v(c+4)}, {v(fq)}
    v_fma_f32 {v(c+6)}, {v(c+4)}, 4.0, {v(c+5)}
    v_cos_f32 {v(c+7)}, {v(c+5)}
    v_sin_f32 {v(c+8)}, {v(c+5)}
    v_cos_f32 {v(c+9)}, {v(c+6)}
    v_sin_f32 {v(c+10)}, {v(c+6)}
    v_bfe_u32 {v(c+4)}, {v(vN)}, 1, 1
    v_cmp_eq_u32 vcc, {s(sMir)}, {v(c+4)}
    v_cvt_pk_f16_f32 {v(c+7)}, {v(c+7)}, {v(c+8)}
    v_cvt_pk_f16_f32 {v(c+9)}, {v(c+9)}, {v(c+10)}
    v_cndmask_b32 {v(XA)}, 0, {v(c+7)}, vcc
    v_cndmask_b32 {v(XA+1)}, {v(c+7)}, 0, vcc
    v_cndmask_b32 {v(XA+2)}, 0, {v(c+9)}, vcc
    v_cndmask_b32 {v(XA+3)}, {v(c+9)}, 0, vcc
    v_and_b32 {v(c+4)}, 0x1cf, v0
    v_cmp_eq_u32 vcc, 0, {v(c+4)}
    v_mov_b32 {v(c+5)}, {s(sSc)}
    v_cndmask_b32 {v(vSc0)}, {v(c+5)}, 0, vcc
    v_cndmask_b32 {v(vSc0+1)}, {v(c+5)}, 0, vcc
    s_waitcnt lgkmcnt(0)
    s_barrier
    s_waitcnt vmcnt(5)
    v_readfirstlane_b32 {s(sTag)}, {v(t+14)}
    ''')
    for rho in (0,1):
        for k in (0,1):
            src=t+8+2*rho+k
            a(f'v_lshlrev_b32 {v(X+4*k+rho)}, 16, {v(src)}')
            a(f'v_and_b32 {v(X+4*k+2+rho)}, 0xffff0000, {v(src)}')
    for k in (0,1):
        a(f'v_lshlrev_b32 {v(WV+2*k)}, 16, {v(t+12+k)}')
        a(f'v_and_b32 {v(WV+2*k+1)}, 0xffff0000, {v(t+12+k)}')
    a(f's_add_u32 {s(sTag)}, {s(sTag)}, 1')

def main_loop():
    t=T
    S1,S2,S3=t,t+2,t+4
    a('L_top:')
    stamp()
    a(f'''
    v_pk_add_f32 {v(S1,2)}, {v(X,2)}, {v(X+2,2)}
    v_pk_add_f32 {v(t+6,2)}, {v(X+4,2)}, {v(X+6,2)}
    v_pk_mul_f32 {v(S2,2)}, {v(X,2)}, {v(X,2)}
    v_pk_mul_f32 {v(S3,2)}, {v(X,2)}, {v(WV,2)} op_sel:[0,0] op_sel_hi:[1,0]
    v_pk_add_f32 {v(S1,2)}, {v(S1,2)}, {v(t+6,2)}
    v_pk_fma_f32 {v(S2,2)}, {v(X+2,2)}, {v(X+2,2)}, {v(S2,2)}
    v_pk_fma_f32 {v(S3,2)}, {v(X+2,2)}, {v(WV,2)}, {v(S3,2)} op_sel:[0,1,0] op_sel_hi:[1,1,1]
    v_pk_fma_f32 {v(S2,2)}, {v(X+4,2)}, {v(X+4,2)}, {v(S2,2)}
    v_pk_fma_f32 {v(S3,2)}, {v(X+4,2)}, {v(WV+2,2)}, {v(S3,2)} op_sel:[0,0,0] op_sel_hi:[1,0,1]
    v_pk_fma_f32 {v(S2,2)}, {v(X+6,2)}, {v(X+6,2)}, {v(S2,2)}
    v_pk_fma_f32 {v(S3,2)}, {v(X+6,2)}, {v(WV+2,2)}, {v(S3,2)} op_sel:[0,1,0] op_sel_hi:[1,1,1]
    s_cmp_lg_u32 {s(sIt)}, 0
    s_cbranch_scc1 L_s3ok
    v_pk_add_f32 {v(S3,2)}, {v(WV,2)}, {v(WV+2,2)}
    v_add_f32 {v(S3)}, {v(S3)}, {v(S3+1)}
    v_mov_b32 {v(S3+1)}, {v(S3)}
    s_nop 0
    L_s3ok:
    ''')
    for q_ in (S1,S2,S3): a(f'v_add_f32_dpp {v(q_)}, {v(q_)}, {v(q_)} row_ror:8 row_mask:0xf bank_mask:0x3')
    for q_ in (S1,S2,S3): a(f'v_add_f32_dpp {v(q_)}, {v(q_+1)}, {v(q_+1)} row_ror:8 row_mask:0xf bank_mask:0xc')
    a(f'''
    v_add_f32_dpp {v(S1)}, {v(S1)}, {v(S1)} row_half_mirror row_mask:0xf bank_mask:0x5
    v_add_f32_dpp {v(S3)}, {v(S3)}, {v(S3)} row_half_mirror row_mask:0xf bank_mask:0xf
    v_add_f32_dpp {v(S1)}, {v(S2)}, {v(S2)} row_half_mirror row_mask:0xf bank_mask:0xa
    v_add_f32_dpp {v(S3)}, {v(S3)}, {v(S3)} quad_perm:[1,0,3,2] row_mask:0xf bank_mask:0xf
    v_add_f32_dpp {v(S1)}, {v(S1)}, {v(S1)} quad_perm:[1,0,3,2] row_mask:0xf bank_mask:0xf
    v_add_f32_dpp {v(S3)}, {v(S3)}, {v(S3)} quad_perm:[2,3,0,1] row_mask:0xf bank_mask:0xf
    v_add_f32_dpp {v(S1)}, {v(S1)}, {v(S1)} quad_perm:[2,3,0,1] row_mask:0xf bank_mask:0xf
    s_mov_b64 exec, {s(sQmask,2)}
    ds_add_f32 {v(vStW)}, {v(S3)} offset:16
    ds_add_f32 {v(vStW)}, {v(S1)}
    s_mov_b64 exec, -1
    v_add_u32 {v(vStW)}, 128, {v(vStW)}
    s_waitcnt vmcnt(3) lgkmcnt(0)
    s_barrier
    ds_read_b128 {v(t,4)}, {v(vStR)}
    ds_read_b64 {v(S3,2)}, {v(vStR)} offset:16
    v_add_u32 {v(vStR)}, 128, {v(vStR)}
    s_waitcnt lgkmcnt(0)
    ''')
    VAR,RS,CC,NM=t+6,t+8,t+10,t+12
    K=t+14
    a(f'''
    v_pk_mul_f32 {v(MM,2)}, {v(S1,2)}, {s(sK512,2)}
    v_pk_mul_f32 {v(S1,2)}, {v(MM,2)}, {v(MM,2)}
    v_pk_fma_f32 {v(VAR,2)}, {v(S2,2)}, {s(sK512,2)}, {v(S1,2)} neg_lo:[0,0,1] neg_hi:[0,0,1]
    v_pk_add_f32 {v(S1,2)}, {v(VAR,2)}, {s(sEps,2)}
    v_rsq_f32_e64 {v(RS)}, |{v(S1)}|
    v_rsq_f32_e64 {v(RS+1)}, |{v(S1+1)}|
    s_cmp_lg_u32 {s(sIt)}, 0
    s_cbranch_scc1 L_mid
    ; ---- it==0
    v_mul_f32 {v(S3)}, {s(sK512)}, {v(S3)}
    v_pk_mul_f32 {v(CC,2)}, {v(RS,2)}, {s(sC16,2)}
    s_mov_b32 {s(sKey)}, {s(sXcc)}
    v_pk_add_f32 {v(WV,2)}, {v(WV,2)}, {v(S3,2)} op_sel_hi:[1,0] neg_lo:[0,1] neg_hi:[0,1]
    v_pk_add_f32 {v(WV+2,2)}, {v(WV+2,2)}, {v(S3,2)} op_sel_hi:[1,0] neg_lo:[0,1] neg_hi:[0,1]
    s_branch L_tabst
    L_mid:
    v_pk_mul_f32 {v(S3,2)}, {v(S3,2)}, {v(RS,2)}
    v_add_u32 {v(K+2)}, 0xffffff00, {v(vInv)}
    v_ashrrev_i32 {v(K)}, 31, {v(S3)}
    v_ashrrev_i32 {v(K+1)}, 31, {v(S3+1)}
    v_bitop3_b32 {v(K)}, {v(S3)}, {v(K)}, {s(sTop)} bitop3:0x1e
    v_bitop3_b32 {v(K+1)}, {v(S3+1)}, {v(K+1)}, {s(sTop)} bitop3:0x1e
    v_bfi_b32 {v(K)}, {s(sM7FF)}, {v(vInv)}, {v(K)}
    v_bfi_b32 {v(K+1)}, {s(sM7FF)}, {v(K+2)}, {v(K+1)}
    v_max_u32 {v(K)}, {v(K)}, {v(K+1)}
    v_pk_add_f32 {v(CC,2)}, {v(RS,2)}, 1.0 op_sel_hi:[1,0]
    v_pk_mul_f32 {v(NM,2)}, {v(MM,2)}, {v(RS,2)}
    v_max_u32_dpp {v(K)}, {v(K)}, {v(K)} row_bcast:15 row_mask:0xa bank_mask:0xf
    v_pk_mul_f32 {v(VAR,2)}, {v(VAR,2)}, {v(CC,2)}
    v_pk_fma_f32 {v(VAR,2)}, {v(VAR,2)}, {v(CC,2)}, {s(sEps,2)}
    v_max_u32_dpp {v(K)}, {v(K)}, {v(K)} row_bcast:31 row_mask:0xc bank_mask:0xf
    v_rsq_f32_e64 {v(RS2)}, |{v(VAR)}|
    v_rsq_f32_e64 {v(RS2+1)}, |{v(VAR+1)}|
    v_readlane_b32 {s(sKey)}, {v(K)}, 63
    v_pk_mul_f32 {v(CC,2)}, {v(CC,2)}, {s(sC16,2)}
    v_pk_mul_f32 {v(CC,2)}, {v(CC,2)}, {v(RS2,2)}
    L_tabst:
    s_cmp_lg_u32 {s(sW)}, 0
    s_cbranch_scc1 L_tabst_done
    v_mov_b32 {v(K)}, {s(sTag)}
    v_mov_b32 {v(K+1)}, {s(sKey)}
    s_mov_b64 exec, 1
    s_cmp_eq_u32 {s(sFast)}, 0
    s_cbranch_scc1 L_tabst_slow
    buffer_store_dwordx2 {v(K,2)}, off, {WS}, {s(sTabSt)}
    L_tabst_back:
    s_mov_b64 exec, -1
    L_tabst_done:
    ''')
    Z=t+16; ZP=t+24; D0=t+28; D1=t+32
    a(f'v_pk_mul_f32 {v(S1,2)}, {v(MM,2)}, {v(CC,2)}')
    for c_ in range(4):
        a(f'v_pk_fma_f32 {v(Z+2*c_,2)}, {v(X+2*c_,2)}, {v(CC,2)}, {v(S1,2)} neg_lo:[0,0,1] neg_hi:[0,0,1]')
    for c_ in range(4): a(f'v_cvt_pk_f16_f32 {v(ZP+c_)}, {v(Z+2*c_)}, {v(Z+2*c_+1)}')
    a(f'''
    v_mfma_f32_16x16x16_f16 {v(D0,4)}, {v(A8,2)}, {v(ZP,2)}, 0
    v_mfma_f32_16x16x16_f16 {v(D1,4)}, {v(A8,2)}, {v(ZP+2,2)}, 0
    s_cmp_eq_u32 {s(sIt)}, 0
    s_cbranch_scc1 L_noln
    ''')
    for c_ in range(4):
        a(f'v_pk_fma_f32 {v(Z+2*c_,2)}, {v(X+2*c_,2)}, {v(RS,2)}, {v(NM,2)} neg_lo:[0,0,1] neg_hi:[0,0,1]')
    for c_ in range(4):
        a(f'v_pk_add_f32 {v(X+2*c_,2)}, {v(X+2*c_,2)}, {v(Z+2*c_,2)}')
    for rho in (0,1):
        for k in (0,1):
            a(f'v_cvt_pk_bf16_f32 {v(LNP+2*rho+k)}, {v(Z+4*k+rho)}, {v(Z+4*k+2+rho)}')
    a(f'''
    s_cmp_eq_u32 {s(sIt)}, 2
    s_cbranch_scc1 L_tab
    L_noln:
    v_cvt_pk_f16_f32 {v(ZP)}, {v(D0)}, {v(D0+1)}
    v_cvt_pk_f16_f32 {v(ZP+1)}, {v(D1)}, {v(D1+1)}
    v_cvt_pk_f16_f32 {v(ZP+2)}, {v(D0+2)}, {v(D0+3)}
    v_cvt_pk_f16_f32 {v(ZP+3)}, {v(D1+2)}, {v(D1+3)}
    ds_write_b64 {v(vUW)}, {v(ZP,2)}
    ds_write_b64 {v(vUW)}, {v(ZP+2,2)} offset:1024
    s_cmp_lg_u32 {s(sIt)}, 0
    s_cbranch_scc1 L_ubar
    s_waitcnt vmcnt(0)
    L_ubar:
    s_waitcnt lgkmcnt(0)
    s_barrier
    ds_read_b64_tr_b16 {v(t,2)}, {v(vUR)}
    ds_read_b64_tr_b16 {v(t+2,2)}, {v(vUR)} offset:512
    ds_read_b64_tr_b16 {v(t+4,2)}, {v(vUR)} offset:1024
    ds_read_b64_tr_b16 {v(t+6,2)}, {v(vUR)} offset:1536
    s_or_b32 {s(sT)}, {s(sIt)}, {s(sW)}
    s_cbranch_scc1 L_notabg
    s_add_u32 {s(sT)}, {s(sTabSt)}, {TABG-TABL}
    s_mov_b64 exec, 1
    buffer_store_dwordx2 {v(K,2)}, off, {WS}, {s(sT)} sc1
    s_mov_b64 exec, -1
    L_notabg:
    s_waitcnt lgkmcnt(0)
    ''')
    P=t+32
    fft_core(t, t+4, t+16, t+24, t+16, P)
    def lstores(fl):
        a(f'''
        buffer_store_dword {v(P)}, {v(vLst)}, {WS}, {s(sLst)} offen {fl}
        buffer_store_dword {v(P+1)}, {v(vLst)}, {WS}, {s(sLst)} offen offset:128 {fl}
        buffer_store_dword {v(P+2)}, {v(vLst)}, {WS}, {s(sLst2)} offen {fl}
        buffer_store_dword {v(P+3)}, {v(vLst)}, {WS}, {s(sLst2)} offen offset:128 {fl}
        ''')
    lstores('')
    stamp()
    a(f'''
    s_mov_b32 {s(sT+8)}, 6
    L_tab:
    buffer_load_dwordx2 {v(t,2)}, {v(vL8)}, {WS}, {s(sTabLd)} offen sc1
    s_waitcnt vmcnt(0)
    v_cmp_ne_u32 vcc, {s(sTag)}, {v(t)}
    ''')
    poll_branch('L_tab', 0, f'''s_cmp_lg_u32 {s(sIt)}, 0
        s_cbranch_scc1 L_tab
        s_sub_u32 {s(sT+8)}, {s(sT+8)}, 1
        s_cmp_lg_u32 {s(sT+8)}, 0
        s_cbranch_scc1 L_tab
        s_add_u32 {s(sTabLd)}, {s(sTabLd)}, {TABG-TABL}''')
    a(f'''
    s_cmp_lg_u32 {s(sIt)}, 0
    s_cbranch_scc1 L_argw
    v_cmp_ne_u32 vcc, {s(sKey)}, {v(t+1)}
    s_and_b32 {s(sTabLd)}, {s(sTabSt)}, 0xffffff00
    s_cmp_eq_u64 vcc, 0
    s_cselect_b32 {s(sFast)}, 1, 0
    s_branch L_tabdone
    L_argw:
    v_cmp_lt_u32 vcc, {s(sKey)}, {v(t+1)}
    s_mov_b32 {s(sT+9)}, 64
    s_cbranch_vccz L_winner
    L_winback:
    s_cmp_eq_u32 {s(sIt)}, 2
    s_cbranch_scc1 L_fin
    L_tabdone:
    s_cmp_eq_u32 {s(sFast)}, 0
    s_cbranch_scc1 L_slow
    L_slowback:
    s_add_u32 {s(sTabLd)}, {s(sTabLd)}, {ARGR}
    s_add_u32 {s(sTabSt)}, {s(sTabSt)}, {ARGR}
    s_add_u32 {s(sSlot)}, {s(sSlot)}, {SLOTR}
    s_cmp_lt_u32 {s(sJ)}, 8
    s_cbranch_scc1 L_yself
    L_y:
    ''')
    B=t
    def lloads(dst, va):
        for k in range(8):
            so = sLld if k<4 else sLld2
            a(f'buffer_load_dword {v(dst+k)}, {v(va)}, {WS}, {s(so)} offen offset:{256*(k&3)} sc1')
    lloads(B, vLld)
    a('s_waitcnt vmcnt(0)')
    maxchk(range(B,B+8), t+16)
    poll_branch('L_y', 0)
    a('L_yjoin:')
    stamp()
    R,I=t+16,t+20
    a(f'''
    v_mfma_f32_16x16x32_f16 {v(R,4)}, {v(B,4)}, {v(YR0,4)}, 0
    v_mfma_f32_16x16x32_f16 {v(I,4)}, {v(B,4)}, {v(YI0,4)}, 0
    v_mfma_f32_16x16x32_f16 {v(R,4)}, {v(B+4,4)}, {v(YR1,4)}, {v(R,4)}
    v_mfma_f32_16x16x32_f16 {v(I,4)}, {v(B+4,4)}, {v(YI1,4)}, {v(I,4)}
    s_add_u32 {s(sLst)}, {s(sLst)}, {LR}
    s_add_u32 {s(sLst2)}, {s(sLst2)}, {LR}
    s_add_u32 {s(sLld)}, {s(sLld)}, {LR}
    s_add_u32 {s(sLld2)}, {s(sLld2)}, {LR}
    ''')
    for r in range(4): a(f'v_cvt_pk_f16_f32 {v(B+r)}, {v(R+r)}, {v(I+r)}')
    a(f'''
    ds_write_b128 {v(vYW)}, {v(B,4)}
    s_waitcnt lgkmcnt(0)
    s_barrier
    ds_read_b128 {v(B+4,4)}, {v(vYR)}
    s_waitcnt lgkmcnt(0)
    buffer_store_dwordx4 {v(B+4,4)}, {v(vGst)}, {WS}, {s(sG0)} offen sc1
    ''')
    stamp()
    a(f'''
    s_cmp_lg_u32 {s(sIt)}, 0
    s_cbranch_scc1 L_hdr
    v_lshlrev_b32 {v(t+16)}, 5, {v(vLane)}
    L_tabg:
    buffer_load_dwordx4 {v(t+8,4)}, {v(t+16)}, {WS}, 0 offen offset:{TABG-0x1000+0} sc1
    buffer_load_dwordx4 {v(t+12,4)}, {v(t+16)}, {WS}, 0 offen offset:{16} sc1
    s_waitcnt vmcnt(0)
    '''.replace(f'{WS}, 0 offen', f'{WS}, {s(sT+10)} offen').replace('L_tabg:', f's_mov_b32 {s(sT+10)}, {TABG}\nL_tabg:'))
    a(f'''
    v_xor_b32 {v(t+8)}, {s(sTag)}, {v(t+8)}
    v_xor_b32 {v(t+10)}, {s(sTag)}, {v(t+10)}
    v_xor_b32 {v(t+12)}, {s(sTag)}, {v(t+12)}
    v_xor_b32 {v(t+14)}, {s(sTag)}, {v(t+14)}
    v_or3_b32 {v(t+8)}, {v(t+8)}, {v(t+10)}, {v(t+12)}
    v_or_b32 {v(t+8)}, {v(t+8)}, {v(t+14)}
    v_cmp_ne_u32 vcc, 0, {v(t+8)}
    ''')
    poll_branch('L_tabg', 2)
    a('L_g:')
    C0,C1=t,t+4
    a(f'''
    buffer_load_dwordx4 {v(C0,4)}, {v(vGld)}, {WS}, {s(sG0)} offen sc1
    buffer_load_dwordx4 {v(C1,4)}, {v(vGld)}, {WS}, {s(sG4)} offen sc1
    s_waitcnt vmcnt(0)
    ''')
    maxchk(range(t,t+8), t+16)
    poll_branch('L_g', 1)
    stamp()
    E0,E1=t+8,t+12
    a(f'''
    s_cmp_lg_u32 {s(sMir)}, 0
    s_cbranch_scc1 L_xmir
    v_mfma_f32_16x16x16_f16 {v(E0,4)}, {v(XA,2)}, {v(C0,2)}, 0
    v_mfma_f32_16x16x16_f16 {v(E1,4)}, {v(XA,2)}, {v(C0+2,2)}, 0
    v_mfma_f32_16x16x16_f16 {v(E0,4)}, {v(XA+2,2)}, {v(C1,2)}, {v(E0,4)}
    v_mfma_f32_16x16x16_f16 {v(E1,4)}, {v(XA+2,2)}, {v(C1+2,2)}, {v(E1,4)}
    L_xjoin:
    s_add_u32 {s(sG0)}, {s(sG0)}, {GR}
    s_add_u32 {s(sG4)}, {s(sG4)}, {GR}
    s_cmp_lg_u32 {s(sIt)}, 0
    s_cbranch_scc1 L_corr
    L_corrback:
    s_add_u32 {s(sIt)}, {s(sIt)}, 1
    v_pk_fma_f32 {v(X,2)}, {v(E0,2)}, {v(vSc0,2)}, {v(X,2)}
    v_pk_fma_f32 {v(X+2,2)}, {v(E0+2,2)}, {s(sSc,2)}, {v(X+2,2)}
    v_pk_fma_f32 {v(X+4,2)}, {v(E1,2)}, {s(sSc,2)}, {v(X+4,2)}
    v_pk_fma_f32 {v(X+6,2)}, {v(E1+2,2)}, {s(sSc,2)}, {v(X+6,2)}
    s_branch L_top
    ''')
    a.hist=[]
    a(f'''
    L_xmir:
    v_mfma_f32_16x16x16_f16 {v(E0,4)}, {v(XA,2)}, {v(C0+2,2)}, 0
    v_mfma_f32_16x16x16_f16 {v(E1,4)}, {v(XA,2)}, {v(C0,2)}, 0
    v_mfma_f32_16x16x16_f16 {v(E0,4)}, {v(XA+2,2)}, {v(C1+2,2)}, {v(E0,4)}
    v_mfma_f32_16x16x16_f16 {v(E1,4)}, {v(XA+2,2)}, {v(C1,2)}, {v(E1,4)}
    s_branch L_xjoin
    L_yself:
    ''')
    lloads(B, vLld); lloads(B+8, vLldM)
    a('s_waitcnt vmcnt(0)')
    maxchk(range(B,B+16), t+16)
    poll_branch('L_yself', 0)
    a(f'''
    s_bitcmp1_b32 {s(sW)}, 1
    s_cbranch_scc1 L_yself4
    ''')
    for k in range(8): a(f'v_pk_add_f16 {v(B+k)}, {v(B+k)}, {v(B+8+k)} neg_hi:[0,1]')
    a('s_branch L_yjoin\nL_yself4:')
    for k in range(8): a(f'v_pk_add_f16 {v(B+k)}, {v(B+k)}, {v(B+8+k)} op_sel:[1,1] op_sel_hi:[0,0] neg_hi:[1,0]')
    a('s_branch L_yjoin')
    a(f'''
    L_tabst_slow:
    buffer_store_dwordx2 {v(K,2)}, off, {WS}, {s(sTabSt)} sc1
    s_branch L_tabst_back
    ''')
    W_=t+4
    a(f'''
    L_winner:
    s_andn2_b32 {s(sT)}, {s(sM7FF)}, {s(sKey)}      ; idx
    s_lshr_b32 {s(sT+9)}, {s(sT)}, 8                ; s1
    s_bitcmp1_b32 {s(sT+9)}, 0
    s_cselect_b64 vcc, -1, 0
    s_lshl_b32 {s(sT+1)}, {s(sT+9)}, 3
    s_and_b32 {s(sT+1)}, {s(sT+1)}, 0x30
    v_cndmask_b32 {v(W_)}, {v(LNP)}, {v(LNP+2)}, vcc
    v_cndmask_b32 {v(W_+1)}, {v(LNP+1)}, {v(LNP+3)}, vcc
    v_and_b32 {v(W_+2)}, 0x3ff, {v(vXoff)}
    s_bfm_b64 exec, 16, {s(sT+1)}
    buffer_store_dwordx2 {v(W_,2)}, {v(W_+2)}, {WS}, {s(sSlot)} offen sc1
    v_mov_b32 {v(W_+8)}, {s(sKey)}
    v_cndmask_b32 {v(W_+9)}, {v(MM)}, {v(MM+1)}, vcc
    v_cndmask_b32 {v(W_+10)}, {v(RS2)}, {v(RS2+1)}, vcc
    v_mov_b32 {v(W_+11)}, {s(sKey)}
    s_cmp_lg_u32 {s(sW)}, 0
    s_cbranch_scc1 L_nohdr
    buffer_store_dwordx4 {v(W_+8,4)}, off, {WS}, {s(sSlot)} offset:3072 sc1
    L_nohdr:
    ''')
    for c_ in range(4): a(f'v_cndmask_b32 {v(W_+4+c_)}, {v(X+2*c_)}, {v(X+2*c_+1)}, vcc')
    a(f'''
    v_lshlrev_b32 {v(W_+2)}, 1, {v(W_+2)}
    buffer_store_dwordx4 {v(W_+4,4)}, {v(W_+2)}, {WS}, {s(sSlot)} offen offset:1024 sc1
    s_mov_b64 exec, -1
    s_branch L_winback
    ''')
    a('L_slow:')
    lstores('sc1')
    a(f'''
    s_waitcnt vmcnt(0)
    s_barrier
    s_add_u32 {s(sT)}, {s(sTabSt)}, {SLOWF-TABL}
    s_add_u32 {s(sT+1)}, {s(sTabLd)}, {SLOWF-TABL}
    v_mov_b32 {v(t)}, {s(sTag)}
    s_cmp_lg_u32 {s(sW)}, 0
    s_cbranch_scc1 L_slowp
    buffer_store_dword {v(t)}, off, {WS}, {s(sT)} sc1
    L_slowp:
    buffer_load_dword {v(t+1)}, {v(vL8)}, {WS}, {s(sT+1)} offen sc1
    s_waitcnt vmcnt(0)
    v_cmp_ne_u32 vcc, {s(sTag)}, {v(t+1)}
    ''')
    poll_branch('L_slowp', 2)
    a('s_branch L_slowback')
    H=t+8
    sIdx=sT+11; sAl=sT+12
    a(f'''
    L_hdr:
    v_and_b32 {v(t+16)}, 7, {v(vLane)}
    v_lshlrev_b32 {v(t+16)}, 12, {v(t+16)}
    s_mov_b32 {s(sT+10)}, {SLOT}
    L_hdrp:
    buffer_load_dwordx4 {v(H,4)}, {v(t+16)}, {WS}, {s(sT+10)} offen offset:3072 sc1
    s_waitcnt vmcnt(0)
    ''')
    maxchk(range(H,H+4), t+17)
    poll_branch('L_hdrp', 2)
    a(f'''
    v_max_u32_dpp {v(H+3)}, {v(H)}, {v(H)} row_half_mirror row_mask:0xf bank_mask:0xf
    v_max_u32_dpp {v(H+3)}, {v(H+3)}, {v(H+3)} quad_perm:[1,0,3,2] row_mask:0xf bank_mask:0xf
    v_max_u32_dpp {v(H+3)}, {v(H+3)}, {v(H+3)} quad_perm:[2,3,0,1] row_mask:0xf bank_mask:0xf
    v_readfirstlane_b32 {s(sIdx)}, {v(H+3)}
    v_lshlrev_b32 {v(t+16)}, 5, {v(vLane)}
    s_andn2_b32 {s(sIdx)}, {s(sM7FF)}, {s(sIdx)}
    s_and_b32 {s(sT)}, {s(sIdx)}, 7
    s_lshl_b32 {s(sT+1)}, {s(sT)}, 12
    s_add_u32 {s(sT+10)}, {s(sT+10)}, {s(sT+1)}
    v_readlane_b32 {s(sT+13)}, {v(H+1)}, {s(sT)}
    v_readlane_b32 {s(sT+14)}, {v(H+2)}, {s(sT)}
    L_basep:
    buffer_load_dwordx4 {v(BC+2,4)}, {v(t+16)}, {WS}, {s(sT+10)} offen offset:1024 sc1
    buffer_load_dwordx4 {v(BC+6,4)}, {v(t+16)}, {WS}, {s(sT+10)} offen offset:1040 sc1
    v_lshrrev_b32 {v(t+17)}, 1, {v(vN)}
    v_and_b32 {v(t+17)}, 6, {v(t+17)}
    v_and_or_b32 {v(t+17)}, {v(vN)}, 1, {v(t+17)}
    v_lshl_add_u32 {v(t+17)}, {v(t+17)}, 8, s2
    v_mul_u32_u24 {v(t+17)}, {s(sIdx)}, {v(t+17)}
    v_and_b32 {v(t+17)}, 0x7ff, {v(t+17)}
    v_cvt_f32_u32 {v(t+17)}, {v(t+17)}
    v_mul_f32 {v(t+17)}, {fbits(1/2048)}, {v(t+17)}
    v_cos_f32 {v(t+18)}, {v(t+17)}
    v_sin_f32 {v(t+19)}, {v(t+17)}
    v_and_b32 {v(t+17)}, 0x32, {v(vLane)}
    v_cvt_pk_f16_f32 {v(t+18)}, {v(t+18)}, {v(t+19)}
    v_cmp_eq_u32 vcc, 0, {v(t+17)}
    v_cndmask_b32 {v(AD)}, 0, {v(t+18)}, vcc
    v_cmp_eq_u32 vcc, 2, {v(t+17)}
    v_cndmask_b32 {v(AD+1)}, 0, {v(t+18)}, vcc
    s_sub_u32 {s(sT)}, 2047, {s(sIdx)}
    s_add_u32 {s(sT+1)}, {s(sT)}, 256
    v_cmp_eq_u32 vcc, {s(sT)}, {v(vInv)}
    v_cndmask_b32 {v(BC)}, 0, 1.0, vcc
    v_cmp_eq_u32 vcc, {s(sT+1)}, {v(vInv)}
    v_cndmask_b32 {v(BC+1)}, 0, 1.0, vcc
    s_waitcnt vmcnt(0)
    ''')
    maxchk(range(BC+2,BC+10), t+17)
    poll_branch('L_basep', 2)
    for k in range(8): a(f'v_subrev_f32 {v(BC+2+k)}, {s(sT+13)}, {v(BC+2+k)}')
    a(f'''
    v_mov_b32 {v(BC+10)}, {s(sT+14)}
    v_mul_f32 {v(BC+10)}, {s(sDsc)}, {v(BC+10)}         ; rs2*dsc
    s_branch L_g
    ''')
    Y=t+16; YX=t+24; u=t+28
    a(f'''
    L_corr:
    s_lshl_b32 {s(sT)}, {s(sX)}, 7
    s_add_u32 {s(sT)}, {s(sT)}, {YHINT}
    v_and_b32 {v(u)}, 3, {v(vLane)}
    v_lshlrev_b32 {v(u)}, 2, {v(u)}
    v_and_b32 {v(u+1)}, 1, {v(vLane)}
    v_lshlrev_b32 {v(u+1)}, 5, {v(u+1)}
    v_lshrrev_b32 {v(u+2)}, 1, {v(vLane)}
    v_lshl_add_u32 {v(u+1)}, {v(u+2)}, 7, {v(u+1)}        ; (l>>1)*128+(l&1)*32
    v_lshrrev_b32 {v(u+2)}, 2, {v(vN)}
    v_lshlrev_b32 {v(u+2)}, 7, {v(u+2)}
    v_lshl_add_u32 {v(u+2)}, {v(u)}, 2, {v(u+2)}          ; (n>>2)*128+(n&3)*16
    s_lshl_b32 {s(sT+1)}, {s(sW)}, 9
    s_add_u32 {s(sT+1)}, {s(sT+1)}, {YBUF}
    s_mov_b32 {s(sT+2)}, {YBUF}
    L_hint:
    buffer_load_dword {v(u+3)}, {v(u)}, {WS}, {s(sT)} offen sc1
    s_waitcnt vmcnt(0)
    v_cmp_ne_u32 vcc, {s(sTag)}, {v(u+3)}
    ''')
    poll_branch('L_hint', 1)
    if cfg.tim_y: a(f's_sleep {cfg.tim_y}')
    a(f'''
    L_yv:
    buffer_load_dwordx4 {v(Y,4)}, {v(u+1)}, {WS}, {s(sT+2)} offen sc1
    buffer_load_dwordx4 {v(Y+4,4)}, {v(u+1)}, {WS}, {s(sT+2)} offen offset:16 sc1
    buffer_load_dwordx4 {v(YX,4)}, {v(u+2)}, {WS}, {s(sT+1)} offen sc1
    s_waitcnt vmcnt(0)
    ''')
    maxchk(range(Y,Y+12), u+3)
    poll_branch('L_yv', 1)
    stamp()
    for k in range(4): a(f'v_pk_add_f32 {v(Y+2*k,2)}, {v(Y+2*k,2)}, {v(BC+2+2*k,2)}')
    s1,s2=u,u+2
    a(f'''
    v_pk_add_f32 {v(s1,2)}, {v(Y,2)}, {v(Y+2,2)}
    v_pk_mul_f32 {v(s2,2)}, {v(Y,2)}, {v(Y,2)}
    v_pk_add_f32 {v(s1,2)}, {v(s1,2)}, {v(Y+4,2)}
    v_pk_fma_f32 {v(s2,2)}, {v(Y+2,2)}, {v(Y+2,2)}, {v(s2,2)}
    v_pk_add_f32 {v(s1,2)}, {v(s1,2)}, {v(Y+6,2)}
    v_pk_fma_f32 {v(s2,2)}, {v(Y+4,2)}, {v(Y+4,2)}, {v(s2,2)}
    v_add_f32 {v(s1)}, {v(s1)}, {v(s1+1)}
    v_pk_fma_f32 {v(s2,2)}, {v(Y+6,2)}, {v(Y+6,2)}, {v(s2,2)}
    v_add_f32 {v(s2)}, {v(s2)}, {v(s2+1)}
    v_pk_fma_f32 {v(X,2)}, {v(BC,2)}, {v(YX,2)}, {v(X,2)} op_sel:[0,0,0] op_sel_hi:[1,0,1]
    v_pk_fma_f32 {v(X+2,2)}, {v(BC,2)}, {v(YX,2)}, {v(X+2,2)} op_sel:[0,1,0] op_sel_hi:[1,1,1]
    v_permlane32_swap_b32 {v(s1)}, {v(s2)}
    v_add_f32 {v(s1)}, {v(s1)}, {v(s2)}
    v_pk_fma_f32 {v(X+4,2)}, {v(BC,2)}, {v(YX+2,2)}, {v(X+4,2)} op_sel:[0,0,0] op_sel_hi:[1,0,1]
    v_pk_fma_f32 {v(X+6,2)}, {v(BC,2)}, {v(YX+2,2)}, {v(X+6,2)} op_sel:[0,1,0] op_sel_hi:[1,1,1]
    v_add_f32_dpp {v(s1)}, {v(s1)}, {v(s1)} row_ror:8 row_mask:0xf bank_mask:0xf
    v_pk_mul_f32 {v(BC+2,2)}, {v(BC+2,2)}, {v(BC+10,2)} op_sel_hi:[1,0]
    v_pk_mul_f32 {v(BC+4,2)}, {v(BC+4,2)}, {v(BC+10,2)} op_sel_hi:[1,0]
    v_add_f32_dpp {v(s1)}, {v(s1)}, {v(s1)} row_ror:4 row_mask:0xf bank_mask:0xf
    v_pk_mul_f32 {v(BC+6,2)}, {v(BC+6,2)}, {v(BC+10,2)} op_sel_hi:[1,0]
    v_pk_mul_f32 {v(BC+8,2)}, {v(BC+8,2)}, {v(BC+10,2)} op_sel_hi:[1,0]
    v_add_f32_dpp {v(s1)}, {v(s1)}, {v(s1)} row_ror:2 row_mask:0xf bank_mask:0xf
    s_lshl_b32 {s(sT)}, {s(sW)}, 10
    s_add_u32 {s(sT)}, {s(sT)}, {L_U}
    v_add_f32_dpp {v(s1)}, {v(s1)}, {v(s1)} row_ror:1 row_mask:0xf bank_mask:0xf
    v_lshl_add_u32 {v(u+4)}, {v(vLane)}, 4, {s(sT)}
    v_lshl_add_u32 {v(u+5)}, {v(vLane)}, 3, {s(sT)}
    v_add_f32_dpp {v(s1)}, {v(s1)}, {v(s1)} row_bcast:15 row_mask:0xa bank_mask:0xf
    v_mul_f32 {v(s1)}, {s(sK512)}, {v(s1)}
    v_readlane_b32 {s(sT+1)}, {v(s1)}, 31
    v_readlane_b32 {s(sT+2)}, {v(s1)}, 63
    v_mov_b32 {v(s2)}, {s(sT+1)}
    v_mov_b32 {v(s1)}, {s(sT+2)}
    v_fma_f32 {v(s1)}, -{v(s2)}, {v(s2)}, {v(s1)}
    v_add_f32 {v(s1)}, {s(sEps)}, {v(s1)}
    v_rsq_f32_e64 {v(s1)}, |{v(s1)}|
    v_mul_f32 {v(s1)}, {s(sDsc)}, {v(s1)}
    ''')
    for k in range(4):
        a(f'v_pk_fma_f32 {v(Y+2*k,2)}, {v(Y+2*k,2)}, {v(s1,2)}, {v(BC+2+2*k,2)} op_sel_hi:[1,0,1] neg_lo:[0,0,1] neg_hi:[0,0,1]')
    for k in range(4): a(f'v_cvt_pk_f16_f32 {v(t+k)}, {v(Y+2*k)}, {v(Y+2*k+1)}')
    a(f'''
    ds_write_b128 {v(u+4)}, {v(t,4)}
    ds_read_b64_tr_b16 {v(t+4,2)}, {v(u+5)}
    ds_read_b64_tr_b16 {v(t+6,2)}, {v(u+5)} offset:512
    s_and_b32 {s(sT)}, {s(sW)}, 1
    s_lshl_b32 {s(sT)}, {s(sT)}, 6
    s_add_u32 {s(sT)}, {s(sT)}, {L_DH}
    v_lshl_add_u32 {v(BC)}, {v(vQ)}, 9, {s(sT)}
    v_lshl_add_u32 {v(BC)}, {v(vN)}, 2, {v(BC)}
    s_lshl_b32 {s(sT)}, {s(sW)}, 8
    s_add_u32 {s(sT)}, {s(sT)}, {L_DH}
    v_lshl_add_u32 {v(BC+1)}, {v(vN)}, 4, {s(sT)}
    s_waitcnt lgkmcnt(0)
    ''')
    fft_core(t+4, None, t+16, t+24, t+16, t)
    a(f'''
    s_cmp_gt_u32 {s(sW)}, 1
    s_cbranch_scc1 L_dhb
    ds_write2_b32 {v(BC)}, {v(t)}, {v(t+1)} offset0:0 offset1:32
    ds_write2_b32 {v(BC)}, {v(t+2)}, {v(t+3)} offset0:64 offset1:96
    s_or_b32 {s(sT)}, s2, {s(sW)}
    s_cbranch_scc1 L_dhb
    v_mov_b32 {v(t+4)}, {s(sTag)}
    buffer_store_dword {v(t+4)}, off, {WS}, 0 sc1
    L_dhb:
    s_waitcnt lgkmcnt(0)
    s_barrier
    ds_read_b128 {v(t,4)}, {v(BC+1)}
    s_waitcnt lgkmcnt(0)
    v_mfma_f32_16x16x16_f16 {v(E0,4)}, {v(AD,2)}, {v(t,2)}, {v(E0,4)}
    v_mfma_f32_16x16x16_f16 {v(E1,4)}, {v(AD,2)}, {v(t+2,2)}, {v(E1,4)}
    s_branch L_corrback
    ''')
    a('L_fin:')
    for rho in (0,1):
        for k in (0,1):
            a(f'v_cvt_pk_bf16_f32 {v(t+2*rho+k)}, {v(X+4*k+rho)}, {v(X+4*k+2+rho)}')
    a(f'''
    v_lshlrev_b32 {v(t+4)}, 1, {v(vQ)}
    v_mov_b32 {v(t+7)}, 0x200000
    s_sub_u32 {s(sT)}, {s(sT+9)}, 1
    v_cmp_eq_u32 vcc, {s(sT+9)}, {v(t+4)}
    v_cndmask_b32 {v(t+5)}, {v(vXoff)}, {v(t+7)}, vcc
    v_cmp_eq_u32 vcc, {s(sT)}, {v(t+4)}
    v_cndmask_b32 {v(t+6)}, {v(vXoff)}, {v(t+7)}, vcc
    buffer_store_dwordx2 {v(t,2)}, {v(t+5)}, {OS}, {s(sRow0)} offen
    buffer_store_dwordx2 {v(t+2,2)}, {v(t+6)}, {OS}, {s(sRow1)} offen
    ''')
    stamp(); dump_stamps()
    a('s_endpgm')
    emit_retries()

def ffn():
    WA=4; WB=12; t=44
    vSl=40; vAcc=41; vH=42; vHd=43; vL8=3
    sI=sJ; sFb=sT+15; sRnd=sIt; sHo=sLst; sAccO=sLst2; sCb=sLld
    a.hist=[]
    a(f'''
    L_ffn:
    s_sub_u32 {s(sT)}, s2, 256
    s_and_b32 {s(sX)}, {s(sT)}, 7
    s_lshr_b32 {s(sI)}, {s(sT)}, 3
    s_mul_i32 {s(sFb)}, {s(sX)}, 28
    s_add_u32 {s(sFb)}, {s(sFb)}, {s(sI)}
    s_lshl_b32 {s(sFb)}, {s(sFb)}, 4           ; fb*16
    s_lshl_b32 {s(sCb)}, {s(sX)}, 2
    s_add_u32 {s(sCb)}, {s(sCb)}, {s(sI)}
    v_mul_u32_u24 {v(t)}, 3584, v0
    v_add_u32 {v(t)}, {s(sFb)}, {v(t)}
    s_mov_b32 {s(sM7FF)}, 0x7ff
    s_getreg_b32 {s(sXcc)}, hwreg(HW_REG_XCC_ID)
    s_and_b32 {s(sXcc)}, {s(sXcc)}, 15
    v_mov_b32 {v(t+1)}, 0
    v_mov_b32 {v(t+42)}, 0x200000
    v_lshlrev_b32 {v(t+2)}, 2, v0
    ds_write_b32 {v(t+2)}, {v(t+1)}
    ds_write_b32 {v(t+2)}, {v(t+1)} offset:2048
    s_waitcnt lgkmcnt(0)
    s_mov_b32 s8, s24
    s_mov_b32 s9, s25
    s_mov_b32 s10, {WSSZ}
    s_mov_b32 s11, 0x20000
    s_mov_b32 s28, s6
    s_mov_b32 s29, s7
    s_mov_b32 s30, 0x200000
    s_mov_b32 s31, 0x20000
    buffer_load_dword {v(t+3)}, off, {WS}, 0 sc1
    s_waitcnt vmcnt(0)
    global_load_dwordx4 {v(WA,4)}, {v(t)}, s[18:19]
    global_load_dwordx4 {v(WA+4,4)}, {v(t)}, s[20:21]
    v_readfirstlane_b32 {s(sTag)}, {v(t+3)}
    s_lshl_b32 {s(sT)}, {s(sW)}, 11
    s_add_u32 {s(sT)}, {s(sT)}, {F_ST}
    v_lshl_add_u32 {v(t+4)}, {v(vLane)}, 5, {s(sT)}
    v_lshl_add_u32 {v(t+5)}, {v(vLane)}, 4, {s(sT)}
    v_lshl_add_u32 {v(t+6)}, {v(vQ)}, 8, {s(sT)}
    v_lshl_add_u32 {v(t+6)}, {v(vN)}, 3, {v(t+6)}
    s_add_u32 {s(sTag)}, {s(sTag)}, 1
    s_cmp_gt_u32 {s(sI)}, 3
    s_cbranch_scc1 L_fnob
    s_mul_i32 {s(sT)}, {s(sW)}, {224*1024}
    s_lshl_b32 {s(sT+1)}, {s(sCb)}, 5
    s_add_u32 {s(sT)}, {s(sT)}, {s(sT+1)}
    v_lshrrev_b32 {v(t+7)}, 1, {v(vLane)}
    v_lshlrev_b32 {v(t+7)}, 10, {v(t+7)}
    v_and_b32 {v(t+8)}, 1, {v(vLane)}
    v_lshl_add_u32 {v(t+7)}, {v(t+8)}, 4, {v(t+7)}
    v_add_u32 {v(t+7)}, {s(sT)}, {v(t+7)}
    ''')
    for k in range(7):
        a(f'global_load_dwordx4 {v(WB+4*k,4)}, {v(t+7)}, s[22:23]')
        if k<6: a(f'v_add_u32 {v(t+7)}, 0x8000, {v(t+7)}')
    a('s_waitcnt vmcnt(0)')
    for k in range(7):
        o=(k&1)*1024
        a(f'''ds_write_b128 {v(t+5)}, {v(WB+4*k,4)} offset:{o}
        s_waitcnt lgkmcnt(0)
        ds_read_b64_tr_b16 {v(WB+4*k,2)}, {v(t+6)} offset:{o}
        ds_read_b64_tr_b16 {v(WB+4*k+2,2)}, {v(t+6)} offset:{o+128}''')
    a(f'''
    s_waitcnt lgkmcnt(0)
    L_fnob:
    s_waitcnt vmcnt(0)
    ds_write_b128 {v(t+4)}, {v(WA,4)}
    ds_write_b128 {v(t+4)}, {v(WA+4,4)} offset:16
    s_waitcnt lgkmcnt(0)
    ds_read_b64_tr_b16 {v(WA,2)}, {v(t+6)}
    ds_read_b64_tr_b16 {v(WA+2,2)}, {v(t+6)} offset:128
    ds_read_b64_tr_b16 {v(WA+4,2)}, {v(t+6)} offset:1024
    ds_read_b64_tr_b16 {v(WA+6,2)}, {v(t+6)} offset:1152
    ; addresses
    v_and_b32 {v(vHd)}, 7, {v(vLane)}
    v_lshlrev_b32 {v(vHd)}, 12, {v(vHd)}
    s_lshl_b32 {s(sT)}, {s(sW)}, 7
    v_lshl_add_u32 {v(vSl)}, {v(vQ)}, 4, {v(vHd)}
    v_add_u32 {v(vSl)}, {s(sT)}, {v(vSl)}
    v_lshlrev_b32 {v(vAcc)}, 8, {v(vQ)}
    v_lshl_add_u32 {v(vAcc)}, {v(vN)}, 2, {v(vAcc)}
    s_mul_i32 {s(sT)}, {s(sW)}, 448
    v_lshl_add_u32 {v(vH)}, {v(vQ)}, 4, {s(sT)}
    v_lshlrev_b32 {v(vL8)}, 3, {v(vLane)}
    v_and_b32 {v(vL8)}, 0xf8, {v(vL8)}
    v_lshlrev_b32 {v(t+16)}, 5, {v(vLane)}
    s_mov_b32 {s(sT+10)}, {TABG}
    s_waitcnt lgkmcnt(0)
    s_barrier
    L_ftab:
    buffer_load_dwordx4 {v(t+8,4)}, {v(t+16)}, {WS}, {s(sT+10)} offen sc1
    buffer_load_dwordx4 {v(t+12,4)}, {v(t+16)}, {WS}, {s(sT+10)} offen offset:16 sc1
    s_waitcnt vmcnt(0)
    v_xor_b32 {v(t+8)}, {s(sTag)}, {v(t+8)}
    v_xor_b32 {v(t+10)}, {s(sTag)}, {v(t+10)}
    v_xor_b32 {v(t+12)}, {s(sTag)}, {v(t+12)}
    v_xor_b32 {v(t+14)}, {s(sTag)}, {v(t+14)}
    v_or3_b32 {v(t+8)}, {v(t+8)}, {v(t+10)}, {v(t+12)}
    v_or_b32 {v(t+8)}, {v(t+8)}, {v(t+14)}
    v_cmp_ne_u32 vcc, 0, {v(t+8)}
    ''')
    poll_branch('L_ftab', 16)
    a(f'''
    v_xor_b32 {v(t+9)}, {s(sXcc)}, {v(t+9)}
    v_xor_b32 {v(t+11)}, {s(sXcc)}, {v(t+11)}
    v_xor_b32 {v(t+13)}, {s(sXcc)}, {v(t+13)}
    v_xor_b32 {v(t+15)}, {s(sXcc)}, {v(t+15)}
    v_or3_b32 {v(t+9)}, {v(t+9)}, {v(t+11)}, {v(t+13)}
    v_or_b32 {v(t+9)}, {v(t+9)}, {v(t+15)}
    v_cmp_ne_u32 vcc, 0, {v(t+9)}
    s_lshl_b32 {s(sT)}, {s(sX)}, 3
    s_lshr_b64 {s(sT+2,2)}, vcc, {s(sT)}
    s_and_b32 {s(sT+2)}, {s(sT+2)}, 0xff
    s_cselect_b32 {s(sFast)}, 0, 1
    s_mov_b32 {s(sRnd)}, 0
    s_lshl_b32 {s(sTabLd)}, {s(sX)}, 8
    s_add_u32 {s(sTabLd)}, {s(sTabLd)}, {ARGL+ARGR}
    s_mov_b32 {s(sSlot)}, {SLOT}
    s_mov_b32 {s(sHo)}, {HBUF}
    s_mov_b32 {s(sAccO)}, 0
    L_frnd:
    s_cmp_eq_u32 {s(sFast)}, 0
    s_cbranch_scc1 L_fslot
    L_ftrig:
    buffer_load_dword {v(t)}, {v(vL8)}, {WS}, {s(sTabLd)} offen sc1
    s_waitcnt vmcnt(0)
    v_cmp_ne_u32 vcc, {s(sTag)}, {v(t)}
    ''')
    poll_branch('L_ftrig', 1)
    stamp()
    if cfg.tim_arg: a(f's_sleep {cfg.tim_arg}')
    a(f'''
    L_fslot:
    buffer_load_dwordx4 {v(t,4)}, {v(vSl)}, {WS}, {s(sSlot)} offen sc1
    buffer_load_dwordx4 {v(t+4,4)}, {v(vSl)}, {WS}, {s(sSlot)} offen offset:64 sc1
    buffer_load_dword {v(t+8)}, {v(vHd)}, {WS}, {s(sSlot)} offen offset:3072 sc1
    s_waitcnt vmcnt(0)
    ''')
    maxchk(range(t,t+9), t+9)
    poll_branch('L_fslot', 2)
    stamp()
    Dd=t+12
    a(f'''
    v_mfma_f32_16x16x32_bf16 {v(Dd,4)}, {v(t,4)}, {v(WA,4)}, 0
    v_mfma_f32_16x16x32_bf16 {v(Dd,4)}, {v(t+4,4)}, {v(WA+4,4)}, {v(Dd,4)}
    v_max_u32_dpp {v(t+9)}, {v(t+8)}, {v(t+8)} row_half_mirror row_mask:0xf bank_mask:0xf
    v_max_u32_dpp {v(t+9)}, {v(t+9)}, {v(t+9)} quad_perm:[1,0,3,2] row_mask:0xf bank_mask:0xf
    v_max_u32_dpp {v(t+9)}, {v(t+9)}, {v(t+9)} quad_perm:[2,3,0,1] row_mask:0xf bank_mask:0xf
    v_readfirstlane_b32 {s(sKey)}, {v(t+9)}
    ds_add_f32 {v(vAcc)}, {v(Dd)}
    ds_add_f32 {v(vAcc)}, {v(Dd+1)} offset:64
    ds_add_f32 {v(vAcc)}, {v(Dd+2)} offset:128
    ds_add_f32 {v(vAcc)}, {v(Dd+3)} offset:192
    s_andn2_b32 {s(sT)}, 7, {s(sKey)}
    s_lshl_b32 {s(sT)}, {s(sT)}, 6
    s_add_u32 {s(sT)}, {s(sT)}, {s(sAccO)}
    v_and_b32 {v(t)}, 0x18, {v(vL8)}
    v_add_u32 {v(t+1)}, {s(sT)}, {v(t)}
    v_lshrrev_b32 {v(t)}, 1, {v(t)}
    v_add_u32 {v(vAcc)}, 1024, {v(vAcc)}
    s_add_u32 {s(sT+1)}, {s(sHo)}, {s(sFb)}
    s_waitcnt lgkmcnt(0)
    s_barrier
    s_cmp_lg_u32 {s(sW)}, 0
    s_cbranch_scc1 L_fh_done
    ds_read_b64 {v(t+2,2)}, {v(t+1)}
    ds_read_b64 {v(t+4,2)}, {v(t+1)} offset:32
    s_waitcnt lgkmcnt(1)
    v_mul_f32 {v(t+6)}, 0xbfb8aa3b, {v(t+2)}
    v_mul_f32 {v(t+7)}, 0xbfb8aa3b, {v(t+3)}
    v_exp_f32 {v(t+6)}, {v(t+6)}
    v_exp_f32 {v(t+7)}, {v(t+7)}
    s_waitcnt lgkmcnt(0)
    v_add_f32 {v(t+6)}, 1.0, {v(t+6)}
    v_add_f32 {v(t+7)}, 1.0, {v(t+7)}
    v_rcp_f32 {v(t+6)}, {v(t+6)}
    v_rcp_f32 {v(t+7)}, {v(t+7)}
    s_mov_b64 exec, 15
    v_pk_mul_f32 {v(t+2,2)}, {v(t+2,2)}, {v(t+6,2)}
    v_pk_mul_f32 {v(t+2,2)}, {v(t+2,2)}, {v(t+4,2)}
    v_cvt_pk_bf16_f32 {v(t+2)}, {v(t+2)}, {v(t+3)}
    buffer_store_dword {v(t+2)}, {v(t)}, {WS}, {s(sT+1)} offen sc1
    s_mov_b64 exec, -1
    L_fh_done:
    ''')
    stamp()
    a(f'''
    s_cmp_gt_u32 {s(sI)}, 3
    s_cbranch_scc1 L_fnext
    ; sigmoid(r) -> t+20
    s_ashr_i32 {s(sT)}, {s(sKey)}, 31
    s_orn2_b32 {s(sT)}, 0x80000000, {s(sT)}
    s_xor_b32 {s(sT)}, {s(sT)}, {s(sKey)}
    v_mov_b32 {v(t+34)}, 0xbfb8aa3b
    v_mul_f32 {v(t+34)}, {s(sT)}, {v(t+34)}
    v_exp_f32 {v(t+34)}, {v(t+34)}
    v_add_f32 {v(t+34)}, 1.0, {v(t+34)}
    v_rcp_f32 {v(t+34)}, {v(t+34)}
    s_cmp_eq_u32 {s(sRnd)}, 0
    s_cbranch_scc1 L_fnobase
    s_cmp_lg_u32 {s(sW)}, 0
    s_cbranch_scc1 L_fnobase
    v_lshrrev_b32 {v(t+36)}, 3, {v(vLane)}
    v_lshlrev_b32 {v(t+36)}, 12, {v(t+36)}
    v_and_b32 {v(t+37)}, 0x38, {v(vL8)}
    v_add_u32 {v(t+38)}, {v(t+36)}, {v(t+37)}
    s_lshl_b32 {s(sT)}, {s(sCb)}, 6
    v_add_u32 {v(t+38)}, {s(sT)}, {v(t+38)}
    L_fbase:
    buffer_load_dwordx2 {v(t+40,2)}, {v(t+38)}, {WS}, {s(sSlot)} offen offset:1024 sc1
    buffer_load_dword {v(t+42)}, {v(t+36)}, {WS}, {s(sSlot)} offen offset:3072 sc1
    s_waitcnt vmcnt(0)
    ''')
    maxchk(range(t+40,t+43), t+39)
    poll_branch('L_fbase', 1)
    a(f'''
    v_cmp_eq_u32 vcc, {s(sKey)}, {v(t+42)}
    v_cndmask_b32 {v(t+34)}, 0, {v(t+34)}, vcc
    v_bfi_b32 {v(t+42)}, {v(t+42)}, 0, {s(sM7FF)}
    v_lshlrev_b32 {v(t+42)}, 10, {v(t+42)}
    v_lshrrev_b32 {v(t+38)}, 1, {v(t+37)}
    s_lshl_b32 {s(sT)}, {s(sCb)}, 5
    v_add3_u32 {v(t+42)}, {v(t+42)}, {v(t+38)}, {s(sT)}
    L_fnobase:
    s_waitcnt vmcnt(0)
    s_barrier
    L_fh:
    ''')
    for k in range(7):
        a(f'buffer_load_dwordx4 {v(t+4*k,4)}, {v(vH)}, {WS}, {s(sHo)} offen offset:{64*k} sc1')
    a('s_waitcnt vmcnt(0)')
    maxchk(range(t,t+28), t+32)
    poll_branch('L_fh', 1)
    stamp()
    Dy=t+28
    for k in range(7):
        a(f'v_mfma_f32_16x16x32_bf16 {v(Dy,4)}, {v(t+4*k,4)}, {v(WB+4*k,4)}, '+('0' if k==0 else v(Dy,4)))
    a(f'''
    s_lshl_b32 {s(sT)}, {s(sRnd)}, 8
    s_add_u32 {s(sT)}, {s(sT)}, {F_ACCB}
    v_lshl_add_u32 {v(t+33)}, {v(vLane)}, 2, {s(sT)}
    ds_add_f32 {v(t+33)}, {v(Dy)}
    s_waitcnt lgkmcnt(0)
    s_barrier
    s_cmp_lg_u32 {s(sW)}, 0
    s_cbranch_scc1 L_fnext
    s_cmp_lg_u32 {s(sRnd)}, 0
    s_cbranch_scc1 L_ffinal
    ds_read_b32 {v(t)}, {v(t+33)}
    s_lshl_b32 {s(sT)}, {s(sCb)}, 7
    s_add_u32 {s(sT)}, {s(sT)}, {YBUF}
    v_lshlrev_b32 {v(t+1)}, 2, {v(vLane)}
    v_mov_b32 {v(t+2)}, {s(sTag)}
    s_lshl_b32 {s(sT+1)}, {s(sX)}, 7
    s_lshl_b32 {s(sT+2)}, {s(sI)}, 2
    s_add_u32 {s(sT+1)}, {s(sT+1)}, {s(sT+2)}
    s_add_u32 {s(sT+1)}, {s(sT+1)}, {YHINT}
    s_mov_b64 exec, 0xffff
    s_waitcnt lgkmcnt(0)
    v_mul_f32 {v(t)}, {v(t)}, {v(t+34)}
    buffer_store_dword {v(t)}, {v(t+1)}, {WS}, {s(sT)} offen sc1
    s_mov_b64 exec, 1
    s_cmp_eq_u32 {s(sFast)}, 0
    s_cbranch_scc1 L_fhint_slow
    buffer_store_dword {v(t+2)}, off, {WS}, {s(sT+1)}
    L_fhint_back:
    s_mov_b64 exec, -1
    L_fnext:
    ''')
    stamp()
    a(f'''
    s_cmp_lg_u32 {s(sRnd)}, 0
    s_cbranch_scc1 L_fend
    s_mov_b32 {s(sRnd)}, 1
    s_add_u32 {s(sTabLd)}, {s(sTabLd)}, {ARGR}
    s_add_u32 {s(sSlot)}, {s(sSlot)}, {SLOTR}
    s_add_u32 {s(sHo)}, {s(sHo)}, {HR}
    s_add_u32 {s(sAccO)}, {s(sAccO)}, 1024
    s_branch L_frnd
    L_fhint_slow:
    buffer_store_dword {v(t+2)}, off, {WS}, {s(sT+1)} sc1
    s_branch L_fhint_back
    L_ffinal:
    v_add_u32 {v(t+37)}, {F_ACCB+256}, {v(t+37)}
    ds_read_b64 {v(t,2)}, {v(t+37)}
    s_waitcnt lgkmcnt(0)
    v_pk_fma_f32 {v(t,2)}, {v(t,2)}, {v(t+34,2)}, {v(t+40,2)} op_sel_hi:[1,0,1]
    v_cvt_pk_bf16_f32 {v(t)}, {v(t)}, {v(t+1)}
    buffer_store_dword {v(t)}, {v(t+42)}, {OS}, 0 offen
    ''')
    stamp()
    a('L_fend:')
    dump_stamps()
    a('s_endpgm')
    emit_retries()

def build():
    hdr=open('cdna_kernels/'+NAME+'.s.ref').read().split('; @launch')[0]
    a.raw(hdr+f'; @launch grid=(480,1,1) block=(512,1,1) lds={LDS_TOTAL}')
    a.raw(f'''; generated by gen/gen.py (hand-written generator): persistent FFT-structured FNet + MoD kernel
.amdgcn_target "amdgcn-amd-amdhsa--gfx950"
.text
.globl {NAME}_kernel
.p2align 8
.type {NAME}_kernel,@function
{NAME}_kernel:''')
    a(f'''
    s_cmp_ge_u32 s2, 480
    s_cbranch_scc1 L_end
    s_load_dwordx2 s[4:5], s[0:1], 0
    s_load_dwordx8 s[16:23], s[0:1], 48
    s_load_dwordx2 s[6:7], s[0:1], 80
    s_load_dwordx2 s[24:25], s[0:1], 96
    v_lshrrev_b32 v1, 6, v0
    v_and_b32 {v(vLane)}, 63, v0
    v_and_b32 {v(vN)}, 15, v0
    v_readfirstlane_b32 {s(sW)}, v1
    v_bfe_u32 {v(vQ)}, v0, 4, 2
    s_mov_b32 {s(sCnt)}, 200000
    ''')
    if cfg.stamps:
        a(f's_mov_b32 {s(sStampI)}, 0\nv_mov_b32 {v(vSTMP)}, 0');
        a(f's_memrealtime {s(sTS,2)}\ns_waitcnt lgkmcnt(0)\nv_writelane_b32 {v(vSTMP)}, {s(sTS)}, 63')
    a('''s_cmp_ge_u32 s2, 256
    s_cbranch_scc1 L_ffn''')
    main_prologue()
    main_loop()
    ffn()
    a('L_end:\ns_endpgm')
    a.raw(f'''.section .rodata,"a"
.p2align 6
.amdhsa_kernel {NAME}_kernel
  .amdhsa_next_free_vgpr 128
  .amdhsa_next_free_sgpr 96
  .amdhsa_accum_offset 128
  .amdhsa_group_segment_fixed_size 0
  .amdhsa_kernarg_size 104
  .amdhsa_user_sgpr_count 2
  .amdhsa_user_sgpr_kernarg_segment_ptr 1
  .amdhsa_system_sgpr_workgroup_id_x 1
.end_amdhsa_kernel''')
    return a.text()
if __name__=='__main__':
    out=sys.argv[1]
    for kv in sys.argv[2:]:
        k,val=kv.split('='); setattr(cfg,k,int(val))
    open(out,'w').write(build())
    print('instrs',a.count,'nops',a.nops)
```

```python
import sys, struct
from asmlib import Asm
NAME='interleave_layers__spectral_fnet__moe_arch_mod__prompt'
def fbits(x): return '0x%08x' % struct.unpack('<I', struct.pack('<f', x))[0]

class Cfg:
    stamps=0
    tim_arg=12
    tim_y=3
    tim_h=3
    force_slow=0
    prio=1
    codepf=1
cfg=Cfg()

TABG=0x1000
TABL=0x2000; ARGR=0x800
TAB2=0x3800
SLOWF=0x4000
YHINT=0x5000
HHINT=0x6000; HHR=0x400
STAMP=0xE00000
CLR0=0x8000
HBUF=0x8000; HR=0x1000
YBUF=0xA000
SLOT=0x10000; SLOTR=0x8000
LBASE=0x100000; CS=8448; LX=32*CS; LR=0x210000
GBASE=0x600000; GS=262144+768; GR=0x210000
WSSZ=0x1000000
NWG=512
L_STAT=0; L_U=0x400; L_YT=0x2400; L_DH=0x4800; LDS_TOTAL=0x5000
def v(a,n=1): return f'v{a}' if n==1 else f'v[{a}:{a+n-1}]'
def s(a,n=1): return f's{a}' if n==1 else f's[{a}:{a+n-1}]'

WS='s[8:11]'; XS='s[12:15]'; OS='s[28:31]'
sW=3; sX=26; sJ=27; sIt=32; sTag=33; sFast=34; sKey=35; sMir=36; sDsc=38
sLst=39; sLst2=40; sLld=41; sLld2=42; sG0=43; sG4=44; sTabSt=45; sTabLd=46; sSlot=47; sRow0=48; sRow1=49; sCnt=50
sXcc=51; sStampI=37
sK512=52
sTry=53
sEps=54
sC16=56
sSc=58
sM7FF=60; sTop=61
sQmask=62
sT=64
sTS=80
X=2; WV=10; A8=14; XA=16; B1C=20; B1S=24; B1N=28; TWC=32; TWS=36; A2R=40; A2I=44; YR0=48; YR1=52; YI0=56; YI1=60
vXoff=64; vStW=65; vStR=66; vUW=67; vUR=68; vLst=69; vLld=70; vLldM=71; vYW=72; vYR=73; vGst=74; vGld=75; vSc0=76
vL8=78; vInv=79; LNP=80; MM=84; RS2=86; vN=88; vQ=89; vSTMP=90; vLane=91
T=92
AD=48; BC=50
a=Asm()
retry=[]
def poll_branch(lbl, sleep=1, pre='', giveup=None):
    a(f's_cbranch_vccnz {lbl}_r ;!nd')
    retry.append((lbl, sleep, pre, giveup))
def emit_retries():
    for lbl,sl,pre,giveup in retry:
        a(f'{lbl}_r:')
        if giveup:
            a(f's_sub_u32 {s(sTry)}, {s(sTry)}, 1\ns_cbranch_scc1 {giveup}')
        else:
            a(f's_sub_u32 {s(sCnt)}, {s(sCnt)}, 1\ns_cbranch_scc1 L_end')
        if pre: a(pre)
        if sl: a(f's_sleep {sl}')
        a(f's_branch {lbl}')
    retry.clear()
def stamp():
    if not cfg.stamps: return
    a(f'''s_memrealtime {s(sTS,2)}
    s_waitcnt lgkmcnt(0)
    s_mov_b32 m0, {s(sStampI)}
    s_add_u32 {s(sStampI)}, {s(sStampI)}, 1
    v_writelane_b32 {v(vSTMP)}, {s(sTS)}, m0''')
def dump_stamps():
    if not cfg.stamps: return
    a(f'''s_lshl_b32 {s(sT)}, s2, 11
    s_lshl_b32 {s(sT+1)}, {s(sW)}, 8
    s_add_u32 {s(sT)}, {s(sT)}, {s(sT+1)}
    s_add_u32 {s(sT)}, {s(sT)}, {STAMP}
    v_lshlrev_b32 {v(vLane)}, 2, {v(vLane)}
    buffer_store_dword {v(vSTMP)}, {v(vLane)}, {WS}, {s(sT)} offen''')
def maxchk(regs, t):
    regs=list(regs)
    a(f'v_max3_u32 {v(t)}, {v(regs[0])}, {v(regs[1])}, {v(regs[2])}' if len(regs)>=3 else f'v_max_u32 {v(t)}, {v(regs[0])}, {v(regs[1])}')
    rest=regs[3:] if len(regs)>=3 else []
    while len(rest)>=2:
        a(f'v_max3_u32 {v(t)}, {v(t)}, {v(rest[0])}, {v(rest[1])}'); rest=rest[2:]
    if rest: a(f'v_max_u32 {v(t)}, {v(t)}, {v(rest[0])}')
    a(f'v_cmp_eq_u32 vcc, -1, {v(t)}')
DPP='row_mask:0xf bank_mask:0xf'

def fft_core(xr, xi, U, V, F, P):
    Ur,Ui=U,U+4
    a(f'v_mfma_f32_16x16x32_f16 {v(Ur,4)}, {v(xr,4)}, {v(B1C,4)}, 0')
    a(f'v_mfma_f32_16x16x32_f16 {v(Ui,4)}, {v(xr,4)}, {v(B1N,4)}, 0')
    if xi is not None:
        a(f'v_mfma_f32_16x16x32_f16 {v(Ur,4)}, {v(xi,4)}, {v(B1S,4)}, {v(Ur,4)}')
        a(f'v_mfma_f32_16x16x32_f16 {v(Ui,4)}, {v(xi,4)}, {v(B1C,4)}, {v(Ui,4)}')
    Vr,Vi=V,V+4
    for h in (0,2):
        a(f'v_pk_mul_f32 {v(Vi+h,2)}, {v(Ur+h,2)}, {v(TWS+h,2)}')
    for h in (0,2):
        a(f'v_pk_mul_f32 {v(Vr+h,2)}, {v(Ui+h,2)}, {v(TWS+h,2)}')
    for h in (0,2):
        a(f'v_pk_fma_f32 {v(Vr+h,2)}, {v(Ur+h,2)}, {v(TWC+h,2)}, {v(Vr+h,2)}')
        a(f'v_pk_fma_f32 {v(Vi+h,2)}, {v(Ui+h,2)}, {v(TWC+h,2)}, {v(Vi+h,2)} neg_lo:[0,0,1] neg_hi:[0,0,1]')
    for r in range(4): a(f'v_cvt_pk_f16_f32 {v(P+r)}, {v(Vr+r)}, {v(Vi+r)}')
    a(f'v_mfma_f32_16x16x32_f16 {v(F,4)}, {v(A2R,4)}, {v(P,4)}, 0')
    a(f'v_mfma_f32_16x16x32_f16 {v(F+4,4)}, {v(A2I,4)}, {v(P,4)}, 0')
    for r in range(4): a(f'v_cvt_pk_f16_f32 {v(P+r)}, {v(F+r)}, {v(F+4+r)}')

def trig4(c, q4, step, cosd, sind):
    a(f'v_mul_f32 {v(c)}, {v(q4)}, {v(step)}')
    a(f'v_add_f32 {v(c+1)}, {v(c)}, {v(step)}')
    a(f'v_add_f32 {v(c+2)}, {v(c+1)}, {v(step)}')
    a(f'v_add_f32 {v(c+3)}, {v(c+2)}, {v(step)}')
    for r in range(4):
        a(f'v_cos_f32 {v(cosd+r)}, {v(c+r)}')
        a(f'v_sin_f32 {v(sind+r)}, {v(c+r)}')
def packRI(R,I,co,si):
    for r in range(4):
        a(f'v_cvt_pk_f16_f32 {v(R+r)}, {v(co+r)}, {v(si+r)}')
        a(f'v_cvt_pk_f16_f32 {v(I+r)}, -{v(si+r)}, {v(co+r)}')

def main_prologue():
    t=T
    a(f'''
    s_lshl_b32 {s(sRow0)}, s2, 10
    s_add_u32 {s(sRow1)}, {s(sRow0)}, 0x40000
    s_lshl_b32 {s(sT)}, {s(sW)}, 7
    v_lshl_add_u32 {v(t)}, {v(vN)}, 3, {s(sT)}                 ; 128w+8n
    v_lshl_add_u32 {v(vXoff)}, {v(vQ)}, 19, {v(t)}
    s_mov_b32 s14, 0x200000
    s_mov_b32 s15, 0x20000
    v_lshrrev_b32 {v(t+1)}, 4, v0
    v_mul_u32_u24 {v(t+2)}, {CS}, {v(t+1)}
    v_lshl_add_u32 {v(t+2)}, {v(vN)}, 4, {v(t+2)}
    s_mul_i32 {s(sLld)}, {s(sX)}, {LX}
    s_add_u32 {s(sLld)}, {s(sLld)}, {LBASE}
    s_lshl_b32 {s(sT)}, {s(sJ)}, 8
    s_add_u32 {s(sLst)}, {s(sLld)}, {s(sT)}
    s_add_u32 {s(sT+5)}, {s(sLst)}, {LR}
    s_waitcnt lgkmcnt(0)
    buffer_load_dwordx2 {v(t+8,2)}, {v(vXoff)}, {XS}, {s(sRow0)} offen
    buffer_load_dwordx2 {v(t+10,2)}, {v(vXoff)}, {XS}, {s(sRow1)} offen
    global_load_dwordx2 {v(t+12,2)}, {v(t)}, s[16:17]
    buffer_load_dword {v(t+14)}, off, {WS}, 0 sc1
    buffer_store_dwordx4 {v(t+4,4)}, {v(t+2)}, {WS}, {s(sLst)} offen
    buffer_store_dwordx4 {v(t+4,4)}, {v(t+2)}, {WS}, {s(sT+5)} offen
    v_lshl_add_u32 {v(vUW)}, {v(vQ)}, 11, {v(t)}
    v_add_u32 {v(vUW)}, {L_U}, {v(vUW)}
    s_add_u32 {s(sLst2)}, {s(sLst)}, {CS}
    s_add_u32 {s(sLld2)}, {s(sLld)}, 4096
    ''')
    c=t+16
    q4=c+1
    a(f'''
    v_lshlrev_b32 {v(q4)}, 2, {v(vQ)}
    v_cvt_f32_u32 {v(q4)}, {v(q4)}
    s_mov_b32 {s(sK512)}, {fbits(1/512)}
    s_mov_b32 {s(sEps)}, {fbits(1e-5)}
    s_mov_b32 {s(sEps+1)}, {fbits(1e-5)}
    s_mov_b32 {s(sC16)}, {fbits(1/16)}
    s_mov_b32 {s(sC16+1)}, {fbits(1/16)}
    s_mov_b32 {s(sTop)}, 0x80000000
    s_mov_b32 {s(sQmask)}, 0x11111111
    s_mov_b32 {s(sQmask+1)}, 0x11111111
    s_mov_b32 {s(sIt)}, 0
    s_mov_b32 {s(sFast)}, 1
    v_lshrrev_b32 {v(c+2)}, 2, {v(vN)}
    v_and_b32 {v(c+3)}, 2, {v(vN)}
    v_and_b32 {v(c+4)}, 14, {v(vN)}
    v_cmp_eq_u32 vcc, 2, {v(c+4)}
    v_lshlrev_b32 {v(vStR)}, 8, {v(vQ)}
    v_and_b32 {v(c+5)}, 7, {v(vN)}
    v_cndmask_b32 {v(c+2)}, {v(c+2)}, 4, vcc
    v_cndmask_b32 {v(c+3)}, {v(c+3)}, 0, vcc
    v_and_b32 {v(c+6)}, 8, {v(vN)}
    v_and_b32 {v(c+7)}, 4, {v(vN)}
    s_lshl_b32 {s(sT)}, {s(sW)}, 2
    v_lshl_add_u32 {v(vStW)}, {v(c+6)}, 2, {v(vStR)}
    v_lshl_add_u32 {v(vStW)}, {v(c+7)}, 4, {v(vStW)}
    v_add_u32 {v(vStW)}, {s(sT)}, {v(vStW)}
    v_lshl_add_u32 {v(vStR)}, {v(c+5)}, 5, {v(vStR)}
    v_mul_u32_u24 {v(c+4)}, {v(c+2)}, {v(vQ)}
    v_lshl_add_u32 {v(c+4)}, {v(c+4)}, 1, {v(c+3)}
    v_add_u32 {v(c+5)}, {v(c+4)}, {v(c+2)}
    v_cvt_f32_u32 {v(c+4)}, {v(c+4)}
    v_cvt_f32_u32 {v(c+5)}, {v(c+5)}
    v_mul_f32 {v(c+4)}, 0x3e000000, {v(c+4)}
    v_mul_f32 {v(c+5)}, 0x3e000000, {v(c+5)}
    v_cos_f32 {v(c+4)}, {v(c+4)}
    v_cos_f32 {v(c+5)}, {v(c+5)}
    v_and_b32 {v(c+3)}, 1, {v(vN)}
    v_cmp_eq_u32 vcc, 0, {v(c+3)}
    v_cvt_pk_f16_f32 {v(c+4)}, {v(c+4)}, {v(c+5)}
    v_mov_b32 {v(c+3)}, 0x80008000
    v_cndmask_b32 {v(A8)}, 0, {v(c+4)}, vcc
    v_cndmask_b32 {v(A8+1)}, {v(c+4)}, 0, vcc
    v_cndmask_b32 {v(c+3)}, {v(c+3)}, 0, vcc
    s_and_b32 {s(sT+1)}, {s(sW)}, 1
    s_lshl_b32 {s(sT+1)}, {s(sT+1)}, 4
    v_add_u32 {v(c+2)}, {s(sT+1)}, {v(vN)}
    v_cvt_f32_u32 {v(c+2)}, {v(c+2)}
    s_mov_b32 {s(sT)}, 0x80008000
    ''')
    co,si=c+10,c+14
    a(f'v_mul_f32 {v(c+4)}, {fbits(1/32)}, {v(c+2)}')
    trig4(c+6,q4,c+4,co,si)
    a(f'''
    v_cvt_pk_f16_f32 {v(B1C)}, {v(co)}, {v(co+1)}
    v_cvt_pk_f16_f32 {v(B1C+1)}, {v(co+2)}, {v(co+3)}
    v_cvt_pk_f16_f32 {v(B1S)}, {v(si)}, {v(si+1)}
    v_cvt_pk_f16_f32 {v(B1S+1)}, {v(si+2)}, {v(si+3)}
    v_xor_b32 {v(B1C+2)}, {v(B1C)}, {v(c+3)}
    v_xor_b32 {v(B1C+3)}, {v(B1C+1)}, {v(c+3)}
    v_xor_b32 {v(B1S+2)}, {v(B1S)}, {v(c+3)}
    v_xor_b32 {v(B1S+3)}, {v(B1S+1)}, {v(c+3)}
    ''')
    for r in range(4): a(f'v_xor_b32 {v(B1N+r)}, {s(sT)}, {v(B1S+r)}')
    a(f'v_mul_f32 {v(c+4)}, {s(sK512)}, {v(c+2)}')
    trig4(c+6,q4,c+4,TWC,TWS)
    a(f'v_cvt_f32_u32 {v(c+4)}, {v(vN)}\nv_mul_f32 {v(c+4)}, {s(sC16)}, {v(c+4)}')
    trig4(c+6,q4,c+4,co,si); packRI(A2R,A2I,co,si)
    a(f'''
    s_lshr_b32 {s(sT)}, {s(sW)}, 1
    s_lshl_b32 {s(sT+2)}, {s(sT)}, 11
    s_add_u32 {s(sT+2)}, {s(sT+2)}, {L_U}
    v_lshl_add_u32 {v(vUR)}, {v(vLane)}, 3, {s(sT+2)}
    s_mul_i32 {s(sT)}, {s(sT)}, {8*CS}
    s_lshl_b32 {s(sT+1)}, {s(sT+1)}, 2
    s_add_u32 {s(sT)}, {s(sT)}, {s(sT+1)}
    v_mul_u32_u24 {v(vLst)}, {2*CS}, {v(vQ)}
    v_lshl_add_u32 {v(vLst)}, {v(vN)}, 2, {v(vLst)}
    v_add_u32 {v(vLst)}, {s(sT)}, {v(vLst)}
    s_lshl_b32 {s(sT)}, {s(sJ)}, 3
    s_add_u32 {s(sTabSt)}, {s(sTabLd)}, {s(sT)}
    s_waitcnt vmcnt(2)
    v_readfirstlane_b32 {s(sTag)}, {v(t+14)}
    ''')
    for rho in (0,1):
        for k in (0,1):
            src=t+8+2*rho+k
            a(f'v_lshlrev_b32 {v(X+4*k+rho)}, 16, {v(src)}')
            a(f'v_and_b32 {v(X+4*k+2+rho)}, 0xffff0000, {v(src)}')
    for k in (0,1):
        a(f'v_lshlrev_b32 {v(WV+2*k)}, 16, {v(t+12+k)}')
        a(f'v_and_b32 {v(WV+2*k+1)}, 0xffff0000, {v(t+12+k)}')
    a(f's_add_u32 {s(sTag)}, {s(sTag)}, 1')

def y_consts(c):
    q4=c+1; co,si=c+10,c+14
    a(f'''
    s_lshr_b32 {s(sT)}, {s(sJ)}, 3
    s_and_b32 {s(sT+1)}, {s(sW)}, 2
    s_lshl_b32 {s(sT+1)}, {s(sT+1)}, 1
    s_cmp_lt_u32 {s(sJ)}, 8
    s_cselect_b32 {s(sT)}, {s(sT+1)}, {s(sT)}
    s_and_b32 {s(sT+1)}, {s(sW)}, 4
    s_lshl_b32 {s(sT+1)}, {s(sT+1)}, 5
    s_add_u32 {s(sT)}, {s(sT)}, {s(sT+1)}
    v_lshl_add_u32 {v(c+4)}, {v(vN)}, 3, {s(sT)}
    v_lshlrev_b32 {v(q4)}, 2, {v(vQ)}
    v_cvt_f32_u32 {v(c+4)}, {v(c+4)}
    v_cvt_f32_u32 {v(q4)}, {v(q4)}
    v_mul_f32 {v(c+4)}, {fbits(1/256)}, {v(c+4)}
    s_and_b32 {s(sT+1)}, {s(sW)}, 3
    s_lshl_b32 {s(sT)}, {s(sJ)}, 6
    s_lshl_b32 {s(sT+2)}, {s(sT+1)}, 4
    s_add_u32 {s(sT)}, {s(sT)}, {s(sT+2)}
    s_lshl_b32 {s(sT+3)}, {s(sJ)}, 5
    s_and_b32 {s(sT+2)}, {s(sT+2)}, 16
    s_add_u32 {s(sT+3)}, {s(sT+3)}, {s(sT+2)}
    s_add_u32 {s(sT+3)}, {s(sT+3)}, 1
    s_cmp_lt_u32 {s(sJ)}, 8
    s_cselect_b32 {s(sT)}, {s(sT+3)}, {s(sT)}
    v_add_u32 {v(c+2)}, {s(sT)}, {v(vN)}
    v_sub_u32 {v(c+5)}, 512, {v(c+2)}
    v_and_b32 {v(c+5)}, 511, {v(c+5)}
    v_lshrrev_b32 {v(c+6)}, 6, {v(c+2)}
    v_lshrrev_b32 {v(c+7)}, 6, {v(c+5)}
    v_mul_u32_u24 {v(c+6)}, {CS-256}, {v(c+6)}
    v_mul_u32_u24 {v(c+7)}, {CS-256}, {v(c+7)}
    v_lshl_add_u32 {v(c+6)}, {v(c+2)}, 2, {v(c+6)}
    v_lshl_add_u32 {v(c+7)}, {v(c+5)}, 2, {v(c+7)}
    v_lshl_add_u32 {v(vLld)}, {v(vQ)}, 10, {v(c+6)}
    v_lshl_add_u32 {v(vLldM)}, {v(vQ)}, 10, {v(c+7)}
    ''')
    trig4(c+6,q4,c+4,co,si); packRI(YR0,YI0,co,si)
    a(f'v_add_f32 {v(q4)}, 0x41800000, {v(q4)}')
    trig4(c+6,q4,c+4,co,si); packRI(YR1,YI1,co,si)
    a(f'''
    s_lshr_b32 {s(sT)}, {s(sW)}, 2
    s_mul_i32 {s(sT)}, {s(sT)}, {16*272}
    s_lshl_b32 {s(sT+2)}, {s(sT+1)}, 6
    s_add_u32 {s(sT)}, {s(sT)}, {s(sT+2)}
    s_add_u32 {s(sT)}, {s(sT)}, {L_YT}
    v_mul_u32_u24 {v(vYW)}, 272, {v(vN)}
    v_lshl_add_u32 {v(vYW)}, {v(vQ)}, 4, {v(vYW)}
    v_add_u32 {v(vYW)}, {s(sT)}, {v(vYW)}
    v_lshrrev_b32 {v(c+1)}, 4, v0
    v_mul_u32_u24 {v(vYR)}, 272, {v(c+1)}
    v_lshl_add_u32 {v(vYR)}, {v(vN)}, 4, {v(vYR)}
    v_add_u32 {v(vYR)}, {L_YT}, {v(vYR)}
    s_mov_b32 {s(sG0)}, {GBASE}
    s_mov_b32 {s(sG4)}, {GBASE+4*GS}
    s_mul_i32 {s(sT)}, {s(sX)}, {GS}
    s_lshr_b32 {s(sT+1)}, {s(sJ)}, 3
    s_add_u32 {s(sT+2)}, {s(sT+1)}, 3
    s_and_b32 {s(sT+2)}, {s(sT+2)}, 3
    s_lshl_b32 {s(sT+2)}, {s(sT+2)}, 16
    s_add_u32 {s(sT)}, {s(sT)}, {s(sT+2)}
    s_and_b32 {s(sT+2)}, {s(sJ)}, 7
    s_cmp_lt_u32 {s(sJ)}, 8
    s_cselect_b32 {s(sT+3)}, 7, 8
    s_cselect_b32 {s(sT+4)}, 112, 0
    s_lshl_b32 {s(sT+2)}, {s(sT+2)}, {s(sT+3)}
    s_add_u32 {s(sT)}, {s(sT)}, {s(sT+2)}
    v_lshlrev_b32 {v(vGst)}, 11, {v(c+1)}
    v_lshl_add_u32 {v(vGst)}, {v(vN)}, 4, {v(vGst)}
    v_and_b32 {v(c+3)}, 8, {v(vN)}
    v_mad_u32_u24 {v(vGst)}, {v(c+3)}, {s(sT+4)}, {v(vGst)}
    v_add_u32 {v(vGst)}, {s(sT)}, {v(vGst)}
    ''')

def xin_consts(c):
    a(f'''
    s_and_b32 {s(sT)}, {s(sX)}, 3                ; 0 => self
    s_lshr_b32 {s(sT+1)}, {s(sW)}, 2
    s_lshr_b32 {s(sT+2)}, {s(sX)}, 2
    s_mov_b32 {s(sSc)}, {fbits(16.0)}
    s_cmp_eq_u32 {s(sT)}, 0
    s_cselect_b32 {s(sMir)}, {s(sT+1)}, {s(sT+2)}
    s_cselect_b32 {s(sSc)}, {fbits(8.0)}, {s(sSc)}
    s_cselect_b32 {s(sDsc)}, {fbits(1/8)}, {s(sC16)}
    s_cselect_b32 {s(sT+3)}, -4, 0
    s_mov_b32 {s(sSc+1)}, {s(sSc)}
    s_sub_u32 {s(sT+4)}, 256, s2
    s_and_b32 {s(sT+4)}, {s(sT+4)}, 255
    s_cmp_eq_u32 {s(sMir)}, 0
    s_cselect_b32 {s(sT+4)}, s2, {s(sT+4)}       ; source g
    s_cselect_b32 {s(sT+5)}, 16, -16
    s_cselect_b32 {s(sT+6)}, 0, {509*4}
    s_cselect_b32 {s(sT+7)}, 1.0, -1.0
    s_add_u32 {s(sT+3)}, {s(sT+3)}, {s(sT+6)}
    s_mul_i32 {s(sT+6)}, {s(sT+5)}, {s(sW)}
    s_lshl_b32 {s(sT+6)}, {s(sT+6)}, 4
    s_add_u32 {s(sT+3)}, {s(sT+3)}, {s(sT+6)}
    s_lshr_b32 {s(sT+6)}, {s(sT+4)}, 3
    s_lshl_b32 {s(sT+6)}, {s(sT+6)}, 11
    s_add_u32 {s(sT+3)}, {s(sT+3)}, {s(sT+6)}
    s_add_u32 {s(sT+6)}, {s(sT+4)}, 3
    s_and_b32 {s(sT+6)}, {s(sT+6)}, 3
    s_lshl_b32 {s(sT+6)}, {s(sT+6)}, 16
    s_add_u32 {s(sT+3)}, {s(sT+3)}, {s(sT+6)}
    s_and_b32 {s(sT+6)}, {s(sT+4)}, 4
    s_lshl_b32 {s(sT+6)}, {s(sT+6)}, 8
    s_add_u32 {s(sT+3)}, {s(sT+3)}, {s(sT+6)}
    v_mul_i32_i24 {v(vGld)}, {s(sT+5)}, {v(vN)}
    v_mul_u32_u24 {v(c+4)}, {GS}, {v(vQ)}
    v_add3_u32 {v(vGld)}, {v(vGld)}, {v(c+4)}, {s(sT+3)}
    v_lshrrev_b32 {v(c+4)}, 1, {v(vN)}
    v_and_b32 {v(c+4)}, 6, {v(c+4)}
    v_and_or_b32 {v(c+4)}, {v(vN)}, 1, {v(c+4)}
    v_lshl_add_u32 {v(c+4)}, {v(c+4)}, 8, s2
    v_cvt_f32_u32 {v(c+4)}, {v(c+4)}
    v_cvt_f32_u32 {v(c+5)}, {v(vQ)}
    v_mul_f32 {v(c+4)}, {fbits(1/2048)}, {v(c+4)}
    v_mul_f32 {v(c+4)}, {s(sT+7)}, {v(c+4)}
    v_mul_f32 {v(c+5)}, {v(c+4)}, {v(c+5)}
    v_fma_f32 {v(c+6)}, {v(c+4)}, 4.0, {v(c+5)}
    v_cos_f32 {v(c+7)}, {v(c+5)}
    v_sin_f32 {v(c+8)}, {v(c+5)}
    v_cos_f32 {v(c+9)}, {v(c+6)}
    v_sin_f32 {v(c+10)}, {v(c+6)}
    v_bfe_u32 {v(c+4)}, {v(vN)}, 1, 1
    v_cmp_eq_u32 vcc, {s(sMir)}, {v(c+4)}
    v_cvt_pk_f16_f32 {v(c+7)}, {v(c+7)}, {v(c+8)}
    v_cvt_pk_f16_f32 {v(c+9)}, {v(c+9)}, {v(c+10)}
    v_cndmask_b32 {v(XA)}, 0, {v(c+7)}, vcc
    v_cndmask_b32 {v(XA+1)}, {v(c+7)}, 0, vcc
    v_cndmask_b32 {v(XA+2)}, 0, {v(c+9)}, vcc
    v_cndmask_b32 {v(XA+3)}, {v(c+9)}, 0, vcc
    v_and_b32 {v(c+4)}, 0x1cf, v0
    v_cmp_eq_u32 vcc, 0, {v(c+4)}
    v_mov_b32 {v(c+5)}, {s(sSc)}
    s_sub_u32 {s(sT)}, 2047, s2
    v_lshlrev_b32 {v(vInv)}, 9, {v(vQ)}
    v_cndmask_b32 {v(vSc0)}, {v(c+5)}, 0, vcc
    v_cndmask_b32 {v(vSc0+1)}, {v(c+5)}, 0, vcc
    v_sub_u32 {v(vInv)}, {s(sT)}, {v(vInv)}
    s_lshl_b32 {s(sSlot)}, {s(sX)}, 12
    s_add_u32 {s(sSlot)}, {s(sSlot)}, {SLOT}
    ''')

def main_loop():
    t=T
    S1,S2,S3=t,t+2,t+4
    a('L_top:')
    stamp()
    a(f'''
    v_pk_add_f32 {v(S1,2)}, {v(X,2)}, {v(X+2,2)}
    v_pk_add_f32 {v(t+6,2)}, {v(X+4,2)}, {v(X+6,2)}
    v_pk_mul_f32 {v(S2,2)}, {v(X,2)}, {v(X,2)}
    v_pk_mul_f32 {v(S3,2)}, {v(X,2)}, {v(WV,2)} op_sel:[0,0] op_sel_hi:[1,0]
    v_pk_add_f32 {v(S1,2)}, {v(S1,2)}, {v(t+6,2)}
    v_pk_fma_f32 {v(S2,2)}, {v(X+2,2)}, {v(X+2,2)}, {v(S2,2)}
    v_pk_fma_f32 {v(S3,2)}, {v(X+2,2)}, {v(WV,2)}, {v(S3,2)} op_sel:[0,1,0] op_sel_hi:[1,1,1]
    v_add_f32_dpp {v(S1)}, {v(S1)}, {v(S1)} row_ror:8 row_mask:0xf bank_mask:0x3
    v_pk_fma_f32 {v(S2,2)}, {v(X+4,2)}, {v(X+4,2)}, {v(S2,2)}
    v_pk_fma_f32 {v(S3,2)}, {v(X+4,2)}, {v(WV+2,2)}, {v(S3,2)} op_sel:[0,0,0] op_sel_hi:[1,0,1]
    v_add_f32_dpp {v(S1)}, {v(S1+1)}, {v(S1+1)} row_ror:8 row_mask:0xf bank_mask:0xc
    v_pk_fma_f32 {v(S2,2)}, {v(X+6,2)}, {v(X+6,2)}, {v(S2,2)}
    v_pk_fma_f32 {v(S3,2)}, {v(X+6,2)}, {v(WV+2,2)}, {v(S3,2)} op_sel:[0,1,0] op_sel_hi:[1,1,1]
    s_cmp_lg_u32 {s(sIt)}, 0
    s_cbranch_scc1 L_s3ok
    v_pk_add_f32 {v(S3,2)}, {v(WV,2)}, {v(WV+2,2)}
    v_add_f32 {v(S3)}, {v(S3)}, {v(S3+1)}
    v_mov_b32 {v(S3+1)}, {v(S3)}
    L_s3ok:
    v_add_f32_dpp {v(S1)}, {v(S1)}, {v(S1)} row_half_mirror row_mask:0xf bank_mask:0x5
    v_add_f32_dpp {v(S2)}, {v(S2)}, {v(S2)} row_ror:8 row_mask:0xf bank_mask:0x3
    v_add_f32_dpp {v(S3)}, {v(S3)}, {v(S3)} row_ror:8 row_mask:0xf bank_mask:0x3
    v_add_f32_dpp {v(S2)}, {v(S2+1)}, {v(S2+1)} row_ror:8 row_mask:0xf bank_mask:0xc
    v_add_f32_dpp {v(S3)}, {v(S3+1)}, {v(S3+1)} row_ror:8 row_mask:0xf bank_mask:0xc
    v_add_f32_dpp {v(S1)}, {v(S2)}, {v(S2)} row_half_mirror row_mask:0xf bank_mask:0xa
    v_add_f32_dpp {v(S3)}, {v(S3)}, {v(S3)} row_half_mirror {DPP}
    v_add_f32_dpp {v(S1)}, {v(S1)}, {v(S1)} quad_perm:[1,0,3,2] {DPP}
    v_add_f32_dpp {v(S3)}, {v(S3)}, {v(S3)} quad_perm:[1,0,3,2] {DPP}
    v_add_f32_dpp {v(S1)}, {v(S1)}, {v(S1)} quad_perm:[2,3,0,1] {DPP}
    v_add_f32_dpp {v(S3)}, {v(S3)}, {v(S3)} quad_perm:[2,3,0,1] {DPP}
    s_mov_b64 exec, {s(sQmask,2)}
    ds_write2_b32 {v(vStW)}, {v(S1)}, {v(S3)} offset0:0 offset1:32
    s_mov_b64 exec, -1
    s_waitcnt vmcnt(0) lgkmcnt(0)
    s_barrier
    ds_read_b128 {v(t,4)}, {v(vStR)}
    ds_read_b128 {v(t+4,4)}, {v(vStR)} offset:16
    s_waitcnt lgkmcnt(0)
    v_pk_add_f32 {v(t,2)}, {v(t,2)}, {v(t+2,2)}
    v_pk_add_f32 {v(t+4,2)}, {v(t+4,2)}, {v(t+6,2)}
    v_pk_add_f32 {v(t,2)}, {v(t,2)}, {v(t+4,2)}
    v_add_f32 {v(t)}, {v(t)}, {v(t+1)}
    v_mul_f32 {v(t+7)}, {s(sK512)}, {v(t)}
    ''')
    VAR,RS,CC,NM=t+8,t+10,t+12,t+14
    K=t+16
    a(f'''
    v_mov_b32_dpp {v(MM)}, {v(t+7)} row_newbcast:0 {DPP}
    v_mov_b32_dpp {v(MM+1)}, {v(t+7)} row_newbcast:1 {DPP}
    v_mov_b32_dpp {v(S2)}, {v(t+7)} row_newbcast:2 {DPP}
    v_mov_b32_dpp {v(S2+1)}, {v(t+7)} row_newbcast:3 {DPP}
    v_mov_b32_dpp {v(S3)}, {v(t+7)} row_newbcast:4 {DPP}
    v_pk_fma_f32 {v(VAR,2)}, {v(MM,2)}, {v(MM,2)}, {v(S2,2)} neg_lo:[1,0,0] neg_hi:[1,0,0]
    v_mov_b32_dpp {v(S3+1)}, {v(t+7)} row_newbcast:5 {DPP}
    v_pk_add_f32 {v(S1,2)}, {v(VAR,2)}, {s(sEps,2)}
    s_cmp_lg_u32 {s(sIt)}, 0
    v_rsq_f32_e64 {v(RS)}, |{v(S1)}|
    v_rsq_f32_e64 {v(RS+1)}, |{v(S1+1)}|
    s_cbranch_scc1 L_mid ;!nd
    ; ---- it==0
    s_mov_b32 {s(sKey)}, {s(sXcc)}
    v_pk_mul_f32 {v(CC,2)}, {v(RS,2)}, {s(sC16,2)}
    v_mov_b32 {v(S1)}, 0x44000000
    v_pk_add_f32 {v(WV,2)}, {v(WV,2)}, {v(S3,2)} neg_lo:[0,1] neg_hi:[0,1]
    v_pk_add_f32 {v(WV+2,2)}, {v(WV+2,2)}, {v(S3,2)} neg_lo:[0,1] neg_hi:[0,1]
    v_pk_mul_f32 {v(WV,2)}, {v(WV,2)}, {v(S1,2)} op_sel_hi:[1,0]
    v_pk_mul_f32 {v(WV+2,2)}, {v(WV+2,2)}, {v(S1,2)} op_sel_hi:[1,0]
    s_branch L_tabst ;!nd
    L_mid:
    v_pk_mul_f32 {v(S3,2)}, {v(S3,2)}, {v(RS,2)}
    v_add_u32 {v(K+2)}, 0xffffff00, {v(vInv)}
    v_ashrrev_i32 {v(K)}, 31, {v(S3)}
    v_ashrrev_i32 {v(K+1)}, 31, {v(S3+1)}
    v_bitop3_b32 {v(K)}, {v(S3)}, {v(K)}, {s(sTop)} bitop3:0x1e
    v_bitop3_b32 {v(K+1)}, {v(S3+1)}, {v(K+1)}, {s(sTop)} bitop3:0x1e
    v_bfi_b32 {v(K)}, {s(sM7FF)}, {v(vInv)}, {v(K)}
    v_bfi_b32 {v(K+1)}, {s(sM7FF)}, {v(K+2)}, {v(K+1)}
    v_max_u32 {v(K)}, {v(K)}, {v(K+1)}
    v_pk_add_f32 {v(CC,2)}, {v(RS,2)}, 1.0 op_sel_hi:[1,0]
    v_pk_mul_f32 {v(NM,2)}, {v(MM,2)}, {v(RS,2)}
    v_max_u32_dpp {v(K)}, {v(K)}, {v(K)} row_bcast:15 row_mask:0xa bank_mask:0xf
    v_pk_mul_f32 {v(VAR,2)}, {v(VAR,2)}, {v(CC,2)}
    v_pk_fma_f32 {v(VAR,2)}, {v(VAR,2)}, {v(CC,2)}, {s(sEps,2)}
    v_max_u32_dpp {v(K)}, {v(K)}, {v(K)} row_bcast:31 row_mask:0xc bank_mask:0xf
    v_rsq_f32_e64 {v(RS2)}, |{v(VAR)}|
    v_readlane_b32 {s(sKey)}, {v(K)}, 63
    v_rsq_f32_e64 {v(RS2+1)}, |{v(VAR+1)}|
    v_pk_mul_f32 {v(CC,2)}, {v(CC,2)}, {s(sC16,2)}
    v_pk_mul_f32 {v(CC,2)}, {v(CC,2)}, {v(RS2,2)}
    L_tabst:
    s_cmp_lg_u32 {s(sW)}, 0
    s_cbranch_scc1 L_tabst_done ;!nd
    v_mov_b32 {v(K)}, {s(sTag)}
    v_mov_b32 {v(K+1)}, {s(sKey)}
    s_mov_b64 exec, 1
    s_cmp_eq_u32 {s(sFast)}, 0
    s_cbranch_scc1 L_tabst_slow ;!nd
    buffer_store_dwordx2 {v(K,2)}, off, {WS}, {s(sTabSt)}
    L_tabst_back:
    s_mov_b64 exec, -1
    L_tabst_done:
    ''')
    Z=t+20; ZP=t; D0=t+28; D1=t+32
    a(f'v_pk_mul_f32 {v(S3,2)}, {v(MM,2)}, {v(CC,2)}')
    for c_ in range(4):
        a(f'v_pk_fma_f32 {v(Z+2*c_,2)}, {v(X+2*c_,2)}, {v(CC,2)}, {v(S3,2)} neg_lo:[0,0,1] neg_hi:[0,0,1]')
    for c_ in range(4): a(f'v_cvt_pk_f16_f32 {v(ZP+c_)}, {v(Z+2*c_)}, {v(Z+2*c_+1)}')
    a(f'''
    s_cmp_eq_u32 {s(sIt)}, 0
    v_mfma_f32_16x16x16_f16 {v(D0,4)}, {v(A8,2)}, {v(ZP,2)}, 0
    v_mfma_f32_16x16x16_f16 {v(D1,4)}, {v(A8,2)}, {v(ZP+2,2)}, 0
    s_cbranch_scc1 L_noln0 ;!nd
    ''')
    for c_ in range(4):
        a(f'v_pk_fma_f32 {v(Z+2*c_,2)}, {v(X+2*c_,2)}, {v(RS,2)}, {v(NM,2)} neg_lo:[0,0,1] neg_hi:[0,0,1]')
    for c_ in range(4):
        a(f'v_pk_add_f32 {v(X+2*c_,2)}, {v(X+2*c_,2)}, {v(Z+2*c_,2)}')
    for rho in (0,1):
        for k in (0,1):
            a(f'v_cvt_pk_bf16_f32 {v(LNP+2*rho+k)}, {v(Z+4*k+rho)}, {v(Z+4*k+2+rho)}')
    a(f'''
    s_cmp_eq_u32 {s(sIt)}, 2
    s_cbranch_scc1 L_tab
    s_branch L_noln ;!nd
    L_noln0:
    s_nop 6
    L_noln:
    v_cvt_pk_f16_f32 {v(ZP)}, {v(D0)}, {v(D0+1)}
    v_cvt_pk_f16_f32 {v(ZP+1)}, {v(D1)}, {v(D1+1)}
    v_cvt_pk_f16_f32 {v(ZP+2)}, {v(D0+2)}, {v(D0+3)}
    v_cvt_pk_f16_f32 {v(ZP+3)}, {v(D1+2)}, {v(D1+3)}
    ds_write_b64 {v(vUW)}, {v(ZP,2)}
    ds_write_b64 {v(vUW)}, {v(ZP+2,2)} offset:1024
    s_waitcnt lgkmcnt(0)
    s_barrier
    ds_read_b64_tr_b16 {v(t,2)}, {v(vUR)}
    ds_read_b64_tr_b16 {v(t+2,2)}, {v(vUR)} offset:512
    ds_read_b64_tr_b16 {v(t+4,2)}, {v(vUR)} offset:1024
    ds_read_b64_tr_b16 {v(t+6,2)}, {v(vUR)} offset:1536
    s_cmp_lg_u32 {s(sIt)}, 0
    s_cbranch_scc1 L_ntg ;!nd
    s_lshl_b32 {s(sT+10)}, {s(sW)}, 9
    s_add_u32 {s(sT+10)}, {s(sT+10)}, {TABG}
    v_lshlrev_b32 {v(LNP)}, 1, {v(vL8)}
    buffer_load_dword {v(LNP+1)}, {v(LNP)}, {WS}, {s(sT+10)} offen sc1
    L_ntg:
    s_waitcnt lgkmcnt(0)
    ''')
    P=t+32
    fft_core(t, t+4, t+16, t+24, t+16, P)
    def lstores(fl):
        a(f'''
        buffer_store_dword {v(P)}, {v(vLst)}, {WS}, {s(sLst)} offen {fl}
        buffer_store_dword {v(P+1)}, {v(vLst)}, {WS}, {s(sLst)} offen offset:128 {fl}
        buffer_store_dword {v(P+2)}, {v(vLst)}, {WS}, {s(sLst2)} offen {fl}
        buffer_store_dword {v(P+3)}, {v(vLst)}, {WS}, {s(sLst2)} offen offset:128 {fl}
        ''')
    lstores('')
    stamp()
    a(f'''
    s_cmp_lg_u32 {s(sIt)}, 0
    s_cbranch_scc1 L_tab
    buffer_load_dwordx2 {v(t,2)}, {v(vL8)}, {WS}, {s(sTabLd)} offen sc1
    s_mov_b32 {s(sTry)}, 12
    ''')
    y_consts(t+4)
    a(f'''
    s_branch L_tabw
    L_tab:
    buffer_load_dwordx2 {v(t,2)}, {v(vL8)}, {WS}, {s(sTabLd)} offen sc1
    L_tabw:
    s_waitcnt vmcnt(0)
    v_cmp_ne_u32 vcc, {s(sTag)}, {v(t)}
    ''')
    poll_branch('L_tab', 2, f'''s_cmp_lg_u32 {s(sIt)}, 0
        s_cselect_b32 {s(sT)}, 0, 1
        s_sub_u32 {s(sTry)}, {s(sTry)}, {s(sT)}
        s_cbranch_scc1 L_tab2''')
    W_=t+4
    a(f'''
    L_tabok:
    s_cmp_eq_u32 {s(sIt)}, 0
    s_cbranch_scc1 L_fastchk
    v_cmp_lt_u32 vcc, {s(sKey)}, {v(t+1)}
    s_mov_b32 {s(sT+9)}, 64
    s_cbranch_vccnz L_winback
    s_andn2_b32 {s(sT)}, {s(sM7FF)}, {s(sKey)}      ; idx
    s_lshr_b32 {s(sT+9)}, {s(sT)}, 8                ; s1
    s_bitcmp1_b32 {s(sT+9)}, 0
    s_cselect_b64 vcc, -1, 0
    s_lshl_b32 {s(sT+1)}, {s(sT+9)}, 3
    s_and_b32 {s(sT+1)}, {s(sT+1)}, 0x30
    v_cndmask_b32 {v(W_)}, {v(LNP)}, {v(LNP+2)}, vcc
    v_cndmask_b32 {v(W_+1)}, {v(LNP+1)}, {v(LNP+3)}, vcc
    v_and_b32 {v(W_+2)}, 0x3ff, {v(vXoff)}
    s_bfm_b64 exec, 16, {s(sT+1)}
    buffer_store_dwordx2 {v(W_,2)}, {v(W_+2)}, {WS}, {s(sSlot)} offen sc1
    s_cmp_lg_u32 {s(sW)}, 0
    s_cbranch_scc1 L_nohdr
    v_mov_b32 {v(W_+8)}, {s(sKey)}
    v_cndmask_b32 {v(W_+9)}, {v(MM)}, {v(MM+1)}, vcc
    v_cndmask_b32 {v(W_+10)}, {v(RS2)}, {v(RS2+1)}, vcc
    v_mov_b32 {v(W_+11)}, {s(sKey)}
    buffer_store_dwordx4 {v(W_+8,4)}, off, {WS}, {s(sSlot)} offset:3072 sc1
    L_nohdr:
    ''')
    for c_ in range(4): a(f'v_cndmask_b32 {v(W_+4+c_)}, {v(X+2*c_)}, {v(X+2*c_+1)}, vcc')
    a(f'''
    v_lshlrev_b32 {v(W_+2)}, 1, {v(W_+2)}
    buffer_store_dwordx4 {v(W_+4,4)}, {v(W_+2)}, {WS}, {s(sSlot)} offen offset:1024 sc1
    s_mov_b64 exec, -1
    L_winback:
    s_cmp_eq_u32 {s(sIt)}, 2
    s_cbranch_scc1 L_fin
    s_add_u32 {s(sSlot)}, {s(sSlot)}, {SLOTR}
    s_branch L_tabdone
    L_fastchk:
    v_cmp_ne_u32 vcc, {s(sKey)}, {v(t+1)}
    s_nop 0
    s_cmp_eq_u64 vcc, 0
    s_cselect_b32 {s(sFast)}, 1, 0
    L_tabdone:
    s_cmp_eq_u32 {s(sFast)}, 0
    s_cbranch_scc1 L_slow
    L_slowback:
    s_cmp_lt_u32 {s(sJ)}, 8
    s_cbranch_scc1 L_yself
    L_y:
    ''')
    B=t
    def lloads(dst, va):
        for k in range(8):
            so = sLld if k<4 else sLld2
            a(f'buffer_load_dword {v(dst+k)}, {v(va)}, {WS}, {s(so)} offen offset:{256*(k&3)} sc1')
    lloads(B, vLld)
    a('s_waitcnt vmcnt(0)')
    maxchk(range(B,B+8), t+16)
    poll_branch('L_y', 0)
    a('L_yjoin:')
    stamp()
    R,I=t+20,t+24
    a(f'''
    v_mfma_f32_16x16x32_f16 {v(R,4)}, {v(B,4)}, {v(YR0,4)}, 0
    v_mfma_f32_16x16x32_f16 {v(I,4)}, {v(B,4)}, {v(YI0,4)}, 0
    v_mfma_f32_16x16x32_f16 {v(R,4)}, {v(B+4,4)}, {v(YR1,4)}, {v(R,4)}
    v_mfma_f32_16x16x32_f16 {v(I,4)}, {v(B+4,4)}, {v(YI1,4)}, {v(I,4)}
    s_add_u32 {s(sLst)}, {s(sLst)}, {LR}
    s_add_u32 {s(sLst2)}, {s(sLst2)}, {LR}
    s_add_u32 {s(sLld)}, {s(sLld)}, {LR}
    s_add_u32 {s(sLld2)}, {s(sLld2)}, {LR}
    s_add_u32 {s(sTabLd)}, {s(sTabLd)}, {ARGR}
    s_add_u32 {s(sTabSt)}, {s(sTabSt)}, {ARGR}
    ''')
    for r in range(4): a(f'v_cvt_pk_f16_f32 {v(B+r)}, {v(R+r)}, {v(I+r)}')
    a(f'''
    ds_write_b128 {v(vYW)}, {v(B,4)}
    s_cmp_lg_u32 {s(sIt)}, 0
    s_cbranch_scc1 L_ybar
    L_tabgw:
    s_waitcnt vmcnt(0)
    v_cmp_ne_u32 vcc, {s(sTag)}, {v(LNP+1)}
    s_cbranch_vccnz L_tabg_r ;!nd
    L_ybar:
    s_waitcnt lgkmcnt(0)
    s_barrier
    ds_read_b128 {v(B+4,4)}, {v(vYR)}
    s_waitcnt lgkmcnt(0)
    buffer_store_dwordx4 {v(B+4,4)}, {v(vGst)}, {WS}, {s(sG0)} offen sc1
    ''')
    stamp()
    a(f'''
    s_cmp_lg_u32 {s(sIt)}, 0
    s_cbranch_scc1 L_hdr
    ''')
    xin_consts(t+8)
    a('s_waitcnt vmcnt(0)')
    a('L_g:')
    C0,C1=t,t+4
    a(f'''
    buffer_load_dwordx4 {v(C0,4)}, {v(vGld)}, {WS}, {s(sG0)} offen sc1
    buffer_load_dwordx4 {v(C1,4)}, {v(vGld)}, {WS}, {s(sG4)} offen sc1
    s_waitcnt vmcnt(0)
    ''')
    maxchk(range(t,t+8), t+16)
    poll_branch('L_g', 1)
    stamp()
    E0,E1=t+8,t+12
    a(f'''
    s_cmp_lg_u32 {s(sMir)}, 0
    s_cbranch_scc1 L_xmir
    v_mfma_f32_16x16x16_f16 {v(E0,4)}, {v(XA,2)}, {v(C0,2)}, 0
    v_mfma_f32_16x16x16_f16 {v(E1,4)}, {v(XA,2)}, {v(C0+2,2)}, 0
    v_mfma_f32_16x16x16_f16 {v(E0,4)}, {v(XA+2,2)}, {v(C1,2)}, {v(E0,4)}
    v_mfma_f32_16x16x16_f16 {v(E1,4)}, {v(XA+2,2)}, {v(C1+2,2)}, {v(E1,4)}
    s_branch L_xjoin ;!nd
    L_xmir:
    ''')
    a.hist=[]
    a(f'''
    v_mfma_f32_16x16x16_f16 {v(E0,4)}, {v(XA,2)}, {v(C0+2,2)}, 0
    v_mfma_f32_16x16x16_f16 {v(E1,4)}, {v(XA,2)}, {v(C0,2)}, 0
    v_mfma_f32_16x16x16_f16 {v(E0,4)}, {v(XA+2,2)}, {v(C1+2,2)}, {v(E0,4)}
    v_mfma_f32_16x16x16_f16 {v(E1,4)}, {v(XA+2,2)}, {v(C1,2)}, {v(E1,4)}
    L_xjoin:
    s_add_u32 {s(sG0)}, {s(sG0)}, {GR}
    s_add_u32 {s(sG4)}, {s(sG4)}, {GR}
    s_cmp_lg_u32 {s(sIt)}, 0
    s_mov_b32 {s(sIt)}, 1
    s_cbranch_scc1 L_corr ;!nd
    s_nop 1
    L_corrback:
    v_pk_fma_f32 {v(X,2)}, {v(E0,2)}, {v(vSc0,2)}, {v(X,2)}
    v_pk_fma_f32 {v(X+2,2)}, {v(E0+2,2)}, {s(sSc,2)}, {v(X+2,2)}
    v_pk_fma_f32 {v(X+4,2)}, {v(E1,2)}, {s(sSc,2)}, {v(X+4,2)}
    v_pk_fma_f32 {v(X+6,2)}, {v(E1+2,2)}, {s(sSc,2)}, {v(X+6,2)}
    s_branch L_top ;!nd
    ''')
    a('L_yself:')
    lloads(B, vLld); lloads(B+8, vLldM)
    a('s_waitcnt vmcnt(0)')
    maxchk(range(B,B+16), t+16)
    poll_branch('L_yself', 0)
    a(f'''
    s_bitcmp1_b32 {s(sW)}, 1
    s_cbranch_scc1 L_yself4
    ''')
    for k in range(8): a(f'v_pk_add_f16 {v(B+k)}, {v(B+k)}, {v(B+8+k)} neg_hi:[0,1]')
    a('s_branch L_yjoin\nL_yself4:')
    for k in range(8): a(f'v_pk_add_f16 {v(B+k)}, {v(B+k)}, {v(B+8+k)} op_sel:[1,1] op_sel_hi:[0,0] neg_hi:[1,0]')
    a('s_branch L_yjoin')
    H=t+8
    sIdx=sT+11
    a(f'''
    L_hdr:
    v_and_b32 {v(t+16)}, 7, {v(vLane)}
    v_lshlrev_b32 {v(t+16)}, 12, {v(t+16)}
    s_mov_b32 {s(sT+10)}, {SLOT}
    L_hdrp:
    buffer_load_dwordx4 {v(H,4)}, {v(t+16)}, {WS}, {s(sT+10)} offen offset:3072 sc1
    s_waitcnt vmcnt(0)
    ''')
    maxchk(range(H,H+4), t+17)
    poll_branch('L_hdrp', 2)
    a(f'''
    v_max_u32_dpp {v(H+3)}, {v(H)}, {v(H)} row_half_mirror {DPP}
    v_max_u32_dpp {v(H+3)}, {v(H+3)}, {v(H+3)} quad_perm:[1,0,3,2] {DPP}
    v_max_u32_dpp {v(H+3)}, {v(H+3)}, {v(H+3)} quad_perm:[2,3,0,1] {DPP}
    v_readfirstlane_b32 {s(sIdx)}, {v(H+3)}
    v_lshlrev_b32 {v(t+16)}, 5, {v(vLane)}
    s_andn2_b32 {s(sIdx)}, {s(sM7FF)}, {s(sIdx)}
    s_and_b32 {s(sT)}, {s(sIdx)}, 7
    s_lshl_b32 {s(sT+1)}, {s(sT)}, 12
    s_add_u32 {s(sT+10)}, {s(sT+10)}, {s(sT+1)}
    v_readlane_b32 {s(sT+13)}, {v(H+1)}, {s(sT)}
    v_readlane_b32 {s(sT+14)}, {v(H+2)}, {s(sT)}
    L_basep:
    buffer_load_dwordx4 {v(BC+2,4)}, {v(t+16)}, {WS}, {s(sT+10)} offen offset:1024 sc1
    buffer_load_dwordx4 {v(BC+6,4)}, {v(t+16)}, {WS}, {s(sT+10)} offen offset:1040 sc1
    v_lshrrev_b32 {v(t+17)}, 1, {v(vN)}
    v_and_b32 {v(t+17)}, 6, {v(t+17)}
    v_and_or_b32 {v(t+17)}, {v(vN)}, 1, {v(t+17)}
    v_lshl_add_u32 {v(t+17)}, {v(t+17)}, 8, s2
    v_mul_u32_u24 {v(t+17)}, {s(sIdx)}, {v(t+17)}
    v_and_b32 {v(t+17)}, 0x7ff, {v(t+17)}
    v_cvt_f32_u32 {v(t+17)}, {v(t+17)}
    v_mul_f32 {v(t+17)}, {fbits(1/2048)}, {v(t+17)}
    v_cos_f32 {v(t+18)}, {v(t+17)}
    v_sin_f32 {v(t+19)}, {v(t+17)}
    v_and_b32 {v(t+17)}, 0x32, {v(vLane)}
    v_cvt_pk_f16_f32 {v(t+18)}, {v(t+18)}, {v(t+19)}
    v_cmp_eq_u32 vcc, 0, {v(t+17)}
    v_cndmask_b32 {v(AD)}, 0, {v(t+18)}, vcc
    v_cmp_eq_u32 vcc, 2, {v(t+17)}
    v_cndmask_b32 {v(AD+1)}, 0, {v(t+18)}, vcc
    s_sub_u32 {s(sT)}, 2047, {s(sIdx)}
    s_add_u32 {s(sT+1)}, {s(sT)}, 256
    v_cmp_eq_u32 vcc, {s(sT)}, {v(vInv)}
    v_cndmask_b32 {v(BC)}, 0, 1.0, vcc
    v_cmp_eq_u32 vcc, {s(sT+1)}, {v(vInv)}
    v_cndmask_b32 {v(BC+1)}, 0, 1.0, vcc
    s_waitcnt vmcnt(0)
    ''')
    maxchk(range(BC+2,BC+10), t+17)
    poll_branch('L_basep', 2)
    for k in range(8): a(f'v_subrev_f32 {v(BC+2+k)}, {s(sT+13)}, {v(BC+2+k)}')
    a(f'''
    v_mov_b32 {v(BC+10)}, {s(sT+14)}
    v_mul_f32 {v(BC+10)}, {s(sDsc)}, {v(BC+10)}         ; rs2*dsc
    s_branch L_g
    ''')
    Y=t+16; YX=t+24; u=t+28
    vDW,vDR=BC+12,BC+13
    a(f'''
    L_corr:
    s_mov_b32 {s(sIt)}, 2
    s_lshl_b32 {s(sT)}, {s(sX)}, 7
    s_add_u32 {s(sT)}, {s(sT)}, {YHINT}
    v_and_b32 {v(u)}, 3, {v(vLane)}
    v_lshlrev_b32 {v(u)}, 2, {v(u)}
    v_and_b32 {v(u+1)}, 1, {v(vLane)}
    v_lshlrev_b32 {v(u+1)}, 5, {v(u+1)}
    v_lshrrev_b32 {v(u+2)}, 1, {v(vLane)}
    v_lshl_add_u32 {v(u+1)}, {v(u+2)}, 7, {v(u+1)}        ; (l>>1)*128+(l&1)*32
    v_lshrrev_b32 {v(u+2)}, 2, {v(vN)}
    v_lshlrev_b32 {v(u+2)}, 7, {v(u+2)}
    v_lshl_add_u32 {v(u+2)}, {v(u)}, 2, {v(u+2)}          ; (n>>2)*128+(n&3)*16
    s_lshl_b32 {s(sT+1)}, {s(sW)}, 9
    s_add_u32 {s(sT+1)}, {s(sT+1)}, {YBUF}
    s_mov_b32 {s(sT+2)}, {YBUF}
    s_lshl_b32 {s(sT+3)}, {s(sW)}, 10
    s_add_u32 {s(sT+3)}, {s(sT+3)}, {L_U}
    v_lshl_add_u32 {v(u+4)}, {v(vLane)}, 4, {s(sT+3)}
    v_lshl_add_u32 {v(u+5)}, {v(vLane)}, 3, {s(sT+3)}
    s_and_b32 {s(sT+3)}, {s(sW)}, 1
    s_lshl_b32 {s(sT+3)}, {s(sT+3)}, 6
    s_add_u32 {s(sT+3)}, {s(sT+3)}, {L_DH}
    v_lshl_add_u32 {v(vDW)}, {v(vQ)}, 9, {s(sT+3)}
    v_lshl_add_u32 {v(vDW)}, {v(vN)}, 2, {v(vDW)}
    s_lshl_b32 {s(sT+3)}, {s(sW)}, 8
    s_add_u32 {s(sT+3)}, {s(sT+3)}, {L_DH}
    v_lshl_add_u32 {v(vDR)}, {v(vN)}, 4, {s(sT+3)}
    s_cmp_lg_u32 {s(sW)}, 0
    s_cbranch_scc1 L_hintb
    s_movk_i32 {s(sTry)}, 500
    L_hint:
    buffer_load_dword {v(u+3)}, {v(u)}, {WS}, {s(sT)} offen sc1
    s_waitcnt vmcnt(0)
    v_cmp_ne_u32 vcc, {s(sTag)}, {v(u+3)}
    ''')
    poll_branch('L_hint', 1, giveup='L_hintb')
    if cfg.tim_y: a(f's_sleep {cfg.tim_y}')
    a(f'''
    L_hintb:
    s_barrier
    L_yv:
    buffer_load_dwordx4 {v(Y,4)}, {v(u+1)}, {WS}, {s(sT+2)} offen sc1
    buffer_load_dwordx4 {v(Y+4,4)}, {v(u+1)}, {WS}, {s(sT+2)} offen offset:16 sc1
    buffer_load_dwordx4 {v(YX,4)}, {v(u+2)}, {WS}, {s(sT+1)} offen sc1
    s_waitcnt vmcnt(0)
    ''')
    maxchk(range(Y,Y+12), u+3)
    poll_branch('L_yv', 1)
    stamp()
    for k in range(4): a(f'v_pk_add_f32 {v(Y+2*k,2)}, {v(Y+2*k,2)}, {v(BC+2+2*k,2)}')
    s1,s2=u,u+2
    a(f'''
    v_pk_add_f32 {v(s1,2)}, {v(Y,2)}, {v(Y+2,2)}
    v_pk_mul_f32 {v(s2,2)}, {v(Y,2)}, {v(Y,2)}
    v_pk_add_f32 {v(s1,2)}, {v(s1,2)}, {v(Y+4,2)}
    v_pk_fma_f32 {v(s2,2)}, {v(Y+2,2)}, {v(Y+2,2)}, {v(s2,2)}
    v_pk_add_f32 {v(s1,2)}, {v(s1,2)}, {v(Y+6,2)}
    v_pk_fma_f32 {v(s2,2)}, {v(Y+4,2)}, {v(Y+4,2)}, {v(s2,2)}
    v_add_f32 {v(s1)}, {v(s1)}, {v(s1+1)}
    v_pk_fma_f32 {v(s2,2)}, {v(Y+6,2)}, {v(Y+6,2)}, {v(s2,2)}
    v_add_f32 {v(s2)}, {v(s2)}, {v(s2+1)}
    v_pk_fma_f32 {v(X,2)}, {v(BC,2)}, {v(YX,2)}, {v(X,2)} op_sel:[0,0,0] op_sel_hi:[1,0,1]
    v_pk_fma_f32 {v(X+2,2)}, {v(BC,2)}, {v(YX,2)}, {v(X+2,2)} op_sel:[0,1,0] op_sel_hi:[1,1,1]
    v_permlane32_swap_b32 {v(s1)}, {v(s2)}
    v_add_f32 {v(s1)}, {v(s1)}, {v(s2)}
    v_pk_fma_f32 {v(X+4,2)}, {v(BC,2)}, {v(YX+2,2)}, {v(X+4,2)} op_sel:[0,0,0] op_sel_hi:[1,0,1]
    v_pk_fma_f32 {v(X+6,2)}, {v(BC,2)}, {v(YX+2,2)}, {v(X+6,2)} op_sel:[0,1,0] op_sel_hi:[1,1,1]
    v_add_f32_dpp {v(s1)}, {v(s1)}, {v(s1)} row_ror:8 {DPP}
    v_pk_mul_f32 {v(BC+2,2)}, {v(BC+2,2)}, {v(BC+10,2)} op_sel_hi:[1,0]
    v_pk_mul_f32 {v(BC+4,2)}, {v(BC+4,2)}, {v(BC+10,2)} op_sel_hi:[1,0]
    v_add_f32_dpp {v(s1)}, {v(s1)}, {v(s1)} row_ror:4 {DPP}
    v_pk_mul_f32 {v(BC+6,2)}, {v(BC+6,2)}, {v(BC+10,2)} op_sel_hi:[1,0]
    v_pk_mul_f32 {v(BC+8,2)}, {v(BC+8,2)}, {v(BC+10,2)} op_sel_hi:[1,0]
    v_add_f32_dpp {v(s1)}, {v(s1)}, {v(s1)} row_ror:2 {DPP}
    v_add_f32_dpp {v(s1)}, {v(s1)}, {v(s1)} row_ror:1 {DPP}
    v_add_f32_dpp {v(s1)}, {v(s1)}, {v(s1)} row_bcast:15 row_mask:0xa bank_mask:0xf
    v_mul_f32 {v(s1)}, {s(sK512)}, {v(s1)}
    v_readlane_b32 {s(sT+1)}, {v(s1)}, 31
    v_readlane_b32 {s(sT+2)}, {v(s1)}, 63
    v_mov_b32 {v(s2)}, {s(sT+1)}
    v_fma_f32 {v(s1)}, -{v(s2)}, {v(s2)}, {s(sT+2)}
    v_add_f32 {v(s1)}, {s(sEps)}, {v(s1)}
    v_rsq_f32_e64 {v(s1)}, |{v(s1)}|
    v_mul_f32 {v(s1)}, {s(sDsc)}, {v(s1)}
    ''')
    for k in range(4):
        a(f'v_pk_fma_f32 {v(Y+2*k,2)}, {v(Y+2*k,2)}, {v(s1,2)}, {v(BC+2+2*k,2)} op_sel_hi:[1,0,1] neg_lo:[0,0,1] neg_hi:[0,0,1]')
    for k in range(4): a(f'v_cvt_pk_f16_f32 {v(t+k)}, {v(Y+2*k)}, {v(Y+2*k+1)}')
    a(f'''
    ds_write_b128 {v(u+4)}, {v(t,4)}
    ds_read_b64_tr_b16 {v(t+4,2)}, {v(u+5)}
    ds_read_b64_tr_b16 {v(t+6,2)}, {v(u+5)} offset:512
    s_waitcnt lgkmcnt(0)
    ''')
    fft_core(t+4, None, t+16, t+24, t+16, t)
    a(f'''
    s_cmp_gt_u32 {s(sW)}, 1
    s_cbranch_scc1 L_dhb
    ds_write2_b32 {v(vDW)}, {v(t)}, {v(t+1)} offset0:0 offset1:32
    ds_write2_b32 {v(vDW)}, {v(t+2)}, {v(t+3)} offset0:64 offset1:96
    L_dhb:
    s_waitcnt lgkmcnt(0)
    s_barrier
    ds_read_b128 {v(t,4)}, {v(vDR)}
    s_waitcnt lgkmcnt(0)
    v_mfma_f32_16x16x16_f16 {v(E0,4)}, {v(AD,2)}, {v(t,2)}, {v(E0,4)}
    v_mfma_f32_16x16x16_f16 {v(E1,4)}, {v(AD,2)}, {v(t+2,2)}, {v(E1,4)}
    s_nop 5
    s_branch L_corrback ;!nd
    ''')
    a('L_fin:')
    for rho in (0,1):
        for k in (0,1):
            a(f'v_cvt_pk_bf16_f32 {v(t+2*rho+k)}, {v(X+4*k+rho)}, {v(X+4*k+2+rho)}')
    a(f'''
    v_lshlrev_b32 {v(t+4)}, 1, {v(vQ)}
    v_mov_b32 {v(t+7)}, 0x200000
    s_sub_u32 {s(sT)}, {s(sT+9)}, 1
    v_cmp_eq_u32 vcc, {s(sT+9)}, {v(t+4)}
    v_cndmask_b32 {v(t+5)}, {v(vXoff)}, {v(t+7)}, vcc
    v_cmp_eq_u32 vcc, {s(sT)}, {v(t+4)}
    v_cndmask_b32 {v(t+6)}, {v(vXoff)}, {v(t+7)}, vcc
    buffer_store_dwordx2 {v(t,2)}, {v(t+5)}, {OS}, {s(sRow0)} offen
    buffer_store_dwordx2 {v(t+2,2)}, {v(t+6)}, {OS}, {s(sRow1)} offen
    s_or_b32 {s(sT)}, s2, {s(sW)}
    s_cbranch_scc1 L_fin2
    v_mov_b32 {v(t+8)}, {s(sTag)}
    buffer_store_dword {v(t+8)}, off, {WS}, 0 sc1
    L_fin2:
    ''')
    stamp(); dump_stamps()
    a('s_endpgm')
    def pub2():
        a(f'''
        v_mov_b32 {v(t+2)}, {s(sTag)}
        v_mov_b32 {v(t+3)}, {s(sXcc)}
        s_add_u32 {s(sT)}, {s(sTabSt)}, {TAB2-TABL}
        buffer_store_dwordx2 {v(t+2,2)}, off, {WS}, {s(sT)} sc1
        ''')
    a(f'''
    L_tabst_slow:
    buffer_store_dwordx2 {v(K,2)}, off, {WS}, {s(sTabSt)} sc1
    s_branch L_tabst_back
    L_tabg_r:
    s_sub_u32 {s(sCnt)}, {s(sCnt)}, 1
    s_cbranch_scc1 L_end
    s_sleep 2
    buffer_load_dword {v(LNP+1)}, {v(LNP)}, {WS}, {s(sT+10)} offen sc1
    s_branch L_tabgw
    L_tab2:
    ''')
    pub2()
    a(f'''
    s_add_u32 {s(sT+1)}, {s(sTabLd)}, {TAB2-TABL}
    L_tab2p:
    buffer_load_dwordx2 {v(t,2)}, {v(vL8)}, {WS}, {s(sTabLd)} offen sc1
    buffer_load_dwordx2 {v(t+2,2)}, {v(vL8)}, {WS}, {s(sT+1)} offen sc1
    s_waitcnt vmcnt(0)
    v_cmp_eq_u32 vcc, {s(sTag)}, {v(t)}
    v_cndmask_b32 {v(t)}, {v(t+2)}, {v(t)}, vcc
    v_cndmask_b32 {v(t+1)}, {v(t+3)}, {v(t+1)}, vcc
    v_cmp_ne_u32 vcc, {s(sTag)}, {v(t)}
    ''')
    poll_branch('L_tab2p', 4)
    a(f'''
    s_branch L_tabok
    L_slow:
    s_cmp_lg_u32 {s(sIt)}, 0
    s_cbranch_scc1 L_slow1
    ''')
    pub2()
    a('L_slow1:')
    lstores('sc1')
    a(f'''
    s_waitcnt vmcnt(0)
    s_barrier
    s_add_u32 {s(sT)}, {s(sTabSt)}, {SLOWF-TABL}
    s_add_u32 {s(sT+1)}, {s(sTabLd)}, {SLOWF-TABL}
    v_mov_b32 {v(t)}, {s(sTag)}
    s_cmp_lg_u32 {s(sW)}, 0
    s_cbranch_scc1 L_slowp
    buffer_store_dword {v(t)}, off, {WS}, {s(sT)} sc1
    L_slowp:
    buffer_load_dword {v(t+1)}, {v(vL8)}, {WS}, {s(sT+1)} offen sc1
    s_waitcnt vmcnt(0)
    v_cmp_ne_u32 vcc, {s(sTag)}, {v(t+1)}
    ''')
    poll_branch('L_slowp', 2)
    a('s_branch L_slowback')
    emit_retries()

def hint_store(vreg, soff, lbl):
    a(f'''
    s_mov_b64 exec, 1
    s_cmp_eq_u32 {s(sFast)}, 0
    s_cbranch_scc1 {lbl}_s
    buffer_store_dword {v(vreg)}, off, {WS}, {s(soff)}
    s_branch {lbl}_d
    {lbl}_s:
    buffer_store_dword {v(vreg)}, off, {WS}, {s(soff)} sc1
    {lbl}_d:
    s_mov_b64 exec, -1
    ''')

def ffn():
    WB=4; t2=66; t=40
    vSl=32; vPW=33; vH=34; vHd=35; vTag=36; vPR=37
    sI=sJ; sFb=sLld; sRnd=sIt; sHo=sLst; sHH=sLst2; sCb=sLld2
    a(f'''
    L_ffn:
    s_and_b32 {s(sI)}, {s(sJ)}, 31
    s_mul_i32 {s(sT)}, {s(sX)}, {GS}
    s_lshl_b32 {s(sT+1)}, {s(sI)}, 13
    s_add_u32 {s(sT)}, {s(sT)}, {s(sT+1)}
    s_add_u32 {s(sT)}, {s(sT)}, {GBASE}
    s_add_u32 {s(sT+1)}, {s(sT)}, {GR}
    s_sub_u32 {s(sT+3)}, s2, 256
    s_lshl_b32 {s(sT+2)}, {s(sT+3)}, 13
    s_add_u32 {s(sT+2)}, {s(sT+2)}, {CLR0}
    s_cmp_lt_u32 {s(sT+3)}, 12
    s_cselect_b32 {s(sT+2)}, {s(sT+2)}, {WSSZ}
    v_lshlrev_b32 {v(t)}, 4, v0
    v_lshrrev_b32 {v(t+1)}, 5, v0
    v_mul_u32_u24 {v(t+1)}, 3584, {v(t+1)}
    v_and_b32 {v(t+2)}, 0x1f0, {v(t)}
    s_mul_i32 {s(sT+4)}, {s(sI)}, {16*3584}
    s_mul_i32 {s(sT+5)}, {s(sX)}, 7
    s_lshr_b32 {s(sT+5)}, {s(sT+5)}, 1
    s_lshl_b32 {s(sT+5)}, {s(sT+5)}, 7
    s_add_u32 {s(sT+4)}, {s(sT+4)}, {s(sT+5)}
    v_add3_u32 {v(t+1)}, {v(t+1)}, {v(t+2)}, {s(sT+4)}
    v_lshrrev_b32 {v(t+2)}, 3, v0
    v_min_u32 {v(t+2)}, 55, {v(t+2)}
    v_lshlrev_b32 {v(t+2)}, 10, {v(t+2)}
    v_and_b32 {v(t+3)}, 0x70, {v(t)}
    s_mul_i32 {s(sT+4)}, {s(sI)}, {56*1024}
    s_lshl_b32 {s(sT+5)}, {s(sX)}, 7
    s_add_u32 {s(sT+4)}, {s(sT+4)}, {s(sT+5)}
    v_add3_u32 {v(t+2)}, {v(t+2)}, {v(t+3)}, {s(sT+4)}
    s_waitcnt lgkmcnt(0)
    buffer_load_dword {v(vTag)}, off, {WS}, 0 sc1
    buffer_store_dwordx4 {v(T+4,4)}, {v(t)}, {WS}, {s(sT)} offen sc1
    buffer_store_dwordx4 {v(T+4,4)}, {v(t)}, {WS}, {s(sT+2)} offen sc1
    buffer_store_dwordx4 {v(T+4,4)}, {v(t)}, {WS}, {s(sT+1)} offen sc1
    global_load_dwordx4 {v(WB,4)}, {v(t+1)}, s[18:19]
    global_load_dwordx4 {v(WB+4,4)}, {v(t+1)}, s[20:21]
    global_load_dwordx4 {v(WB+8,4)}, {v(t+2)}, s[22:23]
    ''')
    npf=3
    if cfg.codepf:
        a(f'''
        s_getpc_b64 {s(sT+6,2)}
        L_pc:
        s_sub_u32 {s(sT+6)}, {s(sT+6)}, L_pc-{NAME}_kernel
        s_subb_u32 {s(sT+7)}, {s(sT+7)}, 0
        v_min_u32 {v(t+3)}, L_end-{NAME}_kernel, {v(t)}
        global_load_dword {v(WB+12)}, {v(t+3)}, {s(sT+6,2)}
        ''')
        npf=4
    a(f'''
    s_mul_i32 {s(sFb)}, {s(sX)}, 28
    s_add_u32 {s(sFb)}, {s(sFb)}, {s(sI)}
    s_lshl_b32 {s(sFb)}, {s(sFb)}, 4           ; fb*16
    s_lshl_b32 {s(sCb)}, {s(sX)}, 2
    s_add_u32 {s(sCb)}, {s(sCb)}, {s(sI)}
    s_sub_u32 {s(sCb)}, {s(sCb)}, 28
    v_mov_b32 {v(t2+42)}, 0x200000
    s_lshl_b32 {s(sT)}, {s(sW)}, 11
    v_lshl_add_u32 {v(t+4)}, {v(vLane)}, 5, {s(sT)}
    v_lshl_add_u32 {v(t+5)}, {v(vLane)}, 4, {s(sT)}
    v_lshl_add_u32 {v(t+6)}, {v(vQ)}, 8, {s(sT)}
    v_lshl_add_u32 {v(t+6)}, {v(vN)}, 3, {v(t+6)}
    v_and_b32 {v(vHd)}, 7, {v(vLane)}
    v_lshlrev_b32 {v(vHd)}, 12, {v(vHd)}
    s_lshl_b32 {s(sT)}, {s(sW)}, 7
    v_lshl_add_u32 {v(vSl)}, {v(vQ)}, 4, {v(vHd)}
    v_add_u32 {v(vSl)}, {s(sT)}, {v(vSl)}
    s_mul_i32 {s(sT)}, {s(sW)}, 448
    v_lshl_add_u32 {v(vH)}, {v(vQ)}, 4, {s(sT)}
    s_lshl_b32 {s(sT+8)}, {s(sT+3)}, 4
    s_add_u32 {s(sT+8)}, {s(sT+8)}, {TABG}
    s_mov_b32 {s(sRnd)}, 0
    s_mov_b32 {s(sSlot)}, {SLOT}
    s_mov_b32 {s(sHo)}, {HBUF}
    s_lshl_b32 {s(sHH)}, {s(sX)}, 7
    s_add_u32 {s(sHH)}, {s(sHH)}, {HHINT}
    s_waitcnt vmcnt({npf})
    v_add_u32 {v(vTag)}, 1, {v(vTag)}
    s_barrier
    v_readfirstlane_b32 {s(sTag)}, {v(vTag)}
    s_cmp_lg_u32 {s(sW)}, 0
    s_cbranch_scc1 L_fnt
    s_mov_b64 exec, 1
    buffer_store_dword {v(vTag)}, off, {WS}, {s(sT+8)} sc1
    s_mov_b64 exec, -1
    L_fnt:
    s_waitcnt vmcnt(0)
    s_barrier
    ''')
    stamp()
    a(f'''
    s_cmp_ge_u32 {s(sI)}, 28
    s_cbranch_scc1 L_fwb
    v_mul_u32_u24 {v(t)}, 3584, v0
    v_add_u32 {v(t)}, {s(sFb)}, {v(t)}
    global_load_dwordx4 {v(WB,4)}, {v(t)}, s[18:19]
    global_load_dwordx4 {v(WB+4,4)}, {v(t)}, s[20:21]
    s_lshl_b32 {s(sT)}, {s(sW)}, 10
    v_lshl_add_u32 {v(vPW)}, {v(vLane)}, 4, {s(sT)}
    s_waitcnt vmcnt(0)
    ds_write_b128 {v(t+4)}, {v(WB,4)}
    ds_write_b128 {v(t+4)}, {v(WB+4,4)} offset:16
    s_waitcnt lgkmcnt(0)
    ds_read_b64_tr_b16 {v(WB,2)}, {v(t+6)}
    ds_read_b64_tr_b16 {v(WB+2,2)}, {v(t+6)} offset:128
    ds_read_b64_tr_b16 {v(WB+4,2)}, {v(t+6)} offset:1024
    ds_read_b64_tr_b16 {v(WB+6,2)}, {v(t+6)} offset:1152
    s_branch L_fw_done
    L_fwb:
    s_mul_i32 {s(sT)}, {s(sW)}, {224*1024}
    s_lshl_b32 {s(sT+1)}, {s(sCb)}, 5
    s_add_u32 {s(sT)}, {s(sT)}, {s(sT+1)}
    v_lshrrev_b32 {v(t+7)}, 1, {v(vLane)}
    v_lshlrev_b32 {v(t+7)}, 10, {v(t+7)}
    v_and_b32 {v(t+8)}, 1, {v(vLane)}
    v_lshl_add_u32 {v(t+7)}, {v(t+8)}, 4, {v(t+7)}
    v_add_u32 {v(t+7)}, {s(sT)}, {v(t+7)}
    ''')
    for k in range(7):
        a(f'global_load_dwordx4 {v(WB+4*k,4)}, {v(t+7)}, s[22:23]')
        if k<6: a(f'v_add_u32 {v(t+7)}, 0x8000, {v(t+7)}')
    a(f'''
    s_lshl_b32 {s(sT)}, {s(sW)}, 2
    v_lshl_add_u32 {v(vPW)}, {v(vLane)}, 5, {s(sT)}
    s_waitcnt vmcnt(0)''')
    for k in range(7):
        o=(k&1)*1024
        a(f'''ds_write_b128 {v(t+5)}, {v(WB+4*k,4)} offset:{o}
        s_waitcnt lgkmcnt(0)
        ds_read_b64_tr_b16 {v(WB+4*k,2)}, {v(t+6)} offset:{o}
        ds_read_b64_tr_b16 {v(WB+4*k+2,2)}, {v(t+6)} offset:{o+128}''')
    a(f'''
    L_fw_done:
    s_waitcnt lgkmcnt(0)
    ''')
    stamp()
    a(f'''
    s_mov_b32 {s(sFast)}, 0
    s_cmp_lg_u32 {s(sW)}, 0
    s_cbranch_scc1 L_fbar
    s_mov_b32 {s(sTry)}, 40
    L_fl:
    buffer_load_dwordx2 {v(t,2)}, {v(vL8)}, {WS}, {s(sTabLd)} offen sc1
    s_waitcnt vmcnt(0)
    v_cmp_ne_u32 vcc, {s(sTag)}, {v(t)}
    ''')
    poll_branch('L_fl', 8, giveup='L_ftab0')
    a(f'''
    v_cmp_ne_u32 vcc, {s(sXcc)}, {v(t+1)}
    s_nop 0
    s_cmp_eq_u64 vcc, 0
    s_cselect_b32 {s(sFast)}, 1, 0
    L_ftab0:
    v_lshlrev_b32 {v(t+16)}, 4, {v(vLane)}
    s_mov_b32 {s(sT+10)}, {TABG}
    L_ftab:
    ''')
    for k in range(4): a(f'buffer_load_dword {v(t+k)}, {v(t+16)}, {WS}, {s(sT+10)} offen offset:{1024*k} sc1')
    a('s_waitcnt vmcnt(0)')
    for k in range(4): a(f'v_xor_b32 {v(t+k)}, {s(sTag)}, {v(t+k)}')
    a(f'''
    v_or3_b32 {v(t)}, {v(t)}, {v(t+1)}, {v(t+2)}
    v_or_b32 {v(t)}, {v(t)}, {v(t+3)}
    v_cmp_ne_u32 vcc, 0, {v(t)}
    ''')
    poll_branch('L_ftab', 8)
    a(f'''
    L_frnd:
    s_add_u32 {s(sTabLd)}, {s(sTabLd)}, {ARGR}
    s_cmp_lg_u32 {s(sW)}, 0
    s_cbranch_scc1 L_fbar
    s_cmp_eq_u32 {s(sFast)}, 0
    s_cbranch_scc1 L_ftd
    L_ftrig:
    buffer_load_dword {v(t)}, {v(vL8)}, {WS}, {s(sTabLd)} offen sc1
    s_waitcnt vmcnt(0)
    v_cmp_ne_u32 vcc, {s(sTag)}, {v(t)}
    ''')
    poll_branch('L_ftrig', 2)
    stamp()
    if cfg.tim_arg: a(f's_sleep {cfg.tim_arg}')
    a(f'''
    L_ftd:
    s_cmp_ge_u32 {s(sI)}, 28
    s_cbranch_scc1 L_fb0
    L_fbar:
    s_barrier
    s_cmp_ge_u32 {s(sI)}, 28
    s_cbranch_scc1 L_fh
    L_fslot:
    buffer_load_dwordx4 {v(t,4)}, {v(vSl)}, {WS}, {s(sSlot)} offen sc1
    buffer_load_dwordx4 {v(t+4,4)}, {v(vSl)}, {WS}, {s(sSlot)} offen offset:64 sc1
    buffer_load_dword {v(t+8)}, {v(vHd)}, {WS}, {s(sSlot)} offen offset:3072 sc1
    s_waitcnt vmcnt(0)
    ''')
    maxchk(range(t,t+9), t+9)
    poll_branch('L_fslot', 2)
    stamp()
    Dd=t+12
    a(f'''
    v_mfma_f32_16x16x32_bf16 {v(Dd,4)}, {v(t,4)}, {v(WB,4)}, 0
    v_mfma_f32_16x16x32_bf16 {v(Dd,4)}, {v(t+4,4)}, {v(WB+4,4)}, {v(Dd,4)}
    v_max_u32_dpp {v(t+9)}, {v(t+8)}, {v(t+8)} row_half_mirror {DPP}
    s_add_u32 {s(sT+1)}, {s(sHo)}, {s(sFb)}
    s_lshl_b32 {s(sT+2)}, {s(sI)}, 2
    v_max_u32_dpp {v(t+9)}, {v(t+9)}, {v(t+9)} quad_perm:[1,0,3,2] {DPP}
    s_add_u32 {s(sT+2)}, {s(sT+2)}, {s(sHH)}
    v_lshlrev_b32 {v(t+10)}, 4, {v(vN)}
    v_max_u32_dpp {v(t+9)}, {v(t+9)}, {v(t+9)} quad_perm:[2,3,0,1] {DPP}
    v_not_b32 {v(t+9)}, {v(t+9)}
    ds_write_b128 {v(vPW)}, {v(Dd,4)}
    v_and_b32 {v(t+11)}, 4, {v(t+9)}
    v_and_b32 {v(t+9)}, 3, {v(t+9)}
    v_lshl_add_u32 {v(t+10)}, {v(t+11)}, 6, {v(t+10)}
    v_lshl_add_u32 {v(t+10)}, {v(t+9)}, 2, {v(t+10)}
    v_lshlrev_b32 {v(t+11)}, 1, {v(vN)}
    s_waitcnt lgkmcnt(0)
    s_barrier
    s_cmp_lg_u32 {s(sW)}, 0
    s_cbranch_scc1 L_fnext
    ds_read2st64_b32 {v(t,2)}, {v(t+10)} offset0:0 offset1:4
    ds_read2st64_b32 {v(t+2,2)}, {v(t+10)} offset0:8 offset1:12
    ds_read2st64_b32 {v(t+4,2)}, {v(t+10)} offset0:16 offset1:20
    ds_read2st64_b32 {v(t+6,2)}, {v(t+10)} offset0:24 offset1:28
    s_waitcnt lgkmcnt(2)
    v_pk_add_f32 {v(t,2)}, {v(t,2)}, {v(t+2,2)}
    s_waitcnt lgkmcnt(0)
    v_pk_add_f32 {v(t+4,2)}, {v(t+4,2)}, {v(t+6,2)}
    v_pk_add_f32 {v(t,2)}, {v(t,2)}, {v(t+4,2)}
    v_add_f32 {v(t)}, {v(t)}, {v(t+1)}
    v_mul_f32 {v(t+1)}, 0xbfb8aa3b, {v(t)}
    v_exp_f32 {v(t+1)}, {v(t+1)}
    v_mul_f32_dpp {v(t+2)}, {v(t)}, {v(t)} row_ror:8 {DPP}
    v_add_f32 {v(t+1)}, 1.0, {v(t+1)}
    v_rcp_f32 {v(t+1)}, {v(t+1)}
    v_mul_f32 {v(t+1)}, {v(t+1)}, {v(t+2)}
    v_mov_b32_dpp {v(t+2)}, {v(t+1)} quad_perm:[1,1,3,3] {DPP}
    s_mov_b64 exec, 0x55
    v_cvt_pk_bf16_f32 {v(t+1)}, {v(t+1)}, {v(t+2)}
    buffer_store_dword {v(t+1)}, {v(t+11)}, {WS}, {s(sT+1)} offen sc1
    ''')
    hint_store(vTag, sT+2, 'L_fhh')
    a('L_fnext:')
    stamp()
    a(f'''
    s_cmp_lg_u32 {s(sRnd)}, 0
    s_cbranch_scc1 L_fend
    s_mov_b32 {s(sRnd)}, 1
    s_add_u32 {s(sSlot)}, {s(sSlot)}, {SLOTR}
    s_add_u32 {s(sHo)}, {s(sHo)}, {HR}
    s_add_u32 {s(sHH)}, {s(sHH)}, {HHR}
    s_branch L_frnd
    L_fb0:
    v_lshrrev_b32 {v(t2+36)}, 3, {v(vLane)}
    v_lshlrev_b32 {v(t2+36)}, 12, {v(t2+36)}
    v_and_b32 {v(t2+37)}, 0x38, {v(vL8)}
    s_lshl_b32 {s(sT)}, {s(sCb)}, 6
    v_add3_u32 {v(t2+38)}, {v(t2+36)}, {v(t2+37)}, {s(sT)}
    L_fbase:
    buffer_load_dwordx2 {v(t2+40,2)}, {v(t2+38)}, {WS}, {s(sSlot)} offen offset:1024 sc1
    buffer_load_dword {v(t2+42)}, {v(t2+36)}, {WS}, {s(sSlot)} offen offset:3072 sc1
    buffer_load_dword {v(t2+43)}, {v(vHd)}, {WS}, {s(sSlot)} offen offset:3072 sc1
    s_waitcnt vmcnt(0)
    ''')
    maxchk(range(t2+40,t2+44), t2+39)
    poll_branch('L_fbase', 2)
    stamp()
    a(f'''
    v_max_u32_dpp {v(t2+43)}, {v(t2+43)}, {v(t2+43)} row_half_mirror {DPP}
    v_max_u32_dpp {v(t2+43)}, {v(t2+43)}, {v(t2+43)} quad_perm:[1,0,3,2] {DPP}
    v_max_u32_dpp {v(t2+43)}, {v(t2+43)}, {v(t2+43)} quad_perm:[2,3,0,1] {DPP}
    v_readfirstlane_b32 {s(sKey)}, {v(t2+43)}
    v_mov_b32 {v(t2+34)}, 0xbfb8aa3b
    s_ashr_i32 {s(sT)}, {s(sKey)}, 31
    s_orn2_b32 {s(sT)}, 0x80000000, {s(sT)}
    s_xor_b32 {s(sT)}, {s(sT)}, {s(sKey)}
    v_mul_f32 {v(t2+34)}, {s(sT)}, {v(t2+34)}
    v_exp_f32 {v(t2+34)}, {v(t2+34)}
    v_add_f32 {v(t2+34)}, 1.0, {v(t2+34)}
    v_rcp_f32 {v(t2+34)}, {v(t2+34)}
    v_cmp_eq_u32 vcc, {s(sKey)}, {v(t2+42)}
    v_cndmask_b32 {v(t2+44)}, 0, {v(t2+34)}, vcc
    v_bfi_b32 {v(t2+42)}, {v(t2+42)}, 0, {s(sM7FF)}
    v_lshlrev_b32 {v(t2+42)}, 10, {v(t2+42)}
    v_lshrrev_b32 {v(t2+38)}, 1, {v(t2+37)}
    s_lshl_b32 {s(sT)}, {s(sCb)}, 5
    v_add3_u32 {v(t2+42)}, {v(t2+42)}, {v(t2+38)}, {s(sT)}
    s_cmp_eq_u32 {s(sFast)}, 0
    s_cbranch_scc1 L_fbar
    v_min_u32 {v(t)}, 27, {v(vLane)}
    v_lshlrev_b32 {v(t)}, 2, {v(t)}
    s_movk_i32 {s(sTry)}, 500
    L_fhint:
    buffer_load_dword {v(t+1)}, {v(t)}, {WS}, {s(sHH)} offen sc1
    s_waitcnt vmcnt(0)
    v_cmp_ne_u32 vcc, {s(sTag)}, {v(t+1)}
    ''')
    poll_branch('L_fhint', 0, giveup='L_fbar')
    if cfg.tim_h: a(f's_sleep {cfg.tim_h}')
    a(f'''
    s_barrier
    L_fh:
    ''')
    for k in range(7):
        a(f'buffer_load_dwordx4 {v(t+4*k,4)}, {v(vH)}, {WS}, {s(sHo)} offen offset:{64*k} sc1')
    a('s_waitcnt vmcnt(0)')
    Dy=t+28
    for k in range(7):
        a(f'v_mfma_f32_16x16x32_bf16 {v(Dy,4)}, {v(t+4*k,4)}, {v(WB+4*k,4)}, '+('0' if k==0 else v(Dy,4)))
        if k==0: a(f'v_max3_u32 {v(t+32)}, {v(t)}, {v(t+1)}, {v(t+2)}\nv_max_u32 {v(t+32)}, {v(t+32)}, {v(t+3)}')
        else: a(f'v_max3_u32 {v(t+32)}, {v(t+32)}, {v(t+4*k)}, {v(t+4*k+1)}\nv_max3_u32 {v(t+32)}, {v(t+32)}, {v(t+4*k+2)}, {v(t+4*k+3)}')
    a(f'v_cmp_eq_u32 vcc, -1, {v(t+32)}')
    poll_branch('L_fh', 1, pre='s_nop 7')
    stamp()
    a(f'''
    s_mov_b64 exec, 0xffff
    ds_write_b32 {v(vPW)}, {v(Dy)}
    s_mov_b64 exec, -1
    s_waitcnt lgkmcnt(0)
    s_barrier
    s_cmp_lg_u32 {s(sW)}, 0
    s_cbranch_scc1 L_fnext
    s_cmp_lg_u32 {s(sRnd)}, 0
    s_cbranch_scc1 L_ffinal
    v_lshlrev_b32 {v(t+8)}, 5, {v(vN)}
    ds_read_b128 {v(t,4)}, {v(t+8)}
    ds_read_b128 {v(t+4,4)}, {v(t+8)} offset:16
    s_lshl_b32 {s(sT)}, {s(sCb)}, 7
    s_add_u32 {s(sT)}, {s(sT)}, {YBUF}
    v_lshlrev_b32 {v(t+9)}, 2, {v(vLane)}
    s_lshl_b32 {s(sT+1)}, {s(sX)}, 7
    s_lshl_b32 {s(sT+2)}, {s(sI)}, 2
    s_add_u32 {s(sT+1)}, {s(sT+1)}, {s(sT+2)}
    s_add_u32 {s(sT+1)}, {s(sT+1)}, {YHINT-28*4}
    s_mov_b64 exec, 0xffff
    s_waitcnt lgkmcnt(0)
    v_pk_add_f32 {v(t,2)}, {v(t,2)}, {v(t+2,2)}
    v_pk_add_f32 {v(t+4,2)}, {v(t+4,2)}, {v(t+6,2)}
    v_pk_add_f32 {v(t,2)}, {v(t,2)}, {v(t+4,2)}
    v_add_f32 {v(t)}, {v(t)}, {v(t+1)}
    v_mul_f32 {v(t)}, {v(t)}, {v(t2+34)}
    buffer_store_dword {v(t)}, {v(t+9)}, {WS}, {s(sT)} offen sc1
    ''')
    hint_store(vTag, sT+1, 'L_fyh')
    a(f'''
    s_branch L_fnext
    L_ffinal:
    v_lshlrev_b32 {v(t+16)}, 3, {v(t2+37)}
    ds_read_b128 {v(t,4)}, {v(t+16)}
    ds_read_b128 {v(t+4,4)}, {v(t+16)} offset:16
    ds_read_b128 {v(t+8,4)}, {v(t+16)} offset:32
    ds_read_b128 {v(t+12,4)}, {v(t+16)} offset:48
    s_waitcnt lgkmcnt(2)
    v_pk_add_f32 {v(t,2)}, {v(t,2)}, {v(t+2,2)}
    v_pk_add_f32 {v(t+4,2)}, {v(t+4,2)}, {v(t+6,2)}
    s_waitcnt lgkmcnt(0)
    v_pk_add_f32 {v(t+8,2)}, {v(t+8,2)}, {v(t+10,2)}
    v_pk_add_f32 {v(t+12,2)}, {v(t+12,2)}, {v(t+14,2)}
    v_pk_add_f32 {v(t,2)}, {v(t,2)}, {v(t+4,2)}
    v_pk_add_f32 {v(t+8,2)}, {v(t+8,2)}, {v(t+12,2)}
    v_add_f32 {v(t)}, {v(t)}, {v(t+1)}
    v_add_f32 {v(t+1)}, {v(t+8)}, {v(t+9)}
    v_pk_fma_f32 {v(t,2)}, {v(t,2)}, {v(t2+44,2)}, {v(t2+40,2)} op_sel_hi:[1,0,1]
    v_cvt_pk_bf16_f32 {v(t)}, {v(t)}, {v(t+1)}
    buffer_store_dword {v(t)}, {v(t2+42)}, {OS}, 0 offen
    ''')
    stamp()
    a('L_fend:')
    dump_stamps()
    a('s_endpgm')
    emit_retries()

def build():
    hdr=open('cdna_kernels/'+NAME+'.s.ref').read().split('; @launch')[0]
    a.raw(hdr+f'; @launch grid=({NWG},1,1) block=(512,1,1) lds={LDS_TOTAL}')
    a.raw(f'''; generated by gen/gen.py (hand-written generator): persistent FFT-structured FNet + MoD kernel
.amdgcn_target "amdgcn-amd-amdhsa--gfx950"
.text
.globl {NAME}_kernel
.p2align 8
.type {NAME}_kernel,@function
{NAME}_kernel:''')
    a(f'''
    s_load_dwordx2 s[12:13], s[0:1], 0
    s_load_dwordx2 s[8:9], s[0:1], 96
    s_load_dwordx8 s[16:23], s[0:1], 48
    s_load_dwordx2 s[28:29], s[0:1], 80
    s_cmp_ge_u32 s2, {NWG}
    s_cbranch_scc1 L_end
    v_lshrrev_b32 v1, 6, v0
    v_and_b32 {v(vN)}, 15, v0
    v_bfe_u32 {v(vQ)}, v0, 4, 2
    v_readfirstlane_b32 {s(sW)}, v1
    v_and_b32 {v(vLane)}, 63, v0
    s_mov_b32 s10, {WSSZ}
    s_mov_b32 s11, 0x20000
    s_mov_b32 s30, 0x200000
    s_mov_b32 s31, 0x20000
    s_and_b32 {s(sX)}, s2, 7
    s_lshr_b32 {s(sJ)}, s2, 3
    v_mov_b32 {v(T+4)}, -1
    v_mov_b32 {v(T+5)}, -1
    v_mov_b32 {v(T+6)}, -1
    v_mov_b32 {v(T+7)}, -1
    v_lshlrev_b32 {v(vL8)}, 3, v0
    v_and_b32 {v(vL8)}, 0xf8, {v(vL8)}
    s_mov_b32 {s(sCnt)}, 200000
    s_mov_b32 {s(sM7FF)}, 0x7ff
    s_lshl_b32 {s(sTabLd)}, {s(sX)}, 8
    s_add_u32 {s(sTabLd)}, {s(sTabLd)}, {TABL}
    s_getreg_b32 {s(sXcc)}, hwreg(HW_REG_XCC_ID, 0, 4)
    ''')
    if cfg.force_slow: a(f's_mov_b32 {s(sXcc)}, {s(sJ)}')
    if cfg.stamps:
        a(f's_mov_b32 {s(sStampI)}, 0\nv_mov_b32 {v(vSTMP)}, 0')
        a(f's_memrealtime {s(sTS,2)}\ns_waitcnt lgkmcnt(0)\nv_writelane_b32 {v(vSTMP)}, {s(sTS)}, 63')
    a('''s_cmp_ge_u32 s2, 256
    s_cbranch_scc1 L_ffn''')
    if cfg.prio: a('s_setprio 2')
    main_prologue()
    main_loop()
    ffn()
    a('L_end:\ns_endpgm')
    a.raw(f'''.section .rodata,"a"
.p2align 6
.amdhsa_kernel {NAME}_kernel
  .amdhsa_next_free_vgpr 128
  .amdhsa_next_free_sgpr 96
  .amdhsa_accum_offset 128
  .amdhsa_group_segment_fixed_size 0
  .amdhsa_kernarg_size 104
  .amdhsa_user_sgpr_count 2
  .amdhsa_user_sgpr_kernarg_segment_ptr 1
  .amdhsa_system_sgpr_workgroup_id_x 1
.end_amdhsa_kernel''')
    return a.text()
if __name__=='__main__':
    out=sys.argv[1]
    for kv in sys.argv[2:]:
        k,val=kv.split('='); assert hasattr(cfg,k); setattr(cfg,k,int(val))
    open(out,'w').write(build())
    print('instrs',a.count,'nops',a.nops)
```

```python
import sys, struct
from asmlib import Asm
NAME='interleave_layers__spectral_fnet__moe_arch_mod__prompt'
def fbits(x): return '0x%08x' % struct.unpack('<I', struct.pack('<f', x))[0]

class Cfg:
    stamps=0
    tim_arg=12
    tim_y=3
    tim_h=3
    force_slow=0
    prio=1
    codepf=1
    exp=0
    gser=1
cfg=Cfg()

TABG=0x1000; TABGR=0x6000
TABL=0x2000; ARGR=0x800
TAB2=0x3800
SLOWF=0x4000
YHINT=0x5000
HHINT=0x6000; HHR=0x400
STAMP=0xE00000
CLR0=0x8000
HBUF=0x8000; HR=0x1000
YBUF=0xA000
SLOT=0x10000; SLOTR=0x8000
LBASE=0x100000; CS=8448; LX=32*CS; LR=0x210000
GBASE=0x600000; GS=262144+768; GR=0x210000
WSSZ=0x1000000
NWG=512
L_STAT=0; L_U=0x400; L_YT=0x2400; L_DH=0x4800; LDS_TOTAL=0x5000
def v(a,n=1): return f'v{a}' if n==1 else f'v[{a}:{a+n-1}]'
def s(a,n=1): return f's{a}' if n==1 else f's[{a}:{a+n-1}]'

WS='s[8:11]'; XS='s[12:15]'; OS='s[28:31]'
sW=3; sX=26; sJ=27; sIt=32; sTag=33; sFast=34; sKey=35; sMir=36; sDsc=38
sLst=39; sLst2=40; sLld=41; sLld2=42; sG0=43; sG4=44; sTabSt=45; sTabLd=46; sSlot=47; sRow0=48; sRow1=49; sCnt=50
sXcc=51; sStampI=37
sK512=52
sTry=53
sEps=54
sC16=56
sSc=58
sM7FF=60; sTop=61
sQmask=62
sT=64
sTabG=84
sTS=80
X=2; WV=10; A8=14; XA=16; B1C=20; B1S=24; B1N=28; TWC=32; TWS=36; A2R=40; A2I=44; YR0=48; YR1=52; YI0=56; YI1=60
vXoff=64; vStW=65; vStR=66; vUW=67; vUR=68; vLst=69; vLld=70; vLldM=71; vYW=72; vYR=73; vGst=74; vGld=75; vSc0=76
vL8=78; vInv=79; LNP=80; MM=84; RS2=86; vN=88; vQ=89; vSTMP=90; vLane=91
T=92
AD=48; BC=50
class Asm2(Asm):
    def __call__(self, text):
        parts=text.split(';@F')
        for i,p in enumerate(parts):
            if i: fstamp()
            Asm.__call__(self,p)
a=Asm2()
retry=[]
def poll_branch(lbl, sleep=1, pre='', giveup=None):
    a(f's_cbranch_vccnz {lbl}_r ;!nd')
    retry.append((lbl, sleep, pre, giveup))
def emit_retries():
    for lbl,sl,pre,giveup in retry:
        a(f'{lbl}_r:')
        if giveup:
            a(f's_sub_u32 {s(sTry)}, {s(sTry)}, 1\ns_cbranch_scc1 {giveup}')
        else:
            a(f's_sub_u32 {s(sCnt)}, {s(sCnt)}, 1\ns_cbranch_scc1 L_end')
        if pre: a(pre)
        if sl: a(f's_sleep {sl}')
        a(f's_branch {lbl}')
    retry.clear()
def fstamp():
    if cfg.stamps==2: stamp()
def stamp():
    if not cfg.stamps: return
    a(f'''{'s_memtime' if cfg.stamps==2 else 's_memrealtime'} {s(sTS,2)}
    s_waitcnt lgkmcnt(0)
    s_mov_b32 m0, {s(sStampI)}
    s_add_u32 {s(sStampI)}, {s(sStampI)}, 1
    v_writelane_b32 {v(vSTMP)}, {s(sTS)}, m0''')
def dump_stamps():
    if not cfg.stamps: return
    a(f's_memrealtime {s(sTS,2)}\ns_memtime {s(sTS+2,2)}\ns_waitcnt lgkmcnt(0)\nv_writelane_b32 {v(vSTMP)}, {s(sTS)}, 61\nv_writelane_b32 {v(vSTMP)}, {s(sTS+2)}, 60')
    a(f'''s_lshl_b32 {s(sT)}, s2, 11
    s_lshl_b32 {s(sT+1)}, {s(sW)}, 8
    s_add_u32 {s(sT)}, {s(sT)}, {s(sT+1)}
    s_add_u32 {s(sT)}, {s(sT)}, {STAMP}
    v_lshlrev_b32 {v(vLane)}, 2, {v(vLane)}
    buffer_store_dword {v(vSTMP)}, {v(vLane)}, {WS}, {s(sT)} offen''')
def maxchk(regs, t):
    regs=list(regs)
    a(f'v_max3_u32 {v(t)}, {v(regs[0])}, {v(regs[1])}, {v(regs[2])}' if len(regs)>=3 else f'v_max_u32 {v(t)}, {v(regs[0])}, {v(regs[1])}')
    rest=regs[3:] if len(regs)>=3 else []
    while len(rest)>=2:
        a(f'v_max3_u32 {v(t)}, {v(t)}, {v(rest[0])}, {v(rest[1])}'); rest=rest[2:]
    if rest: a(f'v_max_u32 {v(t)}, {v(t)}, {v(rest[0])}')
    a(f'v_cmp_eq_u32 vcc, -1, {v(t)}')
DPP='row_mask:0xf bank_mask:0xf'

def fft_core(xr, xi, U, V, F, P):
    Ur,Ui=U,U+4
    a(f'v_mfma_f32_16x16x32_f16 {v(Ur,4)}, {v(xr,4)}, {v(B1C,4)}, 0')
    a(f'v_mfma_f32_16x16x32_f16 {v(Ui,4)}, {v(xr,4)}, {v(B1N,4)}, 0')
    if xi is not None:
        a(f'v_mfma_f32_16x16x32_f16 {v(Ur,4)}, {v(xi,4)}, {v(B1S,4)}, {v(Ur,4)}')
        a(f'v_mfma_f32_16x16x32_f16 {v(Ui,4)}, {v(xi,4)}, {v(B1C,4)}, {v(Ui,4)}')
    Vr,Vi=V,V+4
    for h in (0,2):
        a(f'v_pk_mul_f32 {v(Vi+h,2)}, {v(Ur+h,2)}, {v(TWS+h,2)}')
    for h in (0,2):
        a(f'v_pk_mul_f32 {v(Vr+h,2)}, {v(Ui+h,2)}, {v(TWS+h,2)}')
    for h in (0,2):
        a(f'v_pk_fma_f32 {v(Vr+h,2)}, {v(Ur+h,2)}, {v(TWC+h,2)}, {v(Vr+h,2)}')
        a(f'v_pk_fma_f32 {v(Vi+h,2)}, {v(Ui+h,2)}, {v(TWC+h,2)}, {v(Vi+h,2)} neg_lo:[0,0,1] neg_hi:[0,0,1]')
    for r in range(4): a(f'v_cvt_pk_f16_f32 {v(P+r)}, {v(Vr+r)}, {v(Vi+r)}')
    a(f'v_mfma_f32_16x16x32_f16 {v(F,4)}, {v(A2R,4)}, {v(P,4)}, 0')
    a(f'v_mfma_f32_16x16x32_f16 {v(F+4,4)}, {v(A2I,4)}, {v(P,4)}, 0')
    for r in range(4): a(f'v_cvt_pk_f16_f32 {v(P+r)}, {v(F+r)}, {v(F+4+r)}')

def trig4(c, q4, step, cosd, sind):
    a(f'v_mul_f32 {v(c)}, {v(q4)}, {v(step)}')
    a(f'v_add_f32 {v(c+1)}, {v(c)}, {v(step)}')
    a(f'v_add_f32 {v(c+2)}, {v(c+1)}, {v(step)}')
    a(f'v_add_f32 {v(c+3)}, {v(c+2)}, {v(step)}')
    for r in range(4):
        a(f'v_cos_f32 {v(cosd+r)}, {v(c+r)}')
        a(f'v_sin_f32 {v(sind+r)}, {v(c+r)}')
def packRI(R,I,co,si):
    for r in range(4):
        a(f'v_cvt_pk_f16_f32 {v(R+r)}, {v(co+r)}, {v(si+r)}')
        a(f'v_cvt_pk_f16_f32 {v(I+r)}, -{v(si+r)}, {v(co+r)}')

def main_prologue():
    t=T
    a(f'''
    s_lshl_b32 {s(sRow0)}, s2, 10
    s_add_u32 {s(sRow1)}, {s(sRow0)}, 0x40000
    s_lshl_b32 {s(sT)}, {s(sW)}, 7
    v_lshl_add_u32 {v(t)}, {v(vN)}, 3, {s(sT)}                 ; 128w+8n
    v_lshl_add_u32 {v(vXoff)}, {v(vQ)}, 19, {v(t)}
    s_mov_b32 s14, 0x200000
    s_mov_b32 s15, 0x20000
    v_lshrrev_b32 {v(t+1)}, 4, v0
    v_mul_u32_u24 {v(t+2)}, {CS}, {v(t+1)}
    v_lshl_add_u32 {v(t+2)}, {v(vN)}, 4, {v(t+2)}
    s_mul_i32 {s(sLld)}, {s(sX)}, {LX}
    s_add_u32 {s(sLld)}, {s(sLld)}, {LBASE}
    s_lshl_b32 {s(sT)}, {s(sJ)}, 8
    s_add_u32 {s(sLst)}, {s(sLld)}, {s(sT)}
    s_waitcnt lgkmcnt(0)
    buffer_load_dwordx2 {v(t+8,2)}, {v(vXoff)}, {XS}, {s(sRow0)} offen
    buffer_load_dwordx2 {v(t+10,2)}, {v(vXoff)}, {XS}, {s(sRow1)} offen
    global_load_dwordx2 {v(t+12,2)}, {v(t)}, s[16:17]
    buffer_load_dword {v(t+14)}, off, {WS}, 0 sc1
    buffer_store_dwordx4 {v(t+4,4)}, {v(t+2)}, {WS}, {s(sLst)} offen
    v_lshl_add_u32 {v(vUW)}, {v(vQ)}, 11, {v(t)}
    v_add_u32 {v(vUW)}, {L_U}, {v(vUW)}
    s_add_u32 {s(sLst2)}, {s(sLst)}, {CS}
    s_add_u32 {s(sLld2)}, {s(sLld)}, 4096
    ''')
    c=t+16
    q4=c+1
    a(f'''
    v_lshlrev_b32 {v(q4)}, 2, {v(vQ)}
    v_cvt_f32_u32 {v(q4)}, {v(q4)}
    s_mov_b32 {s(sK512)}, {fbits(1/512)}
    s_mov_b32 {s(sEps)}, {fbits(1e-5)}
    s_mov_b32 {s(sEps+1)}, {fbits(1e-5)}
    s_mov_b32 {s(sC16)}, {fbits(1/16)}
    s_mov_b32 {s(sC16+1)}, {fbits(1/16)}
    s_mov_b32 {s(sTop)}, 0x80000000
    s_mov_b32 {s(sQmask)}, 0x11111111
    s_mov_b32 {s(sQmask+1)}, 0x11111111
    s_mov_b32 {s(sIt)}, 0
    s_mov_b32 {s(sFast)}, 1
    v_lshrrev_b32 {v(c+2)}, 2, {v(vN)}
    v_and_b32 {v(c+3)}, 2, {v(vN)}
    v_and_b32 {v(c+4)}, 14, {v(vN)}
    v_cmp_eq_u32 vcc, 2, {v(c+4)}
    v_lshlrev_b32 {v(vStR)}, 8, {v(vQ)}
    v_and_b32 {v(c+5)}, 7, {v(vN)}
    v_cndmask_b32 {v(c+2)}, {v(c+2)}, 4, vcc
    v_cndmask_b32 {v(c+3)}, {v(c+3)}, 0, vcc
    v_and_b32 {v(c+6)}, 8, {v(vN)}
    v_and_b32 {v(c+7)}, 4, {v(vN)}
    s_lshl_b32 {s(sT)}, {s(sW)}, 2
    v_lshl_add_u32 {v(vStW)}, {v(c+6)}, 2, {v(vStR)}
    v_lshl_add_u32 {v(vStW)}, {v(c+7)}, 4, {v(vStW)}
    v_add_u32 {v(vStW)}, {s(sT)}, {v(vStW)}
    v_lshl_add_u32 {v(vStR)}, {v(c+5)}, 5, {v(vStR)}
    v_mul_u32_u24 {v(c+4)}, {v(c+2)}, {v(vQ)}
    v_lshl_add_u32 {v(c+4)}, {v(c+4)}, 1, {v(c+3)}
    v_add_u32 {v(c+5)}, {v(c+4)}, {v(c+2)}
    v_cvt_f32_u32 {v(c+4)}, {v(c+4)}
    v_cvt_f32_u32 {v(c+5)}, {v(c+5)}
    v_mul_f32 {v(c+4)}, 0x3e000000, {v(c+4)}
    v_mul_f32 {v(c+5)}, 0x3e000000, {v(c+5)}
    v_cos_f32 {v(c+4)}, {v(c+4)}
    v_cos_f32 {v(c+5)}, {v(c+5)}
    v_and_b32 {v(c+3)}, 1, {v(vN)}
    v_cmp_eq_u32 vcc, 0, {v(c+3)}
    v_cvt_pk_f16_f32 {v(c+4)}, {v(c+4)}, {v(c+5)}
    v_mov_b32 {v(c+3)}, 0x80008000
    v_cndmask_b32 {v(A8)}, 0, {v(c+4)}, vcc
    v_cndmask_b32 {v(A8+1)}, {v(c+4)}, 0, vcc
    v_cndmask_b32 {v(c+3)}, {v(c+3)}, 0, vcc
    s_and_b32 {s(sT+1)}, {s(sW)}, 1
    s_lshl_b32 {s(sT+1)}, {s(sT+1)}, 4
    v_add_u32 {v(c+2)}, {s(sT+1)}, {v(vN)}
    v_cvt_f32_u32 {v(c+2)}, {v(c+2)}
    s_mov_b32 {s(sT)}, 0x80008000
    ''')
    co,si=c+10,c+14
    a(f'v_mul_f32 {v(c+4)}, {fbits(1/32)}, {v(c+2)}')
    trig4(c+6,q4,c+4,co,si)
    a(f'''
    v_cvt_pk_f16_f32 {v(B1C)}, {v(co)}, {v(co+1)}
    v_cvt_pk_f16_f32 {v(B1C+1)}, {v(co+2)}, {v(co+3)}
    v_cvt_pk_f16_f32 {v(B1S)}, {v(si)}, {v(si+1)}
    v_cvt_pk_f16_f32 {v(B1S+1)}, {v(si+2)}, {v(si+3)}
    v_xor_b32 {v(B1C+2)}, {v(B1C)}, {v(c+3)}
    v_xor_b32 {v(B1C+3)}, {v(B1C+1)}, {v(c+3)}
    v_xor_b32 {v(B1S+2)}, {v(B1S)}, {v(c+3)}
    v_xor_b32 {v(B1S+3)}, {v(B1S+1)}, {v(c+3)}
    ''')
    for r in range(4): a(f'v_xor_b32 {v(B1N+r)}, {s(sT)}, {v(B1S+r)}')
    a(f'v_mul_f32 {v(c+4)}, {s(sK512)}, {v(c+2)}')
    trig4(c+6,q4,c+4,TWC,TWS)
    a(f'v_cvt_f32_u32 {v(c+4)}, {v(vN)}\nv_mul_f32 {v(c+4)}, {s(sC16)}, {v(c+4)}')
    trig4(c+6,q4,c+4,co,si); packRI(A2R,A2I,co,si)
    a(f'''
    s_lshr_b32 {s(sT)}, {s(sW)}, 1
    s_lshl_b32 {s(sT+2)}, {s(sT)}, 11
    s_add_u32 {s(sT+2)}, {s(sT+2)}, {L_U}
    v_lshl_add_u32 {v(vUR)}, {v(vLane)}, 3, {s(sT+2)}
    s_mul_i32 {s(sT)}, {s(sT)}, {8*CS}
    s_lshl_b32 {s(sT+1)}, {s(sT+1)}, 2
    s_add_u32 {s(sT)}, {s(sT)}, {s(sT+1)}
    v_mul_u32_u24 {v(vLst)}, {2*CS}, {v(vQ)}
    v_lshl_add_u32 {v(vLst)}, {v(vN)}, 2, {v(vLst)}
    v_add_u32 {v(vLst)}, {s(sT)}, {v(vLst)}
    s_lshl_b32 {s(sT)}, {s(sJ)}, 3
    s_add_u32 {s(sTabSt)}, {s(sTabLd)}, {s(sT)}
    s_lshl_b32 {s(sTabG)}, {s(sW)}, 9
    s_add_u32 {s(sTabG)}, {s(sTabG)}, {TABG}
    s_mov_b32 {s(sTry)}, 12
    ''')
    y_consts(c)
    a(f'''
    s_waitcnt vmcnt(1)
    v_readfirstlane_b32 {s(sTag)}, {v(t+14)}
    ''')
    for rho in (0,1):
        for k in (0,1):
            src=t+8+2*rho+k
            a(f'v_lshlrev_b32 {v(X+4*k+rho)}, 16, {v(src)}')
            a(f'v_and_b32 {v(X+4*k+2+rho)}, 0xffff0000, {v(src)}')
    for k in (0,1):
        a(f'v_lshlrev_b32 {v(WV+2*k)}, 16, {v(t+12+k)}')
        a(f'v_and_b32 {v(WV+2*k+1)}, 0xffff0000, {v(t+12+k)}')
    a(f's_add_u32 {s(sTag)}, {s(sTag)}, 1')

def y_consts(c):
    q4=c+1; co,si=c+10,c+14
    a(f'''
    s_lshr_b32 {s(sT)}, {s(sJ)}, 3
    s_and_b32 {s(sT+1)}, {s(sW)}, 2
    s_lshl_b32 {s(sT+1)}, {s(sT+1)}, 1
    s_cmp_lt_u32 {s(sJ)}, 8
    s_cselect_b32 {s(sT)}, {s(sT+1)}, {s(sT)}
    s_and_b32 {s(sT+1)}, {s(sW)}, 4
    s_lshl_b32 {s(sT+1)}, {s(sT+1)}, 5
    s_add_u32 {s(sT)}, {s(sT)}, {s(sT+1)}
    v_lshl_add_u32 {v(c+4)}, {v(vN)}, 3, {s(sT)}
    v_lshlrev_b32 {v(q4)}, 2, {v(vQ)}
    v_cvt_f32_u32 {v(c+4)}, {v(c+4)}
    v_cvt_f32_u32 {v(q4)}, {v(q4)}
    v_mul_f32 {v(c+4)}, {fbits(1/256)}, {v(c+4)}
    s_and_b32 {s(sT+1)}, {s(sW)}, 3
    s_lshl_b32 {s(sT)}, {s(sJ)}, 6
    s_lshl_b32 {s(sT+2)}, {s(sT+1)}, 4
    s_add_u32 {s(sT)}, {s(sT)}, {s(sT+2)}
    s_lshl_b32 {s(sT+3)}, {s(sJ)}, 5
    s_and_b32 {s(sT+2)}, {s(sT+2)}, 16
    s_add_u32 {s(sT+3)}, {s(sT+3)}, {s(sT+2)}
    s_add_u32 {s(sT+3)}, {s(sT+3)}, 1
    s_cmp_lt_u32 {s(sJ)}, 8
    s_cselect_b32 {s(sT)}, {s(sT+3)}, {s(sT)}
    v_add_u32 {v(c+2)}, {s(sT)}, {v(vN)}
    v_sub_u32 {v(c+5)}, 512, {v(c+2)}
    v_and_b32 {v(c+5)}, 511, {v(c+5)}
    v_lshrrev_b32 {v(c+6)}, 6, {v(c+2)}
    v_lshrrev_b32 {v(c+7)}, 6, {v(c+5)}
    v_mul_u32_u24 {v(c+6)}, {CS-256}, {v(c+6)}
    v_mul_u32_u24 {v(c+7)}, {CS-256}, {v(c+7)}
    v_lshl_add_u32 {v(c+6)}, {v(c+2)}, 2, {v(c+6)}
    v_lshl_add_u32 {v(c+7)}, {v(c+5)}, 2, {v(c+7)}
    v_lshl_add_u32 {v(vLld)}, {v(vQ)}, 10, {v(c+6)}
    v_lshl_add_u32 {v(vLldM)}, {v(vQ)}, 10, {v(c+7)}
    ''')
    trig4(c+6,q4,c+4,co,si); packRI(YR0,YI0,co,si)
    a(f'v_add_f32 {v(q4)}, 0x41800000, {v(q4)}')
    trig4(c+6,q4,c+4,co,si); packRI(YR1,YI1,co,si)
    a(f'''
    s_lshr_b32 {s(sT)}, {s(sW)}, 2
    s_mul_i32 {s(sT)}, {s(sT)}, {16*272}
    s_lshl_b32 {s(sT+2)}, {s(sT+1)}, 6
    s_add_u32 {s(sT)}, {s(sT)}, {s(sT+2)}
    s_add_u32 {s(sT)}, {s(sT)}, {L_YT}
    v_mul_u32_u24 {v(vYW)}, 272, {v(vN)}
    v_lshl_add_u32 {v(vYW)}, {v(vQ)}, 4, {v(vYW)}
    v_add_u32 {v(vYW)}, {s(sT)}, {v(vYW)}
    v_lshrrev_b32 {v(c+1)}, 4, v0
    v_mul_u32_u24 {v(vYR)}, 272, {v(c+1)}
    v_lshl_add_u32 {v(vYR)}, {v(vN)}, 4, {v(vYR)}
    v_add_u32 {v(vYR)}, {L_YT}, {v(vYR)}
    s_mov_b32 {s(sG0)}, {GBASE}
    s_mov_b32 {s(sG4)}, {GBASE+4*GS}
    s_mul_i32 {s(sT)}, {s(sX)}, {GS}
    s_lshr_b32 {s(sT+1)}, {s(sJ)}, 3
    s_add_u32 {s(sT+2)}, {s(sT+1)}, 3
    s_and_b32 {s(sT+2)}, {s(sT+2)}, 3
    s_lshl_b32 {s(sT+2)}, {s(sT+2)}, 16
    s_add_u32 {s(sT)}, {s(sT)}, {s(sT+2)}
    s_and_b32 {s(sT+2)}, {s(sJ)}, 7
    s_cmp_lt_u32 {s(sJ)}, 8
    s_cselect_b32 {s(sT+3)}, 7, 8
    s_cselect_b32 {s(sT+4)}, 112, 0
    s_lshl_b32 {s(sT+2)}, {s(sT+2)}, {s(sT+3)}
    s_add_u32 {s(sT)}, {s(sT)}, {s(sT+2)}
    v_lshlrev_b32 {v(vGst)}, 11, {v(c+1)}
    v_lshl_add_u32 {v(vGst)}, {v(vN)}, 4, {v(vGst)}
    v_and_b32 {v(c+3)}, 8, {v(vN)}
    v_mad_u32_u24 {v(vGst)}, {v(c+3)}, {s(sT+4)}, {v(vGst)}
    v_add_u32 {v(vGst)}, {s(sT)}, {v(vGst)}
    ''')

def xin_consts(c):
    a(f'''
    s_and_b32 {s(sT)}, {s(sX)}, 3                ; 0 => self
    s_lshr_b32 {s(sT+1)}, {s(sW)}, 2
    s_lshr_b32 {s(sT+2)}, {s(sX)}, 2
    s_mov_b32 {s(sSc)}, {fbits(16.0)}
    s_cmp_eq_u32 {s(sT)}, 0
    s_cselect_b32 {s(sMir)}, {s(sT+1)}, {s(sT+2)}
    s_cselect_b32 {s(sSc)}, {fbits(8.0)}, {s(sSc)}
    s_cselect_b32 {s(sDsc)}, {fbits(1/8)}, {s(sC16)}
    s_cselect_b32 {s(sT+3)}, -4, 0
    s_mov_b32 {s(sSc+1)}, {s(sSc)}
    s_sub_u32 {s(sT+4)}, 256, s2
    s_and_b32 {s(sT+4)}, {s(sT+4)}, 255
    s_cmp_eq_u32 {s(sMir)}, 0
    s_cselect_b32 {s(sT+4)}, s2, {s(sT+4)}       ; source g
    s_cselect_b32 {s(sT+5)}, 16, -16
    s_cselect_b32 {s(sT+6)}, 0, {509*4}
    s_cselect_b32 {s(sT+7)}, 1.0, -1.0
    s_add_u32 {s(sT+3)}, {s(sT+3)}, {s(sT+6)}
    s_mul_i32 {s(sT+6)}, {s(sT+5)}, {s(sW)}
    s_lshl_b32 {s(sT+6)}, {s(sT+6)}, 4
    s_add_u32 {s(sT+3)}, {s(sT+3)}, {s(sT+6)}
    s_lshr_b32 {s(sT+6)}, {s(sT+4)}, 3
    s_lshl_b32 {s(sT+6)}, {s(sT+6)}, 11
    s_add_u32 {s(sT+3)}, {s(sT+3)}, {s(sT+6)}
    s_add_u32 {s(sT+6)}, {s(sT+4)}, 3
    s_and_b32 {s(sT+6)}, {s(sT+6)}, 3
    s_lshl_b32 {s(sT+6)}, {s(sT+6)}, 16
    s_add_u32 {s(sT+3)}, {s(sT+3)}, {s(sT+6)}
    s_and_b32 {s(sT+6)}, {s(sT+4)}, 4
    s_lshl_b32 {s(sT+6)}, {s(sT+6)}, 8
    s_add_u32 {s(sT+3)}, {s(sT+3)}, {s(sT+6)}
    v_mul_i32_i24 {v(vGld)}, {s(sT+5)}, {v(vN)}
    v_mul_u32_u24 {v(c+4)}, {GS}, {v(vQ)}
    v_add3_u32 {v(vGld)}, {v(vGld)}, {v(c+4)}, {s(sT+3)}
    v_lshrrev_b32 {v(c+4)}, 1, {v(vN)}
    v_and_b32 {v(c+4)}, 6, {v(c+4)}
    v_and_or_b32 {v(c+4)}, {v(vN)}, 1, {v(c+4)}
    v_lshl_add_u32 {v(c+4)}, {v(c+4)}, 8, s2
    v_cvt_f32_u32 {v(c+4)}, {v(c+4)}
    v_cvt_f32_u32 {v(c+5)}, {v(vQ)}
    v_mul_f32 {v(c+4)}, {fbits(1/2048)}, {v(c+4)}
    v_mul_f32 {v(c+4)}, {s(sT+7)}, {v(c+4)}
    v_mul_f32 {v(c+5)}, {v(c+4)}, {v(c+5)}
    v_fma_f32 {v(c+6)}, {v(c+4)}, 4.0, {v(c+5)}
    v_cos_f32 {v(c+7)}, {v(c+5)}
    v_sin_f32 {v(c+8)}, {v(c+5)}
    v_cos_f32 {v(c+9)}, {v(c+6)}
    v_sin_f32 {v(c+10)}, {v(c+6)}
    v_bfe_u32 {v(c+4)}, {v(vN)}, 1, 1
    v_cmp_eq_u32 vcc, {s(sMir)}, {v(c+4)}
    v_cvt_pk_f16_f32 {v(c+7)}, {v(c+7)}, {v(c+8)}
    v_cvt_pk_f16_f32 {v(c+9)}, {v(c+9)}, {v(c+10)}
    v_cndmask_b32 {v(XA)}, 0, {v(c+7)}, vcc
    v_cndmask_b32 {v(XA+1)}, {v(c+7)}, 0, vcc
    v_cndmask_b32 {v(XA+2)}, 0, {v(c+9)}, vcc
    v_cndmask_b32 {v(XA+3)}, {v(c+9)}, 0, vcc
    v_and_b32 {v(c+4)}, 0x1cf, v0
    v_cmp_eq_u32 vcc, 0, {v(c+4)}
    v_mov_b32 {v(c+5)}, {s(sSc)}
    s_sub_u32 {s(sT)}, 2047, s2
    v_lshlrev_b32 {v(vInv)}, 9, {v(vQ)}
    v_cndmask_b32 {v(vSc0)}, {v(c+5)}, 0, vcc
    v_cndmask_b32 {v(vSc0+1)}, {v(c+5)}, 0, vcc
    v_sub_u32 {v(vInv)}, {s(sT)}, {v(vInv)}
    s_lshl_b32 {s(sSlot)}, {s(sX)}, 12
    s_add_u32 {s(sSlot)}, {s(sSlot)}, {SLOT}
    ''')

def main_loop():
    t=T
    S1,S2,S3=t,t+2,t+4
    a('L_top:')
    stamp()
    a(f'''
    v_pk_add_f32 {v(S1,2)}, {v(X,2)}, {v(X+2,2)}
    v_pk_add_f32 {v(t+6,2)}, {v(X+4,2)}, {v(X+6,2)}
    v_pk_mul_f32 {v(S2,2)}, {v(X,2)}, {v(X,2)}
    v_pk_mul_f32 {v(S3,2)}, {v(X,2)}, {v(WV,2)} op_sel:[0,0] op_sel_hi:[1,0]
    v_pk_add_f32 {v(S1,2)}, {v(S1,2)}, {v(t+6,2)}
    v_pk_fma_f32 {v(S2,2)}, {v(X+2,2)}, {v(X+2,2)}, {v(S2,2)}
    v_pk_fma_f32 {v(S3,2)}, {v(X+2,2)}, {v(WV,2)}, {v(S3,2)} op_sel:[0,1,0] op_sel_hi:[1,1,1]
    v_add_f32_dpp {v(S1)}, {v(S1)}, {v(S1)} row_ror:8 row_mask:0xf bank_mask:0x3
    v_pk_fma_f32 {v(S2,2)}, {v(X+4,2)}, {v(X+4,2)}, {v(S2,2)}
    v_pk_fma_f32 {v(S3,2)}, {v(X+4,2)}, {v(WV+2,2)}, {v(S3,2)} op_sel:[0,0,0] op_sel_hi:[1,0,1]
    v_add_f32_dpp {v(S1)}, {v(S1+1)}, {v(S1+1)} row_ror:8 row_mask:0xf bank_mask:0xc
    v_pk_fma_f32 {v(S2,2)}, {v(X+6,2)}, {v(X+6,2)}, {v(S2,2)}
    v_pk_fma_f32 {v(S3,2)}, {v(X+6,2)}, {v(WV+2,2)}, {v(S3,2)} op_sel:[0,1,0] op_sel_hi:[1,1,1]
    s_cmp_lg_u32 {s(sIt)}, 0
    s_cbranch_scc1 L_s3ok
    v_pk_add_f32 {v(S3,2)}, {v(WV,2)}, {v(WV+2,2)}
    v_add_f32 {v(S3)}, {v(S3)}, {v(S3+1)}
    v_mov_b32 {v(S3+1)}, {v(S3)}
    L_s3ok:
    v_add_f32_dpp {v(S1)}, {v(S1)}, {v(S1)} row_half_mirror row_mask:0xf bank_mask:0x5
    v_add_f32_dpp {v(S2)}, {v(S2)}, {v(S2)} row_ror:8 row_mask:0xf bank_mask:0x3
    v_add_f32_dpp {v(S3)}, {v(S3)}, {v(S3)} row_ror:8 row_mask:0xf bank_mask:0x3
    v_add_f32_dpp {v(S2)}, {v(S2+1)}, {v(S2+1)} row_ror:8 row_mask:0xf bank_mask:0xc
    v_add_f32_dpp {v(S3)}, {v(S3+1)}, {v(S3+1)} row_ror:8 row_mask:0xf bank_mask:0xc
    v_add_f32_dpp {v(S1)}, {v(S2)}, {v(S2)} row_half_mirror row_mask:0xf bank_mask:0xa
    v_add_f32_dpp {v(S3)}, {v(S3)}, {v(S3)} row_half_mirror {DPP}
    v_add_f32_dpp {v(S1)}, {v(S1)}, {v(S1)} quad_perm:[1,0,3,2] {DPP}
    v_add_f32_dpp {v(S3)}, {v(S3)}, {v(S3)} quad_perm:[1,0,3,2] {DPP}
    v_add_f32_dpp {v(S1)}, {v(S1)}, {v(S1)} quad_perm:[2,3,0,1] {DPP}
    v_add_f32_dpp {v(S3)}, {v(S3)}, {v(S3)} quad_perm:[2,3,0,1] {DPP}
    s_mov_b64 exec, {s(sQmask,2)}
    ds_write2_b32 {v(vStW)}, {v(S1)}, {v(S3)} offset0:0 offset1:32
    s_mov_b64 exec, -1
    ;@F
    s_waitcnt vmcnt(0) lgkmcnt(0)
    s_barrier
    ;@F
    ds_read_b128 {v(t,4)}, {v(vStR)}
    ds_read_b128 {v(t+4,4)}, {v(vStR)} offset:16
    s_waitcnt lgkmcnt(0)
    v_pk_add_f32 {v(t,2)}, {v(t,2)}, {v(t+2,2)}
    v_pk_add_f32 {v(t+4,2)}, {v(t+4,2)}, {v(t+6,2)}
    v_pk_add_f32 {v(t,2)}, {v(t,2)}, {v(t+4,2)}
    v_add_f32 {v(t)}, {v(t)}, {v(t+1)}
    v_mul_f32 {v(t+7)}, {s(sK512)}, {v(t)}
    ''')
    VAR,RS,CC,NM=t+8,t+10,t+12,t+14
    K=t+16
    a(f'''
    v_mov_b32_dpp {v(MM)}, {v(t+7)} row_newbcast:0 {DPP}
    v_mov_b32_dpp {v(MM+1)}, {v(t+7)} row_newbcast:1 {DPP}
    v_mov_b32_dpp {v(S2)}, {v(t+7)} row_newbcast:2 {DPP}
    v_mov_b32_dpp {v(S2+1)}, {v(t+7)} row_newbcast:3 {DPP}
    v_mov_b32_dpp {v(S3)}, {v(t+7)} row_newbcast:4 {DPP}
    v_pk_fma_f32 {v(VAR,2)}, {v(MM,2)}, {v(MM,2)}, {v(S2,2)} neg_lo:[1,0,0] neg_hi:[1,0,0]
    v_mov_b32_dpp {v(S3+1)}, {v(t+7)} row_newbcast:5 {DPP}
    v_pk_add_f32 {v(S1,2)}, {v(VAR,2)}, {s(sEps,2)}
    s_cmp_lg_u32 {s(sIt)}, 0
    v_rsq_f32_e64 {v(RS)}, |{v(S1)}|
    v_rsq_f32_e64 {v(RS+1)}, |{v(S1+1)}|
    s_cbranch_scc1 L_mid ;!nd
    ; ---- it==0
    s_mov_b32 {s(sKey)}, {s(sXcc)}
    v_pk_mul_f32 {v(CC,2)}, {v(RS,2)}, {s(sC16,2)}
    v_mov_b32 {v(S1)}, 0x44000000
    v_pk_add_f32 {v(WV,2)}, {v(WV,2)}, {v(S3,2)} neg_lo:[0,1] neg_hi:[0,1]
    v_pk_add_f32 {v(WV+2,2)}, {v(WV+2,2)}, {v(S3,2)} neg_lo:[0,1] neg_hi:[0,1]
    v_pk_mul_f32 {v(WV,2)}, {v(WV,2)}, {v(S1,2)} op_sel_hi:[1,0]
    v_pk_mul_f32 {v(WV+2,2)}, {v(WV+2,2)}, {v(S1,2)} op_sel_hi:[1,0]
    s_branch L_tabst ;!nd
    L_mid:
    v_pk_mul_f32 {v(S3,2)}, {v(S3,2)}, {v(RS,2)}
    v_add_u32 {v(K+2)}, 0xffffff00, {v(vInv)}
    v_ashrrev_i32 {v(K)}, 31, {v(S3)}
    v_ashrrev_i32 {v(K+1)}, 31, {v(S3+1)}
    v_bitop3_b32 {v(K)}, {v(S3)}, {v(K)}, {s(sTop)} bitop3:0x1e
    v_bitop3_b32 {v(K+1)}, {v(S3+1)}, {v(K+1)}, {s(sTop)} bitop3:0x1e
    v_bfi_b32 {v(K)}, {s(sM7FF)}, {v(vInv)}, {v(K)}
    v_bfi_b32 {v(K+1)}, {s(sM7FF)}, {v(K+2)}, {v(K+1)}
    v_max_u32 {v(K)}, {v(K)}, {v(K+1)}
    v_pk_add_f32 {v(CC,2)}, {v(RS,2)}, 1.0 op_sel_hi:[1,0]
    v_pk_mul_f32 {v(NM,2)}, {v(MM,2)}, {v(RS,2)}
    v_max_u32_dpp {v(K)}, {v(K)}, {v(K)} row_bcast:15 row_mask:0xa bank_mask:0xf
    v_pk_mul_f32 {v(VAR,2)}, {v(VAR,2)}, {v(CC,2)}
    v_pk_fma_f32 {v(VAR,2)}, {v(VAR,2)}, {v(CC,2)}, {s(sEps,2)}
    v_max_u32_dpp {v(K)}, {v(K)}, {v(K)} row_bcast:31 row_mask:0xc bank_mask:0xf
    v_rsq_f32_e64 {v(RS2)}, |{v(VAR)}|
    v_readlane_b32 {s(sKey)}, {v(K)}, 63
    v_rsq_f32_e64 {v(RS2+1)}, |{v(VAR+1)}|
    v_pk_mul_f32 {v(CC,2)}, {v(CC,2)}, {s(sC16,2)}
    v_pk_mul_f32 {v(CC,2)}, {v(CC,2)}, {v(RS2,2)}
    L_tabst:
    s_cmp_lg_u32 {s(sW)}, 0
    s_cbranch_scc1 L_tabst_done ;!nd
    v_mov_b32 {v(K)}, {s(sTag)}
    v_mov_b32 {v(K+1)}, {s(sKey)}
    s_mov_b64 exec, 1
    s_cmp_eq_u32 {s(sFast)}, 0
    s_cbranch_scc1 L_tabst_slow ;!nd
    buffer_store_dwordx2 {v(K,2)}, off, {WS}, {s(sTabSt)}
    L_tabst_back:
    s_mov_b64 exec, -1
    L_tabst_done:
    ;@F
    ''')
    Z=t+20; ZP=t; D0=t+28; D1=t+32
    a(f'v_pk_mul_f32 {v(S3,2)}, {v(MM,2)}, {v(CC,2)}')
    for c_ in range(4):
        a(f'v_pk_fma_f32 {v(Z+2*c_,2)}, {v(X+2*c_,2)}, {v(CC,2)}, {v(S3,2)} neg_lo:[0,0,1] neg_hi:[0,0,1]')
    for c_ in range(4): a(f'v_cvt_pk_f16_f32 {v(ZP+c_)}, {v(Z+2*c_)}, {v(Z+2*c_+1)}')
    a(f'''
    s_cmp_eq_u32 {s(sIt)}, 0
    v_mfma_f32_16x16x16_f16 {v(D0,4)}, {v(A8,2)}, {v(ZP,2)}, 0
    v_mfma_f32_16x16x16_f16 {v(D1,4)}, {v(A8,2)}, {v(ZP+2,2)}, 0
    s_cbranch_scc1 L_noln0 ;!nd
    ''')
    for c_ in range(4):
        a(f'v_pk_fma_f32 {v(Z+2*c_,2)}, {v(X+2*c_,2)}, {v(RS,2)}, {v(NM,2)} neg_lo:[0,0,1] neg_hi:[0,0,1]')
    for c_ in range(4):
        a(f'v_pk_add_f32 {v(X+2*c_,2)}, {v(X+2*c_,2)}, {v(Z+2*c_,2)}')
    for rho in (0,1):
        for k in (0,1):
            a(f'v_cvt_pk_bf16_f32 {v(LNP+2*rho+k)}, {v(Z+4*k+rho)}, {v(Z+4*k+2+rho)}')
    a(f'''
    s_cmp_eq_u32 {s(sIt)}, 2
    s_cbranch_scc1 L_tab
    s_branch L_noln ;!nd
    L_noln0:
    s_nop 6
    L_noln:
    v_cvt_pk_f16_f32 {v(ZP)}, {v(D0)}, {v(D0+1)}
    v_cvt_pk_f16_f32 {v(ZP+1)}, {v(D1)}, {v(D1+1)}
    v_cvt_pk_f16_f32 {v(ZP+2)}, {v(D0+2)}, {v(D0+3)}
    v_cvt_pk_f16_f32 {v(ZP+3)}, {v(D1+2)}, {v(D1+3)}
    ds_write_b64 {v(vUW)}, {v(ZP,2)}
    ds_write_b64 {v(vUW)}, {v(ZP+2,2)} offset:1024
    ;@F
    s_waitcnt lgkmcnt(0)
    s_barrier
    ;@F
    ds_read_b64_tr_b16 {v(t,2)}, {v(vUR)}
    ds_read_b64_tr_b16 {v(t+2,2)}, {v(vUR)} offset:512
    ds_read_b64_tr_b16 {v(t+4,2)}, {v(vUR)} offset:1024
    ds_read_b64_tr_b16 {v(t+6,2)}, {v(vUR)} offset:1536
    v_lshlrev_b32 v1, 1, {v(vL8)}
    buffer_load_dword v1, v1, {WS}, {s(sTabG)} offen sc1
    s_waitcnt lgkmcnt(0)
    ;@F
    ''')
    P=t+32
    fft_core(t, t+4, t+16, t+24, t+16, P)
    def lstores(fl):
        a(f'''
        buffer_store_dword {v(P)}, {v(vLst)}, {WS}, {s(sLst)} offen {fl}
        buffer_store_dword {v(P+1)}, {v(vLst)}, {WS}, {s(sLst)} offen offset:128 {fl}
        buffer_store_dword {v(P+2)}, {v(vLst)}, {WS}, {s(sLst2)} offen {fl}
        buffer_store_dword {v(P+3)}, {v(vLst)}, {WS}, {s(sLst2)} offen offset:128 {fl}
        ''')
    lstores('')
    stamp()
    a(f'''
    L_tab:
    buffer_load_dwordx2 {v(t,2)}, {v(vL8)}, {WS}, {s(sTabLd)} offen sc1
    L_tabw:
    s_waitcnt vmcnt(0)
    v_cmp_ne_u32 vcc, {s(sTag)}, {v(t)}
    ''')
    poll_branch('L_tab', 2, f'''s_cmp_lg_u32 {s(sIt)}, 0
        s_cselect_b32 {s(sT)}, 0, 1
        s_sub_u32 {s(sTry)}, {s(sTry)}, {s(sT)}
        s_cbranch_scc1 L_tab2''')
    W_=t+4
    a(f'''
    L_tabok:
    s_cmp_eq_u32 {s(sIt)}, 0
    s_cbranch_scc1 L_fastchk
    v_cmp_lt_u32 vcc, {s(sKey)}, {v(t+1)}
    s_mov_b32 {s(sT+9)}, 64
    s_cbranch_vccnz L_winback
    s_andn2_b32 {s(sT)}, {s(sM7FF)}, {s(sKey)}      ; idx
    s_lshr_b32 {s(sT+9)}, {s(sT)}, 8                ; s1
    s_bitcmp1_b32 {s(sT+9)}, 0
    s_cselect_b64 vcc, -1, 0
    s_lshl_b32 {s(sT+1)}, {s(sT+9)}, 3
    s_and_b32 {s(sT+1)}, {s(sT+1)}, 0x30
    v_cndmask_b32 {v(W_)}, {v(LNP)}, {v(LNP+2)}, vcc
    v_cndmask_b32 {v(W_+1)}, {v(LNP+1)}, {v(LNP+3)}, vcc
    v_and_b32 {v(W_+2)}, 0x3ff, {v(vXoff)}
    s_bfm_b64 exec, 16, {s(sT+1)}
    buffer_store_dwordx2 {v(W_,2)}, {v(W_+2)}, {WS}, {s(sSlot)} offen sc1
    s_cmp_lg_u32 {s(sW)}, 0
    s_cbranch_scc1 L_nohdr
    v_mov_b32 {v(W_+8)}, {s(sKey)}
    v_cndmask_b32 {v(W_+9)}, {v(MM)}, {v(MM+1)}, vcc
    v_cndmask_b32 {v(W_+10)}, {v(RS2)}, {v(RS2+1)}, vcc
    v_mov_b32 {v(W_+11)}, {s(sKey)}
    buffer_store_dwordx4 {v(W_+8,4)}, off, {WS}, {s(sSlot)} offset:3072 sc1
    L_nohdr:
    ''')
    for c_ in range(4): a(f'v_cndmask_b32 {v(W_+4+c_)}, {v(X+2*c_)}, {v(X+2*c_+1)}, vcc')
    a(f'''
    v_lshlrev_b32 {v(W_+2)}, 1, {v(W_+2)}
    buffer_store_dwordx4 {v(W_+4,4)}, {v(W_+2)}, {WS}, {s(sSlot)} offen offset:1024 sc1
    s_mov_b64 exec, -1
    L_winback:
    s_cmp_eq_u32 {s(sIt)}, 2
    s_cbranch_scc1 L_fin
    s_add_u32 {s(sSlot)}, {s(sSlot)}, {SLOTR}
    s_branch L_tabdone
    L_fastchk:
    v_cmp_ne_u32 vcc, {s(sKey)}, {v(t+1)}
    s_nop 0
    s_cmp_eq_u64 vcc, 0
    s_cselect_b32 {s(sFast)}, 1, 0
    L_tabdone:
    s_cmp_eq_u32 {s(sFast)}, 0
    s_cbranch_scc1 L_slow
    L_slowback:
    ;@F
    s_cmp_lt_u32 {s(sJ)}, 8
    s_cbranch_scc1 L_yself
    L_y:
    ''')
    B=t
    def lloads(dst, va):
        for k in range(8):
            so = sLld if k<4 else sLld2
            a(f'buffer_load_dword {v(dst+k)}, {v(va)}, {WS}, {s(so)} offen offset:{256*(k&3)} sc1')
    lloads(B, vLld)
    a('s_waitcnt vmcnt(0)')
    maxchk(range(B,B+8), t+16)
    poll_branch('L_y', 0)
    a('L_yjoin:')
    stamp()
    R,I=t+20,t+24
    a(f'''
    v_mfma_f32_16x16x32_f16 {v(R,4)}, {v(B,4)}, {v(YR0,4)}, 0
    v_mfma_f32_16x16x32_f16 {v(I,4)}, {v(B,4)}, {v(YI0,4)}, 0
    v_mfma_f32_16x16x32_f16 {v(R,4)}, {v(B+4,4)}, {v(YR1,4)}, {v(R,4)}
    v_mfma_f32_16x16x32_f16 {v(I,4)}, {v(B+4,4)}, {v(YI1,4)}, {v(I,4)}
    s_add_u32 {s(sLst)}, {s(sLst)}, {LR}
    s_add_u32 {s(sLst2)}, {s(sLst2)}, {LR}
    s_add_u32 {s(sLld)}, {s(sLld)}, {LR}
    s_add_u32 {s(sLld2)}, {s(sLld2)}, {LR}
    s_add_u32 {s(sTabLd)}, {s(sTabLd)}, {ARGR}
    s_add_u32 {s(sTabSt)}, {s(sTabSt)}, {ARGR}
    ''')
    for r in range(4): a(f'v_cvt_pk_f16_f32 {v(B+r)}, {v(R+r)}, {v(I+r)}')
    a(f'''
    ds_write_b128 {v(vYW)}, {v(B,4)}
    L_tabgw:
    v_cmp_ne_u32 vcc, {s(sTag)}, v1
    s_cbranch_vccnz L_tabg_r ;!nd
    ;@F
    s_waitcnt lgkmcnt(0)
    s_barrier
    ;@F
    ds_read_b128 {v(B+4,4)}, {v(vYR)}
    s_waitcnt lgkmcnt(0)
    buffer_store_dwordx4 {v(B+4,4)}, {v(vGst)}, {WS}, {s(sG0)} offen sc1
    ''')
    stamp()
    a(f'''
    s_cmp_lg_u32 {s(sIt)}, 0
    s_cbranch_scc1 L_hdr
    v_lshrrev_b32 {v(t+8)}, 4, v0
    v_mul_u32_u24 {v(t+8)}, {CS}, {v(t+8)}
    v_lshl_add_u32 {v(t+8)}, {v(vN)}, 4, {v(t+8)}
    v_mov_b32 {v(t+20)}, -1
    v_mov_b32 {v(t+21)}, -1
    v_mov_b32 {v(t+22)}, -1
    v_mov_b32 {v(t+23)}, -1
    buffer_store_dwordx4 {v(t+20,4)}, {v(t+8)}, {WS}, {s(sLst)} offen
    s_add_u32 {s(sTabG)}, {s(sTabG)}, {TABGR}
    ''')
    xin_consts(t+8)
    a('s_waitcnt vmcnt(0)')
    a('L_g:')
    C0,C1=t,t+4
    a(f'''
    buffer_load_dwordx4 {v(C0,4)}, {v(vGld)}, {WS}, {s(sG0)} offen sc1
    buffer_load_dwordx4 {v(C1,4)}, {v(vGld)}, {WS}, {s(sG4)} offen sc1
    s_waitcnt vmcnt(0)
    ''')
    maxchk(range(t,t+8), t+16)
    poll_branch('L_g', 1)
    stamp()
    E0,E1=t+8,t+12
    a(f'''
    s_cmp_lg_u32 {s(sMir)}, 0
    s_cbranch_scc1 L_xmir
    v_mfma_f32_16x16x16_f16 {v(E0,4)}, {v(XA,2)}, {v(C0,2)}, 0
    v_mfma_f32_16x16x16_f16 {v(E1,4)}, {v(XA,2)}, {v(C0+2,2)}, 0
    v_mfma_f32_16x16x16_f16 {v(E0,4)}, {v(XA+2,2)}, {v(C1,2)}, {v(E0,4)}
    v_mfma_f32_16x16x16_f16 {v(E1,4)}, {v(XA+2,2)}, {v(C1+2,2)}, {v(E1,4)}
    s_branch L_xjoin ;!nd
    L_xmir:
    ''')
    a.hist=[]
    a(f'''
    v_mfma_f32_16x16x16_f16 {v(E0,4)}, {v(XA,2)}, {v(C0+2,2)}, 0
    v_mfma_f32_16x16x16_f16 {v(E1,4)}, {v(XA,2)}, {v(C0,2)}, 0
    v_mfma_f32_16x16x16_f16 {v(E0,4)}, {v(XA+2,2)}, {v(C1+2,2)}, {v(E0,4)}
    v_mfma_f32_16x16x16_f16 {v(E1,4)}, {v(XA+2,2)}, {v(C1,2)}, {v(E1,4)}
    L_xjoin:
    s_add_u32 {s(sG0)}, {s(sG0)}, {GR}
    s_add_u32 {s(sG4)}, {s(sG4)}, {GR}
    s_cmp_lg_u32 {s(sIt)}, 0
    s_mov_b32 {s(sIt)}, 1
    s_cbranch_scc1 L_corr ;!nd
    s_nop 1
    L_corrback:
    v_pk_fma_f32 {v(X,2)}, {v(E0,2)}, {v(vSc0,2)}, {v(X,2)}
    v_pk_fma_f32 {v(X+2,2)}, {v(E0+2,2)}, {s(sSc,2)}, {v(X+2,2)}
    v_pk_fma_f32 {v(X+4,2)}, {v(E1,2)}, {s(sSc,2)}, {v(X+4,2)}
    v_pk_fma_f32 {v(X+6,2)}, {v(E1+2,2)}, {s(sSc,2)}, {v(X+6,2)}
    s_branch L_top ;!nd
    ''')
    a('L_yself:')
    lloads(B, vLld); lloads(B+8, vLldM)
    a('s_waitcnt vmcnt(0)')
    maxchk(range(B,B+16), t+16)
    poll_branch('L_yself', 0)
    a(f'''
    s_bitcmp1_b32 {s(sW)}, 1
    s_cbranch_scc1 L_yself4
    ''')
    for k in range(8): a(f'v_pk_add_f16 {v(B+k)}, {v(B+k)}, {v(B+8+k)} neg_hi:[0,1]')
    a('s_branch L_yjoin\nL_yself4:')
    for k in range(8): a(f'v_pk_add_f16 {v(B+k)}, {v(B+k)}, {v(B+8+k)} op_sel:[1,1] op_sel_hi:[0,0] neg_hi:[1,0]')
    a('s_branch L_yjoin')
    H=t+8
    sIdx=sT+11
    a(f'''
    L_hdr:
    v_and_b32 {v(t+16)}, 7, {v(vLane)}
    v_lshlrev_b32 {v(t+16)}, 12, {v(t+16)}
    s_mov_b32 {s(sT+10)}, {SLOT}
    L_hdrp:
    buffer_load_dwordx4 {v(H,4)}, {v(t+16)}, {WS}, {s(sT+10)} offen offset:3072 sc1
    s_waitcnt vmcnt(0)
    ''')
    maxchk(range(H,H+4), t+17)
    poll_branch('L_hdrp', 2)
    a(f'''
    v_max_u32_dpp {v(H+3)}, {v(H)}, {v(H)} row_half_mirror {DPP}
    v_max_u32_dpp {v(H+3)}, {v(H+3)}, {v(H+3)} quad_perm:[1,0,3,2] {DPP}
    v_max_u32_dpp {v(H+3)}, {v(H+3)}, {v(H+3)} quad_perm:[2,3,0,1] {DPP}
    v_readfirstlane_b32 {s(sIdx)}, {v(H+3)}
    v_lshlrev_b32 {v(t+16)}, 5, {v(vLane)}
    s_andn2_b32 {s(sIdx)}, {s(sM7FF)}, {s(sIdx)}
    s_and_b32 {s(sT)}, {s(sIdx)}, 7
    s_lshl_b32 {s(sT+1)}, {s(sT)}, 12
    s_add_u32 {s(sT+10)}, {s(sT+10)}, {s(sT+1)}
    v_readlane_b32 {s(sT+13)}, {v(H+1)}, {s(sT)}
    v_readlane_b32 {s(sT+14)}, {v(H+2)}, {s(sT)}
    L_basep:
    buffer_load_dwordx4 {v(BC+2,4)}, {v(t+16)}, {WS}, {s(sT+10)} offen offset:1024 sc1
    buffer_load_dwordx4 {v(BC+6,4)}, {v(t+16)}, {WS}, {s(sT+10)} offen offset:1040 sc1
    v_lshrrev_b32 {v(t+17)}, 1, {v(vN)}
    v_and_b32 {v(t+17)}, 6, {v(t+17)}
    v_and_or_b32 {v(t+17)}, {v(vN)}, 1, {v(t+17)}
    v_lshl_add_u32 {v(t+17)}, {v(t+17)}, 8, s2
    v_mul_u32_u24 {v(t+17)}, {s(sIdx)}, {v(t+17)}
    v_and_b32 {v(t+17)}, 0x7ff, {v(t+17)}
    v_cvt_f32_u32 {v(t+17)}, {v(t+17)}
    v_mul_f32 {v(t+17)}, {fbits(1/2048)}, {v(t+17)}
    v_cos_f32 {v(t+18)}, {v(t+17)}
    v_sin_f32 {v(t+19)}, {v(t+17)}
    v_and_b32 {v(t+17)}, 0x32, {v(vLane)}
    v_cvt_pk_f16_f32 {v(t+18)}, {v(t+18)}, {v(t+19)}
    v_cmp_eq_u32 vcc, 0, {v(t+17)}
    v_cndmask_b32 {v(AD)}, 0, {v(t+18)}, vcc
    v_cmp_eq_u32 vcc, 2, {v(t+17)}
    v_cndmask_b32 {v(AD+1)}, 0, {v(t+18)}, vcc
    s_sub_u32 {s(sT)}, 2047, {s(sIdx)}
    s_add_u32 {s(sT+1)}, {s(sT)}, 256
    v_cmp_eq_u32 vcc, {s(sT)}, {v(vInv)}
    v_cndmask_b32 {v(BC)}, 0, 1.0, vcc
    v_cmp_eq_u32 vcc, {s(sT+1)}, {v(vInv)}
    v_cndmask_b32 {v(BC+1)}, 0, 1.0, vcc
    s_waitcnt vmcnt(0)
    ''')
    maxchk(range(BC+2,BC+10), t+17)
    poll_branch('L_basep', 2)
    for k in range(8): a(f'v_subrev_f32 {v(BC+2+k)}, {s(sT+13)}, {v(BC+2+k)}')
    a(f'''
    v_mov_b32 {v(BC+10)}, {s(sT+14)}
    v_mul_f32 {v(BC+10)}, {s(sDsc)}, {v(BC+10)}         ; rs2*dsc
    s_branch L_g
    ''')
    Y=t+16; YX=t+24; u=t+28
    vDW,vDR=BC+12,BC+13
    a(f'''
    L_corr:
    s_mov_b32 {s(sIt)}, 2
    s_lshl_b32 {s(sT)}, {s(sX)}, 7
    s_add_u32 {s(sT)}, {s(sT)}, {YHINT}
    v_and_b32 {v(u)}, 3, {v(vLane)}
    v_lshlrev_b32 {v(u)}, 2, {v(u)}
    v_and_b32 {v(u+1)}, 1, {v(vLane)}
    v_lshlrev_b32 {v(u+1)}, 5, {v(u+1)}
    v_lshrrev_b32 {v(u+2)}, 1, {v(vLane)}
    v_lshl_add_u32 {v(u+1)}, {v(u+2)}, 7, {v(u+1)}        ; (l>>1)*128+(l&1)*32
    v_lshrrev_b32 {v(u+2)}, 2, {v(vN)}
    v_lshlrev_b32 {v(u+2)}, 7, {v(u+2)}
    v_lshl_add_u32 {v(u+2)}, {v(u)}, 2, {v(u+2)}          ; (n>>2)*128+(n&3)*16
    s_lshl_b32 {s(sT+1)}, {s(sW)}, 9
    s_add_u32 {s(sT+1)}, {s(sT+1)}, {YBUF}
    s_mov_b32 {s(sT+2)}, {YBUF}
    s_lshl_b32 {s(sT+3)}, {s(sW)}, 10
    s_add_u32 {s(sT+3)}, {s(sT+3)}, {L_U}
    v_lshl_add_u32 {v(u+4)}, {v(vLane)}, 4, {s(sT+3)}
    v_lshl_add_u32 {v(u+5)}, {v(vLane)}, 3, {s(sT+3)}
    s_and_b32 {s(sT+3)}, {s(sW)}, 1
    s_lshl_b32 {s(sT+3)}, {s(sT+3)}, 6
    s_add_u32 {s(sT+3)}, {s(sT+3)}, {L_DH}
    v_lshl_add_u32 {v(vDW)}, {v(vQ)}, 9, {s(sT+3)}
    v_lshl_add_u32 {v(vDW)}, {v(vN)}, 2, {v(vDW)}
    s_lshl_b32 {s(sT+3)}, {s(sW)}, 8
    s_add_u32 {s(sT+3)}, {s(sT+3)}, {L_DH}
    v_lshl_add_u32 {v(vDR)}, {v(vN)}, 4, {s(sT+3)}
    s_cmp_lg_u32 {s(sW)}, 0
    s_cbranch_scc1 L_hintb
    s_movk_i32 {s(sTry)}, 500
    L_hint:
    buffer_load_dword {v(u+3)}, {v(u)}, {WS}, {s(sT)} offen sc1
    s_waitcnt vmcnt(0)
    v_cmp_ne_u32 vcc, {s(sTag)}, {v(u+3)}
    ''')
    poll_branch('L_hint', 1, giveup='L_hintb')
    if cfg.tim_y: a(f's_sleep {cfg.tim_y}')
    a(f'''
    L_hintb:
    s_barrier
    s_cmp_gt_u32 {s(sW)}, 1
    s_cbranch_scc1 L_yv2
    L_yv:
    buffer_load_dwordx4 {v(Y,4)}, {v(u+1)}, {WS}, {s(sT+2)} offen sc1
    buffer_load_dwordx4 {v(Y+4,4)}, {v(u+1)}, {WS}, {s(sT+2)} offen offset:16 sc1
    buffer_load_dwordx4 {v(YX,4)}, {v(u+2)}, {WS}, {s(sT+1)} offen sc1
    s_waitcnt vmcnt(0)
    ''')
    maxchk(range(Y,Y+12), u+3)
    poll_branch('L_yv', 1)
    stamp()
    for k in range(4): a(f'v_pk_add_f32 {v(Y+2*k,2)}, {v(Y+2*k,2)}, {v(BC+2+2*k,2)}')
    s1,s2=u,u+2
    a(f'''
    v_pk_add_f32 {v(s1,2)}, {v(Y,2)}, {v(Y+2,2)}
    v_pk_mul_f32 {v(s2,2)}, {v(Y,2)}, {v(Y,2)}
    v_pk_add_f32 {v(s1,2)}, {v(s1,2)}, {v(Y+4,2)}
    v_pk_fma_f32 {v(s2,2)}, {v(Y+2,2)}, {v(Y+2,2)}, {v(s2,2)}
    v_pk_add_f32 {v(s1,2)}, {v(s1,2)}, {v(Y+6,2)}
    v_pk_fma_f32 {v(s2,2)}, {v(Y+4,2)}, {v(Y+4,2)}, {v(s2,2)}
    v_add_f32 {v(s1)}, {v(s1)}, {v(s1+1)}
    v_pk_fma_f32 {v(s2,2)}, {v(Y+6,2)}, {v(Y+6,2)}, {v(s2,2)}
    v_add_f32 {v(s2)}, {v(s2)}, {v(s2+1)}
    v_pk_fma_f32 {v(X,2)}, {v(BC,2)}, {v(YX,2)}, {v(X,2)} op_sel:[0,0,0] op_sel_hi:[1,0,1]
    v_pk_fma_f32 {v(X+2,2)}, {v(BC,2)}, {v(YX,2)}, {v(X+2,2)} op_sel:[0,1,0] op_sel_hi:[1,1,1]
    v_permlane32_swap_b32 {v(s1)}, {v(s2)}
    v_add_f32 {v(s1)}, {v(s1)}, {v(s2)}
    v_pk_fma_f32 {v(X+4,2)}, {v(BC,2)}, {v(YX+2,2)}, {v(X+4,2)} op_sel:[0,0,0] op_sel_hi:[1,0,1]
    v_pk_fma_f32 {v(X+6,2)}, {v(BC,2)}, {v(YX+2,2)}, {v(X+6,2)} op_sel:[0,1,0] op_sel_hi:[1,1,1]
    v_add_f32_dpp {v(s1)}, {v(s1)}, {v(s1)} row_ror:8 {DPP}
    v_pk_mul_f32 {v(BC+2,2)}, {v(BC+2,2)}, {v(BC+10,2)} op_sel_hi:[1,0]
    v_pk_mul_f32 {v(BC+4,2)}, {v(BC+4,2)}, {v(BC+10,2)} op_sel_hi:[1,0]
    v_add_f32_dpp {v(s1)}, {v(s1)}, {v(s1)} row_ror:4 {DPP}
    v_pk_mul_f32 {v(BC+6,2)}, {v(BC+6,2)}, {v(BC+10,2)} op_sel_hi:[1,0]
    v_pk_mul_f32 {v(BC+8,2)}, {v(BC+8,2)}, {v(BC+10,2)} op_sel_hi:[1,0]
    v_add_f32_dpp {v(s1)}, {v(s1)}, {v(s1)} row_ror:2 {DPP}
    v_add_f32_dpp {v(s1)}, {v(s1)}, {v(s1)} row_ror:1 {DPP}
    v_add_f32_dpp {v(s1)}, {v(s1)}, {v(s1)} row_bcast:15 row_mask:0xa bank_mask:0xf
    v_mul_f32 {v(s1)}, {s(sK512)}, {v(s1)}
    v_readlane_b32 {s(sT+1)}, {v(s1)}, 31
    v_readlane_b32 {s(sT+2)}, {v(s1)}, 63
    v_mov_b32 {v(s2)}, {s(sT+1)}
    v_fma_f32 {v(s1)}, -{v(s2)}, {v(s2)}, {s(sT+2)}
    v_add_f32 {v(s1)}, {s(sEps)}, {v(s1)}
    v_rsq_f32_e64 {v(s1)}, |{v(s1)}|
    v_mul_f32 {v(s1)}, {s(sDsc)}, {v(s1)}
    ''')
    for k in range(4):
        a(f'v_pk_fma_f32 {v(Y+2*k,2)}, {v(Y+2*k,2)}, {v(s1,2)}, {v(BC+2+2*k,2)} op_sel_hi:[1,0,1] neg_lo:[0,0,1] neg_hi:[0,0,1]')
    for k in range(4): a(f'v_cvt_pk_f16_f32 {v(t+k)}, {v(Y+2*k)}, {v(Y+2*k+1)}')
    a(f'''
    ds_write_b128 {v(u+4)}, {v(t,4)}
    ds_read_b64_tr_b16 {v(t+4,2)}, {v(u+5)}
    ds_read_b64_tr_b16 {v(t+6,2)}, {v(u+5)} offset:512
    s_waitcnt lgkmcnt(0)
    ;@F
    ''')
    fft_core(t+4, None, t+16, t+24, t+16, t)
    a(f'''
    ds_write2_b32 {v(vDW)}, {v(t)}, {v(t+1)} offset0:0 offset1:32
    ds_write2_b32 {v(vDW)}, {v(t+2)}, {v(t+3)} offset0:64 offset1:96
    L_dhb:
    ;@F
    s_waitcnt lgkmcnt(0)
    s_barrier
    ;@F
    ds_read_b128 {v(t,4)}, {v(vDR)}
    s_waitcnt lgkmcnt(0)
    v_mfma_f32_16x16x16_f16 {v(E0,4)}, {v(AD,2)}, {v(t,2)}, {v(E0,4)}
    v_mfma_f32_16x16x16_f16 {v(E1,4)}, {v(AD,2)}, {v(t+2,2)}, {v(E1,4)}
    s_nop 5
    s_branch L_corrback ;!nd
    ''')
    a(f'''
    L_yv2:
    buffer_load_dwordx4 {v(YX,4)}, {v(u+2)}, {WS}, {s(sT+1)} offen sc1
    s_waitcnt vmcnt(0)
    ''')
    maxchk(range(YX,YX+4), u+3)
    poll_branch('L_yv2', 1)
    stamp(); fstamp()
    a(f'''
    v_pk_fma_f32 {v(X,2)}, {v(BC,2)}, {v(YX,2)}, {v(X,2)} op_sel:[0,0,0] op_sel_hi:[1,0,1]
    v_pk_fma_f32 {v(X+2,2)}, {v(BC,2)}, {v(YX,2)}, {v(X+2,2)} op_sel:[0,1,0] op_sel_hi:[1,1,1]
    v_pk_fma_f32 {v(X+4,2)}, {v(BC,2)}, {v(YX+2,2)}, {v(X+4,2)} op_sel:[0,0,0] op_sel_hi:[1,0,1]
    v_pk_fma_f32 {v(X+6,2)}, {v(BC,2)}, {v(YX+2,2)}, {v(X+6,2)} op_sel:[0,1,0] op_sel_hi:[1,1,1]
    s_branch L_dhb
    ''')
    a('L_fin:')
    for rho in (0,1):
        for k in (0,1):
            a(f'v_cvt_pk_bf16_f32 {v(t+2*rho+k)}, {v(X+4*k+rho)}, {v(X+4*k+2+rho)}')
    a(f'''
    v_lshlrev_b32 {v(t+4)}, 1, {v(vQ)}
    v_mov_b32 {v(t+7)}, 0x200000
    s_sub_u32 {s(sT)}, {s(sT+9)}, 1
    v_cmp_eq_u32 vcc, {s(sT+9)}, {v(t+4)}
    v_cndmask_b32 {v(t+5)}, {v(vXoff)}, {v(t+7)}, vcc
    v_cmp_eq_u32 vcc, {s(sT)}, {v(t+4)}
    v_cndmask_b32 {v(t+6)}, {v(vXoff)}, {v(t+7)}, vcc
    buffer_store_dwordx2 {v(t,2)}, {v(t+5)}, {OS}, {s(sRow0)} offen
    buffer_store_dwordx2 {v(t+2,2)}, {v(t+6)}, {OS}, {s(sRow1)} offen
    s_or_b32 {s(sT)}, s2, {s(sW)}
    s_cbranch_scc1 L_fin2
    v_mov_b32 {v(t+8)}, {s(sTag)}
    buffer_store_dword {v(t+8)}, off, {WS}, 0 sc1
    L_fin2:
    ''')
    stamp(); dump_stamps()
    a('s_endpgm')
    def pub2():
        a(f'''
        v_mov_b32 {v(t+2)}, {s(sTag)}
        v_mov_b32 {v(t+3)}, {s(sXcc)}
        s_add_u32 {s(sT)}, {s(sTabSt)}, {TAB2-TABL}
        buffer_store_dwordx2 {v(t+2,2)}, off, {WS}, {s(sT)} sc1
        ''')
    a(f'''
    L_tabst_slow:
    buffer_store_dwordx2 {v(K,2)}, off, {WS}, {s(sTabSt)} sc1
    s_branch L_tabst_back
    L_tabg_r:
    s_sub_u32 {s(sCnt)}, {s(sCnt)}, 1
    s_cbranch_scc1 L_end
    s_sleep 2
    v_lshlrev_b32 v1, 1, {v(vL8)}
    buffer_load_dword v1, v1, {WS}, {s(sTabG)} offen sc1
    s_waitcnt vmcnt(0)
    s_branch L_tabgw
    L_tab2:
    ''')
    pub2()
    a(f'''
    s_add_u32 {s(sT+1)}, {s(sTabLd)}, {TAB2-TABL}
    L_tab2p:
    buffer_load_dwordx2 {v(t,2)}, {v(vL8)}, {WS}, {s(sTabLd)} offen sc1
    buffer_load_dwordx2 {v(t+2,2)}, {v(vL8)}, {WS}, {s(sT+1)} offen sc1
    s_waitcnt vmcnt(0)
    v_cmp_eq_u32 vcc, {s(sTag)}, {v(t)}
    v_cndmask_b32 {v(t)}, {v(t+2)}, {v(t)}, vcc
    v_cndmask_b32 {v(t+1)}, {v(t+3)}, {v(t+1)}, vcc
    v_cmp_ne_u32 vcc, {s(sTag)}, {v(t)}
    ''')
    poll_branch('L_tab2p', 4)
    a(f'''
    s_branch L_tabok
    L_slow:
    s_cmp_lg_u32 {s(sIt)}, 0
    s_cbranch_scc1 L_slow1
    ''')
    pub2()
    a('L_slow1:')
    lstores('sc1')
    a(f'''
    s_waitcnt vmcnt(0)
    s_barrier
    s_add_u32 {s(sT)}, {s(sTabSt)}, {SLOWF-TABL}
    s_add_u32 {s(sT+1)}, {s(sTabLd)}, {SLOWF-TABL}
    v_mov_b32 {v(t)}, {s(sTag)}
    s_cmp_lg_u32 {s(sW)}, 0
    s_cbranch_scc1 L_slowp
    buffer_store_dword {v(t)}, off, {WS}, {s(sT)} sc1
    L_slowp:
    buffer_load_dword {v(t+1)}, {v(vL8)}, {WS}, {s(sT+1)} offen sc1
    s_waitcnt vmcnt(0)
    v_cmp_ne_u32 vcc, {s(sTag)}, {v(t+1)}
    ''')
    poll_branch('L_slowp', 2)
    a('s_branch L_slowback')
    emit_retries()

def hint_store(vreg, soff, lbl):
    a(f'''
    s_mov_b64 exec, 1
    s_cmp_eq_u32 {s(sFast)}, 0
    s_cbranch_scc1 {lbl}_s
    buffer_store_dword {v(vreg)}, off, {WS}, {s(soff)}
    s_branch {lbl}_d
    {lbl}_s:
    buffer_store_dword {v(vreg)}, off, {WS}, {s(soff)} sc1
    {lbl}_d:
    s_mov_b64 exec, -1
    ''')

def turn_in(l):
    if not cfg.gser: return
    a(f'''
    s_mov_b32 {s(sT+12)}, {s(sW)}
    {l}_i:
    s_sub_u32 {s(sT+12)}, {s(sT+12)}, 1
    s_cbranch_scc1 {l}_go
    s_barrier
    s_branch {l}_i
    {l}_go:
    ''')
def turn_out(l):
    if not cfg.gser: return
    a(f'''
    s_sub_u32 {s(sT+12)}, 7, {s(sW)}
    {l}_o:
    s_sub_u32 {s(sT+12)}, {s(sT+12)}, 1
    s_cbranch_scc1 {l}_d
    s_barrier
    s_branch {l}_o
    {l}_d:
    ''')
def ffn():
    WB=4; t2=66; t=40
    vSl=32; vPW=33; vH=34; vHd=35; vTag=36; vPR=37
    sI=sJ; sFb=sLld; sRnd=sIt; sHo=sLst; sHH=sLst2; sCb=sLld2
    a(f'''
    L_ffn:
    s_and_b32 {s(sI)}, {s(sJ)}, 31
    s_mul_i32 {s(sT)}, {s(sX)}, {GS}
    s_lshl_b32 {s(sT+1)}, {s(sI)}, 13
    s_add_u32 {s(sT)}, {s(sT)}, {s(sT+1)}
    s_add_u32 {s(sT)}, {s(sT)}, {GBASE}
    s_add_u32 {s(sT+1)}, {s(sT)}, {GR}
    s_sub_u32 {s(sT+3)}, s2, 256
    s_lshl_b32 {s(sT+2)}, {s(sT+3)}, 13
    s_add_u32 {s(sT+2)}, {s(sT+2)}, {CLR0}
    s_cmp_lt_u32 {s(sT+3)}, 12
    s_cselect_b32 {s(sT+2)}, {s(sT+2)}, {WSSZ}
    v_lshlrev_b32 {v(t)}, 4, v0
    v_lshrrev_b32 {v(t+1)}, 5, v0
    v_mul_u32_u24 {v(t+1)}, 3584, {v(t+1)}
    v_and_b32 {v(t+2)}, 0x1f0, {v(t)}
    s_mul_i32 {s(sT+4)}, {s(sI)}, {16*3584}
    s_mul_i32 {s(sT+5)}, {s(sX)}, 7
    s_lshr_b32 {s(sT+5)}, {s(sT+5)}, 1
    s_lshl_b32 {s(sT+5)}, {s(sT+5)}, 7
    s_add_u32 {s(sT+4)}, {s(sT+4)}, {s(sT+5)}
    v_add3_u32 {v(t+1)}, {v(t+1)}, {v(t+2)}, {s(sT+4)}
    v_lshrrev_b32 {v(t+2)}, 3, v0
    v_min_u32 {v(t+2)}, 55, {v(t+2)}
    v_lshlrev_b32 {v(t+2)}, 10, {v(t+2)}
    v_and_b32 {v(t+3)}, 0x70, {v(t)}
    s_mul_i32 {s(sT+4)}, {s(sI)}, {56*1024}
    s_lshl_b32 {s(sT+5)}, {s(sX)}, 7
    s_add_u32 {s(sT+4)}, {s(sT+4)}, {s(sT+5)}
    v_add3_u32 {v(t+2)}, {v(t+2)}, {v(t+3)}, {s(sT+4)}
    s_waitcnt lgkmcnt(0)
    buffer_load_dword {v(vTag)}, off, {WS}, 0 sc1
    buffer_store_dwordx4 {v(T+4,4)}, {v(t)}, {WS}, {s(sT)} offen sc1
    buffer_store_dwordx4 {v(T+4,4)}, {v(t)}, {WS}, {s(sT+2)} offen sc1
    global_load_dwordx4 {v(WB,4)}, {v(t+1)}, s[18:19]
    global_load_dwordx4 {v(WB+4,4)}, {v(t+1)}, s[20:21]
    global_load_dwordx4 {v(WB+8,4)}, {v(t+2)}, s[22:23]
    s_mov_b32 {s(sG0)}, {s(sT+1)}
    v_mov_b32 {v(vPR)}, {v(t)}
    ''')
    npf=3
    if cfg.codepf:
        a(f'''
        s_getpc_b64 {s(sT+6,2)}
        L_pc:
        s_sub_u32 {s(sT+6)}, {s(sT+6)}, L_pc-{NAME}_kernel
        s_subb_u32 {s(sT+7)}, {s(sT+7)}, 0
        v_min_u32 {v(t+3)}, L_end-{NAME}_kernel, {v(t)}
        global_load_dword {v(WB+12)}, {v(t+3)}, {s(sT+6,2)}
        ''')
        npf=4
    a(f'''
    s_mul_i32 {s(sFb)}, {s(sX)}, 28
    s_add_u32 {s(sFb)}, {s(sFb)}, {s(sI)}
    s_lshl_b32 {s(sFb)}, {s(sFb)}, 4           ; fb*16
    s_lshl_b32 {s(sCb)}, {s(sX)}, 2
    s_add_u32 {s(sCb)}, {s(sCb)}, {s(sI)}
    s_sub_u32 {s(sCb)}, {s(sCb)}, 28
    v_mov_b32 {v(t2+42)}, 0x200000
    s_lshl_b32 {s(sT)}, {s(sW)}, 11
    v_lshl_add_u32 {v(t+4)}, {v(vLane)}, 5, {s(sT)}
    v_lshl_add_u32 {v(t+5)}, {v(vLane)}, 4, {s(sT)}
    v_lshl_add_u32 {v(t+6)}, {v(vQ)}, 8, {s(sT)}
    v_lshl_add_u32 {v(t+6)}, {v(vN)}, 3, {v(t+6)}
    v_and_b32 {v(vHd)}, 7, {v(vLane)}
    v_lshlrev_b32 {v(vHd)}, 12, {v(vHd)}
    s_lshl_b32 {s(sT)}, {s(sW)}, 7
    v_lshl_add_u32 {v(vSl)}, {v(vQ)}, 4, {v(vHd)}
    v_add_u32 {v(vSl)}, {s(sT)}, {v(vSl)}
    s_mul_i32 {s(sT)}, {s(sW)}, 448
    v_lshl_add_u32 {v(vH)}, {v(vQ)}, 4, {s(sT)}
    s_lshl_b32 {s(sT+8)}, {s(sT+3)}, 4
    s_add_u32 {s(sT+8)}, {s(sT+8)}, {TABG}
    s_mov_b32 {s(sRnd)}, 0
    s_mov_b32 {s(sSlot)}, {SLOT}
    s_mov_b32 {s(sHo)}, {HBUF}
    s_lshl_b32 {s(sHH)}, {s(sX)}, 7
    s_add_u32 {s(sHH)}, {s(sHH)}, {HHINT}
    s_waitcnt vmcnt({npf})
    v_add_u32 {v(vTag)}, 1, {v(vTag)}
    s_barrier
    v_readfirstlane_b32 {s(sTag)}, {v(vTag)}
    s_cmp_lg_u32 {s(sW)}, 0
    s_cbranch_scc1 L_fnt
    s_mov_b64 exec, 1
    buffer_store_dword {v(vTag)}, off, {WS}, {s(sT+8)} sc1
    s_mov_b64 exec, -1
    L_fnt:
    s_waitcnt vmcnt(0)
    s_barrier
    ''')
    stamp()
    a(f'''
    s_cmp_ge_u32 {s(sI)}, 28
    s_cbranch_scc1 L_fwb
    v_mul_u32_u24 {v(t)}, 3584, v0
    v_add_u32 {v(t)}, {s(sFb)}, {v(t)}
    ''')
    turn_in('L_ta')
    a(f'''
    global_load_dwordx4 {v(WB,4)}, {v(t)}, s[18:19]
    global_load_dwordx4 {v(WB+4,4)}, {v(t)}, s[20:21]
    s_lshl_b32 {s(sT)}, {s(sW)}, 10
    v_lshl_add_u32 {v(vPW)}, {v(vLane)}, 4, {s(sT)}
    s_waitcnt vmcnt(0)
    ''')
    turn_out('L_ta')
    a(f'''
    ds_write_b128 {v(t+4)}, {v(WB,4)}
    ds_write_b128 {v(t+4)}, {v(WB+4,4)} offset:16
    s_waitcnt lgkmcnt(0)
    ds_read_b64_tr_b16 {v(WB,2)}, {v(t+6)}
    ds_read_b64_tr_b16 {v(WB+2,2)}, {v(t+6)} offset:128
    ds_read_b64_tr_b16 {v(WB+4,2)}, {v(t+6)} offset:1024
    ds_read_b64_tr_b16 {v(WB+6,2)}, {v(t+6)} offset:1152
    s_branch L_fw_done
    L_fwb:
    s_mul_i32 {s(sT)}, {s(sW)}, {224*1024}
    s_lshl_b32 {s(sT+1)}, {s(sCb)}, 5
    s_add_u32 {s(sT)}, {s(sT)}, {s(sT+1)}
    v_lshrrev_b32 {v(t+7)}, 1, {v(vLane)}
    v_lshlrev_b32 {v(t+7)}, 10, {v(t+7)}
    v_and_b32 {v(t+8)}, 1, {v(vLane)}
    v_lshl_add_u32 {v(t+7)}, {v(t+8)}, 4, {v(t+7)}
    v_add_u32 {v(t+7)}, {s(sT)}, {v(t+7)}
    ''')
    turn_in('L_tb')
    for k in range(7):
        a(f'global_load_dwordx4 {v(WB+4*k,4)}, {v(t+7)}, s[22:23]')
        if k<6: a(f'v_add_u32 {v(t+7)}, 0x8000, {v(t+7)}')
        if k==3 and cfg.gser: a('s_waitcnt vmcnt(0)')
    a(f'''
    s_lshl_b32 {s(sT)}, {s(sW)}, 2
    v_lshl_add_u32 {v(vPW)}, {v(vLane)}, 5, {s(sT)}
    s_waitcnt vmcnt(0)''')
    turn_out('L_tb')
    for k in range(7):
        o=(k&1)*1024
        a(f'''ds_write_b128 {v(t+5)}, {v(WB+4*k,4)} offset:{o}
        s_waitcnt lgkmcnt(0)
        ds_read_b64_tr_b16 {v(WB+4*k,2)}, {v(t+6)} offset:{o}
        ds_read_b64_tr_b16 {v(WB+4*k+2,2)}, {v(t+6)} offset:{o+128}''')
    a(f'''
    L_fw_done:
    buffer_store_dwordx4 {v(T+4,4)}, {v(vPR)}, {WS}, {s(sG0)} offen sc1
    s_waitcnt vmcnt(0) lgkmcnt(0)
    s_barrier
    ''')
    stamp()
    a(f'''
    s_mov_b32 {s(sFast)}, 0
    s_cmp_lg_u32 {s(sW)}, 0
    s_cbranch_scc1 L_fbar
    s_add_u32 {s(sT+8)}, {s(sT+8)}, {TABGR}
    s_mov_b64 exec, 1
    buffer_store_dword {v(vTag)}, off, {WS}, {s(sT+8)} sc1
    s_mov_b64 exec, -1
    s_mov_b32 {s(sTry)}, 40
    L_fl:
    buffer_load_dwordx2 {v(t,2)}, {v(vL8)}, {WS}, {s(sTabLd)} offen sc1
    s_waitcnt vmcnt(0)
    v_cmp_ne_u32 vcc, {s(sTag)}, {v(t)}
    ''')
    poll_branch('L_fl', 8, giveup='L_ftab0')
    a(f'''
    v_cmp_ne_u32 vcc, {s(sXcc)}, {v(t+1)}
    s_nop 0
    s_cmp_eq_u64 vcc, 0
    s_cselect_b32 {s(sFast)}, 1, 0
    L_ftab0:
    v_lshlrev_b32 {v(t+16)}, 4, {v(vLane)}
    s_mov_b32 {s(sT+10)}, {TABG}
    L_ftab:
    ''')
    for k in range(4): a(f'buffer_load_dword {v(t+k)}, {v(t+16)}, {WS}, {s(sT+10)} offen offset:{1024*k} sc1')
    a('s_waitcnt vmcnt(0)')
    for k in range(4): a(f'v_xor_b32 {v(t+k)}, {s(sTag)}, {v(t+k)}')
    a(f'''
    v_or3_b32 {v(t)}, {v(t)}, {v(t+1)}, {v(t+2)}
    v_or_b32 {v(t)}, {v(t)}, {v(t+3)}
    v_cmp_ne_u32 vcc, 0, {v(t)}
    ''')
    poll_branch('L_ftab', 8)
    a(f'''
    L_frnd:
    s_add_u32 {s(sTabLd)}, {s(sTabLd)}, {ARGR}
    s_cmp_lg_u32 {s(sW)}, 0
    s_cbranch_scc1 L_fbar
    s_cmp_eq_u32 {s(sFast)}, 0
    s_cbranch_scc1 L_ftd
    L_ftrig:
    buffer_load_dword {v(t)}, {v(vL8)}, {WS}, {s(sTabLd)} offen sc1
    s_waitcnt vmcnt(0)
    v_cmp_ne_u32 vcc, {s(sTag)}, {v(t)}
    ''')
    poll_branch('L_ftrig', 2)
    stamp()
    if cfg.tim_arg: a(f's_sleep {cfg.tim_arg}')
    a(f'''
    L_ftd:
    s_cmp_ge_u32 {s(sI)}, 28
    s_cbranch_scc1 L_fb0
    L_fbar:
    s_barrier
    s_cmp_ge_u32 {s(sI)}, 28
    s_cbranch_scc1 L_fh
    L_fslot:
    buffer_load_dwordx4 {v(t,4)}, {v(vSl)}, {WS}, {s(sSlot)} offen sc1
    buffer_load_dwordx4 {v(t+4,4)}, {v(vSl)}, {WS}, {s(sSlot)} offen offset:64 sc1
    buffer_load_dword {v(t+8)}, {v(vHd)}, {WS}, {s(sSlot)} offen offset:3072 sc1
    s_waitcnt vmcnt(0)
    ''')
    maxchk(range(t,t+9), t+9)
    poll_branch('L_fslot', 2)
    stamp()
    Dd=t+12
    a(f'''
    v_mfma_f32_16x16x32_bf16 {v(Dd,4)}, {v(t,4)}, {v(WB,4)}, 0
    v_mfma_f32_16x16x32_bf16 {v(Dd,4)}, {v(t+4,4)}, {v(WB+4,4)}, {v(Dd,4)}
    v_max_u32_dpp {v(t+9)}, {v(t+8)}, {v(t+8)} row_half_mirror {DPP}
    s_add_u32 {s(sT+1)}, {s(sHo)}, {s(sFb)}
    s_lshl_b32 {s(sT+2)}, {s(sI)}, 2
    v_max_u32_dpp {v(t+9)}, {v(t+9)}, {v(t+9)} quad_perm:[1,0,3,2] {DPP}
    s_add_u32 {s(sT+2)}, {s(sT+2)}, {s(sHH)}
    v_lshlrev_b32 {v(t+10)}, 4, {v(vN)}
    v_max_u32_dpp {v(t+9)}, {v(t+9)}, {v(t+9)} quad_perm:[2,3,0,1] {DPP}
    v_not_b32 {v(t+9)}, {v(t+9)}
    ds_write_b128 {v(vPW)}, {v(Dd,4)}
    v_and_b32 {v(t+11)}, 4, {v(t+9)}
    v_and_b32 {v(t+9)}, 3, {v(t+9)}
    v_lshl_add_u32 {v(t+10)}, {v(t+11)}, 6, {v(t+10)}
    v_lshl_add_u32 {v(t+10)}, {v(t+9)}, 2, {v(t+10)}
    v_lshlrev_b32 {v(t+11)}, 1, {v(vN)}
    s_waitcnt lgkmcnt(0)
    s_barrier
    s_cmp_lg_u32 {s(sW)}, 0
    s_cbranch_scc1 L_fnext
    ds_read2st64_b32 {v(t,2)}, {v(t+10)} offset0:0 offset1:4
    ds_read2st64_b32 {v(t+2,2)}, {v(t+10)} offset0:8 offset1:12
    ds_read2st64_b32 {v(t+4,2)}, {v(t+10)} offset0:16 offset1:20
    ds_read2st64_b32 {v(t+6,2)}, {v(t+10)} offset0:24 offset1:28
    s_waitcnt lgkmcnt(2)
    v_pk_add_f32 {v(t,2)}, {v(t,2)}, {v(t+2,2)}
    s_waitcnt lgkmcnt(0)
    v_pk_add_f32 {v(t+4,2)}, {v(t+4,2)}, {v(t+6,2)}
    v_pk_add_f32 {v(t,2)}, {v(t,2)}, {v(t+4,2)}
    v_add_f32 {v(t)}, {v(t)}, {v(t+1)}
    v_mul_f32 {v(t+1)}, 0xbfb8aa3b, {v(t)}
    v_exp_f32 {v(t+1)}, {v(t+1)}
    v_mul_f32_dpp {v(t+2)}, {v(t)}, {v(t)} row_ror:8 {DPP}
    v_add_f32 {v(t+1)}, 1.0, {v(t+1)}
    v_rcp_f32 {v(t+1)}, {v(t+1)}
    v_mul_f32 {v(t+1)}, {v(t+1)}, {v(t+2)}
    v_mov_b32_dpp {v(t+2)}, {v(t+1)} quad_perm:[1,1,3,3] {DPP}
    s_mov_b64 exec, 0x55
    v_cvt_pk_bf16_f32 {v(t+1)}, {v(t+1)}, {v(t+2)}
    buffer_store_dword {v(t+1)}, {v(t+11)}, {WS}, {s(sT+1)} offen sc1
    ''')
    hint_store(vTag, sT+2, 'L_fhh')
    a('L_fnext:')
    stamp()
    a(f'''
    s_cmp_lg_u32 {s(sRnd)}, 0
    s_cbranch_scc1 L_fend
    s_mov_b32 {s(sRnd)}, 1
    s_add_u32 {s(sSlot)}, {s(sSlot)}, {SLOTR}
    s_add_u32 {s(sHo)}, {s(sHo)}, {HR}
    s_add_u32 {s(sHH)}, {s(sHH)}, {HHR}
    s_branch L_frnd
    L_fb0:
    v_lshrrev_b32 {v(t2+36)}, 3, {v(vLane)}
    v_lshlrev_b32 {v(t2+36)}, 12, {v(t2+36)}
    v_and_b32 {v(t2+37)}, 0x38, {v(vL8)}
    s_lshl_b32 {s(sT)}, {s(sCb)}, 6
    v_add3_u32 {v(t2+38)}, {v(t2+36)}, {v(t2+37)}, {s(sT)}
    L_fbase:
    buffer_load_dwordx2 {v(t2+40,2)}, {v(t2+38)}, {WS}, {s(sSlot)} offen offset:1024 sc1
    buffer_load_dword {v(t2+42)}, {v(t2+36)}, {WS}, {s(sSlot)} offen offset:3072 sc1
    buffer_load_dword {v(t2+43)}, {v(vHd)}, {WS}, {s(sSlot)} offen offset:3072 sc1
    s_waitcnt vmcnt(0)
    ''')
    maxchk(range(t2+40,t2+44), t2+39)
    poll_branch('L_fbase', 2)
    stamp()
    a(f'''
    v_max_u32_dpp {v(t2+43)}, {v(t2+43)}, {v(t2+43)} row_half_mirror {DPP}
    v_max_u32_dpp {v(t2+43)}, {v(t2+43)}, {v(t2+43)} quad_perm:[1,0,3,2] {DPP}
    v_max_u32_dpp {v(t2+43)}, {v(t2+43)}, {v(t2+43)} quad_perm:[2,3,0,1] {DPP}
    v_readfirstlane_b32 {s(sKey)}, {v(t2+43)}
    v_mov_b32 {v(t2+34)}, 0xbfb8aa3b
    s_ashr_i32 {s(sT)}, {s(sKey)}, 31
    s_orn2_b32 {s(sT)}, 0x80000000, {s(sT)}
    s_xor_b32 {s(sT)}, {s(sT)}, {s(sKey)}
    v_mul_f32 {v(t2+34)}, {s(sT)}, {v(t2+34)}
    v_exp_f32 {v(t2+34)}, {v(t2+34)}
    v_add_f32 {v(t2+34)}, 1.0, {v(t2+34)}
    v_rcp_f32 {v(t2+34)}, {v(t2+34)}
    v_cmp_eq_u32 vcc, {s(sKey)}, {v(t2+42)}
    v_cndmask_b32 {v(t2+44)}, 0, {v(t2+34)}, vcc
    v_bfi_b32 {v(t2+42)}, {v(t2+42)}, 0, {s(sM7FF)}
    v_lshlrev_b32 {v(t2+42)}, 10, {v(t2+42)}
    v_lshrrev_b32 {v(t2+38)}, 1, {v(t2+37)}
    s_lshl_b32 {s(sT)}, {s(sCb)}, 5
    v_add3_u32 {v(t2+42)}, {v(t2+42)}, {v(t2+38)}, {s(sT)}
    s_cmp_eq_u32 {s(sFast)}, 0
    s_cbranch_scc1 L_fbar
    v_min_u32 {v(t)}, 27, {v(vLane)}
    v_lshlrev_b32 {v(t)}, 2, {v(t)}
    s_movk_i32 {s(sTry)}, 500
    L_fhint:
    buffer_load_dword {v(t+1)}, {v(t)}, {WS}, {s(sHH)} offen sc1
    s_waitcnt vmcnt(0)
    v_cmp_ne_u32 vcc, {s(sTag)}, {v(t+1)}
    ''')
    poll_branch('L_fhint', 0, giveup='L_fbar')
    if cfg.tim_h: a(f's_sleep {cfg.tim_h}')
    a(f'''
    s_barrier
    L_fh:
    ''')
    for k in range(7):
        a(f'buffer_load_dwordx4 {v(t+4*k,4)}, {v(vH)}, {WS}, {s(sHo)} offen offset:{64*k} sc1')
    a('s_waitcnt vmcnt(0)')
    Dy=t+28
    for k in range(7):
        a(f'v_mfma_f32_16x16x32_bf16 {v(Dy,4)}, {v(t+4*k,4)}, {v(WB+4*k,4)}, '+('0' if k==0 else v(Dy,4)))
        if k==0: a(f'v_max3_u32 {v(t+32)}, {v(t)}, {v(t+1)}, {v(t+2)}\nv_max_u32 {v(t+32)}, {v(t+32)}, {v(t+3)}')
        else: a(f'v_max3_u32 {v(t+32)}, {v(t+32)}, {v(t+4*k)}, {v(t+4*k+1)}\nv_max3_u32 {v(t+32)}, {v(t+32)}, {v(t+4*k+2)}, {v(t+4*k+3)}')
    a(f'v_cmp_eq_u32 vcc, -1, {v(t+32)}')
    poll_branch('L_fh', 1, pre='s_nop 7')
    stamp()
    a(f'''
    s_mov_b64 exec, 0xffff
    ds_write_b32 {v(vPW)}, {v(Dy)}
    s_mov_b64 exec, -1
    s_waitcnt lgkmcnt(0)
    s_barrier
    s_cmp_lg_u32 {s(sW)}, 0
    s_cbranch_scc1 L_fnext
    s_cmp_lg_u32 {s(sRnd)}, 0
    s_cbranch_scc1 L_ffinal
    v_lshlrev_b32 {v(t+8)}, 5, {v(vN)}
    ds_read_b128 {v(t,4)}, {v(t+8)}
    ds_read_b128 {v(t+4,4)}, {v(t+8)} offset:16
    s_lshl_b32 {s(sT)}, {s(sCb)}, 7
    s_add_u32 {s(sT)}, {s(sT)}, {YBUF}
    v_lshlrev_b32 {v(t+9)}, 2, {v(vLane)}
    s_lshl_b32 {s(sT+1)}, {s(sX)}, 7
    s_lshl_b32 {s(sT+2)}, {s(sI)}, 2
    s_add_u32 {s(sT+1)}, {s(sT+1)}, {s(sT+2)}
    s_add_u32 {s(sT+1)}, {s(sT+1)}, {YHINT-28*4}
    s_mov_b64 exec, 0xffff
    s_waitcnt lgkmcnt(0)
    v_pk_add_f32 {v(t,2)}, {v(t,2)}, {v(t+2,2)}
    v_pk_add_f32 {v(t+4,2)}, {v(t+4,2)}, {v(t+6,2)}
    v_pk_add_f32 {v(t,2)}, {v(t,2)}, {v(t+4,2)}
    v_add_f32 {v(t)}, {v(t)}, {v(t+1)}
    v_mul_f32 {v(t)}, {v(t)}, {v(t2+34)}
    buffer_store_dword {v(t)}, {v(t+9)}, {WS}, {s(sT)} offen sc1
    ''')
    hint_store(vTag, sT+1, 'L_fyh')
    a(f'''
    s_branch L_fnext
    L_ffinal:
    v_lshlrev_b32 {v(t+16)}, 3, {v(t2+37)}
    ds_read_b128 {v(t,4)}, {v(t+16)}
    ds_read_b128 {v(t+4,4)}, {v(t+16)} offset:16
    ds_read_b128 {v(t+8,4)}, {v(t+16)} offset:32
    ds_read_b128 {v(t+12,4)}, {v(t+16)} offset:48
    s_waitcnt lgkmcnt(2)
    v_pk_add_f32 {v(t,2)}, {v(t,2)}, {v(t+2,2)}
    v_pk_add_f32 {v(t+4,2)}, {v(t+4,2)}, {v(t+6,2)}
    s_waitcnt lgkmcnt(0)
    v_pk_add_f32 {v(t+8,2)}, {v(t+8,2)}, {v(t+10,2)}
    v_pk_add_f32 {v(t+12,2)}, {v(t+12,2)}, {v(t+14,2)}
    v_pk_add_f32 {v(t,2)}, {v(t,2)}, {v(t+4,2)}
    v_pk_add_f32 {v(t+8,2)}, {v(t+8,2)}, {v(t+12,2)}
    v_add_f32 {v(t)}, {v(t)}, {v(t+1)}
    v_add_f32 {v(t+1)}, {v(t+8)}, {v(t+9)}
    v_pk_fma_f32 {v(t,2)}, {v(t,2)}, {v(t2+44,2)}, {v(t2+40,2)} op_sel_hi:[1,0,1]
    v_cvt_pk_bf16_f32 {v(t)}, {v(t)}, {v(t+1)}
    buffer_store_dword {v(t)}, {v(t2+42)}, {OS}, 0 offen
    ''')
    stamp()
    a('L_fend:')
    dump_stamps()
    a('s_endpgm')
    emit_retries()

def build():
    hdr=open('cdna_kernels/'+NAME+'.s.ref').read().split('; @launch')[0]
    a.raw(hdr+f'; @launch grid=({NWG},1,1) block=(512,1,1) lds={LDS_TOTAL}')
    a.raw(f'''; generated by gen/gen.py (hand-written generator): persistent FFT-structured FNet + MoD kernel
.amdgcn_target "amdgcn-amd-amdhsa--gfx950"
.text
.globl {NAME}_kernel
.p2align 8
.type {NAME}_kernel,@function
{NAME}_kernel:''')
    a(f'''
    s_load_dwordx2 s[12:13], s[0:1], 0
    s_load_dwordx2 s[8:9], s[0:1], 96
    s_load_dwordx8 s[16:23], s[0:1], 48
    s_load_dwordx2 s[28:29], s[0:1], 80
    s_cmp_ge_u32 s2, {NWG}
    s_cbranch_scc1 L_end
    v_lshrrev_b32 v1, 6, v0
    v_and_b32 {v(vN)}, 15, v0
    v_bfe_u32 {v(vQ)}, v0, 4, 2
    v_readfirstlane_b32 {s(sW)}, v1
    v_and_b32 {v(vLane)}, 63, v0
    s_mov_b32 s10, {WSSZ}
    s_mov_b32 s11, 0x20000
    s_mov_b32 s30, 0x200000
    s_mov_b32 s31, 0x20000
    s_and_b32 {s(sX)}, s2, 7
    s_lshr_b32 {s(sJ)}, s2, 3
    v_mov_b32 {v(T+4)}, -1
    v_mov_b32 {v(T+5)}, -1
    v_mov_b32 {v(T+6)}, -1
    v_mov_b32 {v(T+7)}, -1
    v_lshlrev_b32 {v(vL8)}, 3, v0
    v_and_b32 {v(vL8)}, 0xf8, {v(vL8)}
    s_mov_b32 {s(sCnt)}, 200000
    s_mov_b32 {s(sM7FF)}, 0x7ff
    s_lshl_b32 {s(sTabLd)}, {s(sX)}, 8
    s_add_u32 {s(sTabLd)}, {s(sTabLd)}, {TABL}
    s_getreg_b32 {s(sXcc)}, hwreg(HW_REG_XCC_ID, 0, 4)
    ''')
    if cfg.force_slow: a(f's_mov_b32 {s(sXcc)}, {s(sJ)}')
    if cfg.stamps:
        a(f's_mov_b32 {s(sStampI)}, 0\nv_mov_b32 {v(vSTMP)}, 0')
        a(f's_memrealtime {s(sTS,2)}\ns_memtime {s(sTS+2,2)}\ns_waitcnt lgkmcnt(0)\nv_writelane_b32 {v(vSTMP)}, {s(sTS)}, 63\nv_writelane_b32 {v(vSTMP)}, {s(sTS+2)}, 62')
    a('''s_cmp_ge_u32 s2, 256
    s_cbranch_scc1 L_ffn''')
    if cfg.prio: a(f's_setprio 2\ns_cmp_gt_u32 {s(sW)}, 1\ns_cbranch_scc1 L_np\ns_setprio 3\nL_np:')
    main_prologue()
    main_loop()
    ffn()
    a('L_end:\ns_endpgm')
    a.raw(f'''.section .rodata,"a"
.p2align 6
.amdhsa_kernel {NAME}_kernel
  .amdhsa_next_free_vgpr 128
  .amdhsa_next_free_sgpr 96
  .amdhsa_accum_offset 128
  .amdhsa_group_segment_fixed_size 0
  .amdhsa_kernarg_size 104
  .amdhsa_user_sgpr_count 2
  .amdhsa_user_sgpr_kernarg_segment_ptr 1
  .amdhsa_system_sgpr_workgroup_id_x 1
.end_amdhsa_kernel''')
    return a.text()
if __name__=='__main__':
    out=sys.argv[1]
    for kv in sys.argv[2:]:
        k,val=kv.split('='); assert hasattr(cfg,k); setattr(cfg,k,int(val))
    open(out,'w').write(build())
    print('instrs',a.count,'nops',a.nops)
```

```python
import sys, struct
from asmlib import Asm
NAME='interleave_layers__spectral_fnet__moe_arch_mod__prompt'
def fbits(x): return '0x%08x' % struct.unpack('<I', struct.pack('<f', x))[0]

class Cfg:
    stamps=0
    tim_arg=20
    tim_y=3
    tim_h=3
    slp_g=2
    slp_l=1
    force_slow=0
    prio=1
    codepf=1
    exp=0
    dbgout=0
    dry=1
    wb=1
    fdelay=0
    gdelay=0
    late=1
    split=0
    tch=1
cfg=Cfg()

TABG=0x1000; TABGR=0x6000
TABL=0x2000; ARGR=0x800
TAB2=0x3800
SLOWF=0x4000
YHINT=0x5000
HHINT=0x6000; HHR=0x400
CLR0=0x8000
HBUF=0x8000; HR=0x1000
YBUF=0xA000
SLOT=0x10000; SLOTR=0x8000
LBASE=0x20000; PS=8448; LX=32*PS
GBASE=0x240000; GS=262144+768; GR=0x210000
STAMP=0x700000
WSSZ=0x800000
NWG=512
L_STAT=0; L_U=0x400; L_YI=0x2400; YIS=320; L_YT=0x4C00; L_DH=0x6E00; LDS_TOTAL=0x7600
L_CX=0x2400
def v(a,n=1): return f'v{a}' if n==1 else f'v[{a}:{a+n-1}]'
def s(a,n=1): return f's{a}' if n==1 else f's[{a}:{a+n-1}]'

WS='s[8:11]'; XS='s[12:15]'; OS='s[28:31]'
sW=3; sX=26; sJ=27; sIt=32; sTag=33; sFast=34; sKey=35; sMir=36; sDsc=38
sLst=39; sLld=40; sPh=41; sTabG=42; sG0=43; sG4=44; sTabSt=45; sTabLd=46; sSlot=47; sRow0=48; sRow1=49; sCnt=50
sXcc=51; sStampI=37
sK512=52
sTry=53
sEps=54
sC16=56
sSc=58
sM7FF=60; sTop=61
sQmask=62
sT=64
sTS=80
X=2; WV=10; A8=14; XA=16; B1C=20; B1S=24; B1N=28; TWC=32; TWS=36; A2R=40; A2I=44; YC=48; YS=52
AD=56; BC=58
vXoff=72; vStW=73; vStR=74; vUW=75; vUR=76; vLst=77; vLld=78; vLldM=79; vYIW=80; vYIR=81; vYW=82; vYR=83; vGst=84; vGld=85
vSc0=86; vL8=88; vInv=89; vN=90; vQ=91; vSTMP=1; vLane=92; vTG=93
LNP=94; MM=98; RS2=100
T=102
class Asm2(Asm):
    def __call__(self, text):
        parts=text.split(';@F')
        for i,p in enumerate(parts):
            if i: fstamp()
            Asm.__call__(self,p)
a=Asm2()
def poll_branch(lbl, sleep=1, pre='', giveup=None, skip=False, mask=False):
    k=a.lines.index(lbl+':')
    if mask:
        pre+='\ns_mov_b64 exec, vcc'; skip=True
        k2=next(i for i in range(k,len(a.lines)) if 's_waitcnt vmcnt(0)' in a.lines[i])
        k3=max(i for i in range(k,k2) if 'buffer_load' in a.lines[i])
        a.lines.insert(k3+1,'    s_mov_b64 exec, -1')
    if a.lines[k-1].strip().startswith(('s_branch','s_endpgm')): skip=False
    a(f's_cbranch_vccnz {lbl}_r ;!nd')
    st=[]
    if skip: st.append(f'    s_branch {lbl}')
    st.append(f'{lbl}_r:')
    if giveup: st+= [f'    s_sub_u32 {s(sTry)}, {s(sTry)}, 1', f'    s_cbranch_scc1 {giveup}']
    else: st+= [f'    s_sub_u32 {s(sCnt)}, {s(sCnt)}, 1', '    s_cbranch_scc1 L_end']
    st+= ['    '+x.strip() for x in pre.split('\n') if x.strip()]
    if sleep: st.append(f'    s_sleep {sleep}')
    a.lines[k:k]=st
def fstamp():
    if cfg.stamps==2: stamp()
def stamp():
    if not cfg.stamps: return
    a(f'''{'s_memtime' if cfg.stamps==2 else 's_memrealtime'} {s(sTS,2)}
    s_waitcnt lgkmcnt(0)
    s_mov_b32 m0, {s(sStampI)}
    s_add_u32 {s(sStampI)}, {s(sStampI)}, 1
    v_writelane_b32 {v(vSTMP)}, {s(sTS)}, m0''')
def dump_stamps():
    if not cfg.stamps: return
    a(f's_memrealtime {s(sTS,2)}\ns_memtime {s(sTS+2,2)}\ns_waitcnt lgkmcnt(0)\nv_writelane_b32 {v(vSTMP)}, {s(sTS)}, 61\nv_writelane_b32 {v(vSTMP)}, {s(sTS+2)}, 60')
    a(f'''s_lshl_b32 {s(sT)}, s2, 11
    s_lshl_b32 {s(sT+1)}, {s(sW)}, 8
    s_add_u32 {s(sT)}, {s(sT)}, {s(sT+1)}
    s_add_u32 {s(sT)}, {s(sT)}, {STAMP}
    v_lshlrev_b32 {v(vLane)}, 2, {v(vLane)}
    buffer_store_dword {v(vSTMP)}, {v(vLane)}, {WS}, {s(sT)} offen''')
def maxchk(regs, t):
    regs=list(regs)
    a(f'v_max3_u32 {v(t)}, {v(regs[0])}, {v(regs[1])}, {v(regs[2])}')
    rest=regs[3:]
    while len(rest)>=2:
        a(f'v_max3_u32 {v(t)}, {v(t)}, {v(rest[0])}, {v(rest[1])}'); rest=rest[2:]
    if rest: a(f'v_max_u32 {v(t)}, {v(t)}, {v(rest[0])}')
    a(f'v_cmp_eq_u32 vcc, -1, {v(t)}')
def phchk(regs, t):
    regs=list(regs)
    a(f'v_bitop3_b32 {v(t)}, {v(regs[0])}, {v(regs[1])}, {s(sPh)} bitop3:0x7e')
    for r in regs[2:]: a(f'v_bitop3_b32 {v(t)}, {v(t)}, {v(r)}, {s(sPh)} bitop3:0xf6')
    a(f'v_and_b32 {v(t)}, 1, {v(t)}\nv_cmp_ne_u32 vcc, 0, {v(t)}')
def tag4chk(r):
    for k in range(4): a(f'v_xor_b32 {v(r+k)}, {s(sTag)}, {v(r+k)}')
    a(f'v_or3_b32 {v(r)}, {v(r)}, {v(r+1)}, {v(r+2)}\nv_or_b32 {v(r)}, {v(r)}, {v(r+3)}\nv_cmp_ne_u32 vcc, 0, {v(r)}')
DPP='row_mask:0xf bank_mask:0xf'

def fft_core(xr, xi, U, V, F, P, fill1='', fill2=''):
    Ur,Ui=U,U+4
    a(f'v_mfma_f32_16x16x32_f16 {v(Ur,4)}, {v(xr,4)}, {v(B1C,4)}, 0')
    a(f'v_mfma_f32_16x16x32_f16 {v(Ui,4)}, {v(xr,4)}, {v(B1N,4)}, 0')
    if xi is not None:
        a(f'v_mfma_f32_16x16x32_f16 {v(Ur,4)}, {v(xi,4)}, {v(B1S,4)}, {v(Ur,4)}')
        a(f'v_mfma_f32_16x16x32_f16 {v(Ui,4)}, {v(xi,4)}, {v(B1C,4)}, {v(Ui,4)}')
    a(fill1)
    Vr,Vi=V,V+4
    for h in (0,2):
        a(f'v_pk_mul_f32 {v(Vi+h,2)}, {v(Ur+h,2)}, {v(TWS+h,2)}')
    for h in (0,2):
        a(f'v_pk_mul_f32 {v(Vr+h,2)}, {v(Ui+h,2)}, {v(TWS+h,2)}')
    for h in (0,2):
        a(f'v_pk_fma_f32 {v(Vr+h,2)}, {v(Ur+h,2)}, {v(TWC+h,2)}, {v(Vr+h,2)}')
        a(f'v_pk_fma_f32 {v(Vi+h,2)}, {v(Ui+h,2)}, {v(TWC+h,2)}, {v(Vi+h,2)} neg_lo:[0,0,1] neg_hi:[0,0,1]')
    for r in range(4): a(f'v_cvt_pk_f16_f32 {v(P+r)}, {v(Vr+r)}, {v(Vi+r)}')
    a(f'v_mfma_f32_16x16x32_f16 {v(F,4)}, {v(A2R,4)}, {v(P,4)}, 0')
    a(f'v_mfma_f32_16x16x32_f16 {v(F+4,4)}, {v(A2I,4)}, {v(P,4)}, 0')
    a(fill2)
    for r in range(4): a(f'v_cvt_pk_f16_f32 {v(P+r)}, {v(F+r)}, {v(F+4+r)}')

SENT=T+4

def main_prologue():
    t=T
    X0=BC
    a(f'''
    s_lshl_b32 {s(sRow0)}, s2, 10
    s_add_u32 {s(sRow1)}, {s(sRow0)}, 0x40000
    s_lshl_b32 {s(sT)}, {s(sW)}, 7
    v_lshl_add_u32 {v(vUW)}, {v(vN)}, 3, {s(sT)}                 ; 128w+8n
    v_lshl_add_u32 {v(vXoff)}, {v(vQ)}, 19, {v(vUW)}
    s_mov_b32 s14, 0x200000
    s_mov_b32 s15, 0x20000
    s_mul_i32 {s(sLld)}, {s(sX)}, {LX}
    s_add_u32 {s(sLld)}, {s(sLld)}, {LBASE}
    s_mul_i32 {s(sLst)}, {s(sJ)}, {PS}
    s_add_u32 {s(sLst)}, {s(sLst)}, {s(sLld)}
    v_lshlrev_b32 {v(t)}, 4, v0
    v_lshrrev_b32 {v(t+1)}, 4, v0
    s_waitcnt lgkmcnt(0)
    buffer_load_dwordx2 {v(X0,2)}, {v(vXoff)}, {XS}, {s(sRow0)} offen
    buffer_load_dwordx2 {v(X0+2,2)}, {v(vXoff)}, {XS}, {s(sRow1)} offen
    global_load_dwordx2 {v(X0+4,2)}, {v(vUW)}, s[16:17]
    buffer_load_dword {v(X0+6)}, off, {WS}, 0 sc1
    ''')
    tabt=f'buffer_load_dword {v(X0+7)}, {v(vL8)}, {WS}, {s(sTabLd)} offen sc1'
    ltch=f'buffer_load_dwordx4 {v(X0+8,4)}, {v(t)}, {WS}, {s(sLst)} offen sc1'
    lclr=f'buffer_store_dwordx4 {v(SENT,4)}, {v(t)}, {WS}, {s(sLst)} offen'
    if cfg.tch==0: a(tabt+'\n'+ltch+'\n'+lclr)
    if cfg.tch==1: a(tabt+'\n'+ltch)
    if cfg.tch==2: a(tabt+'\n'+lclr+'\n'+ltch)
    if cfg.tch==3: a(ltch.replace(' sc1','')+'\n'+ltch.replace(' sc1','')+'\n'+lclr)
    a(f'''
    s_mov_b32 {s(sG0)}, {GBASE}
    s_mul_i32 {s(sT)}, {s(sX)}, {GS}
    s_add_u32 {s(sT+2)}, {s(sJ)}, 24
    s_and_b32 {s(sT+2)}, {s(sT+2)}, 24
    s_lshl_b32 {s(sT+2)}, {s(sT+2)}, 13
    s_add_u32 {s(sT)}, {s(sT)}, {s(sT+2)}
    s_and_b32 {s(sT+2)}, {s(sJ)}, 7
    s_cmp_lt_u32 {s(sJ)}, 8
    s_cselect_b32 {s(sT+3)}, 7, 8
    s_cselect_b32 {s(sT+4)}, 112, 0
    s_lshl_b32 {s(sT+2)}, {s(sT+2)}, {s(sT+3)}
    s_add_u32 {s(sT)}, {s(sT)}, {s(sT+2)}
    v_lshlrev_b32 {v(t+2)}, 4, {v(vN)}
    v_lshl_add_u32 {v(vGst)}, {v(t+1)}, 11, {v(t+2)}
    v_and_b32 {v(t+3)}, 8, {v(vN)}
    v_mad_u32_u24 {v(vGst)}, {v(t+3)}, {s(sT+4)}, {v(vGst)}
    v_add_u32 {v(vGst)}, {s(sT)}, {v(vGst)}
    buffer_store_dwordx4 {v(SENT,4)}, {v(vGst)}, {WS}, {s(sG0)} offen sc1
    s_lshl_b32 {s(sT)}, s2, 13
    s_add_u32 {s(sT)}, {s(sT)}, {CLR0}
    s_cmp_lt_u32 s2, 12
    s_cselect_b32 {s(sT)}, {s(sT)}, {WSSZ}
    buffer_store_dwordx4 {v(SENT,4)}, {v(t)}, {WS}, {s(sT)} offen sc1
    ''')
    c=t+8; co,si=c+8,c+12
    a(f'''
    s_lshr_b32 {s(sT)}, {s(sJ)}, 2
    s_and_b32 {s(sT)}, {s(sT)}, 6                 ; 2*(j>>3)
    s_lshl_b32 {s(sT+1)}, {s(sW)}, 2
    s_and_b32 {s(sT+1)}, {s(sT+1)}, 8             ; 2*4*((w>>1)&1)
    s_cmp_lt_u32 {s(sJ)}, 8
    s_cselect_b32 {s(sT)}, {s(sT+1)}, {s(sT)}
    s_lshl_b32 {s(sT+1)}, {s(sW)}, 4
    s_and_b32 {s(sT+1)}, {s(sT+1)}, 16            ; 16*(w&1)
    s_cmp_ge_u32 {s(sW)}, 4
    s_cselect_b32 {s(sT+2)}, {s(sT+1)}, 0         ; 16k
    s_cselect_b32 {s(sT)}, {s(sT)}, 0
    s_cmp_eq_u32 {s(sW)}, 3
    s_cselect_b32 {s(sT)}, 16, {s(sT)}
    s_lshl_b32 {s(sT+3)}, {s(sW)}, 2
    s_lshr_b32 {s(sT+3)}, 0x44440054, {s(sT+3)}
    s_and_b32 {s(sT+3)}, {s(sT+3)}, 15            ; log2 A
    v_lshlrev_b32 {v(c)}, {s(sT+3)}, {v(vN)}
    v_add_u32 {v(c)}, {s(sT)}, {v(c)}
    v_lshl_add_u32 {v(c+1)}, {v(vQ)}, 2, {s(sT+2)}
    v_cvt_f32_u32 {v(c)}, {v(c)}
    v_cvt_f32_u32 {v(c+1)}, {v(c+1)}
    s_mov_b32 {s(sK512)}, {fbits(1/512)}
    v_mul_f32 {v(c)}, {s(sK512)}, {v(c)}
    v_mul_f32 {v(c+4)}, {v(c+1)}, {v(c)}
    v_add_f32 {v(c+5)}, {v(c+4)}, {v(c)}
    v_add_f32 {v(c+6)}, {v(c+5)}, {v(c)}
    v_add_f32 {v(c+7)}, {v(c+6)}, {v(c)}
    ''')
    fill=[f's_mov_b32 {s(sEps)}, {fbits(1e-5)}', f's_mov_b32 {s(sEps+1)}, {fbits(1e-5)}', f's_mov_b32 {s(sC16)}, {fbits(1/16)}', f's_mov_b32 {s(sC16+1)}, {fbits(1/16)}',
          f's_mov_b32 {s(sTop)}, 0x80000000', f's_mov_b32 {s(sQmask)}, 0x11111111', f's_mov_b32 {s(sQmask+1)}, 0x11111111', f's_mov_b32 {s(sG4)}, {GBASE+4*GS}']
    for r in range(4):
        a(f'v_cos_f32 {v(co+r)}, {v(c+4+r)}'); a(fill[2*r])
        a(f'v_sin_f32 {v(si+r)}, {v(c+4+r)}'); a(fill[2*r+1])
    a(f'''
    s_lshl_b32 {s(sT)}, {s(sW)}, 11
    s_add_u32 {s(sT)}, {s(sT)}, {L_CX}
    v_lshlrev_b32 {v(c+2)}, 4, {v(vLane)}
    v_add_u32 {v(c+3)}, {s(sT)}, {v(c+2)}
    s_and_b32 {s(sT)}, {s(sW)}, 6
    s_cmp_eq_u32 {s(sT)}, 2
    s_cbranch_scc1 L_cw
    s_cmp_eq_u32 {s(sW)}, 1
    s_cbranch_scc1 L_cri
    v_cvt_pk_f16_f32 {v(co)}, {v(co)}, {v(co+1)}
    v_cvt_pk_f16_f32 {v(co+1)}, {v(co+2)}, {v(co+3)}
    v_cvt_pk_f16_f32 {v(co+2)}, {v(si)}, {v(si+1)}
    v_cvt_pk_f16_f32 {v(co+3)}, {v(si+2)}, {v(si+3)}
    s_branch L_cw
    L_cri:
    ''')
    for r in range(4):
        a(f'v_cvt_pk_f16_f32 {v(c+4)}, {v(co+r)}, {v(si+r)}')
        a(f'v_cvt_pk_f16_f32 {v(si+r)}, -{v(si+r)}, {v(co+r)}')
        a(f'v_mov_b32 {v(co+r)}, {v(c+4)}')
    a(f'''
    L_cw:
    ds_write_b128 {v(c+3)}, {v(co,4)}
    ds_write_b128 {v(c+3)}, {v(si,4)} offset:1024
    v_lshrrev_b32 {v(c+4)}, 2, {v(vN)}
    v_and_b32 {v(c+5)}, 2, {v(vN)}
    v_and_b32 {v(c+6)}, 14, {v(vN)}
    v_cmp_eq_u32 vcc, 2, {v(c+6)}
    v_mul_u32_u24 {v(vYIR)}, {YIS}, {v(c+4)}
    v_lshlrev_b32 {v(vStR)}, 8, {v(vQ)}
    v_cndmask_b32 {v(c+4)}, {v(c+4)}, 4, vcc
    v_cndmask_b32 {v(c+5)}, {v(c+5)}, 0, vcc
    v_mul_u32_u24 {v(c+6)}, {v(c+4)}, {v(vQ)}
    v_lshl_add_u32 {v(c+6)}, {v(c+6)}, 1, {v(c+5)}
    v_add_u32 {v(c+7)}, {v(c+6)}, {v(c+4)}
    v_cvt_f32_u32 {v(c+6)}, {v(c+6)}
    v_cvt_f32_u32 {v(c+7)}, {v(c+7)}
    v_mul_f32 {v(c+6)}, 0x3e000000, {v(c+6)}
    v_mul_f32 {v(c+7)}, 0x3e000000, {v(c+7)}
    v_cos_f32 {v(c+6)}, {v(c+6)}
    v_cos_f32 {v(c+7)}, {v(c+7)}
    v_and_b32 {v(c+5)}, 1, {v(vN)}
    v_cmp_eq_u32 vcc, 0, {v(c+5)}
    v_cvt_pk_f16_f32 {v(c+6)}, {v(c+6)}, {v(c+7)}
    v_mov_b32 {v(c+5)}, 0x80008000
    v_cndmask_b32 {v(A8)}, 0, {v(c+6)}, vcc
    v_cndmask_b32 {v(A8+1)}, {v(c+6)}, 0, vcc
    v_cndmask_b32 {v(c+5)}, {v(c+5)}, 0, vcc
    s_lshl_b32 {s(sT+1)}, {s(sT+1)}, 7            ; h*2048
    v_add_u32 {v(c+6)}, {s(sT+1)}, {v(c+2)}
    s_lshl_b32 {s(sT+2)}, {s(sW)}, 11
    s_and_b32 {s(sT+2)}, {s(sT+2)}, 4096          ; ((w>>1)&1)*4096
    v_add_u32 {v(c+7)}, {s(sT+2)}, {v(c+2)}
    s_waitcnt lgkmcnt(0)
    s_barrier
    ds_read_b128 {v(B1N,4)}, {v(c+2)} offset:{L_CX}
    ds_read_b128 {v(co,4)}, {v(c+7)} offset:{L_CX+4*2048}
    ds_read_b128 {v(si,4)}, {v(c+7)} offset:{L_CX+5*2048}
    ds_read_b128 {v(A2R,4)}, {v(c+2)} offset:{L_CX+2048}
    ds_read_b128 {v(A2I,4)}, {v(c+2)} offset:{L_CX+2048+1024}
    ds_read_b128 {v(TWC,4)}, {v(c+6)} offset:{L_CX+4096}
    ds_read_b128 {v(TWS,4)}, {v(c+6)} offset:{L_CX+4096+1024}
    v_and_b32 {v(c+4)}, 4, {v(vN)}
    s_lshl_b32 {s(sT)}, {s(sW)}, 2
    v_lshl_add_u32 {v(vStW)}, {v(t+3)}, 2, {v(vStR)}
    v_lshl_add_u32 {v(vStW)}, {v(c+4)}, 4, {v(vStW)}
    v_add_u32 {v(vStW)}, {s(sT)}, {v(vStW)}
    v_and_b32 {v(c+4)}, 7, {v(vN)}
    v_lshl_add_u32 {v(vStR)}, {v(c+4)}, 5, {v(vStR)}
    v_lshl_add_u32 {v(vUW)}, {v(vQ)}, 11, {v(vUW)}
    v_add_u32 {v(vUW)}, {L_U}, {v(vUW)}
    s_lshr_b32 {s(sT)}, {s(sW)}, 1
    s_lshl_b32 {s(sT)}, {s(sT)}, 11
    s_add_u32 {s(sT+2)}, {s(sT)}, {L_U}
    v_lshl_add_u32 {v(vUR)}, {v(vLane)}, 3, {s(sT+2)}
    ; vLst = w'*2048 + 512q + 64h + 4n
    s_lshr_b32 {s(sT+2)}, {s(sT+1)}, 5
    s_add_u32 {s(sT)}, {s(sT)}, {s(sT+2)}
    v_lshl_add_u32 {v(vLst)}, {v(vQ)}, 9, {s(sT)}
    v_lshl_add_u32 {v(vLst)}, {v(vN)}, 2, {v(vLst)}
    s_lshl_b32 {s(sT)}, {s(sJ)}, 3
    s_add_u32 {s(sTabSt)}, {s(sTabLd)}, {s(sT)}
    s_lshl_b32 {s(sT+3)}, {s(sW)}, 31             ; h sign
    s_lshl_b32 {s(sT+4)}, {s(sW)}, 29
    s_and_b32 {s(sT+4)}, {s(sT+4)}, {s(sTop)}
    s_mov_b32 {s(sT+5)}, 0x80008000
    s_mov_b32 {s(sIt)}, 0
    s_mov_b32 {s(sFast)}, 1
    s_mov_b32 {s(sPh)}, 0
    s_mov_b32 {s(sSlot)}, {WSSZ}
    s_mov_b32 {s(sTry)}, 12
    s_waitcnt lgkmcnt(4)
    v_xor_b32 {v(B1C)}, {s(sT+3)}, {v(B1N)}
    v_xor_b32 {v(B1C+1)}, {s(sT+3)}, {v(B1N+1)}
    v_xor_b32 {v(B1S)}, {s(sT+3)}, {v(B1N+2)}
    v_xor_b32 {v(B1S+1)}, {s(sT+3)}, {v(B1N+3)}
    v_xor_b32 {v(B1C+2)}, {v(B1C)}, {v(c+5)}
    v_xor_b32 {v(B1C+3)}, {v(B1C+1)}, {v(c+5)}
    v_xor_b32 {v(B1S+2)}, {v(B1S)}, {v(c+5)}
    v_xor_b32 {v(B1S+3)}, {v(B1S+1)}, {v(c+5)}
    ''')
    for r in range(4): a(f'v_xor_b32 {v(B1N+r)}, {s(sT+5)}, {v(B1S+r)}')
    for k,src in ((0,co),(1,si)):
        for r in range(2):
            a(f'v_xor_b32 {v(YC+2*k+r)}, {s(sT+4)}, {v(src+r)}')
            a(f'v_xor_b32 {v(YS+2*k+r)}, {s(sT+4)}, {v(src+2+r)}')
    a(f'''
    s_and_b32 {s(sT+1)}, {s(sW)}, 3
    s_lshl_b32 {s(sT+1)}, {s(sT+1)}, 6            ; 64cb
    s_lshr_b32 {s(sT)}, {s(sW)}, 2
    s_mul_i32 {s(sT)}, {s(sT)}, {16*272}
    s_add_u32 {s(sT)}, {s(sT)}, {s(sT+1)}
    s_add_u32 {s(sT)}, {s(sT)}, {L_YT}
    v_mul_u32_u24 {v(vYW)}, 272, {v(vN)}
    v_lshl_add_u32 {v(vYW)}, {v(vQ)}, 4, {v(vYW)}
    v_add_u32 {v(vYW)}, {s(sT)}, {v(vYW)}
    v_mul_u32_u24 {v(vYR)}, 272, {v(t+1)}
    v_add_u32 {v(vYR)}, {v(vYR)}, {v(t+2)}
    v_add_u32 {v(vYR)}, {L_YT}, {v(vYR)}
    s_add_u32 {s(sT+1)}, {s(sT+1)}, {L_YI}
    v_mul_u32_u24 {v(c+4)}, {4*YIS}, {v(vQ)}
    v_and_b32 {v(c+6)}, 0x30, {v(t+2)}
    v_add3_u32 {v(vYIR)}, {v(vYIR)}, {v(c+4)}, {v(c+6)}
    v_add_u32 {v(vYIR)}, {s(sT+1)}, {v(vYIR)}
    s_cmp_lt_u32 {s(sJ)}, 8
    s_cbranch_scc1 L_aself
    v_mul_u32_u24 {v(vLld)}, {PS}, {v(t+1)}
    v_mul_u32_u24 {v(vYIW)}, {YIS}, {v(t+1)}
    s_lshl_b32 {s(sT)}, {s(sJ)}, 8
    v_add3_u32 {v(vLld)}, {v(vLld)}, {v(t+2)}, {s(sT)}
    v_add_u32 {v(vYIW)}, {v(vYIW)}, {v(t+2)}
    v_mov_b32 {v(vLldM)}, 0
    s_branch L_adone
    L_aself:
    ; s2=(w>>1)*8+(l>>3), u=l&7, which=w&1
    s_lshl_b32 {s(sT)}, {s(sW)}, 2
    s_and_b32 {s(sT)}, {s(sT)}, 24
    v_lshrrev_b32 {v(c+4)}, 3, {v(vLane)}
    v_add_u32 {v(c+4)}, {s(sT)}, {v(c+4)}
    v_and_b32 {v(c+6)}, 0x70, {v(t+2)}
    v_mul_u32_u24 {v(vLldM)}, {PS}, {v(c+4)}
    v_mul_u32_u24 {v(vYIW)}, {YIS}, {v(c+4)}
    s_lshl_b32 {s(sT)}, {s(sJ)}, 7
    s_add_u32 {s(sT+1)}, {s(sT)}, 4
    s_sub_u32 {s(sT)}, {508*4}, {s(sT)}
    v_add3_u32 {v(vLld)}, {v(vLldM)}, {v(c+6)}, {s(sT+1)}
    v_sub_u32 {v(vLldM)}, {v(vLldM)}, {v(c+6)}
    v_add_u32 {v(vLldM)}, {s(sT)}, {v(vLldM)}
    s_lshr_b32 {s(sT)}, {s(sT+3)}, 24
    v_add3_u32 {v(vYIW)}, {v(vYIW)}, {v(c+6)}, {s(sT)}
    L_adone:
    v_add_u32 {v(vYIW)}, {L_YI}, {v(vYIW)}
    s_waitcnt vmcnt({4 if cfg.late else 2 if cfg.tch==1 else 5})
    {lclr if cfg.tch==1 and not cfg.late else ''}
    v_readfirstlane_b32 {s(sTag)}, {v(X0+6)}
    ''')
    for rho in (0,1):
        for k in (0,1):
            src=X0+2*rho+k
            a(f'v_lshlrev_b32 {v(X+4*k+rho)}, 16, {v(src)}')
            a(f'v_and_b32 {v(X+4*k+2+rho)}, 0xffff0000, {v(src)}')
    for k in (0,1):
        a(f'v_lshlrev_b32 {v(WV+2*k)}, 16, {v(X0+4+k)}')
        a(f'v_and_b32 {v(WV+2*k+1)}, 0xffff0000, {v(X0+4+k)}')
    a(f's_add_u32 {s(sTag)}, {s(sTag)}, 1')

def xin_consts(c):
    a(f'''
    s_and_b32 {s(sT)}, {s(sX)}, 3                ; 0 => self
    s_lshr_b32 {s(sT+1)}, {s(sW)}, 2
    s_lshr_b32 {s(sT+2)}, {s(sX)}, 2
    s_mov_b32 {s(sSc)}, {fbits(16.0)}
    s_cmp_eq_u32 {s(sT)}, 0
    s_cselect_b32 {s(sMir)}, {s(sT+1)}, {s(sT+2)}
    s_cselect_b32 {s(sSc)}, {fbits(8.0)}, {s(sSc)}
    s_cselect_b32 {s(sDsc)}, {fbits(1/8)}, {s(sC16)}
    s_cselect_b32 {s(sT+3)}, -4, 0
    s_mov_b32 {s(sSc+1)}, {s(sSc)}
    s_sub_u32 {s(sT+4)}, 256, s2
    s_and_b32 {s(sT+4)}, {s(sT+4)}, 255
    s_cmp_eq_u32 {s(sMir)}, 0
    s_cselect_b32 {s(sT+4)}, s2, {s(sT+4)}       ; source g
    s_cselect_b32 {s(sT+5)}, 16, -16
    s_cselect_b32 {s(sT+6)}, 0, {509*4}
    s_cselect_b32 {s(sT+7)}, 1.0, -1.0
    s_add_u32 {s(sT+3)}, {s(sT+3)}, {s(sT+6)}
    s_mul_i32 {s(sT+6)}, {s(sT+5)}, {s(sW)}
    s_lshl_b32 {s(sT+6)}, {s(sT+6)}, 4
    s_add_u32 {s(sT+3)}, {s(sT+3)}, {s(sT+6)}
    s_lshr_b32 {s(sT+6)}, {s(sT+4)}, 3
    s_lshl_b32 {s(sT+6)}, {s(sT+6)}, 11
    s_add_u32 {s(sT+3)}, {s(sT+3)}, {s(sT+6)}
    s_add_u32 {s(sT+6)}, {s(sT+4)}, 3
    s_and_b32 {s(sT+6)}, {s(sT+6)}, 3
    s_lshl_b32 {s(sT+6)}, {s(sT+6)}, 16
    s_add_u32 {s(sT+3)}, {s(sT+3)}, {s(sT+6)}
    s_and_b32 {s(sT+6)}, {s(sT+4)}, 4
    s_lshl_b32 {s(sT+6)}, {s(sT+6)}, 8
    s_add_u32 {s(sT+3)}, {s(sT+3)}, {s(sT+6)}
    v_mul_i32_i24 {v(vGld)}, {s(sT+5)}, {v(vN)}
    v_mul_u32_u24 {v(c+4)}, {GS}, {v(vQ)}
    v_add3_u32 {v(vGld)}, {v(vGld)}, {v(c+4)}, {s(sT+3)}
    v_lshrrev_b32 {v(c+4)}, 1, {v(vN)}
    v_and_b32 {v(c+4)}, 6, {v(c+4)}
    v_and_or_b32 {v(c+4)}, {v(vN)}, 1, {v(c+4)}
    v_lshl_add_u32 {v(AD)}, {v(c+4)}, 8, s2
    v_cvt_f32_u32 {v(c+4)}, {v(AD)}
    v_cvt_f32_u32 {v(c+5)}, {v(vQ)}
    v_mul_f32 {v(c+4)}, {fbits(1/2048)}, {v(c+4)}
    v_mul_f32 {v(c+4)}, {s(sT+7)}, {v(c+4)}
    v_mul_f32 {v(c+5)}, {v(c+4)}, {v(c+5)}
    v_fma_f32 {v(c+6)}, {v(c+4)}, 4.0, {v(c+5)}
    v_cos_f32 {v(c+7)}, {v(c+5)}
    v_sin_f32 {v(c+8)}, {v(c+5)}
    v_cos_f32 {v(c+9)}, {v(c+6)}
    v_sin_f32 {v(c+10)}, {v(c+6)}
    v_bfe_u32 {v(c+4)}, {v(vN)}, 1, 1
    v_cmp_eq_u32 vcc, {s(sMir)}, {v(c+4)}
    v_cvt_pk_f16_f32 {v(c+7)}, {v(c+7)}, {v(c+8)}
    v_cvt_pk_f16_f32 {v(c+9)}, {v(c+9)}, {v(c+10)}
    v_cndmask_b32 {v(XA)}, 0, {v(c+7)}, vcc
    v_cndmask_b32 {v(XA+1)}, {v(c+7)}, 0, vcc
    v_cndmask_b32 {v(XA+2)}, 0, {v(c+9)}, vcc
    v_cndmask_b32 {v(XA+3)}, {v(c+9)}, 0, vcc
    v_and_b32 {v(c+4)}, 0x1cf, v0
    v_cmp_eq_u32 vcc, 0, {v(c+4)}
    v_mov_b32 {v(c+5)}, {s(sSc)}
    s_sub_u32 {s(sT)}, 2047, s2
    v_lshlrev_b32 {v(vInv)}, 9, {v(vQ)}
    v_cndmask_b32 {v(vSc0)}, {v(c+5)}, 0, vcc
    v_cndmask_b32 {v(vSc0+1)}, {v(c+5)}, 0, vcc
    v_sub_u32 {v(vInv)}, {s(sT)}, {v(vInv)}
    s_lshl_b32 {s(sSlot)}, {s(sX)}, 12
    s_add_u32 {s(sSlot)}, {s(sSlot)}, {SLOT}
    s_lshl_b32 {s(sTabG)}, {s(sW)}, 9
    s_add_u32 {s(sTabG)}, {s(sTabG)}, {TABG+TABGR}
    s_mov_b32 {s(sPh)}, -1
    ''')

def main_loop():
    t=T
    S1,S2,S3=t,t+2,t+4
    a('L_top:')
    stamp()
    a(f'''
    v_pk_add_f32 {v(S1,2)}, {v(X,2)}, {v(X+2,2)}
    v_pk_add_f32 {v(t+6,2)}, {v(X+4,2)}, {v(X+6,2)}
    v_pk_mul_f32 {v(S2,2)}, {v(X,2)}, {v(X,2)}
    v_pk_mul_f32 {v(S3,2)}, {v(X,2)}, {v(WV,2)} op_sel:[0,0] op_sel_hi:[1,0]
    v_pk_add_f32 {v(S1,2)}, {v(S1,2)}, {v(t+6,2)}
    v_pk_fma_f32 {v(S2,2)}, {v(X+2,2)}, {v(X+2,2)}, {v(S2,2)}
    v_pk_fma_f32 {v(S3,2)}, {v(X+2,2)}, {v(WV,2)}, {v(S3,2)} op_sel:[0,1,0] op_sel_hi:[1,1,1]
    v_add_f32_dpp {v(S1)}, {v(S1)}, {v(S1)} row_ror:8 row_mask:0xf bank_mask:0x3
    v_pk_fma_f32 {v(S2,2)}, {v(X+4,2)}, {v(X+4,2)}, {v(S2,2)}
    v_pk_fma_f32 {v(S3,2)}, {v(X+4,2)}, {v(WV+2,2)}, {v(S3,2)} op_sel:[0,0,0] op_sel_hi:[1,0,1]
    v_add_f32_dpp {v(S1)}, {v(S1+1)}, {v(S1+1)} row_ror:8 row_mask:0xf bank_mask:0xc
    v_pk_fma_f32 {v(S2,2)}, {v(X+6,2)}, {v(X+6,2)}, {v(S2,2)}
    v_pk_fma_f32 {v(S3,2)}, {v(X+6,2)}, {v(WV+2,2)}, {v(S3,2)} op_sel:[0,1,0] op_sel_hi:[1,1,1]
    s_cmp_eq_u32 {s(sIt)}, 0
    s_cbranch_scc1 L_s3w
    L_s3ok:
    v_add_f32_dpp {v(S1)}, {v(S1)}, {v(S1)} row_half_mirror row_mask:0xf bank_mask:0x5
    v_add_f32_dpp {v(S2)}, {v(S2)}, {v(S2)} row_ror:8 row_mask:0xf bank_mask:0x3
    v_add_f32_dpp {v(S3)}, {v(S3)}, {v(S3)} row_ror:8 row_mask:0xf bank_mask:0x3
    v_add_f32_dpp {v(S2)}, {v(S2+1)}, {v(S2+1)} row_ror:8 row_mask:0xf bank_mask:0xc
    v_add_f32_dpp {v(S3)}, {v(S3+1)}, {v(S3+1)} row_ror:8 row_mask:0xf bank_mask:0xc
    v_add_f32_dpp {v(S1)}, {v(S2)}, {v(S2)} row_half_mirror row_mask:0xf bank_mask:0xa
    v_add_f32_dpp {v(S3)}, {v(S3)}, {v(S3)} row_half_mirror {DPP}
    v_add_f32_dpp {v(S1)}, {v(S1)}, {v(S1)} quad_perm:[1,0,3,2] {DPP}
    v_add_f32_dpp {v(S3)}, {v(S3)}, {v(S3)} quad_perm:[1,0,3,2] {DPP}
    v_add_f32_dpp {v(S1)}, {v(S1)}, {v(S1)} quad_perm:[2,3,0,1] {DPP}
    v_add_f32_dpp {v(S3)}, {v(S3)}, {v(S3)} quad_perm:[2,3,0,1] {DPP}
    s_mov_b64 exec, {s(sQmask,2)}
    ds_write2_b32 {v(vStW)}, {v(S1)}, {v(S3)} offset0:0 offset1:32
    s_mov_b64 exec, -1
    ;@F
    s_waitcnt {'' if cfg.late else 'vmcnt(0)' if cfg.tch==1 else 'vmcnt(2)'} lgkmcnt(0)
    s_barrier
    ;@F
    ds_read_b128 {v(t,4)}, {v(vStR)}
    ds_read_b128 {v(t+4,4)}, {v(vStR)} offset:16
    s_waitcnt lgkmcnt(0)
    v_pk_add_f32 {v(t,2)}, {v(t,2)}, {v(t+2,2)}
    v_pk_add_f32 {v(t+4,2)}, {v(t+4,2)}, {v(t+6,2)}
    v_pk_add_f32 {v(t,2)}, {v(t,2)}, {v(t+4,2)}
    v_add_f32 {v(t)}, {v(t)}, {v(t+1)}
    v_mul_f32 {v(t+7)}, {s(sK512)}, {v(t)}
    ''')
    VAR,RS,CC,NM=t+8,t+10,t+12,t+14
    K=t+16
    a(f'''
    v_mov_b32_dpp {v(MM)}, {v(t+7)} row_newbcast:0 {DPP}
    v_mov_b32_dpp {v(MM+1)}, {v(t+7)} row_newbcast:1 {DPP}
    v_mov_b32_dpp {v(S2)}, {v(t+7)} row_newbcast:2 {DPP}
    v_mov_b32_dpp {v(S2+1)}, {v(t+7)} row_newbcast:3 {DPP}
    v_mov_b32_dpp {v(S3)}, {v(t+7)} row_newbcast:4 {DPP}
    v_pk_fma_f32 {v(VAR,2)}, {v(MM,2)}, {v(MM,2)}, {v(S2,2)} neg_lo:[1,0,0] neg_hi:[1,0,0]
    v_mov_b32_dpp {v(S3+1)}, {v(t+7)} row_newbcast:5 {DPP}
    v_pk_add_f32 {v(S1,2)}, {v(VAR,2)}, {s(sEps,2)}
    s_cmp_eq_u32 {s(sIt)}, 0
    v_rsq_f32_e64 {v(RS)}, |{v(S1)}|
    v_rsq_f32_e64 {v(RS+1)}, |{v(S1+1)}|
    s_cbranch_scc1 L_it0 ;!nd
    v_pk_mul_f32 {v(S3,2)}, {v(S3,2)}, {v(RS,2)}
    v_add_u32 {v(K+2)}, 0xffffff00, {v(vInv)}
    v_ashrrev_i32 {v(K)}, 31, {v(S3)}
    v_ashrrev_i32 {v(K+1)}, 31, {v(S3+1)}
    v_bitop3_b32 {v(K)}, {v(S3)}, {v(K)}, {s(sTop)} bitop3:0x1e
    v_bitop3_b32 {v(K+1)}, {v(S3+1)}, {v(K+1)}, {s(sTop)} bitop3:0x1e
    v_bfi_b32 {v(K)}, {s(sM7FF)}, {v(vInv)}, {v(K)}
    v_bfi_b32 {v(K+1)}, {s(sM7FF)}, {v(K+2)}, {v(K+1)}
    v_max_u32 {v(K+1)}, {v(K)}, {v(K+1)}
    v_pk_add_f32 {v(CC,2)}, {v(RS,2)}, 1.0 op_sel_hi:[1,0]
    v_mov_b32 {v(K)}, {s(sTag)}
    v_max_u32_dpp {v(K+1)}, {v(K+1)}, {v(K+1)} row_bcast:15 row_mask:0xa bank_mask:0xf
    v_pk_mul_f32 {v(VAR,2)}, {v(VAR,2)}, {v(CC,2)}
    s_cmp_lg_u32 {s(sW)}, 0
    v_max_u32_dpp {v(K+1)}, {v(K+1)}, {v(K+1)} row_bcast:31 row_mask:0xc bank_mask:0xf
    s_cbranch_scc1 L_nost ;!nd
    s_mov_b32 exec_lo, 0
    s_mov_b32 exec_hi, {s(sTop)}
    s_cmp_eq_u32 {s(sFast)}, 0
    s_cbranch_scc1 L_tabst_slow ;!nd
    buffer_store_dwordx2 {v(K,2)}, off, {WS}, {s(sTabSt)}
    L_tabst_back:
    s_mov_b64 exec, -1
    L_nost:
    v_readlane_b32 {s(sKey)}, {v(K+1)}, 63
    v_pk_mul_f32 {v(NM,2)}, {v(MM,2)}, {v(RS,2)}
    v_pk_fma_f32 {v(VAR,2)}, {v(VAR,2)}, {v(CC,2)}, {s(sEps,2)}
    ''')
    Z=t+18
    for c_ in range(4):
        a(f'v_pk_fma_f32 {v(Z+2*c_,2)}, {v(X+2*c_,2)}, {v(RS,2)}, {v(NM,2)} neg_lo:[0,0,1] neg_hi:[0,0,1]')
        if c_==0: a(f'v_rsq_f32_e64 {v(RS2)}, |{v(VAR)}|')
        if c_==1: a(f'v_rsq_f32_e64 {v(RS2+1)}, |{v(VAR+1)}|')
    for c_ in range(4):
        a(f'v_pk_add_f32 {v(X+2*c_,2)}, {v(X+2*c_,2)}, {v(Z+2*c_,2)}')
    for rho in (0,1):
        for k in (0,1):
            a(f'v_cvt_pk_bf16_f32 {v(LNP+2*rho+k)}, {v(Z+4*k+rho)}, {v(Z+4*k+2+rho)}')
    a(f'''
    s_cmp_eq_u32 {s(sIt)}, 2
    s_cbranch_scc1 L_tab ;!nd
    v_pk_mul_f32 {v(CC,2)}, {v(RS2,2)}, {s(sC16,2)}
    L_z:
    ;@F
    ''')
    ZP=t; D0=t+4; D1=t+8
    a(f'v_pk_mul_f32 {v(NM,2)}, {v(MM,2)}, {v(CC,2)}')
    for c_ in range(4):
        a(f'v_pk_fma_f32 {v(Z+2*c_,2)}, {v(X+2*c_,2)}, {v(CC,2)}, {v(NM,2)} neg_lo:[0,0,1] neg_hi:[0,0,1]')
    for c_ in range(4): a(f'v_cvt_pk_f16_f32 {v(ZP+c_)}, {v(Z+2*c_)}, {v(Z+2*c_+1)}')
    a(f'''
    v_mfma_f32_16x16x16_f16 {v(D0,4)}, {v(A8,2)}, {v(ZP,2)}, 0
    v_mfma_f32_16x16x16_f16 {v(D1,4)}, {v(A8,2)}, {v(ZP+2,2)}, 0
    s_nop 6
    v_cvt_pk_f16_f32 {v(ZP)}, {v(D0)}, {v(D0+1)}
    v_cvt_pk_f16_f32 {v(ZP+1)}, {v(D1)}, {v(D1+1)}
    v_cvt_pk_f16_f32 {v(ZP+2)}, {v(D0+2)}, {v(D0+3)}
    v_cvt_pk_f16_f32 {v(ZP+3)}, {v(D1+2)}, {v(D1+3)}
    ds_write_b64 {v(vUW)}, {v(ZP,2)}
    ds_write_b64 {v(vUW)}, {v(ZP+2,2)} offset:1024
    ;@F
    s_cmp_lg_u32 {s(sIt)}, 0
    s_cbranch_scc1 L_u1 ;!nd
    s_waitcnt vmcnt(0)
    L_u1:
    s_waitcnt lgkmcnt(0)
    s_barrier
    ;@F
    ds_read_b64_tr_b16 {v(t,2)}, {v(vUR)}
    ds_read_b64_tr_b16 {v(t+2,2)}, {v(vUR)} offset:512
    ds_read_b64_tr_b16 {v(t+4,2)}, {v(vUR)} offset:1024
    ds_read_b64_tr_b16 {v(t+6,2)}, {v(vUR)} offset:1536
    s_cmp_lg_u32 {s(sIt)}, 0
    s_cbranch_scc1 L_tg1 ;!nd
    v_mov_b32 {v(vTG)}, {s(sTag)}
    s_cmp_lg_u32 {s(sW)}, 0
    s_cbranch_scc1 L_tg2 ;!nd
    s_lshl_b32 {s(sT)}, s2, 4
    s_add_u32 {s(sT)}, {s(sT)}, {TABG}
    v_mov_b32 {v(t+24)}, {s(sTag)}
    v_mov_b32 {v(t+25)}, {s(sKey)}
    s_mov_b64 exec, 1
    {f'buffer_store_dwordx2 {v(t+24,2)}, off, {WS}, {s(sTabSt)}' if cfg.late else ''}
    buffer_store_dword {v(vTG)}, off, {WS}, {s(sT)} sc1
    s_mov_b64 exec, -1
    s_branch L_tg2 ;!nd
    L_tg1:
    buffer_load_dwordx2 {v(t+24,2)}, {v(vL8)}, {WS}, {s(sTabLd)} offen sc1
    v_lshlrev_b32 {v(vTG)}, 1, {v(vL8)}
    buffer_load_dword {v(vTG)}, {v(vTG)}, {WS}, {s(sTabG)} offen sc1
    L_tg2:
    s_waitcnt lgkmcnt(0)
    ;@F
    ''')
    P=t
    fft_core(t, t+4, t+8, t+16, t+8, P)
    for r in range(4): a(f'v_bfi_b32 {v(P+r)}, 1, {s(sPh)}, {v(P+r)}')
    def lstores(fl):
        for r in range(4): a(f'buffer_store_dword {v(P+r)}, {v(vLst)}, {WS}, {s(sLst)} offen offset:{128*r} {fl}')
    TB=t+24
    W_=t+4
    a(f'''
    s_cmp_lg_u32 {s(sIt)}, 0
    s_cbranch_scc1 L_tabw1
    ''')
    lstores('')
    stamp()
    a(f'''
    buffer_load_dwordx2 {v(TB,2)}, {v(vL8)}, {WS}, {s(sTabLd)} offen sc1
    s_branch L_pub
    L_tab:
    buffer_load_dwordx2 {v(TB,2)}, {v(vL8)}, {WS}, {s(sTabLd)} offen sc1
    L_tabw:
    s_waitcnt vmcnt(0)
    L_tabw1:
    s_waitcnt vmcnt(1)
    v_cmp_ne_u32 vcc, {s(sTag)}, {v(TB)}
    ''')
    poll_branch('L_tab', 1, f'''s_cmp_lg_u32 {s(sIt)}, 0
        s_cselect_b32 {s(sT)}, 0, 1
        s_sub_u32 {s(sTry)}, {s(sTry)}, {s(sT)}
        s_cbranch_scc1 L_tab2''')
    a(f'''
    L_tabok:
    s_cmp_eq_u32 {s(sIt)}, 0
    s_cbranch_scc1 L_fastchk
    v_cmp_lt_u32 vcc, {s(sKey)}, {v(TB+1)}
    s_mov_b32 {s(sT+9)}, 64
    s_cbranch_vccnz L_winback
    L_pub:
    s_andn2_b32 {s(sT)}, {s(sM7FF)}, {s(sKey)}      ; idx
    s_lshr_b32 {s(sT+9)}, {s(sT)}, 8                ; s1
    s_bitcmp1_b32 {s(sT+9)}, 0
    s_cselect_b64 vcc, -1, 0
    s_lshl_b32 {s(sT+1)}, {s(sT+9)}, 3
    s_and_b32 {s(sT+1)}, {s(sT+1)}, 0x30
    v_cndmask_b32 {v(W_)}, {v(LNP)}, {v(LNP+2)}, vcc
    v_cndmask_b32 {v(W_+1)}, {v(LNP+1)}, {v(LNP+3)}, vcc
    v_and_b32 {v(W_+2)}, 0x3ff, {v(vXoff)}
    s_bfm_b64 exec, 16, {s(sT+1)}
    buffer_store_dwordx2 {v(W_,2)}, {v(W_+2)}, {WS}, {s(sSlot)} offen sc1
    s_cmp_lg_u32 {s(sW)}, 0
    s_cbranch_scc1 L_nohdr
    v_mov_b32 {v(W_+8)}, {s(sKey)}
    v_cndmask_b32 {v(W_+9)}, {v(MM)}, {v(MM+1)}, vcc
    v_cndmask_b32 {v(W_+10)}, {v(RS2)}, {v(RS2+1)}, vcc
    v_mov_b32 {v(W_+11)}, {s(sKey)}
    buffer_store_dwordx4 {v(W_+8,4)}, off, {WS}, {s(sSlot)} offset:3072 sc1
    L_nohdr:
    ''')
    for c_ in range(4): a(f'v_cndmask_b32 {v(W_+4+c_)}, {v(X+2*c_)}, {v(X+2*c_+1)}, vcc')
    a(f'''
    v_lshlrev_b32 {v(W_+2)}, 1, {v(W_+2)}
    buffer_store_dwordx4 {v(W_+4,4)}, {v(W_+2)}, {WS}, {s(sSlot)} offen offset:1024 sc1
    s_mov_b64 exec, -1
    s_cmp_eq_u32 {s(sIt)}, 0
    s_cbranch_scc1 L_tabw
    L_winback:
    s_cmp_eq_u32 {s(sIt)}, 2
    s_cbranch_scc1 L_fin
    s_add_u32 {s(sSlot)}, {s(sSlot)}, {SLOTR}
    ''')
    lstores('')
    stamp()
    a(f'''
    s_waitcnt vmcnt(0)
    s_branch L_tabdone
    L_fastchk:
    v_cmp_ne_u32 vcc, {s(sKey)}, {v(TB+1)}
    s_nop 0
    s_cmp_eq_u64 vcc, 0
    s_cselect_b32 {s(sFast)}, 1, 0
    L_tabdone:
    s_cmp_eq_u32 {s(sFast)}, 0
    s_cbranch_scc1 L_slow
    L_slowback:
    ;@F
    s_cmp_lt_u32 {s(sJ)}, 8
    s_cbranch_scc0 L_y
    s_branch L_yself
    L_y:
    buffer_load_dwordx4 {v(t,4)}, {v(vLld)}, {WS}, {s(sLld)} offen sc1
    s_waitcnt vmcnt(0)
    ds_write_b128 {v(vYIW)}, {v(t,4)}
    ''')
    phchk(range(t,t+4), t+8)
    poll_branch('L_y', cfg.slp_l, mask=True)
    a('L_yjoin:')
    stamp()
    A0,A1=t,t+4; P0,Q0,P1,Q1=t+8,t+12,t+16,t+20
    a(f'''
    s_waitcnt lgkmcnt(0)
    s_barrier
    ;@F
    ds_read_b64_tr_b16 {v(A0,2)}, {v(vYIR)}
    ds_read_b64_tr_b16 {v(A0+2,2)}, {v(vYIR)} offset:{16*YIS}
    ds_read_b64_tr_b16 {v(A1,2)}, {v(vYIR)} offset:8
    ds_read_b64_tr_b16 {v(A1+2,2)}, {v(vYIR)} offset:{16*YIS+8}
    s_add_u32 {s(sTabLd)}, {s(sTabLd)}, {ARGR}
    s_add_u32 {s(sTabSt)}, {s(sTabSt)}, {ARGR}
    s_waitcnt lgkmcnt(2)
    v_mfma_f32_16x16x32_f16 {v(P0,4)}, {v(A0,4)}, {v(YC,4)}, 0
    v_mfma_f32_16x16x32_f16 {v(Q0,4)}, {v(A0,4)}, {v(YS,4)}, 0
    s_waitcnt lgkmcnt(0)
    v_mfma_f32_16x16x32_f16 {v(P1,4)}, {v(A1,4)}, {v(YC,4)}, 0
    v_mfma_f32_16x16x32_f16 {v(Q1,4)}, {v(A1,4)}, {v(YS,4)}, 0
    L_tabgw:
    v_cmp_ne_u32 vcc, {s(sTag)}, {v(vTG)}
    s_cbranch_vccnz L_tabg_r ;!nd
    ''')
    for P_,Q_ in ((P0,Q0),(P1,Q1)):
        for h in (0,2):
            a(f'v_pk_add_f32 {v(P_+h,2)}, {v(P_+h,2)}, {v(Q_+h,2)} op_sel:[0,1] op_sel_hi:[1,0] neg_hi:[0,1]')
    a(f'''
    v_cvt_pk_f16_f32 {v(t)}, {v(P0)}, {v(P0+1)}
    v_cvt_pk_f16_f32 {v(t+1)}, {v(P0+2)}, {v(P0+3)}
    v_cvt_pk_f16_f32 {v(t+2)}, {v(P1)}, {v(P1+1)}
    v_cvt_pk_f16_f32 {v(t+3)}, {v(P1+2)}, {v(P1+3)}
    ds_write_b128 {v(vYW)}, {v(t,4)}
    ;@F
    s_waitcnt lgkmcnt(0)
    s_barrier
    ;@F
    ds_read_b128 {v(t+4,4)}, {v(vYR)}
    s_waitcnt lgkmcnt(0)
    buffer_store_dwordx4 {v(t+4,4)}, {v(vGst)}, {WS}, {s(sG0)} offen sc1
    ''')
    stamp()
    a(f'''
    s_cmp_lg_u32 {s(sIt)}, 0
    s_cbranch_scc1 L_hdr
    v_lshlrev_b32 {v(t+24)}, 4, {v(vLane)}
    s_mov_b32 {s(sT+10)}, {TABG}
    ''')
    for k in range(4): a(f'buffer_load_dword {v(t+20+k)}, {v(t+24)}, {WS}, {s(sT+10)} offen offset:{1024*k} sc1')
    xin_consts(t+8)
    a('L_tg0w:\ns_waitcnt vmcnt(0)')
    tag4chk(t+20)
    a(f'''
    s_cbranch_vccz L_g ;!nd
    s_branch L_tg0_r
    L_g:
    ''')
    C0,C1=t,t+4
    a(f'''
    buffer_load_dwordx4 {v(C0,4)}, {v(vGld)}, {WS}, {s(sG0)} offen sc1
    buffer_load_dwordx4 {v(C1,4)}, {v(vGld)}, {WS}, {s(sG4)} offen sc1
    s_cmp_lg_u32 {s(sMir)}, 0
    s_waitcnt vmcnt(0)
    s_cbranch_scc1 L_xmir ;!nd
    ''')
    E0,E1=t+8,t+12
    a(f'''
    v_mfma_f32_16x16x16_f16 {v(E0,4)}, {v(XA,2)}, {v(C0,2)}, 0
    v_mfma_f32_16x16x16_f16 {v(E1,4)}, {v(XA,2)}, {v(C0+2,2)}, 0
    v_mfma_f32_16x16x16_f16 {v(E0,4)}, {v(XA+2,2)}, {v(C1,2)}, {v(E0,4)}
    v_mfma_f32_16x16x16_f16 {v(E1,4)}, {v(XA+2,2)}, {v(C1+2,2)}, {v(E1,4)}
    s_branch L_xjoin ;!nd
    L_xmir:
    ''')
    a.hist=[]
    a(f'''
    v_mfma_f32_16x16x16_f16 {v(E0,4)}, {v(XA,2)}, {v(C0+2,2)}, 0
    v_mfma_f32_16x16x16_f16 {v(E1,4)}, {v(XA,2)}, {v(C0,2)}, 0
    v_mfma_f32_16x16x16_f16 {v(E0,4)}, {v(XA+2,2)}, {v(C1+2,2)}, {v(E0,4)}
    v_mfma_f32_16x16x16_f16 {v(E1,4)}, {v(XA+2,2)}, {v(C1,2)}, {v(E1,4)}
    L_xjoin:
    ''')
    maxchk(range(t,t+8), t+16)
    poll_branch('L_g', cfg.slp_g, mask=True)
    stamp()
    a(f'''
    s_cmp_lg_u32 {s(sIt)}, 0
    s_mov_b32 {s(sIt)}, 1
    s_cbranch_scc1 L_corr ;!nd
    s_add_u32 {s(sG0)}, {s(sG0)}, {GR}
    s_add_u32 {s(sG4)}, {s(sG4)}, {GR}
    L_corrback:
    v_pk_fma_f32 {v(X,2)}, {v(E0,2)}, {v(vSc0,2)}, {v(X,2)}
    v_pk_fma_f32 {v(X+2,2)}, {v(E0+2,2)}, {s(sSc,2)}, {v(X+2,2)}
    v_pk_fma_f32 {v(X+4,2)}, {v(E1,2)}, {s(sSc,2)}, {v(X+4,2)}
    v_pk_fma_f32 {v(X+6,2)}, {v(E1+2,2)}, {s(sSc,2)}, {v(X+6,2)}
    s_branch L_top ;!nd
    ''')
    a(f'''
    L_yself:
    buffer_load_dwordx4 {v(t,4)}, {v(vLld)}, {WS}, {s(sLld)} offen sc1
    buffer_load_dwordx4 {v(t+4,4)}, {v(vLldM)}, {WS}, {s(sLld)} offen sc1
    s_waitcnt vmcnt(0)
    ''')
    phchk(range(t,t+8), t+8)
    poll_branch('L_yself', cfg.slp_l, mask=True)
    a(f'''
    s_bitcmp1_b32 {s(sW)}, 0
    s_cbranch_scc1 L_yself4
    ''')
    for k in range(4): a(f'v_pk_add_f16 {v(t+k)}, {v(t+k)}, {v(t+7-k)} neg_hi:[0,1]')
    a(f'ds_write_b128 {v(vYIW)}, {v(t,4)}\ns_branch L_yjoin\nL_yself4:')
    for k in range(4): a(f'v_pk_add_f16 {v(t+k)}, {v(t+k)}, {v(t+7-k)} op_sel:[1,1] op_sel_hi:[0,0] neg_hi:[1,0]')
    a(f'ds_write_b128 {v(vYIW)}, {v(t,4)}\ns_branch L_yjoin')
    a(f'''
    L_s3w:
    v_pk_add_f32 {v(S3,2)}, {v(WV,2)}, {v(WV+2,2)}
    v_add_f32 {v(S3)}, {v(S3)}, {v(S3+1)}
    v_mov_b32 {v(S3+1)}, {v(S3)}
    s_branch L_s3ok
    L_it0:
    s_mov_b32 {s(sKey)}, {s(sXcc)}
    v_pk_mul_f32 {v(CC,2)}, {v(RS,2)}, {s(sC16,2)}
    v_mov_b32 {v(S1)}, 0x44000000
    v_pk_add_f32 {v(WV,2)}, {v(WV,2)}, {v(S3,2)} neg_lo:[0,1] neg_hi:[0,1]
    v_pk_add_f32 {v(WV+2,2)}, {v(WV+2,2)}, {v(S3,2)} neg_lo:[0,1] neg_hi:[0,1]
    v_pk_mul_f32 {v(WV,2)}, {v(WV,2)}, {v(S1,2)} op_sel_hi:[1,0]
    v_pk_mul_f32 {v(WV+2,2)}, {v(WV+2,2)}, {v(S1,2)} op_sel_hi:[1,0]
    ''')
    if cfg.late: a(f'''
    v_mov_b32 {v(LNP)}, -1
    v_mov_b32 {v(LNP+1)}, -1
    v_mov_b32 {v(LNP+2)}, -1
    v_mov_b32 {v(LNP+3)}, -1
    v_lshlrev_b32 {v(K)}, 4, v0
    s_waitcnt vmcnt(2)
    buffer_store_dwordx4 {v(LNP,4)}, {v(K)}, {WS}, {s(sLst)} offen
    s_branch L_z
    ''')
    else: a(f'''
    s_cmp_lg_u32 {s(sW)}, 0
    s_cbranch_scc1 L_z
    v_mov_b32 {v(K)}, {s(sTag)}
    v_mov_b32 {v(K+1)}, {s(sKey)}
    s_mov_b64 exec, 1
    buffer_store_dwordx2 {v(K,2)}, off, {WS}, {s(sTabSt)}
    s_mov_b64 exec, -1
    s_branch L_z
    ''')
    H=t+8
    sIdx=sT+11
    a(f'''
    L_hdr:
    v_and_b32 {v(t+16)}, 7, {v(vLane)}
    v_lshlrev_b32 {v(t+16)}, 12, {v(t+16)}
    s_mov_b32 {s(sT+10)}, {SLOT}
    L_hdrp:
    buffer_load_dwordx4 {v(H,4)}, {v(t+16)}, {WS}, {s(sT+10)} offen offset:3072 sc1
    s_waitcnt vmcnt(0)
    ''')
    maxchk(range(H,H+4), t+17)
    poll_branch('L_hdrp', 2, skip=True)
    a(f'''
    v_max_u32_dpp {v(H+3)}, {v(H)}, {v(H)} row_half_mirror {DPP}
    v_max_u32_dpp {v(H+3)}, {v(H+3)}, {v(H+3)} quad_perm:[1,0,3,2] {DPP}
    v_max_u32_dpp {v(H+3)}, {v(H+3)}, {v(H+3)} quad_perm:[2,3,0,1] {DPP}
    v_readfirstlane_b32 {s(sIdx)}, {v(H+3)}
    v_lshlrev_b32 {v(t+16)}, 5, {v(vLane)}
    s_andn2_b32 {s(sIdx)}, {s(sM7FF)}, {s(sIdx)}
    s_and_b32 {s(sT)}, {s(sIdx)}, 7
    s_lshl_b32 {s(sT+1)}, {s(sT)}, 12
    s_add_u32 {s(sT+10)}, {s(sT+10)}, {s(sT+1)}
    v_readlane_b32 {s(sT+13)}, {v(H+1)}, {s(sT)}
    v_readlane_b32 {s(sT+14)}, {v(H+2)}, {s(sT)}
    v_mul_u32_u24 {v(t+17)}, {s(sIdx)}, {v(AD)}
    v_and_b32 {v(t+17)}, 0x7ff, {v(t+17)}
    v_cvt_f32_u32 {v(t+17)}, {v(t+17)}
    v_mul_f32 {v(t+17)}, {fbits(1/2048)}, {v(t+17)}
    v_cos_f32 {v(t+18)}, {v(t+17)}
    v_sin_f32 {v(t+19)}, {v(t+17)}
    v_and_b32 {v(t+17)}, 0x32, {v(vLane)}
    v_cvt_pk_f16_f32 {v(t+18)}, {v(t+18)}, {v(t+19)}
    v_cmp_eq_u32 vcc, 0, {v(t+17)}
    s_sub_u32 {s(sT)}, 2047, {s(sIdx)}
    s_add_u32 {s(sT+1)}, {s(sT)}, 256
    v_cndmask_b32 {v(AD)}, 0, {v(t+18)}, vcc
    v_cmp_eq_u32 vcc, 2, {v(t+17)}
    v_mov_b32 {v(BC+10)}, {s(sT+14)}
    v_mul_f32 {v(BC+10)}, {s(sDsc)}, {v(BC+10)}         ; rs2*dsc
    v_cndmask_b32 {v(AD+1)}, 0, {v(t+18)}, vcc
    v_cmp_eq_u32 vcc, {s(sT)}, {v(vInv)}
    v_cndmask_b32 {v(BC)}, 0, 1.0, vcc
    v_cmp_eq_u32 vcc, {s(sT+1)}, {v(vInv)}
    v_cndmask_b32 {v(BC+1)}, 0, 1.0, vcc
    s_branch L_g
    ''')
    Y=t+16; YX=t; u=t+4
    vDW,vDR=BC+12,BC+13
    a(f'''
    L_corr:
    s_mov_b32 {s(sIt)}, 2
    v_and_b32 {v(u)}, 3, {v(vLane)}
    v_lshlrev_b32 {v(u)}, 2, {v(u)}
    v_lshrrev_b32 {v(u+2)}, 2, {v(vN)}
    v_lshlrev_b32 {v(u+2)}, 7, {v(u+2)}
    v_lshl_add_u32 {v(u+2)}, {v(u)}, 2, {v(u+2)}          ; (n>>2)*128+(n&3)*16
    s_lshl_b32 {s(sT+1)}, {s(sW)}, 9
    s_add_u32 {s(sT+1)}, {s(sT+1)}, {YBUF}
    s_lshl_b32 {s(sT+3)}, {s(sW)}, 8
    s_add_u32 {s(sT+3)}, {s(sT+3)}, {L_DH}
    v_lshl_add_u32 {v(vDR)}, {v(vN)}, 4, {s(sT+3)}
    s_cmp_gt_u32 {s(sW)}, 1
    s_cbranch_scc1 L_yv2b
    v_lshlrev_b32 {v(u+1)}, 5, {v(vLane)}
    L_basep:
    buffer_load_dwordx4 {v(BC+2,4)}, {v(u+1)}, {WS}, {s(sT+10)} offen offset:1024 sc1
    buffer_load_dwordx4 {v(BC+6,4)}, {v(u+1)}, {WS}, {s(sT+10)} offen offset:1040 sc1
    s_waitcnt vmcnt(0)
    ''')
    maxchk(range(BC+2,BC+10), u+3)
    poll_branch('L_basep', 2, skip=True)
    for k in range(8): a(f'v_subrev_f32 {v(BC+2+k)}, {s(sT+13)}, {v(BC+2+k)}')
    a(f'''
    s_lshl_b32 {s(sT)}, {s(sX)}, 7
    s_add_u32 {s(sT)}, {s(sT)}, {YHINT}
    v_and_b32 {v(u+1)}, 1, {v(vLane)}
    v_lshlrev_b32 {v(u+1)}, 5, {v(u+1)}
    v_lshrrev_b32 {v(u+3)}, 1, {v(vLane)}
    v_lshl_add_u32 {v(u+1)}, {v(u+3)}, 7, {v(u+1)}        ; (l>>1)*128+(l&1)*32
    s_mov_b32 {s(sT+2)}, {YBUF}
    s_lshl_b32 {s(sT+3)}, {s(sW)}, 10
    s_add_u32 {s(sT+3)}, {s(sT+3)}, {L_U}
    v_lshl_add_u32 {v(t+24)}, {v(vLane)}, 4, {s(sT+3)}
    v_lshl_add_u32 {v(t+25)}, {v(vLane)}, 3, {s(sT+3)}
    s_lshl_b32 {s(sT+3)}, {s(sW)}, 6
    s_add_u32 {s(sT+3)}, {s(sT+3)}, {L_DH}
    v_lshl_add_u32 {v(vDW)}, {v(vQ)}, 9, {s(sT+3)}
    v_lshl_add_u32 {v(vDW)}, {v(vN)}, 2, {v(vDW)}
    s_cmp_lg_u32 {s(sW)}, 0
    s_cbranch_scc1 L_hintb
    s_movk_i32 {s(sTry)}, 500
    L_hint:
    buffer_load_dword {v(u+3)}, {v(u)}, {WS}, {s(sT)} offen sc1
    s_waitcnt vmcnt(0)
    v_cmp_ne_u32 vcc, {s(sTag)}, {v(u+3)}
    ''')
    poll_branch('L_hint', 1, giveup='L_hintb')
    if cfg.tim_y: a(f's_sleep {cfg.tim_y}')
    a(f'''
    L_hintb:
    s_barrier
    L_yv:
    buffer_load_dwordx4 {v(Y,4)}, {v(u+1)}, {WS}, {s(sT+2)} offen sc1
    buffer_load_dwordx4 {v(Y+4,4)}, {v(u+1)}, {WS}, {s(sT+2)} offen offset:16 sc1
    buffer_load_dwordx4 {v(YX,4)}, {v(u+2)}, {WS}, {s(sT+1)} offen sc1
    s_waitcnt vmcnt(0)
    ''')
    maxchk(list(range(Y,Y+8))+list(range(YX,YX+4)), u+3)
    poll_branch('L_yv', 1, mask=True)
    stamp()
    for k in range(4): a(f'v_pk_add_f32 {v(Y+2*k,2)}, {v(Y+2*k,2)}, {v(BC+2+2*k,2)}')
    s1,s2=u,u+2
    own=[f'v_pk_fma_f32 {v(X,2)}, {v(BC,2)}, {v(YX,2)}, {v(X,2)} op_sel:[0,0,0] op_sel_hi:[1,0,1]',
         f'v_pk_fma_f32 {v(X+2,2)}, {v(BC,2)}, {v(YX,2)}, {v(X+2,2)} op_sel:[0,1,0] op_sel_hi:[1,1,1]',
         f'v_pk_fma_f32 {v(X+4,2)}, {v(BC,2)}, {v(YX+2,2)}, {v(X+4,2)} op_sel:[0,0,0] op_sel_hi:[1,0,1]',
         f'v_pk_fma_f32 {v(X+6,2)}, {v(BC,2)}, {v(YX+2,2)}, {v(X+6,2)} op_sel:[0,1,0] op_sel_hi:[1,1,1]']
    a(f'''
    v_pk_add_f32 {v(s1,2)}, {v(Y,2)}, {v(Y+2,2)}
    v_pk_mul_f32 {v(s2,2)}, {v(Y,2)}, {v(Y,2)}
    v_pk_add_f32 {v(s1,2)}, {v(s1,2)}, {v(Y+4,2)}
    v_pk_fma_f32 {v(s2,2)}, {v(Y+2,2)}, {v(Y+2,2)}, {v(s2,2)}
    v_pk_add_f32 {v(s1,2)}, {v(s1,2)}, {v(Y+6,2)}
    v_pk_fma_f32 {v(s2,2)}, {v(Y+4,2)}, {v(Y+4,2)}, {v(s2,2)}
    v_add_f32 {v(s1)}, {v(s1)}, {v(s1+1)}
    v_pk_fma_f32 {v(s2,2)}, {v(Y+6,2)}, {v(Y+6,2)}, {v(s2,2)}
    v_add_f32 {v(s2)}, {v(s2)}, {v(s2+1)}
    {own[0]}
    {own[1]}
    v_permlane32_swap_b32 {v(s1)}, {v(s2)}
    v_add_f32 {v(s1)}, {v(s1)}, {v(s2)}
    {own[2]}
    {own[3]}
    v_add_f32_dpp {v(s1)}, {v(s1)}, {v(s1)} row_ror:8 {DPP}
    v_pk_mul_f32 {v(BC+2,2)}, {v(BC+2,2)}, {v(BC+10,2)} op_sel_hi:[1,0]
    v_pk_mul_f32 {v(BC+4,2)}, {v(BC+4,2)}, {v(BC+10,2)} op_sel_hi:[1,0]
    v_add_f32_dpp {v(s1)}, {v(s1)}, {v(s1)} row_ror:4 {DPP}
    v_pk_mul_f32 {v(BC+6,2)}, {v(BC+6,2)}, {v(BC+10,2)} op_sel_hi:[1,0]
    v_pk_mul_f32 {v(BC+8,2)}, {v(BC+8,2)}, {v(BC+10,2)} op_sel_hi:[1,0]
    v_add_f32_dpp {v(s1)}, {v(s1)}, {v(s1)} row_ror:2 {DPP}
    v_add_f32_dpp {v(s1)}, {v(s1)}, {v(s1)} row_ror:1 {DPP}
    v_add_f32_dpp {v(s1)}, {v(s1)}, {v(s1)} row_bcast:15 row_mask:0xa bank_mask:0xf
    v_mul_f32 {v(s1)}, {s(sK512)}, {v(s1)}
    v_readlane_b32 {s(sT+1)}, {v(s1)}, 31
    v_readlane_b32 {s(sT+2)}, {v(s1)}, 63
    v_mov_b32 {v(s2)}, {s(sT+1)}
    v_fma_f32 {v(s1)}, -{v(s2)}, {v(s2)}, {s(sT+2)}
    v_add_f32 {v(s1)}, {s(sEps)}, {v(s1)}
    v_rsq_f32_e64 {v(s1)}, |{v(s1)}|
    v_mul_f32 {v(s1)}, {s(sDsc)}, {v(s1)}
    ''')
    for k in range(4):
        a(f'v_pk_fma_f32 {v(Y+2*k,2)}, {v(Y+2*k,2)}, {v(s1,2)}, {v(BC+2+2*k,2)} op_sel_hi:[1,0,1] neg_lo:[0,0,1] neg_hi:[0,0,1]')
    for k in range(4): a(f'v_cvt_pk_f16_f32 {v(t+k)}, {v(Y+2*k)}, {v(Y+2*k+1)}')
    a(f'''
    ds_write_b128 {v(t+24)}, {v(t,4)}
    ds_read_b64_tr_b16 {v(t+4,2)}, {v(t+25)}
    ds_read_b64_tr_b16 {v(t+6,2)}, {v(t+25)} offset:512
    s_waitcnt lgkmcnt(0)
    ;@F
    ''')
    fft_core(t+4, None, t+16, BC+2, t+16, t)
    a(f'''
    ds_write2_b32 {v(vDW)}, {v(t)}, {v(t+1)} offset0:0 offset1:32
    ds_write2_b32 {v(vDW)}, {v(t+2)}, {v(t+3)} offset0:64 offset1:96
    L_dhb:
    ;@F
    s_waitcnt lgkmcnt(0)
    s_barrier
    ;@F
    ds_read_b128 {v(t,4)}, {v(vDR)}
    s_waitcnt lgkmcnt(0)
    v_mfma_f32_16x16x16_f16 {v(E0,4)}, {v(AD,2)}, {v(t,2)}, {v(E0,4)}
    v_mfma_f32_16x16x16_f16 {v(E1,4)}, {v(AD,2)}, {v(t+2,2)}, {v(E1,4)}
    s_nop 5
    s_branch L_corrback ;!nd
    L_yv2b:
    s_barrier
    L_yv2:
    buffer_load_dwordx4 {v(YX,4)}, {v(u+2)}, {WS}, {s(sT+1)} offen sc1
    s_waitcnt vmcnt(0)
    ''')
    maxchk(range(YX,YX+4), u+3)
    poll_branch('L_yv2', 1, mask=True)
    stamp(); fstamp()
    a('\n'.join(own)+'\ns_branch L_dhb')
    a('L_fin:')
    for rho in (0,1):
        for k in (0,1):
            a(f'v_cvt_pk_bf16_f32 {v(t+2*rho+k)}, {v(X+4*k+rho)}, {v(X+4*k+2+rho)}')
    a(f'''
    v_lshlrev_b32 {v(t+16)}, 1, {v(vQ)}
    v_mov_b32 {v(t+19)}, 0x200000
    s_sub_u32 {s(sT)}, {s(sT+9)}, 1
    v_cmp_eq_u32 vcc, {s(sT+9)}, {v(t+16)}
    v_cndmask_b32 {v(t+17)}, {v(vXoff)}, {v(t+19)}, vcc
    v_cmp_eq_u32 vcc, {s(sT)}, {v(t+16)}
    v_cndmask_b32 {v(t+18)}, {v(vXoff)}, {v(t+19)}, vcc
    buffer_store_dwordx2 {v(t,2)}, {v(t+17)}, {OS}, {s(sRow0)} offen sc1
    buffer_store_dwordx2 {v(t+2,2)}, {v(t+18)}, {OS}, {s(sRow1)} offen sc1
    s_or_b32 {s(sT)}, s2, {s(sW)}
    s_cbranch_scc1 L_fin2
    v_mov_b32 {v(t+20)}, {s(sTag)}
    buffer_store_dword {v(t+20)}, off, {WS}, 0 sc1
    L_fin2:
    ''')
    stamp(); dump_stamps()
    a('s_endpgm')
    def pub2():
        a(f'''
        v_mov_b32 {v(t+4)}, {s(sTag)}
        v_mov_b32 {v(t+5)}, {s(sXcc)}
        s_add_u32 {s(sT)}, {s(sTabSt)}, {TAB2-TABL}
        buffer_store_dwordx2 {v(t+4,2)}, off, {WS}, {s(sT)} sc1
        ''')
    a(f'''
    L_tabst_slow:
    buffer_store_dwordx2 {v(K,2)}, off, {WS}, {s(sTabSt)} sc1
    s_branch L_tabst_back
    L_tabg_r:
    s_sub_u32 {s(sCnt)}, {s(sCnt)}, 1
    s_cbranch_scc1 L_end
    s_sleep 2
    v_lshlrev_b32 {v(vTG)}, 1, {v(vL8)}
    buffer_load_dword {v(vTG)}, {v(vTG)}, {WS}, {s(sTabG)} offen sc1
    s_waitcnt vmcnt(0)
    s_branch L_tabgw
    L_tg0_r:
    s_sub_u32 {s(sCnt)}, {s(sCnt)}, 1
    s_cbranch_scc1 L_end
    s_sleep 4
    ''')
    for k in range(4): a(f'buffer_load_dword {v(t+20+k)}, {v(t+24)}, {WS}, {s(sT+10)} offen offset:{1024*k} sc1')
    a('s_branch L_tg0w\nL_tab2:')
    pub2()
    a(f'''
    s_add_u32 {s(sT+1)}, {s(sTabLd)}, {TAB2-TABL}
    L_tab2p:
    buffer_load_dwordx2 {v(TB,2)}, {v(vL8)}, {WS}, {s(sTabLd)} offen sc1
    buffer_load_dwordx2 {v(t+6,2)}, {v(vL8)}, {WS}, {s(sT+1)} offen sc1
    s_waitcnt vmcnt(0)
    v_cmp_eq_u32 vcc, {s(sTag)}, {v(TB)}
    v_cndmask_b32 {v(TB)}, {v(t+6)}, {v(TB)}, vcc
    v_cndmask_b32 {v(TB+1)}, {v(t+7)}, {v(TB+1)}, vcc
    v_cmp_ne_u32 vcc, {s(sTag)}, {v(TB)}
    ''')
    poll_branch('L_tab2p', 4)
    a(f'''
    s_branch L_tabok
    L_slow:
    s_cmp_lg_u32 {s(sIt)}, 0
    s_cbranch_scc1 L_slow1
    ''')
    pub2()
    a('L_slow1:')
    lstores('sc1')
    a(f'''
    s_waitcnt vmcnt(0)
    s_barrier
    s_add_u32 {s(sT)}, {s(sTabSt)}, {SLOWF-TABL}
    s_add_u32 {s(sT+1)}, {s(sTabLd)}, {SLOWF-TABL}
    v_mov_b32 {v(t+4)}, {s(sTag)}
    s_cmp_lg_u32 {s(sW)}, 0
    s_cbranch_scc1 L_slowp
    buffer_store_dword {v(t+4)}, off, {WS}, {s(sT)} sc1
    L_slowp:
    buffer_load_dword {v(t+5)}, {v(vL8)}, {WS}, {s(sT+1)} offen sc1
    s_waitcnt vmcnt(0)
    v_cmp_ne_u32 vcc, {s(sTag)}, {v(t+5)}
    ''')
    poll_branch('L_slowp', 2)
    a('s_branch L_slowback')

def hint_store(vreg, soff, lbl):
    a(f'''
    s_mov_b64 exec, 1
    s_cmp_eq_u32 {s(sFast)}, 0
    s_cbranch_scc1 {lbl}_s
    buffer_store_dword {v(vreg)}, off, {WS}, {s(soff)}
    s_branch {lbl}_d
    {lbl}_s:
    buffer_store_dword {v(vreg)}, off, {WS}, {s(soff)} sc1
    {lbl}_d:
    s_mov_b64 exec, -1
    ''')

def ffn():
    WB=4; t=40; h=74; PF=112
    vSl=32; vPW=33; vH=34; vHd=35; vTag=36; vPR=37; vTr=38; vWr=39
    sI=sJ; sFb=sLld; sRnd=sIt; sHo=sLst; sHH=sPh; sCb=sTabG; sYo=sG4
    a(f'''
    L_ffn:
    s_and_b32 {s(sI)}, {s(sJ)}, 31
    v_lshlrev_b32 {v(vPR)}, 4, v0
    v_lshrrev_b32 {v(t+1)}, 5, v0
    v_mul_u32_u24 {v(t+1)}, 3584, {v(t+1)}
    v_and_b32 {v(t+2)}, 0x1f0, {v(vPR)}
    s_mul_i32 {s(sT+4)}, {s(sI)}, {16*3584}
    s_mul_i32 {s(sT+5)}, {s(sX)}, 7
    s_lshr_b32 {s(sT+5)}, {s(sT+5)}, 1
    s_lshl_b32 {s(sT+5)}, {s(sT+5)}, 7
    s_add_u32 {s(sT+4)}, {s(sT+4)}, {s(sT+5)}
    v_add3_u32 {v(t+1)}, {v(t+1)}, {v(t+2)}, {s(sT+4)}
    v_lshrrev_b32 {v(t+2)}, 3, v0
    v_min_u32 {v(t+2)}, 55, {v(t+2)}
    v_lshlrev_b32 {v(t+2)}, 10, {v(t+2)}
    v_and_b32 {v(t+3)}, 0x70, {v(vPR)}
    s_mul_i32 {s(sT+4)}, {s(sI)}, {56*1024}
    s_lshl_b32 {s(sT+5)}, {s(sX)}, 7
    s_add_u32 {s(sT+4)}, {s(sT+4)}, {s(sT+5)}
    v_add3_u32 {v(t+2)}, {v(t+2)}, {v(t+3)}, {s(sT+4)}
    s_waitcnt lgkmcnt(0)
    {'s_sleep 127' if cfg.exp&8 else ''}
    {'s_sleep 127' if cfg.exp&8 else ''}
    {f's_sleep {cfg.fdelay}' if cfg.fdelay else ''}
    global_load_dwordx4 {v(PF,4)}, {v(t+1)}, s[18:19]
    global_load_dwordx4 {v(PF+4,4)}, {v(t+1)}, s[20:21]
    global_load_dwordx4 {v(PF+8,4)}, {v(t+2)}, s[22:23]
    buffer_load_dword {v(PF+12)}, off, {WS}, 0 sc1
    s_mul_i32 {s(sG0)}, {s(sX)}, {GS}
    s_lshl_b32 {s(sT+1)}, {s(sI)}, 13
    s_add_u32 {s(sG0)}, {s(sG0)}, {s(sT+1)}
    s_add_u32 {s(sG0)}, {s(sG0)}, {GBASE+GR}
    s_mul_i32 {s(sFb)}, {s(sX)}, 28
    s_add_u32 {s(sFb)}, {s(sFb)}, {s(sI)}
    s_lshl_b32 {s(sFb)}, {s(sFb)}, 4           ; fb*16
    s_lshl_b32 {s(sCb)}, {s(sX)}, 2
    s_add_u32 {s(sCb)}, {s(sCb)}, {s(sI)}
    s_sub_u32 {s(sCb)}, {s(sCb)}, 28
    v_mov_b32 {v(h+8)}, 0x200000
    v_mov_b32 {v(vTag)}, 0
    v_and_b32 {v(h+3)}, 0x38, {v(vL8)}
    s_lshl_b32 {s(sT)}, {s(sW)}, 11
    v_lshl_add_u32 {v(vTr)}, {v(vQ)}, 8, {s(sT)}
    v_lshl_add_u32 {v(vTr)}, {v(vN)}, 3, {v(vTr)}
    v_and_b32 {v(vHd)}, 7, {v(vLane)}
    v_lshlrev_b32 {v(vHd)}, 12, {v(vHd)}
    s_mov_b32 {s(sFast)}, 0
    s_mov_b32 {s(sRnd)}, 2
    s_mov_b32 {s(sHo)}, {WSSZ}
    s_mov_b32 {s(sHH)}, {WSSZ}
    s_mov_b32 {s(sYo)}, {WSSZ}
    s_cmp_ge_u32 {s(sI)}, 28
    s_cbranch_scc1 L_fpb
    v_lshl_add_u32 {v(vWr)}, {v(vLane)}, 5, {s(sT)}
    s_lshl_b32 {s(sT)}, {s(sW)}, 7
    v_lshl_add_u32 {v(vSl)}, {v(vQ)}, 4, {v(vHd)}
    v_add_u32 {v(vSl)}, {s(sT)}, {v(vSl)}
    s_lshl_b32 {s(sT)}, {s(sW)}, 10
    v_lshl_add_u32 {v(vPW)}, {v(vLane)}, 4, {s(sT)}
    v_mul_u32_u24 {v(vH)}, 3584, v0
    v_add_u32 {v(vH)}, {s(sFb)}, {v(vH)}
    s_branch {'L_fa_go' if cfg.dry else 'L_finit'}
    L_fpb:
    v_lshl_add_u32 {v(vWr)}, {v(vLane)}, 4, {s(sT)}
    s_mul_i32 {s(sT)}, {s(sW)}, 448
    v_lshl_add_u32 {v(vH)}, {v(vQ)}, 4, {s(sT)}
    s_lshl_b32 {s(sT)}, {s(sW)}, 2
    v_lshl_add_u32 {v(vPW)}, {v(vLane)}, 5, {s(sT)}
    s_mul_i32 {s(sT)}, {s(sW)}, {224*1024}
    s_lshl_b32 {s(sT+1)}, {s(sCb)}, 5
    s_add_u32 {s(sT)}, {s(sT)}, {s(sT+1)}
    v_lshrrev_b32 {v(vSl)}, 1, {v(vLane)}
    v_lshlrev_b32 {v(vSl)}, 10, {v(vSl)}
    v_and_b32 {v(t+3)}, 16, {v(vPR)}
    v_add3_u32 {v(vSl)}, {v(vSl)}, {v(t+3)}, {s(sT)}
    {'s_branch L_fb_go' if cfg.dry else ''}
    L_finit:
    s_mov_b32 {s(sRnd)}, 0
    s_mov_b32 {s(sSlot)}, {SLOT}
    s_mov_b32 {s(sHo)}, {HBUF}
    s_lshl_b32 {s(sHH)}, {s(sX)}, 7
    s_add_u32 {s(sHH)}, {s(sHH)}, {HHINT}
    s_mov_b32 {s(sYo)}, 0
    s_waitcnt vmcnt(0)
    v_add_u32 {v(vTag)}, 1, {v(PF+12)}
    s_barrier
    v_readfirstlane_b32 {s(sTag)}, {v(vTag)}
    ''')
    if cfg.stamps: a(f's_mov_b32 {s(sStampI)}, 0')
    stamp()
    a(f'''
    {f's_sleep {cfg.gdelay}' if cfg.gdelay else ''}
    s_cmp_ge_u32 {s(sI)}, 28
    s_cbranch_scc1 L_fgb
    global_load_dwordx4 {v(WB,4)}, {v(vH)}, s[18:19]
    global_load_dwordx4 {v(WB+4,4)}, {v(vH)}, s[20:21]
    buffer_store_dwordx4 {v(SENT,4)}, {v(vPR)}, {WS}, {s(sG0)} offen sc1
    s_waitcnt vmcnt(1)
    ds_write_b128 {v(vWr)}, {v(WB,4)}
    ds_write_b128 {v(vWr)}, {v(WB+4,4)} offset:16
    s_waitcnt lgkmcnt(0)
    ds_read_b64_tr_b16 {v(WB,2)}, {v(vTr)}
    ds_read_b64_tr_b16 {v(WB+2,2)}, {v(vTr)} offset:128
    ds_read_b64_tr_b16 {v(WB+4,2)}, {v(vTr)} offset:1024
    ds_read_b64_tr_b16 {v(WB+6,2)}, {v(vTr)} offset:1152
    s_branch L_fw_done
    L_fgb:
    ''')
    for k in range(7):
        a(f'global_load_dwordx4 {v(WB+4*k,4)}, {v(vSl)}, s[22:23]')
        if k<6: a(f'v_add_u32 {v(vSl)}, 0x8000, {v(vSl)}')
    a(f'''
    buffer_store_dwordx4 {v(SENT,4)}, {v(vPR)}, {WS}, {s(sG0)} offen sc1
    s_waitcnt vmcnt(1)''')
    for k in range(7):
        o=(k&1)*1024
        a(f'''ds_write_b128 {v(vWr)}, {v(WB+4*k,4)} offset:{o}
        s_waitcnt lgkmcnt(0)
        ds_read_b64_tr_b16 {v(WB+4*k,2)}, {v(vTr)} offset:{o}
        ds_read_b64_tr_b16 {v(WB+4*k+2,2)}, {v(vTr)} offset:{o+128}''')
    a(f'''
    L_fw_done:
    s_waitcnt vmcnt(0) lgkmcnt(0)
    s_barrier
    ''')
    stamp()
    a(f'''
    s_cmp_lg_u32 {s(sW)}, 1
    s_cbranch_scc1 L_fnt
    s_lshl_b32 {s(sT)}, s2, 4
    s_add_u32 {s(sT)}, {s(sT)}, {TABG+TABGR-4096}
    s_mov_b64 exec, 1
    buffer_store_dword {v(vTag)}, off, {WS}, {s(sT)} sc1
    s_mov_b64 exec, -1
    L_fnt:
    s_cmp_lg_u32 {s(sW)}, 0
    s_cbranch_scc1 L_fbar
    s_mov_b32 {s(sTry)}, 40
    L_fl:
    buffer_load_dwordx2 {v(t,2)}, {v(vL8)}, {WS}, {s(sTabLd)} offen sc1
    s_waitcnt vmcnt(0)
    v_cmp_ne_u32 vcc, {s(sTag)}, {v(t)}
    ''')
    poll_branch('L_fl', 8, giveup='L_fslowtab', skip=True)
    a(f'''
    v_cmp_ne_u32 vcc, {s(sXcc)}, {v(t+1)}
    s_cbranch_vccnz L_fslowtab
    s_mov_b32 {s(sFast)}, 1
    L_frnd:
    s_add_u32 {s(sTabLd)}, {s(sTabLd)}, {ARGR}
    s_cmp_lg_u32 {s(sW)}, 0
    s_cbranch_scc1 L_fbar
    s_cmp_eq_u32 {s(sFast)}, 0
    s_cbranch_scc1 L_ftd
    L_ftrig:
    buffer_load_dword {v(t)}, {v(vL8)}, {WS}, {s(sTabLd)} offen sc1
    s_waitcnt vmcnt(0)
    v_cmp_ne_u32 vcc, {s(sTag)}, {v(t)}
    ''')
    poll_branch('L_ftrig', 2)
    stamp()
    if cfg.tim_arg: a(f's_sleep {cfg.tim_arg}')
    a(f'''
    L_ftd:
    s_cmp_ge_u32 {s(sI)}, 28
    s_cbranch_scc1 L_fb0
    L_fbar:
    s_barrier
    s_cmp_ge_u32 {s(sI)}, 28
    s_cbranch_scc0 L_fslot
    s_branch L_fh
    L_fslot:
    buffer_load_dwordx4 {v(t,4)}, {v(vSl)}, {WS}, {s(sSlot)} offen sc1
    buffer_load_dwordx4 {v(t+4,4)}, {v(vSl)}, {WS}, {s(sSlot)} offen offset:64 sc1
    buffer_load_dword {v(t+8)}, {v(vHd)}, {WS}, {s(sSlot)} offen offset:3072 sc1
    s_waitcnt vmcnt(0)
    ''')
    Dd=t+12
    a(f'''
    v_mfma_f32_16x16x32_bf16 {v(Dd,4)}, {v(t,4)}, {v(WB,4)}, 0
    v_mfma_f32_16x16x32_bf16 {v(Dd,4)}, {v(t+4,4)}, {v(WB+4,4)}, {v(Dd,4)}
    ''')
    maxchk(range(t,t+9), t+9)
    poll_branch('L_fslot', 2, mask=True)
    stamp()
    a(f'''
    L_fa_go:
    v_max_u32_dpp {v(t+9)}, {v(t+8)}, {v(t+8)} row_half_mirror {DPP}
    ds_write_b128 {v(vPW)}, {v(Dd,4)}
    s_add_u32 {s(sT+1)}, {s(sHo)}, {s(sFb)}
    v_max_u32_dpp {v(t+9)}, {v(t+9)}, {v(t+9)} quad_perm:[1,0,3,2] {DPP}
    s_lshl_b32 {s(sT+2)}, {s(sI)}, 2
    v_lshlrev_b32 {v(t+10)}, 4, {v(vN)}
    v_max_u32_dpp {v(t+9)}, {v(t+9)}, {v(t+9)} quad_perm:[2,3,0,1] {DPP}
    s_add_u32 {s(sT+2)}, {s(sT+2)}, {s(sHH)}
    v_not_b32 {v(t+9)}, {v(t+9)}
    v_and_b32 {v(t+11)}, 4, {v(t+9)}
    v_and_b32 {v(t+9)}, 3, {v(t+9)}
    v_lshl_add_u32 {v(t+10)}, {v(t+11)}, 6, {v(t+10)}
    v_lshl_add_u32 {v(t+10)}, {v(t+9)}, 2, {v(t+10)}
    v_lshlrev_b32 {v(t+11)}, 1, {v(vN)}
    s_cmp_lg_u32 {s(sW)}, 0
    s_waitcnt lgkmcnt(0)
    s_barrier
    s_cbranch_scc1 L_fnext
    ds_read2st64_b32 {v(t,2)}, {v(t+10)} offset0:0 offset1:4
    ds_read2st64_b32 {v(t+2,2)}, {v(t+10)} offset0:8 offset1:12
    ds_read2st64_b32 {v(t+4,2)}, {v(t+10)} offset0:16 offset1:20
    ds_read2st64_b32 {v(t+6,2)}, {v(t+10)} offset0:24 offset1:28
    s_waitcnt lgkmcnt(2)
    v_pk_add_f32 {v(t,2)}, {v(t,2)}, {v(t+2,2)}
    s_waitcnt lgkmcnt(0)
    v_pk_add_f32 {v(t+4,2)}, {v(t+4,2)}, {v(t+6,2)}
    v_pk_add_f32 {v(t,2)}, {v(t,2)}, {v(t+4,2)}
    v_add_f32 {v(t)}, {v(t)}, {v(t+1)}
    v_mul_f32 {v(t+1)}, 0xbfb8aa3b, {v(t)}
    v_exp_f32 {v(t+1)}, {v(t+1)}
    v_mul_f32_dpp {v(t+2)}, {v(t)}, {v(t)} row_ror:8 {DPP}
    v_add_f32 {v(t+1)}, 1.0, {v(t+1)}
    v_rcp_f32 {v(t+1)}, {v(t+1)}
    v_mul_f32 {v(t+1)}, {v(t+1)}, {v(t+2)}
    v_mov_b32_dpp {v(t+2)}, {v(t+1)} quad_perm:[1,1,3,3] {DPP}
    s_mov_b64 exec, 0x55
    v_cvt_pk_bf16_f32 {v(t+1)}, {v(t+1)}, {v(t+2)}
    buffer_store_dword {v(t+1)}, {v(t+11)}, {WS}, {s(sT+1)} offen sc1
    ''')
    hint_store(vTag, sT+2, 'L_fhh')
    a('L_fnext:')
    stamp()
    a(f'''
    s_cmp_eq_u32 {s(sRnd)}, 1
    s_cbranch_scc1 L_fend
    s_cmp_eq_u32 {s(sRnd)}, 2
    s_cbranch_scc1 L_finit
    ''')
    if cfg.wb: a(f'''
    s_cmp_lg_u32 {s(sI)}, 0
    s_cbranch_scc1 L_nwb
    s_cmp_lg_u32 {s(sW)}, 7
    s_cbranch_scc1 L_nwb
    buffer_wbl2 sc1
    L_nwb:
    ''')
    a(f'''
    s_mov_b32 {s(sRnd)}, 1
    s_add_u32 {s(sSlot)}, {s(sSlot)}, {SLOTR}
    s_add_u32 {s(sHo)}, {s(sHo)}, {HR}
    s_add_u32 {s(sHH)}, {s(sHH)}, {HHR}
    s_branch L_frnd
    L_fslowtab:
    v_lshlrev_b32 {v(t+16)}, 4, {v(vLane)}
    s_mov_b32 {s(sT+10)}, {TABG}
    L_ftab2:
    ''')
    for k in range(4): a(f'buffer_load_dword {v(t+k)}, {v(t+16)}, {WS}, {s(sT+10)} offen offset:{1024*k} sc1')
    a('s_waitcnt vmcnt(0)')
    tag4chk(t)
    poll_branch('L_ftab2', 8)
    a(f'''
    s_branch L_frnd
    L_fb0:
    v_lshrrev_b32 {v(h+2)}, 3, {v(vLane)}
    v_lshlrev_b32 {v(h+2)}, 12, {v(h+2)}
    s_lshl_b32 {s(sT)}, {s(sCb)}, 6
    v_add3_u32 {v(h+4)}, {v(h+2)}, {v(h+3)}, {s(sT)}
    L_fbase:
    buffer_load_dwordx2 {v(h+6,2)}, {v(h+4)}, {WS}, {s(sSlot)} offen offset:1024 sc1
    buffer_load_dword {v(h+8)}, {v(h+2)}, {WS}, {s(sSlot)} offen offset:3072 sc1
    buffer_load_dword {v(h+9)}, {v(vHd)}, {WS}, {s(sSlot)} offen offset:3072 sc1
    s_waitcnt vmcnt(0)
    ''')
    maxchk(range(h+6,h+10), h+5)
    poll_branch('L_fbase', 2, mask=True)
    stamp()
    a(f'''
    v_max_u32_dpp {v(h+9)}, {v(h+9)}, {v(h+9)} row_half_mirror {DPP}
    v_max_u32_dpp {v(h+9)}, {v(h+9)}, {v(h+9)} quad_perm:[1,0,3,2] {DPP}
    v_max_u32_dpp {v(h+9)}, {v(h+9)}, {v(h+9)} quad_perm:[2,3,0,1] {DPP}
    v_readfirstlane_b32 {s(sKey)}, {v(h+9)}
    v_mov_b32 {v(h)}, 0xbfb8aa3b
    s_ashr_i32 {s(sT)}, {s(sKey)}, 31
    s_orn2_b32 {s(sT)}, 0x80000000, {s(sT)}
    s_xor_b32 {s(sT)}, {s(sT)}, {s(sKey)}
    v_mul_f32 {v(h)}, {s(sT)}, {v(h)}
    v_exp_f32 {v(h)}, {v(h)}
    v_add_f32 {v(h)}, 1.0, {v(h)}
    v_rcp_f32 {v(h)}, {v(h)}
    v_cmp_eq_u32 vcc, {s(sKey)}, {v(h+8)}
    v_cndmask_b32 {v(h+10)}, 0, {v(h)}, vcc
    v_bfi_b32 {v(h+8)}, {v(h+8)}, 0, {s(sM7FF)}
    v_lshlrev_b32 {v(h+8)}, 10, {v(h+8)}
    v_lshrrev_b32 {v(h+4)}, 1, {v(h+3)}
    s_lshl_b32 {s(sT)}, {s(sCb)}, 5
    v_add3_u32 {v(h+8)}, {v(h+8)}, {v(h+4)}, {s(sT)}
    s_cmp_eq_u32 {s(sFast)}, 0
    s_cbranch_scc1 L_fbar
    v_min_u32 {v(t)}, 27, {v(vLane)}
    v_lshlrev_b32 {v(t)}, 2, {v(t)}
    s_movk_i32 {s(sTry)}, 500
    L_fhint:
    buffer_load_dword {v(t+1)}, {v(t)}, {WS}, {s(sHH)} offen sc1
    s_waitcnt vmcnt(0)
    v_cmp_ne_u32 vcc, {s(sTag)}, {v(t+1)}
    ''')
    poll_branch('L_fhint', 1, giveup='L_fbar')
    if cfg.tim_h: a(f's_sleep {cfg.tim_h}')
    a(f'''
    s_barrier
    L_fh:
    ''')
    for k in range(7):
        a(f'buffer_load_dwordx4 {v(t+4*k,4)}, {v(vH)}, {WS}, {s(sHo)} offen offset:{64*k} sc1')
    a('s_waitcnt vmcnt(0)')
    a('L_fb_go:')
    Dy=t+28
    for k in range(7):
        a(f'v_mfma_f32_16x16x32_bf16 {v(Dy,4)}, {v(t+4*k,4)}, {v(WB+4*k,4)}, '+('0' if k==0 else v(Dy,4)))
        if k==0: a(f'v_max3_u32 {v(t+32)}, {v(t)}, {v(t+1)}, {v(t+2)}\nv_max_u32 {v(t+32)}, {v(t+32)}, {v(t+3)}')
        else: a(f'v_max3_u32 {v(t+32)}, {v(t+32)}, {v(t+4*k)}, {v(t+4*k+1)}\nv_max3_u32 {v(t+32)}, {v(t+32)}, {v(t+4*k+2)}, {v(t+4*k+3)}')
    a(f'v_cmp_eq_u32 vcc, -1, {v(t+32)}')
    poll_branch('L_fh', 1, skip=True, pre=f's_cmp_eq_u32 {s(sRnd)}, 2\ns_cbranch_scc1 L_fh_ok')
    a('L_fh_ok:')
    stamp()
    a(f'''
    s_mov_b64 exec, 0xffff
    s_cmp_lg_u32 {s(sW)}, 0
    ds_write_b32 {v(vPW)}, {v(Dy)}
    s_mov_b64 exec, -1
    s_waitcnt lgkmcnt(0)
    s_barrier
    s_cbranch_scc1 L_fnext
    s_cmp_eq_u32 {s(sRnd)}, 1
    s_cbranch_scc1 L_ffinal
    v_lshlrev_b32 {v(t+8)}, 5, {v(vN)}
    ds_read_b128 {v(t,4)}, {v(t+8)}
    ds_read_b128 {v(t+4,4)}, {v(t+8)} offset:16
    s_lshl_b32 {s(sT)}, {s(sCb)}, 7
    s_add_u32 {s(sT)}, {s(sT)}, {YBUF}
    s_add_u32 {s(sT)}, {s(sT)}, {s(sYo)}
    v_lshlrev_b32 {v(t+9)}, 2, {v(vLane)}
    s_lshl_b32 {s(sT+1)}, {s(sX)}, 7
    s_lshl_b32 {s(sT+2)}, {s(sI)}, 2
    s_add_u32 {s(sT+1)}, {s(sT+1)}, {s(sT+2)}
    s_add_u32 {s(sT+1)}, {s(sT+1)}, {YHINT-28*4}
    s_add_u32 {s(sT+1)}, {s(sT+1)}, {s(sYo)}
    s_mov_b64 exec, 0xffff
    s_waitcnt lgkmcnt(0)
    v_pk_add_f32 {v(t,2)}, {v(t,2)}, {v(t+2,2)}
    v_pk_add_f32 {v(t+4,2)}, {v(t+4,2)}, {v(t+6,2)}
    v_pk_add_f32 {v(t,2)}, {v(t,2)}, {v(t+4,2)}
    v_add_f32 {v(t)}, {v(t)}, {v(t+1)}
    v_mul_f32 {v(t)}, {v(t)}, {v(h)}
    buffer_store_dword {v(t)}, {v(t+9)}, {WS}, {s(sT)} offen sc1
    ''')
    hint_store(vTag, sT+1, 'L_fyh')
    a(f'''
    s_cmp_lg_u32 {s(sRnd)}, 2
    s_cbranch_scc1 L_fnext
    L_ffinal:
    v_lshlrev_b32 {v(t+16)}, 3, {v(h+3)}
    ds_read_b128 {v(t,4)}, {v(t+16)}
    ds_read_b128 {v(t+4,4)}, {v(t+16)} offset:16
    ds_read_b128 {v(t+8,4)}, {v(t+16)} offset:32
    ds_read_b128 {v(t+12,4)}, {v(t+16)} offset:48
    s_waitcnt lgkmcnt(2)
    v_pk_add_f32 {v(t,2)}, {v(t,2)}, {v(t+2,2)}
    v_pk_add_f32 {v(t+4,2)}, {v(t+4,2)}, {v(t+6,2)}
    s_waitcnt lgkmcnt(0)
    v_pk_add_f32 {v(t+8,2)}, {v(t+8,2)}, {v(t+10,2)}
    v_pk_add_f32 {v(t+12,2)}, {v(t+12,2)}, {v(t+14,2)}
    v_pk_add_f32 {v(t,2)}, {v(t,2)}, {v(t+4,2)}
    v_pk_add_f32 {v(t+8,2)}, {v(t+8,2)}, {v(t+12,2)}
    v_add_f32 {v(t)}, {v(t)}, {v(t+1)}
    v_add_f32 {v(t+1)}, {v(t+8)}, {v(t+9)}
    v_pk_fma_f32 {v(t,2)}, {v(t,2)}, {v(h+10,2)}, {v(h+6,2)} op_sel_hi:[1,0,1]
    v_cvt_pk_bf16_f32 {v(t)}, {v(t)}, {v(t+1)}
    buffer_store_dword {v(t)}, {v(h+8)}, {OS}, 0 offen sc1
    s_cmp_eq_u32 {s(sRnd)}, 2
    s_cbranch_scc1 L_fnext
    ''')
    stamp()
    a('L_fend:')
    dump_stamps()
    a('s_endpgm')

def build():
    hdr=open('cdna_kernels/'+NAME+'.s.ref').read().split('; @launch')[0]
    a.raw(hdr+f'; @launch grid=({NWG},1,1) block=(512,1,1) lds={LDS_TOTAL}')
    a.raw(f'''; generated by gen/gen.py (hand-written generator): persistent FFT-structured FNet + MoD kernel
.amdgcn_target "amdgcn-amd-amdhsa--gfx950"
.text
.globl {NAME}_kernel
.p2align 8
.type {NAME}_kernel,@function
{NAME}_kernel:''')
    a(f'''
    s_load_dwordx2 s[12:13], s[0:1], 0
    s_load_dwordx2 s[8:9], s[0:1], 96
    s_load_dwordx8 s[16:23], s[0:1], 48
    s_load_dwordx2 s[28:29], s[0:1], 80
    s_cmp_ge_u32 s2, {NWG}
    s_cbranch_scc1 L_end
    ''')
    if cfg.codepf: a(f'''
    s_getpc_b64 {s(sT+6,2)}
    L_pc:
    v_lshlrev_b32 v2, 5, v0
    v_min_u32 v2, L_end-L_pc, v2
    global_load_dword {v(vTG)}, v2, {s(sT+6,2)}
    ''')
    if cfg.split: a(f'''
    s_lshr_b32 s3, s2, 1
    s_xor_b32 s3, s3, s2
    s_and_b32 s3, s3, 128
    s_mul_i32 s3, s3, 3
    s_xor_b32 s2, s2, s3
    ''')
    a(f'''
    v_lshrrev_b32 v2, 6, v0
    v_and_b32 {v(vN)}, 15, v0
    v_bfe_u32 {v(vQ)}, v0, 4, 2
    v_readfirstlane_b32 {s(sW)}, v2
    v_and_b32 {v(vLane)}, 63, v0
    s_mov_b32 s10, {WSSZ}
    s_mov_b32 s11, 0x20000
    s_mov_b32 s30, 0x200000
    s_mov_b32 s31, 0x20000
    s_and_b32 {s(sX)}, s2, 7
    s_lshr_b32 {s(sJ)}, s2, 3
    v_mov_b32 {v(SENT)}, -1
    v_mov_b32 {v(SENT+1)}, -1
    v_mov_b32 {v(SENT+2)}, -1
    v_mov_b32 {v(SENT+3)}, -1
    v_lshlrev_b32 {v(vL8)}, 3, v0
    v_and_b32 {v(vL8)}, 0xf8, {v(vL8)}
    s_mov_b32 {s(sCnt)}, 200000
    s_mov_b32 {s(sM7FF)}, 0x7ff
    s_lshl_b32 {s(sTabLd)}, {s(sX)}, 8
    s_add_u32 {s(sTabLd)}, {s(sTabLd)}, {TABL}
    s_getreg_b32 {s(sXcc)}, hwreg(HW_REG_XCC_ID, 0, 4)
    ''')
    if cfg.force_slow: a(f's_mov_b32 {s(sXcc)}, {s(sJ)}')
    if cfg.stamps:
        a(f's_mov_b32 {s(sStampI)}, 0\nv_mov_b32 {v(vSTMP)}, 0')
        a(f's_memrealtime {s(sTS,2)}\ns_memtime {s(sTS+2,2)}\ns_waitcnt lgkmcnt(0)\nv_writelane_b32 {v(vSTMP)}, {s(sTS)}, 63\nv_writelane_b32 {v(vSTMP)}, {s(sTS+2)}, 62')
    a('''s_cmp_ge_u32 s2, 256
    s_cbranch_scc1 L_ffn''')
    if cfg.prio: a(f's_setprio 2\ns_cmp_gt_u32 {s(sW)}, 1\ns_cbranch_scc1 L_np\ns_setprio 3\nL_np:')
    main_prologue()
    main_loop()
    ffn()
    a('L_end:\ns_endpgm')
    a.raw(f'''.section .rodata,"a"
.p2align 6
.amdhsa_kernel {NAME}_kernel
  .amdhsa_next_free_vgpr 128
  .amdhsa_next_free_sgpr 96
  .amdhsa_accum_offset 128
  .amdhsa_group_segment_fixed_size 0
  .amdhsa_kernarg_size 104
  .amdhsa_user_sgpr_count 2
  .amdhsa_user_sgpr_kernarg_segment_ptr 1
  .amdhsa_system_sgpr_workgroup_id_x 1
.end_amdhsa_kernel''')
    return a.text()
if __name__=='__main__':
    out=sys.argv[1]
    for kv in sys.argv[2:]:
        k,val=kv.split('='); assert hasattr(cfg,k); setattr(cfg,k,int(val))
    open(out,'w').write(build())
    print('instrs',a.count,'nops',a.nops)
```

```python
import sys, struct
from asmlib import Asm
NAME='interleave_layers__spectral_fnet__moe_arch_mod__prompt'
def fbits(x): return '0x%08x' % struct.unpack('<I', struct.pack('<f', x))[0]

class Cfg:
    stamps=0
    tim_arg=20
    tim_y=3
    tim_h=3
    slp_g=2
    slp_l=1
    force_slow=0
    prio=1
    codepf=1
    exp=0
    dbgout=0
    dry=1
    wb=1
    fdelay=0
    gdelay=0
    osc=1
    odel=0
    pfm=7
    clr2=0
    early=1
    wbd=24
    gbdelay=4
    late=1
    split=0
    tch=1
cfg=Cfg()

TABG=0x1000; TABGR=0x6000
TABL=0x2000; ARGR=0x800
TAB2=0x3800
SLOWF=0x4000
YHINT=0x5000
HHINT=0x6000; HHR=0x400
CLR0=0x8000
HBUF=0x8000; HR=0x1000
YBUF=0xA000
SLOT=0x10000; SLOTR=0x8000
LBASE=0x20000; PS=8448; LX=32*PS
GBASE=0x240000; GS=262144+768; GR=0x210000
STAMP=0x700000
WSSZ=0x800000
NWG=512
NST=(13,8,10)
L_STAT=0; L_U=0x400; L_YI=0x2400; YIS=320; L_YT=0x4C00; L_DH=0x6E00; LDS_TOTAL=0x7600
L_CX=0x2400
def v(a,n=1): return f'v{a}' if n==1 else f'v[{a}:{a+n-1}]'
def s(a,n=1): return f's{a}' if n==1 else f's[{a}:{a+n-1}]'

WS='s[8:11]'; XS='s[12:15]'; OS='s[28:31]'
sW=3; sX=26; sJ=27; sIt=32; sTag=33; sFast=34; sKey=35; sMir=36; sDsc=38
sLst=39; sLld=40; sPh=41; sTabG=42; sG0=43; sG4=44; sTabSt=45; sTabLd=46; sSlot=47; sRow0=48; sRow1=49; sCnt=50
sXcc=51; sStampI=37
sK512=52
sTry=53
sEps=54
sC16=56
sSc=58
sM7FF=60; sTop=61
sQmask=62
sT=64
sTS=80
X=2; WV=10; A8=14; XA=16; B1C=20; B1S=24; B1N=28; TWC=32; TWS=36; A2R=40; A2I=44; YC=48; YS=52
AD=56; BC=58
vXoff=72; vStW=73; vStR=74; vUW=75; vUR=76; vLst=77; vLld=78; vLldM=79; vYIW=80; vYIR=81; vYW=82; vYR=83; vGst=84; vGld=85
vSc0=86; vL8=88; vInv=89; vN=90; vQ=91; vSTMP=1; vLane=92; vTG=93
LNP=94; MM=98; RS2=100
T=102
class Asm2(Asm):
    def __call__(self, text):
        parts=text.split(';@F')
        for i,p in enumerate(parts):
            if i: fstamp()
            Asm.__call__(self,p)
a=Asm2()
def poll_branch(lbl, sleep=1, pre='', giveup=None, skip=False, mask=False):
    k=a.lines.index(lbl+':')
    if mask:
        pre+='\ns_mov_b64 exec, vcc'; skip=True
        k2=next(i for i in range(k,len(a.lines)) if 's_waitcnt vmcnt(0)' in a.lines[i])
        k3=max(i for i in range(k,k2) if 'buffer_load' in a.lines[i])
        a.lines.insert(k3+1,'    s_mov_b64 exec, -1')
    if a.lines[k-1].strip().startswith(('s_branch','s_endpgm')): skip=False
    a(f's_cbranch_vccnz {lbl}_r ;!nd')
    st=[]
    if skip: st.append(f'    s_branch {lbl}')
    st.append(f'{lbl}_r:')
    if giveup: st+= [f'    s_sub_u32 {s(sTry)}, {s(sTry)}, 1', f'    s_cbranch_scc1 {giveup}']
    else: st+= [f'    s_sub_u32 {s(sCnt)}, {s(sCnt)}, 1', '    s_cbranch_scc1 L_end']
    st+= ['    '+x.strip() for x in pre.split('\n') if x.strip()]
    if sleep: st.append(f'    s_sleep {sleep}')
    a.lines[k:k]=st
def fstamp():
    if cfg.stamps==2: stamp()
def stamp():
    if not cfg.stamps: return
    a(f'''{'s_memtime' if cfg.stamps==2 else 's_memrealtime'} {s(sTS,2)}
    s_waitcnt lgkmcnt(0)
    s_mov_b32 m0, {s(sStampI)}
    s_add_u32 {s(sStampI)}, {s(sStampI)}, 1
    v_writelane_b32 {v(vSTMP)}, {s(sTS)}, m0''')
def dump_stamps():
    if not cfg.stamps: return
    a(f's_memrealtime {s(sTS,2)}\ns_memtime {s(sTS+2,2)}\ns_waitcnt lgkmcnt(0)\nv_writelane_b32 {v(vSTMP)}, {s(sTS)}, 61\nv_writelane_b32 {v(vSTMP)}, {s(sTS+2)}, 60')
    a(f'''s_lshl_b32 {s(sT)}, s2, 11
    s_lshl_b32 {s(sT+1)}, {s(sW)}, 8
    s_add_u32 {s(sT)}, {s(sT)}, {s(sT+1)}
    s_add_u32 {s(sT)}, {s(sT)}, {STAMP}
    v_lshlrev_b32 {v(vLane)}, 2, {v(vLane)}
    buffer_store_dword {v(vSTMP)}, {v(vLane)}, {WS}, {s(sT)} offen''')
def maxchk(regs, t):
    regs=list(regs)
    a(f'v_max3_u32 {v(t)}, {v(regs[0])}, {v(regs[1])}, {v(regs[2])}')
    rest=regs[3:]
    while len(rest)>=2:
        a(f'v_max3_u32 {v(t)}, {v(t)}, {v(rest[0])}, {v(rest[1])}'); rest=rest[2:]
    if rest: a(f'v_max_u32 {v(t)}, {v(t)}, {v(rest[0])}')
    a(f'v_cmp_eq_u32 vcc, -1, {v(t)}')
def phchk(regs, t):
    regs=list(regs)
    a(f'v_bitop3_b32 {v(t)}, {v(regs[0])}, {v(regs[1])}, {s(sPh)} bitop3:0x7e')
    for r in regs[2:]: a(f'v_bitop3_b32 {v(t)}, {v(t)}, {v(r)}, {s(sPh)} bitop3:0xf6')
    a(f'v_and_b32 {v(t)}, 1, {v(t)}\nv_cmp_ne_u32 vcc, 0, {v(t)}')
def tag4chk(r):
    for k in range(4): a(f'v_xor_b32 {v(r+k)}, {s(sTag)}, {v(r+k)}')
    a(f'v_or3_b32 {v(r)}, {v(r)}, {v(r+1)}, {v(r+2)}\nv_or_b32 {v(r)}, {v(r)}, {v(r+3)}\nv_cmp_ne_u32 vcc, 0, {v(r)}')
DPP='row_mask:0xf bank_mask:0xf'

def fft_core(xr, xi, U, V, F, P, fill1='', fill2=''):
    Ur,Ui=U,U+4
    a(f'v_mfma_f32_16x16x32_f16 {v(Ur,4)}, {v(xr,4)}, {v(B1C,4)}, 0')
    a(f'v_mfma_f32_16x16x32_f16 {v(Ui,4)}, {v(xr,4)}, {v(B1N,4)}, 0')
    if xi is not None:
        a(f'v_mfma_f32_16x16x32_f16 {v(Ur,4)}, {v(xi,4)}, {v(B1S,4)}, {v(Ur,4)}')
        a(f'v_mfma_f32_16x16x32_f16 {v(Ui,4)}, {v(xi,4)}, {v(B1C,4)}, {v(Ui,4)}')
    a(fill1)
    Vr,Vi=V,V+4
    for h in (0,2):
        a(f'v_pk_mul_f32 {v(Vi+h,2)}, {v(Ur+h,2)}, {v(TWS+h,2)}')
    for h in (0,2):
        a(f'v_pk_mul_f32 {v(Vr+h,2)}, {v(Ui+h,2)}, {v(TWS+h,2)}')
    for h in (0,2):
        a(f'v_pk_fma_f32 {v(Vr+h,2)}, {v(Ur+h,2)}, {v(TWC+h,2)}, {v(Vr+h,2)}')
        a(f'v_pk_fma_f32 {v(Vi+h,2)}, {v(Ui+h,2)}, {v(TWC+h,2)}, {v(Vi+h,2)} neg_lo:[0,0,1] neg_hi:[0,0,1]')
    for r in range(4): a(f'v_cvt_pk_f16_f32 {v(P+r)}, {v(Vr+r)}, {v(Vi+r)}')
    a(f'v_mfma_f32_16x16x32_f16 {v(F,4)}, {v(A2R,4)}, {v(P,4)}, 0')
    a(f'v_mfma_f32_16x16x32_f16 {v(F+4,4)}, {v(A2I,4)}, {v(P,4)}, 0')
    a(fill2)
    for r in range(4): a(f'v_cvt_pk_f16_f32 {v(P+r)}, {v(F+r)}, {v(F+4+r)}')

SENT=T+4

def main_prologue():
    t=T
    X0=BC
    a(f'''
    s_lshl_b32 {s(sRow0)}, s2, 10
    s_add_u32 {s(sRow1)}, {s(sRow0)}, 0x40000
    s_lshl_b32 {s(sT)}, {s(sW)}, 7
    v_lshl_add_u32 {v(vUW)}, {v(vN)}, 3, {s(sT)}                 ; 128w+8n
    v_lshl_add_u32 {v(vXoff)}, {v(vQ)}, 19, {v(vUW)}
    s_mov_b32 s14, 0x200000
    s_mov_b32 s15, 0x20000
    s_mul_i32 {s(sLld)}, {s(sX)}, {LX}
    s_add_u32 {s(sLld)}, {s(sLld)}, {LBASE}
    s_mul_i32 {s(sLst)}, {s(sJ)}, {PS}
    s_add_u32 {s(sLst)}, {s(sLst)}, {s(sLld)}
    v_lshlrev_b32 {v(t)}, 4, v0
    v_lshrrev_b32 {v(t+1)}, 4, v0
    s_waitcnt lgkmcnt(0)
    buffer_load_dwordx2 {v(X0,2)}, {v(vXoff)}, {XS}, {s(sRow0)} offen
    buffer_load_dwordx2 {v(X0+2,2)}, {v(vXoff)}, {XS}, {s(sRow1)} offen
    global_load_dwordx2 {v(X0+4,2)}, {v(vUW)}, s[16:17]
    buffer_load_dword {v(X0+6)}, off, {WS}, 0 sc1
    ''')
    tabt=f'buffer_load_dword {v(X0+7)}, {v(vL8)}, {WS}, {s(sTabLd)} offen sc1'
    ltch=f'buffer_load_dwordx4 {v(X0+8,4)}, {v(t)}, {WS}, {s(sLst)} offen sc1'
    lclr=f'buffer_store_dwordx4 {v(SENT,4)}, {v(t)}, {WS}, {s(sLst)} offen'
    if cfg.tch==0: a(tabt+'\n'+ltch+'\n'+lclr)
    if cfg.tch==1: a(tabt+'\n'+ltch)
    if cfg.tch==2: a(tabt+'\n'+lclr+'\n'+ltch)
    if cfg.tch==3: a(ltch.replace(' sc1','')+'\n'+ltch.replace(' sc1','')+'\n'+lclr)
    a(f'''
    s_mov_b32 {s(sG0)}, {GBASE}
    s_mul_i32 {s(sT)}, {s(sX)}, {GS}
    s_add_u32 {s(sT+2)}, {s(sJ)}, 24
    s_and_b32 {s(sT+2)}, {s(sT+2)}, 24
    s_lshl_b32 {s(sT+2)}, {s(sT+2)}, 13
    s_add_u32 {s(sT)}, {s(sT)}, {s(sT+2)}
    s_and_b32 {s(sT+2)}, {s(sJ)}, 7
    s_cmp_lt_u32 {s(sJ)}, 8
    s_cselect_b32 {s(sT+3)}, 7, 8
    s_cselect_b32 {s(sT+4)}, 112, 0
    s_lshl_b32 {s(sT+2)}, {s(sT+2)}, {s(sT+3)}
    s_add_u32 {s(sT)}, {s(sT)}, {s(sT+2)}
    v_lshlrev_b32 {v(t+2)}, 4, {v(vN)}
    v_lshl_add_u32 {v(vGst)}, {v(t+1)}, 11, {v(t+2)}
    v_and_b32 {v(t+3)}, 8, {v(vN)}
    v_mad_u32_u24 {v(vGst)}, {v(t+3)}, {s(sT+4)}, {v(vGst)}
    v_add_u32 {v(vGst)}, {s(sT)}, {v(vGst)}
    buffer_store_dwordx4 {v(SENT,4)}, {v(vGst)}, {WS}, {s(sG0)} offen sc1
    s_lshl_b32 {s(sT)}, s2, 13
    s_add_u32 {s(sT)}, {s(sT)}, {CLR0}
    s_cmp_lt_u32 s2, 12
    s_cselect_b32 {s(sT)}, {s(sT)}, {WSSZ}
    buffer_store_dwordx4 {v(SENT,4)}, {v(t)}, {WS}, {s(sT)} offen sc1
    ''')
    c=t+8; co,si=c+8,c+12
    a(f'''
    s_lshr_b32 {s(sT)}, {s(sJ)}, 2
    s_and_b32 {s(sT)}, {s(sT)}, 6                 ; 2*(j>>3)
    s_lshl_b32 {s(sT+1)}, {s(sW)}, 2
    s_and_b32 {s(sT+1)}, {s(sT+1)}, 8             ; 2*4*((w>>1)&1)
    s_cmp_lt_u32 {s(sJ)}, 8
    s_cselect_b32 {s(sT)}, {s(sT+1)}, {s(sT)}
    s_lshl_b32 {s(sT+1)}, {s(sW)}, 4
    s_and_b32 {s(sT+1)}, {s(sT+1)}, 16            ; 16*(w&1)
    s_cmp_ge_u32 {s(sW)}, 4
    s_cselect_b32 {s(sT+2)}, {s(sT+1)}, 0         ; 16k
    s_cselect_b32 {s(sT)}, {s(sT)}, 0
    s_cmp_eq_u32 {s(sW)}, 3
    s_cselect_b32 {s(sT)}, 16, {s(sT)}
    s_lshl_b32 {s(sT+3)}, {s(sW)}, 2
    s_lshr_b32 {s(sT+3)}, 0x44440054, {s(sT+3)}
    s_and_b32 {s(sT+3)}, {s(sT+3)}, 15            ; log2 A
    v_lshlrev_b32 {v(c)}, {s(sT+3)}, {v(vN)}
    v_add_u32 {v(c)}, {s(sT)}, {v(c)}
    v_lshl_add_u32 {v(c+1)}, {v(vQ)}, 2, {s(sT+2)}
    v_cvt_f32_u32 {v(c)}, {v(c)}
    v_cvt_f32_u32 {v(c+1)}, {v(c+1)}
    s_mov_b32 {s(sK512)}, {fbits(1/512)}
    v_mul_f32 {v(c)}, {s(sK512)}, {v(c)}
    v_mul_f32 {v(c+4)}, {v(c+1)}, {v(c)}
    v_add_f32 {v(c+5)}, {v(c+4)}, {v(c)}
    v_add_f32 {v(c+6)}, {v(c+5)}, {v(c)}
    v_add_f32 {v(c+7)}, {v(c+6)}, {v(c)}
    ''')
    fill=[f's_mov_b32 {s(sEps)}, {fbits(1e-5)}', f's_mov_b32 {s(sEps+1)}, {fbits(1e-5)}', f's_mov_b32 {s(sC16)}, {fbits(1/16)}', f's_mov_b32 {s(sC16+1)}, {fbits(1/16)}',
          f's_mov_b32 {s(sTop)}, 0x80000000', f's_mov_b32 {s(sQmask)}, 0x11111111', f's_mov_b32 {s(sQmask+1)}, 0x11111111', f's_mov_b32 {s(sG4)}, {GBASE+4*GS}']
    for r in range(4):
        a(f'v_cos_f32 {v(co+r)}, {v(c+4+r)}'); a(fill[2*r])
        a(f'v_sin_f32 {v(si+r)}, {v(c+4+r)}'); a(fill[2*r+1])
    a(f'''
    s_lshl_b32 {s(sT)}, {s(sW)}, 11
    s_add_u32 {s(sT)}, {s(sT)}, {L_CX}
    v_lshlrev_b32 {v(c+2)}, 4, {v(vLane)}
    v_add_u32 {v(c+3)}, {s(sT)}, {v(c+2)}
    s_and_b32 {s(sT)}, {s(sW)}, 6
    s_cmp_eq_u32 {s(sT)}, 2
    s_cbranch_scc1 L_cw
    s_cmp_eq_u32 {s(sW)}, 1
    s_cbranch_scc1 L_cri
    v_cvt_pk_f16_f32 {v(co)}, {v(co)}, {v(co+1)}
    v_cvt_pk_f16_f32 {v(co+1)}, {v(co+2)}, {v(co+3)}
    v_cvt_pk_f16_f32 {v(co+2)}, {v(si)}, {v(si+1)}
    v_cvt_pk_f16_f32 {v(co+3)}, {v(si+2)}, {v(si+3)}
    s_branch L_cw
    L_cri:
    ''')
    for r in range(4):
        a(f'v_cvt_pk_f16_f32 {v(c+4)}, {v(co+r)}, {v(si+r)}')
        a(f'v_cvt_pk_f16_f32 {v(si+r)}, -{v(si+r)}, {v(co+r)}')
        a(f'v_mov_b32 {v(co+r)}, {v(c+4)}')
    a(f'''
    L_cw:
    ds_write_b128 {v(c+3)}, {v(co,4)}
    ds_write_b128 {v(c+3)}, {v(si,4)} offset:1024
    v_lshrrev_b32 {v(c+4)}, 2, {v(vN)}
    v_and_b32 {v(c+5)}, 2, {v(vN)}
    v_and_b32 {v(c+6)}, 14, {v(vN)}
    v_cmp_eq_u32 vcc, 2, {v(c+6)}
    v_mul_u32_u24 {v(vYIR)}, {YIS}, {v(c+4)}
    v_lshlrev_b32 {v(vStR)}, 8, {v(vQ)}
    v_cndmask_b32 {v(c+4)}, {v(c+4)}, 4, vcc
    v_cndmask_b32 {v(c+5)}, {v(c+5)}, 0, vcc
    v_mul_u32_u24 {v(c+6)}, {v(c+4)}, {v(vQ)}
    v_lshl_add_u32 {v(c+6)}, {v(c+6)}, 1, {v(c+5)}
    v_add_u32 {v(c+7)}, {v(c+6)}, {v(c+4)}
    v_cvt_f32_u32 {v(c+6)}, {v(c+6)}
    v_cvt_f32_u32 {v(c+7)}, {v(c+7)}
    v_mul_f32 {v(c+6)}, 0x3e000000, {v(c+6)}
    v_mul_f32 {v(c+7)}, 0x3e000000, {v(c+7)}
    v_cos_f32 {v(c+6)}, {v(c+6)}
    v_cos_f32 {v(c+7)}, {v(c+7)}
    v_and_b32 {v(c+5)}, 1, {v(vN)}
    v_cmp_eq_u32 vcc, 0, {v(c+5)}
    v_cvt_pk_f16_f32 {v(c+6)}, {v(c+6)}, {v(c+7)}
    v_mov_b32 {v(c+5)}, 0x80008000
    v_cndmask_b32 {v(A8)}, 0, {v(c+6)}, vcc
    v_cndmask_b32 {v(A8+1)}, {v(c+6)}, 0, vcc
    v_cndmask_b32 {v(c+5)}, {v(c+5)}, 0, vcc
    s_lshl_b32 {s(sT+1)}, {s(sT+1)}, 7            ; h*2048
    v_add_u32 {v(c+6)}, {s(sT+1)}, {v(c+2)}
    s_lshl_b32 {s(sT+2)}, {s(sW)}, 11
    s_and_b32 {s(sT+2)}, {s(sT+2)}, 4096          ; ((w>>1)&1)*4096
    v_add_u32 {v(c+7)}, {s(sT+2)}, {v(c+2)}
    s_waitcnt lgkmcnt(0)
    s_barrier
    ds_read_b128 {v(B1N,4)}, {v(c+2)} offset:{L_CX}
    ds_read_b128 {v(co,4)}, {v(c+7)} offset:{L_CX+4*2048}
    ds_read_b128 {v(si,4)}, {v(c+7)} offset:{L_CX+5*2048}
    ds_read_b128 {v(A2R,4)}, {v(c+2)} offset:{L_CX+2048}
    ds_read_b128 {v(A2I,4)}, {v(c+2)} offset:{L_CX+2048+1024}
    ds_read_b128 {v(TWC,4)}, {v(c+6)} offset:{L_CX+4096}
    ds_read_b128 {v(TWS,4)}, {v(c+6)} offset:{L_CX+4096+1024}
    v_and_b32 {v(c+4)}, 4, {v(vN)}
    s_lshl_b32 {s(sT)}, {s(sW)}, 2
    v_lshl_add_u32 {v(vStW)}, {v(t+3)}, 2, {v(vStR)}
    v_lshl_add_u32 {v(vStW)}, {v(c+4)}, 4, {v(vStW)}
    v_add_u32 {v(vStW)}, {s(sT)}, {v(vStW)}
    v_and_b32 {v(c+4)}, 7, {v(vN)}
    v_lshl_add_u32 {v(vStR)}, {v(c+4)}, 5, {v(vStR)}
    v_lshl_add_u32 {v(vUW)}, {v(vQ)}, 11, {v(vUW)}
    v_add_u32 {v(vUW)}, {L_U}, {v(vUW)}
    s_lshr_b32 {s(sT)}, {s(sW)}, 1
    s_lshl_b32 {s(sT)}, {s(sT)}, 11
    s_add_u32 {s(sT+2)}, {s(sT)}, {L_U}
    v_lshl_add_u32 {v(vUR)}, {v(vLane)}, 3, {s(sT+2)}
    ; vLst = w'*2048 + 512q + 64h + 4n
    s_lshr_b32 {s(sT+2)}, {s(sT+1)}, 5
    s_add_u32 {s(sT)}, {s(sT)}, {s(sT+2)}
    v_lshl_add_u32 {v(vLst)}, {v(vQ)}, 9, {s(sT)}
    v_lshl_add_u32 {v(vLst)}, {v(vN)}, 2, {v(vLst)}
    s_lshl_b32 {s(sT)}, {s(sJ)}, 3
    s_add_u32 {s(sTabSt)}, {s(sTabLd)}, {s(sT)}
    s_lshl_b32 {s(sT+3)}, {s(sW)}, 31             ; h sign
    s_lshl_b32 {s(sT+4)}, {s(sW)}, 29
    s_and_b32 {s(sT+4)}, {s(sT+4)}, {s(sTop)}
    s_mov_b32 {s(sT+5)}, 0x80008000
    s_mov_b32 {s(sIt)}, 0
    s_mov_b32 {s(sFast)}, 1
    s_mov_b32 {s(sPh)}, 0
    s_mov_b32 {s(sSlot)}, {WSSZ}
    s_mov_b32 {s(sTry)}, 40
    s_waitcnt lgkmcnt(4)
    v_xor_b32 {v(B1C)}, {s(sT+3)}, {v(B1N)}
    v_xor_b32 {v(B1C+1)}, {s(sT+3)}, {v(B1N+1)}
    v_xor_b32 {v(B1S)}, {s(sT+3)}, {v(B1N+2)}
    v_xor_b32 {v(B1S+1)}, {s(sT+3)}, {v(B1N+3)}
    v_xor_b32 {v(B1C+2)}, {v(B1C)}, {v(c+5)}
    v_xor_b32 {v(B1C+3)}, {v(B1C+1)}, {v(c+5)}
    v_xor_b32 {v(B1S+2)}, {v(B1S)}, {v(c+5)}
    v_xor_b32 {v(B1S+3)}, {v(B1S+1)}, {v(c+5)}
    ''')
    for r in range(4): a(f'v_xor_b32 {v(B1N+r)}, {s(sT+5)}, {v(B1S+r)}')
    for k,src in ((0,co),(1,si)):
        for r in range(2):
            a(f'v_xor_b32 {v(YC+2*k+r)}, {s(sT+4)}, {v(src+r)}')
            a(f'v_xor_b32 {v(YS+2*k+r)}, {s(sT+4)}, {v(src+2+r)}')
    a(f'''
    s_and_b32 {s(sT+1)}, {s(sW)}, 3
    s_lshl_b32 {s(sT+1)}, {s(sT+1)}, 6            ; 64cb
    s_lshr_b32 {s(sT)}, {s(sW)}, 2
    s_mul_i32 {s(sT)}, {s(sT)}, {16*272}
    s_add_u32 {s(sT)}, {s(sT)}, {s(sT+1)}
    s_add_u32 {s(sT)}, {s(sT)}, {L_YT}
    v_mul_u32_u24 {v(vYW)}, 272, {v(vN)}
    v_lshl_add_u32 {v(vYW)}, {v(vQ)}, 4, {v(vYW)}
    v_add_u32 {v(vYW)}, {s(sT)}, {v(vYW)}
    v_mul_u32_u24 {v(vYR)}, 272, {v(t+1)}
    v_add_u32 {v(vYR)}, {v(vYR)}, {v(t+2)}
    v_add_u32 {v(vYR)}, {L_YT}, {v(vYR)}
    s_add_u32 {s(sT+1)}, {s(sT+1)}, {L_YI}
    v_mul_u32_u24 {v(c+4)}, {4*YIS}, {v(vQ)}
    v_and_b32 {v(c+6)}, 0x30, {v(t+2)}
    v_add3_u32 {v(vYIR)}, {v(vYIR)}, {v(c+4)}, {v(c+6)}
    v_add_u32 {v(vYIR)}, {s(sT+1)}, {v(vYIR)}
    s_cmp_lt_u32 {s(sJ)}, 8
    s_cbranch_scc1 L_aself
    v_mul_u32_u24 {v(vLld)}, {PS}, {v(t+1)}
    v_mul_u32_u24 {v(vYIW)}, {YIS}, {v(t+1)}
    s_lshl_b32 {s(sT)}, {s(sJ)}, 8
    v_add3_u32 {v(vLld)}, {v(vLld)}, {v(t+2)}, {s(sT)}
    v_add_u32 {v(vYIW)}, {v(vYIW)}, {v(t+2)}
    v_mov_b32 {v(vLldM)}, 0
    s_branch L_adone
    L_aself:
    ; s2=(w>>1)*8+(l>>3), u=l&7, which=w&1
    s_lshl_b32 {s(sT)}, {s(sW)}, 2
    s_and_b32 {s(sT)}, {s(sT)}, 24
    v_lshrrev_b32 {v(c+4)}, 3, {v(vLane)}
    v_add_u32 {v(c+4)}, {s(sT)}, {v(c+4)}
    v_and_b32 {v(c+6)}, 0x70, {v(t+2)}
    v_mul_u32_u24 {v(vLldM)}, {PS}, {v(c+4)}
    v_mul_u32_u24 {v(vYIW)}, {YIS}, {v(c+4)}
    s_lshl_b32 {s(sT)}, {s(sJ)}, 7
    s_add_u32 {s(sT+1)}, {s(sT)}, 4
    s_sub_u32 {s(sT)}, {508*4}, {s(sT)}
    v_add3_u32 {v(vLld)}, {v(vLldM)}, {v(c+6)}, {s(sT+1)}
    v_sub_u32 {v(vLldM)}, {v(vLldM)}, {v(c+6)}
    v_add_u32 {v(vLldM)}, {s(sT)}, {v(vLldM)}
    s_lshr_b32 {s(sT)}, {s(sT+3)}, 24
    v_add3_u32 {v(vYIW)}, {v(vYIW)}, {v(c+6)}, {s(sT)}
    L_adone:
    v_add_u32 {v(vYIW)}, {L_YI}, {v(vYIW)}
    s_waitcnt vmcnt({4 if cfg.late else 2 if cfg.tch==1 else 5})
    {lclr if cfg.tch==1 and not cfg.late else ''}
    v_readfirstlane_b32 {s(sTag)}, {v(X0+6)}
    ''')
    for rho in (0,1):
        for k in (0,1):
            src=X0+2*rho+k
            a(f'v_lshlrev_b32 {v(X+4*k+rho)}, 16, {v(src)}')
            a(f'v_and_b32 {v(X+4*k+2+rho)}, 0xffff0000, {v(src)}')
    for k in (0,1):
        a(f'v_lshlrev_b32 {v(WV+2*k)}, 16, {v(X0+4+k)}')
        a(f'v_and_b32 {v(WV+2*k+1)}, 0xffff0000, {v(X0+4+k)}')
    a(f's_add_u32 {s(sTag)}, {s(sTag)}, 1')

def xin_consts(c):
    a(f'''
    s_and_b32 {s(sT)}, {s(sX)}, 3                ; 0 => self
    s_lshr_b32 {s(sT+1)}, {s(sW)}, 2
    s_lshr_b32 {s(sT+2)}, {s(sX)}, 2
    s_mov_b32 {s(sSc)}, {fbits(16.0)}
    s_cmp_eq_u32 {s(sT)}, 0
    s_cselect_b32 {s(sMir)}, {s(sT+1)}, {s(sT+2)}
    s_cselect_b32 {s(sSc)}, {fbits(8.0)}, {s(sSc)}
    s_cselect_b32 {s(sDsc)}, {fbits(1/8)}, {s(sC16)}
    s_cselect_b32 {s(sT+3)}, -4, 0
    s_mov_b32 {s(sSc+1)}, {s(sSc)}
    s_sub_u32 {s(sT+4)}, 256, s2
    s_and_b32 {s(sT+4)}, {s(sT+4)}, 255
    s_cmp_eq_u32 {s(sMir)}, 0
    s_cselect_b32 {s(sT+4)}, s2, {s(sT+4)}       ; source g
    s_cselect_b32 {s(sT+5)}, 16, -16
    s_cselect_b32 {s(sT+6)}, 0, {509*4}
    s_cselect_b32 {s(sT+7)}, 1.0, -1.0
    s_add_u32 {s(sT+3)}, {s(sT+3)}, {s(sT+6)}
    s_mul_i32 {s(sT+6)}, {s(sT+5)}, {s(sW)}
    s_lshl_b32 {s(sT+6)}, {s(sT+6)}, 4
    s_add_u32 {s(sT+3)}, {s(sT+3)}, {s(sT+6)}
    s_lshr_b32 {s(sT+6)}, {s(sT+4)}, 3
    s_lshl_b32 {s(sT+6)}, {s(sT+6)}, 11
    s_add_u32 {s(sT+3)}, {s(sT+3)}, {s(sT+6)}
    s_add_u32 {s(sT+6)}, {s(sT+4)}, 3
    s_and_b32 {s(sT+6)}, {s(sT+6)}, 3
    s_lshl_b32 {s(sT+6)}, {s(sT+6)}, 16
    s_add_u32 {s(sT+3)}, {s(sT+3)}, {s(sT+6)}
    s_and_b32 {s(sT+6)}, {s(sT+4)}, 4
    s_lshl_b32 {s(sT+6)}, {s(sT+6)}, 8
    s_add_u32 {s(sT+3)}, {s(sT+3)}, {s(sT+6)}
    v_mul_i32_i24 {v(vGld)}, {s(sT+5)}, {v(vN)}
    v_mul_u32_u24 {v(c+4)}, {GS}, {v(vQ)}
    v_add3_u32 {v(vGld)}, {v(vGld)}, {v(c+4)}, {s(sT+3)}
    v_lshrrev_b32 {v(c+4)}, 1, {v(vN)}
    v_and_b32 {v(c+4)}, 6, {v(c+4)}
    v_and_or_b32 {v(c+4)}, {v(vN)}, 1, {v(c+4)}
    v_lshl_add_u32 {v(AD)}, {v(c+4)}, 8, s2
    v_cvt_f32_u32 {v(c+4)}, {v(AD)}
    v_cvt_f32_u32 {v(c+5)}, {v(vQ)}
    v_mul_f32 {v(c+4)}, {fbits(1/2048)}, {v(c+4)}
    v_mul_f32 {v(c+4)}, {s(sT+7)}, {v(c+4)}
    v_mul_f32 {v(c+5)}, {v(c+4)}, {v(c+5)}
    v_fma_f32 {v(c+6)}, {v(c+4)}, 4.0, {v(c+5)}
    v_cos_f32 {v(c+7)}, {v(c+5)}
    v_sin_f32 {v(c+8)}, {v(c+5)}
    v_cos_f32 {v(c+9)}, {v(c+6)}
    v_sin_f32 {v(c+10)}, {v(c+6)}
    v_bfe_u32 {v(c+4)}, {v(vN)}, 1, 1
    v_cmp_eq_u32 vcc, {s(sMir)}, {v(c+4)}
    v_cvt_pk_f16_f32 {v(c+7)}, {v(c+7)}, {v(c+8)}
    v_cvt_pk_f16_f32 {v(c+9)}, {v(c+9)}, {v(c+10)}
    v_cndmask_b32 {v(XA)}, 0, {v(c+7)}, vcc
    v_cndmask_b32 {v(XA+1)}, {v(c+7)}, 0, vcc
    v_cndmask_b32 {v(XA+2)}, 0, {v(c+9)}, vcc
    v_cndmask_b32 {v(XA+3)}, {v(c+9)}, 0, vcc
    v_and_b32 {v(c+4)}, 0x1cf, v0
    v_cmp_eq_u32 vcc, 0, {v(c+4)}
    v_mov_b32 {v(c+5)}, {s(sSc)}
    s_sub_u32 {s(sT)}, 2047, s2
    v_lshlrev_b32 {v(vInv)}, 9, {v(vQ)}
    v_cndmask_b32 {v(vSc0)}, {v(c+5)}, 0, vcc
    v_cndmask_b32 {v(vSc0+1)}, {v(c+5)}, 0, vcc
    v_sub_u32 {v(vInv)}, {s(sT)}, {v(vInv)}
    s_lshl_b32 {s(sSlot)}, {s(sX)}, 12
    s_add_u32 {s(sSlot)}, {s(sSlot)}, {SLOT}
    s_lshl_b32 {s(sTabG)}, {s(sW)}, 9
    s_add_u32 {s(sTabG)}, {s(sTabG)}, {TABG+TABGR}
    s_mov_b32 {s(sPh)}, -1
    ''')

def main_loop():
    t=T
    S1,S2,S3=t,t+2,t+4
    a('L_top:')
    stamp()
    a(f'''
    v_pk_add_f32 {v(S1,2)}, {v(X,2)}, {v(X+2,2)}
    v_pk_add_f32 {v(t+6,2)}, {v(X+4,2)}, {v(X+6,2)}
    v_pk_mul_f32 {v(S2,2)}, {v(X,2)}, {v(X,2)}
    v_pk_mul_f32 {v(S3,2)}, {v(X,2)}, {v(WV,2)} op_sel:[0,0] op_sel_hi:[1,0]
    v_pk_add_f32 {v(S1,2)}, {v(S1,2)}, {v(t+6,2)}
    v_pk_fma_f32 {v(S2,2)}, {v(X+2,2)}, {v(X+2,2)}, {v(S2,2)}
    v_pk_fma_f32 {v(S3,2)}, {v(X+2,2)}, {v(WV,2)}, {v(S3,2)} op_sel:[0,1,0] op_sel_hi:[1,1,1]
    v_add_f32_dpp {v(S1)}, {v(S1)}, {v(S1)} row_ror:8 row_mask:0xf bank_mask:0x3
    v_pk_fma_f32 {v(S2,2)}, {v(X+4,2)}, {v(X+4,2)}, {v(S2,2)}
    v_pk_fma_f32 {v(S3,2)}, {v(X+4,2)}, {v(WV+2,2)}, {v(S3,2)} op_sel:[0,0,0] op_sel_hi:[1,0,1]
    v_add_f32_dpp {v(S1)}, {v(S1+1)}, {v(S1+1)} row_ror:8 row_mask:0xf bank_mask:0xc
    v_pk_fma_f32 {v(S2,2)}, {v(X+6,2)}, {v(X+6,2)}, {v(S2,2)}
    v_pk_fma_f32 {v(S3,2)}, {v(X+6,2)}, {v(WV+2,2)}, {v(S3,2)} op_sel:[0,1,0] op_sel_hi:[1,1,1]
    s_cmp_eq_u32 {s(sIt)}, 0
    s_cbranch_scc1 L_s3w
    L_s3ok:
    v_add_f32_dpp {v(S1)}, {v(S1)}, {v(S1)} row_half_mirror row_mask:0xf bank_mask:0x5
    v_add_f32_dpp {v(S2)}, {v(S2)}, {v(S2)} row_ror:8 row_mask:0xf bank_mask:0x3
    v_add_f32_dpp {v(S3)}, {v(S3)}, {v(S3)} row_ror:8 row_mask:0xf bank_mask:0x3
    v_add_f32_dpp {v(S2)}, {v(S2+1)}, {v(S2+1)} row_ror:8 row_mask:0xf bank_mask:0xc
    v_add_f32_dpp {v(S3)}, {v(S3+1)}, {v(S3+1)} row_ror:8 row_mask:0xf bank_mask:0xc
    v_add_f32_dpp {v(S1)}, {v(S2)}, {v(S2)} row_half_mirror row_mask:0xf bank_mask:0xa
    v_add_f32_dpp {v(S3)}, {v(S3)}, {v(S3)} row_half_mirror {DPP}
    v_add_f32_dpp {v(S1)}, {v(S1)}, {v(S1)} quad_perm:[1,0,3,2] {DPP}
    v_add_f32_dpp {v(S3)}, {v(S3)}, {v(S3)} quad_perm:[1,0,3,2] {DPP}
    v_add_f32_dpp {v(S1)}, {v(S1)}, {v(S1)} quad_perm:[2,3,0,1] {DPP}
    v_add_f32_dpp {v(S3)}, {v(S3)}, {v(S3)} quad_perm:[2,3,0,1] {DPP}
    s_mov_b64 exec, {s(sQmask,2)}
    ds_write2_b32 {v(vStW)}, {v(S1)}, {v(S3)} offset0:0 offset1:32
    s_mov_b64 exec, -1
    ;@F
    s_waitcnt {'' if cfg.late else 'vmcnt(0)' if cfg.tch==1 else 'vmcnt(2)'} lgkmcnt(0)
    s_barrier
    ;@F
    ds_read_b128 {v(t,4)}, {v(vStR)}
    ds_read_b128 {v(t+4,4)}, {v(vStR)} offset:16
    s_waitcnt lgkmcnt(0)
    v_pk_add_f32 {v(t,2)}, {v(t,2)}, {v(t+2,2)}
    v_pk_add_f32 {v(t+4,2)}, {v(t+4,2)}, {v(t+6,2)}
    v_pk_add_f32 {v(t,2)}, {v(t,2)}, {v(t+4,2)}
    v_add_f32 {v(t)}, {v(t)}, {v(t+1)}
    v_mul_f32 {v(t+7)}, {s(sK512)}, {v(t)}
    ''')
    VAR,RS,CC,NM=t+8,t+10,t+12,t+14
    K=t+16
    a(f'''
    v_mov_b32_dpp {v(MM)}, {v(t+7)} row_newbcast:0 {DPP}
    v_mov_b32_dpp {v(MM+1)}, {v(t+7)} row_newbcast:1 {DPP}
    v_mov_b32_dpp {v(S2)}, {v(t+7)} row_newbcast:2 {DPP}
    v_mov_b32_dpp {v(S2+1)}, {v(t+7)} row_newbcast:3 {DPP}
    v_mov_b32_dpp {v(S3)}, {v(t+7)} row_newbcast:4 {DPP}
    v_pk_fma_f32 {v(VAR,2)}, {v(MM,2)}, {v(MM,2)}, {v(S2,2)} neg_lo:[1,0,0] neg_hi:[1,0,0]
    v_mov_b32_dpp {v(S3+1)}, {v(t+7)} row_newbcast:5 {DPP}
    v_pk_add_f32 {v(S1,2)}, {v(VAR,2)}, {s(sEps,2)}
    s_cmp_eq_u32 {s(sIt)}, 0
    v_rsq_f32_e64 {v(RS)}, |{v(S1)}|
    v_rsq_f32_e64 {v(RS+1)}, |{v(S1+1)}|
    s_cbranch_scc1 L_it0 ;!nd
    v_pk_mul_f32 {v(S3,2)}, {v(S3,2)}, {v(RS,2)}
    v_add_u32 {v(K+2)}, 0xffffff00, {v(vInv)}
    v_ashrrev_i32 {v(K)}, 31, {v(S3)}
    v_ashrrev_i32 {v(K+1)}, 31, {v(S3+1)}
    v_bitop3_b32 {v(K)}, {v(S3)}, {v(K)}, {s(sTop)} bitop3:0x1e
    v_bitop3_b32 {v(K+1)}, {v(S3+1)}, {v(K+1)}, {s(sTop)} bitop3:0x1e
    v_bfi_b32 {v(K)}, {s(sM7FF)}, {v(vInv)}, {v(K)}
    v_bfi_b32 {v(K+1)}, {s(sM7FF)}, {v(K+2)}, {v(K+1)}
    v_max_u32 {v(K+1)}, {v(K)}, {v(K+1)}
    v_pk_add_f32 {v(CC,2)}, {v(RS,2)}, 1.0 op_sel_hi:[1,0]
    v_mov_b32 {v(K)}, {s(sTag)}
    v_max_u32_dpp {v(K+1)}, {v(K+1)}, {v(K+1)} row_bcast:15 row_mask:0xa bank_mask:0xf
    v_pk_mul_f32 {v(VAR,2)}, {v(VAR,2)}, {v(CC,2)}
    s_cmp_lg_u32 {s(sW)}, 0
    v_max_u32_dpp {v(K+1)}, {v(K+1)}, {v(K+1)} row_bcast:31 row_mask:0xc bank_mask:0xf
    s_cbranch_scc1 L_nost ;!nd
    s_mov_b32 exec_lo, 0
    s_mov_b32 exec_hi, {s(sTop)}
    s_cmp_eq_u32 {s(sFast)}, 0
    s_cbranch_scc1 L_tabst_slow ;!nd
    buffer_store_dwordx2 {v(K,2)}, off, {WS}, {s(sTabSt)}
    L_tabst_back:
    s_mov_b64 exec, -1
    L_nost:
    v_readlane_b32 {s(sKey)}, {v(K+1)}, 63
    v_pk_mul_f32 {v(NM,2)}, {v(MM,2)}, {v(RS,2)}
    v_pk_fma_f32 {v(VAR,2)}, {v(VAR,2)}, {v(CC,2)}, {s(sEps,2)}
    ''')
    Z=t+18
    for c_ in range(4):
        a(f'v_pk_fma_f32 {v(Z+2*c_,2)}, {v(X+2*c_,2)}, {v(RS,2)}, {v(NM,2)} neg_lo:[0,0,1] neg_hi:[0,0,1]')
        if c_==0: a(f'v_rsq_f32_e64 {v(RS2)}, |{v(VAR)}|')
        if c_==1: a(f'v_rsq_f32_e64 {v(RS2+1)}, |{v(VAR+1)}|')
    for c_ in range(4):
        a(f'v_pk_add_f32 {v(X+2*c_,2)}, {v(X+2*c_,2)}, {v(Z+2*c_,2)}')
    for rho in (0,1):
        for k in (0,1):
            a(f'v_cvt_pk_bf16_f32 {v(LNP+2*rho+k)}, {v(Z+4*k+rho)}, {v(Z+4*k+2+rho)}')
    a(f'''
    s_cmp_eq_u32 {s(sIt)}, 2
    s_cbranch_scc1 L_tab ;!nd
    v_pk_mul_f32 {v(CC,2)}, {v(RS2,2)}, {s(sC16,2)}
    L_z:
    ;@F
    ''')
    ZP=t; D0=t+4; D1=t+8
    a(f'v_pk_mul_f32 {v(NM,2)}, {v(MM,2)}, {v(CC,2)}')
    for c_ in range(4):
        a(f'v_pk_fma_f32 {v(Z+2*c_,2)}, {v(X+2*c_,2)}, {v(CC,2)}, {v(NM,2)} neg_lo:[0,0,1] neg_hi:[0,0,1]')
    for c_ in range(4): a(f'v_cvt_pk_f16_f32 {v(ZP+c_)}, {v(Z+2*c_)}, {v(Z+2*c_+1)}')
    a(f'''
    v_mfma_f32_16x16x16_f16 {v(D0,4)}, {v(A8,2)}, {v(ZP,2)}, 0
    v_mfma_f32_16x16x16_f16 {v(D1,4)}, {v(A8,2)}, {v(ZP+2,2)}, 0
    s_nop 6
    v_cvt_pk_f16_f32 {v(ZP)}, {v(D0)}, {v(D0+1)}
    v_cvt_pk_f16_f32 {v(ZP+1)}, {v(D1)}, {v(D1+1)}
    v_cvt_pk_f16_f32 {v(ZP+2)}, {v(D0+2)}, {v(D0+3)}
    v_cvt_pk_f16_f32 {v(ZP+3)}, {v(D1+2)}, {v(D1+3)}
    ds_write_b64 {v(vUW)}, {v(ZP,2)}
    ds_write_b64 {v(vUW)}, {v(ZP+2,2)} offset:1024
    ;@F
    s_waitcnt lgkmcnt(0)
    s_barrier
    ;@F
    ds_read_b64_tr_b16 {v(t,2)}, {v(vUR)}
    ds_read_b64_tr_b16 {v(t+2,2)}, {v(vUR)} offset:512
    ds_read_b64_tr_b16 {v(t+4,2)}, {v(vUR)} offset:1024
    ds_read_b64_tr_b16 {v(t+6,2)}, {v(vUR)} offset:1536
    s_cmp_eq_u32 {s(sIt)}, 0
    s_cbranch_scc1 L_tg2 ;!nd
    buffer_load_dwordx2 {v(t+24,2)}, {v(vL8)}, {WS}, {s(sTabLd)} offen sc1
    v_lshlrev_b32 {v(vTG)}, 1, {v(vL8)}
    buffer_load_dword {v(vTG)}, {v(vTG)}, {WS}, {s(sTabG)} offen sc1
    L_tg2:
    s_waitcnt lgkmcnt(0)
    ;@F
    ''')
    P=t
    fft_core(t, t+4, t+8, t+16, t+8, P)
    for r in range(4): a(f'v_bfi_b32 {v(P+r)}, 1, {s(sPh)}, {v(P+r)}')
    def lstores(fl):
        for r in range(4): a(f'buffer_store_dword {v(P+r)}, {v(vLst)}, {WS}, {s(sLst)} offen offset:{128*r} {fl}')
    TB=t+24
    W_=t+4
    a(f'''
    s_cmp_lg_u32 {s(sIt)}, 0
    s_cbranch_scc1 L_tabw1
    ''')
    lstores('')
    stamp()
    a(f'''
    s_branch L_pub
    L_tab:
    buffer_load_dwordx2 {v(TB,2)}, {v(vL8)}, {WS}, {s(sTabLd)} offen sc1
    L_tabw:
    s_waitcnt vmcnt(0)
    L_tabw1:
    s_waitcnt vmcnt(1)
    v_cmp_ne_u32 vcc, {s(sTag)}, {v(TB)}
    ''')
    poll_branch('L_tab', 1, f'''s_cmp_lg_u32 {s(sIt)}, 0
        s_cselect_b32 {s(sT)}, 0, 1
        s_sub_u32 {s(sTry)}, {s(sTry)}, {s(sT)}
        s_cbranch_scc1 L_tab2''')
    a(f'''
    L_tabok:
    s_cmp_eq_u32 {s(sIt)}, 0
    s_cbranch_scc1 L_fastchk
    v_cmp_lt_u32 vcc, {s(sKey)}, {v(TB+1)}
    s_mov_b32 {s(sT+9)}, 64
    s_cbranch_vccnz L_winback
    L_pub:
    s_andn2_b32 {s(sT)}, {s(sM7FF)}, {s(sKey)}      ; idx
    s_lshr_b32 {s(sT+9)}, {s(sT)}, 8                ; s1
    s_bitcmp1_b32 {s(sT+9)}, 0
    s_cselect_b64 vcc, -1, 0
    s_lshl_b32 {s(sT+1)}, {s(sT+9)}, 3
    s_and_b32 {s(sT+1)}, {s(sT+1)}, 0x30
    v_cndmask_b32 {v(W_)}, {v(LNP)}, {v(LNP+2)}, vcc
    v_cndmask_b32 {v(W_+1)}, {v(LNP+1)}, {v(LNP+3)}, vcc
    v_and_b32 {v(W_+2)}, 0x3ff, {v(vXoff)}
    s_bfm_b64 exec, 16, {s(sT+1)}
    buffer_store_dwordx2 {v(W_,2)}, {v(W_+2)}, {WS}, {s(sSlot)} offen sc1
    s_cmp_lg_u32 {s(sW)}, 0
    s_cbranch_scc1 L_nohdr
    v_mov_b32 {v(W_+8)}, {s(sKey)}
    v_cndmask_b32 {v(W_+9)}, {v(MM)}, {v(MM+1)}, vcc
    v_cndmask_b32 {v(W_+10)}, {v(RS2)}, {v(RS2+1)}, vcc
    v_mov_b32 {v(W_+11)}, {s(sKey)}
    buffer_store_dwordx4 {v(W_+8,4)}, off, {WS}, {s(sSlot)} offset:3072 sc1
    L_nohdr:
    ''')
    for c_ in range(4): a(f'v_cndmask_b32 {v(W_+4+c_)}, {v(X+2*c_)}, {v(X+2*c_+1)}, vcc')
    a(f'''
    v_lshlrev_b32 {v(W_+2)}, 1, {v(W_+2)}
    buffer_store_dwordx4 {v(W_+4,4)}, {v(W_+2)}, {WS}, {s(sSlot)} offen offset:1024 sc1
    s_mov_b64 exec, -1
    s_cmp_eq_u32 {s(sIt)}, 0
    s_cbranch_scc1 L_flag0
    L_winback:
    s_cmp_eq_u32 {s(sIt)}, 2
    s_cbranch_scc1 L_fin
    s_add_u32 {s(sSlot)}, {s(sSlot)}, {SLOTR}
    ''')
    lstores('')
    stamp()
    a(f'''
    s_waitcnt vmcnt(0)
    s_branch L_tabdone
    L_flag0:
    v_mov_b32 {v(vTG)}, {s(sTag)}
    s_lshl_b32 {s(sT)}, s2, 4
    s_add_u32 {s(sT)}, {s(sT)}, {TABG}
    v_mov_b32 {v(t+22)}, {s(sTag)}
    v_mov_b32 {v(t+23)}, {s(sKey)}
    s_cmp_eq_u32 {s(sW)}, 0
    s_cselect_b32 {s(sT+1)}, {s(sTabSt)}, {WSSZ}
    s_cmp_eq_u32 {s(sW)}, 7
    s_cselect_b32 {s(sT)}, {s(sT)}, {WSSZ}
    s_mov_b64 exec, 1
    s_waitcnt vmcnt(0)
    s_barrier
    buffer_store_dwordx2 {v(t+22,2)}, off, {WS}, {s(sT+1)}
    s_mov_b64 exec, -1
    s_waitcnt vmcnt(0)
    buffer_load_dwordx2 {v(TB,2)}, {v(vL8)}, {WS}, {s(sTabLd)} offen sc1
    s_mov_b64 exec, 1
    buffer_store_dword {v(vTG)}, off, {WS}, {s(sT)} sc1
    s_mov_b64 exec, -1
    s_branch L_tabw1
    L_fastchk:
    v_cmp_ne_u32 vcc, {s(sKey)}, {v(TB+1)}
    s_nop 0
    s_cmp_eq_u64 vcc, 0
    s_cselect_b32 {s(sFast)}, 1, 0
    L_tabdone:
    s_cmp_eq_u32 {s(sFast)}, 0
    s_cbranch_scc1 L_slow
    L_slowback:
    ;@F
    s_cmp_lt_u32 {s(sJ)}, 8
    s_cbranch_scc0 L_y
    s_branch L_yself
    L_y:
    buffer_load_dwordx4 {v(t,4)}, {v(vLld)}, {WS}, {s(sLld)} offen sc1
    s_waitcnt vmcnt(0)
    ds_write_b128 {v(vYIW)}, {v(t,4)}
    ''')
    phchk(range(t,t+4), t+8)
    poll_branch('L_y', cfg.slp_l, mask=True)
    a('L_yjoin:')
    stamp()
    A0,A1=t,t+4; P0,Q0,P1,Q1=t+8,t+12,t+16,t+20
    a(f'''
    s_waitcnt lgkmcnt(0)
    s_barrier
    ;@F
    ds_read_b64_tr_b16 {v(A0,2)}, {v(vYIR)}
    ds_read_b64_tr_b16 {v(A0+2,2)}, {v(vYIR)} offset:{16*YIS}
    ds_read_b64_tr_b16 {v(A1,2)}, {v(vYIR)} offset:8
    ds_read_b64_tr_b16 {v(A1+2,2)}, {v(vYIR)} offset:{16*YIS+8}
    s_add_u32 {s(sTabLd)}, {s(sTabLd)}, {ARGR}
    s_add_u32 {s(sTabSt)}, {s(sTabSt)}, {ARGR}
    s_waitcnt lgkmcnt(2)
    v_mfma_f32_16x16x32_f16 {v(P0,4)}, {v(A0,4)}, {v(YC,4)}, 0
    v_mfma_f32_16x16x32_f16 {v(Q0,4)}, {v(A0,4)}, {v(YS,4)}, 0
    s_waitcnt lgkmcnt(0)
    v_mfma_f32_16x16x32_f16 {v(P1,4)}, {v(A1,4)}, {v(YC,4)}, 0
    v_mfma_f32_16x16x32_f16 {v(Q1,4)}, {v(A1,4)}, {v(YS,4)}, 0
    L_tabgw:
    v_cmp_ne_u32 vcc, {s(sTag)}, {v(vTG)}
    s_cbranch_vccnz L_tabg_r ;!nd
    ''')
    for P_,Q_ in ((P0,Q0),(P1,Q1)):
        for h in (0,2):
            a(f'v_pk_add_f32 {v(P_+h,2)}, {v(P_+h,2)}, {v(Q_+h,2)} op_sel:[0,1] op_sel_hi:[1,0] neg_hi:[0,1]')
    a(f'''
    v_cvt_pk_f16_f32 {v(t)}, {v(P0)}, {v(P0+1)}
    v_cvt_pk_f16_f32 {v(t+1)}, {v(P0+2)}, {v(P0+3)}
    v_cvt_pk_f16_f32 {v(t+2)}, {v(P1)}, {v(P1+1)}
    v_cvt_pk_f16_f32 {v(t+3)}, {v(P1+2)}, {v(P1+3)}
    ds_write_b128 {v(vYW)}, {v(t,4)}
    ;@F
    s_waitcnt lgkmcnt(0)
    s_barrier
    ;@F
    ds_read_b128 {v(t+4,4)}, {v(vYR)}
    s_waitcnt lgkmcnt(0)
    buffer_store_dwordx4 {v(t+4,4)}, {v(vGst)}, {WS}, {s(sG0)} offen sc1
    ''')
    stamp()
    a(f'''
    s_cmp_lg_u32 {s(sIt)}, 0
    s_cbranch_scc1 L_hdr
    v_lshlrev_b32 {v(t+24)}, 4, {v(vLane)}
    s_mov_b32 {s(sT+10)}, {TABG}
    ''')
    for k in range(4): a(f'buffer_load_dword {v(t+20+k)}, {v(t+24)}, {WS}, {s(sT+10)} offen offset:{1024*k} sc1')
    xin_consts(t+8)
    a('L_tg0w:\ns_waitcnt vmcnt(0)')
    tag4chk(t+20)
    a(f'''
    s_cbranch_vccz L_g ;!nd
    s_branch L_tg0_r
    L_g:
    ''')
    C0,C1=t,t+4
    a(f'''
    buffer_load_dwordx4 {v(C0,4)}, {v(vGld)}, {WS}, {s(sG0)} offen sc1
    buffer_load_dwordx4 {v(C1,4)}, {v(vGld)}, {WS}, {s(sG4)} offen sc1
    s_cmp_lg_u32 {s(sMir)}, 0
    s_waitcnt vmcnt(0)
    s_cbranch_scc1 L_xmir ;!nd
    ''')
    E0,E1=t+8,t+12
    a(f'''
    v_mfma_f32_16x16x16_f16 {v(E0,4)}, {v(XA,2)}, {v(C0,2)}, 0
    v_mfma_f32_16x16x16_f16 {v(E1,4)}, {v(XA,2)}, {v(C0+2,2)}, 0
    v_mfma_f32_16x16x16_f16 {v(E0,4)}, {v(XA+2,2)}, {v(C1,2)}, {v(E0,4)}
    v_mfma_f32_16x16x16_f16 {v(E1,4)}, {v(XA+2,2)}, {v(C1+2,2)}, {v(E1,4)}
    s_branch L_xjoin ;!nd
    L_xmir:
    ''')
    a.hist=[]
    a(f'''
    v_mfma_f32_16x16x16_f16 {v(E0,4)}, {v(XA,2)}, {v(C0+2,2)}, 0
    v_mfma_f32_16x16x16_f16 {v(E1,4)}, {v(XA,2)}, {v(C0,2)}, 0
    v_mfma_f32_16x16x16_f16 {v(E0,4)}, {v(XA+2,2)}, {v(C1+2,2)}, {v(E0,4)}
    v_mfma_f32_16x16x16_f16 {v(E1,4)}, {v(XA+2,2)}, {v(C1,2)}, {v(E1,4)}
    L_xjoin:
    ''')
    maxchk(range(t,t+8), t+16)
    poll_branch('L_g', cfg.slp_g, mask=True)
    stamp()
    a(f'''
    s_cmp_lg_u32 {s(sIt)}, 0
    s_mov_b32 {s(sIt)}, 1
    s_cbranch_scc1 L_corr ;!nd
    s_add_u32 {s(sG0)}, {s(sG0)}, {GR}
    s_add_u32 {s(sG4)}, {s(sG4)}, {GR}
    L_corrback:
    v_pk_fma_f32 {v(X,2)}, {v(E0,2)}, {v(vSc0,2)}, {v(X,2)}
    v_pk_fma_f32 {v(X+2,2)}, {v(E0+2,2)}, {s(sSc,2)}, {v(X+2,2)}
    v_pk_fma_f32 {v(X+4,2)}, {v(E1,2)}, {s(sSc,2)}, {v(X+4,2)}
    v_pk_fma_f32 {v(X+6,2)}, {v(E1+2,2)}, {s(sSc,2)}, {v(X+6,2)}
    s_branch L_top ;!nd
    ''')
    a(f'''
    L_yself:
    buffer_load_dwordx4 {v(t,4)}, {v(vLld)}, {WS}, {s(sLld)} offen sc1
    buffer_load_dwordx4 {v(t+4,4)}, {v(vLldM)}, {WS}, {s(sLld)} offen sc1
    s_waitcnt vmcnt(0)
    ''')
    phchk(range(t,t+8), t+8)
    poll_branch('L_yself', cfg.slp_l, mask=True)
    a(f'''
    s_bitcmp1_b32 {s(sW)}, 0
    s_cbranch_scc1 L_yself4
    ''')
    for k in range(4): a(f'v_pk_add_f16 {v(t+k)}, {v(t+k)}, {v(t+7-k)} neg_hi:[0,1]')
    a(f'ds_write_b128 {v(vYIW)}, {v(t,4)}\ns_branch L_yjoin\nL_yself4:')
    for k in range(4): a(f'v_pk_add_f16 {v(t+k)}, {v(t+k)}, {v(t+7-k)} op_sel:[1,1] op_sel_hi:[0,0] neg_hi:[1,0]')
    a(f'ds_write_b128 {v(vYIW)}, {v(t,4)}\ns_branch L_yjoin')
    a(f'''
    L_s3w:
    v_pk_add_f32 {v(S3,2)}, {v(WV,2)}, {v(WV+2,2)}
    v_add_f32 {v(S3)}, {v(S3)}, {v(S3+1)}
    v_mov_b32 {v(S3+1)}, {v(S3)}
    s_branch L_s3ok
    L_it0:
    s_mov_b32 {s(sKey)}, {s(sXcc)}
    v_pk_mul_f32 {v(CC,2)}, {v(RS,2)}, {s(sC16,2)}
    v_mov_b32 {v(S1)}, 0x44000000
    v_pk_add_f32 {v(WV,2)}, {v(WV,2)}, {v(S3,2)} neg_lo:[0,1] neg_hi:[0,1]
    v_pk_add_f32 {v(WV+2,2)}, {v(WV+2,2)}, {v(S3,2)} neg_lo:[0,1] neg_hi:[0,1]
    v_pk_mul_f32 {v(WV,2)}, {v(WV,2)}, {v(S1,2)} op_sel_hi:[1,0]
    v_pk_mul_f32 {v(WV+2,2)}, {v(WV+2,2)}, {v(S1,2)} op_sel_hi:[1,0]
    ''')
    a('s_branch L_z')
    H=t+8
    sIdx=sT+11
    a(f'''
    L_hdr:
    v_and_b32 {v(t+16)}, 7, {v(vLane)}
    v_lshlrev_b32 {v(t+16)}, 12, {v(t+16)}
    s_mov_b32 {s(sT+10)}, {SLOT}
    L_hdrp:
    buffer_load_dwordx4 {v(H,4)}, {v(t+16)}, {WS}, {s(sT+10)} offen offset:3072 sc1
    s_waitcnt vmcnt(0)
    ''')
    maxchk(range(H,H+4), t+17)
    poll_branch('L_hdrp', 2, skip=True)
    a(f'''
    v_max_u32_dpp {v(H+3)}, {v(H)}, {v(H)} row_half_mirror {DPP}
    v_max_u32_dpp {v(H+3)}, {v(H+3)}, {v(H+3)} quad_perm:[1,0,3,2] {DPP}
    v_max_u32_dpp {v(H+3)}, {v(H+3)}, {v(H+3)} quad_perm:[2,3,0,1] {DPP}
    v_readfirstlane_b32 {s(sIdx)}, {v(H+3)}
    v_lshlrev_b32 {v(t+16)}, 5, {v(vLane)}
    s_andn2_b32 {s(sIdx)}, {s(sM7FF)}, {s(sIdx)}
    s_and_b32 {s(sT)}, {s(sIdx)}, 7
    s_lshl_b32 {s(sT+1)}, {s(sT)}, 12
    s_add_u32 {s(sT+10)}, {s(sT+10)}, {s(sT+1)}
    v_readlane_b32 {s(sT+13)}, {v(H+1)}, {s(sT)}
    v_readlane_b32 {s(sT+14)}, {v(H+2)}, {s(sT)}
    v_mul_u32_u24 {v(t+17)}, {s(sIdx)}, {v(AD)}
    v_and_b32 {v(t+17)}, 0x7ff, {v(t+17)}
    v_cvt_f32_u32 {v(t+17)}, {v(t+17)}
    v_mul_f32 {v(t+17)}, {fbits(1/2048)}, {v(t+17)}
    v_cos_f32 {v(t+18)}, {v(t+17)}
    v_sin_f32 {v(t+19)}, {v(t+17)}
    v_and_b32 {v(t+17)}, 0x32, {v(vLane)}
    v_cvt_pk_f16_f32 {v(t+18)}, {v(t+18)}, {v(t+19)}
    v_cmp_eq_u32 vcc, 0, {v(t+17)}
    s_sub_u32 {s(sT)}, 2047, {s(sIdx)}
    s_add_u32 {s(sT+1)}, {s(sT)}, 256
    v_cndmask_b32 {v(AD)}, 0, {v(t+18)}, vcc
    v_cmp_eq_u32 vcc, 2, {v(t+17)}
    v_mov_b32 {v(BC+10)}, {s(sT+14)}
    v_mul_f32 {v(BC+10)}, {s(sDsc)}, {v(BC+10)}         ; rs2*dsc
    v_cndmask_b32 {v(AD+1)}, 0, {v(t+18)}, vcc
    v_cmp_eq_u32 vcc, {s(sT)}, {v(vInv)}
    v_cndmask_b32 {v(BC)}, 0, 1.0, vcc
    v_cmp_eq_u32 vcc, {s(sT+1)}, {v(vInv)}
    v_cndmask_b32 {v(BC+1)}, 0, 1.0, vcc
    s_branch L_g
    ''')
    Y=t+16; YX=t; u=t+4
    vDW,vDR=BC+12,BC+13
    a(f'''
    L_corr:
    s_mov_b32 {s(sIt)}, 2
    v_and_b32 {v(u)}, 3, {v(vLane)}
    v_lshlrev_b32 {v(u)}, 2, {v(u)}
    v_lshrrev_b32 {v(u+2)}, 2, {v(vN)}
    v_lshlrev_b32 {v(u+2)}, 7, {v(u+2)}
    v_lshl_add_u32 {v(u+2)}, {v(u)}, 2, {v(u+2)}          ; (n>>2)*128+(n&3)*16
    s_lshl_b32 {s(sT+1)}, {s(sW)}, 9
    s_add_u32 {s(sT+1)}, {s(sT+1)}, {YBUF}
    s_lshl_b32 {s(sT+3)}, {s(sW)}, 8
    s_add_u32 {s(sT+3)}, {s(sT+3)}, {L_DH}
    v_lshl_add_u32 {v(vDR)}, {v(vN)}, 4, {s(sT+3)}
    s_cmp_gt_u32 {s(sW)}, 1
    s_cbranch_scc1 L_yv2b
    v_lshlrev_b32 {v(u+1)}, 5, {v(vLane)}
    L_basep:
    buffer_load_dwordx4 {v(BC+2,4)}, {v(u+1)}, {WS}, {s(sT+10)} offen offset:1024 sc1
    buffer_load_dwordx4 {v(BC+6,4)}, {v(u+1)}, {WS}, {s(sT+10)} offen offset:1040 sc1
    s_waitcnt vmcnt(0)
    ''')
    maxchk(range(BC+2,BC+10), u+3)
    poll_branch('L_basep', 2, skip=True)
    for k in range(8): a(f'v_subrev_f32 {v(BC+2+k)}, {s(sT+13)}, {v(BC+2+k)}')
    a(f'''
    s_lshl_b32 {s(sT)}, {s(sX)}, 7
    s_add_u32 {s(sT)}, {s(sT)}, {YHINT}
    v_and_b32 {v(u+1)}, 1, {v(vLane)}
    v_lshlrev_b32 {v(u+1)}, 5, {v(u+1)}
    v_lshrrev_b32 {v(u+3)}, 1, {v(vLane)}
    v_lshl_add_u32 {v(u+1)}, {v(u+3)}, 7, {v(u+1)}        ; (l>>1)*128+(l&1)*32
    s_mov_b32 {s(sT+2)}, {YBUF}
    s_lshl_b32 {s(sT+3)}, {s(sW)}, 10
    s_add_u32 {s(sT+3)}, {s(sT+3)}, {L_U}
    v_lshl_add_u32 {v(t+24)}, {v(vLane)}, 4, {s(sT+3)}
    v_lshl_add_u32 {v(t+25)}, {v(vLane)}, 3, {s(sT+3)}
    s_lshl_b32 {s(sT+3)}, {s(sW)}, 6
    s_add_u32 {s(sT+3)}, {s(sT+3)}, {L_DH}
    v_lshl_add_u32 {v(vDW)}, {v(vQ)}, 9, {s(sT+3)}
    v_lshl_add_u32 {v(vDW)}, {v(vN)}, 2, {v(vDW)}
    s_cmp_lg_u32 {s(sW)}, 0
    s_cbranch_scc1 L_hintb
    s_movk_i32 {s(sTry)}, 500
    L_hint:
    buffer_load_dword {v(u+3)}, {v(u)}, {WS}, {s(sT)} offen sc1
    s_waitcnt vmcnt(0)
    v_cmp_ne_u32 vcc, {s(sTag)}, {v(u+3)}
    ''')
    poll_branch('L_hint', 1, giveup='L_hintb')
    if cfg.tim_y: a(f's_sleep {cfg.tim_y}')
    a(f'''
    L_hintb:
    s_barrier
    L_yv:
    buffer_load_dwordx4 {v(Y,4)}, {v(u+1)}, {WS}, {s(sT+2)} offen sc1
    buffer_load_dwordx4 {v(Y+4,4)}, {v(u+1)}, {WS}, {s(sT+2)} offen offset:16 sc1
    buffer_load_dwordx4 {v(YX,4)}, {v(u+2)}, {WS}, {s(sT+1)} offen sc1
    s_waitcnt vmcnt(0)
    ''')
    maxchk(list(range(Y,Y+8))+list(range(YX,YX+4)), u+3)
    poll_branch('L_yv', 1, mask=True)
    stamp()
    for k in range(4): a(f'v_pk_add_f32 {v(Y+2*k,2)}, {v(Y+2*k,2)}, {v(BC+2+2*k,2)}')
    s1,s2=u,u+2
    own=[f'v_pk_fma_f32 {v(X,2)}, {v(BC,2)}, {v(YX,2)}, {v(X,2)} op_sel:[0,0,0] op_sel_hi:[1,0,1]',
         f'v_pk_fma_f32 {v(X+2,2)}, {v(BC,2)}, {v(YX,2)}, {v(X+2,2)} op_sel:[0,1,0] op_sel_hi:[1,1,1]',
         f'v_pk_fma_f32 {v(X+4,2)}, {v(BC,2)}, {v(YX+2,2)}, {v(X+4,2)} op_sel:[0,0,0] op_sel_hi:[1,0,1]',
         f'v_pk_fma_f32 {v(X+6,2)}, {v(BC,2)}, {v(YX+2,2)}, {v(X+6,2)} op_sel:[0,1,0] op_sel_hi:[1,1,1]']
    a(f'''
    v_pk_add_f32 {v(s1,2)}, {v(Y,2)}, {v(Y+2,2)}
    v_pk_mul_f32 {v(s2,2)}, {v(Y,2)}, {v(Y,2)}
    v_pk_add_f32 {v(s1,2)}, {v(s1,2)}, {v(Y+4,2)}
    v_pk_fma_f32 {v(s2,2)}, {v(Y+2,2)}, {v(Y+2,2)}, {v(s2,2)}
    v_pk_add_f32 {v(s1,2)}, {v(s1,2)}, {v(Y+6,2)}
    v_pk_fma_f32 {v(s2,2)}, {v(Y+4,2)}, {v(Y+4,2)}, {v(s2,2)}
    v_add_f32 {v(s1)}, {v(s1)}, {v(s1+1)}
    v_pk_fma_f32 {v(s2,2)}, {v(Y+6,2)}, {v(Y+6,2)}, {v(s2,2)}
    v_add_f32 {v(s2)}, {v(s2)}, {v(s2+1)}
    {own[0]}
    {own[1]}
    v_permlane32_swap_b32 {v(s1)}, {v(s2)}
    v_add_f32 {v(s1)}, {v(s1)}, {v(s2)}
    {own[2]}
    {own[3]}
    v_add_f32_dpp {v(s1)}, {v(s1)}, {v(s1)} row_ror:8 {DPP}
    v_pk_mul_f32 {v(BC+2,2)}, {v(BC+2,2)}, {v(BC+10,2)} op_sel_hi:[1,0]
    v_pk_mul_f32 {v(BC+4,2)}, {v(BC+4,2)}, {v(BC+10,2)} op_sel_hi:[1,0]
    v_add_f32_dpp {v(s1)}, {v(s1)}, {v(s1)} row_ror:4 {DPP}
    v_pk_mul_f32 {v(BC+6,2)}, {v(BC+6,2)}, {v(BC+10,2)} op_sel_hi:[1,0]
    v_pk_mul_f32 {v(BC+8,2)}, {v(BC+8,2)}, {v(BC+10,2)} op_sel_hi:[1,0]
    v_add_f32_dpp {v(s1)}, {v(s1)}, {v(s1)} row_ror:2 {DPP}
    v_add_f32_dpp {v(s1)}, {v(s1)}, {v(s1)} row_ror:1 {DPP}
    v_add_f32_dpp {v(s1)}, {v(s1)}, {v(s1)} row_bcast:15 row_mask:0xa bank_mask:0xf
    v_mul_f32 {v(s1)}, {s(sK512)}, {v(s1)}
    v_readlane_b32 {s(sT+1)}, {v(s1)}, 31
    v_readlane_b32 {s(sT+2)}, {v(s1)}, 63
    v_mov_b32 {v(s2)}, {s(sT+1)}
    v_fma_f32 {v(s1)}, -{v(s2)}, {v(s2)}, {s(sT+2)}
    v_add_f32 {v(s1)}, {s(sEps)}, {v(s1)}
    v_rsq_f32_e64 {v(s1)}, |{v(s1)}|
    v_mul_f32 {v(s1)}, {s(sDsc)}, {v(s1)}
    ''')
    for k in range(4):
        a(f'v_pk_fma_f32 {v(Y+2*k,2)}, {v(Y+2*k,2)}, {v(s1,2)}, {v(BC+2+2*k,2)} op_sel_hi:[1,0,1] neg_lo:[0,0,1] neg_hi:[0,0,1]')
    for k in range(4): a(f'v_cvt_pk_f16_f32 {v(t+k)}, {v(Y+2*k)}, {v(Y+2*k+1)}')
    a(f'''
    ds_write_b128 {v(t+24)}, {v(t,4)}
    ds_read_b64_tr_b16 {v(t+4,2)}, {v(t+25)}
    ds_read_b64_tr_b16 {v(t+6,2)}, {v(t+25)} offset:512
    s_waitcnt lgkmcnt(0)
    ;@F
    ''')
    fft_core(t+4, None, t+16, BC+2, t+16, t)
    a(f'''
    ds_write2_b32 {v(vDW)}, {v(t)}, {v(t+1)} offset0:0 offset1:32
    ds_write2_b32 {v(vDW)}, {v(t+2)}, {v(t+3)} offset0:64 offset1:96
    L_dhb:
    ;@F
    s_waitcnt lgkmcnt(0)
    s_barrier
    ;@F
    ds_read_b128 {v(t,4)}, {v(vDR)}
    s_waitcnt lgkmcnt(0)
    v_mfma_f32_16x16x16_f16 {v(E0,4)}, {v(AD,2)}, {v(t,2)}, {v(E0,4)}
    v_mfma_f32_16x16x16_f16 {v(E1,4)}, {v(AD,2)}, {v(t+2,2)}, {v(E1,4)}
    s_nop 5
    s_branch L_corrback ;!nd
    L_yv2b:
    s_barrier
    L_yv2:
    buffer_load_dwordx4 {v(YX,4)}, {v(u+2)}, {WS}, {s(sT+1)} offen sc1
    s_waitcnt vmcnt(0)
    ''')
    maxchk(range(YX,YX+4), u+3)
    poll_branch('L_yv2', 1, mask=True)
    stamp(); fstamp()
    a('\n'.join(own)+'\ns_branch L_dhb')
    a('L_fin:')
    if cfg.odel: a(f's_sleep {cfg.odel}')
    for rho in (0,1):
        for k in (0,1):
            a(f'v_cvt_pk_bf16_f32 {v(t+2*rho+k)}, {v(X+4*k+rho)}, {v(X+4*k+2+rho)}')
    a(f'''
    v_lshlrev_b32 {v(t+16)}, 1, {v(vQ)}
    v_mov_b32 {v(t+19)}, 0x200000
    s_sub_u32 {s(sT)}, {s(sT+9)}, 1
    v_cmp_eq_u32 vcc, {s(sT+9)}, {v(t+16)}
    v_cndmask_b32 {v(t+17)}, {v(vXoff)}, {v(t+19)}, vcc
    v_cmp_eq_u32 vcc, {s(sT)}, {v(t+16)}
    v_cndmask_b32 {v(t+18)}, {v(vXoff)}, {v(t+19)}, vcc
    buffer_store_dwordx2 {v(t,2)}, {v(t+17)}, {OS}, {s(sRow0)} offen {'sc1' if cfg.osc else ''}
    buffer_store_dwordx2 {v(t+2,2)}, {v(t+18)}, {OS}, {s(sRow1)} offen {'sc1' if cfg.osc else ''}
    s_or_b32 {s(sT)}, s2, {s(sW)}
    s_cbranch_scc1 L_fin2
    v_mov_b32 {v(t+20)}, {s(sTag)}
    buffer_store_dword {v(t+20)}, off, {WS}, 0 sc1
    L_fin2:
    ''')
    stamp(); dump_stamps()
    a('s_endpgm')
    def pub2():
        a(f'''
        v_mov_b32 {v(t+4)}, {s(sTag)}
        v_mov_b32 {v(t+5)}, {s(sXcc)}
        s_add_u32 {s(sT)}, {s(sTabSt)}, {TAB2-TABL}
        buffer_store_dwordx2 {v(t+4,2)}, off, {WS}, {s(sT)} sc1
        ''')
    a(f'''
    L_tabst_slow:
    buffer_store_dwordx2 {v(K,2)}, off, {WS}, {s(sTabSt)} sc1
    s_branch L_tabst_back
    L_tabg_r:
    s_sub_u32 {s(sCnt)}, {s(sCnt)}, 1
    s_cbranch_scc1 L_end
    s_sleep 2
    v_lshlrev_b32 {v(vTG)}, 1, {v(vL8)}
    buffer_load_dword {v(vTG)}, {v(vTG)}, {WS}, {s(sTabG)} offen sc1
    s_waitcnt vmcnt(0)
    s_branch L_tabgw
    L_tg0_r:
    s_sub_u32 {s(sCnt)}, {s(sCnt)}, 1
    s_cbranch_scc1 L_end
    s_sleep 4
    ''')
    for k in range(4): a(f'buffer_load_dword {v(t+20+k)}, {v(t+24)}, {WS}, {s(sT+10)} offen offset:{1024*k} sc1')
    a('s_branch L_tg0w\nL_tab2:')
    pub2()
    a(f'''
    s_add_u32 {s(sT+1)}, {s(sTabLd)}, {TAB2-TABL}
    L_tab2p:
    buffer_load_dwordx2 {v(TB,2)}, {v(vL8)}, {WS}, {s(sTabLd)} offen sc1
    buffer_load_dwordx2 {v(t+6,2)}, {v(vL8)}, {WS}, {s(sT+1)} offen sc1
    s_waitcnt vmcnt(0)
    v_cmp_eq_u32 vcc, {s(sTag)}, {v(TB)}
    v_cndmask_b32 {v(TB)}, {v(t+6)}, {v(TB)}, vcc
    v_cndmask_b32 {v(TB+1)}, {v(t+7)}, {v(TB+1)}, vcc
    v_cmp_ne_u32 vcc, {s(sTag)}, {v(TB)}
    ''')
    poll_branch('L_tab2p', 4)
    a(f'''
    s_branch L_tabok
    L_slow:
    s_cmp_lg_u32 {s(sIt)}, 0
    s_cbranch_scc1 L_slow1
    ''')
    pub2()
    a('L_slow1:')
    lstores('sc1')
    a(f'''
    s_waitcnt vmcnt(0)
    s_barrier
    s_add_u32 {s(sT)}, {s(sTabSt)}, {SLOWF-TABL}
    s_add_u32 {s(sT+1)}, {s(sTabLd)}, {SLOWF-TABL}
    v_mov_b32 {v(t+4)}, {s(sTag)}
    s_cmp_lg_u32 {s(sW)}, 0
    s_cbranch_scc1 L_slowp
    buffer_store_dword {v(t+4)}, off, {WS}, {s(sT)} sc1
    L_slowp:
    buffer_load_dword {v(t+5)}, {v(vL8)}, {WS}, {s(sT+1)} offen sc1
    s_waitcnt vmcnt(0)
    v_cmp_ne_u32 vcc, {s(sTag)}, {v(t+5)}
    ''')
    poll_branch('L_slowp', 2)
    a('s_branch L_slowback')

def hint_store(vreg, soff, lbl):
    a(f'''
    s_mov_b64 exec, 1
    s_cmp_eq_u32 {s(sFast)}, 0
    s_cbranch_scc1 {lbl}_s
    buffer_store_dword {v(vreg)}, off, {WS}, {s(soff)}
    s_branch {lbl}_d
    {lbl}_s:
    buffer_store_dword {v(vreg)}, off, {WS}, {s(soff)} sc1
    {lbl}_d:
    s_mov_b64 exec, -1
    ''')

def ffn():
    WB=4; t=40; h=74; PF=112
    vSl=32; vPW=33; vH=34; vHd=35; vTag=36; vPR=37; vTr=38; vWr=39
    sI=sJ; sFb=sLld; sRnd=sIt; sHo=sLst; sHH=sPh; sCb=sTabG; sYo=sG4
    def pf(m):
        r=[]
        if m&1: r.append(f'global_load_dwordx4 {v(PF,4)}, {v(PF+13)}, s[18:19]')
        if m&2: r.append(f'global_load_dwordx4 {v(PF+4,4)}, {v(PF+13)}, s[20:21]')
        if m&4: r.append(f'global_load_dwordx4 {v(PF+8,4)}, {v(PF+14)}, s[22:23]')
        return '\n'.join(r)
    g2clr=f'buffer_store_dwordx4 {v(SENT,4)}, {v(vPR)}, {WS}, {s(sG0)} offen sc1'
    a(f'''
    L_ffn:
    s_and_b32 {s(sI)}, {s(sJ)}, 31
    v_lshlrev_b32 {v(vPR)}, 4, v0
    v_lshrrev_b32 {v(t+1)}, 5, v0
    v_mul_u32_u24 {v(t+1)}, 3584, {v(t+1)}
    v_and_b32 {v(t+2)}, 0x1f0, {v(vPR)}
    s_mul_i32 {s(sT+4)}, {s(sI)}, {16*3584}
    s_mul_i32 {s(sT+5)}, {s(sX)}, 7
    s_lshr_b32 {s(sT+5)}, {s(sT+5)}, 1
    s_lshl_b32 {s(sT+5)}, {s(sT+5)}, 7
    s_add_u32 {s(sT+4)}, {s(sT+4)}, {s(sT+5)}
    v_add3_u32 {v(t+1)}, {v(t+1)}, {v(t+2)}, {s(sT+4)}
    v_lshrrev_b32 {v(t+2)}, 3, v0
    v_min_u32 {v(t+2)}, 55, {v(t+2)}
    v_lshlrev_b32 {v(t+2)}, 10, {v(t+2)}
    v_and_b32 {v(t+3)}, 0x70, {v(vPR)}
    s_mul_i32 {s(sT+4)}, {s(sI)}, {56*1024}
    s_lshl_b32 {s(sT+5)}, {s(sX)}, 7
    s_add_u32 {s(sT+4)}, {s(sT+4)}, {s(sT+5)}
    v_add3_u32 {v(t+2)}, {v(t+2)}, {v(t+3)}, {s(sT+4)}
    s_waitcnt lgkmcnt(0)
    {'s_sleep 127' if cfg.exp&8 else ''}
    {'s_sleep 127' if cfg.exp&8 else ''}
    {f's_sleep {cfg.fdelay}' if cfg.fdelay else ''}
    v_mov_b32 {v(PF+13)}, {v(t+1)}
    v_mov_b32 {v(PF+14)}, {v(t+2)}
    {pf(cfg.pfm)}
    buffer_load_dword {v(PF+12)}, off, {WS}, 0 sc1
    s_mul_i32 {s(sG0)}, {s(sX)}, {GS}
    s_lshl_b32 {s(sT+1)}, {s(sI)}, 13
    s_add_u32 {s(sG0)}, {s(sG0)}, {s(sT+1)}
    s_add_u32 {s(sG0)}, {s(sG0)}, {GBASE+GR}
    s_mul_i32 {s(sFb)}, {s(sX)}, 28
    s_add_u32 {s(sFb)}, {s(sFb)}, {s(sI)}
    s_lshl_b32 {s(sFb)}, {s(sFb)}, 4           ; fb*16
    s_lshl_b32 {s(sCb)}, {s(sX)}, 2
    s_add_u32 {s(sCb)}, {s(sCb)}, {s(sI)}
    s_sub_u32 {s(sCb)}, {s(sCb)}, 28
    v_mov_b32 {v(h+8)}, 0x200000
    v_mov_b32 {v(vTag)}, 0
    v_and_b32 {v(h+3)}, 0x38, {v(vL8)}
    s_lshl_b32 {s(sT)}, {s(sW)}, 11
    v_lshl_add_u32 {v(vTr)}, {v(vQ)}, 8, {s(sT)}
    v_lshl_add_u32 {v(vTr)}, {v(vN)}, 3, {v(vTr)}
    v_and_b32 {v(vHd)}, 7, {v(vLane)}
    v_lshlrev_b32 {v(vHd)}, 12, {v(vHd)}
    s_mov_b32 {s(sFast)}, 0
    s_mov_b32 {s(sRnd)}, 2
    s_mov_b32 {s(sHo)}, {WSSZ}
    s_mov_b32 {s(sHH)}, {WSSZ}
    s_mov_b32 {s(sYo)}, {WSSZ}
    s_cmp_ge_u32 {s(sI)}, 28
    s_cbranch_scc1 L_fpb
    v_lshl_add_u32 {v(vWr)}, {v(vLane)}, 5, {s(sT)}
    s_lshl_b32 {s(sT)}, {s(sW)}, 7
    v_lshl_add_u32 {v(vSl)}, {v(vQ)}, 4, {v(vHd)}
    v_add_u32 {v(vSl)}, {s(sT)}, {v(vSl)}
    s_lshl_b32 {s(sT)}, {s(sW)}, 10
    v_lshl_add_u32 {v(vPW)}, {v(vLane)}, 4, {s(sT)}
    v_mul_u32_u24 {v(vH)}, 3584, v0
    v_add_u32 {v(vH)}, {s(sFb)}, {v(vH)}
    {f'global_load_dwordx4 {v(WB,4)}, {v(vH)}, s[18:19]' if cfg.early==2 else ''}
    {f'global_load_dwordx4 {v(WB+4,4)}, {v(vH)}, s[20:21]' if cfg.early==2 else ''}
    s_branch {'L_fa_go' if cfg.dry else 'L_finit'}
    L_fpb:
    v_lshl_add_u32 {v(vWr)}, {v(vLane)}, 4, {s(sT)}
    s_mul_i32 {s(sT)}, {s(sW)}, 448
    v_lshl_add_u32 {v(vH)}, {v(vQ)}, 4, {s(sT)}
    s_lshl_b32 {s(sT)}, {s(sW)}, 2
    v_lshl_add_u32 {v(vPW)}, {v(vLane)}, 5, {s(sT)}
    s_mul_i32 {s(sT)}, {s(sW)}, {224*1024}
    s_lshl_b32 {s(sT+1)}, {s(sCb)}, 5
    s_add_u32 {s(sT)}, {s(sT)}, {s(sT+1)}
    v_lshrrev_b32 {v(vSl)}, 1, {v(vLane)}
    v_lshlrev_b32 {v(vSl)}, 10, {v(vSl)}
    v_and_b32 {v(t+3)}, 16, {v(vPR)}
    v_add3_u32 {v(vSl)}, {v(vSl)}, {v(t+3)}, {s(sT)}
    {'s_branch L_fb_go' if cfg.dry else ''}
    L_finit:
    s_mov_b32 {s(sRnd)}, 0
    s_mov_b32 {s(sSlot)}, {SLOT}
    s_mov_b32 {s(sHo)}, {HBUF}
    s_lshl_b32 {s(sHH)}, {s(sX)}, 7
    s_add_u32 {s(sHH)}, {s(sHH)}, {HHINT}
    s_mov_b32 {s(sYo)}, 0
    s_waitcnt vmcnt(0)
    v_add_u32 {v(vTag)}, 1, {v(PF+12)}
    {g2clr if cfg.clr2==0 else ''}
    v_readfirstlane_b32 {s(sTag)}, {v(vTag)}
    ''')
    if cfg.stamps: a(f's_mov_b32 {s(sStampI)}, 0')
    stamp()
    a(f'''
    s_cmp_lg_u32 {s(sW)}, 0
    s_cbranch_scc1 L_fgo
    s_mov_b32 {s(sTry)}, 60
    L_fl:
    buffer_load_dwordx2 {v(t,2)}, {v(vL8)}, {WS}, {s(sTabLd)} offen sc1
    s_waitcnt vmcnt(0)
    v_cmp_ne_u32 vcc, {s(sTag)}, {v(t)}
    ''')
    poll_branch('L_fl', 3, giveup='L_fgo', skip=True)
    a(f'''
    v_cmp_ne_u32 vcc, {s(sXcc)}, {v(t+1)}
    s_cbranch_vccnz L_fgo
    s_mov_b32 {s(sFast)}, 1
    {f's_sleep {cfg.gdelay}' if cfg.gdelay else ''}
    L_fgo:
    s_barrier
    {pf((7 if cfg.early<2 else 4)&~cfg.pfm)}
    {g2clr if cfg.clr2==1 else ''}
    ''')
    if cfg.early: a(f'''
    s_cmp_ge_u32 {s(sI)}, 28
    s_cbranch_scc1 L_fw_done
    {f'global_load_dwordx4 {v(WB,4)}, {v(vH)}, s[18:19]' if cfg.early==1 else ''}
    {f'global_load_dwordx4 {v(WB+4,4)}, {v(vH)}, s[20:21]' if cfg.early==1 else ''}
    {'s_waitcnt vmcnt(0)' if cfg.early==1 else ''}
    ds_write_b128 {v(vWr)}, {v(WB,4)} offset:8192
    ds_write_b128 {v(vWr)}, {v(WB+4,4)} offset:8208
    s_waitcnt lgkmcnt(0)
    ds_read_b64_tr_b16 {v(WB,2)}, {v(vTr)} offset:8192
    ds_read_b64_tr_b16 {v(WB+2,2)}, {v(vTr)} offset:8320
    ds_read_b64_tr_b16 {v(WB+4,2)}, {v(vTr)} offset:9216
    ds_read_b64_tr_b16 {v(WB+6,2)}, {v(vTr)} offset:9344
    ''')
    a(f'''
    ''')
    a(f'''
    L_fw_done:
    s_waitcnt vmcnt(0) lgkmcnt(0)
    s_barrier
    ''')
    stamp()
    a(f'''
    s_cmp_lg_u32 {s(sW)}, 1
    s_cbranch_scc1 L_fnt
    s_lshl_b32 {s(sT)}, s2, 4
    s_add_u32 {s(sT)}, {s(sT)}, {TABG+TABGR-4096}
    s_mov_b64 exec, 1
    buffer_store_dword {v(vTag)}, off, {WS}, {s(sT)} sc1
    s_mov_b64 exec, -1
    L_fnt:
    s_cmp_lg_u32 {s(sW)}, 0
    s_cbranch_scc1 L_fgb3
    s_cmp_eq_u32 {s(sFast)}, 0
    s_cbranch_scc1 L_fslowtab
    L_frnd:
    s_add_u32 {s(sTabLd)}, {s(sTabLd)}, {ARGR}
    s_cmp_lg_u32 {s(sW)}, 0
    s_cbranch_scc1 L_fbar
    s_cmp_eq_u32 {s(sFast)}, 0
    s_cbranch_scc1 L_ftd
    L_ftrig:
    buffer_load_dword {v(t)}, {v(vL8)}, {WS}, {s(sTabLd)} offen sc1
    s_waitcnt vmcnt(0)
    v_cmp_ne_u32 vcc, {s(sTag)}, {v(t)}
    ''')
    poll_branch('L_ftrig', 2)
    stamp()
    a(f'''
    L_ftd:
    s_cmp_eq_u32 {s(sRnd)}, 0
    s_cbranch_scc1 L_fgb2
    s_sleep {cfg.tim_arg}
    s_cmp_ge_u32 {s(sI)}, 28
    s_cbranch_scc1 L_fb0
    L_fbar:
    s_barrier
    s_cmp_ge_u32 {s(sI)}, 28
    s_cbranch_scc0 L_fslot
    s_branch L_fh
    L_fslot:
    buffer_load_dwordx4 {v(t,4)}, {v(vSl)}, {WS}, {s(sSlot)} offen sc1
    buffer_load_dwordx4 {v(t+4,4)}, {v(vSl)}, {WS}, {s(sSlot)} offen offset:64 sc1
    buffer_load_dword {v(t+8)}, {v(vHd)}, {WS}, {s(sSlot)} offen offset:3072 sc1
    L_fslotw:
    s_waitcnt vmcnt(0)
    ''')
    Dd=t+12
    a(f'''
    v_mfma_f32_16x16x32_bf16 {v(Dd,4)}, {v(t,4)}, {v(WB,4)}, 0
    v_mfma_f32_16x16x32_bf16 {v(Dd,4)}, {v(t+4,4)}, {v(WB+4,4)}, {v(Dd,4)}
    ''')
    maxchk(range(t,t+9), t+9)
    poll_branch('L_fslot', 2, mask=True)
    stamp()
    a(f'''
    L_fa_go:
    v_max_u32_dpp {v(t+9)}, {v(t+8)}, {v(t+8)} row_half_mirror {DPP}
    ds_write_b128 {v(vPW)}, {v(Dd,4)}
    s_add_u32 {s(sT+1)}, {s(sHo)}, {s(sFb)}
    v_max_u32_dpp {v(t+9)}, {v(t+9)}, {v(t+9)} quad_perm:[1,0,3,2] {DPP}
    s_lshl_b32 {s(sT+2)}, {s(sI)}, 2
    v_lshlrev_b32 {v(t+10)}, 4, {v(vN)}
    v_max_u32_dpp {v(t+9)}, {v(t+9)}, {v(t+9)} quad_perm:[2,3,0,1] {DPP}
    s_add_u32 {s(sT+2)}, {s(sT+2)}, {s(sHH)}
    v_not_b32 {v(t+9)}, {v(t+9)}
    v_and_b32 {v(t+11)}, 4, {v(t+9)}
    v_and_b32 {v(t+9)}, 3, {v(t+9)}
    v_lshl_add_u32 {v(t+10)}, {v(t+11)}, 6, {v(t+10)}
    v_lshl_add_u32 {v(t+10)}, {v(t+9)}, 2, {v(t+10)}
    v_lshlrev_b32 {v(t+11)}, 1, {v(vN)}
    s_cmp_lg_u32 {s(sW)}, 0
    s_waitcnt lgkmcnt(0)
    s_barrier
    s_cbranch_scc1 L_fnext
    ds_read2st64_b32 {v(t,2)}, {v(t+10)} offset0:0 offset1:4
    ds_read2st64_b32 {v(t+2,2)}, {v(t+10)} offset0:8 offset1:12
    ds_read2st64_b32 {v(t+4,2)}, {v(t+10)} offset0:16 offset1:20
    ds_read2st64_b32 {v(t+6,2)}, {v(t+10)} offset0:24 offset1:28
    s_waitcnt lgkmcnt(2)
    v_pk_add_f32 {v(t,2)}, {v(t,2)}, {v(t+2,2)}
    s_waitcnt lgkmcnt(0)
    v_pk_add_f32 {v(t+4,2)}, {v(t+4,2)}, {v(t+6,2)}
    v_pk_add_f32 {v(t,2)}, {v(t,2)}, {v(t+4,2)}
    v_add_f32 {v(t)}, {v(t)}, {v(t+1)}
    v_mul_f32 {v(t+1)}, 0xbfb8aa3b, {v(t)}
    v_exp_f32 {v(t+1)}, {v(t+1)}
    v_mul_f32_dpp {v(t+2)}, {v(t)}, {v(t)} row_ror:8 {DPP}
    v_add_f32 {v(t+1)}, 1.0, {v(t+1)}
    v_rcp_f32 {v(t+1)}, {v(t+1)}
    v_mul_f32 {v(t+1)}, {v(t+1)}, {v(t+2)}
    v_mov_b32_dpp {v(t+2)}, {v(t+1)} quad_perm:[1,1,3,3] {DPP}
    s_mov_b64 exec, 0x55
    v_cvt_pk_bf16_f32 {v(t+1)}, {v(t+1)}, {v(t+2)}
    buffer_store_dword {v(t+1)}, {v(t+11)}, {WS}, {s(sT+1)} offen sc1
    ''')
    hint_store(vTag, sT+2, 'L_fhh')
    a('L_fnext:')
    stamp()
    a(f'''
    s_cmp_eq_u32 {s(sRnd)}, 1
    s_cbranch_scc1 L_fend
    s_cmp_eq_u32 {s(sRnd)}, 2
    s_cbranch_scc1 L_finit
    ''')
    if cfg.wb: a(f'''
    s_cmp_lg_u32 {s(sI)}, 28
    s_cbranch_scc1 L_nwb
    s_cmp_lg_u32 {s(sW)}, 7
    s_cbranch_scc1 L_nwb
    s_sleep {cfg.wbd}
    buffer_wbl2 sc1
    L_nwb:
    ''')
    a(f'''
    s_mov_b32 {s(sRnd)}, 1
    s_add_u32 {s(sSlot)}, {s(sSlot)}, {SLOTR}
    s_add_u32 {s(sHo)}, {s(sHo)}, {HR}
    s_add_u32 {s(sHH)}, {s(sHH)}, {HHR}
    s_branch L_frnd
    L_fslowtab:
    v_lshlrev_b32 {v(t+16)}, 4, {v(vLane)}
    s_mov_b32 {s(sT+10)}, {TABG}
    L_ftab2:
    ''')
    for k in range(4): a(f'buffer_load_dword {v(t+k)}, {v(t+16)}, {WS}, {s(sT+10)} offen offset:{1024*k} sc1')
    a('s_waitcnt vmcnt(0)')
    tag4chk(t)
    poll_branch('L_ftab2', 8)
    a(f'''
    s_branch L_frnd
    L_fgb2:
    s_sleep {cfg.gbdelay}
    L_fgb3:
    s_barrier
    s_cmp_ge_u32 {s(sI)}, 28
    s_cbranch_scc1 L_fgb4
    {f's_sleep {cfg.tim_arg-cfg.gbdelay}' if cfg.early else ''}
    {'s_branch L_fslot' if cfg.early else ''}
    global_load_dwordx4 {v(WB,4)}, {v(vH)}, s[18:19]
    global_load_dwordx4 {v(WB+4,4)}, {v(vH)}, s[20:21]
    s_waitcnt vmcnt(0)
    buffer_load_dwordx4 {v(t,4)}, {v(vSl)}, {WS}, {s(sSlot)} offen sc1
    buffer_load_dwordx4 {v(t+4,4)}, {v(vSl)}, {WS}, {s(sSlot)} offen offset:64 sc1
    buffer_load_dword {v(t+8)}, {v(vHd)}, {WS}, {s(sSlot)} offen offset:3072 sc1
    ds_write_b128 {v(vWr)}, {v(WB,4)} offset:8192
    ds_write_b128 {v(vWr)}, {v(WB+4,4)} offset:8208
    s_waitcnt lgkmcnt(0)
    ds_read_b64_tr_b16 {v(WB,2)}, {v(vTr)} offset:8192
    ds_read_b64_tr_b16 {v(WB+2,2)}, {v(vTr)} offset:8320
    ds_read_b64_tr_b16 {v(WB+4,2)}, {v(vTr)} offset:9216
    ds_read_b64_tr_b16 {v(WB+6,2)}, {v(vTr)} offset:9344
    s_waitcnt lgkmcnt(0)
    s_branch L_fslotw
    L_fgb4:
    ''')
    for k in range(7):
        a(f'global_load_dwordx4 {v(WB+4*k,4)}, {v(vSl)}, s[22:23]')
        if k<6: a(f'v_add_u32 {v(vSl)}, 0x8000, {v(vSl)}')
    a(f'''
    s_waitcnt vmcnt(0)''')
    for k in range(7):
        o=(k&1)*1024
        a(f'''ds_write_b128 {v(vWr)}, {v(WB+4*k,4)} offset:{o}
        s_waitcnt lgkmcnt(0)
        ds_read_b64_tr_b16 {v(WB+4*k,2)}, {v(vTr)} offset:{o}
        ds_read_b64_tr_b16 {v(WB+4*k+2,2)}, {v(vTr)} offset:{o+128}''')
    a(f'''
    s_waitcnt lgkmcnt(0)
    s_cmp_lg_u32 {s(sW)}, 0
    s_cbranch_scc1 L_fbar
    L_fb0:
    v_lshrrev_b32 {v(h+2)}, 3, {v(vLane)}
    v_lshlrev_b32 {v(h+2)}, 12, {v(h+2)}
    s_lshl_b32 {s(sT)}, {s(sCb)}, 6
    v_add3_u32 {v(h+4)}, {v(h+2)}, {v(h+3)}, {s(sT)}
    L_fbase:
    buffer_load_dwordx2 {v(h+6,2)}, {v(h+4)}, {WS}, {s(sSlot)} offen offset:1024 sc1
    buffer_load_dword {v(h+8)}, {v(h+2)}, {WS}, {s(sSlot)} offen offset:3072 sc1
    buffer_load_dword {v(h+9)}, {v(vHd)}, {WS}, {s(sSlot)} offen offset:3072 sc1
    s_waitcnt vmcnt(0)
    ''')
    maxchk(range(h+6,h+10), h+5)
    poll_branch('L_fbase', 2, mask=True)
    stamp()
    a(f'''
    v_max_u32_dpp {v(h+9)}, {v(h+9)}, {v(h+9)} row_half_mirror {DPP}
    v_max_u32_dpp {v(h+9)}, {v(h+9)}, {v(h+9)} quad_perm:[1,0,3,2] {DPP}
    v_max_u32_dpp {v(h+9)}, {v(h+9)}, {v(h+9)} quad_perm:[2,3,0,1] {DPP}
    v_readfirstlane_b32 {s(sKey)}, {v(h+9)}
    v_mov_b32 {v(h)}, 0xbfb8aa3b
    s_ashr_i32 {s(sT)}, {s(sKey)}, 31
    s_orn2_b32 {s(sT)}, 0x80000000, {s(sT)}
    s_xor_b32 {s(sT)}, {s(sT)}, {s(sKey)}
    v_mul_f32 {v(h)}, {s(sT)}, {v(h)}
    v_exp_f32 {v(h)}, {v(h)}
    v_add_f32 {v(h)}, 1.0, {v(h)}
    v_rcp_f32 {v(h)}, {v(h)}
    v_cmp_eq_u32 vcc, {s(sKey)}, {v(h+8)}
    v_cndmask_b32 {v(h+10)}, 0, {v(h)}, vcc
    v_bfi_b32 {v(h+8)}, {v(h+8)}, 0, {s(sM7FF)}
    v_lshlrev_b32 {v(h+8)}, 10, {v(h+8)}
    v_lshrrev_b32 {v(h+4)}, 1, {v(h+3)}
    s_lshl_b32 {s(sT)}, {s(sCb)}, 5
    v_add3_u32 {v(h+8)}, {v(h+8)}, {v(h+4)}, {s(sT)}
    s_cmp_eq_u32 {s(sFast)}, 0
    s_cbranch_scc1 L_fbar
    v_min_u32 {v(t)}, 27, {v(vLane)}
    v_lshlrev_b32 {v(t)}, 2, {v(t)}
    s_movk_i32 {s(sTry)}, 500
    L_fhint:
    buffer_load_dword {v(t+1)}, {v(t)}, {WS}, {s(sHH)} offen sc1
    s_waitcnt vmcnt(0)
    v_cmp_ne_u32 vcc, {s(sTag)}, {v(t+1)}
    ''')
    poll_branch('L_fhint', 1, giveup='L_fbar')
    if cfg.tim_h: a(f's_sleep {cfg.tim_h}')
    a(f'''
    s_barrier
    L_fh:
    ''')
    for k in range(7):
        a(f'buffer_load_dwordx4 {v(t+4*k,4)}, {v(vH)}, {WS}, {s(sHo)} offen offset:{64*k} sc1')
    a('s_waitcnt vmcnt(0)')
    a('L_fb_go:')
    Dy=t+28
    for k in range(7):
        a(f'v_mfma_f32_16x16x32_bf16 {v(Dy,4)}, {v(t+4*k,4)}, {v(WB+4*k,4)}, '+('0' if k==0 else v(Dy,4)))
        if k==0: a(f'v_max3_u32 {v(t+32)}, {v(t)}, {v(t+1)}, {v(t+2)}\nv_max_u32 {v(t+32)}, {v(t+32)}, {v(t+3)}')
        else: a(f'v_max3_u32 {v(t+32)}, {v(t+32)}, {v(t+4*k)}, {v(t+4*k+1)}\nv_max3_u32 {v(t+32)}, {v(t+32)}, {v(t+4*k+2)}, {v(t+4*k+3)}')
    a(f'v_cmp_eq_u32 vcc, -1, {v(t+32)}')
    poll_branch('L_fh', 1, skip=True, pre=f's_cmp_eq_u32 {s(sRnd)}, 2\ns_cbranch_scc1 L_fh_ok')
    a('L_fh_ok:')
    stamp()
    a(f'''
    s_mov_b64 exec, 0xffff
    s_cmp_lg_u32 {s(sW)}, 0
    ds_write_b32 {v(vPW)}, {v(Dy)}
    s_mov_b64 exec, -1
    s_waitcnt lgkmcnt(0)
    s_barrier
    s_cbranch_scc1 L_fnext
    s_cmp_eq_u32 {s(sRnd)}, 1
    s_cbranch_scc1 L_ffinal
    v_lshlrev_b32 {v(t+8)}, 5, {v(vN)}
    ds_read_b128 {v(t,4)}, {v(t+8)}
    ds_read_b128 {v(t+4,4)}, {v(t+8)} offset:16
    s_lshl_b32 {s(sT)}, {s(sCb)}, 7
    s_add_u32 {s(sT)}, {s(sT)}, {YBUF}
    s_add_u32 {s(sT)}, {s(sT)}, {s(sYo)}
    v_lshlrev_b32 {v(t+9)}, 2, {v(vLane)}
    s_lshl_b32 {s(sT+1)}, {s(sX)}, 7
    s_lshl_b32 {s(sT+2)}, {s(sI)}, 2
    s_add_u32 {s(sT+1)}, {s(sT+1)}, {s(sT+2)}
    s_add_u32 {s(sT+1)}, {s(sT+1)}, {YHINT-28*4}
    s_add_u32 {s(sT+1)}, {s(sT+1)}, {s(sYo)}
    s_mov_b64 exec, 0xffff
    s_waitcnt lgkmcnt(0)
    v_pk_add_f32 {v(t,2)}, {v(t,2)}, {v(t+2,2)}
    v_pk_add_f32 {v(t+4,2)}, {v(t+4,2)}, {v(t+6,2)}
    v_pk_add_f32 {v(t,2)}, {v(t,2)}, {v(t+4,2)}
    v_add_f32 {v(t)}, {v(t)}, {v(t+1)}
    v_mul_f32 {v(t)}, {v(t)}, {v(h)}
    buffer_store_dword {v(t)}, {v(t+9)}, {WS}, {s(sT)} offen sc1
    ''')
    hint_store(vTag, sT+1, 'L_fyh')
    a(f'''
    s_cmp_lg_u32 {s(sRnd)}, 2
    s_cbranch_scc1 L_fnext
    L_ffinal:
    v_lshlrev_b32 {v(t+16)}, 3, {v(h+3)}
    ds_read_b128 {v(t,4)}, {v(t+16)}
    ds_read_b128 {v(t+4,4)}, {v(t+16)} offset:16
    ds_read_b128 {v(t+8,4)}, {v(t+16)} offset:32
    ds_read_b128 {v(t+12,4)}, {v(t+16)} offset:48
    s_waitcnt lgkmcnt(2)
    v_pk_add_f32 {v(t,2)}, {v(t,2)}, {v(t+2,2)}
    v_pk_add_f32 {v(t+4,2)}, {v(t+4,2)}, {v(t+6,2)}
    s_waitcnt lgkmcnt(0)
    v_pk_add_f32 {v(t+8,2)}, {v(t+8,2)}, {v(t+10,2)}
    v_pk_add_f32 {v(t+12,2)}, {v(t+12,2)}, {v(t+14,2)}
    v_pk_add_f32 {v(t,2)}, {v(t,2)}, {v(t+4,2)}
    v_pk_add_f32 {v(t+8,2)}, {v(t+8,2)}, {v(t+12,2)}
    v_add_f32 {v(t)}, {v(t)}, {v(t+1)}
    v_add_f32 {v(t+1)}, {v(t+8)}, {v(t+9)}
    v_pk_fma_f32 {v(t,2)}, {v(t,2)}, {v(h+10,2)}, {v(h+6,2)} op_sel_hi:[1,0,1]
    v_cvt_pk_bf16_f32 {v(t)}, {v(t)}, {v(t+1)}
    buffer_store_dword {v(t)}, {v(h+8)}, {OS}, 0 offen sc1
    s_cmp_eq_u32 {s(sRnd)}, 2
    s_cbranch_scc1 L_fnext
    ''')
    stamp()
    a('L_fend:')
    dump_stamps()
    a('s_endpgm')

def build():
    hdr=open('ref.txt').read().split('; @launch')[0]
    a.raw(hdr+f'; @launch grid=({NWG},1,1) block=(512,1,1) lds={LDS_TOTAL}')
    a.raw(f'''; generated by gen/gen.py (hand-written generator): persistent FFT-structured FNet + MoD kernel
.amdgcn_target "amdgcn-amd-amdhsa--gfx950"
.text
.globl {NAME}_kernel
.p2align 8
.type {NAME}_kernel,@function
{NAME}_kernel:''')
    a(f'''
    s_load_dwordx2 s[12:13], s[0:1], 0
    s_load_dwordx2 s[8:9], s[0:1], 96
    s_load_dwordx8 s[16:23], s[0:1], 48
    s_load_dwordx2 s[28:29], s[0:1], 80
    s_cmp_ge_u32 s2, {NWG}
    s_cbranch_scc1 L_end
    ''')
    if cfg.codepf: a(f'''
    s_getpc_b64 {s(sT+6,2)}
    L_pc:
    v_lshlrev_b32 v2, 5, v0
    v_min_u32 v2, L_end-L_pc, v2
    global_load_dword {v(vTG)}, v2, {s(sT+6,2)}
    ''')
    if cfg.split: a(f'''
    s_lshr_b32 s3, s2, 1
    s_xor_b32 s3, s3, s2
    s_and_b32 s3, s3, 128
    s_mul_i32 s3, s3, 3
    s_xor_b32 s2, s2, s3
    ''')
    a(f'''
    v_lshrrev_b32 v2, 6, v0
    v_and_b32 {v(vN)}, 15, v0
    v_bfe_u32 {v(vQ)}, v0, 4, 2
    v_readfirstlane_b32 {s(sW)}, v2
    v_and_b32 {v(vLane)}, 63, v0
    s_mov_b32 s10, {WSSZ}
    s_mov_b32 s11, 0x20000
    s_mov_b32 s30, 0x200000
    s_mov_b32 s31, 0x20000
    s_and_b32 {s(sX)}, s2, 7
    s_lshr_b32 {s(sJ)}, s2, 3
    v_mov_b32 {v(SENT)}, -1
    v_mov_b32 {v(SENT+1)}, -1
    v_mov_b32 {v(SENT+2)}, -1
    v_mov_b32 {v(SENT+3)}, -1
    v_lshlrev_b32 {v(vL8)}, 3, v0
    v_and_b32 {v(vL8)}, 0xf8, {v(vL8)}
    s_mov_b32 {s(sCnt)}, 200000
    s_mov_b32 {s(sM7FF)}, 0x7ff
    s_lshl_b32 {s(sTabLd)}, {s(sX)}, 8
    s_add_u32 {s(sTabLd)}, {s(sTabLd)}, {TABL}
    s_getreg_b32 {s(sXcc)}, hwreg(HW_REG_XCC_ID, 0, 4)
    ''')
    if cfg.force_slow: a(f's_mov_b32 {s(sXcc)}, {s(sJ)}')
    if cfg.stamps:
        a(f's_mov_b32 {s(sStampI)}, 0\nv_mov_b32 {v(vSTMP)}, 0')
        a(f's_memrealtime {s(sTS,2)}\ns_memtime {s(sTS+2,2)}\ns_waitcnt lgkmcnt(0)\nv_writelane_b32 {v(vSTMP)}, {s(sTS)}, 63\nv_writelane_b32 {v(vSTMP)}, {s(sTS+2)}, 62')
    a('''s_cmp_ge_u32 s2, 256
    s_cbranch_scc1 L_ffn''')
    if cfg.prio: a(f's_setprio 2\ns_cmp_gt_u32 {s(sW)}, 1\ns_cbranch_scc1 L_np\ns_setprio 3\nL_np:')
    main_prologue()
    main_loop()
    ffn()
    a('L_end:\ns_endpgm')
    a.raw(f'''.section .rodata,"a"
.p2align 6
.amdhsa_kernel {NAME}_kernel
  .amdhsa_next_free_vgpr 128
  .amdhsa_next_free_sgpr 96
  .amdhsa_accum_offset 128
  .amdhsa_group_segment_fixed_size 0
  .amdhsa_kernarg_size 104
  .amdhsa_user_sgpr_count 2
  .amdhsa_user_sgpr_kernarg_segment_ptr 1
  .amdhsa_system_sgpr_workgroup_id_x 1
.end_amdhsa_kernel''')
    return a.text()
if __name__=='__main__':
    out=sys.argv[1]
    for kv in sys.argv[2:]:
        k,val=kv.split('='); assert hasattr(cfg,k); setattr(cfg,k,int(val))
    open(out,'w').write(build())
    print('instrs',a.count,'nops',a.nops)
```

```python
import sys, struct
from asmlib import Asm
NAME='interleave_layers__spectral_fnet__moe_arch_mod__prompt'
def fbits(x): return '0x%08x' % struct.unpack('<I', struct.pack('<f', x))[0]

class Cfg:
    stamps=0
    tim_arg=20
    tim_y=3
    tim_h=3
    slp_g=2
    slp_l=1
    force_slow=0
    prio=1
    codepf=1
    exp=0
    cal=-1
    calwg=0
    dbgout=0
    dry=1
    wb=1
    fdelay=0
    gdelay=0
    osc=1
    odel=0
    pfm=7
    clr2=0
    early=1
    wbd=24
    gbdelay=4
    late=1
    split=0
    tch=1
cfg=Cfg()

TABG=0x1000; TABGR=0x6000
TABL=0x2000; ARGR=0x800
TAB2=0x3800
SLOWF=0x4000
YHINT=0x5000
HHINT=0x6000; HHR=0x400
CLR0=0x8000
HBUF=0x8000; HR=0x1000
YBUF=0xA000
SLOT=0x10000; SLOTR=0x8000
LBASE=0x20000; PS=8448; LX=32*PS
GBASE=0x240000; GS=262144+768; GR=0x210000
STAMP=0x700000
WSSZ=0x800000
NWG=512
NST=(13,8,10)
L_STAT=0; L_U=0x400; L_YI=0x2400; YIS=320; L_YT=0x4C00; L_DH=0x6E00; LDS_TOTAL=0x7600
L_CX=0x2400
def v(a,n=1): return f'v{a}' if n==1 else f'v[{a}:{a+n-1}]'
def s(a,n=1): return f's{a}' if n==1 else f's[{a}:{a+n-1}]'

WS='s[8:11]'; XS='s[12:15]'; OS='s[28:31]'
sW=3; sX=26; sJ=27; sIt=32; sTag=33; sFast=34; sKey=35; sMir=36; sDsc=38
sLst=39; sLld=40; sPh=41; sTabG=42; sG0=43; sG4=44; sTabSt=45; sTabLd=46; sSlot=47; sRow0=48; sRow1=49; sCnt=50
sXcc=51; sStampI=37
sK512=52
sTry=53
sEps=54
sC16=56
sSc=58
sM7FF=60; sTop=61
sQmask=62
sT=64
sTS=80
X=2; WV=10; A8=14; XA=16; B1C=20; B1S=24; B1N=28; TWC=32; TWS=36; A2R=40; A2I=44; YC=48; YS=52
AD=56; BC=58
vXoff=72; vStW=73; vStR=74; vUW=75; vUR=76; vLst=77; vLld=78; vLldM=79; vYIW=80; vYIR=81; vYW=82; vYR=83; vGst=84; vGld=85
vSc0=86; vL8=88; vInv=89; vN=90; vQ=91; vSTMP=1; vLane=92; vTG=93
LNP=94; MM=98; RS2=100
T=102
class Asm2(Asm):
    def __call__(self, text):
        parts=text.split(';@F')
        for i,p in enumerate(parts):
            if i: fstamp()
            Asm.__call__(self,p)
a=Asm2()
def poll_branch(lbl, sleep=1, pre='', giveup=None, skip=False, mask=False):
    k=a.lines.index(lbl+':')
    if mask:
        pre+='\ns_mov_b64 exec, vcc'; skip=True
        k2=next(i for i in range(k,len(a.lines)) if 's_waitcnt vmcnt(0)' in a.lines[i])
        k3=max(i for i in range(k,k2) if 'buffer_load' in a.lines[i])
        a.lines.insert(k3+1,'    s_mov_b64 exec, -1')
    if a.lines[k-1].strip().startswith(('s_branch','s_endpgm')): skip=False
    a(f's_cbranch_vccnz {lbl}_r ;!nd')
    st=[]
    if skip: st.append(f'    s_branch {lbl}')
    st.append(f'{lbl}_r:')
    if giveup: st+= [f'    s_sub_u32 {s(sTry)}, {s(sTry)}, 1', f'    s_cbranch_scc1 {giveup}']
    else: st+= [f'    s_sub_u32 {s(sCnt)}, {s(sCnt)}, 1', '    s_cbranch_scc1 L_end']
    st+= ['    '+x.strip() for x in pre.split('\n') if x.strip()]
    if sleep: st.append(f'    s_sleep {sleep}')
    a.lines[k:k]=st
def fstamp():
    if cfg.stamps==2: stamp()
def stamp():
    if not cfg.stamps: return
    a(f'''{'s_memtime' if cfg.stamps==2 else 's_memrealtime'} {s(sTS,2)}
    s_waitcnt lgkmcnt(0)
    s_mov_b32 m0, {s(sStampI)}
    s_add_u32 {s(sStampI)}, {s(sStampI)}, 1
    v_writelane_b32 {v(vSTMP)}, {s(sTS)}, m0''')
def dump_stamps():
    if not cfg.stamps: return
    a(f's_memrealtime {s(sTS,2)}\ns_memtime {s(sTS+2,2)}\ns_waitcnt lgkmcnt(0)\nv_writelane_b32 {v(vSTMP)}, {s(sTS)}, 61\nv_writelane_b32 {v(vSTMP)}, {s(sTS+2)}, 60')
    if cfg.cal>=0:
        lab='L_cal%d'%len(a.lines)
        a(f'''s_cmp_lg_u32 s2, {cfg.calwg}
        s_cbranch_scc1 {lab}
        s_cmp_lg_u32 {s(sW)}, 0
        s_cbranch_scc1 {lab}
        v_readlane_b32 {s(sT)}, {v(vSTMP)}, {cfg.cal}
        v_readlane_b32 {s(sT+1)}, {v(vSTMP)}, 63
        s_sub_u32 {s(sT)}, {s(sT)}, {s(sT+1)}
        s_lshl_b32 {s(sT)}, {s(sT)}, 2
        s_add_u32 {s(sT)}, {s(sT)}, 3000
        s_min_u32 {s(sT)}, {s(sT)}, 50000
        {lab}_l:
        s_memrealtime {s(sTS,2)}
        s_waitcnt lgkmcnt(0)
        s_sub_u32 {s(sT+2)}, {s(sTS)}, {s(sT+1)}
        s_cmp_lt_u32 {s(sT+2)}, {s(sT)}
        s_cbranch_scc1 {lab}_l
        {lab}:''')
    a(f'''s_lshl_b32 {s(sT)}, s2, 11
    s_lshl_b32 {s(sT+1)}, {s(sW)}, 8
    s_add_u32 {s(sT)}, {s(sT)}, {s(sT+1)}
    s_add_u32 {s(sT)}, {s(sT)}, {STAMP}
    v_lshlrev_b32 {v(vLane)}, 2, {v(vLane)}
    buffer_store_dword {v(vSTMP)}, {v(vLane)}, {WS}, {s(sT)} offen''')
def maxchk(regs, t):
    regs=list(regs)
    a(f'v_max3_u32 {v(t)}, {v(regs[0])}, {v(regs[1])}, {v(regs[2])}')
    rest=regs[3:]
    while len(rest)>=2:
        a(f'v_max3_u32 {v(t)}, {v(t)}, {v(rest[0])}, {v(rest[1])}'); rest=rest[2:]
    if rest: a(f'v_max_u32 {v(t)}, {v(t)}, {v(rest[0])}')
    a(f'v_cmp_eq_u32 vcc, -1, {v(t)}')
def phchk(regs, t):
    regs=list(regs)
    a(f'v_bitop3_b32 {v(t)}, {v(regs[0])}, {v(regs[1])}, {s(sPh)} bitop3:0x7e')
    for r in regs[2:]: a(f'v_bitop3_b32 {v(t)}, {v(t)}, {v(r)}, {s(sPh)} bitop3:0xf6')
    a(f'v_and_b32 {v(t)}, 1, {v(t)}\nv_cmp_ne_u32 vcc, 0, {v(t)}')
def tag4chk(r):
    for k in range(4): a(f'v_xor_b32 {v(r+k)}, {s(sTag)}, {v(r+k)}')
    a(f'v_or3_b32 {v(r)}, {v(r)}, {v(r+1)}, {v(r+2)}\nv_or_b32 {v(r)}, {v(r)}, {v(r+3)}\nv_cmp_ne_u32 vcc, 0, {v(r)}')
DPP='row_mask:0xf bank_mask:0xf'

def fft_core(xr, xi, U, V, F, P, fill1='', fill2=''):
    Ur,Ui=U,U+4
    a(f'v_mfma_f32_16x16x32_f16 {v(Ur,4)}, {v(xr,4)}, {v(B1C,4)}, 0')
    a(f'v_mfma_f32_16x16x32_f16 {v(Ui,4)}, {v(xr,4)}, {v(B1N,4)}, 0')
    if xi is not None:
        a(f'v_mfma_f32_16x16x32_f16 {v(Ur,4)}, {v(xi,4)}, {v(B1S,4)}, {v(Ur,4)}')
        a(f'v_mfma_f32_16x16x32_f16 {v(Ui,4)}, {v(xi,4)}, {v(B1C,4)}, {v(Ui,4)}')
    a(fill1)
    Vr,Vi=V,V+4
    for h in (0,2):
        a(f'v_pk_mul_f32 {v(Vi+h,2)}, {v(Ur+h,2)}, {v(TWS+h,2)}')
    for h in (0,2):
        a(f'v_pk_mul_f32 {v(Vr+h,2)}, {v(Ui+h,2)}, {v(TWS+h,2)}')
    for h in (0,2):
        a(f'v_pk_fma_f32 {v(Vr+h,2)}, {v(Ur+h,2)}, {v(TWC+h,2)}, {v(Vr+h,2)}')
        a(f'v_pk_fma_f32 {v(Vi+h,2)}, {v(Ui+h,2)}, {v(TWC+h,2)}, {v(Vi+h,2)} neg_lo:[0,0,1] neg_hi:[0,0,1]')
    for r in range(4): a(f'v_cvt_pk_f16_f32 {v(P+r)}, {v(Vr+r)}, {v(Vi+r)}')
    a(f'v_mfma_f32_16x16x32_f16 {v(F,4)}, {v(A2R,4)}, {v(P,4)}, 0')
    a(f'v_mfma_f32_16x16x32_f16 {v(F+4,4)}, {v(A2I,4)}, {v(P,4)}, 0')
    a(fill2)
    for r in range(4): a(f'v_cvt_pk_f16_f32 {v(P+r)}, {v(F+r)}, {v(F+4+r)}')

SENT=T+4

def main_prologue():
    t=T
    X0=BC
    a(f'''
    s_lshl_b32 {s(sRow0)}, s2, 10
    s_add_u32 {s(sRow1)}, {s(sRow0)}, 0x40000
    s_lshl_b32 {s(sT)}, {s(sW)}, 7
    v_lshl_add_u32 {v(vUW)}, {v(vN)}, 3, {s(sT)}                 ; 128w+8n
    v_lshl_add_u32 {v(vXoff)}, {v(vQ)}, 19, {v(vUW)}
    s_mov_b32 s14, 0x200000
    s_mov_b32 s15, 0x20000
    s_mul_i32 {s(sLld)}, {s(sX)}, {LX}
    s_add_u32 {s(sLld)}, {s(sLld)}, {LBASE}
    s_mul_i32 {s(sLst)}, {s(sJ)}, {PS}
    s_add_u32 {s(sLst)}, {s(sLst)}, {s(sLld)}
    v_lshlrev_b32 {v(t)}, 4, v0
    v_lshrrev_b32 {v(t+1)}, 4, v0
    s_waitcnt lgkmcnt(0)
    buffer_load_dwordx2 {v(X0,2)}, {v(vXoff)}, {XS}, {s(sRow0)} offen
    buffer_load_dwordx2 {v(X0+2,2)}, {v(vXoff)}, {XS}, {s(sRow1)} offen
    global_load_dwordx2 {v(X0+4,2)}, {v(vUW)}, s[16:17]
    buffer_load_dword {v(X0+6)}, off, {WS}, 0 sc1
    ''')
    tabt=f'buffer_load_dword {v(X0+7)}, {v(vL8)}, {WS}, {s(sTabLd)} offen sc1'
    ltch=f'buffer_load_dwordx4 {v(X0+8,4)}, {v(t)}, {WS}, {s(sLst)} offen sc1'
    lclr=f'buffer_store_dwordx4 {v(SENT,4)}, {v(t)}, {WS}, {s(sLst)} offen'
    if cfg.tch==0: a(tabt+'\n'+ltch+'\n'+lclr)
    if cfg.tch==1: a(tabt+'\n'+ltch)
    if cfg.tch==2: a(tabt+'\n'+lclr+'\n'+ltch)
    if cfg.tch==3: a(ltch.replace(' sc1','')+'\n'+ltch.replace(' sc1','')+'\n'+lclr)
    a(f'''
    s_mov_b32 {s(sG0)}, {GBASE}
    s_mul_i32 {s(sT)}, {s(sX)}, {GS}
    s_add_u32 {s(sT+2)}, {s(sJ)}, 24
    s_and_b32 {s(sT+2)}, {s(sT+2)}, 24
    s_lshl_b32 {s(sT+2)}, {s(sT+2)}, 13
    s_add_u32 {s(sT)}, {s(sT)}, {s(sT+2)}
    s_and_b32 {s(sT+2)}, {s(sJ)}, 7
    s_cmp_lt_u32 {s(sJ)}, 8
    s_cselect_b32 {s(sT+3)}, 7, 8
    s_cselect_b32 {s(sT+4)}, 112, 0
    s_lshl_b32 {s(sT+2)}, {s(sT+2)}, {s(sT+3)}
    s_add_u32 {s(sT)}, {s(sT)}, {s(sT+2)}
    v_lshlrev_b32 {v(t+2)}, 4, {v(vN)}
    v_lshl_add_u32 {v(vGst)}, {v(t+1)}, 11, {v(t+2)}
    v_and_b32 {v(t+3)}, 8, {v(vN)}
    v_mad_u32_u24 {v(vGst)}, {v(t+3)}, {s(sT+4)}, {v(vGst)}
    v_add_u32 {v(vGst)}, {s(sT)}, {v(vGst)}
    buffer_store_dwordx4 {v(SENT,4)}, {v(vGst)}, {WS}, {s(sG0)} offen sc1
    s_lshl_b32 {s(sT)}, s2, 13
    s_add_u32 {s(sT)}, {s(sT)}, {CLR0}
    s_cmp_lt_u32 s2, 12
    s_cselect_b32 {s(sT)}, {s(sT)}, {WSSZ}
    buffer_store_dwordx4 {v(SENT,4)}, {v(t)}, {WS}, {s(sT)} offen sc1
    ''')
    c=t+8; co,si=c+8,c+12
    a(f'''
    s_lshr_b32 {s(sT)}, {s(sJ)}, 2
    s_and_b32 {s(sT)}, {s(sT)}, 6                 ; 2*(j>>3)
    s_lshl_b32 {s(sT+1)}, {s(sW)}, 2
    s_and_b32 {s(sT+1)}, {s(sT+1)}, 8             ; 2*4*((w>>1)&1)
    s_cmp_lt_u32 {s(sJ)}, 8
    s_cselect_b32 {s(sT)}, {s(sT+1)}, {s(sT)}
    s_lshl_b32 {s(sT+1)}, {s(sW)}, 4
    s_and_b32 {s(sT+1)}, {s(sT+1)}, 16            ; 16*(w&1)
    s_cmp_ge_u32 {s(sW)}, 4
    s_cselect_b32 {s(sT+2)}, {s(sT+1)}, 0         ; 16k
    s_cselect_b32 {s(sT)}, {s(sT)}, 0
    s_cmp_eq_u32 {s(sW)}, 3
    s_cselect_b32 {s(sT)}, 16, {s(sT)}
    s_lshl_b32 {s(sT+3)}, {s(sW)}, 2
    s_lshr_b32 {s(sT+3)}, 0x44440054, {s(sT+3)}
    s_and_b32 {s(sT+3)}, {s(sT+3)}, 15            ; log2 A
    v_lshlrev_b32 {v(c)}, {s(sT+3)}, {v(vN)}
    v_add_u32 {v(c)}, {s(sT)}, {v(c)}
    v_lshl_add_u32 {v(c+1)}, {v(vQ)}, 2, {s(sT+2)}
    v_cvt_f32_u32 {v(c)}, {v(c)}
    v_cvt_f32_u32 {v(c+1)}, {v(c+1)}
    s_mov_b32 {s(sK512)}, {fbits(1/512)}
    v_mul_f32 {v(c)}, {s(sK512)}, {v(c)}
    v_mul_f32 {v(c+4)}, {v(c+1)}, {v(c)}
    v_add_f32 {v(c+5)}, {v(c+4)}, {v(c)}
    v_add_f32 {v(c+6)}, {v(c+5)}, {v(c)}
    v_add_f32 {v(c+7)}, {v(c+6)}, {v(c)}
    ''')
    fill=[f's_mov_b32 {s(sEps)}, {fbits(1e-5)}', f's_mov_b32 {s(sEps+1)}, {fbits(1e-5)}', f's_mov_b32 {s(sC16)}, {fbits(1/16)}', f's_mov_b32 {s(sC16+1)}, {fbits(1/16)}',
          f's_mov_b32 {s(sTop)}, 0x80000000', f's_mov_b32 {s(sQmask)}, 0x11111111', f's_mov_b32 {s(sQmask+1)}, 0x11111111', f's_mov_b32 {s(sG4)}, {GBASE+4*GS}']
    for r in range(4):
        a(f'v_cos_f32 {v(co+r)}, {v(c+4+r)}'); a(fill[2*r])
        a(f'v_sin_f32 {v(si+r)}, {v(c+4+r)}'); a(fill[2*r+1])
    a(f'''
    s_lshl_b32 {s(sT)}, {s(sW)}, 11
    s_add_u32 {s(sT)}, {s(sT)}, {L_CX}
    v_lshlrev_b32 {v(c+2)}, 4, {v(vLane)}
    v_add_u32 {v(c+3)}, {s(sT)}, {v(c+2)}
    s_and_b32 {s(sT)}, {s(sW)}, 6
    s_cmp_eq_u32 {s(sT)}, 2
    s_cbranch_scc1 L_cw
    s_cmp_eq_u32 {s(sW)}, 1
    s_cbranch_scc1 L_cri
    v_cvt_pk_f16_f32 {v(co)}, {v(co)}, {v(co+1)}
    v_cvt_pk_f16_f32 {v(co+1)}, {v(co+2)}, {v(co+3)}
    v_cvt_pk_f16_f32 {v(co+2)}, {v(si)}, {v(si+1)}
    v_cvt_pk_f16_f32 {v(co+3)}, {v(si+2)}, {v(si+3)}
    s_branch L_cw
    L_cri:
    ''')
    for r in range(4):
        a(f'v_cvt_pk_f16_f32 {v(c+4)}, {v(co+r)}, {v(si+r)}')
        a(f'v_cvt_pk_f16_f32 {v(si+r)}, -{v(si+r)}, {v(co+r)}')
        a(f'v_mov_b32 {v(co+r)}, {v(c+4)}')
    a(f'''
    L_cw:
    ds_write_b128 {v(c+3)}, {v(co,4)}
    ds_write_b128 {v(c+3)}, {v(si,4)} offset:1024
    v_lshrrev_b32 {v(c+4)}, 2, {v(vN)}
    v_and_b32 {v(c+5)}, 2, {v(vN)}
    v_and_b32 {v(c+6)}, 14, {v(vN)}
    v_cmp_eq_u32 vcc, 2, {v(c+6)}
    v_mul_u32_u24 {v(vYIR)}, {YIS}, {v(c+4)}
    v_lshlrev_b32 {v(vStR)}, 8, {v(vQ)}
    v_cndmask_b32 {v(c+4)}, {v(c+4)}, 4, vcc
    v_cndmask_b32 {v(c+5)}, {v(c+5)}, 0, vcc
    v_mul_u32_u24 {v(c+6)}, {v(c+4)}, {v(vQ)}
    v_lshl_add_u32 {v(c+6)}, {v(c+6)}, 1, {v(c+5)}
    v_add_u32 {v(c+7)}, {v(c+6)}, {v(c+4)}
    v_cvt_f32_u32 {v(c+6)}, {v(c+6)}
    v_cvt_f32_u32 {v(c+7)}, {v(c+7)}
    v_mul_f32 {v(c+6)}, 0x3e000000, {v(c+6)}
    v_mul_f32 {v(c+7)}, 0x3e000000, {v(c+7)}
    v_cos_f32 {v(c+6)}, {v(c+6)}
    v_cos_f32 {v(c+7)}, {v(c+7)}
    v_and_b32 {v(c+5)}, 1, {v(vN)}
    v_cmp_eq_u32 vcc, 0, {v(c+5)}
    v_cvt_pk_f16_f32 {v(c+6)}, {v(c+6)}, {v(c+7)}
    v_mov_b32 {v(c+5)}, 0x80008000
    v_cndmask_b32 {v(A8)}, 0, {v(c+6)}, vcc
    v_cndmask_b32 {v(A8+1)}, {v(c+6)}, 0, vcc
    v_cndmask_b32 {v(c+5)}, {v(c+5)}, 0, vcc
    s_lshl_b32 {s(sT+1)}, {s(sT+1)}, 7            ; h*2048
    v_add_u32 {v(c+6)}, {s(sT+1)}, {v(c+2)}
    s_lshl_b32 {s(sT+2)}, {s(sW)}, 11
    s_and_b32 {s(sT+2)}, {s(sT+2)}, 4096          ; ((w>>1)&1)*4096
    v_add_u32 {v(c+7)}, {s(sT+2)}, {v(c+2)}
    s_waitcnt lgkmcnt(0)
    s_barrier
    ds_read_b128 {v(B1N,4)}, {v(c+2)} offset:{L_CX}
    ds_read_b128 {v(co,4)}, {v(c+7)} offset:{L_CX+4*2048}
    ds_read_b128 {v(si,4)}, {v(c+7)} offset:{L_CX+5*2048}
    ds_read_b128 {v(A2R,4)}, {v(c+2)} offset:{L_CX+2048}
    ds_read_b128 {v(A2I,4)}, {v(c+2)} offset:{L_CX+2048+1024}
    ds_read_b128 {v(TWC,4)}, {v(c+6)} offset:{L_CX+4096}
    ds_read_b128 {v(TWS,4)}, {v(c+6)} offset:{L_CX+4096+1024}
    v_and_b32 {v(c+4)}, 4, {v(vN)}
    s_lshl_b32 {s(sT)}, {s(sW)}, 2
    v_lshl_add_u32 {v(vStW)}, {v(t+3)}, 2, {v(vStR)}
    v_lshl_add_u32 {v(vStW)}, {v(c+4)}, 4, {v(vStW)}
    v_add_u32 {v(vStW)}, {s(sT)}, {v(vStW)}
    v_and_b32 {v(c+4)}, 7, {v(vN)}
    v_lshl_add_u32 {v(vStR)}, {v(c+4)}, 5, {v(vStR)}
    v_lshl_add_u32 {v(vUW)}, {v(vQ)}, 11, {v(vUW)}
    v_add_u32 {v(vUW)}, {L_U}, {v(vUW)}
    s_lshr_b32 {s(sT)}, {s(sW)}, 1
    s_lshl_b32 {s(sT)}, {s(sT)}, 11
    s_add_u32 {s(sT+2)}, {s(sT)}, {L_U}
    v_lshl_add_u32 {v(vUR)}, {v(vLane)}, 3, {s(sT+2)}
    ; vLst = w'*2048 + 512q + 64h + 4n
    s_lshr_b32 {s(sT+2)}, {s(sT+1)}, 5
    s_add_u32 {s(sT)}, {s(sT)}, {s(sT+2)}
    v_lshl_add_u32 {v(vLst)}, {v(vQ)}, 9, {s(sT)}
    v_lshl_add_u32 {v(vLst)}, {v(vN)}, 2, {v(vLst)}
    s_lshl_b32 {s(sT)}, {s(sJ)}, 3
    s_add_u32 {s(sTabSt)}, {s(sTabLd)}, {s(sT)}
    s_lshl_b32 {s(sT+3)}, {s(sW)}, 31             ; h sign
    s_lshl_b32 {s(sT+4)}, {s(sW)}, 29
    s_and_b32 {s(sT+4)}, {s(sT+4)}, {s(sTop)}
    s_mov_b32 {s(sT+5)}, 0x80008000
    s_mov_b32 {s(sIt)}, 0
    s_mov_b32 {s(sFast)}, 1
    s_mov_b32 {s(sPh)}, 0
    s_mov_b32 {s(sSlot)}, {WSSZ}
    s_mov_b32 {s(sTry)}, 40
    s_waitcnt lgkmcnt(4)
    v_xor_b32 {v(B1C)}, {s(sT+3)}, {v(B1N)}
    v_xor_b32 {v(B1C+1)}, {s(sT+3)}, {v(B1N+1)}
    v_xor_b32 {v(B1S)}, {s(sT+3)}, {v(B1N+2)}
    v_xor_b32 {v(B1S+1)}, {s(sT+3)}, {v(B1N+3)}
    v_xor_b32 {v(B1C+2)}, {v(B1C)}, {v(c+5)}
    v_xor_b32 {v(B1C+3)}, {v(B1C+1)}, {v(c+5)}
    v_xor_b32 {v(B1S+2)}, {v(B1S)}, {v(c+5)}
    v_xor_b32 {v(B1S+3)}, {v(B1S+1)}, {v(c+5)}
    ''')
    for r in range(4): a(f'v_xor_b32 {v(B1N+r)}, {s(sT+5)}, {v(B1S+r)}')
    for k,src in ((0,co),(1,si)):
        for r in range(2):
            a(f'v_xor_b32 {v(YC+2*k+r)}, {s(sT+4)}, {v(src+r)}')
            a(f'v_xor_b32 {v(YS+2*k+r)}, {s(sT+4)}, {v(src+2+r)}')
    a(f'''
    s_and_b32 {s(sT+1)}, {s(sW)}, 3
    s_lshl_b32 {s(sT+1)}, {s(sT+1)}, 6            ; 64cb
    s_lshr_b32 {s(sT)}, {s(sW)}, 2
    s_mul_i32 {s(sT)}, {s(sT)}, {16*272}
    s_add_u32 {s(sT)}, {s(sT)}, {s(sT+1)}
    s_add_u32 {s(sT)}, {s(sT)}, {L_YT}
    v_mul_u32_u24 {v(vYW)}, 272, {v(vN)}
    v_lshl_add_u32 {v(vYW)}, {v(vQ)}, 4, {v(vYW)}
    v_add_u32 {v(vYW)}, {s(sT)}, {v(vYW)}
    v_mul_u32_u24 {v(vYR)}, 272, {v(t+1)}
    v_add_u32 {v(vYR)}, {v(vYR)}, {v(t+2)}
    v_add_u32 {v(vYR)}, {L_YT}, {v(vYR)}
    s_add_u32 {s(sT+1)}, {s(sT+1)}, {L_YI}
    v_mul_u32_u24 {v(c+4)}, {4*YIS}, {v(vQ)}
    v_and_b32 {v(c+6)}, 0x30, {v(t+2)}
    v_add3_u32 {v(vYIR)}, {v(vYIR)}, {v(c+4)}, {v(c+6)}
    v_add_u32 {v(vYIR)}, {s(sT+1)}, {v(vYIR)}
    s_cmp_lt_u32 {s(sJ)}, 8
    s_cbranch_scc1 L_aself
    v_mul_u32_u24 {v(vLld)}, {PS}, {v(t+1)}
    v_mul_u32_u24 {v(vYIW)}, {YIS}, {v(t+1)}
    s_lshl_b32 {s(sT)}, {s(sJ)}, 8
    v_add3_u32 {v(vLld)}, {v(vLld)}, {v(t+2)}, {s(sT)}
    v_add_u32 {v(vYIW)}, {v(vYIW)}, {v(t+2)}
    v_mov_b32 {v(vLldM)}, 0
    s_branch L_adone
    L_aself:
    ; s2=(w>>1)*8+(l>>3), u=l&7, which=w&1
    s_lshl_b32 {s(sT)}, {s(sW)}, 2
    s_and_b32 {s(sT)}, {s(sT)}, 24
    v_lshrrev_b32 {v(c+4)}, 3, {v(vLane)}
    v_add_u32 {v(c+4)}, {s(sT)}, {v(c+4)}
    v_and_b32 {v(c+6)}, 0x70, {v(t+2)}
    v_mul_u32_u24 {v(vLldM)}, {PS}, {v(c+4)}
    v_mul_u32_u24 {v(vYIW)}, {YIS}, {v(c+4)}
    s_lshl_b32 {s(sT)}, {s(sJ)}, 7
    s_add_u32 {s(sT+1)}, {s(sT)}, 4
    s_sub_u32 {s(sT)}, {508*4}, {s(sT)}
    v_add3_u32 {v(vLld)}, {v(vLldM)}, {v(c+6)}, {s(sT+1)}
    v_sub_u32 {v(vLldM)}, {v(vLldM)}, {v(c+6)}
    v_add_u32 {v(vLldM)}, {s(sT)}, {v(vLldM)}
    s_lshr_b32 {s(sT)}, {s(sT+3)}, 24
    v_add3_u32 {v(vYIW)}, {v(vYIW)}, {v(c+6)}, {s(sT)}
    L_adone:
    v_add_u32 {v(vYIW)}, {L_YI}, {v(vYIW)}
    s_waitcnt vmcnt({4 if cfg.late else 2 if cfg.tch==1 else 5})
    {lclr if cfg.tch==1 and not cfg.late else ''}
    v_readfirstlane_b32 {s(sTag)}, {v(X0+6)}
    ''')
    for rho in (0,1):
        for k in (0,1):
            src=X0+2*rho+k
            a(f'v_lshlrev_b32 {v(X+4*k+rho)}, 16, {v(src)}')
            a(f'v_and_b32 {v(X+4*k+2+rho)}, 0xffff0000, {v(src)}')
    for k in (0,1):
        a(f'v_lshlrev_b32 {v(WV+2*k)}, 16, {v(X0+4+k)}')
        a(f'v_and_b32 {v(WV+2*k+1)}, 0xffff0000, {v(X0+4+k)}')
    a(f's_add_u32 {s(sTag)}, {s(sTag)}, 1')

def xin_consts(c):
    a(f'''
    s_and_b32 {s(sT)}, {s(sX)}, 3                ; 0 => self
    s_lshr_b32 {s(sT+1)}, {s(sW)}, 2
    s_lshr_b32 {s(sT+2)}, {s(sX)}, 2
    s_mov_b32 {s(sSc)}, {fbits(16.0)}
    s_cmp_eq_u32 {s(sT)}, 0
    s_cselect_b32 {s(sMir)}, {s(sT+1)}, {s(sT+2)}
    s_cselect_b32 {s(sSc)}, {fbits(8.0)}, {s(sSc)}
    s_cselect_b32 {s(sDsc)}, {fbits(1/8)}, {s(sC16)}
    s_cselect_b32 {s(sT+3)}, -4, 0
    s_mov_b32 {s(sSc+1)}, {s(sSc)}
    s_sub_u32 {s(sT+4)}, 256, s2
    s_and_b32 {s(sT+4)}, {s(sT+4)}, 255
    s_cmp_eq_u32 {s(sMir)}, 0
    s_cselect_b32 {s(sT+4)}, s2, {s(sT+4)}       ; source g
    s_cselect_b32 {s(sT+5)}, 16, -16
    s_cselect_b32 {s(sT+6)}, 0, {509*4}
    s_cselect_b32 {s(sT+7)}, 1.0, -1.0
    s_add_u32 {s(sT+3)}, {s(sT+3)}, {s(sT+6)}
    s_mul_i32 {s(sT+6)}, {s(sT+5)}, {s(sW)}
    s_lshl_b32 {s(sT+6)}, {s(sT+6)}, 4
    s_add_u32 {s(sT+3)}, {s(sT+3)}, {s(sT+6)}
    s_lshr_b32 {s(sT+6)}, {s(sT+4)}, 3
    s_lshl_b32 {s(sT+6)}, {s(sT+6)}, 11
    s_add_u32 {s(sT+3)}, {s(sT+3)}, {s(sT+6)}
    s_add_u32 {s(sT+6)}, {s(sT+4)}, 3
    s_and_b32 {s(sT+6)}, {s(sT+6)}, 3
    s_lshl_b32 {s(sT+6)}, {s(sT+6)}, 16
    s_add_u32 {s(sT+3)}, {s(sT+3)}, {s(sT+6)}
    s_and_b32 {s(sT+6)}, {s(sT+4)}, 4
    s_lshl_b32 {s(sT+6)}, {s(sT+6)}, 8
    s_add_u32 {s(sT+3)}, {s(sT+3)}, {s(sT+6)}
    v_mul_i32_i24 {v(vGld)}, {s(sT+5)}, {v(vN)}
    v_mul_u32_u24 {v(c+4)}, {GS}, {v(vQ)}
    v_add3_u32 {v(vGld)}, {v(vGld)}, {v(c+4)}, {s(sT+3)}
    v_lshrrev_b32 {v(c+4)}, 1, {v(vN)}
    v_and_b32 {v(c+4)}, 6, {v(c+4)}
    v_and_or_b32 {v(c+4)}, {v(vN)}, 1, {v(c+4)}
    v_lshl_add_u32 {v(AD)}, {v(c+4)}, 8, s2
    v_cvt_f32_u32 {v(c+4)}, {v(AD)}
    v_cvt_f32_u32 {v(c+5)}, {v(vQ)}
    v_mul_f32 {v(c+4)}, {fbits(1/2048)}, {v(c+4)}
    v_mul_f32 {v(c+4)}, {s(sT+7)}, {v(c+4)}
    v_mul_f32 {v(c+5)}, {v(c+4)}, {v(c+5)}
    v_fma_f32 {v(c+6)}, {v(c+4)}, 4.0, {v(c+5)}
    v_cos_f32 {v(c+7)}, {v(c+5)}
    v_sin_f32 {v(c+8)}, {v(c+5)}
    v_cos_f32 {v(c+9)}, {v(c+6)}
    v_sin_f32 {v(c+10)}, {v(c+6)}
    v_bfe_u32 {v(c+4)}, {v(vN)}, 1, 1
    v_cmp_eq_u32 vcc, {s(sMir)}, {v(c+4)}
    v_cvt_pk_f16_f32 {v(c+7)}, {v(c+7)}, {v(c+8)}
    v_cvt_pk_f16_f32 {v(c+9)}, {v(c+9)}, {v(c+10)}
    v_cndmask_b32 {v(XA)}, 0, {v(c+7)}, vcc
    v_cndmask_b32 {v(XA+1)}, {v(c+7)}, 0, vcc
    v_cndmask_b32 {v(XA+2)}, 0, {v(c+9)}, vcc
    v_cndmask_b32 {v(XA+3)}, {v(c+9)}, 0, vcc
    v_and_b32 {v(c+4)}, 0x1cf, v0
    v_cmp_eq_u32 vcc, 0, {v(c+4)}
    v_mov_b32 {v(c+5)}, {s(sSc)}
    s_sub_u32 {s(sT)}, 2047, s2
    v_lshlrev_b32 {v(vInv)}, 9, {v(vQ)}
    v_cndmask_b32 {v(vSc0)}, {v(c+5)}, 0, vcc
    v_cndmask_b32 {v(vSc0+1)}, {v(c+5)}, 0, vcc
    v_sub_u32 {v(vInv)}, {s(sT)}, {v(vInv)}
    s_lshl_b32 {s(sSlot)}, {s(sX)}, 12
    s_add_u32 {s(sSlot)}, {s(sSlot)}, {SLOT}
    s_lshl_b32 {s(sTabG)}, {s(sW)}, 9
    s_add_u32 {s(sTabG)}, {s(sTabG)}, {TABG+TABGR}
    s_mov_b32 {s(sPh)}, -1
    ''')

def main_loop():
    t=T
    S1,S2,S3=t,t+2,t+4
    a('L_top:')
    stamp()
    a(f'''
    v_pk_add_f32 {v(S1,2)}, {v(X,2)}, {v(X+2,2)}
    v_pk_add_f32 {v(t+6,2)}, {v(X+4,2)}, {v(X+6,2)}
    v_pk_mul_f32 {v(S2,2)}, {v(X,2)}, {v(X,2)}
    v_pk_mul_f32 {v(S3,2)}, {v(X,2)}, {v(WV,2)} op_sel:[0,0] op_sel_hi:[1,0]
    v_pk_add_f32 {v(S1,2)}, {v(S1,2)}, {v(t+6,2)}
    v_pk_fma_f32 {v(S2,2)}, {v(X+2,2)}, {v(X+2,2)}, {v(S2,2)}
    v_pk_fma_f32 {v(S3,2)}, {v(X+2,2)}, {v(WV,2)}, {v(S3,2)} op_sel:[0,1,0] op_sel_hi:[1,1,1]
    v_add_f32_dpp {v(S1)}, {v(S1)}, {v(S1)} row_ror:8 row_mask:0xf bank_mask:0x3
    v_pk_fma_f32 {v(S2,2)}, {v(X+4,2)}, {v(X+4,2)}, {v(S2,2)}
    v_pk_fma_f32 {v(S3,2)}, {v(X+4,2)}, {v(WV+2,2)}, {v(S3,2)} op_sel:[0,0,0] op_sel_hi:[1,0,1]
    v_add_f32_dpp {v(S1)}, {v(S1+1)}, {v(S1+1)} row_ror:8 row_mask:0xf bank_mask:0xc
    v_pk_fma_f32 {v(S2,2)}, {v(X+6,2)}, {v(X+6,2)}, {v(S2,2)}
    v_pk_fma_f32 {v(S3,2)}, {v(X+6,2)}, {v(WV+2,2)}, {v(S3,2)} op_sel:[0,1,0] op_sel_hi:[1,1,1]
    s_cmp_eq_u32 {s(sIt)}, 0
    s_cbranch_scc1 L_s3w
    L_s3ok:
    v_add_f32_dpp {v(S1)}, {v(S1)}, {v(S1)} row_half_mirror row_mask:0xf bank_mask:0x5
    v_add_f32_dpp {v(S2)}, {v(S2)}, {v(S2)} row_ror:8 row_mask:0xf bank_mask:0x3
    v_add_f32_dpp {v(S3)}, {v(S3)}, {v(S3)} row_ror:8 row_mask:0xf bank_mask:0x3
    v_add_f32_dpp {v(S2)}, {v(S2+1)}, {v(S2+1)} row_ror:8 row_mask:0xf bank_mask:0xc
    v_add_f32_dpp {v(S3)}, {v(S3+1)}, {v(S3+1)} row_ror:8 row_mask:0xf bank_mask:0xc
    v_add_f32_dpp {v(S1)}, {v(S2)}, {v(S2)} row_half_mirror row_mask:0xf bank_mask:0xa
    v_add_f32_dpp {v(S3)}, {v(S3)}, {v(S3)} row_half_mirror {DPP}
    v_add_f32_dpp {v(S1)}, {v(S1)}, {v(S1)} quad_perm:[1,0,3,2] {DPP}
    v_add_f32_dpp {v(S3)}, {v(S3)}, {v(S3)} quad_perm:[1,0,3,2] {DPP}
    v_add_f32_dpp {v(S1)}, {v(S1)}, {v(S1)} quad_perm:[2,3,0,1] {DPP}
    v_add_f32_dpp {v(S3)}, {v(S3)}, {v(S3)} quad_perm:[2,3,0,1] {DPP}
    s_mov_b64 exec, {s(sQmask,2)}
    ds_write2_b32 {v(vStW)}, {v(S1)}, {v(S3)} offset0:0 offset1:32
    s_mov_b64 exec, -1
    ;@F
    s_waitcnt {'' if cfg.late else 'vmcnt(0)' if cfg.tch==1 else 'vmcnt(2)'} lgkmcnt(0)
    s_barrier
    ;@F
    ds_read_b128 {v(t,4)}, {v(vStR)}
    ds_read_b128 {v(t+4,4)}, {v(vStR)} offset:16
    s_waitcnt lgkmcnt(0)
    v_pk_add_f32 {v(t,2)}, {v(t,2)}, {v(t+2,2)}
    v_pk_add_f32 {v(t+4,2)}, {v(t+4,2)}, {v(t+6,2)}
    v_pk_add_f32 {v(t,2)}, {v(t,2)}, {v(t+4,2)}
    v_add_f32 {v(t)}, {v(t)}, {v(t+1)}
    v_mul_f32 {v(t+7)}, {s(sK512)}, {v(t)}
    ''')
    VAR,RS,CC,NM=t+8,t+10,t+12,t+14
    K=t+16
    a(f'''
    v_mov_b32_dpp {v(MM)}, {v(t+7)} row_newbcast:0 {DPP}
    v_mov_b32_dpp {v(MM+1)}, {v(t+7)} row_newbcast:1 {DPP}
    v_mov_b32_dpp {v(S2)}, {v(t+7)} row_newbcast:2 {DPP}
    v_mov_b32_dpp {v(S2+1)}, {v(t+7)} row_newbcast:3 {DPP}
    v_mov_b32_dpp {v(S3)}, {v(t+7)} row_newbcast:4 {DPP}
    v_pk_fma_f32 {v(VAR,2)}, {v(MM,2)}, {v(MM,2)}, {v(S2,2)} neg_lo:[1,0,0] neg_hi:[1,0,0]
    v_mov_b32_dpp {v(S3+1)}, {v(t+7)} row_newbcast:5 {DPP}
    v_pk_add_f32 {v(S1,2)}, {v(VAR,2)}, {s(sEps,2)}
    s_cmp_eq_u32 {s(sIt)}, 0
    v_rsq_f32_e64 {v(RS)}, |{v(S1)}|
    v_rsq_f32_e64 {v(RS+1)}, |{v(S1+1)}|
    s_cbranch_scc1 L_it0 ;!nd
    v_pk_mul_f32 {v(S3,2)}, {v(S3,2)}, {v(RS,2)}
    v_add_u32 {v(K+2)}, 0xffffff00, {v(vInv)}
    v_ashrrev_i32 {v(K)}, 31, {v(S3)}
    v_ashrrev_i32 {v(K+1)}, 31, {v(S3+1)}
    v_bitop3_b32 {v(K)}, {v(S3)}, {v(K)}, {s(sTop)} bitop3:0x1e
    v_bitop3_b32 {v(K+1)}, {v(S3+1)}, {v(K+1)}, {s(sTop)} bitop3:0x1e
    v_bfi_b32 {v(K)}, {s(sM7FF)}, {v(vInv)}, {v(K)}
    v_bfi_b32 {v(K+1)}, {s(sM7FF)}, {v(K+2)}, {v(K+1)}
    v_max_u32 {v(K+1)}, {v(K)}, {v(K+1)}
    v_pk_add_f32 {v(CC,2)}, {v(RS,2)}, 1.0 op_sel_hi:[1,0]
    v_mov_b32 {v(K)}, {s(sTag)}
    v_max_u32_dpp {v(K+1)}, {v(K+1)}, {v(K+1)} row_bcast:15 row_mask:0xa bank_mask:0xf
    v_pk_mul_f32 {v(VAR,2)}, {v(VAR,2)}, {v(CC,2)}
    s_cmp_lg_u32 {s(sW)}, 0
    v_max_u32_dpp {v(K+1)}, {v(K+1)}, {v(K+1)} row_bcast:31 row_mask:0xc bank_mask:0xf
    s_cbranch_scc1 L_nost ;!nd
    s_mov_b32 exec_lo, 0
    s_mov_b32 exec_hi, {s(sTop)}
    s_cmp_eq_u32 {s(sFast)}, 0
    s_cbranch_scc1 L_tabst_slow ;!nd
    buffer_store_dwordx2 {v(K,2)}, off, {WS}, {s(sTabSt)}
    L_tabst_back:
    s_mov_b64 exec, -1
    L_nost:
    v_readlane_b32 {s(sKey)}, {v(K+1)}, 63
    v_pk_mul_f32 {v(NM,2)}, {v(MM,2)}, {v(RS,2)}
    v_pk_fma_f32 {v(VAR,2)}, {v(VAR,2)}, {v(CC,2)}, {s(sEps,2)}
    ''')
    Z=t+18
    for c_ in range(4):
        a(f'v_pk_fma_f32 {v(Z+2*c_,2)}, {v(X+2*c_,2)}, {v(RS,2)}, {v(NM,2)} neg_lo:[0,0,1] neg_hi:[0,0,1]')
        if c_==0: a(f'v_rsq_f32_e64 {v(RS2)}, |{v(VAR)}|')
        if c_==1: a(f'v_rsq_f32_e64 {v(RS2+1)}, |{v(VAR+1)}|')
    for c_ in range(4):
        a(f'v_pk_add_f32 {v(X+2*c_,2)}, {v(X+2*c_,2)}, {v(Z+2*c_,2)}')
    for rho in (0,1):
        for k in (0,1):
            a(f'v_cvt_pk_bf16_f32 {v(LNP+2*rho+k)}, {v(Z+4*k+rho)}, {v(Z+4*k+2+rho)}')
    a(f'''
    s_cmp_eq_u32 {s(sIt)}, 2
    s_cbranch_scc1 L_tab ;!nd
    v_pk_mul_f32 {v(CC,2)}, {v(RS2,2)}, {s(sC16,2)}
    L_z:
    ;@F
    ''')
    ZP=t; D0=t+4; D1=t+8
    a(f'v_pk_mul_f32 {v(NM,2)}, {v(MM,2)}, {v(CC,2)}')
    for c_ in range(4):
        a(f'v_pk_fma_f32 {v(Z+2*c_,2)}, {v(X+2*c_,2)}, {v(CC,2)}, {v(NM,2)} neg_lo:[0,0,1] neg_hi:[0,0,1]')
    for c_ in range(4): a(f'v_cvt_pk_f16_f32 {v(ZP+c_)}, {v(Z+2*c_)}, {v(Z+2*c_+1)}')
    a(f'''
    v_mfma_f32_16x16x16_f16 {v(D0,4)}, {v(A8,2)}, {v(ZP,2)}, 0
    v_mfma_f32_16x16x16_f16 {v(D1,4)}, {v(A8,2)}, {v(ZP+2,2)}, 0
    s_nop 6
    v_cvt_pk_f16_f32 {v(ZP)}, {v(D0)}, {v(D0+1)}
    v_cvt_pk_f16_f32 {v(ZP+1)}, {v(D1)}, {v(D1+1)}
    v_cvt_pk_f16_f32 {v(ZP+2)}, {v(D0+2)}, {v(D0+3)}
    v_cvt_pk_f16_f32 {v(ZP+3)}, {v(D1+2)}, {v(D1+3)}
    ds_write_b64 {v(vUW)}, {v(ZP,2)}
    ds_write_b64 {v(vUW)}, {v(ZP+2,2)} offset:1024
    ;@F
    s_waitcnt lgkmcnt(0)
    s_barrier
    ;@F
    ds_read_b64_tr_b16 {v(t,2)}, {v(vUR)}
    ds_read_b64_tr_b16 {v(t+2,2)}, {v(vUR)} offset:512
    ds_read_b64_tr_b16 {v(t+4,2)}, {v(vUR)} offset:1024
    ds_read_b64_tr_b16 {v(t+6,2)}, {v(vUR)} offset:1536
    s_cmp_eq_u32 {s(sIt)}, 0
    s_cbranch_scc1 L_tg2 ;!nd
    buffer_load_dwordx2 {v(t+24,2)}, {v(vL8)}, {WS}, {s(sTabLd)} offen sc1
    v_lshlrev_b32 {v(vTG)}, 1, {v(vL8)}
    buffer_load_dword {v(vTG)}, {v(vTG)}, {WS}, {s(sTabG)} offen sc1
    L_tg2:
    s_waitcnt lgkmcnt(0)
    ;@F
    ''')
    P=t
    fft_core(t, t+4, t+8, t+16, t+8, P)
    for r in range(4): a(f'v_bfi_b32 {v(P+r)}, 1, {s(sPh)}, {v(P+r)}')
    def lstores(fl):
        for r in range(4): a(f'buffer_store_dword {v(P+r)}, {v(vLst)}, {WS}, {s(sLst)} offen offset:{128*r} {fl}')
    TB=t+24
    W_=t+4
    a(f'''
    s_cmp_lg_u32 {s(sIt)}, 0
    s_cbranch_scc1 L_tabw1
    ''')
    lstores('')
    stamp()
    a(f'''
    s_branch L_pub
    L_tab:
    buffer_load_dwordx2 {v(TB,2)}, {v(vL8)}, {WS}, {s(sTabLd)} offen sc1
    L_tabw:
    s_waitcnt vmcnt(0)
    L_tabw1:
    s_waitcnt vmcnt(1)
    v_cmp_ne_u32 vcc, {s(sTag)}, {v(TB)}
    ''')
    poll_branch('L_tab', 1, f'''s_cmp_lg_u32 {s(sIt)}, 0
        s_cselect_b32 {s(sT)}, 0, 1
        s_sub_u32 {s(sTry)}, {s(sTry)}, {s(sT)}
        s_cbranch_scc1 L_tab2''')
    a(f'''
    L_tabok:
    s_cmp_eq_u32 {s(sIt)}, 0
    s_cbranch_scc1 L_fastchk
    v_cmp_lt_u32 vcc, {s(sKey)}, {v(TB+1)}
    s_mov_b32 {s(sT+9)}, 64
    s_cbranch_vccnz L_winback
    L_pub:
    s_andn2_b32 {s(sT)}, {s(sM7FF)}, {s(sKey)}      ; idx
    s_lshr_b32 {s(sT+9)}, {s(sT)}, 8                ; s1
    s_bitcmp1_b32 {s(sT+9)}, 0
    s_cselect_b64 vcc, -1, 0
    s_lshl_b32 {s(sT+1)}, {s(sT+9)}, 3
    s_and_b32 {s(sT+1)}, {s(sT+1)}, 0x30
    v_cndmask_b32 {v(W_)}, {v(LNP)}, {v(LNP+2)}, vcc
    v_cndmask_b32 {v(W_+1)}, {v(LNP+1)}, {v(LNP+3)}, vcc
    v_and_b32 {v(W_+2)}, 0x3ff, {v(vXoff)}
    s_bfm_b64 exec, 16, {s(sT+1)}
    buffer_store_dwordx2 {v(W_,2)}, {v(W_+2)}, {WS}, {s(sSlot)} offen sc1
    s_cmp_lg_u32 {s(sW)}, 0
    s_cbranch_scc1 L_nohdr
    v_mov_b32 {v(W_+8)}, {s(sKey)}
    v_cndmask_b32 {v(W_+9)}, {v(MM)}, {v(MM+1)}, vcc
    v_cndmask_b32 {v(W_+10)}, {v(RS2)}, {v(RS2+1)}, vcc
    v_mov_b32 {v(W_+11)}, {s(sKey)}
    buffer_store_dwordx4 {v(W_+8,4)}, off, {WS}, {s(sSlot)} offset:3072 sc1
    L_nohdr:
    ''')
    for c_ in range(4): a(f'v_cndmask_b32 {v(W_+4+c_)}, {v(X+2*c_)}, {v(X+2*c_+1)}, vcc')
    a(f'''
    v_lshlrev_b32 {v(W_+2)}, 1, {v(W_+2)}
    buffer_store_dwordx4 {v(W_+4,4)}, {v(W_+2)}, {WS}, {s(sSlot)} offen offset:1024 sc1
    s_mov_b64 exec, -1
    s_cmp_eq_u32 {s(sIt)}, 0
    s_cbranch_scc1 L_flag0
    L_winback:
    s_cmp_eq_u32 {s(sIt)}, 2
    s_cbranch_scc1 L_fin
    s_add_u32 {s(sSlot)}, {s(sSlot)}, {SLOTR}
    ''')
    lstores('')
    stamp()
    a(f'''
    s_waitcnt vmcnt(0)
    s_branch L_tabdone
    L_flag0:
    v_mov_b32 {v(vTG)}, {s(sTag)}
    s_lshl_b32 {s(sT)}, s2, 4
    s_add_u32 {s(sT)}, {s(sT)}, {TABG}
    v_mov_b32 {v(t+22)}, {s(sTag)}
    v_mov_b32 {v(t+23)}, {s(sKey)}
    s_cmp_eq_u32 {s(sW)}, 0
    s_cselect_b32 {s(sT+1)}, {s(sTabSt)}, {WSSZ}
    s_cmp_eq_u32 {s(sW)}, 7
    s_cselect_b32 {s(sT)}, {s(sT)}, {WSSZ}
    s_mov_b64 exec, 1
    s_waitcnt vmcnt(0)
    s_barrier
    buffer_store_dwordx2 {v(t+22,2)}, off, {WS}, {s(sT+1)}
    s_mov_b64 exec, -1
    s_waitcnt vmcnt(0)
    buffer_load_dwordx2 {v(TB,2)}, {v(vL8)}, {WS}, {s(sTabLd)} offen sc1
    s_mov_b64 exec, 1
    buffer_store_dword {v(vTG)}, off, {WS}, {s(sT)} sc1
    s_mov_b64 exec, -1
    s_branch L_tabw1
    L_fastchk:
    v_cmp_ne_u32 vcc, {s(sKey)}, {v(TB+1)}
    s_nop 0
    s_cmp_eq_u64 vcc, 0
    s_cselect_b32 {s(sFast)}, 1, 0
    L_tabdone:
    s_cmp_eq_u32 {s(sFast)}, 0
    s_cbranch_scc1 L_slow
    L_slowback:
    ;@F
    s_cmp_lt_u32 {s(sJ)}, 8
    s_cbranch_scc0 L_y
    s_branch L_yself
    L_y:
    buffer_load_dwordx4 {v(t,4)}, {v(vLld)}, {WS}, {s(sLld)} offen sc1
    s_waitcnt vmcnt(0)
    ds_write_b128 {v(vYIW)}, {v(t,4)}
    ''')
    phchk(range(t,t+4), t+8)
    poll_branch('L_y', cfg.slp_l, mask=True)
    a('L_yjoin:')
    stamp()
    A0,A1=t,t+4; P0,Q0,P1,Q1=t+8,t+12,t+16,t+20
    a(f'''
    s_waitcnt lgkmcnt(0)
    s_barrier
    ;@F
    ds_read_b64_tr_b16 {v(A0,2)}, {v(vYIR)}
    ds_read_b64_tr_b16 {v(A0+2,2)}, {v(vYIR)} offset:{16*YIS}
    ds_read_b64_tr_b16 {v(A1,2)}, {v(vYIR)} offset:8
    ds_read_b64_tr_b16 {v(A1+2,2)}, {v(vYIR)} offset:{16*YIS+8}
    s_add_u32 {s(sTabLd)}, {s(sTabLd)}, {ARGR}
    s_add_u32 {s(sTabSt)}, {s(sTabSt)}, {ARGR}
    s_waitcnt lgkmcnt(2)
    v_mfma_f32_16x16x32_f16 {v(P0,4)}, {v(A0,4)}, {v(YC,4)}, 0
    v_mfma_f32_16x16x32_f16 {v(Q0,4)}, {v(A0,4)}, {v(YS,4)}, 0
    s_waitcnt lgkmcnt(0)
    v_mfma_f32_16x16x32_f16 {v(P1,4)}, {v(A1,4)}, {v(YC,4)}, 0
    v_mfma_f32_16x16x32_f16 {v(Q1,4)}, {v(A1,4)}, {v(YS,4)}, 0
    L_tabgw:
    v_cmp_ne_u32 vcc, {s(sTag)}, {v(vTG)}
    s_cbranch_vccnz L_tabg_r ;!nd
    ''')
    for P_,Q_ in ((P0,Q0),(P1,Q1)):
        for h in (0,2):
            a(f'v_pk_add_f32 {v(P_+h,2)}, {v(P_+h,2)}, {v(Q_+h,2)} op_sel:[0,1] op_sel_hi:[1,0] neg_hi:[0,1]')
    a(f'''
    v_cvt_pk_f16_f32 {v(t)}, {v(P0)}, {v(P0+1)}
    v_cvt_pk_f16_f32 {v(t+1)}, {v(P0+2)}, {v(P0+3)}
    v_cvt_pk_f16_f32 {v(t+2)}, {v(P1)}, {v(P1+1)}
    v_cvt_pk_f16_f32 {v(t+3)}, {v(P1+2)}, {v(P1+3)}
    ds_write_b128 {v(vYW)}, {v(t,4)}
    ;@F
    s_waitcnt lgkmcnt(0)
    s_barrier
    ;@F
    ds_read_b128 {v(t+4,4)}, {v(vYR)}
    s_waitcnt lgkmcnt(0)
    buffer_store_dwordx4 {v(t+4,4)}, {v(vGst)}, {WS}, {s(sG0)} offen sc1
    ''')
    stamp()
    a(f'''
    s_cmp_lg_u32 {s(sIt)}, 0
    s_cbranch_scc1 L_hdr
    v_lshlrev_b32 {v(t+24)}, 4, {v(vLane)}
    s_mov_b32 {s(sT+10)}, {TABG}
    ''')
    for k in range(4): a(f'buffer_load_dword {v(t+20+k)}, {v(t+24)}, {WS}, {s(sT+10)} offen offset:{1024*k} sc1')
    xin_consts(t+8)
    a('L_tg0w:\ns_waitcnt vmcnt(0)')
    tag4chk(t+20)
    a(f'''
    s_cbranch_vccz L_g ;!nd
    s_branch L_tg0_r
    L_g:
    ''')
    C0,C1=t,t+4
    a(f'''
    buffer_load_dwordx4 {v(C0,4)}, {v(vGld)}, {WS}, {s(sG0)} offen sc1
    buffer_load_dwordx4 {v(C1,4)}, {v(vGld)}, {WS}, {s(sG4)} offen sc1
    s_cmp_lg_u32 {s(sMir)}, 0
    s_waitcnt vmcnt(0)
    s_cbranch_scc1 L_xmir ;!nd
    ''')
    E0,E1=t+8,t+12
    a(f'''
    v_mfma_f32_16x16x16_f16 {v(E0,4)}, {v(XA,2)}, {v(C0,2)}, 0
    v_mfma_f32_16x16x16_f16 {v(E1,4)}, {v(XA,2)}, {v(C0+2,2)}, 0
    v_mfma_f32_16x16x16_f16 {v(E0,4)}, {v(XA+2,2)}, {v(C1,2)}, {v(E0,4)}
    v_mfma_f32_16x16x16_f16 {v(E1,4)}, {v(XA+2,2)}, {v(C1+2,2)}, {v(E1,4)}
    s_branch L_xjoin ;!nd
    L_xmir:
    ''')
    a.hist=[]
    a(f'''
    v_mfma_f32_16x16x16_f16 {v(E0,4)}, {v(XA,2)}, {v(C0+2,2)}, 0
    v_mfma_f32_16x16x16_f16 {v(E1,4)}, {v(XA,2)}, {v(C0,2)}, 0
    v_mfma_f32_16x16x16_f16 {v(E0,4)}, {v(XA+2,2)}, {v(C1+2,2)}, {v(E0,4)}
    v_mfma_f32_16x16x16_f16 {v(E1,4)}, {v(XA+2,2)}, {v(C1,2)}, {v(E1,4)}
    L_xjoin:
    ''')
    maxchk(range(t,t+8), t+16)
    poll_branch('L_g', cfg.slp_g, mask=True)
    stamp()
    a(f'''
    s_cmp_lg_u32 {s(sIt)}, 0
    s_mov_b32 {s(sIt)}, 1
    s_cbranch_scc1 L_corr ;!nd
    s_add_u32 {s(sG0)}, {s(sG0)}, {GR}
    s_add_u32 {s(sG4)}, {s(sG4)}, {GR}
    L_corrback:
    v_pk_fma_f32 {v(X,2)}, {v(E0,2)}, {v(vSc0,2)}, {v(X,2)}
    v_pk_fma_f32 {v(X+2,2)}, {v(E0+2,2)}, {s(sSc,2)}, {v(X+2,2)}
    v_pk_fma_f32 {v(X+4,2)}, {v(E1,2)}, {s(sSc,2)}, {v(X+4,2)}
    v_pk_fma_f32 {v(X+6,2)}, {v(E1+2,2)}, {s(sSc,2)}, {v(X+6,2)}
    s_branch L_top ;!nd
    ''')
    a(f'''
    L_yself:
    buffer_load_dwordx4 {v(t,4)}, {v(vLld)}, {WS}, {s(sLld)} offen sc1
    buffer_load_dwordx4 {v(t+4,4)}, {v(vLldM)}, {WS}, {s(sLld)} offen sc1
    s_waitcnt vmcnt(0)
    ''')
    phchk(range(t,t+8), t+8)
    poll_branch('L_yself', cfg.slp_l, mask=True)
    a(f'''
    s_bitcmp1_b32 {s(sW)}, 0
    s_cbranch_scc1 L_yself4
    ''')
    for k in range(4): a(f'v_pk_add_f16 {v(t+k)}, {v(t+k)}, {v(t+7-k)} neg_hi:[0,1]')
    a(f'ds_write_b128 {v(vYIW)}, {v(t,4)}\ns_branch L_yjoin\nL_yself4:')
    for k in range(4): a(f'v_pk_add_f16 {v(t+k)}, {v(t+k)}, {v(t+7-k)} op_sel:[1,1] op_sel_hi:[0,0] neg_hi:[1,0]')
    a(f'ds_write_b128 {v(vYIW)}, {v(t,4)}\ns_branch L_yjoin')
    a(f'''
    L_s3w:
    v_pk_add_f32 {v(S3,2)}, {v(WV,2)}, {v(WV+2,2)}
    v_add_f32 {v(S3)}, {v(S3)}, {v(S3+1)}
    v_mov_b32 {v(S3+1)}, {v(S3)}
    s_branch L_s3ok
    L_it0:
    s_mov_b32 {s(sKey)}, {s(sXcc)}
    v_pk_mul_f32 {v(CC,2)}, {v(RS,2)}, {s(sC16,2)}
    v_mov_b32 {v(S1)}, 0x44000000
    v_pk_add_f32 {v(WV,2)}, {v(WV,2)}, {v(S3,2)} neg_lo:[0,1] neg_hi:[0,1]
    v_pk_add_f32 {v(WV+2,2)}, {v(WV+2,2)}, {v(S3,2)} neg_lo:[0,1] neg_hi:[0,1]
    v_pk_mul_f32 {v(WV,2)}, {v(WV,2)}, {v(S1,2)} op_sel_hi:[1,0]
    v_pk_mul_f32 {v(WV+2,2)}, {v(WV+2,2)}, {v(S1,2)} op_sel_hi:[1,0]
    ''')
    a('s_branch L_z')
    H=t+8
    sIdx=sT+11
    a(f'''
    L_hdr:
    v_and_b32 {v(t+16)}, 7, {v(vLane)}
    v_lshlrev_b32 {v(t+16)}, 12, {v(t+16)}
    s_mov_b32 {s(sT+10)}, {SLOT}
    L_hdrp:
    buffer_load_dwordx4 {v(H,4)}, {v(t+16)}, {WS}, {s(sT+10)} offen offset:3072 sc1
    s_waitcnt vmcnt(0)
    ''')
    maxchk(range(H,H+4), t+17)
    poll_branch('L_hdrp', 2, skip=True)
    a(f'''
    v_max_u32_dpp {v(H+3)}, {v(H)}, {v(H)} row_half_mirror {DPP}
    v_max_u32_dpp {v(H+3)}, {v(H+3)}, {v(H+3)} quad_perm:[1,0,3,2] {DPP}
    v_max_u32_dpp {v(H+3)}, {v(H+3)}, {v(H+3)} quad_perm:[2,3,0,1] {DPP}
    v_readfirstlane_b32 {s(sIdx)}, {v(H+3)}
    v_lshlrev_b32 {v(t+16)}, 5, {v(vLane)}
    s_andn2_b32 {s(sIdx)}, {s(sM7FF)}, {s(sIdx)}
    s_and_b32 {s(sT)}, {s(sIdx)}, 7
    s_lshl_b32 {s(sT+1)}, {s(sT)}, 12
    s_add_u32 {s(sT+10)}, {s(sT+10)}, {s(sT+1)}
    v_readlane_b32 {s(sT+13)}, {v(H+1)}, {s(sT)}
    v_readlane_b32 {s(sT+14)}, {v(H+2)}, {s(sT)}
    v_mul_u32_u24 {v(t+17)}, {s(sIdx)}, {v(AD)}
    v_and_b32 {v(t+17)}, 0x7ff, {v(t+17)}
    v_cvt_f32_u32 {v(t+17)}, {v(t+17)}
    v_mul_f32 {v(t+17)}, {fbits(1/2048)}, {v(t+17)}
    v_cos_f32 {v(t+18)}, {v(t+17)}
    v_sin_f32 {v(t+19)}, {v(t+17)}
    v_and_b32 {v(t+17)}, 0x32, {v(vLane)}
    v_cvt_pk_f16_f32 {v(t+18)}, {v(t+18)}, {v(t+19)}
    v_cmp_eq_u32 vcc, 0, {v(t+17)}
    s_sub_u32 {s(sT)}, 2047, {s(sIdx)}
    s_add_u32 {s(sT+1)}, {s(sT)}, 256
    v_cndmask_b32 {v(AD)}, 0, {v(t+18)}, vcc
    v_cmp_eq_u32 vcc, 2, {v(t+17)}
    v_mov_b32 {v(BC+10)}, {s(sT+14)}
    v_mul_f32 {v(BC+10)}, {s(sDsc)}, {v(BC+10)}         ; rs2*dsc
    v_cndmask_b32 {v(AD+1)}, 0, {v(t+18)}, vcc
    v_cmp_eq_u32 vcc, {s(sT)}, {v(vInv)}
    v_cndmask_b32 {v(BC)}, 0, 1.0, vcc
    v_cmp_eq_u32 vcc, {s(sT+1)}, {v(vInv)}
    v_cndmask_b32 {v(BC+1)}, 0, 1.0, vcc
    s_branch L_g
    ''')
    Y=t+16; YX=t; u=t+4
    vDW,vDR=BC+12,BC+13
    a(f'''
    L_corr:
    s_mov_b32 {s(sIt)}, 2
    v_and_b32 {v(u)}, 3, {v(vLane)}
    v_lshlrev_b32 {v(u)}, 2, {v(u)}
    v_lshrrev_b32 {v(u+2)}, 2, {v(vN)}
    v_lshlrev_b32 {v(u+2)}, 7, {v(u+2)}
    v_lshl_add_u32 {v(u+2)}, {v(u)}, 2, {v(u+2)}          ; (n>>2)*128+(n&3)*16
    s_lshl_b32 {s(sT+1)}, {s(sW)}, 9
    s_add_u32 {s(sT+1)}, {s(sT+1)}, {YBUF}
    s_lshl_b32 {s(sT+3)}, {s(sW)}, 8
    s_add_u32 {s(sT+3)}, {s(sT+3)}, {L_DH}
    v_lshl_add_u32 {v(vDR)}, {v(vN)}, 4, {s(sT+3)}
    s_cmp_gt_u32 {s(sW)}, 1
    s_cbranch_scc1 L_yv2b
    v_lshlrev_b32 {v(u+1)}, 5, {v(vLane)}
    L_basep:
    buffer_load_dwordx4 {v(BC+2,4)}, {v(u+1)}, {WS}, {s(sT+10)} offen offset:1024 sc1
    buffer_load_dwordx4 {v(BC+6,4)}, {v(u+1)}, {WS}, {s(sT+10)} offen offset:1040 sc1
    s_waitcnt vmcnt(0)
    ''')
    maxchk(range(BC+2,BC+10), u+3)
    poll_branch('L_basep', 2, skip=True)
    for k in range(8): a(f'v_subrev_f32 {v(BC+2+k)}, {s(sT+13)}, {v(BC+2+k)}')
    a(f'''
    s_lshl_b32 {s(sT)}, {s(sX)}, 7
    s_add_u32 {s(sT)}, {s(sT)}, {YHINT}
    v_and_b32 {v(u+1)}, 1, {v(vLane)}
    v_lshlrev_b32 {v(u+1)}, 5, {v(u+1)}
    v_lshrrev_b32 {v(u+3)}, 1, {v(vLane)}
    v_lshl_add_u32 {v(u+1)}, {v(u+3)}, 7, {v(u+1)}        ; (l>>1)*128+(l&1)*32
    s_mov_b32 {s(sT+2)}, {YBUF}
    s_lshl_b32 {s(sT+3)}, {s(sW)}, 10
    s_add_u32 {s(sT+3)}, {s(sT+3)}, {L_U}
    v_lshl_add_u32 {v(t+24)}, {v(vLane)}, 4, {s(sT+3)}
    v_lshl_add_u32 {v(t+25)}, {v(vLane)}, 3, {s(sT+3)}
    s_lshl_b32 {s(sT+3)}, {s(sW)}, 6
    s_add_u32 {s(sT+3)}, {s(sT+3)}, {L_DH}
    v_lshl_add_u32 {v(vDW)}, {v(vQ)}, 9, {s(sT+3)}
    v_lshl_add_u32 {v(vDW)}, {v(vN)}, 2, {v(vDW)}
    s_cmp_lg_u32 {s(sW)}, 0
    s_cbranch_scc1 L_hintb
    s_movk_i32 {s(sTry)}, 500
    L_hint:
    buffer_load_dword {v(u+3)}, {v(u)}, {WS}, {s(sT)} offen sc1
    s_waitcnt vmcnt(0)
    v_cmp_ne_u32 vcc, {s(sTag)}, {v(u+3)}
    ''')
    poll_branch('L_hint', 1, giveup='L_hintb')
    if cfg.tim_y: a(f's_sleep {cfg.tim_y}')
    a(f'''
    L_hintb:
    s_barrier
    L_yv:
    buffer_load_dwordx4 {v(Y,4)}, {v(u+1)}, {WS}, {s(sT+2)} offen sc1
    buffer_load_dwordx4 {v(Y+4,4)}, {v(u+1)}, {WS}, {s(sT+2)} offen offset:16 sc1
    buffer_load_dwordx4 {v(YX,4)}, {v(u+2)}, {WS}, {s(sT+1)} offen sc1
    s_waitcnt vmcnt(0)
    ''')
    maxchk(list(range(Y,Y+8))+list(range(YX,YX+4)), u+3)
    poll_branch('L_yv', 1, mask=True)
    stamp()
    for k in range(4): a(f'v_pk_add_f32 {v(Y+2*k,2)}, {v(Y+2*k,2)}, {v(BC+2+2*k,2)}')
    s1,s2=u,u+2
    own=[f'v_pk_fma_f32 {v(X,2)}, {v(BC,2)}, {v(YX,2)}, {v(X,2)} op_sel:[0,0,0] op_sel_hi:[1,0,1]',
         f'v_pk_fma_f32 {v(X+2,2)}, {v(BC,2)}, {v(YX,2)}, {v(X+2,2)} op_sel:[0,1,0] op_sel_hi:[1,1,1]',
         f'v_pk_fma_f32 {v(X+4,2)}, {v(BC,2)}, {v(YX+2,2)}, {v(X+4,2)} op_sel:[0,0,0] op_sel_hi:[1,0,1]',
         f'v_pk_fma_f32 {v(X+6,2)}, {v(BC,2)}, {v(YX+2,2)}, {v(X+6,2)} op_sel:[0,1,0] op_sel_hi:[1,1,1]']
    a(f'''
    v_pk_add_f32 {v(s1,2)}, {v(Y,2)}, {v(Y+2,2)}
    v_pk_mul_f32 {v(s2,2)}, {v(Y,2)}, {v(Y,2)}
    v_pk_add_f32 {v(s1,2)}, {v(s1,2)}, {v(Y+4,2)}
    v_pk_fma_f32 {v(s2,2)}, {v(Y+2,2)}, {v(Y+2,2)}, {v(s2,2)}
    v_pk_add_f32 {v(s1,2)}, {v(s1,2)}, {v(Y+6,2)}
    v_pk_fma_f32 {v(s2,2)}, {v(Y+4,2)}, {v(Y+4,2)}, {v(s2,2)}
    v_add_f32 {v(s1)}, {v(s1)}, {v(s1+1)}
    v_pk_fma_f32 {v(s2,2)}, {v(Y+6,2)}, {v(Y+6,2)}, {v(s2,2)}
    v_add_f32 {v(s2)}, {v(s2)}, {v(s2+1)}
    {own[0]}
    {own[1]}
    v_permlane32_swap_b32 {v(s1)}, {v(s2)}
    v_add_f32 {v(s1)}, {v(s1)}, {v(s2)}
    {own[2]}
    {own[3]}
    v_add_f32_dpp {v(s1)}, {v(s1)}, {v(s1)} row_ror:8 {DPP}
    v_pk_mul_f32 {v(BC+2,2)}, {v(BC+2,2)}, {v(BC+10,2)} op_sel_hi:[1,0]
    v_pk_mul_f32 {v(BC+4,2)}, {v(BC+4,2)}, {v(BC+10,2)} op_sel_hi:[1,0]
    v_add_f32_dpp {v(s1)}, {v(s1)}, {v(s1)} row_ror:4 {DPP}
    v_pk_mul_f32 {v(BC+6,2)}, {v(BC+6,2)}, {v(BC+10,2)} op_sel_hi:[1,0]
    v_pk_mul_f32 {v(BC+8,2)}, {v(BC+8,2)}, {v(BC+10,2)} op_sel_hi:[1,0]
    v_add_f32_dpp {v(s1)}, {v(s1)}, {v(s1)} row_ror:2 {DPP}
    v_add_f32_dpp {v(s1)}, {v(s1)}, {v(s1)} row_ror:1 {DPP}
    v_add_f32_dpp {v(s1)}, {v(s1)}, {v(s1)} row_bcast:15 row_mask:0xa bank_mask:0xf
    v_mul_f32 {v(s1)}, {s(sK512)}, {v(s1)}
    v_readlane_b32 {s(sT+1)}, {v(s1)}, 31
    v_readlane_b32 {s(sT+2)}, {v(s1)}, 63
    v_mov_b32 {v(s2)}, {s(sT+1)}
    v_fma_f32 {v(s1)}, -{v(s2)}, {v(s2)}, {s(sT+2)}
    v_add_f32 {v(s1)}, {s(sEps)}, {v(s1)}
    v_rsq_f32_e64 {v(s1)}, |{v(s1)}|
    v_mul_f32 {v(s1)}, {s(sDsc)}, {v(s1)}
    ''')
    for k in range(4):
        a(f'v_pk_fma_f32 {v(Y+2*k,2)}, {v(Y+2*k,2)}, {v(s1,2)}, {v(BC+2+2*k,2)} op_sel_hi:[1,0,1] neg_lo:[0,0,1] neg_hi:[0,0,1]')
    for k in range(4): a(f'v_cvt_pk_f16_f32 {v(t+k)}, {v(Y+2*k)}, {v(Y+2*k+1)}')
    a(f'''
    ds_write_b128 {v(t+24)}, {v(t,4)}
    ds_read_b64_tr_b16 {v(t+4,2)}, {v(t+25)}
    ds_read_b64_tr_b16 {v(t+6,2)}, {v(t+25)} offset:512
    s_waitcnt lgkmcnt(0)
    ;@F
    ''')
    fft_core(t+4, None, t+16, BC+2, t+16, t)
    a(f'''
    ds_write2_b32 {v(vDW)}, {v(t)}, {v(t+1)} offset0:0 offset1:32
    ds_write2_b32 {v(vDW)}, {v(t+2)}, {v(t+3)} offset0:64 offset1:96
    L_dhb:
    ;@F
    s_waitcnt lgkmcnt(0)
    s_barrier
    ;@F
    ds_read_b128 {v(t,4)}, {v(vDR)}
    s_waitcnt lgkmcnt(0)
    v_mfma_f32_16x16x16_f16 {v(E0,4)}, {v(AD,2)}, {v(t,2)}, {v(E0,4)}
    v_mfma_f32_16x16x16_f16 {v(E1,4)}, {v(AD,2)}, {v(t+2,2)}, {v(E1,4)}
    s_nop 5
    s_branch L_corrback ;!nd
    L_yv2b:
    s_barrier
    L_yv2:
    buffer_load_dwordx4 {v(YX,4)}, {v(u+2)}, {WS}, {s(sT+1)} offen sc1
    s_waitcnt vmcnt(0)
    ''')
    maxchk(range(YX,YX+4), u+3)
    poll_branch('L_yv2', 1, mask=True)
    stamp(); fstamp()
    a('\n'.join(own)+'\ns_branch L_dhb')
    a('L_fin:')
    if cfg.odel: a(f's_sleep {cfg.odel}')
    for rho in (0,1):
        for k in (0,1):
            a(f'v_cvt_pk_bf16_f32 {v(t+2*rho+k)}, {v(X+4*k+rho)}, {v(X+4*k+2+rho)}')
    a(f'''
    v_lshlrev_b32 {v(t+16)}, 1, {v(vQ)}
    v_mov_b32 {v(t+19)}, 0x200000
    s_sub_u32 {s(sT)}, {s(sT+9)}, 1
    v_cmp_eq_u32 vcc, {s(sT+9)}, {v(t+16)}
    v_cndmask_b32 {v(t+17)}, {v(vXoff)}, {v(t+19)}, vcc
    v_cmp_eq_u32 vcc, {s(sT)}, {v(t+16)}
    v_cndmask_b32 {v(t+18)}, {v(vXoff)}, {v(t+19)}, vcc
    buffer_store_dwordx2 {v(t,2)}, {v(t+17)}, {OS}, {s(sRow0)} offen {'sc1' if cfg.osc else ''}
    buffer_store_dwordx2 {v(t+2,2)}, {v(t+18)}, {OS}, {s(sRow1)} offen {'sc1' if cfg.osc else ''}
    s_or_b32 {s(sT)}, s2, {s(sW)}
    s_cbranch_scc1 L_fin2
    v_mov_b32 {v(t+20)}, {s(sTag)}
    buffer_store_dword {v(t+20)}, off, {WS}, 0 sc1
    L_fin2:
    ''')
    stamp(); dump_stamps()
    a('s_endpgm')
    def pub2():
        a(f'''
        v_mov_b32 {v(t+4)}, {s(sTag)}
        v_mov_b32 {v(t+5)}, {s(sXcc)}
        s_add_u32 {s(sT)}, {s(sTabSt)}, {TAB2-TABL}
        buffer_store_dwordx2 {v(t+4,2)}, off, {WS}, {s(sT)} sc1
        ''')
    a(f'''
    L_tabst_slow:
    buffer_store_dwordx2 {v(K,2)}, off, {WS}, {s(sTabSt)} sc1
    s_branch L_tabst_back
    L_tabg_r:
    s_sub_u32 {s(sCnt)}, {s(sCnt)}, 1
    s_cbranch_scc1 L_end
    s_sleep 2
    v_lshlrev_b32 {v(vTG)}, 1, {v(vL8)}
    buffer_load_dword {v(vTG)}, {v(vTG)}, {WS}, {s(sTabG)} offen sc1
    s_waitcnt vmcnt(0)
    s_branch L_tabgw
    L_tg0_r:
    s_sub_u32 {s(sCnt)}, {s(sCnt)}, 1
    s_cbranch_scc1 L_end
    s_sleep 4
    ''')
    for k in range(4): a(f'buffer_load_dword {v(t+20+k)}, {v(t+24)}, {WS}, {s(sT+10)} offen offset:{1024*k} sc1')
    a('s_branch L_tg0w\nL_tab2:')
    pub2()
    a(f'''
    s_add_u32 {s(sT+1)}, {s(sTabLd)}, {TAB2-TABL}
    L_tab2p:
    buffer_load_dwordx2 {v(TB,2)}, {v(vL8)}, {WS}, {s(sTabLd)} offen sc1
    buffer_load_dwordx2 {v(t+6,2)}, {v(vL8)}, {WS}, {s(sT+1)} offen sc1
    s_waitcnt vmcnt(0)
    v_cmp_eq_u32 vcc, {s(sTag)}, {v(TB)}
    v_cndmask_b32 {v(TB)}, {v(t+6)}, {v(TB)}, vcc
    v_cndmask_b32 {v(TB+1)}, {v(t+7)}, {v(TB+1)}, vcc
    v_cmp_ne_u32 vcc, {s(sTag)}, {v(TB)}
    ''')
    poll_branch('L_tab2p', 4)
    a(f'''
    s_branch L_tabok
    L_slow:
    s_cmp_lg_u32 {s(sIt)}, 0
    s_cbranch_scc1 L_slow1
    ''')
    pub2()
    a('L_slow1:')
    lstores('sc1')
    a(f'''
    s_waitcnt vmcnt(0)
    s_barrier
    s_add_u32 {s(sT)}, {s(sTabSt)}, {SLOWF-TABL}
    s_add_u32 {s(sT+1)}, {s(sTabLd)}, {SLOWF-TABL}
    v_mov_b32 {v(t+4)}, {s(sTag)}
    s_cmp_lg_u32 {s(sW)}, 0
    s_cbranch_scc1 L_slowp
    buffer_store_dword {v(t+4)}, off, {WS}, {s(sT)} sc1
    L_slowp:
    buffer_load_dword {v(t+5)}, {v(vL8)}, {WS}, {s(sT+1)} offen sc1
    s_waitcnt vmcnt(0)
    v_cmp_ne_u32 vcc, {s(sTag)}, {v(t+5)}
    ''')
    poll_branch('L_slowp', 2)
    a('s_branch L_slowback')

def hint_store(vreg, soff, lbl):
    a(f'''
    s_mov_b64 exec, 1
    s_cmp_eq_u32 {s(sFast)}, 0
    s_cbranch_scc1 {lbl}_s
    buffer_store_dword {v(vreg)}, off, {WS}, {s(soff)}
    s_branch {lbl}_d
    {lbl}_s:
    buffer_store_dword {v(vreg)}, off, {WS}, {s(soff)} sc1
    {lbl}_d:
    s_mov_b64 exec, -1
    ''')

def ffn():
    WB=4; t=40; h=74; PF=112
    vSl=32; vPW=33; vH=34; vHd=35; vTag=36; vPR=37; vTr=38; vWr=39
    sI=sJ; sFb=sLld; sRnd=sIt; sHo=sLst; sHH=sPh; sCb=sTabG; sYo=sG4
    def pf(m):
        r=[]
        if m&1: r.append(f'global_load_dwordx4 {v(PF,4)}, {v(PF+13)}, s[18:19]')
        if m&2: r.append(f'global_load_dwordx4 {v(PF+4,4)}, {v(PF+13)}, s[20:21]')
        if m&4: r.append(f'global_load_dwordx4 {v(PF+8,4)}, {v(PF+14)}, s[22:23]')
        return '\n'.join(r)
    g2clr=f'buffer_store_dwordx4 {v(SENT,4)}, {v(vPR)}, {WS}, {s(sG0)} offen sc1'
    a(f'''
    L_ffn:
    s_and_b32 {s(sI)}, {s(sJ)}, 31
    v_lshlrev_b32 {v(vPR)}, 4, v0
    v_lshrrev_b32 {v(t+1)}, 5, v0
    v_mul_u32_u24 {v(t+1)}, 3584, {v(t+1)}
    v_and_b32 {v(t+2)}, 0x1f0, {v(vPR)}
    s_mul_i32 {s(sT+4)}, {s(sI)}, {16*3584}
    s_mul_i32 {s(sT+5)}, {s(sX)}, 7
    s_lshr_b32 {s(sT+5)}, {s(sT+5)}, 1
    s_lshl_b32 {s(sT+5)}, {s(sT+5)}, 7
    s_add_u32 {s(sT+4)}, {s(sT+4)}, {s(sT+5)}
    v_add3_u32 {v(t+1)}, {v(t+1)}, {v(t+2)}, {s(sT+4)}
    v_lshrrev_b32 {v(t+2)}, 3, v0
    v_min_u32 {v(t+2)}, 55, {v(t+2)}
    v_lshlrev_b32 {v(t+2)}, 10, {v(t+2)}
    v_and_b32 {v(t+3)}, 0x70, {v(vPR)}
    s_mul_i32 {s(sT+4)}, {s(sI)}, {56*1024}
    s_lshl_b32 {s(sT+5)}, {s(sX)}, 7
    s_add_u32 {s(sT+4)}, {s(sT+4)}, {s(sT+5)}
    v_add3_u32 {v(t+2)}, {v(t+2)}, {v(t+3)}, {s(sT+4)}
    s_waitcnt lgkmcnt(0)
    {'s_sleep 127' if cfg.exp&8 else ''}
    {'s_sleep 127' if cfg.exp&8 else ''}
    {f's_sleep {cfg.fdelay}' if cfg.fdelay else ''}
    v_mov_b32 {v(PF+13)}, {v(t+1)}
    v_mov_b32 {v(PF+14)}, {v(t+2)}
    {pf(cfg.pfm)}
    buffer_load_dword {v(PF+12)}, off, {WS}, 0 sc1
    s_mul_i32 {s(sG0)}, {s(sX)}, {GS}
    s_lshl_b32 {s(sT+1)}, {s(sI)}, 13
    s_add_u32 {s(sG0)}, {s(sG0)}, {s(sT+1)}
    s_add_u32 {s(sG0)}, {s(sG0)}, {GBASE+GR}
    s_mul_i32 {s(sFb)}, {s(sX)}, 28
    s_add_u32 {s(sFb)}, {s(sFb)}, {s(sI)}
    s_lshl_b32 {s(sFb)}, {s(sFb)}, 4           ; fb*16
    s_lshl_b32 {s(sCb)}, {s(sX)}, 2
    s_add_u32 {s(sCb)}, {s(sCb)}, {s(sI)}
    s_sub_u32 {s(sCb)}, {s(sCb)}, 28
    v_mov_b32 {v(h+8)}, 0x200000
    v_mov_b32 {v(vTag)}, 0
    v_and_b32 {v(h+3)}, 0x38, {v(vL8)}
    s_lshl_b32 {s(sT)}, {s(sW)}, 11
    v_lshl_add_u32 {v(vTr)}, {v(vQ)}, 8, {s(sT)}
    v_lshl_add_u32 {v(vTr)}, {v(vN)}, 3, {v(vTr)}
    v_and_b32 {v(vHd)}, 7, {v(vLane)}
    v_lshlrev_b32 {v(vHd)}, 12, {v(vHd)}
    s_mov_b32 {s(sFast)}, 0
    s_mov_b32 {s(sRnd)}, 2
    s_mov_b32 {s(sHo)}, {WSSZ}
    s_mov_b32 {s(sHH)}, {WSSZ}
    s_mov_b32 {s(sYo)}, {WSSZ}
    s_cmp_ge_u32 {s(sI)}, 28
    s_cbranch_scc1 L_fpb
    v_lshl_add_u32 {v(vWr)}, {v(vLane)}, 5, {s(sT)}
    s_lshl_b32 {s(sT)}, {s(sW)}, 7
    v_lshl_add_u32 {v(vSl)}, {v(vQ)}, 4, {v(vHd)}
    v_add_u32 {v(vSl)}, {s(sT)}, {v(vSl)}
    s_lshl_b32 {s(sT)}, {s(sW)}, 10
    v_lshl_add_u32 {v(vPW)}, {v(vLane)}, 4, {s(sT)}
    v_mul_u32_u24 {v(vH)}, 3584, v0
    v_add_u32 {v(vH)}, {s(sFb)}, {v(vH)}
    {f'global_load_dwordx4 {v(WB,4)}, {v(vH)}, s[18:19]' if cfg.early==2 else ''}
    {f'global_load_dwordx4 {v(WB+4,4)}, {v(vH)}, s[20:21]' if cfg.early==2 else ''}
    s_branch {'L_fa_go' if cfg.dry else 'L_finit'}
    L_fpb:
    v_lshl_add_u32 {v(vWr)}, {v(vLane)}, 4, {s(sT)}
    s_mul_i32 {s(sT)}, {s(sW)}, 448
    v_lshl_add_u32 {v(vH)}, {v(vQ)}, 4, {s(sT)}
    s_lshl_b32 {s(sT)}, {s(sW)}, 2
    v_lshl_add_u32 {v(vPW)}, {v(vLane)}, 5, {s(sT)}
    s_mul_i32 {s(sT)}, {s(sW)}, {224*1024}
    s_lshl_b32 {s(sT+1)}, {s(sCb)}, 5
    s_add_u32 {s(sT)}, {s(sT)}, {s(sT+1)}
    v_lshrrev_b32 {v(vSl)}, 1, {v(vLane)}
    v_lshlrev_b32 {v(vSl)}, 10, {v(vSl)}
    v_and_b32 {v(t+3)}, 16, {v(vPR)}
    v_add3_u32 {v(vSl)}, {v(vSl)}, {v(t+3)}, {s(sT)}
    {'s_branch L_fb_go' if cfg.dry else ''}
    L_finit:
    s_mov_b32 {s(sRnd)}, 0
    s_mov_b32 {s(sSlot)}, {SLOT}
    s_mov_b32 {s(sHo)}, {HBUF}
    s_lshl_b32 {s(sHH)}, {s(sX)}, 7
    s_add_u32 {s(sHH)}, {s(sHH)}, {HHINT}
    s_mov_b32 {s(sYo)}, 0
    s_waitcnt vmcnt(0)
    v_add_u32 {v(vTag)}, 1, {v(PF+12)}
    {g2clr if cfg.clr2==0 else ''}
    v_readfirstlane_b32 {s(sTag)}, {v(vTag)}
    ''')
    if cfg.stamps: a(f's_mov_b32 {s(sStampI)}, 0')
    stamp()
    a(f'''
    s_cmp_lg_u32 {s(sW)}, 0
    s_cbranch_scc1 L_fgo
    s_mov_b32 {s(sTry)}, 60
    L_fl:
    buffer_load_dwordx2 {v(t,2)}, {v(vL8)}, {WS}, {s(sTabLd)} offen sc1
    s_waitcnt vmcnt(0)
    v_cmp_ne_u32 vcc, {s(sTag)}, {v(t)}
    ''')
    poll_branch('L_fl', 3, giveup='L_fgo', skip=True)
    a(f'''
    v_cmp_ne_u32 vcc, {s(sXcc)}, {v(t+1)}
    s_cbranch_vccnz L_fgo
    s_mov_b32 {s(sFast)}, 1
    {f's_sleep {cfg.gdelay}' if cfg.gdelay else ''}
    L_fgo:
    s_barrier
    {pf((7 if cfg.early<2 else 4)&~cfg.pfm)}
    {g2clr if cfg.clr2==1 else ''}
    ''')
    if cfg.early: a(f'''
    s_cmp_ge_u32 {s(sI)}, 28
    s_cbranch_scc1 L_fw_done
    {f'global_load_dwordx4 {v(WB,4)}, {v(vH)}, s[18:19]' if cfg.early==1 else ''}
    {f'global_load_dwordx4 {v(WB+4,4)}, {v(vH)}, s[20:21]' if cfg.early==1 else ''}
    {'s_waitcnt vmcnt(0)' if cfg.early==1 else ''}
    ds_write_b128 {v(vWr)}, {v(WB,4)} offset:8192
    ds_write_b128 {v(vWr)}, {v(WB+4,4)} offset:8208
    s_waitcnt lgkmcnt(0)
    ds_read_b64_tr_b16 {v(WB,2)}, {v(vTr)} offset:8192
    ds_read_b64_tr_b16 {v(WB+2,2)}, {v(vTr)} offset:8320
    ds_read_b64_tr_b16 {v(WB+4,2)}, {v(vTr)} offset:9216
    ds_read_b64_tr_b16 {v(WB+6,2)}, {v(vTr)} offset:9344
    ''')
    a(f'''
    ''')
    a(f'''
    L_fw_done:
    s_waitcnt vmcnt(0) lgkmcnt(0)
    s_barrier
    ''')
    stamp()
    a(f'''
    s_cmp_lg_u32 {s(sW)}, 1
    s_cbranch_scc1 L_fnt
    s_lshl_b32 {s(sT)}, s2, 4
    s_add_u32 {s(sT)}, {s(sT)}, {TABG+TABGR-4096}
    s_mov_b64 exec, 1
    buffer_store_dword {v(vTag)}, off, {WS}, {s(sT)} sc1
    s_mov_b64 exec, -1
    L_fnt:
    s_cmp_lg_u32 {s(sW)}, 0
    s_cbranch_scc1 L_fgb3
    s_cmp_eq_u32 {s(sFast)}, 0
    s_cbranch_scc1 L_fslowtab
    L_frnd:
    s_add_u32 {s(sTabLd)}, {s(sTabLd)}, {ARGR}
    s_cmp_lg_u32 {s(sW)}, 0
    s_cbranch_scc1 L_fbar
    s_cmp_eq_u32 {s(sFast)}, 0
    s_cbranch_scc1 L_ftd
    L_ftrig:
    buffer_load_dword {v(t)}, {v(vL8)}, {WS}, {s(sTabLd)} offen sc1
    s_waitcnt vmcnt(0)
    v_cmp_ne_u32 vcc, {s(sTag)}, {v(t)}
    ''')
    poll_branch('L_ftrig', 2)
    stamp()
    a(f'''
    L_ftd:
    s_cmp_eq_u32 {s(sRnd)}, 0
    s_cbranch_scc1 L_fgb2
    s_sleep {cfg.tim_arg}
    s_cmp_ge_u32 {s(sI)}, 28
    s_cbranch_scc1 L_fb0
    L_fbar:
    s_barrier
    s_cmp_ge_u32 {s(sI)}, 28
    s_cbranch_scc0 L_fslot
    s_branch L_fh
    L_fslot:
    buffer_load_dwordx4 {v(t,4)}, {v(vSl)}, {WS}, {s(sSlot)} offen sc1
    buffer_load_dwordx4 {v(t+4,4)}, {v(vSl)}, {WS}, {s(sSlot)} offen offset:64 sc1
    buffer_load_dword {v(t+8)}, {v(vHd)}, {WS}, {s(sSlot)} offen offset:3072 sc1
    L_fslotw:
    s_waitcnt vmcnt(0)
    ''')
    Dd=t+12
    a(f'''
    v_mfma_f32_16x16x32_bf16 {v(Dd,4)}, {v(t,4)}, {v(WB,4)}, 0
    v_mfma_f32_16x16x32_bf16 {v(Dd,4)}, {v(t+4,4)}, {v(WB+4,4)}, {v(Dd,4)}
    ''')
    maxchk(range(t,t+9), t+9)
    poll_branch('L_fslot', 2, mask=True)
    stamp()
    a(f'''
    L_fa_go:
    v_max_u32_dpp {v(t+9)}, {v(t+8)}, {v(t+8)} row_half_mirror {DPP}
    ds_write_b128 {v(vPW)}, {v(Dd,4)}
    s_add_u32 {s(sT+1)}, {s(sHo)}, {s(sFb)}
    v_max_u32_dpp {v(t+9)}, {v(t+9)}, {v(t+9)} quad_perm:[1,0,3,2] {DPP}
    s_lshl_b32 {s(sT+2)}, {s(sI)}, 2
    v_lshlrev_b32 {v(t+10)}, 4, {v(vN)}
    v_max_u32_dpp {v(t+9)}, {v(t+9)}, {v(t+9)} quad_perm:[2,3,0,1] {DPP}
    s_add_u32 {s(sT+2)}, {s(sT+2)}, {s(sHH)}
    v_not_b32 {v(t+9)}, {v(t+9)}
    v_and_b32 {v(t+11)}, 4, {v(t+9)}
    v_and_b32 {v(t+9)}, 3, {v(t+9)}
    v_lshl_add_u32 {v(t+10)}, {v(t+11)}, 6, {v(t+10)}
    v_lshl_add_u32 {v(t+10)}, {v(t+9)}, 2, {v(t+10)}
    v_lshlrev_b32 {v(t+11)}, 1, {v(vN)}
    s_cmp_lg_u32 {s(sW)}, 0
    s_waitcnt lgkmcnt(0)
    s_barrier
    s_cbranch_scc1 L_fnext
    ds_read2st64_b32 {v(t,2)}, {v(t+10)} offset0:0 offset1:4
    ds_read2st64_b32 {v(t+2,2)}, {v(t+10)} offset0:8 offset1:12
    ds_read2st64_b32 {v(t+4,2)}, {v(t+10)} offset0:16 offset1:20
    ds_read2st64_b32 {v(t+6,2)}, {v(t+10)} offset0:24 offset1:28
    s_waitcnt lgkmcnt(2)
    v_pk_add_f32 {v(t,2)}, {v(t,2)}, {v(t+2,2)}
    s_waitcnt lgkmcnt(0)
    v_pk_add_f32 {v(t+4,2)}, {v(t+4,2)}, {v(t+6,2)}
    v_pk_add_f32 {v(t,2)}, {v(t,2)}, {v(t+4,2)}
    v_add_f32 {v(t)}, {v(t)}, {v(t+1)}
    v_mul_f32 {v(t+1)}, 0xbfb8aa3b, {v(t)}
    v_exp_f32 {v(t+1)}, {v(t+1)}
    v_mul_f32_dpp {v(t+2)}, {v(t)}, {v(t)} row_ror:8 {DPP}
    v_add_f32 {v(t+1)}, 1.0, {v(t+1)}
    v_rcp_f32 {v(t+1)}, {v(t+1)}
    v_mul_f32 {v(t+1)}, {v(t+1)}, {v(t+2)}
    v_mov_b32_dpp {v(t+2)}, {v(t+1)} quad_perm:[1,1,3,3] {DPP}
    s_mov_b64 exec, 0x55
    v_cvt_pk_bf16_f32 {v(t+1)}, {v(t+1)}, {v(t+2)}
    buffer_store_dword {v(t+1)}, {v(t+11)}, {WS}, {s(sT+1)} offen sc1
    ''')
    hint_store(vTag, sT+2, 'L_fhh')
    a('L_fnext:')
    stamp()
    a(f'''
    s_cmp_eq_u32 {s(sRnd)}, 1
    s_cbranch_scc1 L_fend
    s_cmp_eq_u32 {s(sRnd)}, 2
    s_cbranch_scc1 L_finit
    ''')
    if cfg.wb: a(f'''
    s_cmp_lg_u32 {s(sI)}, 28
    s_cbranch_scc1 L_nwb
    s_cmp_lg_u32 {s(sW)}, 7
    s_cbranch_scc1 L_nwb
    s_sleep {cfg.wbd}
    buffer_wbl2 sc1
    L_nwb:
    ''')
    a(f'''
    s_mov_b32 {s(sRnd)}, 1
    s_add_u32 {s(sSlot)}, {s(sSlot)}, {SLOTR}
    s_add_u32 {s(sHo)}, {s(sHo)}, {HR}
    s_add_u32 {s(sHH)}, {s(sHH)}, {HHR}
    s_branch L_frnd
    L_fslowtab:
    v_lshlrev_b32 {v(t+16)}, 4, {v(vLane)}
    s_mov_b32 {s(sT+10)}, {TABG}
    L_ftab2:
    ''')
    for k in range(4): a(f'buffer_load_dword {v(t+k)}, {v(t+16)}, {WS}, {s(sT+10)} offen offset:{1024*k} sc1')
    a('s_waitcnt vmcnt(0)')
    tag4chk(t)
    poll_branch('L_ftab2', 8)
    a(f'''
    s_branch L_frnd
    L_fgb2:
    s_sleep {cfg.gbdelay}
    L_fgb3:
    s_barrier
    s_cmp_ge_u32 {s(sI)}, 28
    s_cbranch_scc1 L_fgb4
    {f's_sleep {cfg.tim_arg-cfg.gbdelay}' if cfg.early else ''}
    {'s_branch L_fslot' if cfg.early else ''}
    global_load_dwordx4 {v(WB,4)}, {v(vH)}, s[18:19]
    global_load_dwordx4 {v(WB+4,4)}, {v(vH)}, s[20:21]
    s_waitcnt vmcnt(0)
    buffer_load_dwordx4 {v(t,4)}, {v(vSl)}, {WS}, {s(sSlot)} offen sc1
    buffer_load_dwordx4 {v(t+4,4)}, {v(vSl)}, {WS}, {s(sSlot)} offen offset:64 sc1
    buffer_load_dword {v(t+8)}, {v(vHd)}, {WS}, {s(sSlot)} offen offset:3072 sc1
    ds_write_b128 {v(vWr)}, {v(WB,4)} offset:8192
    ds_write_b128 {v(vWr)}, {v(WB+4,4)} offset:8208
    s_waitcnt lgkmcnt(0)
    ds_read_b64_tr_b16 {v(WB,2)}, {v(vTr)} offset:8192
    ds_read_b64_tr_b16 {v(WB+2,2)}, {v(vTr)} offset:8320
    ds_read_b64_tr_b16 {v(WB+4,2)}, {v(vTr)} offset:9216
    ds_read_b64_tr_b16 {v(WB+6,2)}, {v(vTr)} offset:9344
    s_waitcnt lgkmcnt(0)
    s_branch L_fslotw
    L_fgb4:
    ''')
    for k in range(7):
        a(f'global_load_dwordx4 {v(WB+4*k,4)}, {v(vSl)}, s[22:23]')
        if k<6: a(f'v_add_u32 {v(vSl)}, 0x8000, {v(vSl)}')
    a(f'''
    s_waitcnt vmcnt(0)''')
    for k in range(7):
        o=(k&1)*1024
        a(f'''ds_write_b128 {v(vWr)}, {v(WB+4*k,4)} offset:{o}
        s_waitcnt lgkmcnt(0)
        ds_read_b64_tr_b16 {v(WB+4*k,2)}, {v(vTr)} offset:{o}
        ds_read_b64_tr_b16 {v(WB+4*k+2,2)}, {v(vTr)} offset:{o+128}''')
    a(f'''
    s_waitcnt lgkmcnt(0)
    s_cmp_lg_u32 {s(sW)}, 0
    s_cbranch_scc1 L_fbar
    L_fb0:
    v_lshrrev_b32 {v(h+2)}, 3, {v(vLane)}
    v_lshlrev_b32 {v(h+2)}, 12, {v(h+2)}
    s_lshl_b32 {s(sT)}, {s(sCb)}, 6
    v_add3_u32 {v(h+4)}, {v(h+2)}, {v(h+3)}, {s(sT)}
    L_fbase:
    buffer_load_dwordx2 {v(h+6,2)}, {v(h+4)}, {WS}, {s(sSlot)} offen offset:1024 sc1
    buffer_load_dword {v(h+8)}, {v(h+2)}, {WS}, {s(sSlot)} offen offset:3072 sc1
    buffer_load_dword {v(h+9)}, {v(vHd)}, {WS}, {s(sSlot)} offen offset:3072 sc1
    s_waitcnt vmcnt(0)
    ''')
    maxchk(range(h+6,h+10), h+5)
    poll_branch('L_fbase', 2, mask=True)
    stamp()
    a(f'''
    v_max_u32_dpp {v(h+9)}, {v(h+9)}, {v(h+9)} row_half_mirror {DPP}
    v_max_u32_dpp {v(h+9)}, {v(h+9)}, {v(h+9)} quad_perm:[1,0,3,2] {DPP}
    v_max_u32_dpp {v(h+9)}, {v(h+9)}, {v(h+9)} quad_perm:[2,3,0,1] {DPP}
    v_readfirstlane_b32 {s(sKey)}, {v(h+9)}
    v_mov_b32 {v(h)}, 0xbfb8aa3b
    s_ashr_i32 {s(sT)}, {s(sKey)}, 31
    s_orn2_b32 {s(sT)}, 0x80000000, {s(sT)}
    s_xor_b32 {s(sT)}, {s(sT)}, {s(sKey)}
    v_mul_f32 {v(h)}, {s(sT)}, {v(h)}
    v_exp_f32 {v(h)}, {v(h)}
    v_add_f32 {v(h)}, 1.0, {v(h)}
    v_rcp_f32 {v(h)}, {v(h)}
    v_cmp_eq_u32 vcc, {s(sKey)}, {v(h+8)}
    v_cndmask_b32 {v(h+10)}, 0, {v(h)}, vcc
    v_bfi_b32 {v(h+8)}, {v(h+8)}, 0, {s(sM7FF)}
    v_lshlrev_b32 {v(h+8)}, 10, {v(h+8)}
    v_lshrrev_b32 {v(h+4)}, 1, {v(h+3)}
    s_lshl_b32 {s(sT)}, {s(sCb)}, 5
    v_add3_u32 {v(h+8)}, {v(h+8)}, {v(h+4)}, {s(sT)}
    s_cmp_eq_u32 {s(sFast)}, 0
    s_cbranch_scc1 L_fbar
    v_min_u32 {v(t)}, 27, {v(vLane)}
    v_lshlrev_b32 {v(t)}, 2, {v(t)}
    s_movk_i32 {s(sTry)}, 500
    L_fhint:
    buffer_load_dword {v(t+1)}, {v(t)}, {WS}, {s(sHH)} offen sc1
    s_waitcnt vmcnt(0)
    v_cmp_ne_u32 vcc, {s(sTag)}, {v(t+1)}
    ''')
    poll_branch('L_fhint', 1, giveup='L_fbar')
    if cfg.tim_h: a(f's_sleep {cfg.tim_h}')
    a(f'''
    s_barrier
    L_fh:
    ''')
    for k in range(7):
        a(f'buffer_load_dwordx4 {v(t+4*k,4)}, {v(vH)}, {WS}, {s(sHo)} offen offset:{64*k} sc1')
    a('s_waitcnt vmcnt(0)')
    a('L_fb_go:')
    Dy=t+28
    for k in range(7):
        a(f'v_mfma_f32_16x16x32_bf16 {v(Dy,4)}, {v(t+4*k,4)}, {v(WB+4*k,4)}, '+('0' if k==0 else v(Dy,4)))
        if k==0: a(f'v_max3_u32 {v(t+32)}, {v(t)}, {v(t+1)}, {v(t+2)}\nv_max_u32 {v(t+32)}, {v(t+32)}, {v(t+3)}')
        else: a(f'v_max3_u32 {v(t+32)}, {v(t+32)}, {v(t+4*k)}, {v(t+4*k+1)}\nv_max3_u32 {v(t+32)}, {v(t+32)}, {v(t+4*k+2)}, {v(t+4*k+3)}')
    a(f'v_cmp_eq_u32 vcc, -1, {v(t+32)}')
    poll_branch('L_fh', 1, skip=True, pre=f's_cmp_eq_u32 {s(sRnd)}, 2\ns_cbranch_scc1 L_fh_ok')
    a('L_fh_ok:')
    stamp()
    a(f'''
    s_mov_b64 exec, 0xffff
    s_cmp_lg_u32 {s(sW)}, 0
    ds_write_b32 {v(vPW)}, {v(Dy)}
    s_mov_b64 exec, -1
    s_waitcnt lgkmcnt(0)
    s_barrier
    s_cbranch_scc1 L_fnext
    s_cmp_eq_u32 {s(sRnd)}, 1
    s_cbranch_scc1 L_ffinal
    v_lshlrev_b32 {v(t+8)}, 5, {v(vN)}
    ds_read_b128 {v(t,4)}, {v(t+8)}
    ds_read_b128 {v(t+4,4)}, {v(t+8)} offset:16
    s_lshl_b32 {s(sT)}, {s(sCb)}, 7
    s_add_u32 {s(sT)}, {s(sT)}, {YBUF}
    s_add_u32 {s(sT)}, {s(sT)}, {s(sYo)}
    v_lshlrev_b32 {v(t+9)}, 2, {v(vLane)}
    s_lshl_b32 {s(sT+1)}, {s(sX)}, 7
    s_lshl_b32 {s(sT+2)}, {s(sI)}, 2
    s_add_u32 {s(sT+1)}, {s(sT+1)}, {s(sT+2)}
    s_add_u32 {s(sT+1)}, {s(sT+1)}, {YHINT-28*4}
    s_add_u32 {s(sT+1)}, {s(sT+1)}, {s(sYo)}
    s_mov_b64 exec, 0xffff
    s_waitcnt lgkmcnt(0)
    v_pk_add_f32 {v(t,2)}, {v(t,2)}, {v(t+2,2)}
    v_pk_add_f32 {v(t+4,2)}, {v(t+4,2)}, {v(t+6,2)}
    v_pk_add_f32 {v(t,2)}, {v(t,2)}, {v(t+4,2)}
    v_add_f32 {v(t)}, {v(t)}, {v(t+1)}
    v_mul_f32 {v(t)}, {v(t)}, {v(h)}
    buffer_store_dword {v(t)}, {v(t+9)}, {WS}, {s(sT)} offen sc1
    ''')
    hint_store(vTag, sT+1, 'L_fyh')
    a(f'''
    s_cmp_lg_u32 {s(sRnd)}, 2
    s_cbranch_scc1 L_fnext
    L_ffinal:
    v_lshlrev_b32 {v(t+16)}, 3, {v(h+3)}
    ds_read_b128 {v(t,4)}, {v(t+16)}
    ds_read_b128 {v(t+4,4)}, {v(t+16)} offset:16
    ds_read_b128 {v(t+8,4)}, {v(t+16)} offset:32
    ds_read_b128 {v(t+12,4)}, {v(t+16)} offset:48
    s_waitcnt lgkmcnt(2)
    v_pk_add_f32 {v(t,2)}, {v(t,2)}, {v(t+2,2)}
    v_pk_add_f32 {v(t+4,2)}, {v(t+4,2)}, {v(t+6,2)}
    s_waitcnt lgkmcnt(0)
    v_pk_add_f32 {v(t+8,2)}, {v(t+8,2)}, {v(t+10,2)}
    v_pk_add_f32 {v(t+12,2)}, {v(t+12,2)}, {v(t+14,2)}
    v_pk_add_f32 {v(t,2)}, {v(t,2)}, {v(t+4,2)}
    v_pk_add_f32 {v(t+8,2)}, {v(t+8,2)}, {v(t+12,2)}
    v_add_f32 {v(t)}, {v(t)}, {v(t+1)}
    v_add_f32 {v(t+1)}, {v(t+8)}, {v(t+9)}
    v_pk_fma_f32 {v(t,2)}, {v(t,2)}, {v(h+10,2)}, {v(h+6,2)} op_sel_hi:[1,0,1]
    v_cvt_pk_bf16_f32 {v(t)}, {v(t)}, {v(t+1)}
    buffer_store_dword {v(t)}, {v(h+8)}, {OS}, 0 offen sc1
    s_cmp_eq_u32 {s(sRnd)}, 2
    s_cbranch_scc1 L_fnext
    ''')
    stamp()
    a('L_fend:')
    dump_stamps()
    a('s_endpgm')

def build():
    hdr=open('ref.txt').read().split('; @launch')[0]
    a.raw(hdr+f'; @launch grid=({NWG},1,1) block=(512,1,1) lds={LDS_TOTAL}')
    a.raw(f'''; generated by gen/gen.py (hand-written generator): persistent FFT-structured FNet + MoD kernel
.amdgcn_target "amdgcn-amd-amdhsa--gfx950"
.text
.globl {NAME}_kernel
.p2align 8
.type {NAME}_kernel,@function
{NAME}_kernel:''')
    a(f'''
    s_load_dwordx2 s[12:13], s[0:1], 0
    s_load_dwordx2 s[8:9], s[0:1], 96
    s_load_dwordx8 s[16:23], s[0:1], 48
    s_load_dwordx2 s[28:29], s[0:1], 80
    s_cmp_ge_u32 s2, {NWG}
    s_cbranch_scc1 L_end
    ''')
    if cfg.codepf: a(f'''
    s_getpc_b64 {s(sT+6,2)}
    L_pc:
    v_lshlrev_b32 v2, 5, v0
    v_min_u32 v2, L_end-L_pc, v2
    global_load_dword {v(vTG)}, v2, {s(sT+6,2)}
    ''')
    if cfg.split: a(f'''
    s_lshr_b32 s3, s2, 1
    s_xor_b32 s3, s3, s2
    s_and_b32 s3, s3, 128
    s_mul_i32 s3, s3, 3
    s_xor_b32 s2, s2, s3
    ''')
    a(f'''
    v_lshrrev_b32 v2, 6, v0
    v_and_b32 {v(vN)}, 15, v0
    v_bfe_u32 {v(vQ)}, v0, 4, 2
    v_readfirstlane_b32 {s(sW)}, v2
    v_and_b32 {v(vLane)}, 63, v0
    s_mov_b32 s10, {WSSZ}
    s_mov_b32 s11, 0x20000
    s_mov_b32 s30, 0x200000
    s_mov_b32 s31, 0x20000
    s_and_b32 {s(sX)}, s2, 7
    s_lshr_b32 {s(sJ)}, s2, 3
    v_mov_b32 {v(SENT)}, -1
    v_mov_b32 {v(SENT+1)}, -1
    v_mov_b32 {v(SENT+2)}, -1
    v_mov_b32 {v(SENT+3)}, -1
    v_lshlrev_b32 {v(vL8)}, 3, v0
    v_and_b32 {v(vL8)}, 0xf8, {v(vL8)}
    s_mov_b32 {s(sCnt)}, 200000
    s_mov_b32 {s(sM7FF)}, 0x7ff
    s_lshl_b32 {s(sTabLd)}, {s(sX)}, 8
    s_add_u32 {s(sTabLd)}, {s(sTabLd)}, {TABL}
    s_getreg_b32 {s(sXcc)}, hwreg(HW_REG_XCC_ID, 0, 4)
    ''')
    if cfg.force_slow: a(f's_mov_b32 {s(sXcc)}, {s(sJ)}')
    if cfg.stamps:
        a(f's_mov_b32 {s(sStampI)}, 0\nv_mov_b32 {v(vSTMP)}, 0')
        a(f's_memrealtime {s(sTS,2)}\ns_memtime {s(sTS+2,2)}\ns_waitcnt lgkmcnt(0)\nv_writelane_b32 {v(vSTMP)}, {s(sTS)}, 63\nv_writelane_b32 {v(vSTMP)}, {s(sTS+2)}, 62')
    a('''s_cmp_ge_u32 s2, 256
    s_cbranch_scc1 L_ffn''')
    if cfg.prio: a(f's_setprio 2\ns_cmp_gt_u32 {s(sW)}, 1\ns_cbranch_scc1 L_np\ns_setprio 3\nL_np:')
    main_prologue()
    main_loop()
    ffn()
    a('L_end:\ns_endpgm')
    a.raw(f'''.section .rodata,"a"
.p2align 6
.amdhsa_kernel {NAME}_kernel
  .amdhsa_next_free_vgpr 128
  .amdhsa_next_free_sgpr 96
  .amdhsa_accum_offset 128
  .amdhsa_group_segment_fixed_size 0
  .amdhsa_kernarg_size 104
  .amdhsa_user_sgpr_count 2
  .amdhsa_user_sgpr_kernarg_segment_ptr 1
  .amdhsa_system_sgpr_workgroup_id_x 1
.end_amdhsa_kernel''')
    return a.text()
if __name__=='__main__':
    out=sys.argv[1]
    for kv in sys.argv[2:]:
        k,val=kv.split('='); assert hasattr(cfg,k); setattr(cfg,k,int(val))
    open(out,'w').write(build())
    print('instrs',a.count,'nops',a.nops)
```

```python
import sys, struct
from asmlib import Asm
NAME='interleave_layers__spectral_fnet__moe_arch_mod__prompt'
def fbits(x): return '0x%08x' % struct.unpack('<I', struct.pack('<f', x))[0]

class Cfg:
    stamps=0
    tim_arg=16
    tim_y=0
    tim_h=0
    slp_g=2
    slp_l=1
    force_slow=0
    prio=1
    codepf=1
    exp=0
    cal=-1
    calwg=0
    dbgout=0
    dry=1
    wb=1
    fdelay=0
    gdelay=18
    osc=1
    odel=0
    pfm=0
    clr2=1
    nb0=0
    ehint=0
    post=0
    tgp=1
    early=3
    tim_a0=4
    wbd=12
    gbdelay=4
    late=1
    split=0
    tch=1
cfg=Cfg()

TABG=0x1000; TABGR=0x6000
TABL=0x2000; ARGR=0x800
TAB2=0x3800
SLOWF=0x4000
YHINT=0x5000
HHINT=0x6000; HHR=0x400
CLR0=0x8000
HBUF=0x8000; HR=0x1000
YBUF=0xA000
SLOT=0x10000; SLOTR=0x8000
LBASE=0x20000; PS=8448; LX=32*PS
GBASE=0x240000; GS=262144+768; GR=0x210000
STAMP=0x700000
WSSZ=0x800000
NWG=512
NST=(13,8,10)
L_STAT=0; L_U=0x400; L_YI=0x2400; YIS=320; L_YT=0x4C00; L_DH=0x6E00; LDS_TOTAL=0x7600
L_CX=0x2400
def v(a,n=1): return f'v{a}' if n==1 else f'v[{a}:{a+n-1}]'
def s(a,n=1): return f's{a}' if n==1 else f's[{a}:{a+n-1}]'

WS='s[8:11]'; XS='s[12:15]'; OS='s[28:31]'
sW=3; sX=26; sJ=27; sIt=32; sTag=33; sFast=34; sKey=35; sMir=36; sDsc=38
sLst=39; sLld=40; sPh=41; sTabG=42; sG0=43; sG4=44; sTabSt=45; sTabLd=46; sSlot=47; sRow0=48; sRow1=49; sCnt=50
sXcc=51; sStampI=37
sK512=52
sTry=53
sEps=54
sC16=56
sSc=58
sM7FF=60; sTop=61
sQmask=62
sT=64
sTS=80
X=2; WV=10; A8=14; XA=16; B1C=20; B1S=24; B1N=28; TWC=32; TWS=36; A2R=40; A2I=44; YC=48; YS=52
AD=56; BC=58
vXoff=72; vStW=73; vStR=74; vUW=75; vUR=76; vLst=77; vLld=78; vLldM=79; vYIW=80; vYIR=81; vYW=82; vYR=83; vGst=84; vGld=85
vSc0=86; vL8=88; vInv=89; vN=90; vQ=91; vSTMP=1; vLane=92; vTG=93
LNP=94; MM=98; RS2=100
T=102
class Asm2(Asm):
    def __call__(self, text):
        parts=text.split(';@F')
        for i,p in enumerate(parts):
            if i: fstamp()
            Asm.__call__(self,p)
a=Asm2()
def poll_branch(lbl, sleep=1, pre='', giveup=None, skip=False, mask=False):
    k=a.lines.index(lbl+':')
    if mask:
        pre+='\ns_mov_b64 exec, vcc'; skip=True
        k2=next(i for i in range(k,len(a.lines)) if 's_waitcnt vmcnt(0)' in a.lines[i])
        k3=max(i for i in range(k,k2) if 'buffer_load' in a.lines[i])
        a.lines.insert(k3+1,'    s_mov_b64 exec, -1')
    if a.lines[k-1].strip().startswith(('s_branch','s_endpgm')): skip=False
    a(f's_cbranch_vccnz {lbl}_r ;!nd')
    st=[]
    if skip: st.append(f'    s_branch {lbl}')
    st.append(f'{lbl}_r:')
    if giveup: st+= [f'    s_sub_u32 {s(sTry)}, {s(sTry)}, 1', f'    s_cbranch_scc1 {giveup}']
    else: st+= [f'    s_sub_u32 {s(sCnt)}, {s(sCnt)}, 1', '    s_cbranch_scc1 L_end']
    st+= ['    '+x.strip() for x in pre.split('\n') if x.strip()]
    if sleep: st.append(f'    s_sleep {sleep}')
    a.lines[k:k]=st
def fstamp():
    if cfg.stamps==2: stamp()
def stamp():
    if not cfg.stamps: return
    a(f'''{'s_memtime' if cfg.stamps==2 else 's_memrealtime'} {s(sTS,2)}
    s_waitcnt lgkmcnt(0)
    s_mov_b32 m0, {s(sStampI)}
    s_add_u32 {s(sStampI)}, {s(sStampI)}, 1
    v_writelane_b32 {v(vSTMP)}, {s(sTS)}, m0''')
def dump_stamps():
    if not cfg.stamps: return
    a(f's_memrealtime {s(sTS,2)}\ns_memtime {s(sTS+2,2)}\ns_waitcnt lgkmcnt(0)\nv_writelane_b32 {v(vSTMP)}, {s(sTS)}, 61\nv_writelane_b32 {v(vSTMP)}, {s(sTS+2)}, 60')
    if cfg.cal>=0:
        lab='L_cal%d'%len(a.lines)
        a(f'''s_cmp_lg_u32 s2, {cfg.calwg}
        s_cbranch_scc1 {lab}
        s_cmp_lg_u32 {s(sW)}, 0
        s_cbranch_scc1 {lab}
        v_readlane_b32 {s(sT)}, {v(vSTMP)}, {cfg.cal}
        v_readlane_b32 {s(sT+1)}, {v(vSTMP)}, 63
        s_sub_u32 {s(sT)}, {s(sT)}, {s(sT+1)}
        s_lshl_b32 {s(sT)}, {s(sT)}, 2
        s_add_u32 {s(sT)}, {s(sT)}, 3000
        s_min_u32 {s(sT)}, {s(sT)}, 50000
        {lab}_l:
        s_memrealtime {s(sTS,2)}
        s_waitcnt lgkmcnt(0)
        s_sub_u32 {s(sT+2)}, {s(sTS)}, {s(sT+1)}
        s_cmp_lt_u32 {s(sT+2)}, {s(sT)}
        s_cbranch_scc1 {lab}_l
        {lab}:''')
    a(f'''s_lshl_b32 {s(sT)}, s2, 11
    s_lshl_b32 {s(sT+1)}, {s(sW)}, 8
    s_add_u32 {s(sT)}, {s(sT)}, {s(sT+1)}
    s_add_u32 {s(sT)}, {s(sT)}, {STAMP}
    v_lshlrev_b32 {v(vLane)}, 2, {v(vLane)}
    buffer_store_dword {v(vSTMP)}, {v(vLane)}, {WS}, {s(sT)} offen''')
def maxchk(regs, t):
    regs=list(regs)
    a(f'v_max3_u32 {v(t)}, {v(regs[0])}, {v(regs[1])}, {v(regs[2])}')
    rest=regs[3:]
    while len(rest)>=2:
        a(f'v_max3_u32 {v(t)}, {v(t)}, {v(rest[0])}, {v(rest[1])}'); rest=rest[2:]
    if rest: a(f'v_max_u32 {v(t)}, {v(t)}, {v(rest[0])}')
    a(f'v_cmp_eq_u32 vcc, -1, {v(t)}')
def phchk(regs, t):
    regs=list(regs)
    a(f'v_bitop3_b32 {v(t)}, {v(regs[0])}, {v(regs[1])}, {s(sPh)} bitop3:0x7e')
    for r in regs[2:]: a(f'v_bitop3_b32 {v(t)}, {v(t)}, {v(r)}, {s(sPh)} bitop3:0xf6')
    a(f'v_and_b32 {v(t)}, 1, {v(t)}\nv_cmp_ne_u32 vcc, 0, {v(t)}')
def tag4chk(r):
    for k in range(4): a(f'v_xor_b32 {v(r+k)}, {s(sTag)}, {v(r+k)}')
    a(f'v_or3_b32 {v(r)}, {v(r)}, {v(r+1)}, {v(r+2)}\nv_or_b32 {v(r)}, {v(r)}, {v(r+3)}\nv_cmp_ne_u32 vcc, 0, {v(r)}')
DPP='row_mask:0xf bank_mask:0xf'

def fft_core(xr, xi, U, V, F, P, fill1='', fill2=''):
    Ur,Ui=U,U+4
    a(f'v_mfma_f32_16x16x32_f16 {v(Ur,4)}, {v(xr,4)}, {v(B1C,4)}, 0')
    a(f'v_mfma_f32_16x16x32_f16 {v(Ui,4)}, {v(xr,4)}, {v(B1N,4)}, 0')
    if xi is not None:
        a(f'v_mfma_f32_16x16x32_f16 {v(Ur,4)}, {v(xi,4)}, {v(B1S,4)}, {v(Ur,4)}')
        a(f'v_mfma_f32_16x16x32_f16 {v(Ui,4)}, {v(xi,4)}, {v(B1C,4)}, {v(Ui,4)}')
    a(fill1)
    Vr,Vi=V,V+4
    for h in (0,2):
        a(f'v_pk_mul_f32 {v(Vi+h,2)}, {v(Ur+h,2)}, {v(TWS+h,2)}')
    for h in (0,2):
        a(f'v_pk_mul_f32 {v(Vr+h,2)}, {v(Ui+h,2)}, {v(TWS+h,2)}')
    for h in (0,2):
        a(f'v_pk_fma_f32 {v(Vr+h,2)}, {v(Ur+h,2)}, {v(TWC+h,2)}, {v(Vr+h,2)}')
        a(f'v_pk_fma_f32 {v(Vi+h,2)}, {v(Ui+h,2)}, {v(TWC+h,2)}, {v(Vi+h,2)} neg_lo:[0,0,1] neg_hi:[0,0,1]')
    for r in range(4): a(f'v_cvt_pk_f16_f32 {v(P+r)}, {v(Vr+r)}, {v(Vi+r)}')
    a(f'v_mfma_f32_16x16x32_f16 {v(F,4)}, {v(A2R,4)}, {v(P,4)}, 0')
    a(f'v_mfma_f32_16x16x32_f16 {v(F+4,4)}, {v(A2I,4)}, {v(P,4)}, 0')
    a(fill2)
    for r in range(4): a(f'v_cvt_pk_f16_f32 {v(P+r)}, {v(F+r)}, {v(F+4+r)}')

SENT=T+4

def main_prologue():
    t=T
    X0=BC
    a(f'''
    s_lshl_b32 {s(sRow0)}, s2, 10
    s_add_u32 {s(sRow1)}, {s(sRow0)}, 0x40000
    s_lshl_b32 {s(sT)}, {s(sW)}, 7
    v_lshl_add_u32 {v(vUW)}, {v(vN)}, 3, {s(sT)}                 ; 128w+8n
    v_lshl_add_u32 {v(vXoff)}, {v(vQ)}, 19, {v(vUW)}
    s_mov_b32 s14, 0x200000
    s_mov_b32 s15, 0x20000
    s_mul_i32 {s(sLld)}, {s(sX)}, {LX}
    s_add_u32 {s(sLld)}, {s(sLld)}, {LBASE}
    s_mul_i32 {s(sLst)}, {s(sJ)}, {PS}
    s_add_u32 {s(sLst)}, {s(sLst)}, {s(sLld)}
    v_lshlrev_b32 {v(t)}, 4, v0
    v_lshrrev_b32 {v(t+1)}, 4, v0
    s_waitcnt lgkmcnt(0)
    buffer_load_dwordx2 {v(X0,2)}, {v(vXoff)}, {XS}, {s(sRow0)} offen
    buffer_load_dwordx2 {v(X0+2,2)}, {v(vXoff)}, {XS}, {s(sRow1)} offen
    global_load_dwordx2 {v(X0+4,2)}, {v(vUW)}, s[16:17]
    buffer_load_dword {v(X0+6)}, off, {WS}, 0 sc1
    ''')
    tabt=f'buffer_load_dword {v(X0+7)}, {v(vL8)}, {WS}, {s(sTabLd)} offen sc1'
    ltch=f'buffer_load_dwordx4 {v(X0+8,4)}, {v(t)}, {WS}, {s(sLst)} offen sc1'
    lclr=f'buffer_store_dwordx4 {v(SENT,4)}, {v(t)}, {WS}, {s(sLst)} offen'
    if cfg.tch==0: a(tabt+'\n'+ltch+'\n'+lclr)
    if cfg.tch==1: a(tabt+'\n'+ltch)
    if cfg.tch==2: a(tabt+'\n'+lclr+'\n'+ltch)
    if cfg.tch==3: a(ltch.replace(' sc1','')+'\n'+ltch.replace(' sc1','')+'\n'+lclr)
    a(f'''
    s_mov_b32 {s(sG0)}, {GBASE}
    s_mul_i32 {s(sT)}, {s(sX)}, {GS}
    s_add_u32 {s(sT+2)}, {s(sJ)}, 24
    s_and_b32 {s(sT+2)}, {s(sT+2)}, 24
    s_lshl_b32 {s(sT+2)}, {s(sT+2)}, 13
    s_add_u32 {s(sT)}, {s(sT)}, {s(sT+2)}
    s_and_b32 {s(sT+2)}, {s(sJ)}, 7
    s_cmp_lt_u32 {s(sJ)}, 8
    s_cselect_b32 {s(sT+3)}, 7, 8
    s_cselect_b32 {s(sT+4)}, 112, 0
    s_lshl_b32 {s(sT+2)}, {s(sT+2)}, {s(sT+3)}
    s_add_u32 {s(sT)}, {s(sT)}, {s(sT+2)}
    v_lshlrev_b32 {v(t+2)}, 4, {v(vN)}
    v_lshl_add_u32 {v(vGst)}, {v(t+1)}, 11, {v(t+2)}
    v_and_b32 {v(t+3)}, 8, {v(vN)}
    v_mad_u32_u24 {v(vGst)}, {v(t+3)}, {s(sT+4)}, {v(vGst)}
    v_add_u32 {v(vGst)}, {s(sT)}, {v(vGst)}
    buffer_store_dwordx4 {v(SENT,4)}, {v(vGst)}, {WS}, {s(sG0)} offen sc1
    s_lshl_b32 {s(sT)}, s2, 13
    s_add_u32 {s(sT)}, {s(sT)}, {CLR0}
    s_cmp_lt_u32 s2, 12
    s_cselect_b32 {s(sT)}, {s(sT)}, {WSSZ}
    buffer_store_dwordx4 {v(SENT,4)}, {v(t)}, {WS}, {s(sT)} offen sc1
    ''')
    c=t+8; co,si=c+8,c+12
    a(f'''
    s_lshr_b32 {s(sT)}, {s(sJ)}, 2
    s_and_b32 {s(sT)}, {s(sT)}, 6                 ; 2*(j>>3)
    s_lshl_b32 {s(sT+1)}, {s(sW)}, 2
    s_and_b32 {s(sT+1)}, {s(sT+1)}, 8             ; 2*4*((w>>1)&1)
    s_cmp_lt_u32 {s(sJ)}, 8
    s_cselect_b32 {s(sT)}, {s(sT+1)}, {s(sT)}
    s_lshl_b32 {s(sT+1)}, {s(sW)}, 4
    s_and_b32 {s(sT+1)}, {s(sT+1)}, 16            ; 16*(w&1)
    s_cmp_ge_u32 {s(sW)}, 4
    s_cselect_b32 {s(sT+2)}, {s(sT+1)}, 0         ; 16k
    s_cselect_b32 {s(sT)}, {s(sT)}, 0
    s_cmp_eq_u32 {s(sW)}, 3
    s_cselect_b32 {s(sT)}, 16, {s(sT)}
    s_lshl_b32 {s(sT+3)}, {s(sW)}, 2
    s_lshr_b32 {s(sT+3)}, 0x44440054, {s(sT+3)}
    s_and_b32 {s(sT+3)}, {s(sT+3)}, 15            ; log2 A
    v_lshlrev_b32 {v(c)}, {s(sT+3)}, {v(vN)}
    v_add_u32 {v(c)}, {s(sT)}, {v(c)}
    v_lshl_add_u32 {v(c+1)}, {v(vQ)}, 2, {s(sT+2)}
    v_cvt_f32_u32 {v(c)}, {v(c)}
    v_cvt_f32_u32 {v(c+1)}, {v(c+1)}
    s_mov_b32 {s(sK512)}, {fbits(1/512)}
    v_mul_f32 {v(c)}, {s(sK512)}, {v(c)}
    v_mul_f32 {v(c+4)}, {v(c+1)}, {v(c)}
    v_add_f32 {v(c+5)}, {v(c+4)}, {v(c)}
    v_add_f32 {v(c+6)}, {v(c+5)}, {v(c)}
    v_add_f32 {v(c+7)}, {v(c+6)}, {v(c)}
    ''')
    fill=[f's_mov_b32 {s(sEps)}, {fbits(1e-5)}', f's_mov_b32 {s(sEps+1)}, {fbits(1e-5)}', f's_mov_b32 {s(sC16)}, {fbits(1/16)}', f's_mov_b32 {s(sC16+1)}, {fbits(1/16)}',
          f's_mov_b32 {s(sTop)}, 0x80000000', f's_mov_b32 {s(sQmask)}, 0x11111111', f's_mov_b32 {s(sQmask+1)}, 0x11111111', f's_mov_b32 {s(sG4)}, {GBASE+4*GS}']
    for r in range(4):
        a(f'v_cos_f32 {v(co+r)}, {v(c+4+r)}'); a(fill[2*r])
        a(f'v_sin_f32 {v(si+r)}, {v(c+4+r)}'); a(fill[2*r+1])
    a(f'''
    s_lshl_b32 {s(sT)}, {s(sW)}, 11
    s_add_u32 {s(sT)}, {s(sT)}, {L_CX}
    v_lshlrev_b32 {v(c+2)}, 4, {v(vLane)}
    v_add_u32 {v(c+3)}, {s(sT)}, {v(c+2)}
    s_and_b32 {s(sT)}, {s(sW)}, 6
    s_cmp_eq_u32 {s(sT)}, 2
    s_cbranch_scc1 L_cw
    s_cmp_eq_u32 {s(sW)}, 1
    s_cbranch_scc1 L_cri
    v_cvt_pk_f16_f32 {v(co)}, {v(co)}, {v(co+1)}
    v_cvt_pk_f16_f32 {v(co+1)}, {v(co+2)}, {v(co+3)}
    v_cvt_pk_f16_f32 {v(co+2)}, {v(si)}, {v(si+1)}
    v_cvt_pk_f16_f32 {v(co+3)}, {v(si+2)}, {v(si+3)}
    s_branch L_cw
    L_cri:
    ''')
    for r in range(4):
        a(f'v_cvt_pk_f16_f32 {v(c+4)}, {v(co+r)}, {v(si+r)}')
        a(f'v_cvt_pk_f16_f32 {v(si+r)}, -{v(si+r)}, {v(co+r)}')
        a(f'v_mov_b32 {v(co+r)}, {v(c+4)}')
    a(f'''
    L_cw:
    ds_write_b128 {v(c+3)}, {v(co,4)}
    ds_write_b128 {v(c+3)}, {v(si,4)} offset:1024
    v_lshrrev_b32 {v(c+4)}, 2, {v(vN)}
    v_and_b32 {v(c+5)}, 2, {v(vN)}
    v_and_b32 {v(c+6)}, 14, {v(vN)}
    v_cmp_eq_u32 vcc, 2, {v(c+6)}
    v_mul_u32_u24 {v(vYIR)}, {YIS}, {v(c+4)}
    v_lshlrev_b32 {v(vStR)}, 8, {v(vQ)}
    v_cndmask_b32 {v(c+4)}, {v(c+4)}, 4, vcc
    v_cndmask_b32 {v(c+5)}, {v(c+5)}, 0, vcc
    v_mul_u32_u24 {v(c+6)}, {v(c+4)}, {v(vQ)}
    v_lshl_add_u32 {v(c+6)}, {v(c+6)}, 1, {v(c+5)}
    v_add_u32 {v(c+7)}, {v(c+6)}, {v(c+4)}
    v_cvt_f32_u32 {v(c+6)}, {v(c+6)}
    v_cvt_f32_u32 {v(c+7)}, {v(c+7)}
    v_mul_f32 {v(c+6)}, 0x3e000000, {v(c+6)}
    v_mul_f32 {v(c+7)}, 0x3e000000, {v(c+7)}
    v_cos_f32 {v(c+6)}, {v(c+6)}
    v_cos_f32 {v(c+7)}, {v(c+7)}
    v_and_b32 {v(c+5)}, 1, {v(vN)}
    v_cmp_eq_u32 vcc, 0, {v(c+5)}
    v_cvt_pk_f16_f32 {v(c+6)}, {v(c+6)}, {v(c+7)}
    v_mov_b32 {v(c+5)}, 0x80008000
    v_cndmask_b32 {v(A8)}, 0, {v(c+6)}, vcc
    v_cndmask_b32 {v(A8+1)}, {v(c+6)}, 0, vcc
    v_cndmask_b32 {v(c+5)}, {v(c+5)}, 0, vcc
    s_lshl_b32 {s(sT+1)}, {s(sT+1)}, 7            ; h*2048
    v_add_u32 {v(c+6)}, {s(sT+1)}, {v(c+2)}
    s_lshl_b32 {s(sT+2)}, {s(sW)}, 11
    s_and_b32 {s(sT+2)}, {s(sT+2)}, 4096          ; ((w>>1)&1)*4096
    v_add_u32 {v(c+7)}, {s(sT+2)}, {v(c+2)}
    s_waitcnt lgkmcnt(0)
    s_barrier
    ds_read_b128 {v(B1N,4)}, {v(c+2)} offset:{L_CX}
    ds_read_b128 {v(co,4)}, {v(c+7)} offset:{L_CX+4*2048}
    ds_read_b128 {v(si,4)}, {v(c+7)} offset:{L_CX+5*2048}
    ds_read_b128 {v(A2R,4)}, {v(c+2)} offset:{L_CX+2048}
    ds_read_b128 {v(A2I,4)}, {v(c+2)} offset:{L_CX+2048+1024}
    ds_read_b128 {v(TWC,4)}, {v(c+6)} offset:{L_CX+4096}
    ds_read_b128 {v(TWS,4)}, {v(c+6)} offset:{L_CX+4096+1024}
    v_and_b32 {v(c+4)}, 4, {v(vN)}
    s_lshl_b32 {s(sT)}, {s(sW)}, 2
    v_lshl_add_u32 {v(vStW)}, {v(t+3)}, 2, {v(vStR)}
    v_lshl_add_u32 {v(vStW)}, {v(c+4)}, 4, {v(vStW)}
    v_add_u32 {v(vStW)}, {s(sT)}, {v(vStW)}
    v_and_b32 {v(c+4)}, 7, {v(vN)}
    v_lshl_add_u32 {v(vStR)}, {v(c+4)}, 5, {v(vStR)}
    v_lshl_add_u32 {v(vUW)}, {v(vQ)}, 11, {v(vUW)}
    v_add_u32 {v(vUW)}, {L_U}, {v(vUW)}
    s_lshr_b32 {s(sT)}, {s(sW)}, 1
    s_lshl_b32 {s(sT)}, {s(sT)}, 11
    s_add_u32 {s(sT+2)}, {s(sT)}, {L_U}
    v_lshl_add_u32 {v(vUR)}, {v(vLane)}, 3, {s(sT+2)}
    ; vLst = w'*2048 + 512q + 64h + 4n
    s_lshr_b32 {s(sT+2)}, {s(sT+1)}, 5
    s_add_u32 {s(sT)}, {s(sT)}, {s(sT+2)}
    v_lshl_add_u32 {v(vLst)}, {v(vQ)}, 9, {s(sT)}
    v_lshl_add_u32 {v(vLst)}, {v(vN)}, 2, {v(vLst)}
    s_lshl_b32 {s(sT)}, {s(sJ)}, 3
    s_add_u32 {s(sTabSt)}, {s(sTabLd)}, {s(sT)}
    s_lshl_b32 {s(sT+3)}, {s(sW)}, 31             ; h sign
    s_lshl_b32 {s(sT+4)}, {s(sW)}, 29
    s_and_b32 {s(sT+4)}, {s(sT+4)}, {s(sTop)}
    s_mov_b32 {s(sT+5)}, 0x80008000
    s_mov_b32 {s(sIt)}, 0
    s_mov_b32 {s(sFast)}, 1
    s_mov_b32 {s(sPh)}, 0
    s_mov_b32 {s(sSlot)}, {WSSZ}
    s_mov_b32 {s(sTry)}, 40
    s_waitcnt lgkmcnt(4)
    v_xor_b32 {v(B1C)}, {s(sT+3)}, {v(B1N)}
    v_xor_b32 {v(B1C+1)}, {s(sT+3)}, {v(B1N+1)}
    v_xor_b32 {v(B1S)}, {s(sT+3)}, {v(B1N+2)}
    v_xor_b32 {v(B1S+1)}, {s(sT+3)}, {v(B1N+3)}
    v_xor_b32 {v(B1C+2)}, {v(B1C)}, {v(c+5)}
    v_xor_b32 {v(B1C+3)}, {v(B1C+1)}, {v(c+5)}
    v_xor_b32 {v(B1S+2)}, {v(B1S)}, {v(c+5)}
    v_xor_b32 {v(B1S+3)}, {v(B1S+1)}, {v(c+5)}
    ''')
    for r in range(4): a(f'v_xor_b32 {v(B1N+r)}, {s(sT+5)}, {v(B1S+r)}')
    for k,src in ((0,co),(1,si)):
        for r in range(2):
            a(f'v_xor_b32 {v(YC+2*k+r)}, {s(sT+4)}, {v(src+r)}')
            a(f'v_xor_b32 {v(YS+2*k+r)}, {s(sT+4)}, {v(src+2+r)}')
    a(f'''
    s_and_b32 {s(sT+1)}, {s(sW)}, 3
    s_lshl_b32 {s(sT+1)}, {s(sT+1)}, 6            ; 64cb
    s_lshr_b32 {s(sT)}, {s(sW)}, 2
    s_mul_i32 {s(sT)}, {s(sT)}, {16*272}
    s_add_u32 {s(sT)}, {s(sT)}, {s(sT+1)}
    s_add_u32 {s(sT)}, {s(sT)}, {L_YT}
    v_mul_u32_u24 {v(vYW)}, 272, {v(vN)}
    v_lshl_add_u32 {v(vYW)}, {v(vQ)}, 4, {v(vYW)}
    v_add_u32 {v(vYW)}, {s(sT)}, {v(vYW)}
    v_mul_u32_u24 {v(vYR)}, 272, {v(t+1)}
    v_add_u32 {v(vYR)}, {v(vYR)}, {v(t+2)}
    v_add_u32 {v(vYR)}, {L_YT}, {v(vYR)}
    s_add_u32 {s(sT+1)}, {s(sT+1)}, {L_YI}
    v_mul_u32_u24 {v(c+4)}, {4*YIS}, {v(vQ)}
    v_and_b32 {v(c+6)}, 0x30, {v(t+2)}
    v_add3_u32 {v(vYIR)}, {v(vYIR)}, {v(c+4)}, {v(c+6)}
    v_add_u32 {v(vYIR)}, {s(sT+1)}, {v(vYIR)}
    s_cmp_lt_u32 {s(sJ)}, 8
    s_cbranch_scc1 L_aself
    v_mul_u32_u24 {v(vLld)}, {PS}, {v(t+1)}
    v_mul_u32_u24 {v(vYIW)}, {YIS}, {v(t+1)}
    s_lshl_b32 {s(sT)}, {s(sJ)}, 8
    v_add3_u32 {v(vLld)}, {v(vLld)}, {v(t+2)}, {s(sT)}
    v_add_u32 {v(vYIW)}, {v(vYIW)}, {v(t+2)}
    v_mov_b32 {v(vLldM)}, 0
    s_branch L_adone
    L_aself:
    ; s2=(w>>1)*8+(l>>3), u=l&7, which=w&1
    s_lshl_b32 {s(sT)}, {s(sW)}, 2
    s_and_b32 {s(sT)}, {s(sT)}, 24
    v_lshrrev_b32 {v(c+4)}, 3, {v(vLane)}
    v_add_u32 {v(c+4)}, {s(sT)}, {v(c+4)}
    v_and_b32 {v(c+6)}, 0x70, {v(t+2)}
    v_mul_u32_u24 {v(vLldM)}, {PS}, {v(c+4)}
    v_mul_u32_u24 {v(vYIW)}, {YIS}, {v(c+4)}
    s_lshl_b32 {s(sT)}, {s(sJ)}, 7
    s_add_u32 {s(sT+1)}, {s(sT)}, 4
    s_sub_u32 {s(sT)}, {508*4}, {s(sT)}
    v_add3_u32 {v(vLld)}, {v(vLldM)}, {v(c+6)}, {s(sT+1)}
    v_sub_u32 {v(vLldM)}, {v(vLldM)}, {v(c+6)}
    v_add_u32 {v(vLldM)}, {s(sT)}, {v(vLldM)}
    s_lshr_b32 {s(sT)}, {s(sT+3)}, 24
    v_add3_u32 {v(vYIW)}, {v(vYIW)}, {v(c+6)}, {s(sT)}
    L_adone:
    v_add_u32 {v(vYIW)}, {L_YI}, {v(vYIW)}
    s_waitcnt vmcnt({4 if cfg.late else 2 if cfg.tch==1 else 5})
    {lclr if cfg.tch==1 and not cfg.late else ''}
    v_readfirstlane_b32 {s(sTag)}, {v(X0+6)}
    ''')
    for rho in (0,1):
        for k in (0,1):
            src=X0+2*rho+k
            a(f'v_lshlrev_b32 {v(X+4*k+rho)}, 16, {v(src)}')
            a(f'v_and_b32 {v(X+4*k+2+rho)}, 0xffff0000, {v(src)}')
    for k in (0,1):
        a(f'v_lshlrev_b32 {v(WV+2*k)}, 16, {v(X0+4+k)}')
        a(f'v_and_b32 {v(WV+2*k+1)}, 0xffff0000, {v(X0+4+k)}')
    a(f's_add_u32 {s(sTag)}, {s(sTag)}, 1')

def xin_consts(c):
    a(f'''
    s_and_b32 {s(sT)}, {s(sX)}, 3                ; 0 => self
    s_lshr_b32 {s(sT+1)}, {s(sW)}, 2
    s_lshr_b32 {s(sT+2)}, {s(sX)}, 2
    s_mov_b32 {s(sSc)}, {fbits(16.0)}
    s_cmp_eq_u32 {s(sT)}, 0
    s_cselect_b32 {s(sMir)}, {s(sT+1)}, {s(sT+2)}
    s_cselect_b32 {s(sSc)}, {fbits(8.0)}, {s(sSc)}
    s_cselect_b32 {s(sDsc)}, {fbits(1/8)}, {s(sC16)}
    s_cselect_b32 {s(sT+3)}, -4, 0
    s_mov_b32 {s(sSc+1)}, {s(sSc)}
    s_sub_u32 {s(sT+4)}, 256, s2
    s_and_b32 {s(sT+4)}, {s(sT+4)}, 255
    s_cmp_eq_u32 {s(sMir)}, 0
    s_cselect_b32 {s(sT+4)}, s2, {s(sT+4)}       ; source g
    s_cselect_b32 {s(sT+5)}, 16, -16
    s_cselect_b32 {s(sT+6)}, 0, {509*4}
    s_cselect_b32 {s(sT+7)}, 1.0, -1.0
    s_add_u32 {s(sT+3)}, {s(sT+3)}, {s(sT+6)}
    s_mul_i32 {s(sT+6)}, {s(sT+5)}, {s(sW)}
    s_lshl_b32 {s(sT+6)}, {s(sT+6)}, 4
    s_add_u32 {s(sT+3)}, {s(sT+3)}, {s(sT+6)}
    s_lshr_b32 {s(sT+6)}, {s(sT+4)}, 3
    s_lshl_b32 {s(sT+6)}, {s(sT+6)}, 11
    s_add_u32 {s(sT+3)}, {s(sT+3)}, {s(sT+6)}
    s_add_u32 {s(sT+6)}, {s(sT+4)}, 3
    s_and_b32 {s(sT+6)}, {s(sT+6)}, 3
    s_lshl_b32 {s(sT+6)}, {s(sT+6)}, 16
    s_add_u32 {s(sT+3)}, {s(sT+3)}, {s(sT+6)}
    s_and_b32 {s(sT+6)}, {s(sT+4)}, 4
    s_lshl_b32 {s(sT+6)}, {s(sT+6)}, 8
    s_add_u32 {s(sT+3)}, {s(sT+3)}, {s(sT+6)}
    v_mul_i32_i24 {v(vGld)}, {s(sT+5)}, {v(vN)}
    v_mul_u32_u24 {v(c+4)}, {GS}, {v(vQ)}
    v_add3_u32 {v(vGld)}, {v(vGld)}, {v(c+4)}, {s(sT+3)}
    v_lshrrev_b32 {v(c+4)}, 1, {v(vN)}
    v_and_b32 {v(c+4)}, 6, {v(c+4)}
    v_and_or_b32 {v(c+4)}, {v(vN)}, 1, {v(c+4)}
    v_lshl_add_u32 {v(AD)}, {v(c+4)}, 8, s2
    v_cvt_f32_u32 {v(c+4)}, {v(AD)}
    v_cvt_f32_u32 {v(c+5)}, {v(vQ)}
    v_mul_f32 {v(c+4)}, {fbits(1/2048)}, {v(c+4)}
    v_mul_f32 {v(c+4)}, {s(sT+7)}, {v(c+4)}
    v_mul_f32 {v(c+5)}, {v(c+4)}, {v(c+5)}
    v_fma_f32 {v(c+6)}, {v(c+4)}, 4.0, {v(c+5)}
    v_cos_f32 {v(c+7)}, {v(c+5)}
    v_sin_f32 {v(c+8)}, {v(c+5)}
    v_cos_f32 {v(c+9)}, {v(c+6)}
    v_sin_f32 {v(c+10)}, {v(c+6)}
    v_bfe_u32 {v(c+4)}, {v(vN)}, 1, 1
    v_cmp_eq_u32 vcc, {s(sMir)}, {v(c+4)}
    v_cvt_pk_f16_f32 {v(c+7)}, {v(c+7)}, {v(c+8)}
    v_cvt_pk_f16_f32 {v(c+9)}, {v(c+9)}, {v(c+10)}
    v_cndmask_b32 {v(XA)}, 0, {v(c+7)}, vcc
    v_cndmask_b32 {v(XA+1)}, {v(c+7)}, 0, vcc
    v_cndmask_b32 {v(XA+2)}, 0, {v(c+9)}, vcc
    v_cndmask_b32 {v(XA+3)}, {v(c+9)}, 0, vcc
    v_and_b32 {v(c+4)}, 0x1cf, v0
    v_cmp_eq_u32 vcc, 0, {v(c+4)}
    v_mov_b32 {v(c+5)}, {s(sSc)}
    s_sub_u32 {s(sT)}, 2047, s2
    v_lshlrev_b32 {v(vInv)}, 9, {v(vQ)}
    v_cndmask_b32 {v(vSc0)}, {v(c+5)}, 0, vcc
    v_cndmask_b32 {v(vSc0+1)}, {v(c+5)}, 0, vcc
    v_sub_u32 {v(vInv)}, {s(sT)}, {v(vInv)}
    s_lshl_b32 {s(sSlot)}, {s(sX)}, 12
    s_add_u32 {s(sSlot)}, {s(sSlot)}, {SLOT}
    s_lshl_b32 {s(sTabG)}, {s(sW)}, 9
    s_add_u32 {s(sTabG)}, {s(sTabG)}, {TABG+TABGR}
    s_mov_b32 {s(sPh)}, -1
    ''')

def main_loop():
    t=T
    S1,S2,S3=t,t+2,t+4
    a('L_top:')
    stamp()
    a(f'''
    v_pk_add_f32 {v(S1,2)}, {v(X,2)}, {v(X+2,2)}
    v_pk_add_f32 {v(t+6,2)}, {v(X+4,2)}, {v(X+6,2)}
    v_pk_mul_f32 {v(S2,2)}, {v(X,2)}, {v(X,2)}
    v_pk_mul_f32 {v(S3,2)}, {v(X,2)}, {v(WV,2)} op_sel:[0,0] op_sel_hi:[1,0]
    v_pk_add_f32 {v(S1,2)}, {v(S1,2)}, {v(t+6,2)}
    v_pk_fma_f32 {v(S2,2)}, {v(X+2,2)}, {v(X+2,2)}, {v(S2,2)}
    v_pk_fma_f32 {v(S3,2)}, {v(X+2,2)}, {v(WV,2)}, {v(S3,2)} op_sel:[0,1,0] op_sel_hi:[1,1,1]
    v_add_f32_dpp {v(S1)}, {v(S1)}, {v(S1)} row_ror:8 row_mask:0xf bank_mask:0x3
    v_pk_fma_f32 {v(S2,2)}, {v(X+4,2)}, {v(X+4,2)}, {v(S2,2)}
    v_pk_fma_f32 {v(S3,2)}, {v(X+4,2)}, {v(WV+2,2)}, {v(S3,2)} op_sel:[0,0,0] op_sel_hi:[1,0,1]
    v_add_f32_dpp {v(S1)}, {v(S1+1)}, {v(S1+1)} row_ror:8 row_mask:0xf bank_mask:0xc
    v_pk_fma_f32 {v(S2,2)}, {v(X+6,2)}, {v(X+6,2)}, {v(S2,2)}
    v_pk_fma_f32 {v(S3,2)}, {v(X+6,2)}, {v(WV+2,2)}, {v(S3,2)} op_sel:[0,1,0] op_sel_hi:[1,1,1]
    s_cmp_eq_u32 {s(sIt)}, 0
    s_cbranch_scc1 L_s3w
    L_s3ok:
    v_add_f32_dpp {v(S1)}, {v(S1)}, {v(S1)} row_half_mirror row_mask:0xf bank_mask:0x5
    v_add_f32_dpp {v(S2)}, {v(S2)}, {v(S2)} row_ror:8 row_mask:0xf bank_mask:0x3
    v_add_f32_dpp {v(S3)}, {v(S3)}, {v(S3)} row_ror:8 row_mask:0xf bank_mask:0x3
    v_add_f32_dpp {v(S2)}, {v(S2+1)}, {v(S2+1)} row_ror:8 row_mask:0xf bank_mask:0xc
    v_add_f32_dpp {v(S3)}, {v(S3+1)}, {v(S3+1)} row_ror:8 row_mask:0xf bank_mask:0xc
    v_add_f32_dpp {v(S1)}, {v(S2)}, {v(S2)} row_half_mirror row_mask:0xf bank_mask:0xa
    v_add_f32_dpp {v(S3)}, {v(S3)}, {v(S3)} row_half_mirror {DPP}
    v_add_f32_dpp {v(S1)}, {v(S1)}, {v(S1)} quad_perm:[1,0,3,2] {DPP}
    v_add_f32_dpp {v(S3)}, {v(S3)}, {v(S3)} quad_perm:[1,0,3,2] {DPP}
    v_add_f32_dpp {v(S1)}, {v(S1)}, {v(S1)} quad_perm:[2,3,0,1] {DPP}
    v_add_f32_dpp {v(S3)}, {v(S3)}, {v(S3)} quad_perm:[2,3,0,1] {DPP}
    s_mov_b64 exec, {s(sQmask,2)}
    ds_write2_b32 {v(vStW)}, {v(S1)}, {v(S3)} offset0:0 offset1:32
    s_mov_b64 exec, -1
    ;@F
    s_waitcnt {'' if cfg.late else 'vmcnt(0)' if cfg.tch==1 else 'vmcnt(2)'} lgkmcnt(0)
    s_barrier
    ;@F
    ds_read_b128 {v(t,4)}, {v(vStR)}
    ds_read_b128 {v(t+4,4)}, {v(vStR)} offset:16
    s_waitcnt lgkmcnt(0)
    v_pk_add_f32 {v(t,2)}, {v(t,2)}, {v(t+2,2)}
    v_pk_add_f32 {v(t+4,2)}, {v(t+4,2)}, {v(t+6,2)}
    v_pk_add_f32 {v(t,2)}, {v(t,2)}, {v(t+4,2)}
    v_add_f32 {v(t)}, {v(t)}, {v(t+1)}
    v_mul_f32 {v(t+7)}, {s(sK512)}, {v(t)}
    ''')
    VAR,RS,CC,NM=t+8,t+10,t+12,t+14
    K=t+16
    a(f'''
    v_mov_b32_dpp {v(MM)}, {v(t+7)} row_newbcast:0 {DPP}
    v_mov_b32_dpp {v(MM+1)}, {v(t+7)} row_newbcast:1 {DPP}
    v_mov_b32_dpp {v(S2)}, {v(t+7)} row_newbcast:2 {DPP}
    v_mov_b32_dpp {v(S2+1)}, {v(t+7)} row_newbcast:3 {DPP}
    v_mov_b32_dpp {v(S3)}, {v(t+7)} row_newbcast:4 {DPP}
    v_pk_fma_f32 {v(VAR,2)}, {v(MM,2)}, {v(MM,2)}, {v(S2,2)} neg_lo:[1,0,0] neg_hi:[1,0,0]
    v_mov_b32_dpp {v(S3+1)}, {v(t+7)} row_newbcast:5 {DPP}
    v_pk_add_f32 {v(S1,2)}, {v(VAR,2)}, {s(sEps,2)}
    s_cmp_eq_u32 {s(sIt)}, 0
    v_rsq_f32_e64 {v(RS)}, |{v(S1)}|
    v_rsq_f32_e64 {v(RS+1)}, |{v(S1+1)}|
    s_cbranch_scc1 L_it0 ;!nd
    v_pk_mul_f32 {v(S3,2)}, {v(S3,2)}, {v(RS,2)}
    v_add_u32 {v(K+2)}, 0xffffff00, {v(vInv)}
    v_ashrrev_i32 {v(K)}, 31, {v(S3)}
    v_ashrrev_i32 {v(K+1)}, 31, {v(S3+1)}
    v_bitop3_b32 {v(K)}, {v(S3)}, {v(K)}, {s(sTop)} bitop3:0x1e
    v_bitop3_b32 {v(K+1)}, {v(S3+1)}, {v(K+1)}, {s(sTop)} bitop3:0x1e
    v_bfi_b32 {v(K)}, {s(sM7FF)}, {v(vInv)}, {v(K)}
    v_bfi_b32 {v(K+1)}, {s(sM7FF)}, {v(K+2)}, {v(K+1)}
    v_max_u32 {v(K+1)}, {v(K)}, {v(K+1)}
    v_pk_add_f32 {v(CC,2)}, {v(RS,2)}, 1.0 op_sel_hi:[1,0]
    v_mov_b32 {v(K)}, {s(sTag)}
    v_max_u32_dpp {v(K+1)}, {v(K+1)}, {v(K+1)} row_bcast:15 row_mask:0xa bank_mask:0xf
    v_pk_mul_f32 {v(VAR,2)}, {v(VAR,2)}, {v(CC,2)}
    s_cmp_lg_u32 {s(sW)}, 0
    v_max_u32_dpp {v(K+1)}, {v(K+1)}, {v(K+1)} row_bcast:31 row_mask:0xc bank_mask:0xf
    s_cbranch_scc1 L_nost ;!nd
    s_mov_b32 exec_lo, 0
    s_mov_b32 exec_hi, {s(sTop)}
    s_cmp_eq_u32 {s(sFast)}, 0
    s_cbranch_scc1 L_tabst_slow ;!nd
    buffer_store_dwordx2 {v(K,2)}, off, {WS}, {s(sTabSt)}
    L_tabst_back:
    s_mov_b64 exec, -1
    L_nost:
    v_readlane_b32 {s(sKey)}, {v(K+1)}, 63
    v_pk_mul_f32 {v(NM,2)}, {v(MM,2)}, {v(RS,2)}
    v_pk_fma_f32 {v(VAR,2)}, {v(VAR,2)}, {v(CC,2)}, {s(sEps,2)}
    ''')
    Z=t+18
    for c_ in range(4):
        a(f'v_pk_fma_f32 {v(Z+2*c_,2)}, {v(X+2*c_,2)}, {v(RS,2)}, {v(NM,2)} neg_lo:[0,0,1] neg_hi:[0,0,1]')
        if c_==0: a(f'v_rsq_f32_e64 {v(RS2)}, |{v(VAR)}|')
        if c_==1: a(f'v_rsq_f32_e64 {v(RS2+1)}, |{v(VAR+1)}|')
    for c_ in range(4):
        a(f'v_pk_add_f32 {v(X+2*c_,2)}, {v(X+2*c_,2)}, {v(Z+2*c_,2)}')
    for rho in (0,1):
        for k in (0,1):
            a(f'v_cvt_pk_bf16_f32 {v(LNP+2*rho+k)}, {v(Z+4*k+rho)}, {v(Z+4*k+2+rho)}')
    a(f'''
    s_cmp_eq_u32 {s(sIt)}, 2
    s_cbranch_scc1 L_tab ;!nd
    v_pk_mul_f32 {v(CC,2)}, {v(RS2,2)}, {s(sC16,2)}
    L_z:
    ;@F
    ''')
    ZP=t; D0=t+4; D1=t+8
    a(f'v_pk_mul_f32 {v(NM,2)}, {v(MM,2)}, {v(CC,2)}')
    for c_ in range(4):
        a(f'v_pk_fma_f32 {v(Z+2*c_,2)}, {v(X+2*c_,2)}, {v(CC,2)}, {v(NM,2)} neg_lo:[0,0,1] neg_hi:[0,0,1]')
    for c_ in range(4): a(f'v_cvt_pk_f16_f32 {v(ZP+c_)}, {v(Z+2*c_)}, {v(Z+2*c_+1)}')
    a(f'''
    v_mfma_f32_16x16x16_f16 {v(D0,4)}, {v(A8,2)}, {v(ZP,2)}, 0
    v_mfma_f32_16x16x16_f16 {v(D1,4)}, {v(A8,2)}, {v(ZP+2,2)}, 0
    s_nop 6
    v_cvt_pk_f16_f32 {v(ZP)}, {v(D0)}, {v(D0+1)}
    v_cvt_pk_f16_f32 {v(ZP+1)}, {v(D1)}, {v(D1+1)}
    v_cvt_pk_f16_f32 {v(ZP+2)}, {v(D0+2)}, {v(D0+3)}
    v_cvt_pk_f16_f32 {v(ZP+3)}, {v(D1+2)}, {v(D1+3)}
    ds_write_b64 {v(vUW)}, {v(ZP,2)}
    ds_write_b64 {v(vUW)}, {v(ZP+2,2)} offset:1024
    ;@F
    s_waitcnt lgkmcnt(0)
    s_barrier
    ;@F
    ds_read_b64_tr_b16 {v(t,2)}, {v(vUR)}
    ds_read_b64_tr_b16 {v(t+2,2)}, {v(vUR)} offset:512
    ds_read_b64_tr_b16 {v(t+4,2)}, {v(vUR)} offset:1024
    ds_read_b64_tr_b16 {v(t+6,2)}, {v(vUR)} offset:1536
    s_cmp_eq_u32 {s(sIt)}, 0
    s_cbranch_scc1 L_tg2 ;!nd
    buffer_load_dwordx2 {v(t+24,2)}, {v(vL8)}, {WS}, {s(sTabLd)} offen sc1
    v_lshlrev_b32 {v(vTG)}, 1, {v(vL8)}
    buffer_load_dword {v(vTG)}, {v(vTG)}, {WS}, {s(sTabG)} offen sc1
    L_tg2:
    s_waitcnt lgkmcnt(0)
    ;@F
    ''')
    P=t
    fft_core(t, t+4, t+8, t+16, t+8, P)
    for r in range(4): a(f'v_bfi_b32 {v(P+r)}, 1, {s(sPh)}, {v(P+r)}')
    def lstores(fl):
        for r in range(4): a(f'buffer_store_dword {v(P+r)}, {v(vLst)}, {WS}, {s(sLst)} offen offset:{128*r} {fl}')
    TB=t+24
    W_=t+4
    a(f'''
    s_cmp_lg_u32 {s(sIt)}, 0
    s_cbranch_scc1 L_tabw1
    ''')
    lstores('')
    stamp()
    a(f'''
    s_branch L_pub
    L_tab:
    buffer_load_dwordx2 {v(TB,2)}, {v(vL8)}, {WS}, {s(sTabLd)} offen sc1
    L_tabw:
    s_waitcnt vmcnt(0)
    L_tabw1:
    s_waitcnt vmcnt(1)
    v_cmp_ne_u32 vcc, {s(sTag)}, {v(TB)}
    ''')
    poll_branch('L_tab', 1, f'''s_cmp_lg_u32 {s(sIt)}, 0
        s_cselect_b32 {s(sT)}, 0, 1
        s_sub_u32 {s(sTry)}, {s(sTry)}, {s(sT)}
        s_cbranch_scc1 L_tab2''')
    a(f'''
    L_tabok:
    s_cmp_eq_u32 {s(sIt)}, 0
    s_cbranch_scc1 L_fastchk
    v_cmp_lt_u32 vcc, {s(sKey)}, {v(TB+1)}
    s_mov_b32 {s(sT+9)}, 64
    s_cbranch_vccnz L_winback
    L_pub:
    s_andn2_b32 {s(sT)}, {s(sM7FF)}, {s(sKey)}      ; idx
    s_lshr_b32 {s(sT+9)}, {s(sT)}, 8                ; s1
    s_bitcmp1_b32 {s(sT+9)}, 0
    s_cselect_b64 vcc, -1, 0
    s_lshl_b32 {s(sT+1)}, {s(sT+9)}, 3
    s_and_b32 {s(sT+1)}, {s(sT+1)}, 0x30
    v_cndmask_b32 {v(W_)}, {v(LNP)}, {v(LNP+2)}, vcc
    v_cndmask_b32 {v(W_+1)}, {v(LNP+1)}, {v(LNP+3)}, vcc
    v_and_b32 {v(W_+2)}, 0x3ff, {v(vXoff)}
    s_bfm_b64 exec, 16, {s(sT+1)}
    buffer_store_dwordx2 {v(W_,2)}, {v(W_+2)}, {WS}, {s(sSlot)} offen sc1
    s_cmp_lg_u32 {s(sW)}, 0
    s_cbranch_scc1 L_nohdr
    v_mov_b32 {v(W_+8)}, {s(sKey)}
    v_cndmask_b32 {v(W_+9)}, {v(MM)}, {v(MM+1)}, vcc
    v_cndmask_b32 {v(W_+10)}, {v(RS2)}, {v(RS2+1)}, vcc
    v_mov_b32 {v(W_+11)}, {s(sKey)}
    buffer_store_dwordx4 {v(W_+8,4)}, off, {WS}, {s(sSlot)} offset:3072 sc1
    L_nohdr:
    ''')
    for c_ in range(4): a(f'v_cndmask_b32 {v(W_+4+c_)}, {v(X+2*c_)}, {v(X+2*c_+1)}, vcc')
    a(f'''
    v_lshlrev_b32 {v(W_+2)}, 1, {v(W_+2)}
    buffer_store_dwordx4 {v(W_+4,4)}, {v(W_+2)}, {WS}, {s(sSlot)} offen offset:1024 sc1
    s_mov_b64 exec, -1
    s_cmp_eq_u32 {s(sIt)}, 0
    s_cbranch_scc1 L_flag0
    L_winback:
    s_cmp_eq_u32 {s(sIt)}, 2
    s_cbranch_scc1 L_fin
    s_add_u32 {s(sSlot)}, {s(sSlot)}, {SLOTR}
    ''')
    lstores('')
    stamp()
    a(f'''
    s_waitcnt vmcnt(0)
    s_branch L_tabdone
    L_flag0:
    v_mov_b32 {v(vTG)}, {s(sTag)}
    s_sub_u32 {s(sT)}, {s(sTabSt)}, {TABL}
    s_lshr_b32 {s(sT)}, {s(sT)}, 1
    s_add_u32 {s(sT)}, {s(sT)}, {TABG}
    v_mov_b32 {v(t+22)}, {s(sTag)}
    v_mov_b32 {v(t+23)}, {s(sKey)}
    s_cmp_eq_u32 {s(sW)}, 0
    s_cselect_b32 {s(sT+1)}, {s(sTabSt)}, {WSSZ}
    s_cmp_eq_u32 {s(sW)}, 7
    s_cselect_b32 {s(sT)}, {s(sT)}, {WSSZ}
    s_mov_b64 exec, 1
    s_waitcnt vmcnt(0)
    s_barrier
    buffer_store_dwordx2 {v(t+22,2)}, off, {WS}, {s(sT+1)}
    s_mov_b64 exec, -1
    s_waitcnt vmcnt(0)
    buffer_load_dwordx2 {v(TB,2)}, {v(vL8)}, {WS}, {s(sTabLd)} offen sc1
    s_mov_b64 exec, 1
    buffer_store_dword {v(vTG)}, off, {WS}, {s(sT)} sc1
    s_mov_b64 exec, -1
    s_branch L_tabw1
    L_fastchk:
    v_cmp_ne_u32 vcc, {s(sKey)}, {v(TB+1)}
    s_nop 0
    s_cmp_eq_u64 vcc, 0
    s_cselect_b32 {s(sFast)}, 1, 0
    L_tabdone:
    s_cmp_eq_u32 {s(sFast)}, 0
    s_cbranch_scc1 L_slow
    L_slowback:
    ;@F
    s_cmp_lt_u32 {s(sJ)}, 8
    s_cbranch_scc0 L_y
    s_branch L_yself
    L_y:
    buffer_load_dwordx4 {v(t,4)}, {v(vLld)}, {WS}, {s(sLld)} offen sc1
    s_waitcnt vmcnt(0)
    ds_write_b128 {v(vYIW)}, {v(t,4)}
    ''')
    phchk(range(t,t+4), t+8)
    poll_branch('L_y', cfg.slp_l, mask=True)
    a('L_yjoin:')
    stamp()
    A0,A1=t,t+4; P0,Q0,P1,Q1=t+8,t+12,t+16,t+20
    a(f'''
    s_waitcnt lgkmcnt(0)
    s_barrier
    ;@F
    ds_read_b64_tr_b16 {v(A0,2)}, {v(vYIR)}
    ds_read_b64_tr_b16 {v(A0+2,2)}, {v(vYIR)} offset:{16*YIS}
    ds_read_b64_tr_b16 {v(A1,2)}, {v(vYIR)} offset:8
    ds_read_b64_tr_b16 {v(A1+2,2)}, {v(vYIR)} offset:{16*YIS+8}
    s_add_u32 {s(sTabLd)}, {s(sTabLd)}, {ARGR}
    s_add_u32 {s(sTabSt)}, {s(sTabSt)}, {ARGR}
    s_waitcnt lgkmcnt(2)
    v_mfma_f32_16x16x32_f16 {v(P0,4)}, {v(A0,4)}, {v(YC,4)}, 0
    v_mfma_f32_16x16x32_f16 {v(Q0,4)}, {v(A0,4)}, {v(YS,4)}, 0
    s_waitcnt lgkmcnt(0)
    v_mfma_f32_16x16x32_f16 {v(P1,4)}, {v(A1,4)}, {v(YC,4)}, 0
    v_mfma_f32_16x16x32_f16 {v(Q1,4)}, {v(A1,4)}, {v(YS,4)}, 0
    L_tabgw:
    v_cmp_ne_u32 vcc, {s(sTag)}, {v(vTG)}
    s_cbranch_vccnz L_tabg_r ;!nd
    ''')
    for P_,Q_ in ((P0,Q0),(P1,Q1)):
        for h in (0,2):
            a(f'v_pk_add_f32 {v(P_+h,2)}, {v(P_+h,2)}, {v(Q_+h,2)} op_sel:[0,1] op_sel_hi:[1,0] neg_hi:[0,1]')
    a(f'''
    v_cvt_pk_f16_f32 {v(t)}, {v(P0)}, {v(P0+1)}
    v_cvt_pk_f16_f32 {v(t+1)}, {v(P0+2)}, {v(P0+3)}
    v_cvt_pk_f16_f32 {v(t+2)}, {v(P1)}, {v(P1+1)}
    v_cvt_pk_f16_f32 {v(t+3)}, {v(P1+2)}, {v(P1+3)}
    ds_write_b128 {v(vYW)}, {v(t,4)}
    ;@F
    s_waitcnt lgkmcnt(0)
    s_barrier
    ;@F
    ds_read_b128 {v(t+4,4)}, {v(vYR)}
    s_waitcnt lgkmcnt(0)
    buffer_store_dwordx4 {v(t+4,4)}, {v(vGst)}, {WS}, {s(sG0)} offen sc1
    ''')
    stamp()
    a(f'''
    s_cmp_lg_u32 {s(sIt)}, 0
    s_cbranch_scc1 L_hdr
    v_lshlrev_b32 {v(t+24)}, 4, {v(vLane)}
    s_mov_b32 {s(sT+10)}, {TABG}
    ''')
    a(f'buffer_load_dwordx4 {v(t+20,4)}, {v(t+24)}, {WS}, {s(sT+10)} offen sc1')
    xin_consts(t+8)
    a('L_tg0w:\ns_waitcnt vmcnt(0)')
    tag4chk(t+20)
    a(f'''
    s_cbranch_vccz L_g ;!nd
    s_branch L_tg0_r
    L_g:
    ''')
    C0,C1=t,t+4
    a(f'''
    buffer_load_dwordx4 {v(C0,4)}, {v(vGld)}, {WS}, {s(sG0)} offen sc1
    buffer_load_dwordx4 {v(C1,4)}, {v(vGld)}, {WS}, {s(sG4)} offen sc1
    s_cmp_lg_u32 {s(sMir)}, 0
    s_waitcnt vmcnt(0)
    s_cbranch_scc1 L_xmir ;!nd
    ''')
    E0,E1=t+8,t+12
    a(f'''
    v_mfma_f32_16x16x16_f16 {v(E0,4)}, {v(XA,2)}, {v(C0,2)}, 0
    v_mfma_f32_16x16x16_f16 {v(E1,4)}, {v(XA,2)}, {v(C0+2,2)}, 0
    v_mfma_f32_16x16x16_f16 {v(E0,4)}, {v(XA+2,2)}, {v(C1,2)}, {v(E0,4)}
    v_mfma_f32_16x16x16_f16 {v(E1,4)}, {v(XA+2,2)}, {v(C1+2,2)}, {v(E1,4)}
    s_branch L_xjoin ;!nd
    L_xmir:
    ''')
    a.hist=[]
    a(f'''
    v_mfma_f32_16x16x16_f16 {v(E0,4)}, {v(XA,2)}, {v(C0+2,2)}, 0
    v_mfma_f32_16x16x16_f16 {v(E1,4)}, {v(XA,2)}, {v(C0,2)}, 0
    v_mfma_f32_16x16x16_f16 {v(E0,4)}, {v(XA+2,2)}, {v(C1+2,2)}, {v(E0,4)}
    v_mfma_f32_16x16x16_f16 {v(E1,4)}, {v(XA+2,2)}, {v(C1,2)}, {v(E1,4)}
    L_xjoin:
    ''')
    maxchk(range(t,t+8), t+16)
    poll_branch('L_g', cfg.slp_g, mask=True)
    stamp()
    a(f'''
    s_cmp_lg_u32 {s(sIt)}, 0
    s_mov_b32 {s(sIt)}, 1
    s_cbranch_scc1 L_corr ;!nd
    s_add_u32 {s(sG0)}, {s(sG0)}, {GR}
    s_add_u32 {s(sG4)}, {s(sG4)}, {GR}
    L_corrback:
    v_pk_fma_f32 {v(X,2)}, {v(E0,2)}, {v(vSc0,2)}, {v(X,2)}
    v_pk_fma_f32 {v(X+2,2)}, {v(E0+2,2)}, {s(sSc,2)}, {v(X+2,2)}
    v_pk_fma_f32 {v(X+4,2)}, {v(E1,2)}, {s(sSc,2)}, {v(X+4,2)}
    v_pk_fma_f32 {v(X+6,2)}, {v(E1+2,2)}, {s(sSc,2)}, {v(X+6,2)}
    s_branch L_top ;!nd
    ''')
    a(f'''
    L_yself:
    buffer_load_dwordx4 {v(t,4)}, {v(vLld)}, {WS}, {s(sLld)} offen sc1
    buffer_load_dwordx4 {v(t+4,4)}, {v(vLldM)}, {WS}, {s(sLld)} offen sc1
    s_waitcnt vmcnt(0)
    ''')
    phchk(range(t,t+8), t+8)
    poll_branch('L_yself', cfg.slp_l, mask=True)
    a(f'''
    s_bitcmp1_b32 {s(sW)}, 0
    s_cbranch_scc1 L_yself4
    ''')
    for k in range(4): a(f'v_pk_add_f16 {v(t+k)}, {v(t+k)}, {v(t+7-k)} neg_hi:[0,1]')
    a(f'ds_write_b128 {v(vYIW)}, {v(t,4)}\ns_branch L_yjoin\nL_yself4:')
    for k in range(4): a(f'v_pk_add_f16 {v(t+k)}, {v(t+k)}, {v(t+7-k)} op_sel:[1,1] op_sel_hi:[0,0] neg_hi:[1,0]')
    a(f'ds_write_b128 {v(vYIW)}, {v(t,4)}\ns_branch L_yjoin')
    a(f'''
    L_s3w:
    v_pk_add_f32 {v(S3,2)}, {v(WV,2)}, {v(WV+2,2)}
    v_add_f32 {v(S3)}, {v(S3)}, {v(S3+1)}
    v_mov_b32 {v(S3+1)}, {v(S3)}
    s_branch L_s3ok
    L_it0:
    s_mov_b32 {s(sKey)}, {s(sXcc)}
    v_pk_mul_f32 {v(CC,2)}, {v(RS,2)}, {s(sC16,2)}
    v_mov_b32 {v(S1)}, 0x44000000
    v_pk_add_f32 {v(WV,2)}, {v(WV,2)}, {v(S3,2)} neg_lo:[0,1] neg_hi:[0,1]
    v_pk_add_f32 {v(WV+2,2)}, {v(WV+2,2)}, {v(S3,2)} neg_lo:[0,1] neg_hi:[0,1]
    v_pk_mul_f32 {v(WV,2)}, {v(WV,2)}, {v(S1,2)} op_sel_hi:[1,0]
    v_pk_mul_f32 {v(WV+2,2)}, {v(WV+2,2)}, {v(S1,2)} op_sel_hi:[1,0]
    ''')
    a('s_branch L_z')
    H=t+8
    sIdx=sT+11
    a(f'''
    L_hdr:
    v_and_b32 {v(t+16)}, 7, {v(vLane)}
    v_lshlrev_b32 {v(t+16)}, 12, {v(t+16)}
    s_mov_b32 {s(sT+10)}, {SLOT}
    s_mov_b64 exec, 0xff
    L_hdrp:
    buffer_load_dwordx4 {v(H,4)}, {v(t+16)}, {WS}, {s(sT+10)} offen offset:3072 sc1
    s_waitcnt vmcnt(0)
    ''')
    maxchk(range(H,H+4), t+17)
    poll_branch('L_hdrp', 2, skip=True)
    a(f'''
    s_mov_b64 exec, -1
    v_max_u32_dpp {v(H+3)}, {v(H)}, {v(H)} row_half_mirror {DPP}
    v_max_u32_dpp {v(H+3)}, {v(H+3)}, {v(H+3)} quad_perm:[1,0,3,2] {DPP}
    v_max_u32_dpp {v(H+3)}, {v(H+3)}, {v(H+3)} quad_perm:[2,3,0,1] {DPP}
    v_readfirstlane_b32 {s(sIdx)}, {v(H+3)}
    v_lshlrev_b32 {v(t+16)}, 5, {v(vLane)}
    s_andn2_b32 {s(sIdx)}, {s(sM7FF)}, {s(sIdx)}
    s_and_b32 {s(sT)}, {s(sIdx)}, 7
    s_lshl_b32 {s(sT+1)}, {s(sT)}, 12
    s_add_u32 {s(sT+10)}, {s(sT+10)}, {s(sT+1)}
    v_readlane_b32 {s(sT+13)}, {v(H+1)}, {s(sT)}
    v_readlane_b32 {s(sT+14)}, {v(H+2)}, {s(sT)}
    v_mul_u32_u24 {v(t+17)}, {s(sIdx)}, {v(AD)}
    v_and_b32 {v(t+17)}, 0x7ff, {v(t+17)}
    v_cvt_f32_u32 {v(t+17)}, {v(t+17)}
    v_mul_f32 {v(t+17)}, {fbits(1/2048)}, {v(t+17)}
    v_cos_f32 {v(t+18)}, {v(t+17)}
    v_sin_f32 {v(t+19)}, {v(t+17)}
    v_and_b32 {v(t+17)}, 0x32, {v(vLane)}
    v_cvt_pk_f16_f32 {v(t+18)}, {v(t+18)}, {v(t+19)}
    v_cmp_eq_u32 vcc, 0, {v(t+17)}
    s_sub_u32 {s(sT)}, 2047, {s(sIdx)}
    s_add_u32 {s(sT+1)}, {s(sT)}, 256
    v_cndmask_b32 {v(AD)}, 0, {v(t+18)}, vcc
    v_cmp_eq_u32 vcc, 2, {v(t+17)}
    v_mov_b32 {v(BC+10)}, {s(sT+14)}
    v_mul_f32 {v(BC+10)}, {s(sDsc)}, {v(BC+10)}         ; rs2*dsc
    v_cndmask_b32 {v(AD+1)}, 0, {v(t+18)}, vcc
    v_cmp_eq_u32 vcc, {s(sT)}, {v(vInv)}
    v_cndmask_b32 {v(BC)}, 0, 1.0, vcc
    v_cmp_eq_u32 vcc, {s(sT+1)}, {v(vInv)}
    v_cndmask_b32 {v(BC+1)}, 0, 1.0, vcc
    ''')
    if cfg.post:
        a(f'''
        s_cmp_lt_u32 {s(sJ)}, {28 if cfg.post==1 else 0}
        s_cbranch_scc1 L_g
        s_cmp_lg_u32 {s(sW)}, 0
        s_cbranch_scc1 L_postb
        s_lshl_b32 {s(sT)}, {s(sX)}, 7
        s_add_u32 {s(sT)}, {s(sT)}, {YHINT}
        v_and_b32 {v(t+16)}, 3, {v(vLane)}
        v_lshlrev_b32 {v(t+16)}, 2, {v(t+16)}
        s_movk_i32 {s(sTry)}, 500
        L_post:
        buffer_load_dword {v(t+17)}, {v(t+16)}, {WS}, {s(sT)} offen sc1
        s_waitcnt vmcnt(0)
        v_cmp_ne_u32 vcc, {s(sTag)}, {v(t+17)}
        ''')
        poll_branch('L_post', 2, giveup='L_postb')
        a('L_postb:\ns_barrier')
    a(f'''
    s_branch L_g
    ''')
    Y=t+16; YX=t; u=t+4
    vDW,vDR=BC+12,BC+13
    a(f'''
    L_corr:
    s_mov_b32 {s(sIt)}, 2
    v_and_b32 {v(u)}, 3, {v(vLane)}
    v_lshlrev_b32 {v(u)}, 2, {v(u)}
    v_lshrrev_b32 {v(u+2)}, 2, {v(vN)}
    v_lshlrev_b32 {v(u+2)}, 7, {v(u+2)}
    v_lshl_add_u32 {v(u+2)}, {v(u)}, 2, {v(u+2)}          ; (n>>2)*128+(n&3)*16
    s_lshl_b32 {s(sT+1)}, {s(sW)}, 9
    s_add_u32 {s(sT+1)}, {s(sT+1)}, {YBUF}
    s_and_b32 {s(sT+4)}, {s(sIdx)}, 255
    s_cmp_eq_u32 {s(sT+4)}, s2
    s_cselect_b32 {s(sT+1)}, {s(sT+1)}, {WSSZ}
    s_lshl_b32 {s(sT+3)}, {s(sW)}, 8
    s_add_u32 {s(sT+3)}, {s(sT+3)}, {L_DH}
    v_lshl_add_u32 {v(vDR)}, {v(vN)}, 4, {s(sT+3)}
    s_cmp_gt_u32 {s(sW)}, 1
    s_cbranch_scc1 L_yv2b
    v_lshlrev_b32 {v(u+1)}, 4, {v(vLane)}
    L_basep:
    buffer_load_dwordx4 {v(BC+2,4)}, {v(u+1)}, {WS}, {s(sT+10)} offen offset:1024 sc1
    buffer_load_dwordx4 {v(BC+6,4)}, {v(u+1)}, {WS}, {s(sT+10)} offen offset:2048 sc1
    s_waitcnt vmcnt(0)
    ''')
    maxchk(range(BC+2,BC+10), u+3)
    poll_branch('L_basep', 2, skip=True)
    for k in range(8): a(f'v_subrev_f32 {v(BC+2+k)}, {s(sT+13)}, {v(BC+2+k)}')
    a(f'''
    s_lshl_b32 {s(sT)}, {s(sX)}, 7
    s_add_u32 {s(sT)}, {s(sT)}, {YHINT}
    v_lshl_add_u32 {v(u+1)}, {v(vQ)}, 9, {v(u+2)}         ; (l>>2)*128+(l&3)*16
    s_mov_b32 {s(sT+2)}, {YBUF}
    s_lshl_b32 {s(sT+3)}, {s(sW)}, 10
    s_add_u32 {s(sT+3)}, {s(sT+3)}, {L_U}
    v_lshl_add_u32 {v(t+25)}, {v(vLane)}, 3, {s(sT+3)}
    s_lshl_b32 {s(sT+3)}, {s(sW)}, 6
    s_add_u32 {s(sT+3)}, {s(sT+3)}, {L_DH}
    v_lshl_add_u32 {v(vDW)}, {v(vQ)}, 9, {s(sT+3)}
    v_lshl_add_u32 {v(vDW)}, {v(vN)}, 2, {v(vDW)}
    s_cmp_lg_u32 {s(sW)}, 0
    s_cbranch_scc1 L_hintb
    s_movk_i32 {s(sTry)}, 500
    L_hint:
    buffer_load_dword {v(u+3)}, {v(u)}, {WS}, {s(sT)} offen sc1
    s_waitcnt vmcnt(0)
    v_cmp_ne_u32 vcc, {s(sTag)}, {v(u+3)}
    ''')
    poll_branch('L_hint', 1, giveup='L_hintb')
    if cfg.tim_y: a(f's_sleep {cfg.tim_y}')
    a(f'''
    L_hintb:
    s_barrier
    L_yv:
    buffer_load_dwordx4 {v(Y,4)}, {v(u+1)}, {WS}, {s(sT+2)} offen sc1
    buffer_load_dwordx4 {v(Y+4,4)}, {v(u+1)}, {WS}, {s(sT+2)} offen offset:2048 sc1
    buffer_load_dwordx4 {v(YX,4)}, {v(u+2)}, {WS}, {s(sT+1)} offen sc1
    s_waitcnt vmcnt(0)
    ''')
    maxchk(list(range(Y,Y+8))+list(range(YX,YX+4)), u+3)
    poll_branch('L_yv', 1, mask=True)
    stamp()
    for k in range(4): a(f'v_pk_add_f32 {v(Y+2*k,2)}, {v(Y+2*k,2)}, {v(BC+2+2*k,2)}')
    s1,s2=u,u+2
    own=[f'v_pk_fma_f32 {v(X,2)}, {v(BC,2)}, {v(YX,2)}, {v(X,2)} op_sel:[0,0,0] op_sel_hi:[1,0,1]',
         f'v_pk_fma_f32 {v(X+2,2)}, {v(BC,2)}, {v(YX,2)}, {v(X+2,2)} op_sel:[0,1,0] op_sel_hi:[1,1,1]',
         f'v_pk_fma_f32 {v(X+4,2)}, {v(BC,2)}, {v(YX+2,2)}, {v(X+4,2)} op_sel:[0,0,0] op_sel_hi:[1,0,1]',
         f'v_pk_fma_f32 {v(X+6,2)}, {v(BC,2)}, {v(YX+2,2)}, {v(X+6,2)} op_sel:[0,1,0] op_sel_hi:[1,1,1]']
    a(f'''
    v_pk_add_f32 {v(s1,2)}, {v(Y,2)}, {v(Y+2,2)}
    v_pk_mul_f32 {v(s2,2)}, {v(Y,2)}, {v(Y,2)}
    v_pk_add_f32 {v(s1,2)}, {v(s1,2)}, {v(Y+4,2)}
    v_pk_fma_f32 {v(s2,2)}, {v(Y+2,2)}, {v(Y+2,2)}, {v(s2,2)}
    v_pk_add_f32 {v(s1,2)}, {v(s1,2)}, {v(Y+6,2)}
    v_pk_fma_f32 {v(s2,2)}, {v(Y+4,2)}, {v(Y+4,2)}, {v(s2,2)}
    v_add_f32 {v(s1)}, {v(s1)}, {v(s1+1)}
    v_pk_fma_f32 {v(s2,2)}, {v(Y+6,2)}, {v(Y+6,2)}, {v(s2,2)}
    v_add_f32 {v(s2)}, {v(s2)}, {v(s2+1)}
    {own[0]}
    {own[1]}
    v_permlane32_swap_b32 {v(s1)}, {v(s2)}
    v_add_f32 {v(s1)}, {v(s1)}, {v(s2)}
    {own[2]}
    {own[3]}
    v_add_f32_dpp {v(s1)}, {v(s1)}, {v(s1)} row_ror:8 {DPP}
    v_pk_mul_f32 {v(BC+2,2)}, {v(BC+2,2)}, {v(BC+10,2)} op_sel_hi:[1,0]
    v_pk_mul_f32 {v(BC+4,2)}, {v(BC+4,2)}, {v(BC+10,2)} op_sel_hi:[1,0]
    v_add_f32_dpp {v(s1)}, {v(s1)}, {v(s1)} row_ror:4 {DPP}
    v_pk_mul_f32 {v(BC+6,2)}, {v(BC+6,2)}, {v(BC+10,2)} op_sel_hi:[1,0]
    v_pk_mul_f32 {v(BC+8,2)}, {v(BC+8,2)}, {v(BC+10,2)} op_sel_hi:[1,0]
    v_add_f32_dpp {v(s1)}, {v(s1)}, {v(s1)} row_ror:2 {DPP}
    v_add_f32_dpp {v(s1)}, {v(s1)}, {v(s1)} row_ror:1 {DPP}
    v_add_f32_dpp {v(s1)}, {v(s1)}, {v(s1)} row_bcast:15 row_mask:0xa bank_mask:0xf
    v_mul_f32 {v(s1)}, {s(sK512)}, {v(s1)}
    v_readlane_b32 {s(sT+1)}, {v(s1)}, 31
    v_readlane_b32 {s(sT+2)}, {v(s1)}, 63
    v_mov_b32 {v(s2)}, {s(sT+1)}
    v_fma_f32 {v(s1)}, -{v(s2)}, {v(s2)}, {s(sT+2)}
    v_add_f32 {v(s1)}, {s(sEps)}, {v(s1)}
    v_rsq_f32_e64 {v(s1)}, |{v(s1)}|
    v_mul_f32 {v(s1)}, {s(sDsc)}, {v(s1)}
    ''')
    for k in range(4):
        a(f'v_pk_fma_f32 {v(Y+2*k,2)}, {v(Y+2*k,2)}, {v(s1,2)}, {v(BC+2+2*k,2)} op_sel_hi:[1,0,1] neg_lo:[0,0,1] neg_hi:[0,0,1]')
    for k in range(4): a(f'v_cvt_pk_f16_f32 {v(t+k)}, {v(Y+2*k)}, {v(Y+2*k+1)}')
    a(f'''
    ds_write2st64_b64 {v(t+25)}, {v(t,2)}, {v(t+2,2)} offset0:0 offset1:1
    ds_read_b64_tr_b16 {v(t+4,2)}, {v(t+25)}
    ds_read_b64_tr_b16 {v(t+6,2)}, {v(t+25)} offset:512
    s_waitcnt lgkmcnt(0)
    ;@F
    ''')
    fft_core(t+4, None, t+16, BC+2, t+16, t)
    a(f'''
    ds_write2_b32 {v(vDW)}, {v(t)}, {v(t+1)} offset0:0 offset1:32
    ds_write2_b32 {v(vDW)}, {v(t+2)}, {v(t+3)} offset0:64 offset1:96
    L_dhb:
    ;@F
    s_waitcnt lgkmcnt(0)
    s_barrier
    ;@F
    ds_read_b128 {v(t,4)}, {v(vDR)}
    s_waitcnt lgkmcnt(0)
    v_mfma_f32_16x16x16_f16 {v(E0,4)}, {v(AD,2)}, {v(t,2)}, {v(E0,4)}
    v_mfma_f32_16x16x16_f16 {v(E1,4)}, {v(AD,2)}, {v(t+2,2)}, {v(E1,4)}
    s_nop 5
    s_branch L_corrback ;!nd
    L_yv2b:
    s_barrier
    s_cmp_lg_u32 {s(sT+4)}, s2
    s_cbranch_scc1 L_yv3
    L_yv2:
    buffer_load_dwordx4 {v(YX,4)}, {v(u+2)}, {WS}, {s(sT+1)} offen sc1
    s_waitcnt vmcnt(0)
    ''')
    maxchk(range(YX,YX+4), u+3)
    poll_branch('L_yv2', 1, mask=True)
    a('\n'.join(own)+'\nL_yv3:')
    stamp(); fstamp()
    a('s_branch L_dhb')
    a('L_fin:')
    if cfg.odel: a(f's_sleep {cfg.odel}')
    for rho in (0,1):
        for k in (0,1):
            a(f'v_cvt_pk_bf16_f32 {v(t+2*rho+k)}, {v(X+4*k+rho)}, {v(X+4*k+2+rho)}')
    a(f'''
    v_lshlrev_b32 {v(t+16)}, 1, {v(vQ)}
    v_mov_b32 {v(t+19)}, 0x200000
    s_sub_u32 {s(sT)}, {s(sT+9)}, 1
    v_cmp_eq_u32 vcc, {s(sT+9)}, {v(t+16)}
    v_cndmask_b32 {v(t+17)}, {v(vXoff)}, {v(t+19)}, vcc
    v_cmp_eq_u32 vcc, {s(sT)}, {v(t+16)}
    v_cndmask_b32 {v(t+18)}, {v(vXoff)}, {v(t+19)}, vcc
    buffer_store_dwordx2 {v(t,2)}, {v(t+17)}, {OS}, {s(sRow0)} offen {'sc1' if cfg.osc else ''}
    buffer_store_dwordx2 {v(t+2,2)}, {v(t+18)}, {OS}, {s(sRow1)} offen {'sc1' if cfg.osc else ''}
    {f'v_lshlrev_b32 {v(t+21)}, 4, v0' if cfg.wb==2 else ''}
    {f'buffer_store_dwordx4 {v(t,4)}, {v(t+21)}, {WS}, {s(sLst)} offen sc1' if cfg.wb==2 else ''}
    s_or_b32 {s(sT)}, s2, {s(sW)}
    s_cbranch_scc1 L_fin2
    v_mov_b32 {v(t+20)}, {s(sTag)}
    buffer_store_dword {v(t+20)}, off, {WS}, 0 sc1
    L_fin2:
    ''')
    stamp(); dump_stamps()
    a('s_endpgm')
    def pub2():
        a(f'''
        v_mov_b32 {v(t+4)}, {s(sTag)}
        v_mov_b32 {v(t+5)}, {s(sXcc)}
        s_add_u32 {s(sT)}, {s(sTabSt)}, {TAB2-TABL}
        buffer_store_dwordx2 {v(t+4,2)}, off, {WS}, {s(sT)} sc1
        ''')
    a(f'''
    L_tabst_slow:
    buffer_store_dwordx2 {v(K,2)}, off, {WS}, {s(sTabSt)} sc1
    s_branch L_tabst_back
    L_tabg_r:
    s_sub_u32 {s(sCnt)}, {s(sCnt)}, 1
    s_cbranch_scc1 L_end
    s_sleep 2
    v_lshlrev_b32 {v(vTG)}, 1, {v(vL8)}
    buffer_load_dword {v(vTG)}, {v(vTG)}, {WS}, {s(sTabG)} offen sc1
    s_waitcnt vmcnt(0)
    s_branch L_tabgw
    L_tg0_r:
    s_sub_u32 {s(sCnt)}, {s(sCnt)}, 1
    s_cbranch_scc1 L_end
    s_sleep 4
    ''')
    a(f'buffer_load_dwordx4 {v(t+20,4)}, {v(t+24)}, {WS}, {s(sT+10)} offen sc1')
    a('s_branch L_tg0w\nL_tab2:')
    pub2()
    a(f'''
    s_add_u32 {s(sT+1)}, {s(sTabLd)}, {TAB2-TABL}
    L_tab2p:
    buffer_load_dwordx2 {v(TB,2)}, {v(vL8)}, {WS}, {s(sTabLd)} offen sc1
    buffer_load_dwordx2 {v(t+6,2)}, {v(vL8)}, {WS}, {s(sT+1)} offen sc1
    s_waitcnt vmcnt(0)
    v_cmp_eq_u32 vcc, {s(sTag)}, {v(TB)}
    v_cndmask_b32 {v(TB)}, {v(t+6)}, {v(TB)}, vcc
    v_cndmask_b32 {v(TB+1)}, {v(t+7)}, {v(TB+1)}, vcc
    v_cmp_ne_u32 vcc, {s(sTag)}, {v(TB)}
    ''')
    poll_branch('L_tab2p', 4)
    a(f'''
    s_branch L_tabok
    L_slow:
    s_cmp_lg_u32 {s(sIt)}, 0
    s_cbranch_scc1 L_slow1
    ''')
    pub2()
    a('L_slow1:')
    lstores('sc1')
    a(f'''
    s_waitcnt vmcnt(0)
    s_barrier
    s_add_u32 {s(sT)}, {s(sTabSt)}, {SLOWF-TABL}
    s_add_u32 {s(sT+1)}, {s(sTabLd)}, {SLOWF-TABL}
    v_mov_b32 {v(t+4)}, {s(sTag)}
    s_cmp_lg_u32 {s(sW)}, 0
    s_cbranch_scc1 L_slowp
    buffer_store_dword {v(t+4)}, off, {WS}, {s(sT)} sc1
    L_slowp:
    buffer_load_dword {v(t+5)}, {v(vL8)}, {WS}, {s(sT+1)} offen sc1
    s_waitcnt vmcnt(0)
    v_cmp_ne_u32 vcc, {s(sTag)}, {v(t+5)}
    ''')
    poll_branch('L_slowp', 2)
    a('s_branch L_slowback')

def hint_store(vreg, soff, lbl):
    a(f'''
    s_mov_b64 exec, 1
    s_cmp_eq_u32 {s(sFast)}, 0
    s_cbranch_scc1 {lbl}_s
    buffer_store_dword {v(vreg)}, off, {WS}, {s(soff)}
    s_branch {lbl}_d
    {lbl}_s:
    buffer_store_dword {v(vreg)}, off, {WS}, {s(soff)} sc1
    {lbl}_d:
    s_mov_b64 exec, -1
    ''')

def ffn():
    WB=4; t=40; h=74; PF=112
    vSl=32; vPW=33; vH=34; vHd=35; vTag=36; vPR=37; vTr=38; vWr=39; vXW=2; vXR=3
    sHm=sRow0
    sI=sJ; sFb=sLld; sRnd=sIt; sHo=sLst; sHH=sPh; sCb=sTabG; sYo=sG4
    def pf(m):
        r=[]
        if m&1: r.append(f'global_load_dwordx4 {v(PF,4)}, {v(PF+13)}, s[18:19]')
        if m&2: r.append(f'global_load_dwordx4 {v(PF+4,4)}, {v(PF+13)}, s[20:21]')
        if m&4: r.append(f'global_load_dwordx4 {v(PF+8,4)}, {v(PF+14)}, s[22:23]')
        return '\n'.join(r)
    g2clr=f'buffer_store_dwordx4 {v(SENT,4)}, {v(vPR)}, {WS}, {s(sG0)} offen sc1'
    a(f'''
    L_ffn:
    s_and_b32 {s(sI)}, {s(sJ)}, 31
    s_mul_i32 {s(sFb)}, {s(sX)}, 28
    s_add_u32 {s(sFb)}, {s(sFb)}, {s(sI)}
    s_lshl_b32 {s(sFb)}, {s(sFb)}, 4           ; fb*16
    v_mul_u32_u24 {v(vH)}, 3584, v0
    v_add_u32 {v(vH)}, {s(sFb)}, {v(vH)}
    s_cmp_ge_u32 {s(sI)}, 28
    s_waitcnt lgkmcnt(0)
    {f's_sleep {cfg.fdelay}' if cfg.fdelay else ''}
    s_cbranch_scc1 L_fng
    {f'global_load_dwordx4 {v(WB,4)}, {v(vH)}, s[18:19]' if cfg.early>=2 else ''}
    {f'global_load_dwordx4 {v(WB+4,4)}, {v(vH)}, s[20:21]' if cfg.early==2 else ''}
    L_fng:
    v_lshlrev_b32 {v(vPR)}, 4, v0
    v_lshrrev_b32 {v(t+1)}, 5, v0
    v_mul_u32_u24 {v(t+1)}, 3584, {v(t+1)}
    v_and_b32 {v(t+2)}, 0x1f0, {v(vPR)}
    s_mul_i32 {s(sT+4)}, {s(sI)}, {16*3584}
    s_mul_i32 {s(sT+5)}, {s(sX)}, 7
    s_lshr_b32 {s(sT+5)}, {s(sT+5)}, 1
    s_lshl_b32 {s(sT+5)}, {s(sT+5)}, 7
    s_add_u32 {s(sT+4)}, {s(sT+4)}, {s(sT+5)}
    v_add3_u32 {v(t+1)}, {v(t+1)}, {v(t+2)}, {s(sT+4)}
    v_lshrrev_b32 {v(t+2)}, 3, v0
    v_min_u32 {v(t+2)}, 55, {v(t+2)}
    v_lshlrev_b32 {v(t+2)}, 10, {v(t+2)}
    v_and_b32 {v(t+3)}, 0x70, {v(vPR)}
    s_mul_i32 {s(sT+4)}, {s(sI)}, {56*1024}
    s_lshl_b32 {s(sT+5)}, {s(sX)}, 7
    s_add_u32 {s(sT+4)}, {s(sT+4)}, {s(sT+5)}
    v_add3_u32 {v(t+2)}, {v(t+2)}, {v(t+3)}, {s(sT+4)}
    v_mov_b32 {v(PF+13)}, {v(t+1)}
    v_mov_b32 {v(PF+14)}, {v(t+2)}
    {pf(cfg.pfm)}
    buffer_load_dword {v(PF+12)}, off, {WS}, 0 sc1
    s_mul_i32 {s(sG0)}, {s(sX)}, {GS}
    s_lshl_b32 {s(sT+1)}, {s(sI)}, 13
    s_add_u32 {s(sG0)}, {s(sG0)}, {s(sT+1)}
    s_add_u32 {s(sG0)}, {s(sG0)}, {GBASE+GR}
    s_lshl_b32 {s(sCb)}, {s(sX)}, 2
    s_add_u32 {s(sCb)}, {s(sCb)}, {s(sI)}
    s_sub_u32 {s(sCb)}, {s(sCb)}, 28
    v_mov_b32 {v(h+8)}, 0x200000
    v_mov_b32 {v(vTag)}, 0
    v_and_b32 {v(h+3)}, 0x38, {v(vL8)}
    s_lshl_b32 {s(sT)}, {s(sW)}, 11
    v_lshl_add_u32 {v(vTr)}, {v(vQ)}, 8, {s(sT)}
    v_lshl_add_u32 {v(vTr)}, {v(vN)}, 3, {v(vTr)}
    v_and_b32 {v(vHd)}, 7, {v(vLane)}
    v_lshlrev_b32 {v(vHd)}, 12, {v(vHd)}
    s_mov_b32 {s(sFast)}, 0
    s_mov_b32 {s(sRnd)}, 2
    s_mov_b32 {s(sHo)}, {WSSZ}
    s_mov_b32 {s(sHH)}, {WSSZ}
    s_mov_b32 {s(sYo)}, {WSSZ}
    s_cmp_ge_u32 {s(sI)}, 28
    s_cbranch_scc1 L_fpb
    v_lshl_add_u32 {v(vWr)}, {v(vLane)}, 5, {s(sT)}
    v_lshrrev_b32 {v(vSl)}, 3, {v(vLane)}
    v_and_b32 {v(t+3)}, 0x70, {v(vPR)}
    v_mul_u32_u24 {v(vXW)}, 144, {v(vSl)}
    v_add3_u32 {v(vXW)}, {v(vXW)}, {v(t+3)}, {s(sT)}
    v_mul_u32_u24 {v(vXR)}, 9, {v(t+3)}
    v_lshl_add_u32 {v(vXR)}, {v(vQ)}, 4, {v(vXR)}
    v_add_u32 {v(vXR)}, {s(sT)}, {v(vXR)}
    s_lshl_b32 {s(sT)}, {s(sW)}, 7
    v_lshlrev_b32 {v(vSl)}, 12, {v(vSl)}
    v_add3_u32 {v(vSl)}, {v(vSl)}, {v(t+3)}, {s(sT)}
    s_cmp_eq_u32 {s(sW)}, 0
    s_cselect_b32 {s(sHm)}, 0xff, 0
    v_mov_b32 {v(t+8)}, 0
    s_lshl_b32 {s(sT)}, {s(sW)}, 10
    v_lshl_add_u32 {v(vPW)}, {v(vLane)}, 4, {s(sT)}
    s_branch {'L_fa_go' if cfg.dry else 'L_finit'}
    L_fpb:
    v_lshl_add_u32 {v(vWr)}, {v(vLane)}, 4, {s(sT)}
    v_lshl_add_u32 {v(vXR)}, {v(vQ)}, 4, {s(sT)}
    s_mul_i32 {s(sT)}, {s(sW)}, 448
    v_min_u32 {v(vH)}, 27, {v(vLane)}
    v_lshl_add_u32 {v(vH)}, {v(vH)}, 4, {s(sT)}
    s_lshl_b32 {s(sT)}, {s(sW)}, 2
    v_lshl_add_u32 {v(vPW)}, {v(vLane)}, 5, {s(sT)}
    s_mul_i32 {s(sT)}, {s(sW)}, {224*1024}
    s_lshl_b32 {s(sT+1)}, {s(sCb)}, 5
    s_add_u32 {s(sT)}, {s(sT)}, {s(sT+1)}
    v_lshrrev_b32 {v(vSl)}, 1, {v(vLane)}
    v_lshlrev_b32 {v(vSl)}, 10, {v(vSl)}
    v_and_b32 {v(t+3)}, 16, {v(vPR)}
    v_add3_u32 {v(vSl)}, {v(vSl)}, {v(t+3)}, {s(sT)}
    ''')
    for k in range(cfg.nb0):
        a(f'global_load_dwordx4 {v(WB+4*k,4)}, {v(vSl)}, s[22:23]')
        a(f'v_add_u32 {v(vSl)}, 0x8000, {v(vSl)}')
    a(f'''
    {'s_branch L_fb_go' if cfg.dry else ''}
    L_finit:
    s_mov_b32 {s(sRnd)}, 0
    s_mov_b32 {s(sSlot)}, {SLOT}
    s_mov_b32 {s(sHo)}, {HBUF}
    s_lshl_b32 {s(sHH)}, {s(sX)}, 7
    s_add_u32 {s(sHH)}, {s(sHH)}, {HHINT}
    s_mov_b32 {s(sYo)}, 0
    s_waitcnt vmcnt(0)
    v_add_u32 {v(vTag)}, 1, {v(PF+12)}
    {g2clr if cfg.clr2==0 else ''}
    v_readfirstlane_b32 {s(sTag)}, {v(vTag)}
    ''')
    if cfg.stamps: a(f's_mov_b32 {s(sStampI)}, 0')
    stamp()
    a(f'''
    s_cmp_lg_u32 {s(sW)}, 0
    s_cbranch_scc1 L_fgo
    s_mov_b32 {s(sTry)}, 60
    L_fl:
    buffer_load_dwordx2 {v(t,2)}, {v(vL8)}, {WS}, {s(sTabLd)} offen sc1
    s_waitcnt vmcnt(0)
    v_cmp_ne_u32 vcc, {s(sTag)}, {v(t)}
    ''')
    poll_branch('L_fl', 3, giveup='L_fgo', skip=True)
    a(f'''
    v_cmp_ne_u32 vcc, {s(sXcc)}, {v(t+1)}
    s_cbranch_vccnz L_fgo
    s_mov_b32 {s(sFast)}, 1
    {f's_sleep {cfg.gdelay}' if cfg.gdelay else ''}
    L_fgo:
    s_barrier
    {pf(((7 if cfg.early<2 else 4 if not cfg.nb0 else 0)|(2 if cfg.early==3 else 0))&~cfg.pfm)}
    {g2clr if cfg.clr2==1 else ''}
    ''')
    if cfg.early and cfg.early<3: a(f'''
    s_cmp_ge_u32 {s(sI)}, 28
    s_cbranch_scc1 L_fw_done
    {f'global_load_dwordx4 {v(WB,4)}, {v(vH)}, s[18:19]' if cfg.early==1 else ''}
    {f'global_load_dwordx4 {v(WB+4,4)}, {v(vH)}, s[20:21]' if cfg.early==1 else ''}
    {'s_waitcnt vmcnt(0)' if cfg.early==1 else ''}
    ds_write_b128 {v(vWr)}, {v(WB,4)} offset:8192
    ds_write_b128 {v(vWr)}, {v(WB+4,4)} offset:8208
    s_waitcnt lgkmcnt(0)
    ds_read_b64_tr_b16 {v(WB,2)}, {v(vTr)} offset:8192
    ds_read_b64_tr_b16 {v(WB+2,2)}, {v(vTr)} offset:8320
    ds_read_b64_tr_b16 {v(WB+4,2)}, {v(vTr)} offset:9216
    ds_read_b64_tr_b16 {v(WB+6,2)}, {v(vTr)} offset:9344
    ''')
    a(f'''
    ''')
    a(f'''
    L_fw_done:
    s_waitcnt vmcnt(0) lgkmcnt(0)
    s_barrier
    ''')
    stamp()
    a(f'''
    s_cmp_lg_u32 {s(sW)}, 1
    s_cbranch_scc1 L_fnt
    s_lshl_b32 {s(sT)}, s2, 4
    s_add_u32 {s(sT)}, {s(sT)}, {TABG+TABGR-4096}
    s_mov_b64 exec, 1
    buffer_store_dword {v(vTag)}, off, {WS}, {s(sT)} sc1
    s_mov_b64 exec, -1
    L_fnt:
    s_cmp_lg_u32 {s(sW)}, 0
    s_cbranch_scc1 L_fgb3
    s_cmp_eq_u32 {s(sFast)}, 0
    s_cbranch_scc1 L_fslowtab
    L_frnd:
    s_add_u32 {s(sTabLd)}, {s(sTabLd)}, {ARGR}
    s_cmp_lg_u32 {s(sW)}, 0
    s_cbranch_scc1 L_fbar
    s_cmp_eq_u32 {s(sFast)}, 0
    s_cbranch_scc1 L_ftd
    L_ftrig:
    buffer_load_dword {v(t)}, {v(vL8)}, {WS}, {s(sTabLd)} offen sc1
    s_waitcnt vmcnt(0)
    v_cmp_ne_u32 vcc, {s(sTag)}, {v(t)}
    ''')
    poll_branch('L_ftrig', 2)
    stamp()
    a(f'''
    L_ftd:
    s_cmp_eq_u32 {s(sRnd)}, 0
    s_cbranch_scc1 L_fgb2
    s_sleep {cfg.tim_arg}
    s_cmp_ge_u32 {s(sI)}, 28
    s_cbranch_scc1 L_fb0
    L_fbar:
    s_barrier
    s_cmp_ge_u32 {s(sI)}, 28
    s_cbranch_scc0 L_fslot
    s_branch L_fh
    L_fslot:
    buffer_load_dwordx4 {v(t+4,4)}, {v(vSl)}, {WS}, {s(sSlot)} offen sc1
    s_and_b32 exec_lo, exec_lo, {s(sHm)}
    s_mov_b32 exec_hi, 0
    s_cbranch_scc0 L_fnh
    buffer_load_dword {v(t+8)}, {v(vHd)}, {WS}, {s(sSlot)} offen offset:3072 sc1
    L_fnh:
    s_mov_b64 exec, -1
    L_fslotw:
    s_waitcnt vmcnt(0)
    ds_write_b128 {v(vXW)}, {v(t+4,4)} offset:8192
    ds_read_b128 {v(t+16,4)}, {v(vXR)} offset:8192
    ds_read_b128 {v(t+20,4)}, {v(vXR)} offset:8256
    ''')
    Dd=t+12
    maxchk(range(t+4,t+9), t+9)
    poll_branch('L_fslot', 2, pre='s_mov_b64 exec, vcc\ns_waitcnt lgkmcnt(0)')
    stamp()
    a(f'''
    L_fa_go:
    v_max_u32_dpp {v(t+9)}, {v(t+8)}, {v(t+8)} row_half_mirror {DPP}
    s_waitcnt lgkmcnt(1)
    v_mfma_f32_16x16x32_bf16 {v(Dd,4)}, {v(t+16,4)}, {v(WB,4)}, 0
    s_waitcnt lgkmcnt(0)
    v_mfma_f32_16x16x32_bf16 {v(Dd,4)}, {v(t+20,4)}, {v(WB+4,4)}, {v(Dd,4)}
    s_add_u32 {s(sT+1)}, {s(sHo)}, {s(sFb)}
    v_max_u32_dpp {v(t+9)}, {v(t+9)}, {v(t+9)} quad_perm:[1,0,3,2] {DPP}
    s_lshl_b32 {s(sT+2)}, {s(sI)}, 2
    v_lshlrev_b32 {v(t+10)}, 4, {v(vN)}
    v_max_u32_dpp {v(t+9)}, {v(t+9)}, {v(t+9)} quad_perm:[2,3,0,1] {DPP}
    s_add_u32 {s(sT+2)}, {s(sT+2)}, {s(sHH)}
    v_readfirstlane_b32 {s(sT)}, {v(t+9)}
    v_lshlrev_b32 {v(t+11)}, 1, {v(vN)}
    ds_write_b128 {v(vPW)}, {v(Dd,4)}
    s_andn2_b32 {s(sT+3)}, 4, {s(sT)}
    s_andn2_b32 {s(sT)}, 3, {s(sT)}
    s_lshl_b32 {s(sT+3)}, {s(sT+3)}, 6
    s_lshl2_add_u32 {s(sT)}, {s(sT)}, {s(sT+3)}
    v_add_u32 {v(t+10)}, {s(sT)}, {v(t+10)}
    ''')
    if cfg.ehint:
        a(f's_cmp_lg_u32 {s(sW)}, 0\ns_cbranch_scc1 L_fhh_d')
        hint_store(vTag, sT+2, 'L_fhh')
    a(f'''
    s_cmp_lg_u32 {s(sW)}, 0
    s_waitcnt lgkmcnt(0)
    s_barrier
    s_cbranch_scc1 L_fnext
    ds_read2st64_b32 {v(t,2)}, {v(t+10)} offset0:0 offset1:4
    ds_read2st64_b32 {v(t+2,2)}, {v(t+10)} offset0:8 offset1:12
    ds_read2st64_b32 {v(t+4,2)}, {v(t+10)} offset0:16 offset1:20
    ds_read2st64_b32 {v(t+6,2)}, {v(t+10)} offset0:24 offset1:28
    s_waitcnt lgkmcnt(2)
    v_pk_add_f32 {v(t,2)}, {v(t,2)}, {v(t+2,2)}
    s_waitcnt lgkmcnt(0)
    v_pk_add_f32 {v(t+4,2)}, {v(t+4,2)}, {v(t+6,2)}
    v_pk_add_f32 {v(t,2)}, {v(t,2)}, {v(t+4,2)}
    v_add_f32 {v(t)}, {v(t)}, {v(t+1)}
    v_mul_f32 {v(t+1)}, 0xbfb8aa3b, {v(t)}
    v_exp_f32 {v(t+1)}, {v(t+1)}
    v_mul_f32_dpp {v(t+2)}, {v(t)}, {v(t)} row_ror:8 {DPP}
    v_add_f32 {v(t+1)}, 1.0, {v(t+1)}
    v_rcp_f32 {v(t+1)}, {v(t+1)}
    v_mul_f32 {v(t+1)}, {v(t+1)}, {v(t+2)}
    v_mov_b32_dpp {v(t+2)}, {v(t+1)} quad_perm:[1,1,3,3] {DPP}
    s_mov_b64 exec, 0x55
    v_cvt_pk_bf16_f32 {v(t+1)}, {v(t+1)}, {v(t+2)}
    buffer_store_dword {v(t+1)}, {v(t+11)}, {WS}, {s(sT+1)} offen sc1
    ''')
    if cfg.ehint: a('s_mov_b64 exec, -1')
    else: hint_store(vTag, sT+2, 'L_fhh')
    a('L_fnext:')
    stamp()
    a(f'''
    s_cmp_eq_u32 {s(sRnd)}, 1
    s_cbranch_scc1 L_fend
    s_cmp_eq_u32 {s(sRnd)}, 2
    s_cbranch_scc1 L_finit
    ''')
    if cfg.wb==1: a(f'''
    s_cmp_lg_u32 {s(sI)}, 28
    s_cbranch_scc1 L_nwb
    s_cmp_lg_u32 {s(sW)}, 7
    s_cbranch_scc1 L_nwb
    s_sleep {cfg.wbd}
    buffer_wbl2 sc1
    L_nwb:
    ''')
    a(f'''
    s_mov_b32 {s(sRnd)}, 1
    s_add_u32 {s(sSlot)}, {s(sSlot)}, {SLOTR}
    s_add_u32 {s(sHo)}, {s(sHo)}, {HR}
    s_add_u32 {s(sHH)}, {s(sHH)}, {HHR}
    s_branch L_frnd
    L_fslowtab:
    v_lshlrev_b32 {v(t+16)}, 4, {v(vLane)}
    s_mov_b32 {s(sT+10)}, {TABG}
    L_ftab2:
    ''')
    a(f'buffer_load_dwordx4 {v(t,4)}, {v(t+16)}, {WS}, {s(sT+10)} offen sc1')
    a('s_waitcnt vmcnt(0)')
    tag4chk(t)
    poll_branch('L_ftab2', 8)
    a(f'''
    s_branch L_frnd
    L_fgb2:
    s_sleep {cfg.gbdelay}
    L_fgb3:
    s_barrier
    s_cmp_ge_u32 {s(sI)}, 28
    s_cbranch_scc1 L_fgb4
    ''')
    if cfg.early==3: a(f'''
    global_load_dwordx4 {v(WB+4,4)}, {v(vH)}, s[20:21]
    ds_write_b128 {v(vWr)}, {v(WB,4)} offset:8192
    s_waitcnt vmcnt(0)
    ds_write_b128 {v(vWr)}, {v(WB+4,4)} offset:8208
    s_waitcnt lgkmcnt(0)
    ds_read_b64_tr_b16 {v(WB,2)}, {v(vTr)} offset:8192
    ds_read_b64_tr_b16 {v(WB+2,2)}, {v(vTr)} offset:8320
    ds_read_b64_tr_b16 {v(WB+4,2)}, {v(vTr)} offset:9216
    ds_read_b64_tr_b16 {v(WB+6,2)}, {v(vTr)} offset:9344
    {f's_sleep {cfg.tim_a0}' if cfg.tim_a0 else ''}
    ''')
    else: a(f's_sleep {max(cfg.tim_arg-cfg.gbdelay,0)}')
    a(f'''
    s_branch L_fslot
    L_fgb4:
    ''')
    for k in range(cfg.nb0,7):
        a(f'global_load_dwordx4 {v(WB+4*k,4)}, {v(vSl)}, s[22:23]')
        if k<6: a(f'v_add_u32 {v(vSl)}, 0x8000, {v(vSl)}')
    a(f'''
    s_waitcnt vmcnt(0)''')
    for k in range(7):
        o=(k&1)*1024
        a(f'''ds_write_b128 {v(vWr)}, {v(WB+4*k,4)} offset:{o}
        s_waitcnt lgkmcnt(0)
        ds_read_b64_tr_b16 {v(WB+4*k,2)}, {v(vTr)} offset:{o}
        ds_read_b64_tr_b16 {v(WB+4*k+2,2)}, {v(vTr)} offset:{o+128}''')
    a(f'''
    s_waitcnt lgkmcnt(0)
    s_cmp_lg_u32 {s(sW)}, 0
    s_cbranch_scc1 L_fbar
    L_fb0:
    v_lshrrev_b32 {v(h+2)}, 3, {v(vLane)}
    v_lshlrev_b32 {v(h+2)}, 12, {v(h+2)}
    s_lshl_b32 {s(sT)}, {s(sCb)}, 6
    v_add3_u32 {v(h+4)}, {v(h+2)}, {v(h+3)}, {s(sT)}
    L_fbase:
    buffer_load_dwordx2 {v(h+6,2)}, {v(h+4)}, {WS}, {s(sSlot)} offen offset:1024 sc1
    buffer_load_dword {v(h+8)}, {v(h+2)}, {WS}, {s(sSlot)} offen offset:3072 sc1
    buffer_load_dword {v(h+9)}, {v(vHd)}, {WS}, {s(sSlot)} offen offset:3072 sc1
    s_waitcnt vmcnt(0)
    ''')
    maxchk(range(h+6,h+10), h+5)
    poll_branch('L_fbase', 2, mask=True)
    stamp()
    a(f'''
    v_max_u32_dpp {v(h+9)}, {v(h+9)}, {v(h+9)} row_half_mirror {DPP}
    v_max_u32_dpp {v(h+9)}, {v(h+9)}, {v(h+9)} quad_perm:[1,0,3,2] {DPP}
    v_max_u32_dpp {v(h+9)}, {v(h+9)}, {v(h+9)} quad_perm:[2,3,0,1] {DPP}
    v_readfirstlane_b32 {s(sKey)}, {v(h+9)}
    v_mov_b32 {v(h)}, 0xbfb8aa3b
    s_ashr_i32 {s(sT)}, {s(sKey)}, 31
    s_orn2_b32 {s(sT)}, 0x80000000, {s(sT)}
    s_xor_b32 {s(sT)}, {s(sT)}, {s(sKey)}
    v_mul_f32 {v(h)}, {s(sT)}, {v(h)}
    v_exp_f32 {v(h)}, {v(h)}
    v_add_f32 {v(h)}, 1.0, {v(h)}
    v_rcp_f32 {v(h)}, {v(h)}
    v_cmp_eq_u32 vcc, {s(sKey)}, {v(h+8)}
    v_cndmask_b32 {v(h+10)}, 0, {v(h)}, vcc
    v_bfi_b32 {v(h+8)}, {v(h+8)}, 0, {s(sM7FF)}
    v_lshlrev_b32 {v(h+8)}, 10, {v(h+8)}
    v_lshrrev_b32 {v(h+4)}, 1, {v(h+3)}
    s_lshl_b32 {s(sT)}, {s(sCb)}, 5
    v_add3_u32 {v(h+8)}, {v(h+8)}, {v(h+4)}, {s(sT)}
    s_cmp_eq_u32 {s(sFast)}, 0
    s_cbranch_scc1 L_fbar
    v_min_u32 {v(t)}, 27, {v(vLane)}
    v_lshlrev_b32 {v(t)}, 2, {v(t)}
    s_movk_i32 {s(sTry)}, 500
    L_fhint:
    buffer_load_dword {v(t+1)}, {v(t)}, {WS}, {s(sHH)} offen sc1
    s_waitcnt vmcnt(0)
    v_cmp_ne_u32 vcc, {s(sTag)}, {v(t+1)}
    ''')
    poll_branch('L_fhint', 1, giveup='L_fbar')
    if cfg.tim_h: a(f's_sleep {cfg.tim_h}')
    a(f'''
    s_barrier
    L_fh:
    ''')
    Dy=t+28
    a(f'''
    buffer_load_dwordx4 {v(Dy,4)}, {v(vH)}, {WS}, {s(sHo)} offen sc1
    s_mov_b64 exec, -1
    s_waitcnt vmcnt(0)
    ds_write_b128 {v(vWr)}, {v(Dy,4)} offset:8192
    ''')
    for k in range(7): a(f'ds_read_b128 {v(t+4*k,4)}, {v(vXR)} offset:{8192+64*k}')
    maxchk(range(Dy,Dy+4), t+32)
    poll_branch('L_fh', 1, skip=True, pre='s_mov_b64 exec, vcc\ns_waitcnt lgkmcnt(0)')
    stamp()
    a('L_fb_go:')
    if cfg.ehint:
        a(f'''
        s_cmp_lg_u32 {s(sW)}, 0
        s_cbranch_scc1 L_fyh_d
        s_lshl_b32 {s(sT+1)}, {s(sX)}, 7
        s_lshl2_add_u32 {s(sT+1)}, {s(sI)}, {s(sT+1)}
        s_add_u32 {s(sT+1)}, {s(sT+1)}, {YHINT-28*4}
        s_add_u32 {s(sT+1)}, {s(sT+1)}, {s(sYo)}
        ''')
        hint_store(vTag, sT+1, 'L_fyh')
    for k in range(7):
        a(f's_waitcnt lgkmcnt({6-k})')
        a(f'v_mfma_f32_16x16x32_bf16 {v(Dy,4)}, {v(t+4*k,4)}, {v(WB+4*k,4)}, '+('0' if k==0 else v(Dy,4)))
    a(f'''
    s_mov_b64 exec, 0xffff
    s_cmp_lg_u32 {s(sW)}, 0
    ds_write_b32 {v(vPW)}, {v(Dy)}
    s_mov_b64 exec, -1
    s_waitcnt lgkmcnt(0)
    s_barrier
    s_cbranch_scc1 L_fnext
    s_cmp_eq_u32 {s(sRnd)}, 1
    s_cbranch_scc1 L_ffinal
    v_lshlrev_b32 {v(t+8)}, 5, {v(vN)}
    ds_read_b128 {v(t,4)}, {v(t+8)}
    ds_read_b128 {v(t+4,4)}, {v(t+8)} offset:16
    s_lshl_b32 {s(sT)}, {s(sCb)}, 7
    s_add_u32 {s(sT)}, {s(sT)}, {YBUF}
    s_add_u32 {s(sT)}, {s(sT)}, {s(sYo)}
    v_lshlrev_b32 {v(t+9)}, 2, {v(vLane)}
    s_lshl_b32 {s(sT+1)}, {s(sX)}, 7
    s_lshl_b32 {s(sT+2)}, {s(sI)}, 2
    s_add_u32 {s(sT+1)}, {s(sT+1)}, {s(sT+2)}
    s_add_u32 {s(sT+1)}, {s(sT+1)}, {YHINT-28*4}
    s_add_u32 {s(sT+1)}, {s(sT+1)}, {s(sYo)}
    s_mov_b64 exec, 0xffff
    s_waitcnt lgkmcnt(0)
    v_pk_add_f32 {v(t,2)}, {v(t,2)}, {v(t+2,2)}
    v_pk_add_f32 {v(t+4,2)}, {v(t+4,2)}, {v(t+6,2)}
    v_pk_add_f32 {v(t,2)}, {v(t,2)}, {v(t+4,2)}
    v_add_f32 {v(t)}, {v(t)}, {v(t+1)}
    v_mul_f32 {v(t)}, {v(t)}, {v(h)}
    buffer_store_dword {v(t)}, {v(t+9)}, {WS}, {s(sT)} offen sc1
    ''')
    if cfg.ehint: a('s_mov_b64 exec, -1')
    else: hint_store(vTag, sT+1, 'L_fyh')
    a(f'''
    s_cmp_lg_u32 {s(sRnd)}, 2
    s_cbranch_scc1 L_fnext
    L_ffinal:
    v_lshlrev_b32 {v(t+16)}, 3, {v(h+3)}
    ds_read_b128 {v(t,4)}, {v(t+16)}
    ds_read_b128 {v(t+4,4)}, {v(t+16)} offset:16
    ds_read_b128 {v(t+8,4)}, {v(t+16)} offset:32
    ds_read_b128 {v(t+12,4)}, {v(t+16)} offset:48
    s_waitcnt lgkmcnt(2)
    v_pk_add_f32 {v(t,2)}, {v(t,2)}, {v(t+2,2)}
    v_pk_add_f32 {v(t+4,2)}, {v(t+4,2)}, {v(t+6,2)}
    s_waitcnt lgkmcnt(0)
    v_pk_add_f32 {v(t+8,2)}, {v(t+8,2)}, {v(t+10,2)}
    v_pk_add_f32 {v(t+12,2)}, {v(t+12,2)}, {v(t+14,2)}
    v_pk_add_f32 {v(t,2)}, {v(t,2)}, {v(t+4,2)}
    v_pk_add_f32 {v(t+8,2)}, {v(t+8,2)}, {v(t+12,2)}
    v_add_f32 {v(t)}, {v(t)}, {v(t+1)}
    v_add_f32 {v(t+1)}, {v(t+8)}, {v(t+9)}
    v_pk_fma_f32 {v(t,2)}, {v(t,2)}, {v(h+10,2)}, {v(h+6,2)} op_sel_hi:[1,0,1]
    v_cvt_pk_bf16_f32 {v(t)}, {v(t)}, {v(t+1)}
    buffer_store_dword {v(t)}, {v(h+8)}, {OS}, 0 offen sc1
    s_cmp_eq_u32 {s(sRnd)}, 2
    s_cbranch_scc1 L_fnext
    ''')
    stamp()
    a('L_fend:')
    dump_stamps()
    a('s_endpgm')

def build():
    hdr=open('ref.txt').read().split('; @launch')[0]
    a.raw(hdr+f'; @launch grid=({NWG},1,1) block=(512,1,1) lds={LDS_TOTAL}')
    a.raw(f'''; generated by gen/gen.py (hand-written generator): persistent FFT-structured FNet + MoD kernel
.amdgcn_target "amdgcn-amd-amdhsa--gfx950"
.text
.globl {NAME}_kernel
.p2align 8
.type {NAME}_kernel,@function
{NAME}_kernel:''')
    a(f'''
    s_load_dwordx2 s[12:13], s[0:1], 0
    s_load_dwordx2 s[8:9], s[0:1], 96
    s_load_dwordx8 s[16:23], s[0:1], 48
    s_load_dwordx2 s[28:29], s[0:1], 80
    s_cmp_ge_u32 s2, {NWG}
    s_cbranch_scc1 L_end
    ''')
    if cfg.codepf: a(f'''
    s_getpc_b64 {s(sT+6,2)}
    L_pc:
    v_lshlrev_b32 v2, 5, v0
    v_min_u32 v2, L_end-L_pc, v2
    global_load_dword {v(vTG)}, v2, {s(sT+6,2)}
    ''')
    if cfg.split: a(f'''
    s_lshr_b32 s3, s2, 1
    s_xor_b32 s3, s3, s2
    s_and_b32 s3, s3, 128
    s_mul_i32 s3, s3, 3
    s_xor_b32 s2, s2, s3
    ''')
    a(f'''
    v_lshrrev_b32 v2, 6, v0
    v_and_b32 {v(vN)}, 15, v0
    v_bfe_u32 {v(vQ)}, v0, 4, 2
    v_readfirstlane_b32 {s(sW)}, v2
    v_and_b32 {v(vLane)}, 63, v0
    s_mov_b32 s10, {WSSZ}
    s_mov_b32 s11, 0x20000
    s_mov_b32 s30, 0x200000
    s_mov_b32 s31, 0x20000
    s_and_b32 {s(sX)}, s2, 7
    s_lshr_b32 {s(sJ)}, s2, 3
    v_mov_b32 {v(SENT)}, -1
    v_mov_b32 {v(SENT+1)}, -1
    v_mov_b32 {v(SENT+2)}, -1
    v_mov_b32 {v(SENT+3)}, -1
    v_lshlrev_b32 {v(vL8)}, 3, v0
    v_and_b32 {v(vL8)}, 0xf8, {v(vL8)}
    s_mov_b32 {s(sCnt)}, 200000
    s_mov_b32 {s(sM7FF)}, 0x7ff
    s_lshl_b32 {s(sTabLd)}, {s(sX)}, 8
    s_add_u32 {s(sTabLd)}, {s(sTabLd)}, {TABL}
    s_getreg_b32 {s(sXcc)}, hwreg(HW_REG_XCC_ID, 0, 4)
    ''')
    if cfg.force_slow: a(f's_mov_b32 {s(sXcc)}, {s(sJ)}')
    if cfg.stamps:
        a(f's_mov_b32 {s(sStampI)}, 0\nv_mov_b32 {v(vSTMP)}, 0')
        a(f's_memrealtime {s(sTS,2)}\ns_memtime {s(sTS+2,2)}\ns_waitcnt lgkmcnt(0)\nv_writelane_b32 {v(vSTMP)}, {s(sTS)}, 63\nv_writelane_b32 {v(vSTMP)}, {s(sTS+2)}, 62')
    a('''s_cmp_ge_u32 s2, 256
    s_cbranch_scc1 L_ffn''')
    if cfg.prio: a(f's_setprio 2\ns_cmp_gt_u32 {s(sW)}, 1\ns_cbranch_scc1 L_np\ns_setprio 3\nL_np:')
    main_prologue()
    main_loop()
    ffn()
    a('L_end:\ns_endpgm')
    a.raw(f'''.section .rodata,"a"
.p2align 6
.amdhsa_kernel {NAME}_kernel
  .amdhsa_next_free_vgpr 128
  .amdhsa_next_free_sgpr 96
  .amdhsa_accum_offset 128
  .amdhsa_group_segment_fixed_size 0
  .amdhsa_kernarg_size 104
  .amdhsa_user_sgpr_count 2
  .amdhsa_user_sgpr_kernarg_segment_ptr 1
  .amdhsa_system_sgpr_workgroup_id_x 1
.end_amdhsa_kernel''')
    return a.text()
if __name__=='__main__':
    out=sys.argv[1]
    for kv in sys.argv[2:]:
        k,val=kv.split('='); assert hasattr(cfg,k); setattr(cfg,k,int(val))
    open(out,'w').write(build())
    print('instrs',a.count,'nops',a.nops)
```

```python
import sys, struct
from asmlib import Asm
NAME='interleave_layers__spectral_fnet__moe_arch_mod__prompt'
def fbits(x): return '0x%08x' % struct.unpack('<I', struct.pack('<f', x))[0]

class Cfg:
    stamps=0
    tim_arg=16
    tim_y=0
    tim_h=0
    slp_g=2
    slp_l=1
    force_slow=0
    prio=1
    codepf=1
    exp=0
    cal=-1
    calwg=0
    dbgout=0
    dry=1
    wb=1
    fdelay=10
    gdelay=18
    osc=1
    odel=0
    pfm=7
    clr2=0
    nb0=0
    ehint=0
    post=0
    slp_t=0
    aft=0
    g2pos=1
    beh=1
    gbb=0
    slp_f=2
    early=4
    tim_a0=0
    wbd=12
    gbdelay=4
    late=1
    split=0
    tch=1
cfg=Cfg()

TABG=0x1000; TABGR=0x6000
TABL=0x2000; ARGR=0x800
TAB2=0x3800
SLOWF=0x4000
YHINT=0x5000
HHINT=0x6000; HHR=0x400
CLR0=0x8000
HBUF=0x8000; HR=0x1000
YBUF=0xA000
SLOT=0x10000; SLOTR=0x8000
LBASE=0x20000; PS=8448; LX=32*PS
GBASE=0x240000; GS=262144+768; GR=0x210000
STAMP=0x700000
WSSZ=0x800000
NWG=512
NST=(13,8,10)
L_STAT=0; L_U=0x400; L_YI=0x2400; YIS=320; L_YT=0x4C00; L_DH=0x6E00; L_FLAG=0x7600; LDS_TOTAL=0x7680
L_CX=0x2400
def v(a,n=1): return f'v{a}' if n==1 else f'v[{a}:{a+n-1}]'
def s(a,n=1): return f's{a}' if n==1 else f's[{a}:{a+n-1}]'

WS='s[8:11]'; XS='s[12:15]'; OS='s[28:31]'
sW=3; sX=26; sJ=27; sIt=32; sTag=33; sFast=34; sKey=35; sMir=36; sDsc=38
sLst=39; sLld=40; sPh=41; sTabG=42; sG0=43; sG4=44; sTabSt=45; sTabLd=46; sSlot=47; sRow0=48; sRow1=49; sCnt=50
sXcc=51; sStampI=37
sK512=52
sTry=53
sEps=54
sC16=56
sSc=58
sM7FF=60; sTop=61
sQmask=62
sT=64
sTS=80
X=2; WV=10; A8=14; XA=16; B1C=20; B1S=24; B1N=28; TWC=32; TWS=36; A2R=40; A2I=44; YC=48; YS=52
AD=56; BC=58
vXoff=72; vStW=73; vStR=74; vUW=75; vUR=76; vLst=77; vLld=78; vLldM=79; vYIW=80; vYIR=81; vYW=82; vYR=83; vGst=84; vGld=85
vSc0=86; vL8=88; vInv=89; vN=90; vQ=91; vSTMP=1; vLane=92; vTG=93
LNP=94; MM=98; RS2=100
T=102
class Asm2(Asm):
    def __call__(self, text):
        parts=text.split(';@F')
        for i,p in enumerate(parts):
            if i: fstamp()
            Asm.__call__(self,p)
a=Asm2()
def poll_branch(lbl, sleep=1, pre='', giveup=None, skip=False, mask=False):
    k=a.lines.index(lbl+':')
    if mask:
        pre+='\ns_mov_b64 exec, vcc'; skip=True
        k2=next(i for i in range(k,len(a.lines)) if 's_waitcnt vmcnt(0)' in a.lines[i])
        k3=max(i for i in range(k,k2) if 'buffer_load' in a.lines[i])
        a.lines.insert(k3+1,'    s_mov_b64 exec, -1')
    if a.lines[k-1].strip().startswith(('s_branch','s_endpgm')): skip=False
    a(f's_cbranch_vccnz {lbl}_r ;!nd')
    st=[]
    if skip: st.append(f'    s_branch {lbl}')
    st.append(f'{lbl}_r:')
    if giveup: st+= [f'    s_sub_u32 {s(sTry)}, {s(sTry)}, 1', f'    s_cbranch_scc1 {giveup}']
    else: st+= [f'    s_sub_u32 {s(sCnt)}, {s(sCnt)}, 1', '    s_cbranch_scc1 L_end']
    st+= ['    '+x.strip() for x in pre.split('\n') if x.strip()]
    if sleep: st.append(f'    s_sleep {sleep}')
    a.lines[k:k]=st
def fstamp():
    if cfg.stamps==2: stamp()
def stamp():
    if not cfg.stamps: return
    a(f'''{'s_memtime' if cfg.stamps==2 else 's_memrealtime'} {s(sTS,2)}
    s_waitcnt lgkmcnt(0)
    s_mov_b32 m0, {s(sStampI)}
    s_add_u32 {s(sStampI)}, {s(sStampI)}, 1
    v_writelane_b32 {v(vSTMP)}, {s(sTS)}, m0''')
def dump_stamps():
    if not cfg.stamps: return
    a(f's_memrealtime {s(sTS,2)}\ns_memtime {s(sTS+2,2)}\ns_waitcnt lgkmcnt(0)\nv_writelane_b32 {v(vSTMP)}, {s(sTS)}, 61\nv_writelane_b32 {v(vSTMP)}, {s(sTS+2)}, 60')
    if cfg.cal>=0:
        lab='L_cal%d'%len(a.lines)
        a(f'''s_cmp_lg_u32 s2, {cfg.calwg}
        s_cbranch_scc1 {lab}
        s_cmp_lg_u32 {s(sW)}, 0
        s_cbranch_scc1 {lab}
        v_readlane_b32 {s(sT)}, {v(vSTMP)}, {cfg.cal}
        v_readlane_b32 {s(sT+1)}, {v(vSTMP)}, 63
        s_sub_u32 {s(sT)}, {s(sT)}, {s(sT+1)}
        s_lshl_b32 {s(sT)}, {s(sT)}, 2
        s_add_u32 {s(sT)}, {s(sT)}, 3000
        s_min_u32 {s(sT)}, {s(sT)}, 50000
        {lab}_l:
        s_memrealtime {s(sTS,2)}
        s_waitcnt lgkmcnt(0)
        s_sub_u32 {s(sT+2)}, {s(sTS)}, {s(sT+1)}
        s_cmp_lt_u32 {s(sT+2)}, {s(sT)}
        s_cbranch_scc1 {lab}_l
        {lab}:''')
    a(f'''s_lshl_b32 {s(sT)}, s2, 11
    s_lshl_b32 {s(sT+1)}, {s(sW)}, 8
    s_add_u32 {s(sT)}, {s(sT)}, {s(sT+1)}
    s_add_u32 {s(sT)}, {s(sT)}, {STAMP}
    v_lshlrev_b32 {v(vLane)}, 2, {v(vLane)}
    buffer_store_dword {v(vSTMP)}, {v(vLane)}, {WS}, {s(sT)} offen''')
def maxchk(regs, t):
    regs=list(regs)
    a(f'v_max3_u32 {v(t)}, {v(regs[0])}, {v(regs[1])}, {v(regs[2])}')
    rest=regs[3:]
    while len(rest)>=2:
        a(f'v_max3_u32 {v(t)}, {v(t)}, {v(rest[0])}, {v(rest[1])}'); rest=rest[2:]
    if rest: a(f'v_max_u32 {v(t)}, {v(t)}, {v(rest[0])}')
    a(f'v_cmp_eq_u32 vcc, -1, {v(t)}')
def phchk(regs, t):
    regs=list(regs)
    a(f'v_bitop3_b32 {v(t)}, {v(regs[0])}, {v(regs[1])}, {s(sPh)} bitop3:0x7e')
    for r in regs[2:]: a(f'v_bitop3_b32 {v(t)}, {v(t)}, {v(r)}, {s(sPh)} bitop3:0xf6')
    a(f'v_and_b32 {v(t)}, 1, {v(t)}\nv_cmp_ne_u32 vcc, 0, {v(t)}')
def tag4chk(r):
    for k in range(4): a(f'v_xor_b32 {v(r+k)}, {s(sTag)}, {v(r+k)}')
    a(f'v_or3_b32 {v(r)}, {v(r)}, {v(r+1)}, {v(r+2)}\nv_or_b32 {v(r)}, {v(r)}, {v(r+3)}\nv_cmp_ne_u32 vcc, 0, {v(r)}')
DPP='row_mask:0xf bank_mask:0xf'

def fft_core(xr, xi, U, V, F, P, fill1='', fill2=''):
    Ur,Ui=U,U+4
    a(f'v_mfma_f32_16x16x32_f16 {v(Ur,4)}, {v(xr,4)}, {v(B1C,4)}, 0')
    a(f'v_mfma_f32_16x16x32_f16 {v(Ui,4)}, {v(xr,4)}, {v(B1N,4)}, 0')
    if xi is not None:
        a(f'v_mfma_f32_16x16x32_f16 {v(Ur,4)}, {v(xi,4)}, {v(B1S,4)}, {v(Ur,4)}')
        a(f'v_mfma_f32_16x16x32_f16 {v(Ui,4)}, {v(xi,4)}, {v(B1C,4)}, {v(Ui,4)}')
    a(fill1)
    Vr,Vi=V,V+4
    for h in (0,2):
        a(f'v_pk_mul_f32 {v(Vi+h,2)}, {v(Ur+h,2)}, {v(TWS+h,2)}')
    for h in (0,2):
        a(f'v_pk_mul_f32 {v(Vr+h,2)}, {v(Ui+h,2)}, {v(TWS+h,2)}')
    for h in (0,2):
        a(f'v_pk_fma_f32 {v(Vr+h,2)}, {v(Ur+h,2)}, {v(TWC+h,2)}, {v(Vr+h,2)}')
        a(f'v_pk_fma_f32 {v(Vi+h,2)}, {v(Ui+h,2)}, {v(TWC+h,2)}, {v(Vi+h,2)} neg_lo:[0,0,1] neg_hi:[0,0,1]')
    for r in range(4): a(f'v_cvt_pk_f16_f32 {v(P+r)}, {v(Vr+r)}, {v(Vi+r)}')
    a(f'v_mfma_f32_16x16x32_f16 {v(F,4)}, {v(A2R,4)}, {v(P,4)}, 0')
    a(f'v_mfma_f32_16x16x32_f16 {v(F+4,4)}, {v(A2I,4)}, {v(P,4)}, 0')
    a(fill2)
    for r in range(4): a(f'v_cvt_pk_f16_f32 {v(P+r)}, {v(F+r)}, {v(F+4+r)}')

SENT=T+4

def main_prologue():
    t=T
    X0=BC
    a(f'''
    s_lshl_b32 {s(sRow0)}, s2, 10
    s_add_u32 {s(sRow1)}, {s(sRow0)}, 0x40000
    s_lshl_b32 {s(sT)}, {s(sW)}, 7
    v_lshl_add_u32 {v(vUW)}, {v(vN)}, 3, {s(sT)}                 ; 128w+8n
    v_lshl_add_u32 {v(vXoff)}, {v(vQ)}, 19, {v(vUW)}
    s_mov_b32 s14, 0x200000
    s_mov_b32 s15, 0x20000
    s_mul_i32 {s(sLld)}, {s(sX)}, {LX}
    s_add_u32 {s(sLld)}, {s(sLld)}, {LBASE}
    s_mul_i32 {s(sLst)}, {s(sJ)}, {PS}
    s_add_u32 {s(sLst)}, {s(sLst)}, {s(sLld)}
    v_lshlrev_b32 {v(t)}, 4, v0
    v_lshrrev_b32 {v(t+1)}, 4, v0
    s_waitcnt lgkmcnt(0)
    buffer_load_dwordx2 {v(X0,2)}, {v(vXoff)}, {XS}, {s(sRow0)} offen
    buffer_load_dwordx2 {v(X0+2,2)}, {v(vXoff)}, {XS}, {s(sRow1)} offen
    global_load_dwordx2 {v(X0+4,2)}, {v(vUW)}, s[16:17]
    buffer_load_dword {v(X0+6)}, off, {WS}, 0 sc1
    ''')
    tabt=f'buffer_load_dword {v(X0+7)}, {v(vL8)}, {WS}, {s(sTabLd)} offen sc1'
    ltch=f'buffer_load_dwordx4 {v(X0+8,4)}, {v(t)}, {WS}, {s(sLst)} offen sc1'
    lclr=f'buffer_store_dwordx4 {v(SENT,4)}, {v(t)}, {WS}, {s(sLst)} offen'
    if cfg.tch==0: a(tabt+'\n'+ltch+'\n'+lclr)
    if cfg.tch==1 and not cfg.aft&1: a(tabt+'\n'+ltch)
    if cfg.tch==2: a(tabt+'\n'+lclr+'\n'+ltch)
    if cfg.tch==3: a(ltch.replace(' sc1','')+'\n'+ltch.replace(' sc1','')+'\n'+lclr)
    a(f'''
    s_mov_b32 {s(sG0)}, {GBASE}
    s_mul_i32 {s(sT)}, {s(sX)}, {GS}
    s_add_u32 {s(sT+2)}, {s(sJ)}, 24
    s_and_b32 {s(sT+2)}, {s(sT+2)}, 24
    s_lshl_b32 {s(sT+2)}, {s(sT+2)}, 13
    s_add_u32 {s(sT)}, {s(sT)}, {s(sT+2)}
    s_and_b32 {s(sT+2)}, {s(sJ)}, 7
    s_cmp_lt_u32 {s(sJ)}, 8
    s_cselect_b32 {s(sT+3)}, 7, 8
    s_cselect_b32 {s(sT+4)}, 112, 0
    s_lshl_b32 {s(sT+2)}, {s(sT+2)}, {s(sT+3)}
    s_add_u32 {s(sT)}, {s(sT)}, {s(sT+2)}
    v_lshlrev_b32 {v(t+2)}, 4, {v(vN)}
    v_lshl_add_u32 {v(vGst)}, {v(t+1)}, 11, {v(t+2)}
    v_and_b32 {v(t+3)}, 8, {v(vN)}
    v_mad_u32_u24 {v(vGst)}, {v(t+3)}, {s(sT+4)}, {v(vGst)}
    v_add_u32 {v(vGst)}, {s(sT)}, {v(vGst)}
    s_lshl_b32 {s(sT+15)}, s2, 13
    s_add_u32 {s(sT+15)}, {s(sT+15)}, {CLR0}
    s_cmp_lt_u32 s2, 12
    s_cselect_b32 {s(sT+15)}, {s(sT+15)}, {WSSZ}
    ''')
    clrs=f'''buffer_store_dwordx4 {v(SENT,4)}, {v(vGst)}, {WS}, {s(sG0)} offen sc1
    buffer_store_dwordx4 {v(SENT,4)}, {v(t)}, {WS}, {s(sT+15)} offen sc1'''
    g2c=f's_mov_b32 {s(sT+14)}, {GBASE+GR}\nbuffer_store_dwordx4 {v(SENT,4)}, {v(vGst)}, {WS}, {s(sT+14)} offen sc1'
    if not cfg.aft&2: a(clrs)
    if cfg.g2pos==0: a(g2c)
    c=t+8; co,si=c+8,c+12
    a(f'''
    s_lshr_b32 {s(sT)}, {s(sJ)}, 2
    s_and_b32 {s(sT)}, {s(sT)}, 6                 ; 2*(j>>3)
    s_lshl_b32 {s(sT+1)}, {s(sW)}, 2
    s_and_b32 {s(sT+1)}, {s(sT+1)}, 8             ; 2*4*((w>>1)&1)
    s_cmp_lt_u32 {s(sJ)}, 8
    s_cselect_b32 {s(sT)}, {s(sT+1)}, {s(sT)}
    s_lshl_b32 {s(sT+1)}, {s(sW)}, 4
    s_and_b32 {s(sT+1)}, {s(sT+1)}, 16            ; 16*(w&1)
    s_cmp_ge_u32 {s(sW)}, 4
    s_cselect_b32 {s(sT+2)}, {s(sT+1)}, 0         ; 16k
    s_cselect_b32 {s(sT)}, {s(sT)}, 0
    s_cmp_eq_u32 {s(sW)}, 3
    s_cselect_b32 {s(sT)}, 16, {s(sT)}
    s_lshl_b32 {s(sT+3)}, {s(sW)}, 2
    s_lshr_b32 {s(sT+3)}, 0x44440054, {s(sT+3)}
    s_and_b32 {s(sT+3)}, {s(sT+3)}, 15            ; log2 A
    v_lshlrev_b32 {v(c)}, {s(sT+3)}, {v(vN)}
    v_add_u32 {v(c)}, {s(sT)}, {v(c)}
    v_lshl_add_u32 {v(c+1)}, {v(vQ)}, 2, {s(sT+2)}
    v_cvt_f32_u32 {v(c)}, {v(c)}
    v_cvt_f32_u32 {v(c+1)}, {v(c+1)}
    s_mov_b32 {s(sK512)}, {fbits(1/512)}
    v_mul_f32 {v(c)}, {s(sK512)}, {v(c)}
    v_mul_f32 {v(c+4)}, {v(c+1)}, {v(c)}
    v_add_f32 {v(c+5)}, {v(c+4)}, {v(c)}
    v_add_f32 {v(c+6)}, {v(c+5)}, {v(c)}
    v_add_f32 {v(c+7)}, {v(c+6)}, {v(c)}
    ''')
    fill=[f's_mov_b32 {s(sEps)}, {fbits(1e-5)}', f's_mov_b32 {s(sEps+1)}, {fbits(1e-5)}', f's_mov_b32 {s(sC16)}, {fbits(1/16)}', f's_mov_b32 {s(sC16+1)}, {fbits(1/16)}',
          f's_mov_b32 {s(sTop)}, 0x80000000', f's_mov_b32 {s(sQmask)}, 0x11111111', f's_mov_b32 {s(sQmask+1)}, 0x11111111', f's_mov_b32 {s(sG4)}, {GBASE+4*GS}']
    for r in range(4):
        a(f'v_cos_f32 {v(co+r)}, {v(c+4+r)}'); a(fill[2*r])
        a(f'v_sin_f32 {v(si+r)}, {v(c+4+r)}'); a(fill[2*r+1])
    a(f'''
    s_lshl_b32 {s(sT)}, {s(sW)}, 11
    s_add_u32 {s(sT)}, {s(sT)}, {L_CX}
    v_lshlrev_b32 {v(c+2)}, 4, {v(vLane)}
    v_add_u32 {v(c+3)}, {s(sT)}, {v(c+2)}
    s_and_b32 {s(sT)}, {s(sW)}, 6
    s_cmp_eq_u32 {s(sT)}, 2
    s_cbranch_scc1 L_cw
    s_cmp_eq_u32 {s(sW)}, 1
    s_cbranch_scc1 L_cri
    v_cvt_pk_f16_f32 {v(co)}, {v(co)}, {v(co+1)}
    v_cvt_pk_f16_f32 {v(co+1)}, {v(co+2)}, {v(co+3)}
    v_cvt_pk_f16_f32 {v(co+2)}, {v(si)}, {v(si+1)}
    v_cvt_pk_f16_f32 {v(co+3)}, {v(si+2)}, {v(si+3)}
    s_branch L_cw
    L_cri:
    ''')
    for r in range(4):
        a(f'v_cvt_pk_f16_f32 {v(c+4)}, {v(co+r)}, {v(si+r)}')
        a(f'v_cvt_pk_f16_f32 {v(si+r)}, -{v(si+r)}, {v(co+r)}')
        a(f'v_mov_b32 {v(co+r)}, {v(c+4)}')
    a(f'''
    L_cw:
    ds_write_b128 {v(c+3)}, {v(co,4)}
    ds_write_b128 {v(c+3)}, {v(si,4)} offset:1024
    v_lshrrev_b32 {v(c+4)}, 2, {v(vN)}
    v_and_b32 {v(c+5)}, 2, {v(vN)}
    v_and_b32 {v(c+6)}, 14, {v(vN)}
    v_cmp_eq_u32 vcc, 2, {v(c+6)}
    v_mul_u32_u24 {v(vYIR)}, {YIS}, {v(c+4)}
    v_lshlrev_b32 {v(vStR)}, 8, {v(vQ)}
    v_cndmask_b32 {v(c+4)}, {v(c+4)}, 4, vcc
    v_cndmask_b32 {v(c+5)}, {v(c+5)}, 0, vcc
    v_mul_u32_u24 {v(c+6)}, {v(c+4)}, {v(vQ)}
    v_lshl_add_u32 {v(c+6)}, {v(c+6)}, 1, {v(c+5)}
    v_add_u32 {v(c+7)}, {v(c+6)}, {v(c+4)}
    v_cvt_f32_u32 {v(c+6)}, {v(c+6)}
    v_cvt_f32_u32 {v(c+7)}, {v(c+7)}
    v_mul_f32 {v(c+6)}, 0x3e000000, {v(c+6)}
    v_mul_f32 {v(c+7)}, 0x3e000000, {v(c+7)}
    v_cos_f32 {v(c+6)}, {v(c+6)}
    v_cos_f32 {v(c+7)}, {v(c+7)}
    v_and_b32 {v(c+5)}, 1, {v(vN)}
    v_cmp_eq_u32 vcc, 0, {v(c+5)}
    v_cvt_pk_f16_f32 {v(c+6)}, {v(c+6)}, {v(c+7)}
    v_mov_b32 {v(c+5)}, 0x80008000
    v_cndmask_b32 {v(A8)}, 0, {v(c+6)}, vcc
    v_cndmask_b32 {v(A8+1)}, {v(c+6)}, 0, vcc
    v_cndmask_b32 {v(c+5)}, {v(c+5)}, 0, vcc
    s_lshl_b32 {s(sT+1)}, {s(sT+1)}, 7            ; h*2048
    v_add_u32 {v(c+6)}, {s(sT+1)}, {v(c+2)}
    s_lshl_b32 {s(sT+2)}, {s(sW)}, 11
    s_and_b32 {s(sT+2)}, {s(sT+2)}, 4096          ; ((w>>1)&1)*4096
    v_add_u32 {v(c+7)}, {s(sT+2)}, {v(c+2)}
    s_waitcnt lgkmcnt(0)
    s_barrier
    ds_read_b128 {v(B1N,4)}, {v(c+2)} offset:{L_CX}
    ds_read_b128 {v(co,4)}, {v(c+7)} offset:{L_CX+4*2048}
    ds_read_b128 {v(si,4)}, {v(c+7)} offset:{L_CX+5*2048}
    ds_read_b128 {v(A2R,4)}, {v(c+2)} offset:{L_CX+2048}
    ds_read_b128 {v(A2I,4)}, {v(c+2)} offset:{L_CX+2048+1024}
    ds_read_b128 {v(TWC,4)}, {v(c+6)} offset:{L_CX+4096}
    ds_read_b128 {v(TWS,4)}, {v(c+6)} offset:{L_CX+4096+1024}
    v_and_b32 {v(c+4)}, 4, {v(vN)}
    s_lshl_b32 {s(sT)}, {s(sW)}, 2
    v_lshl_add_u32 {v(vStW)}, {v(t+3)}, 2, {v(vStR)}
    v_lshl_add_u32 {v(vStW)}, {v(c+4)}, 4, {v(vStW)}
    v_add_u32 {v(vStW)}, {s(sT)}, {v(vStW)}
    v_and_b32 {v(c+4)}, 7, {v(vN)}
    v_lshl_add_u32 {v(vStR)}, {v(c+4)}, 5, {v(vStR)}
    v_lshl_add_u32 {v(vUW)}, {v(vQ)}, 11, {v(vUW)}
    v_add_u32 {v(vUW)}, {L_U}, {v(vUW)}
    s_lshr_b32 {s(sT)}, {s(sW)}, 1
    s_lshl_b32 {s(sT)}, {s(sT)}, 11
    s_add_u32 {s(sT+2)}, {s(sT)}, {L_U}
    v_lshl_add_u32 {v(vUR)}, {v(vLane)}, 3, {s(sT+2)}
    ; vLst = w'*2048 + 512q + 64h + 4n
    s_lshr_b32 {s(sT+2)}, {s(sT+1)}, 5
    s_add_u32 {s(sT)}, {s(sT)}, {s(sT+2)}
    v_lshl_add_u32 {v(vLst)}, {v(vQ)}, 9, {s(sT)}
    v_lshl_add_u32 {v(vLst)}, {v(vN)}, 2, {v(vLst)}
    s_lshl_b32 {s(sT)}, {s(sJ)}, 3
    s_add_u32 {s(sTabSt)}, {s(sTabLd)}, {s(sT)}
    s_lshl_b32 {s(sT+3)}, {s(sW)}, 31             ; h sign
    s_lshl_b32 {s(sT+4)}, {s(sW)}, 29
    s_and_b32 {s(sT+4)}, {s(sT+4)}, {s(sTop)}
    s_mov_b32 {s(sT+5)}, 0x80008000
    s_mov_b32 {s(sIt)}, 0
    s_mov_b32 {s(sFast)}, 1
    s_mov_b32 {s(sPh)}, 0
    s_mov_b32 {s(sSlot)}, {WSSZ}
    s_xor_b32 {s(sT+12)}, {s(sJ)}, 9
    s_or_b32 {s(sT+12)}, {s(sT+12)}, {s(sW)}
    s_mov_b32 {s(sTry)}, 64
    s_waitcnt lgkmcnt(4)
    v_xor_b32 {v(B1C)}, {s(sT+3)}, {v(B1N)}
    v_xor_b32 {v(B1C+1)}, {s(sT+3)}, {v(B1N+1)}
    v_xor_b32 {v(B1S)}, {s(sT+3)}, {v(B1N+2)}
    v_xor_b32 {v(B1S+1)}, {s(sT+3)}, {v(B1N+3)}
    v_xor_b32 {v(B1C+2)}, {v(B1C)}, {v(c+5)}
    v_xor_b32 {v(B1C+3)}, {v(B1C+1)}, {v(c+5)}
    v_xor_b32 {v(B1S+2)}, {v(B1S)}, {v(c+5)}
    v_xor_b32 {v(B1S+3)}, {v(B1S+1)}, {v(c+5)}
    ''')
    for r in range(4): a(f'v_xor_b32 {v(B1N+r)}, {s(sT+5)}, {v(B1S+r)}')
    for k,src in ((0,co),(1,si)):
        for r in range(2):
            a(f'v_xor_b32 {v(YC+2*k+r)}, {s(sT+4)}, {v(src+r)}')
            a(f'v_xor_b32 {v(YS+2*k+r)}, {s(sT+4)}, {v(src+2+r)}')
    a(f'''
    s_and_b32 {s(sT+1)}, {s(sW)}, 3
    s_lshl_b32 {s(sT+1)}, {s(sT+1)}, 6            ; 64cb
    s_lshr_b32 {s(sT)}, {s(sW)}, 2
    s_mul_i32 {s(sT)}, {s(sT)}, {16*272}
    s_add_u32 {s(sT)}, {s(sT)}, {s(sT+1)}
    s_add_u32 {s(sT)}, {s(sT)}, {L_YT}
    v_mul_u32_u24 {v(vYW)}, 272, {v(vN)}
    v_lshl_add_u32 {v(vYW)}, {v(vQ)}, 4, {v(vYW)}
    v_add_u32 {v(vYW)}, {s(sT)}, {v(vYW)}
    v_mul_u32_u24 {v(vYR)}, 272, {v(t+1)}
    v_add_u32 {v(vYR)}, {v(vYR)}, {v(t+2)}
    v_add_u32 {v(vYR)}, {L_YT}, {v(vYR)}
    s_add_u32 {s(sT+1)}, {s(sT+1)}, {L_YI}
    v_mul_u32_u24 {v(c+4)}, {4*YIS}, {v(vQ)}
    v_and_b32 {v(c+6)}, 0x30, {v(t+2)}
    v_add3_u32 {v(vYIR)}, {v(vYIR)}, {v(c+4)}, {v(c+6)}
    v_add_u32 {v(vYIR)}, {s(sT+1)}, {v(vYIR)}
    s_cmp_lt_u32 {s(sJ)}, 8
    s_cbranch_scc1 L_aself
    v_mul_u32_u24 {v(vLld)}, {PS}, {v(t+1)}
    v_mul_u32_u24 {v(vYIW)}, {YIS}, {v(t+1)}
    s_lshl_b32 {s(sT)}, {s(sJ)}, 8
    v_add3_u32 {v(vLld)}, {v(vLld)}, {v(t+2)}, {s(sT)}
    v_add_u32 {v(vYIW)}, {v(vYIW)}, {v(t+2)}
    v_mov_b32 {v(vLldM)}, 0
    s_branch L_adone
    L_aself:
    ; s2=(w>>1)*8+(l>>3), u=l&7, which=w&1
    s_lshl_b32 {s(sT)}, {s(sW)}, 2
    s_and_b32 {s(sT)}, {s(sT)}, 24
    v_lshrrev_b32 {v(c+4)}, 3, {v(vLane)}
    v_add_u32 {v(c+4)}, {s(sT)}, {v(c+4)}
    v_and_b32 {v(c+6)}, 0x70, {v(t+2)}
    v_mul_u32_u24 {v(vLldM)}, {PS}, {v(c+4)}
    v_mul_u32_u24 {v(vYIW)}, {YIS}, {v(c+4)}
    s_lshl_b32 {s(sT)}, {s(sJ)}, 7
    s_add_u32 {s(sT+1)}, {s(sT)}, 4
    s_sub_u32 {s(sT)}, {508*4}, {s(sT)}
    v_add3_u32 {v(vLld)}, {v(vLldM)}, {v(c+6)}, {s(sT+1)}
    v_sub_u32 {v(vLldM)}, {v(vLldM)}, {v(c+6)}
    v_add_u32 {v(vLldM)}, {s(sT)}, {v(vLldM)}
    s_lshr_b32 {s(sT)}, {s(sT+3)}, 24
    v_add3_u32 {v(vYIW)}, {v(vYIW)}, {v(c+6)}, {s(sT)}
    L_adone:
    v_add_u32 {v(vYIW)}, {L_YI}, {v(vYIW)}
    s_waitcnt vmcnt({(0 if cfg.aft&1 else 2)+(0 if cfg.aft&2 else 2)+(1 if cfg.g2pos==0 else 0)})
    {tabt if cfg.aft&1 else ''}
    {ltch if cfg.aft&1 else ''}
    {clrs if cfg.aft&2 else ''}
    {g2c if cfg.g2pos==1 else ''}
    v_readfirstlane_b32 {s(sTag)}, {v(X0+6)}
    ''')
    for rho in (0,1):
        for k in (0,1):
            src=X0+2*rho+k
            a(f'v_lshlrev_b32 {v(X+4*k+rho)}, 16, {v(src)}')
            a(f'v_and_b32 {v(X+4*k+2+rho)}, 0xffff0000, {v(src)}')
    for k in (0,1):
        a(f'v_lshlrev_b32 {v(WV+2*k)}, 16, {v(X0+4+k)}')
        a(f'v_and_b32 {v(WV+2*k+1)}, 0xffff0000, {v(X0+4+k)}')
    a(f's_add_u32 {s(sTag)}, {s(sTag)}, 1')

def xin_consts(c):
    a(f'''
    s_and_b32 {s(sT)}, {s(sX)}, 3                ; 0 => self
    s_lshr_b32 {s(sT+1)}, {s(sW)}, 2
    s_lshr_b32 {s(sT+2)}, {s(sX)}, 2
    s_mov_b32 {s(sSc)}, {fbits(16.0)}
    s_cmp_eq_u32 {s(sT)}, 0
    s_cselect_b32 {s(sMir)}, {s(sT+1)}, {s(sT+2)}
    s_cselect_b32 {s(sSc)}, {fbits(8.0)}, {s(sSc)}
    s_cselect_b32 {s(sDsc)}, {fbits(1/8)}, {s(sC16)}
    s_cselect_b32 {s(sT+3)}, -4, 0
    s_mov_b32 {s(sSc+1)}, {s(sSc)}
    s_sub_u32 {s(sT+4)}, 256, s2
    s_and_b32 {s(sT+4)}, {s(sT+4)}, 255
    s_cmp_eq_u32 {s(sMir)}, 0
    s_cselect_b32 {s(sT+4)}, s2, {s(sT+4)}       ; source g
    s_cselect_b32 {s(sT+5)}, 16, -16
    s_cselect_b32 {s(sT+6)}, 0, {509*4}
    s_cselect_b32 {s(sT+7)}, 1.0, -1.0
    s_add_u32 {s(sT+3)}, {s(sT+3)}, {s(sT+6)}
    s_mul_i32 {s(sT+6)}, {s(sT+5)}, {s(sW)}
    s_lshl_b32 {s(sT+6)}, {s(sT+6)}, 4
    s_add_u32 {s(sT+3)}, {s(sT+3)}, {s(sT+6)}
    s_lshr_b32 {s(sT+6)}, {s(sT+4)}, 3
    s_lshl_b32 {s(sT+6)}, {s(sT+6)}, 11
    s_add_u32 {s(sT+3)}, {s(sT+3)}, {s(sT+6)}
    s_add_u32 {s(sT+6)}, {s(sT+4)}, 3
    s_and_b32 {s(sT+6)}, {s(sT+6)}, 3
    s_lshl_b32 {s(sT+6)}, {s(sT+6)}, 16
    s_add_u32 {s(sT+3)}, {s(sT+3)}, {s(sT+6)}
    s_and_b32 {s(sT+6)}, {s(sT+4)}, 4
    s_lshl_b32 {s(sT+6)}, {s(sT+6)}, 8
    s_add_u32 {s(sT+3)}, {s(sT+3)}, {s(sT+6)}
    v_mul_i32_i24 {v(vGld)}, {s(sT+5)}, {v(vN)}
    v_mul_u32_u24 {v(c+4)}, {GS}, {v(vQ)}
    v_add3_u32 {v(vGld)}, {v(vGld)}, {v(c+4)}, {s(sT+3)}
    v_lshrrev_b32 {v(c+4)}, 1, {v(vN)}
    v_and_b32 {v(c+4)}, 6, {v(c+4)}
    v_and_or_b32 {v(c+4)}, {v(vN)}, 1, {v(c+4)}
    v_lshl_add_u32 {v(AD)}, {v(c+4)}, 8, s2
    v_cvt_f32_u32 {v(c+4)}, {v(AD)}
    v_cvt_f32_u32 {v(c+5)}, {v(vQ)}
    v_mul_f32 {v(c+4)}, {fbits(1/2048)}, {v(c+4)}
    v_mul_f32 {v(c+4)}, {s(sT+7)}, {v(c+4)}
    v_mul_f32 {v(c+5)}, {v(c+4)}, {v(c+5)}
    v_fma_f32 {v(c+6)}, {v(c+4)}, 4.0, {v(c+5)}
    v_cos_f32 {v(c+7)}, {v(c+5)}
    v_sin_f32 {v(c+8)}, {v(c+5)}
    v_cos_f32 {v(c+9)}, {v(c+6)}
    v_sin_f32 {v(c+10)}, {v(c+6)}
    v_bfe_u32 {v(c+4)}, {v(vN)}, 1, 1
    v_cmp_eq_u32 vcc, {s(sMir)}, {v(c+4)}
    v_cvt_pk_f16_f32 {v(c+7)}, {v(c+7)}, {v(c+8)}
    v_cvt_pk_f16_f32 {v(c+9)}, {v(c+9)}, {v(c+10)}
    v_cndmask_b32 {v(XA)}, 0, {v(c+7)}, vcc
    v_cndmask_b32 {v(XA+1)}, {v(c+7)}, 0, vcc
    v_cndmask_b32 {v(XA+2)}, 0, {v(c+9)}, vcc
    v_cndmask_b32 {v(XA+3)}, {v(c+9)}, 0, vcc
    v_and_b32 {v(c+4)}, 0x1cf, v0
    v_cmp_eq_u32 vcc, 0, {v(c+4)}
    v_mov_b32 {v(c+5)}, {s(sSc)}
    s_sub_u32 {s(sT)}, 2047, s2
    v_lshlrev_b32 {v(vInv)}, 9, {v(vQ)}
    v_cndmask_b32 {v(vSc0)}, {v(c+5)}, 0, vcc
    v_cndmask_b32 {v(vSc0+1)}, {v(c+5)}, 0, vcc
    v_sub_u32 {v(vInv)}, {s(sT)}, {v(vInv)}
    s_lshl_b32 {s(sSlot)}, {s(sX)}, 12
    s_add_u32 {s(sSlot)}, {s(sSlot)}, {SLOT}
    s_mov_b32 {s(sPh)}, -1
    ''')

def main_loop():
    t=T
    S1,S2,S3=t,t+2,t+4
    a('L_top:')
    stamp()
    a(f'''
    v_pk_add_f32 {v(S1,2)}, {v(X,2)}, {v(X+2,2)}
    v_pk_add_f32 {v(t+6,2)}, {v(X+4,2)}, {v(X+6,2)}
    v_pk_mul_f32 {v(S2,2)}, {v(X,2)}, {v(X,2)}
    v_pk_mul_f32 {v(S3,2)}, {v(X,2)}, {v(WV,2)} op_sel:[0,0] op_sel_hi:[1,0]
    v_pk_add_f32 {v(S1,2)}, {v(S1,2)}, {v(t+6,2)}
    v_pk_fma_f32 {v(S2,2)}, {v(X+2,2)}, {v(X+2,2)}, {v(S2,2)}
    v_pk_fma_f32 {v(S3,2)}, {v(X+2,2)}, {v(WV,2)}, {v(S3,2)} op_sel:[0,1,0] op_sel_hi:[1,1,1]
    v_add_f32_dpp {v(S1)}, {v(S1)}, {v(S1)} row_ror:8 row_mask:0xf bank_mask:0x3
    v_pk_fma_f32 {v(S2,2)}, {v(X+4,2)}, {v(X+4,2)}, {v(S2,2)}
    v_pk_fma_f32 {v(S3,2)}, {v(X+4,2)}, {v(WV+2,2)}, {v(S3,2)} op_sel:[0,0,0] op_sel_hi:[1,0,1]
    v_add_f32_dpp {v(S1)}, {v(S1+1)}, {v(S1+1)} row_ror:8 row_mask:0xf bank_mask:0xc
    v_pk_fma_f32 {v(S2,2)}, {v(X+6,2)}, {v(X+6,2)}, {v(S2,2)}
    v_pk_fma_f32 {v(S3,2)}, {v(X+6,2)}, {v(WV+2,2)}, {v(S3,2)} op_sel:[0,1,0] op_sel_hi:[1,1,1]
    s_cmp_eq_u32 {s(sIt)}, 0
    s_cbranch_scc1 L_s3w
    L_s3ok:
    v_add_f32_dpp {v(S1)}, {v(S1)}, {v(S1)} row_half_mirror row_mask:0xf bank_mask:0x5
    v_add_f32_dpp {v(S2)}, {v(S2)}, {v(S2)} row_ror:8 row_mask:0xf bank_mask:0x3
    v_add_f32_dpp {v(S3)}, {v(S3)}, {v(S3)} row_ror:8 row_mask:0xf bank_mask:0x3
    v_add_f32_dpp {v(S2)}, {v(S2+1)}, {v(S2+1)} row_ror:8 row_mask:0xf bank_mask:0xc
    v_add_f32_dpp {v(S3)}, {v(S3+1)}, {v(S3+1)} row_ror:8 row_mask:0xf bank_mask:0xc
    v_add_f32_dpp {v(S1)}, {v(S2)}, {v(S2)} row_half_mirror row_mask:0xf bank_mask:0xa
    v_add_f32_dpp {v(S3)}, {v(S3)}, {v(S3)} row_half_mirror {DPP}
    v_add_f32_dpp {v(S1)}, {v(S1)}, {v(S1)} quad_perm:[1,0,3,2] {DPP}
    v_add_f32_dpp {v(S3)}, {v(S3)}, {v(S3)} quad_perm:[1,0,3,2] {DPP}
    v_add_f32_dpp {v(S1)}, {v(S1)}, {v(S1)} quad_perm:[2,3,0,1] {DPP}
    v_add_f32_dpp {v(S3)}, {v(S3)}, {v(S3)} quad_perm:[2,3,0,1] {DPP}
    s_mov_b64 exec, {s(sQmask,2)}
    ds_write2_b32 {v(vStW)}, {v(S1)}, {v(S3)} offset0:0 offset1:32
    s_mov_b64 exec, -1
    ;@F
    s_waitcnt {'' if cfg.late else 'vmcnt(0)' if cfg.tch==1 else 'vmcnt(2)'} lgkmcnt(0)
    s_barrier
    ;@F
    ds_read_b128 {v(t,4)}, {v(vStR)}
    ds_read_b128 {v(t+4,4)}, {v(vStR)} offset:16
    s_waitcnt lgkmcnt(0)
    v_pk_add_f32 {v(t,2)}, {v(t,2)}, {v(t+2,2)}
    v_pk_add_f32 {v(t+4,2)}, {v(t+4,2)}, {v(t+6,2)}
    v_pk_add_f32 {v(t,2)}, {v(t,2)}, {v(t+4,2)}
    v_add_f32 {v(t)}, {v(t)}, {v(t+1)}
    v_mul_f32 {v(t+7)}, {s(sK512)}, {v(t)}
    ''')
    VAR,RS,CC,NM=t+8,t+10,t+12,t+14
    K=t+16
    a(f'''
    v_mov_b32_dpp {v(MM)}, {v(t+7)} row_newbcast:0 {DPP}
    v_mov_b32_dpp {v(MM+1)}, {v(t+7)} row_newbcast:1 {DPP}
    v_mov_b32_dpp {v(S2)}, {v(t+7)} row_newbcast:2 {DPP}
    v_mov_b32_dpp {v(S2+1)}, {v(t+7)} row_newbcast:3 {DPP}
    v_mov_b32_dpp {v(S3)}, {v(t+7)} row_newbcast:4 {DPP}
    v_pk_fma_f32 {v(VAR,2)}, {v(MM,2)}, {v(MM,2)}, {v(S2,2)} neg_lo:[1,0,0] neg_hi:[1,0,0]
    v_mov_b32_dpp {v(S3+1)}, {v(t+7)} row_newbcast:5 {DPP}
    v_pk_add_f32 {v(S1,2)}, {v(VAR,2)}, {s(sEps,2)}
    s_cmp_eq_u32 {s(sIt)}, 0
    v_rsq_f32_e64 {v(RS)}, |{v(S1)}|
    v_rsq_f32_e64 {v(RS+1)}, |{v(S1+1)}|
    s_cbranch_scc1 L_it0 ;!nd
    v_pk_mul_f32 {v(S3,2)}, {v(S3,2)}, {v(RS,2)}
    v_add_u32 {v(K+2)}, 0xffffff00, {v(vInv)}
    v_ashrrev_i32 {v(K)}, 31, {v(S3)}
    v_ashrrev_i32 {v(K+1)}, 31, {v(S3+1)}
    v_bitop3_b32 {v(K)}, {v(S3)}, {v(K)}, {s(sTop)} bitop3:0x1e
    v_bitop3_b32 {v(K+1)}, {v(S3+1)}, {v(K+1)}, {s(sTop)} bitop3:0x1e
    v_bfi_b32 {v(K)}, {s(sM7FF)}, {v(vInv)}, {v(K)}
    v_bfi_b32 {v(K+1)}, {s(sM7FF)}, {v(K+2)}, {v(K+1)}
    v_max_u32 {v(K+1)}, {v(K)}, {v(K+1)}
    v_pk_add_f32 {v(CC,2)}, {v(RS,2)}, 1.0 op_sel_hi:[1,0]
    v_mov_b32 {v(K)}, {s(sTag)}
    v_max_u32_dpp {v(K+1)}, {v(K+1)}, {v(K+1)} row_bcast:15 row_mask:0xa bank_mask:0xf
    v_pk_mul_f32 {v(VAR,2)}, {v(VAR,2)}, {v(CC,2)}
    s_cmp_lg_u32 {s(sW)}, 0
    v_max_u32_dpp {v(K+1)}, {v(K+1)}, {v(K+1)} row_bcast:31 row_mask:0xc bank_mask:0xf
    s_cbranch_scc1 L_nost ;!nd
    s_mov_b32 exec_lo, 0
    s_mov_b32 exec_hi, {s(sTop)}
    s_cmp_eq_u32 {s(sFast)}, 0
    s_cbranch_scc1 L_tabst_slow ;!nd
    buffer_store_dwordx2 {v(K,2)}, off, {WS}, {s(sTabSt)}
    L_tabst_back:
    s_mov_b64 exec, -1
    L_nost:
    v_readlane_b32 {s(sKey)}, {v(K+1)}, 63
    v_pk_mul_f32 {v(NM,2)}, {v(MM,2)}, {v(RS,2)}
    v_pk_fma_f32 {v(VAR,2)}, {v(VAR,2)}, {v(CC,2)}, {s(sEps,2)}
    ''')
    Z=t+18
    for c_ in range(4):
        a(f'v_pk_fma_f32 {v(Z+2*c_,2)}, {v(X+2*c_,2)}, {v(RS,2)}, {v(NM,2)} neg_lo:[0,0,1] neg_hi:[0,0,1]')
        if c_==0: a(f'v_rsq_f32_e64 {v(RS2)}, |{v(VAR)}|')
        if c_==1: a(f'v_rsq_f32_e64 {v(RS2+1)}, |{v(VAR+1)}|')
    for c_ in range(4):
        a(f'v_pk_add_f32 {v(X+2*c_,2)}, {v(X+2*c_,2)}, {v(Z+2*c_,2)}')
    for rho in (0,1):
        for k in (0,1):
            a(f'v_cvt_pk_bf16_f32 {v(LNP+2*rho+k)}, {v(Z+4*k+rho)}, {v(Z+4*k+2+rho)}')
    a(f'''
    s_cmp_eq_u32 {s(sIt)}, 2
    s_cbranch_scc1 L_tab2e ;!nd
    v_pk_mul_f32 {v(CC,2)}, {v(RS2,2)}, {s(sC16,2)}
    L_z:
    ;@F
    ''')
    ZP=t; D0=t+4; D1=t+8
    a(f'v_pk_mul_f32 {v(NM,2)}, {v(MM,2)}, {v(CC,2)}')
    for c_ in range(4):
        a(f'v_pk_fma_f32 {v(Z+2*c_,2)}, {v(X+2*c_,2)}, {v(CC,2)}, {v(NM,2)} neg_lo:[0,0,1] neg_hi:[0,0,1]')
    for c_ in range(4): a(f'v_cvt_pk_f16_f32 {v(ZP+c_)}, {v(Z+2*c_)}, {v(Z+2*c_+1)}')
    a(f'''
    v_mfma_f32_16x16x16_f16 {v(D0,4)}, {v(A8,2)}, {v(ZP,2)}, 0
    v_mfma_f32_16x16x16_f16 {v(D1,4)}, {v(A8,2)}, {v(ZP+2,2)}, 0
    s_nop 6
    v_cvt_pk_f16_f32 {v(ZP)}, {v(D0)}, {v(D0+1)}
    v_cvt_pk_f16_f32 {v(ZP+1)}, {v(D1)}, {v(D1+1)}
    v_cvt_pk_f16_f32 {v(ZP+2)}, {v(D0+2)}, {v(D0+3)}
    v_cvt_pk_f16_f32 {v(ZP+3)}, {v(D1+2)}, {v(D1+3)}
    ds_write_b64 {v(vUW)}, {v(ZP,2)}
    ds_write_b64 {v(vUW)}, {v(ZP+2,2)} offset:1024
    ;@F
    s_waitcnt lgkmcnt(0)
    s_barrier
    ;@F
    ds_read_b64_tr_b16 {v(t,2)}, {v(vUR)}
    ds_read_b64_tr_b16 {v(t+2,2)}, {v(vUR)} offset:512
    ds_read_b64_tr_b16 {v(t+4,2)}, {v(vUR)} offset:1024
    ds_read_b64_tr_b16 {v(t+6,2)}, {v(vUR)} offset:1536
    s_cmp_ge_u32 {s(sW)}, {s(sIt)}
    s_cbranch_scc1 L_tg1 ;!nd
    buffer_load_dwordx2 {v(t+24,2)}, {v(vL8)}, {WS}, {s(sTabLd)} offen sc1
    L_tg1:
    L_tg2:
    s_waitcnt lgkmcnt(0)
    ;@F
    ''')
    P=t
    fft_core(t, t+4, t+8, t+16, t+8, P)
    for r in range(4): a(f'v_bfi_b32 {v(P+r)}, 1, {s(sPh)}, {v(P+r)}')
    def lstores(fl):
        for r in range(4): a(f'buffer_store_dword {v(P+r)}, {v(vLst)}, {WS}, {s(sLst)} offen offset:{128*r} {fl}')
    TB=t+24
    W_=t+4
    a(f'''
    s_cmp_lg_u32 {s(sIt)}, 0
    s_cbranch_scc1 L_tab1e
    ''')
    lstores('')
    stamp()
    a(f'''
    s_branch L_pub
    L_tab1e:
    s_cmp_eq_u32 {s(sW)}, 0
    s_cbranch_scc1 L_tabw1
    s_branch L_tabbar
    L_tab2e:
    s_cmp_eq_u32 {s(sW)}, 0
    s_cbranch_scc1 L_tab
    s_branch L_tabbar
    L_tab:
    buffer_load_dwordx2 {v(TB,2)}, {v(vL8)}, {WS}, {s(sTabLd)} offen sc1
    L_tabw1:
    s_waitcnt vmcnt(0)
    v_cmp_ne_u32 vcc, {s(sTag)}, {v(TB)}
    ''')
    poll_branch('L_tab', cfg.slp_t, f'''s_cmp_lg_u32 {s(sIt)}, 0
        s_cselect_b32 {s(sT)}, 0, 1
        s_sub_u32 {s(sTry)}, {s(sTry)}, {s(sT)}
        s_cbranch_scc1 L_tab2''')
    a(f'''
    L_tabok:
    v_cmp_ne_u32 vcc, {s(sKey)}, {v(TB+1)}
    v_cmp_lt_u32 {s(sT,2)}, {s(sKey)}, {v(TB+1)}
    v_mov_b32 {v(TB)}, {L_FLAG}
    s_cmp_eq_u32 {s(sIt)}, 0
    s_cselect_b32 {s(sT)}, vcc_lo, {s(sT)}
    v_mov_b32 {v(TB+1)}, {s(sT)}
    ds_write_b32 {v(TB)}, {v(TB+1)}
    s_waitcnt lgkmcnt(0)
    s_barrier
    s_branch L_tabgot
    L_tabbar:
    v_mov_b32 {v(TB)}, {L_FLAG}
    s_barrier
    ds_read_b32 {v(TB+1)}, {v(TB)}
    s_waitcnt lgkmcnt(0)
    v_readfirstlane_b32 {s(sT)}, {v(TB+1)}
    L_tabgot:
    s_cmp_eq_u32 {s(sIt)}, 0
    s_cbranch_scc1 L_fastchk ;!nd
    s_mov_b32 {s(sT+9)}, 64
    s_cmp_lg_u32 {s(sT)}, 0
    s_cbranch_scc1 L_winback ;!nd
    L_pub:
    s_andn2_b32 {s(sT)}, {s(sM7FF)}, {s(sKey)}      ; idx
    s_lshr_b32 {s(sT+9)}, {s(sT)}, 8                ; s1
    s_bitcmp1_b32 {s(sT+9)}, 0
    s_cselect_b64 vcc, -1, 0
    s_lshl_b32 {s(sT+1)}, {s(sT+9)}, 3
    s_and_b32 {s(sT+1)}, {s(sT+1)}, 0x30
    v_cndmask_b32 {v(W_)}, {v(LNP)}, {v(LNP+2)}, vcc
    v_cndmask_b32 {v(W_+1)}, {v(LNP+1)}, {v(LNP+3)}, vcc
    v_and_b32 {v(W_+2)}, 0x3ff, {v(vXoff)}
    s_bfm_b64 exec, 16, {s(sT+1)}
    buffer_store_dwordx2 {v(W_,2)}, {v(W_+2)}, {WS}, {s(sSlot)} offen sc1
    s_cmp_lg_u32 {s(sW)}, 0
    s_cbranch_scc1 L_nohdr
    v_mov_b32 {v(W_+8)}, {s(sKey)}
    v_cndmask_b32 {v(W_+9)}, {v(MM)}, {v(MM+1)}, vcc
    v_cndmask_b32 {v(W_+10)}, {v(RS2)}, {v(RS2+1)}, vcc
    v_mov_b32 {v(W_+11)}, {s(sKey)}
    buffer_store_dwordx4 {v(W_+8,4)}, off, {WS}, {s(sSlot)} offset:3072 sc1
    L_nohdr:
    ''')
    for c_ in range(4): a(f'v_cndmask_b32 {v(W_+4+c_)}, {v(X+2*c_)}, {v(X+2*c_+1)}, vcc')
    a(f'''
    v_lshlrev_b32 {v(W_+2)}, 1, {v(W_+2)}
    buffer_store_dwordx4 {v(W_+4,4)}, {v(W_+2)}, {WS}, {s(sSlot)} offen offset:1024 sc1
    s_mov_b64 exec, -1
    s_cmp_eq_u32 {s(sIt)}, 0
    s_cbranch_scc1 L_flag0
    L_winback:
    s_cmp_eq_u32 {s(sIt)}, 2
    s_cbranch_scc1 L_fin
    s_add_u32 {s(sSlot)}, {s(sSlot)}, {SLOTR}
    ''')
    lstores('')
    stamp()
    a(f'''
    s_waitcnt vmcnt(0)
    s_branch L_tabdone
    L_flag0:
    ;@F
    v_mov_b32 {v(t+22)}, {s(sTag)}
    v_mov_b32 {v(t+23)}, {s(sKey)}
    s_waitcnt vmcnt(0)
    ;@F
    s_cmp_eq_u32 {s(sW)}, 0
    s_barrier
    s_cbranch_scc0 L_tabbar
    s_mov_b64 exec, 1
    buffer_store_dwordx2 {v(t+22,2)}, off, {WS}, {s(sTabSt)}
    s_mov_b64 exec, -1
    s_branch L_tab
    L_fastchk:
    s_cmp_eq_u32 {s(sT)}, 0
    s_cselect_b32 {s(sFast)}, 1, 0
    L_tabdone:
    s_cmp_eq_u32 {s(sFast)}, 0
    s_cbranch_scc1 L_slow
    L_slowback:
    ;@F
    s_cmp_lt_u32 {s(sJ)}, 8
    s_cbranch_scc0 L_y
    s_branch L_yself
    L_y:
    buffer_load_dwordx4 {v(t,4)}, {v(vLld)}, {WS}, {s(sLld)} offen sc1
    s_waitcnt vmcnt(0)
    ds_write_b128 {v(vYIW)}, {v(t,4)}
    ''')
    phchk(range(t,t+4), t+8)
    poll_branch('L_y', cfg.slp_l, mask=True)
    a('L_yjoin:')
    stamp()
    a(f'''
    s_cmp_lg_u32 {s(sT+12)}, 0
    s_cbranch_scc1 L_noxf
    s_lshl_b32 {s(sT+12)}, {s(sX)}, 7
    s_add_u32 {s(sT+12)}, {s(sT+12)}, {TABG}
    v_lshrrev_b32 {v(t+8)}, 1, {v(vL8)}
    v_mov_b32 {v(t+9)}, {s(sTag)}
    s_mov_b32 exec_hi, 0
    buffer_store_dword {v(t+9)}, {v(t+8)}, {WS}, {s(sT+12)} offen sc1
    s_mov_b64 exec, -1
    L_noxf:
    ''')
    A0,A1=t,t+4; P0,Q0,P1,Q1=t+8,t+12,t+16,t+20
    a(f'''
    s_waitcnt lgkmcnt(0)
    s_barrier
    ;@F
    ds_read_b64_tr_b16 {v(A0,2)}, {v(vYIR)}
    ds_read_b64_tr_b16 {v(A0+2,2)}, {v(vYIR)} offset:{16*YIS}
    ds_read_b64_tr_b16 {v(A1,2)}, {v(vYIR)} offset:8
    ds_read_b64_tr_b16 {v(A1+2,2)}, {v(vYIR)} offset:{16*YIS+8}
    s_add_u32 {s(sTabLd)}, {s(sTabLd)}, {ARGR}
    s_add_u32 {s(sTabSt)}, {s(sTabSt)}, {ARGR}
    s_waitcnt lgkmcnt(2)
    v_mfma_f32_16x16x32_f16 {v(P0,4)}, {v(A0,4)}, {v(YC,4)}, 0
    v_mfma_f32_16x16x32_f16 {v(Q0,4)}, {v(A0,4)}, {v(YS,4)}, 0
    s_waitcnt lgkmcnt(0)
    v_mfma_f32_16x16x32_f16 {v(P1,4)}, {v(A1,4)}, {v(YC,4)}, 0
    v_mfma_f32_16x16x32_f16 {v(Q1,4)}, {v(A1,4)}, {v(YS,4)}, 0
    ''')
    for P_,Q_ in ((P0,Q0),(P1,Q1)):
        for h in (0,2):
            a(f'v_pk_add_f32 {v(P_+h,2)}, {v(P_+h,2)}, {v(Q_+h,2)} op_sel:[0,1] op_sel_hi:[1,0] neg_hi:[0,1]')
    a(f'''
    v_cvt_pk_f16_f32 {v(t)}, {v(P0)}, {v(P0+1)}
    v_cvt_pk_f16_f32 {v(t+1)}, {v(P0+2)}, {v(P0+3)}
    v_cvt_pk_f16_f32 {v(t+2)}, {v(P1)}, {v(P1+1)}
    v_cvt_pk_f16_f32 {v(t+3)}, {v(P1+2)}, {v(P1+3)}
    ds_write_b128 {v(vYW)}, {v(t,4)}
    ;@F
    s_waitcnt lgkmcnt(0)
    s_barrier
    ;@F
    ds_read_b128 {v(t+4,4)}, {v(vYR)}
    s_waitcnt lgkmcnt(0)
    buffer_store_dwordx4 {v(t+4,4)}, {v(vGst)}, {WS}, {s(sG0)} offen sc1
    ''')
    stamp()
    a(f'''
    s_cmp_lg_u32 {s(sIt)}, 0
    s_cbranch_scc1 L_hdr
    v_and_b32 {v(t+24)}, 7, {v(vLane)}
    v_lshlrev_b32 {v(t+24)}, 7, {v(t+24)}
    s_mov_b32 {s(sT+10)}, {TABG}
    v_mov_b32 {v(t+20)}, {s(sTag)}
    ''')
    a(f's_mov_b64 exec, 0xff\nbuffer_load_dword {v(t+20)}, {v(t+24)}, {WS}, {s(sT+10)} offen sc1\ns_mov_b64 exec, -1')
    xin_consts(t+8)
    a(';@F\nL_tg0w:\ns_waitcnt vmcnt(0)')
    a(f'v_cmp_ne_u32 vcc, {s(sTag)}, {v(t+20)}')
    a(f'''
    s_cbranch_vccz L_g ;!nd
    s_branch L_tg0_r
    L_g:
    ''')
    C0,C1=t,t+4
    a(f'''
    buffer_load_dwordx4 {v(C0,4)}, {v(vGld)}, {WS}, {s(sG0)} offen sc1
    buffer_load_dwordx4 {v(C1,4)}, {v(vGld)}, {WS}, {s(sG4)} offen sc1
    s_cmp_lg_u32 {s(sMir)}, 0
    s_waitcnt vmcnt(0)
    s_cbranch_scc1 L_xmir ;!nd
    ''')
    E0,E1=t+8,t+12
    a(f'''
    v_mfma_f32_16x16x16_f16 {v(E0,4)}, {v(XA,2)}, {v(C0,2)}, 0
    v_mfma_f32_16x16x16_f16 {v(E1,4)}, {v(XA,2)}, {v(C0+2,2)}, 0
    v_mfma_f32_16x16x16_f16 {v(E0,4)}, {v(XA+2,2)}, {v(C1,2)}, {v(E0,4)}
    v_mfma_f32_16x16x16_f16 {v(E1,4)}, {v(XA+2,2)}, {v(C1+2,2)}, {v(E1,4)}
    s_branch L_xjoin ;!nd
    L_xmir:
    ''')
    a.hist=[]
    a(f'''
    v_mfma_f32_16x16x16_f16 {v(E0,4)}, {v(XA,2)}, {v(C0+2,2)}, 0
    v_mfma_f32_16x16x16_f16 {v(E1,4)}, {v(XA,2)}, {v(C0,2)}, 0
    v_mfma_f32_16x16x16_f16 {v(E0,4)}, {v(XA+2,2)}, {v(C1+2,2)}, {v(E0,4)}
    v_mfma_f32_16x16x16_f16 {v(E1,4)}, {v(XA+2,2)}, {v(C1,2)}, {v(E1,4)}
    L_xjoin:
    ''')
    maxchk(range(t,t+8), t+16)
    poll_branch('L_g', cfg.slp_g, mask=True)
    stamp()
    a(f'''
    s_cmp_lg_u32 {s(sIt)}, 0
    s_mov_b32 {s(sIt)}, 1
    s_cbranch_scc1 L_corr ;!nd
    s_add_u32 {s(sG0)}, {s(sG0)}, {GR}
    s_add_u32 {s(sG4)}, {s(sG4)}, {GR}
    L_corrback:
    v_pk_fma_f32 {v(X,2)}, {v(E0,2)}, {v(vSc0,2)}, {v(X,2)}
    v_pk_fma_f32 {v(X+2,2)}, {v(E0+2,2)}, {s(sSc,2)}, {v(X+2,2)}
    v_pk_fma_f32 {v(X+4,2)}, {v(E1,2)}, {s(sSc,2)}, {v(X+4,2)}
    v_pk_fma_f32 {v(X+6,2)}, {v(E1+2,2)}, {s(sSc,2)}, {v(X+6,2)}
    s_branch L_top ;!nd
    ''')
    a(f'''
    L_yself:
    buffer_load_dwordx4 {v(t,4)}, {v(vLld)}, {WS}, {s(sLld)} offen sc1
    buffer_load_dwordx4 {v(t+4,4)}, {v(vLldM)}, {WS}, {s(sLld)} offen sc1
    s_waitcnt vmcnt(0)
    ''')
    phchk(range(t,t+8), t+8)
    poll_branch('L_yself', cfg.slp_l, mask=True)
    a(f'''
    s_bitcmp1_b32 {s(sW)}, 0
    s_cbranch_scc1 L_yself4
    ''')
    for k in range(4): a(f'v_pk_add_f16 {v(t+k)}, {v(t+k)}, {v(t+7-k)} neg_hi:[0,1]')
    a(f'ds_write_b128 {v(vYIW)}, {v(t,4)}\ns_branch L_yjoin\nL_yself4:')
    for k in range(4): a(f'v_pk_add_f16 {v(t+k)}, {v(t+k)}, {v(t+7-k)} op_sel:[1,1] op_sel_hi:[0,0] neg_hi:[1,0]')
    a(f'ds_write_b128 {v(vYIW)}, {v(t,4)}\ns_branch L_yjoin')
    a(f'''
    L_s3w:
    v_pk_add_f32 {v(S3,2)}, {v(WV,2)}, {v(WV+2,2)}
    v_add_f32 {v(S3)}, {v(S3)}, {v(S3+1)}
    v_mov_b32 {v(S3+1)}, {v(S3)}
    s_branch L_s3ok
    L_it0:
    s_mov_b32 {s(sKey)}, {s(sXcc)}
    v_pk_mul_f32 {v(CC,2)}, {v(RS,2)}, {s(sC16,2)}
    v_mov_b32 {v(S1)}, 0x44000000
    v_pk_add_f32 {v(WV,2)}, {v(WV,2)}, {v(S3,2)} neg_lo:[0,1] neg_hi:[0,1]
    v_pk_add_f32 {v(WV+2,2)}, {v(WV+2,2)}, {v(S3,2)} neg_lo:[0,1] neg_hi:[0,1]
    v_pk_mul_f32 {v(WV,2)}, {v(WV,2)}, {v(S1,2)} op_sel_hi:[1,0]
    v_pk_mul_f32 {v(WV+2,2)}, {v(WV+2,2)}, {v(S1,2)} op_sel_hi:[1,0]
    ''')
    a('s_branch L_z')
    H=t+8
    sIdx=sT+11
    a(f'''
    L_hdr:
    v_and_b32 {v(t+16)}, 7, {v(vLane)}
    v_lshlrev_b32 {v(t+16)}, 12, {v(t+16)}
    s_mov_b32 {s(sT+10)}, {SLOT}
    s_mov_b64 exec, 0xff
    L_hdrp:
    buffer_load_dwordx4 {v(H,4)}, {v(t+16)}, {WS}, {s(sT+10)} offen offset:3072 sc1
    s_waitcnt vmcnt(0)
    ''')
    maxchk(range(H,H+4), t+17)
    poll_branch('L_hdrp', 2, skip=True)
    a(f'''
    s_mov_b64 exec, -1
    v_max_u32_dpp {v(H+3)}, {v(H)}, {v(H)} row_half_mirror {DPP}
    v_max_u32_dpp {v(H+3)}, {v(H+3)}, {v(H+3)} quad_perm:[1,0,3,2] {DPP}
    v_max_u32_dpp {v(H+3)}, {v(H+3)}, {v(H+3)} quad_perm:[2,3,0,1] {DPP}
    v_readfirstlane_b32 {s(sIdx)}, {v(H+3)}
    v_lshlrev_b32 {v(t+16)}, 5, {v(vLane)}
    s_andn2_b32 {s(sIdx)}, {s(sM7FF)}, {s(sIdx)}
    s_and_b32 {s(sT)}, {s(sIdx)}, 7
    s_lshl_b32 {s(sT+1)}, {s(sT)}, 12
    s_add_u32 {s(sT+10)}, {s(sT+10)}, {s(sT+1)}
    v_readlane_b32 {s(sT+13)}, {v(H+1)}, {s(sT)}
    v_readlane_b32 {s(sT+14)}, {v(H+2)}, {s(sT)}
    v_mul_u32_u24 {v(t+17)}, {s(sIdx)}, {v(AD)}
    v_and_b32 {v(t+17)}, 0x7ff, {v(t+17)}
    v_cvt_f32_u32 {v(t+17)}, {v(t+17)}
    v_mul_f32 {v(t+17)}, {fbits(1/2048)}, {v(t+17)}
    v_cos_f32 {v(t+18)}, {v(t+17)}
    v_sin_f32 {v(t+19)}, {v(t+17)}
    v_and_b32 {v(t+17)}, 0x32, {v(vLane)}
    v_cvt_pk_f16_f32 {v(t+18)}, {v(t+18)}, {v(t+19)}
    v_cmp_eq_u32 vcc, 0, {v(t+17)}
    s_sub_u32 {s(sT)}, 2047, {s(sIdx)}
    s_add_u32 {s(sT+1)}, {s(sT)}, 256
    v_cndmask_b32 {v(AD)}, 0, {v(t+18)}, vcc
    v_cmp_eq_u32 vcc, 2, {v(t+17)}
    v_mov_b32 {v(BC+10)}, {s(sT+14)}
    v_mul_f32 {v(BC+10)}, {s(sDsc)}, {v(BC+10)}         ; rs2*dsc
    v_cndmask_b32 {v(AD+1)}, 0, {v(t+18)}, vcc
    v_cmp_eq_u32 vcc, {s(sT)}, {v(vInv)}
    v_cndmask_b32 {v(BC)}, 0, 1.0, vcc
    v_cmp_eq_u32 vcc, {s(sT+1)}, {v(vInv)}
    v_cndmask_b32 {v(BC+1)}, 0, 1.0, vcc
    ''')
    if cfg.post:
        a(f'''
        s_cmp_lt_u32 {s(sJ)}, {28 if cfg.post==1 else 0}
        s_cbranch_scc1 L_g
        s_cmp_lg_u32 {s(sW)}, 0
        s_cbranch_scc1 L_postb
        s_lshl_b32 {s(sT)}, {s(sX)}, 7
        s_add_u32 {s(sT)}, {s(sT)}, {YHINT}
        v_and_b32 {v(t+16)}, 3, {v(vLane)}
        v_lshlrev_b32 {v(t+16)}, 2, {v(t+16)}
        s_movk_i32 {s(sTry)}, 500
        L_post:
        buffer_load_dword {v(t+17)}, {v(t+16)}, {WS}, {s(sT)} offen sc1
        s_waitcnt vmcnt(0)
        v_cmp_ne_u32 vcc, {s(sTag)}, {v(t+17)}
        ''')
        poll_branch('L_post', 2, giveup='L_postb')
        a('L_postb:\ns_barrier')
    a(f'''
    s_branch L_g
    ''')
    Y=t+16; YX=t; u=t+4
    vDW,vDR=BC+12,BC+13
    a(f'''
    L_corr:
    s_mov_b32 {s(sIt)}, 2
    v_and_b32 {v(u)}, 3, {v(vLane)}
    v_lshlrev_b32 {v(u)}, 2, {v(u)}
    v_lshrrev_b32 {v(u+2)}, 2, {v(vN)}
    v_lshlrev_b32 {v(u+2)}, 7, {v(u+2)}
    v_lshl_add_u32 {v(u+2)}, {v(u)}, 2, {v(u+2)}          ; (n>>2)*128+(n&3)*16
    s_lshl_b32 {s(sT+1)}, {s(sW)}, 9
    s_add_u32 {s(sT+1)}, {s(sT+1)}, {YBUF}
    s_and_b32 {s(sT+4)}, {s(sIdx)}, 255
    s_cmp_eq_u32 {s(sT+4)}, s2
    s_cselect_b32 {s(sT+1)}, {s(sT+1)}, {WSSZ}
    s_lshl_b32 {s(sT+3)}, {s(sW)}, 8
    s_add_u32 {s(sT+3)}, {s(sT+3)}, {L_DH}
    v_lshl_add_u32 {v(vDR)}, {v(vN)}, 4, {s(sT+3)}
    s_cmp_gt_u32 {s(sW)}, 1
    s_cbranch_scc1 L_yv2b
    v_lshlrev_b32 {v(u+1)}, 4, {v(vLane)}
    L_basep:
    buffer_load_dwordx4 {v(BC+2,4)}, {v(u+1)}, {WS}, {s(sT+10)} offen offset:1024 sc1
    buffer_load_dwordx4 {v(BC+6,4)}, {v(u+1)}, {WS}, {s(sT+10)} offen offset:2048 sc1
    s_waitcnt vmcnt(0)
    ''')
    maxchk(range(BC+2,BC+10), u+3)
    poll_branch('L_basep', 2, skip=True)
    for k in range(8): a(f'v_subrev_f32 {v(BC+2+k)}, {s(sT+13)}, {v(BC+2+k)}')
    a(f'''
    s_lshl_b32 {s(sT)}, {s(sX)}, 7
    s_add_u32 {s(sT)}, {s(sT)}, {YHINT}
    v_lshl_add_u32 {v(u+1)}, {v(vQ)}, 9, {v(u+2)}         ; (l>>2)*128+(l&3)*16
    s_mov_b32 {s(sT+2)}, {YBUF}
    s_lshl_b32 {s(sT+3)}, {s(sW)}, 10
    s_add_u32 {s(sT+3)}, {s(sT+3)}, {L_U}
    v_lshl_add_u32 {v(t+25)}, {v(vLane)}, 3, {s(sT+3)}
    s_lshl_b32 {s(sT+3)}, {s(sW)}, 6
    s_add_u32 {s(sT+3)}, {s(sT+3)}, {L_DH}
    v_lshl_add_u32 {v(vDW)}, {v(vQ)}, 9, {s(sT+3)}
    v_lshl_add_u32 {v(vDW)}, {v(vN)}, 2, {v(vDW)}
    s_cmp_lg_u32 {s(sW)}, 0
    s_cbranch_scc1 L_hintb
    s_movk_i32 {s(sTry)}, 500
    L_hint:
    buffer_load_dword {v(u+3)}, {v(u)}, {WS}, {s(sT)} offen sc1
    s_waitcnt vmcnt(0)
    v_cmp_ne_u32 vcc, {s(sTag)}, {v(u+3)}
    ''')
    poll_branch('L_hint', 1, giveup='L_hintb')
    if cfg.tim_y: a(f's_sleep {cfg.tim_y}')
    a(f'''
    L_hintb:
    s_barrier
    L_yv:
    buffer_load_dwordx4 {v(Y,4)}, {v(u+1)}, {WS}, {s(sT+2)} offen sc1
    buffer_load_dwordx4 {v(Y+4,4)}, {v(u+1)}, {WS}, {s(sT+2)} offen offset:2048 sc1
    buffer_load_dwordx4 {v(YX,4)}, {v(u+2)}, {WS}, {s(sT+1)} offen sc1
    s_waitcnt vmcnt(0)
    ''')
    maxchk(list(range(Y,Y+8))+list(range(YX,YX+4)), u+3)
    poll_branch('L_yv', 1, mask=True)
    stamp()
    for k in range(4): a(f'v_pk_add_f32 {v(Y+2*k,2)}, {v(Y+2*k,2)}, {v(BC+2+2*k,2)}')
    s1,s2=u,u+2
    own=[f'v_pk_fma_f32 {v(X,2)}, {v(BC,2)}, {v(YX,2)}, {v(X,2)} op_sel:[0,0,0] op_sel_hi:[1,0,1]',
         f'v_pk_fma_f32 {v(X+2,2)}, {v(BC,2)}, {v(YX,2)}, {v(X+2,2)} op_sel:[0,1,0] op_sel_hi:[1,1,1]',
         f'v_pk_fma_f32 {v(X+4,2)}, {v(BC,2)}, {v(YX+2,2)}, {v(X+4,2)} op_sel:[0,0,0] op_sel_hi:[1,0,1]',
         f'v_pk_fma_f32 {v(X+6,2)}, {v(BC,2)}, {v(YX+2,2)}, {v(X+6,2)} op_sel:[0,1,0] op_sel_hi:[1,1,1]']
    a(f'''
    v_pk_add_f32 {v(s1,2)}, {v(Y,2)}, {v(Y+2,2)}
    v_pk_mul_f32 {v(s2,2)}, {v(Y,2)}, {v(Y,2)}
    v_pk_add_f32 {v(s1,2)}, {v(s1,2)}, {v(Y+4,2)}
    v_pk_fma_f32 {v(s2,2)}, {v(Y+2,2)}, {v(Y+2,2)}, {v(s2,2)}
    v_pk_add_f32 {v(s1,2)}, {v(s1,2)}, {v(Y+6,2)}
    v_pk_fma_f32 {v(s2,2)}, {v(Y+4,2)}, {v(Y+4,2)}, {v(s2,2)}
    v_add_f32 {v(s1)}, {v(s1)}, {v(s1+1)}
    v_pk_fma_f32 {v(s2,2)}, {v(Y+6,2)}, {v(Y+6,2)}, {v(s2,2)}
    v_add_f32 {v(s2)}, {v(s2)}, {v(s2+1)}
    {own[0]}
    {own[1]}
    v_permlane32_swap_b32 {v(s1)}, {v(s2)}
    v_add_f32 {v(s1)}, {v(s1)}, {v(s2)}
    {own[2]}
    {own[3]}
    v_add_f32_dpp {v(s1)}, {v(s1)}, {v(s1)} row_ror:8 {DPP}
    v_pk_mul_f32 {v(BC+2,2)}, {v(BC+2,2)}, {v(BC+10,2)} op_sel_hi:[1,0]
    v_pk_mul_f32 {v(BC+4,2)}, {v(BC+4,2)}, {v(BC+10,2)} op_sel_hi:[1,0]
    v_add_f32_dpp {v(s1)}, {v(s1)}, {v(s1)} row_ror:4 {DPP}
    v_pk_mul_f32 {v(BC+6,2)}, {v(BC+6,2)}, {v(BC+10,2)} op_sel_hi:[1,0]
    v_pk_mul_f32 {v(BC+8,2)}, {v(BC+8,2)}, {v(BC+10,2)} op_sel_hi:[1,0]
    v_add_f32_dpp {v(s1)}, {v(s1)}, {v(s1)} row_ror:2 {DPP}
    v_add_f32_dpp {v(s1)}, {v(s1)}, {v(s1)} row_ror:1 {DPP}
    v_add_f32_dpp {v(s1)}, {v(s1)}, {v(s1)} row_bcast:15 row_mask:0xa bank_mask:0xf
    v_mul_f32 {v(s1)}, {s(sK512)}, {v(s1)}
    v_readlane_b32 {s(sT+1)}, {v(s1)}, 31
    v_readlane_b32 {s(sT+2)}, {v(s1)}, 63
    v_mov_b32 {v(s2)}, {s(sT+1)}
    v_fma_f32 {v(s1)}, -{v(s2)}, {v(s2)}, {s(sT+2)}
    v_add_f32 {v(s1)}, {s(sEps)}, {v(s1)}
    v_rsq_f32_e64 {v(s1)}, |{v(s1)}|
    v_mul_f32 {v(s1)}, {s(sDsc)}, {v(s1)}
    ''')
    for k in range(4):
        a(f'v_pk_fma_f32 {v(Y+2*k,2)}, {v(Y+2*k,2)}, {v(s1,2)}, {v(BC+2+2*k,2)} op_sel_hi:[1,0,1] neg_lo:[0,0,1] neg_hi:[0,0,1]')
    for k in range(4): a(f'v_cvt_pk_f16_f32 {v(t+k)}, {v(Y+2*k)}, {v(Y+2*k+1)}')
    a(f'''
    ds_write2st64_b64 {v(t+25)}, {v(t,2)}, {v(t+2,2)} offset0:0 offset1:1
    ds_read_b64_tr_b16 {v(t+4,2)}, {v(t+25)}
    ds_read_b64_tr_b16 {v(t+6,2)}, {v(t+25)} offset:512
    s_waitcnt lgkmcnt(0)
    ;@F
    ''')
    fft_core(t+4, None, t+16, BC+2, t+16, t)
    a(f'''
    ds_write2_b32 {v(vDW)}, {v(t)}, {v(t+1)} offset0:0 offset1:32
    ds_write2_b32 {v(vDW)}, {v(t+2)}, {v(t+3)} offset0:64 offset1:96
    L_dhb:
    ;@F
    s_waitcnt lgkmcnt(0)
    s_barrier
    ;@F
    ds_read_b128 {v(t,4)}, {v(vDR)}
    s_waitcnt lgkmcnt(0)
    v_mfma_f32_16x16x16_f16 {v(E0,4)}, {v(AD,2)}, {v(t,2)}, {v(E0,4)}
    v_mfma_f32_16x16x16_f16 {v(E1,4)}, {v(AD,2)}, {v(t+2,2)}, {v(E1,4)}
    s_nop 5
    s_branch L_corrback ;!nd
    L_yv2b:
    s_barrier
    s_cmp_lg_u32 {s(sT+4)}, s2
    s_cbranch_scc1 L_yv3
    L_yv2:
    buffer_load_dwordx4 {v(YX,4)}, {v(u+2)}, {WS}, {s(sT+1)} offen sc1
    s_waitcnt vmcnt(0)
    ''')
    maxchk(range(YX,YX+4), u+3)
    poll_branch('L_yv2', 1, mask=True)
    a('\n'.join(own)+'\nL_yv3:')
    stamp(); fstamp()
    a('s_branch L_dhb')
    a('L_fin:')
    if cfg.odel: a(f's_sleep {cfg.odel}')
    for rho in (0,1):
        for k in (0,1):
            a(f'v_cvt_pk_bf16_f32 {v(t+2*rho+k)}, {v(X+4*k+rho)}, {v(X+4*k+2+rho)}')
    a(f'''
    v_lshlrev_b32 {v(t+16)}, 1, {v(vQ)}
    v_mov_b32 {v(t+19)}, 0x200000
    s_sub_u32 {s(sT)}, {s(sT+9)}, 1
    v_cmp_eq_u32 vcc, {s(sT+9)}, {v(t+16)}
    v_cndmask_b32 {v(t+17)}, {v(vXoff)}, {v(t+19)}, vcc
    v_cmp_eq_u32 vcc, {s(sT)}, {v(t+16)}
    v_cndmask_b32 {v(t+18)}, {v(vXoff)}, {v(t+19)}, vcc
    buffer_store_dwordx2 {v(t,2)}, {v(t+17)}, {OS}, {s(sRow0)} offen {'sc1' if cfg.osc else ''}
    buffer_store_dwordx2 {v(t+2,2)}, {v(t+18)}, {OS}, {s(sRow1)} offen {'sc1' if cfg.osc else ''}
    {f'v_lshlrev_b32 {v(t+21)}, 4, v0' if cfg.wb==2 else ''}
    {f'buffer_store_dwordx4 {v(t,4)}, {v(t+21)}, {WS}, {s(sLst)} offen sc1' if cfg.wb==2 else ''}
    s_or_b32 {s(sT)}, s2, {s(sW)}
    s_cbranch_scc1 L_fin2
    v_mov_b32 {v(t+20)}, {s(sTag)}
    buffer_store_dword {v(t+20)}, off, {WS}, 0 sc1
    L_fin2:
    ''')
    stamp(); dump_stamps()
    a('s_endpgm')
    def pub2():
        a(f'''
        v_mov_b32 {v(t+4)}, {s(sTag)}
        v_mov_b32 {v(t+5)}, {s(sXcc)}
        s_add_u32 {s(sT)}, {s(sTabSt)}, {TAB2-TABL}
        buffer_store_dwordx2 {v(t+4,2)}, off, {WS}, {s(sT)} sc1
        ''')
    a(f'''
    L_tabst_slow:
    buffer_store_dwordx2 {v(K,2)}, off, {WS}, {s(sTabSt)} sc1
    s_branch L_tabst_back
    L_tg0_r:
    s_sub_u32 {s(sCnt)}, {s(sCnt)}, 1
    s_cbranch_scc1 L_end
    s_sleep 2
    ''')
    a(f's_mov_b64 exec, 0xff\nbuffer_load_dword {v(t+20)}, {v(t+24)}, {WS}, {s(sT+10)} offen sc1\ns_mov_b64 exec, -1')
    a('s_branch L_tg0w\nL_tab2:')
    pub2()
    a(f'''
    s_add_u32 {s(sT+1)}, {s(sTabLd)}, {TAB2-TABL}
    L_tab2p:
    buffer_load_dwordx2 {v(TB,2)}, {v(vL8)}, {WS}, {s(sTabLd)} offen sc1
    buffer_load_dwordx2 {v(t+6,2)}, {v(vL8)}, {WS}, {s(sT+1)} offen sc1
    s_waitcnt vmcnt(0)
    v_cmp_eq_u32 vcc, {s(sTag)}, {v(TB)}
    v_cndmask_b32 {v(TB)}, {v(t+6)}, {v(TB)}, vcc
    v_cndmask_b32 {v(TB+1)}, {v(t+7)}, {v(TB+1)}, vcc
    v_cmp_ne_u32 vcc, {s(sTag)}, {v(TB)}
    ''')
    poll_branch('L_tab2p', 4)
    a(f'''
    s_branch L_tabok
    L_slow:
    s_cmp_lg_u32 {s(sIt)}, 0
    s_cbranch_scc1 L_slow1
    ''')
    pub2()
    a('L_slow1:')
    lstores('sc1')
    a(f'''
    s_waitcnt vmcnt(0)
    s_barrier
    s_add_u32 {s(sT)}, {s(sTabSt)}, {SLOWF-TABL}
    s_add_u32 {s(sT+1)}, {s(sTabLd)}, {SLOWF-TABL}
    v_mov_b32 {v(t+4)}, {s(sTag)}
    s_cmp_lg_u32 {s(sW)}, 0
    s_cbranch_scc1 L_slowp
    buffer_store_dword {v(t+4)}, off, {WS}, {s(sT)} sc1
    L_slowp:
    buffer_load_dword {v(t+5)}, {v(vL8)}, {WS}, {s(sT+1)} offen sc1
    s_waitcnt vmcnt(0)
    v_cmp_ne_u32 vcc, {s(sTag)}, {v(t+5)}
    ''')
    poll_branch('L_slowp', 2)
    a('s_branch L_slowback')

def hint_store(vreg, soff, lbl):
    a(f'''
    s_mov_b64 exec, 1
    s_cmp_eq_u32 {s(sFast)}, 0
    s_cbranch_scc1 {lbl}_s
    buffer_store_dword {v(vreg)}, off, {WS}, {s(soff)}
    s_branch {lbl}_d
    {lbl}_s:
    buffer_store_dword {v(vreg)}, off, {WS}, {s(soff)} sc1
    {lbl}_d:
    s_mov_b64 exec, -1
    ''')

def ffn():
    WB=4; t=40; h=74; PF=112
    vSl=32; vPW=33; vH=34; vHd=35; vTag=36; vPR=37; vTr=38; vWr=39; vXW=2; vXR=3
    sHm=sRow0
    sI=sJ; sFb=sLld; sRnd=sIt; sHo=sLst; sHH=sPh; sCb=sTabG; sYo=sG4
    def pf(m):
        r=[]
        if m&1: r.append(f'global_load_dwordx4 {v(PF,4)}, {v(PF+13)}, s[18:19]')
        if m&2: r.append(f'global_load_dwordx4 {v(PF+4,4)}, {v(PF+13)}, s[20:21]')
        if m&4: r.append(f'global_load_dwordx4 {v(PF+8,4)}, {v(PF+14)}, s[22:23]')
        return '\n'.join(r)
    g2clr=f'buffer_store_dwordx4 {v(SENT,4)}, {v(vPR)}, {WS}, {s(sG0)} offen sc1'
    a(f'''
    L_ffn:
    s_and_b32 {s(sI)}, {s(sJ)}, 31
    s_mul_i32 {s(sFb)}, {s(sX)}, 28
    s_add_u32 {s(sFb)}, {s(sFb)}, {s(sI)}
    s_lshl_b32 {s(sFb)}, {s(sFb)}, 4           ; fb*16
    v_mul_u32_u24 {v(vH)}, 3584, v0
    v_add_u32 {v(vH)}, {s(sFb)}, {v(vH)}
    s_cmp_ge_u32 {s(sI)}, 28
    s_waitcnt lgkmcnt(0)
    {f's_sleep {cfg.fdelay}' if cfg.fdelay else ''}
    s_cbranch_scc1 L_fng
    {f'global_load_dwordx4 {v(WB,4)}, {v(vH)}, s[18:19]' if cfg.early in (2,3) else ''}
    {f'global_load_dwordx4 {v(WB+4,4)}, {v(vH)}, s[20:21]' if cfg.early==2 else ''}
    L_fng:
    v_lshlrev_b32 {v(vPR)}, 4, v0
    v_lshrrev_b32 {v(t+1)}, 5, v0
    v_mul_u32_u24 {v(t+1)}, 3584, {v(t+1)}
    v_and_b32 {v(t+2)}, 0x1f0, {v(vPR)}
    s_mul_i32 {s(sT+4)}, {s(sI)}, {16*3584}
    s_mul_i32 {s(sT+5)}, {s(sX)}, 7
    s_lshr_b32 {s(sT+5)}, {s(sT+5)}, 1
    s_lshl_b32 {s(sT+5)}, {s(sT+5)}, 7
    s_add_u32 {s(sT+4)}, {s(sT+4)}, {s(sT+5)}
    v_add3_u32 {v(t+1)}, {v(t+1)}, {v(t+2)}, {s(sT+4)}
    v_lshrrev_b32 {v(t+2)}, 3, v0
    v_min_u32 {v(t+2)}, 55, {v(t+2)}
    v_lshlrev_b32 {v(t+2)}, 10, {v(t+2)}
    v_and_b32 {v(t+3)}, 0x70, {v(vPR)}
    s_mul_i32 {s(sT+4)}, {s(sI)}, {56*1024}
    s_lshl_b32 {s(sT+5)}, {s(sX)}, 7
    s_add_u32 {s(sT+4)}, {s(sT+4)}, {s(sT+5)}
    v_add3_u32 {v(t+2)}, {v(t+2)}, {v(t+3)}, {s(sT+4)}
    v_mov_b32 {v(PF+13)}, {v(t+1)}
    v_mov_b32 {v(PF+14)}, {v(t+2)}
    {pf(cfg.pfm)}
    buffer_load_dword {v(PF+12)}, off, {WS}, 0 sc1
    s_lshl_b32 {s(sCb)}, {s(sX)}, 2
    s_add_u32 {s(sCb)}, {s(sCb)}, {s(sI)}
    s_sub_u32 {s(sCb)}, {s(sCb)}, 28
    v_mov_b32 {v(h+8)}, 0x200000
    v_mov_b32 {v(vTag)}, 0
    v_and_b32 {v(h+3)}, 0x38, {v(vL8)}
    s_lshl_b32 {s(sT)}, {s(sW)}, 11
    v_lshl_add_u32 {v(vTr)}, {v(vQ)}, 8, {s(sT)}
    v_lshl_add_u32 {v(vTr)}, {v(vN)}, 3, {v(vTr)}
    v_and_b32 {v(vHd)}, 7, {v(vLane)}
    v_lshlrev_b32 {v(vHd)}, 12, {v(vHd)}
    s_mov_b32 {s(sFast)}, 0
    s_mov_b32 {s(sRnd)}, 2
    s_mov_b32 {s(sHo)}, {WSSZ}
    s_mov_b32 {s(sHH)}, {WSSZ}
    s_mov_b32 {s(sYo)}, {WSSZ}
    s_cmp_ge_u32 {s(sI)}, 28
    s_cbranch_scc1 L_fpb
    v_lshl_add_u32 {v(vWr)}, {v(vLane)}, 5, {s(sT)}
    v_lshrrev_b32 {v(vSl)}, 3, {v(vLane)}
    v_and_b32 {v(t+3)}, 0x70, {v(vPR)}
    v_mul_u32_u24 {v(vXW)}, 144, {v(vSl)}
    v_add3_u32 {v(vXW)}, {v(vXW)}, {v(t+3)}, {s(sT)}
    v_mul_u32_u24 {v(vXR)}, 9, {v(t+3)}
    v_lshl_add_u32 {v(vXR)}, {v(vQ)}, 4, {v(vXR)}
    v_add_u32 {v(vXR)}, {s(sT)}, {v(vXR)}
    s_lshl_b32 {s(sT)}, {s(sW)}, 7
    v_lshlrev_b32 {v(vSl)}, 12, {v(vSl)}
    v_add3_u32 {v(vSl)}, {v(vSl)}, {v(t+3)}, {s(sT)}
    s_cmp_eq_u32 {s(sW)}, 0
    s_cselect_b32 {s(sHm)}, 0xff, 0
    v_mov_b32 {v(t+8)}, 0
    s_lshl_b32 {s(sT)}, {s(sW)}, 10
    v_lshl_add_u32 {v(vPW)}, {v(vLane)}, 4, {s(sT)}
    s_branch {'L_fa_go' if cfg.dry else 'L_finit'}
    L_fpb:
    v_lshl_add_u32 {v(vWr)}, {v(vLane)}, 4, {s(sT)}
    v_lshl_add_u32 {v(vXR)}, {v(vQ)}, 4, {s(sT)}
    s_mul_i32 {s(sT)}, {s(sW)}, 448
    v_min_u32 {v(vH)}, 27, {v(vLane)}
    v_lshl_add_u32 {v(vH)}, {v(vH)}, 4, {s(sT)}
    s_lshl_b32 {s(sT)}, {s(sW)}, 2
    v_lshl_add_u32 {v(vPW)}, {v(vLane)}, 5, {s(sT)}
    s_mul_i32 {s(sT)}, {s(sW)}, {224*1024}
    s_lshl_b32 {s(sT+1)}, {s(sCb)}, 5
    s_add_u32 {s(sT)}, {s(sT)}, {s(sT+1)}
    v_lshrrev_b32 {v(vSl)}, 1, {v(vLane)}
    v_lshlrev_b32 {v(vSl)}, 10, {v(vSl)}
    v_and_b32 {v(t+3)}, 16, {v(vPR)}
    v_add3_u32 {v(vSl)}, {v(vSl)}, {v(t+3)}, {s(sT)}
    ''')
    for k in range(cfg.nb0):
        a(f'global_load_dwordx4 {v(WB+4*k,4)}, {v(vSl)}, s[22:23]')
        a(f'v_add_u32 {v(vSl)}, 0x8000, {v(vSl)}')
    a(f'''
    {'s_branch L_fb_go' if cfg.dry else ''}
    L_finit:
    s_mov_b32 {s(sRnd)}, 0
    s_mov_b32 {s(sSlot)}, {SLOT}
    s_mov_b32 {s(sHo)}, {HBUF}
    s_lshl_b32 {s(sHH)}, {s(sX)}, 7
    s_add_u32 {s(sHH)}, {s(sHH)}, {HHINT}
    s_mov_b32 {s(sYo)}, 0
    s_waitcnt vmcnt(0)
    v_add_u32 {v(vTag)}, 1, {v(PF+12)}
    v_readfirstlane_b32 {s(sTag)}, {v(vTag)}
    ''')
    if cfg.stamps: a(f's_mov_b32 {s(sStampI)}, 0')
    stamp()
    a(f'''
    s_cmp_lg_u32 {s(sW)}, 0
    s_cbranch_scc1 L_fgo
    s_mov_b32 {s(sTry)}, 60
    L_fl:
    buffer_load_dwordx2 {v(t,2)}, {v(vL8)}, {WS}, {s(sTabLd)} offen sc1
    s_waitcnt vmcnt(0)
    v_cmp_ne_u32 vcc, {s(sTag)}, {v(t)}
    ''')
    poll_branch('L_fl', 3, giveup='L_fgo', skip=True)
    a(f'''
    v_cmp_ne_u32 vcc, {s(sXcc)}, {v(t+1)}
    s_cbranch_vccnz L_fgo
    s_mov_b32 {s(sFast)}, 1
    {f's_sleep {cfg.gdelay}' if cfg.gdelay else ''}
    L_fgo:
    s_barrier
    {pf(((7 if cfg.early<2 else 4 if not cfg.nb0 else 0)|(2 if cfg.early==3 else 3 if cfg.early>=4 else 0))&~cfg.pfm)}
    ''')
    if cfg.early==5: a(f'''
    s_cmp_ge_u32 {s(sI)}, 28
    s_cbranch_scc1 L_fw_b5
    global_load_dwordx4 {v(WB,4)}, {v(vH)}, s[18:19]
    s_branch L_fw_done
    L_fw_b5:
    ''')
    if cfg.early==5:
        for k in range(cfg.gbb):
            a(f'global_load_dwordx4 {v(WB+4*k,4)}, {v(vSl)}, s[22:23]')
            a(f'v_add_u32 {v(vSl)}, 0x8000, {v(vSl)}')
    if cfg.early and cfg.early<3: a(f'''
    s_cmp_ge_u32 {s(sI)}, 28
    s_cbranch_scc1 L_fw_done
    {f'global_load_dwordx4 {v(WB,4)}, {v(vH)}, s[18:19]' if cfg.early==1 else ''}
    {f'global_load_dwordx4 {v(WB+4,4)}, {v(vH)}, s[20:21]' if cfg.early==1 else ''}
    {'s_waitcnt vmcnt(0)' if cfg.early==1 else ''}
    ds_write_b128 {v(vWr)}, {v(WB,4)} offset:8192
    ds_write_b128 {v(vWr)}, {v(WB+4,4)} offset:8208
    s_waitcnt lgkmcnt(0)
    ds_read_b64_tr_b16 {v(WB,2)}, {v(vTr)} offset:8192
    ds_read_b64_tr_b16 {v(WB+2,2)}, {v(vTr)} offset:8320
    ds_read_b64_tr_b16 {v(WB+4,2)}, {v(vTr)} offset:9216
    ds_read_b64_tr_b16 {v(WB+6,2)}, {v(vTr)} offset:9344
    ''')
    a(f'''
    ''')
    a(f'''
    L_fw_done:
    s_waitcnt vmcnt(0) lgkmcnt(0)
    s_barrier
    ''')
    stamp()
    a(f'''
    L_fnt:
    s_cmp_lg_u32 {s(sW)}, 0
    s_cbranch_scc1 L_fgb3
    s_cmp_eq_u32 {s(sFast)}, 0
    s_cbranch_scc1 L_fslowtab
    L_frnd:
    s_add_u32 {s(sTabLd)}, {s(sTabLd)}, {ARGR}
    s_cmp_lg_u32 {s(sW)}, 0
    s_cbranch_scc1 L_fbar
    s_cmp_eq_u32 {s(sFast)}, 0
    s_cbranch_scc1 L_ftd
    L_ftrig:
    buffer_load_dword {v(t)}, {v(vL8)}, {WS}, {s(sTabLd)} offen sc1
    s_waitcnt vmcnt(0)
    v_cmp_ne_u32 vcc, {s(sTag)}, {v(t)}
    ''')
    poll_branch('L_ftrig', cfg.slp_f)
    stamp()
    a(f'''
    L_ftd:
    s_cmp_eq_u32 {s(sRnd)}, 0
    s_cbranch_scc1 L_fgb2
    s_sleep {cfg.tim_arg}
    s_cmp_ge_u32 {s(sI)}, 28
    s_cbranch_scc1 L_fb0
    L_fbar:
    s_barrier
    s_cmp_ge_u32 {s(sI)}, 28
    s_cbranch_scc0 L_fslot
    s_branch L_fh
    L_fslot:
    buffer_load_dwordx4 {v(t+4,4)}, {v(vSl)}, {WS}, {s(sSlot)} offen sc1
    s_and_b32 exec_lo, exec_lo, {s(sHm)}
    s_mov_b32 exec_hi, 0
    s_cbranch_scc0 L_fnh
    buffer_load_dword {v(t+8)}, {v(vHd)}, {WS}, {s(sSlot)} offen offset:3072 sc1
    L_fnh:
    s_mov_b64 exec, -1
    L_fslotw:
    s_waitcnt vmcnt(0)
    ds_write_b128 {v(vXW)}, {v(t+4,4)} offset:8192
    ds_read_b128 {v(t+16,4)}, {v(vXR)} offset:8192
    ds_read_b128 {v(t+20,4)}, {v(vXR)} offset:8256
    ''')
    Dd=t+12
    maxchk(range(t+4,t+9), t+9)
    poll_branch('L_fslot', 2, pre='s_mov_b64 exec, vcc\ns_waitcnt lgkmcnt(0)')
    stamp()
    a(f'''
    L_fa_go:
    v_max_u32_dpp {v(t+9)}, {v(t+8)}, {v(t+8)} row_half_mirror {DPP}
    s_waitcnt lgkmcnt(1)
    v_mfma_f32_16x16x32_bf16 {v(Dd,4)}, {v(t+16,4)}, {v(WB,4)}, 0
    s_waitcnt lgkmcnt(0)
    v_mfma_f32_16x16x32_bf16 {v(Dd,4)}, {v(t+20,4)}, {v(WB+4,4)}, {v(Dd,4)}
    s_add_u32 {s(sT+1)}, {s(sHo)}, {s(sFb)}
    v_max_u32_dpp {v(t+9)}, {v(t+9)}, {v(t+9)} quad_perm:[1,0,3,2] {DPP}
    s_lshl_b32 {s(sT+2)}, {s(sI)}, 2
    v_lshlrev_b32 {v(t+10)}, 4, {v(vN)}
    v_max_u32_dpp {v(t+9)}, {v(t+9)}, {v(t+9)} quad_perm:[2,3,0,1] {DPP}
    s_add_u32 {s(sT+2)}, {s(sT+2)}, {s(sHH)}
    v_readfirstlane_b32 {s(sT)}, {v(t+9)}
    v_lshlrev_b32 {v(t+11)}, 1, {v(vN)}
    ds_write_b128 {v(vPW)}, {v(Dd,4)}
    s_andn2_b32 {s(sT+3)}, 4, {s(sT)}
    s_andn2_b32 {s(sT)}, 3, {s(sT)}
    s_lshl_b32 {s(sT+3)}, {s(sT+3)}, 6
    s_lshl2_add_u32 {s(sT)}, {s(sT)}, {s(sT+3)}
    v_add_u32 {v(t+10)}, {s(sT)}, {v(t+10)}
    ''')
    if cfg.ehint:
        a(f's_cmp_lg_u32 {s(sW)}, 0\ns_cbranch_scc1 L_fhh_d')
        hint_store(vTag, sT+2, 'L_fhh')
    a(f'''
    s_cmp_lg_u32 {s(sW)}, 0
    s_waitcnt lgkmcnt(0)
    s_barrier
    s_cbranch_scc1 L_fnext
    ds_read2st64_b32 {v(t,2)}, {v(t+10)} offset0:0 offset1:4
    ds_read2st64_b32 {v(t+2,2)}, {v(t+10)} offset0:8 offset1:12
    ds_read2st64_b32 {v(t+4,2)}, {v(t+10)} offset0:16 offset1:20
    ds_read2st64_b32 {v(t+6,2)}, {v(t+10)} offset0:24 offset1:28
    s_waitcnt lgkmcnt(2)
    v_pk_add_f32 {v(t,2)}, {v(t,2)}, {v(t+2,2)}
    s_waitcnt lgkmcnt(0)
    v_pk_add_f32 {v(t+4,2)}, {v(t+4,2)}, {v(t+6,2)}
    v_pk_add_f32 {v(t,2)}, {v(t,2)}, {v(t+4,2)}
    v_add_f32 {v(t)}, {v(t)}, {v(t+1)}
    v_mul_f32 {v(t+1)}, 0xbfb8aa3b, {v(t)}
    v_exp_f32 {v(t+1)}, {v(t+1)}
    v_mul_f32_dpp {v(t+2)}, {v(t)}, {v(t)} row_ror:8 {DPP}
    v_add_f32 {v(t+1)}, 1.0, {v(t+1)}
    v_rcp_f32 {v(t+1)}, {v(t+1)}
    v_mul_f32 {v(t+1)}, {v(t+1)}, {v(t+2)}
    v_mov_b32_dpp {v(t+2)}, {v(t+1)} quad_perm:[1,1,3,3] {DPP}
    s_mov_b64 exec, 0x55
    v_cvt_pk_bf16_f32 {v(t+1)}, {v(t+1)}, {v(t+2)}
    buffer_store_dword {v(t+1)}, {v(t+11)}, {WS}, {s(sT+1)} offen sc1
    ''')
    if cfg.ehint: a('s_mov_b64 exec, -1')
    else: hint_store(vTag, sT+2, 'L_fhh')
    a('L_fnext:')
    stamp()
    a(f'''
    s_cmp_eq_u32 {s(sRnd)}, 1
    s_cbranch_scc1 L_fend
    s_cmp_eq_u32 {s(sRnd)}, 2
    s_cbranch_scc1 L_finit
    ''')
    if cfg.wb==1: a(f'''
    s_cmp_lg_u32 {s(sI)}, 28
    s_cbranch_scc1 L_nwb
    s_cmp_lg_u32 {s(sW)}, 7
    s_cbranch_scc1 L_nwb
    s_sleep {cfg.wbd}
    buffer_wbl2 sc1
    L_nwb:
    ''')
    a(f'''
    s_mov_b32 {s(sRnd)}, 1
    s_add_u32 {s(sSlot)}, {s(sSlot)}, {SLOTR}
    s_add_u32 {s(sHo)}, {s(sHo)}, {HR}
    s_add_u32 {s(sHH)}, {s(sHH)}, {HHR}
    s_branch L_frnd
    L_fslowtab:
    v_lshrrev_b32 {v(t+16)}, 5, {v(vHd)}
    s_mov_b32 {s(sT+10)}, {TABG}
    L_ftab2:
    ''')
    a(f'buffer_load_dword {v(t)}, {v(t+16)}, {WS}, {s(sT+10)} offen sc1')
    a('s_waitcnt vmcnt(0)')
    a(f'v_cmp_ne_u32 vcc, {s(sTag)}, {v(t)}')
    poll_branch('L_ftab2', 8)
    a(f'''
    s_branch L_frnd
    L_fgb2:
    s_sleep {cfg.gbdelay}
    L_fgb3:
    s_barrier
    s_cmp_ge_u32 {s(sI)}, 28
    s_cbranch_scc1 L_fgb4
    ''')
    if cfg.early>=3 and cfg.beh: a(f'''
    {f'global_load_dwordx4 {v(WB,4)}, {v(vH)}, s[18:19]' if cfg.early==4 else ''}
    global_load_dwordx4 {v(WB+4,4)}, {v(vH)}, s[20:21]
    {f's_sleep {cfg.tim_a0}' if cfg.tim_a0 else ''}
    buffer_load_dwordx4 {v(t+4,4)}, {v(vSl)}, {WS}, {s(sSlot)} offen sc1
    s_cmp_eq_u32 {s(sW)}, 0
    s_cselect_b32 {s(sT)}, {s(sSlot)}, {WSSZ}
    s_mov_b64 exec, 0xff
    buffer_load_dword {v(t+8)}, {v(vHd)}, {WS}, {s(sT)} offen offset:3072 sc1
    s_mov_b64 exec, -1
    s_waitcnt vmcnt(3)
    ds_write_b128 {v(vWr)}, {v(WB,4)} offset:8192
    s_waitcnt vmcnt(2)
    ds_write_b128 {v(vWr)}, {v(WB+4,4)} offset:8208
    s_waitcnt lgkmcnt(0)
    ds_read_b64_tr_b16 {v(WB,2)}, {v(vTr)} offset:8192
    ds_read_b64_tr_b16 {v(WB+2,2)}, {v(vTr)} offset:8320
    ds_read_b64_tr_b16 {v(WB+4,2)}, {v(vTr)} offset:9216
    ds_read_b64_tr_b16 {v(WB+6,2)}, {v(vTr)} offset:9344
    s_branch L_fslotw
    ''')
    elif cfg.early>=3: a(f'''
    {f'global_load_dwordx4 {v(WB,4)}, {v(vH)}, s[18:19]' if cfg.early==4 else ''}
    global_load_dwordx4 {v(WB+4,4)}, {v(vH)}, s[20:21]
    s_waitcnt vmcnt(1)
    ds_write_b128 {v(vWr)}, {v(WB,4)} offset:8192
    s_waitcnt vmcnt(0)
    ds_write_b128 {v(vWr)}, {v(WB+4,4)} offset:8208
    s_waitcnt lgkmcnt(0)
    ds_read_b64_tr_b16 {v(WB,2)}, {v(vTr)} offset:8192
    ds_read_b64_tr_b16 {v(WB+2,2)}, {v(vTr)} offset:8320
    ds_read_b64_tr_b16 {v(WB+4,2)}, {v(vTr)} offset:9216
    ds_read_b64_tr_b16 {v(WB+6,2)}, {v(vTr)} offset:9344
    {f's_sleep {cfg.tim_a0}' if cfg.tim_a0 else ''}
    ''')
    else: a(f's_sleep {max(cfg.tim_arg-cfg.gbdelay,0)}')
    a(f'''
    s_branch L_fslot
    L_fgb4:
    ''')
    for k in range(cfg.nb0+cfg.gbb,7):
        a(f'global_load_dwordx4 {v(WB+4*k,4)}, {v(vSl)}, s[22:23]')
        if k<6: a(f'v_add_u32 {v(vSl)}, 0x8000, {v(vSl)}')
    a(f'''
    s_waitcnt vmcnt(0)''')
    for k in range(7):
        o=(k&1)*1024
        a(f'''ds_write_b128 {v(vWr)}, {v(WB+4*k,4)} offset:{o}
        s_waitcnt lgkmcnt(0)
        ds_read_b64_tr_b16 {v(WB+4*k,2)}, {v(vTr)} offset:{o}
        ds_read_b64_tr_b16 {v(WB+4*k+2,2)}, {v(vTr)} offset:{o+128}''')
    a(f'''
    s_waitcnt lgkmcnt(0)
    s_cmp_lg_u32 {s(sW)}, 0
    s_cbranch_scc1 L_fbar
    L_fb0:
    v_lshrrev_b32 {v(h+2)}, 3, {v(vLane)}
    v_lshlrev_b32 {v(h+2)}, 12, {v(h+2)}
    s_lshl_b32 {s(sT)}, {s(sCb)}, 6
    v_add3_u32 {v(h+4)}, {v(h+2)}, {v(h+3)}, {s(sT)}
    L_fbase:
    buffer_load_dwordx2 {v(h+6,2)}, {v(h+4)}, {WS}, {s(sSlot)} offen offset:1024 sc1
    buffer_load_dword {v(h+8)}, {v(h+2)}, {WS}, {s(sSlot)} offen offset:3072 sc1
    buffer_load_dword {v(h+9)}, {v(vHd)}, {WS}, {s(sSlot)} offen offset:3072 sc1
    s_waitcnt vmcnt(0)
    ''')
    maxchk(range(h+6,h+10), h+5)
    poll_branch('L_fbase', 2, mask=True)
    stamp()
    a(f'''
    v_max_u32_dpp {v(h+9)}, {v(h+9)}, {v(h+9)} row_half_mirror {DPP}
    v_max_u32_dpp {v(h+9)}, {v(h+9)}, {v(h+9)} quad_perm:[1,0,3,2] {DPP}
    v_max_u32_dpp {v(h+9)}, {v(h+9)}, {v(h+9)} quad_perm:[2,3,0,1] {DPP}
    v_readfirstlane_b32 {s(sKey)}, {v(h+9)}
    v_mov_b32 {v(h)}, 0xbfb8aa3b
    s_ashr_i32 {s(sT)}, {s(sKey)}, 31
    s_orn2_b32 {s(sT)}, 0x80000000, {s(sT)}
    s_xor_b32 {s(sT)}, {s(sT)}, {s(sKey)}
    v_mul_f32 {v(h)}, {s(sT)}, {v(h)}
    v_exp_f32 {v(h)}, {v(h)}
    v_add_f32 {v(h)}, 1.0, {v(h)}
    v_rcp_f32 {v(h)}, {v(h)}
    v_cmp_eq_u32 vcc, {s(sKey)}, {v(h+8)}
    v_cndmask_b32 {v(h+10)}, 0, {v(h)}, vcc
    v_bfi_b32 {v(h+8)}, {v(h+8)}, 0, {s(sM7FF)}
    v_lshlrev_b32 {v(h+8)}, 10, {v(h+8)}
    v_lshrrev_b32 {v(h+4)}, 1, {v(h+3)}
    s_lshl_b32 {s(sT)}, {s(sCb)}, 5
    v_add3_u32 {v(h+8)}, {v(h+8)}, {v(h+4)}, {s(sT)}
    s_cmp_eq_u32 {s(sFast)}, 0
    s_cbranch_scc1 L_fbar
    v_min_u32 {v(t)}, 27, {v(vLane)}
    v_lshlrev_b32 {v(t)}, 2, {v(t)}
    s_movk_i32 {s(sTry)}, 500
    L_fhint:
    buffer_load_dword {v(t+1)}, {v(t)}, {WS}, {s(sHH)} offen sc1
    s_waitcnt vmcnt(0)
    v_cmp_ne_u32 vcc, {s(sTag)}, {v(t+1)}
    ''')
    poll_branch('L_fhint', 1, giveup='L_fbar')
    if cfg.tim_h: a(f's_sleep {cfg.tim_h}')
    a(f'''
    s_barrier
    L_fh:
    ''')
    Dy=t+28
    a(f'''
    buffer_load_dwordx4 {v(Dy,4)}, {v(vH)}, {WS}, {s(sHo)} offen sc1
    s_mov_b64 exec, -1
    s_waitcnt vmcnt(0)
    ds_write_b128 {v(vWr)}, {v(Dy,4)} offset:8192
    ''')
    for k in range(7): a(f'ds_read_b128 {v(t+4*k,4)}, {v(vXR)} offset:{8192+64*k}')
    maxchk(range(Dy,Dy+4), t+32)
    poll_branch('L_fh', 1, skip=True, pre='s_mov_b64 exec, vcc\ns_waitcnt lgkmcnt(0)')
    stamp()
    a('L_fb_go:')
    if cfg.ehint:
        a(f'''
        s_cmp_lg_u32 {s(sW)}, 0
        s_cbranch_scc1 L_fyh_d
        s_lshl_b32 {s(sT+1)}, {s(sX)}, 7
        s_lshl2_add_u32 {s(sT+1)}, {s(sI)}, {s(sT+1)}
        s_add_u32 {s(sT+1)}, {s(sT+1)}, {YHINT-28*4}
        s_add_u32 {s(sT+1)}, {s(sT+1)}, {s(sYo)}
        ''')
        hint_store(vTag, sT+1, 'L_fyh')
    for k in range(7):
        a(f's_waitcnt lgkmcnt({6-k})')
        a(f'v_mfma_f32_16x16x32_bf16 {v(Dy,4)}, {v(t+4*k,4)}, {v(WB+4*k,4)}, '+('0' if k==0 else v(Dy,4)))
    a(f'''
    s_mov_b64 exec, 0xffff
    s_cmp_lg_u32 {s(sW)}, 0
    ds_write_b32 {v(vPW)}, {v(Dy)}
    s_mov_b64 exec, -1
    s_waitcnt lgkmcnt(0)
    s_barrier
    s_cbranch_scc1 L_fnext
    s_cmp_eq_u32 {s(sRnd)}, 1
    s_cbranch_scc1 L_ffinal
    v_lshlrev_b32 {v(t+8)}, 5, {v(vN)}
    ds_read_b128 {v(t,4)}, {v(t+8)}
    ds_read_b128 {v(t+4,4)}, {v(t+8)} offset:16
    s_lshl_b32 {s(sT)}, {s(sCb)}, 7
    s_add_u32 {s(sT)}, {s(sT)}, {YBUF}
    s_add_u32 {s(sT)}, {s(sT)}, {s(sYo)}
    v_lshlrev_b32 {v(t+9)}, 2, {v(vLane)}
    s_lshl_b32 {s(sT+1)}, {s(sX)}, 7
    s_lshl_b32 {s(sT+2)}, {s(sI)}, 2
    s_add_u32 {s(sT+1)}, {s(sT+1)}, {s(sT+2)}
    s_add_u32 {s(sT+1)}, {s(sT+1)}, {YHINT-28*4}
    s_add_u32 {s(sT+1)}, {s(sT+1)}, {s(sYo)}
    s_mov_b64 exec, 0xffff
    s_waitcnt lgkmcnt(0)
    v_pk_add_f32 {v(t,2)}, {v(t,2)}, {v(t+2,2)}
    v_pk_add_f32 {v(t+4,2)}, {v(t+4,2)}, {v(t+6,2)}
    v_pk_add_f32 {v(t,2)}, {v(t,2)}, {v(t+4,2)}
    v_add_f32 {v(t)}, {v(t)}, {v(t+1)}
    v_mul_f32 {v(t)}, {v(t)}, {v(h)}
    buffer_store_dword {v(t)}, {v(t+9)}, {WS}, {s(sT)} offen sc1
    ''')
    if cfg.ehint: a('s_mov_b64 exec, -1')
    else: hint_store(vTag, sT+1, 'L_fyh')
    a(f'''
    s_cmp_lg_u32 {s(sRnd)}, 2
    s_cbranch_scc1 L_fnext
    L_ffinal:
    v_lshlrev_b32 {v(t+16)}, 3, {v(h+3)}
    ds_read_b128 {v(t,4)}, {v(t+16)}
    ds_read_b128 {v(t+4,4)}, {v(t+16)} offset:16
    ds_read_b128 {v(t+8,4)}, {v(t+16)} offset:32
    ds_read_b128 {v(t+12,4)}, {v(t+16)} offset:48
    s_waitcnt lgkmcnt(2)
    v_pk_add_f32 {v(t,2)}, {v(t,2)}, {v(t+2,2)}
    v_pk_add_f32 {v(t+4,2)}, {v(t+4,2)}, {v(t+6,2)}
    s_waitcnt lgkmcnt(0)
    v_pk_add_f32 {v(t+8,2)}, {v(t+8,2)}, {v(t+10,2)}
    v_pk_add_f32 {v(t+12,2)}, {v(t+12,2)}, {v(t+14,2)}
    v_pk_add_f32 {v(t,2)}, {v(t,2)}, {v(t+4,2)}
    v_pk_add_f32 {v(t+8,2)}, {v(t+8,2)}, {v(t+12,2)}
    v_add_f32 {v(t)}, {v(t)}, {v(t+1)}
    v_add_f32 {v(t+1)}, {v(t+8)}, {v(t+9)}
    v_pk_fma_f32 {v(t,2)}, {v(t,2)}, {v(h+10,2)}, {v(h+6,2)} op_sel_hi:[1,0,1]
    v_cvt_pk_bf16_f32 {v(t)}, {v(t)}, {v(t+1)}
    buffer_store_dword {v(t)}, {v(h+8)}, {OS}, 0 offen sc1
    s_cmp_eq_u32 {s(sRnd)}, 2
    s_cbranch_scc1 L_fnext
    ''')
    stamp()
    a('L_fend:')
    dump_stamps()
    a('s_endpgm')

def build():
    hdr=open('ref.txt').read().split('; @launch')[0]
    a.raw(hdr+f'; @launch grid=({NWG},1,1) block=(512,1,1) lds={LDS_TOTAL}')
    a.raw(f'''; generated by gen/gen.py (hand-written generator): persistent FFT-structured FNet + MoD kernel
.amdgcn_target "amdgcn-amd-amdhsa--gfx950"
.text
.globl {NAME}_kernel
.p2align 8
.type {NAME}_kernel,@function
{NAME}_kernel:''')
    a(f'''
    s_load_dwordx2 s[12:13], s[0:1], 0
    s_load_dwordx2 s[8:9], s[0:1], 96
    s_load_dwordx8 s[16:23], s[0:1], 48
    s_load_dwordx2 s[28:29], s[0:1], 80
    s_cmp_ge_u32 s2, {NWG}
    s_cbranch_scc1 L_end
    ''')
    if cfg.codepf: a(f'''
    s_getpc_b64 {s(sT+6,2)}
    L_pc:
    v_lshlrev_b32 v2, 5, v0
    v_min_u32 v2, L_end-L_pc, v2
    global_load_dword {v(vTG)}, v2, {s(sT+6,2)}
    ''')
    if cfg.split: a(f'''
    s_lshr_b32 s3, s2, 1
    s_xor_b32 s3, s3, s2
    s_and_b32 s3, s3, 128
    s_mul_i32 s3, s3, 3
    s_xor_b32 s2, s2, s3
    ''')
    a(f'''
    v_lshrrev_b32 v2, 6, v0
    v_and_b32 {v(vN)}, 15, v0
    v_bfe_u32 {v(vQ)}, v0, 4, 2
    v_readfirstlane_b32 {s(sW)}, v2
    v_and_b32 {v(vLane)}, 63, v0
    s_mov_b32 s10, {WSSZ}
    s_mov_b32 s11, 0x20000
    s_mov_b32 s30, 0x200000
    s_mov_b32 s31, 0x20000
    s_and_b32 {s(sX)}, s2, 7
    s_lshr_b32 {s(sJ)}, s2, 3
    v_mov_b32 {v(SENT)}, -1
    v_mov_b32 {v(SENT+1)}, -1
    v_mov_b32 {v(SENT+2)}, -1
    v_mov_b32 {v(SENT+3)}, -1
    v_lshlrev_b32 {v(vL8)}, 3, v0
    v_and_b32 {v(vL8)}, 0xf8, {v(vL8)}
    s_mov_b32 {s(sCnt)}, 200000
    s_mov_b32 {s(sM7FF)}, 0x7ff
    s_lshl_b32 {s(sTabLd)}, {s(sX)}, 8
    s_add_u32 {s(sTabLd)}, {s(sTabLd)}, {TABL}
    s_getreg_b32 {s(sXcc)}, hwreg(HW_REG_XCC_ID, 0, 4)
    ''')
    if cfg.force_slow: a(f's_mov_b32 {s(sXcc)}, {s(sJ)}')
    if cfg.stamps:
        a(f's_mov_b32 {s(sStampI)}, 0\nv_mov_b32 {v(vSTMP)}, 0')
        a(f's_memrealtime {s(sTS,2)}\ns_memtime {s(sTS+2,2)}\ns_waitcnt lgkmcnt(0)\nv_writelane_b32 {v(vSTMP)}, {s(sTS)}, 63\nv_writelane_b32 {v(vSTMP)}, {s(sTS+2)}, 62')
    a('''s_cmp_ge_u32 s2, 256
    s_cbranch_scc1 L_ffn''')
    if cfg.prio: a(f's_setprio 2\ns_cmp_gt_u32 {s(sW)}, 1\ns_cbranch_scc1 L_np\ns_setprio 3\nL_np:')
    main_prologue()
    main_loop()
    ffn()
    a('L_end:\ns_endpgm')
    a.raw(f'''.section .rodata,"a"
.p2align 6
.amdhsa_kernel {NAME}_kernel
  .amdhsa_next_free_vgpr 128
  .amdhsa_next_free_sgpr 96
  .amdhsa_accum_offset 128
  .amdhsa_group_segment_fixed_size 0
  .amdhsa_kernarg_size 104
  .amdhsa_user_sgpr_count 2
  .amdhsa_user_sgpr_kernarg_segment_ptr 1
  .amdhsa_system_sgpr_workgroup_id_x 1
.end_amdhsa_kernel''')
    return a.text()
if __name__=='__main__':
    out=sys.argv[1]
    for kv in sys.argv[2:]:
        k,val=kv.split('='); assert hasattr(cfg,k); setattr(cfg,k,int(val))
    open(out,'w').write(build())
    print('instrs',a.count,'nops',a.nops)
```

```python
import sys, struct
from asmlib import Asm
NAME='interleave_layers__spectral_fnet__moe_arch_mod__prompt'
def fbits(x): return '0x%08x' % struct.unpack('<I', struct.pack('<f', x))[0]

class Cfg:
    stamps=0
    tim_arg=16
    tim_y=0
    tim_h=0
    slp_g=2
    slp_l=1
    force_slow=0
    prio=1
    codepf=1
    exp=0
    st0=0
    cal=-1
    calwg=0
    dbgout=0
    dry=1
    wb=0
    fdelay=20
    gdelay=18
    osc=1
    odel=0
    pfm=7
    clr2=0
    nb0=0
    ehint=0
    post=0
    slp_t=0
    aft=0
    g2pos=0
    tim_fh=12
    wdpos=0
    slp_p=1
    tim_p=8
    hold=1
    tim_gy=12
    eh=1
    own=1
    tim_y3=8
    beh=1
    gbb=0
    slp_f=2
    early=4
    tim_a0=0
    wbd=12
    gbdelay=4
    late=1
    split=0
    tch=1
cfg=Cfg()

TABG=0x1000; TABGR=0x6000
TABL=0x2000; ARGR=0x800
TAB2=0x3800
SLOWF=0x4000
YHINT=0x5000; YHR=0x400
FTAB=0x6000
CLR0=0x8000
YP=0x8000; YPR=0x2000
PART=0x20000; PARTR=0x10000
SLOT=0x10000; SLOTR=0x8000
LBASE=0x40000; PS=8448; LX=32*PS
GBASE=0x260000; GS=262144+768; GR=0x210000
STAMP=0x700000
WSSZ=0x800000
NWG=512
NST=(13,9,7)
L_STAT=0; L_U=0x400; L_YI=0x2400; YIS=320; L_YT=0x4C00; L_DH=0x6E00; L_FLAG=0x7E00; LDS_TOTAL=0x7E80
L_CX=0x2400
def v(a,n=1): return f'v{a}' if n==1 else f'v[{a}:{a+n-1}]'
def s(a,n=1): return f's{a}' if n==1 else f's[{a}:{a+n-1}]'

WS='s[8:11]'; XS='s[12:15]'; OS='s[28:31]'
sW=3; sX=26; sJ=27; sIt=32; sTag=33; sFast=34; sKey=35; sMir=36; sDsc=38
sLst=39; sLld=40; sPh=41; sTabG=42; sG0=43; sG4=44; sTabSt=45; sTabLd=46; sSlot=47; sRow0=48; sRow1=49; sCnt=50
sXcc=51; sStampI=37
sK512=52
sTry=53
sEps=54
sC16=56
sSc=58
sM7FF=60; sTop=61
sQmask=62
sT=64
sNx=84; sSg=85; sYo=86; sYh=87
sTS=80
X=2; WV=10; A8=14; XA=16; B1C=20; B1S=24; B1N=28; TWC=32; TWS=36; A2R=40; A2I=44; YC=48; YS=52
AD=56; BC=58
vXoff=72; vStW=73; vStR=74; vUW=75; vUR=76; vLst=77; vLld=78; vLldM=79; vYIW=80; vYIR=81; vYW=82; vYR=83; vGst=84; vGld=85
vSc0=86; vL8=88; vInv=89; vN=90; vQ=91; vSTMP=1; vLane=92; vTG=93
LNP=94; MM=98; RS2=100
T=102
class Asm2(Asm):
    def __call__(self, text):
        parts=text.split(';@F')
        for i,p in enumerate(parts):
            if i: fstamp()
            Asm.__call__(self,p)
a=Asm2()
def poll_branch(lbl, sleep=1, pre='', giveup=None, skip=False, mask=False):
    k=a.lines.index(lbl+':')
    if mask:
        pre+='\ns_mov_b64 exec, vcc'; skip=True
        k2=next(i for i in range(k,len(a.lines)) if 's_waitcnt vmcnt(0)' in a.lines[i])
        k3=max(i for i in range(k,k2) if 'buffer_load' in a.lines[i])
        a.lines.insert(k3+1,'    s_mov_b64 exec, -1')
    if a.lines[k-1].strip().startswith(('s_branch','s_endpgm')): skip=False
    a(f's_cbranch_vccnz {lbl}_r ;!nd')
    st=[]
    if skip: st.append(f'    s_branch {lbl}')
    st.append(f'{lbl}_r:')
    if giveup: st+= [f'    s_sub_u32 {s(sTry)}, {s(sTry)}, 1', f'    s_cbranch_scc1 {giveup}']
    else: st+= [f'    s_sub_u32 {s(sCnt)}, {s(sCnt)}, 1', '    s_cbranch_scc1 L_end']
    st+= ['    '+x.strip() for x in pre.split('\n') if x.strip()]
    if sleep: st.append(f'    s_sleep {sleep}')
    a.lines[k:k]=st
def fstamp():
    if cfg.stamps==2: stamp()
def stamp():
    if not cfg.stamps: return
    a(f'''{'s_memtime' if cfg.stamps==2 else 's_memrealtime'} {s(sTS,2)}
    s_waitcnt lgkmcnt(0)
    s_mov_b32 m0, {s(sStampI)}
    s_add_u32 {s(sStampI)}, {s(sStampI)}, 1
    v_writelane_b32 {v(vSTMP)}, {s(sTS)}, m0''')
def dump_stamps():
    if not cfg.stamps: return
    a(f's_memrealtime {s(sTS,2)}\ns_memtime {s(sTS+2,2)}\ns_waitcnt lgkmcnt(0)\nv_writelane_b32 {v(vSTMP)}, {s(sTS)}, 61\nv_writelane_b32 {v(vSTMP)}, {s(sTS+2)}, 60')
    if cfg.cal>=0:
        lab='L_cal%d'%len(a.lines)
        a(f'''s_cmp_lg_u32 s2, {cfg.calwg}
        s_cbranch_scc1 {lab}
        s_cmp_lg_u32 {s(sW)}, 0
        s_cbranch_scc1 {lab}
        v_readlane_b32 {s(sT)}, {v(vSTMP)}, {cfg.cal}
        v_readlane_b32 {s(sT+1)}, {v(vSTMP)}, 63
        s_sub_u32 {s(sT)}, {s(sT)}, {s(sT+1)}
        s_lshl_b32 {s(sT)}, {s(sT)}, 2
        s_add_u32 {s(sT)}, {s(sT)}, 3000
        s_min_u32 {s(sT)}, {s(sT)}, 50000
        {lab}_l:
        s_memrealtime {s(sTS,2)}
        s_waitcnt lgkmcnt(0)
        s_sub_u32 {s(sT+2)}, {s(sTS)}, {s(sT+1)}
        s_cmp_lt_u32 {s(sT+2)}, {s(sT)}
        s_cbranch_scc1 {lab}_l
        {lab}:''')
    a(f'''s_lshl_b32 {s(sT)}, s2, 11
    s_lshl_b32 {s(sT+1)}, {s(sW)}, 8
    s_add_u32 {s(sT)}, {s(sT)}, {s(sT+1)}
    s_add_u32 {s(sT)}, {s(sT)}, {STAMP}
    v_lshlrev_b32 {v(vLane)}, 2, {v(vLane)}
    buffer_store_dword {v(vSTMP)}, {v(vLane)}, {WS}, {s(sT)} offen''')
def maxchk(regs, t):
    regs=list(regs)
    a(f'v_max3_u32 {v(t)}, {v(regs[0])}, {v(regs[1])}, {v(regs[2])}')
    rest=regs[3:]
    while len(rest)>=2:
        a(f'v_max3_u32 {v(t)}, {v(t)}, {v(rest[0])}, {v(rest[1])}'); rest=rest[2:]
    if rest: a(f'v_max_u32 {v(t)}, {v(t)}, {v(rest[0])}')
    a(f'v_cmp_eq_u32 vcc, -1, {v(t)}')
def phchk(regs, t):
    regs=list(regs)
    a(f'v_bitop3_b32 {v(t)}, {v(regs[0])}, {v(regs[1])}, {s(sPh)} bitop3:0x7e')
    for r in regs[2:]: a(f'v_bitop3_b32 {v(t)}, {v(t)}, {v(r)}, {s(sPh)} bitop3:0xf6')
    a(f'v_and_b32 {v(t)}, 1, {v(t)}\nv_cmp_ne_u32 vcc, 0, {v(t)}')
def tag4chk(r):
    for k in range(4): a(f'v_xor_b32 {v(r+k)}, {s(sTag)}, {v(r+k)}')
    a(f'v_or3_b32 {v(r)}, {v(r)}, {v(r+1)}, {v(r+2)}\nv_or_b32 {v(r)}, {v(r)}, {v(r+3)}\nv_cmp_ne_u32 vcc, 0, {v(r)}')
DPP='row_mask:0xf bank_mask:0xf'

def fft_core(xr, xi, U, V, F, P, fill1='', fill2=''):
    Ur,Ui=U,U+4
    a(f'v_mfma_f32_16x16x32_f16 {v(Ur,4)}, {v(xr,4)}, {v(B1C,4)}, 0')
    a(f'v_mfma_f32_16x16x32_f16 {v(Ui,4)}, {v(xr,4)}, {v(B1N,4)}, 0')
    if xi is not None:
        a(f'v_mfma_f32_16x16x32_f16 {v(Ur,4)}, {v(xi,4)}, {v(B1S,4)}, {v(Ur,4)}')
        a(f'v_mfma_f32_16x16x32_f16 {v(Ui,4)}, {v(xi,4)}, {v(B1C,4)}, {v(Ui,4)}')
    a(fill1)
    Vr,Vi=V,V+4
    for h in (0,2):
        a(f'v_pk_mul_f32 {v(Vi+h,2)}, {v(Ur+h,2)}, {v(TWS+h,2)}')
    for h in (0,2):
        a(f'v_pk_mul_f32 {v(Vr+h,2)}, {v(Ui+h,2)}, {v(TWS+h,2)}')
    for h in (0,2):
        a(f'v_pk_fma_f32 {v(Vr+h,2)}, {v(Ur+h,2)}, {v(TWC+h,2)}, {v(Vr+h,2)}')
        a(f'v_pk_fma_f32 {v(Vi+h,2)}, {v(Ui+h,2)}, {v(TWC+h,2)}, {v(Vi+h,2)} neg_lo:[0,0,1] neg_hi:[0,0,1]')
    for r in range(4): a(f'v_cvt_pk_f16_f32 {v(P+r)}, {v(Vr+r)}, {v(Vi+r)}')
    a(f'v_mfma_f32_16x16x32_f16 {v(F,4)}, {v(A2R,4)}, {v(P,4)}, 0')
    a(f'v_mfma_f32_16x16x32_f16 {v(F+4,4)}, {v(A2I,4)}, {v(P,4)}, 0')
    a(fill2)
    for r in range(4): a(f'v_cvt_pk_f16_f32 {v(P+r)}, {v(F+r)}, {v(F+4+r)}')

SENT=T+4

def main_prologue():
    t=T
    X0=BC
    a(f'''
    s_lshl_b32 {s(sRow0)}, s2, 10
    s_add_u32 {s(sRow1)}, {s(sRow0)}, 0x40000
    s_lshl_b32 {s(sT)}, {s(sW)}, 7
    v_lshl_add_u32 {v(vUW)}, {v(vN)}, 3, {s(sT)}                 ; 128w+8n
    v_lshl_add_u32 {v(vXoff)}, {v(vQ)}, 19, {v(vUW)}
    s_mov_b32 s14, 0x200000
    s_mov_b32 s15, 0x20000
    s_mul_i32 {s(sLld)}, {s(sX)}, {LX}
    s_add_u32 {s(sLld)}, {s(sLld)}, {LBASE}
    s_mul_i32 {s(sLst)}, {s(sJ)}, {PS}
    s_add_u32 {s(sLst)}, {s(sLst)}, {s(sLld)}
    v_lshlrev_b32 {v(t)}, 4, v0
    v_lshrrev_b32 {v(t+1)}, 4, v0
    s_waitcnt lgkmcnt(0)
    buffer_load_dwordx2 {v(X0,2)}, {v(vXoff)}, {XS}, {s(sRow0)} offen
    buffer_load_dwordx2 {v(X0+2,2)}, {v(vXoff)}, {XS}, {s(sRow1)} offen
    global_load_dwordx2 {v(X0+4,2)}, {v(vUW)}, s[16:17]
    buffer_load_dword {v(X0+6)}, off, {WS}, 0 sc1
    ''')
    tabt=f'buffer_load_dword {v(X0+7)}, {v(vL8)}, {WS}, {s(sTabLd)} offen sc1'
    ltch=f'buffer_load_dwordx4 {v(X0+8,4)}, {v(t)}, {WS}, {s(sLst)} offen sc1'
    lclr=f'buffer_store_dwordx4 {v(SENT,4)}, {v(t)}, {WS}, {s(sLst)} offen'
    if cfg.tch==0: a(tabt+'\n'+ltch+'\n'+lclr)
    if cfg.tch==1 and not cfg.aft&1: a(tabt+'\n'+ltch)
    if cfg.tch==2: a(tabt+'\n'+lclr+'\n'+ltch)
    if cfg.tch==3: a(ltch.replace(' sc1','')+'\n'+ltch.replace(' sc1','')+'\n'+lclr)
    a(f'''
    s_mov_b32 {s(sG0)}, {GBASE}
    s_mul_i32 {s(sT)}, {s(sX)}, {GS}
    s_add_u32 {s(sT+2)}, {s(sJ)}, 24
    s_and_b32 {s(sT+2)}, {s(sT+2)}, 24
    s_lshl_b32 {s(sT+2)}, {s(sT+2)}, 13
    s_add_u32 {s(sT)}, {s(sT)}, {s(sT+2)}
    s_and_b32 {s(sT+2)}, {s(sJ)}, 7
    s_cmp_lt_u32 {s(sJ)}, 8
    s_cselect_b32 {s(sT+3)}, 7, 8
    s_cselect_b32 {s(sT+4)}, 112, 0
    s_lshl_b32 {s(sT+2)}, {s(sT+2)}, {s(sT+3)}
    s_add_u32 {s(sT)}, {s(sT)}, {s(sT+2)}
    v_lshlrev_b32 {v(t+2)}, 4, {v(vN)}
    v_lshl_add_u32 {v(vGst)}, {v(t+1)}, 11, {v(t+2)}
    v_and_b32 {v(t+3)}, 8, {v(vN)}
    v_mad_u32_u24 {v(vGst)}, {v(t+3)}, {s(sT+4)}, {v(vGst)}
    v_add_u32 {v(vGst)}, {s(sT)}, {v(vGst)}
    s_lshl_b32 {s(sT+15)}, s2, 13
    s_sub_u32 {s(sT+14)}, s2, 4
    s_cmp_lt_u32 {s(sT+14)}, 28
    s_cselect_b32 {s(sT+15)}, {s(sT+15)}, {WSSZ}
    ''')
    clrs=f'''buffer_store_dwordx4 {v(SENT,4)}, {v(vGst)}, {WS}, {s(sG0)} offen sc1
    buffer_store_dwordx4 {v(SENT,4)}, {v(t)}, {WS}, {s(sT+15)} offen sc1'''
    g2c=f's_mov_b32 {s(sT+14)}, {GBASE+GR}\nbuffer_store_dwordx4 {v(SENT,4)}, {v(vGst)}, {WS}, {s(sT+14)} offen sc1'
    if not cfg.aft&2: a(clrs)
    if cfg.g2pos==0: a(g2c)
    c=t+8; co,si=c+8,c+12
    a(f'''
    s_lshr_b32 {s(sT)}, {s(sJ)}, 2
    s_and_b32 {s(sT)}, {s(sT)}, 6                 ; 2*(j>>3)
    s_lshl_b32 {s(sT+1)}, {s(sW)}, 2
    s_and_b32 {s(sT+1)}, {s(sT+1)}, 8             ; 2*4*((w>>1)&1)
    s_cmp_lt_u32 {s(sJ)}, 8
    s_cselect_b32 {s(sT)}, {s(sT+1)}, {s(sT)}
    s_lshl_b32 {s(sT+1)}, {s(sW)}, 4
    s_and_b32 {s(sT+1)}, {s(sT+1)}, 16            ; 16*(w&1)
    s_cmp_ge_u32 {s(sW)}, 4
    s_cselect_b32 {s(sT+2)}, {s(sT+1)}, 0         ; 16k
    s_cselect_b32 {s(sT)}, {s(sT)}, 0
    s_cmp_eq_u32 {s(sW)}, 3
    s_cselect_b32 {s(sT)}, 16, {s(sT)}
    s_lshl_b32 {s(sT+3)}, {s(sW)}, 2
    s_lshr_b32 {s(sT+3)}, 0x44440054, {s(sT+3)}
    s_and_b32 {s(sT+3)}, {s(sT+3)}, 15            ; log2 A
    v_lshlrev_b32 {v(c)}, {s(sT+3)}, {v(vN)}
    v_add_u32 {v(c)}, {s(sT)}, {v(c)}
    v_lshl_add_u32 {v(c+1)}, {v(vQ)}, 2, {s(sT+2)}
    v_cvt_f32_u32 {v(c)}, {v(c)}
    v_cvt_f32_u32 {v(c+1)}, {v(c+1)}
    s_mov_b32 {s(sK512)}, {fbits(1/512)}
    v_mul_f32 {v(c)}, {s(sK512)}, {v(c)}
    v_mul_f32 {v(c+4)}, {v(c+1)}, {v(c)}
    v_add_f32 {v(c+5)}, {v(c+4)}, {v(c)}
    v_add_f32 {v(c+6)}, {v(c+5)}, {v(c)}
    v_add_f32 {v(c+7)}, {v(c+6)}, {v(c)}
    ''')
    fill=[f's_mov_b32 {s(sEps)}, {fbits(1e-5)}', f's_mov_b32 {s(sEps+1)}, {fbits(1e-5)}', f's_mov_b32 {s(sC16)}, {fbits(1/16)}', f's_mov_b32 {s(sC16+1)}, {fbits(1/16)}',
          f's_mov_b32 {s(sTop)}, 0x80000000', f's_mov_b32 {s(sQmask)}, 0x11111111', f's_mov_b32 {s(sQmask+1)}, 0x11111111', f's_mov_b32 {s(sG4)}, {GBASE+4*GS}']
    for r in range(4):
        a(f'v_cos_f32 {v(co+r)}, {v(c+4+r)}'); a(fill[2*r])
        a(f'v_sin_f32 {v(si+r)}, {v(c+4+r)}'); a(fill[2*r+1])
    a(f'''
    s_lshl_b32 {s(sT)}, {s(sW)}, 11
    s_add_u32 {s(sT)}, {s(sT)}, {L_CX}
    v_lshlrev_b32 {v(c+2)}, 4, {v(vLane)}
    v_add_u32 {v(c+3)}, {s(sT)}, {v(c+2)}
    s_and_b32 {s(sT)}, {s(sW)}, 6
    s_cmp_eq_u32 {s(sT)}, 2
    s_cbranch_scc1 L_cw
    s_cmp_eq_u32 {s(sW)}, 1
    s_cbranch_scc1 L_cri
    v_cvt_pk_f16_f32 {v(co)}, {v(co)}, {v(co+1)}
    v_cvt_pk_f16_f32 {v(co+1)}, {v(co+2)}, {v(co+3)}
    v_cvt_pk_f16_f32 {v(co+2)}, {v(si)}, {v(si+1)}
    v_cvt_pk_f16_f32 {v(co+3)}, {v(si+2)}, {v(si+3)}
    s_branch L_cw
    L_cri:
    ''')
    for r in range(4):
        a(f'v_cvt_pk_f16_f32 {v(c+4)}, {v(co+r)}, {v(si+r)}')
        a(f'v_cvt_pk_f16_f32 {v(si+r)}, -{v(si+r)}, {v(co+r)}')
        a(f'v_mov_b32 {v(co+r)}, {v(c+4)}')
    a(f'''
    L_cw:
    ds_write_b128 {v(c+3)}, {v(co,4)}
    ds_write_b128 {v(c+3)}, {v(si,4)} offset:1024
    v_lshrrev_b32 {v(c+4)}, 2, {v(vN)}
    v_and_b32 {v(c+5)}, 2, {v(vN)}
    v_and_b32 {v(c+6)}, 14, {v(vN)}
    v_cmp_eq_u32 vcc, 2, {v(c+6)}
    v_mul_u32_u24 {v(vYIR)}, {YIS}, {v(c+4)}
    v_lshlrev_b32 {v(vStR)}, 8, {v(vQ)}
    v_cndmask_b32 {v(c+4)}, {v(c+4)}, 4, vcc
    v_cndmask_b32 {v(c+5)}, {v(c+5)}, 0, vcc
    v_mul_u32_u24 {v(c+6)}, {v(c+4)}, {v(vQ)}
    v_lshl_add_u32 {v(c+6)}, {v(c+6)}, 1, {v(c+5)}
    v_add_u32 {v(c+7)}, {v(c+6)}, {v(c+4)}
    v_cvt_f32_u32 {v(c+6)}, {v(c+6)}
    v_cvt_f32_u32 {v(c+7)}, {v(c+7)}
    v_mul_f32 {v(c+6)}, 0x3e000000, {v(c+6)}
    v_mul_f32 {v(c+7)}, 0x3e000000, {v(c+7)}
    v_cos_f32 {v(c+6)}, {v(c+6)}
    v_cos_f32 {v(c+7)}, {v(c+7)}
    v_and_b32 {v(c+5)}, 1, {v(vN)}
    v_cmp_eq_u32 vcc, 0, {v(c+5)}
    v_cvt_pk_f16_f32 {v(c+6)}, {v(c+6)}, {v(c+7)}
    v_mov_b32 {v(c+5)}, 0x80008000
    v_cndmask_b32 {v(A8)}, 0, {v(c+6)}, vcc
    v_cndmask_b32 {v(A8+1)}, {v(c+6)}, 0, vcc
    v_cndmask_b32 {v(c+5)}, {v(c+5)}, 0, vcc
    s_lshl_b32 {s(sT+1)}, {s(sT+1)}, 7            ; h*2048
    v_add_u32 {v(c+6)}, {s(sT+1)}, {v(c+2)}
    s_lshl_b32 {s(sT+2)}, {s(sW)}, 11
    s_and_b32 {s(sT+2)}, {s(sT+2)}, 4096          ; ((w>>1)&1)*4096
    v_add_u32 {v(c+7)}, {s(sT+2)}, {v(c+2)}
    s_waitcnt lgkmcnt(0)
    s_barrier
    ds_read_b128 {v(B1N,4)}, {v(c+2)} offset:{L_CX}
    ds_read_b128 {v(co,4)}, {v(c+7)} offset:{L_CX+4*2048}
    ds_read_b128 {v(si,4)}, {v(c+7)} offset:{L_CX+5*2048}
    ds_read_b128 {v(A2R,4)}, {v(c+2)} offset:{L_CX+2048}
    ds_read_b128 {v(A2I,4)}, {v(c+2)} offset:{L_CX+2048+1024}
    ds_read_b128 {v(TWC,4)}, {v(c+6)} offset:{L_CX+4096}
    ds_read_b128 {v(TWS,4)}, {v(c+6)} offset:{L_CX+4096+1024}
    v_and_b32 {v(c+4)}, 4, {v(vN)}
    s_lshl_b32 {s(sT)}, {s(sW)}, 2
    v_lshl_add_u32 {v(vStW)}, {v(t+3)}, 2, {v(vStR)}
    v_lshl_add_u32 {v(vStW)}, {v(c+4)}, 4, {v(vStW)}
    v_add_u32 {v(vStW)}, {s(sT)}, {v(vStW)}
    v_and_b32 {v(c+4)}, 7, {v(vN)}
    v_lshl_add_u32 {v(vStR)}, {v(c+4)}, 5, {v(vStR)}
    v_lshl_add_u32 {v(vUW)}, {v(vQ)}, 11, {v(vUW)}
    v_add_u32 {v(vUW)}, {L_U}, {v(vUW)}
    s_lshr_b32 {s(sT)}, {s(sW)}, 1
    s_lshl_b32 {s(sT)}, {s(sT)}, 11
    s_add_u32 {s(sT+2)}, {s(sT)}, {L_U}
    v_lshl_add_u32 {v(vUR)}, {v(vLane)}, 3, {s(sT+2)}
    ; vLst = w'*2048 + 512q + 64h + 4n
    s_lshr_b32 {s(sT+2)}, {s(sT+1)}, 5
    s_add_u32 {s(sT)}, {s(sT)}, {s(sT+2)}
    v_lshl_add_u32 {v(vLst)}, {v(vQ)}, 9, {s(sT)}
    v_lshl_add_u32 {v(vLst)}, {v(vN)}, 2, {v(vLst)}
    s_lshl_b32 {s(sT)}, {s(sJ)}, 3
    s_add_u32 {s(sTabSt)}, {s(sTabLd)}, {s(sT)}
    s_lshl_b32 {s(sT+3)}, {s(sW)}, 31             ; h sign
    s_lshl_b32 {s(sT+4)}, {s(sW)}, 29
    s_and_b32 {s(sT+4)}, {s(sT+4)}, {s(sTop)}
    s_mov_b32 {s(sT+5)}, 0x80008000
    s_mov_b32 {s(sIt)}, 0
    s_mov_b32 {s(sFast)}, 1
    s_mov_b32 {s(sPh)}, 0
    s_mov_b32 {s(sNx)}, 0
    s_mov_b32 {s(sSlot)}, {WSSZ}
    s_xor_b32 {s(sT+12)}, {s(sJ)}, 9
    s_or_b32 {s(sT+12)}, {s(sT+12)}, {s(sW)}
    s_mov_b32 {s(sTry)}, 64
    s_waitcnt lgkmcnt(4)
    v_xor_b32 {v(B1C)}, {s(sT+3)}, {v(B1N)}
    v_xor_b32 {v(B1C+1)}, {s(sT+3)}, {v(B1N+1)}
    v_xor_b32 {v(B1S)}, {s(sT+3)}, {v(B1N+2)}
    v_xor_b32 {v(B1S+1)}, {s(sT+3)}, {v(B1N+3)}
    v_xor_b32 {v(B1C+2)}, {v(B1C)}, {v(c+5)}
    v_xor_b32 {v(B1C+3)}, {v(B1C+1)}, {v(c+5)}
    v_xor_b32 {v(B1S+2)}, {v(B1S)}, {v(c+5)}
    v_xor_b32 {v(B1S+3)}, {v(B1S+1)}, {v(c+5)}
    ''')
    for r in range(4): a(f'v_xor_b32 {v(B1N+r)}, {s(sT+5)}, {v(B1S+r)}')
    for k,src in ((0,co),(1,si)):
        for r in range(2):
            a(f'v_xor_b32 {v(YC+2*k+r)}, {s(sT+4)}, {v(src+r)}')
            a(f'v_xor_b32 {v(YS+2*k+r)}, {s(sT+4)}, {v(src+2+r)}')
    a(f'''
    s_and_b32 {s(sT+1)}, {s(sW)}, 3
    s_lshl_b32 {s(sT+1)}, {s(sT+1)}, 6            ; 64cb
    s_lshr_b32 {s(sT)}, {s(sW)}, 2
    s_mul_i32 {s(sT)}, {s(sT)}, {16*272}
    s_add_u32 {s(sT)}, {s(sT)}, {s(sT+1)}
    s_add_u32 {s(sT)}, {s(sT)}, {L_YT}
    v_mul_u32_u24 {v(vYW)}, 272, {v(vN)}
    v_lshl_add_u32 {v(vYW)}, {v(vQ)}, 4, {v(vYW)}
    v_add_u32 {v(vYW)}, {s(sT)}, {v(vYW)}
    v_mul_u32_u24 {v(vYR)}, 272, {v(t+1)}
    v_add_u32 {v(vYR)}, {v(vYR)}, {v(t+2)}
    v_add_u32 {v(vYR)}, {L_YT}, {v(vYR)}
    s_add_u32 {s(sT+1)}, {s(sT+1)}, {L_YI}
    v_mul_u32_u24 {v(c+4)}, {4*YIS}, {v(vQ)}
    v_and_b32 {v(c+6)}, 0x30, {v(t+2)}
    v_add3_u32 {v(vYIR)}, {v(vYIR)}, {v(c+4)}, {v(c+6)}
    v_add_u32 {v(vYIR)}, {s(sT+1)}, {v(vYIR)}
    s_cmp_lt_u32 {s(sJ)}, 8
    s_cbranch_scc1 L_aself
    v_mul_u32_u24 {v(vLld)}, {PS}, {v(t+1)}
    v_mul_u32_u24 {v(vYIW)}, {YIS}, {v(t+1)}
    s_lshl_b32 {s(sT)}, {s(sJ)}, 8
    v_add3_u32 {v(vLld)}, {v(vLld)}, {v(t+2)}, {s(sT)}
    v_add_u32 {v(vYIW)}, {v(vYIW)}, {v(t+2)}
    v_mov_b32 {v(vLldM)}, 0
    s_branch L_adone
    L_aself:
    ; s2=(w>>1)*8+(l>>3), u=l&7, which=w&1
    s_lshl_b32 {s(sT)}, {s(sW)}, 2
    s_and_b32 {s(sT)}, {s(sT)}, 24
    v_lshrrev_b32 {v(c+4)}, 3, {v(vLane)}
    v_add_u32 {v(c+4)}, {s(sT)}, {v(c+4)}
    v_and_b32 {v(c+6)}, 0x70, {v(t+2)}
    v_mul_u32_u24 {v(vLldM)}, {PS}, {v(c+4)}
    v_mul_u32_u24 {v(vYIW)}, {YIS}, {v(c+4)}
    s_lshl_b32 {s(sT)}, {s(sJ)}, 7
    s_add_u32 {s(sT+1)}, {s(sT)}, 4
    s_sub_u32 {s(sT)}, {508*4}, {s(sT)}
    v_add3_u32 {v(vLld)}, {v(vLldM)}, {v(c+6)}, {s(sT+1)}
    v_sub_u32 {v(vLldM)}, {v(vLldM)}, {v(c+6)}
    v_add_u32 {v(vLldM)}, {s(sT)}, {v(vLldM)}
    s_lshr_b32 {s(sT)}, {s(sT+3)}, 24
    v_add3_u32 {v(vYIW)}, {v(vYIW)}, {v(c+6)}, {s(sT)}
    L_adone:
    v_add_u32 {v(vYIW)}, {L_YI}, {v(vYIW)}
    s_waitcnt vmcnt({(0 if cfg.aft&1 else 2)+(0 if cfg.aft&2 else 2)+(1 if cfg.g2pos==0 else 0)})
    {tabt if cfg.aft&1 else ''}
    {ltch if cfg.aft&1 else ''}
    {clrs if cfg.aft&2 else ''}
    {g2c if cfg.g2pos==1 else ''}
    v_readfirstlane_b32 {s(sTag)}, {v(X0+6)}
    ''')
    for rho in (0,1):
        for k in (0,1):
            src=X0+2*rho+k
            a(f'v_lshlrev_b32 {v(X+4*k+rho)}, 16, {v(src)}')
            a(f'v_and_b32 {v(X+4*k+2+rho)}, 0xffff0000, {v(src)}')
    for k in (0,1):
        a(f'v_lshlrev_b32 {v(WV+2*k)}, 16, {v(X0+4+k)}')
        a(f'v_and_b32 {v(WV+2*k+1)}, 0xffff0000, {v(X0+4+k)}')
    a(f's_add_u32 {s(sTag)}, {s(sTag)}, 1')

def xin_consts(c):
    a(f'''
    s_and_b32 {s(sT)}, {s(sX)}, 3                ; 0 => self
    s_lshr_b32 {s(sT+1)}, {s(sW)}, 2
    s_lshr_b32 {s(sT+2)}, {s(sX)}, 2
    s_mov_b32 {s(sSc)}, {fbits(16.0)}
    s_cmp_eq_u32 {s(sT)}, 0
    s_cselect_b32 {s(sMir)}, {s(sT+1)}, {s(sT+2)}
    s_cselect_b32 {s(sSc)}, {fbits(8.0)}, {s(sSc)}
    s_cselect_b32 {s(sDsc)}, {fbits(1/8)}, {s(sC16)}
    s_cselect_b32 {s(sT+3)}, -4, 0
    s_mov_b32 {s(sSc+1)}, {s(sSc)}
    s_sub_u32 {s(sT+4)}, 256, s2
    s_and_b32 {s(sT+4)}, {s(sT+4)}, 255
    s_cmp_eq_u32 {s(sMir)}, 0
    s_cselect_b32 {s(sT+4)}, s2, {s(sT+4)}       ; source g
    s_cselect_b32 {s(sT+5)}, 16, -16
    s_cselect_b32 {s(sT+6)}, 0, {509*4}
    s_cselect_b32 {s(sT+7)}, 1.0, -1.0
    s_add_u32 {s(sT+3)}, {s(sT+3)}, {s(sT+6)}
    s_mul_i32 {s(sT+6)}, {s(sT+5)}, {s(sW)}
    s_lshl_b32 {s(sT+6)}, {s(sT+6)}, 4
    s_add_u32 {s(sT+3)}, {s(sT+3)}, {s(sT+6)}
    s_lshr_b32 {s(sT+6)}, {s(sT+4)}, 3
    s_lshl_b32 {s(sT+6)}, {s(sT+6)}, 11
    s_add_u32 {s(sT+3)}, {s(sT+3)}, {s(sT+6)}
    s_add_u32 {s(sT+6)}, {s(sT+4)}, 3
    s_and_b32 {s(sT+6)}, {s(sT+6)}, 3
    s_lshl_b32 {s(sT+6)}, {s(sT+6)}, 16
    s_add_u32 {s(sT+3)}, {s(sT+3)}, {s(sT+6)}
    s_and_b32 {s(sT+6)}, {s(sT+4)}, 4
    s_lshl_b32 {s(sT+6)}, {s(sT+6)}, 8
    s_add_u32 {s(sT+3)}, {s(sT+3)}, {s(sT+6)}
    v_mul_i32_i24 {v(vGld)}, {s(sT+5)}, {v(vN)}
    v_mul_u32_u24 {v(c+4)}, {GS}, {v(vQ)}
    v_add3_u32 {v(vGld)}, {v(vGld)}, {v(c+4)}, {s(sT+3)}
    v_lshrrev_b32 {v(c+4)}, 1, {v(vN)}
    v_and_b32 {v(c+4)}, 6, {v(c+4)}
    v_and_or_b32 {v(c+4)}, {v(vN)}, 1, {v(c+4)}
    v_lshl_add_u32 {v(AD)}, {v(c+4)}, 8, s2
    v_cvt_f32_u32 {v(c+4)}, {v(AD)}
    v_cvt_f32_u32 {v(c+5)}, {v(vQ)}
    v_mul_f32 {v(c+4)}, {fbits(1/2048)}, {v(c+4)}
    v_mul_f32 {v(c+4)}, {s(sT+7)}, {v(c+4)}
    v_mul_f32 {v(c+5)}, {v(c+4)}, {v(c+5)}
    v_fma_f32 {v(c+6)}, {v(c+4)}, 4.0, {v(c+5)}
    v_cos_f32 {v(c+7)}, {v(c+5)}
    v_sin_f32 {v(c+8)}, {v(c+5)}
    v_cos_f32 {v(c+9)}, {v(c+6)}
    v_sin_f32 {v(c+10)}, {v(c+6)}
    v_bfe_u32 {v(c+4)}, {v(vN)}, 1, 1
    v_cmp_eq_u32 vcc, {s(sMir)}, {v(c+4)}
    v_cvt_pk_f16_f32 {v(c+7)}, {v(c+7)}, {v(c+8)}
    v_cvt_pk_f16_f32 {v(c+9)}, {v(c+9)}, {v(c+10)}
    v_cndmask_b32 {v(XA)}, 0, {v(c+7)}, vcc
    v_cndmask_b32 {v(XA+1)}, {v(c+7)}, 0, vcc
    v_cndmask_b32 {v(XA+2)}, 0, {v(c+9)}, vcc
    v_cndmask_b32 {v(XA+3)}, {v(c+9)}, 0, vcc
    v_and_b32 {v(c+4)}, 0x1cf, v0
    v_cmp_eq_u32 vcc, 0, {v(c+4)}
    v_mov_b32 {v(c+5)}, {s(sSc)}
    s_sub_u32 {s(sT)}, 2047, s2
    v_lshlrev_b32 {v(vInv)}, 9, {v(vQ)}
    v_cndmask_b32 {v(vSc0)}, {v(c+5)}, 0, vcc
    v_cndmask_b32 {v(vSc0+1)}, {v(c+5)}, 0, vcc
    v_sub_u32 {v(vInv)}, {s(sT)}, {v(vInv)}
    s_lshl_b32 {s(sSlot)}, {s(sX)}, 12
    s_add_u32 {s(sSlot)}, {s(sSlot)}, {SLOT}
    s_mov_b32 {s(sPh)}, -1
    ''')

def main_loop():
    t=T
    S1,S2,S3=t,t+2,t+4
    a('L_top:')
    stamp()
    a(f'''
    v_pk_add_f32 {v(S1,2)}, {v(X,2)}, {v(X+2,2)}
    v_pk_add_f32 {v(t+6,2)}, {v(X+4,2)}, {v(X+6,2)}
    v_pk_mul_f32 {v(S2,2)}, {v(X,2)}, {v(X,2)}
    v_pk_mul_f32 {v(S3,2)}, {v(X,2)}, {v(WV,2)} op_sel:[0,0] op_sel_hi:[1,0]
    v_pk_add_f32 {v(S1,2)}, {v(S1,2)}, {v(t+6,2)}
    v_pk_fma_f32 {v(S2,2)}, {v(X+2,2)}, {v(X+2,2)}, {v(S2,2)}
    v_pk_fma_f32 {v(S3,2)}, {v(X+2,2)}, {v(WV,2)}, {v(S3,2)} op_sel:[0,1,0] op_sel_hi:[1,1,1]
    v_add_f32_dpp {v(S1)}, {v(S1)}, {v(S1)} row_ror:8 row_mask:0xf bank_mask:0x3
    v_pk_fma_f32 {v(S2,2)}, {v(X+4,2)}, {v(X+4,2)}, {v(S2,2)}
    v_pk_fma_f32 {v(S3,2)}, {v(X+4,2)}, {v(WV+2,2)}, {v(S3,2)} op_sel:[0,0,0] op_sel_hi:[1,0,1]
    v_add_f32_dpp {v(S1)}, {v(S1+1)}, {v(S1+1)} row_ror:8 row_mask:0xf bank_mask:0xc
    v_pk_fma_f32 {v(S2,2)}, {v(X+6,2)}, {v(X+6,2)}, {v(S2,2)}
    v_pk_fma_f32 {v(S3,2)}, {v(X+6,2)}, {v(WV+2,2)}, {v(S3,2)} op_sel:[0,1,0] op_sel_hi:[1,1,1]
    s_cmp_eq_u32 {s(sIt)}, 0
    s_cbranch_scc1 L_s3w
    L_s3ok:
    v_add_f32_dpp {v(S1)}, {v(S1)}, {v(S1)} row_half_mirror row_mask:0xf bank_mask:0x5
    v_add_f32_dpp {v(S2)}, {v(S2)}, {v(S2)} row_ror:8 row_mask:0xf bank_mask:0x3
    v_add_f32_dpp {v(S3)}, {v(S3)}, {v(S3)} row_ror:8 row_mask:0xf bank_mask:0x3
    v_add_f32_dpp {v(S2)}, {v(S2+1)}, {v(S2+1)} row_ror:8 row_mask:0xf bank_mask:0xc
    v_add_f32_dpp {v(S3)}, {v(S3+1)}, {v(S3+1)} row_ror:8 row_mask:0xf bank_mask:0xc
    v_add_f32_dpp {v(S1)}, {v(S2)}, {v(S2)} row_half_mirror row_mask:0xf bank_mask:0xa
    v_add_f32_dpp {v(S3)}, {v(S3)}, {v(S3)} row_half_mirror {DPP}
    v_add_f32_dpp {v(S1)}, {v(S1)}, {v(S1)} quad_perm:[1,0,3,2] {DPP}
    v_add_f32_dpp {v(S3)}, {v(S3)}, {v(S3)} quad_perm:[1,0,3,2] {DPP}
    v_add_f32_dpp {v(S1)}, {v(S1)}, {v(S1)} quad_perm:[2,3,0,1] {DPP}
    v_add_f32_dpp {v(S3)}, {v(S3)}, {v(S3)} quad_perm:[2,3,0,1] {DPP}
    s_mov_b64 exec, {s(sQmask,2)}
    ds_write2_b32 {v(vStW)}, {v(S1)}, {v(S3)} offset0:0 offset1:32
    s_mov_b64 exec, -1
    ;@F
    s_waitcnt {'' if cfg.late else 'vmcnt(0)' if cfg.tch==1 else 'vmcnt(2)'} lgkmcnt(0)
    s_barrier
    ;@F
    ds_read_b128 {v(t,4)}, {v(vStR)}
    ds_read_b128 {v(t+4,4)}, {v(vStR)} offset:16
    s_waitcnt lgkmcnt(0)
    v_pk_add_f32 {v(t,2)}, {v(t,2)}, {v(t+2,2)}
    v_pk_add_f32 {v(t+4,2)}, {v(t+4,2)}, {v(t+6,2)}
    v_pk_add_f32 {v(t,2)}, {v(t,2)}, {v(t+4,2)}
    v_add_f32 {v(t)}, {v(t)}, {v(t+1)}
    v_mul_f32 {v(t+7)}, {s(sK512)}, {v(t)}
    ''')
    VAR,RS,CC,NM=t+8,t+10,t+12,t+14
    K=t+16
    a(f'''
    v_mov_b32_dpp {v(MM)}, {v(t+7)} row_newbcast:0 {DPP}
    v_mov_b32_dpp {v(MM+1)}, {v(t+7)} row_newbcast:1 {DPP}
    v_mov_b32_dpp {v(S2)}, {v(t+7)} row_newbcast:2 {DPP}
    v_mov_b32_dpp {v(S2+1)}, {v(t+7)} row_newbcast:3 {DPP}
    v_mov_b32_dpp {v(S3)}, {v(t+7)} row_newbcast:4 {DPP}
    v_pk_fma_f32 {v(VAR,2)}, {v(MM,2)}, {v(MM,2)}, {v(S2,2)} neg_lo:[1,0,0] neg_hi:[1,0,0]
    v_mov_b32_dpp {v(S3+1)}, {v(t+7)} row_newbcast:5 {DPP}
    v_pk_add_f32 {v(S1,2)}, {v(VAR,2)}, {s(sEps,2)}
    s_cmp_eq_u32 {s(sIt)}, 0
    v_rsq_f32_e64 {v(RS)}, |{v(S1)}|
    v_rsq_f32_e64 {v(RS+1)}, |{v(S1+1)}|
    s_cbranch_scc1 L_it0 ;!nd
    v_pk_mul_f32 {v(S3,2)}, {v(S3,2)}, {v(RS,2)}
    v_add_u32 {v(K+2)}, 0xffffff00, {v(vInv)}
    v_ashrrev_i32 {v(K)}, 31, {v(S3)}
    v_ashrrev_i32 {v(K+1)}, 31, {v(S3+1)}
    v_bitop3_b32 {v(K)}, {v(S3)}, {v(K)}, {s(sTop)} bitop3:0x1e
    v_bitop3_b32 {v(K+1)}, {v(S3+1)}, {v(K+1)}, {s(sTop)} bitop3:0x1e
    v_bfi_b32 {v(K)}, {s(sM7FF)}, {v(vInv)}, {v(K)}
    v_bfi_b32 {v(K+1)}, {s(sM7FF)}, {v(K+2)}, {v(K+1)}
    v_max_u32 {v(K+1)}, {v(K)}, {v(K+1)}
    v_pk_add_f32 {v(CC,2)}, {v(RS,2)}, 1.0 op_sel_hi:[1,0]
    v_mov_b32 {v(K)}, {s(sTag)}
    v_max_u32_dpp {v(K+1)}, {v(K+1)}, {v(K+1)} row_bcast:15 row_mask:0xa bank_mask:0xf
    v_pk_mul_f32 {v(VAR,2)}, {v(VAR,2)}, {v(CC,2)}
    s_cmp_lg_u32 {s(sW)}, 0
    v_max_u32_dpp {v(K+1)}, {v(K+1)}, {v(K+1)} row_bcast:31 row_mask:0xc bank_mask:0xf
    s_cbranch_scc1 L_nost ;!nd
    s_mov_b32 exec_lo, 0
    s_mov_b32 exec_hi, {s(sTop)}
    s_cmp_eq_u32 {s(sFast)}, 0
    s_cbranch_scc1 L_tabst_slow ;!nd
    buffer_store_dwordx2 {v(K,2)}, off, {WS}, {s(sTabSt)}
    L_tabst_back:
    s_mov_b64 exec, -1
    L_nost:
    v_readlane_b32 {s(sKey)}, {v(K+1)}, 63
    v_pk_mul_f32 {v(NM,2)}, {v(MM,2)}, {v(RS,2)}
    v_pk_fma_f32 {v(VAR,2)}, {v(VAR,2)}, {v(CC,2)}, {s(sEps,2)}
    ''')
    Z=t+18
    for c_ in range(4):
        a(f'v_pk_fma_f32 {v(Z+2*c_,2)}, {v(X+2*c_,2)}, {v(RS,2)}, {v(NM,2)} neg_lo:[0,0,1] neg_hi:[0,0,1]')
        if c_==0: a(f'v_rsq_f32_e64 {v(RS2)}, |{v(VAR)}|')
        if c_==1: a(f'v_rsq_f32_e64 {v(RS2+1)}, |{v(VAR+1)}|')
    for c_ in range(4):
        a(f'v_pk_add_f32 {v(X+2*c_,2)}, {v(X+2*c_,2)}, {v(Z+2*c_,2)}')
    for rho in (0,1):
        for k in (0,1):
            a(f'v_cvt_pk_bf16_f32 {v(LNP+2*rho+k)}, {v(Z+4*k+rho)}, {v(Z+4*k+2+rho)}')
    a(f'''
    s_cmp_eq_u32 {s(sIt)}, 2
    s_cbranch_scc1 L_tab2e ;!nd
    v_pk_mul_f32 {v(CC,2)}, {v(RS2,2)}, {s(sC16,2)}
    L_z:
    ;@F
    ''')
    ZP=t; D0=t+4; D1=t+8
    a(f'v_pk_mul_f32 {v(NM,2)}, {v(MM,2)}, {v(CC,2)}')
    for c_ in range(4):
        a(f'v_pk_fma_f32 {v(Z+2*c_,2)}, {v(X+2*c_,2)}, {v(CC,2)}, {v(NM,2)} neg_lo:[0,0,1] neg_hi:[0,0,1]')
    for c_ in range(4): a(f'v_cvt_pk_f16_f32 {v(ZP+c_)}, {v(Z+2*c_)}, {v(Z+2*c_+1)}')
    a(f'''
    v_mfma_f32_16x16x16_f16 {v(D0,4)}, {v(A8,2)}, {v(ZP,2)}, 0
    v_mfma_f32_16x16x16_f16 {v(D1,4)}, {v(A8,2)}, {v(ZP+2,2)}, 0
    s_nop 6
    v_cvt_pk_f16_f32 {v(ZP)}, {v(D0)}, {v(D0+1)}
    v_cvt_pk_f16_f32 {v(ZP+1)}, {v(D1)}, {v(D1+1)}
    v_cvt_pk_f16_f32 {v(ZP+2)}, {v(D0+2)}, {v(D0+3)}
    v_cvt_pk_f16_f32 {v(ZP+3)}, {v(D1+2)}, {v(D1+3)}
    ds_write_b64 {v(vUW)}, {v(ZP,2)}
    ds_write_b64 {v(vUW)}, {v(ZP+2,2)} offset:1024
    ;@F
    s_waitcnt lgkmcnt(0)
    s_barrier
    ;@F
    ds_read_b64_tr_b16 {v(t,2)}, {v(vUR)}
    ds_read_b64_tr_b16 {v(t+2,2)}, {v(vUR)} offset:512
    ds_read_b64_tr_b16 {v(t+4,2)}, {v(vUR)} offset:1024
    ds_read_b64_tr_b16 {v(t+6,2)}, {v(vUR)} offset:1536
    s_cmp_ge_u32 {s(sW)}, {s(sIt)}
    s_cbranch_scc1 L_tg1 ;!nd
    buffer_load_dwordx2 {v(t+24,2)}, {v(vL8)}, {WS}, {s(sTabLd)} offen sc1
    L_tg1:
    L_tg2:
    s_waitcnt lgkmcnt(0)
    ;@F
    ''')
    P=t
    fft_core(t, t+4, t+8, t+16, t+8, P)
    for r in range(4): a(f'v_bfi_b32 {v(P+r)}, 1, {s(sPh)}, {v(P+r)}')
    def lstores(fl):
        for r in range(4): a(f'buffer_store_dword {v(P+r)}, {v(vLst)}, {WS}, {s(sLst)} offen offset:{128*r} {fl}')
    TB=t+24
    W_=t+4
    a(f'''
    s_cmp_lg_u32 {s(sIt)}, 0
    s_cbranch_scc1 L_tab1e
    ''')
    lstores('')
    stamp()
    a(f'''
    s_branch L_pub
    L_tab1e:
    s_cmp_eq_u32 {s(sW)}, 0
    s_cbranch_scc1 L_tabw1
    s_branch L_tabbar
    L_tab2e:
    s_cmp_eq_u32 {s(sW)}, 0
    s_cbranch_scc1 L_tab
    s_branch L_tabbar
    L_tab:
    buffer_load_dwordx2 {v(TB,2)}, {v(vL8)}, {WS}, {s(sTabLd)} offen sc1
    L_tabw1:
    s_waitcnt vmcnt(0)
    v_cmp_ne_u32 vcc, {s(sTag)}, {v(TB)}
    ''')
    poll_branch('L_tab', cfg.slp_t, f'''s_cmp_lg_u32 {s(sIt)}, 0
        s_cselect_b32 {s(sT)}, 0, 1
        s_sub_u32 {s(sTry)}, {s(sTry)}, {s(sT)}
        s_cbranch_scc1 L_tab2''')
    a(f'''
    L_tabok:
    v_cmp_ne_u32 vcc, {s(sKey)}, {v(TB+1)}
    v_cmp_lt_u32 {s(sT,2)}, {s(sKey)}, {v(TB+1)}
    v_mov_b32 {v(TB)}, {L_FLAG}
    s_cmp_eq_u32 {s(sIt)}, 0
    s_cselect_b32 {s(sT)}, vcc_lo, {s(sT)}
    v_mov_b32 {v(TB+1)}, {s(sT)}
    ds_write_b32 {v(TB)}, {v(TB+1)}
    s_waitcnt lgkmcnt(0)
    s_barrier
    s_branch L_tabgot
    L_tabbar:
    v_mov_b32 {v(TB)}, {L_FLAG}
    s_barrier
    ds_read_b32 {v(TB+1)}, {v(TB)}
    s_waitcnt lgkmcnt(0)
    v_readfirstlane_b32 {s(sT)}, {v(TB+1)}
    L_tabgot:
    s_cmp_eq_u32 {s(sIt)}, 0
    s_cbranch_scc1 L_fastchk ;!nd
    s_mov_b32 {s(sT+9)}, 64
    s_cmp_lg_u32 {s(sT)}, 0
    s_cbranch_scc1 L_winback ;!nd
    L_pub:
    s_andn2_b32 {s(sT)}, {s(sM7FF)}, {s(sKey)}      ; idx
    s_lshr_b32 {s(sT+9)}, {s(sT)}, 8                ; s1
    s_bitcmp1_b32 {s(sT+9)}, 0
    s_cselect_b64 vcc, -1, 0
    s_lshl_b32 {s(sT+1)}, {s(sT+9)}, 3
    s_and_b32 {s(sT+1)}, {s(sT+1)}, 0x30
    v_cndmask_b32 {v(W_)}, {v(LNP)}, {v(LNP+2)}, vcc
    v_cndmask_b32 {v(W_+1)}, {v(LNP+1)}, {v(LNP+3)}, vcc
    v_and_b32 {v(W_+2)}, 0x3ff, {v(vXoff)}
    s_bfm_b64 exec, 16, {s(sT+1)}
    buffer_store_dwordx2 {v(W_,2)}, {v(W_+2)}, {WS}, {s(sSlot)} offen sc1
    s_cmp_lg_u32 {s(sW)}, 0
    s_cbranch_scc1 L_nohdr
    v_mov_b32 {v(W_+8)}, {s(sKey)}
    v_cndmask_b32 {v(W_+9)}, {v(MM)}, {v(MM+1)}, vcc
    v_cndmask_b32 {v(W_+10)}, {v(RS2)}, {v(RS2+1)}, vcc
    v_mov_b32 {v(W_+11)}, {s(sKey)}
    buffer_store_dwordx4 {v(W_+8,4)}, off, {WS}, {s(sSlot)} offset:3072 sc1
    buffer_store_dwordx4 {v(W_+8,4)}, off, {WS}, {s(sSlot)} offset:3200 sc1
    L_nohdr:
    ''')
    for c_ in range(4): a(f'v_cndmask_b32 {v(W_+4+c_)}, {v(X+2*c_)}, {v(X+2*c_+1)}, vcc')
    a(f'''
    v_lshlrev_b32 {v(W_+2)}, 1, {v(W_+2)}
    buffer_store_dwordx4 {v(W_+4,4)}, {v(W_+2)}, {WS}, {s(sSlot)} offen offset:1024 sc1
    s_mov_b64 exec, -1
    s_cmp_eq_u32 {s(sIt)}, 0
    s_cbranch_scc1 L_flag0
    L_winback:
    s_cmp_eq_u32 {s(sIt)}, 2
    s_cbranch_scc1 L_fin
    s_add_u32 {s(sSlot)}, {s(sSlot)}, {SLOTR}
    ''')
    lstores('')
    stamp()
    a(f'''
    s_waitcnt vmcnt(0)
    s_branch L_tabdone
    L_flag0:
    ;@F
    v_mov_b32 {v(t+22)}, {s(sTag)}
    v_mov_b32 {v(t+23)}, {s(sKey)}
    s_waitcnt vmcnt(0)
    ;@F
    s_cmp_eq_u32 {s(sW)}, 0
    s_barrier
    s_cbranch_scc0 L_tabbar
    s_mov_b64 exec, 1
    buffer_store_dwordx2 {v(t+22,2)}, off, {WS}, {s(sTabSt)}
    s_mov_b64 exec, -1
    s_branch L_tab
    L_fastchk:
    s_cmp_eq_u32 {s(sT)}, 0
    s_cselect_b32 {s(sFast)}, 1, 0
    L_tabdone:
    s_cmp_eq_u32 {s(sFast)}, 0
    s_cbranch_scc1 L_slow
    L_slowback:
    ;@F
    s_cmp_lt_u32 {s(sJ)}, 8
    s_cbranch_scc0 L_y
    s_branch L_yself
    L_y:
    buffer_load_dwordx4 {v(t,4)}, {v(vLld)}, {WS}, {s(sLld)} offen sc1
    s_waitcnt vmcnt(0)
    ds_write_b128 {v(vYIW)}, {v(t,4)}
    ''')
    phchk(range(t,t+4), t+8)
    poll_branch('L_y', cfg.slp_l, mask=True)
    a('L_yjoin:')
    stamp()
    a(f'''
    s_cmp_lg_u32 {s(sT+12)}, 0
    s_cbranch_scc1 L_noxf
    s_lshl_b32 {s(sT+12)}, {s(sX)}, 7
    s_add_u32 {s(sT+12)}, {s(sT+12)}, {TABG}
    v_lshrrev_b32 {v(t+8)}, 1, {v(vL8)}
    v_mov_b32 {v(t+9)}, {s(sTag)}
    s_mov_b32 exec_hi, 0
    buffer_store_dword {v(t+9)}, {v(t+8)}, {WS}, {s(sT+12)} offen sc1
    s_mov_b64 exec, -1
    L_noxf:
    s_cmp_eq_u32 {s(sIt)}, 0
    s_cbranch_scc1 L_nohl
    v_and_b32 {v(BC)}, 7, {v(vLane)}
    v_lshlrev_b32 {v(BC)}, 12, {v(BC)}
    s_mov_b32 {s(sT+10)}, {SLOT}
    s_mov_b64 exec, 0xff
    buffer_load_dwordx4 {v(LNP,4)}, {v(BC)}, {WS}, {s(sT+10)} offen offset:3200 sc1
    s_mov_b64 exec, -1
    L_nohl:
    ''')
    A0,A1=t,t+4; P0,Q0,P1,Q1=t+8,t+12,t+16,t+20
    a(f'''
    s_waitcnt lgkmcnt(0)
    s_barrier
    ;@F
    ds_read_b64_tr_b16 {v(A0,2)}, {v(vYIR)}
    ds_read_b64_tr_b16 {v(A0+2,2)}, {v(vYIR)} offset:{16*YIS}
    ds_read_b64_tr_b16 {v(A1,2)}, {v(vYIR)} offset:8
    ds_read_b64_tr_b16 {v(A1+2,2)}, {v(vYIR)} offset:{16*YIS+8}
    s_add_u32 {s(sTabLd)}, {s(sTabLd)}, {ARGR}
    s_add_u32 {s(sTabSt)}, {s(sTabSt)}, {ARGR}
    s_waitcnt lgkmcnt(2)
    v_mfma_f32_16x16x32_f16 {v(P0,4)}, {v(A0,4)}, {v(YC,4)}, 0
    v_mfma_f32_16x16x32_f16 {v(Q0,4)}, {v(A0,4)}, {v(YS,4)}, 0
    s_waitcnt lgkmcnt(0)
    v_mfma_f32_16x16x32_f16 {v(P1,4)}, {v(A1,4)}, {v(YC,4)}, 0
    v_mfma_f32_16x16x32_f16 {v(Q1,4)}, {v(A1,4)}, {v(YS,4)}, 0
    ''')
    for P_,Q_ in ((P0,Q0),(P1,Q1)):
        for h in (0,2):
            a(f'v_pk_add_f32 {v(P_+h,2)}, {v(P_+h,2)}, {v(Q_+h,2)} op_sel:[0,1] op_sel_hi:[1,0] neg_hi:[0,1]')
    a(f'''
    v_cvt_pk_f16_f32 {v(t)}, {v(P0)}, {v(P0+1)}
    v_cvt_pk_f16_f32 {v(t+1)}, {v(P0+2)}, {v(P0+3)}
    v_cvt_pk_f16_f32 {v(t+2)}, {v(P1)}, {v(P1+1)}
    v_cvt_pk_f16_f32 {v(t+3)}, {v(P1+2)}, {v(P1+3)}
    ds_write_b128 {v(vYW)}, {v(t,4)}
    ;@F
    s_waitcnt lgkmcnt(0)
    s_barrier
    ;@F
    ds_read_b128 {v(t+4,4)}, {v(vYR)}
    s_waitcnt lgkmcnt(0)
    buffer_store_dwordx4 {v(t+4,4)}, {v(vGst)}, {WS}, {s(sG0)} offen sc1
    ''')
    stamp()
    a(f'''
    s_cmp_lg_u32 {s(sIt)}, 0
    s_cbranch_scc1 L_hdr
    v_and_b32 {v(t+24)}, 7, {v(vLane)}
    v_lshlrev_b32 {v(t+24)}, 7, {v(t+24)}
    s_mov_b32 {s(sT+10)}, {TABG}
    v_mov_b32 {v(t+20)}, {s(sTag)}
    ''')
    a(f's_mov_b64 exec, 0xff\nbuffer_load_dword {v(t+20)}, {v(t+24)}, {WS}, {s(sT+10)} offen sc1\ns_mov_b64 exec, -1')
    xin_consts(t+8)
    a(';@F\nL_tg0w:\ns_waitcnt vmcnt(0)')
    a(f'v_cmp_ne_u32 vcc, {s(sTag)}, {v(t+20)}')
    a(f'''
    s_cbranch_vccz L_g ;!nd
    s_branch L_tg0_r
    L_g:
    ''')
    C0,C1=t,t+4
    a(f'''
    buffer_load_dwordx4 {v(C0,4)}, {v(vGld)}, {WS}, {s(sG0)} offen sc1
    buffer_load_dwordx4 {v(C1,4)}, {v(vGld)}, {WS}, {s(sG4)} offen sc1
    L_gw:
    s_cmp_lg_u32 {s(sMir)}, 0
    s_waitcnt vmcnt(0)
    L_gw2:
    s_cbranch_scc1 L_xmir ;!nd
    ''')
    E0,E1=t+8,t+12
    a(f'''
    v_mfma_f32_16x16x16_f16 {v(E0,4)}, {v(XA,2)}, {v(C0,2)}, 0
    v_mfma_f32_16x16x16_f16 {v(E1,4)}, {v(XA,2)}, {v(C0+2,2)}, 0
    v_mfma_f32_16x16x16_f16 {v(E0,4)}, {v(XA+2,2)}, {v(C1,2)}, {v(E0,4)}
    v_mfma_f32_16x16x16_f16 {v(E1,4)}, {v(XA+2,2)}, {v(C1+2,2)}, {v(E1,4)}
    s_branch L_xjoin ;!nd
    L_xmir:
    ''')
    a.hist=[]
    a(f'''
    v_mfma_f32_16x16x16_f16 {v(E0,4)}, {v(XA,2)}, {v(C0+2,2)}, 0
    v_mfma_f32_16x16x16_f16 {v(E1,4)}, {v(XA,2)}, {v(C0,2)}, 0
    v_mfma_f32_16x16x16_f16 {v(E0,4)}, {v(XA+2,2)}, {v(C1+2,2)}, {v(E0,4)}
    v_mfma_f32_16x16x16_f16 {v(E1,4)}, {v(XA+2,2)}, {v(C1,2)}, {v(E1,4)}
    L_xjoin:
    ''')
    maxchk(range(t,t+8), t+16)
    poll_branch('L_g', cfg.slp_g, mask=True)
    stamp()
    a(f'''
    s_mov_b32 {s(sIt)}, 1
    s_add_u32 {s(sG0)}, {s(sG0)}, {GR}
    s_add_u32 {s(sG4)}, {s(sG4)}, {GR}
    L_apply:
    s_cmp_eq_u32 {s(sNx)}, 0
    v_pk_fma_f32 {v(X,2)}, {v(E0,2)}, {v(vSc0,2)}, {v(X,2)}
    v_pk_fma_f32 {v(X+2,2)}, {v(E0+2,2)}, {s(sSc,2)}, {v(X+2,2)}
    v_pk_fma_f32 {v(X+4,2)}, {v(E1,2)}, {s(sSc,2)}, {v(X+4,2)}
    v_pk_fma_f32 {v(X+6,2)}, {v(E1+2,2)}, {s(sSc,2)}, {v(X+6,2)}
    s_cbranch_scc1 L_top ;!nd
    s_branch L_corr
    ''')
    a(f'''
    L_yself:
    buffer_load_dwordx4 {v(t,4)}, {v(vLld)}, {WS}, {s(sLld)} offen sc1
    buffer_load_dwordx4 {v(t+4,4)}, {v(vLldM)}, {WS}, {s(sLld)} offen sc1
    s_waitcnt vmcnt(0)
    ''')
    phchk(range(t,t+8), t+8)
    poll_branch('L_yself', cfg.slp_l, mask=True)
    a(f'''
    s_bitcmp1_b32 {s(sW)}, 0
    s_cbranch_scc1 L_yself4
    ''')
    for k in range(4): a(f'v_pk_add_f16 {v(t+k)}, {v(t+k)}, {v(t+7-k)} neg_hi:[0,1]')
    a(f'ds_write_b128 {v(vYIW)}, {v(t,4)}\ns_branch L_yjoin\nL_yself4:')
    for k in range(4): a(f'v_pk_add_f16 {v(t+k)}, {v(t+k)}, {v(t+7-k)} op_sel:[1,1] op_sel_hi:[0,0] neg_hi:[1,0]')
    a(f'ds_write_b128 {v(vYIW)}, {v(t,4)}\ns_branch L_yjoin')
    a(f'''
    L_s3w:
    v_pk_add_f32 {v(S3,2)}, {v(WV,2)}, {v(WV+2,2)}
    v_add_f32 {v(S3)}, {v(S3)}, {v(S3+1)}
    v_mov_b32 {v(S3+1)}, {v(S3)}
    s_branch L_s3ok
    L_it0:
    s_mov_b32 {s(sKey)}, {s(sXcc)}
    v_pk_mul_f32 {v(CC,2)}, {v(RS,2)}, {s(sC16,2)}
    v_mov_b32 {v(S1)}, 0x44000000
    v_pk_add_f32 {v(WV,2)}, {v(WV,2)}, {v(S3,2)} neg_lo:[0,1] neg_hi:[0,1]
    v_pk_add_f32 {v(WV+2,2)}, {v(WV+2,2)}, {v(S3,2)} neg_lo:[0,1] neg_hi:[0,1]
    v_pk_mul_f32 {v(WV,2)}, {v(WV,2)}, {v(S1,2)} op_sel_hi:[1,0]
    v_pk_mul_f32 {v(WV+2,2)}, {v(WV+2,2)}, {v(S1,2)} op_sel_hi:[1,0]
    ''')
    a('s_branch L_z')
    H=LNP
    sIdx=sT+11
    KA=BC+6; EK=BC+8; vYP=BC+9; SEL=BC+10; vDW,vDR=BC+12,BC+13
    YR=t+8; YL=t+12; YD=t+20
    gl=f'buffer_load_dwordx4 {v(C0,4)}, {v(vGld)}, {WS}, {s(sG0)} offen sc1\nbuffer_load_dwordx4 {v(C1,4)}, {v(vGld)}, {WS}, {s(sG4)} offen sc1'
    def hdrpoll(lbl, slp, issued=False):
        if not issued: a(f"""
        v_and_b32 {v(BC)}, 7, {v(vLane)}
        v_lshlrev_b32 {v(BC)}, 12, {v(BC)}
        """)
        a(f"""
        s_mov_b64 exec, 0xff
        {f's_waitcnt vmcnt(1)' if issued else ''}
        {f's_branch {lbl}_c' if issued else ''}
        {lbl}:
        buffer_load_dwordx4 {v(H,4)}, {v(BC)}, {WS}, {s(sT+10)} offen offset:3200 sc1
        s_waitcnt vmcnt(0)
        {lbl}_c:
        """)
        maxchk(range(H,H+4), t+17)
        poll_branch(lbl, slp, skip=True)
        a(f"""
        s_mov_b64 exec, -1
        v_max_u32_dpp {v(H+3)}, {v(H)}, {v(H)} row_half_mirror {DPP}
        v_max_u32_dpp {v(H+3)}, {v(H+3)}, {v(H+3)} quad_perm:[1,0,3,2] {DPP}
        v_max_u32_dpp {v(H+3)}, {v(H+3)}, {v(H+3)} quad_perm:[2,3,0,1] {DPP}
        v_readfirstlane_b32 {s(sIdx)}, {v(H+3)}
        """)
    def owner():
        a(f"""
        s_sub_u32 {s(sT)}, 2047, {s(sIdx)}
        s_add_u32 {s(sT+1)}, {s(sT)}, 256
        v_cmp_eq_u32 vcc, {s(sT)}, {v(vInv)}
        v_cmp_eq_u32 {s(sT+2,2)}, {s(sT+1)}, {v(vInv)}
        v_cndmask_b32 {v(BC)}, 0, 1.0, vcc
        v_cndmask_b32 {v(BC+1)}, 0, 1.0, {s(sT+2,2)}
        """)
    a(f'L_hdr:')
    hdrpoll('L_hdrp', 2, True)
    a(f"""
    v_and_b32 {v(vYP)}, 0x3ff, {v(vXoff)}
    v_lshlrev_b32 {v(t+16)}, 1, {v(vYP)}
    s_andn2_b32 {s(sIdx)}, {s(sM7FF)}, {s(sIdx)}
    s_and_b32 {s(sT)}, {s(sIdx)}, 7
    s_lshl_b32 {s(sT+1)}, {s(sT)}, 12
    s_add_u32 {s(sT+10)}, {s(sT+10)}, {s(sT+1)}
    buffer_load_dwordx4 {v(BC+2,4)}, {v(t+16)}, {WS}, {s(sT+10)} offen offset:1024 sc1
    v_readlane_b32 {s(sT+13)}, {v(H+1)}, {s(sT)}
    v_readlane_b32 {s(sT+14)}, {v(H+2)}, {s(sT)}
    v_mul_u32_u24 {v(t+17)}, {s(sIdx)}, {v(AD)}
    v_and_b32 {v(t+17)}, 0x7ff, {v(t+17)}
    v_cvt_f32_u32 {v(t+17)}, {v(t+17)}
    v_mul_f32 {v(t+17)}, {fbits(1/2048)}, {v(t+17)}
    v_cos_f32 {v(t+18)}, {v(t+17)}
    v_sin_f32 {v(t+19)}, {v(t+17)}
    v_and_b32 {v(t+17)}, 0x22, {v(vLane)}
    v_cvt_pk_f16_f32 {v(t+18)}, {v(t+18)}, {v(t+19)}
    v_cmp_eq_u32 vcc, 0, {v(t+17)}
    v_mov_b32 {v(KA)}, {s(sT+14)}
    v_mul_f32 {v(KA)}, {s(sC16)}, {v(KA)}
    v_cndmask_b32 {v(AD)}, 0, {v(t+18)}, vcc
    v_cmp_eq_u32 vcc, 2, {v(t+17)}
    v_mul_f32 {v(EK)}, {v(KA)}, {v(KA)}
    v_mul_f32 {v(EK)}, {s(sEps)}, {v(EK)}
    v_cndmask_b32 {v(AD+1)}, 0, {v(t+18)}, vcc
    """)
    owner()
    a(f"""
    v_lshlrev_b32 {v(t+17)}, 4, {v(vLane)}
    v_mov_b32 {v(t+18)}, 0x3f80
    v_and_b32 {v(t+17)}, 16, {v(t+17)}
    v_lshlrev_b32 {v(t+18)}, {v(t+17)}, {v(t+18)}
    v_and_b32 {v(t+17)}, 2, {v(vLane)}
    v_cmp_eq_u32 vcc, 0, {v(t+17)}
    v_lshl_add_u32 {v(vYP)}, {v(vQ)}, 10, {v(vYP)}
    s_lshl_b32 {s(sT+3)}, {s(sW)}, 8
    v_cndmask_b32 {v(SEL)}, 0, {v(t+18)}, vcc
    v_cndmask_b32 {v(SEL+1)}, {v(t+18)}, 0, vcc
    s_add_u32 {s(sT+3)}, {s(sT+3)}, {L_DH}
    v_lshl_add_u32 {v(vDR)}, {v(vN)}, 4, {s(sT+3)}
    v_and_b32 {v(t+17)}, 1, {v(vQ)}
    v_lshl_add_u32 {v(vDR)}, {v(t+17)}, 11, {v(vDR)}
    v_cmp_eq_u32 vcc, 0, {v(vQ)}
    v_add_u32 {v(vDW)}, {L_DH}, {v(vLst)}
    s_mov_b32 {s(sYo)}, {YP}
    s_lshl_b32 {s(sYh)}, {s(sX)}, 7
    s_add_u32 {s(sYh)}, {s(sYh)}, {YHINT}
    s_lshl_b32 {s(sSg)}, {s(sW)}, 30
    s_and_b32 {s(sSg)}, {s(sSg)}, {s(sTop)}
    s_xor_b32 {s(sSg)}, {s(sSg)}, {s(sDsc)}
    s_mov_b32 {s(sNx)}, 2
    v_cndmask_b32 {v(KA+1)}, 0, {v(KA)}, vcc
    s_waitcnt vmcnt(0)
    {gl if not cfg.hold else ''}
    L_basew:
    """)
    maxchk(range(BC+2,BC+6), t+17)
    a('s_cbranch_vccnz L_base_r ;!nd')
    for k in range(4): a(f'v_subrev_f32 {v(BC+2+k)}, {s(sT+13)}, {v(BC+2+k)}')
    for k in range(4): a(f'v_mul_f32 {v(BC+2+k)}, {v(KA)}, {v(BC+2+k)}')
    a(f"""
    s_branch {'L_ywait' if cfg.hold else 'L_gw'}
    L_corr:
    s_mov_b32 {s(sIt)}, 2
    s_mov_b32 {s(sNx)}, 0
    {'s_branch L_yc' if cfg.hold else ''}
    L_ywait:
    s_add_u32 {s(sT+2)}, {s(sYo)}, 4096
    s_cmp_lg_u32 {s(sW)}, 0
    s_cbranch_scc1 L_hintb
    s_movk_i32 {s(sTry)}, 500
    v_lshrrev_b32 {v(t)}, 1, {v(vL8)}
    """)
    if cfg.own: a(f"""
    s_cmp_eq_u32 {s(sIt)}, 3
    s_cbranch_scc1 L_hint
    s_lshl_b32 {s(sT)}, {s(sJ)}, 2
    v_mov_b32 {v(t)}, {s(sT)}
    """)
    a(f"""
    L_hint:
    buffer_load_dword {v(t+1)}, {v(t)}, {WS}, {s(sYh)} offen sc1
    s_waitcnt vmcnt(0)
    v_cmp_ne_u32 vcc, {s(sTag)}, {v(t+1)}
    """)
    poll_branch('L_hint', 1, giveup='L_hintb')
    if cfg.tim_y: a(f's_sleep {cfg.tim_y}')
    a(f"""
    L_hintb:
    s_barrier
    """)
    if cfg.hold: a(f"""
    s_cmp_eq_u32 {s(sIt)}, 3
    s_cbranch_scc1 L_yv3
    {gl}
    {f's_sleep {cfg.tim_gy}' if cfg.tim_gy else ''}
    buffer_load_dwordx2 {v(YD,2)}, {v(vYP)}, {WS}, {s(sYo)} offen sc1
    buffer_load_dwordx2 {v(YD+2,2)}, {v(vYP)}, {WS}, {s(sT+2)} offen sc1
    s_cmp_lg_u32 {s(sMir)}, 0
    s_waitcnt vmcnt(2)
    s_branch L_gw2
    L_yv3:
    {f's_sleep {cfg.tim_y3}' if cfg.tim_y3 else ''}
    s_branch L_yv
    """)
    a(f"""
    L_yv:
    buffer_load_dwordx2 {v(YD,2)}, {v(vYP)}, {WS}, {s(sYo)} offen sc1
    buffer_load_dwordx2 {v(YD+2,2)}, {v(vYP)}, {WS}, {s(sT+2)} offen sc1
    L_yc:
    s_waitcnt vmcnt(0)
    v_mfma_f32_16x16x16_bf16 {v(YR,4)}, {v(SEL,2)}, {v(YD,2)}, 0
    v_mfma_f32_16x16x16_bf16 {v(YR,4)}, {v(SEL,2)}, {v(YD+2,2)}, {v(YR,4)}
    """)
    maxchk(range(YD,YD+4), t+17)
    poll_branch('L_yv', 1, mask=True)
    stamp()
    own=[f'v_pk_fma_f32 {v(X,2)}, {v(BC,2)}, {v(YR,2)}, {v(X,2)} op_sel:[0,0,0] op_sel_hi:[1,0,1]',
         f'v_pk_fma_f32 {v(X+2,2)}, {v(BC,2)}, {v(YR,2)}, {v(X+2,2)} op_sel:[0,1,0] op_sel_hi:[1,1,1]',
         f'v_pk_fma_f32 {v(X+4,2)}, {v(BC,2)}, {v(YR+2,2)}, {v(X+4,2)} op_sel:[0,0,0] op_sel_hi:[1,0,1]',
         f'v_pk_fma_f32 {v(X+6,2)}, {v(BC,2)}, {v(YR+2,2)}, {v(X+6,2)} op_sel:[0,1,0] op_sel_hi:[1,1,1]']
    s1,s2=t+20,t+21
    a(f"""
    s_cmp_eq_u32 {s(sIt)}, 3
    s_cbranch_scc1 L_fin3
    L_pass:
    v_pk_fma_f32 {v(YL,2)}, {v(YR,2)}, {v(KA,2)}, {v(BC+2,2)} op_sel:[0,1,0]
    v_pk_fma_f32 {v(YL+2,2)}, {v(YR+2,2)}, {v(KA,2)}, {v(BC+4,2)} op_sel:[0,1,0]
    v_cvt_pk_f16_f32 {v(YL)}, {v(YL)}, {v(YL+1)}
    v_cvt_pk_f16_f32 {v(YL+1)}, {v(YL+2)}, {v(YL+3)}
    ds_write_b64 {v(vUW)}, {v(YL,2)}
    {own[0]}
    {own[1]}
    {own[2]}
    {own[3]}
    s_cmp_gt_u32 {s(sW)}, 3
    s_waitcnt lgkmcnt(0)
    s_barrier
    s_cbranch_scc1 L_dhb ;!nd
    ds_read_b64_tr_b16 {v(t+8,2)}, {v(vUR)}
    ds_read_b64_tr_b16 {v(t+10,2)}, {v(vUR)} offset:512
    v_mov_b32 {v(t+22)}, 0x3c003c00
    s_waitcnt lgkmcnt(0)
    ;@F
    """)
    XR=t+8; U_=t+12; V_=YC; PP=LNP
    Ur,Ui=U_,U_+4; Vr,Vi=V_,V_+4
    a(f"""
    v_mfma_f32_16x16x32_f16 {v(Ur,4)}, {v(XR,4)}, {v(B1C,4)}, 0
    v_mfma_f32_16x16x32_f16 {v(Ui,4)}, {v(XR,4)}, {v(B1N,4)}, 0
    v_dot2_f32_f16 {v(s1)}, {v(XR)}, {v(t+22)}, 0
    v_dot2_f32_f16 {v(s2)}, {v(XR)}, {v(XR)}, 0
    v_dot2_f32_f16 {v(s1)}, {v(XR+1)}, {v(t+22)}, {v(s1)}
    v_dot2_f32_f16 {v(s2)}, {v(XR+1)}, {v(XR+1)}, {v(s2)}
    v_dot2_f32_f16 {v(s1)}, {v(XR+2)}, {v(t+22)}, {v(s1)}
    v_dot2_f32_f16 {v(s2)}, {v(XR+2)}, {v(XR+2)}, {v(s2)}
    v_dot2_f32_f16 {v(s1)}, {v(XR+3)}, {v(t+22)}, {v(s1)}
    v_dot2_f32_f16 {v(s2)}, {v(XR+3)}, {v(XR+3)}, {v(s2)}
    v_pk_mul_f32 {v(Vi,2)}, {v(Ur,2)}, {v(TWS,2)}
    v_pk_mul_f32 {v(Vi+2,2)}, {v(Ur+2,2)}, {v(TWS+2,2)}
    v_pk_mul_f32 {v(Vr,2)}, {v(Ui,2)}, {v(TWS,2)}
    v_permlane32_swap_b32 {v(s1)}, {v(s2)}
    v_pk_mul_f32 {v(Vr+2,2)}, {v(Ui+2,2)}, {v(TWS+2,2)}
    v_add_f32 {v(s1)}, {v(s1)}, {v(s2)}
    v_pk_fma_f32 {v(Vr,2)}, {v(Ur,2)}, {v(TWC,2)}, {v(Vr,2)}
    v_pk_fma_f32 {v(Vi,2)}, {v(Ui,2)}, {v(TWC,2)}, {v(Vi,2)} neg_lo:[0,0,1] neg_hi:[0,0,1]
    v_add_f32_dpp {v(s1)}, {v(s1)}, {v(s1)} row_ror:8 {DPP}
    v_pk_fma_f32 {v(Vr+2,2)}, {v(Ur+2,2)}, {v(TWC+2,2)}, {v(Vr+2,2)}
    v_pk_fma_f32 {v(Vi+2,2)}, {v(Ui+2,2)}, {v(TWC+2,2)}, {v(Vi+2,2)} neg_lo:[0,0,1] neg_hi:[0,0,1]
    v_add_f32_dpp {v(s1)}, {v(s1)}, {v(s1)} row_ror:4 {DPP}
    v_cvt_pk_f16_f32 {v(PP)}, {v(Vr)}, {v(Vi)}
    v_cvt_pk_f16_f32 {v(PP+1)}, {v(Vr+1)}, {v(Vi+1)}
    v_add_f32_dpp {v(s1)}, {v(s1)}, {v(s1)} row_ror:2 {DPP}
    v_cvt_pk_f16_f32 {v(PP+2)}, {v(Vr+2)}, {v(Vi+2)}
    v_cvt_pk_f16_f32 {v(PP+3)}, {v(Vr+3)}, {v(Vi+3)}
    v_add_f32_dpp {v(s1)}, {v(s1)}, {v(s1)} row_ror:1 {DPP}
    v_mfma_f32_16x16x32_f16 {v(Ur,4)}, {v(A2R,4)}, {v(PP,4)}, 0
    v_mfma_f32_16x16x32_f16 {v(Ui,4)}, {v(A2I,4)}, {v(PP,4)}, 0
    v_add_f32_dpp {v(s1)}, {v(s1)}, {v(s1)} row_bcast:15 row_mask:0xa bank_mask:0xf
    v_mul_f32 {v(s1)}, {s(sK512)}, {v(s1)}
    v_readlane_b32 {s(sT+2)}, {v(s1)}, 63
    v_readlane_b32 {s(sT+1)}, {v(s1)}, 31
    v_add_f32 {v(s2)}, {s(sT+2)}, {v(EK)}
    v_mov_b32 {v(s1)}, {s(sT+1)}
    v_fma_f32 {v(s1)}, -{v(s1)}, {v(s1)}, {v(s2)}
    v_rsq_f32_e64 {v(s1)}, |{v(s1)}|
    v_mul_f32 {v(s1)}, {s(sSg)}, {v(s1)}
    """)
    for k in range(4): a(f'v_pk_mul_f32 {v(U_+2*k,2)}, {v(U_+2*k,2)}, {v(s1,2)} op_sel_hi:[1,0]')
    for r in range(4): a(f'v_cvt_pk_f16_f32 {v(PP+r)}, {v(Ur+r)}, {v(Ui+r)}')
    a(f"""
    ds_write2_b32 {v(vDW)}, {v(PP)}, {v(PP+1)} offset0:0 offset1:32
    ds_write2_b32 {v(vDW)}, {v(PP+2)}, {v(PP+3)} offset0:64 offset1:96
    s_waitcnt lgkmcnt(0)
    L_dhb:
    s_barrier
    ds_read_b128 {v(t+16,4)}, {v(vDR)}
    s_waitcnt lgkmcnt(0)
    v_mfma_f32_16x16x16_f16 {v(E0,4)}, {v(AD,2)}, {v(t+16,2)}, 0
    v_mfma_f32_16x16x16_f16 {v(E1,4)}, {v(AD,2)}, {v(t+18,2)}, 0
    s_nop 4
    s_branch L_apply ;!nd
    """)
    a('L_fin:')
    for rho in (0,1):
        for k in (0,1):
            a(f'v_cvt_pk_bf16_f32 {v(t+2*rho+k)}, {v(X+4*k+rho)}, {v(X+4*k+2+rho)}')
    a(f"""
    v_lshlrev_b32 {v(t+16)}, 1, {v(vQ)}
    v_mov_b32 {v(t+19)}, 0x200000
    s_sub_u32 {s(sT)}, {s(sT+9)}, 1
    v_cmp_eq_u32 vcc, {s(sT+9)}, {v(t+16)}
    v_cmp_eq_u32 {s(sT+2,2)}, {s(sT)}, {v(t+16)}
    v_cndmask_b32 {v(t+17)}, {v(vXoff)}, {v(t+19)}, vcc
    v_cndmask_b32 {v(t+18)}, {v(vXoff)}, {v(t+19)}, {s(sT+2,2)}
    buffer_store_dwordx2 {v(t,2)}, {v(t+17)}, {OS}, {s(sRow0)} offen sc1
    buffer_store_dwordx2 {v(t+2,2)}, {v(t+18)}, {OS}, {s(sRow1)} offen sc1
    v_cndmask_b32 {v(t+24)}, {v(t+19)}, {v(vXoff)}, vcc
    v_cndmask_b32 {v(t+25)}, {v(t+19)}, {v(vXoff)}, {s(sT+2,2)}
    s_or_b32 {s(sT)}, s2, {s(sW)}
    s_cbranch_scc1 L_fin2
    v_mov_b32 {v(t+20)}, {s(sTag)}
    buffer_store_dword {v(t+20)}, off, {WS}, 0 sc1
    L_fin2:
    s_cmp_eq_u32 {s(sT+9)}, 64
    s_cbranch_scc1 L_fin5
    s_mov_b32 {s(sT+10)}, {SLOT+SLOTR}
    s_sleep {cfg.tim_fh}
    """)
    hdrpoll('L_fhdr', 4)
    a(f"""
    s_cmp_lg_u32 {s(sIdx)}, {s(sKey)}
    s_cbranch_scc1 L_fin4
    s_andn2_b32 {s(sIdx)}, {s(sM7FF)}, {s(sIdx)}
    s_mov_b32 {s(sIt)}, 3
    s_add_u32 {s(sYo)}, {s(sYo)}, {YPR}
    s_add_u32 {s(sYh)}, {s(sYh)}, {YHR}
    """)
    owner()
    a('s_branch L_ywait\nL_fin3:')
    a('\n'.join(own))
    for rho in (0,1):
        for k in (0,1):
            a(f'v_cvt_pk_bf16_f32 {v(t+2*rho+k)}, {v(X+4*k+rho)}, {v(X+4*k+2+rho)}')
    a(f"""
    L_fin4:
    buffer_store_dwordx2 {v(t,2)}, {v(t+24)}, {OS}, {s(sRow0)} offen sc1
    buffer_store_dwordx2 {v(t+2,2)}, {v(t+25)}, {OS}, {s(sRow1)} offen sc1
    L_fin5:
    """)
    stamp(); dump_stamps()
    a('s_endpgm')
    a(f"""
    L_base_r:
    s_sub_u32 {s(sCnt)}, {s(sCnt)}, 1
    s_cbranch_scc1 L_end
    s_sleep 2
    buffer_load_dwordx4 {v(BC+2,4)}, {v(t+16)}, {WS}, {s(sT+10)} offen offset:1024 sc1
    s_waitcnt vmcnt(0)
    s_branch L_basew
    """)
    def pub2():
        a(f'''
        v_mov_b32 {v(t+4)}, {s(sTag)}
        v_mov_b32 {v(t+5)}, {s(sXcc)}
        s_add_u32 {s(sT)}, {s(sTabSt)}, {TAB2-TABL}
        buffer_store_dwordx2 {v(t+4,2)}, off, {WS}, {s(sT)} sc1
        ''')
    a(f'''
    L_tabst_slow:
    buffer_store_dwordx2 {v(K,2)}, off, {WS}, {s(sTabSt)} sc1
    s_branch L_tabst_back
    L_tg0_r:
    s_sub_u32 {s(sCnt)}, {s(sCnt)}, 1
    s_cbranch_scc1 L_end
    s_sleep 2
    ''')
    a(f's_mov_b64 exec, 0xff\nbuffer_load_dword {v(t+20)}, {v(t+24)}, {WS}, {s(sT+10)} offen sc1\ns_mov_b64 exec, -1')
    a('s_branch L_tg0w\nL_tab2:')
    pub2()
    a(f'''
    s_add_u32 {s(sT+1)}, {s(sTabLd)}, {TAB2-TABL}
    L_tab2p:
    buffer_load_dwordx2 {v(TB,2)}, {v(vL8)}, {WS}, {s(sTabLd)} offen sc1
    buffer_load_dwordx2 {v(t+6,2)}, {v(vL8)}, {WS}, {s(sT+1)} offen sc1
    s_waitcnt vmcnt(0)
    v_cmp_eq_u32 vcc, {s(sTag)}, {v(TB)}
    v_cndmask_b32 {v(TB)}, {v(t+6)}, {v(TB)}, vcc
    v_cndmask_b32 {v(TB+1)}, {v(t+7)}, {v(TB+1)}, vcc
    v_cmp_ne_u32 vcc, {s(sTag)}, {v(TB)}
    ''')
    poll_branch('L_tab2p', 4)
    a(f'''
    s_branch L_tabok
    L_slow:
    s_cmp_lg_u32 {s(sIt)}, 0
    s_cbranch_scc1 L_slow1
    ''')
    pub2()
    a('L_slow1:')
    lstores('sc1')
    a(f'''
    s_waitcnt vmcnt(0)
    s_barrier
    s_add_u32 {s(sT)}, {s(sTabSt)}, {SLOWF-TABL}
    s_add_u32 {s(sT+1)}, {s(sTabLd)}, {SLOWF-TABL}
    v_mov_b32 {v(t+4)}, {s(sTag)}
    s_cmp_lg_u32 {s(sW)}, 0
    s_cbranch_scc1 L_slowp
    buffer_store_dword {v(t+4)}, off, {WS}, {s(sT)} sc1
    L_slowp:
    buffer_load_dword {v(t+5)}, {v(vL8)}, {WS}, {s(sT+1)} offen sc1
    s_waitcnt vmcnt(0)
    v_cmp_ne_u32 vcc, {s(sTag)}, {v(t+5)}
    ''')
    poll_branch('L_slowp', 2)
    a('s_branch L_slowback')

def hint_store(vreg, soff, lbl):
    a(f'''
    s_mov_b64 exec, 1
    s_cmp_eq_u32 {s(sFast)}, 0
    s_cbranch_scc1 {lbl}_s
    buffer_store_dword {v(vreg)}, off, {WS}, {s(soff)}
    s_branch {lbl}_d
    {lbl}_s:
    buffer_store_dword {v(vreg)}, off, {WS}, {s(soff)} sc1
    {lbl}_d:
    s_mov_b64 exec, -1
    ''')

def ffn():
    WA=4; WD=20; t=40
    vXL=24; vXW=25; vXR=26; vPS=27; vPL=28; vHW=29; vHR=30; vDP=31; vTag=32; vSig=34; vFl=35
    sI=sJ; sRnd=sIt; sPo=sLst; sPs=sLld
    F_W=0; TS=4096+64; F_X=0x4400; F_KEY=0x4D00; F_H=0x4E00; F_D=0x5200; F_WD=0x5400
    a(f"""
    L_ffn:
    s_and_b32 {s(sI)}, {s(sJ)}, 31
    s_min_u32 {s(sT+2)}, {s(sI)}, 27
    s_and_b32 {s(sT)}, {s(sT+2)}, 3
    s_lshl_b32 {s(sT+8)}, {s(sT)}, 8              ; 256*ks
    s_mul_i32 {s(sT+9)}, {s(sT)}, {28*64}
    s_mul_i32 {s(sT)}, {s(sT)}, {128*3584}
    s_mul_i32 {s(sT+1)}, {s(sX)}, 448
    s_add_u32 {s(sT)}, {s(sT)}, {s(sT+1)}
    s_lshr_b32 {s(sT+2)}, {s(sT+2)}, 2
    s_lshl_b32 {s(sT+3)}, {s(sT+2)}, 6
    s_add_u32 {s(sT)}, {s(sT)}, {s(sT+3)}
    v_lshrrev_b32 {v(t+3)}, 2, v0
    v_mul_u32_u24 {v(t)}, 3584, {v(t+3)}
    v_and_b32 {v(t+4)}, 3, v0
    v_lshl_add_u32 {v(t)}, {v(t+4)}, 4, {v(t)}
    v_add_u32 {v(t)}, {s(sT)}, {v(t)}
    s_mul_i32 {s(sT)}, {s(sX)}, {224*1024}
    s_lshl_b32 {s(sT+1)}, {s(sI)}, 5
    s_add_u32 {s(sT)}, {s(sT)}, {s(sT+1)}
    v_lshrrev_b32 {v(t+1)}, 1, v0
    v_min_u32 {v(t+1)}, 223, {v(t+1)}
    v_lshlrev_b32 {v(t+1)}, 10, {v(t+1)}
    v_and_b32 {v(t+2)}, 1, v0
    v_lshl_add_u32 {v(t+1)}, {v(t+2)}, 4, {v(t+1)}
    v_add_u32 {v(t+1)}, {s(sT)}, {v(t+1)}
    s_add_u32 {s(sT+10)}, {s(sTabLd)}, {FTAB-TABL}
    s_waitcnt lgkmcnt(0)
    {f's_sleep {cfg.fdelay}' if cfg.fdelay else ''}
    global_load_dwordx4 {v(T+8,4)}, {v(t)}, s[18:19]
    global_load_dwordx4 {v(T+12,4)}, {v(t)}, s[20:21]
    {f'global_load_dwordx4 {v(T+16,4)}, {v(t+1)}, s[22:23]' if cfg.wdpos==0 else f'v_mov_b32 {v(T+23)}, {v(t+1)}'}
    buffer_load_dword {v(T+20)}, off, {WS}, 0 sc1
    buffer_load_dword {v(T+21)}, {v(vL8)}, {WS}, {s(sT+10)} offen sc1
    v_mul_u32_u24 {v(T+22)}, {TS}, {v(t+4)}
    v_lshl_add_u32 {v(T+22)}, {v(t+3)}, 5, {v(T+22)}
    v_lshlrev_b32 {v(t+5)}, 4, {v(vN)}
    s_and_b32 {s(sT)}, {s(sW)}, 1
    s_lshl_b32 {s(sT)}, {s(sT)}, 2
    v_add_u32 {v(t+6)}, {s(sT)}, {v(vQ)}
    v_lshl_add_u32 {v(vXL)}, {v(t+6)}, 12, {v(t+5)}
    v_add_u32 {v(vXL)}, {s(sT+8)}, {v(vXL)}
    v_mul_u32_u24 {v(vXW)}, 272, {v(t+6)}
    v_add_u32 {v(vXW)}, {v(vXW)}, {v(t+5)}
    v_and_b32 {v(t+6)}, 7, {v(vLane)}
    v_mul_u32_u24 {v(vXR)}, 272, {v(t+6)}
    v_lshl_add_u32 {v(vXR)}, {v(vQ)}, 4, {v(vXR)}
    s_cmp_lg_u32 {s(sW)}, 6
    s_cbranch_scc1 L_fa1
    v_lshlrev_b32 {v(vXL)}, 12, {v(t+6)}
    L_fa1:
    s_lshl2_add_u32 {s(sT)}, {s(sT+2)}, {s(sW)}
    s_lshl_b32 {s(sT)}, {s(sT)}, 6
    s_add_u32 {s(sT)}, {s(sT)}, {s(sT+9)}
    v_lshl_add_u32 {v(vPS)}, {v(vN)}, 2, {s(sT)}
    s_lshl_b32 {s(sT)}, {s(sW)}, 8
    v_mul_u32_u24 {v(vPL)}, 1792, {v(vQ)}
    v_add3_u32 {v(vPL)}, {v(vPL)}, {v(t+5)}, {s(sT)}
    s_lshl_b32 {s(sT)}, {s(sW)}, 7
    s_add_u32 {s(sT)}, {s(sT)}, {F_H}
    v_lshl_add_u32 {v(vHR)}, {v(vQ)}, 4, {s(sT)}
    v_and_b32 {v(t+6)}, 12, {v(vN)}
    v_lshl_add_u32 {v(vHW)}, {v(t+6)}, 2, {s(sT)}
    v_and_b32 {v(t+6)}, 1, {v(vN)}
    v_lshl_add_u32 {v(vHW)}, {v(t+6)}, 3, {v(vHW)}
    v_and_b32 {v(t+6)}, 2, {v(vN)}
    v_lshl_add_u32 {v(vHW)}, {v(t+6)}, 5, {v(vHW)}
    v_and_b32 {v(t+6)}, 2, {v(vQ)}
    v_add_u32 {v(vHW)}, {v(vHW)}, {v(t+6)}
    v_and_b32 {v(t+6)}, 1, {v(vQ)}
    v_lshl_add_u32 {v(vHW)}, {v(t+6)}, 2, {v(vHW)}
    s_lshl_b32 {s(sT)}, {s(sW)}, 2
    s_add_u32 {s(sT)}, {s(sT)}, {F_D}
    v_lshl_add_u32 {v(vDP)}, {v(vN)}, 5, {s(sT)}
    v_mov_b32 {v(vFl)}, {F_KEY}
    v_mov_b32 {v(vTag)}, 0
    s_mov_b32 {s(sFast)}, 0
    s_mov_b32 {s(sRnd)}, 2
    s_mov_b32 {s(sPo)}, {WSSZ}
    s_mov_b32 {s(sYo)}, {WSSZ}
    s_mov_b32 {s(sYh)}, {WSSZ}
    {'s_branch L_fb2' if cfg.dry else ''}
    L_finit:
    s_mov_b32 {s(sRnd)}, 0
    s_mov_b32 {s(sSlot)}, {SLOT}
    s_lshl_b32 {s(sPo)}, {s(sX)}, 13
    s_add_u32 {s(sPo)}, {s(sPo)}, {PART}
    s_lshl_b32 {s(sYo)}, {s(sX)}, 10
    s_lshl_b32 {s(sT)}, {s(sI)}, 5
    s_add_u32 {s(sYo)}, {s(sYo)}, {s(sT)}
    s_add_u32 {s(sYo)}, {s(sYo)}, {YP}
    s_lshl_b32 {s(sYh)}, {s(sX)}, 7
    s_lshl2_add_u32 {s(sYh)}, {s(sI)}, {s(sYh)}
    s_add_u32 {s(sYh)}, {s(sYh)}, {YHINT}
    s_lshl_b32 {s(sT)}, {s(sW)}, 10
    v_lshl_add_u32 {v(t)}, {v(vLane)}, 4, {s(sT)}
    v_lshl_add_u32 {v(t+1)}, {v(vQ)}, 8, {s(sT)}
    v_lshl_add_u32 {v(t+1)}, {v(vN)}, 3, {v(t+1)}
    s_and_b32 {s(sT)}, {s(sW)}, 3
    s_mul_i32 {s(sT)}, {s(sT)}, {TS}
    v_lshl_add_u32 {v(t+2)}, {v(vQ)}, 8, {s(sT)}
    v_lshl_add_u32 {v(t+2)}, {v(vN)}, 3, {v(t+2)}
    v_mov_b32 {v(vTag+1)}, {s(sXcc)}
    s_lshl3_add_u32 {s(sT+1)}, {s(sI)}, {s(sT+10)}
    s_waitcnt vmcnt(0)
    v_add_u32 {v(vTag)}, 1, {v(T+20)}
    ds_write_b128 {v(T+22)}, {v(T+8,4)}
    ds_write_b128 {v(T+22)}, {v(T+12,4)} offset:16
    {f'ds_write_b128 {v(t)}, {v(T+16,4)} offset:{F_WD}' if cfg.wdpos==0 else ''}
    v_readfirstlane_b32 {s(sTag)}, {v(vTag)}
    s_cmp_lg_u32 {s(sW)}, 0
    s_cbranch_scc1 L_fi1
    s_mov_b64 exec, 1
    buffer_store_dwordx2 {v(vTag,2)}, off, {WS}, {s(sT+1)}
    s_mov_b64 exec, -1
    L_fi1:
    s_waitcnt lgkmcnt(0)
    s_barrier
    """)
    if cfg.stamps: a(f's_mov_b32 {s(sStampI)}, 0')
    stamp()
    for k in range(4):
        a(f'ds_read_b64_tr_b16 {v(WA+4*k,2)}, {v(t+2)} offset:{1024*k}')
        a(f'ds_read_b64_tr_b16 {v(WA+4*k+2,2)}, {v(t+2)} offset:{1024*k+128}')
    a(f"""
    {f'ds_read_b64_tr_b16 {v(WD,2)}, {v(t+1)} offset:{F_WD}' if cfg.wdpos==0 else ''}
    {f'ds_read_b64_tr_b16 {v(WD+2,2)}, {v(t+1)} offset:{F_WD+128}' if cfg.wdpos==0 else ''}
    s_cmp_lg_u32 {s(sW)}, 0
    s_cbranch_scc1 L_fi3
    s_movk_i32 {s(sTry)}, 80
    L_fl:
    buffer_load_dwordx2 {v(t+4,2)}, {v(vL8)}, {WS}, {s(sTabLd)} offen sc1
    buffer_load_dwordx2 {v(t+6,2)}, {v(vL8)}, {WS}, {s(sT+10)} offen sc1
    s_waitcnt vmcnt(0)
    v_cmp_ne_u32 vcc, {s(sTag)}, {v(t+4)}
    v_cmp_ne_u32 {s(sT,2)}, {s(sTag)}, {v(t+6)}
    s_or_b64 vcc, vcc, {s(sT,2)}
    """)
    poll_branch('L_fl', 4, giveup='L_fslowtab', skip=True)
    a(f"""
    v_cmp_ne_u32 vcc, {s(sXcc)}, {v(t+5)}
    v_cmp_ne_u32 {s(sT,2)}, {s(sXcc)}, {v(t+7)}
    s_or_b64 vcc, vcc, {s(sT,2)}
    s_cbranch_vccnz L_fslowtab
    s_mov_b32 {s(sFast)}, 1
    v_and_b32 {v(t+4)}, 1, {v(vQ)}
    v_lshlrev_b32 {v(t+4)}, 16, {v(t+4)}
    v_lshl_add_u32 {v(t+4)}, {v(vN)}, 4, {v(t+4)}
    s_lshl_b32 {s(sT)}, {s(sI)}, 8
    s_add_u32 {s(sT)}, {s(sT)}, {s(sPo)}
    buffer_load_dword {v(t+5)}, {v(t+4)}, {WS}, {s(sT)} offen sc1
    L_fi2:
    v_mov_b32 {v(t+6)}, {s(sFast)}
    ds_write_b32 {v(vFl)}, {v(t+6)} offset:4
    L_fi3:
    s_waitcnt vmcnt(0) lgkmcnt(0)
    s_barrier
    ds_read_b32 {v(t+6)}, {v(vFl)} offset:4
    s_waitcnt lgkmcnt(0)
    v_readfirstlane_b32 {s(sFast)}, {v(t+6)}
    """)
    if cfg.wdpos==1: a(f"""
    {f's_sleep {cfg.gdelay}' if cfg.gdelay else ''}
    global_load_dwordx4 {v(T+16,4)}, {v(T+23)}, s[22:23]
    s_waitcnt vmcnt(0)
    ds_write_b128 {v(t)}, {v(T+16,4)} offset:{F_WD}
    ds_read_b64_tr_b16 {v(WD,2)}, {v(t+1)} offset:{F_WD}
    ds_read_b64_tr_b16 {v(WD+2,2)}, {v(t+1)} offset:{F_WD+128}
    s_waitcnt lgkmcnt(0)
    """)
    a(f"""
    L_frnd:
    s_add_u32 {s(sTabLd)}, {s(sTabLd)}, {ARGR}
    s_cmp_lg_u32 {s(sW)}, 0
    s_cbranch_scc1 L_fb1
    s_cmp_eq_u32 {s(sFast)}, 0
    s_cbranch_scc1 L_fb1
    L_ftrig:
    buffer_load_dword {v(t)}, {v(vL8)}, {WS}, {s(sTabLd)} offen sc1
    s_waitcnt vmcnt(0)
    v_cmp_ne_u32 vcc, {s(sTag)}, {v(t)}
    """)
    poll_branch('L_ftrig', cfg.slp_f)
    stamp()
    a(f"""
    s_sleep {cfg.tim_arg}
    L_fb1:
    s_sub_u32 {s(sT)}, {s(sW)}, 4
    s_cmp_lt_u32 {s(sT)}, 2
    s_barrier
    s_cbranch_scc1 L_fx
    s_cmp_lg_u32 {s(sW)}, 6
    s_cbranch_scc1 L_fb2
    s_mov_b64 exec, 0xff
    L_fhd:
    buffer_load_dword {v(t)}, {v(vXL)}, {WS}, {s(sSlot)} offen offset:3072 sc1
    s_waitcnt vmcnt(0)
    v_cmp_eq_u32 vcc, -1, {v(t)}
    """)
    poll_branch('L_fhd', 2, skip=True)
    a(f"""
    v_max_u32_dpp {v(t)}, {v(t)}, {v(t)} row_half_mirror {DPP}
    v_max_u32_dpp {v(t)}, {v(t)}, {v(t)} quad_perm:[1,0,3,2] {DPP}
    v_max_u32_dpp {v(t)}, {v(t)}, {v(t)} quad_perm:[2,3,0,1] {DPP}
    ds_write_b32 {v(vFl)}, {v(t)}
    s_mov_b64 exec, -1
    s_branch L_fb2
    L_fx:
    buffer_load_dwordx4 {v(t,4)}, {v(vXL)}, {WS}, {s(sSlot)} offen sc1
    s_waitcnt vmcnt(0)
    ds_write_b128 {v(vXW)}, {v(t,4)} offset:{F_X}
    """)
    maxchk(range(t,t+4), t+4)
    poll_branch('L_fx', 2, mask=True)
    Dd=t+16
    a(f"""
    L_fb2:
    s_cmp_gt_u32 {s(sW)}, 3
    s_waitcnt lgkmcnt(0)
    s_barrier
    s_cbranch_scc1 L_fnoa
    ds_read_b32 {v(t+20)}, {v(vFl)}
    """)
    for k in range(4): a(f'ds_read_b128 {v(t+4*k,4)}, {v(vXR)} offset:{F_X+64*k}')
    stamp()
    a(f"""
    s_cmp_lt_u32 {s(sI)}, 28
    s_cselect_b32 {s(sPs)}, {s(sPo)}, {WSSZ}
    s_waitcnt lgkmcnt(3)
    v_mfma_f32_16x16x32_bf16 {v(Dd,4)}, {v(t,4)}, {v(WA,4)}, 0
    v_readfirstlane_b32 {s(sKey)}, {v(t+20)}
    s_waitcnt lgkmcnt(2)
    v_mfma_f32_16x16x32_bf16 {v(Dd,4)}, {v(t+4,4)}, {v(WA+4,4)}, {v(Dd,4)}
    s_bitcmp0_b32 {s(sKey)}, 0
    s_cselect_b64 vcc, -1, 0
    s_waitcnt lgkmcnt(1)
    v_mfma_f32_16x16x32_bf16 {v(Dd,4)}, {v(t+8,4)}, {v(WA+8,4)}, {v(Dd,4)}
    s_bitcmp0_b32 {s(sKey)}, 1
    s_cselect_b64 {s(sT+2,2)}, -1, 0
    s_waitcnt lgkmcnt(0)
    v_mfma_f32_16x16x32_bf16 {v(Dd,4)}, {v(t+12,4)}, {v(WA+12,4)}, {v(Dd,4)}
    s_andn2_b32 {s(sT)}, 4, {s(sKey)}
    s_lshl_b32 {s(sT)}, {s(sT)}, 2
    s_bfm_b64 exec, 16, {s(sT)}
    s_cmp_eq_u32 {s(sFast)}, 0
    v_cndmask_b32 {v(Dd)}, {v(Dd)}, {v(Dd+1)}, vcc
    v_cndmask_b32 {v(Dd+2)}, {v(Dd+2)}, {v(Dd+3)}, vcc
    v_cndmask_b32 {v(Dd)}, {v(Dd)}, {v(Dd+2)}, {s(sT+2,2)}
    s_cbranch_scc1 L_fps_s ;!nd
    buffer_store_dword {v(Dd)}, {v(vPS)}, {WS}, {s(sPs)} offen
    L_fps_d:
    s_mov_b64 exec, -1
    s_cmp_eq_u32 {s(sRnd)}, 2
    s_cbranch_scc1 L_fpok
    s_waitcnt vmcnt(0)
    s_branch L_fp
    L_fps_s:
    buffer_store_dword {v(Dd)}, {v(vPS)}, {WS}, {s(sPs)} offen sc1
    s_branch L_fps_d
    L_fnoa:
    s_cmp_eq_u32 {s(sW)}, 7
    s_cbranch_scc1 L_f7
    s_cmp_eq_u32 {s(sRnd)}, 2
    s_cbranch_scc1 L_fpok
    s_sleep {cfg.tim_p}
    s_branch L_fp
    L_fp:
    buffer_load_dwordx4 {v(t,4)}, {v(vPL)}, {WS}, {s(sPo)} offen sc1
    s_waitcnt vmcnt(0)
    """)
    maxchk(range(t,t+4), t+4)
    poll_branch('L_fp', cfg.slp_p, mask=True)
    stamp()
    a(f"""
    L_fpok:
    v_permlane32_swap_b32 {v(t)}, {v(t+1)}
    v_permlane32_swap_b32 {v(t+2)}, {v(t+3)}
    v_add_f32 {v(t)}, {v(t)}, {v(t+1)}
    v_add_f32 {v(t+2)}, {v(t+2)}, {v(t+3)}
    v_permlane16_swap_b32 {v(t)}, {v(t+2)}
    v_add_f32 {v(t)}, {v(t)}, {v(t+2)}
    v_mul_f32 {v(t+1)}, 0xbfb8aa3b, {v(t)}
    v_exp_f32 {v(t+1)}, {v(t+1)}
    v_mul_f32_dpp {v(t+2)}, {v(t)}, {v(t)} quad_perm:[2,3,0,1] {DPP}
    v_add_f32 {v(t+1)}, 1.0, {v(t+1)}
    v_rcp_f32 {v(t+1)}, {v(t+1)}
    v_mul_f32 {v(t+1)}, {v(t+1)}, {v(t+2)}
    v_cvt_pk_bf16_f32 {v(t+1)}, {v(t+1)}, {v(t+1)}
    ds_write_b16 {v(vHW)}, {v(t+1)}
    ds_read_b128 {v(t+4,4)}, {v(vHR)}
    """)
    if cfg.eh:
        a(f's_cmp_lg_u32 {s(sW)}, 5\ns_cbranch_scc1 L_fyh_d')
        hint_store(vTag, sYh, 'L_fyh')
    a(f"""
    s_waitcnt lgkmcnt(0)
    v_mfma_f32_16x16x32_bf16 {v(t+8,4)}, {v(t+4,4)}, {v(WD,4)}, 0
    s_mov_b64 exec, 0xffff
    ds_write_b32 {v(vDP)}, {v(t+8)}
    s_mov_b64 exec, -1
    s_waitcnt lgkmcnt(0)
    s_barrier
    L_fnext:
    """)
    stamp()
    a(f"""
    s_cmp_eq_u32 {s(sRnd)}, 1
    s_cbranch_scc1 L_fend
    s_cmp_eq_u32 {s(sRnd)}, 2
    s_cbranch_scc1 L_finit
    """)
    if cfg.wb==1: a(f"""
    s_cmp_lg_u32 {s(sI)}, 28
    s_cbranch_scc1 L_nwb
    s_cmp_lg_u32 {s(sW)}, 3
    s_cbranch_scc1 L_nwb
    s_sleep {cfg.wbd}
    buffer_wbl2 sc1
    L_nwb:
    """)
    a(f"""
    s_mov_b32 {s(sRnd)}, 1
    s_add_u32 {s(sSlot)}, {s(sSlot)}, {SLOTR}
    s_add_u32 {s(sPo)}, {s(sPo)}, {PARTR}
    s_add_u32 {s(sYo)}, {s(sYo)}, {YPR}
    s_add_u32 {s(sYh)}, {s(sYh)}, {YHR}
    s_branch L_frnd
    L_f7:
    ds_read_b32 {v(t+20)}, {v(vFl)}
    v_mov_b32 {v(vSig)}, 0xbfb8aa3b
    v_add_u32 {v(t+8)}, -28, {v(vDP)}
    v_lshlrev_b32 {v(t+9)}, 1, {v(vN)}
    s_waitcnt lgkmcnt(0)
    v_readfirstlane_b32 {s(sKey)}, {v(t+20)}
    s_ashr_i32 {s(sT)}, {s(sKey)}, 31
    s_orn2_b32 {s(sT)}, 0x80000000, {s(sT)}
    s_xor_b32 {s(sT)}, {s(sT)}, {s(sKey)}
    v_mul_f32 {v(vSig)}, {s(sT)}, {v(vSig)}
    v_exp_f32 {v(vSig)}, {v(vSig)}
    v_add_f32 {v(vSig)}, 1.0, {v(vSig)}
    v_rcp_f32 {v(vSig)}, {v(vSig)}
    s_barrier
    ds_read_b128 {v(t,4)}, {v(t+8)}
    ds_read_b96 {v(t+4,3)}, {v(t+8)} offset:16
    s_waitcnt lgkmcnt(1)
    v_pk_add_f32 {v(t,2)}, {v(t,2)}, {v(t+2,2)}
    v_add_f32 {v(t)}, {v(t)}, {v(t+1)}
    s_waitcnt lgkmcnt(0)
    v_add_f32 {v(t+4)}, {v(t+4)}, {v(t+5)}
    v_add_f32 {v(t)}, {v(t)}, {v(t+6)}
    v_add_f32 {v(t)}, {v(t)}, {v(t+4)}
    v_mul_f32 {v(t)}, {v(t)}, {v(vSig)}
    v_mov_b32_dpp {v(t+1)}, {v(t)} quad_perm:[1,1,3,3] {DPP}
    s_mov_b64 exec, 0x5555
    v_cvt_pk_bf16_f32 {v(t)}, {v(t)}, {v(t+1)}
    buffer_store_dword {v(t)}, {v(t+9)}, {WS}, {s(sYo)} offen sc1
    """)
    if cfg.eh: a('s_mov_b64 exec, -1')
    else: hint_store(vTag, sYh, 'L_fyh')
    a(f"""
    s_branch L_fnext
    L_fslowtab:
    v_and_b32 {v(t+16)}, 7, {v(vLane)}
    v_lshlrev_b32 {v(t+16)}, 7, {v(t+16)}
    s_mov_b32 {s(sT+10)}, {TABG}
    L_ftab2:
    buffer_load_dword {v(t+4)}, {v(t+16)}, {WS}, {s(sT+10)} offen sc1
    s_waitcnt vmcnt(0)
    v_cmp_ne_u32 vcc, {s(sTag)}, {v(t+4)}
    """)
    poll_branch('L_ftab2', 8)
    a('s_branch L_fi2\nL_fend:')
    dump_stamps()
    a('s_endpgm')

def build():
    hdr=open('ref.txt').read().split('; @launch')[0]
    a.raw(hdr+f'; @launch grid=({NWG},1,1) block=(512,1,1) lds={LDS_TOTAL}')
    a.raw(f'''; generated by gen/gen.py (hand-written generator): persistent FFT-structured FNet + MoD kernel
.amdgcn_target "amdgcn-amd-amdhsa--gfx950"
.text
.globl {NAME}_kernel
.p2align 8
.type {NAME}_kernel,@function
{NAME}_kernel:''')
    if cfg.st0: a(f's_memrealtime s[88:89]\ns_waitcnt lgkmcnt(0)')
    a(f'''
    s_load_dwordx2 s[12:13], s[0:1], 0
    s_load_dwordx2 s[8:9], s[0:1], 96
    s_load_dwordx8 s[16:23], s[0:1], 48
    s_load_dwordx2 s[28:29], s[0:1], 80
    s_cmp_ge_u32 s2, {NWG}
    s_cbranch_scc1 L_end
    ''')
    if cfg.codepf: a(f'''
    s_getpc_b64 {s(sT+6,2)}
    L_pc:
    v_lshlrev_b32 v2, 5, v0
    v_min_u32 v2, L_end-L_pc, v2
    global_load_dword {v(vTG)}, v2, {s(sT+6,2)}
    ''')
    if cfg.split: a(f'''
    s_lshr_b32 s3, s2, 1
    s_xor_b32 s3, s3, s2
    s_and_b32 s3, s3, 128
    s_mul_i32 s3, s3, 3
    s_xor_b32 s2, s2, s3
    ''')
    a(f'''
    v_lshrrev_b32 v2, 6, v0
    v_and_b32 {v(vN)}, 15, v0
    v_bfe_u32 {v(vQ)}, v0, 4, 2
    v_readfirstlane_b32 {s(sW)}, v2
    v_and_b32 {v(vLane)}, 63, v0
    s_mov_b32 s10, {WSSZ}
    s_mov_b32 s11, 0x20000
    s_mov_b32 s30, 0x200000
    s_mov_b32 s31, 0x20000
    s_and_b32 {s(sX)}, s2, 7
    s_lshr_b32 {s(sJ)}, s2, 3
    v_mov_b32 {v(SENT)}, -1
    v_mov_b32 {v(SENT+1)}, -1
    v_mov_b32 {v(SENT+2)}, -1
    v_mov_b32 {v(SENT+3)}, -1
    v_lshlrev_b32 {v(vL8)}, 3, v0
    v_and_b32 {v(vL8)}, 0xf8, {v(vL8)}
    s_mov_b32 {s(sCnt)}, 200000
    s_mov_b32 {s(sM7FF)}, 0x7ff
    s_lshl_b32 {s(sTabLd)}, {s(sX)}, 8
    s_add_u32 {s(sTabLd)}, {s(sTabLd)}, {TABL}
    s_getreg_b32 {s(sXcc)}, hwreg(HW_REG_XCC_ID, 0, 4)
    ''')
    if cfg.force_slow: a(f's_mov_b32 {s(sXcc)}, {s(sJ)}')
    if cfg.stamps:
        a(f's_mov_b32 {s(sStampI)}, 0\nv_mov_b32 {v(vSTMP)}, 0')
        a(f's_memrealtime {s(sTS,2)}\ns_memtime {s(sTS+2,2)}\ns_waitcnt lgkmcnt(0)\nv_writelane_b32 {v(vSTMP)}, {s(sTS)}, 63\nv_writelane_b32 {v(vSTMP)}, {s(sTS+2)}, 62')
        if cfg.st0: a(f'v_writelane_b32 {v(vSTMP)}, {s(sTS)}, 58\nv_writelane_b32 {v(vSTMP)}, s88, 63\ns_memrealtime {s(sTS,2)}\ns_waitcnt lgkmcnt(0)\nv_writelane_b32 {v(vSTMP)}, {s(sTS)}, 59')
    a('''s_cmp_ge_u32 s2, 256
    s_cbranch_scc1 L_ffn''')
    if cfg.prio: a(f's_setprio 2\ns_cmp_gt_u32 {s(sW)}, 1\ns_cbranch_scc1 L_np\ns_setprio 3\nL_np:')
    main_prologue()
    main_loop()
    ffn()
    a('L_end:\ns_endpgm')
    a.raw(f'''.section .rodata,"a"
.p2align 6
.amdhsa_kernel {NAME}_kernel
  .amdhsa_next_free_vgpr 128
  .amdhsa_next_free_sgpr 96
  .amdhsa_accum_offset 128
  .amdhsa_group_segment_fixed_size 0
  .amdhsa_kernarg_size 104
  .amdhsa_user_sgpr_count 2
  .amdhsa_user_sgpr_kernarg_segment_ptr 1
  .amdhsa_system_sgpr_workgroup_id_x 1
.end_amdhsa_kernel''')
    return a.text()
if __name__=='__main__':
    out=sys.argv[1]
    for kv in sys.argv[2:]:
        k,val=kv.split('='); assert hasattr(cfg,k); setattr(cfg,k,int(val))
    open(out,'w').write(build())
    print('instrs',a.count,'nops',a.nops)
```

```python
import sys, struct
from asmlib import Asm
NAME='interleave_layers__spectral_fnet__moe_arch_mod__prompt'
def fbits(x): return '0x%08x' % struct.unpack('<I', struct.pack('<f', x))[0]

class Cfg:
    stamps=0
    tim_arg=16
    tim_y=0
    tim_h=0
    slp_g=2
    slp_l=1
    force_slow=0
    prio=1
    codepf=1
    exp=0
    st0=0
    cal=-1
    calwg=0
    dbgout=0
    dry=1
    wb=0
    fdelay=20
    gdelay=18
    osc=1
    odel=0
    pfm=7
    clr2=0
    nb0=0
    ehint=0
    post=0
    slp_t=0
    aft=0
    g2pos=0
    tim_fh=12
    wdpos=0
    slp_p=1
    tim_p=8
    hold=1
    tim_gy=12
    eh=1
    own=1
    tim_y3=8
    beh=1
    gbb=0
    slp_f=2
    early=4
    tim_a0=0
    wbd=12
    gbdelay=4
    late=1
    split=0
    tch=1
cfg=Cfg()

TABG=0x1000; TABGR=0x6000
TABL=0x2000; ARGR=0x800
TAB2=0x3800
SLOWF=0x4000
YHINT=0x5000; YHR=0x400
FTAB=0x6000
CLR0=0x8000
YP=0x8000; YPR=0x2000
PART=0x20000; PARTR=0x10000
SLOT=0x10000; SLOTR=0x8000
LBASE=0x40000; PS=8448; LX=32*PS
GBASE=0x260000; GS=262144+768; GR=0x210000
STAMP=0x700000
WSSZ=0x800000
NWG=512
NST=(13,9,7)
L_STAT=0; L_U=0x400; L_YI=0x2400; YIS=320; L_YT=0x4C00; L_DH=0x6E00; L_FLAG=0x7E00; LDS_TOTAL=0x7E80
L_CX=0x2400
def v(a,n=1): return f'v{a}' if n==1 else f'v[{a}:{a+n-1}]'
def s(a,n=1): return f's{a}' if n==1 else f's[{a}:{a+n-1}]'

WS='s[8:11]'; XS='s[12:15]'; OS='s[28:31]'
sW=3; sX=26; sJ=27; sIt=32; sTag=33; sFast=34; sKey=35; sMir=36; sDsc=38
sLst=39; sLld=40; sPh=41; sTabG=42; sG0=43; sG4=44; sTabSt=45; sTabLd=46; sSlot=47; sRow0=48; sRow1=49; sCnt=50
sXcc=51; sStampI=37
sK512=52
sTry=53
sEps=54
sC16=56
sSc=58
sM7FF=60; sTop=61
sQmask=62
sT=64
sNx=84; sSg=85; sYo=86; sYh=87
sTS=80
X=2; WV=10; A8=14; XA=16; B1C=20; B1S=24; B1N=28; TWC=32; TWS=36; A2R=40; A2I=44; YC=48; YS=52
AD=56; BC=58
vXoff=72; vStW=73; vStR=74; vUW=75; vUR=76; vLst=77; vLld=78; vLldM=79; vYIW=80; vYIR=81; vYW=82; vYR=83; vGst=84; vGld=85
vSc0=86; vL8=88; vInv=89; vN=90; vQ=91; vSTMP=1; vLane=92; vTG=93
LNP=94; MM=98; RS2=100
T=102
class Asm2(Asm):
    def __call__(self, text):
        parts=text.split(';@F')
        for i,p in enumerate(parts):
            if i: fstamp()
            Asm.__call__(self,p)
a=Asm2()
def poll_branch(lbl, sleep=1, pre='', giveup=None, skip=False, mask=False):
    k=a.lines.index(lbl+':')
    if mask:
        pre+='\ns_mov_b64 exec, vcc'; skip=True
        k2=next(i for i in range(k,len(a.lines)) if 's_waitcnt vmcnt(0)' in a.lines[i])
        k3=max(i for i in range(k,k2) if 'buffer_load' in a.lines[i])
        a.lines.insert(k3+1,'    s_mov_b64 exec, -1')
    if a.lines[k-1].strip().startswith(('s_branch','s_endpgm')): skip=False
    a(f's_cbranch_vccnz {lbl}_r ;!nd')
    st=[]
    if skip: st.append(f'    s_branch {lbl}')
    st.append(f'{lbl}_r:')
    if giveup: st+= [f'    s_sub_u32 {s(sTry)}, {s(sTry)}, 1', f'    s_cbranch_scc1 {giveup}']
    else: st+= [f'    s_sub_u32 {s(sCnt)}, {s(sCnt)}, 1', '    s_cbranch_scc1 L_end']
    st+= ['    '+x.strip() for x in pre.split('\n') if x.strip()]
    if sleep: st.append(f'    s_sleep {sleep}')
    a.lines[k:k]=st
def fstamp():
    if cfg.stamps>=2: stamp()
def stamp():
    if not cfg.stamps: return
    a(f'''{'s_memtime' if cfg.stamps==2 else 's_memrealtime'} {s(sTS,2)}
    s_waitcnt lgkmcnt(0)
    s_mov_b32 m0, {s(sStampI)}
    s_add_u32 {s(sStampI)}, {s(sStampI)}, 1
    v_writelane_b32 {v(vSTMP)}, {s(sTS)}, m0''')
def dump_stamps():
    if not cfg.stamps: return
    a(f's_memrealtime {s(sTS,2)}\ns_memtime {s(sTS+2,2)}\ns_waitcnt lgkmcnt(0)\nv_writelane_b32 {v(vSTMP)}, {s(sTS)}, 61\nv_writelane_b32 {v(vSTMP)}, {s(sTS+2)}, 60')
    if cfg.cal>=0:
        lab='L_cal%d'%len(a.lines)
        a(f'''s_cmp_lg_u32 s2, {cfg.calwg}
        s_cbranch_scc1 {lab}
        s_cmp_lg_u32 {s(sW)}, 0
        s_cbranch_scc1 {lab}
        v_readlane_b32 {s(sT)}, {v(vSTMP)}, {cfg.cal}
        v_readlane_b32 {s(sT+1)}, {v(vSTMP)}, 63
        s_sub_u32 {s(sT)}, {s(sT)}, {s(sT+1)}
        s_lshl_b32 {s(sT)}, {s(sT)}, 2
        s_add_u32 {s(sT)}, {s(sT)}, 3000
        s_min_u32 {s(sT)}, {s(sT)}, 50000
        {lab}_l:
        s_memrealtime {s(sTS,2)}
        s_waitcnt lgkmcnt(0)
        s_sub_u32 {s(sT+2)}, {s(sTS)}, {s(sT+1)}
        s_cmp_lt_u32 {s(sT+2)}, {s(sT)}
        s_cbranch_scc1 {lab}_l
        {lab}:''')
    a(f'''s_lshl_b32 {s(sT)}, s2, 11
    s_lshl_b32 {s(sT+1)}, {s(sW)}, 8
    s_add_u32 {s(sT)}, {s(sT)}, {s(sT+1)}
    s_add_u32 {s(sT)}, {s(sT)}, {STAMP}
    v_lshlrev_b32 {v(vLane)}, 2, {v(vLane)}
    buffer_store_dword {v(vSTMP)}, {v(vLane)}, {WS}, {s(sT)} offen''')
def maxchk(regs, t):
    regs=list(regs)
    a(f'v_max3_u32 {v(t)}, {v(regs[0])}, {v(regs[1])}, {v(regs[2])}')
    rest=regs[3:]
    while len(rest)>=2:
        a(f'v_max3_u32 {v(t)}, {v(t)}, {v(rest[0])}, {v(rest[1])}'); rest=rest[2:]
    if rest: a(f'v_max_u32 {v(t)}, {v(t)}, {v(rest[0])}')
    a(f'v_cmp_eq_u32 vcc, -1, {v(t)}')
def phchk(regs, t):
    regs=list(regs)
    a(f'v_bitop3_b32 {v(t)}, {v(regs[0])}, {v(regs[1])}, {s(sPh)} bitop3:0x7e')
    for r in regs[2:]: a(f'v_bitop3_b32 {v(t)}, {v(t)}, {v(r)}, {s(sPh)} bitop3:0xf6')
    a(f'v_and_b32 {v(t)}, 1, {v(t)}\nv_cmp_ne_u32 vcc, 0, {v(t)}')
def tag4chk(r):
    for k in range(4): a(f'v_xor_b32 {v(r+k)}, {s(sTag)}, {v(r+k)}')
    a(f'v_or3_b32 {v(r)}, {v(r)}, {v(r+1)}, {v(r+2)}\nv_or_b32 {v(r)}, {v(r)}, {v(r+3)}\nv_cmp_ne_u32 vcc, 0, {v(r)}')
DPP='row_mask:0xf bank_mask:0xf'

def fft_core(xr, xi, U, V, F, P, fill1='', fill2=''):
    Ur,Ui=U,U+4
    a(f'v_mfma_f32_16x16x32_f16 {v(Ur,4)}, {v(xr,4)}, {v(B1C,4)}, 0')
    a(f'v_mfma_f32_16x16x32_f16 {v(Ui,4)}, {v(xr,4)}, {v(B1N,4)}, 0')
    if xi is not None:
        a(f'v_mfma_f32_16x16x32_f16 {v(Ur,4)}, {v(xi,4)}, {v(B1S,4)}, {v(Ur,4)}')
        a(f'v_mfma_f32_16x16x32_f16 {v(Ui,4)}, {v(xi,4)}, {v(B1C,4)}, {v(Ui,4)}')
    a(fill1)
    Vr,Vi=V,V+4
    for h in (0,2):
        a(f'v_pk_mul_f32 {v(Vi+h,2)}, {v(Ur+h,2)}, {v(TWS+h,2)}')
    for h in (0,2):
        a(f'v_pk_mul_f32 {v(Vr+h,2)}, {v(Ui+h,2)}, {v(TWS+h,2)}')
    for h in (0,2):
        a(f'v_pk_fma_f32 {v(Vr+h,2)}, {v(Ur+h,2)}, {v(TWC+h,2)}, {v(Vr+h,2)}')
        a(f'v_pk_fma_f32 {v(Vi+h,2)}, {v(Ui+h,2)}, {v(TWC+h,2)}, {v(Vi+h,2)} neg_lo:[0,0,1] neg_hi:[0,0,1]')
    for r in range(4): a(f'v_cvt_pk_f16_f32 {v(P+r)}, {v(Vr+r)}, {v(Vi+r)}')
    a(f'v_mfma_f32_16x16x32_f16 {v(F,4)}, {v(A2R,4)}, {v(P,4)}, 0')
    a(f'v_mfma_f32_16x16x32_f16 {v(F+4,4)}, {v(A2I,4)}, {v(P,4)}, 0')
    a(fill2)
    for r in range(4): a(f'v_cvt_pk_f16_f32 {v(P+r)}, {v(F+r)}, {v(F+4+r)}')

SENT=T+4

def main_prologue():
    t=T
    X0=BC
    a(f'''
    s_mul_i32 {s(sLld)}, {s(sX)}, {LX}
    s_add_u32 {s(sLld)}, {s(sLld)}, {LBASE}
    s_mul_i32 {s(sLst)}, {s(sJ)}, {PS}
    s_add_u32 {s(sLst)}, {s(sLst)}, {s(sLld)}
    v_lshlrev_b32 {v(t)}, 4, v0
    v_lshrrev_b32 {v(t+1)}, 4, v0
    global_load_dwordx2 {v(X0+4,2)}, {v(vUW)}, s[16:17]
    buffer_load_dword {v(X0+6)}, off, {WS}, 0 sc1
    ''')
    tabt=f'buffer_load_dword {v(X0+7)}, {v(vL8)}, {WS}, {s(sTabLd)} offen sc1'
    ltch=f'buffer_load_dwordx4 {v(X0+8,4)}, {v(t)}, {WS}, {s(sLst) if not cfg.exp&1 else "s10"} offen sc1'
    lclr=f'buffer_store_dwordx4 {v(SENT,4)}, {v(t)}, {WS}, {s(sLst)} offen'
    if cfg.tch==0: a(tabt+'\n'+ltch+'\n'+lclr)
    if cfg.tch==1 and not cfg.aft&1: a(tabt+'\n'+ltch)
    if cfg.tch==2: a(tabt+'\n'+lclr+'\n'+ltch)
    if cfg.tch==3: a(ltch.replace(' sc1','')+'\n'+ltch.replace(' sc1','')+'\n'+lclr)
    a(f'''
    s_mov_b32 {s(sG0)}, {GBASE}
    s_mul_i32 {s(sT)}, {s(sX)}, {GS}
    s_add_u32 {s(sT+2)}, {s(sJ)}, 24
    s_and_b32 {s(sT+2)}, {s(sT+2)}, 24
    s_lshl_b32 {s(sT+2)}, {s(sT+2)}, 13
    s_add_u32 {s(sT)}, {s(sT)}, {s(sT+2)}
    s_and_b32 {s(sT+2)}, {s(sJ)}, 7
    s_cmp_lt_u32 {s(sJ)}, 8
    s_cselect_b32 {s(sT+3)}, 7, 8
    s_cselect_b32 {s(sT+4)}, 112, 0
    s_lshl_b32 {s(sT+2)}, {s(sT+2)}, {s(sT+3)}
    s_add_u32 {s(sT)}, {s(sT)}, {s(sT+2)}
    v_lshlrev_b32 {v(t+2)}, 4, {v(vN)}
    v_lshl_add_u32 {v(vGst)}, {v(t+1)}, 11, {v(t+2)}
    v_and_b32 {v(t+3)}, 8, {v(vN)}
    v_mad_u32_u24 {v(vGst)}, {v(t+3)}, {s(sT+4)}, {v(vGst)}
    v_add_u32 {v(vGst)}, {s(sT)}, {v(vGst)}
    s_lshl_b32 {s(sT+15)}, s2, 13
    s_sub_u32 {s(sT+14)}, s2, 4
    s_cmp_lt_u32 {s(sT+14)}, 28
    s_cselect_b32 {s(sT+15)}, {s(sT+15)}, {WSSZ}
    ''')
    clrs=f'''buffer_store_dwordx4 {v(SENT,4)}, {v(vGst)}, {WS}, {s(sG0)} offen sc1
    buffer_store_dwordx4 {v(SENT,4)}, {v(t)}, {WS}, {s(sT+15)} offen sc1'''
    g2c=f's_mov_b32 {s(sT+14)}, {GBASE+GR}\nbuffer_store_dwordx4 {v(SENT,4)}, {v(vGst)}, {WS}, {s(sT+14)} offen sc1'
    if not cfg.aft&2: a(clrs)
    if cfg.g2pos==0: a(g2c)
    c=t+8; co,si=c+8,c+12
    a(f'''
    s_lshr_b32 {s(sT)}, {s(sJ)}, 2
    s_and_b32 {s(sT)}, {s(sT)}, 6                 ; 2*(j>>3)
    s_lshl_b32 {s(sT+1)}, {s(sW)}, 2
    s_and_b32 {s(sT+1)}, {s(sT+1)}, 8             ; 2*4*((w>>1)&1)
    s_cmp_lt_u32 {s(sJ)}, 8
    s_cselect_b32 {s(sT)}, {s(sT+1)}, {s(sT)}
    s_lshl_b32 {s(sT+1)}, {s(sW)}, 4
    s_and_b32 {s(sT+1)}, {s(sT+1)}, 16            ; 16*(w&1)
    s_cmp_ge_u32 {s(sW)}, 4
    s_cselect_b32 {s(sT+2)}, {s(sT+1)}, 0         ; 16k
    s_cselect_b32 {s(sT)}, {s(sT)}, 0
    s_cmp_eq_u32 {s(sW)}, 3
    s_cselect_b32 {s(sT)}, 16, {s(sT)}
    s_lshl_b32 {s(sT+3)}, {s(sW)}, 2
    s_lshr_b32 {s(sT+3)}, 0x44440054, {s(sT+3)}
    s_and_b32 {s(sT+3)}, {s(sT+3)}, 15            ; log2 A
    v_lshlrev_b32 {v(c)}, {s(sT+3)}, {v(vN)}
    v_add_u32 {v(c)}, {s(sT)}, {v(c)}
    v_lshl_add_u32 {v(c+1)}, {v(vQ)}, 2, {s(sT+2)}
    v_cvt_f32_u32 {v(c)}, {v(c)}
    v_cvt_f32_u32 {v(c+1)}, {v(c+1)}
    s_mov_b32 {s(sK512)}, {fbits(1/512)}
    v_mul_f32 {v(c)}, {s(sK512)}, {v(c)}
    v_mul_f32 {v(c+4)}, {v(c+1)}, {v(c)}
    v_add_f32 {v(c+5)}, {v(c+4)}, {v(c)}
    v_add_f32 {v(c+6)}, {v(c+5)}, {v(c)}
    v_add_f32 {v(c+7)}, {v(c+6)}, {v(c)}
    ''')
    fill=[f's_mov_b32 {s(sEps)}, {fbits(1e-5)}', f's_mov_b32 {s(sEps+1)}, {fbits(1e-5)}', f's_mov_b32 {s(sC16)}, {fbits(1/16)}', f's_mov_b32 {s(sC16+1)}, {fbits(1/16)}',
          f's_mov_b32 {s(sTop)}, 0x80000000', f's_mov_b32 {s(sQmask)}, 0x11111111', f's_mov_b32 {s(sQmask+1)}, 0x11111111', f's_mov_b32 {s(sG4)}, {GBASE+4*GS}']
    for r in range(4):
        a(f'v_cos_f32 {v(co+r)}, {v(c+4+r)}'); a(fill[2*r])
        a(f'v_sin_f32 {v(si+r)}, {v(c+4+r)}'); a(fill[2*r+1])
    a(f'''
    s_lshl_b32 {s(sT)}, {s(sW)}, 11
    s_add_u32 {s(sT)}, {s(sT)}, {L_CX}
    v_lshlrev_b32 {v(c+2)}, 4, {v(vLane)}
    v_add_u32 {v(c+3)}, {s(sT)}, {v(c+2)}
    s_and_b32 {s(sT)}, {s(sW)}, 6
    s_cmp_eq_u32 {s(sT)}, 2
    s_cbranch_scc1 L_cw
    s_cmp_eq_u32 {s(sW)}, 1
    s_cbranch_scc1 L_cri
    v_cvt_pk_f16_f32 {v(co)}, {v(co)}, {v(co+1)}
    v_cvt_pk_f16_f32 {v(co+1)}, {v(co+2)}, {v(co+3)}
    v_cvt_pk_f16_f32 {v(co+2)}, {v(si)}, {v(si+1)}
    v_cvt_pk_f16_f32 {v(co+3)}, {v(si+2)}, {v(si+3)}
    s_branch L_cw
    L_cri:
    ''')
    for r in range(4):
        a(f'v_cvt_pk_f16_f32 {v(c+4)}, {v(co+r)}, {v(si+r)}')
        a(f'v_cvt_pk_f16_f32 {v(si+r)}, -{v(si+r)}, {v(co+r)}')
        a(f'v_mov_b32 {v(co+r)}, {v(c+4)}')
    a(f'''
    L_cw:
    ds_write_b128 {v(c+3)}, {v(co,4)}
    ds_write_b128 {v(c+3)}, {v(si,4)} offset:1024
    v_lshrrev_b32 {v(c+4)}, 2, {v(vN)}
    v_and_b32 {v(c+5)}, 2, {v(vN)}
    v_and_b32 {v(c+6)}, 14, {v(vN)}
    v_cmp_eq_u32 vcc, 2, {v(c+6)}
    v_mul_u32_u24 {v(vYIR)}, {YIS}, {v(c+4)}
    v_lshlrev_b32 {v(vStR)}, 8, {v(vQ)}
    v_cndmask_b32 {v(c+4)}, {v(c+4)}, 4, vcc
    v_cndmask_b32 {v(c+5)}, {v(c+5)}, 0, vcc
    v_mul_u32_u24 {v(c+6)}, {v(c+4)}, {v(vQ)}
    v_lshl_add_u32 {v(c+6)}, {v(c+6)}, 1, {v(c+5)}
    v_add_u32 {v(c+7)}, {v(c+6)}, {v(c+4)}
    v_cvt_f32_u32 {v(c+6)}, {v(c+6)}
    v_cvt_f32_u32 {v(c+7)}, {v(c+7)}
    v_mul_f32 {v(c+6)}, 0x3e000000, {v(c+6)}
    v_mul_f32 {v(c+7)}, 0x3e000000, {v(c+7)}
    v_cos_f32 {v(c+6)}, {v(c+6)}
    v_cos_f32 {v(c+7)}, {v(c+7)}
    v_and_b32 {v(c+5)}, 1, {v(vN)}
    v_cmp_eq_u32 vcc, 0, {v(c+5)}
    v_cvt_pk_f16_f32 {v(c+6)}, {v(c+6)}, {v(c+7)}
    v_mov_b32 {v(c+5)}, 0x80008000
    v_cndmask_b32 {v(A8)}, 0, {v(c+6)}, vcc
    v_cndmask_b32 {v(A8+1)}, {v(c+6)}, 0, vcc
    v_cndmask_b32 {v(c+5)}, {v(c+5)}, 0, vcc
    s_lshl_b32 {s(sT+1)}, {s(sT+1)}, 7            ; h*2048
    v_add_u32 {v(c+6)}, {s(sT+1)}, {v(c+2)}
    s_lshl_b32 {s(sT+2)}, {s(sW)}, 11
    s_and_b32 {s(sT+2)}, {s(sT+2)}, 4096          ; ((w>>1)&1)*4096
    v_add_u32 {v(c+7)}, {s(sT+2)}, {v(c+2)}
    s_waitcnt lgkmcnt(0)
    s_barrier
    ds_read_b128 {v(B1N,4)}, {v(c+2)} offset:{L_CX}
    ds_read_b128 {v(co,4)}, {v(c+7)} offset:{L_CX+4*2048}
    ds_read_b128 {v(si,4)}, {v(c+7)} offset:{L_CX+5*2048}
    ds_read_b128 {v(A2R,4)}, {v(c+2)} offset:{L_CX+2048}
    ds_read_b128 {v(A2I,4)}, {v(c+2)} offset:{L_CX+2048+1024}
    ds_read_b128 {v(TWC,4)}, {v(c+6)} offset:{L_CX+4096}
    ds_read_b128 {v(TWS,4)}, {v(c+6)} offset:{L_CX+4096+1024}
    v_and_b32 {v(c+4)}, 4, {v(vN)}
    s_lshl_b32 {s(sT)}, {s(sW)}, 2
    v_lshl_add_u32 {v(vStW)}, {v(t+3)}, 2, {v(vStR)}
    v_lshl_add_u32 {v(vStW)}, {v(c+4)}, 4, {v(vStW)}
    v_add_u32 {v(vStW)}, {s(sT)}, {v(vStW)}
    v_and_b32 {v(c+4)}, 7, {v(vN)}
    v_lshl_add_u32 {v(vStR)}, {v(c+4)}, 5, {v(vStR)}
    v_lshl_add_u32 {v(vUW)}, {v(vQ)}, 11, {v(vUW)}
    v_add_u32 {v(vUW)}, {L_U}, {v(vUW)}
    s_lshr_b32 {s(sT)}, {s(sW)}, 1
    s_lshl_b32 {s(sT)}, {s(sT)}, 11
    s_add_u32 {s(sT+2)}, {s(sT)}, {L_U}
    v_lshl_add_u32 {v(vUR)}, {v(vLane)}, 3, {s(sT+2)}
    ; vLst = w'*2048 + 512q + 64h + 4n
    s_lshr_b32 {s(sT+2)}, {s(sT+1)}, 5
    s_add_u32 {s(sT)}, {s(sT)}, {s(sT+2)}
    v_lshl_add_u32 {v(vLst)}, {v(vQ)}, 9, {s(sT)}
    v_lshl_add_u32 {v(vLst)}, {v(vN)}, 2, {v(vLst)}
    s_lshl_b32 {s(sT)}, {s(sJ)}, 3
    s_add_u32 {s(sTabSt)}, {s(sTabLd)}, {s(sT)}
    s_lshl_b32 {s(sT+3)}, {s(sW)}, 31             ; h sign
    s_lshl_b32 {s(sT+4)}, {s(sW)}, 29
    s_and_b32 {s(sT+4)}, {s(sT+4)}, {s(sTop)}
    s_mov_b32 {s(sT+5)}, 0x80008000
    s_mov_b32 {s(sIt)}, 0
    s_mov_b32 {s(sFast)}, 1
    s_mov_b32 {s(sPh)}, 0
    s_mov_b32 {s(sNx)}, 0
    s_mov_b32 {s(sSlot)}, {WSSZ}
    s_xor_b32 {s(sT+12)}, {s(sJ)}, 9
    s_or_b32 {s(sT+12)}, {s(sT+12)}, {s(sW)}
    s_mov_b32 {s(sTry)}, 64
    s_waitcnt lgkmcnt(4)
    v_xor_b32 {v(B1C)}, {s(sT+3)}, {v(B1N)}
    v_xor_b32 {v(B1C+1)}, {s(sT+3)}, {v(B1N+1)}
    v_xor_b32 {v(B1S)}, {s(sT+3)}, {v(B1N+2)}
    v_xor_b32 {v(B1S+1)}, {s(sT+3)}, {v(B1N+3)}
    v_xor_b32 {v(B1C+2)}, {v(B1C)}, {v(c+5)}
    v_xor_b32 {v(B1C+3)}, {v(B1C+1)}, {v(c+5)}
    v_xor_b32 {v(B1S+2)}, {v(B1S)}, {v(c+5)}
    v_xor_b32 {v(B1S+3)}, {v(B1S+1)}, {v(c+5)}
    ''')
    for r in range(4): a(f'v_xor_b32 {v(B1N+r)}, {s(sT+5)}, {v(B1S+r)}')
    for k,src in ((0,co),(1,si)):
        for r in range(2):
            a(f'v_xor_b32 {v(YC+2*k+r)}, {s(sT+4)}, {v(src+r)}')
            a(f'v_xor_b32 {v(YS+2*k+r)}, {s(sT+4)}, {v(src+2+r)}')
    a(f'''
    s_and_b32 {s(sT+1)}, {s(sW)}, 3
    s_lshl_b32 {s(sT+1)}, {s(sT+1)}, 6            ; 64cb
    s_lshr_b32 {s(sT)}, {s(sW)}, 2
    s_mul_i32 {s(sT)}, {s(sT)}, {16*272}
    s_add_u32 {s(sT)}, {s(sT)}, {s(sT+1)}
    s_add_u32 {s(sT)}, {s(sT)}, {L_YT}
    v_mul_u32_u24 {v(vYW)}, 272, {v(vN)}
    v_lshl_add_u32 {v(vYW)}, {v(vQ)}, 4, {v(vYW)}
    v_add_u32 {v(vYW)}, {s(sT)}, {v(vYW)}
    v_mul_u32_u24 {v(vYR)}, 272, {v(t+1)}
    v_add_u32 {v(vYR)}, {v(vYR)}, {v(t+2)}
    v_add_u32 {v(vYR)}, {L_YT}, {v(vYR)}
    s_add_u32 {s(sT+1)}, {s(sT+1)}, {L_YI}
    v_mul_u32_u24 {v(c+4)}, {4*YIS}, {v(vQ)}
    v_and_b32 {v(c+6)}, 0x30, {v(t+2)}
    v_add3_u32 {v(vYIR)}, {v(vYIR)}, {v(c+4)}, {v(c+6)}
    v_add_u32 {v(vYIR)}, {s(sT+1)}, {v(vYIR)}
    s_cmp_lt_u32 {s(sJ)}, 8
    s_cbranch_scc1 L_aself
    v_mul_u32_u24 {v(vLld)}, {PS}, {v(t+1)}
    v_mul_u32_u24 {v(vYIW)}, {YIS}, {v(t+1)}
    s_lshl_b32 {s(sT)}, {s(sJ)}, 8
    v_add3_u32 {v(vLld)}, {v(vLld)}, {v(t+2)}, {s(sT)}
    v_add_u32 {v(vYIW)}, {v(vYIW)}, {v(t+2)}
    v_mov_b32 {v(vLldM)}, 0
    s_branch L_adone
    L_aself:
    ; s2=(w>>1)*8+(l>>3), u=l&7, which=w&1
    s_lshl_b32 {s(sT)}, {s(sW)}, 2
    s_and_b32 {s(sT)}, {s(sT)}, 24
    v_lshrrev_b32 {v(c+4)}, 3, {v(vLane)}
    v_add_u32 {v(c+4)}, {s(sT)}, {v(c+4)}
    v_and_b32 {v(c+6)}, 0x70, {v(t+2)}
    v_mul_u32_u24 {v(vLldM)}, {PS}, {v(c+4)}
    v_mul_u32_u24 {v(vYIW)}, {YIS}, {v(c+4)}
    s_lshl_b32 {s(sT)}, {s(sJ)}, 7
    s_add_u32 {s(sT+1)}, {s(sT)}, 4
    s_sub_u32 {s(sT)}, {508*4}, {s(sT)}
    v_add3_u32 {v(vLld)}, {v(vLldM)}, {v(c+6)}, {s(sT+1)}
    v_sub_u32 {v(vLldM)}, {v(vLldM)}, {v(c+6)}
    v_add_u32 {v(vLldM)}, {s(sT)}, {v(vLldM)}
    s_lshr_b32 {s(sT)}, {s(sT+3)}, 24
    v_add3_u32 {v(vYIW)}, {v(vYIW)}, {v(c+6)}, {s(sT)}
    L_adone:
    v_add_u32 {v(vYIW)}, {L_YI}, {v(vYIW)}
    s_waitcnt vmcnt({(0 if cfg.aft&1 else 2)+(0 if cfg.aft&2 else 2)+(1 if cfg.g2pos==0 else 0)})
    {tabt if cfg.aft&1 else ''}
    {ltch if cfg.aft&1 else ''}
    {clrs if cfg.aft&2 else ''}
    {g2c if cfg.g2pos==1 else ''}
    v_readfirstlane_b32 {s(sTag)}, {v(X0+6)}
    ''')
    for rho in (0,1):
        for k in (0,1):
            src=X0+2*rho+k
            a(f'v_lshlrev_b32 {v(X+4*k+rho)}, 16, {v(src)}')
            a(f'v_and_b32 {v(X+4*k+2+rho)}, 0xffff0000, {v(src)}')
    for k in (0,1):
        a(f'v_lshlrev_b32 {v(WV+2*k)}, 16, {v(X0+4+k)}')
        a(f'v_and_b32 {v(WV+2*k+1)}, 0xffff0000, {v(X0+4+k)}')
    a(f's_add_u32 {s(sTag)}, {s(sTag)}, 1')

def xin_consts(c):
    a(f'''
    s_and_b32 {s(sT)}, {s(sX)}, 3                ; 0 => self
    s_lshr_b32 {s(sT+1)}, {s(sW)}, 2
    s_lshr_b32 {s(sT+2)}, {s(sX)}, 2
    s_mov_b32 {s(sSc)}, {fbits(16.0)}
    s_cmp_eq_u32 {s(sT)}, 0
    s_cselect_b32 {s(sMir)}, {s(sT+1)}, {s(sT+2)}
    s_cselect_b32 {s(sSc)}, {fbits(8.0)}, {s(sSc)}
    s_cselect_b32 {s(sDsc)}, {fbits(1/8)}, {s(sC16)}
    s_cselect_b32 {s(sT+3)}, -4, 0
    s_mov_b32 {s(sSc+1)}, {s(sSc)}
    s_sub_u32 {s(sT+4)}, 256, s2
    s_and_b32 {s(sT+4)}, {s(sT+4)}, 255
    s_cmp_eq_u32 {s(sMir)}, 0
    s_cselect_b32 {s(sT+4)}, s2, {s(sT+4)}       ; source g
    s_cselect_b32 {s(sT+5)}, 16, -16
    s_cselect_b32 {s(sT+6)}, 0, {509*4}
    s_cselect_b32 {s(sT+7)}, 1.0, -1.0
    s_add_u32 {s(sT+3)}, {s(sT+3)}, {s(sT+6)}
    s_mul_i32 {s(sT+6)}, {s(sT+5)}, {s(sW)}
    s_lshl_b32 {s(sT+6)}, {s(sT+6)}, 4
    s_add_u32 {s(sT+3)}, {s(sT+3)}, {s(sT+6)}
    s_lshr_b32 {s(sT+6)}, {s(sT+4)}, 3
    s_lshl_b32 {s(sT+6)}, {s(sT+6)}, 11
    s_add_u32 {s(sT+3)}, {s(sT+3)}, {s(sT+6)}
    s_add_u32 {s(sT+6)}, {s(sT+4)}, 3
    s_and_b32 {s(sT+6)}, {s(sT+6)}, 3
    s_lshl_b32 {s(sT+6)}, {s(sT+6)}, 16
    s_add_u32 {s(sT+3)}, {s(sT+3)}, {s(sT+6)}
    s_and_b32 {s(sT+6)}, {s(sT+4)}, 4
    s_lshl_b32 {s(sT+6)}, {s(sT+6)}, 8
    s_add_u32 {s(sT+3)}, {s(sT+3)}, {s(sT+6)}
    v_mul_i32_i24 {v(vGld)}, {s(sT+5)}, {v(vN)}
    v_mul_u32_u24 {v(c+4)}, {GS}, {v(vQ)}
    v_add3_u32 {v(vGld)}, {v(vGld)}, {v(c+4)}, {s(sT+3)}
    v_lshrrev_b32 {v(c+4)}, 1, {v(vN)}
    v_and_b32 {v(c+4)}, 6, {v(c+4)}
    v_and_or_b32 {v(c+4)}, {v(vN)}, 1, {v(c+4)}
    v_lshl_add_u32 {v(AD)}, {v(c+4)}, 8, s2
    v_cvt_f32_u32 {v(c+4)}, {v(AD)}
    v_cvt_f32_u32 {v(c+5)}, {v(vQ)}
    v_mul_f32 {v(c+4)}, {fbits(1/2048)}, {v(c+4)}
    v_mul_f32 {v(c+4)}, {s(sT+7)}, {v(c+4)}
    v_mul_f32 {v(c+5)}, {v(c+4)}, {v(c+5)}
    v_fma_f32 {v(c+6)}, {v(c+4)}, 4.0, {v(c+5)}
    v_cos_f32 {v(c+7)}, {v(c+5)}
    v_sin_f32 {v(c+8)}, {v(c+5)}
    v_cos_f32 {v(c+9)}, {v(c+6)}
    v_sin_f32 {v(c+10)}, {v(c+6)}
    v_bfe_u32 {v(c+4)}, {v(vN)}, 1, 1
    v_cmp_eq_u32 vcc, {s(sMir)}, {v(c+4)}
    v_cvt_pk_f16_f32 {v(c+7)}, {v(c+7)}, {v(c+8)}
    v_cvt_pk_f16_f32 {v(c+9)}, {v(c+9)}, {v(c+10)}
    v_cndmask_b32 {v(XA)}, 0, {v(c+7)}, vcc
    v_cndmask_b32 {v(XA+1)}, {v(c+7)}, 0, vcc
    v_cndmask_b32 {v(XA+2)}, 0, {v(c+9)}, vcc
    v_cndmask_b32 {v(XA+3)}, {v(c+9)}, 0, vcc
    v_and_b32 {v(c+4)}, 0x1cf, v0
    v_cmp_eq_u32 vcc, 0, {v(c+4)}
    v_mov_b32 {v(c+5)}, {s(sSc)}
    s_sub_u32 {s(sT)}, 2047, s2
    v_lshlrev_b32 {v(vInv)}, 9, {v(vQ)}
    v_cndmask_b32 {v(vSc0)}, {v(c+5)}, 0, vcc
    v_cndmask_b32 {v(vSc0+1)}, {v(c+5)}, 0, vcc
    v_sub_u32 {v(vInv)}, {s(sT)}, {v(vInv)}
    s_lshl_b32 {s(sSlot)}, {s(sX)}, 12
    s_add_u32 {s(sSlot)}, {s(sSlot)}, {SLOT}
    s_mov_b32 {s(sPh)}, -1
    ''')

def main_loop():
    t=T
    S1,S2,S3=t,t+2,t+4
    a('L_top:')
    stamp()
    a(f'''
    v_pk_add_f32 {v(S1,2)}, {v(X,2)}, {v(X+2,2)}
    v_pk_add_f32 {v(t+6,2)}, {v(X+4,2)}, {v(X+6,2)}
    v_pk_mul_f32 {v(S2,2)}, {v(X,2)}, {v(X,2)}
    v_pk_mul_f32 {v(S3,2)}, {v(X,2)}, {v(WV,2)} op_sel:[0,0] op_sel_hi:[1,0]
    v_pk_add_f32 {v(S1,2)}, {v(S1,2)}, {v(t+6,2)}
    v_pk_fma_f32 {v(S2,2)}, {v(X+2,2)}, {v(X+2,2)}, {v(S2,2)}
    v_pk_fma_f32 {v(S3,2)}, {v(X+2,2)}, {v(WV,2)}, {v(S3,2)} op_sel:[0,1,0] op_sel_hi:[1,1,1]
    v_add_f32_dpp {v(S1)}, {v(S1)}, {v(S1)} row_ror:8 row_mask:0xf bank_mask:0x3
    v_pk_fma_f32 {v(S2,2)}, {v(X+4,2)}, {v(X+4,2)}, {v(S2,2)}
    v_pk_fma_f32 {v(S3,2)}, {v(X+4,2)}, {v(WV+2,2)}, {v(S3,2)} op_sel:[0,0,0] op_sel_hi:[1,0,1]
    v_add_f32_dpp {v(S1)}, {v(S1+1)}, {v(S1+1)} row_ror:8 row_mask:0xf bank_mask:0xc
    v_pk_fma_f32 {v(S2,2)}, {v(X+6,2)}, {v(X+6,2)}, {v(S2,2)}
    v_pk_fma_f32 {v(S3,2)}, {v(X+6,2)}, {v(WV+2,2)}, {v(S3,2)} op_sel:[0,1,0] op_sel_hi:[1,1,1]
    s_cmp_eq_u32 {s(sIt)}, 0
    s_cbranch_scc1 L_s3w
    L_s3ok:
    v_add_f32_dpp {v(S1)}, {v(S1)}, {v(S1)} row_half_mirror row_mask:0xf bank_mask:0x5
    v_add_f32_dpp {v(S2)}, {v(S2)}, {v(S2)} row_ror:8 row_mask:0xf bank_mask:0x3
    v_add_f32_dpp {v(S3)}, {v(S3)}, {v(S3)} row_ror:8 row_mask:0xf bank_mask:0x3
    v_add_f32_dpp {v(S2)}, {v(S2+1)}, {v(S2+1)} row_ror:8 row_mask:0xf bank_mask:0xc
    v_add_f32_dpp {v(S3)}, {v(S3+1)}, {v(S3+1)} row_ror:8 row_mask:0xf bank_mask:0xc
    v_add_f32_dpp {v(S1)}, {v(S2)}, {v(S2)} row_half_mirror row_mask:0xf bank_mask:0xa
    v_add_f32_dpp {v(S3)}, {v(S3)}, {v(S3)} row_half_mirror {DPP}
    v_add_f32_dpp {v(S1)}, {v(S1)}, {v(S1)} quad_perm:[1,0,3,2] {DPP}
    v_add_f32_dpp {v(S3)}, {v(S3)}, {v(S3)} quad_perm:[1,0,3,2] {DPP}
    v_add_f32_dpp {v(S1)}, {v(S1)}, {v(S1)} quad_perm:[2,3,0,1] {DPP}
    v_add_f32_dpp {v(S3)}, {v(S3)}, {v(S3)} quad_perm:[2,3,0,1] {DPP}
    s_mov_b64 exec, {s(sQmask,2)}
    ds_write2_b32 {v(vStW)}, {v(S1)}, {v(S3)} offset0:0 offset1:32
    s_mov_b64 exec, -1
    ;@F
    s_waitcnt {'' if cfg.late else 'vmcnt(0)' if cfg.tch==1 else 'vmcnt(2)'} lgkmcnt(0)
    s_barrier
    ;@F
    ds_read_b128 {v(t,4)}, {v(vStR)}
    ds_read_b128 {v(t+4,4)}, {v(vStR)} offset:16
    s_waitcnt lgkmcnt(0)
    v_pk_add_f32 {v(t,2)}, {v(t,2)}, {v(t+2,2)}
    v_pk_add_f32 {v(t+4,2)}, {v(t+4,2)}, {v(t+6,2)}
    v_pk_add_f32 {v(t,2)}, {v(t,2)}, {v(t+4,2)}
    v_add_f32 {v(t)}, {v(t)}, {v(t+1)}
    v_mul_f32 {v(t+7)}, {s(sK512)}, {v(t)}
    ''')
    VAR,RS,CC,NM=t+8,t+10,t+12,t+14
    K=t+16
    a(f'''
    v_mov_b32_dpp {v(MM)}, {v(t+7)} row_newbcast:0 {DPP}
    v_mov_b32_dpp {v(MM+1)}, {v(t+7)} row_newbcast:1 {DPP}
    v_mov_b32_dpp {v(S2)}, {v(t+7)} row_newbcast:2 {DPP}
    v_mov_b32_dpp {v(S2+1)}, {v(t+7)} row_newbcast:3 {DPP}
    v_mov_b32_dpp {v(S3)}, {v(t+7)} row_newbcast:4 {DPP}
    v_pk_fma_f32 {v(VAR,2)}, {v(MM,2)}, {v(MM,2)}, {v(S2,2)} neg_lo:[1,0,0] neg_hi:[1,0,0]
    v_mov_b32_dpp {v(S3+1)}, {v(t+7)} row_newbcast:5 {DPP}
    v_pk_add_f32 {v(S1,2)}, {v(VAR,2)}, {s(sEps,2)}
    s_cmp_eq_u32 {s(sIt)}, 0
    v_rsq_f32_e64 {v(RS)}, |{v(S1)}|
    v_rsq_f32_e64 {v(RS+1)}, |{v(S1+1)}|
    s_cbranch_scc1 L_it0 ;!nd
    v_pk_mul_f32 {v(S3,2)}, {v(S3,2)}, {v(RS,2)}
    v_add_u32 {v(K+2)}, 0xffffff00, {v(vInv)}
    v_ashrrev_i32 {v(K)}, 31, {v(S3)}
    v_ashrrev_i32 {v(K+1)}, 31, {v(S3+1)}
    v_bitop3_b32 {v(K)}, {v(S3)}, {v(K)}, {s(sTop)} bitop3:0x1e
    v_bitop3_b32 {v(K+1)}, {v(S3+1)}, {v(K+1)}, {s(sTop)} bitop3:0x1e
    v_bfi_b32 {v(K)}, {s(sM7FF)}, {v(vInv)}, {v(K)}
    v_bfi_b32 {v(K+1)}, {s(sM7FF)}, {v(K+2)}, {v(K+1)}
    v_max_u32 {v(K+1)}, {v(K)}, {v(K+1)}
    v_pk_add_f32 {v(CC,2)}, {v(RS,2)}, 1.0 op_sel_hi:[1,0]
    v_mov_b32 {v(K)}, {s(sTag)}
    v_max_u32_dpp {v(K+1)}, {v(K+1)}, {v(K+1)} row_bcast:15 row_mask:0xa bank_mask:0xf
    v_pk_mul_f32 {v(VAR,2)}, {v(VAR,2)}, {v(CC,2)}
    s_cmp_lg_u32 {s(sW)}, 0
    v_max_u32_dpp {v(K+1)}, {v(K+1)}, {v(K+1)} row_bcast:31 row_mask:0xc bank_mask:0xf
    s_cbranch_scc1 L_nost ;!nd
    s_mov_b32 exec_lo, 0
    s_mov_b32 exec_hi, {s(sTop)}
    s_cmp_eq_u32 {s(sFast)}, 0
    s_cbranch_scc1 L_tabst_slow ;!nd
    buffer_store_dwordx2 {v(K,2)}, off, {WS}, {s(sTabSt)}
    L_tabst_back:
    s_mov_b64 exec, -1
    L_nost:
    v_readlane_b32 {s(sKey)}, {v(K+1)}, 63
    v_pk_mul_f32 {v(NM,2)}, {v(MM,2)}, {v(RS,2)}
    v_pk_fma_f32 {v(VAR,2)}, {v(VAR,2)}, {v(CC,2)}, {s(sEps,2)}
    ''')
    Z=t+18
    for c_ in range(4):
        a(f'v_pk_fma_f32 {v(Z+2*c_,2)}, {v(X+2*c_,2)}, {v(RS,2)}, {v(NM,2)} neg_lo:[0,0,1] neg_hi:[0,0,1]')
        if c_==0: a(f'v_rsq_f32_e64 {v(RS2)}, |{v(VAR)}|')
        if c_==1: a(f'v_rsq_f32_e64 {v(RS2+1)}, |{v(VAR+1)}|')
    for c_ in range(4):
        a(f'v_pk_add_f32 {v(X+2*c_,2)}, {v(X+2*c_,2)}, {v(Z+2*c_,2)}')
    for rho in (0,1):
        for k in (0,1):
            a(f'v_cvt_pk_bf16_f32 {v(LNP+2*rho+k)}, {v(Z+4*k+rho)}, {v(Z+4*k+2+rho)}')
    a(f'''
    s_cmp_eq_u32 {s(sIt)}, 2
    s_cbranch_scc1 L_tab2e ;!nd
    v_pk_mul_f32 {v(CC,2)}, {v(RS2,2)}, {s(sC16,2)}
    L_z:
    ;@F
    ''')
    ZP=t; D0=t+4; D1=t+8
    a(f'v_pk_mul_f32 {v(NM,2)}, {v(MM,2)}, {v(CC,2)}')
    for c_ in range(4):
        a(f'v_pk_fma_f32 {v(Z+2*c_,2)}, {v(X+2*c_,2)}, {v(CC,2)}, {v(NM,2)} neg_lo:[0,0,1] neg_hi:[0,0,1]')
    for c_ in range(4): a(f'v_cvt_pk_f16_f32 {v(ZP+c_)}, {v(Z+2*c_)}, {v(Z+2*c_+1)}')
    a(f'''
    v_mfma_f32_16x16x16_f16 {v(D0,4)}, {v(A8,2)}, {v(ZP,2)}, 0
    v_mfma_f32_16x16x16_f16 {v(D1,4)}, {v(A8,2)}, {v(ZP+2,2)}, 0
    s_nop 6
    v_cvt_pk_f16_f32 {v(ZP)}, {v(D0)}, {v(D0+1)}
    v_cvt_pk_f16_f32 {v(ZP+1)}, {v(D1)}, {v(D1+1)}
    v_cvt_pk_f16_f32 {v(ZP+2)}, {v(D0+2)}, {v(D0+3)}
    v_cvt_pk_f16_f32 {v(ZP+3)}, {v(D1+2)}, {v(D1+3)}
    ds_write_b64 {v(vUW)}, {v(ZP,2)}
    ds_write_b64 {v(vUW)}, {v(ZP+2,2)} offset:1024
    ;@F
    s_waitcnt lgkmcnt(0)
    s_barrier
    ;@F
    ds_read_b64_tr_b16 {v(t,2)}, {v(vUR)}
    ds_read_b64_tr_b16 {v(t+2,2)}, {v(vUR)} offset:512
    ds_read_b64_tr_b16 {v(t+4,2)}, {v(vUR)} offset:1024
    ds_read_b64_tr_b16 {v(t+6,2)}, {v(vUR)} offset:1536
    s_cmp_ge_u32 {s(sW)}, {s(sIt)}
    s_cbranch_scc1 L_tg1 ;!nd
    buffer_load_dwordx2 {v(t+24,2)}, {v(vL8)}, {WS}, {s(sTabLd)} offen sc1
    L_tg1:
    L_tg2:
    s_waitcnt lgkmcnt(0)
    ;@F
    ''')
    P=t
    fft_core(t, t+4, t+8, t+16, t+8, P)
    for r in range(4): a(f'v_bfi_b32 {v(P+r)}, 1, {s(sPh)}, {v(P+r)}')
    def lstores(fl):
        for r in range(4): a(f'buffer_store_dword {v(P+r)}, {v(vLst)}, {WS}, {s(sLst)} offen offset:{128*r} {fl}')
    TB=t+24
    W_=t+4
    a(f'''
    s_cmp_lg_u32 {s(sIt)}, 0
    s_cbranch_scc1 L_tab1e
    ''')
    lstores('')
    stamp()
    a(f'''
    s_branch L_pub
    L_tab1e:
    s_cmp_eq_u32 {s(sW)}, 0
    s_cbranch_scc1 L_tabw1
    s_branch L_tabbar
    L_tab2e:
    s_cmp_eq_u32 {s(sW)}, 0
    s_cbranch_scc1 L_tab
    s_branch L_tabbar
    L_tab:
    buffer_load_dwordx2 {v(TB,2)}, {v(vL8)}, {WS}, {s(sTabLd)} offen sc1
    L_tabw1:
    s_waitcnt vmcnt(0)
    v_cmp_ne_u32 vcc, {s(sTag)}, {v(TB)}
    ''')
    poll_branch('L_tab', cfg.slp_t, f'''s_cmp_lg_u32 {s(sIt)}, 0
        s_cselect_b32 {s(sT)}, 0, 1
        s_sub_u32 {s(sTry)}, {s(sTry)}, {s(sT)}
        s_cbranch_scc1 L_tab2''')
    a(f'''
    L_tabok:
    v_cmp_ne_u32 vcc, {s(sKey)}, {v(TB+1)}
    v_cmp_lt_u32 {s(sT,2)}, {s(sKey)}, {v(TB+1)}
    v_mov_b32 {v(TB)}, {L_FLAG}
    s_cmp_eq_u32 {s(sIt)}, 0
    s_cselect_b32 {s(sT)}, vcc_lo, {s(sT)}
    v_mov_b32 {v(TB+1)}, {s(sT)}
    ds_write_b32 {v(TB)}, {v(TB+1)}
    s_waitcnt lgkmcnt(0)
    s_barrier
    s_branch L_tabgot
    L_tabbar:
    v_mov_b32 {v(TB)}, {L_FLAG}
    s_barrier
    ds_read_b32 {v(TB+1)}, {v(TB)}
    s_waitcnt lgkmcnt(0)
    v_readfirstlane_b32 {s(sT)}, {v(TB+1)}
    L_tabgot:
    s_cmp_eq_u32 {s(sIt)}, 0
    s_cbranch_scc1 L_fastchk ;!nd
    s_mov_b32 {s(sT+9)}, 64
    s_cmp_lg_u32 {s(sT)}, 0
    s_cbranch_scc1 L_winback ;!nd
    L_pub:
    s_andn2_b32 {s(sT)}, {s(sM7FF)}, {s(sKey)}      ; idx
    s_lshr_b32 {s(sT+9)}, {s(sT)}, 8                ; s1
    s_bitcmp1_b32 {s(sT+9)}, 0
    s_cselect_b64 vcc, -1, 0
    s_lshl_b32 {s(sT+1)}, {s(sT+9)}, 3
    s_and_b32 {s(sT+1)}, {s(sT+1)}, 0x30
    v_cndmask_b32 {v(W_)}, {v(LNP)}, {v(LNP+2)}, vcc
    v_cndmask_b32 {v(W_+1)}, {v(LNP+1)}, {v(LNP+3)}, vcc
    v_and_b32 {v(W_+2)}, 0x3ff, {v(vXoff)}
    s_bfm_b64 exec, 16, {s(sT+1)}
    buffer_store_dwordx2 {v(W_,2)}, {v(W_+2)}, {WS}, {s(sSlot)} offen sc1
    s_cmp_lg_u32 {s(sW)}, 0
    s_cbranch_scc1 L_nohdr
    v_mov_b32 {v(W_+8)}, {s(sKey)}
    v_cndmask_b32 {v(W_+9)}, {v(MM)}, {v(MM+1)}, vcc
    v_cndmask_b32 {v(W_+10)}, {v(RS2)}, {v(RS2+1)}, vcc
    v_mov_b32 {v(W_+11)}, {s(sKey)}
    buffer_store_dwordx4 {v(W_+8,4)}, off, {WS}, {s(sSlot)} offset:3072 sc1
    buffer_store_dwordx4 {v(W_+8,4)}, off, {WS}, {s(sSlot)} offset:3200 sc1
    L_nohdr:
    ''')
    for c_ in range(4): a(f'v_cndmask_b32 {v(W_+4+c_)}, {v(X+2*c_)}, {v(X+2*c_+1)}, vcc')
    a(f'''
    v_lshlrev_b32 {v(W_+2)}, 1, {v(W_+2)}
    buffer_store_dwordx4 {v(W_+4,4)}, {v(W_+2)}, {WS}, {s(sSlot)} offen offset:1024 sc1
    s_mov_b64 exec, -1
    s_cmp_eq_u32 {s(sIt)}, 0
    s_cbranch_scc1 L_flag0
    L_winback:
    s_cmp_eq_u32 {s(sIt)}, 2
    s_cbranch_scc1 L_fin
    s_add_u32 {s(sSlot)}, {s(sSlot)}, {SLOTR}
    ''')
    lstores('')
    stamp()
    a(f'''
    s_waitcnt vmcnt(0)
    s_branch L_tabdone
    L_flag0:
    ;@F
    v_mov_b32 {v(t+22)}, {s(sTag)}
    v_mov_b32 {v(t+23)}, {s(sKey)}
    s_waitcnt vmcnt(0)
    ;@F
    s_cmp_eq_u32 {s(sW)}, 0
    s_barrier
    s_cbranch_scc0 L_tabbar
    s_mov_b64 exec, 1
    buffer_store_dwordx2 {v(t+22,2)}, off, {WS}, {s(sTabSt)}
    s_mov_b64 exec, -1
    s_branch L_tab
    L_fastchk:
    s_cmp_eq_u32 {s(sT)}, 0
    s_cselect_b32 {s(sFast)}, 1, 0
    L_tabdone:
    s_cmp_eq_u32 {s(sFast)}, 0
    s_cbranch_scc1 L_slow
    L_slowback:
    ;@F
    s_cmp_lt_u32 {s(sJ)}, 8
    s_cbranch_scc0 L_y
    s_branch L_yself
    L_y:
    buffer_load_dwordx4 {v(t,4)}, {v(vLld)}, {WS}, {s(sLld)} offen sc1
    s_waitcnt vmcnt(0)
    ds_write_b128 {v(vYIW)}, {v(t,4)}
    ''')
    phchk(range(t,t+4), t+8)
    poll_branch('L_y', cfg.slp_l, mask=True)
    a('L_yjoin:')
    stamp()
    a(f'''
    s_cmp_lg_u32 {s(sT+12)}, 0
    s_cbranch_scc1 L_noxf
    s_lshl_b32 {s(sT+12)}, {s(sX)}, 7
    s_add_u32 {s(sT+12)}, {s(sT+12)}, {TABG}
    v_lshrrev_b32 {v(t+8)}, 1, {v(vL8)}
    v_mov_b32 {v(t+9)}, {s(sTag)}
    s_mov_b32 exec_hi, 0
    buffer_store_dword {v(t+9)}, {v(t+8)}, {WS}, {s(sT+12)} offen sc1
    s_mov_b64 exec, -1
    L_noxf:
    s_cmp_eq_u32 {s(sIt)}, 0
    s_cbranch_scc1 L_nohl
    v_and_b32 {v(BC)}, 7, {v(vLane)}
    v_lshlrev_b32 {v(BC)}, 12, {v(BC)}
    s_mov_b32 {s(sT+10)}, {SLOT}
    s_mov_b64 exec, 0xff
    buffer_load_dwordx4 {v(LNP,4)}, {v(BC)}, {WS}, {s(sT+10)} offen offset:3200 sc1
    s_mov_b64 exec, -1
    L_nohl:
    ''')
    A0,A1=t,t+4; P0,Q0,P1,Q1=t+8,t+12,t+16,t+20
    a(f'''
    s_waitcnt lgkmcnt(0)
    s_barrier
    ;@F
    ds_read_b64_tr_b16 {v(A0,2)}, {v(vYIR)}
    ds_read_b64_tr_b16 {v(A0+2,2)}, {v(vYIR)} offset:{16*YIS}
    ds_read_b64_tr_b16 {v(A1,2)}, {v(vYIR)} offset:8
    ds_read_b64_tr_b16 {v(A1+2,2)}, {v(vYIR)} offset:{16*YIS+8}
    s_add_u32 {s(sTabLd)}, {s(sTabLd)}, {ARGR}
    s_add_u32 {s(sTabSt)}, {s(sTabSt)}, {ARGR}
    s_waitcnt lgkmcnt(2)
    v_mfma_f32_16x16x32_f16 {v(P0,4)}, {v(A0,4)}, {v(YC,4)}, 0
    v_mfma_f32_16x16x32_f16 {v(Q0,4)}, {v(A0,4)}, {v(YS,4)}, 0
    s_waitcnt lgkmcnt(0)
    v_mfma_f32_16x16x32_f16 {v(P1,4)}, {v(A1,4)}, {v(YC,4)}, 0
    v_mfma_f32_16x16x32_f16 {v(Q1,4)}, {v(A1,4)}, {v(YS,4)}, 0
    ''')
    for P_,Q_ in ((P0,Q0),(P1,Q1)):
        for h in (0,2):
            a(f'v_pk_add_f32 {v(P_+h,2)}, {v(P_+h,2)}, {v(Q_+h,2)} op_sel:[0,1] op_sel_hi:[1,0] neg_hi:[0,1]')
    a(f'''
    v_cvt_pk_f16_f32 {v(t)}, {v(P0)}, {v(P0+1)}
    v_cvt_pk_f16_f32 {v(t+1)}, {v(P0+2)}, {v(P0+3)}
    v_cvt_pk_f16_f32 {v(t+2)}, {v(P1)}, {v(P1+1)}
    v_cvt_pk_f16_f32 {v(t+3)}, {v(P1+2)}, {v(P1+3)}
    ds_write_b128 {v(vYW)}, {v(t,4)}
    ;@F
    s_waitcnt lgkmcnt(0)
    s_barrier
    ;@F
    ds_read_b128 {v(t+4,4)}, {v(vYR)}
    s_waitcnt lgkmcnt(0)
    buffer_store_dwordx4 {v(t+4,4)}, {v(vGst)}, {WS}, {s(sG0)} offen sc1
    ''')
    stamp()
    a(f'''
    s_cmp_lg_u32 {s(sIt)}, 0
    s_cbranch_scc1 L_hdr
    v_and_b32 {v(t+24)}, 7, {v(vLane)}
    v_lshlrev_b32 {v(t+24)}, 7, {v(t+24)}
    s_mov_b32 {s(sT+10)}, {TABG}
    v_mov_b32 {v(t+20)}, {s(sTag)}
    ''')
    a(f's_mov_b64 exec, 0xff\nbuffer_load_dword {v(t+20)}, {v(t+24)}, {WS}, {s(sT+10)} offen sc1\ns_mov_b64 exec, -1')
    xin_consts(t+8)
    a(';@F\nL_tg0w:\ns_waitcnt vmcnt(0)')
    a(f'v_cmp_ne_u32 vcc, {s(sTag)}, {v(t+20)}')
    a(f'''
    s_cbranch_vccz L_g ;!nd
    s_branch L_tg0_r
    L_g:
    ''')
    C0,C1=t,t+4
    a(f'''
    buffer_load_dwordx4 {v(C0,4)}, {v(vGld)}, {WS}, {s(sG0)} offen sc1
    buffer_load_dwordx4 {v(C1,4)}, {v(vGld)}, {WS}, {s(sG4)} offen sc1
    L_gw:
    s_cmp_lg_u32 {s(sMir)}, 0
    s_waitcnt vmcnt(0)
    L_gw2:
    s_cbranch_scc1 L_xmir ;!nd
    ''')
    E0,E1=t+8,t+12
    a(f'''
    v_mfma_f32_16x16x16_f16 {v(E0,4)}, {v(XA,2)}, {v(C0,2)}, 0
    v_mfma_f32_16x16x16_f16 {v(E1,4)}, {v(XA,2)}, {v(C0+2,2)}, 0
    v_mfma_f32_16x16x16_f16 {v(E0,4)}, {v(XA+2,2)}, {v(C1,2)}, {v(E0,4)}
    v_mfma_f32_16x16x16_f16 {v(E1,4)}, {v(XA+2,2)}, {v(C1+2,2)}, {v(E1,4)}
    s_branch L_xjoin ;!nd
    L_xmir:
    ''')
    a.hist=[]
    a(f'''
    v_mfma_f32_16x16x16_f16 {v(E0,4)}, {v(XA,2)}, {v(C0+2,2)}, 0
    v_mfma_f32_16x16x16_f16 {v(E1,4)}, {v(XA,2)}, {v(C0,2)}, 0
    v_mfma_f32_16x16x16_f16 {v(E0,4)}, {v(XA+2,2)}, {v(C1+2,2)}, {v(E0,4)}
    v_mfma_f32_16x16x16_f16 {v(E1,4)}, {v(XA+2,2)}, {v(C1,2)}, {v(E1,4)}
    L_xjoin:
    ''')
    maxchk(range(t,t+8), t+16)
    poll_branch('L_g', cfg.slp_g, mask=True)
    stamp()
    a(f'''
    s_mov_b32 {s(sIt)}, 1
    s_add_u32 {s(sG0)}, {s(sG0)}, {GR}
    s_add_u32 {s(sG4)}, {s(sG4)}, {GR}
    L_apply:
    s_cmp_eq_u32 {s(sNx)}, 0
    v_pk_fma_f32 {v(X,2)}, {v(E0,2)}, {v(vSc0,2)}, {v(X,2)}
    v_pk_fma_f32 {v(X+2,2)}, {v(E0+2,2)}, {s(sSc,2)}, {v(X+2,2)}
    v_pk_fma_f32 {v(X+4,2)}, {v(E1,2)}, {s(sSc,2)}, {v(X+4,2)}
    v_pk_fma_f32 {v(X+6,2)}, {v(E1+2,2)}, {s(sSc,2)}, {v(X+6,2)}
    s_cbranch_scc1 L_top ;!nd
    s_branch L_corr
    ''')
    a(f'''
    L_yself:
    buffer_load_dwordx4 {v(t,4)}, {v(vLld)}, {WS}, {s(sLld)} offen sc1
    buffer_load_dwordx4 {v(t+4,4)}, {v(vLldM)}, {WS}, {s(sLld)} offen sc1
    s_waitcnt vmcnt(0)
    ''')
    phchk(range(t,t+8), t+8)
    poll_branch('L_yself', cfg.slp_l, mask=True)
    a(f'''
    s_bitcmp1_b32 {s(sW)}, 0
    s_cbranch_scc1 L_yself4
    ''')
    for k in range(4): a(f'v_pk_add_f16 {v(t+k)}, {v(t+k)}, {v(t+7-k)} neg_hi:[0,1]')
    a(f'ds_write_b128 {v(vYIW)}, {v(t,4)}\ns_branch L_yjoin\nL_yself4:')
    for k in range(4): a(f'v_pk_add_f16 {v(t+k)}, {v(t+k)}, {v(t+7-k)} op_sel:[1,1] op_sel_hi:[0,0] neg_hi:[1,0]')
    a(f'ds_write_b128 {v(vYIW)}, {v(t,4)}\ns_branch L_yjoin')
    a(f'''
    L_s3w:
    v_pk_add_f32 {v(S3,2)}, {v(WV,2)}, {v(WV+2,2)}
    v_add_f32 {v(S3)}, {v(S3)}, {v(S3+1)}
    v_mov_b32 {v(S3+1)}, {v(S3)}
    s_branch L_s3ok
    L_it0:
    s_mov_b32 {s(sKey)}, {s(sXcc)}
    v_pk_mul_f32 {v(CC,2)}, {v(RS,2)}, {s(sC16,2)}
    v_mov_b32 {v(S1)}, 0x44000000
    v_pk_add_f32 {v(WV,2)}, {v(WV,2)}, {v(S3,2)} neg_lo:[0,1] neg_hi:[0,1]
    v_pk_add_f32 {v(WV+2,2)}, {v(WV+2,2)}, {v(S3,2)} neg_lo:[0,1] neg_hi:[0,1]
    v_pk_mul_f32 {v(WV,2)}, {v(WV,2)}, {v(S1,2)} op_sel_hi:[1,0]
    v_pk_mul_f32 {v(WV+2,2)}, {v(WV+2,2)}, {v(S1,2)} op_sel_hi:[1,0]
    ''')
    a('s_branch L_z')
    H=LNP
    sIdx=sT+11
    KA=BC+6; EK=BC+8; vYP=BC+9; SEL=BC+10; vDW,vDR=BC+12,BC+13
    YR=t+8; YL=t+12; YD=t+20
    gl=f'buffer_load_dwordx4 {v(C0,4)}, {v(vGld)}, {WS}, {s(sG0)} offen sc1\nbuffer_load_dwordx4 {v(C1,4)}, {v(vGld)}, {WS}, {s(sG4)} offen sc1'
    def hdrpoll(lbl, slp, issued=False):
        if not issued: a(f"""
        v_and_b32 {v(BC)}, 7, {v(vLane)}
        v_lshlrev_b32 {v(BC)}, 12, {v(BC)}
        """)
        a(f"""
        s_mov_b64 exec, 0xff
        {f's_waitcnt vmcnt(1)' if issued else ''}
        {f's_branch {lbl}_c' if issued else ''}
        {lbl}:
        buffer_load_dwordx4 {v(H,4)}, {v(BC)}, {WS}, {s(sT+10)} offen offset:3200 sc1
        s_waitcnt vmcnt(0)
        {lbl}_c:
        """)
        maxchk(range(H,H+4), t+17)
        poll_branch(lbl, slp, skip=True)
        a(f"""
        s_mov_b64 exec, -1
        v_max_u32_dpp {v(H+3)}, {v(H)}, {v(H)} row_half_mirror {DPP}
        v_max_u32_dpp {v(H+3)}, {v(H+3)}, {v(H+3)} quad_perm:[1,0,3,2] {DPP}
        v_max_u32_dpp {v(H+3)}, {v(H+3)}, {v(H+3)} quad_perm:[2,3,0,1] {DPP}
        v_readfirstlane_b32 {s(sIdx)}, {v(H+3)}
        """)
    def owner():
        a(f"""
        s_sub_u32 {s(sT)}, 2047, {s(sIdx)}
        s_add_u32 {s(sT+1)}, {s(sT)}, 256
        v_cmp_eq_u32 vcc, {s(sT)}, {v(vInv)}
        v_cmp_eq_u32 {s(sT+2,2)}, {s(sT+1)}, {v(vInv)}
        v_cndmask_b32 {v(BC)}, 0, 1.0, vcc
        v_cndmask_b32 {v(BC+1)}, 0, 1.0, {s(sT+2,2)}
        """)
    a(f'L_hdr:')
    hdrpoll('L_hdrp', 2, True)
    a(f"""
    v_and_b32 {v(vYP)}, 0x3ff, {v(vXoff)}
    v_lshlrev_b32 {v(t+16)}, 1, {v(vYP)}
    s_andn2_b32 {s(sIdx)}, {s(sM7FF)}, {s(sIdx)}
    s_and_b32 {s(sT)}, {s(sIdx)}, 7
    s_lshl_b32 {s(sT+1)}, {s(sT)}, 12
    s_add_u32 {s(sT+10)}, {s(sT+10)}, {s(sT+1)}
    buffer_load_dwordx4 {v(BC+2,4)}, {v(t+16)}, {WS}, {s(sT+10)} offen offset:1024 sc1
    v_readlane_b32 {s(sT+13)}, {v(H+1)}, {s(sT)}
    v_readlane_b32 {s(sT+14)}, {v(H+2)}, {s(sT)}
    v_mul_u32_u24 {v(t+17)}, {s(sIdx)}, {v(AD)}
    v_and_b32 {v(t+17)}, 0x7ff, {v(t+17)}
    v_cvt_f32_u32 {v(t+17)}, {v(t+17)}
    v_mul_f32 {v(t+17)}, {fbits(1/2048)}, {v(t+17)}
    v_cos_f32 {v(t+18)}, {v(t+17)}
    v_sin_f32 {v(t+19)}, {v(t+17)}
    v_and_b32 {v(t+17)}, 0x22, {v(vLane)}
    v_cvt_pk_f16_f32 {v(t+18)}, {v(t+18)}, {v(t+19)}
    v_cmp_eq_u32 vcc, 0, {v(t+17)}
    v_mov_b32 {v(KA)}, {s(sT+14)}
    v_mul_f32 {v(KA)}, {s(sC16)}, {v(KA)}
    v_cndmask_b32 {v(AD)}, 0, {v(t+18)}, vcc
    v_cmp_eq_u32 vcc, 2, {v(t+17)}
    v_mul_f32 {v(EK)}, {v(KA)}, {v(KA)}
    v_mul_f32 {v(EK)}, {s(sEps)}, {v(EK)}
    v_cndmask_b32 {v(AD+1)}, 0, {v(t+18)}, vcc
    """)
    owner()
    a(f"""
    v_lshlrev_b32 {v(t+17)}, 4, {v(vLane)}
    v_mov_b32 {v(t+18)}, 0x3f80
    v_and_b32 {v(t+17)}, 16, {v(t+17)}
    v_lshlrev_b32 {v(t+18)}, {v(t+17)}, {v(t+18)}
    v_and_b32 {v(t+17)}, 2, {v(vLane)}
    v_cmp_eq_u32 vcc, 0, {v(t+17)}
    v_lshl_add_u32 {v(vYP)}, {v(vQ)}, 10, {v(vYP)}
    s_lshl_b32 {s(sT+3)}, {s(sW)}, 8
    v_cndmask_b32 {v(SEL)}, 0, {v(t+18)}, vcc
    v_cndmask_b32 {v(SEL+1)}, {v(t+18)}, 0, vcc
    s_add_u32 {s(sT+3)}, {s(sT+3)}, {L_DH}
    v_lshl_add_u32 {v(vDR)}, {v(vN)}, 4, {s(sT+3)}
    v_and_b32 {v(t+17)}, 1, {v(vQ)}
    v_lshl_add_u32 {v(vDR)}, {v(t+17)}, 11, {v(vDR)}
    v_cmp_eq_u32 vcc, 0, {v(vQ)}
    v_add_u32 {v(vDW)}, {L_DH}, {v(vLst)}
    s_mov_b32 {s(sYo)}, {YP}
    s_lshl_b32 {s(sYh)}, {s(sX)}, 7
    s_add_u32 {s(sYh)}, {s(sYh)}, {YHINT}
    s_lshl_b32 {s(sSg)}, {s(sW)}, 30
    s_and_b32 {s(sSg)}, {s(sSg)}, {s(sTop)}
    s_xor_b32 {s(sSg)}, {s(sSg)}, {s(sDsc)}
    s_mov_b32 {s(sNx)}, 2
    v_cndmask_b32 {v(KA+1)}, 0, {v(KA)}, vcc
    s_waitcnt vmcnt(0)
    {gl if not cfg.hold else ''}
    L_basew:
    """)
    maxchk(range(BC+2,BC+6), t+17)
    a('s_cbranch_vccnz L_base_r ;!nd')
    for k in range(4): a(f'v_subrev_f32 {v(BC+2+k)}, {s(sT+13)}, {v(BC+2+k)}')
    for k in range(4): a(f'v_mul_f32 {v(BC+2+k)}, {v(KA)}, {v(BC+2+k)}')
    a(f"""
    s_branch {'L_ywait' if cfg.hold else 'L_gw'}
    L_corr:
    s_mov_b32 {s(sIt)}, 2
    s_mov_b32 {s(sNx)}, 0
    {'s_branch L_yc' if cfg.hold else ''}
    L_ywait:
    s_add_u32 {s(sT+2)}, {s(sYo)}, 4096
    s_cmp_lg_u32 {s(sW)}, 0
    s_cbranch_scc1 L_hintb
    s_movk_i32 {s(sTry)}, 500
    v_lshrrev_b32 {v(t)}, 1, {v(vL8)}
    """)
    if cfg.own: a(f"""
    s_cmp_eq_u32 {s(sIt)}, 3
    s_cbranch_scc1 L_hint
    s_lshl_b32 {s(sT)}, {s(sJ)}, 2
    v_mov_b32 {v(t)}, {s(sT)}
    """)
    a(f"""
    L_hint:
    buffer_load_dword {v(t+1)}, {v(t)}, {WS}, {s(sYh)} offen sc1
    s_waitcnt vmcnt(0)
    v_cmp_ne_u32 vcc, {s(sTag)}, {v(t+1)}
    """)
    poll_branch('L_hint', 1, giveup='L_hintb')
    if cfg.tim_y: a(f's_sleep {cfg.tim_y}')
    a(f"""
    L_hintb:
    s_barrier
    """)
    if cfg.hold: a(f"""
    s_cmp_eq_u32 {s(sIt)}, 3
    s_cbranch_scc1 L_yv3
    {gl}
    {f's_sleep {cfg.tim_gy}' if cfg.tim_gy else ''}
    buffer_load_dwordx2 {v(YD,2)}, {v(vYP)}, {WS}, {s(sYo)} offen sc1
    buffer_load_dwordx2 {v(YD+2,2)}, {v(vYP)}, {WS}, {s(sT+2)} offen sc1
    s_cmp_lg_u32 {s(sMir)}, 0
    s_waitcnt vmcnt(2)
    s_branch L_gw2
    L_yv3:
    {f's_sleep {cfg.tim_y3}' if cfg.tim_y3 else ''}
    s_branch L_yv
    """)
    a(f"""
    L_yv:
    buffer_load_dwordx2 {v(YD,2)}, {v(vYP)}, {WS}, {s(sYo)} offen sc1
    buffer_load_dwordx2 {v(YD+2,2)}, {v(vYP)}, {WS}, {s(sT+2)} offen sc1
    L_yc:
    s_waitcnt vmcnt(0)
    v_mfma_f32_16x16x16_bf16 {v(YR,4)}, {v(SEL,2)}, {v(YD,2)}, 0
    v_mfma_f32_16x16x16_bf16 {v(YR,4)}, {v(SEL,2)}, {v(YD+2,2)}, {v(YR,4)}
    """)
    maxchk(range(YD,YD+4), t+17)
    poll_branch('L_yv', 1, mask=True)
    stamp()
    own=[f'v_pk_fma_f32 {v(X,2)}, {v(BC,2)}, {v(YR,2)}, {v(X,2)} op_sel:[0,0,0] op_sel_hi:[1,0,1]',
         f'v_pk_fma_f32 {v(X+2,2)}, {v(BC,2)}, {v(YR,2)}, {v(X+2,2)} op_sel:[0,1,0] op_sel_hi:[1,1,1]',
         f'v_pk_fma_f32 {v(X+4,2)}, {v(BC,2)}, {v(YR+2,2)}, {v(X+4,2)} op_sel:[0,0,0] op_sel_hi:[1,0,1]',
         f'v_pk_fma_f32 {v(X+6,2)}, {v(BC,2)}, {v(YR+2,2)}, {v(X+6,2)} op_sel:[0,1,0] op_sel_hi:[1,1,1]']
    s1,s2=t+20,t+21
    a(f"""
    s_cmp_eq_u32 {s(sIt)}, 3
    s_cbranch_scc1 L_fin3
    L_pass:
    v_pk_fma_f32 {v(YL,2)}, {v(YR,2)}, {v(KA,2)}, {v(BC+2,2)} op_sel:[0,1,0]
    v_pk_fma_f32 {v(YL+2,2)}, {v(YR+2,2)}, {v(KA,2)}, {v(BC+4,2)} op_sel:[0,1,0]
    v_cvt_pk_f16_f32 {v(YL)}, {v(YL)}, {v(YL+1)}
    v_cvt_pk_f16_f32 {v(YL+1)}, {v(YL+2)}, {v(YL+3)}
    ds_write_b64 {v(vUW)}, {v(YL,2)}
    {own[0]}
    {own[1]}
    {own[2]}
    {own[3]}
    s_cmp_gt_u32 {s(sW)}, 3
    s_waitcnt lgkmcnt(0)
    s_barrier
    s_cbranch_scc1 L_dhb ;!nd
    ds_read_b64_tr_b16 {v(t+8,2)}, {v(vUR)}
    ds_read_b64_tr_b16 {v(t+10,2)}, {v(vUR)} offset:512
    v_mov_b32 {v(t+22)}, 0x3c003c00
    s_waitcnt lgkmcnt(0)
    ;@F
    """)
    XR=t+8; U_=t+12; V_=YC; PP=LNP
    Ur,Ui=U_,U_+4; Vr,Vi=V_,V_+4
    a(f"""
    v_mfma_f32_16x16x32_f16 {v(Ur,4)}, {v(XR,4)}, {v(B1C,4)}, 0
    v_mfma_f32_16x16x32_f16 {v(Ui,4)}, {v(XR,4)}, {v(B1N,4)}, 0
    v_dot2_f32_f16 {v(s1)}, {v(XR)}, {v(t+22)}, 0
    v_dot2_f32_f16 {v(s2)}, {v(XR)}, {v(XR)}, 0
    v_dot2_f32_f16 {v(s1)}, {v(XR+1)}, {v(t+22)}, {v(s1)}
    v_dot2_f32_f16 {v(s2)}, {v(XR+1)}, {v(XR+1)}, {v(s2)}
    v_dot2_f32_f16 {v(s1)}, {v(XR+2)}, {v(t+22)}, {v(s1)}
    v_dot2_f32_f16 {v(s2)}, {v(XR+2)}, {v(XR+2)}, {v(s2)}
    v_dot2_f32_f16 {v(s1)}, {v(XR+3)}, {v(t+22)}, {v(s1)}
    v_dot2_f32_f16 {v(s2)}, {v(XR+3)}, {v(XR+3)}, {v(s2)}
    v_pk_mul_f32 {v(Vi,2)}, {v(Ur,2)}, {v(TWS,2)}
    v_pk_mul_f32 {v(Vi+2,2)}, {v(Ur+2,2)}, {v(TWS+2,2)}
    v_pk_mul_f32 {v(Vr,2)}, {v(Ui,2)}, {v(TWS,2)}
    v_permlane32_swap_b32 {v(s1)}, {v(s2)}
    v_pk_mul_f32 {v(Vr+2,2)}, {v(Ui+2,2)}, {v(TWS+2,2)}
    v_add_f32 {v(s1)}, {v(s1)}, {v(s2)}
    v_pk_fma_f32 {v(Vr,2)}, {v(Ur,2)}, {v(TWC,2)}, {v(Vr,2)}
    v_pk_fma_f32 {v(Vi,2)}, {v(Ui,2)}, {v(TWC,2)}, {v(Vi,2)} neg_lo:[0,0,1] neg_hi:[0,0,1]
    v_add_f32_dpp {v(s1)}, {v(s1)}, {v(s1)} row_ror:8 {DPP}
    v_pk_fma_f32 {v(Vr+2,2)}, {v(Ur+2,2)}, {v(TWC+2,2)}, {v(Vr+2,2)}
    v_pk_fma_f32 {v(Vi+2,2)}, {v(Ui+2,2)}, {v(TWC+2,2)}, {v(Vi+2,2)} neg_lo:[0,0,1] neg_hi:[0,0,1]
    v_add_f32_dpp {v(s1)}, {v(s1)}, {v(s1)} row_ror:4 {DPP}
    v_cvt_pk_f16_f32 {v(PP)}, {v(Vr)}, {v(Vi)}
    v_cvt_pk_f16_f32 {v(PP+1)}, {v(Vr+1)}, {v(Vi+1)}
    v_add_f32_dpp {v(s1)}, {v(s1)}, {v(s1)} row_ror:2 {DPP}
    v_cvt_pk_f16_f32 {v(PP+2)}, {v(Vr+2)}, {v(Vi+2)}
    v_cvt_pk_f16_f32 {v(PP+3)}, {v(Vr+3)}, {v(Vi+3)}
    v_add_f32_dpp {v(s1)}, {v(s1)}, {v(s1)} row_ror:1 {DPP}
    v_mfma_f32_16x16x32_f16 {v(Ur,4)}, {v(A2R,4)}, {v(PP,4)}, 0
    v_mfma_f32_16x16x32_f16 {v(Ui,4)}, {v(A2I,4)}, {v(PP,4)}, 0
    v_add_f32_dpp {v(s1)}, {v(s1)}, {v(s1)} row_bcast:15 row_mask:0xa bank_mask:0xf
    v_mul_f32 {v(s1)}, {s(sK512)}, {v(s1)}
    v_readlane_b32 {s(sT+2)}, {v(s1)}, 63
    v_readlane_b32 {s(sT+1)}, {v(s1)}, 31
    v_add_f32 {v(s2)}, {s(sT+2)}, {v(EK)}
    v_mov_b32 {v(s1)}, {s(sT+1)}
    v_fma_f32 {v(s1)}, -{v(s1)}, {v(s1)}, {v(s2)}
    v_rsq_f32_e64 {v(s1)}, |{v(s1)}|
    v_mul_f32 {v(s1)}, {s(sSg)}, {v(s1)}
    """)
    for k in range(4): a(f'v_pk_mul_f32 {v(U_+2*k,2)}, {v(U_+2*k,2)}, {v(s1,2)} op_sel_hi:[1,0]')
    for r in range(4): a(f'v_cvt_pk_f16_f32 {v(PP+r)}, {v(Ur+r)}, {v(Ui+r)}')
    a(f"""
    ds_write2_b32 {v(vDW)}, {v(PP)}, {v(PP+1)} offset0:0 offset1:32
    ds_write2_b32 {v(vDW)}, {v(PP+2)}, {v(PP+3)} offset0:64 offset1:96
    s_waitcnt lgkmcnt(0)
    L_dhb:
    s_barrier
    ds_read_b128 {v(t+16,4)}, {v(vDR)}
    s_waitcnt lgkmcnt(0)
    v_mfma_f32_16x16x16_f16 {v(E0,4)}, {v(AD,2)}, {v(t+16,2)}, 0
    v_mfma_f32_16x16x16_f16 {v(E1,4)}, {v(AD,2)}, {v(t+18,2)}, 0
    s_nop 4
    s_branch L_apply ;!nd
    """)
    a('L_fin:')
    for rho in (0,1):
        for k in (0,1):
            a(f'v_cvt_pk_bf16_f32 {v(t+2*rho+k)}, {v(X+4*k+rho)}, {v(X+4*k+2+rho)}')
    a(f"""
    v_lshlrev_b32 {v(t+16)}, 1, {v(vQ)}
    v_mov_b32 {v(t+19)}, 0x200000
    s_sub_u32 {s(sT)}, {s(sT+9)}, 1
    v_cmp_eq_u32 vcc, {s(sT+9)}, {v(t+16)}
    v_cmp_eq_u32 {s(sT+2,2)}, {s(sT)}, {v(t+16)}
    v_cndmask_b32 {v(t+17)}, {v(vXoff)}, {v(t+19)}, vcc
    v_cndmask_b32 {v(t+18)}, {v(vXoff)}, {v(t+19)}, {s(sT+2,2)}
    buffer_store_dwordx2 {v(t,2)}, {v(t+17)}, {OS}, {s(sRow0)} offen sc1
    buffer_store_dwordx2 {v(t+2,2)}, {v(t+18)}, {OS}, {s(sRow1)} offen sc1
    v_cndmask_b32 {v(t+24)}, {v(t+19)}, {v(vXoff)}, vcc
    v_cndmask_b32 {v(t+25)}, {v(t+19)}, {v(vXoff)}, {s(sT+2,2)}
    s_or_b32 {s(sT)}, s2, {s(sW)}
    s_cbranch_scc1 L_fin2
    v_mov_b32 {v(t+20)}, {s(sTag)}
    buffer_store_dword {v(t+20)}, off, {WS}, 0 sc1
    L_fin2:
    s_cmp_eq_u32 {s(sT+9)}, 64
    s_cbranch_scc1 L_fin5
    s_mov_b32 {s(sT+10)}, {SLOT+SLOTR}
    s_sleep {cfg.tim_fh}
    """)
    hdrpoll('L_fhdr', 4)
    a(f"""
    s_cmp_lg_u32 {s(sIdx)}, {s(sKey)}
    s_cbranch_scc1 L_fin4
    s_andn2_b32 {s(sIdx)}, {s(sM7FF)}, {s(sIdx)}
    s_mov_b32 {s(sIt)}, 3
    s_add_u32 {s(sYo)}, {s(sYo)}, {YPR}
    s_add_u32 {s(sYh)}, {s(sYh)}, {YHR}
    """)
    owner()
    a('s_branch L_ywait\nL_fin3:')
    a('\n'.join(own))
    for rho in (0,1):
        for k in (0,1):
            a(f'v_cvt_pk_bf16_f32 {v(t+2*rho+k)}, {v(X+4*k+rho)}, {v(X+4*k+2+rho)}')
    a(f"""
    L_fin4:
    buffer_store_dwordx2 {v(t,2)}, {v(t+24)}, {OS}, {s(sRow0)} offen sc1
    buffer_store_dwordx2 {v(t+2,2)}, {v(t+25)}, {OS}, {s(sRow1)} offen sc1
    L_fin5:
    """)
    stamp(); dump_stamps()
    a('s_endpgm')
    a(f"""
    L_base_r:
    s_sub_u32 {s(sCnt)}, {s(sCnt)}, 1
    s_cbranch_scc1 L_end
    s_sleep 2
    buffer_load_dwordx4 {v(BC+2,4)}, {v(t+16)}, {WS}, {s(sT+10)} offen offset:1024 sc1
    s_waitcnt vmcnt(0)
    s_branch L_basew
    """)
    def pub2():
        a(f'''
        v_mov_b32 {v(t+4)}, {s(sTag)}
        v_mov_b32 {v(t+5)}, {s(sXcc)}
        s_add_u32 {s(sT)}, {s(sTabSt)}, {TAB2-TABL}
        buffer_store_dwordx2 {v(t+4,2)}, off, {WS}, {s(sT)} sc1
        ''')
    a(f'''
    L_tabst_slow:
    buffer_store_dwordx2 {v(K,2)}, off, {WS}, {s(sTabSt)} sc1
    s_branch L_tabst_back
    L_tg0_r:
    s_sub_u32 {s(sCnt)}, {s(sCnt)}, 1
    s_cbranch_scc1 L_end
    s_sleep 2
    ''')
    a(f's_mov_b64 exec, 0xff\nbuffer_load_dword {v(t+20)}, {v(t+24)}, {WS}, {s(sT+10)} offen sc1\ns_mov_b64 exec, -1')
    a('s_branch L_tg0w\nL_tab2:')
    pub2()
    a(f'''
    s_add_u32 {s(sT+1)}, {s(sTabLd)}, {TAB2-TABL}
    L_tab2p:
    buffer_load_dwordx2 {v(TB,2)}, {v(vL8)}, {WS}, {s(sTabLd)} offen sc1
    buffer_load_dwordx2 {v(t+6,2)}, {v(vL8)}, {WS}, {s(sT+1)} offen sc1
    s_waitcnt vmcnt(0)
    v_cmp_eq_u32 vcc, {s(sTag)}, {v(TB)}
    v_cndmask_b32 {v(TB)}, {v(t+6)}, {v(TB)}, vcc
    v_cndmask_b32 {v(TB+1)}, {v(t+7)}, {v(TB+1)}, vcc
    v_cmp_ne_u32 vcc, {s(sTag)}, {v(TB)}
    ''')
    poll_branch('L_tab2p', 4)
    a(f'''
    s_branch L_tabok
    L_slow:
    s_cmp_lg_u32 {s(sIt)}, 0
    s_cbranch_scc1 L_slow1
    ''')
    pub2()
    a('L_slow1:')
    lstores('sc1')
    a(f'''
    s_waitcnt vmcnt(0)
    s_barrier
    s_add_u32 {s(sT)}, {s(sTabSt)}, {SLOWF-TABL}
    s_add_u32 {s(sT+1)}, {s(sTabLd)}, {SLOWF-TABL}
    v_mov_b32 {v(t+4)}, {s(sTag)}
    s_cmp_lg_u32 {s(sW)}, 0
    s_cbranch_scc1 L_slowp
    buffer_store_dword {v(t+4)}, off, {WS}, {s(sT)} sc1
    L_slowp:
    buffer_load_dword {v(t+5)}, {v(vL8)}, {WS}, {s(sT+1)} offen sc1
    s_waitcnt vmcnt(0)
    v_cmp_ne_u32 vcc, {s(sTag)}, {v(t+5)}
    ''')
    poll_branch('L_slowp', 2)
    a('s_branch L_slowback')

def hint_store(vreg, soff, lbl):
    a(f'''
    s_mov_b64 exec, 1
    s_cmp_eq_u32 {s(sFast)}, 0
    s_cbranch_scc1 {lbl}_s
    buffer_store_dword {v(vreg)}, off, {WS}, {s(soff)}
    s_branch {lbl}_d
    {lbl}_s:
    buffer_store_dword {v(vreg)}, off, {WS}, {s(soff)} sc1
    {lbl}_d:
    s_mov_b64 exec, -1
    ''')

def ffn():
    WA=4; WD=20; t=40
    vXL=24; vXW=25; vXR=26; vPS=27; vPL=28; vHW=29; vHR=30; vDP=31; vTag=32; vSig=34; vFl=35
    sI=sJ; sRnd=sIt; sPo=sLst; sPs=sLld
    F_W=0; TS=4096+64; F_X=0x4400; F_KEY=0x4D00; F_H=0x4E00; F_D=0x5200; F_WD=0x5400
    a(f"""
    L_ffn:
    s_and_b32 {s(sI)}, {s(sJ)}, 31
    s_min_u32 {s(sT+2)}, {s(sI)}, 27
    s_and_b32 {s(sT)}, {s(sT+2)}, 3
    s_lshl_b32 {s(sT+8)}, {s(sT)}, 8              ; 256*ks
    s_mul_i32 {s(sT+9)}, {s(sT)}, {28*64}
    s_mul_i32 {s(sT)}, {s(sT)}, {128*3584}
    s_mul_i32 {s(sT+1)}, {s(sX)}, 448
    s_add_u32 {s(sT)}, {s(sT)}, {s(sT+1)}
    s_lshr_b32 {s(sT+2)}, {s(sT+2)}, 2
    s_lshl_b32 {s(sT+3)}, {s(sT+2)}, 6
    s_add_u32 {s(sT)}, {s(sT)}, {s(sT+3)}
    v_lshrrev_b32 {v(t+3)}, 2, v0
    v_mul_u32_u24 {v(t)}, 3584, {v(t+3)}
    v_and_b32 {v(t+4)}, 3, v0
    v_lshl_add_u32 {v(t)}, {v(t+4)}, 4, {v(t)}
    v_add_u32 {v(t)}, {s(sT)}, {v(t)}
    s_mul_i32 {s(sT)}, {s(sX)}, {224*1024}
    s_lshl_b32 {s(sT+1)}, {s(sI)}, 5
    s_add_u32 {s(sT)}, {s(sT)}, {s(sT+1)}
    v_lshrrev_b32 {v(t+1)}, 1, v0
    v_min_u32 {v(t+1)}, 223, {v(t+1)}
    v_lshlrev_b32 {v(t+1)}, 10, {v(t+1)}
    v_and_b32 {v(t+2)}, 1, v0
    v_lshl_add_u32 {v(t+1)}, {v(t+2)}, 4, {v(t+1)}
    v_add_u32 {v(t+1)}, {s(sT)}, {v(t+1)}
    s_add_u32 {s(sT+10)}, {s(sTabLd)}, {FTAB-TABL}
    s_waitcnt lgkmcnt(0)
    {f's_sleep {cfg.fdelay}' if cfg.fdelay else ''}
    {f'global_load_dwordx4 {v(T+8,4)}, {v(t)}, s[18:19]' if cfg.wdpos<2 else f'v_mov_b32 {v(T+24)}, {v(t)}'}
    {f'global_load_dwordx4 {v(T+12,4)}, {v(t)}, s[20:21]' if cfg.wdpos<2 else ''}
    {f'global_load_dwordx4 {v(T+16,4)}, {v(t+1)}, s[22:23]' if cfg.wdpos==0 else f'v_mov_b32 {v(T+23)}, {v(t+1)}'}
    buffer_load_dword {v(T+20)}, off, {WS}, 0 sc1
    buffer_load_dword {v(T+21)}, {v(vL8)}, {WS}, {s(sT+10)} offen sc1
    v_mul_u32_u24 {v(T+22)}, {TS}, {v(t+4)}
    v_lshl_add_u32 {v(T+22)}, {v(t+3)}, 5, {v(T+22)}
    v_lshlrev_b32 {v(t+5)}, 4, {v(vN)}
    s_and_b32 {s(sT)}, {s(sW)}, 1
    s_lshl_b32 {s(sT)}, {s(sT)}, 2
    v_add_u32 {v(t+6)}, {s(sT)}, {v(vQ)}
    v_lshl_add_u32 {v(vXL)}, {v(t+6)}, 12, {v(t+5)}
    v_add_u32 {v(vXL)}, {s(sT+8)}, {v(vXL)}
    v_mul_u32_u24 {v(vXW)}, 272, {v(t+6)}
    v_add_u32 {v(vXW)}, {v(vXW)}, {v(t+5)}
    v_and_b32 {v(t+6)}, 7, {v(vLane)}
    v_mul_u32_u24 {v(vXR)}, 272, {v(t+6)}
    v_lshl_add_u32 {v(vXR)}, {v(vQ)}, 4, {v(vXR)}
    s_cmp_lg_u32 {s(sW)}, 6
    s_cbranch_scc1 L_fa1
    v_lshlrev_b32 {v(vXL)}, 12, {v(t+6)}
    L_fa1:
    s_lshl2_add_u32 {s(sT)}, {s(sT+2)}, {s(sW)}
    s_lshl_b32 {s(sT)}, {s(sT)}, 6
    s_add_u32 {s(sT)}, {s(sT)}, {s(sT+9)}
    v_lshl_add_u32 {v(vPS)}, {v(vN)}, 2, {s(sT)}
    s_lshl_b32 {s(sT)}, {s(sW)}, 8
    v_mul_u32_u24 {v(vPL)}, 1792, {v(vQ)}
    v_add3_u32 {v(vPL)}, {v(vPL)}, {v(t+5)}, {s(sT)}
    s_lshl_b32 {s(sT)}, {s(sW)}, 7
    s_add_u32 {s(sT)}, {s(sT)}, {F_H}
    v_lshl_add_u32 {v(vHR)}, {v(vQ)}, 4, {s(sT)}
    v_and_b32 {v(t+6)}, 12, {v(vN)}
    v_lshl_add_u32 {v(vHW)}, {v(t+6)}, 2, {s(sT)}
    v_and_b32 {v(t+6)}, 1, {v(vN)}
    v_lshl_add_u32 {v(vHW)}, {v(t+6)}, 3, {v(vHW)}
    v_and_b32 {v(t+6)}, 2, {v(vN)}
    v_lshl_add_u32 {v(vHW)}, {v(t+6)}, 5, {v(vHW)}
    v_and_b32 {v(t+6)}, 2, {v(vQ)}
    v_add_u32 {v(vHW)}, {v(vHW)}, {v(t+6)}
    v_and_b32 {v(t+6)}, 1, {v(vQ)}
    v_lshl_add_u32 {v(vHW)}, {v(t+6)}, 2, {v(vHW)}
    s_lshl_b32 {s(sT)}, {s(sW)}, 2
    s_add_u32 {s(sT)}, {s(sT)}, {F_D}
    v_lshl_add_u32 {v(vDP)}, {v(vN)}, 5, {s(sT)}
    v_mov_b32 {v(vFl)}, {F_KEY}
    v_mov_b32 {v(vTag)}, 0
    s_mov_b32 {s(sFast)}, 0
    s_mov_b32 {s(sRnd)}, 2
    s_mov_b32 {s(sPo)}, {WSSZ}
    s_mov_b32 {s(sYo)}, {WSSZ}
    s_mov_b32 {s(sYh)}, {WSSZ}
    {'s_branch L_fb2' if cfg.dry else ''}
    L_finit:
    s_mov_b32 {s(sRnd)}, 0
    s_mov_b32 {s(sSlot)}, {SLOT}
    s_lshl_b32 {s(sPo)}, {s(sX)}, 13
    s_add_u32 {s(sPo)}, {s(sPo)}, {PART}
    s_lshl_b32 {s(sYo)}, {s(sX)}, 10
    s_lshl_b32 {s(sT)}, {s(sI)}, 5
    s_add_u32 {s(sYo)}, {s(sYo)}, {s(sT)}
    s_add_u32 {s(sYo)}, {s(sYo)}, {YP}
    s_lshl_b32 {s(sYh)}, {s(sX)}, 7
    s_lshl2_add_u32 {s(sYh)}, {s(sI)}, {s(sYh)}
    s_add_u32 {s(sYh)}, {s(sYh)}, {YHINT}
    s_lshl_b32 {s(sT)}, {s(sW)}, 10
    v_lshl_add_u32 {v(t)}, {v(vLane)}, 4, {s(sT)}
    v_lshl_add_u32 {v(t+1)}, {v(vQ)}, 8, {s(sT)}
    v_lshl_add_u32 {v(t+1)}, {v(vN)}, 3, {v(t+1)}
    s_and_b32 {s(sT)}, {s(sW)}, 3
    s_mul_i32 {s(sT)}, {s(sT)}, {TS}
    v_lshl_add_u32 {v(t+2)}, {v(vQ)}, 8, {s(sT)}
    v_lshl_add_u32 {v(t+2)}, {v(vN)}, 3, {v(t+2)}
    v_mov_b32 {v(vTag+1)}, {s(sXcc)}
    s_lshl3_add_u32 {s(sT+1)}, {s(sI)}, {s(sT+10)}
    s_waitcnt vmcnt(0)
    v_add_u32 {v(vTag)}, 1, {v(T+20)}
    ds_write_b128 {v(T+22)}, {v(T+8,4)}
    ds_write_b128 {v(T+22)}, {v(T+12,4)} offset:16
    {f'ds_write_b128 {v(t)}, {v(T+16,4)} offset:{F_WD}' if cfg.wdpos==0 else ''}
    v_readfirstlane_b32 {s(sTag)}, {v(vTag)}
    s_cmp_lg_u32 {s(sW)}, 0
    s_cbranch_scc1 L_fi1
    s_mov_b64 exec, 1
    buffer_store_dwordx2 {v(vTag,2)}, off, {WS}, {s(sT+1)}
    s_mov_b64 exec, -1
    L_fi1:
    s_waitcnt lgkmcnt(0)
    s_barrier
    """)
    if cfg.stamps: a(f's_mov_b32 {s(sStampI)}, 0')
    stamp()
    for k in range(4):
        a(f'ds_read_b64_tr_b16 {v(WA+4*k,2)}, {v(t+2)} offset:{1024*k}')
        a(f'ds_read_b64_tr_b16 {v(WA+4*k+2,2)}, {v(t+2)} offset:{1024*k+128}')
    a(f"""
    {f'ds_read_b64_tr_b16 {v(WD,2)}, {v(t+1)} offset:{F_WD}' if cfg.wdpos==0 else ''}
    {f'ds_read_b64_tr_b16 {v(WD+2,2)}, {v(t+1)} offset:{F_WD+128}' if cfg.wdpos==0 else ''}
    s_cmp_lg_u32 {s(sW)}, 0
    s_cbranch_scc1 L_fi3
    s_movk_i32 {s(sTry)}, 80
    L_fl:
    buffer_load_dwordx2 {v(t+4,2)}, {v(vL8)}, {WS}, {s(sTabLd)} offen sc1
    buffer_load_dwordx2 {v(t+6,2)}, {v(vL8)}, {WS}, {s(sT+10)} offen sc1
    s_waitcnt vmcnt(0)
    v_cmp_ne_u32 vcc, {s(sTag)}, {v(t+4)}
    v_cmp_ne_u32 {s(sT,2)}, {s(sTag)}, {v(t+6)}
    s_or_b64 vcc, vcc, {s(sT,2)}
    """)
    poll_branch('L_fl', 4, giveup='L_fslowtab', skip=True)
    a(f"""
    v_cmp_ne_u32 vcc, {s(sXcc)}, {v(t+5)}
    v_cmp_ne_u32 {s(sT,2)}, {s(sXcc)}, {v(t+7)}
    s_or_b64 vcc, vcc, {s(sT,2)}
    s_cbranch_vccnz L_fslowtab
    s_mov_b32 {s(sFast)}, 1
    v_and_b32 {v(t+4)}, 1, {v(vQ)}
    v_lshlrev_b32 {v(t+4)}, 16, {v(t+4)}
    v_lshl_add_u32 {v(t+4)}, {v(vN)}, 4, {v(t+4)}
    s_lshl_b32 {s(sT)}, {s(sI)}, 8
    s_add_u32 {s(sT)}, {s(sT)}, {s(sPo)}
    buffer_load_dword {v(t+5)}, {v(t+4)}, {WS}, {s(sT)} offen sc1
    L_fi2:
    v_mov_b32 {v(t+6)}, {s(sFast)}
    ds_write_b32 {v(vFl)}, {v(t+6)} offset:4
    L_fi3:
    s_waitcnt vmcnt(0) lgkmcnt(0)
    s_barrier
    ds_read_b32 {v(t+6)}, {v(vFl)} offset:4
    s_waitcnt lgkmcnt(0)
    v_readfirstlane_b32 {s(sFast)}, {v(t+6)}
    """)
    if cfg.wdpos==2:
        a(f"""
        {f's_sleep {cfg.gdelay}' if cfg.gdelay else ''}
        global_load_dwordx4 {v(T+8,4)}, {v(T+24)}, s[18:19]
        global_load_dwordx4 {v(T+12,4)}, {v(T+24)}, s[20:21]
        global_load_dwordx4 {v(T+16,4)}, {v(T+23)}, s[22:23]
        s_waitcnt vmcnt(0)
        ds_write_b128 {v(T+22)}, {v(T+8,4)}
        ds_write_b128 {v(T+22)}, {v(T+12,4)} offset:16
        ds_write_b128 {v(t)}, {v(T+16,4)} offset:{F_WD}
        s_waitcnt lgkmcnt(0)
        s_barrier
        """)
        for k in range(4):
            a(f'ds_read_b64_tr_b16 {v(WA+4*k,2)}, {v(t+2)} offset:{1024*k}')
            a(f'ds_read_b64_tr_b16 {v(WA+4*k+2,2)}, {v(t+2)} offset:{1024*k+128}')
        a(f"""
        ds_read_b64_tr_b16 {v(WD,2)}, {v(t+1)} offset:{F_WD}
        ds_read_b64_tr_b16 {v(WD+2,2)}, {v(t+1)} offset:{F_WD+128}
        s_waitcnt lgkmcnt(0)
        """)
    if cfg.wdpos==1: a(f"""
    {f's_sleep {cfg.gdelay}' if cfg.gdelay else ''}
    global_load_dwordx4 {v(T+16,4)}, {v(T+23)}, s[22:23]
    s_waitcnt vmcnt(0)
    ds_write_b128 {v(t)}, {v(T+16,4)} offset:{F_WD}
    ds_read_b64_tr_b16 {v(WD,2)}, {v(t+1)} offset:{F_WD}
    ds_read_b64_tr_b16 {v(WD+2,2)}, {v(t+1)} offset:{F_WD+128}
    s_waitcnt lgkmcnt(0)
    """)
    a(f"""
    L_frnd:
    s_add_u32 {s(sTabLd)}, {s(sTabLd)}, {ARGR}
    s_cmp_lg_u32 {s(sW)}, 0
    s_cbranch_scc1 L_fb1
    s_cmp_eq_u32 {s(sFast)}, 0
    s_cbranch_scc1 L_fb1
    L_ftrig:
    buffer_load_dword {v(t)}, {v(vL8)}, {WS}, {s(sTabLd)} offen sc1
    s_waitcnt vmcnt(0)
    v_cmp_ne_u32 vcc, {s(sTag)}, {v(t)}
    """)
    poll_branch('L_ftrig', cfg.slp_f)
    stamp()
    a(f"""
    s_sleep {cfg.tim_arg}
    L_fb1:
    s_sub_u32 {s(sT)}, {s(sW)}, 4
    s_cmp_lt_u32 {s(sT)}, 2
    s_barrier
    s_cbranch_scc1 L_fx
    s_cmp_lg_u32 {s(sW)}, 6
    s_cbranch_scc1 L_fb2
    s_mov_b64 exec, 0xff
    L_fhd:
    buffer_load_dword {v(t)}, {v(vXL)}, {WS}, {s(sSlot)} offen offset:3072 sc1
    s_waitcnt vmcnt(0)
    v_cmp_eq_u32 vcc, -1, {v(t)}
    """)
    poll_branch('L_fhd', 2, skip=True)
    a(f"""
    v_max_u32_dpp {v(t)}, {v(t)}, {v(t)} row_half_mirror {DPP}
    v_max_u32_dpp {v(t)}, {v(t)}, {v(t)} quad_perm:[1,0,3,2] {DPP}
    v_max_u32_dpp {v(t)}, {v(t)}, {v(t)} quad_perm:[2,3,0,1] {DPP}
    ds_write_b32 {v(vFl)}, {v(t)}
    s_mov_b64 exec, -1
    s_branch L_fb2
    L_fx:
    buffer_load_dwordx4 {v(t,4)}, {v(vXL)}, {WS}, {s(sSlot)} offen sc1
    s_waitcnt vmcnt(0)
    ds_write_b128 {v(vXW)}, {v(t,4)} offset:{F_X}
    """)
    maxchk(range(t,t+4), t+4)
    poll_branch('L_fx', 2, mask=True)
    Dd=t+16
    a(f"""
    L_fb2:
    s_cmp_gt_u32 {s(sW)}, 3
    s_waitcnt lgkmcnt(0)
    s_barrier
    s_cbranch_scc1 L_fnoa
    ds_read_b32 {v(t+20)}, {v(vFl)}
    """)
    for k in range(4): a(f'ds_read_b128 {v(t+4*k,4)}, {v(vXR)} offset:{F_X+64*k}')
    stamp()
    a(f"""
    s_cmp_lt_u32 {s(sI)}, 28
    s_cselect_b32 {s(sPs)}, {s(sPo)}, {WSSZ}
    s_waitcnt lgkmcnt(3)
    v_mfma_f32_16x16x32_bf16 {v(Dd,4)}, {v(t,4)}, {v(WA,4)}, 0
    v_readfirstlane_b32 {s(sKey)}, {v(t+20)}
    s_waitcnt lgkmcnt(2)
    v_mfma_f32_16x16x32_bf16 {v(Dd,4)}, {v(t+4,4)}, {v(WA+4,4)}, {v(Dd,4)}
    s_bitcmp0_b32 {s(sKey)}, 0
    s_cselect_b64 vcc, -1, 0
    s_waitcnt lgkmcnt(1)
    v_mfma_f32_16x16x32_bf16 {v(Dd,4)}, {v(t+8,4)}, {v(WA+8,4)}, {v(Dd,4)}
    s_bitcmp0_b32 {s(sKey)}, 1
    s_cselect_b64 {s(sT+2,2)}, -1, 0
    s_waitcnt lgkmcnt(0)
    v_mfma_f32_16x16x32_bf16 {v(Dd,4)}, {v(t+12,4)}, {v(WA+12,4)}, {v(Dd,4)}
    s_andn2_b32 {s(sT)}, 4, {s(sKey)}
    s_lshl_b32 {s(sT)}, {s(sT)}, 2
    s_bfm_b64 exec, 16, {s(sT)}
    s_cmp_eq_u32 {s(sFast)}, 0
    v_cndmask_b32 {v(Dd)}, {v(Dd)}, {v(Dd+1)}, vcc
    v_cndmask_b32 {v(Dd+2)}, {v(Dd+2)}, {v(Dd+3)}, vcc
    v_cndmask_b32 {v(Dd)}, {v(Dd)}, {v(Dd+2)}, {s(sT+2,2)}
    s_cbranch_scc1 L_fps_s ;!nd
    buffer_store_dword {v(Dd)}, {v(vPS)}, {WS}, {s(sPs)} offen
    L_fps_d:
    s_mov_b64 exec, -1
    s_cmp_eq_u32 {s(sRnd)}, 2
    s_cbranch_scc1 L_fpok
    s_waitcnt vmcnt(0)
    s_branch L_fp
    L_fps_s:
    buffer_store_dword {v(Dd)}, {v(vPS)}, {WS}, {s(sPs)} offen sc1
    s_branch L_fps_d
    L_fnoa:
    s_cmp_eq_u32 {s(sW)}, 7
    s_cbranch_scc1 L_f7
    s_cmp_eq_u32 {s(sRnd)}, 2
    s_cbranch_scc1 L_fpok
    s_sleep {cfg.tim_p}
    s_branch L_fp
    L_fp:
    buffer_load_dwordx4 {v(t,4)}, {v(vPL)}, {WS}, {s(sPo)} offen sc1
    s_waitcnt vmcnt(0)
    """)
    maxchk(range(t,t+4), t+4)
    poll_branch('L_fp', cfg.slp_p, mask=True)
    stamp()
    a(f"""
    L_fpok:
    v_permlane32_swap_b32 {v(t)}, {v(t+1)}
    v_permlane32_swap_b32 {v(t+2)}, {v(t+3)}
    v_add_f32 {v(t)}, {v(t)}, {v(t+1)}
    v_add_f32 {v(t+2)}, {v(t+2)}, {v(t+3)}
    v_permlane16_swap_b32 {v(t)}, {v(t+2)}
    v_add_f32 {v(t)}, {v(t)}, {v(t+2)}
    v_mul_f32 {v(t+1)}, 0xbfb8aa3b, {v(t)}
    v_exp_f32 {v(t+1)}, {v(t+1)}
    v_mul_f32_dpp {v(t+2)}, {v(t)}, {v(t)} quad_perm:[2,3,0,1] {DPP}
    v_add_f32 {v(t+1)}, 1.0, {v(t+1)}
    v_rcp_f32 {v(t+1)}, {v(t+1)}
    v_mul_f32 {v(t+1)}, {v(t+1)}, {v(t+2)}
    v_cvt_pk_bf16_f32 {v(t+1)}, {v(t+1)}, {v(t+1)}
    ds_write_b16 {v(vHW)}, {v(t+1)}
    ds_read_b128 {v(t+4,4)}, {v(vHR)}
    """)
    if cfg.eh:
        a(f's_cmp_lg_u32 {s(sW)}, 5\ns_cbranch_scc1 L_fyh_d')
        hint_store(vTag, sYh, 'L_fyh')
    a(f"""
    s_waitcnt lgkmcnt(0)
    v_mfma_f32_16x16x32_bf16 {v(t+8,4)}, {v(t+4,4)}, {v(WD,4)}, 0
    s_mov_b64 exec, 0xffff
    ds_write_b32 {v(vDP)}, {v(t+8)}
    s_mov_b64 exec, -1
    s_waitcnt lgkmcnt(0)
    s_barrier
    L_fnext:
    """)
    stamp()
    a(f"""
    s_cmp_eq_u32 {s(sRnd)}, 1
    s_cbranch_scc1 L_fend
    s_cmp_eq_u32 {s(sRnd)}, 2
    s_cbranch_scc1 L_finit
    """)
    if cfg.wb==1: a(f"""
    s_cmp_lg_u32 {s(sI)}, 28
    s_cbranch_scc1 L_nwb
    s_cmp_lg_u32 {s(sW)}, 3
    s_cbranch_scc1 L_nwb
    s_sleep {cfg.wbd}
    buffer_wbl2 sc1
    L_nwb:
    """)
    a(f"""
    s_mov_b32 {s(sRnd)}, 1
    s_add_u32 {s(sSlot)}, {s(sSlot)}, {SLOTR}
    s_add_u32 {s(sPo)}, {s(sPo)}, {PARTR}
    s_add_u32 {s(sYo)}, {s(sYo)}, {YPR}
    s_add_u32 {s(sYh)}, {s(sYh)}, {YHR}
    s_branch L_frnd
    L_f7:
    ds_read_b32 {v(t+20)}, {v(vFl)}
    v_mov_b32 {v(vSig)}, 0xbfb8aa3b
    v_add_u32 {v(t+8)}, -28, {v(vDP)}
    v_lshlrev_b32 {v(t+9)}, 1, {v(vN)}
    s_waitcnt lgkmcnt(0)
    v_readfirstlane_b32 {s(sKey)}, {v(t+20)}
    s_ashr_i32 {s(sT)}, {s(sKey)}, 31
    s_orn2_b32 {s(sT)}, 0x80000000, {s(sT)}
    s_xor_b32 {s(sT)}, {s(sT)}, {s(sKey)}
    v_mul_f32 {v(vSig)}, {s(sT)}, {v(vSig)}
    v_exp_f32 {v(vSig)}, {v(vSig)}
    v_add_f32 {v(vSig)}, 1.0, {v(vSig)}
    v_rcp_f32 {v(vSig)}, {v(vSig)}
    s_barrier
    ds_read_b128 {v(t,4)}, {v(t+8)}
    ds_read_b96 {v(t+4,3)}, {v(t+8)} offset:16
    s_waitcnt lgkmcnt(1)
    v_pk_add_f32 {v(t,2)}, {v(t,2)}, {v(t+2,2)}
    v_add_f32 {v(t)}, {v(t)}, {v(t+1)}
    s_waitcnt lgkmcnt(0)
    v_add_f32 {v(t+4)}, {v(t+4)}, {v(t+5)}
    v_add_f32 {v(t)}, {v(t)}, {v(t+6)}
    v_add_f32 {v(t)}, {v(t)}, {v(t+4)}
    v_mul_f32 {v(t)}, {v(t)}, {v(vSig)}
    v_mov_b32_dpp {v(t+1)}, {v(t)} quad_perm:[1,1,3,3] {DPP}
    s_mov_b64 exec, 0x5555
    v_cvt_pk_bf16_f32 {v(t)}, {v(t)}, {v(t+1)}
    buffer_store_dword {v(t)}, {v(t+9)}, {WS}, {s(sYo)} offen sc1
    """)
    if cfg.eh: a('s_mov_b64 exec, -1')
    else: hint_store(vTag, sYh, 'L_fyh')
    a(f"""
    s_branch L_fnext
    L_fslowtab:
    v_and_b32 {v(t+16)}, 7, {v(vLane)}
    v_lshlrev_b32 {v(t+16)}, 7, {v(t+16)}
    s_mov_b32 {s(sT+10)}, {TABG}
    L_ftab2:
    buffer_load_dword {v(t+4)}, {v(t+16)}, {WS}, {s(sT+10)} offen sc1
    s_waitcnt vmcnt(0)
    v_cmp_ne_u32 vcc, {s(sTag)}, {v(t+4)}
    """)
    poll_branch('L_ftab2', 8)
    a('s_branch L_fi2\nL_fend:')
    dump_stamps()
    a('s_endpgm')

def build():
    hdr=open('ref.txt').read().split('; @launch')[0]
    a.raw(hdr+f'; @launch grid=({NWG},1,1) block=(512,1,1) lds={LDS_TOTAL}')
    a.raw(f'''; generated by gen/gen.py (hand-written generator): persistent FFT-structured FNet + MoD kernel
.amdgcn_target "amdgcn-amd-amdhsa--gfx950"
.text
.globl {NAME}_kernel
.p2align 8
.type {NAME}_kernel,@function
{NAME}_kernel:''')
    if cfg.st0: a(f's_memrealtime s[88:89]\ns_waitcnt lgkmcnt(0)')
    a(f'''
    s_load_dwordx2 s[12:13], s[0:1], 0
    s_load_dwordx2 s[8:9], s[0:1], 96
    s_load_dwordx8 s[16:23], s[0:1], 48
    v_and_b32 {v(vN)}, 15, v0
    v_bfe_u32 {v(vQ)}, v0, 4, 2
    v_lshrrev_b32 v2, 6, v0
    v_lshlrev_b32 {v(vUW)}, 7, v2
    v_lshl_add_u32 {v(vUW)}, {v(vN)}, 3, {v(vUW)}                ; 128w+8n
    v_lshl_add_u32 {v(vXoff)}, {v(vQ)}, 19, {v(vUW)}
    s_lshl_b32 {s(sRow0)}, s2, 10
    s_add_u32 {s(sRow1)}, {s(sRow0)}, 0x40000
    s_mov_b32 s14, 0x200000
    s_mov_b32 s15, 0x20000
    v_readfirstlane_b32 {s(sW)}, v2
    ''')
    if cfg.codepf: a(f'''
    s_getpc_b64 {s(sT+6,2)}
    L_pc:
    v_lshlrev_b32 v3, 5, v0
    v_min_u32 v3, L_end-L_pc, v3
    {f'global_load_dword {v(vTG)}, v3, {s(sT+6,2)}' if cfg.codepf==1 else ''}
    ''')
    a(f'''
    s_cmp_ge_u32 s2, 256
    s_cbranch_scc1 L_nox ;!nd
    s_waitcnt lgkmcnt(0)
    buffer_load_dwordx2 {v(BC,2)}, {v(vXoff)}, {XS}, {s(sRow0)} offen
    buffer_load_dwordx2 {v(BC+2,2)}, {v(vXoff)}, {XS}, {s(sRow1)} offen
    L_nox:
    {f'global_load_dword {v(vTG)}, v3, {s(sT+6,2)}' if cfg.codepf==2 else ''}
    s_cmp_ge_u32 s2, {NWG}
    s_cbranch_scc1 L_end
    s_load_dwordx2 s[28:29], s[0:1], 80
    v_and_b32 {v(vLane)}, 63, v0
    s_mov_b32 s10, {WSSZ}
    s_mov_b32 s11, 0x20000
    s_mov_b32 s30, 0x200000
    s_mov_b32 s31, 0x20000
    s_and_b32 {s(sX)}, s2, 7
    s_lshr_b32 {s(sJ)}, s2, 3
    v_mov_b32 {v(SENT)}, -1
    v_mov_b32 {v(SENT+1)}, -1
    v_mov_b32 {v(SENT+2)}, -1
    v_mov_b32 {v(SENT+3)}, -1
    v_lshlrev_b32 {v(vL8)}, 3, v0
    v_and_b32 {v(vL8)}, 0xf8, {v(vL8)}
    s_mov_b32 {s(sCnt)}, 200000
    s_mov_b32 {s(sM7FF)}, 0x7ff
    s_lshl_b32 {s(sTabLd)}, {s(sX)}, 8
    s_add_u32 {s(sTabLd)}, {s(sTabLd)}, {TABL}
    s_getreg_b32 {s(sXcc)}, hwreg(HW_REG_XCC_ID, 0, 4)
    ''')
    if cfg.force_slow: a(f's_mov_b32 {s(sXcc)}, {s(sJ)}')
    if cfg.stamps:
        a(f's_mov_b32 {s(sStampI)}, 0\nv_mov_b32 {v(vSTMP)}, 0')
        a(f's_memrealtime {s(sTS,2)}\ns_memtime {s(sTS+2,2)}\ns_waitcnt lgkmcnt(0)\nv_writelane_b32 {v(vSTMP)}, {s(sTS)}, 63\nv_writelane_b32 {v(vSTMP)}, {s(sTS+2)}, 62')
        if cfg.st0: a(f'v_writelane_b32 {v(vSTMP)}, {s(sTS)}, 58\nv_writelane_b32 {v(vSTMP)}, s88, 63\ns_memrealtime {s(sTS,2)}\ns_waitcnt lgkmcnt(0)\nv_writelane_b32 {v(vSTMP)}, {s(sTS)}, 59')
    a('''s_cmp_ge_u32 s2, 256
    s_cbranch_scc1 L_ffn''')
    if cfg.prio: a(f's_setprio 2\ns_cmp_gt_u32 {s(sW)}, 1\ns_cbranch_scc1 L_np\ns_setprio 3\nL_np:')
    main_prologue()
    main_loop()
    ffn()
    a('L_end:\ns_endpgm')
    a.raw(f'''.section .rodata,"a"
.p2align 6
.amdhsa_kernel {NAME}_kernel
  .amdhsa_next_free_vgpr 128
  .amdhsa_next_free_sgpr 96
  .amdhsa_accum_offset 128
  .amdhsa_group_segment_fixed_size 0
  .amdhsa_kernarg_size 104
  .amdhsa_user_sgpr_count 2
  .amdhsa_user_sgpr_kernarg_segment_ptr 1
  .amdhsa_system_sgpr_workgroup_id_x 1
.end_amdhsa_kernel''')
    return a.text()
if __name__=='__main__':
    out=sys.argv[1]
    for kv in sys.argv[2:]:
        k,val=kv.split('='); assert hasattr(cfg,k); setattr(cfg,k,int(val))
    open(out,'w').write(build())
    print('instrs',a.count,'nops',a.nops)
```

```python
import sys, struct
from asmlib import Asm
NAME='interleave_layers__spectral_fnet__moe_arch_mod__prompt'
def fbits(x): return '0x%08x' % struct.unpack('<I', struct.pack('<f', x))[0]

class Cfg:
    stamps=0
    tim_arg=16
    tim_y=0
    tim_h=0
    slp_g=2
    slp_l=1
    force_slow=0
    prio=1
    codepf=1
    exp=0
    wsoff=0
    st0=0
    cal=-1
    calwg=0
    dbgout=0
    dry=1
    wb=0
    fdelay=20
    gdelay=18
    osc=1
    odel=0
    pfm=7
    clr2=0
    nb0=0
    ehint=0
    post=0
    slp_t=0
    aft=0
    g2pos=0
    tim_fh=12
    wdpos=0
    slp_p=1
    tim_p=8
    hold=1
    tim_gy=12
    eh=1
    own=1
    tim_y3=8
    beh=1
    gbb=0
    slp_f=2
    early=4
    tim_a0=0
    wbd=12
    gbdelay=4
    late=1
    split=0
    tch=1
cfg=Cfg()

TABG=0x1000; TABGR=0x6000
TABL=0x2000; ARGR=0x800
TAB2=0x3800
SLOWF=0x4000
YHINT=0x5000; YHR=0x400
FTAB=0x6000
CLR0=0x8000
YP=0x8000; YPR=0x2000
PART=0x20000; PARTR=0x10000
SLOT=0x10000; SLOTR=0x8000
LBASE=0x40000; PS=8448; LX=32*PS
GBASE=0x260000; GS=262144+768; GR=0x210000
STAMP=0x700000
WSSZ=0x800000
NWG=512
NST=(13,9,7)
L_STAT=0; L_U=0x400; L_YI=0x2400; YIS=320; L_YT=0x4C00; L_DH=0x6E00; L_FLAG=0x7E00; LDS_TOTAL=0x7E80
L_CX=0x2400
def v(a,n=1): return f'v{a}' if n==1 else f'v[{a}:{a+n-1}]'
def s(a,n=1): return f's{a}' if n==1 else f's[{a}:{a+n-1}]'

WS='s[8:11]'; XS='s[12:15]'; OS='s[28:31]'
sW=3; sX=26; sJ=27; sIt=32; sTag=33; sFast=34; sKey=35; sMir=36; sDsc=38
sLst=39; sLld=40; sPh=41; sTabG=42; sG0=43; sG4=44; sTabSt=45; sTabLd=46; sSlot=47; sRow0=48; sRow1=49; sCnt=50
sXcc=51; sStampI=37
sK512=52
sTry=53
sEps=54
sC16=56
sSc=58
sM7FF=60; sTop=61
sQmask=62
sT=64
sNx=84; sSg=85; sYo=86; sYh=87
sTS=80
X=2; WV=10; A8=14; XA=16; B1C=20; B1S=24; B1N=28; TWC=32; TWS=36; A2R=40; A2I=44; YC=48; YS=52
AD=56; BC=58
vXoff=72; vStW=73; vStR=74; vUW=75; vUR=76; vLst=77; vLld=78; vLldM=79; vYIW=80; vYIR=81; vYW=82; vYR=83; vGst=84; vGld=85
vSc0=86; vL8=88; vInv=89; vN=90; vQ=91; vSTMP=1; vLane=92; vTG=93
LNP=94; MM=98; RS2=100
T=102
class Asm2(Asm):
    def __call__(self, text):
        parts=text.split(';@F')
        for i,p in enumerate(parts):
            if i: fstamp()
            Asm.__call__(self,p)
a=Asm2()
def poll_branch(lbl, sleep=1, pre='', giveup=None, skip=False, mask=False):
    k=a.lines.index(lbl+':')
    if mask:
        pre+='\ns_mov_b64 exec, vcc'; skip=True
        k2=next(i for i in range(k,len(a.lines)) if 's_waitcnt vmcnt(0)' in a.lines[i])
        k3=max(i for i in range(k,k2) if 'buffer_load' in a.lines[i])
        a.lines.insert(k3+1,'    s_mov_b64 exec, -1')
    if a.lines[k-1].strip().startswith(('s_branch','s_endpgm')): skip=False
    a(f's_cbranch_vccnz {lbl}_r ;!nd')
    st=[]
    if skip: st.append(f'    s_branch {lbl}')
    st.append(f'{lbl}_r:')
    if giveup: st+= [f'    s_sub_u32 {s(sTry)}, {s(sTry)}, 1', f'    s_cbranch_scc1 {giveup}']
    else: st+= [f'    s_sub_u32 {s(sCnt)}, {s(sCnt)}, 1', '    s_cbranch_scc1 L_end']
    st+= ['    '+x.strip() for x in pre.split('\n') if x.strip()]
    if sleep: st.append(f'    s_sleep {sleep}')
    a.lines[k:k]=st
def fstamp():
    if cfg.stamps>=2: stamp()
def stamp():
    if not cfg.stamps: return
    a(f'''{'s_memtime' if cfg.stamps==2 else 's_memrealtime'} {s(sTS,2)}
    s_waitcnt lgkmcnt(0)
    s_mov_b32 m0, {s(sStampI)}
    s_add_u32 {s(sStampI)}, {s(sStampI)}, 1
    v_writelane_b32 {v(vSTMP)}, {s(sTS)}, m0''')
def dump_stamps():
    if not cfg.stamps: return
    a(f's_memrealtime {s(sTS,2)}\ns_memtime {s(sTS+2,2)}\ns_waitcnt lgkmcnt(0)\nv_writelane_b32 {v(vSTMP)}, {s(sTS)}, 61\nv_writelane_b32 {v(vSTMP)}, {s(sTS+2)}, 60')
    if cfg.cal>=0:
        lab='L_cal%d'%len(a.lines)
        a(f'''s_cmp_lg_u32 s2, {cfg.calwg}
        s_cbranch_scc1 {lab}
        s_cmp_lg_u32 {s(sW)}, 0
        s_cbranch_scc1 {lab}
        v_readlane_b32 {s(sT)}, {v(vSTMP)}, {cfg.cal}
        v_readlane_b32 {s(sT+1)}, {v(vSTMP)}, 63
        s_sub_u32 {s(sT)}, {s(sT)}, {s(sT+1)}
        s_lshl_b32 {s(sT)}, {s(sT)}, 2
        s_add_u32 {s(sT)}, {s(sT)}, 3000
        s_min_u32 {s(sT)}, {s(sT)}, 50000
        {lab}_l:
        s_memrealtime {s(sTS,2)}
        s_waitcnt lgkmcnt(0)
        s_sub_u32 {s(sT+2)}, {s(sTS)}, {s(sT+1)}
        s_cmp_lt_u32 {s(sT+2)}, {s(sT)}
        s_cbranch_scc1 {lab}_l
        {lab}:''')
    a(f'''s_lshl_b32 {s(sT)}, s2, 11
    s_lshl_b32 {s(sT+1)}, {s(sW)}, 8
    s_add_u32 {s(sT)}, {s(sT)}, {s(sT+1)}
    s_add_u32 {s(sT)}, {s(sT)}, {STAMP}
    v_lshlrev_b32 {v(vLane)}, 2, {v(vLane)}
    buffer_store_dword {v(vSTMP)}, {v(vLane)}, {WS}, {s(sT)} offen''')
def maxchk(regs, t):
    regs=list(regs)
    a(f'v_max3_u32 {v(t)}, {v(regs[0])}, {v(regs[1])}, {v(regs[2])}')
    rest=regs[3:]
    while len(rest)>=2:
        a(f'v_max3_u32 {v(t)}, {v(t)}, {v(rest[0])}, {v(rest[1])}'); rest=rest[2:]
    if rest: a(f'v_max_u32 {v(t)}, {v(t)}, {v(rest[0])}')
    a(f'v_cmp_eq_u32 vcc, -1, {v(t)}')
def phchk(regs, t):
    regs=list(regs)
    a(f'v_bitop3_b32 {v(t)}, {v(regs[0])}, {v(regs[1])}, {s(sPh)} bitop3:0x7e')
    for r in regs[2:]: a(f'v_bitop3_b32 {v(t)}, {v(t)}, {v(r)}, {s(sPh)} bitop3:0xf6')
    a(f'v_and_b32 {v(t)}, 1, {v(t)}\nv_cmp_ne_u32 vcc, 0, {v(t)}')
def tag4chk(r):
    for k in range(4): a(f'v_xor_b32 {v(r+k)}, {s(sTag)}, {v(r+k)}')
    a(f'v_or3_b32 {v(r)}, {v(r)}, {v(r+1)}, {v(r+2)}\nv_or_b32 {v(r)}, {v(r)}, {v(r+3)}\nv_cmp_ne_u32 vcc, 0, {v(r)}')
DPP='row_mask:0xf bank_mask:0xf'

def fft_core(xr, xi, U, V, F, P, fill1='', fill2=''):
    Ur,Ui=U,U+4
    a(f'v_mfma_f32_16x16x32_f16 {v(Ur,4)}, {v(xr,4)}, {v(B1C,4)}, 0')
    a(f'v_mfma_f32_16x16x32_f16 {v(Ui,4)}, {v(xr,4)}, {v(B1N,4)}, 0')
    if xi is not None:
        a(f'v_mfma_f32_16x16x32_f16 {v(Ur,4)}, {v(xi,4)}, {v(B1S,4)}, {v(Ur,4)}')
        a(f'v_mfma_f32_16x16x32_f16 {v(Ui,4)}, {v(xi,4)}, {v(B1C,4)}, {v(Ui,4)}')
    a(fill1)
    Vr,Vi=V,V+4
    for h in (0,2):
        a(f'v_pk_mul_f32 {v(Vi+h,2)}, {v(Ur+h,2)}, {v(TWS+h,2)}')
    for h in (0,2):
        a(f'v_pk_mul_f32 {v(Vr+h,2)}, {v(Ui+h,2)}, {v(TWS+h,2)}')
    for h in (0,2):
        a(f'v_pk_fma_f32 {v(Vr+h,2)}, {v(Ur+h,2)}, {v(TWC+h,2)}, {v(Vr+h,2)}')
        a(f'v_pk_fma_f32 {v(Vi+h,2)}, {v(Ui+h,2)}, {v(TWC+h,2)}, {v(Vi+h,2)} neg_lo:[0,0,1] neg_hi:[0,0,1]')
    for r in range(4): a(f'v_cvt_pk_f16_f32 {v(P+r)}, {v(Vr+r)}, {v(Vi+r)}')
    a(f'v_mfma_f32_16x16x32_f16 {v(F,4)}, {v(A2R,4)}, {v(P,4)}, 0')
    a(f'v_mfma_f32_16x16x32_f16 {v(F+4,4)}, {v(A2I,4)}, {v(P,4)}, 0')
    a(fill2)
    for r in range(4): a(f'v_cvt_pk_f16_f32 {v(P+r)}, {v(F+r)}, {v(F+4+r)}')

SENT=T+4

def main_prologue():
    t=T
    X0=BC
    a(f'''
    s_mul_i32 {s(sLld)}, {s(sX)}, {LX}
    s_add_u32 {s(sLld)}, {s(sLld)}, {LBASE}
    s_mul_i32 {s(sLst)}, {s(sJ)}, {PS}
    s_add_u32 {s(sLst)}, {s(sLst)}, {s(sLld)}
    v_lshlrev_b32 {v(t)}, 4, v0
    v_lshrrev_b32 {v(t+1)}, 4, v0
    global_load_dwordx2 {v(X0+4,2)}, {v(vUW)}, s[16:17]
    buffer_load_dword {v(X0+6)}, off, {WS}, 0 sc1
    ''')
    tabt=f'buffer_load_dword {v(X0+7)}, {v(vL8)}, {WS}, {s(sTabLd)} offen sc1'
    ltch=f'buffer_load_dwordx4 {v(X0+8,4)}, {v(t)}, {WS}, {s(sLst) if not cfg.exp&1 else "s10"} offen sc1'
    lclr=f'buffer_store_dwordx4 {v(SENT,4)}, {v(t)}, {WS}, {s(sLst)} offen'
    if cfg.tch==0: a(tabt+'\n'+ltch+'\n'+lclr)
    if cfg.tch==1 and not cfg.aft&1: a(tabt+'\n'+ltch)
    if cfg.tch==2: a(tabt+'\n'+lclr+'\n'+ltch)
    if cfg.tch==3: a(ltch.replace(' sc1','')+'\n'+ltch.replace(' sc1','')+'\n'+lclr)
    a(f'''
    s_mov_b32 {s(sG0)}, {GBASE}
    s_mul_i32 {s(sT)}, {s(sX)}, {GS}
    s_add_u32 {s(sT+2)}, {s(sJ)}, 24
    s_and_b32 {s(sT+2)}, {s(sT+2)}, 24
    s_lshl_b32 {s(sT+2)}, {s(sT+2)}, 13
    s_add_u32 {s(sT)}, {s(sT)}, {s(sT+2)}
    s_and_b32 {s(sT+2)}, {s(sJ)}, 7
    s_cmp_lt_u32 {s(sJ)}, 8
    s_cselect_b32 {s(sT+3)}, 7, 8
    s_cselect_b32 {s(sT+4)}, 112, 0
    s_lshl_b32 {s(sT+2)}, {s(sT+2)}, {s(sT+3)}
    s_add_u32 {s(sT)}, {s(sT)}, {s(sT+2)}
    v_lshlrev_b32 {v(t+2)}, 4, {v(vN)}
    v_lshl_add_u32 {v(vGst)}, {v(t+1)}, 11, {v(t+2)}
    v_and_b32 {v(t+3)}, 8, {v(vN)}
    v_mad_u32_u24 {v(vGst)}, {v(t+3)}, {s(sT+4)}, {v(vGst)}
    v_add_u32 {v(vGst)}, {s(sT)}, {v(vGst)}
    s_lshl_b32 {s(sT+15)}, s2, 13
    s_sub_u32 {s(sT+14)}, s2, 4
    s_cmp_lt_u32 {s(sT+14)}, 28
    s_cselect_b32 {s(sT+15)}, {s(sT+15)}, {WSSZ}
    ''')
    clrs=f'''buffer_store_dwordx4 {v(SENT,4)}, {v(vGst)}, {WS}, {s(sG0)} offen sc1
    buffer_store_dwordx4 {v(SENT,4)}, {v(t)}, {WS}, {s(sT+15)} offen sc1'''
    g2c=f's_mov_b32 {s(sT+14)}, {GBASE+GR}\nbuffer_store_dwordx4 {v(SENT,4)}, {v(vGst)}, {WS}, {s(sT+14)} offen sc1'
    if not cfg.aft&2: a(clrs)
    if cfg.g2pos==0: a(g2c)
    c=t+8; co,si=c+8,c+12
    a(f'''
    s_lshr_b32 {s(sT)}, {s(sJ)}, 2
    s_and_b32 {s(sT)}, {s(sT)}, 6                 ; 2*(j>>3)
    s_lshl_b32 {s(sT+1)}, {s(sW)}, 2
    s_and_b32 {s(sT+1)}, {s(sT+1)}, 8             ; 2*4*((w>>1)&1)
    s_cmp_lt_u32 {s(sJ)}, 8
    s_cselect_b32 {s(sT)}, {s(sT+1)}, {s(sT)}
    s_lshl_b32 {s(sT+1)}, {s(sW)}, 4
    s_and_b32 {s(sT+1)}, {s(sT+1)}, 16            ; 16*(w&1)
    s_cmp_ge_u32 {s(sW)}, 4
    s_cselect_b32 {s(sT+2)}, {s(sT+1)}, 0         ; 16k
    s_cselect_b32 {s(sT)}, {s(sT)}, 0
    s_cmp_eq_u32 {s(sW)}, 3
    s_cselect_b32 {s(sT)}, 16, {s(sT)}
    s_lshl_b32 {s(sT+3)}, {s(sW)}, 2
    s_lshr_b32 {s(sT+3)}, 0x44440054, {s(sT+3)}
    s_and_b32 {s(sT+3)}, {s(sT+3)}, 15            ; log2 A
    v_lshlrev_b32 {v(c)}, {s(sT+3)}, {v(vN)}
    v_add_u32 {v(c)}, {s(sT)}, {v(c)}
    v_lshl_add_u32 {v(c+1)}, {v(vQ)}, 2, {s(sT+2)}
    v_cvt_f32_u32 {v(c)}, {v(c)}
    v_cvt_f32_u32 {v(c+1)}, {v(c+1)}
    s_mov_b32 {s(sK512)}, {fbits(1/512)}
    v_mul_f32 {v(c)}, {s(sK512)}, {v(c)}
    v_mul_f32 {v(c+4)}, {v(c+1)}, {v(c)}
    v_add_f32 {v(c+5)}, {v(c+4)}, {v(c)}
    v_add_f32 {v(c+6)}, {v(c+5)}, {v(c)}
    v_add_f32 {v(c+7)}, {v(c+6)}, {v(c)}
    ''')
    fill=[f's_mov_b32 {s(sEps)}, {fbits(1e-5)}', f's_mov_b32 {s(sEps+1)}, {fbits(1e-5)}', f's_mov_b32 {s(sC16)}, {fbits(1/16)}', f's_mov_b32 {s(sC16+1)}, {fbits(1/16)}',
          f's_mov_b32 {s(sTop)}, 0x80000000', f's_mov_b32 {s(sQmask)}, 0x11111111', f's_mov_b32 {s(sQmask+1)}, 0x11111111', f's_mov_b32 {s(sG4)}, {GBASE+4*GS}']
    for r in range(4):
        a(f'v_cos_f32 {v(co+r)}, {v(c+4+r)}'); a(fill[2*r])
        a(f'v_sin_f32 {v(si+r)}, {v(c+4+r)}'); a(fill[2*r+1])
    a(f'''
    s_lshl_b32 {s(sT)}, {s(sW)}, 11
    s_add_u32 {s(sT)}, {s(sT)}, {L_CX}
    v_lshlrev_b32 {v(c+2)}, 4, {v(vLane)}
    v_add_u32 {v(c+3)}, {s(sT)}, {v(c+2)}
    s_and_b32 {s(sT)}, {s(sW)}, 6
    s_cmp_eq_u32 {s(sT)}, 2
    s_cbranch_scc1 L_cw
    s_cmp_eq_u32 {s(sW)}, 1
    s_cbranch_scc1 L_cri
    v_cvt_pk_f16_f32 {v(co)}, {v(co)}, {v(co+1)}
    v_cvt_pk_f16_f32 {v(co+1)}, {v(co+2)}, {v(co+3)}
    v_cvt_pk_f16_f32 {v(co+2)}, {v(si)}, {v(si+1)}
    v_cvt_pk_f16_f32 {v(co+3)}, {v(si+2)}, {v(si+3)}
    s_branch L_cw
    L_cri:
    ''')
    for r in range(4):
        a(f'v_cvt_pk_f16_f32 {v(c+4)}, {v(co+r)}, {v(si+r)}')
        a(f'v_cvt_pk_f16_f32 {v(si+r)}, -{v(si+r)}, {v(co+r)}')
        a(f'v_mov_b32 {v(co+r)}, {v(c+4)}')
    a(f'''
    L_cw:
    ds_write_b128 {v(c+3)}, {v(co,4)}
    ds_write_b128 {v(c+3)}, {v(si,4)} offset:1024
    v_lshrrev_b32 {v(c+4)}, 2, {v(vN)}
    v_and_b32 {v(c+5)}, 2, {v(vN)}
    v_and_b32 {v(c+6)}, 14, {v(vN)}
    v_cmp_eq_u32 vcc, 2, {v(c+6)}
    v_mul_u32_u24 {v(vYIR)}, {YIS}, {v(c+4)}
    v_lshlrev_b32 {v(vStR)}, 8, {v(vQ)}
    v_cndmask_b32 {v(c+4)}, {v(c+4)}, 4, vcc
    v_cndmask_b32 {v(c+5)}, {v(c+5)}, 0, vcc
    v_mul_u32_u24 {v(c+6)}, {v(c+4)}, {v(vQ)}
    v_lshl_add_u32 {v(c+6)}, {v(c+6)}, 1, {v(c+5)}
    v_add_u32 {v(c+7)}, {v(c+6)}, {v(c+4)}
    v_cvt_f32_u32 {v(c+6)}, {v(c+6)}
    v_cvt_f32_u32 {v(c+7)}, {v(c+7)}
    v_mul_f32 {v(c+6)}, 0x3e000000, {v(c+6)}
    v_mul_f32 {v(c+7)}, 0x3e000000, {v(c+7)}
    v_cos_f32 {v(c+6)}, {v(c+6)}
    v_cos_f32 {v(c+7)}, {v(c+7)}
    v_and_b32 {v(c+5)}, 1, {v(vN)}
    v_cmp_eq_u32 vcc, 0, {v(c+5)}
    v_cvt_pk_f16_f32 {v(c+6)}, {v(c+6)}, {v(c+7)}
    v_mov_b32 {v(c+5)}, 0x80008000
    v_cndmask_b32 {v(A8)}, 0, {v(c+6)}, vcc
    v_cndmask_b32 {v(A8+1)}, {v(c+6)}, 0, vcc
    v_cndmask_b32 {v(c+5)}, {v(c+5)}, 0, vcc
    s_lshl_b32 {s(sT+1)}, {s(sT+1)}, 7            ; h*2048
    v_add_u32 {v(c+6)}, {s(sT+1)}, {v(c+2)}
    s_lshl_b32 {s(sT+2)}, {s(sW)}, 11
    s_and_b32 {s(sT+2)}, {s(sT+2)}, 4096          ; ((w>>1)&1)*4096
    v_add_u32 {v(c+7)}, {s(sT+2)}, {v(c+2)}
    s_waitcnt lgkmcnt(0)
    s_barrier
    ds_read_b128 {v(B1N,4)}, {v(c+2)} offset:{L_CX}
    ds_read_b128 {v(co,4)}, {v(c+7)} offset:{L_CX+4*2048}
    ds_read_b128 {v(si,4)}, {v(c+7)} offset:{L_CX+5*2048}
    ds_read_b128 {v(A2R,4)}, {v(c+2)} offset:{L_CX+2048}
    ds_read_b128 {v(A2I,4)}, {v(c+2)} offset:{L_CX+2048+1024}
    ds_read_b128 {v(TWC,4)}, {v(c+6)} offset:{L_CX+4096}
    ds_read_b128 {v(TWS,4)}, {v(c+6)} offset:{L_CX+4096+1024}
    v_and_b32 {v(c+4)}, 4, {v(vN)}
    s_lshl_b32 {s(sT)}, {s(sW)}, 2
    v_lshl_add_u32 {v(vStW)}, {v(t+3)}, 2, {v(vStR)}
    v_lshl_add_u32 {v(vStW)}, {v(c+4)}, 4, {v(vStW)}
    v_add_u32 {v(vStW)}, {s(sT)}, {v(vStW)}
    v_and_b32 {v(c+4)}, 7, {v(vN)}
    v_lshl_add_u32 {v(vStR)}, {v(c+4)}, 5, {v(vStR)}
    v_lshl_add_u32 {v(vUW)}, {v(vQ)}, 11, {v(vUW)}
    v_add_u32 {v(vUW)}, {L_U}, {v(vUW)}
    s_lshr_b32 {s(sT)}, {s(sW)}, 1
    s_lshl_b32 {s(sT)}, {s(sT)}, 11
    s_add_u32 {s(sT+2)}, {s(sT)}, {L_U}
    v_lshl_add_u32 {v(vUR)}, {v(vLane)}, 3, {s(sT+2)}
    ; vLst = w'*2048 + 512q + 64h + 4n
    s_lshr_b32 {s(sT+2)}, {s(sT+1)}, 5
    s_add_u32 {s(sT)}, {s(sT)}, {s(sT+2)}
    v_lshl_add_u32 {v(vLst)}, {v(vQ)}, 9, {s(sT)}
    v_lshl_add_u32 {v(vLst)}, {v(vN)}, 2, {v(vLst)}
    s_lshl_b32 {s(sT)}, {s(sJ)}, 3
    s_add_u32 {s(sTabSt)}, {s(sTabLd)}, {s(sT)}
    s_lshl_b32 {s(sT+3)}, {s(sW)}, 31             ; h sign
    s_lshl_b32 {s(sT+4)}, {s(sW)}, 29
    s_and_b32 {s(sT+4)}, {s(sT+4)}, {s(sTop)}
    s_mov_b32 {s(sT+5)}, 0x80008000
    s_mov_b32 {s(sIt)}, 0
    s_mov_b32 {s(sFast)}, 1
    s_mov_b32 {s(sPh)}, 0
    s_mov_b32 {s(sNx)}, 0
    s_mov_b32 {s(sSlot)}, {WSSZ}
    s_xor_b32 {s(sT+12)}, {s(sJ)}, 9
    s_or_b32 {s(sT+12)}, {s(sT+12)}, {s(sW)}
    s_mov_b32 {s(sTry)}, 64
    s_waitcnt lgkmcnt(4)
    v_xor_b32 {v(B1C)}, {s(sT+3)}, {v(B1N)}
    v_xor_b32 {v(B1C+1)}, {s(sT+3)}, {v(B1N+1)}
    v_xor_b32 {v(B1S)}, {s(sT+3)}, {v(B1N+2)}
    v_xor_b32 {v(B1S+1)}, {s(sT+3)}, {v(B1N+3)}
    v_xor_b32 {v(B1C+2)}, {v(B1C)}, {v(c+5)}
    v_xor_b32 {v(B1C+3)}, {v(B1C+1)}, {v(c+5)}
    v_xor_b32 {v(B1S+2)}, {v(B1S)}, {v(c+5)}
    v_xor_b32 {v(B1S+3)}, {v(B1S+1)}, {v(c+5)}
    ''')
    for r in range(4): a(f'v_xor_b32 {v(B1N+r)}, {s(sT+5)}, {v(B1S+r)}')
    for k,src in ((0,co),(1,si)):
        for r in range(2):
            a(f'v_xor_b32 {v(YC+2*k+r)}, {s(sT+4)}, {v(src+r)}')
            a(f'v_xor_b32 {v(YS+2*k+r)}, {s(sT+4)}, {v(src+2+r)}')
    a(f'''
    s_and_b32 {s(sT+1)}, {s(sW)}, 3
    s_lshl_b32 {s(sT+1)}, {s(sT+1)}, 6            ; 64cb
    s_lshr_b32 {s(sT)}, {s(sW)}, 2
    s_mul_i32 {s(sT)}, {s(sT)}, {16*272}
    s_add_u32 {s(sT)}, {s(sT)}, {s(sT+1)}
    s_add_u32 {s(sT)}, {s(sT)}, {L_YT}
    v_mul_u32_u24 {v(vYW)}, 272, {v(vN)}
    v_lshl_add_u32 {v(vYW)}, {v(vQ)}, 4, {v(vYW)}
    v_add_u32 {v(vYW)}, {s(sT)}, {v(vYW)}
    v_mul_u32_u24 {v(vYR)}, 272, {v(t+1)}
    v_add_u32 {v(vYR)}, {v(vYR)}, {v(t+2)}
    v_add_u32 {v(vYR)}, {L_YT}, {v(vYR)}
    s_add_u32 {s(sT+1)}, {s(sT+1)}, {L_YI}
    v_mul_u32_u24 {v(c+4)}, {4*YIS}, {v(vQ)}
    v_and_b32 {v(c+6)}, 0x30, {v(t+2)}
    v_add3_u32 {v(vYIR)}, {v(vYIR)}, {v(c+4)}, {v(c+6)}
    v_add_u32 {v(vYIR)}, {s(sT+1)}, {v(vYIR)}
    s_cmp_lt_u32 {s(sJ)}, 8
    s_cbranch_scc1 L_aself
    v_mul_u32_u24 {v(vLld)}, {PS}, {v(t+1)}
    v_mul_u32_u24 {v(vYIW)}, {YIS}, {v(t+1)}
    s_lshl_b32 {s(sT)}, {s(sJ)}, 8
    v_add3_u32 {v(vLld)}, {v(vLld)}, {v(t+2)}, {s(sT)}
    v_add_u32 {v(vYIW)}, {v(vYIW)}, {v(t+2)}
    v_mov_b32 {v(vLldM)}, 0
    s_branch L_adone
    L_aself:
    ; s2=(w>>1)*8+(l>>3), u=l&7, which=w&1
    s_lshl_b32 {s(sT)}, {s(sW)}, 2
    s_and_b32 {s(sT)}, {s(sT)}, 24
    v_lshrrev_b32 {v(c+4)}, 3, {v(vLane)}
    v_add_u32 {v(c+4)}, {s(sT)}, {v(c+4)}
    v_and_b32 {v(c+6)}, 0x70, {v(t+2)}
    v_mul_u32_u24 {v(vLldM)}, {PS}, {v(c+4)}
    v_mul_u32_u24 {v(vYIW)}, {YIS}, {v(c+4)}
    s_lshl_b32 {s(sT)}, {s(sJ)}, 7
    s_add_u32 {s(sT+1)}, {s(sT)}, 4
    s_sub_u32 {s(sT)}, {508*4}, {s(sT)}
    v_add3_u32 {v(vLld)}, {v(vLldM)}, {v(c+6)}, {s(sT+1)}
    v_sub_u32 {v(vLldM)}, {v(vLldM)}, {v(c+6)}
    v_add_u32 {v(vLldM)}, {s(sT)}, {v(vLldM)}
    s_lshr_b32 {s(sT)}, {s(sT+3)}, 24
    v_add3_u32 {v(vYIW)}, {v(vYIW)}, {v(c+6)}, {s(sT)}
    L_adone:
    v_add_u32 {v(vYIW)}, {L_YI}, {v(vYIW)}
    s_waitcnt vmcnt({(0 if cfg.aft&1 else 2)+(0 if cfg.aft&2 else 2)+(1 if cfg.g2pos==0 else 0)})
    {tabt if cfg.aft&1 else ''}
    {ltch if cfg.aft&1 else ''}
    {clrs if cfg.aft&2 else ''}
    {g2c if cfg.g2pos==1 else ''}
    v_readfirstlane_b32 {s(sTag)}, {v(X0+6)}
    ''')
    for rho in (0,1):
        for k in (0,1):
            src=X0+2*rho+k
            a(f'v_lshlrev_b32 {v(X+4*k+rho)}, 16, {v(src)}')
            a(f'v_and_b32 {v(X+4*k+2+rho)}, 0xffff0000, {v(src)}')
    for k in (0,1):
        a(f'v_lshlrev_b32 {v(WV+2*k)}, 16, {v(X0+4+k)}')
        a(f'v_and_b32 {v(WV+2*k+1)}, 0xffff0000, {v(X0+4+k)}')
    a(f's_add_u32 {s(sTag)}, {s(sTag)}, 1')

def xin_consts(c):
    a(f'''
    s_and_b32 {s(sT)}, {s(sX)}, 3                ; 0 => self
    s_lshr_b32 {s(sT+1)}, {s(sW)}, 2
    s_lshr_b32 {s(sT+2)}, {s(sX)}, 2
    s_mov_b32 {s(sSc)}, {fbits(16.0)}
    s_cmp_eq_u32 {s(sT)}, 0
    s_cselect_b32 {s(sMir)}, {s(sT+1)}, {s(sT+2)}
    s_cselect_b32 {s(sSc)}, {fbits(8.0)}, {s(sSc)}
    s_cselect_b32 {s(sDsc)}, {fbits(1/8)}, {s(sC16)}
    s_cselect_b32 {s(sT+3)}, -4, 0
    s_mov_b32 {s(sSc+1)}, {s(sSc)}
    s_sub_u32 {s(sT+4)}, 256, s2
    s_and_b32 {s(sT+4)}, {s(sT+4)}, 255
    s_cmp_eq_u32 {s(sMir)}, 0
    s_cselect_b32 {s(sT+4)}, s2, {s(sT+4)}       ; source g
    s_cselect_b32 {s(sT+5)}, 16, -16
    s_cselect_b32 {s(sT+6)}, 0, {509*4}
    s_cselect_b32 {s(sT+7)}, 1.0, -1.0
    s_add_u32 {s(sT+3)}, {s(sT+3)}, {s(sT+6)}
    s_mul_i32 {s(sT+6)}, {s(sT+5)}, {s(sW)}
    s_lshl_b32 {s(sT+6)}, {s(sT+6)}, 4
    s_add_u32 {s(sT+3)}, {s(sT+3)}, {s(sT+6)}
    s_lshr_b32 {s(sT+6)}, {s(sT+4)}, 3
    s_lshl_b32 {s(sT+6)}, {s(sT+6)}, 11
    s_add_u32 {s(sT+3)}, {s(sT+3)}, {s(sT+6)}
    s_add_u32 {s(sT+6)}, {s(sT+4)}, 3
    s_and_b32 {s(sT+6)}, {s(sT+6)}, 3
    s_lshl_b32 {s(sT+6)}, {s(sT+6)}, 16
    s_add_u32 {s(sT+3)}, {s(sT+3)}, {s(sT+6)}
    s_and_b32 {s(sT+6)}, {s(sT+4)}, 4
    s_lshl_b32 {s(sT+6)}, {s(sT+6)}, 8
    s_add_u32 {s(sT+3)}, {s(sT+3)}, {s(sT+6)}
    v_mul_i32_i24 {v(vGld)}, {s(sT+5)}, {v(vN)}
    v_mul_u32_u24 {v(c+4)}, {GS}, {v(vQ)}
    v_add3_u32 {v(vGld)}, {v(vGld)}, {v(c+4)}, {s(sT+3)}
    v_lshrrev_b32 {v(c+4)}, 1, {v(vN)}
    v_and_b32 {v(c+4)}, 6, {v(c+4)}
    v_and_or_b32 {v(c+4)}, {v(vN)}, 1, {v(c+4)}
    v_lshl_add_u32 {v(AD)}, {v(c+4)}, 8, s2
    v_cvt_f32_u32 {v(c+4)}, {v(AD)}
    v_cvt_f32_u32 {v(c+5)}, {v(vQ)}
    v_mul_f32 {v(c+4)}, {fbits(1/2048)}, {v(c+4)}
    v_mul_f32 {v(c+4)}, {s(sT+7)}, {v(c+4)}
    v_mul_f32 {v(c+5)}, {v(c+4)}, {v(c+5)}
    v_fma_f32 {v(c+6)}, {v(c+4)}, 4.0, {v(c+5)}
    v_cos_f32 {v(c+7)}, {v(c+5)}
    v_sin_f32 {v(c+8)}, {v(c+5)}
    v_cos_f32 {v(c+9)}, {v(c+6)}
    v_sin_f32 {v(c+10)}, {v(c+6)}
    v_bfe_u32 {v(c+4)}, {v(vN)}, 1, 1
    v_cmp_eq_u32 vcc, {s(sMir)}, {v(c+4)}
    v_cvt_pk_f16_f32 {v(c+7)}, {v(c+7)}, {v(c+8)}
    v_cvt_pk_f16_f32 {v(c+9)}, {v(c+9)}, {v(c+10)}
    v_cndmask_b32 {v(XA)}, 0, {v(c+7)}, vcc
    v_cndmask_b32 {v(XA+1)}, {v(c+7)}, 0, vcc
    v_cndmask_b32 {v(XA+2)}, 0, {v(c+9)}, vcc
    v_cndmask_b32 {v(XA+3)}, {v(c+9)}, 0, vcc
    v_and_b32 {v(c+4)}, 0x1cf, v0
    v_cmp_eq_u32 vcc, 0, {v(c+4)}
    v_mov_b32 {v(c+5)}, {s(sSc)}
    s_sub_u32 {s(sT)}, 2047, s2
    v_lshlrev_b32 {v(vInv)}, 9, {v(vQ)}
    v_cndmask_b32 {v(vSc0)}, {v(c+5)}, 0, vcc
    v_cndmask_b32 {v(vSc0+1)}, {v(c+5)}, 0, vcc
    v_sub_u32 {v(vInv)}, {s(sT)}, {v(vInv)}
    s_lshl_b32 {s(sSlot)}, {s(sX)}, 12
    s_add_u32 {s(sSlot)}, {s(sSlot)}, {SLOT}
    s_mov_b32 {s(sPh)}, -1
    ''')

def main_loop():
    t=T
    S1,S2,S3=t,t+2,t+4
    a('L_top:')
    stamp()
    a(f'''
    v_pk_add_f32 {v(S1,2)}, {v(X,2)}, {v(X+2,2)}
    v_pk_add_f32 {v(t+6,2)}, {v(X+4,2)}, {v(X+6,2)}
    v_pk_mul_f32 {v(S2,2)}, {v(X,2)}, {v(X,2)}
    v_pk_mul_f32 {v(S3,2)}, {v(X,2)}, {v(WV,2)} op_sel:[0,0] op_sel_hi:[1,0]
    v_pk_add_f32 {v(S1,2)}, {v(S1,2)}, {v(t+6,2)}
    v_pk_fma_f32 {v(S2,2)}, {v(X+2,2)}, {v(X+2,2)}, {v(S2,2)}
    v_pk_fma_f32 {v(S3,2)}, {v(X+2,2)}, {v(WV,2)}, {v(S3,2)} op_sel:[0,1,0] op_sel_hi:[1,1,1]
    v_add_f32_dpp {v(S1)}, {v(S1)}, {v(S1)} row_ror:8 row_mask:0xf bank_mask:0x3
    v_pk_fma_f32 {v(S2,2)}, {v(X+4,2)}, {v(X+4,2)}, {v(S2,2)}
    v_pk_fma_f32 {v(S3,2)}, {v(X+4,2)}, {v(WV+2,2)}, {v(S3,2)} op_sel:[0,0,0] op_sel_hi:[1,0,1]
    v_add_f32_dpp {v(S1)}, {v(S1+1)}, {v(S1+1)} row_ror:8 row_mask:0xf bank_mask:0xc
    v_pk_fma_f32 {v(S2,2)}, {v(X+6,2)}, {v(X+6,2)}, {v(S2,2)}
    v_pk_fma_f32 {v(S3,2)}, {v(X+6,2)}, {v(WV+2,2)}, {v(S3,2)} op_sel:[0,1,0] op_sel_hi:[1,1,1]
    s_cmp_eq_u32 {s(sIt)}, 0
    s_cbranch_scc1 L_s3w
    L_s3ok:
    v_add_f32_dpp {v(S1)}, {v(S1)}, {v(S1)} row_half_mirror row_mask:0xf bank_mask:0x5
    v_add_f32_dpp {v(S2)}, {v(S2)}, {v(S2)} row_ror:8 row_mask:0xf bank_mask:0x3
    v_add_f32_dpp {v(S3)}, {v(S3)}, {v(S3)} row_ror:8 row_mask:0xf bank_mask:0x3
    v_add_f32_dpp {v(S2)}, {v(S2+1)}, {v(S2+1)} row_ror:8 row_mask:0xf bank_mask:0xc
    v_add_f32_dpp {v(S3)}, {v(S3+1)}, {v(S3+1)} row_ror:8 row_mask:0xf bank_mask:0xc
    v_add_f32_dpp {v(S1)}, {v(S2)}, {v(S2)} row_half_mirror row_mask:0xf bank_mask:0xa
    v_add_f32_dpp {v(S3)}, {v(S3)}, {v(S3)} row_half_mirror {DPP}
    v_add_f32_dpp {v(S1)}, {v(S1)}, {v(S1)} quad_perm:[1,0,3,2] {DPP}
    v_add_f32_dpp {v(S3)}, {v(S3)}, {v(S3)} quad_perm:[1,0,3,2] {DPP}
    v_add_f32_dpp {v(S1)}, {v(S1)}, {v(S1)} quad_perm:[2,3,0,1] {DPP}
    v_add_f32_dpp {v(S3)}, {v(S3)}, {v(S3)} quad_perm:[2,3,0,1] {DPP}
    s_mov_b64 exec, {s(sQmask,2)}
    ds_write2_b32 {v(vStW)}, {v(S1)}, {v(S3)} offset0:0 offset1:32
    s_mov_b64 exec, -1
    ;@F
    s_waitcnt {'' if cfg.late else 'vmcnt(0)' if cfg.tch==1 else 'vmcnt(2)'} lgkmcnt(0)
    s_barrier
    ;@F
    ds_read_b128 {v(t,4)}, {v(vStR)}
    ds_read_b128 {v(t+4,4)}, {v(vStR)} offset:16
    s_waitcnt lgkmcnt(0)
    v_pk_add_f32 {v(t,2)}, {v(t,2)}, {v(t+2,2)}
    v_pk_add_f32 {v(t+4,2)}, {v(t+4,2)}, {v(t+6,2)}
    v_pk_add_f32 {v(t,2)}, {v(t,2)}, {v(t+4,2)}
    v_add_f32 {v(t)}, {v(t)}, {v(t+1)}
    v_mul_f32 {v(t+7)}, {s(sK512)}, {v(t)}
    ''')
    VAR,RS,CC,NM=t+8,t+10,t+12,t+14
    K=t+16
    a(f'''
    v_mov_b32_dpp {v(MM)}, {v(t+7)} row_newbcast:0 {DPP}
    v_mov_b32_dpp {v(MM+1)}, {v(t+7)} row_newbcast:1 {DPP}
    v_mov_b32_dpp {v(S2)}, {v(t+7)} row_newbcast:2 {DPP}
    v_mov_b32_dpp {v(S2+1)}, {v(t+7)} row_newbcast:3 {DPP}
    v_mov_b32_dpp {v(S3)}, {v(t+7)} row_newbcast:4 {DPP}
    v_pk_fma_f32 {v(VAR,2)}, {v(MM,2)}, {v(MM,2)}, {v(S2,2)} neg_lo:[1,0,0] neg_hi:[1,0,0]
    v_mov_b32_dpp {v(S3+1)}, {v(t+7)} row_newbcast:5 {DPP}
    v_pk_add_f32 {v(S1,2)}, {v(VAR,2)}, {s(sEps,2)}
    s_cmp_eq_u32 {s(sIt)}, 0
    v_rsq_f32_e64 {v(RS)}, |{v(S1)}|
    v_rsq_f32_e64 {v(RS+1)}, |{v(S1+1)}|
    s_cbranch_scc1 L_it0 ;!nd
    v_pk_mul_f32 {v(S3,2)}, {v(S3,2)}, {v(RS,2)}
    v_add_u32 {v(K+2)}, 0xffffff00, {v(vInv)}
    v_ashrrev_i32 {v(K)}, 31, {v(S3)}
    v_ashrrev_i32 {v(K+1)}, 31, {v(S3+1)}
    v_bitop3_b32 {v(K)}, {v(S3)}, {v(K)}, {s(sTop)} bitop3:0x1e
    v_bitop3_b32 {v(K+1)}, {v(S3+1)}, {v(K+1)}, {s(sTop)} bitop3:0x1e
    v_bfi_b32 {v(K)}, {s(sM7FF)}, {v(vInv)}, {v(K)}
    v_bfi_b32 {v(K+1)}, {s(sM7FF)}, {v(K+2)}, {v(K+1)}
    v_max_u32 {v(K+1)}, {v(K)}, {v(K+1)}
    v_pk_add_f32 {v(CC,2)}, {v(RS,2)}, 1.0 op_sel_hi:[1,0]
    v_mov_b32 {v(K)}, {s(sTag)}
    v_max_u32_dpp {v(K+1)}, {v(K+1)}, {v(K+1)} row_bcast:15 row_mask:0xa bank_mask:0xf
    v_pk_mul_f32 {v(VAR,2)}, {v(VAR,2)}, {v(CC,2)}
    s_cmp_lg_u32 {s(sW)}, 0
    v_max_u32_dpp {v(K+1)}, {v(K+1)}, {v(K+1)} row_bcast:31 row_mask:0xc bank_mask:0xf
    s_cbranch_scc1 L_nost ;!nd
    s_mov_b32 exec_lo, 0
    s_mov_b32 exec_hi, {s(sTop)}
    s_cmp_eq_u32 {s(sFast)}, 0
    s_cbranch_scc1 L_tabst_slow ;!nd
    buffer_store_dwordx2 {v(K,2)}, off, {WS}, {s(sTabSt)}
    L_tabst_back:
    s_mov_b64 exec, -1
    L_nost:
    v_readlane_b32 {s(sKey)}, {v(K+1)}, 63
    v_pk_mul_f32 {v(NM,2)}, {v(MM,2)}, {v(RS,2)}
    v_pk_fma_f32 {v(VAR,2)}, {v(VAR,2)}, {v(CC,2)}, {s(sEps,2)}
    ''')
    Z=t+18
    for c_ in range(4):
        a(f'v_pk_fma_f32 {v(Z+2*c_,2)}, {v(X+2*c_,2)}, {v(RS,2)}, {v(NM,2)} neg_lo:[0,0,1] neg_hi:[0,0,1]')
        if c_==0: a(f'v_rsq_f32_e64 {v(RS2)}, |{v(VAR)}|')
        if c_==1: a(f'v_rsq_f32_e64 {v(RS2+1)}, |{v(VAR+1)}|')
    for c_ in range(4):
        a(f'v_pk_add_f32 {v(X+2*c_,2)}, {v(X+2*c_,2)}, {v(Z+2*c_,2)}')
    for rho in (0,1):
        for k in (0,1):
            a(f'v_cvt_pk_bf16_f32 {v(LNP+2*rho+k)}, {v(Z+4*k+rho)}, {v(Z+4*k+2+rho)}')
    a(f'''
    s_cmp_eq_u32 {s(sIt)}, 2
    s_cbranch_scc1 L_tab2e ;!nd
    v_pk_mul_f32 {v(CC,2)}, {v(RS2,2)}, {s(sC16,2)}
    L_z:
    ;@F
    ''')
    ZP=t; D0=t+4; D1=t+8
    a(f'v_pk_mul_f32 {v(NM,2)}, {v(MM,2)}, {v(CC,2)}')
    for c_ in range(4):
        a(f'v_pk_fma_f32 {v(Z+2*c_,2)}, {v(X+2*c_,2)}, {v(CC,2)}, {v(NM,2)} neg_lo:[0,0,1] neg_hi:[0,0,1]')
    for c_ in range(4): a(f'v_cvt_pk_f16_f32 {v(ZP+c_)}, {v(Z+2*c_)}, {v(Z+2*c_+1)}')
    a(f'''
    v_mfma_f32_16x16x16_f16 {v(D0,4)}, {v(A8,2)}, {v(ZP,2)}, 0
    v_mfma_f32_16x16x16_f16 {v(D1,4)}, {v(A8,2)}, {v(ZP+2,2)}, 0
    s_nop 6
    v_cvt_pk_f16_f32 {v(ZP)}, {v(D0)}, {v(D0+1)}
    v_cvt_pk_f16_f32 {v(ZP+1)}, {v(D1)}, {v(D1+1)}
    v_cvt_pk_f16_f32 {v(ZP+2)}, {v(D0+2)}, {v(D0+3)}
    v_cvt_pk_f16_f32 {v(ZP+3)}, {v(D1+2)}, {v(D1+3)}
    ds_write_b64 {v(vUW)}, {v(ZP,2)}
    ds_write_b64 {v(vUW)}, {v(ZP+2,2)} offset:1024
    ;@F
    s_waitcnt lgkmcnt(0)
    s_barrier
    ;@F
    ds_read_b64_tr_b16 {v(t,2)}, {v(vUR)}
    ds_read_b64_tr_b16 {v(t+2,2)}, {v(vUR)} offset:512
    ds_read_b64_tr_b16 {v(t+4,2)}, {v(vUR)} offset:1024
    ds_read_b64_tr_b16 {v(t+6,2)}, {v(vUR)} offset:1536
    s_cmp_ge_u32 {s(sW)}, {s(sIt)}
    s_cbranch_scc1 L_tg1 ;!nd
    buffer_load_dwordx2 {v(t+24,2)}, {v(vL8)}, {WS}, {s(sTabLd)} offen sc1
    L_tg1:
    L_tg2:
    s_waitcnt lgkmcnt(0)
    ;@F
    ''')
    P=t
    fft_core(t, t+4, t+8, t+16, t+8, P)
    for r in range(4): a(f'v_bfi_b32 {v(P+r)}, 1, {s(sPh)}, {v(P+r)}')
    def lstores(fl):
        for r in range(4): a(f'buffer_store_dword {v(P+r)}, {v(vLst)}, {WS}, {s(sLst)} offen offset:{128*r} {fl}')
    TB=t+24
    W_=t+4
    a(f'''
    s_cmp_lg_u32 {s(sIt)}, 0
    s_cbranch_scc1 L_tab1e
    ''')
    lstores('')
    stamp()
    a(f'''
    s_branch L_pub
    L_tab1e:
    s_cmp_eq_u32 {s(sW)}, 0
    s_cbranch_scc1 L_tabw1
    s_branch L_tabbar
    L_tab2e:
    s_cmp_eq_u32 {s(sW)}, 0
    s_cbranch_scc1 L_tab
    s_branch L_tabbar
    L_tab:
    buffer_load_dwordx2 {v(TB,2)}, {v(vL8)}, {WS}, {s(sTabLd)} offen sc1
    L_tabw1:
    s_waitcnt vmcnt(0)
    v_cmp_ne_u32 vcc, {s(sTag)}, {v(TB)}
    ''')
    poll_branch('L_tab', cfg.slp_t, f'''s_cmp_lg_u32 {s(sIt)}, 0
        s_cselect_b32 {s(sT)}, 0, 1
        s_sub_u32 {s(sTry)}, {s(sTry)}, {s(sT)}
        s_cbranch_scc1 L_tab2''')
    a(f'''
    L_tabok:
    v_cmp_ne_u32 vcc, {s(sKey)}, {v(TB+1)}
    v_cmp_lt_u32 {s(sT,2)}, {s(sKey)}, {v(TB+1)}
    v_mov_b32 {v(TB)}, {L_FLAG}
    s_cmp_eq_u32 {s(sIt)}, 0
    s_cselect_b32 {s(sT)}, vcc_lo, {s(sT)}
    v_mov_b32 {v(TB+1)}, {s(sT)}
    ds_write_b32 {v(TB)}, {v(TB+1)}
    s_waitcnt lgkmcnt(0)
    s_barrier
    s_branch L_tabgot
    L_tabbar:
    v_mov_b32 {v(TB)}, {L_FLAG}
    s_barrier
    ds_read_b32 {v(TB+1)}, {v(TB)}
    s_waitcnt lgkmcnt(0)
    v_readfirstlane_b32 {s(sT)}, {v(TB+1)}
    L_tabgot:
    s_cmp_eq_u32 {s(sIt)}, 0
    s_cbranch_scc1 L_fastchk ;!nd
    s_mov_b32 {s(sT+9)}, 64
    s_cmp_lg_u32 {s(sT)}, 0
    s_cbranch_scc1 L_winback ;!nd
    L_pub:
    s_andn2_b32 {s(sT)}, {s(sM7FF)}, {s(sKey)}      ; idx
    s_lshr_b32 {s(sT+9)}, {s(sT)}, 8                ; s1
    s_bitcmp1_b32 {s(sT+9)}, 0
    s_cselect_b64 vcc, -1, 0
    s_lshl_b32 {s(sT+1)}, {s(sT+9)}, 3
    s_and_b32 {s(sT+1)}, {s(sT+1)}, 0x30
    v_cndmask_b32 {v(W_)}, {v(LNP)}, {v(LNP+2)}, vcc
    v_cndmask_b32 {v(W_+1)}, {v(LNP+1)}, {v(LNP+3)}, vcc
    v_and_b32 {v(W_+2)}, 0x3ff, {v(vXoff)}
    s_bfm_b64 exec, 16, {s(sT+1)}
    buffer_store_dwordx2 {v(W_,2)}, {v(W_+2)}, {WS}, {s(sSlot)} offen sc1
    s_cmp_lg_u32 {s(sW)}, 0
    s_cbranch_scc1 L_nohdr
    v_mov_b32 {v(W_+8)}, {s(sKey)}
    v_cndmask_b32 {v(W_+9)}, {v(MM)}, {v(MM+1)}, vcc
    v_cndmask_b32 {v(W_+10)}, {v(RS2)}, {v(RS2+1)}, vcc
    v_mov_b32 {v(W_+11)}, {s(sKey)}
    buffer_store_dwordx4 {v(W_+8,4)}, off, {WS}, {s(sSlot)} offset:3072 sc1
    buffer_store_dwordx4 {v(W_+8,4)}, off, {WS}, {s(sSlot)} offset:3200 sc1
    L_nohdr:
    ''')
    for c_ in range(4): a(f'v_cndmask_b32 {v(W_+4+c_)}, {v(X+2*c_)}, {v(X+2*c_+1)}, vcc')
    a(f'''
    v_lshlrev_b32 {v(W_+2)}, 1, {v(W_+2)}
    buffer_store_dwordx4 {v(W_+4,4)}, {v(W_+2)}, {WS}, {s(sSlot)} offen offset:1024 sc1
    s_mov_b64 exec, -1
    s_cmp_eq_u32 {s(sIt)}, 0
    s_cbranch_scc1 L_flag0
    L_winback:
    s_cmp_eq_u32 {s(sIt)}, 2
    s_cbranch_scc1 L_fin
    s_add_u32 {s(sSlot)}, {s(sSlot)}, {SLOTR}
    ''')
    lstores('')
    stamp()
    a(f'''
    s_waitcnt vmcnt(0)
    s_branch L_tabdone
    L_flag0:
    ;@F
    v_mov_b32 {v(t+22)}, {s(sTag)}
    v_mov_b32 {v(t+23)}, {s(sKey)}
    s_waitcnt vmcnt(0)
    ;@F
    s_cmp_eq_u32 {s(sW)}, 0
    s_barrier
    s_cbranch_scc0 L_tabbar
    s_mov_b64 exec, 1
    buffer_store_dwordx2 {v(t+22,2)}, off, {WS}, {s(sTabSt)}
    s_mov_b64 exec, -1
    s_branch L_tab
    L_fastchk:
    s_cmp_eq_u32 {s(sT)}, 0
    s_cselect_b32 {s(sFast)}, 1, 0
    L_tabdone:
    s_cmp_eq_u32 {s(sFast)}, 0
    s_cbranch_scc1 L_slow
    L_slowback:
    ;@F
    s_cmp_lt_u32 {s(sJ)}, 8
    s_cbranch_scc0 L_y
    s_branch L_yself
    L_y:
    buffer_load_dwordx4 {v(t,4)}, {v(vLld)}, {WS}, {s(sLld)} offen sc1
    s_waitcnt vmcnt(0)
    ds_write_b128 {v(vYIW)}, {v(t,4)}
    ''')
    phchk(range(t,t+4), t+8)
    poll_branch('L_y', cfg.slp_l, mask=True)
    a('L_yjoin:')
    stamp()
    a(f'''
    s_cmp_lg_u32 {s(sT+12)}, 0
    s_cbranch_scc1 L_noxf
    s_lshl_b32 {s(sT+12)}, {s(sX)}, 7
    s_add_u32 {s(sT+12)}, {s(sT+12)}, {TABG}
    v_lshrrev_b32 {v(t+8)}, 1, {v(vL8)}
    v_mov_b32 {v(t+9)}, {s(sTag)}
    s_mov_b32 exec_hi, 0
    buffer_store_dword {v(t+9)}, {v(t+8)}, {WS}, {s(sT+12)} offen sc1
    s_mov_b64 exec, -1
    L_noxf:
    s_cmp_eq_u32 {s(sIt)}, 0
    s_cbranch_scc1 L_nohl
    v_and_b32 {v(BC)}, 7, {v(vLane)}
    v_lshlrev_b32 {v(BC)}, 12, {v(BC)}
    s_mov_b32 {s(sT+10)}, {SLOT}
    s_mov_b64 exec, 0xff
    buffer_load_dwordx4 {v(LNP,4)}, {v(BC)}, {WS}, {s(sT+10)} offen offset:3200 sc1
    s_mov_b64 exec, -1
    L_nohl:
    ''')
    A0,A1=t,t+4; P0,Q0,P1,Q1=t+8,t+12,t+16,t+20
    a(f'''
    s_waitcnt lgkmcnt(0)
    s_barrier
    ;@F
    ds_read_b64_tr_b16 {v(A0,2)}, {v(vYIR)}
    ds_read_b64_tr_b16 {v(A0+2,2)}, {v(vYIR)} offset:{16*YIS}
    ds_read_b64_tr_b16 {v(A1,2)}, {v(vYIR)} offset:8
    ds_read_b64_tr_b16 {v(A1+2,2)}, {v(vYIR)} offset:{16*YIS+8}
    s_add_u32 {s(sTabLd)}, {s(sTabLd)}, {ARGR}
    s_add_u32 {s(sTabSt)}, {s(sTabSt)}, {ARGR}
    s_waitcnt lgkmcnt(2)
    v_mfma_f32_16x16x32_f16 {v(P0,4)}, {v(A0,4)}, {v(YC,4)}, 0
    v_mfma_f32_16x16x32_f16 {v(Q0,4)}, {v(A0,4)}, {v(YS,4)}, 0
    s_waitcnt lgkmcnt(0)
    v_mfma_f32_16x16x32_f16 {v(P1,4)}, {v(A1,4)}, {v(YC,4)}, 0
    v_mfma_f32_16x16x32_f16 {v(Q1,4)}, {v(A1,4)}, {v(YS,4)}, 0
    ''')
    for P_,Q_ in ((P0,Q0),(P1,Q1)):
        for h in (0,2):
            a(f'v_pk_add_f32 {v(P_+h,2)}, {v(P_+h,2)}, {v(Q_+h,2)} op_sel:[0,1] op_sel_hi:[1,0] neg_hi:[0,1]')
    a(f'''
    v_cvt_pk_f16_f32 {v(t)}, {v(P0)}, {v(P0+1)}
    v_cvt_pk_f16_f32 {v(t+1)}, {v(P0+2)}, {v(P0+3)}
    v_cvt_pk_f16_f32 {v(t+2)}, {v(P1)}, {v(P1+1)}
    v_cvt_pk_f16_f32 {v(t+3)}, {v(P1+2)}, {v(P1+3)}
    ds_write_b128 {v(vYW)}, {v(t,4)}
    ;@F
    s_waitcnt lgkmcnt(0)
    s_barrier
    ;@F
    ds_read_b128 {v(t+4,4)}, {v(vYR)}
    s_waitcnt lgkmcnt(0)
    buffer_store_dwordx4 {v(t+4,4)}, {v(vGst)}, {WS}, {s(sG0)} offen sc1
    ''')
    stamp()
    a(f'''
    s_cmp_lg_u32 {s(sIt)}, 0
    s_cbranch_scc1 L_hdr
    v_and_b32 {v(t+24)}, 7, {v(vLane)}
    v_lshlrev_b32 {v(t+24)}, 7, {v(t+24)}
    s_mov_b32 {s(sT+10)}, {TABG}
    v_mov_b32 {v(t+20)}, {s(sTag)}
    ''')
    a(f's_mov_b64 exec, 0xff\nbuffer_load_dword {v(t+20)}, {v(t+24)}, {WS}, {s(sT+10)} offen sc1\ns_mov_b64 exec, -1')
    xin_consts(t+8)
    a(';@F\nL_tg0w:\ns_waitcnt vmcnt(0)')
    a(f'v_cmp_ne_u32 vcc, {s(sTag)}, {v(t+20)}')
    a(f'''
    s_cbranch_vccz L_g ;!nd
    s_branch L_tg0_r
    L_g:
    ''')
    C0,C1=t,t+4
    a(f'''
    buffer_load_dwordx4 {v(C0,4)}, {v(vGld)}, {WS}, {s(sG0)} offen sc1
    buffer_load_dwordx4 {v(C1,4)}, {v(vGld)}, {WS}, {s(sG4)} offen sc1
    L_gw:
    s_cmp_lg_u32 {s(sMir)}, 0
    s_waitcnt vmcnt(0)
    L_gw2:
    s_cbranch_scc1 L_xmir ;!nd
    ''')
    E0,E1=t+8,t+12
    a(f'''
    v_mfma_f32_16x16x16_f16 {v(E0,4)}, {v(XA,2)}, {v(C0,2)}, 0
    v_mfma_f32_16x16x16_f16 {v(E1,4)}, {v(XA,2)}, {v(C0+2,2)}, 0
    v_mfma_f32_16x16x16_f16 {v(E0,4)}, {v(XA+2,2)}, {v(C1,2)}, {v(E0,4)}
    v_mfma_f32_16x16x16_f16 {v(E1,4)}, {v(XA+2,2)}, {v(C1+2,2)}, {v(E1,4)}
    s_branch L_xjoin ;!nd
    L_xmir:
    ''')
    a.hist=[]
    a(f'''
    v_mfma_f32_16x16x16_f16 {v(E0,4)}, {v(XA,2)}, {v(C0+2,2)}, 0
    v_mfma_f32_16x16x16_f16 {v(E1,4)}, {v(XA,2)}, {v(C0,2)}, 0
    v_mfma_f32_16x16x16_f16 {v(E0,4)}, {v(XA+2,2)}, {v(C1+2,2)}, {v(E0,4)}
    v_mfma_f32_16x16x16_f16 {v(E1,4)}, {v(XA+2,2)}, {v(C1,2)}, {v(E1,4)}
    L_xjoin:
    ''')
    maxchk(range(t,t+8), t+16)
    poll_branch('L_g', cfg.slp_g, mask=True)
    stamp()
    a(f'''
    s_mov_b32 {s(sIt)}, 1
    s_add_u32 {s(sG0)}, {s(sG0)}, {GR}
    s_add_u32 {s(sG4)}, {s(sG4)}, {GR}
    L_apply:
    s_cmp_eq_u32 {s(sNx)}, 0
    v_pk_fma_f32 {v(X,2)}, {v(E0,2)}, {v(vSc0,2)}, {v(X,2)}
    v_pk_fma_f32 {v(X+2,2)}, {v(E0+2,2)}, {s(sSc,2)}, {v(X+2,2)}
    v_pk_fma_f32 {v(X+4,2)}, {v(E1,2)}, {s(sSc,2)}, {v(X+4,2)}
    v_pk_fma_f32 {v(X+6,2)}, {v(E1+2,2)}, {s(sSc,2)}, {v(X+6,2)}
    s_cbranch_scc1 L_top ;!nd
    s_branch L_corr
    ''')
    a(f'''
    L_yself:
    buffer_load_dwordx4 {v(t,4)}, {v(vLld)}, {WS}, {s(sLld)} offen sc1
    buffer_load_dwordx4 {v(t+4,4)}, {v(vLldM)}, {WS}, {s(sLld)} offen sc1
    s_waitcnt vmcnt(0)
    ''')
    phchk(range(t,t+8), t+8)
    poll_branch('L_yself', cfg.slp_l, mask=True)
    a(f'''
    s_bitcmp1_b32 {s(sW)}, 0
    s_cbranch_scc1 L_yself4
    ''')
    for k in range(4): a(f'v_pk_add_f16 {v(t+k)}, {v(t+k)}, {v(t+7-k)} neg_hi:[0,1]')
    a(f'ds_write_b128 {v(vYIW)}, {v(t,4)}\ns_branch L_yjoin\nL_yself4:')
    for k in range(4): a(f'v_pk_add_f16 {v(t+k)}, {v(t+k)}, {v(t+7-k)} op_sel:[1,1] op_sel_hi:[0,0] neg_hi:[1,0]')
    a(f'ds_write_b128 {v(vYIW)}, {v(t,4)}\ns_branch L_yjoin')
    a(f'''
    L_s3w:
    v_pk_add_f32 {v(S3,2)}, {v(WV,2)}, {v(WV+2,2)}
    v_add_f32 {v(S3)}, {v(S3)}, {v(S3+1)}
    v_mov_b32 {v(S3+1)}, {v(S3)}
    s_branch L_s3ok
    L_it0:
    s_mov_b32 {s(sKey)}, {s(sXcc)}
    v_pk_mul_f32 {v(CC,2)}, {v(RS,2)}, {s(sC16,2)}
    v_mov_b32 {v(S1)}, 0x44000000
    v_pk_add_f32 {v(WV,2)}, {v(WV,2)}, {v(S3,2)} neg_lo:[0,1] neg_hi:[0,1]
    v_pk_add_f32 {v(WV+2,2)}, {v(WV+2,2)}, {v(S3,2)} neg_lo:[0,1] neg_hi:[0,1]
    v_pk_mul_f32 {v(WV,2)}, {v(WV,2)}, {v(S1,2)} op_sel_hi:[1,0]
    v_pk_mul_f32 {v(WV+2,2)}, {v(WV+2,2)}, {v(S1,2)} op_sel_hi:[1,0]
    ''')
    a('s_branch L_z')
    H=LNP
    sIdx=sT+11
    KA=BC+6; EK=BC+8; vYP=BC+9; SEL=BC+10; vDW,vDR=BC+12,BC+13
    YR=t+8; YL=t+12; YD=t+20
    gl=f'buffer_load_dwordx4 {v(C0,4)}, {v(vGld)}, {WS}, {s(sG0)} offen sc1\nbuffer_load_dwordx4 {v(C1,4)}, {v(vGld)}, {WS}, {s(sG4)} offen sc1'
    def hdrpoll(lbl, slp, issued=False):
        if not issued: a(f"""
        v_and_b32 {v(BC)}, 7, {v(vLane)}
        v_lshlrev_b32 {v(BC)}, 12, {v(BC)}
        """)
        a(f"""
        s_mov_b64 exec, 0xff
        {f's_waitcnt vmcnt(1)' if issued else ''}
        {f's_branch {lbl}_c' if issued else ''}
        {lbl}:
        buffer_load_dwordx4 {v(H,4)}, {v(BC)}, {WS}, {s(sT+10)} offen offset:3200 sc1
        s_waitcnt vmcnt(0)
        {lbl}_c:
        """)
        maxchk(range(H,H+4), t+17)
        poll_branch(lbl, slp, skip=True)
        a(f"""
        s_mov_b64 exec, -1
        v_max_u32_dpp {v(H+3)}, {v(H)}, {v(H)} row_half_mirror {DPP}
        v_max_u32_dpp {v(H+3)}, {v(H+3)}, {v(H+3)} quad_perm:[1,0,3,2] {DPP}
        v_max_u32_dpp {v(H+3)}, {v(H+3)}, {v(H+3)} quad_perm:[2,3,0,1] {DPP}
        v_readfirstlane_b32 {s(sIdx)}, {v(H+3)}
        """)
    def owner():
        a(f"""
        s_sub_u32 {s(sT)}, 2047, {s(sIdx)}
        s_add_u32 {s(sT+1)}, {s(sT)}, 256
        v_cmp_eq_u32 vcc, {s(sT)}, {v(vInv)}
        v_cmp_eq_u32 {s(sT+2,2)}, {s(sT+1)}, {v(vInv)}
        v_cndmask_b32 {v(BC)}, 0, 1.0, vcc
        v_cndmask_b32 {v(BC+1)}, 0, 1.0, {s(sT+2,2)}
        """)
    a(f'L_hdr:')
    hdrpoll('L_hdrp', 2, True)
    a(f"""
    v_and_b32 {v(vYP)}, 0x3ff, {v(vXoff)}
    v_lshlrev_b32 {v(t+16)}, 1, {v(vYP)}
    s_andn2_b32 {s(sIdx)}, {s(sM7FF)}, {s(sIdx)}
    s_and_b32 {s(sT)}, {s(sIdx)}, 7
    s_lshl_b32 {s(sT+1)}, {s(sT)}, 12
    s_add_u32 {s(sT+10)}, {s(sT+10)}, {s(sT+1)}
    buffer_load_dwordx4 {v(BC+2,4)}, {v(t+16)}, {WS}, {s(sT+10)} offen offset:1024 sc1
    v_readlane_b32 {s(sT+13)}, {v(H+1)}, {s(sT)}
    v_readlane_b32 {s(sT+14)}, {v(H+2)}, {s(sT)}
    v_mul_u32_u24 {v(t+17)}, {s(sIdx)}, {v(AD)}
    v_and_b32 {v(t+17)}, 0x7ff, {v(t+17)}
    v_cvt_f32_u32 {v(t+17)}, {v(t+17)}
    v_mul_f32 {v(t+17)}, {fbits(1/2048)}, {v(t+17)}
    v_cos_f32 {v(t+18)}, {v(t+17)}
    v_sin_f32 {v(t+19)}, {v(t+17)}
    v_and_b32 {v(t+17)}, 0x22, {v(vLane)}
    v_cvt_pk_f16_f32 {v(t+18)}, {v(t+18)}, {v(t+19)}
    v_cmp_eq_u32 vcc, 0, {v(t+17)}
    v_mov_b32 {v(KA)}, {s(sT+14)}
    v_mul_f32 {v(KA)}, {s(sC16)}, {v(KA)}
    v_cndmask_b32 {v(AD)}, 0, {v(t+18)}, vcc
    v_cmp_eq_u32 vcc, 2, {v(t+17)}
    v_mul_f32 {v(EK)}, {v(KA)}, {v(KA)}
    v_mul_f32 {v(EK)}, {s(sEps)}, {v(EK)}
    v_cndmask_b32 {v(AD+1)}, 0, {v(t+18)}, vcc
    """)
    owner()
    a(f"""
    v_lshlrev_b32 {v(t+17)}, 4, {v(vLane)}
    v_mov_b32 {v(t+18)}, 0x3f80
    v_and_b32 {v(t+17)}, 16, {v(t+17)}
    v_lshlrev_b32 {v(t+18)}, {v(t+17)}, {v(t+18)}
    v_and_b32 {v(t+17)}, 2, {v(vLane)}
    v_cmp_eq_u32 vcc, 0, {v(t+17)}
    v_lshl_add_u32 {v(vYP)}, {v(vQ)}, 10, {v(vYP)}
    s_lshl_b32 {s(sT+3)}, {s(sW)}, 8
    v_cndmask_b32 {v(SEL)}, 0, {v(t+18)}, vcc
    v_cndmask_b32 {v(SEL+1)}, {v(t+18)}, 0, vcc
    s_add_u32 {s(sT+3)}, {s(sT+3)}, {L_DH}
    v_lshl_add_u32 {v(vDR)}, {v(vN)}, 4, {s(sT+3)}
    v_and_b32 {v(t+17)}, 1, {v(vQ)}
    v_lshl_add_u32 {v(vDR)}, {v(t+17)}, 11, {v(vDR)}
    v_cmp_eq_u32 vcc, 0, {v(vQ)}
    v_add_u32 {v(vDW)}, {L_DH}, {v(vLst)}
    s_mov_b32 {s(sYo)}, {YP}
    s_lshl_b32 {s(sYh)}, {s(sX)}, 7
    s_add_u32 {s(sYh)}, {s(sYh)}, {YHINT}
    s_lshl_b32 {s(sSg)}, {s(sW)}, 30
    s_and_b32 {s(sSg)}, {s(sSg)}, {s(sTop)}
    s_xor_b32 {s(sSg)}, {s(sSg)}, {s(sDsc)}
    s_mov_b32 {s(sNx)}, 2
    v_cndmask_b32 {v(KA+1)}, 0, {v(KA)}, vcc
    s_waitcnt vmcnt(0)
    {gl if not cfg.hold else ''}
    L_basew:
    """)
    maxchk(range(BC+2,BC+6), t+17)
    a('s_cbranch_vccnz L_base_r ;!nd')
    for k in range(4): a(f'v_subrev_f32 {v(BC+2+k)}, {s(sT+13)}, {v(BC+2+k)}')
    for k in range(4): a(f'v_mul_f32 {v(BC+2+k)}, {v(KA)}, {v(BC+2+k)}')
    a(f"""
    s_branch {'L_ywait' if cfg.hold else 'L_gw'}
    L_corr:
    s_mov_b32 {s(sIt)}, 2
    s_mov_b32 {s(sNx)}, 0
    {'s_branch L_yc' if cfg.hold else ''}
    L_ywait:
    s_add_u32 {s(sT+2)}, {s(sYo)}, 4096
    s_cmp_lg_u32 {s(sW)}, 0
    s_cbranch_scc1 L_hintb
    s_movk_i32 {s(sTry)}, 500
    v_lshrrev_b32 {v(t)}, 1, {v(vL8)}
    """)
    if cfg.own: a(f"""
    s_cmp_eq_u32 {s(sIt)}, 3
    s_cbranch_scc1 L_hint
    s_lshl_b32 {s(sT)}, {s(sJ)}, 2
    v_mov_b32 {v(t)}, {s(sT)}
    """)
    a(f"""
    L_hint:
    buffer_load_dword {v(t+1)}, {v(t)}, {WS}, {s(sYh)} offen sc1
    s_waitcnt vmcnt(0)
    v_cmp_ne_u32 vcc, {s(sTag)}, {v(t+1)}
    """)
    poll_branch('L_hint', 1, giveup='L_hintb')
    if cfg.tim_y: a(f's_sleep {cfg.tim_y}')
    a(f"""
    L_hintb:
    s_barrier
    """)
    if cfg.hold: a(f"""
    s_cmp_eq_u32 {s(sIt)}, 3
    s_cbranch_scc1 L_yv3
    {gl}
    {f's_sleep {cfg.tim_gy}' if cfg.tim_gy else ''}
    buffer_load_dwordx2 {v(YD,2)}, {v(vYP)}, {WS}, {s(sYo)} offen sc1
    buffer_load_dwordx2 {v(YD+2,2)}, {v(vYP)}, {WS}, {s(sT+2)} offen sc1
    s_cmp_lg_u32 {s(sMir)}, 0
    s_waitcnt vmcnt(2)
    s_branch L_gw2
    L_yv3:
    {f's_sleep {cfg.tim_y3}' if cfg.tim_y3 else ''}
    s_branch L_yv
    """)
    a(f"""
    L_yv:
    buffer_load_dwordx2 {v(YD,2)}, {v(vYP)}, {WS}, {s(sYo)} offen sc1
    buffer_load_dwordx2 {v(YD+2,2)}, {v(vYP)}, {WS}, {s(sT+2)} offen sc1
    L_yc:
    s_waitcnt vmcnt(0)
    v_mfma_f32_16x16x16_bf16 {v(YR,4)}, {v(SEL,2)}, {v(YD,2)}, 0
    v_mfma_f32_16x16x16_bf16 {v(YR,4)}, {v(SEL,2)}, {v(YD+2,2)}, {v(YR,4)}
    """)
    maxchk(range(YD,YD+4), t+17)
    poll_branch('L_yv', 1, mask=True)
    stamp()
    own=[f'v_pk_fma_f32 {v(X,2)}, {v(BC,2)}, {v(YR,2)}, {v(X,2)} op_sel:[0,0,0] op_sel_hi:[1,0,1]',
         f'v_pk_fma_f32 {v(X+2,2)}, {v(BC,2)}, {v(YR,2)}, {v(X+2,2)} op_sel:[0,1,0] op_sel_hi:[1,1,1]',
         f'v_pk_fma_f32 {v(X+4,2)}, {v(BC,2)}, {v(YR+2,2)}, {v(X+4,2)} op_sel:[0,0,0] op_sel_hi:[1,0,1]',
         f'v_pk_fma_f32 {v(X+6,2)}, {v(BC,2)}, {v(YR+2,2)}, {v(X+6,2)} op_sel:[0,1,0] op_sel_hi:[1,1,1]']
    s1,s2=t+20,t+21
    a(f"""
    s_cmp_eq_u32 {s(sIt)}, 3
    s_cbranch_scc1 L_fin3
    L_pass:
    v_pk_fma_f32 {v(YL,2)}, {v(YR,2)}, {v(KA,2)}, {v(BC+2,2)} op_sel:[0,1,0]
    v_pk_fma_f32 {v(YL+2,2)}, {v(YR+2,2)}, {v(KA,2)}, {v(BC+4,2)} op_sel:[0,1,0]
    v_cvt_pk_f16_f32 {v(YL)}, {v(YL)}, {v(YL+1)}
    v_cvt_pk_f16_f32 {v(YL+1)}, {v(YL+2)}, {v(YL+3)}
    ds_write_b64 {v(vUW)}, {v(YL,2)}
    {own[0]}
    {own[1]}
    {own[2]}
    {own[3]}
    s_cmp_gt_u32 {s(sW)}, 3
    s_waitcnt lgkmcnt(0)
    s_barrier
    s_cbranch_scc1 L_dhb ;!nd
    ds_read_b64_tr_b16 {v(t+8,2)}, {v(vUR)}
    ds_read_b64_tr_b16 {v(t+10,2)}, {v(vUR)} offset:512
    v_mov_b32 {v(t+22)}, 0x3c003c00
    s_waitcnt lgkmcnt(0)
    ;@F
    """)
    XR=t+8; U_=t+12; V_=YC; PP=LNP
    Ur,Ui=U_,U_+4; Vr,Vi=V_,V_+4
    a(f"""
    v_mfma_f32_16x16x32_f16 {v(Ur,4)}, {v(XR,4)}, {v(B1C,4)}, 0
    v_mfma_f32_16x16x32_f16 {v(Ui,4)}, {v(XR,4)}, {v(B1N,4)}, 0
    v_dot2_f32_f16 {v(s1)}, {v(XR)}, {v(t+22)}, 0
    v_dot2_f32_f16 {v(s2)}, {v(XR)}, {v(XR)}, 0
    v_dot2_f32_f16 {v(s1)}, {v(XR+1)}, {v(t+22)}, {v(s1)}
    v_dot2_f32_f16 {v(s2)}, {v(XR+1)}, {v(XR+1)}, {v(s2)}
    v_dot2_f32_f16 {v(s1)}, {v(XR+2)}, {v(t+22)}, {v(s1)}
    v_dot2_f32_f16 {v(s2)}, {v(XR+2)}, {v(XR+2)}, {v(s2)}
    v_dot2_f32_f16 {v(s1)}, {v(XR+3)}, {v(t+22)}, {v(s1)}
    v_dot2_f32_f16 {v(s2)}, {v(XR+3)}, {v(XR+3)}, {v(s2)}
    v_pk_mul_f32 {v(Vi,2)}, {v(Ur,2)}, {v(TWS,2)}
    v_pk_mul_f32 {v(Vi+2,2)}, {v(Ur+2,2)}, {v(TWS+2,2)}
    v_pk_mul_f32 {v(Vr,2)}, {v(Ui,2)}, {v(TWS,2)}
    v_permlane32_swap_b32 {v(s1)}, {v(s2)}
    v_pk_mul_f32 {v(Vr+2,2)}, {v(Ui+2,2)}, {v(TWS+2,2)}
    v_add_f32 {v(s1)}, {v(s1)}, {v(s2)}
    v_pk_fma_f32 {v(Vr,2)}, {v(Ur,2)}, {v(TWC,2)}, {v(Vr,2)}
    v_pk_fma_f32 {v(Vi,2)}, {v(Ui,2)}, {v(TWC,2)}, {v(Vi,2)} neg_lo:[0,0,1] neg_hi:[0,0,1]
    v_add_f32_dpp {v(s1)}, {v(s1)}, {v(s1)} row_ror:8 {DPP}
    v_pk_fma_f32 {v(Vr+2,2)}, {v(Ur+2,2)}, {v(TWC+2,2)}, {v(Vr+2,2)}
    v_pk_fma_f32 {v(Vi+2,2)}, {v(Ui+2,2)}, {v(TWC+2,2)}, {v(Vi+2,2)} neg_lo:[0,0,1] neg_hi:[0,0,1]
    v_add_f32_dpp {v(s1)}, {v(s1)}, {v(s1)} row_ror:4 {DPP}
    v_cvt_pk_f16_f32 {v(PP)}, {v(Vr)}, {v(Vi)}
    v_cvt_pk_f16_f32 {v(PP+1)}, {v(Vr+1)}, {v(Vi+1)}
    v_add_f32_dpp {v(s1)}, {v(s1)}, {v(s1)} row_ror:2 {DPP}
    v_cvt_pk_f16_f32 {v(PP+2)}, {v(Vr+2)}, {v(Vi+2)}
    v_cvt_pk_f16_f32 {v(PP+3)}, {v(Vr+3)}, {v(Vi+3)}
    v_add_f32_dpp {v(s1)}, {v(s1)}, {v(s1)} row_ror:1 {DPP}
    v_mfma_f32_16x16x32_f16 {v(Ur,4)}, {v(A2R,4)}, {v(PP,4)}, 0
    v_mfma_f32_16x16x32_f16 {v(Ui,4)}, {v(A2I,4)}, {v(PP,4)}, 0
    v_add_f32_dpp {v(s1)}, {v(s1)}, {v(s1)} row_bcast:15 row_mask:0xa bank_mask:0xf
    v_mul_f32 {v(s1)}, {s(sK512)}, {v(s1)}
    v_readlane_b32 {s(sT+2)}, {v(s1)}, 63
    v_readlane_b32 {s(sT+1)}, {v(s1)}, 31
    v_add_f32 {v(s2)}, {s(sT+2)}, {v(EK)}
    v_mov_b32 {v(s1)}, {s(sT+1)}
    v_fma_f32 {v(s1)}, -{v(s1)}, {v(s1)}, {v(s2)}
    v_rsq_f32_e64 {v(s1)}, |{v(s1)}|
    v_mul_f32 {v(s1)}, {s(sSg)}, {v(s1)}
    """)
    for k in range(4): a(f'v_pk_mul_f32 {v(U_+2*k,2)}, {v(U_+2*k,2)}, {v(s1,2)} op_sel_hi:[1,0]')
    for r in range(4): a(f'v_cvt_pk_f16_f32 {v(PP+r)}, {v(Ur+r)}, {v(Ui+r)}')
    a(f"""
    ds_write2_b32 {v(vDW)}, {v(PP)}, {v(PP+1)} offset0:0 offset1:32
    ds_write2_b32 {v(vDW)}, {v(PP+2)}, {v(PP+3)} offset0:64 offset1:96
    s_waitcnt lgkmcnt(0)
    L_dhb:
    s_barrier
    ds_read_b128 {v(t+16,4)}, {v(vDR)}
    s_waitcnt lgkmcnt(0)
    v_mfma_f32_16x16x16_f16 {v(E0,4)}, {v(AD,2)}, {v(t+16,2)}, 0
    v_mfma_f32_16x16x16_f16 {v(E1,4)}, {v(AD,2)}, {v(t+18,2)}, 0
    s_nop 4
    s_branch L_apply ;!nd
    """)
    a('L_fin:')
    for rho in (0,1):
        for k in (0,1):
            a(f'v_cvt_pk_bf16_f32 {v(t+2*rho+k)}, {v(X+4*k+rho)}, {v(X+4*k+2+rho)}')
    a(f"""
    v_lshlrev_b32 {v(t+16)}, 1, {v(vQ)}
    v_mov_b32 {v(t+19)}, 0x200000
    s_sub_u32 {s(sT)}, {s(sT+9)}, 1
    v_cmp_eq_u32 vcc, {s(sT+9)}, {v(t+16)}
    v_cmp_eq_u32 {s(sT+2,2)}, {s(sT)}, {v(t+16)}
    v_cndmask_b32 {v(t+17)}, {v(vXoff)}, {v(t+19)}, vcc
    v_cndmask_b32 {v(t+18)}, {v(vXoff)}, {v(t+19)}, {s(sT+2,2)}
    buffer_store_dwordx2 {v(t,2)}, {v(t+17)}, {OS}, {s(sRow0)} offen sc1
    buffer_store_dwordx2 {v(t+2,2)}, {v(t+18)}, {OS}, {s(sRow1)} offen sc1
    v_cndmask_b32 {v(t+24)}, {v(t+19)}, {v(vXoff)}, vcc
    v_cndmask_b32 {v(t+25)}, {v(t+19)}, {v(vXoff)}, {s(sT+2,2)}
    s_or_b32 {s(sT)}, s2, {s(sW)}
    s_cbranch_scc1 L_fin2
    v_mov_b32 {v(t+20)}, {s(sTag)}
    buffer_store_dword {v(t+20)}, off, {WS}, 0 sc1
    L_fin2:
    s_cmp_eq_u32 {s(sT+9)}, 64
    s_cbranch_scc1 L_fin5
    s_mov_b32 {s(sT+10)}, {SLOT+SLOTR}
    s_sleep {cfg.tim_fh}
    """)
    hdrpoll('L_fhdr', 4)
    a(f"""
    s_cmp_lg_u32 {s(sIdx)}, {s(sKey)}
    s_cbranch_scc1 L_fin4
    s_andn2_b32 {s(sIdx)}, {s(sM7FF)}, {s(sIdx)}
    s_mov_b32 {s(sIt)}, 3
    s_add_u32 {s(sYo)}, {s(sYo)}, {YPR}
    s_add_u32 {s(sYh)}, {s(sYh)}, {YHR}
    """)
    owner()
    a('s_branch L_ywait\nL_fin3:')
    a('\n'.join(own))
    for rho in (0,1):
        for k in (0,1):
            a(f'v_cvt_pk_bf16_f32 {v(t+2*rho+k)}, {v(X+4*k+rho)}, {v(X+4*k+2+rho)}')
    a(f"""
    L_fin4:
    buffer_store_dwordx2 {v(t,2)}, {v(t+24)}, {OS}, {s(sRow0)} offen sc1
    buffer_store_dwordx2 {v(t+2,2)}, {v(t+25)}, {OS}, {s(sRow1)} offen sc1
    L_fin5:
    """)
    stamp(); dump_stamps()
    a('s_endpgm')
    a(f"""
    L_base_r:
    s_sub_u32 {s(sCnt)}, {s(sCnt)}, 1
    s_cbranch_scc1 L_end
    s_sleep 2
    buffer_load_dwordx4 {v(BC+2,4)}, {v(t+16)}, {WS}, {s(sT+10)} offen offset:1024 sc1
    s_waitcnt vmcnt(0)
    s_branch L_basew
    """)
    def pub2():
        a(f'''
        v_mov_b32 {v(t+4)}, {s(sTag)}
        v_mov_b32 {v(t+5)}, {s(sXcc)}
        s_add_u32 {s(sT)}, {s(sTabSt)}, {TAB2-TABL}
        buffer_store_dwordx2 {v(t+4,2)}, off, {WS}, {s(sT)} sc1
        ''')
    a(f'''
    L_tabst_slow:
    buffer_store_dwordx2 {v(K,2)}, off, {WS}, {s(sTabSt)} sc1
    s_branch L_tabst_back
    L_tg0_r:
    s_sub_u32 {s(sCnt)}, {s(sCnt)}, 1
    s_cbranch_scc1 L_end
    s_sleep 2
    ''')
    a(f's_mov_b64 exec, 0xff\nbuffer_load_dword {v(t+20)}, {v(t+24)}, {WS}, {s(sT+10)} offen sc1\ns_mov_b64 exec, -1')
    a('s_branch L_tg0w\nL_tab2:')
    pub2()
    a(f'''
    s_add_u32 {s(sT+1)}, {s(sTabLd)}, {TAB2-TABL}
    L_tab2p:
    buffer_load_dwordx2 {v(TB,2)}, {v(vL8)}, {WS}, {s(sTabLd)} offen sc1
    buffer_load_dwordx2 {v(t+6,2)}, {v(vL8)}, {WS}, {s(sT+1)} offen sc1
    s_waitcnt vmcnt(0)
    v_cmp_eq_u32 vcc, {s(sTag)}, {v(TB)}
    v_cndmask_b32 {v(TB)}, {v(t+6)}, {v(TB)}, vcc
    v_cndmask_b32 {v(TB+1)}, {v(t+7)}, {v(TB+1)}, vcc
    v_cmp_ne_u32 vcc, {s(sTag)}, {v(TB)}
    ''')
    poll_branch('L_tab2p', 4)
    a(f'''
    s_branch L_tabok
    L_slow:
    s_cmp_lg_u32 {s(sIt)}, 0
    s_cbranch_scc1 L_slow1
    ''')
    pub2()
    a('L_slow1:')
    lstores('sc1')
    a(f'''
    s_waitcnt vmcnt(0)
    s_barrier
    s_add_u32 {s(sT)}, {s(sTabSt)}, {SLOWF-TABL}
    s_add_u32 {s(sT+1)}, {s(sTabLd)}, {SLOWF-TABL}
    v_mov_b32 {v(t+4)}, {s(sTag)}
    s_cmp_lg_u32 {s(sW)}, 0
    s_cbranch_scc1 L_slowp
    buffer_store_dword {v(t+4)}, off, {WS}, {s(sT)} sc1
    L_slowp:
    buffer_load_dword {v(t+5)}, {v(vL8)}, {WS}, {s(sT+1)} offen sc1
    s_waitcnt vmcnt(0)
    v_cmp_ne_u32 vcc, {s(sTag)}, {v(t+5)}
    ''')
    poll_branch('L_slowp', 2)
    a('s_branch L_slowback')

def hint_store(vreg, soff, lbl):
    a(f'''
    s_mov_b64 exec, 1
    s_cmp_eq_u32 {s(sFast)}, 0
    s_cbranch_scc1 {lbl}_s
    buffer_store_dword {v(vreg)}, off, {WS}, {s(soff)}
    s_branch {lbl}_d
    {lbl}_s:
    buffer_store_dword {v(vreg)}, off, {WS}, {s(soff)} sc1
    {lbl}_d:
    s_mov_b64 exec, -1
    ''')

def ffn():
    WA=4; WD=20; t=40
    vXL=24; vXW=25; vXR=26; vPS=27; vPL=28; vHW=29; vHR=30; vDP=31; vTag=32; vSig=34; vFl=35
    sI=sJ; sRnd=sIt; sPo=sLst; sPs=sLld
    F_W=0; TS=4096+64; F_X=0x4400; F_KEY=0x4D00; F_H=0x4E00; F_D=0x5200; F_WD=0x5400
    a(f"""
    L_ffn:
    s_and_b32 {s(sI)}, {s(sJ)}, 31
    s_min_u32 {s(sT+2)}, {s(sI)}, 27
    s_and_b32 {s(sT)}, {s(sT+2)}, 3
    s_lshl_b32 {s(sT+8)}, {s(sT)}, 8              ; 256*ks
    s_mul_i32 {s(sT+9)}, {s(sT)}, {28*64}
    s_mul_i32 {s(sT)}, {s(sT)}, {128*3584}
    s_mul_i32 {s(sT+1)}, {s(sX)}, 448
    s_add_u32 {s(sT)}, {s(sT)}, {s(sT+1)}
    s_lshr_b32 {s(sT+2)}, {s(sT+2)}, 2
    s_lshl_b32 {s(sT+3)}, {s(sT+2)}, 6
    s_add_u32 {s(sT)}, {s(sT)}, {s(sT+3)}
    v_lshrrev_b32 {v(t+3)}, 2, v0
    v_mul_u32_u24 {v(t)}, 3584, {v(t+3)}
    v_and_b32 {v(t+4)}, 3, v0
    v_lshl_add_u32 {v(t)}, {v(t+4)}, 4, {v(t)}
    v_add_u32 {v(t)}, {s(sT)}, {v(t)}
    s_mul_i32 {s(sT)}, {s(sX)}, {224*1024}
    s_lshl_b32 {s(sT+1)}, {s(sI)}, 5
    s_add_u32 {s(sT)}, {s(sT)}, {s(sT+1)}
    v_lshrrev_b32 {v(t+1)}, 1, v0
    v_min_u32 {v(t+1)}, 223, {v(t+1)}
    v_lshlrev_b32 {v(t+1)}, 10, {v(t+1)}
    v_and_b32 {v(t+2)}, 1, v0
    v_lshl_add_u32 {v(t+1)}, {v(t+2)}, 4, {v(t+1)}
    v_add_u32 {v(t+1)}, {s(sT)}, {v(t+1)}
    s_add_u32 {s(sT+10)}, {s(sTabLd)}, {FTAB-TABL}
    s_waitcnt lgkmcnt(0)
    {f's_sleep {cfg.fdelay}' if cfg.fdelay else ''}
    {f'global_load_dwordx4 {v(T+8,4)}, {v(t)}, s[18:19]' if cfg.wdpos<2 else f'v_mov_b32 {v(T+24)}, {v(t)}'}
    {f'global_load_dwordx4 {v(T+12,4)}, {v(t)}, s[20:21]' if cfg.wdpos<2 else ''}
    {f'global_load_dwordx4 {v(T+16,4)}, {v(t+1)}, s[22:23]' if cfg.wdpos==0 else f'v_mov_b32 {v(T+23)}, {v(t+1)}'}
    buffer_load_dword {v(T+20)}, off, {WS}, 0 sc1
    buffer_load_dword {v(T+21)}, {v(vL8)}, {WS}, {s(sT+10)} offen sc1
    v_mul_u32_u24 {v(T+22)}, {TS}, {v(t+4)}
    v_lshl_add_u32 {v(T+22)}, {v(t+3)}, 5, {v(T+22)}
    v_lshlrev_b32 {v(t+5)}, 4, {v(vN)}
    s_and_b32 {s(sT)}, {s(sW)}, 1
    s_lshl_b32 {s(sT)}, {s(sT)}, 2
    v_add_u32 {v(t+6)}, {s(sT)}, {v(vQ)}
    v_lshl_add_u32 {v(vXL)}, {v(t+6)}, 12, {v(t+5)}
    v_add_u32 {v(vXL)}, {s(sT+8)}, {v(vXL)}
    v_mul_u32_u24 {v(vXW)}, 272, {v(t+6)}
    v_add_u32 {v(vXW)}, {v(vXW)}, {v(t+5)}
    v_and_b32 {v(t+6)}, 7, {v(vLane)}
    v_mul_u32_u24 {v(vXR)}, 272, {v(t+6)}
    v_lshl_add_u32 {v(vXR)}, {v(vQ)}, 4, {v(vXR)}
    s_cmp_lg_u32 {s(sW)}, 6
    s_cbranch_scc1 L_fa1
    v_lshlrev_b32 {v(vXL)}, 12, {v(t+6)}
    L_fa1:
    s_lshl2_add_u32 {s(sT)}, {s(sT+2)}, {s(sW)}
    s_lshl_b32 {s(sT)}, {s(sT)}, 6
    s_add_u32 {s(sT)}, {s(sT)}, {s(sT+9)}
    v_lshl_add_u32 {v(vPS)}, {v(vN)}, 2, {s(sT)}
    s_lshl_b32 {s(sT)}, {s(sW)}, 8
    v_mul_u32_u24 {v(vPL)}, 1792, {v(vQ)}
    v_add3_u32 {v(vPL)}, {v(vPL)}, {v(t+5)}, {s(sT)}
    s_lshl_b32 {s(sT)}, {s(sW)}, 7
    s_add_u32 {s(sT)}, {s(sT)}, {F_H}
    v_lshl_add_u32 {v(vHR)}, {v(vQ)}, 4, {s(sT)}
    v_and_b32 {v(t+6)}, 12, {v(vN)}
    v_lshl_add_u32 {v(vHW)}, {v(t+6)}, 2, {s(sT)}
    v_and_b32 {v(t+6)}, 1, {v(vN)}
    v_lshl_add_u32 {v(vHW)}, {v(t+6)}, 3, {v(vHW)}
    v_and_b32 {v(t+6)}, 2, {v(vN)}
    v_lshl_add_u32 {v(vHW)}, {v(t+6)}, 5, {v(vHW)}
    v_and_b32 {v(t+6)}, 2, {v(vQ)}
    v_add_u32 {v(vHW)}, {v(vHW)}, {v(t+6)}
    v_and_b32 {v(t+6)}, 1, {v(vQ)}
    v_lshl_add_u32 {v(vHW)}, {v(t+6)}, 2, {v(vHW)}
    s_lshl_b32 {s(sT)}, {s(sW)}, 2
    s_add_u32 {s(sT)}, {s(sT)}, {F_D}
    v_lshl_add_u32 {v(vDP)}, {v(vN)}, 5, {s(sT)}
    v_mov_b32 {v(vFl)}, {F_KEY}
    v_mov_b32 {v(vTag)}, 0
    s_mov_b32 {s(sFast)}, 0
    s_mov_b32 {s(sRnd)}, 2
    s_mov_b32 {s(sPo)}, {WSSZ}
    s_mov_b32 {s(sYo)}, {WSSZ}
    s_mov_b32 {s(sYh)}, {WSSZ}
    {'s_branch L_fb2' if cfg.dry else ''}
    L_finit:
    s_mov_b32 {s(sRnd)}, 0
    s_mov_b32 {s(sSlot)}, {SLOT}
    s_lshl_b32 {s(sPo)}, {s(sX)}, 13
    s_add_u32 {s(sPo)}, {s(sPo)}, {PART}
    s_lshl_b32 {s(sYo)}, {s(sX)}, 10
    s_lshl_b32 {s(sT)}, {s(sI)}, 5
    s_add_u32 {s(sYo)}, {s(sYo)}, {s(sT)}
    s_add_u32 {s(sYo)}, {s(sYo)}, {YP}
    s_lshl_b32 {s(sYh)}, {s(sX)}, 7
    s_lshl2_add_u32 {s(sYh)}, {s(sI)}, {s(sYh)}
    s_add_u32 {s(sYh)}, {s(sYh)}, {YHINT}
    s_lshl_b32 {s(sT)}, {s(sW)}, 10
    v_lshl_add_u32 {v(t)}, {v(vLane)}, 4, {s(sT)}
    v_lshl_add_u32 {v(t+1)}, {v(vQ)}, 8, {s(sT)}
    v_lshl_add_u32 {v(t+1)}, {v(vN)}, 3, {v(t+1)}
    s_and_b32 {s(sT)}, {s(sW)}, 3
    s_mul_i32 {s(sT)}, {s(sT)}, {TS}
    v_lshl_add_u32 {v(t+2)}, {v(vQ)}, 8, {s(sT)}
    v_lshl_add_u32 {v(t+2)}, {v(vN)}, 3, {v(t+2)}
    v_mov_b32 {v(vTag+1)}, {s(sXcc)}
    s_lshl3_add_u32 {s(sT+1)}, {s(sI)}, {s(sT+10)}
    s_waitcnt vmcnt(0)
    v_add_u32 {v(vTag)}, 1, {v(T+20)}
    ds_write_b128 {v(T+22)}, {v(T+8,4)}
    ds_write_b128 {v(T+22)}, {v(T+12,4)} offset:16
    {f'ds_write_b128 {v(t)}, {v(T+16,4)} offset:{F_WD}' if cfg.wdpos==0 else ''}
    v_readfirstlane_b32 {s(sTag)}, {v(vTag)}
    s_cmp_lg_u32 {s(sW)}, 0
    s_cbranch_scc1 L_fi1
    s_mov_b64 exec, 1
    buffer_store_dwordx2 {v(vTag,2)}, off, {WS}, {s(sT+1)}
    s_mov_b64 exec, -1
    L_fi1:
    s_waitcnt lgkmcnt(0)
    s_barrier
    """)
    if cfg.stamps: a(f's_mov_b32 {s(sStampI)}, 0')
    stamp()
    for k in range(4):
        a(f'ds_read_b64_tr_b16 {v(WA+4*k,2)}, {v(t+2)} offset:{1024*k}')
        a(f'ds_read_b64_tr_b16 {v(WA+4*k+2,2)}, {v(t+2)} offset:{1024*k+128}')
    a(f"""
    {f'ds_read_b64_tr_b16 {v(WD,2)}, {v(t+1)} offset:{F_WD}' if cfg.wdpos==0 else ''}
    {f'ds_read_b64_tr_b16 {v(WD+2,2)}, {v(t+1)} offset:{F_WD+128}' if cfg.wdpos==0 else ''}
    s_cmp_lg_u32 {s(sW)}, 0
    s_cbranch_scc1 L_fi3
    s_movk_i32 {s(sTry)}, 80
    L_fl:
    buffer_load_dwordx2 {v(t+4,2)}, {v(vL8)}, {WS}, {s(sTabLd)} offen sc1
    buffer_load_dwordx2 {v(t+6,2)}, {v(vL8)}, {WS}, {s(sT+10)} offen sc1
    s_waitcnt vmcnt(0)
    v_cmp_ne_u32 vcc, {s(sTag)}, {v(t+4)}
    v_cmp_ne_u32 {s(sT,2)}, {s(sTag)}, {v(t+6)}
    s_or_b64 vcc, vcc, {s(sT,2)}
    """)
    poll_branch('L_fl', 4, giveup='L_fslowtab', skip=True)
    a(f"""
    v_cmp_ne_u32 vcc, {s(sXcc)}, {v(t+5)}
    v_cmp_ne_u32 {s(sT,2)}, {s(sXcc)}, {v(t+7)}
    s_or_b64 vcc, vcc, {s(sT,2)}
    s_cbranch_vccnz L_fslowtab
    s_mov_b32 {s(sFast)}, 1
    v_and_b32 {v(t+4)}, 1, {v(vQ)}
    v_lshlrev_b32 {v(t+4)}, 16, {v(t+4)}
    v_lshl_add_u32 {v(t+4)}, {v(vN)}, 4, {v(t+4)}
    s_lshl_b32 {s(sT)}, {s(sI)}, 8
    s_add_u32 {s(sT)}, {s(sT)}, {s(sPo)}
    buffer_load_dword {v(t+5)}, {v(t+4)}, {WS}, {s(sT)} offen sc1
    L_fi2:
    v_mov_b32 {v(t+6)}, {s(sFast)}
    ds_write_b32 {v(vFl)}, {v(t+6)} offset:4
    L_fi3:
    s_waitcnt vmcnt(0) lgkmcnt(0)
    s_barrier
    ds_read_b32 {v(t+6)}, {v(vFl)} offset:4
    s_waitcnt lgkmcnt(0)
    v_readfirstlane_b32 {s(sFast)}, {v(t+6)}
    """)
    if cfg.wdpos==2:
        a(f"""
        {f's_sleep {cfg.gdelay}' if cfg.gdelay else ''}
        global_load_dwordx4 {v(T+8,4)}, {v(T+24)}, s[18:19]
        global_load_dwordx4 {v(T+12,4)}, {v(T+24)}, s[20:21]
        global_load_dwordx4 {v(T+16,4)}, {v(T+23)}, s[22:23]
        s_waitcnt vmcnt(0)
        ds_write_b128 {v(T+22)}, {v(T+8,4)}
        ds_write_b128 {v(T+22)}, {v(T+12,4)} offset:16
        ds_write_b128 {v(t)}, {v(T+16,4)} offset:{F_WD}
        s_waitcnt lgkmcnt(0)
        s_barrier
        """)
        for k in range(4):
            a(f'ds_read_b64_tr_b16 {v(WA+4*k,2)}, {v(t+2)} offset:{1024*k}')
            a(f'ds_read_b64_tr_b16 {v(WA+4*k+2,2)}, {v(t+2)} offset:{1024*k+128}')
        a(f"""
        ds_read_b64_tr_b16 {v(WD,2)}, {v(t+1)} offset:{F_WD}
        ds_read_b64_tr_b16 {v(WD+2,2)}, {v(t+1)} offset:{F_WD+128}
        s_waitcnt lgkmcnt(0)
        """)
    if cfg.wdpos==1: a(f"""
    {f's_sleep {cfg.gdelay}' if cfg.gdelay else ''}
    global_load_dwordx4 {v(T+16,4)}, {v(T+23)}, s[22:23]
    s_waitcnt vmcnt(0)
    ds_write_b128 {v(t)}, {v(T+16,4)} offset:{F_WD}
    ds_read_b64_tr_b16 {v(WD,2)}, {v(t+1)} offset:{F_WD}
    ds_read_b64_tr_b16 {v(WD+2,2)}, {v(t+1)} offset:{F_WD+128}
    s_waitcnt lgkmcnt(0)
    """)
    a(f"""
    L_frnd:
    s_add_u32 {s(sTabLd)}, {s(sTabLd)}, {ARGR}
    s_cmp_lg_u32 {s(sW)}, 0
    s_cbranch_scc1 L_fb1
    s_cmp_eq_u32 {s(sFast)}, 0
    s_cbranch_scc1 L_fb1
    L_ftrig:
    buffer_load_dword {v(t)}, {v(vL8)}, {WS}, {s(sTabLd)} offen sc1
    s_waitcnt vmcnt(0)
    v_cmp_ne_u32 vcc, {s(sTag)}, {v(t)}
    """)
    poll_branch('L_ftrig', cfg.slp_f)
    stamp()
    a(f"""
    s_sleep {cfg.tim_arg}
    L_fb1:
    s_sub_u32 {s(sT)}, {s(sW)}, 4
    s_cmp_lt_u32 {s(sT)}, 2
    s_barrier
    s_cbranch_scc1 L_fx
    s_cmp_lg_u32 {s(sW)}, 6
    s_cbranch_scc1 L_fb2
    s_mov_b64 exec, 0xff
    L_fhd:
    buffer_load_dword {v(t)}, {v(vXL)}, {WS}, {s(sSlot)} offen offset:3072 sc1
    s_waitcnt vmcnt(0)
    v_cmp_eq_u32 vcc, -1, {v(t)}
    """)
    poll_branch('L_fhd', 2, skip=True)
    a(f"""
    v_max_u32_dpp {v(t)}, {v(t)}, {v(t)} row_half_mirror {DPP}
    v_max_u32_dpp {v(t)}, {v(t)}, {v(t)} quad_perm:[1,0,3,2] {DPP}
    v_max_u32_dpp {v(t)}, {v(t)}, {v(t)} quad_perm:[2,3,0,1] {DPP}
    ds_write_b32 {v(vFl)}, {v(t)}
    s_mov_b64 exec, -1
    s_branch L_fb2
    L_fx:
    buffer_load_dwordx4 {v(t,4)}, {v(vXL)}, {WS}, {s(sSlot)} offen sc1
    s_waitcnt vmcnt(0)
    ds_write_b128 {v(vXW)}, {v(t,4)} offset:{F_X}
    """)
    maxchk(range(t,t+4), t+4)
    poll_branch('L_fx', 2, mask=True)
    Dd=t+16
    a(f"""
    L_fb2:
    s_cmp_gt_u32 {s(sW)}, 3
    s_waitcnt lgkmcnt(0)
    s_barrier
    s_cbranch_scc1 L_fnoa
    ds_read_b32 {v(t+20)}, {v(vFl)}
    """)
    for k in range(4): a(f'ds_read_b128 {v(t+4*k,4)}, {v(vXR)} offset:{F_X+64*k}')
    stamp()
    a(f"""
    s_cmp_lt_u32 {s(sI)}, 28
    s_cselect_b32 {s(sPs)}, {s(sPo)}, {WSSZ}
    s_waitcnt lgkmcnt(3)
    v_mfma_f32_16x16x32_bf16 {v(Dd,4)}, {v(t,4)}, {v(WA,4)}, 0
    v_readfirstlane_b32 {s(sKey)}, {v(t+20)}
    s_waitcnt lgkmcnt(2)
    v_mfma_f32_16x16x32_bf16 {v(Dd,4)}, {v(t+4,4)}, {v(WA+4,4)}, {v(Dd,4)}
    s_bitcmp0_b32 {s(sKey)}, 0
    s_cselect_b64 vcc, -1, 0
    s_waitcnt lgkmcnt(1)
    v_mfma_f32_16x16x32_bf16 {v(Dd,4)}, {v(t+8,4)}, {v(WA+8,4)}, {v(Dd,4)}
    s_bitcmp0_b32 {s(sKey)}, 1
    s_cselect_b64 {s(sT+2,2)}, -1, 0
    s_waitcnt lgkmcnt(0)
    v_mfma_f32_16x16x32_bf16 {v(Dd,4)}, {v(t+12,4)}, {v(WA+12,4)}, {v(Dd,4)}
    s_andn2_b32 {s(sT)}, 4, {s(sKey)}
    s_lshl_b32 {s(sT)}, {s(sT)}, 2
    s_bfm_b64 exec, 16, {s(sT)}
    s_cmp_eq_u32 {s(sFast)}, 0
    v_cndmask_b32 {v(Dd)}, {v(Dd)}, {v(Dd+1)}, vcc
    v_cndmask_b32 {v(Dd+2)}, {v(Dd+2)}, {v(Dd+3)}, vcc
    v_cndmask_b32 {v(Dd)}, {v(Dd)}, {v(Dd+2)}, {s(sT+2,2)}
    s_cbranch_scc1 L_fps_s ;!nd
    buffer_store_dword {v(Dd)}, {v(vPS)}, {WS}, {s(sPs)} offen
    L_fps_d:
    s_mov_b64 exec, -1
    s_cmp_eq_u32 {s(sRnd)}, 2
    s_cbranch_scc1 L_fpok
    s_waitcnt vmcnt(0)
    s_branch L_fp
    L_fps_s:
    buffer_store_dword {v(Dd)}, {v(vPS)}, {WS}, {s(sPs)} offen sc1
    s_branch L_fps_d
    L_fnoa:
    s_cmp_eq_u32 {s(sW)}, 7
    s_cbranch_scc1 L_f7
    s_cmp_eq_u32 {s(sRnd)}, 2
    s_cbranch_scc1 L_fpok
    s_sleep {cfg.tim_p}
    s_branch L_fp
    L_fp:
    buffer_load_dwordx4 {v(t,4)}, {v(vPL)}, {WS}, {s(sPo)} offen sc1
    s_waitcnt vmcnt(0)
    """)
    maxchk(range(t,t+4), t+4)
    poll_branch('L_fp', cfg.slp_p, mask=True)
    stamp()
    a(f"""
    L_fpok:
    v_permlane32_swap_b32 {v(t)}, {v(t+1)}
    v_permlane32_swap_b32 {v(t+2)}, {v(t+3)}
    v_add_f32 {v(t)}, {v(t)}, {v(t+1)}
    v_add_f32 {v(t+2)}, {v(t+2)}, {v(t+3)}
    v_permlane16_swap_b32 {v(t)}, {v(t+2)}
    v_add_f32 {v(t)}, {v(t)}, {v(t+2)}
    v_mul_f32 {v(t+1)}, 0xbfb8aa3b, {v(t)}
    v_exp_f32 {v(t+1)}, {v(t+1)}
    v_mul_f32_dpp {v(t+2)}, {v(t)}, {v(t)} quad_perm:[2,3,0,1] {DPP}
    v_add_f32 {v(t+1)}, 1.0, {v(t+1)}
    v_rcp_f32 {v(t+1)}, {v(t+1)}
    v_mul_f32 {v(t+1)}, {v(t+1)}, {v(t+2)}
    v_cvt_pk_bf16_f32 {v(t+1)}, {v(t+1)}, {v(t+1)}
    ds_write_b16 {v(vHW)}, {v(t+1)}
    ds_read_b128 {v(t+4,4)}, {v(vHR)}
    """)
    if cfg.eh:
        a(f's_cmp_lg_u32 {s(sW)}, 5\ns_cbranch_scc1 L_fyh_d')
        hint_store(vTag, sYh, 'L_fyh')
    a(f"""
    s_waitcnt lgkmcnt(0)
    v_mfma_f32_16x16x32_bf16 {v(t+8,4)}, {v(t+4,4)}, {v(WD,4)}, 0
    s_mov_b64 exec, 0xffff
    ds_write_b32 {v(vDP)}, {v(t+8)}
    s_mov_b64 exec, -1
    s_waitcnt lgkmcnt(0)
    s_barrier
    L_fnext:
    """)
    stamp()
    a(f"""
    s_cmp_eq_u32 {s(sRnd)}, 1
    s_cbranch_scc1 L_fend
    s_cmp_eq_u32 {s(sRnd)}, 2
    s_cbranch_scc1 L_finit
    """)
    if cfg.wb==1: a(f"""
    s_cmp_lg_u32 {s(sI)}, 28
    s_cbranch_scc1 L_nwb
    s_cmp_lg_u32 {s(sW)}, 3
    s_cbranch_scc1 L_nwb
    s_sleep {cfg.wbd}
    buffer_wbl2 sc1
    L_nwb:
    """)
    a(f"""
    s_mov_b32 {s(sRnd)}, 1
    s_add_u32 {s(sSlot)}, {s(sSlot)}, {SLOTR}
    s_add_u32 {s(sPo)}, {s(sPo)}, {PARTR}
    s_add_u32 {s(sYo)}, {s(sYo)}, {YPR}
    s_add_u32 {s(sYh)}, {s(sYh)}, {YHR}
    s_branch L_frnd
    L_f7:
    ds_read_b32 {v(t+20)}, {v(vFl)}
    v_mov_b32 {v(vSig)}, 0xbfb8aa3b
    v_add_u32 {v(t+8)}, -28, {v(vDP)}
    v_lshlrev_b32 {v(t+9)}, 1, {v(vN)}
    s_waitcnt lgkmcnt(0)
    v_readfirstlane_b32 {s(sKey)}, {v(t+20)}
    s_ashr_i32 {s(sT)}, {s(sKey)}, 31
    s_orn2_b32 {s(sT)}, 0x80000000, {s(sT)}
    s_xor_b32 {s(sT)}, {s(sT)}, {s(sKey)}
    v_mul_f32 {v(vSig)}, {s(sT)}, {v(vSig)}
    v_exp_f32 {v(vSig)}, {v(vSig)}
    v_add_f32 {v(vSig)}, 1.0, {v(vSig)}
    v_rcp_f32 {v(vSig)}, {v(vSig)}
    s_barrier
    ds_read_b128 {v(t,4)}, {v(t+8)}
    ds_read_b96 {v(t+4,3)}, {v(t+8)} offset:16
    s_waitcnt lgkmcnt(1)
    v_pk_add_f32 {v(t,2)}, {v(t,2)}, {v(t+2,2)}
    v_add_f32 {v(t)}, {v(t)}, {v(t+1)}
    s_waitcnt lgkmcnt(0)
    v_add_f32 {v(t+4)}, {v(t+4)}, {v(t+5)}
    v_add_f32 {v(t)}, {v(t)}, {v(t+6)}
    v_add_f32 {v(t)}, {v(t)}, {v(t+4)}
    v_mul_f32 {v(t)}, {v(t)}, {v(vSig)}
    v_mov_b32_dpp {v(t+1)}, {v(t)} quad_perm:[1,1,3,3] {DPP}
    s_mov_b64 exec, 0x5555
    v_cvt_pk_bf16_f32 {v(t)}, {v(t)}, {v(t+1)}
    buffer_store_dword {v(t)}, {v(t+9)}, {WS}, {s(sYo)} offen sc1
    """)
    if cfg.eh: a('s_mov_b64 exec, -1')
    else: hint_store(vTag, sYh, 'L_fyh')
    a(f"""
    s_branch L_fnext
    L_fslowtab:
    v_and_b32 {v(t+16)}, 7, {v(vLane)}
    v_lshlrev_b32 {v(t+16)}, 7, {v(t+16)}
    s_mov_b32 {s(sT+10)}, {TABG}
    L_ftab2:
    buffer_load_dword {v(t+4)}, {v(t+16)}, {WS}, {s(sT+10)} offen sc1
    s_waitcnt vmcnt(0)
    v_cmp_ne_u32 vcc, {s(sTag)}, {v(t+4)}
    """)
    poll_branch('L_ftab2', 8)
    a('s_branch L_fi2\nL_fend:')
    dump_stamps()
    a('s_endpgm')

def build():
    hdr=open('ref.txt').read().split('; @launch')[0]
    a.raw(hdr+f'; @launch grid=({NWG},1,1) block=(512,1,1) lds={LDS_TOTAL}')
    a.raw(f'''; generated by gen/gen.py (hand-written generator): persistent FFT-structured FNet + MoD kernel
.amdgcn_target "amdgcn-amd-amdhsa--gfx950"
.text
.globl {NAME}_kernel
.p2align 8
.type {NAME}_kernel,@function
{NAME}_kernel:''')
    if cfg.st0: a(f's_memrealtime s[88:89]\ns_waitcnt lgkmcnt(0)')
    a(f'''
    s_load_dwordx2 s[12:13], s[0:1], 0
    s_load_dwordx2 s[8:9], s[0:1], 96
    s_load_dwordx8 s[16:23], s[0:1], 48
    v_and_b32 {v(vN)}, 15, v0
    v_bfe_u32 {v(vQ)}, v0, 4, 2
    v_lshrrev_b32 v2, 6, v0
    v_lshlrev_b32 {v(vUW)}, 7, v2
    v_lshl_add_u32 {v(vUW)}, {v(vN)}, 3, {v(vUW)}                ; 128w+8n
    v_lshl_add_u32 {v(vXoff)}, {v(vQ)}, 19, {v(vUW)}
    s_lshl_b32 {s(sRow0)}, s2, 10
    s_add_u32 {s(sRow1)}, {s(sRow0)}, 0x40000
    s_mov_b32 s14, 0x200000
    s_mov_b32 s15, 0x20000
    v_readfirstlane_b32 {s(sW)}, v2
    ''')
    if cfg.codepf: a(f'''
    s_getpc_b64 {s(sT+6,2)}
    L_pc:
    v_lshlrev_b32 v3, 5, v0
    v_min_u32 v3, L_end-L_pc, v3
    {f'global_load_dword {v(vTG)}, v3, {s(sT+6,2)}' if cfg.codepf==1 else ''}
    ''')
    a(f'''
    s_cmp_ge_u32 s2, 256
    s_cbranch_scc1 L_nox ;!nd
    s_waitcnt lgkmcnt(0)
    buffer_load_dwordx2 {v(BC,2)}, {v(vXoff)}, {XS}, {s(sRow0)} offen
    buffer_load_dwordx2 {v(BC+2,2)}, {v(vXoff)}, {XS}, {s(sRow1)} offen
    L_nox:
    {f'global_load_dword {v(vTG)}, v3, {s(sT+6,2)}' if cfg.codepf==2 else ''}
    s_cmp_ge_u32 s2, {NWG}
    s_cbranch_scc1 L_end
    {'s_waitcnt lgkmcnt(0)' if cfg.wsoff else ''}
    {f's_add_u32 s8, s8, {cfg.wsoff<<20}' if cfg.wsoff else ''}
    {'s_addc_u32 s9, s9, 0' if cfg.wsoff else ''}
    s_load_dwordx2 s[28:29], s[0:1], 80
    v_and_b32 {v(vLane)}, 63, v0
    s_mov_b32 s10, {WSSZ}
    s_mov_b32 s11, 0x20000
    s_mov_b32 s30, 0x200000
    s_mov_b32 s31, 0x20000
    s_and_b32 {s(sX)}, s2, 7
    s_lshr_b32 {s(sJ)}, s2, 3
    v_mov_b32 {v(SENT)}, -1
    v_mov_b32 {v(SENT+1)}, -1
    v_mov_b32 {v(SENT+2)}, -1
    v_mov_b32 {v(SENT+3)}, -1
    v_lshlrev_b32 {v(vL8)}, 3, v0
    v_and_b32 {v(vL8)}, 0xf8, {v(vL8)}
    s_mov_b32 {s(sCnt)}, 200000
    s_mov_b32 {s(sM7FF)}, 0x7ff
    s_lshl_b32 {s(sTabLd)}, {s(sX)}, 8
    s_add_u32 {s(sTabLd)}, {s(sTabLd)}, {TABL}
    s_getreg_b32 {s(sXcc)}, hwreg(HW_REG_XCC_ID, 0, 4)
    ''')
    if cfg.force_slow: a(f's_mov_b32 {s(sXcc)}, {s(sJ)}')
    if cfg.stamps:
        a(f's_mov_b32 {s(sStampI)}, 0\nv_mov_b32 {v(vSTMP)}, 0')
        a(f's_memrealtime {s(sTS,2)}\ns_memtime {s(sTS+2,2)}\ns_waitcnt lgkmcnt(0)\nv_writelane_b32 {v(vSTMP)}, {s(sTS)}, 63\nv_writelane_b32 {v(vSTMP)}, {s(sTS+2)}, 62')
        if cfg.st0: a(f'v_writelane_b32 {v(vSTMP)}, {s(sTS)}, 58\nv_writelane_b32 {v(vSTMP)}, s88, 63\ns_memrealtime {s(sTS,2)}\ns_waitcnt lgkmcnt(0)\nv_writelane_b32 {v(vSTMP)}, {s(sTS)}, 59')
    a('''s_cmp_ge_u32 s2, 256
    s_cbranch_scc1 L_ffn''')
    if cfg.prio: a(f's_setprio 2\ns_cmp_gt_u32 {s(sW)}, 1\ns_cbranch_scc1 L_np\ns_setprio 3\nL_np:')
    main_prologue()
    main_loop()
    ffn()
    a('L_end:\ns_endpgm')
    a.raw(f'''.section .rodata,"a"
.p2align 6
.amdhsa_kernel {NAME}_kernel
  .amdhsa_next_free_vgpr 128
  .amdhsa_next_free_sgpr 96
  .amdhsa_accum_offset 128
  .amdhsa_group_segment_fixed_size 0
  .amdhsa_kernarg_size 104
  .amdhsa_user_sgpr_count 2
  .amdhsa_user_sgpr_kernarg_segment_ptr 1
  .amdhsa_system_sgpr_workgroup_id_x 1
.end_amdhsa_kernel''')
    return a.text()
if __name__=='__main__':
    out=sys.argv[1]
    for kv in sys.argv[2:]:
        k,val=kv.split('='); assert hasattr(cfg,k); setattr(cfg,k,int(val))
    open(out,'w').write(build())
    print('instrs',a.count,'nops',a.nops)
```

```python
import sys, struct
from asmlib import Asm
NAME='interleave_layers__spectral_fnet__moe_arch_mod__prompt'
def fbits(x): return '0x%08x' % struct.unpack('<I', struct.pack('<f', x))[0]

class Cfg:
    stamps=0
    tim_arg=16
    tim_y=0
    tim_h=0
    slp_g=2
    slp_l=1
    force_slow=0
    prio=1
    codepf=1
    exp=0
    tlb=0
    wsoff=0
    st0=0
    cal=-1
    calwg=0
    dbgout=0
    dry=1
    wb=0
    fdelay=20
    gdelay=18
    osc=1
    odel=0
    pfm=7
    clr2=0
    nb0=0
    ehint=0
    post=0
    slp_t=0
    aft=0
    g2pos=0
    tim_fh=12
    wdpos=0
    slp_p=1
    tim_p=8
    hold=1
    tim_gy=12
    eh=1
    own=1
    tim_y3=8
    beh=1
    gbb=0
    slp_f=2
    early=4
    tim_a0=0
    wbd=12
    gbdelay=4
    late=1
    split=0
    tch=1
cfg=Cfg()

TABG=0x1000; TABGR=0x6000
TABL=0x2000; ARGR=0x800
TAB2=0x3800
SLOWF=0x4000
YHINT=0x5000; YHR=0x400
FTAB=0x6000
CLR0=0x8000
YP=0x8000; YPR=0x2000
PART=0x20000; PARTR=0x10000
SLOT=0x10000; SLOTR=0x8000
LBASE=0x40000; PS=8448; LX=32*PS
GBASE=0x260000; GS=262144+768; GR=0x210000
STAMP=0x700000
WSSZ=0x800000
NWG=512
NST=(13,9,7)
L_STAT=0; L_U=0x400; L_YI=0x2400; YIS=320; L_YT=0x4C00; L_DH=0x6E00; L_FLAG=0x7E00; LDS_TOTAL=0x7E80
L_CX=0x2400
def v(a,n=1): return f'v{a}' if n==1 else f'v[{a}:{a+n-1}]'
def s(a,n=1): return f's{a}' if n==1 else f's[{a}:{a+n-1}]'

WS='s[8:11]'; XS='s[12:15]'; OS='s[28:31]'
sW=3; sX=26; sJ=27; sIt=32; sTag=33; sFast=34; sKey=35; sMir=36; sDsc=38
sLst=39; sLld=40; sPh=41; sTabG=42; sG0=43; sG4=44; sTabSt=45; sTabLd=46; sSlot=47; sRow0=48; sRow1=49; sCnt=50
sXcc=51; sStampI=37
sK512=52
sTry=53
sEps=54
sC16=56
sSc=58
sM7FF=60; sTop=61
sQmask=62
sT=64
sNx=84; sSg=85; sYo=86; sYh=87
sTS=80
X=2; WV=10; A8=14; XA=16; B1C=20; B1S=24; B1N=28; TWC=32; TWS=36; A2R=40; A2I=44; YC=48; YS=52
AD=56; BC=58
vXoff=72; vStW=73; vStR=74; vUW=75; vUR=76; vLst=77; vLld=78; vLldM=79; vYIW=80; vYIR=81; vYW=82; vYR=83; vGst=84; vGld=85
vSc0=86; vL8=88; vInv=89; vN=90; vQ=91; vSTMP=1; vLane=92; vTG=93
LNP=94; MM=98; RS2=100
T=102
class Asm2(Asm):
    def __call__(self, text):
        parts=text.split(';@F')
        for i,p in enumerate(parts):
            if i: fstamp()
            Asm.__call__(self,p)
a=Asm2()
def poll_branch(lbl, sleep=1, pre='', giveup=None, skip=False, mask=False):
    k=a.lines.index(lbl+':')
    if mask:
        pre+='\ns_mov_b64 exec, vcc'; skip=True
        k2=next(i for i in range(k,len(a.lines)) if 's_waitcnt vmcnt(0)' in a.lines[i])
        k3=max(i for i in range(k,k2) if 'buffer_load' in a.lines[i])
        a.lines.insert(k3+1,'    s_mov_b64 exec, -1')
    if a.lines[k-1].strip().startswith(('s_branch','s_endpgm')): skip=False
    a(f's_cbranch_vccnz {lbl}_r ;!nd')
    st=[]
    if skip: st.append(f'    s_branch {lbl}')
    st.append(f'{lbl}_r:')
    if giveup: st+= [f'    s_sub_u32 {s(sTry)}, {s(sTry)}, 1', f'    s_cbranch_scc1 {giveup}']
    else: st+= [f'    s_sub_u32 {s(sCnt)}, {s(sCnt)}, 1', '    s_cbranch_scc1 L_end']
    st+= ['    '+x.strip() for x in pre.split('\n') if x.strip()]
    if sleep: st.append(f'    s_sleep {sleep}')
    a.lines[k:k]=st
def fstamp():
    if cfg.stamps>=2: stamp()
def stamp():
    if not cfg.stamps: return
    a(f'''{'s_memtime' if cfg.stamps==2 else 's_memrealtime'} {s(sTS,2)}
    s_waitcnt lgkmcnt(0)
    s_mov_b32 m0, {s(sStampI)}
    s_add_u32 {s(sStampI)}, {s(sStampI)}, 1
    v_writelane_b32 {v(vSTMP)}, {s(sTS)}, m0''')
def dump_stamps():
    if not cfg.stamps: return
    a(f's_memrealtime {s(sTS,2)}\ns_memtime {s(sTS+2,2)}\ns_waitcnt lgkmcnt(0)\nv_writelane_b32 {v(vSTMP)}, {s(sTS)}, 61\nv_writelane_b32 {v(vSTMP)}, {s(sTS+2)}, 60')
    if cfg.cal>=0:
        lab='L_cal%d'%len(a.lines)
        a(f'''s_cmp_lg_u32 s2, {cfg.calwg}
        s_cbranch_scc1 {lab}
        s_cmp_lg_u32 {s(sW)}, 0
        s_cbranch_scc1 {lab}
        v_readlane_b32 {s(sT)}, {v(vSTMP)}, {cfg.cal}
        v_readlane_b32 {s(sT+1)}, {v(vSTMP)}, 63
        s_sub_u32 {s(sT)}, {s(sT)}, {s(sT+1)}
        s_lshl_b32 {s(sT)}, {s(sT)}, 2
        s_add_u32 {s(sT)}, {s(sT)}, 3000
        s_min_u32 {s(sT)}, {s(sT)}, 50000
        {lab}_l:
        s_memrealtime {s(sTS,2)}
        s_waitcnt lgkmcnt(0)
        s_sub_u32 {s(sT+2)}, {s(sTS)}, {s(sT+1)}
        s_cmp_lt_u32 {s(sT+2)}, {s(sT)}
        s_cbranch_scc1 {lab}_l
        {lab}:''')
    a(f'''s_lshl_b32 {s(sT)}, s2, 11
    s_lshl_b32 {s(sT+1)}, {s(sW)}, 8
    s_add_u32 {s(sT)}, {s(sT)}, {s(sT+1)}
    s_add_u32 {s(sT)}, {s(sT)}, {STAMP}
    v_lshlrev_b32 {v(vLane)}, 2, {v(vLane)}
    buffer_store_dword {v(vSTMP)}, {v(vLane)}, {WS}, {s(sT)} offen''')
def maxchk(regs, t):
    regs=list(regs)
    a(f'v_max3_u32 {v(t)}, {v(regs[0])}, {v(regs[1])}, {v(regs[2])}')
    rest=regs[3:]
    while len(rest)>=2:
        a(f'v_max3_u32 {v(t)}, {v(t)}, {v(rest[0])}, {v(rest[1])}'); rest=rest[2:]
    if rest: a(f'v_max_u32 {v(t)}, {v(t)}, {v(rest[0])}')
    a(f'v_cmp_eq_u32 vcc, -1, {v(t)}')
def phchk(regs, t):
    regs=list(regs)
    a(f'v_bitop3_b32 {v(t)}, {v(regs[0])}, {v(regs[1])}, {s(sPh)} bitop3:0x7e')
    for r in regs[2:]: a(f'v_bitop3_b32 {v(t)}, {v(t)}, {v(r)}, {s(sPh)} bitop3:0xf6')
    a(f'v_and_b32 {v(t)}, 1, {v(t)}\nv_cmp_ne_u32 vcc, 0, {v(t)}')
def tag4chk(r):
    for k in range(4): a(f'v_xor_b32 {v(r+k)}, {s(sTag)}, {v(r+k)}')
    a(f'v_or3_b32 {v(r)}, {v(r)}, {v(r+1)}, {v(r+2)}\nv_or_b32 {v(r)}, {v(r)}, {v(r+3)}\nv_cmp_ne_u32 vcc, 0, {v(r)}')
DPP='row_mask:0xf bank_mask:0xf'

def fft_core(xr, xi, U, V, F, P, fill1='', fill2=''):
    Ur,Ui=U,U+4
    a(f'v_mfma_f32_16x16x32_f16 {v(Ur,4)}, {v(xr,4)}, {v(B1C,4)}, 0')
    a(f'v_mfma_f32_16x16x32_f16 {v(Ui,4)}, {v(xr,4)}, {v(B1N,4)}, 0')
    if xi is not None:
        a(f'v_mfma_f32_16x16x32_f16 {v(Ur,4)}, {v(xi,4)}, {v(B1S,4)}, {v(Ur,4)}')
        a(f'v_mfma_f32_16x16x32_f16 {v(Ui,4)}, {v(xi,4)}, {v(B1C,4)}, {v(Ui,4)}')
    a(fill1)
    Vr,Vi=V,V+4
    for h in (0,2):
        a(f'v_pk_mul_f32 {v(Vi+h,2)}, {v(Ur+h,2)}, {v(TWS+h,2)}')
    for h in (0,2):
        a(f'v_pk_mul_f32 {v(Vr+h,2)}, {v(Ui+h,2)}, {v(TWS+h,2)}')
    for h in (0,2):
        a(f'v_pk_fma_f32 {v(Vr+h,2)}, {v(Ur+h,2)}, {v(TWC+h,2)}, {v(Vr+h,2)}')
        a(f'v_pk_fma_f32 {v(Vi+h,2)}, {v(Ui+h,2)}, {v(TWC+h,2)}, {v(Vi+h,2)} neg_lo:[0,0,1] neg_hi:[0,0,1]')
    for r in range(4): a(f'v_cvt_pk_f16_f32 {v(P+r)}, {v(Vr+r)}, {v(Vi+r)}')
    a(f'v_mfma_f32_16x16x32_f16 {v(F,4)}, {v(A2R,4)}, {v(P,4)}, 0')
    a(f'v_mfma_f32_16x16x32_f16 {v(F+4,4)}, {v(A2I,4)}, {v(P,4)}, 0')
    a(fill2)
    for r in range(4): a(f'v_cvt_pk_f16_f32 {v(P+r)}, {v(F+r)}, {v(F+4+r)}')

SENT=T+4

def main_prologue():
    t=T
    X0=BC
    a(f'''
    s_mul_i32 {s(sLld)}, {s(sX)}, {LX}
    s_add_u32 {s(sLld)}, {s(sLld)}, {LBASE}
    s_mul_i32 {s(sLst)}, {s(sJ)}, {PS}
    s_add_u32 {s(sLst)}, {s(sLst)}, {s(sLld)}
    v_lshlrev_b32 {v(t)}, 4, v0
    v_lshrrev_b32 {v(t+1)}, 4, v0
    global_load_dwordx2 {v(X0+4,2)}, {v(vUW)}, s[16:17]
    buffer_load_dword {v(X0+6)}, off, {WS}, 0 sc1
    ''')
    tabt=f'buffer_load_dword {v(X0+7)}, {v(vL8)}, {WS}, {s(sTabLd)} offen sc1'
    ltch=f'buffer_load_dwordx4 {v(X0+8,4)}, {v(t)}, {WS}, {s(sLst) if not cfg.exp&1 else "s10"} offen sc1'
    lclr=f'buffer_store_dwordx4 {v(SENT,4)}, {v(t)}, {WS}, {s(sLst)} offen'
    if cfg.tch==0: a(tabt+'\n'+ltch+'\n'+lclr)
    if cfg.tch==1 and not cfg.aft&1: a(tabt+'\n'+ltch)
    if cfg.tch==2: a(tabt+'\n'+lclr+'\n'+ltch)
    if cfg.tch==3: a(ltch.replace(' sc1','')+'\n'+ltch.replace(' sc1','')+'\n'+lclr)
    a(f'''
    s_mov_b32 {s(sG0)}, {GBASE}
    s_mul_i32 {s(sT)}, {s(sX)}, {GS}
    s_add_u32 {s(sT+2)}, {s(sJ)}, 24
    s_and_b32 {s(sT+2)}, {s(sT+2)}, 24
    s_lshl_b32 {s(sT+2)}, {s(sT+2)}, 13
    s_add_u32 {s(sT)}, {s(sT)}, {s(sT+2)}
    s_and_b32 {s(sT+2)}, {s(sJ)}, 7
    s_cmp_lt_u32 {s(sJ)}, 8
    s_cselect_b32 {s(sT+3)}, 7, 8
    s_cselect_b32 {s(sT+4)}, 112, 0
    s_lshl_b32 {s(sT+2)}, {s(sT+2)}, {s(sT+3)}
    s_add_u32 {s(sT)}, {s(sT)}, {s(sT+2)}
    v_lshlrev_b32 {v(t+2)}, 4, {v(vN)}
    v_lshl_add_u32 {v(vGst)}, {v(t+1)}, 11, {v(t+2)}
    v_and_b32 {v(t+3)}, 8, {v(vN)}
    v_mad_u32_u24 {v(vGst)}, {v(t+3)}, {s(sT+4)}, {v(vGst)}
    v_add_u32 {v(vGst)}, {s(sT)}, {v(vGst)}
    s_lshl_b32 {s(sT+15)}, s2, 13
    s_sub_u32 {s(sT+14)}, s2, 4
    s_cmp_lt_u32 {s(sT+14)}, 28
    s_cselect_b32 {s(sT+15)}, {s(sT+15)}, {WSSZ}
    ''')
    clrs=f'''buffer_store_dwordx4 {v(SENT,4)}, {v(vGst)}, {WS}, {s(sG0)} offen sc1
    buffer_store_dwordx4 {v(SENT,4)}, {v(t)}, {WS}, {s(sT+15)} offen sc1'''
    g2c=f's_mov_b32 {s(sT+14)}, {GBASE+GR}\nbuffer_store_dwordx4 {v(SENT,4)}, {v(vGst)}, {WS}, {s(sT+14)} offen sc1'
    if not cfg.aft&2: a(clrs)
    if cfg.g2pos==0: a(g2c)
    c=t+8; co,si=c+8,c+12
    a(f'''
    s_lshr_b32 {s(sT)}, {s(sJ)}, 2
    s_and_b32 {s(sT)}, {s(sT)}, 6                 ; 2*(j>>3)
    s_lshl_b32 {s(sT+1)}, {s(sW)}, 2
    s_and_b32 {s(sT+1)}, {s(sT+1)}, 8             ; 2*4*((w>>1)&1)
    s_cmp_lt_u32 {s(sJ)}, 8
    s_cselect_b32 {s(sT)}, {s(sT+1)}, {s(sT)}
    s_lshl_b32 {s(sT+1)}, {s(sW)}, 4
    s_and_b32 {s(sT+1)}, {s(sT+1)}, 16            ; 16*(w&1)
    s_cmp_ge_u32 {s(sW)}, 4
    s_cselect_b32 {s(sT+2)}, {s(sT+1)}, 0         ; 16k
    s_cselect_b32 {s(sT)}, {s(sT)}, 0
    s_cmp_eq_u32 {s(sW)}, 3
    s_cselect_b32 {s(sT)}, 16, {s(sT)}
    s_lshl_b32 {s(sT+3)}, {s(sW)}, 2
    s_lshr_b32 {s(sT+3)}, 0x44440054, {s(sT+3)}
    s_and_b32 {s(sT+3)}, {s(sT+3)}, 15            ; log2 A
    v_lshlrev_b32 {v(c)}, {s(sT+3)}, {v(vN)}
    v_add_u32 {v(c)}, {s(sT)}, {v(c)}
    v_lshl_add_u32 {v(c+1)}, {v(vQ)}, 2, {s(sT+2)}
    v_cvt_f32_u32 {v(c)}, {v(c)}
    v_cvt_f32_u32 {v(c+1)}, {v(c+1)}
    s_mov_b32 {s(sK512)}, {fbits(1/512)}
    v_mul_f32 {v(c)}, {s(sK512)}, {v(c)}
    v_mul_f32 {v(c+4)}, {v(c+1)}, {v(c)}
    v_add_f32 {v(c+5)}, {v(c+4)}, {v(c)}
    v_add_f32 {v(c+6)}, {v(c+5)}, {v(c)}
    v_add_f32 {v(c+7)}, {v(c+6)}, {v(c)}
    ''')
    fill=[f's_mov_b32 {s(sEps)}, {fbits(1e-5)}', f's_mov_b32 {s(sEps+1)}, {fbits(1e-5)}', f's_mov_b32 {s(sC16)}, {fbits(1/16)}', f's_mov_b32 {s(sC16+1)}, {fbits(1/16)}',
          f's_mov_b32 {s(sTop)}, 0x80000000', f's_mov_b32 {s(sQmask)}, 0x11111111', f's_mov_b32 {s(sQmask+1)}, 0x11111111', f's_mov_b32 {s(sG4)}, {GBASE+4*GS}']
    for r in range(4):
        a(f'v_cos_f32 {v(co+r)}, {v(c+4+r)}'); a(fill[2*r])
        a(f'v_sin_f32 {v(si+r)}, {v(c+4+r)}'); a(fill[2*r+1])
    a(f'''
    s_lshl_b32 {s(sT)}, {s(sW)}, 11
    s_add_u32 {s(sT)}, {s(sT)}, {L_CX}
    v_lshlrev_b32 {v(c+2)}, 4, {v(vLane)}
    v_add_u32 {v(c+3)}, {s(sT)}, {v(c+2)}
    s_and_b32 {s(sT)}, {s(sW)}, 6
    s_cmp_eq_u32 {s(sT)}, 2
    s_cbranch_scc1 L_cw
    s_cmp_eq_u32 {s(sW)}, 1
    s_cbranch_scc1 L_cri
    v_cvt_pk_f16_f32 {v(co)}, {v(co)}, {v(co+1)}
    v_cvt_pk_f16_f32 {v(co+1)}, {v(co+2)}, {v(co+3)}
    v_cvt_pk_f16_f32 {v(co+2)}, {v(si)}, {v(si+1)}
    v_cvt_pk_f16_f32 {v(co+3)}, {v(si+2)}, {v(si+3)}
    s_branch L_cw
    L_cri:
    ''')
    for r in range(4):
        a(f'v_cvt_pk_f16_f32 {v(c+4)}, {v(co+r)}, {v(si+r)}')
        a(f'v_cvt_pk_f16_f32 {v(si+r)}, -{v(si+r)}, {v(co+r)}')
        a(f'v_mov_b32 {v(co+r)}, {v(c+4)}')
    a(f'''
    L_cw:
    ds_write_b128 {v(c+3)}, {v(co,4)}
    ds_write_b128 {v(c+3)}, {v(si,4)} offset:1024
    v_lshrrev_b32 {v(c+4)}, 2, {v(vN)}
    v_and_b32 {v(c+5)}, 2, {v(vN)}
    v_and_b32 {v(c+6)}, 14, {v(vN)}
    v_cmp_eq_u32 vcc, 2, {v(c+6)}
    v_mul_u32_u24 {v(vYIR)}, {YIS}, {v(c+4)}
    v_lshlrev_b32 {v(vStR)}, 8, {v(vQ)}
    v_cndmask_b32 {v(c+4)}, {v(c+4)}, 4, vcc
    v_cndmask_b32 {v(c+5)}, {v(c+5)}, 0, vcc
    v_mul_u32_u24 {v(c+6)}, {v(c+4)}, {v(vQ)}
    v_lshl_add_u32 {v(c+6)}, {v(c+6)}, 1, {v(c+5)}
    v_add_u32 {v(c+7)}, {v(c+6)}, {v(c+4)}
    v_cvt_f32_u32 {v(c+6)}, {v(c+6)}
    v_cvt_f32_u32 {v(c+7)}, {v(c+7)}
    v_mul_f32 {v(c+6)}, 0x3e000000, {v(c+6)}
    v_mul_f32 {v(c+7)}, 0x3e000000, {v(c+7)}
    v_cos_f32 {v(c+6)}, {v(c+6)}
    v_cos_f32 {v(c+7)}, {v(c+7)}
    v_and_b32 {v(c+5)}, 1, {v(vN)}
    v_cmp_eq_u32 vcc, 0, {v(c+5)}
    v_cvt_pk_f16_f32 {v(c+6)}, {v(c+6)}, {v(c+7)}
    v_mov_b32 {v(c+5)}, 0x80008000
    v_cndmask_b32 {v(A8)}, 0, {v(c+6)}, vcc
    v_cndmask_b32 {v(A8+1)}, {v(c+6)}, 0, vcc
    v_cndmask_b32 {v(c+5)}, {v(c+5)}, 0, vcc
    s_lshl_b32 {s(sT+1)}, {s(sT+1)}, 7            ; h*2048
    v_add_u32 {v(c+6)}, {s(sT+1)}, {v(c+2)}
    s_lshl_b32 {s(sT+2)}, {s(sW)}, 11
    s_and_b32 {s(sT+2)}, {s(sT+2)}, 4096          ; ((w>>1)&1)*4096
    v_add_u32 {v(c+7)}, {s(sT+2)}, {v(c+2)}
    s_waitcnt lgkmcnt(0)
    s_barrier
    ds_read_b128 {v(B1N,4)}, {v(c+2)} offset:{L_CX}
    ds_read_b128 {v(co,4)}, {v(c+7)} offset:{L_CX+4*2048}
    ds_read_b128 {v(si,4)}, {v(c+7)} offset:{L_CX+5*2048}
    ds_read_b128 {v(A2R,4)}, {v(c+2)} offset:{L_CX+2048}
    ds_read_b128 {v(A2I,4)}, {v(c+2)} offset:{L_CX+2048+1024}
    ds_read_b128 {v(TWC,4)}, {v(c+6)} offset:{L_CX+4096}
    ds_read_b128 {v(TWS,4)}, {v(c+6)} offset:{L_CX+4096+1024}
    v_and_b32 {v(c+4)}, 4, {v(vN)}
    s_lshl_b32 {s(sT)}, {s(sW)}, 2
    v_lshl_add_u32 {v(vStW)}, {v(t+3)}, 2, {v(vStR)}
    v_lshl_add_u32 {v(vStW)}, {v(c+4)}, 4, {v(vStW)}
    v_add_u32 {v(vStW)}, {s(sT)}, {v(vStW)}
    v_and_b32 {v(c+4)}, 7, {v(vN)}
    v_lshl_add_u32 {v(vStR)}, {v(c+4)}, 5, {v(vStR)}
    v_lshl_add_u32 {v(vUW)}, {v(vQ)}, 11, {v(vUW)}
    v_add_u32 {v(vUW)}, {L_U}, {v(vUW)}
    s_lshr_b32 {s(sT)}, {s(sW)}, 1
    s_lshl_b32 {s(sT)}, {s(sT)}, 11
    s_add_u32 {s(sT+2)}, {s(sT)}, {L_U}
    v_lshl_add_u32 {v(vUR)}, {v(vLane)}, 3, {s(sT+2)}
    ; vLst = w'*2048 + 512q + 64h + 4n
    s_lshr_b32 {s(sT+2)}, {s(sT+1)}, 5
    s_add_u32 {s(sT)}, {s(sT)}, {s(sT+2)}
    v_lshl_add_u32 {v(vLst)}, {v(vQ)}, 9, {s(sT)}
    v_lshl_add_u32 {v(vLst)}, {v(vN)}, 2, {v(vLst)}
    s_lshl_b32 {s(sT)}, {s(sJ)}, 3
    s_add_u32 {s(sTabSt)}, {s(sTabLd)}, {s(sT)}
    s_lshl_b32 {s(sT+3)}, {s(sW)}, 31             ; h sign
    s_lshl_b32 {s(sT+4)}, {s(sW)}, 29
    s_and_b32 {s(sT+4)}, {s(sT+4)}, {s(sTop)}
    s_mov_b32 {s(sT+5)}, 0x80008000
    s_mov_b32 {s(sIt)}, 0
    s_mov_b32 {s(sFast)}, 1
    s_mov_b32 {s(sPh)}, 0
    s_mov_b32 {s(sNx)}, 0
    s_mov_b32 {s(sSlot)}, {WSSZ}
    s_xor_b32 {s(sT+12)}, {s(sJ)}, 9
    s_or_b32 {s(sT+12)}, {s(sT+12)}, {s(sW)}
    s_mov_b32 {s(sTry)}, 64
    s_waitcnt lgkmcnt(4)
    v_xor_b32 {v(B1C)}, {s(sT+3)}, {v(B1N)}
    v_xor_b32 {v(B1C+1)}, {s(sT+3)}, {v(B1N+1)}
    v_xor_b32 {v(B1S)}, {s(sT+3)}, {v(B1N+2)}
    v_xor_b32 {v(B1S+1)}, {s(sT+3)}, {v(B1N+3)}
    v_xor_b32 {v(B1C+2)}, {v(B1C)}, {v(c+5)}
    v_xor_b32 {v(B1C+3)}, {v(B1C+1)}, {v(c+5)}
    v_xor_b32 {v(B1S+2)}, {v(B1S)}, {v(c+5)}
    v_xor_b32 {v(B1S+3)}, {v(B1S+1)}, {v(c+5)}
    ''')
    for r in range(4): a(f'v_xor_b32 {v(B1N+r)}, {s(sT+5)}, {v(B1S+r)}')
    for k,src in ((0,co),(1,si)):
        for r in range(2):
            a(f'v_xor_b32 {v(YC+2*k+r)}, {s(sT+4)}, {v(src+r)}')
            a(f'v_xor_b32 {v(YS+2*k+r)}, {s(sT+4)}, {v(src+2+r)}')
    a(f'''
    s_and_b32 {s(sT+1)}, {s(sW)}, 3
    s_lshl_b32 {s(sT+1)}, {s(sT+1)}, 6            ; 64cb
    s_lshr_b32 {s(sT)}, {s(sW)}, 2
    s_mul_i32 {s(sT)}, {s(sT)}, {16*272}
    s_add_u32 {s(sT)}, {s(sT)}, {s(sT+1)}
    s_add_u32 {s(sT)}, {s(sT)}, {L_YT}
    v_mul_u32_u24 {v(vYW)}, 272, {v(vN)}
    v_lshl_add_u32 {v(vYW)}, {v(vQ)}, 4, {v(vYW)}
    v_add_u32 {v(vYW)}, {s(sT)}, {v(vYW)}
    v_mul_u32_u24 {v(vYR)}, 272, {v(t+1)}
    v_add_u32 {v(vYR)}, {v(vYR)}, {v(t+2)}
    v_add_u32 {v(vYR)}, {L_YT}, {v(vYR)}
    s_add_u32 {s(sT+1)}, {s(sT+1)}, {L_YI}
    v_mul_u32_u24 {v(c+4)}, {4*YIS}, {v(vQ)}
    v_and_b32 {v(c+6)}, 0x30, {v(t+2)}
    v_add3_u32 {v(vYIR)}, {v(vYIR)}, {v(c+4)}, {v(c+6)}
    v_add_u32 {v(vYIR)}, {s(sT+1)}, {v(vYIR)}
    s_cmp_lt_u32 {s(sJ)}, 8
    s_cbranch_scc1 L_aself
    v_mul_u32_u24 {v(vLld)}, {PS}, {v(t+1)}
    v_mul_u32_u24 {v(vYIW)}, {YIS}, {v(t+1)}
    s_lshl_b32 {s(sT)}, {s(sJ)}, 8
    v_add3_u32 {v(vLld)}, {v(vLld)}, {v(t+2)}, {s(sT)}
    v_add_u32 {v(vYIW)}, {v(vYIW)}, {v(t+2)}
    v_mov_b32 {v(vLldM)}, 0
    s_branch L_adone
    L_aself:
    ; s2=(w>>1)*8+(l>>3), u=l&7, which=w&1
    s_lshl_b32 {s(sT)}, {s(sW)}, 2
    s_and_b32 {s(sT)}, {s(sT)}, 24
    v_lshrrev_b32 {v(c+4)}, 3, {v(vLane)}
    v_add_u32 {v(c+4)}, {s(sT)}, {v(c+4)}
    v_and_b32 {v(c+6)}, 0x70, {v(t+2)}
    v_mul_u32_u24 {v(vLldM)}, {PS}, {v(c+4)}
    v_mul_u32_u24 {v(vYIW)}, {YIS}, {v(c+4)}
    s_lshl_b32 {s(sT)}, {s(sJ)}, 7
    s_add_u32 {s(sT+1)}, {s(sT)}, 4
    s_sub_u32 {s(sT)}, {508*4}, {s(sT)}
    v_add3_u32 {v(vLld)}, {v(vLldM)}, {v(c+6)}, {s(sT+1)}
    v_sub_u32 {v(vLldM)}, {v(vLldM)}, {v(c+6)}
    v_add_u32 {v(vLldM)}, {s(sT)}, {v(vLldM)}
    s_lshr_b32 {s(sT)}, {s(sT+3)}, 24
    v_add3_u32 {v(vYIW)}, {v(vYIW)}, {v(c+6)}, {s(sT)}
    L_adone:
    v_add_u32 {v(vYIW)}, {L_YI}, {v(vYIW)}
    s_waitcnt vmcnt({(0 if cfg.aft&1 else 2)+(0 if cfg.aft&2 else 2)+(1 if cfg.g2pos==0 else 0)})
    {tabt if cfg.aft&1 else ''}
    {ltch if cfg.aft&1 else ''}
    {clrs if cfg.aft&2 else ''}
    {g2c if cfg.g2pos==1 else ''}
    v_readfirstlane_b32 {s(sTag)}, {v(X0+6)}
    ''')
    for rho in (0,1):
        for k in (0,1):
            src=X0+2*rho+k
            a(f'v_lshlrev_b32 {v(X+4*k+rho)}, 16, {v(src)}')
            a(f'v_and_b32 {v(X+4*k+2+rho)}, 0xffff0000, {v(src)}')
    for k in (0,1):
        a(f'v_lshlrev_b32 {v(WV+2*k)}, 16, {v(X0+4+k)}')
        a(f'v_and_b32 {v(WV+2*k+1)}, 0xffff0000, {v(X0+4+k)}')
    a(f's_add_u32 {s(sTag)}, {s(sTag)}, 1')

def xin_consts(c):
    a(f'''
    s_and_b32 {s(sT)}, {s(sX)}, 3                ; 0 => self
    s_lshr_b32 {s(sT+1)}, {s(sW)}, 2
    s_lshr_b32 {s(sT+2)}, {s(sX)}, 2
    s_mov_b32 {s(sSc)}, {fbits(16.0)}
    s_cmp_eq_u32 {s(sT)}, 0
    s_cselect_b32 {s(sMir)}, {s(sT+1)}, {s(sT+2)}
    s_cselect_b32 {s(sSc)}, {fbits(8.0)}, {s(sSc)}
    s_cselect_b32 {s(sDsc)}, {fbits(1/8)}, {s(sC16)}
    s_cselect_b32 {s(sT+3)}, -4, 0
    s_mov_b32 {s(sSc+1)}, {s(sSc)}
    s_sub_u32 {s(sT+4)}, 256, s2
    s_and_b32 {s(sT+4)}, {s(sT+4)}, 255
    s_cmp_eq_u32 {s(sMir)}, 0
    s_cselect_b32 {s(sT+4)}, s2, {s(sT+4)}       ; source g
    s_cselect_b32 {s(sT+5)}, 16, -16
    s_cselect_b32 {s(sT+6)}, 0, {509*4}
    s_cselect_b32 {s(sT+7)}, 1.0, -1.0
    s_add_u32 {s(sT+3)}, {s(sT+3)}, {s(sT+6)}
    s_mul_i32 {s(sT+6)}, {s(sT+5)}, {s(sW)}
    s_lshl_b32 {s(sT+6)}, {s(sT+6)}, 4
    s_add_u32 {s(sT+3)}, {s(sT+3)}, {s(sT+6)}
    s_lshr_b32 {s(sT+6)}, {s(sT+4)}, 3
    s_lshl_b32 {s(sT+6)}, {s(sT+6)}, 11
    s_add_u32 {s(sT+3)}, {s(sT+3)}, {s(sT+6)}
    s_add_u32 {s(sT+6)}, {s(sT+4)}, 3
    s_and_b32 {s(sT+6)}, {s(sT+6)}, 3
    s_lshl_b32 {s(sT+6)}, {s(sT+6)}, 16
    s_add_u32 {s(sT+3)}, {s(sT+3)}, {s(sT+6)}
    s_and_b32 {s(sT+6)}, {s(sT+4)}, 4
    s_lshl_b32 {s(sT+6)}, {s(sT+6)}, 8
    s_add_u32 {s(sT+3)}, {s(sT+3)}, {s(sT+6)}
    v_mul_i32_i24 {v(vGld)}, {s(sT+5)}, {v(vN)}
    v_mul_u32_u24 {v(c+4)}, {GS}, {v(vQ)}
    v_add3_u32 {v(vGld)}, {v(vGld)}, {v(c+4)}, {s(sT+3)}
    v_lshrrev_b32 {v(c+4)}, 1, {v(vN)}
    v_and_b32 {v(c+4)}, 6, {v(c+4)}
    v_and_or_b32 {v(c+4)}, {v(vN)}, 1, {v(c+4)}
    v_lshl_add_u32 {v(AD)}, {v(c+4)}, 8, s2
    v_cvt_f32_u32 {v(c+4)}, {v(AD)}
    v_cvt_f32_u32 {v(c+5)}, {v(vQ)}
    v_mul_f32 {v(c+4)}, {fbits(1/2048)}, {v(c+4)}
    v_mul_f32 {v(c+4)}, {s(sT+7)}, {v(c+4)}
    v_mul_f32 {v(c+5)}, {v(c+4)}, {v(c+5)}
    v_fma_f32 {v(c+6)}, {v(c+4)}, 4.0, {v(c+5)}
    v_cos_f32 {v(c+7)}, {v(c+5)}
    v_sin_f32 {v(c+8)}, {v(c+5)}
    v_cos_f32 {v(c+9)}, {v(c+6)}
    v_sin_f32 {v(c+10)}, {v(c+6)}
    v_bfe_u32 {v(c+4)}, {v(vN)}, 1, 1
    v_cmp_eq_u32 vcc, {s(sMir)}, {v(c+4)}
    v_cvt_pk_f16_f32 {v(c+7)}, {v(c+7)}, {v(c+8)}
    v_cvt_pk_f16_f32 {v(c+9)}, {v(c+9)}, {v(c+10)}
    v_cndmask_b32 {v(XA)}, 0, {v(c+7)}, vcc
    v_cndmask_b32 {v(XA+1)}, {v(c+7)}, 0, vcc
    v_cndmask_b32 {v(XA+2)}, 0, {v(c+9)}, vcc
    v_cndmask_b32 {v(XA+3)}, {v(c+9)}, 0, vcc
    v_and_b32 {v(c+4)}, 0x1cf, v0
    v_cmp_eq_u32 vcc, 0, {v(c+4)}
    v_mov_b32 {v(c+5)}, {s(sSc)}
    s_sub_u32 {s(sT)}, 2047, s2
    v_lshlrev_b32 {v(vInv)}, 9, {v(vQ)}
    v_cndmask_b32 {v(vSc0)}, {v(c+5)}, 0, vcc
    v_cndmask_b32 {v(vSc0+1)}, {v(c+5)}, 0, vcc
    v_sub_u32 {v(vInv)}, {s(sT)}, {v(vInv)}
    s_lshl_b32 {s(sSlot)}, {s(sX)}, 12
    s_add_u32 {s(sSlot)}, {s(sSlot)}, {SLOT}
    s_mov_b32 {s(sPh)}, -1
    ''')

def main_loop():
    t=T
    S1,S2,S3=t,t+2,t+4
    a('L_top:')
    stamp()
    a(f'''
    v_pk_add_f32 {v(S1,2)}, {v(X,2)}, {v(X+2,2)}
    v_pk_add_f32 {v(t+6,2)}, {v(X+4,2)}, {v(X+6,2)}
    v_pk_mul_f32 {v(S2,2)}, {v(X,2)}, {v(X,2)}
    v_pk_mul_f32 {v(S3,2)}, {v(X,2)}, {v(WV,2)} op_sel:[0,0] op_sel_hi:[1,0]
    v_pk_add_f32 {v(S1,2)}, {v(S1,2)}, {v(t+6,2)}
    v_pk_fma_f32 {v(S2,2)}, {v(X+2,2)}, {v(X+2,2)}, {v(S2,2)}
    v_pk_fma_f32 {v(S3,2)}, {v(X+2,2)}, {v(WV,2)}, {v(S3,2)} op_sel:[0,1,0] op_sel_hi:[1,1,1]
    v_add_f32_dpp {v(S1)}, {v(S1)}, {v(S1)} row_ror:8 row_mask:0xf bank_mask:0x3
    v_pk_fma_f32 {v(S2,2)}, {v(X+4,2)}, {v(X+4,2)}, {v(S2,2)}
    v_pk_fma_f32 {v(S3,2)}, {v(X+4,2)}, {v(WV+2,2)}, {v(S3,2)} op_sel:[0,0,0] op_sel_hi:[1,0,1]
    v_add_f32_dpp {v(S1)}, {v(S1+1)}, {v(S1+1)} row_ror:8 row_mask:0xf bank_mask:0xc
    v_pk_fma_f32 {v(S2,2)}, {v(X+6,2)}, {v(X+6,2)}, {v(S2,2)}
    v_pk_fma_f32 {v(S3,2)}, {v(X+6,2)}, {v(WV+2,2)}, {v(S3,2)} op_sel:[0,1,0] op_sel_hi:[1,1,1]
    s_cmp_eq_u32 {s(sIt)}, 0
    s_cbranch_scc1 L_s3w
    L_s3ok:
    v_add_f32_dpp {v(S1)}, {v(S1)}, {v(S1)} row_half_mirror row_mask:0xf bank_mask:0x5
    v_add_f32_dpp {v(S2)}, {v(S2)}, {v(S2)} row_ror:8 row_mask:0xf bank_mask:0x3
    v_add_f32_dpp {v(S3)}, {v(S3)}, {v(S3)} row_ror:8 row_mask:0xf bank_mask:0x3
    v_add_f32_dpp {v(S2)}, {v(S2+1)}, {v(S2+1)} row_ror:8 row_mask:0xf bank_mask:0xc
    v_add_f32_dpp {v(S3)}, {v(S3+1)}, {v(S3+1)} row_ror:8 row_mask:0xf bank_mask:0xc
    v_add_f32_dpp {v(S1)}, {v(S2)}, {v(S2)} row_half_mirror row_mask:0xf bank_mask:0xa
    v_add_f32_dpp {v(S3)}, {v(S3)}, {v(S3)} row_half_mirror {DPP}
    v_add_f32_dpp {v(S1)}, {v(S1)}, {v(S1)} quad_perm:[1,0,3,2] {DPP}
    v_add_f32_dpp {v(S3)}, {v(S3)}, {v(S3)} quad_perm:[1,0,3,2] {DPP}
    v_add_f32_dpp {v(S1)}, {v(S1)}, {v(S1)} quad_perm:[2,3,0,1] {DPP}
    v_add_f32_dpp {v(S3)}, {v(S3)}, {v(S3)} quad_perm:[2,3,0,1] {DPP}
    s_mov_b64 exec, {s(sQmask,2)}
    ds_write2_b32 {v(vStW)}, {v(S1)}, {v(S3)} offset0:0 offset1:32
    s_mov_b64 exec, -1
    ;@F
    s_waitcnt {'' if cfg.late else 'vmcnt(0)' if cfg.tch==1 else 'vmcnt(2)'} lgkmcnt(0)
    s_barrier
    ;@F
    ds_read_b128 {v(t,4)}, {v(vStR)}
    ds_read_b128 {v(t+4,4)}, {v(vStR)} offset:16
    s_waitcnt lgkmcnt(0)
    v_pk_add_f32 {v(t,2)}, {v(t,2)}, {v(t+2,2)}
    v_pk_add_f32 {v(t+4,2)}, {v(t+4,2)}, {v(t+6,2)}
    v_pk_add_f32 {v(t,2)}, {v(t,2)}, {v(t+4,2)}
    v_add_f32 {v(t)}, {v(t)}, {v(t+1)}
    v_mul_f32 {v(t+7)}, {s(sK512)}, {v(t)}
    ''')
    VAR,RS,CC,NM=t+8,t+10,t+12,t+14
    K=t+16
    a(f'''
    v_mov_b32_dpp {v(MM)}, {v(t+7)} row_newbcast:0 {DPP}
    v_mov_b32_dpp {v(MM+1)}, {v(t+7)} row_newbcast:1 {DPP}
    v_mov_b32_dpp {v(S2)}, {v(t+7)} row_newbcast:2 {DPP}
    v_mov_b32_dpp {v(S2+1)}, {v(t+7)} row_newbcast:3 {DPP}
    v_mov_b32_dpp {v(S3)}, {v(t+7)} row_newbcast:4 {DPP}
    v_pk_fma_f32 {v(VAR,2)}, {v(MM,2)}, {v(MM,2)}, {v(S2,2)} neg_lo:[1,0,0] neg_hi:[1,0,0]
    v_mov_b32_dpp {v(S3+1)}, {v(t+7)} row_newbcast:5 {DPP}
    v_pk_add_f32 {v(S1,2)}, {v(VAR,2)}, {s(sEps,2)}
    s_cmp_eq_u32 {s(sIt)}, 0
    v_rsq_f32_e64 {v(RS)}, |{v(S1)}|
    v_rsq_f32_e64 {v(RS+1)}, |{v(S1+1)}|
    s_cbranch_scc1 L_it0 ;!nd
    v_pk_mul_f32 {v(S3,2)}, {v(S3,2)}, {v(RS,2)}
    v_add_u32 {v(K+2)}, 0xffffff00, {v(vInv)}
    v_ashrrev_i32 {v(K)}, 31, {v(S3)}
    v_ashrrev_i32 {v(K+1)}, 31, {v(S3+1)}
    v_bitop3_b32 {v(K)}, {v(S3)}, {v(K)}, {s(sTop)} bitop3:0x1e
    v_bitop3_b32 {v(K+1)}, {v(S3+1)}, {v(K+1)}, {s(sTop)} bitop3:0x1e
    v_bfi_b32 {v(K)}, {s(sM7FF)}, {v(vInv)}, {v(K)}
    v_bfi_b32 {v(K+1)}, {s(sM7FF)}, {v(K+2)}, {v(K+1)}
    v_max_u32 {v(K+1)}, {v(K)}, {v(K+1)}
    v_pk_add_f32 {v(CC,2)}, {v(RS,2)}, 1.0 op_sel_hi:[1,0]
    v_mov_b32 {v(K)}, {s(sTag)}
    v_max_u32_dpp {v(K+1)}, {v(K+1)}, {v(K+1)} row_bcast:15 row_mask:0xa bank_mask:0xf
    v_pk_mul_f32 {v(VAR,2)}, {v(VAR,2)}, {v(CC,2)}
    s_cmp_lg_u32 {s(sW)}, 0
    v_max_u32_dpp {v(K+1)}, {v(K+1)}, {v(K+1)} row_bcast:31 row_mask:0xc bank_mask:0xf
    s_cbranch_scc1 L_nost ;!nd
    s_mov_b32 exec_lo, 0
    s_mov_b32 exec_hi, {s(sTop)}
    s_cmp_eq_u32 {s(sFast)}, 0
    s_cbranch_scc1 L_tabst_slow ;!nd
    buffer_store_dwordx2 {v(K,2)}, off, {WS}, {s(sTabSt)}
    L_tabst_back:
    s_mov_b64 exec, -1
    L_nost:
    v_readlane_b32 {s(sKey)}, {v(K+1)}, 63
    v_pk_mul_f32 {v(NM,2)}, {v(MM,2)}, {v(RS,2)}
    v_pk_fma_f32 {v(VAR,2)}, {v(VAR,2)}, {v(CC,2)}, {s(sEps,2)}
    ''')
    Z=t+18
    for c_ in range(4):
        a(f'v_pk_fma_f32 {v(Z+2*c_,2)}, {v(X+2*c_,2)}, {v(RS,2)}, {v(NM,2)} neg_lo:[0,0,1] neg_hi:[0,0,1]')
        if c_==0: a(f'v_rsq_f32_e64 {v(RS2)}, |{v(VAR)}|')
        if c_==1: a(f'v_rsq_f32_e64 {v(RS2+1)}, |{v(VAR+1)}|')
    for c_ in range(4):
        a(f'v_pk_add_f32 {v(X+2*c_,2)}, {v(X+2*c_,2)}, {v(Z+2*c_,2)}')
    for rho in (0,1):
        for k in (0,1):
            a(f'v_cvt_pk_bf16_f32 {v(LNP+2*rho+k)}, {v(Z+4*k+rho)}, {v(Z+4*k+2+rho)}')
    a(f'''
    s_cmp_eq_u32 {s(sIt)}, 2
    s_cbranch_scc1 L_tab2e ;!nd
    v_pk_mul_f32 {v(CC,2)}, {v(RS2,2)}, {s(sC16,2)}
    L_z:
    ;@F
    ''')
    ZP=t; D0=t+4; D1=t+8
    a(f'v_pk_mul_f32 {v(NM,2)}, {v(MM,2)}, {v(CC,2)}')
    for c_ in range(4):
        a(f'v_pk_fma_f32 {v(Z+2*c_,2)}, {v(X+2*c_,2)}, {v(CC,2)}, {v(NM,2)} neg_lo:[0,0,1] neg_hi:[0,0,1]')
    for c_ in range(4): a(f'v_cvt_pk_f16_f32 {v(ZP+c_)}, {v(Z+2*c_)}, {v(Z+2*c_+1)}')
    a(f'''
    v_mfma_f32_16x16x16_f16 {v(D0,4)}, {v(A8,2)}, {v(ZP,2)}, 0
    v_mfma_f32_16x16x16_f16 {v(D1,4)}, {v(A8,2)}, {v(ZP+2,2)}, 0
    s_nop 6
    v_cvt_pk_f16_f32 {v(ZP)}, {v(D0)}, {v(D0+1)}
    v_cvt_pk_f16_f32 {v(ZP+1)}, {v(D1)}, {v(D1+1)}
    v_cvt_pk_f16_f32 {v(ZP+2)}, {v(D0+2)}, {v(D0+3)}
    v_cvt_pk_f16_f32 {v(ZP+3)}, {v(D1+2)}, {v(D1+3)}
    ds_write_b64 {v(vUW)}, {v(ZP,2)}
    ds_write_b64 {v(vUW)}, {v(ZP+2,2)} offset:1024
    ;@F
    s_waitcnt lgkmcnt(0)
    s_barrier
    ;@F
    ds_read_b64_tr_b16 {v(t,2)}, {v(vUR)}
    ds_read_b64_tr_b16 {v(t+2,2)}, {v(vUR)} offset:512
    ds_read_b64_tr_b16 {v(t+4,2)}, {v(vUR)} offset:1024
    ds_read_b64_tr_b16 {v(t+6,2)}, {v(vUR)} offset:1536
    s_cmp_ge_u32 {s(sW)}, {s(sIt)}
    s_cbranch_scc1 L_tg1 ;!nd
    buffer_load_dwordx2 {v(t+24,2)}, {v(vL8)}, {WS}, {s(sTabLd)} offen sc1
    L_tg1:
    L_tg2:
    s_waitcnt lgkmcnt(0)
    ;@F
    ''')
    P=t
    fft_core(t, t+4, t+8, t+16, t+8, P)
    for r in range(4): a(f'v_bfi_b32 {v(P+r)}, 1, {s(sPh)}, {v(P+r)}')
    def lstores(fl):
        for r in range(4): a(f'buffer_store_dword {v(P+r)}, {v(vLst)}, {WS}, {s(sLst)} offen offset:{128*r} {fl}')
    TB=t+24
    W_=t+4
    a(f'''
    s_cmp_lg_u32 {s(sIt)}, 0
    s_cbranch_scc1 L_tab1e
    ''')
    lstores('')
    stamp()
    a(f'''
    s_branch L_pub
    L_tab1e:
    s_cmp_eq_u32 {s(sW)}, 0
    s_cbranch_scc1 L_tabw1
    s_branch L_tabbar
    L_tab2e:
    s_cmp_eq_u32 {s(sW)}, 0
    s_cbranch_scc1 L_tab
    s_branch L_tabbar
    L_tab:
    buffer_load_dwordx2 {v(TB,2)}, {v(vL8)}, {WS}, {s(sTabLd)} offen sc1
    L_tabw1:
    s_waitcnt vmcnt(0)
    v_cmp_ne_u32 vcc, {s(sTag)}, {v(TB)}
    ''')
    poll_branch('L_tab', cfg.slp_t, f'''s_cmp_lg_u32 {s(sIt)}, 0
        s_cselect_b32 {s(sT)}, 0, 1
        s_sub_u32 {s(sTry)}, {s(sTry)}, {s(sT)}
        s_cbranch_scc1 L_tab2''')
    a(f'''
    L_tabok:
    v_cmp_ne_u32 vcc, {s(sKey)}, {v(TB+1)}
    v_cmp_lt_u32 {s(sT,2)}, {s(sKey)}, {v(TB+1)}
    v_mov_b32 {v(TB)}, {L_FLAG}
    s_cmp_eq_u32 {s(sIt)}, 0
    s_cselect_b32 {s(sT)}, vcc_lo, {s(sT)}
    v_mov_b32 {v(TB+1)}, {s(sT)}
    ds_write_b32 {v(TB)}, {v(TB+1)}
    s_waitcnt lgkmcnt(0)
    s_barrier
    s_branch L_tabgot
    L_tabbar:
    v_mov_b32 {v(TB)}, {L_FLAG}
    s_barrier
    ds_read_b32 {v(TB+1)}, {v(TB)}
    s_waitcnt lgkmcnt(0)
    v_readfirstlane_b32 {s(sT)}, {v(TB+1)}
    L_tabgot:
    s_cmp_eq_u32 {s(sIt)}, 0
    s_cbranch_scc1 L_fastchk ;!nd
    s_mov_b32 {s(sT+9)}, 64
    s_cmp_lg_u32 {s(sT)}, 0
    s_cbranch_scc1 L_winback ;!nd
    L_pub:
    s_andn2_b32 {s(sT)}, {s(sM7FF)}, {s(sKey)}      ; idx
    s_lshr_b32 {s(sT+9)}, {s(sT)}, 8                ; s1
    s_bitcmp1_b32 {s(sT+9)}, 0
    s_cselect_b64 vcc, -1, 0
    s_lshl_b32 {s(sT+1)}, {s(sT+9)}, 3
    s_and_b32 {s(sT+1)}, {s(sT+1)}, 0x30
    v_cndmask_b32 {v(W_)}, {v(LNP)}, {v(LNP+2)}, vcc
    v_cndmask_b32 {v(W_+1)}, {v(LNP+1)}, {v(LNP+3)}, vcc
    v_and_b32 {v(W_+2)}, 0x3ff, {v(vXoff)}
    s_bfm_b64 exec, 16, {s(sT+1)}
    buffer_store_dwordx2 {v(W_,2)}, {v(W_+2)}, {WS}, {s(sSlot)} offen sc1
    s_cmp_lg_u32 {s(sW)}, 0
    s_cbranch_scc1 L_nohdr
    v_mov_b32 {v(W_+8)}, {s(sKey)}
    v_cndmask_b32 {v(W_+9)}, {v(MM)}, {v(MM+1)}, vcc
    v_cndmask_b32 {v(W_+10)}, {v(RS2)}, {v(RS2+1)}, vcc
    v_mov_b32 {v(W_+11)}, {s(sKey)}
    buffer_store_dwordx4 {v(W_+8,4)}, off, {WS}, {s(sSlot)} offset:3072 sc1
    buffer_store_dwordx4 {v(W_+8,4)}, off, {WS}, {s(sSlot)} offset:3200 sc1
    L_nohdr:
    ''')
    for c_ in range(4): a(f'v_cndmask_b32 {v(W_+4+c_)}, {v(X+2*c_)}, {v(X+2*c_+1)}, vcc')
    a(f'''
    v_lshlrev_b32 {v(W_+2)}, 1, {v(W_+2)}
    buffer_store_dwordx4 {v(W_+4,4)}, {v(W_+2)}, {WS}, {s(sSlot)} offen offset:1024 sc1
    s_mov_b64 exec, -1
    s_cmp_eq_u32 {s(sIt)}, 0
    s_cbranch_scc1 L_flag0
    L_winback:
    s_cmp_eq_u32 {s(sIt)}, 2
    s_cbranch_scc1 L_fin
    s_add_u32 {s(sSlot)}, {s(sSlot)}, {SLOTR}
    ''')
    lstores('')
    stamp()
    a(f'''
    s_waitcnt vmcnt(0)
    s_branch L_tabdone
    L_flag0:
    ;@F
    v_mov_b32 {v(t+22)}, {s(sTag)}
    v_mov_b32 {v(t+23)}, {s(sKey)}
    s_waitcnt vmcnt(0)
    ;@F
    s_cmp_eq_u32 {s(sW)}, 0
    s_barrier
    s_cbranch_scc0 L_tabbar
    s_mov_b64 exec, 1
    buffer_store_dwordx2 {v(t+22,2)}, off, {WS}, {s(sTabSt)}
    s_mov_b64 exec, -1
    s_branch L_tab
    L_fastchk:
    s_cmp_eq_u32 {s(sT)}, 0
    s_cselect_b32 {s(sFast)}, 1, 0
    L_tabdone:
    s_cmp_eq_u32 {s(sFast)}, 0
    s_cbranch_scc1 L_slow
    L_slowback:
    ;@F
    s_cmp_lt_u32 {s(sJ)}, 8
    s_cbranch_scc0 L_y
    s_branch L_yself
    L_y:
    buffer_load_dwordx4 {v(t,4)}, {v(vLld)}, {WS}, {s(sLld)} offen sc1
    s_waitcnt vmcnt(0)
    ds_write_b128 {v(vYIW)}, {v(t,4)}
    ''')
    phchk(range(t,t+4), t+8)
    poll_branch('L_y', cfg.slp_l, mask=True)
    a('L_yjoin:')
    stamp()
    a(f'''
    s_cmp_lg_u32 {s(sT+12)}, 0
    s_cbranch_scc1 L_noxf
    s_lshl_b32 {s(sT+12)}, {s(sX)}, 7
    s_add_u32 {s(sT+12)}, {s(sT+12)}, {TABG}
    v_lshrrev_b32 {v(t+8)}, 1, {v(vL8)}
    v_mov_b32 {v(t+9)}, {s(sTag)}
    s_mov_b32 exec_hi, 0
    buffer_store_dword {v(t+9)}, {v(t+8)}, {WS}, {s(sT+12)} offen sc1
    s_mov_b64 exec, -1
    L_noxf:
    s_cmp_eq_u32 {s(sIt)}, 0
    s_cbranch_scc1 L_nohl
    v_and_b32 {v(BC)}, 7, {v(vLane)}
    v_lshlrev_b32 {v(BC)}, 12, {v(BC)}
    s_mov_b32 {s(sT+10)}, {SLOT}
    s_mov_b64 exec, 0xff
    buffer_load_dwordx4 {v(LNP,4)}, {v(BC)}, {WS}, {s(sT+10)} offen offset:3200 sc1
    s_mov_b64 exec, -1
    L_nohl:
    ''')
    A0,A1=t,t+4; P0,Q0,P1,Q1=t+8,t+12,t+16,t+20
    a(f'''
    s_waitcnt lgkmcnt(0)
    s_barrier
    ;@F
    ds_read_b64_tr_b16 {v(A0,2)}, {v(vYIR)}
    ds_read_b64_tr_b16 {v(A0+2,2)}, {v(vYIR)} offset:{16*YIS}
    ds_read_b64_tr_b16 {v(A1,2)}, {v(vYIR)} offset:8
    ds_read_b64_tr_b16 {v(A1+2,2)}, {v(vYIR)} offset:{16*YIS+8}
    s_add_u32 {s(sTabLd)}, {s(sTabLd)}, {ARGR}
    s_add_u32 {s(sTabSt)}, {s(sTabSt)}, {ARGR}
    s_waitcnt lgkmcnt(2)
    v_mfma_f32_16x16x32_f16 {v(P0,4)}, {v(A0,4)}, {v(YC,4)}, 0
    v_mfma_f32_16x16x32_f16 {v(Q0,4)}, {v(A0,4)}, {v(YS,4)}, 0
    s_waitcnt lgkmcnt(0)
    v_mfma_f32_16x16x32_f16 {v(P1,4)}, {v(A1,4)}, {v(YC,4)}, 0
    v_mfma_f32_16x16x32_f16 {v(Q1,4)}, {v(A1,4)}, {v(YS,4)}, 0
    ''')
    for P_,Q_ in ((P0,Q0),(P1,Q1)):
        for h in (0,2):
            a(f'v_pk_add_f32 {v(P_+h,2)}, {v(P_+h,2)}, {v(Q_+h,2)} op_sel:[0,1] op_sel_hi:[1,0] neg_hi:[0,1]')
    a(f'''
    v_cvt_pk_f16_f32 {v(t)}, {v(P0)}, {v(P0+1)}
    v_cvt_pk_f16_f32 {v(t+1)}, {v(P0+2)}, {v(P0+3)}
    v_cvt_pk_f16_f32 {v(t+2)}, {v(P1)}, {v(P1+1)}
    v_cvt_pk_f16_f32 {v(t+3)}, {v(P1+2)}, {v(P1+3)}
    ds_write_b128 {v(vYW)}, {v(t,4)}
    ;@F
    s_waitcnt lgkmcnt(0)
    s_barrier
    ;@F
    ds_read_b128 {v(t+4,4)}, {v(vYR)}
    s_waitcnt lgkmcnt(0)
    buffer_store_dwordx4 {v(t+4,4)}, {v(vGst)}, {WS}, {s(sG0)} offen sc1
    ''')
    stamp()
    a(f'''
    s_cmp_lg_u32 {s(sIt)}, 0
    s_cbranch_scc1 L_hdr
    v_and_b32 {v(t+24)}, 7, {v(vLane)}
    v_lshlrev_b32 {v(t+24)}, 7, {v(t+24)}
    s_mov_b32 {s(sT+10)}, {TABG}
    v_mov_b32 {v(t+20)}, {s(sTag)}
    ''')
    a(f's_mov_b64 exec, 0xff\nbuffer_load_dword {v(t+20)}, {v(t+24)}, {WS}, {s(sT+10)} offen sc1\ns_mov_b64 exec, -1')
    xin_consts(t+8)
    a(';@F\nL_tg0w:\ns_waitcnt vmcnt(0)')
    a(f'v_cmp_ne_u32 vcc, {s(sTag)}, {v(t+20)}')
    a(f'''
    s_cbranch_vccz L_g ;!nd
    s_branch L_tg0_r
    L_g:
    ''')
    C0,C1=t,t+4
    a(f'''
    buffer_load_dwordx4 {v(C0,4)}, {v(vGld)}, {WS}, {s(sG0)} offen sc1
    buffer_load_dwordx4 {v(C1,4)}, {v(vGld)}, {WS}, {s(sG4)} offen sc1
    L_gw:
    s_cmp_lg_u32 {s(sMir)}, 0
    s_waitcnt vmcnt(0)
    L_gw2:
    s_cbranch_scc1 L_xmir ;!nd
    ''')
    E0,E1=t+8,t+12
    a(f'''
    v_mfma_f32_16x16x16_f16 {v(E0,4)}, {v(XA,2)}, {v(C0,2)}, 0
    v_mfma_f32_16x16x16_f16 {v(E1,4)}, {v(XA,2)}, {v(C0+2,2)}, 0
    v_mfma_f32_16x16x16_f16 {v(E0,4)}, {v(XA+2,2)}, {v(C1,2)}, {v(E0,4)}
    v_mfma_f32_16x16x16_f16 {v(E1,4)}, {v(XA+2,2)}, {v(C1+2,2)}, {v(E1,4)}
    s_branch L_xjoin ;!nd
    L_xmir:
    ''')
    a.hist=[]
    a(f'''
    v_mfma_f32_16x16x16_f16 {v(E0,4)}, {v(XA,2)}, {v(C0+2,2)}, 0
    v_mfma_f32_16x16x16_f16 {v(E1,4)}, {v(XA,2)}, {v(C0,2)}, 0
    v_mfma_f32_16x16x16_f16 {v(E0,4)}, {v(XA+2,2)}, {v(C1+2,2)}, {v(E0,4)}
    v_mfma_f32_16x16x16_f16 {v(E1,4)}, {v(XA+2,2)}, {v(C1,2)}, {v(E1,4)}
    L_xjoin:
    ''')
    maxchk(range(t,t+8), t+16)
    poll_branch('L_g', cfg.slp_g, mask=True)
    stamp()
    a(f'''
    s_mov_b32 {s(sIt)}, 1
    s_add_u32 {s(sG0)}, {s(sG0)}, {GR}
    s_add_u32 {s(sG4)}, {s(sG4)}, {GR}
    L_apply:
    s_cmp_eq_u32 {s(sNx)}, 0
    v_pk_fma_f32 {v(X,2)}, {v(E0,2)}, {v(vSc0,2)}, {v(X,2)}
    v_pk_fma_f32 {v(X+2,2)}, {v(E0+2,2)}, {s(sSc,2)}, {v(X+2,2)}
    v_pk_fma_f32 {v(X+4,2)}, {v(E1,2)}, {s(sSc,2)}, {v(X+4,2)}
    v_pk_fma_f32 {v(X+6,2)}, {v(E1+2,2)}, {s(sSc,2)}, {v(X+6,2)}
    s_cbranch_scc1 L_top ;!nd
    s_branch L_corr
    ''')
    a(f'''
    L_yself:
    buffer_load_dwordx4 {v(t,4)}, {v(vLld)}, {WS}, {s(sLld)} offen sc1
    buffer_load_dwordx4 {v(t+4,4)}, {v(vLldM)}, {WS}, {s(sLld)} offen sc1
    s_waitcnt vmcnt(0)
    ''')
    phchk(range(t,t+8), t+8)
    poll_branch('L_yself', cfg.slp_l, mask=True)
    a(f'''
    s_bitcmp1_b32 {s(sW)}, 0
    s_cbranch_scc1 L_yself4
    ''')
    for k in range(4): a(f'v_pk_add_f16 {v(t+k)}, {v(t+k)}, {v(t+7-k)} neg_hi:[0,1]')
    a(f'ds_write_b128 {v(vYIW)}, {v(t,4)}\ns_branch L_yjoin\nL_yself4:')
    for k in range(4): a(f'v_pk_add_f16 {v(t+k)}, {v(t+k)}, {v(t+7-k)} op_sel:[1,1] op_sel_hi:[0,0] neg_hi:[1,0]')
    a(f'ds_write_b128 {v(vYIW)}, {v(t,4)}\ns_branch L_yjoin')
    a(f'''
    L_s3w:
    v_pk_add_f32 {v(S3,2)}, {v(WV,2)}, {v(WV+2,2)}
    v_add_f32 {v(S3)}, {v(S3)}, {v(S3+1)}
    v_mov_b32 {v(S3+1)}, {v(S3)}
    s_branch L_s3ok
    L_it0:
    s_mov_b32 {s(sKey)}, {s(sXcc)}
    v_pk_mul_f32 {v(CC,2)}, {v(RS,2)}, {s(sC16,2)}
    v_mov_b32 {v(S1)}, 0x44000000
    v_pk_add_f32 {v(WV,2)}, {v(WV,2)}, {v(S3,2)} neg_lo:[0,1] neg_hi:[0,1]
    v_pk_add_f32 {v(WV+2,2)}, {v(WV+2,2)}, {v(S3,2)} neg_lo:[0,1] neg_hi:[0,1]
    v_pk_mul_f32 {v(WV,2)}, {v(WV,2)}, {v(S1,2)} op_sel_hi:[1,0]
    v_pk_mul_f32 {v(WV+2,2)}, {v(WV+2,2)}, {v(S1,2)} op_sel_hi:[1,0]
    ''')
    a('s_branch L_z')
    H=LNP
    sIdx=sT+11
    KA=BC+6; EK=BC+8; vYP=BC+9; SEL=BC+10; vDW,vDR=BC+12,BC+13
    YR=t+8; YL=t+12; YD=t+20
    gl=f'buffer_load_dwordx4 {v(C0,4)}, {v(vGld)}, {WS}, {s(sG0)} offen sc1\nbuffer_load_dwordx4 {v(C1,4)}, {v(vGld)}, {WS}, {s(sG4)} offen sc1'
    def hdrpoll(lbl, slp, issued=False):
        if not issued: a(f"""
        v_and_b32 {v(BC)}, 7, {v(vLane)}
        v_lshlrev_b32 {v(BC)}, 12, {v(BC)}
        """)
        a(f"""
        s_mov_b64 exec, 0xff
        {f's_waitcnt vmcnt(1)' if issued else ''}
        {f's_branch {lbl}_c' if issued else ''}
        {lbl}:
        buffer_load_dwordx4 {v(H,4)}, {v(BC)}, {WS}, {s(sT+10)} offen offset:3200 sc1
        s_waitcnt vmcnt(0)
        {lbl}_c:
        """)
        maxchk(range(H,H+4), t+17)
        poll_branch(lbl, slp, skip=True)
        a(f"""
        s_mov_b64 exec, -1
        v_max_u32_dpp {v(H+3)}, {v(H)}, {v(H)} row_half_mirror {DPP}
        v_max_u32_dpp {v(H+3)}, {v(H+3)}, {v(H+3)} quad_perm:[1,0,3,2] {DPP}
        v_max_u32_dpp {v(H+3)}, {v(H+3)}, {v(H+3)} quad_perm:[2,3,0,1] {DPP}
        v_readfirstlane_b32 {s(sIdx)}, {v(H+3)}
        """)
    def owner():
        a(f"""
        s_sub_u32 {s(sT)}, 2047, {s(sIdx)}
        s_add_u32 {s(sT+1)}, {s(sT)}, 256
        v_cmp_eq_u32 vcc, {s(sT)}, {v(vInv)}
        v_cmp_eq_u32 {s(sT+2,2)}, {s(sT+1)}, {v(vInv)}
        v_cndmask_b32 {v(BC)}, 0, 1.0, vcc
        v_cndmask_b32 {v(BC+1)}, 0, 1.0, {s(sT+2,2)}
        """)
    a(f'L_hdr:')
    hdrpoll('L_hdrp', 2, True)
    a(f"""
    v_and_b32 {v(vYP)}, 0x3ff, {v(vXoff)}
    v_lshlrev_b32 {v(t+16)}, 1, {v(vYP)}
    s_andn2_b32 {s(sIdx)}, {s(sM7FF)}, {s(sIdx)}
    s_and_b32 {s(sT)}, {s(sIdx)}, 7
    s_lshl_b32 {s(sT+1)}, {s(sT)}, 12
    s_add_u32 {s(sT+10)}, {s(sT+10)}, {s(sT+1)}
    buffer_load_dwordx4 {v(BC+2,4)}, {v(t+16)}, {WS}, {s(sT+10)} offen offset:1024 sc1
    v_readlane_b32 {s(sT+13)}, {v(H+1)}, {s(sT)}
    v_readlane_b32 {s(sT+14)}, {v(H+2)}, {s(sT)}
    v_mul_u32_u24 {v(t+17)}, {s(sIdx)}, {v(AD)}
    v_and_b32 {v(t+17)}, 0x7ff, {v(t+17)}
    v_cvt_f32_u32 {v(t+17)}, {v(t+17)}
    v_mul_f32 {v(t+17)}, {fbits(1/2048)}, {v(t+17)}
    v_cos_f32 {v(t+18)}, {v(t+17)}
    v_sin_f32 {v(t+19)}, {v(t+17)}
    v_and_b32 {v(t+17)}, 0x22, {v(vLane)}
    v_cvt_pk_f16_f32 {v(t+18)}, {v(t+18)}, {v(t+19)}
    v_cmp_eq_u32 vcc, 0, {v(t+17)}
    v_mov_b32 {v(KA)}, {s(sT+14)}
    v_mul_f32 {v(KA)}, {s(sC16)}, {v(KA)}
    v_cndmask_b32 {v(AD)}, 0, {v(t+18)}, vcc
    v_cmp_eq_u32 vcc, 2, {v(t+17)}
    v_mul_f32 {v(EK)}, {v(KA)}, {v(KA)}
    v_mul_f32 {v(EK)}, {s(sEps)}, {v(EK)}
    v_cndmask_b32 {v(AD+1)}, 0, {v(t+18)}, vcc
    """)
    owner()
    a(f"""
    v_lshlrev_b32 {v(t+17)}, 4, {v(vLane)}
    v_mov_b32 {v(t+18)}, 0x3f80
    v_and_b32 {v(t+17)}, 16, {v(t+17)}
    v_lshlrev_b32 {v(t+18)}, {v(t+17)}, {v(t+18)}
    v_and_b32 {v(t+17)}, 2, {v(vLane)}
    v_cmp_eq_u32 vcc, 0, {v(t+17)}
    v_lshl_add_u32 {v(vYP)}, {v(vQ)}, 10, {v(vYP)}
    s_lshl_b32 {s(sT+3)}, {s(sW)}, 8
    v_cndmask_b32 {v(SEL)}, 0, {v(t+18)}, vcc
    v_cndmask_b32 {v(SEL+1)}, {v(t+18)}, 0, vcc
    s_add_u32 {s(sT+3)}, {s(sT+3)}, {L_DH}
    v_lshl_add_u32 {v(vDR)}, {v(vN)}, 4, {s(sT+3)}
    v_and_b32 {v(t+17)}, 1, {v(vQ)}
    v_lshl_add_u32 {v(vDR)}, {v(t+17)}, 11, {v(vDR)}
    v_cmp_eq_u32 vcc, 0, {v(vQ)}
    v_add_u32 {v(vDW)}, {L_DH}, {v(vLst)}
    s_mov_b32 {s(sYo)}, {YP}
    s_lshl_b32 {s(sYh)}, {s(sX)}, 7
    s_add_u32 {s(sYh)}, {s(sYh)}, {YHINT}
    s_lshl_b32 {s(sSg)}, {s(sW)}, 30
    s_and_b32 {s(sSg)}, {s(sSg)}, {s(sTop)}
    s_xor_b32 {s(sSg)}, {s(sSg)}, {s(sDsc)}
    s_mov_b32 {s(sNx)}, 2
    v_cndmask_b32 {v(KA+1)}, 0, {v(KA)}, vcc
    s_waitcnt vmcnt(0)
    {gl if not cfg.hold else ''}
    L_basew:
    """)
    maxchk(range(BC+2,BC+6), t+17)
    a('s_cbranch_vccnz L_base_r ;!nd')
    for k in range(4): a(f'v_subrev_f32 {v(BC+2+k)}, {s(sT+13)}, {v(BC+2+k)}')
    for k in range(4): a(f'v_mul_f32 {v(BC+2+k)}, {v(KA)}, {v(BC+2+k)}')
    a(f"""
    s_branch {'L_ywait' if cfg.hold else 'L_gw'}
    L_corr:
    s_mov_b32 {s(sIt)}, 2
    s_mov_b32 {s(sNx)}, 0
    {'s_branch L_yc' if cfg.hold else ''}
    L_ywait:
    s_add_u32 {s(sT+2)}, {s(sYo)}, 4096
    s_cmp_lg_u32 {s(sW)}, 0
    s_cbranch_scc1 L_hintb
    s_movk_i32 {s(sTry)}, 500
    v_lshrrev_b32 {v(t)}, 1, {v(vL8)}
    """)
    if cfg.own: a(f"""
    s_cmp_eq_u32 {s(sIt)}, 3
    s_cbranch_scc1 L_hint
    s_lshl_b32 {s(sT)}, {s(sJ)}, 2
    v_mov_b32 {v(t)}, {s(sT)}
    """)
    a(f"""
    L_hint:
    buffer_load_dword {v(t+1)}, {v(t)}, {WS}, {s(sYh)} offen sc1
    s_waitcnt vmcnt(0)
    v_cmp_ne_u32 vcc, {s(sTag)}, {v(t+1)}
    """)
    poll_branch('L_hint', 1, giveup='L_hintb')
    if cfg.tim_y: a(f's_sleep {cfg.tim_y}')
    a(f"""
    L_hintb:
    s_barrier
    """)
    if cfg.hold: a(f"""
    s_cmp_eq_u32 {s(sIt)}, 3
    s_cbranch_scc1 L_yv3
    {gl}
    {f's_sleep {cfg.tim_gy}' if cfg.tim_gy else ''}
    buffer_load_dwordx2 {v(YD,2)}, {v(vYP)}, {WS}, {s(sYo)} offen sc1
    buffer_load_dwordx2 {v(YD+2,2)}, {v(vYP)}, {WS}, {s(sT+2)} offen sc1
    s_cmp_lg_u32 {s(sMir)}, 0
    s_waitcnt vmcnt(2)
    s_branch L_gw2
    L_yv3:
    {f's_sleep {cfg.tim_y3}' if cfg.tim_y3 else ''}
    s_branch L_yv
    """)
    a(f"""
    L_yv:
    buffer_load_dwordx2 {v(YD,2)}, {v(vYP)}, {WS}, {s(sYo)} offen sc1
    buffer_load_dwordx2 {v(YD+2,2)}, {v(vYP)}, {WS}, {s(sT+2)} offen sc1
    L_yc:
    s_waitcnt vmcnt(0)
    v_mfma_f32_16x16x16_bf16 {v(YR,4)}, {v(SEL,2)}, {v(YD,2)}, 0
    v_mfma_f32_16x16x16_bf16 {v(YR,4)}, {v(SEL,2)}, {v(YD+2,2)}, {v(YR,4)}
    """)
    maxchk(range(YD,YD+4), t+17)
    poll_branch('L_yv', 1, mask=True)
    stamp()
    own=[f'v_pk_fma_f32 {v(X,2)}, {v(BC,2)}, {v(YR,2)}, {v(X,2)} op_sel:[0,0,0] op_sel_hi:[1,0,1]',
         f'v_pk_fma_f32 {v(X+2,2)}, {v(BC,2)}, {v(YR,2)}, {v(X+2,2)} op_sel:[0,1,0] op_sel_hi:[1,1,1]',
         f'v_pk_fma_f32 {v(X+4,2)}, {v(BC,2)}, {v(YR+2,2)}, {v(X+4,2)} op_sel:[0,0,0] op_sel_hi:[1,0,1]',
         f'v_pk_fma_f32 {v(X+6,2)}, {v(BC,2)}, {v(YR+2,2)}, {v(X+6,2)} op_sel:[0,1,0] op_sel_hi:[1,1,1]']
    s1,s2=t+20,t+21
    a(f"""
    s_cmp_eq_u32 {s(sIt)}, 3
    s_cbranch_scc1 L_fin3
    L_pass:
    v_pk_fma_f32 {v(YL,2)}, {v(YR,2)}, {v(KA,2)}, {v(BC+2,2)} op_sel:[0,1,0]
    v_pk_fma_f32 {v(YL+2,2)}, {v(YR+2,2)}, {v(KA,2)}, {v(BC+4,2)} op_sel:[0,1,0]
    v_cvt_pk_f16_f32 {v(YL)}, {v(YL)}, {v(YL+1)}
    v_cvt_pk_f16_f32 {v(YL+1)}, {v(YL+2)}, {v(YL+3)}
    ds_write_b64 {v(vUW)}, {v(YL,2)}
    {own[0]}
    {own[1]}
    {own[2]}
    {own[3]}
    s_cmp_gt_u32 {s(sW)}, 3
    s_waitcnt lgkmcnt(0)
    s_barrier
    s_cbranch_scc1 L_dhb ;!nd
    ds_read_b64_tr_b16 {v(t+8,2)}, {v(vUR)}
    ds_read_b64_tr_b16 {v(t+10,2)}, {v(vUR)} offset:512
    v_mov_b32 {v(t+22)}, 0x3c003c00
    s_waitcnt lgkmcnt(0)
    ;@F
    """)
    XR=t+8; U_=t+12; V_=YC; PP=LNP
    Ur,Ui=U_,U_+4; Vr,Vi=V_,V_+4
    a(f"""
    v_mfma_f32_16x16x32_f16 {v(Ur,4)}, {v(XR,4)}, {v(B1C,4)}, 0
    v_mfma_f32_16x16x32_f16 {v(Ui,4)}, {v(XR,4)}, {v(B1N,4)}, 0
    v_dot2_f32_f16 {v(s1)}, {v(XR)}, {v(t+22)}, 0
    v_dot2_f32_f16 {v(s2)}, {v(XR)}, {v(XR)}, 0
    v_dot2_f32_f16 {v(s1)}, {v(XR+1)}, {v(t+22)}, {v(s1)}
    v_dot2_f32_f16 {v(s2)}, {v(XR+1)}, {v(XR+1)}, {v(s2)}
    v_dot2_f32_f16 {v(s1)}, {v(XR+2)}, {v(t+22)}, {v(s1)}
    v_dot2_f32_f16 {v(s2)}, {v(XR+2)}, {v(XR+2)}, {v(s2)}
    v_dot2_f32_f16 {v(s1)}, {v(XR+3)}, {v(t+22)}, {v(s1)}
    v_dot2_f32_f16 {v(s2)}, {v(XR+3)}, {v(XR+3)}, {v(s2)}
    v_pk_mul_f32 {v(Vi,2)}, {v(Ur,2)}, {v(TWS,2)}
    v_pk_mul_f32 {v(Vi+2,2)}, {v(Ur+2,2)}, {v(TWS+2,2)}
    v_pk_mul_f32 {v(Vr,2)}, {v(Ui,2)}, {v(TWS,2)}
    v_permlane32_swap_b32 {v(s1)}, {v(s2)}
    v_pk_mul_f32 {v(Vr+2,2)}, {v(Ui+2,2)}, {v(TWS+2,2)}
    v_add_f32 {v(s1)}, {v(s1)}, {v(s2)}
    v_pk_fma_f32 {v(Vr,2)}, {v(Ur,2)}, {v(TWC,2)}, {v(Vr,2)}
    v_pk_fma_f32 {v(Vi,2)}, {v(Ui,2)}, {v(TWC,2)}, {v(Vi,2)} neg_lo:[0,0,1] neg_hi:[0,0,1]
    v_add_f32_dpp {v(s1)}, {v(s1)}, {v(s1)} row_ror:8 {DPP}
    v_pk_fma_f32 {v(Vr+2,2)}, {v(Ur+2,2)}, {v(TWC+2,2)}, {v(Vr+2,2)}
    v_pk_fma_f32 {v(Vi+2,2)}, {v(Ui+2,2)}, {v(TWC+2,2)}, {v(Vi+2,2)} neg_lo:[0,0,1] neg_hi:[0,0,1]
    v_add_f32_dpp {v(s1)}, {v(s1)}, {v(s1)} row_ror:4 {DPP}
    v_cvt_pk_f16_f32 {v(PP)}, {v(Vr)}, {v(Vi)}
    v_cvt_pk_f16_f32 {v(PP+1)}, {v(Vr+1)}, {v(Vi+1)}
    v_add_f32_dpp {v(s1)}, {v(s1)}, {v(s1)} row_ror:2 {DPP}
    v_cvt_pk_f16_f32 {v(PP+2)}, {v(Vr+2)}, {v(Vi+2)}
    v_cvt_pk_f16_f32 {v(PP+3)}, {v(Vr+3)}, {v(Vi+3)}
    v_add_f32_dpp {v(s1)}, {v(s1)}, {v(s1)} row_ror:1 {DPP}
    v_mfma_f32_16x16x32_f16 {v(Ur,4)}, {v(A2R,4)}, {v(PP,4)}, 0
    v_mfma_f32_16x16x32_f16 {v(Ui,4)}, {v(A2I,4)}, {v(PP,4)}, 0
    v_add_f32_dpp {v(s1)}, {v(s1)}, {v(s1)} row_bcast:15 row_mask:0xa bank_mask:0xf
    v_mul_f32 {v(s1)}, {s(sK512)}, {v(s1)}
    v_readlane_b32 {s(sT+2)}, {v(s1)}, 63
    v_readlane_b32 {s(sT+1)}, {v(s1)}, 31
    v_add_f32 {v(s2)}, {s(sT+2)}, {v(EK)}
    v_mov_b32 {v(s1)}, {s(sT+1)}
    v_fma_f32 {v(s1)}, -{v(s1)}, {v(s1)}, {v(s2)}
    v_rsq_f32_e64 {v(s1)}, |{v(s1)}|
    v_mul_f32 {v(s1)}, {s(sSg)}, {v(s1)}
    """)
    for k in range(4): a(f'v_pk_mul_f32 {v(U_+2*k,2)}, {v(U_+2*k,2)}, {v(s1,2)} op_sel_hi:[1,0]')
    for r in range(4): a(f'v_cvt_pk_f16_f32 {v(PP+r)}, {v(Ur+r)}, {v(Ui+r)}')
    a(f"""
    ds_write2_b32 {v(vDW)}, {v(PP)}, {v(PP+1)} offset0:0 offset1:32
    ds_write2_b32 {v(vDW)}, {v(PP+2)}, {v(PP+3)} offset0:64 offset1:96
    s_waitcnt lgkmcnt(0)
    L_dhb:
    s_barrier
    ds_read_b128 {v(t+16,4)}, {v(vDR)}
    s_waitcnt lgkmcnt(0)
    v_mfma_f32_16x16x16_f16 {v(E0,4)}, {v(AD,2)}, {v(t+16,2)}, 0
    v_mfma_f32_16x16x16_f16 {v(E1,4)}, {v(AD,2)}, {v(t+18,2)}, 0
    s_nop 4
    s_branch L_apply ;!nd
    """)
    a('L_fin:')
    for rho in (0,1):
        for k in (0,1):
            a(f'v_cvt_pk_bf16_f32 {v(t+2*rho+k)}, {v(X+4*k+rho)}, {v(X+4*k+2+rho)}')
    a(f"""
    v_lshlrev_b32 {v(t+16)}, 1, {v(vQ)}
    v_mov_b32 {v(t+19)}, 0x200000
    s_sub_u32 {s(sT)}, {s(sT+9)}, 1
    v_cmp_eq_u32 vcc, {s(sT+9)}, {v(t+16)}
    v_cmp_eq_u32 {s(sT+2,2)}, {s(sT)}, {v(t+16)}
    v_cndmask_b32 {v(t+17)}, {v(vXoff)}, {v(t+19)}, vcc
    v_cndmask_b32 {v(t+18)}, {v(vXoff)}, {v(t+19)}, {s(sT+2,2)}
    buffer_store_dwordx2 {v(t,2)}, {v(t+17)}, {OS}, {s(sRow0)} offen sc1
    buffer_store_dwordx2 {v(t+2,2)}, {v(t+18)}, {OS}, {s(sRow1)} offen sc1
    v_cndmask_b32 {v(t+24)}, {v(t+19)}, {v(vXoff)}, vcc
    v_cndmask_b32 {v(t+25)}, {v(t+19)}, {v(vXoff)}, {s(sT+2,2)}
    s_or_b32 {s(sT)}, s2, {s(sW)}
    s_cbranch_scc1 L_fin2
    v_mov_b32 {v(t+20)}, {s(sTag)}
    buffer_store_dword {v(t+20)}, off, {WS}, 0 sc1
    L_fin2:
    s_cmp_eq_u32 {s(sT+9)}, 64
    s_cbranch_scc1 L_fin5
    s_mov_b32 {s(sT+10)}, {SLOT+SLOTR}
    s_sleep {cfg.tim_fh}
    """)
    hdrpoll('L_fhdr', 4)
    a(f"""
    s_cmp_lg_u32 {s(sIdx)}, {s(sKey)}
    s_cbranch_scc1 L_fin4
    s_andn2_b32 {s(sIdx)}, {s(sM7FF)}, {s(sIdx)}
    s_mov_b32 {s(sIt)}, 3
    s_add_u32 {s(sYo)}, {s(sYo)}, {YPR}
    s_add_u32 {s(sYh)}, {s(sYh)}, {YHR}
    """)
    owner()
    a('s_branch L_ywait\nL_fin3:')
    a('\n'.join(own))
    for rho in (0,1):
        for k in (0,1):
            a(f'v_cvt_pk_bf16_f32 {v(t+2*rho+k)}, {v(X+4*k+rho)}, {v(X+4*k+2+rho)}')
    a(f"""
    L_fin4:
    buffer_store_dwordx2 {v(t,2)}, {v(t+24)}, {OS}, {s(sRow0)} offen sc1
    buffer_store_dwordx2 {v(t+2,2)}, {v(t+25)}, {OS}, {s(sRow1)} offen sc1
    L_fin5:
    """)
    stamp(); dump_stamps()
    a('s_endpgm')
    a(f"""
    L_base_r:
    s_sub_u32 {s(sCnt)}, {s(sCnt)}, 1
    s_cbranch_scc1 L_end
    s_sleep 2
    buffer_load_dwordx4 {v(BC+2,4)}, {v(t+16)}, {WS}, {s(sT+10)} offen offset:1024 sc1
    s_waitcnt vmcnt(0)
    s_branch L_basew
    """)
    def pub2():
        a(f'''
        v_mov_b32 {v(t+4)}, {s(sTag)}
        v_mov_b32 {v(t+5)}, {s(sXcc)}
        s_add_u32 {s(sT)}, {s(sTabSt)}, {TAB2-TABL}
        buffer_store_dwordx2 {v(t+4,2)}, off, {WS}, {s(sT)} sc1
        ''')
    a(f'''
    L_tabst_slow:
    buffer_store_dwordx2 {v(K,2)}, off, {WS}, {s(sTabSt)} sc1
    s_branch L_tabst_back
    L_tg0_r:
    s_sub_u32 {s(sCnt)}, {s(sCnt)}, 1
    s_cbranch_scc1 L_end
    s_sleep 2
    ''')
    a(f's_mov_b64 exec, 0xff\nbuffer_load_dword {v(t+20)}, {v(t+24)}, {WS}, {s(sT+10)} offen sc1\ns_mov_b64 exec, -1')
    a('s_branch L_tg0w\nL_tab2:')
    pub2()
    a(f'''
    s_add_u32 {s(sT+1)}, {s(sTabLd)}, {TAB2-TABL}
    L_tab2p:
    buffer_load_dwordx2 {v(TB,2)}, {v(vL8)}, {WS}, {s(sTabLd)} offen sc1
    buffer_load_dwordx2 {v(t+6,2)}, {v(vL8)}, {WS}, {s(sT+1)} offen sc1
    s_waitcnt vmcnt(0)
    v_cmp_eq_u32 vcc, {s(sTag)}, {v(TB)}
    v_cndmask_b32 {v(TB)}, {v(t+6)}, {v(TB)}, vcc
    v_cndmask_b32 {v(TB+1)}, {v(t+7)}, {v(TB+1)}, vcc
    v_cmp_ne_u32 vcc, {s(sTag)}, {v(TB)}
    ''')
    poll_branch('L_tab2p', 4)
    a(f'''
    s_branch L_tabok
    L_slow:
    s_cmp_lg_u32 {s(sIt)}, 0
    s_cbranch_scc1 L_slow1
    ''')
    pub2()
    a('L_slow1:')
    lstores('sc1')
    a(f'''
    s_waitcnt vmcnt(0)
    s_barrier
    s_add_u32 {s(sT)}, {s(sTabSt)}, {SLOWF-TABL}
    s_add_u32 {s(sT+1)}, {s(sTabLd)}, {SLOWF-TABL}
    v_mov_b32 {v(t+4)}, {s(sTag)}
    s_cmp_lg_u32 {s(sW)}, 0
    s_cbranch_scc1 L_slowp
    buffer_store_dword {v(t+4)}, off, {WS}, {s(sT)} sc1
    L_slowp:
    buffer_load_dword {v(t+5)}, {v(vL8)}, {WS}, {s(sT+1)} offen sc1
    s_waitcnt vmcnt(0)
    v_cmp_ne_u32 vcc, {s(sTag)}, {v(t+5)}
    ''')
    poll_branch('L_slowp', 2)
    a('s_branch L_slowback')

def hint_store(vreg, soff, lbl):
    a(f'''
    s_mov_b64 exec, 1
    s_cmp_eq_u32 {s(sFast)}, 0
    s_cbranch_scc1 {lbl}_s
    buffer_store_dword {v(vreg)}, off, {WS}, {s(soff)}
    s_branch {lbl}_d
    {lbl}_s:
    buffer_store_dword {v(vreg)}, off, {WS}, {s(soff)} sc1
    {lbl}_d:
    s_mov_b64 exec, -1
    ''')

def ffn():
    WA=4; WD=20; t=40
    vXL=24; vXW=25; vXR=26; vPS=27; vPL=28; vHW=29; vHR=30; vDP=31; vTag=32; vSig=34; vFl=35
    sI=sJ; sRnd=sIt; sPo=sLst; sPs=sLld
    F_W=0; TS=4096+64; F_X=0x4400; F_KEY=0x4D00; F_H=0x4E00; F_D=0x5200; F_WD=0x5400
    a(f"""
    L_ffn:
    s_and_b32 {s(sI)}, {s(sJ)}, 31
    s_min_u32 {s(sT+2)}, {s(sI)}, 27
    s_and_b32 {s(sT)}, {s(sT+2)}, 3
    s_lshl_b32 {s(sT+8)}, {s(sT)}, 8              ; 256*ks
    s_mul_i32 {s(sT+9)}, {s(sT)}, {28*64}
    s_mul_i32 {s(sT)}, {s(sT)}, {128*3584}
    s_mul_i32 {s(sT+1)}, {s(sX)}, 448
    s_add_u32 {s(sT)}, {s(sT)}, {s(sT+1)}
    s_lshr_b32 {s(sT+2)}, {s(sT+2)}, 2
    s_lshl_b32 {s(sT+3)}, {s(sT+2)}, 6
    s_add_u32 {s(sT)}, {s(sT)}, {s(sT+3)}
    v_lshrrev_b32 {v(t+3)}, 2, v0
    v_mul_u32_u24 {v(t)}, 3584, {v(t+3)}
    v_and_b32 {v(t+4)}, 3, v0
    v_lshl_add_u32 {v(t)}, {v(t+4)}, 4, {v(t)}
    v_add_u32 {v(t)}, {s(sT)}, {v(t)}
    s_mul_i32 {s(sT)}, {s(sX)}, {224*1024}
    s_lshl_b32 {s(sT+1)}, {s(sI)}, 5
    s_add_u32 {s(sT)}, {s(sT)}, {s(sT+1)}
    v_lshrrev_b32 {v(t+1)}, 1, v0
    v_min_u32 {v(t+1)}, 223, {v(t+1)}
    v_lshlrev_b32 {v(t+1)}, 10, {v(t+1)}
    v_and_b32 {v(t+2)}, 1, v0
    v_lshl_add_u32 {v(t+1)}, {v(t+2)}, 4, {v(t+1)}
    v_add_u32 {v(t+1)}, {s(sT)}, {v(t+1)}
    s_add_u32 {s(sT+10)}, {s(sTabLd)}, {FTAB-TABL}
    s_waitcnt lgkmcnt(0)
    {f'v_lshlrev_b32 {v(T+25)}, {cfg.tlb}, v0' if cfg.tlb else ''}
    {f'buffer_load_dword {v(T+21)}, {v(T+25)}, {WS}, 0 offen sc1' if cfg.tlb else ''}
    {f'buffer_load_dword {v(T+21)}, {v(T+25)}, {OS}, 0 offen sc1' if cfg.tlb else ''}
    {f's_sleep {cfg.fdelay}' if cfg.fdelay else ''}
    {f'global_load_dwordx4 {v(T+8,4)}, {v(t)}, s[18:19]' if cfg.wdpos<2 else f'v_mov_b32 {v(T+24)}, {v(t)}'}
    {f'global_load_dwordx4 {v(T+12,4)}, {v(t)}, s[20:21]' if cfg.wdpos<2 else ''}
    {f'global_load_dwordx4 {v(T+16,4)}, {v(t+1)}, s[22:23]' if cfg.wdpos==0 else f'v_mov_b32 {v(T+23)}, {v(t+1)}'}
    buffer_load_dword {v(T+20)}, off, {WS}, 0 sc1
    buffer_load_dword {v(T+21)}, {v(vL8)}, {WS}, {s(sT+10)} offen sc1
    v_mul_u32_u24 {v(T+22)}, {TS}, {v(t+4)}
    v_lshl_add_u32 {v(T+22)}, {v(t+3)}, 5, {v(T+22)}
    v_lshlrev_b32 {v(t+5)}, 4, {v(vN)}
    s_and_b32 {s(sT)}, {s(sW)}, 1
    s_lshl_b32 {s(sT)}, {s(sT)}, 2
    v_add_u32 {v(t+6)}, {s(sT)}, {v(vQ)}
    v_lshl_add_u32 {v(vXL)}, {v(t+6)}, 12, {v(t+5)}
    v_add_u32 {v(vXL)}, {s(sT+8)}, {v(vXL)}
    v_mul_u32_u24 {v(vXW)}, 272, {v(t+6)}
    v_add_u32 {v(vXW)}, {v(vXW)}, {v(t+5)}
    v_and_b32 {v(t+6)}, 7, {v(vLane)}
    v_mul_u32_u24 {v(vXR)}, 272, {v(t+6)}
    v_lshl_add_u32 {v(vXR)}, {v(vQ)}, 4, {v(vXR)}
    s_cmp_lg_u32 {s(sW)}, 6
    s_cbranch_scc1 L_fa1
    v_lshlrev_b32 {v(vXL)}, 12, {v(t+6)}
    L_fa1:
    s_lshl2_add_u32 {s(sT)}, {s(sT+2)}, {s(sW)}
    s_lshl_b32 {s(sT)}, {s(sT)}, 6
    s_add_u32 {s(sT)}, {s(sT)}, {s(sT+9)}
    v_lshl_add_u32 {v(vPS)}, {v(vN)}, 2, {s(sT)}
    s_lshl_b32 {s(sT)}, {s(sW)}, 8
    v_mul_u32_u24 {v(vPL)}, 1792, {v(vQ)}
    v_add3_u32 {v(vPL)}, {v(vPL)}, {v(t+5)}, {s(sT)}
    s_lshl_b32 {s(sT)}, {s(sW)}, 7
    s_add_u32 {s(sT)}, {s(sT)}, {F_H}
    v_lshl_add_u32 {v(vHR)}, {v(vQ)}, 4, {s(sT)}
    v_and_b32 {v(t+6)}, 12, {v(vN)}
    v_lshl_add_u32 {v(vHW)}, {v(t+6)}, 2, {s(sT)}
    v_and_b32 {v(t+6)}, 1, {v(vN)}
    v_lshl_add_u32 {v(vHW)}, {v(t+6)}, 3, {v(vHW)}
    v_and_b32 {v(t+6)}, 2, {v(vN)}
    v_lshl_add_u32 {v(vHW)}, {v(t+6)}, 5, {v(vHW)}
    v_and_b32 {v(t+6)}, 2, {v(vQ)}
    v_add_u32 {v(vHW)}, {v(vHW)}, {v(t+6)}
    v_and_b32 {v(t+6)}, 1, {v(vQ)}
    v_lshl_add_u32 {v(vHW)}, {v(t+6)}, 2, {v(vHW)}
    s_lshl_b32 {s(sT)}, {s(sW)}, 2
    s_add_u32 {s(sT)}, {s(sT)}, {F_D}
    v_lshl_add_u32 {v(vDP)}, {v(vN)}, 5, {s(sT)}
    v_mov_b32 {v(vFl)}, {F_KEY}
    v_mov_b32 {v(vTag)}, 0
    s_mov_b32 {s(sFast)}, 0
    s_mov_b32 {s(sRnd)}, 2
    s_mov_b32 {s(sPo)}, {WSSZ}
    s_mov_b32 {s(sYo)}, {WSSZ}
    s_mov_b32 {s(sYh)}, {WSSZ}
    {'s_branch L_fb2' if cfg.dry else ''}
    L_finit:
    s_mov_b32 {s(sRnd)}, 0
    s_mov_b32 {s(sSlot)}, {SLOT}
    s_lshl_b32 {s(sPo)}, {s(sX)}, 13
    s_add_u32 {s(sPo)}, {s(sPo)}, {PART}
    s_lshl_b32 {s(sYo)}, {s(sX)}, 10
    s_lshl_b32 {s(sT)}, {s(sI)}, 5
    s_add_u32 {s(sYo)}, {s(sYo)}, {s(sT)}
    s_add_u32 {s(sYo)}, {s(sYo)}, {YP}
    s_lshl_b32 {s(sYh)}, {s(sX)}, 7
    s_lshl2_add_u32 {s(sYh)}, {s(sI)}, {s(sYh)}
    s_add_u32 {s(sYh)}, {s(sYh)}, {YHINT}
    s_lshl_b32 {s(sT)}, {s(sW)}, 10
    v_lshl_add_u32 {v(t)}, {v(vLane)}, 4, {s(sT)}
    v_lshl_add_u32 {v(t+1)}, {v(vQ)}, 8, {s(sT)}
    v_lshl_add_u32 {v(t+1)}, {v(vN)}, 3, {v(t+1)}
    s_and_b32 {s(sT)}, {s(sW)}, 3
    s_mul_i32 {s(sT)}, {s(sT)}, {TS}
    v_lshl_add_u32 {v(t+2)}, {v(vQ)}, 8, {s(sT)}
    v_lshl_add_u32 {v(t+2)}, {v(vN)}, 3, {v(t+2)}
    v_mov_b32 {v(vTag+1)}, {s(sXcc)}
    s_lshl3_add_u32 {s(sT+1)}, {s(sI)}, {s(sT+10)}
    s_waitcnt vmcnt(0)
    v_add_u32 {v(vTag)}, 1, {v(T+20)}
    ds_write_b128 {v(T+22)}, {v(T+8,4)}
    ds_write_b128 {v(T+22)}, {v(T+12,4)} offset:16
    {f'ds_write_b128 {v(t)}, {v(T+16,4)} offset:{F_WD}' if cfg.wdpos==0 else ''}
    v_readfirstlane_b32 {s(sTag)}, {v(vTag)}
    s_cmp_lg_u32 {s(sW)}, 0
    s_cbranch_scc1 L_fi1
    s_mov_b64 exec, 1
    buffer_store_dwordx2 {v(vTag,2)}, off, {WS}, {s(sT+1)}
    s_mov_b64 exec, -1
    L_fi1:
    s_waitcnt lgkmcnt(0)
    s_barrier
    """)
    if cfg.stamps: a(f's_mov_b32 {s(sStampI)}, 0')
    stamp()
    for k in range(4):
        a(f'ds_read_b64_tr_b16 {v(WA+4*k,2)}, {v(t+2)} offset:{1024*k}')
        a(f'ds_read_b64_tr_b16 {v(WA+4*k+2,2)}, {v(t+2)} offset:{1024*k+128}')
    a(f"""
    {f'ds_read_b64_tr_b16 {v(WD,2)}, {v(t+1)} offset:{F_WD}' if cfg.wdpos==0 else ''}
    {f'ds_read_b64_tr_b16 {v(WD+2,2)}, {v(t+1)} offset:{F_WD+128}' if cfg.wdpos==0 else ''}
    s_cmp_lg_u32 {s(sW)}, 0
    s_cbranch_scc1 L_fi3
    s_movk_i32 {s(sTry)}, 80
    L_fl:
    buffer_load_dwordx2 {v(t+4,2)}, {v(vL8)}, {WS}, {s(sTabLd)} offen sc1
    buffer_load_dwordx2 {v(t+6,2)}, {v(vL8)}, {WS}, {s(sT+10)} offen sc1
    s_waitcnt vmcnt(0)
    v_cmp_ne_u32 vcc, {s(sTag)}, {v(t+4)}
    v_cmp_ne_u32 {s(sT,2)}, {s(sTag)}, {v(t+6)}
    s_or_b64 vcc, vcc, {s(sT,2)}
    """)
    poll_branch('L_fl', 4, giveup='L_fslowtab', skip=True)
    a(f"""
    v_cmp_ne_u32 vcc, {s(sXcc)}, {v(t+5)}
    v_cmp_ne_u32 {s(sT,2)}, {s(sXcc)}, {v(t+7)}
    s_or_b64 vcc, vcc, {s(sT,2)}
    s_cbranch_vccnz L_fslowtab
    s_mov_b32 {s(sFast)}, 1
    v_and_b32 {v(t+4)}, 1, {v(vQ)}
    v_lshlrev_b32 {v(t+4)}, 16, {v(t+4)}
    v_lshl_add_u32 {v(t+4)}, {v(vN)}, 4, {v(t+4)}
    s_lshl_b32 {s(sT)}, {s(sI)}, 8
    s_add_u32 {s(sT)}, {s(sT)}, {s(sPo)}
    buffer_load_dword {v(t+5)}, {v(t+4)}, {WS}, {s(sT)} offen sc1
    L_fi2:
    v_mov_b32 {v(t+6)}, {s(sFast)}
    ds_write_b32 {v(vFl)}, {v(t+6)} offset:4
    L_fi3:
    s_waitcnt vmcnt(0) lgkmcnt(0)
    s_barrier
    ds_read_b32 {v(t+6)}, {v(vFl)} offset:4
    s_waitcnt lgkmcnt(0)
    v_readfirstlane_b32 {s(sFast)}, {v(t+6)}
    """)
    if cfg.wdpos==2:
        a(f"""
        {f's_sleep {cfg.gdelay}' if cfg.gdelay else ''}
        global_load_dwordx4 {v(T+8,4)}, {v(T+24)}, s[18:19]
        global_load_dwordx4 {v(T+12,4)}, {v(T+24)}, s[20:21]
        global_load_dwordx4 {v(T+16,4)}, {v(T+23)}, s[22:23]
        s_waitcnt vmcnt(0)
        ds_write_b128 {v(T+22)}, {v(T+8,4)}
        ds_write_b128 {v(T+22)}, {v(T+12,4)} offset:16
        ds_write_b128 {v(t)}, {v(T+16,4)} offset:{F_WD}
        s_waitcnt lgkmcnt(0)
        s_barrier
        """)
        for k in range(4):
            a(f'ds_read_b64_tr_b16 {v(WA+4*k,2)}, {v(t+2)} offset:{1024*k}')
            a(f'ds_read_b64_tr_b16 {v(WA+4*k+2,2)}, {v(t+2)} offset:{1024*k+128}')
        a(f"""
        ds_read_b64_tr_b16 {v(WD,2)}, {v(t+1)} offset:{F_WD}
        ds_read_b64_tr_b16 {v(WD+2,2)}, {v(t+1)} offset:{F_WD+128}
        s_waitcnt lgkmcnt(0)
        """)
    if cfg.wdpos==1: a(f"""
    {f's_sleep {cfg.gdelay}' if cfg.gdelay else ''}
    global_load_dwordx4 {v(T+16,4)}, {v(T+23)}, s[22:23]
    s_waitcnt vmcnt(0)
    ds_write_b128 {v(t)}, {v(T+16,4)} offset:{F_WD}
    ds_read_b64_tr_b16 {v(WD,2)}, {v(t+1)} offset:{F_WD}
    ds_read_b64_tr_b16 {v(WD+2,2)}, {v(t+1)} offset:{F_WD+128}
    s_waitcnt lgkmcnt(0)
    """)
    a(f"""
    L_frnd:
    s_add_u32 {s(sTabLd)}, {s(sTabLd)}, {ARGR}
    s_cmp_lg_u32 {s(sW)}, 0
    s_cbranch_scc1 L_fb1
    s_cmp_eq_u32 {s(sFast)}, 0
    s_cbranch_scc1 L_fb1
    L_ftrig:
    buffer_load_dword {v(t)}, {v(vL8)}, {WS}, {s(sTabLd)} offen sc1
    s_waitcnt vmcnt(0)
    v_cmp_ne_u32 vcc, {s(sTag)}, {v(t)}
    """)
    poll_branch('L_ftrig', cfg.slp_f)
    stamp()
    a(f"""
    s_sleep {cfg.tim_arg}
    L_fb1:
    s_sub_u32 {s(sT)}, {s(sW)}, 4
    s_cmp_lt_u32 {s(sT)}, 2
    s_barrier
    s_cbranch_scc1 L_fx
    s_cmp_lg_u32 {s(sW)}, 6
    s_cbranch_scc1 L_fb2
    s_mov_b64 exec, 0xff
    L_fhd:
    buffer_load_dword {v(t)}, {v(vXL)}, {WS}, {s(sSlot)} offen offset:3072 sc1
    s_waitcnt vmcnt(0)
    v_cmp_eq_u32 vcc, -1, {v(t)}
    """)
    poll_branch('L_fhd', 2, skip=True)
    a(f"""
    v_max_u32_dpp {v(t)}, {v(t)}, {v(t)} row_half_mirror {DPP}
    v_max_u32_dpp {v(t)}, {v(t)}, {v(t)} quad_perm:[1,0,3,2] {DPP}
    v_max_u32_dpp {v(t)}, {v(t)}, {v(t)} quad_perm:[2,3,0,1] {DPP}
    ds_write_b32 {v(vFl)}, {v(t)}
    s_mov_b64 exec, -1
    s_branch L_fb2
    L_fx:
    buffer_load_dwordx4 {v(t,4)}, {v(vXL)}, {WS}, {s(sSlot)} offen sc1
    s_waitcnt vmcnt(0)
    ds_write_b128 {v(vXW)}, {v(t,4)} offset:{F_X}
    """)
    maxchk(range(t,t+4), t+4)
    poll_branch('L_fx', 2, mask=True)
    Dd=t+16
    a(f"""
    L_fb2:
    s_cmp_gt_u32 {s(sW)}, 3
    s_waitcnt lgkmcnt(0)
    s_barrier
    s_cbranch_scc1 L_fnoa
    ds_read_b32 {v(t+20)}, {v(vFl)}
    """)
    for k in range(4): a(f'ds_read_b128 {v(t+4*k,4)}, {v(vXR)} offset:{F_X+64*k}')
    stamp()
    a(f"""
    s_cmp_lt_u32 {s(sI)}, 28
    s_cselect_b32 {s(sPs)}, {s(sPo)}, {WSSZ}
    s_waitcnt lgkmcnt(3)
    v_mfma_f32_16x16x32_bf16 {v(Dd,4)}, {v(t,4)}, {v(WA,4)}, 0
    v_readfirstlane_b32 {s(sKey)}, {v(t+20)}
    s_waitcnt lgkmcnt(2)
    v_mfma_f32_16x16x32_bf16 {v(Dd,4)}, {v(t+4,4)}, {v(WA+4,4)}, {v(Dd,4)}
    s_bitcmp0_b32 {s(sKey)}, 0
    s_cselect_b64 vcc, -1, 0
    s_waitcnt lgkmcnt(1)
    v_mfma_f32_16x16x32_bf16 {v(Dd,4)}, {v(t+8,4)}, {v(WA+8,4)}, {v(Dd,4)}
    s_bitcmp0_b32 {s(sKey)}, 1
    s_cselect_b64 {s(sT+2,2)}, -1, 0
    s_waitcnt lgkmcnt(0)
    v_mfma_f32_16x16x32_bf16 {v(Dd,4)}, {v(t+12,4)}, {v(WA+12,4)}, {v(Dd,4)}
    s_andn2_b32 {s(sT)}, 4, {s(sKey)}
    s_lshl_b32 {s(sT)}, {s(sT)}, 2
    s_bfm_b64 exec, 16, {s(sT)}
    s_cmp_eq_u32 {s(sFast)}, 0
    v_cndmask_b32 {v(Dd)}, {v(Dd)}, {v(Dd+1)}, vcc
    v_cndmask_b32 {v(Dd+2)}, {v(Dd+2)}, {v(Dd+3)}, vcc
    v_cndmask_b32 {v(Dd)}, {v(Dd)}, {v(Dd+2)}, {s(sT+2,2)}
    s_cbranch_scc1 L_fps_s ;!nd
    buffer_store_dword {v(Dd)}, {v(vPS)}, {WS}, {s(sPs)} offen
    L_fps_d:
    s_mov_b64 exec, -1
    s_cmp_eq_u32 {s(sRnd)}, 2
    s_cbranch_scc1 L_fpok
    s_waitcnt vmcnt(0)
    s_branch L_fp
    L_fps_s:
    buffer_store_dword {v(Dd)}, {v(vPS)}, {WS}, {s(sPs)} offen sc1
    s_branch L_fps_d
    L_fnoa:
    s_cmp_eq_u32 {s(sW)}, 7
    s_cbranch_scc1 L_f7
    s_cmp_eq_u32 {s(sRnd)}, 2
    s_cbranch_scc1 L_fpok
    s_sleep {cfg.tim_p}
    s_branch L_fp
    L_fp:
    buffer_load_dwordx4 {v(t,4)}, {v(vPL)}, {WS}, {s(sPo)} offen sc1
    s_waitcnt vmcnt(0)
    """)
    maxchk(range(t,t+4), t+4)
    poll_branch('L_fp', cfg.slp_p, mask=True)
    stamp()
    a(f"""
    L_fpok:
    v_permlane32_swap_b32 {v(t)}, {v(t+1)}
    v_permlane32_swap_b32 {v(t+2)}, {v(t+3)}
    v_add_f32 {v(t)}, {v(t)}, {v(t+1)}
    v_add_f32 {v(t+2)}, {v(t+2)}, {v(t+3)}
    v_permlane16_swap_b32 {v(t)}, {v(t+2)}
    v_add_f32 {v(t)}, {v(t)}, {v(t+2)}
    v_mul_f32 {v(t+1)}, 0xbfb8aa3b, {v(t)}
    v_exp_f32 {v(t+1)}, {v(t+1)}
    v_mul_f32_dpp {v(t+2)}, {v(t)}, {v(t)} quad_perm:[2,3,0,1] {DPP}
    v_add_f32 {v(t+1)}, 1.0, {v(t+1)}
    v_rcp_f32 {v(t+1)}, {v(t+1)}
    v_mul_f32 {v(t+1)}, {v(t+1)}, {v(t+2)}
    v_cvt_pk_bf16_f32 {v(t+1)}, {v(t+1)}, {v(t+1)}
    ds_write_b16 {v(vHW)}, {v(t+1)}
    ds_read_b128 {v(t+4,4)}, {v(vHR)}
    """)
    if cfg.eh:
        a(f's_cmp_lg_u32 {s(sW)}, 5\ns_cbranch_scc1 L_fyh_d')
        hint_store(vTag, sYh, 'L_fyh')
    a(f"""
    s_waitcnt lgkmcnt(0)
    v_mfma_f32_16x16x32_bf16 {v(t+8,4)}, {v(t+4,4)}, {v(WD,4)}, 0
    s_mov_b64 exec, 0xffff
    ds_write_b32 {v(vDP)}, {v(t+8)}
    s_mov_b64 exec, -1
    s_waitcnt lgkmcnt(0)
    s_barrier
    L_fnext:
    """)
    stamp()
    a(f"""
    s_cmp_eq_u32 {s(sRnd)}, 1
    s_cbranch_scc1 L_fend
    s_cmp_eq_u32 {s(sRnd)}, 2
    s_cbranch_scc1 L_finit
    """)
    if cfg.wb==1: a(f"""
    s_cmp_lg_u32 {s(sI)}, 28
    s_cbranch_scc1 L_nwb
    s_cmp_lg_u32 {s(sW)}, 3
    s_cbranch_scc1 L_nwb
    s_sleep {cfg.wbd}
    buffer_wbl2 sc1
    L_nwb:
    """)
    a(f"""
    s_mov_b32 {s(sRnd)}, 1
    s_add_u32 {s(sSlot)}, {s(sSlot)}, {SLOTR}
    s_add_u32 {s(sPo)}, {s(sPo)}, {PARTR}
    s_add_u32 {s(sYo)}, {s(sYo)}, {YPR}
    s_add_u32 {s(sYh)}, {s(sYh)}, {YHR}
    s_branch L_frnd
    L_f7:
    ds_read_b32 {v(t+20)}, {v(vFl)}
    v_mov_b32 {v(vSig)}, 0xbfb8aa3b
    v_add_u32 {v(t+8)}, -28, {v(vDP)}
    v_lshlrev_b32 {v(t+9)}, 1, {v(vN)}
    s_waitcnt lgkmcnt(0)
    v_readfirstlane_b32 {s(sKey)}, {v(t+20)}
    s_ashr_i32 {s(sT)}, {s(sKey)}, 31
    s_orn2_b32 {s(sT)}, 0x80000000, {s(sT)}
    s_xor_b32 {s(sT)}, {s(sT)}, {s(sKey)}
    v_mul_f32 {v(vSig)}, {s(sT)}, {v(vSig)}
    v_exp_f32 {v(vSig)}, {v(vSig)}
    v_add_f32 {v(vSig)}, 1.0, {v(vSig)}
    v_rcp_f32 {v(vSig)}, {v(vSig)}
    s_barrier
    ds_read_b128 {v(t,4)}, {v(t+8)}
    ds_read_b96 {v(t+4,3)}, {v(t+8)} offset:16
    s_waitcnt lgkmcnt(1)
    v_pk_add_f32 {v(t,2)}, {v(t,2)}, {v(t+2,2)}
    v_add_f32 {v(t)}, {v(t)}, {v(t+1)}
    s_waitcnt lgkmcnt(0)
    v_add_f32 {v(t+4)}, {v(t+4)}, {v(t+5)}
    v_add_f32 {v(t)}, {v(t)}, {v(t+6)}
    v_add_f32 {v(t)}, {v(t)}, {v(t+4)}
    v_mul_f32 {v(t)}, {v(t)}, {v(vSig)}
    v_mov_b32_dpp {v(t+1)}, {v(t)} quad_perm:[1,1,3,3] {DPP}
    s_mov_b64 exec, 0x5555
    v_cvt_pk_bf16_f32 {v(t)}, {v(t)}, {v(t+1)}
    buffer_store_dword {v(t)}, {v(t+9)}, {WS}, {s(sYo)} offen sc1
    """)
    if cfg.eh: a('s_mov_b64 exec, -1')
    else: hint_store(vTag, sYh, 'L_fyh')
    a(f"""
    s_branch L_fnext
    L_fslowtab:
    v_and_b32 {v(t+16)}, 7, {v(vLane)}
    v_lshlrev_b32 {v(t+16)}, 7, {v(t+16)}
    s_mov_b32 {s(sT+10)}, {TABG}
    L_ftab2:
    buffer_load_dword {v(t+4)}, {v(t+16)}, {WS}, {s(sT+10)} offen sc1
    s_waitcnt vmcnt(0)
    v_cmp_ne_u32 vcc, {s(sTag)}, {v(t+4)}
    """)
    poll_branch('L_ftab2', 8)
    a('s_branch L_fi2\nL_fend:')
    dump_stamps()
    a('s_endpgm')

def build():
    hdr=open('ref.txt').read().split('; @launch')[0]
    a.raw(hdr+f'; @launch grid=({NWG},1,1) block=(512,1,1) lds={LDS_TOTAL}')
    a.raw(f'''; generated by gen/gen.py (hand-written generator): persistent FFT-structured FNet + MoD kernel
.amdgcn_target "amdgcn-amd-amdhsa--gfx950"
.text
.globl {NAME}_kernel
.p2align 8
.type {NAME}_kernel,@function
{NAME}_kernel:''')
    if cfg.st0: a(f's_memrealtime s[88:89]\ns_waitcnt lgkmcnt(0)')
    a(f'''
    s_load_dwordx2 s[12:13], s[0:1], 0
    s_load_dwordx2 s[8:9], s[0:1], 96
    s_load_dwordx8 s[16:23], s[0:1], 48
    v_and_b32 {v(vN)}, 15, v0
    v_bfe_u32 {v(vQ)}, v0, 4, 2
    v_lshrrev_b32 v2, 6, v0
    v_lshlrev_b32 {v(vUW)}, 7, v2
    v_lshl_add_u32 {v(vUW)}, {v(vN)}, 3, {v(vUW)}                ; 128w+8n
    v_lshl_add_u32 {v(vXoff)}, {v(vQ)}, 19, {v(vUW)}
    s_lshl_b32 {s(sRow0)}, s2, 10
    s_add_u32 {s(sRow1)}, {s(sRow0)}, 0x40000
    s_mov_b32 s14, 0x200000
    s_mov_b32 s15, 0x20000
    v_readfirstlane_b32 {s(sW)}, v2
    ''')
    if cfg.codepf: a(f'''
    s_getpc_b64 {s(sT+6,2)}
    L_pc:
    v_lshlrev_b32 v3, 5, v0
    v_min_u32 v3, L_end-L_pc, v3
    {f'global_load_dword {v(vTG)}, v3, {s(sT+6,2)}' if cfg.codepf==1 else ''}
    ''')
    a(f'''
    s_cmp_ge_u32 s2, 256
    s_cbranch_scc1 L_nox ;!nd
    s_waitcnt lgkmcnt(0)
    buffer_load_dwordx2 {v(BC,2)}, {v(vXoff)}, {XS}, {s(sRow0)} offen
    buffer_load_dwordx2 {v(BC+2,2)}, {v(vXoff)}, {XS}, {s(sRow1)} offen
    L_nox:
    {f'global_load_dword {v(vTG)}, v3, {s(sT+6,2)}' if cfg.codepf==2 else ''}
    s_cmp_ge_u32 s2, {NWG}
    s_cbranch_scc1 L_end
    {'s_waitcnt lgkmcnt(0)' if cfg.wsoff else ''}
    {f's_add_u32 s8, s8, {cfg.wsoff<<20}' if cfg.wsoff else ''}
    {'s_addc_u32 s9, s9, 0' if cfg.wsoff else ''}
    s_load_dwordx2 s[28:29], s[0:1], 80
    v_and_b32 {v(vLane)}, 63, v0
    s_mov_b32 s10, {WSSZ}
    s_mov_b32 s11, 0x20000
    s_mov_b32 s30, 0x200000
    s_mov_b32 s31, 0x20000
    s_and_b32 {s(sX)}, s2, 7
    s_lshr_b32 {s(sJ)}, s2, 3
    v_mov_b32 {v(SENT)}, -1
    v_mov_b32 {v(SENT+1)}, -1
    v_mov_b32 {v(SENT+2)}, -1
    v_mov_b32 {v(SENT+3)}, -1
    v_lshlrev_b32 {v(vL8)}, 3, v0
    v_and_b32 {v(vL8)}, 0xf8, {v(vL8)}
    s_mov_b32 {s(sCnt)}, 200000
    s_mov_b32 {s(sM7FF)}, 0x7ff
    s_lshl_b32 {s(sTabLd)}, {s(sX)}, 8
    s_add_u32 {s(sTabLd)}, {s(sTabLd)}, {TABL}
    s_getreg_b32 {s(sXcc)}, hwreg(HW_REG_XCC_ID, 0, 4)
    ''')
    if cfg.force_slow: a(f's_mov_b32 {s(sXcc)}, {s(sJ)}')
    if cfg.stamps:
        a(f's_mov_b32 {s(sStampI)}, 0\nv_mov_b32 {v(vSTMP)}, 0')
        a(f's_memrealtime {s(sTS,2)}\ns_memtime {s(sTS+2,2)}\ns_waitcnt lgkmcnt(0)\nv_writelane_b32 {v(vSTMP)}, {s(sTS)}, 63\nv_writelane_b32 {v(vSTMP)}, {s(sTS+2)}, 62')
        if cfg.st0: a(f'v_writelane_b32 {v(vSTMP)}, {s(sTS)}, 58\nv_writelane_b32 {v(vSTMP)}, s88, 63\ns_memrealtime {s(sTS,2)}\ns_waitcnt lgkmcnt(0)\nv_writelane_b32 {v(vSTMP)}, {s(sTS)}, 59')
    a('''s_cmp_ge_u32 s2, 256
    s_cbranch_scc1 L_ffn''')
    if cfg.prio: a(f's_setprio 2\ns_cmp_gt_u32 {s(sW)}, 1\ns_cbranch_scc1 L_np\ns_setprio 3\nL_np:')
    main_prologue()
    main_loop()
    ffn()
    a('L_end:\ns_endpgm')
    a.raw(f'''.section .rodata,"a"
.p2align 6
.amdhsa_kernel {NAME}_kernel
  .amdhsa_next_free_vgpr 128
  .amdhsa_next_free_sgpr 96
  .amdhsa_accum_offset 128
  .amdhsa_group_segment_fixed_size 0
  .amdhsa_kernarg_size 104
  .amdhsa_user_sgpr_count 2
  .amdhsa_user_sgpr_kernarg_segment_ptr 1
  .amdhsa_system_sgpr_workgroup_id_x 1
.end_amdhsa_kernel''')
    return a.text()
if __name__=='__main__':
    out=sys.argv[1]
    for kv in sys.argv[2:]:
        k,val=kv.split('='); assert hasattr(cfg,k); setattr(cfg,k,int(val))
    open(out,'w').write(build())
    print('instrs',a.count,'nops',a.nops)
```

```python
import sys, struct
from asmlib import Asm
NAME='interleave_layers__spectral_fnet__moe_arch_mod__prompt'
def fbits(x): return '0x%08x' % struct.unpack('<I', struct.pack('<f', x))[0]

class Cfg:
    stamps=0
    tim_arg=16
    tim_y=0
    tim_h=0
    slp_g=2
    slp_l=1
    force_slow=0
    prio=1
    codepf=1
    exp=0
    gre=1
    tlb=0
    wsoff=0
    st0=0
    cal=-1
    calwg=0
    dbgout=0
    dry=1
    wb=0
    fdelay=20
    gdelay=18
    osc=1
    odel=0
    pfm=7
    clr2=0
    nb0=0
    ehint=0
    post=0
    slp_t=0
    aft=0
    g2pos=0
    tim_fh=12
    wdpos=0
    slp_p=1
    tim_p=8
    hold=1
    tim_gy=12
    eh=1
    own=1
    tim_y3=8
    beh=1
    gbb=0
    slp_f=2
    early=4
    tim_a0=0
    wbd=12
    gbdelay=4
    late=1
    split=0
    tch=1
cfg=Cfg()

TABG=0x1000; TABGR=0x6000
TABL=0x2000; ARGR=0x800
TAB2=0x3800
SLOWF=0x4000
YHINT=0x5000; YHR=0x400
FTAB=0x6000
CLR0=0x8000
YP=0x8000; YPR=0x2000
PART=0x20000; PARTR=0x10000
SLOT=0x10000; SLOTR=0x8000
LBASE=0x40000; PS=8448; LX=32*PS
GBASE=0x260000; GS=262144+768; GR=0x210000
STAMP=0x700000
WSSZ=0x800000
NWG=512
NST=(13,9,7)
L_STAT=0; L_U=0x400; L_YI=0x2400; YIS=320; L_YT=0x4C00; L_DH=0x6E00; L_FLAG=0x7E00; LDS_TOTAL=0x7E80
L_CX=0x2400
def v(a,n=1): return f'v{a}' if n==1 else f'v[{a}:{a+n-1}]'
def s(a,n=1): return f's{a}' if n==1 else f's[{a}:{a+n-1}]'

WS='s[8:11]'; XS='s[12:15]'; OS='s[28:31]'
sW=3; sX=26; sJ=27; sIt=32; sTag=33; sFast=34; sKey=35; sMir=36; sDsc=38
sLst=39; sLld=40; sPh=41; sTabG=42; sG0=43; sG4=44; sTabSt=45; sTabLd=46; sSlot=47; sRow0=48; sRow1=49; sCnt=50
sXcc=51; sStampI=37
sK512=52
sTry=53
sEps=54
sC16=56
sSc=58
sM7FF=60; sTop=61
sQmask=62
sT=64
sNx=84; sSg=85; sYo=86; sYh=87
sTS=80
X=2; WV=10; A8=14; XA=16; B1C=20; B1S=24; B1N=28; TWC=32; TWS=36; A2R=40; A2I=44; YC=48; YS=52
AD=56; BC=58
vXoff=72; vStW=73; vStR=74; vUW=75; vUR=76; vLst=77; vLld=78; vLldM=79; vYIW=80; vYIR=81; vYW=82; vYR=83; vGst=84; vGld=85
vSc0=86; vL8=88; vInv=89; vN=90; vQ=91; vSTMP=1; vLane=92; vTG=93
LNP=94; MM=98; RS2=100
T=102
class Asm2(Asm):
    def __call__(self, text):
        parts=text.split(';@F')
        for i,p in enumerate(parts):
            if i: fstamp()
            Asm.__call__(self,p)
a=Asm2()
def poll_branch(lbl, sleep=1, pre='', giveup=None, skip=False, mask=False):
    k=a.lines.index(lbl+':')
    if mask:
        pre+='\ns_mov_b64 exec, vcc'; skip=True
        k2=next(i for i in range(k,len(a.lines)) if 's_waitcnt vmcnt(0)' in a.lines[i])
        k3=max(i for i in range(k,k2) if 'buffer_load' in a.lines[i])
        a.lines.insert(k3+1,'    s_mov_b64 exec, -1')
    if a.lines[k-1].strip().startswith(('s_branch','s_endpgm')): skip=False
    a(f's_cbranch_vccnz {lbl}_r ;!nd')
    st=[]
    if skip: st.append(f'    s_branch {lbl}')
    st.append(f'{lbl}_r:')
    if giveup: st+= [f'    s_sub_u32 {s(sTry)}, {s(sTry)}, 1', f'    s_cbranch_scc1 {giveup}']
    else: st+= [f'    s_sub_u32 {s(sCnt)}, {s(sCnt)}, 1', '    s_cbranch_scc1 L_end']
    st+= ['    '+x.strip() for x in pre.split('\n') if x.strip()]
    if sleep: st.append(f'    s_sleep {sleep}')
    a.lines[k:k]=st
def fstamp():
    if cfg.stamps>=2: stamp()
def stamp():
    if not cfg.stamps: return
    a(f'''{'s_memtime' if cfg.stamps==2 else 's_memrealtime'} {s(sTS,2)}
    s_waitcnt lgkmcnt(0)
    s_mov_b32 m0, {s(sStampI)}
    s_add_u32 {s(sStampI)}, {s(sStampI)}, 1
    v_writelane_b32 {v(vSTMP)}, {s(sTS)}, m0''')
def dump_stamps():
    if not cfg.stamps: return
    a(f's_memrealtime {s(sTS,2)}\ns_memtime {s(sTS+2,2)}\ns_waitcnt lgkmcnt(0)\nv_writelane_b32 {v(vSTMP)}, {s(sTS)}, 61\nv_writelane_b32 {v(vSTMP)}, {s(sTS+2)}, 60')
    if cfg.cal>=0:
        lab='L_cal%d'%len(a.lines)
        a(f'''s_cmp_lg_u32 s2, {cfg.calwg}
        s_cbranch_scc1 {lab}
        s_cmp_lg_u32 {s(sW)}, 0
        s_cbranch_scc1 {lab}
        v_readlane_b32 {s(sT)}, {v(vSTMP)}, {cfg.cal}
        v_readlane_b32 {s(sT+1)}, {v(vSTMP)}, 63
        s_sub_u32 {s(sT)}, {s(sT)}, {s(sT+1)}
        s_lshl_b32 {s(sT)}, {s(sT)}, 2
        s_add_u32 {s(sT)}, {s(sT)}, 3000
        s_min_u32 {s(sT)}, {s(sT)}, 50000
        {lab}_l:
        s_memrealtime {s(sTS,2)}
        s_waitcnt lgkmcnt(0)
        s_sub_u32 {s(sT+2)}, {s(sTS)}, {s(sT+1)}
        s_cmp_lt_u32 {s(sT+2)}, {s(sT)}
        s_cbranch_scc1 {lab}_l
        {lab}:''')
    a(f'''s_lshl_b32 {s(sT)}, s2, 11
    s_lshl_b32 {s(sT+1)}, {s(sW)}, 8
    s_add_u32 {s(sT)}, {s(sT)}, {s(sT+1)}
    s_add_u32 {s(sT)}, {s(sT)}, {STAMP}
    v_lshlrev_b32 {v(vLane)}, 2, {v(vLane)}
    buffer_store_dword {v(vSTMP)}, {v(vLane)}, {WS}, {s(sT)} offen''')
def maxchk(regs, t):
    regs=list(regs)
    a(f'v_max3_u32 {v(t)}, {v(regs[0])}, {v(regs[1])}, {v(regs[2])}')
    rest=regs[3:]
    while len(rest)>=2:
        a(f'v_max3_u32 {v(t)}, {v(t)}, {v(rest[0])}, {v(rest[1])}'); rest=rest[2:]
    if rest: a(f'v_max_u32 {v(t)}, {v(t)}, {v(rest[0])}')
    a(f'v_cmp_eq_u32 vcc, -1, {v(t)}')
def phchk(regs, t):
    regs=list(regs)
    a(f'v_bitop3_b32 {v(t)}, {v(regs[0])}, {v(regs[1])}, {s(sPh)} bitop3:0x7e')
    for r in regs[2:]: a(f'v_bitop3_b32 {v(t)}, {v(t)}, {v(r)}, {s(sPh)} bitop3:0xf6')
    a(f'v_and_b32 {v(t)}, 1, {v(t)}\nv_cmp_ne_u32 vcc, 0, {v(t)}')
def tag4chk(r):
    for k in range(4): a(f'v_xor_b32 {v(r+k)}, {s(sTag)}, {v(r+k)}')
    a(f'v_or3_b32 {v(r)}, {v(r)}, {v(r+1)}, {v(r+2)}\nv_or_b32 {v(r)}, {v(r)}, {v(r+3)}\nv_cmp_ne_u32 vcc, 0, {v(r)}')
DPP='row_mask:0xf bank_mask:0xf'

def fft_core(xr, xi, U, V, F, P, fill1='', fill2=''):
    Ur,Ui=U,U+4
    a(f'v_mfma_f32_16x16x32_f16 {v(Ur,4)}, {v(xr,4)}, {v(B1C,4)}, 0')
    a(f'v_mfma_f32_16x16x32_f16 {v(Ui,4)}, {v(xr,4)}, {v(B1N,4)}, 0')
    if xi is not None:
        a(f'v_mfma_f32_16x16x32_f16 {v(Ur,4)}, {v(xi,4)}, {v(B1S,4)}, {v(Ur,4)}')
        a(f'v_mfma_f32_16x16x32_f16 {v(Ui,4)}, {v(xi,4)}, {v(B1C,4)}, {v(Ui,4)}')
    a(fill1)
    Vr,Vi=V,V+4
    for h in (0,2):
        a(f'v_pk_mul_f32 {v(Vi+h,2)}, {v(Ur+h,2)}, {v(TWS+h,2)}')
    for h in (0,2):
        a(f'v_pk_mul_f32 {v(Vr+h,2)}, {v(Ui+h,2)}, {v(TWS+h,2)}')
    for h in (0,2):
        a(f'v_pk_fma_f32 {v(Vr+h,2)}, {v(Ur+h,2)}, {v(TWC+h,2)}, {v(Vr+h,2)}')
        a(f'v_pk_fma_f32 {v(Vi+h,2)}, {v(Ui+h,2)}, {v(TWC+h,2)}, {v(Vi+h,2)} neg_lo:[0,0,1] neg_hi:[0,0,1]')
    for r in range(4): a(f'v_cvt_pk_f16_f32 {v(P+r)}, {v(Vr+r)}, {v(Vi+r)}')
    a(f'v_mfma_f32_16x16x32_f16 {v(F,4)}, {v(A2R,4)}, {v(P,4)}, 0')
    a(f'v_mfma_f32_16x16x32_f16 {v(F+4,4)}, {v(A2I,4)}, {v(P,4)}, 0')
    a(fill2)
    for r in range(4): a(f'v_cvt_pk_f16_f32 {v(P+r)}, {v(F+r)}, {v(F+4+r)}')

SENT=T+4

def main_prologue():
    t=T
    X0=BC
    a(f'''
    s_mul_i32 {s(sLld)}, {s(sX)}, {LX}
    s_add_u32 {s(sLld)}, {s(sLld)}, {LBASE}
    s_mul_i32 {s(sLst)}, {s(sJ)}, {PS}
    s_add_u32 {s(sLst)}, {s(sLst)}, {s(sLld)}
    v_lshlrev_b32 {v(t)}, 4, v0
    v_lshrrev_b32 {v(t+1)}, 4, v0
    global_load_dwordx2 {v(X0+4,2)}, {v(vUW)}, s[16:17]
    buffer_load_dword {v(X0+6)}, off, {WS}, 0 sc1
    ''')
    tabt=f'buffer_load_dword {v(X0+7)}, {v(vL8)}, {WS}, {s(sTabLd)} offen sc1'
    ltch=f'buffer_load_dwordx4 {v(X0+8,4)}, {v(t)}, {WS}, {s(sLst) if not cfg.exp&1 else "s10"} offen sc1'
    lclr=f'buffer_store_dwordx4 {v(SENT,4)}, {v(t)}, {WS}, {s(sLst)} offen'
    if cfg.tch==0: a(tabt+'\n'+ltch+'\n'+lclr)
    if cfg.tch==1 and not cfg.aft&1: a(tabt+'\n'+ltch)
    if cfg.tch==2: a(tabt+'\n'+lclr+'\n'+ltch)
    if cfg.tch==3: a(ltch.replace(' sc1','')+'\n'+ltch.replace(' sc1','')+'\n'+lclr)
    a(f'''
    s_mov_b32 {s(sG0)}, {GBASE}
    s_mul_i32 {s(sT)}, {s(sX)}, {GS}
    s_add_u32 {s(sT+2)}, {s(sJ)}, 24
    s_and_b32 {s(sT+2)}, {s(sT+2)}, 24
    s_lshl_b32 {s(sT+2)}, {s(sT+2)}, 13
    s_add_u32 {s(sT)}, {s(sT)}, {s(sT+2)}
    s_and_b32 {s(sT+2)}, {s(sJ)}, 7
    s_cmp_lt_u32 {s(sJ)}, 8
    s_cselect_b32 {s(sT+3)}, 7, 8
    s_cselect_b32 {s(sT+4)}, 112, 0
    s_lshl_b32 {s(sT+2)}, {s(sT+2)}, {s(sT+3)}
    s_add_u32 {s(sT)}, {s(sT)}, {s(sT+2)}
    v_lshlrev_b32 {v(t+2)}, 4, {v(vN)}
    v_lshl_add_u32 {v(vGst)}, {v(t+1)}, 11, {v(t+2)}
    v_and_b32 {v(t+3)}, 8, {v(vN)}
    v_mad_u32_u24 {v(vGst)}, {v(t+3)}, {s(sT+4)}, {v(vGst)}
    v_add_u32 {v(vGst)}, {s(sT)}, {v(vGst)}
    s_lshl_b32 {s(sT+15)}, s2, 13
    s_sub_u32 {s(sT+14)}, s2, 4
    s_cmp_lt_u32 {s(sT+14)}, 28
    s_cselect_b32 {s(sT+15)}, {s(sT+15)}, {WSSZ}
    ''')
    clrs=f'''buffer_store_dwordx4 {v(SENT,4)}, {v(vGst)}, {WS}, {s(sG0)} offen sc1
    buffer_store_dwordx4 {v(SENT,4)}, {v(t)}, {WS}, {s(sT+15)} offen sc1'''
    g2c=f's_mov_b32 {s(sT+14)}, {GBASE+GR}\nbuffer_store_dwordx4 {v(SENT,4)}, {v(vGst)}, {WS}, {s(sT+14)} offen sc1'
    if not cfg.aft&2: a(clrs)
    if cfg.gre: cfg.g2pos=2
    if cfg.g2pos==0: a(g2c)
    c=t+8; co,si=c+8,c+12
    a(f'''
    s_lshr_b32 {s(sT)}, {s(sJ)}, 2
    s_and_b32 {s(sT)}, {s(sT)}, 6                 ; 2*(j>>3)
    s_lshl_b32 {s(sT+1)}, {s(sW)}, 2
    s_and_b32 {s(sT+1)}, {s(sT+1)}, 8             ; 2*4*((w>>1)&1)
    s_cmp_lt_u32 {s(sJ)}, 8
    s_cselect_b32 {s(sT)}, {s(sT+1)}, {s(sT)}
    s_lshl_b32 {s(sT+1)}, {s(sW)}, 4
    s_and_b32 {s(sT+1)}, {s(sT+1)}, 16            ; 16*(w&1)
    s_cmp_ge_u32 {s(sW)}, 4
    s_cselect_b32 {s(sT+2)}, {s(sT+1)}, 0         ; 16k
    s_cselect_b32 {s(sT)}, {s(sT)}, 0
    s_cmp_eq_u32 {s(sW)}, 3
    s_cselect_b32 {s(sT)}, 16, {s(sT)}
    s_lshl_b32 {s(sT+3)}, {s(sW)}, 2
    s_lshr_b32 {s(sT+3)}, 0x44440054, {s(sT+3)}
    s_and_b32 {s(sT+3)}, {s(sT+3)}, 15            ; log2 A
    v_lshlrev_b32 {v(c)}, {s(sT+3)}, {v(vN)}
    v_add_u32 {v(c)}, {s(sT)}, {v(c)}
    v_lshl_add_u32 {v(c+1)}, {v(vQ)}, 2, {s(sT+2)}
    v_cvt_f32_u32 {v(c)}, {v(c)}
    v_cvt_f32_u32 {v(c+1)}, {v(c+1)}
    s_mov_b32 {s(sK512)}, {fbits(1/512)}
    v_mul_f32 {v(c)}, {s(sK512)}, {v(c)}
    v_mul_f32 {v(c+4)}, {v(c+1)}, {v(c)}
    v_add_f32 {v(c+5)}, {v(c+4)}, {v(c)}
    v_add_f32 {v(c+6)}, {v(c+5)}, {v(c)}
    v_add_f32 {v(c+7)}, {v(c+6)}, {v(c)}
    ''')
    fill=[f's_mov_b32 {s(sEps)}, {fbits(1e-5)}', f's_mov_b32 {s(sEps+1)}, {fbits(1e-5)}', f's_mov_b32 {s(sC16)}, {fbits(1/16)}', f's_mov_b32 {s(sC16+1)}, {fbits(1/16)}',
          f's_mov_b32 {s(sTop)}, 0x80000000', f's_mov_b32 {s(sQmask)}, 0x11111111', f's_mov_b32 {s(sQmask+1)}, 0x11111111', f's_mov_b32 {s(sG4)}, {GBASE+4*GS}']
    for r in range(4):
        a(f'v_cos_f32 {v(co+r)}, {v(c+4+r)}'); a(fill[2*r])
        a(f'v_sin_f32 {v(si+r)}, {v(c+4+r)}'); a(fill[2*r+1])
    a(f'''
    s_lshl_b32 {s(sT)}, {s(sW)}, 11
    s_add_u32 {s(sT)}, {s(sT)}, {L_CX}
    v_lshlrev_b32 {v(c+2)}, 4, {v(vLane)}
    v_add_u32 {v(c+3)}, {s(sT)}, {v(c+2)}
    s_and_b32 {s(sT)}, {s(sW)}, 6
    s_cmp_eq_u32 {s(sT)}, 2
    s_cbranch_scc1 L_cw
    s_cmp_eq_u32 {s(sW)}, 1
    s_cbranch_scc1 L_cri
    v_cvt_pk_f16_f32 {v(co)}, {v(co)}, {v(co+1)}
    v_cvt_pk_f16_f32 {v(co+1)}, {v(co+2)}, {v(co+3)}
    v_cvt_pk_f16_f32 {v(co+2)}, {v(si)}, {v(si+1)}
    v_cvt_pk_f16_f32 {v(co+3)}, {v(si+2)}, {v(si+3)}
    s_branch L_cw
    L_cri:
    ''')
    for r in range(4):
        a(f'v_cvt_pk_f16_f32 {v(c+4)}, {v(co+r)}, {v(si+r)}')
        a(f'v_cvt_pk_f16_f32 {v(si+r)}, -{v(si+r)}, {v(co+r)}')
        a(f'v_mov_b32 {v(co+r)}, {v(c+4)}')
    a(f'''
    L_cw:
    ds_write_b128 {v(c+3)}, {v(co,4)}
    ds_write_b128 {v(c+3)}, {v(si,4)} offset:1024
    v_lshrrev_b32 {v(c+4)}, 2, {v(vN)}
    v_and_b32 {v(c+5)}, 2, {v(vN)}
    v_and_b32 {v(c+6)}, 14, {v(vN)}
    v_cmp_eq_u32 vcc, 2, {v(c+6)}
    v_mul_u32_u24 {v(vYIR)}, {YIS}, {v(c+4)}
    v_lshlrev_b32 {v(vStR)}, 8, {v(vQ)}
    v_cndmask_b32 {v(c+4)}, {v(c+4)}, 4, vcc
    v_cndmask_b32 {v(c+5)}, {v(c+5)}, 0, vcc
    v_mul_u32_u24 {v(c+6)}, {v(c+4)}, {v(vQ)}
    v_lshl_add_u32 {v(c+6)}, {v(c+6)}, 1, {v(c+5)}
    v_add_u32 {v(c+7)}, {v(c+6)}, {v(c+4)}
    v_cvt_f32_u32 {v(c+6)}, {v(c+6)}
    v_cvt_f32_u32 {v(c+7)}, {v(c+7)}
    v_mul_f32 {v(c+6)}, 0x3e000000, {v(c+6)}
    v_mul_f32 {v(c+7)}, 0x3e000000, {v(c+7)}
    v_cos_f32 {v(c+6)}, {v(c+6)}
    v_cos_f32 {v(c+7)}, {v(c+7)}
    v_and_b32 {v(c+5)}, 1, {v(vN)}
    v_cmp_eq_u32 vcc, 0, {v(c+5)}
    v_cvt_pk_f16_f32 {v(c+6)}, {v(c+6)}, {v(c+7)}
    v_mov_b32 {v(c+5)}, 0x80008000
    v_cndmask_b32 {v(A8)}, 0, {v(c+6)}, vcc
    v_cndmask_b32 {v(A8+1)}, {v(c+6)}, 0, vcc
    v_cndmask_b32 {v(c+5)}, {v(c+5)}, 0, vcc
    s_lshl_b32 {s(sT+1)}, {s(sT+1)}, 7            ; h*2048
    v_add_u32 {v(c+6)}, {s(sT+1)}, {v(c+2)}
    s_lshl_b32 {s(sT+2)}, {s(sW)}, 11
    s_and_b32 {s(sT+2)}, {s(sT+2)}, 4096          ; ((w>>1)&1)*4096
    v_add_u32 {v(c+7)}, {s(sT+2)}, {v(c+2)}
    s_waitcnt lgkmcnt(0)
    s_barrier
    ds_read_b128 {v(B1N,4)}, {v(c+2)} offset:{L_CX}
    ds_read_b128 {v(co,4)}, {v(c+7)} offset:{L_CX+4*2048}
    ds_read_b128 {v(si,4)}, {v(c+7)} offset:{L_CX+5*2048}
    ds_read_b128 {v(A2R,4)}, {v(c+2)} offset:{L_CX+2048}
    ds_read_b128 {v(A2I,4)}, {v(c+2)} offset:{L_CX+2048+1024}
    ds_read_b128 {v(TWC,4)}, {v(c+6)} offset:{L_CX+4096}
    ds_read_b128 {v(TWS,4)}, {v(c+6)} offset:{L_CX+4096+1024}
    v_and_b32 {v(c+4)}, 4, {v(vN)}
    s_lshl_b32 {s(sT)}, {s(sW)}, 2
    v_lshl_add_u32 {v(vStW)}, {v(t+3)}, 2, {v(vStR)}
    v_lshl_add_u32 {v(vStW)}, {v(c+4)}, 4, {v(vStW)}
    v_add_u32 {v(vStW)}, {s(sT)}, {v(vStW)}
    v_and_b32 {v(c+4)}, 7, {v(vN)}
    v_lshl_add_u32 {v(vStR)}, {v(c+4)}, 5, {v(vStR)}
    v_lshl_add_u32 {v(vUW)}, {v(vQ)}, 11, {v(vUW)}
    v_add_u32 {v(vUW)}, {L_U}, {v(vUW)}
    s_lshr_b32 {s(sT)}, {s(sW)}, 1
    s_lshl_b32 {s(sT)}, {s(sT)}, 11
    s_add_u32 {s(sT+2)}, {s(sT)}, {L_U}
    v_lshl_add_u32 {v(vUR)}, {v(vLane)}, 3, {s(sT+2)}
    ; vLst = w'*2048 + 512q + 64h + 4n
    s_lshr_b32 {s(sT+2)}, {s(sT+1)}, 5
    s_add_u32 {s(sT)}, {s(sT)}, {s(sT+2)}
    v_lshl_add_u32 {v(vLst)}, {v(vQ)}, 9, {s(sT)}
    v_lshl_add_u32 {v(vLst)}, {v(vN)}, 2, {v(vLst)}
    s_lshl_b32 {s(sT)}, {s(sJ)}, 3
    s_add_u32 {s(sTabSt)}, {s(sTabLd)}, {s(sT)}
    s_lshl_b32 {s(sT+3)}, {s(sW)}, 31             ; h sign
    s_lshl_b32 {s(sT+4)}, {s(sW)}, 29
    s_and_b32 {s(sT+4)}, {s(sT+4)}, {s(sTop)}
    s_mov_b32 {s(sT+5)}, 0x80008000
    s_mov_b32 {s(sIt)}, 0
    s_mov_b32 {s(sFast)}, 1
    s_mov_b32 {s(sPh)}, 0
    s_mov_b32 {s(sNx)}, 0
    s_mov_b32 {s(sSlot)}, {WSSZ}
    s_xor_b32 {s(sT+12)}, {s(sJ)}, 9
    s_or_b32 {s(sT+12)}, {s(sT+12)}, {s(sW)}
    s_mov_b32 {s(sTry)}, 64
    s_waitcnt lgkmcnt(4)
    v_xor_b32 {v(B1C)}, {s(sT+3)}, {v(B1N)}
    v_xor_b32 {v(B1C+1)}, {s(sT+3)}, {v(B1N+1)}
    v_xor_b32 {v(B1S)}, {s(sT+3)}, {v(B1N+2)}
    v_xor_b32 {v(B1S+1)}, {s(sT+3)}, {v(B1N+3)}
    v_xor_b32 {v(B1C+2)}, {v(B1C)}, {v(c+5)}
    v_xor_b32 {v(B1C+3)}, {v(B1C+1)}, {v(c+5)}
    v_xor_b32 {v(B1S+2)}, {v(B1S)}, {v(c+5)}
    v_xor_b32 {v(B1S+3)}, {v(B1S+1)}, {v(c+5)}
    ''')
    for r in range(4): a(f'v_xor_b32 {v(B1N+r)}, {s(sT+5)}, {v(B1S+r)}')
    for k,src in ((0,co),(1,si)):
        for r in range(2):
            a(f'v_xor_b32 {v(YC+2*k+r)}, {s(sT+4)}, {v(src+r)}')
            a(f'v_xor_b32 {v(YS+2*k+r)}, {s(sT+4)}, {v(src+2+r)}')
    a(f'''
    s_and_b32 {s(sT+1)}, {s(sW)}, 3
    s_lshl_b32 {s(sT+1)}, {s(sT+1)}, 6            ; 64cb
    s_lshr_b32 {s(sT)}, {s(sW)}, 2
    s_mul_i32 {s(sT)}, {s(sT)}, {16*272}
    s_add_u32 {s(sT)}, {s(sT)}, {s(sT+1)}
    s_add_u32 {s(sT)}, {s(sT)}, {L_YT}
    v_mul_u32_u24 {v(vYW)}, 272, {v(vN)}
    v_lshl_add_u32 {v(vYW)}, {v(vQ)}, 4, {v(vYW)}
    v_add_u32 {v(vYW)}, {s(sT)}, {v(vYW)}
    v_mul_u32_u24 {v(vYR)}, 272, {v(t+1)}
    v_add_u32 {v(vYR)}, {v(vYR)}, {v(t+2)}
    v_add_u32 {v(vYR)}, {L_YT}, {v(vYR)}
    s_add_u32 {s(sT+1)}, {s(sT+1)}, {L_YI}
    v_mul_u32_u24 {v(c+4)}, {4*YIS}, {v(vQ)}
    v_and_b32 {v(c+6)}, 0x30, {v(t+2)}
    v_add3_u32 {v(vYIR)}, {v(vYIR)}, {v(c+4)}, {v(c+6)}
    v_add_u32 {v(vYIR)}, {s(sT+1)}, {v(vYIR)}
    s_cmp_lt_u32 {s(sJ)}, 8
    s_cbranch_scc1 L_aself
    v_mul_u32_u24 {v(vLld)}, {PS}, {v(t+1)}
    v_mul_u32_u24 {v(vYIW)}, {YIS}, {v(t+1)}
    s_lshl_b32 {s(sT)}, {s(sJ)}, 8
    v_add3_u32 {v(vLld)}, {v(vLld)}, {v(t+2)}, {s(sT)}
    v_add_u32 {v(vYIW)}, {v(vYIW)}, {v(t+2)}
    v_mov_b32 {v(vLldM)}, 0
    s_branch L_adone
    L_aself:
    ; s2=(w>>1)*8+(l>>3), u=l&7, which=w&1
    s_lshl_b32 {s(sT)}, {s(sW)}, 2
    s_and_b32 {s(sT)}, {s(sT)}, 24
    v_lshrrev_b32 {v(c+4)}, 3, {v(vLane)}
    v_add_u32 {v(c+4)}, {s(sT)}, {v(c+4)}
    v_and_b32 {v(c+6)}, 0x70, {v(t+2)}
    v_mul_u32_u24 {v(vLldM)}, {PS}, {v(c+4)}
    v_mul_u32_u24 {v(vYIW)}, {YIS}, {v(c+4)}
    s_lshl_b32 {s(sT)}, {s(sJ)}, 7
    s_add_u32 {s(sT+1)}, {s(sT)}, 4
    s_sub_u32 {s(sT)}, {508*4}, {s(sT)}
    v_add3_u32 {v(vLld)}, {v(vLldM)}, {v(c+6)}, {s(sT+1)}
    v_sub_u32 {v(vLldM)}, {v(vLldM)}, {v(c+6)}
    v_add_u32 {v(vLldM)}, {s(sT)}, {v(vLldM)}
    s_lshr_b32 {s(sT)}, {s(sT+3)}, 24
    v_add3_u32 {v(vYIW)}, {v(vYIW)}, {v(c+6)}, {s(sT)}
    L_adone:
    v_add_u32 {v(vYIW)}, {L_YI}, {v(vYIW)}
    s_waitcnt vmcnt({(0 if cfg.aft&1 else 2)+(0 if cfg.aft&2 else 2)+(1 if cfg.g2pos==0 else 0)})
    {tabt if cfg.aft&1 else ''}
    {ltch if cfg.aft&1 else ''}
    {clrs if cfg.aft&2 else ''}
    {g2c if cfg.g2pos==1 else ''}
    v_readfirstlane_b32 {s(sTag)}, {v(X0+6)}
    ''')
    for rho in (0,1):
        for k in (0,1):
            src=X0+2*rho+k
            a(f'v_lshlrev_b32 {v(X+4*k+rho)}, 16, {v(src)}')
            a(f'v_and_b32 {v(X+4*k+2+rho)}, 0xffff0000, {v(src)}')
    for k in (0,1):
        a(f'v_lshlrev_b32 {v(WV+2*k)}, 16, {v(X0+4+k)}')
        a(f'v_and_b32 {v(WV+2*k+1)}, 0xffff0000, {v(X0+4+k)}')
    a(f's_add_u32 {s(sTag)}, {s(sTag)}, 1')

def xin_consts(c):
    a(f'''
    s_and_b32 {s(sT)}, {s(sX)}, 3                ; 0 => self
    s_lshr_b32 {s(sT+1)}, {s(sW)}, 2
    s_lshr_b32 {s(sT+2)}, {s(sX)}, 2
    s_mov_b32 {s(sSc)}, {fbits(16.0)}
    s_cmp_eq_u32 {s(sT)}, 0
    s_cselect_b32 {s(sMir)}, {s(sT+1)}, {s(sT+2)}
    s_cselect_b32 {s(sSc)}, {fbits(8.0)}, {s(sSc)}
    s_cselect_b32 {s(sDsc)}, {fbits(1/8)}, {s(sC16)}
    s_cselect_b32 {s(sT+3)}, -4, 0
    s_mov_b32 {s(sSc+1)}, {s(sSc)}
    s_sub_u32 {s(sT+4)}, 256, s2
    s_and_b32 {s(sT+4)}, {s(sT+4)}, 255
    s_cmp_eq_u32 {s(sMir)}, 0
    s_cselect_b32 {s(sT+4)}, s2, {s(sT+4)}       ; source g
    s_cselect_b32 {s(sT+5)}, 16, -16
    s_cselect_b32 {s(sT+6)}, 0, {509*4}
    s_cselect_b32 {s(sT+7)}, 1.0, -1.0
    s_add_u32 {s(sT+3)}, {s(sT+3)}, {s(sT+6)}
    s_mul_i32 {s(sT+6)}, {s(sT+5)}, {s(sW)}
    s_lshl_b32 {s(sT+6)}, {s(sT+6)}, 4
    s_add_u32 {s(sT+3)}, {s(sT+3)}, {s(sT+6)}
    s_lshr_b32 {s(sT+6)}, {s(sT+4)}, 3
    s_lshl_b32 {s(sT+6)}, {s(sT+6)}, 11
    s_add_u32 {s(sT+3)}, {s(sT+3)}, {s(sT+6)}
    s_add_u32 {s(sT+6)}, {s(sT+4)}, 3
    s_and_b32 {s(sT+6)}, {s(sT+6)}, 3
    s_lshl_b32 {s(sT+6)}, {s(sT+6)}, 16
    s_add_u32 {s(sT+3)}, {s(sT+3)}, {s(sT+6)}
    s_and_b32 {s(sT+6)}, {s(sT+4)}, 4
    s_lshl_b32 {s(sT+6)}, {s(sT+6)}, 8
    s_add_u32 {s(sT+3)}, {s(sT+3)}, {s(sT+6)}
    v_mul_i32_i24 {v(vGld)}, {s(sT+5)}, {v(vN)}
    v_mul_u32_u24 {v(c+4)}, {GS}, {v(vQ)}
    v_add3_u32 {v(vGld)}, {v(vGld)}, {v(c+4)}, {s(sT+3)}
    v_lshrrev_b32 {v(c+4)}, 1, {v(vN)}
    v_and_b32 {v(c+4)}, 6, {v(c+4)}
    v_and_or_b32 {v(c+4)}, {v(vN)}, 1, {v(c+4)}
    v_lshl_add_u32 {v(AD)}, {v(c+4)}, 8, s2
    v_cvt_f32_u32 {v(c+4)}, {v(AD)}
    v_cvt_f32_u32 {v(c+5)}, {v(vQ)}
    v_mul_f32 {v(c+4)}, {fbits(1/2048)}, {v(c+4)}
    v_mul_f32 {v(c+4)}, {s(sT+7)}, {v(c+4)}
    v_mul_f32 {v(c+5)}, {v(c+4)}, {v(c+5)}
    v_fma_f32 {v(c+6)}, {v(c+4)}, 4.0, {v(c+5)}
    v_cos_f32 {v(c+7)}, {v(c+5)}
    v_sin_f32 {v(c+8)}, {v(c+5)}
    v_cos_f32 {v(c+9)}, {v(c+6)}
    v_sin_f32 {v(c+10)}, {v(c+6)}
    v_bfe_u32 {v(c+4)}, {v(vN)}, 1, 1
    v_cmp_eq_u32 vcc, {s(sMir)}, {v(c+4)}
    v_cvt_pk_f16_f32 {v(c+7)}, {v(c+7)}, {v(c+8)}
    v_cvt_pk_f16_f32 {v(c+9)}, {v(c+9)}, {v(c+10)}
    v_cndmask_b32 {v(XA)}, 0, {v(c+7)}, vcc
    v_cndmask_b32 {v(XA+1)}, {v(c+7)}, 0, vcc
    v_cndmask_b32 {v(XA+2)}, 0, {v(c+9)}, vcc
    v_cndmask_b32 {v(XA+3)}, {v(c+9)}, 0, vcc
    v_and_b32 {v(c+4)}, 0x1cf, v0
    v_cmp_eq_u32 vcc, 0, {v(c+4)}
    v_mov_b32 {v(c+5)}, {s(sSc)}
    s_sub_u32 {s(sT)}, 2047, s2
    v_lshlrev_b32 {v(vInv)}, 9, {v(vQ)}
    v_cndmask_b32 {v(vSc0)}, {v(c+5)}, 0, vcc
    v_cndmask_b32 {v(vSc0+1)}, {v(c+5)}, 0, vcc
    v_sub_u32 {v(vInv)}, {s(sT)}, {v(vInv)}
    s_lshl_b32 {s(sSlot)}, {s(sX)}, 12
    s_add_u32 {s(sSlot)}, {s(sSlot)}, {SLOT}
    ''')

def main_loop():
    t=T
    S1,S2,S3=t,t+2,t+4
    a('L_top:')
    stamp()
    a(f'''
    v_pk_add_f32 {v(S1,2)}, {v(X,2)}, {v(X+2,2)}
    v_pk_add_f32 {v(t+6,2)}, {v(X+4,2)}, {v(X+6,2)}
    v_pk_mul_f32 {v(S2,2)}, {v(X,2)}, {v(X,2)}
    v_pk_mul_f32 {v(S3,2)}, {v(X,2)}, {v(WV,2)} op_sel:[0,0] op_sel_hi:[1,0]
    v_pk_add_f32 {v(S1,2)}, {v(S1,2)}, {v(t+6,2)}
    v_pk_fma_f32 {v(S2,2)}, {v(X+2,2)}, {v(X+2,2)}, {v(S2,2)}
    v_pk_fma_f32 {v(S3,2)}, {v(X+2,2)}, {v(WV,2)}, {v(S3,2)} op_sel:[0,1,0] op_sel_hi:[1,1,1]
    v_add_f32_dpp {v(S1)}, {v(S1)}, {v(S1)} row_ror:8 row_mask:0xf bank_mask:0x3
    v_pk_fma_f32 {v(S2,2)}, {v(X+4,2)}, {v(X+4,2)}, {v(S2,2)}
    v_pk_fma_f32 {v(S3,2)}, {v(X+4,2)}, {v(WV+2,2)}, {v(S3,2)} op_sel:[0,0,0] op_sel_hi:[1,0,1]
    v_add_f32_dpp {v(S1)}, {v(S1+1)}, {v(S1+1)} row_ror:8 row_mask:0xf bank_mask:0xc
    v_pk_fma_f32 {v(S2,2)}, {v(X+6,2)}, {v(X+6,2)}, {v(S2,2)}
    v_pk_fma_f32 {v(S3,2)}, {v(X+6,2)}, {v(WV+2,2)}, {v(S3,2)} op_sel:[0,1,0] op_sel_hi:[1,1,1]
    s_cmp_eq_u32 {s(sIt)}, 0
    s_cbranch_scc1 L_s3w
    L_s3ok:
    v_add_f32_dpp {v(S1)}, {v(S1)}, {v(S1)} row_half_mirror row_mask:0xf bank_mask:0x5
    v_add_f32_dpp {v(S2)}, {v(S2)}, {v(S2)} row_ror:8 row_mask:0xf bank_mask:0x3
    v_add_f32_dpp {v(S3)}, {v(S3)}, {v(S3)} row_ror:8 row_mask:0xf bank_mask:0x3
    v_add_f32_dpp {v(S2)}, {v(S2+1)}, {v(S2+1)} row_ror:8 row_mask:0xf bank_mask:0xc
    v_add_f32_dpp {v(S3)}, {v(S3+1)}, {v(S3+1)} row_ror:8 row_mask:0xf bank_mask:0xc
    v_add_f32_dpp {v(S1)}, {v(S2)}, {v(S2)} row_half_mirror row_mask:0xf bank_mask:0xa
    v_add_f32_dpp {v(S3)}, {v(S3)}, {v(S3)} row_half_mirror {DPP}
    v_add_f32_dpp {v(S1)}, {v(S1)}, {v(S1)} quad_perm:[1,0,3,2] {DPP}
    v_add_f32_dpp {v(S3)}, {v(S3)}, {v(S3)} quad_perm:[1,0,3,2] {DPP}
    v_add_f32_dpp {v(S1)}, {v(S1)}, {v(S1)} quad_perm:[2,3,0,1] {DPP}
    v_add_f32_dpp {v(S3)}, {v(S3)}, {v(S3)} quad_perm:[2,3,0,1] {DPP}
    s_mov_b64 exec, {s(sQmask,2)}
    ds_write2_b32 {v(vStW)}, {v(S1)}, {v(S3)} offset0:0 offset1:32
    s_mov_b64 exec, -1
    ;@F
    s_waitcnt {'' if cfg.late else 'vmcnt(0)' if cfg.tch==1 else 'vmcnt(2)'} lgkmcnt(0)
    s_barrier
    ;@F
    ds_read_b128 {v(t,4)}, {v(vStR)}
    ds_read_b128 {v(t+4,4)}, {v(vStR)} offset:16
    s_waitcnt lgkmcnt(0)
    v_pk_add_f32 {v(t,2)}, {v(t,2)}, {v(t+2,2)}
    v_pk_add_f32 {v(t+4,2)}, {v(t+4,2)}, {v(t+6,2)}
    v_pk_add_f32 {v(t,2)}, {v(t,2)}, {v(t+4,2)}
    v_add_f32 {v(t)}, {v(t)}, {v(t+1)}
    v_mul_f32 {v(t+7)}, {s(sK512)}, {v(t)}
    ''')
    VAR,RS,CC,NM=t+8,t+10,t+12,t+14
    K=t+16
    a(f'''
    v_mov_b32_dpp {v(MM)}, {v(t+7)} row_newbcast:0 {DPP}
    v_mov_b32_dpp {v(MM+1)}, {v(t+7)} row_newbcast:1 {DPP}
    v_mov_b32_dpp {v(S2)}, {v(t+7)} row_newbcast:2 {DPP}
    v_mov_b32_dpp {v(S2+1)}, {v(t+7)} row_newbcast:3 {DPP}
    v_mov_b32_dpp {v(S3)}, {v(t+7)} row_newbcast:4 {DPP}
    v_pk_fma_f32 {v(VAR,2)}, {v(MM,2)}, {v(MM,2)}, {v(S2,2)} neg_lo:[1,0,0] neg_hi:[1,0,0]
    v_mov_b32_dpp {v(S3+1)}, {v(t+7)} row_newbcast:5 {DPP}
    v_pk_add_f32 {v(S1,2)}, {v(VAR,2)}, {s(sEps,2)}
    s_cmp_eq_u32 {s(sIt)}, 0
    v_rsq_f32_e64 {v(RS)}, |{v(S1)}|
    v_rsq_f32_e64 {v(RS+1)}, |{v(S1+1)}|
    s_cbranch_scc1 L_it0 ;!nd
    v_pk_mul_f32 {v(S3,2)}, {v(S3,2)}, {v(RS,2)}
    v_add_u32 {v(K+2)}, 0xffffff00, {v(vInv)}
    v_ashrrev_i32 {v(K)}, 31, {v(S3)}
    v_ashrrev_i32 {v(K+1)}, 31, {v(S3+1)}
    v_bitop3_b32 {v(K)}, {v(S3)}, {v(K)}, {s(sTop)} bitop3:0x1e
    v_bitop3_b32 {v(K+1)}, {v(S3+1)}, {v(K+1)}, {s(sTop)} bitop3:0x1e
    v_bfi_b32 {v(K)}, {s(sM7FF)}, {v(vInv)}, {v(K)}
    v_bfi_b32 {v(K+1)}, {s(sM7FF)}, {v(K+2)}, {v(K+1)}
    v_max_u32 {v(K+1)}, {v(K)}, {v(K+1)}
    v_pk_add_f32 {v(CC,2)}, {v(RS,2)}, 1.0 op_sel_hi:[1,0]
    v_mov_b32 {v(K)}, {s(sTag)}
    v_max_u32_dpp {v(K+1)}, {v(K+1)}, {v(K+1)} row_bcast:15 row_mask:0xa bank_mask:0xf
    v_pk_mul_f32 {v(VAR,2)}, {v(VAR,2)}, {v(CC,2)}
    s_cmp_lg_u32 {s(sW)}, 0
    v_max_u32_dpp {v(K+1)}, {v(K+1)}, {v(K+1)} row_bcast:31 row_mask:0xc bank_mask:0xf
    s_cbranch_scc1 L_nost ;!nd
    s_mov_b32 exec_lo, 0
    s_mov_b32 exec_hi, {s(sTop)}
    s_cmp_eq_u32 {s(sFast)}, 0
    s_cbranch_scc1 L_tabst_slow ;!nd
    buffer_store_dwordx2 {v(K,2)}, off, {WS}, {s(sTabSt)}
    L_tabst_back:
    s_mov_b64 exec, -1
    L_nost:
    v_readlane_b32 {s(sKey)}, {v(K+1)}, 63
    v_pk_mul_f32 {v(NM,2)}, {v(MM,2)}, {v(RS,2)}
    v_pk_fma_f32 {v(VAR,2)}, {v(VAR,2)}, {v(CC,2)}, {s(sEps,2)}
    ''')
    Z=t+18
    for c_ in range(4):
        a(f'v_pk_fma_f32 {v(Z+2*c_,2)}, {v(X+2*c_,2)}, {v(RS,2)}, {v(NM,2)} neg_lo:[0,0,1] neg_hi:[0,0,1]')
        if c_==0: a(f'v_rsq_f32_e64 {v(RS2)}, |{v(VAR)}|')
        if c_==1: a(f'v_rsq_f32_e64 {v(RS2+1)}, |{v(VAR+1)}|')
    for c_ in range(4):
        a(f'v_pk_add_f32 {v(X+2*c_,2)}, {v(X+2*c_,2)}, {v(Z+2*c_,2)}')
    for rho in (0,1):
        for k in (0,1):
            a(f'v_cvt_pk_bf16_f32 {v(LNP+2*rho+k)}, {v(Z+4*k+rho)}, {v(Z+4*k+2+rho)}')
    a(f'''
    s_cmp_eq_u32 {s(sIt)}, 2
    s_cbranch_scc1 L_tab2e ;!nd
    v_pk_mul_f32 {v(CC,2)}, {v(RS2,2)}, {s(sC16,2)}
    L_z:
    ;@F
    ''')
    ZP=t; D0=t+4; D1=t+8
    a(f'v_pk_mul_f32 {v(NM,2)}, {v(MM,2)}, {v(CC,2)}')
    for c_ in range(4):
        a(f'v_pk_fma_f32 {v(Z+2*c_,2)}, {v(X+2*c_,2)}, {v(CC,2)}, {v(NM,2)} neg_lo:[0,0,1] neg_hi:[0,0,1]')
    for c_ in range(4): a(f'v_cvt_pk_f16_f32 {v(ZP+c_)}, {v(Z+2*c_)}, {v(Z+2*c_+1)}')
    a(f'''
    v_mfma_f32_16x16x16_f16 {v(D0,4)}, {v(A8,2)}, {v(ZP,2)}, 0
    v_mfma_f32_16x16x16_f16 {v(D1,4)}, {v(A8,2)}, {v(ZP+2,2)}, 0
    s_nop 6
    v_cvt_pk_f16_f32 {v(ZP)}, {v(D0)}, {v(D0+1)}
    v_cvt_pk_f16_f32 {v(ZP+1)}, {v(D1)}, {v(D1+1)}
    v_cvt_pk_f16_f32 {v(ZP+2)}, {v(D0+2)}, {v(D0+3)}
    v_cvt_pk_f16_f32 {v(ZP+3)}, {v(D1+2)}, {v(D1+3)}
    ds_write_b64 {v(vUW)}, {v(ZP,2)}
    ds_write_b64 {v(vUW)}, {v(ZP+2,2)} offset:1024
    ;@F
    s_waitcnt lgkmcnt(0)
    s_barrier
    ;@F
    ds_read_b64_tr_b16 {v(t,2)}, {v(vUR)}
    ds_read_b64_tr_b16 {v(t+2,2)}, {v(vUR)} offset:512
    ds_read_b64_tr_b16 {v(t+4,2)}, {v(vUR)} offset:1024
    ds_read_b64_tr_b16 {v(t+6,2)}, {v(vUR)} offset:1536
    s_cmp_ge_u32 {s(sW)}, {s(sIt)}
    s_cbranch_scc1 L_tg1 ;!nd
    buffer_load_dwordx2 {v(t+24,2)}, {v(vL8)}, {WS}, {s(sTabLd)} offen sc1
    L_tg1:
    L_tg2:
    s_waitcnt lgkmcnt(0)
    ;@F
    ''')
    P=t
    fft_core(t, t+4, t+8, t+16, t+8, P)
    for r in range(4): a(f'v_bfi_b32 {v(P+r)}, 1, {s(sPh)}, {v(P+r)}')
    def lstores(fl):
        for r in range(4): a(f'buffer_store_dword {v(P+r)}, {v(vLst)}, {WS}, {s(sLst)} offen offset:{128*r} {fl}')
    TB=t+24
    W_=t+4
    a(f'''
    s_cmp_lg_u32 {s(sIt)}, 0
    s_cbranch_scc1 L_tab1e
    ''')
    lstores('')
    stamp()
    a(f'''
    s_branch L_pub
    L_tab1e:
    s_cmp_eq_u32 {s(sW)}, 0
    s_cbranch_scc1 L_tabw1
    s_branch L_tabbar
    L_tab2e:
    s_cmp_eq_u32 {s(sW)}, 0
    s_cbranch_scc1 L_tab
    s_branch L_tabbar
    L_tab:
    buffer_load_dwordx2 {v(TB,2)}, {v(vL8)}, {WS}, {s(sTabLd)} offen sc1
    L_tabw1:
    s_waitcnt vmcnt(0)
    v_cmp_ne_u32 vcc, {s(sTag)}, {v(TB)}
    ''')
    poll_branch('L_tab', cfg.slp_t, f'''s_cmp_lg_u32 {s(sIt)}, 0
        s_cselect_b32 {s(sT)}, 0, 1
        s_sub_u32 {s(sTry)}, {s(sTry)}, {s(sT)}
        s_cbranch_scc1 L_tab2''')
    a(f'''
    L_tabok:
    v_cmp_ne_u32 vcc, {s(sKey)}, {v(TB+1)}
    v_cmp_lt_u32 {s(sT,2)}, {s(sKey)}, {v(TB+1)}
    v_mov_b32 {v(TB)}, {L_FLAG}
    s_cmp_eq_u32 {s(sIt)}, 0
    s_cselect_b32 {s(sT)}, vcc_lo, {s(sT)}
    v_mov_b32 {v(TB+1)}, {s(sT)}
    ds_write_b32 {v(TB)}, {v(TB+1)}
    s_waitcnt lgkmcnt(0)
    s_barrier
    s_branch L_tabgot
    L_tabbar:
    v_mov_b32 {v(TB)}, {L_FLAG}
    s_barrier
    ds_read_b32 {v(TB+1)}, {v(TB)}
    s_waitcnt lgkmcnt(0)
    v_readfirstlane_b32 {s(sT)}, {v(TB+1)}
    L_tabgot:
    s_cmp_eq_u32 {s(sIt)}, 0
    s_cbranch_scc1 L_fastchk ;!nd
    s_mov_b32 {s(sT+9)}, 64
    s_cmp_lg_u32 {s(sT)}, 0
    s_cbranch_scc1 L_winback ;!nd
    L_pub:
    s_andn2_b32 {s(sT)}, {s(sM7FF)}, {s(sKey)}      ; idx
    s_lshr_b32 {s(sT+9)}, {s(sT)}, 8                ; s1
    s_bitcmp1_b32 {s(sT+9)}, 0
    s_cselect_b64 vcc, -1, 0
    s_lshl_b32 {s(sT+1)}, {s(sT+9)}, 3
    s_and_b32 {s(sT+1)}, {s(sT+1)}, 0x30
    v_cndmask_b32 {v(W_)}, {v(LNP)}, {v(LNP+2)}, vcc
    v_cndmask_b32 {v(W_+1)}, {v(LNP+1)}, {v(LNP+3)}, vcc
    v_and_b32 {v(W_+2)}, 0x3ff, {v(vXoff)}
    s_bfm_b64 exec, 16, {s(sT+1)}
    buffer_store_dwordx2 {v(W_,2)}, {v(W_+2)}, {WS}, {s(sSlot)} offen sc1
    s_cmp_lg_u32 {s(sW)}, 0
    s_cbranch_scc1 L_nohdr
    v_mov_b32 {v(W_+8)}, {s(sKey)}
    v_cndmask_b32 {v(W_+9)}, {v(MM)}, {v(MM+1)}, vcc
    v_cndmask_b32 {v(W_+10)}, {v(RS2)}, {v(RS2+1)}, vcc
    v_mov_b32 {v(W_+11)}, {s(sKey)}
    buffer_store_dwordx4 {v(W_+8,4)}, off, {WS}, {s(sSlot)} offset:3072 sc1
    buffer_store_dwordx4 {v(W_+8,4)}, off, {WS}, {s(sSlot)} offset:3200 sc1
    L_nohdr:
    ''')
    for c_ in range(4): a(f'v_cndmask_b32 {v(W_+4+c_)}, {v(X+2*c_)}, {v(X+2*c_+1)}, vcc')
    a(f'''
    v_lshlrev_b32 {v(W_+2)}, 1, {v(W_+2)}
    buffer_store_dwordx4 {v(W_+4,4)}, {v(W_+2)}, {WS}, {s(sSlot)} offen offset:1024 sc1
    s_mov_b64 exec, -1
    s_cmp_eq_u32 {s(sIt)}, 0
    s_cbranch_scc1 L_flag0
    L_winback:
    s_cmp_eq_u32 {s(sIt)}, 2
    s_cbranch_scc1 L_fin
    s_add_u32 {s(sSlot)}, {s(sSlot)}, {SLOTR}
    ''')
    lstores('')
    stamp()
    a(f'''
    s_waitcnt vmcnt(0)
    s_branch L_tabdone
    L_flag0:
    ;@F
    v_mov_b32 {v(t+22)}, {s(sTag)}
    v_mov_b32 {v(t+23)}, {s(sKey)}
    s_waitcnt vmcnt(0)
    ;@F
    s_cmp_eq_u32 {s(sW)}, 0
    s_barrier
    s_cbranch_scc0 L_tabbar
    s_mov_b64 exec, 1
    buffer_store_dwordx2 {v(t+22,2)}, off, {WS}, {s(sTabSt)}
    s_mov_b64 exec, -1
    s_branch L_tab
    L_fastchk:
    s_cmp_eq_u32 {s(sT)}, 0
    s_cselect_b32 {s(sFast)}, 1, 0
    L_tabdone:
    s_cmp_eq_u32 {s(sFast)}, 0
    s_cbranch_scc1 L_slow
    L_slowback:
    ;@F
    s_cmp_lt_u32 {s(sJ)}, 8
    s_cbranch_scc0 L_y
    s_branch L_yself
    L_y:
    buffer_load_dwordx4 {v(t,4)}, {v(vLld)}, {WS}, {s(sLld)} offen sc1
    s_waitcnt vmcnt(0)
    ds_write_b128 {v(vYIW)}, {v(t,4)}
    ''')
    phchk(range(t,t+4), t+8)
    poll_branch('L_y', cfg.slp_l, mask=True)
    a('L_yjoin:')
    stamp()
    a(f'''
    s_cmp_lg_u32 {s(sT+12)}, 0
    s_cbranch_scc1 L_noxf
    s_lshl_b32 {s(sT+12)}, {s(sX)}, 7
    s_add_u32 {s(sT+12)}, {s(sT+12)}, {TABG}
    v_lshrrev_b32 {v(t+8)}, 1, {v(vL8)}
    v_mov_b32 {v(t+9)}, {s(sTag)}
    s_mov_b32 exec_hi, 0
    buffer_store_dword {v(t+9)}, {v(t+8)}, {WS}, {s(sT+12)} offen sc1
    s_mov_b64 exec, -1
    L_noxf:
    s_cmp_eq_u32 {s(sIt)}, 0
    s_cbranch_scc1 L_nohl
    v_and_b32 {v(BC)}, 7, {v(vLane)}
    v_lshlrev_b32 {v(BC)}, 12, {v(BC)}
    s_mov_b32 {s(sT+10)}, {SLOT}
    s_mov_b64 exec, 0xff
    buffer_load_dwordx4 {v(LNP,4)}, {v(BC)}, {WS}, {s(sT+10)} offen offset:3200 sc1
    s_mov_b64 exec, -1
    L_nohl:
    ''')
    A0,A1=t,t+4; P0,Q0,P1,Q1=t+8,t+12,t+16,t+20
    a(f'''
    s_waitcnt lgkmcnt(0)
    s_barrier
    ;@F
    ds_read_b64_tr_b16 {v(A0,2)}, {v(vYIR)}
    ds_read_b64_tr_b16 {v(A0+2,2)}, {v(vYIR)} offset:{16*YIS}
    ds_read_b64_tr_b16 {v(A1,2)}, {v(vYIR)} offset:8
    ds_read_b64_tr_b16 {v(A1+2,2)}, {v(vYIR)} offset:{16*YIS+8}
    s_add_u32 {s(sTabLd)}, {s(sTabLd)}, {ARGR}
    s_add_u32 {s(sTabSt)}, {s(sTabSt)}, {ARGR}
    s_waitcnt lgkmcnt(2)
    v_mfma_f32_16x16x32_f16 {v(P0,4)}, {v(A0,4)}, {v(YC,4)}, 0
    v_mfma_f32_16x16x32_f16 {v(Q0,4)}, {v(A0,4)}, {v(YS,4)}, 0
    s_waitcnt lgkmcnt(0)
    v_mfma_f32_16x16x32_f16 {v(P1,4)}, {v(A1,4)}, {v(YC,4)}, 0
    v_mfma_f32_16x16x32_f16 {v(Q1,4)}, {v(A1,4)}, {v(YS,4)}, 0
    ''')
    for P_,Q_ in ((P0,Q0),(P1,Q1)):
        for h in (0,2):
            a(f'v_pk_add_f32 {v(P_+h,2)}, {v(P_+h,2)}, {v(Q_+h,2)} op_sel:[0,1] op_sel_hi:[1,0] neg_hi:[0,1]')
    a(f'''
    v_cvt_pk_f16_f32 {v(t)}, {v(P0)}, {v(P0+1)}
    v_cvt_pk_f16_f32 {v(t+1)}, {v(P0+2)}, {v(P0+3)}
    v_cvt_pk_f16_f32 {v(t+2)}, {v(P1)}, {v(P1+1)}
    v_cvt_pk_f16_f32 {v(t+3)}, {v(P1+2)}, {v(P1+3)}
    ''')
    if cfg.gre:
        for r in range(4): a(f'v_bfi_b32 {v(t+r)}, 1, {s(sPh)}, {v(t+r)}')
    a(f'''
    ds_write_b128 {v(vYW)}, {v(t,4)}
    ;@F
    s_waitcnt lgkmcnt(0)
    s_barrier
    ;@F
    ds_read_b128 {v(t+4,4)}, {v(vYR)}
    s_cmp_lg_u32 {s(sIt)}, 0
    s_cbranch_scc1 L_hdr
    s_waitcnt lgkmcnt(0)
    buffer_store_dwordx4 {v(t+4,4)}, {v(vGst)}, {WS}, {s(sG0)} offen sc1
    ''')
    stamp()
    a(f'''
    v_and_b32 {v(t+24)}, 7, {v(vLane)}
    v_lshlrev_b32 {v(t+24)}, 7, {v(t+24)}
    s_mov_b32 {s(sT+10)}, {TABG}
    v_mov_b32 {v(t+20)}, {s(sTag)}
    ''')
    a(f's_mov_b64 exec, 0xff\nbuffer_load_dword {v(t+20)}, {v(t+24)}, {WS}, {s(sT+10)} offen sc1\ns_mov_b64 exec, -1')
    xin_consts(t+8)
    a(';@F\nL_tg0w:\ns_waitcnt vmcnt(0)')
    a(f'v_cmp_ne_u32 vcc, {s(sTag)}, {v(t+20)}')
    a(f'''
    s_cbranch_vccz L_g ;!nd
    s_branch L_tg0_r
    L_g:
    ''')
    C0,C1=t,t+4
    a(f'''
    buffer_load_dwordx4 {v(C0,4)}, {v(vGld)}, {WS}, {s(sG0)} offen sc1
    buffer_load_dwordx4 {v(C1,4)}, {v(vGld)}, {WS}, {s(sG4)} offen sc1
    L_gw:
    s_cmp_lg_u32 {s(sMir)}, 0
    s_waitcnt vmcnt(0)
    L_gw2:
    s_cbranch_scc1 L_xmir ;!nd
    ''')
    E0,E1=t+8,t+12
    a(f'''
    v_mfma_f32_16x16x16_f16 {v(E0,4)}, {v(XA,2)}, {v(C0,2)}, 0
    v_mfma_f32_16x16x16_f16 {v(E1,4)}, {v(XA,2)}, {v(C0+2,2)}, 0
    v_mfma_f32_16x16x16_f16 {v(E0,4)}, {v(XA+2,2)}, {v(C1,2)}, {v(E0,4)}
    v_mfma_f32_16x16x16_f16 {v(E1,4)}, {v(XA+2,2)}, {v(C1+2,2)}, {v(E1,4)}
    s_branch L_xjoin ;!nd
    L_xmir:
    ''')
    a.hist=[]
    a(f'''
    v_mfma_f32_16x16x16_f16 {v(E0,4)}, {v(XA,2)}, {v(C0+2,2)}, 0
    v_mfma_f32_16x16x16_f16 {v(E1,4)}, {v(XA,2)}, {v(C0,2)}, 0
    v_mfma_f32_16x16x16_f16 {v(E0,4)}, {v(XA+2,2)}, {v(C1+2,2)}, {v(E0,4)}
    v_mfma_f32_16x16x16_f16 {v(E1,4)}, {v(XA+2,2)}, {v(C1,2)}, {v(E1,4)}
    L_xjoin:
    ''')
    if cfg.gre: phchk(range(t,t+8), t+16)
    else: maxchk(range(t,t+8), t+16)
    poll_branch('L_g', cfg.slp_g, mask=True)
    stamp()
    a(f'''
    s_mov_b32 {s(sIt)}, 1
    s_mov_b32 {s(sPh)}, -1
    {f's_add_u32 {s(sG0)}, {s(sG0)}, {GR}' if not cfg.gre else ''}
    {f's_add_u32 {s(sG4)}, {s(sG4)}, {GR}' if not cfg.gre else ''}
    L_apply:
    s_cmp_eq_u32 {s(sNx)}, 0
    v_pk_fma_f32 {v(X,2)}, {v(E0,2)}, {v(vSc0,2)}, {v(X,2)}
    v_pk_fma_f32 {v(X+2,2)}, {v(E0+2,2)}, {s(sSc,2)}, {v(X+2,2)}
    v_pk_fma_f32 {v(X+4,2)}, {v(E1,2)}, {s(sSc,2)}, {v(X+4,2)}
    v_pk_fma_f32 {v(X+6,2)}, {v(E1+2,2)}, {s(sSc,2)}, {v(X+6,2)}
    s_cbranch_scc1 L_top ;!nd
    s_branch L_corr
    ''')
    a(f'''
    L_yself:
    buffer_load_dwordx4 {v(t,4)}, {v(vLld)}, {WS}, {s(sLld)} offen sc1
    buffer_load_dwordx4 {v(t+4,4)}, {v(vLldM)}, {WS}, {s(sLld)} offen sc1
    s_waitcnt vmcnt(0)
    ''')
    phchk(range(t,t+8), t+8)
    poll_branch('L_yself', cfg.slp_l, mask=True)
    a(f'''
    s_bitcmp1_b32 {s(sW)}, 0
    s_cbranch_scc1 L_yself4
    ''')
    for k in range(4): a(f'v_pk_add_f16 {v(t+k)}, {v(t+k)}, {v(t+7-k)} neg_hi:[0,1]')
    a(f'ds_write_b128 {v(vYIW)}, {v(t,4)}\ns_branch L_yjoin\nL_yself4:')
    for k in range(4): a(f'v_pk_add_f16 {v(t+k)}, {v(t+k)}, {v(t+7-k)} op_sel:[1,1] op_sel_hi:[0,0] neg_hi:[1,0]')
    a(f'ds_write_b128 {v(vYIW)}, {v(t,4)}\ns_branch L_yjoin')
    a(f'''
    L_s3w:
    v_pk_add_f32 {v(S3,2)}, {v(WV,2)}, {v(WV+2,2)}
    v_add_f32 {v(S3)}, {v(S3)}, {v(S3+1)}
    v_mov_b32 {v(S3+1)}, {v(S3)}
    s_branch L_s3ok
    L_it0:
    s_mov_b32 {s(sKey)}, {s(sXcc)}
    v_pk_mul_f32 {v(CC,2)}, {v(RS,2)}, {s(sC16,2)}
    v_mov_b32 {v(S1)}, 0x44000000
    v_pk_add_f32 {v(WV,2)}, {v(WV,2)}, {v(S3,2)} neg_lo:[0,1] neg_hi:[0,1]
    v_pk_add_f32 {v(WV+2,2)}, {v(WV+2,2)}, {v(S3,2)} neg_lo:[0,1] neg_hi:[0,1]
    v_pk_mul_f32 {v(WV,2)}, {v(WV,2)}, {v(S1,2)} op_sel_hi:[1,0]
    v_pk_mul_f32 {v(WV+2,2)}, {v(WV+2,2)}, {v(S1,2)} op_sel_hi:[1,0]
    ''')
    a('s_branch L_z')
    H=LNP
    sIdx=sT+11
    KA=BC+6; EK=BC+8; vYP=BC+9; SEL=BC+10; vDW,vDR=BC+12,BC+13
    YR=t+8; YL=t+12; YD=t+20
    gl=f'buffer_load_dwordx4 {v(C0,4)}, {v(vGld)}, {WS}, {s(sG0)} offen sc1\nbuffer_load_dwordx4 {v(C1,4)}, {v(vGld)}, {WS}, {s(sG4)} offen sc1'
    def hdrpoll(lbl, slp, issued=False, after=''):
        if not issued: a(f"""
        v_and_b32 {v(BC)}, 7, {v(vLane)}
        v_lshlrev_b32 {v(BC)}, 12, {v(BC)}
        """)
        a(f"""
        s_mov_b64 exec, 0xff
        {f's_waitcnt vmcnt({0 if cfg.gre else 1})' if issued else ''}
        {f's_branch {lbl}_c' if issued else ''}
        {lbl}:
        buffer_load_dwordx4 {v(H,4)}, {v(BC)}, {WS}, {s(sT+10)} offen offset:3200 sc1
        s_waitcnt vmcnt(0)
        {lbl}_c:
        """)
        maxchk(range(H,H+4), t+17)
        poll_branch(lbl, slp, skip=True)
        a('s_mov_b64 exec, -1')
        if after: a(after); stamp()
        a(f"""
        v_max_u32_dpp {v(H+3)}, {v(H)}, {v(H)} row_half_mirror {DPP}
        v_max_u32_dpp {v(H+3)}, {v(H+3)}, {v(H+3)} quad_perm:[1,0,3,2] {DPP}
        v_max_u32_dpp {v(H+3)}, {v(H+3)}, {v(H+3)} quad_perm:[2,3,0,1] {DPP}
        v_readfirstlane_b32 {s(sIdx)}, {v(H+3)}
        """)
    def owner():
        a(f"""
        s_sub_u32 {s(sT)}, 2047, {s(sIdx)}
        s_add_u32 {s(sT+1)}, {s(sT)}, 256
        v_cmp_eq_u32 vcc, {s(sT)}, {v(vInv)}
        v_cmp_eq_u32 {s(sT+2,2)}, {s(sT+1)}, {v(vInv)}
        v_cndmask_b32 {v(BC)}, 0, 1.0, vcc
        v_cndmask_b32 {v(BC+1)}, 0, 1.0, {s(sT+2,2)}
        """)
    gst=f's_waitcnt lgkmcnt(0)\nbuffer_store_dwordx4 {v(t+4,4)}, {v(vGst)}, {WS}, {s(sG0)} offen sc1'
    a(f'L_hdr:')
    if not cfg.gre: a(gst); stamp()
    hdrpoll('L_hdrp', 2, True, gst if cfg.gre else '')
    a(f"""
    v_and_b32 {v(vYP)}, 0x3ff, {v(vXoff)}
    v_lshlrev_b32 {v(t+16)}, 1, {v(vYP)}
    s_andn2_b32 {s(sIdx)}, {s(sM7FF)}, {s(sIdx)}
    s_and_b32 {s(sT)}, {s(sIdx)}, 7
    s_lshl_b32 {s(sT+1)}, {s(sT)}, 12
    s_add_u32 {s(sT+10)}, {s(sT+10)}, {s(sT+1)}
    buffer_load_dwordx4 {v(BC+2,4)}, {v(t+16)}, {WS}, {s(sT+10)} offen offset:1024 sc1
    v_readlane_b32 {s(sT+13)}, {v(H+1)}, {s(sT)}
    v_readlane_b32 {s(sT+14)}, {v(H+2)}, {s(sT)}
    v_mul_u32_u24 {v(t+17)}, {s(sIdx)}, {v(AD)}
    v_and_b32 {v(t+17)}, 0x7ff, {v(t+17)}
    v_cvt_f32_u32 {v(t+17)}, {v(t+17)}
    v_mul_f32 {v(t+17)}, {fbits(1/2048)}, {v(t+17)}
    v_cos_f32 {v(t+18)}, {v(t+17)}
    v_sin_f32 {v(t+19)}, {v(t+17)}
    v_and_b32 {v(t+17)}, 0x22, {v(vLane)}
    v_cvt_pk_f16_f32 {v(t+18)}, {v(t+18)}, {v(t+19)}
    v_cmp_eq_u32 vcc, 0, {v(t+17)}
    v_mov_b32 {v(KA)}, {s(sT+14)}
    v_mul_f32 {v(KA)}, {s(sC16)}, {v(KA)}
    v_cndmask_b32 {v(AD)}, 0, {v(t+18)}, vcc
    v_cmp_eq_u32 vcc, 2, {v(t+17)}
    v_mul_f32 {v(EK)}, {v(KA)}, {v(KA)}
    v_mul_f32 {v(EK)}, {s(sEps)}, {v(EK)}
    v_cndmask_b32 {v(AD+1)}, 0, {v(t+18)}, vcc
    """)
    owner()
    a(f"""
    v_lshlrev_b32 {v(t+17)}, 4, {v(vLane)}
    v_mov_b32 {v(t+18)}, 0x3f80
    v_and_b32 {v(t+17)}, 16, {v(t+17)}
    v_lshlrev_b32 {v(t+18)}, {v(t+17)}, {v(t+18)}
    v_and_b32 {v(t+17)}, 2, {v(vLane)}
    v_cmp_eq_u32 vcc, 0, {v(t+17)}
    v_lshl_add_u32 {v(vYP)}, {v(vQ)}, 10, {v(vYP)}
    s_lshl_b32 {s(sT+3)}, {s(sW)}, 8
    v_cndmask_b32 {v(SEL)}, 0, {v(t+18)}, vcc
    v_cndmask_b32 {v(SEL+1)}, {v(t+18)}, 0, vcc
    s_add_u32 {s(sT+3)}, {s(sT+3)}, {L_DH}
    v_lshl_add_u32 {v(vDR)}, {v(vN)}, 4, {s(sT+3)}
    v_and_b32 {v(t+17)}, 1, {v(vQ)}
    v_lshl_add_u32 {v(vDR)}, {v(t+17)}, 11, {v(vDR)}
    v_cmp_eq_u32 vcc, 0, {v(vQ)}
    v_add_u32 {v(vDW)}, {L_DH}, {v(vLst)}
    s_mov_b32 {s(sYo)}, {YP}
    s_lshl_b32 {s(sYh)}, {s(sX)}, 7
    s_add_u32 {s(sYh)}, {s(sYh)}, {YHINT}
    s_lshl_b32 {s(sSg)}, {s(sW)}, 30
    s_and_b32 {s(sSg)}, {s(sSg)}, {s(sTop)}
    s_xor_b32 {s(sSg)}, {s(sSg)}, {s(sDsc)}
    s_mov_b32 {s(sNx)}, 2
    v_cndmask_b32 {v(KA+1)}, 0, {v(KA)}, vcc
    s_waitcnt vmcnt(0)
    {gl if not cfg.hold else ''}
    L_basew:
    """)
    maxchk(range(BC+2,BC+6), t+17)
    a('s_cbranch_vccnz L_base_r ;!nd')
    for k in range(4): a(f'v_subrev_f32 {v(BC+2+k)}, {s(sT+13)}, {v(BC+2+k)}')
    for k in range(4): a(f'v_mul_f32 {v(BC+2+k)}, {v(KA)}, {v(BC+2+k)}')
    a(f"""
    s_branch {'L_ywait' if cfg.hold else 'L_gw'}
    L_corr:
    s_mov_b32 {s(sIt)}, 2
    s_mov_b32 {s(sNx)}, 0
    {'s_branch L_yc' if cfg.hold else ''}
    L_ywait:
    s_add_u32 {s(sT+2)}, {s(sYo)}, 4096
    s_cmp_lg_u32 {s(sW)}, 0
    s_cbranch_scc1 L_hintb
    s_movk_i32 {s(sTry)}, 500
    v_lshrrev_b32 {v(t)}, 1, {v(vL8)}
    """)
    if cfg.own: a(f"""
    s_cmp_eq_u32 {s(sIt)}, 3
    s_cbranch_scc1 L_hint
    s_lshl_b32 {s(sT)}, {s(sJ)}, 2
    v_mov_b32 {v(t)}, {s(sT)}
    """)
    a(f"""
    L_hint:
    buffer_load_dword {v(t+1)}, {v(t)}, {WS}, {s(sYh)} offen sc1
    s_waitcnt vmcnt(0)
    v_cmp_ne_u32 vcc, {s(sTag)}, {v(t+1)}
    """)
    poll_branch('L_hint', 1, giveup='L_hintb')
    if cfg.tim_y: a(f's_sleep {cfg.tim_y}')
    a(f"""
    L_hintb:
    s_barrier
    """)
    if cfg.hold: a(f"""
    s_cmp_eq_u32 {s(sIt)}, 3
    s_cbranch_scc1 L_yv3
    {gl}
    {f's_sleep {cfg.tim_gy}' if cfg.tim_gy else ''}
    buffer_load_dwordx2 {v(YD,2)}, {v(vYP)}, {WS}, {s(sYo)} offen sc1
    buffer_load_dwordx2 {v(YD+2,2)}, {v(vYP)}, {WS}, {s(sT+2)} offen sc1
    s_cmp_lg_u32 {s(sMir)}, 0
    s_waitcnt vmcnt(2)
    s_branch L_gw2
    L_yv3:
    {f's_sleep {cfg.tim_y3}' if cfg.tim_y3 else ''}
    s_branch L_yv
    """)
    a(f"""
    L_yv:
    buffer_load_dwordx2 {v(YD,2)}, {v(vYP)}, {WS}, {s(sYo)} offen sc1
    buffer_load_dwordx2 {v(YD+2,2)}, {v(vYP)}, {WS}, {s(sT+2)} offen sc1
    L_yc:
    s_waitcnt vmcnt(0)
    v_mfma_f32_16x16x16_bf16 {v(YR,4)}, {v(SEL,2)}, {v(YD,2)}, 0
    v_mfma_f32_16x16x16_bf16 {v(YR,4)}, {v(SEL,2)}, {v(YD+2,2)}, {v(YR,4)}
    """)
    maxchk(range(YD,YD+4), t+17)
    poll_branch('L_yv', 1, mask=True)
    stamp()
    own=[f'v_pk_fma_f32 {v(X,2)}, {v(BC,2)}, {v(YR,2)}, {v(X,2)} op_sel:[0,0,0] op_sel_hi:[1,0,1]',
         f'v_pk_fma_f32 {v(X+2,2)}, {v(BC,2)}, {v(YR,2)}, {v(X+2,2)} op_sel:[0,1,0] op_sel_hi:[1,1,1]',
         f'v_pk_fma_f32 {v(X+4,2)}, {v(BC,2)}, {v(YR+2,2)}, {v(X+4,2)} op_sel:[0,0,0] op_sel_hi:[1,0,1]',
         f'v_pk_fma_f32 {v(X+6,2)}, {v(BC,2)}, {v(YR+2,2)}, {v(X+6,2)} op_sel:[0,1,0] op_sel_hi:[1,1,1]']
    s1,s2=t+20,t+21
    a(f"""
    s_cmp_eq_u32 {s(sIt)}, 3
    s_cbranch_scc1 L_fin3
    L_pass:
    v_pk_fma_f32 {v(YL,2)}, {v(YR,2)}, {v(KA,2)}, {v(BC+2,2)} op_sel:[0,1,0]
    v_pk_fma_f32 {v(YL+2,2)}, {v(YR+2,2)}, {v(KA,2)}, {v(BC+4,2)} op_sel:[0,1,0]
    v_cvt_pk_f16_f32 {v(YL)}, {v(YL)}, {v(YL+1)}
    v_cvt_pk_f16_f32 {v(YL+1)}, {v(YL+2)}, {v(YL+3)}
    ds_write_b64 {v(vUW)}, {v(YL,2)}
    {own[0]}
    {own[1]}
    {own[2]}
    {own[3]}
    s_cmp_gt_u32 {s(sW)}, 3
    s_waitcnt lgkmcnt(0)
    s_barrier
    s_cbranch_scc1 L_dhb ;!nd
    ds_read_b64_tr_b16 {v(t+8,2)}, {v(vUR)}
    ds_read_b64_tr_b16 {v(t+10,2)}, {v(vUR)} offset:512
    v_mov_b32 {v(t+22)}, 0x3c003c00
    s_waitcnt lgkmcnt(0)
    ;@F
    """)
    XR=t+8; U_=t+12; V_=YC; PP=LNP
    Ur,Ui=U_,U_+4; Vr,Vi=V_,V_+4
    a(f"""
    v_mfma_f32_16x16x32_f16 {v(Ur,4)}, {v(XR,4)}, {v(B1C,4)}, 0
    v_mfma_f32_16x16x32_f16 {v(Ui,4)}, {v(XR,4)}, {v(B1N,4)}, 0
    v_dot2_f32_f16 {v(s1)}, {v(XR)}, {v(t+22)}, 0
    v_dot2_f32_f16 {v(s2)}, {v(XR)}, {v(XR)}, 0
    v_dot2_f32_f16 {v(s1)}, {v(XR+1)}, {v(t+22)}, {v(s1)}
    v_dot2_f32_f16 {v(s2)}, {v(XR+1)}, {v(XR+1)}, {v(s2)}
    v_dot2_f32_f16 {v(s1)}, {v(XR+2)}, {v(t+22)}, {v(s1)}
    v_dot2_f32_f16 {v(s2)}, {v(XR+2)}, {v(XR+2)}, {v(s2)}
    v_dot2_f32_f16 {v(s1)}, {v(XR+3)}, {v(t+22)}, {v(s1)}
    v_dot2_f32_f16 {v(s2)}, {v(XR+3)}, {v(XR+3)}, {v(s2)}
    v_pk_mul_f32 {v(Vi,2)}, {v(Ur,2)}, {v(TWS,2)}
    v_pk_mul_f32 {v(Vi+2,2)}, {v(Ur+2,2)}, {v(TWS+2,2)}
    v_pk_mul_f32 {v(Vr,2)}, {v(Ui,2)}, {v(TWS,2)}
    v_permlane32_swap_b32 {v(s1)}, {v(s2)}
    v_pk_mul_f32 {v(Vr+2,2)}, {v(Ui+2,2)}, {v(TWS+2,2)}
    v_add_f32 {v(s1)}, {v(s1)}, {v(s2)}
    v_pk_fma_f32 {v(Vr,2)}, {v(Ur,2)}, {v(TWC,2)}, {v(Vr,2)}
    v_pk_fma_f32 {v(Vi,2)}, {v(Ui,2)}, {v(TWC,2)}, {v(Vi,2)} neg_lo:[0,0,1] neg_hi:[0,0,1]
    v_add_f32_dpp {v(s1)}, {v(s1)}, {v(s1)} row_ror:8 {DPP}
    v_pk_fma_f32 {v(Vr+2,2)}, {v(Ur+2,2)}, {v(TWC+2,2)}, {v(Vr+2,2)}
    v_pk_fma_f32 {v(Vi+2,2)}, {v(Ui+2,2)}, {v(TWC+2,2)}, {v(Vi+2,2)} neg_lo:[0,0,1] neg_hi:[0,0,1]
    v_add_f32_dpp {v(s1)}, {v(s1)}, {v(s1)} row_ror:4 {DPP}
    v_cvt_pk_f16_f32 {v(PP)}, {v(Vr)}, {v(Vi)}
    v_cvt_pk_f16_f32 {v(PP+1)}, {v(Vr+1)}, {v(Vi+1)}
    v_add_f32_dpp {v(s1)}, {v(s1)}, {v(s1)} row_ror:2 {DPP}
    v_cvt_pk_f16_f32 {v(PP+2)}, {v(Vr+2)}, {v(Vi+2)}
    v_cvt_pk_f16_f32 {v(PP+3)}, {v(Vr+3)}, {v(Vi+3)}
    v_add_f32_dpp {v(s1)}, {v(s1)}, {v(s1)} row_ror:1 {DPP}
    v_mfma_f32_16x16x32_f16 {v(Ur,4)}, {v(A2R,4)}, {v(PP,4)}, 0
    v_mfma_f32_16x16x32_f16 {v(Ui,4)}, {v(A2I,4)}, {v(PP,4)}, 0
    v_add_f32_dpp {v(s1)}, {v(s1)}, {v(s1)} row_bcast:15 row_mask:0xa bank_mask:0xf
    v_mul_f32 {v(s1)}, {s(sK512)}, {v(s1)}
    v_readlane_b32 {s(sT+2)}, {v(s1)}, 63
    v_readlane_b32 {s(sT+1)}, {v(s1)}, 31
    v_add_f32 {v(s2)}, {s(sT+2)}, {v(EK)}
    v_mov_b32 {v(s1)}, {s(sT+1)}
    v_fma_f32 {v(s1)}, -{v(s1)}, {v(s1)}, {v(s2)}
    v_rsq_f32_e64 {v(s1)}, |{v(s1)}|
    v_mul_f32 {v(s1)}, {s(sSg)}, {v(s1)}
    """)
    for k in range(4): a(f'v_pk_mul_f32 {v(U_+2*k,2)}, {v(U_+2*k,2)}, {v(s1,2)} op_sel_hi:[1,0]')
    for r in range(4): a(f'v_cvt_pk_f16_f32 {v(PP+r)}, {v(Ur+r)}, {v(Ui+r)}')
    a(f"""
    ds_write2_b32 {v(vDW)}, {v(PP)}, {v(PP+1)} offset0:0 offset1:32
    ds_write2_b32 {v(vDW)}, {v(PP+2)}, {v(PP+3)} offset0:64 offset1:96
    s_waitcnt lgkmcnt(0)
    L_dhb:
    s_barrier
    ds_read_b128 {v(t+16,4)}, {v(vDR)}
    s_waitcnt lgkmcnt(0)
    v_mfma_f32_16x16x16_f16 {v(E0,4)}, {v(AD,2)}, {v(t+16,2)}, 0
    v_mfma_f32_16x16x16_f16 {v(E1,4)}, {v(AD,2)}, {v(t+18,2)}, 0
    s_nop 4
    s_branch L_apply ;!nd
    """)
    a('L_fin:')
    for rho in (0,1):
        for k in (0,1):
            a(f'v_cvt_pk_bf16_f32 {v(t+2*rho+k)}, {v(X+4*k+rho)}, {v(X+4*k+2+rho)}')
    a(f"""
    v_lshlrev_b32 {v(t+16)}, 1, {v(vQ)}
    v_mov_b32 {v(t+19)}, 0x200000
    s_sub_u32 {s(sT)}, {s(sT+9)}, 1
    v_cmp_eq_u32 vcc, {s(sT+9)}, {v(t+16)}
    v_cmp_eq_u32 {s(sT+2,2)}, {s(sT)}, {v(t+16)}
    v_cndmask_b32 {v(t+17)}, {v(vXoff)}, {v(t+19)}, vcc
    v_cndmask_b32 {v(t+18)}, {v(vXoff)}, {v(t+19)}, {s(sT+2,2)}
    buffer_store_dwordx2 {v(t,2)}, {v(t+17)}, {OS}, {s(sRow0)} offen sc1
    buffer_store_dwordx2 {v(t+2,2)}, {v(t+18)}, {OS}, {s(sRow1)} offen sc1
    v_cndmask_b32 {v(t+24)}, {v(t+19)}, {v(vXoff)}, vcc
    v_cndmask_b32 {v(t+25)}, {v(t+19)}, {v(vXoff)}, {s(sT+2,2)}
    s_or_b32 {s(sT)}, s2, {s(sW)}
    s_cbranch_scc1 L_fin2
    v_mov_b32 {v(t+20)}, {s(sTag)}
    buffer_store_dword {v(t+20)}, off, {WS}, 0 sc1
    L_fin2:
    s_cmp_eq_u32 {s(sT+9)}, 64
    s_cbranch_scc1 L_fin5
    s_mov_b32 {s(sT+10)}, {SLOT+SLOTR}
    s_sleep {cfg.tim_fh}
    """)
    hdrpoll('L_fhdr', 4)
    a(f"""
    s_cmp_lg_u32 {s(sIdx)}, {s(sKey)}
    s_cbranch_scc1 L_fin4
    s_andn2_b32 {s(sIdx)}, {s(sM7FF)}, {s(sIdx)}
    s_mov_b32 {s(sIt)}, 3
    s_add_u32 {s(sYo)}, {s(sYo)}, {YPR}
    s_add_u32 {s(sYh)}, {s(sYh)}, {YHR}
    """)
    owner()
    a('s_branch L_ywait\nL_fin3:')
    a('\n'.join(own))
    for rho in (0,1):
        for k in (0,1):
            a(f'v_cvt_pk_bf16_f32 {v(t+2*rho+k)}, {v(X+4*k+rho)}, {v(X+4*k+2+rho)}')
    a(f"""
    L_fin4:
    buffer_store_dwordx2 {v(t,2)}, {v(t+24)}, {OS}, {s(sRow0)} offen sc1
    buffer_store_dwordx2 {v(t+2,2)}, {v(t+25)}, {OS}, {s(sRow1)} offen sc1
    L_fin5:
    """)
    stamp(); dump_stamps()
    a('s_endpgm')
    a(f"""
    L_base_r:
    s_sub_u32 {s(sCnt)}, {s(sCnt)}, 1
    s_cbranch_scc1 L_end
    s_sleep 2
    buffer_load_dwordx4 {v(BC+2,4)}, {v(t+16)}, {WS}, {s(sT+10)} offen offset:1024 sc1
    s_waitcnt vmcnt(0)
    s_branch L_basew
    """)
    def pub2():
        a(f'''
        v_mov_b32 {v(t+4)}, {s(sTag)}
        v_mov_b32 {v(t+5)}, {s(sXcc)}
        s_add_u32 {s(sT)}, {s(sTabSt)}, {TAB2-TABL}
        buffer_store_dwordx2 {v(t+4,2)}, off, {WS}, {s(sT)} sc1
        ''')
    a(f'''
    L_tabst_slow:
    buffer_store_dwordx2 {v(K,2)}, off, {WS}, {s(sTabSt)} sc1
    s_branch L_tabst_back
    L_tg0_r:
    s_sub_u32 {s(sCnt)}, {s(sCnt)}, 1
    s_cbranch_scc1 L_end
    s_sleep 2
    ''')
    a(f's_mov_b64 exec, 0xff\nbuffer_load_dword {v(t+20)}, {v(t+24)}, {WS}, {s(sT+10)} offen sc1\ns_mov_b64 exec, -1')
    a('s_branch L_tg0w\nL_tab2:')
    pub2()
    a(f'''
    s_add_u32 {s(sT+1)}, {s(sTabLd)}, {TAB2-TABL}
    L_tab2p:
    buffer_load_dwordx2 {v(TB,2)}, {v(vL8)}, {WS}, {s(sTabLd)} offen sc1
    buffer_load_dwordx2 {v(t+6,2)}, {v(vL8)}, {WS}, {s(sT+1)} offen sc1
    s_waitcnt vmcnt(0)
    v_cmp_eq_u32 vcc, {s(sTag)}, {v(TB)}
    v_cndmask_b32 {v(TB)}, {v(t+6)}, {v(TB)}, vcc
    v_cndmask_b32 {v(TB+1)}, {v(t+7)}, {v(TB+1)}, vcc
    v_cmp_ne_u32 vcc, {s(sTag)}, {v(TB)}
    ''')
    poll_branch('L_tab2p', 4)
    a(f'''
    s_branch L_tabok
    L_slow:
    s_cmp_lg_u32 {s(sIt)}, 0
    s_cbranch_scc1 L_slow1
    ''')
    pub2()
    a('L_slow1:')
    lstores('sc1')
    a(f'''
    s_waitcnt vmcnt(0)
    s_barrier
    s_add_u32 {s(sT)}, {s(sTabSt)}, {SLOWF-TABL}
    s_add_u32 {s(sT+1)}, {s(sTabLd)}, {SLOWF-TABL}
    v_mov_b32 {v(t+4)}, {s(sTag)}
    s_cmp_lg_u32 {s(sW)}, 0
    s_cbranch_scc1 L_slowp
    buffer_store_dword {v(t+4)}, off, {WS}, {s(sT)} sc1
    L_slowp:
    buffer_load_dword {v(t+5)}, {v(vL8)}, {WS}, {s(sT+1)} offen sc1
    s_waitcnt vmcnt(0)
    v_cmp_ne_u32 vcc, {s(sTag)}, {v(t+5)}
    ''')
    poll_branch('L_slowp', 2)
    a('s_branch L_slowback')

def hint_store(vreg, soff, lbl):
    a(f'''
    s_mov_b64 exec, 1
    s_cmp_eq_u32 {s(sFast)}, 0
    s_cbranch_scc1 {lbl}_s
    buffer_store_dword {v(vreg)}, off, {WS}, {s(soff)}
    s_branch {lbl}_d
    {lbl}_s:
    buffer_store_dword {v(vreg)}, off, {WS}, {s(soff)} sc1
    {lbl}_d:
    s_mov_b64 exec, -1
    ''')

def ffn():
    WA=4; WD=20; t=40
    vXL=24; vXW=25; vXR=26; vPS=27; vPL=28; vHW=29; vHR=30; vDP=31; vTag=32; vSig=34; vFl=35
    sI=sJ; sRnd=sIt; sPo=sLst; sPs=sLld
    F_W=0; TS=4096+64; F_X=0x4400; F_KEY=0x4D00; F_H=0x4E00; F_D=0x5200; F_WD=0x5400
    a(f"""
    L_ffn:
    s_and_b32 {s(sI)}, {s(sJ)}, 31
    s_min_u32 {s(sT+2)}, {s(sI)}, 27
    s_and_b32 {s(sT)}, {s(sT+2)}, 3
    s_lshl_b32 {s(sT+8)}, {s(sT)}, 8              ; 256*ks
    s_mul_i32 {s(sT+9)}, {s(sT)}, {28*64}
    s_mul_i32 {s(sT)}, {s(sT)}, {128*3584}
    s_mul_i32 {s(sT+1)}, {s(sX)}, 448
    s_add_u32 {s(sT)}, {s(sT)}, {s(sT+1)}
    s_lshr_b32 {s(sT+2)}, {s(sT+2)}, 2
    s_lshl_b32 {s(sT+3)}, {s(sT+2)}, 6
    s_add_u32 {s(sT)}, {s(sT)}, {s(sT+3)}
    v_lshrrev_b32 {v(t+3)}, 2, v0
    v_mul_u32_u24 {v(t)}, 3584, {v(t+3)}
    v_and_b32 {v(t+4)}, 3, v0
    v_lshl_add_u32 {v(t)}, {v(t+4)}, 4, {v(t)}
    v_add_u32 {v(t)}, {s(sT)}, {v(t)}
    s_mul_i32 {s(sT)}, {s(sX)}, {224*1024}
    s_lshl_b32 {s(sT+1)}, {s(sI)}, 5
    s_add_u32 {s(sT)}, {s(sT)}, {s(sT+1)}
    v_lshrrev_b32 {v(t+1)}, 1, v0
    v_min_u32 {v(t+1)}, 223, {v(t+1)}
    v_lshlrev_b32 {v(t+1)}, 10, {v(t+1)}
    v_and_b32 {v(t+2)}, 1, v0
    v_lshl_add_u32 {v(t+1)}, {v(t+2)}, 4, {v(t+1)}
    v_add_u32 {v(t+1)}, {s(sT)}, {v(t+1)}
    s_add_u32 {s(sT+10)}, {s(sTabLd)}, {FTAB-TABL}
    s_waitcnt lgkmcnt(0)
    {f'v_lshlrev_b32 {v(T+25)}, {cfg.tlb}, v0' if cfg.tlb else ''}
    {f'buffer_load_dword {v(T+21)}, {v(T+25)}, {WS}, 0 offen sc1' if cfg.tlb else ''}
    {f'buffer_load_dword {v(T+21)}, {v(T+25)}, {OS}, 0 offen sc1' if cfg.tlb else ''}
    {f's_sleep {cfg.fdelay}' if cfg.fdelay else ''}
    {f'global_load_dwordx4 {v(T+8,4)}, {v(t)}, s[18:19]' if cfg.wdpos<2 else f'v_mov_b32 {v(T+24)}, {v(t)}'}
    {f'global_load_dwordx4 {v(T+12,4)}, {v(t)}, s[20:21]' if cfg.wdpos<2 else ''}
    {f'global_load_dwordx4 {v(T+16,4)}, {v(t+1)}, s[22:23]' if cfg.wdpos==0 else f'v_mov_b32 {v(T+23)}, {v(t+1)}'}
    buffer_load_dword {v(T+20)}, off, {WS}, 0 sc1
    buffer_load_dword {v(T+21)}, {v(vL8)}, {WS}, {s(sT+10)} offen sc1
    v_mul_u32_u24 {v(T+22)}, {TS}, {v(t+4)}
    v_lshl_add_u32 {v(T+22)}, {v(t+3)}, 5, {v(T+22)}
    v_lshlrev_b32 {v(t+5)}, 4, {v(vN)}
    s_and_b32 {s(sT)}, {s(sW)}, 1
    s_lshl_b32 {s(sT)}, {s(sT)}, 2
    v_add_u32 {v(t+6)}, {s(sT)}, {v(vQ)}
    v_lshl_add_u32 {v(vXL)}, {v(t+6)}, 12, {v(t+5)}
    v_add_u32 {v(vXL)}, {s(sT+8)}, {v(vXL)}
    v_mul_u32_u24 {v(vXW)}, 272, {v(t+6)}
    v_add_u32 {v(vXW)}, {v(vXW)}, {v(t+5)}
    v_and_b32 {v(t+6)}, 7, {v(vLane)}
    v_mul_u32_u24 {v(vXR)}, 272, {v(t+6)}
    v_lshl_add_u32 {v(vXR)}, {v(vQ)}, 4, {v(vXR)}
    s_cmp_lg_u32 {s(sW)}, 6
    s_cbranch_scc1 L_fa1
    v_lshlrev_b32 {v(vXL)}, 12, {v(t+6)}
    L_fa1:
    s_lshl2_add_u32 {s(sT)}, {s(sT+2)}, {s(sW)}
    s_lshl_b32 {s(sT)}, {s(sT)}, 6
    s_add_u32 {s(sT)}, {s(sT)}, {s(sT+9)}
    v_lshl_add_u32 {v(vPS)}, {v(vN)}, 2, {s(sT)}
    s_lshl_b32 {s(sT)}, {s(sW)}, 8
    v_mul_u32_u24 {v(vPL)}, 1792, {v(vQ)}
    v_add3_u32 {v(vPL)}, {v(vPL)}, {v(t+5)}, {s(sT)}
    s_lshl_b32 {s(sT)}, {s(sW)}, 7
    s_add_u32 {s(sT)}, {s(sT)}, {F_H}
    v_lshl_add_u32 {v(vHR)}, {v(vQ)}, 4, {s(sT)}
    v_and_b32 {v(t+6)}, 12, {v(vN)}
    v_lshl_add_u32 {v(vHW)}, {v(t+6)}, 2, {s(sT)}
    v_and_b32 {v(t+6)}, 1, {v(vN)}
    v_lshl_add_u32 {v(vHW)}, {v(t+6)}, 3, {v(vHW)}
    v_and_b32 {v(t+6)}, 2, {v(vN)}
    v_lshl_add_u32 {v(vHW)}, {v(t+6)}, 5, {v(vHW)}
    v_and_b32 {v(t+6)}, 2, {v(vQ)}
    v_add_u32 {v(vHW)}, {v(vHW)}, {v(t+6)}
    v_and_b32 {v(t+6)}, 1, {v(vQ)}
    v_lshl_add_u32 {v(vHW)}, {v(t+6)}, 2, {v(vHW)}
    s_lshl_b32 {s(sT)}, {s(sW)}, 2
    s_add_u32 {s(sT)}, {s(sT)}, {F_D}
    v_lshl_add_u32 {v(vDP)}, {v(vN)}, 5, {s(sT)}
    v_mov_b32 {v(vFl)}, {F_KEY}
    v_mov_b32 {v(vTag)}, 0
    s_mov_b32 {s(sFast)}, 0
    s_mov_b32 {s(sRnd)}, 2
    s_mov_b32 {s(sPo)}, {WSSZ}
    s_mov_b32 {s(sYo)}, {WSSZ}
    s_mov_b32 {s(sYh)}, {WSSZ}
    {'s_branch L_fb2' if cfg.dry else ''}
    L_finit:
    s_mov_b32 {s(sRnd)}, 0
    s_mov_b32 {s(sSlot)}, {SLOT}
    s_lshl_b32 {s(sPo)}, {s(sX)}, 13
    s_add_u32 {s(sPo)}, {s(sPo)}, {PART}
    s_lshl_b32 {s(sYo)}, {s(sX)}, 10
    s_lshl_b32 {s(sT)}, {s(sI)}, 5
    s_add_u32 {s(sYo)}, {s(sYo)}, {s(sT)}
    s_add_u32 {s(sYo)}, {s(sYo)}, {YP}
    s_lshl_b32 {s(sYh)}, {s(sX)}, 7
    s_lshl2_add_u32 {s(sYh)}, {s(sI)}, {s(sYh)}
    s_add_u32 {s(sYh)}, {s(sYh)}, {YHINT}
    s_lshl_b32 {s(sT)}, {s(sW)}, 10
    v_lshl_add_u32 {v(t)}, {v(vLane)}, 4, {s(sT)}
    v_lshl_add_u32 {v(t+1)}, {v(vQ)}, 8, {s(sT)}
    v_lshl_add_u32 {v(t+1)}, {v(vN)}, 3, {v(t+1)}
    s_and_b32 {s(sT)}, {s(sW)}, 3
    s_mul_i32 {s(sT)}, {s(sT)}, {TS}
    v_lshl_add_u32 {v(t+2)}, {v(vQ)}, 8, {s(sT)}
    v_lshl_add_u32 {v(t+2)}, {v(vN)}, 3, {v(t+2)}
    v_mov_b32 {v(vTag+1)}, {s(sXcc)}
    s_lshl3_add_u32 {s(sT+1)}, {s(sI)}, {s(sT+10)}
    s_waitcnt vmcnt(0)
    v_add_u32 {v(vTag)}, 1, {v(T+20)}
    ds_write_b128 {v(T+22)}, {v(T+8,4)}
    ds_write_b128 {v(T+22)}, {v(T+12,4)} offset:16
    {f'ds_write_b128 {v(t)}, {v(T+16,4)} offset:{F_WD}' if cfg.wdpos==0 else ''}
    v_readfirstlane_b32 {s(sTag)}, {v(vTag)}
    s_cmp_lg_u32 {s(sW)}, 0
    s_cbranch_scc1 L_fi1
    s_mov_b64 exec, 1
    buffer_store_dwordx2 {v(vTag,2)}, off, {WS}, {s(sT+1)}
    s_mov_b64 exec, -1
    L_fi1:
    s_waitcnt lgkmcnt(0)
    s_barrier
    """)
    if cfg.stamps: a(f's_mov_b32 {s(sStampI)}, 0')
    stamp()
    for k in range(4):
        a(f'ds_read_b64_tr_b16 {v(WA+4*k,2)}, {v(t+2)} offset:{1024*k}')
        a(f'ds_read_b64_tr_b16 {v(WA+4*k+2,2)}, {v(t+2)} offset:{1024*k+128}')
    a(f"""
    {f'ds_read_b64_tr_b16 {v(WD,2)}, {v(t+1)} offset:{F_WD}' if cfg.wdpos==0 else ''}
    {f'ds_read_b64_tr_b16 {v(WD+2,2)}, {v(t+1)} offset:{F_WD+128}' if cfg.wdpos==0 else ''}
    s_cmp_lg_u32 {s(sW)}, 0
    s_cbranch_scc1 L_fi3
    s_movk_i32 {s(sTry)}, 80
    L_fl:
    buffer_load_dwordx2 {v(t+4,2)}, {v(vL8)}, {WS}, {s(sTabLd)} offen sc1
    buffer_load_dwordx2 {v(t+6,2)}, {v(vL8)}, {WS}, {s(sT+10)} offen sc1
    s_waitcnt vmcnt(0)
    v_cmp_ne_u32 vcc, {s(sTag)}, {v(t+4)}
    v_cmp_ne_u32 {s(sT,2)}, {s(sTag)}, {v(t+6)}
    s_or_b64 vcc, vcc, {s(sT,2)}
    """)
    poll_branch('L_fl', 4, giveup='L_fslowtab', skip=True)
    a(f"""
    v_cmp_ne_u32 vcc, {s(sXcc)}, {v(t+5)}
    v_cmp_ne_u32 {s(sT,2)}, {s(sXcc)}, {v(t+7)}
    s_or_b64 vcc, vcc, {s(sT,2)}
    s_cbranch_vccnz L_fslowtab
    s_mov_b32 {s(sFast)}, 1
    v_and_b32 {v(t+4)}, 1, {v(vQ)}
    v_lshlrev_b32 {v(t+4)}, 16, {v(t+4)}
    v_lshl_add_u32 {v(t+4)}, {v(vN)}, 4, {v(t+4)}
    s_lshl_b32 {s(sT)}, {s(sI)}, 8
    s_add_u32 {s(sT)}, {s(sT)}, {s(sPo)}
    buffer_load_dword {v(t+5)}, {v(t+4)}, {WS}, {s(sT)} offen sc1
    L_fi2:
    v_mov_b32 {v(t+6)}, {s(sFast)}
    ds_write_b32 {v(vFl)}, {v(t+6)} offset:4
    L_fi3:
    s_waitcnt vmcnt(0) lgkmcnt(0)
    s_barrier
    ds_read_b32 {v(t+6)}, {v(vFl)} offset:4
    s_waitcnt lgkmcnt(0)
    v_readfirstlane_b32 {s(sFast)}, {v(t+6)}
    """)
    if cfg.wdpos==2:
        a(f"""
        {f's_sleep {cfg.gdelay}' if cfg.gdelay else ''}
        global_load_dwordx4 {v(T+8,4)}, {v(T+24)}, s[18:19]
        global_load_dwordx4 {v(T+12,4)}, {v(T+24)}, s[20:21]
        global_load_dwordx4 {v(T+16,4)}, {v(T+23)}, s[22:23]
        s_waitcnt vmcnt(0)
        ds_write_b128 {v(T+22)}, {v(T+8,4)}
        ds_write_b128 {v(T+22)}, {v(T+12,4)} offset:16
        ds_write_b128 {v(t)}, {v(T+16,4)} offset:{F_WD}
        s_waitcnt lgkmcnt(0)
        s_barrier
        """)
        for k in range(4):
            a(f'ds_read_b64_tr_b16 {v(WA+4*k,2)}, {v(t+2)} offset:{1024*k}')
            a(f'ds_read_b64_tr_b16 {v(WA+4*k+2,2)}, {v(t+2)} offset:{1024*k+128}')
        a(f"""
        ds_read_b64_tr_b16 {v(WD,2)}, {v(t+1)} offset:{F_WD}
        ds_read_b64_tr_b16 {v(WD+2,2)}, {v(t+1)} offset:{F_WD+128}
        s_waitcnt lgkmcnt(0)
        """)
    if cfg.wdpos==1: a(f"""
    {f's_sleep {cfg.gdelay}' if cfg.gdelay else ''}
    global_load_dwordx4 {v(T+16,4)}, {v(T+23)}, s[22:23]
    s_waitcnt vmcnt(0)
    ds_write_b128 {v(t)}, {v(T+16,4)} offset:{F_WD}
    ds_read_b64_tr_b16 {v(WD,2)}, {v(t+1)} offset:{F_WD}
    ds_read_b64_tr_b16 {v(WD+2,2)}, {v(t+1)} offset:{F_WD+128}
    s_waitcnt lgkmcnt(0)
    """)
    a(f"""
    L_frnd:
    s_add_u32 {s(sTabLd)}, {s(sTabLd)}, {ARGR}
    s_cmp_lg_u32 {s(sW)}, 0
    s_cbranch_scc1 L_fb1
    s_cmp_eq_u32 {s(sFast)}, 0
    s_cbranch_scc1 L_fb1
    L_ftrig:
    buffer_load_dword {v(t)}, {v(vL8)}, {WS}, {s(sTabLd)} offen sc1
    s_waitcnt vmcnt(0)
    v_cmp_ne_u32 vcc, {s(sTag)}, {v(t)}
    """)
    poll_branch('L_ftrig', cfg.slp_f)
    stamp()
    a(f"""
    s_sleep {cfg.tim_arg}
    L_fb1:
    s_sub_u32 {s(sT)}, {s(sW)}, 4
    s_cmp_lt_u32 {s(sT)}, 2
    s_barrier
    s_cbranch_scc1 L_fx
    s_cmp_lg_u32 {s(sW)}, 6
    s_cbranch_scc1 L_fb2
    s_mov_b64 exec, 0xff
    L_fhd:
    buffer_load_dword {v(t)}, {v(vXL)}, {WS}, {s(sSlot)} offen offset:3072 sc1
    s_waitcnt vmcnt(0)
    v_cmp_eq_u32 vcc, -1, {v(t)}
    """)
    poll_branch('L_fhd', 2, skip=True)
    a(f"""
    v_max_u32_dpp {v(t)}, {v(t)}, {v(t)} row_half_mirror {DPP}
    v_max_u32_dpp {v(t)}, {v(t)}, {v(t)} quad_perm:[1,0,3,2] {DPP}
    v_max_u32_dpp {v(t)}, {v(t)}, {v(t)} quad_perm:[2,3,0,1] {DPP}
    ds_write_b32 {v(vFl)}, {v(t)}
    s_mov_b64 exec, -1
    s_branch L_fb2
    L_fx:
    buffer_load_dwordx4 {v(t,4)}, {v(vXL)}, {WS}, {s(sSlot)} offen sc1
    s_waitcnt vmcnt(0)
    ds_write_b128 {v(vXW)}, {v(t,4)} offset:{F_X}
    """)
    maxchk(range(t,t+4), t+4)
    poll_branch('L_fx', 2, mask=True)
    Dd=t+16
    a(f"""
    L_fb2:
    s_cmp_gt_u32 {s(sW)}, 3
    s_waitcnt lgkmcnt(0)
    s_barrier
    s_cbranch_scc1 L_fnoa
    ds_read_b32 {v(t+20)}, {v(vFl)}
    """)
    for k in range(4): a(f'ds_read_b128 {v(t+4*k,4)}, {v(vXR)} offset:{F_X+64*k}')
    stamp()
    a(f"""
    s_cmp_lt_u32 {s(sI)}, 28
    s_cselect_b32 {s(sPs)}, {s(sPo)}, {WSSZ}
    s_waitcnt lgkmcnt(3)
    v_mfma_f32_16x16x32_bf16 {v(Dd,4)}, {v(t,4)}, {v(WA,4)}, 0
    v_readfirstlane_b32 {s(sKey)}, {v(t+20)}
    s_waitcnt lgkmcnt(2)
    v_mfma_f32_16x16x32_bf16 {v(Dd,4)}, {v(t+4,4)}, {v(WA+4,4)}, {v(Dd,4)}
    s_bitcmp0_b32 {s(sKey)}, 0
    s_cselect_b64 vcc, -1, 0
    s_waitcnt lgkmcnt(1)
    v_mfma_f32_16x16x32_bf16 {v(Dd,4)}, {v(t+8,4)}, {v(WA+8,4)}, {v(Dd,4)}
    s_bitcmp0_b32 {s(sKey)}, 1
    s_cselect_b64 {s(sT+2,2)}, -1, 0
    s_waitcnt lgkmcnt(0)
    v_mfma_f32_16x16x32_bf16 {v(Dd,4)}, {v(t+12,4)}, {v(WA+12,4)}, {v(Dd,4)}
    s_andn2_b32 {s(sT)}, 4, {s(sKey)}
    s_lshl_b32 {s(sT)}, {s(sT)}, 2
    s_bfm_b64 exec, 16, {s(sT)}
    s_cmp_eq_u32 {s(sFast)}, 0
    v_cndmask_b32 {v(Dd)}, {v(Dd)}, {v(Dd+1)}, vcc
    v_cndmask_b32 {v(Dd+2)}, {v(Dd+2)}, {v(Dd+3)}, vcc
    v_cndmask_b32 {v(Dd)}, {v(Dd)}, {v(Dd+2)}, {s(sT+2,2)}
    s_cbranch_scc1 L_fps_s ;!nd
    buffer_store_dword {v(Dd)}, {v(vPS)}, {WS}, {s(sPs)} offen
    L_fps_d:
    s_mov_b64 exec, -1
    s_cmp_eq_u32 {s(sRnd)}, 2
    s_cbranch_scc1 L_fpok
    s_waitcnt vmcnt(0)
    s_branch L_fp
    L_fps_s:
    buffer_store_dword {v(Dd)}, {v(vPS)}, {WS}, {s(sPs)} offen sc1
    s_branch L_fps_d
    L_fnoa:
    s_cmp_eq_u32 {s(sW)}, 7
    s_cbranch_scc1 L_f7
    s_cmp_eq_u32 {s(sRnd)}, 2
    s_cbranch_scc1 L_fpok
    s_sleep {cfg.tim_p}
    s_branch L_fp
    L_fp:
    buffer_load_dwordx4 {v(t,4)}, {v(vPL)}, {WS}, {s(sPo)} offen sc1
    s_waitcnt vmcnt(0)
    """)
    maxchk(range(t,t+4), t+4)
    poll_branch('L_fp', cfg.slp_p, mask=True)
    stamp()
    a(f"""
    L_fpok:
    v_permlane32_swap_b32 {v(t)}, {v(t+1)}
    v_permlane32_swap_b32 {v(t+2)}, {v(t+3)}
    v_add_f32 {v(t)}, {v(t)}, {v(t+1)}
    v_add_f32 {v(t+2)}, {v(t+2)}, {v(t+3)}
    v_permlane16_swap_b32 {v(t)}, {v(t+2)}
    v_add_f32 {v(t)}, {v(t)}, {v(t+2)}
    v_mul_f32 {v(t+1)}, 0xbfb8aa3b, {v(t)}
    v_exp_f32 {v(t+1)}, {v(t+1)}
    v_mul_f32_dpp {v(t+2)}, {v(t)}, {v(t)} quad_perm:[2,3,0,1] {DPP}
    v_add_f32 {v(t+1)}, 1.0, {v(t+1)}
    v_rcp_f32 {v(t+1)}, {v(t+1)}
    v_mul_f32 {v(t+1)}, {v(t+1)}, {v(t+2)}
    v_cvt_pk_bf16_f32 {v(t+1)}, {v(t+1)}, {v(t+1)}
    ds_write_b16 {v(vHW)}, {v(t+1)}
    ds_read_b128 {v(t+4,4)}, {v(vHR)}
    """)
    if cfg.eh:
        a(f's_cmp_lg_u32 {s(sW)}, 5\ns_cbranch_scc1 L_fyh_d')
        hint_store(vTag, sYh, 'L_fyh')
    a(f"""
    s_waitcnt lgkmcnt(0)
    v_mfma_f32_16x16x32_bf16 {v(t+8,4)}, {v(t+4,4)}, {v(WD,4)}, 0
    s_mov_b64 exec, 0xffff
    ds_write_b32 {v(vDP)}, {v(t+8)}
    s_mov_b64 exec, -1
    s_waitcnt lgkmcnt(0)
    s_barrier
    L_fnext:
    """)
    stamp()
    a(f"""
    s_cmp_eq_u32 {s(sRnd)}, 1
    s_cbranch_scc1 L_fend
    s_cmp_eq_u32 {s(sRnd)}, 2
    s_cbranch_scc1 L_finit
    """)
    if cfg.wb==1: a(f"""
    s_cmp_lg_u32 {s(sI)}, 28
    s_cbranch_scc1 L_nwb
    s_cmp_lg_u32 {s(sW)}, 3
    s_cbranch_scc1 L_nwb
    s_sleep {cfg.wbd}
    buffer_wbl2 sc1
    L_nwb:
    """)
    a(f"""
    s_mov_b32 {s(sRnd)}, 1
    s_add_u32 {s(sSlot)}, {s(sSlot)}, {SLOTR}
    s_add_u32 {s(sPo)}, {s(sPo)}, {PARTR}
    s_add_u32 {s(sYo)}, {s(sYo)}, {YPR}
    s_add_u32 {s(sYh)}, {s(sYh)}, {YHR}
    s_branch L_frnd
    L_f7:
    ds_read_b32 {v(t+20)}, {v(vFl)}
    v_mov_b32 {v(vSig)}, 0xbfb8aa3b
    v_add_u32 {v(t+8)}, -28, {v(vDP)}
    v_lshlrev_b32 {v(t+9)}, 1, {v(vN)}
    s_waitcnt lgkmcnt(0)
    v_readfirstlane_b32 {s(sKey)}, {v(t+20)}
    s_ashr_i32 {s(sT)}, {s(sKey)}, 31
    s_orn2_b32 {s(sT)}, 0x80000000, {s(sT)}
    s_xor_b32 {s(sT)}, {s(sT)}, {s(sKey)}
    v_mul_f32 {v(vSig)}, {s(sT)}, {v(vSig)}
    v_exp_f32 {v(vSig)}, {v(vSig)}
    v_add_f32 {v(vSig)}, 1.0, {v(vSig)}
    v_rcp_f32 {v(vSig)}, {v(vSig)}
    s_barrier
    ds_read_b128 {v(t,4)}, {v(t+8)}
    ds_read_b96 {v(t+4,3)}, {v(t+8)} offset:16
    s_waitcnt lgkmcnt(1)
    v_pk_add_f32 {v(t,2)}, {v(t,2)}, {v(t+2,2)}
    v_add_f32 {v(t)}, {v(t)}, {v(t+1)}
    s_waitcnt lgkmcnt(0)
    v_add_f32 {v(t+4)}, {v(t+4)}, {v(t+5)}
    v_add_f32 {v(t)}, {v(t)}, {v(t+6)}
    v_add_f32 {v(t)}, {v(t)}, {v(t+4)}
    v_mul_f32 {v(t)}, {v(t)}, {v(vSig)}
    v_mov_b32_dpp {v(t+1)}, {v(t)} quad_perm:[1,1,3,3] {DPP}
    s_mov_b64 exec, 0x5555
    v_cvt_pk_bf16_f32 {v(t)}, {v(t)}, {v(t+1)}
    buffer_store_dword {v(t)}, {v(t+9)}, {WS}, {s(sYo)} offen sc1
    """)
    if cfg.eh: a('s_mov_b64 exec, -1')
    else: hint_store(vTag, sYh, 'L_fyh')
    a(f"""
    s_branch L_fnext
    L_fslowtab:
    v_and_b32 {v(t+16)}, 7, {v(vLane)}
    v_lshlrev_b32 {v(t+16)}, 7, {v(t+16)}
    s_mov_b32 {s(sT+10)}, {TABG}
    L_ftab2:
    buffer_load_dword {v(t+4)}, {v(t+16)}, {WS}, {s(sT+10)} offen sc1
    s_waitcnt vmcnt(0)
    v_cmp_ne_u32 vcc, {s(sTag)}, {v(t+4)}
    """)
    poll_branch('L_ftab2', 8)
    a('s_branch L_fi2\nL_fend:')
    dump_stamps()
    a('s_endpgm')

def build():
    hdr=open('ref.txt').read().split('; @launch')[0]
    a.raw(hdr+f'; @launch grid=({NWG},1,1) block=(512,1,1) lds={LDS_TOTAL}')
    a.raw(f'''; generated by gen/gen.py (hand-written generator): persistent FFT-structured FNet + MoD kernel
.amdgcn_target "amdgcn-amd-amdhsa--gfx950"
.text
.globl {NAME}_kernel
.p2align 8
.type {NAME}_kernel,@function
{NAME}_kernel:''')
    if cfg.st0: a(f's_memrealtime s[88:89]\ns_waitcnt lgkmcnt(0)')
    a(f'''
    s_load_dwordx2 s[12:13], s[0:1], 0
    s_load_dwordx2 s[8:9], s[0:1], 96
    s_load_dwordx8 s[16:23], s[0:1], 48
    v_and_b32 {v(vN)}, 15, v0
    v_bfe_u32 {v(vQ)}, v0, 4, 2
    v_lshrrev_b32 v2, 6, v0
    v_lshlrev_b32 {v(vUW)}, 7, v2
    v_lshl_add_u32 {v(vUW)}, {v(vN)}, 3, {v(vUW)}                ; 128w+8n
    v_lshl_add_u32 {v(vXoff)}, {v(vQ)}, 19, {v(vUW)}
    s_lshl_b32 {s(sRow0)}, s2, 10
    s_add_u32 {s(sRow1)}, {s(sRow0)}, 0x40000
    s_mov_b32 s14, 0x200000
    s_mov_b32 s15, 0x20000
    v_readfirstlane_b32 {s(sW)}, v2
    ''')
    if cfg.codepf: a(f'''
    s_getpc_b64 {s(sT+6,2)}
    L_pc:
    v_lshlrev_b32 v3, 5, v0
    v_min_u32 v3, L_end-L_pc, v3
    {f'global_load_dword {v(vTG)}, v3, {s(sT+6,2)}' if cfg.codepf==1 else ''}
    ''')
    a(f'''
    s_cmp_ge_u32 s2, 256
    s_cbranch_scc1 L_nox ;!nd
    s_waitcnt lgkmcnt(0)
    buffer_load_dwordx2 {v(BC,2)}, {v(vXoff)}, {XS}, {s(sRow0)} offen
    buffer_load_dwordx2 {v(BC+2,2)}, {v(vXoff)}, {XS}, {s(sRow1)} offen
    L_nox:
    {f'global_load_dword {v(vTG)}, v3, {s(sT+6,2)}' if cfg.codepf==2 else ''}
    s_cmp_ge_u32 s2, {NWG}
    s_cbranch_scc1 L_end
    {'s_waitcnt lgkmcnt(0)' if cfg.wsoff else ''}
    {f's_add_u32 s8, s8, {cfg.wsoff<<20}' if cfg.wsoff else ''}
    {'s_addc_u32 s9, s9, 0' if cfg.wsoff else ''}
    s_load_dwordx2 s[28:29], s[0:1], 80
    v_and_b32 {v(vLane)}, 63, v0
    s_mov_b32 s10, {WSSZ}
    s_mov_b32 s11, 0x20000
    s_mov_b32 s30, 0x200000
    s_mov_b32 s31, 0x20000
    s_and_b32 {s(sX)}, s2, 7
    s_lshr_b32 {s(sJ)}, s2, 3
    v_mov_b32 {v(SENT)}, -1
    v_mov_b32 {v(SENT+1)}, -1
    v_mov_b32 {v(SENT+2)}, -1
    v_mov_b32 {v(SENT+3)}, -1
    v_lshlrev_b32 {v(vL8)}, 3, v0
    v_and_b32 {v(vL8)}, 0xf8, {v(vL8)}
    s_mov_b32 {s(sCnt)}, 200000
    s_mov_b32 {s(sM7FF)}, 0x7ff
    s_lshl_b32 {s(sTabLd)}, {s(sX)}, 8
    s_add_u32 {s(sTabLd)}, {s(sTabLd)}, {TABL}
    s_getreg_b32 {s(sXcc)}, hwreg(HW_REG_XCC_ID, 0, 4)
    ''')
    if cfg.force_slow: a(f's_mov_b32 {s(sXcc)}, {s(sJ)}')
    if cfg.stamps:
        a(f's_mov_b32 {s(sStampI)}, 0\nv_mov_b32 {v(vSTMP)}, 0')
        a(f's_memrealtime {s(sTS,2)}\ns_memtime {s(sTS+2,2)}\ns_waitcnt lgkmcnt(0)\nv_writelane_b32 {v(vSTMP)}, {s(sTS)}, 63\nv_writelane_b32 {v(vSTMP)}, {s(sTS+2)}, 62')
        if cfg.st0: a(f'v_writelane_b32 {v(vSTMP)}, {s(sTS)}, 58\nv_writelane_b32 {v(vSTMP)}, s88, 63\ns_memrealtime {s(sTS,2)}\ns_waitcnt lgkmcnt(0)\nv_writelane_b32 {v(vSTMP)}, {s(sTS)}, 59')
    a('''s_cmp_ge_u32 s2, 256
    s_cbranch_scc1 L_ffn''')
    if cfg.prio: a(f's_setprio 2\ns_cmp_gt_u32 {s(sW)}, 1\ns_cbranch_scc1 L_np\ns_setprio 3\nL_np:')
    main_prologue()
    main_loop()
    ffn()
    a('L_end:\ns_endpgm')
    a.raw(f'''.section .rodata,"a"
.p2align 6
.amdhsa_kernel {NAME}_kernel
  .amdhsa_next_free_vgpr 128
  .amdhsa_next_free_sgpr 96
  .amdhsa_accum_offset 128
  .amdhsa_group_segment_fixed_size 0
  .amdhsa_kernarg_size 104
  .amdhsa_user_sgpr_count 2
  .amdhsa_user_sgpr_kernarg_segment_ptr 1
  .amdhsa_system_sgpr_workgroup_id_x 1
.end_amdhsa_kernel''')
    return a.text()
if __name__=='__main__':
    out=sys.argv[1]
    for kv in sys.argv[2:]:
        k,val=kv.split('='); assert hasattr(cfg,k); setattr(cfg,k,int(val))
    open(out,'w').write(build())
    print('instrs',a.count,'nops',a.nops)
```

```python
import sys, struct
from asmlib import Asm
NAME='interleave_layers__spectral_fnet__moe_arch_mod__prompt'
def fbits(x): return '0x%08x' % struct.unpack('<I', struct.pack('<f', x))[0]

class Cfg:
    stamps=0
    tim_arg=16
    tim_y=0
    tim_h=0
    slp_g=2
    slp_l=1
    force_slow=0
    prio=1
    codepf=1
    exp=0
    gre=0
    cfl=0
    tlb=0
    wsoff=0
    st0=0
    cal=-1
    calwg=0
    dbgout=0
    dry=1
    wb=0
    fdelay=20
    gdelay=18
    osc=1
    odel=0
    pfm=7
    clr2=0
    nb0=0
    ehint=0
    post=0
    slp_t=0
    aft=0
    g2pos=0
    tim_fh=12
    wdpos=0
    slp_p=1
    tim_p=8
    hold=1
    tim_gy=12
    eh=1
    own=1
    tim_y3=8
    beh=1
    gbb=0
    slp_f=2
    early=4
    tim_a0=0
    wbd=12
    gbdelay=4
    late=1
    split=0
    tch=1
cfg=Cfg()

TABG=0x1000; TABGR=0x6000
TABL=0x2000; ARGR=0x800
TAB2=0x3800
SLOWF=0x4000
YHINT=0x5000; YHR=0x400
FTAB=0x6000
CLR0=0x8000
YP=0x8000; YPR=0x2000
PART=0x20000; PARTR=0x10000
SLOT=0x10000; SLOTR=0x8000
LBASE=0x40000; PS=8448; LX=32*PS
GBASE=0x260000; GS=262144+768; GR=0x210000
STAMP=0x700000
WSSZ=0x800000
NWG=512
NST=(13,9,7)
L_STAT=0; L_U=0x400; L_YI=0x2400; YIS=320; L_YT=0x4C00; L_DH=0x6E00; L_FLAG=0x7E00; LDS_TOTAL=0x7E80
L_CX=0x2400
def v(a,n=1): return f'v{a}' if n==1 else f'v[{a}:{a+n-1}]'
def s(a,n=1): return f's{a}' if n==1 else f's[{a}:{a+n-1}]'

WS='s[8:11]'; XS='s[12:15]'; OS='s[28:31]'
sW=3; sX=26; sJ=27; sIt=32; sTag=33; sFast=34; sKey=35; sMir=36; sDsc=38
sLst=39; sLld=40; sPh=41; sTabG=42; sG0=43; sG4=44; sTabSt=45; sTabLd=46; sSlot=47; sRow0=48; sRow1=49; sCnt=50
sXcc=51; sStampI=37
sK512=52
sTry=53
sEps=54
sC16=56
sSc=58
sM7FF=60; sTop=61
sQmask=62
sT=64
sNx=84; sSg=85; sYo=86; sYh=87
sTS=80
X=2; WV=10; A8=14; XA=16; B1C=20; B1S=24; B1N=28; TWC=32; TWS=36; A2R=40; A2I=44; YC=48; YS=52
AD=56; BC=58
vXoff=72; vStW=73; vStR=74; vUW=75; vUR=76; vLst=77; vLld=78; vLldM=79; vYIW=80; vYIR=81; vYW=82; vYR=83; vGst=84; vGld=85
vSc0=86; vL8=88; vInv=89; vN=90; vQ=91; vSTMP=1; vLane=92; vTG=93
LNP=94; MM=98; RS2=100
T=102
class Asm2(Asm):
    def __call__(self, text):
        parts=text.split(';@F')
        for i,p in enumerate(parts):
            if i: fstamp()
            Asm.__call__(self,p)
a=Asm2()
def poll_branch(lbl, sleep=1, pre='', giveup=None, skip=False, mask=False):
    k=a.lines.index(lbl+':')
    if mask:
        pre+='\ns_mov_b64 exec, vcc'; skip=True
        k2=next(i for i in range(k,len(a.lines)) if 's_waitcnt vmcnt(0)' in a.lines[i])
        k3=max(i for i in range(k,k2) if 'buffer_load' in a.lines[i])
        a.lines.insert(k3+1,'    s_mov_b64 exec, -1')
    if a.lines[k-1].strip().startswith(('s_branch','s_endpgm')): skip=False
    a(f's_cbranch_vccnz {lbl}_r ;!nd')
    st=[]
    if skip: st.append(f'    s_branch {lbl}')
    st.append(f'{lbl}_r:')
    if giveup: st+= [f'    s_sub_u32 {s(sTry)}, {s(sTry)}, 1', f'    s_cbranch_scc1 {giveup}']
    else: st+= [f'    s_sub_u32 {s(sCnt)}, {s(sCnt)}, 1', '    s_cbranch_scc1 L_end']
    st+= ['    '+x.strip() for x in pre.split('\n') if x.strip()]
    if sleep: st.append(f'    s_sleep {sleep}')
    a.lines[k:k]=st
def fstamp():
    if cfg.stamps>=2: stamp()
def stamp():
    if not cfg.stamps: return
    a(f'''{'s_memtime' if cfg.stamps==2 else 's_memrealtime'} {s(sTS,2)}
    s_waitcnt lgkmcnt(0)
    s_mov_b32 m0, {s(sStampI)}
    s_add_u32 {s(sStampI)}, {s(sStampI)}, 1
    v_writelane_b32 {v(vSTMP)}, {s(sTS)}, m0''')
def dump_stamps():
    if not cfg.stamps: return
    a(f's_memrealtime {s(sTS,2)}\ns_memtime {s(sTS+2,2)}\ns_waitcnt lgkmcnt(0)\nv_writelane_b32 {v(vSTMP)}, {s(sTS)}, 61\nv_writelane_b32 {v(vSTMP)}, {s(sTS+2)}, 60')
    if cfg.cal>=0:
        lab='L_cal%d'%len(a.lines)
        a(f'''s_cmp_lg_u32 s2, {cfg.calwg}
        s_cbranch_scc1 {lab}
        s_cmp_lg_u32 {s(sW)}, 0
        s_cbranch_scc1 {lab}
        v_readlane_b32 {s(sT)}, {v(vSTMP)}, {cfg.cal}
        v_readlane_b32 {s(sT+1)}, {v(vSTMP)}, 63
        s_sub_u32 {s(sT)}, {s(sT)}, {s(sT+1)}
        s_lshl_b32 {s(sT)}, {s(sT)}, 2
        s_add_u32 {s(sT)}, {s(sT)}, 3000
        s_min_u32 {s(sT)}, {s(sT)}, 50000
        {lab}_l:
        s_memrealtime {s(sTS,2)}
        s_waitcnt lgkmcnt(0)
        s_sub_u32 {s(sT+2)}, {s(sTS)}, {s(sT+1)}
        s_cmp_lt_u32 {s(sT+2)}, {s(sT)}
        s_cbranch_scc1 {lab}_l
        {lab}:''')
    a(f'''s_lshl_b32 {s(sT)}, s2, 11
    s_lshl_b32 {s(sT+1)}, {s(sW)}, 8
    s_add_u32 {s(sT)}, {s(sT)}, {s(sT+1)}
    s_add_u32 {s(sT)}, {s(sT)}, {STAMP}
    v_lshlrev_b32 {v(vLane)}, 2, {v(vLane)}
    buffer_store_dword {v(vSTMP)}, {v(vLane)}, {WS}, {s(sT)} offen''')
def maxchk(regs, t):
    regs=list(regs)
    a(f'v_max3_u32 {v(t)}, {v(regs[0])}, {v(regs[1])}, {v(regs[2])}')
    rest=regs[3:]
    while len(rest)>=2:
        a(f'v_max3_u32 {v(t)}, {v(t)}, {v(rest[0])}, {v(rest[1])}'); rest=rest[2:]
    if rest: a(f'v_max_u32 {v(t)}, {v(t)}, {v(rest[0])}')
    a(f'v_cmp_eq_u32 vcc, -1, {v(t)}')
def phchk(regs, t):
    regs=list(regs)
    a(f'v_bitop3_b32 {v(t)}, {v(regs[0])}, {v(regs[1])}, {s(sPh)} bitop3:0x7e')
    for r in regs[2:]: a(f'v_bitop3_b32 {v(t)}, {v(t)}, {v(r)}, {s(sPh)} bitop3:0xf6')
    a(f'v_and_b32 {v(t)}, 1, {v(t)}\nv_cmp_ne_u32 vcc, 0, {v(t)}')
def tag4chk(r):
    for k in range(4): a(f'v_xor_b32 {v(r+k)}, {s(sTag)}, {v(r+k)}')
    a(f'v_or3_b32 {v(r)}, {v(r)}, {v(r+1)}, {v(r+2)}\nv_or_b32 {v(r)}, {v(r)}, {v(r+3)}\nv_cmp_ne_u32 vcc, 0, {v(r)}')
DPP='row_mask:0xf bank_mask:0xf'

def fft_core(xr, xi, U, V, F, P, fill1='', fill2=''):
    Ur,Ui=U,U+4
    a(f'v_mfma_f32_16x16x32_f16 {v(Ur,4)}, {v(xr,4)}, {v(B1C,4)}, 0')
    a(f'v_mfma_f32_16x16x32_f16 {v(Ui,4)}, {v(xr,4)}, {v(B1N,4)}, 0')
    if xi is not None:
        a(f'v_mfma_f32_16x16x32_f16 {v(Ur,4)}, {v(xi,4)}, {v(B1S,4)}, {v(Ur,4)}')
        a(f'v_mfma_f32_16x16x32_f16 {v(Ui,4)}, {v(xi,4)}, {v(B1C,4)}, {v(Ui,4)}')
    a(fill1)
    Vr,Vi=V,V+4
    for h in (0,2):
        a(f'v_pk_mul_f32 {v(Vi+h,2)}, {v(Ur+h,2)}, {v(TWS+h,2)}')
    for h in (0,2):
        a(f'v_pk_mul_f32 {v(Vr+h,2)}, {v(Ui+h,2)}, {v(TWS+h,2)}')
    for h in (0,2):
        a(f'v_pk_fma_f32 {v(Vr+h,2)}, {v(Ur+h,2)}, {v(TWC+h,2)}, {v(Vr+h,2)}')
        a(f'v_pk_fma_f32 {v(Vi+h,2)}, {v(Ui+h,2)}, {v(TWC+h,2)}, {v(Vi+h,2)} neg_lo:[0,0,1] neg_hi:[0,0,1]')
    for r in range(4): a(f'v_cvt_pk_f16_f32 {v(P+r)}, {v(Vr+r)}, {v(Vi+r)}')
    a(f'v_mfma_f32_16x16x32_f16 {v(F,4)}, {v(A2R,4)}, {v(P,4)}, 0')
    a(f'v_mfma_f32_16x16x32_f16 {v(F+4,4)}, {v(A2I,4)}, {v(P,4)}, 0')
    a(fill2)
    for r in range(4): a(f'v_cvt_pk_f16_f32 {v(P+r)}, {v(F+r)}, {v(F+4+r)}')

SENT=T+4
def g2late():
    return '\n'.join(f'v_mov_b32 {v(LNP+k)}, -1' for k in range(4))+f'\ns_mov_b32 {s(sT+14)}, {GBASE+GR}\nbuffer_store_dwordx4 {v(LNP,4)}, {v(vGst)}, {WS}, {s(sT+14)} offen sc1'

def main_prologue():
    t=T
    X0=BC
    a(f'''
    s_mul_i32 {s(sLld)}, {s(sX)}, {LX}
    s_add_u32 {s(sLld)}, {s(sLld)}, {LBASE}
    s_mul_i32 {s(sLst)}, {s(sJ)}, {PS}
    s_add_u32 {s(sLst)}, {s(sLst)}, {s(sLld)}
    v_lshlrev_b32 {v(t)}, 4, v0
    v_lshrrev_b32 {v(t+1)}, 4, v0
    global_load_dwordx2 {v(X0+4,2)}, {v(vUW)}, s[16:17]
    buffer_load_dword {v(X0+6)}, off, {WS}, 0 sc1
    ''')
    tabt=f'buffer_load_dword {v(X0+7)}, {v(vL8)}, {WS}, {s(sTabLd)} offen sc1'
    ltch=f'buffer_load_dwordx4 {v(X0+8,4)}, {v(t)}, {WS}, {s(sLst) if not cfg.exp&1 else "s10"} offen sc1'
    lclr=f'buffer_store_dwordx4 {v(SENT,4)}, {v(t)}, {WS}, {s(sLst)} offen'
    if cfg.tch==0: a(tabt+'\n'+ltch+'\n'+lclr)
    if cfg.tch==1 and not cfg.aft&1: a(tabt+'\n'+ltch)
    if cfg.tch==2: a(tabt+'\n'+lclr+'\n'+ltch)
    if cfg.tch==3: a(ltch.replace(' sc1','')+'\n'+ltch.replace(' sc1','')+'\n'+lclr)
    a(f'''
    s_mov_b32 {s(sG0)}, {GBASE}
    s_mul_i32 {s(sT)}, {s(sX)}, {GS}
    s_add_u32 {s(sT+2)}, {s(sJ)}, 24
    s_and_b32 {s(sT+2)}, {s(sT+2)}, 24
    s_lshl_b32 {s(sT+2)}, {s(sT+2)}, 13
    s_add_u32 {s(sT)}, {s(sT)}, {s(sT+2)}
    s_and_b32 {s(sT+2)}, {s(sJ)}, 7
    s_cmp_lt_u32 {s(sJ)}, 8
    s_cselect_b32 {s(sT+3)}, 7, 8
    s_cselect_b32 {s(sT+4)}, 112, 0
    s_lshl_b32 {s(sT+2)}, {s(sT+2)}, {s(sT+3)}
    s_add_u32 {s(sT)}, {s(sT)}, {s(sT+2)}
    v_lshlrev_b32 {v(t+2)}, 4, {v(vN)}
    v_lshl_add_u32 {v(vGst)}, {v(t+1)}, 11, {v(t+2)}
    v_and_b32 {v(t+3)}, 8, {v(vN)}
    v_mad_u32_u24 {v(vGst)}, {v(t+3)}, {s(sT+4)}, {v(vGst)}
    v_add_u32 {v(vGst)}, {s(sT)}, {v(vGst)}
    s_lshl_b32 {s(sT+15)}, s2, 13
    s_sub_u32 {s(sT+14)}, s2, 4
    s_cmp_lt_u32 {s(sT+14)}, 28
    s_cselect_b32 {s(sT+15)}, {s(sT+15)}, {WSSZ}
    ''')
    clrs=f'''buffer_store_dwordx4 {v(SENT,4)}, {v(vGst)}, {WS}, {s(sG0)} offen sc1
    buffer_store_dwordx4 {v(SENT,4)}, {v(t)}, {WS}, {s(sT+15)} offen sc1'''
    g2c=f's_mov_b32 {s(sT+14)}, {GBASE+GR}\nbuffer_store_dwordx4 {v(SENT,4)}, {v(vGst)}, {WS}, {s(sT+14)} offen sc1'
    if not cfg.aft&2: a(clrs)
    if cfg.gre: cfg.g2pos=2
    if cfg.g2pos==0: a(g2c)
    c=t+8; co,si=c+8,c+12
    a(f'''
    s_lshr_b32 {s(sT)}, {s(sJ)}, 2
    s_and_b32 {s(sT)}, {s(sT)}, 6                 ; 2*(j>>3)
    s_lshl_b32 {s(sT+1)}, {s(sW)}, 2
    s_and_b32 {s(sT+1)}, {s(sT+1)}, 8             ; 2*4*((w>>1)&1)
    s_cmp_lt_u32 {s(sJ)}, 8
    s_cselect_b32 {s(sT)}, {s(sT+1)}, {s(sT)}
    s_lshl_b32 {s(sT+1)}, {s(sW)}, 4
    s_and_b32 {s(sT+1)}, {s(sT+1)}, 16            ; 16*(w&1)
    s_cmp_ge_u32 {s(sW)}, 4
    s_cselect_b32 {s(sT+2)}, {s(sT+1)}, 0         ; 16k
    s_cselect_b32 {s(sT)}, {s(sT)}, 0
    s_cmp_eq_u32 {s(sW)}, 3
    s_cselect_b32 {s(sT)}, 16, {s(sT)}
    s_lshl_b32 {s(sT+3)}, {s(sW)}, 2
    s_lshr_b32 {s(sT+3)}, 0x44440054, {s(sT+3)}
    s_and_b32 {s(sT+3)}, {s(sT+3)}, 15            ; log2 A
    v_lshlrev_b32 {v(c)}, {s(sT+3)}, {v(vN)}
    v_add_u32 {v(c)}, {s(sT)}, {v(c)}
    v_lshl_add_u32 {v(c+1)}, {v(vQ)}, 2, {s(sT+2)}
    v_cvt_f32_u32 {v(c)}, {v(c)}
    v_cvt_f32_u32 {v(c+1)}, {v(c+1)}
    s_mov_b32 {s(sK512)}, {fbits(1/512)}
    v_mul_f32 {v(c)}, {s(sK512)}, {v(c)}
    v_mul_f32 {v(c+4)}, {v(c+1)}, {v(c)}
    v_add_f32 {v(c+5)}, {v(c+4)}, {v(c)}
    v_add_f32 {v(c+6)}, {v(c+5)}, {v(c)}
    v_add_f32 {v(c+7)}, {v(c+6)}, {v(c)}
    ''')
    fill=[f's_mov_b32 {s(sEps)}, {fbits(1e-5)}', f's_mov_b32 {s(sEps+1)}, {fbits(1e-5)}', f's_mov_b32 {s(sC16)}, {fbits(1/16)}', f's_mov_b32 {s(sC16+1)}, {fbits(1/16)}',
          f's_mov_b32 {s(sTop)}, 0x80000000', f's_mov_b32 {s(sQmask)}, 0x11111111', f's_mov_b32 {s(sQmask+1)}, 0x11111111', f's_mov_b32 {s(sG4)}, {GBASE+4*GS}']
    for r in range(4):
        a(f'v_cos_f32 {v(co+r)}, {v(c+4+r)}'); a(fill[2*r])
        a(f'v_sin_f32 {v(si+r)}, {v(c+4+r)}'); a(fill[2*r+1])
    a(f'''
    s_lshl_b32 {s(sT)}, {s(sW)}, 11
    s_add_u32 {s(sT)}, {s(sT)}, {L_CX}
    v_lshlrev_b32 {v(c+2)}, 4, {v(vLane)}
    v_add_u32 {v(c+3)}, {s(sT)}, {v(c+2)}
    s_and_b32 {s(sT)}, {s(sW)}, 6
    s_cmp_eq_u32 {s(sT)}, 2
    s_cbranch_scc1 L_cw
    s_cmp_eq_u32 {s(sW)}, 1
    s_cbranch_scc1 L_cri
    v_cvt_pk_f16_f32 {v(co)}, {v(co)}, {v(co+1)}
    v_cvt_pk_f16_f32 {v(co+1)}, {v(co+2)}, {v(co+3)}
    v_cvt_pk_f16_f32 {v(co+2)}, {v(si)}, {v(si+1)}
    v_cvt_pk_f16_f32 {v(co+3)}, {v(si+2)}, {v(si+3)}
    s_branch L_cw
    L_cri:
    ''')
    for r in range(4):
        a(f'v_cvt_pk_f16_f32 {v(c+4)}, {v(co+r)}, {v(si+r)}')
        a(f'v_cvt_pk_f16_f32 {v(si+r)}, -{v(si+r)}, {v(co+r)}')
        a(f'v_mov_b32 {v(co+r)}, {v(c+4)}')
    a(f'''
    L_cw:
    ds_write_b128 {v(c+3)}, {v(co,4)}
    ds_write_b128 {v(c+3)}, {v(si,4)} offset:1024
    v_lshrrev_b32 {v(c+4)}, 2, {v(vN)}
    v_and_b32 {v(c+5)}, 2, {v(vN)}
    v_and_b32 {v(c+6)}, 14, {v(vN)}
    v_cmp_eq_u32 vcc, 2, {v(c+6)}
    v_mul_u32_u24 {v(vYIR)}, {YIS}, {v(c+4)}
    v_lshlrev_b32 {v(vStR)}, 8, {v(vQ)}
    v_cndmask_b32 {v(c+4)}, {v(c+4)}, 4, vcc
    v_cndmask_b32 {v(c+5)}, {v(c+5)}, 0, vcc
    v_mul_u32_u24 {v(c+6)}, {v(c+4)}, {v(vQ)}
    v_lshl_add_u32 {v(c+6)}, {v(c+6)}, 1, {v(c+5)}
    v_add_u32 {v(c+7)}, {v(c+6)}, {v(c+4)}
    v_cvt_f32_u32 {v(c+6)}, {v(c+6)}
    v_cvt_f32_u32 {v(c+7)}, {v(c+7)}
    v_mul_f32 {v(c+6)}, 0x3e000000, {v(c+6)}
    v_mul_f32 {v(c+7)}, 0x3e000000, {v(c+7)}
    v_cos_f32 {v(c+6)}, {v(c+6)}
    v_cos_f32 {v(c+7)}, {v(c+7)}
    v_and_b32 {v(c+5)}, 1, {v(vN)}
    v_cmp_eq_u32 vcc, 0, {v(c+5)}
    v_cvt_pk_f16_f32 {v(c+6)}, {v(c+6)}, {v(c+7)}
    v_mov_b32 {v(c+5)}, 0x80008000
    v_cndmask_b32 {v(A8)}, 0, {v(c+6)}, vcc
    v_cndmask_b32 {v(A8+1)}, {v(c+6)}, 0, vcc
    v_cndmask_b32 {v(c+5)}, {v(c+5)}, 0, vcc
    s_lshl_b32 {s(sT+1)}, {s(sT+1)}, 7            ; h*2048
    v_add_u32 {v(c+6)}, {s(sT+1)}, {v(c+2)}
    s_lshl_b32 {s(sT+2)}, {s(sW)}, 11
    s_and_b32 {s(sT+2)}, {s(sT+2)}, 4096          ; ((w>>1)&1)*4096
    v_add_u32 {v(c+7)}, {s(sT+2)}, {v(c+2)}
    s_waitcnt lgkmcnt(0)
    s_barrier
    ds_read_b128 {v(B1N,4)}, {v(c+2)} offset:{L_CX}
    ds_read_b128 {v(co,4)}, {v(c+7)} offset:{L_CX+4*2048}
    ds_read_b128 {v(si,4)}, {v(c+7)} offset:{L_CX+5*2048}
    ds_read_b128 {v(A2R,4)}, {v(c+2)} offset:{L_CX+2048}
    ds_read_b128 {v(A2I,4)}, {v(c+2)} offset:{L_CX+2048+1024}
    ds_read_b128 {v(TWC,4)}, {v(c+6)} offset:{L_CX+4096}
    ds_read_b128 {v(TWS,4)}, {v(c+6)} offset:{L_CX+4096+1024}
    v_and_b32 {v(c+4)}, 4, {v(vN)}
    s_lshl_b32 {s(sT)}, {s(sW)}, 2
    v_lshl_add_u32 {v(vStW)}, {v(t+3)}, 2, {v(vStR)}
    v_lshl_add_u32 {v(vStW)}, {v(c+4)}, 4, {v(vStW)}
    v_add_u32 {v(vStW)}, {s(sT)}, {v(vStW)}
    v_and_b32 {v(c+4)}, 7, {v(vN)}
    v_lshl_add_u32 {v(vStR)}, {v(c+4)}, 5, {v(vStR)}
    v_lshl_add_u32 {v(vUW)}, {v(vQ)}, 11, {v(vUW)}
    v_add_u32 {v(vUW)}, {L_U}, {v(vUW)}
    s_lshr_b32 {s(sT)}, {s(sW)}, 1
    s_lshl_b32 {s(sT)}, {s(sT)}, 11
    s_add_u32 {s(sT+2)}, {s(sT)}, {L_U}
    v_lshl_add_u32 {v(vUR)}, {v(vLane)}, 3, {s(sT+2)}
    ; vLst = w'*2048 + 512q + 64h + 4n
    s_lshr_b32 {s(sT+2)}, {s(sT+1)}, 5
    s_add_u32 {s(sT)}, {s(sT)}, {s(sT+2)}
    v_lshl_add_u32 {v(vLst)}, {v(vQ)}, 9, {s(sT)}
    v_lshl_add_u32 {v(vLst)}, {v(vN)}, 2, {v(vLst)}
    s_lshl_b32 {s(sT)}, {s(sJ)}, 3
    s_add_u32 {s(sTabSt)}, {s(sTabLd)}, {s(sT)}
    s_lshl_b32 {s(sT+3)}, {s(sW)}, 31             ; h sign
    s_lshl_b32 {s(sT+4)}, {s(sW)}, 29
    s_and_b32 {s(sT+4)}, {s(sT+4)}, {s(sTop)}
    s_mov_b32 {s(sT+5)}, 0x80008000
    s_mov_b32 {s(sIt)}, 0
    s_mov_b32 {s(sFast)}, 1
    s_mov_b32 {s(sPh)}, 0
    s_mov_b32 {s(sNx)}, 0
    s_mov_b32 {s(sSlot)}, {WSSZ}
    s_xor_b32 {s(sT+12)}, {s(sJ)}, 9
    s_or_b32 {s(sT+12)}, {s(sT+12)}, {s(sW)}
    s_mov_b32 {s(sTry)}, 64
    s_waitcnt lgkmcnt(4)
    v_xor_b32 {v(B1C)}, {s(sT+3)}, {v(B1N)}
    v_xor_b32 {v(B1C+1)}, {s(sT+3)}, {v(B1N+1)}
    v_xor_b32 {v(B1S)}, {s(sT+3)}, {v(B1N+2)}
    v_xor_b32 {v(B1S+1)}, {s(sT+3)}, {v(B1N+3)}
    v_xor_b32 {v(B1C+2)}, {v(B1C)}, {v(c+5)}
    v_xor_b32 {v(B1C+3)}, {v(B1C+1)}, {v(c+5)}
    v_xor_b32 {v(B1S+2)}, {v(B1S)}, {v(c+5)}
    v_xor_b32 {v(B1S+3)}, {v(B1S+1)}, {v(c+5)}
    ''')
    for r in range(4): a(f'v_xor_b32 {v(B1N+r)}, {s(sT+5)}, {v(B1S+r)}')
    for k,src in ((0,co),(1,si)):
        for r in range(2):
            a(f'v_xor_b32 {v(YC+2*k+r)}, {s(sT+4)}, {v(src+r)}')
            a(f'v_xor_b32 {v(YS+2*k+r)}, {s(sT+4)}, {v(src+2+r)}')
    a(f'''
    s_and_b32 {s(sT+1)}, {s(sW)}, 3
    s_lshl_b32 {s(sT+1)}, {s(sT+1)}, 6            ; 64cb
    s_lshr_b32 {s(sT)}, {s(sW)}, 2
    s_mul_i32 {s(sT)}, {s(sT)}, {16*272}
    s_add_u32 {s(sT)}, {s(sT)}, {s(sT+1)}
    s_add_u32 {s(sT)}, {s(sT)}, {L_YT}
    v_mul_u32_u24 {v(vYW)}, 272, {v(vN)}
    v_lshl_add_u32 {v(vYW)}, {v(vQ)}, 4, {v(vYW)}
    v_add_u32 {v(vYW)}, {s(sT)}, {v(vYW)}
    v_mul_u32_u24 {v(vYR)}, 272, {v(t+1)}
    v_add_u32 {v(vYR)}, {v(vYR)}, {v(t+2)}
    v_add_u32 {v(vYR)}, {L_YT}, {v(vYR)}
    s_add_u32 {s(sT+1)}, {s(sT+1)}, {L_YI}
    v_mul_u32_u24 {v(c+4)}, {4*YIS}, {v(vQ)}
    v_and_b32 {v(c+6)}, 0x30, {v(t+2)}
    v_add3_u32 {v(vYIR)}, {v(vYIR)}, {v(c+4)}, {v(c+6)}
    v_add_u32 {v(vYIR)}, {s(sT+1)}, {v(vYIR)}
    s_cmp_lt_u32 {s(sJ)}, 8
    s_cbranch_scc1 L_aself
    v_mul_u32_u24 {v(vLld)}, {PS}, {v(t+1)}
    v_mul_u32_u24 {v(vYIW)}, {YIS}, {v(t+1)}
    s_lshl_b32 {s(sT)}, {s(sJ)}, 8
    v_add3_u32 {v(vLld)}, {v(vLld)}, {v(t+2)}, {s(sT)}
    v_add_u32 {v(vYIW)}, {v(vYIW)}, {v(t+2)}
    v_mov_b32 {v(vLldM)}, 0
    s_branch L_adone
    L_aself:
    ; s2=(w>>1)*8+(l>>3), u=l&7, which=w&1
    s_lshl_b32 {s(sT)}, {s(sW)}, 2
    s_and_b32 {s(sT)}, {s(sT)}, 24
    v_lshrrev_b32 {v(c+4)}, 3, {v(vLane)}
    v_add_u32 {v(c+4)}, {s(sT)}, {v(c+4)}
    v_and_b32 {v(c+6)}, 0x70, {v(t+2)}
    v_mul_u32_u24 {v(vLldM)}, {PS}, {v(c+4)}
    v_mul_u32_u24 {v(vYIW)}, {YIS}, {v(c+4)}
    s_lshl_b32 {s(sT)}, {s(sJ)}, 7
    s_add_u32 {s(sT+1)}, {s(sT)}, 4
    s_sub_u32 {s(sT)}, {508*4}, {s(sT)}
    v_add3_u32 {v(vLld)}, {v(vLldM)}, {v(c+6)}, {s(sT+1)}
    v_sub_u32 {v(vLldM)}, {v(vLldM)}, {v(c+6)}
    v_add_u32 {v(vLldM)}, {s(sT)}, {v(vLldM)}
    s_lshr_b32 {s(sT)}, {s(sT+3)}, 24
    v_add3_u32 {v(vYIW)}, {v(vYIW)}, {v(c+6)}, {s(sT)}
    L_adone:
    v_add_u32 {v(vYIW)}, {L_YI}, {v(vYIW)}
    s_waitcnt vmcnt({(0 if cfg.aft&1 else 2)+(0 if cfg.aft&2 else 2)+(1 if cfg.g2pos==0 else 0)})
    {tabt if cfg.aft&1 else ''}
    {ltch if cfg.aft&1 else ''}
    {clrs if cfg.aft&2 else ''}
    {g2c if cfg.g2pos==1 else ''}
    v_readfirstlane_b32 {s(sTag)}, {v(X0+6)}
    ''')
    for rho in (0,1):
        for k in (0,1):
            src=X0+2*rho+k
            a(f'v_lshlrev_b32 {v(X+4*k+rho)}, 16, {v(src)}')
            a(f'v_and_b32 {v(X+4*k+2+rho)}, 0xffff0000, {v(src)}')
    for k in (0,1):
        a(f'v_lshlrev_b32 {v(WV+2*k)}, 16, {v(X0+4+k)}')
        a(f'v_and_b32 {v(WV+2*k+1)}, 0xffff0000, {v(X0+4+k)}')
    a(f's_add_u32 {s(sTag)}, {s(sTag)}, 1')

def xin_consts(c):
    a(f'''
    s_and_b32 {s(sT)}, {s(sX)}, 3                ; 0 => self
    s_lshr_b32 {s(sT+1)}, {s(sW)}, 2
    s_lshr_b32 {s(sT+2)}, {s(sX)}, 2
    s_mov_b32 {s(sSc)}, {fbits(16.0)}
    s_cmp_eq_u32 {s(sT)}, 0
    s_cselect_b32 {s(sMir)}, {s(sT+1)}, {s(sT+2)}
    s_cselect_b32 {s(sSc)}, {fbits(8.0)}, {s(sSc)}
    s_cselect_b32 {s(sDsc)}, {fbits(1/8)}, {s(sC16)}
    s_cselect_b32 {s(sT+3)}, -4, 0
    s_mov_b32 {s(sSc+1)}, {s(sSc)}
    s_sub_u32 {s(sT+4)}, 256, s2
    s_and_b32 {s(sT+4)}, {s(sT+4)}, 255
    s_cmp_eq_u32 {s(sMir)}, 0
    s_cselect_b32 {s(sT+4)}, s2, {s(sT+4)}       ; source g
    s_cselect_b32 {s(sT+5)}, 16, -16
    s_cselect_b32 {s(sT+6)}, 0, {509*4}
    s_cselect_b32 {s(sT+7)}, 1.0, -1.0
    s_add_u32 {s(sT+3)}, {s(sT+3)}, {s(sT+6)}
    s_mul_i32 {s(sT+6)}, {s(sT+5)}, {s(sW)}
    s_lshl_b32 {s(sT+6)}, {s(sT+6)}, 4
    s_add_u32 {s(sT+3)}, {s(sT+3)}, {s(sT+6)}
    s_lshr_b32 {s(sT+6)}, {s(sT+4)}, 3
    s_lshl_b32 {s(sT+6)}, {s(sT+6)}, 11
    s_add_u32 {s(sT+3)}, {s(sT+3)}, {s(sT+6)}
    s_add_u32 {s(sT+6)}, {s(sT+4)}, 3
    s_and_b32 {s(sT+6)}, {s(sT+6)}, 3
    s_lshl_b32 {s(sT+6)}, {s(sT+6)}, 16
    s_add_u32 {s(sT+3)}, {s(sT+3)}, {s(sT+6)}
    s_and_b32 {s(sT+6)}, {s(sT+4)}, 4
    s_lshl_b32 {s(sT+6)}, {s(sT+6)}, 8
    s_add_u32 {s(sT+3)}, {s(sT+3)}, {s(sT+6)}
    v_mul_i32_i24 {v(vGld)}, {s(sT+5)}, {v(vN)}
    v_mul_u32_u24 {v(c+4)}, {GS}, {v(vQ)}
    v_add3_u32 {v(vGld)}, {v(vGld)}, {v(c+4)}, {s(sT+3)}
    v_lshrrev_b32 {v(c+4)}, 1, {v(vN)}
    v_and_b32 {v(c+4)}, 6, {v(c+4)}
    v_and_or_b32 {v(c+4)}, {v(vN)}, 1, {v(c+4)}
    v_lshl_add_u32 {v(AD)}, {v(c+4)}, 8, s2
    v_cvt_f32_u32 {v(c+4)}, {v(AD)}
    v_cvt_f32_u32 {v(c+5)}, {v(vQ)}
    v_mul_f32 {v(c+4)}, {fbits(1/2048)}, {v(c+4)}
    v_mul_f32 {v(c+4)}, {s(sT+7)}, {v(c+4)}
    v_mul_f32 {v(c+5)}, {v(c+4)}, {v(c+5)}
    v_fma_f32 {v(c+6)}, {v(c+4)}, 4.0, {v(c+5)}
    v_cos_f32 {v(c+7)}, {v(c+5)}
    v_sin_f32 {v(c+8)}, {v(c+5)}
    v_cos_f32 {v(c+9)}, {v(c+6)}
    v_sin_f32 {v(c+10)}, {v(c+6)}
    v_bfe_u32 {v(c+4)}, {v(vN)}, 1, 1
    v_cmp_eq_u32 vcc, {s(sMir)}, {v(c+4)}
    v_cvt_pk_f16_f32 {v(c+7)}, {v(c+7)}, {v(c+8)}
    v_cvt_pk_f16_f32 {v(c+9)}, {v(c+9)}, {v(c+10)}
    v_cndmask_b32 {v(XA)}, 0, {v(c+7)}, vcc
    v_cndmask_b32 {v(XA+1)}, {v(c+7)}, 0, vcc
    v_cndmask_b32 {v(XA+2)}, 0, {v(c+9)}, vcc
    v_cndmask_b32 {v(XA+3)}, {v(c+9)}, 0, vcc
    v_and_b32 {v(c+4)}, 0x1cf, v0
    v_cmp_eq_u32 vcc, 0, {v(c+4)}
    v_mov_b32 {v(c+5)}, {s(sSc)}
    s_sub_u32 {s(sT)}, 2047, s2
    v_lshlrev_b32 {v(vInv)}, 9, {v(vQ)}
    v_cndmask_b32 {v(vSc0)}, {v(c+5)}, 0, vcc
    v_cndmask_b32 {v(vSc0+1)}, {v(c+5)}, 0, vcc
    v_sub_u32 {v(vInv)}, {s(sT)}, {v(vInv)}
    s_lshl_b32 {s(sSlot)}, {s(sX)}, 12
    s_add_u32 {s(sSlot)}, {s(sSlot)}, {SLOT}
    ''')

def main_loop():
    t=T
    S1,S2,S3=t,t+2,t+4
    a('L_top:')
    stamp()
    a(f'''
    v_pk_add_f32 {v(S1,2)}, {v(X,2)}, {v(X+2,2)}
    v_pk_add_f32 {v(t+6,2)}, {v(X+4,2)}, {v(X+6,2)}
    v_pk_mul_f32 {v(S2,2)}, {v(X,2)}, {v(X,2)}
    v_pk_mul_f32 {v(S3,2)}, {v(X,2)}, {v(WV,2)} op_sel:[0,0] op_sel_hi:[1,0]
    v_pk_add_f32 {v(S1,2)}, {v(S1,2)}, {v(t+6,2)}
    v_pk_fma_f32 {v(S2,2)}, {v(X+2,2)}, {v(X+2,2)}, {v(S2,2)}
    v_pk_fma_f32 {v(S3,2)}, {v(X+2,2)}, {v(WV,2)}, {v(S3,2)} op_sel:[0,1,0] op_sel_hi:[1,1,1]
    v_add_f32_dpp {v(S1)}, {v(S1)}, {v(S1)} row_ror:8 row_mask:0xf bank_mask:0x3
    v_pk_fma_f32 {v(S2,2)}, {v(X+4,2)}, {v(X+4,2)}, {v(S2,2)}
    v_pk_fma_f32 {v(S3,2)}, {v(X+4,2)}, {v(WV+2,2)}, {v(S3,2)} op_sel:[0,0,0] op_sel_hi:[1,0,1]
    v_add_f32_dpp {v(S1)}, {v(S1+1)}, {v(S1+1)} row_ror:8 row_mask:0xf bank_mask:0xc
    v_pk_fma_f32 {v(S2,2)}, {v(X+6,2)}, {v(X+6,2)}, {v(S2,2)}
    v_pk_fma_f32 {v(S3,2)}, {v(X+6,2)}, {v(WV+2,2)}, {v(S3,2)} op_sel:[0,1,0] op_sel_hi:[1,1,1]
    s_cmp_eq_u32 {s(sIt)}, 0
    s_cbranch_scc1 L_s3w
    L_s3ok:
    v_add_f32_dpp {v(S1)}, {v(S1)}, {v(S1)} row_half_mirror row_mask:0xf bank_mask:0x5
    v_add_f32_dpp {v(S2)}, {v(S2)}, {v(S2)} row_ror:8 row_mask:0xf bank_mask:0x3
    v_add_f32_dpp {v(S3)}, {v(S3)}, {v(S3)} row_ror:8 row_mask:0xf bank_mask:0x3
    v_add_f32_dpp {v(S2)}, {v(S2+1)}, {v(S2+1)} row_ror:8 row_mask:0xf bank_mask:0xc
    v_add_f32_dpp {v(S3)}, {v(S3+1)}, {v(S3+1)} row_ror:8 row_mask:0xf bank_mask:0xc
    v_add_f32_dpp {v(S1)}, {v(S2)}, {v(S2)} row_half_mirror row_mask:0xf bank_mask:0xa
    v_add_f32_dpp {v(S3)}, {v(S3)}, {v(S3)} row_half_mirror {DPP}
    v_add_f32_dpp {v(S1)}, {v(S1)}, {v(S1)} quad_perm:[1,0,3,2] {DPP}
    v_add_f32_dpp {v(S3)}, {v(S3)}, {v(S3)} quad_perm:[1,0,3,2] {DPP}
    v_add_f32_dpp {v(S1)}, {v(S1)}, {v(S1)} quad_perm:[2,3,0,1] {DPP}
    v_add_f32_dpp {v(S3)}, {v(S3)}, {v(S3)} quad_perm:[2,3,0,1] {DPP}
    s_mov_b64 exec, {s(sQmask,2)}
    ds_write2_b32 {v(vStW)}, {v(S1)}, {v(S3)} offset0:0 offset1:32
    s_mov_b64 exec, -1
    ;@F
    ''')
    if cfg.g2pos==4: a(f's_cmp_lg_u32 {s(sIt)}, 1\ns_cbranch_scc1 L_nw\ns_waitcnt vmcnt(0)\nL_nw:')
    a(f'''
    s_waitcnt lgkmcnt(0)
    s_barrier
    ;@F
    ds_read_b128 {v(t,4)}, {v(vStR)}
    ds_read_b128 {v(t+4,4)}, {v(vStR)} offset:16
    s_waitcnt lgkmcnt(0)
    v_pk_add_f32 {v(t,2)}, {v(t,2)}, {v(t+2,2)}
    v_pk_add_f32 {v(t+4,2)}, {v(t+4,2)}, {v(t+6,2)}
    v_pk_add_f32 {v(t,2)}, {v(t,2)}, {v(t+4,2)}
    v_add_f32 {v(t)}, {v(t)}, {v(t+1)}
    v_mul_f32 {v(t+7)}, {s(sK512)}, {v(t)}
    ''')
    VAR,RS,CC,NM=t+8,t+10,t+12,t+14
    K=t+16
    a(f'''
    v_mov_b32_dpp {v(MM)}, {v(t+7)} row_newbcast:0 {DPP}
    v_mov_b32_dpp {v(MM+1)}, {v(t+7)} row_newbcast:1 {DPP}
    v_mov_b32_dpp {v(S2)}, {v(t+7)} row_newbcast:2 {DPP}
    v_mov_b32_dpp {v(S2+1)}, {v(t+7)} row_newbcast:3 {DPP}
    v_mov_b32_dpp {v(S3)}, {v(t+7)} row_newbcast:4 {DPP}
    v_pk_fma_f32 {v(VAR,2)}, {v(MM,2)}, {v(MM,2)}, {v(S2,2)} neg_lo:[1,0,0] neg_hi:[1,0,0]
    v_mov_b32_dpp {v(S3+1)}, {v(t+7)} row_newbcast:5 {DPP}
    v_pk_add_f32 {v(S1,2)}, {v(VAR,2)}, {s(sEps,2)}
    s_cmp_eq_u32 {s(sIt)}, 0
    v_rsq_f32_e64 {v(RS)}, |{v(S1)}|
    v_rsq_f32_e64 {v(RS+1)}, |{v(S1+1)}|
    s_cbranch_scc1 L_it0 ;!nd
    v_pk_mul_f32 {v(S3,2)}, {v(S3,2)}, {v(RS,2)}
    v_add_u32 {v(K+2)}, 0xffffff00, {v(vInv)}
    v_ashrrev_i32 {v(K)}, 31, {v(S3)}
    v_ashrrev_i32 {v(K+1)}, 31, {v(S3+1)}
    v_bitop3_b32 {v(K)}, {v(S3)}, {v(K)}, {s(sTop)} bitop3:0x1e
    v_bitop3_b32 {v(K+1)}, {v(S3+1)}, {v(K+1)}, {s(sTop)} bitop3:0x1e
    v_bfi_b32 {v(K)}, {s(sM7FF)}, {v(vInv)}, {v(K)}
    v_bfi_b32 {v(K+1)}, {s(sM7FF)}, {v(K+2)}, {v(K+1)}
    v_max_u32 {v(K+1)}, {v(K)}, {v(K+1)}
    v_pk_add_f32 {v(CC,2)}, {v(RS,2)}, 1.0 op_sel_hi:[1,0]
    v_mov_b32 {v(K)}, {s(sTag)}
    v_max_u32_dpp {v(K+1)}, {v(K+1)}, {v(K+1)} row_bcast:15 row_mask:0xa bank_mask:0xf
    v_pk_mul_f32 {v(VAR,2)}, {v(VAR,2)}, {v(CC,2)}
    s_cmp_lg_u32 {s(sW)}, 0
    v_max_u32_dpp {v(K+1)}, {v(K+1)}, {v(K+1)} row_bcast:31 row_mask:0xc bank_mask:0xf
    s_cbranch_scc1 L_nost ;!nd
    s_mov_b32 exec_lo, 0
    s_mov_b32 exec_hi, {s(sTop)}
    s_cmp_eq_u32 {s(sFast)}, 0
    s_cbranch_scc1 L_tabst_slow ;!nd
    buffer_store_dwordx2 {v(K,2)}, off, {WS}, {s(sTabSt)}
    L_tabst_back:
    s_mov_b64 exec, -1
    L_nost:
    v_readlane_b32 {s(sKey)}, {v(K+1)}, 63
    v_pk_mul_f32 {v(NM,2)}, {v(MM,2)}, {v(RS,2)}
    v_pk_fma_f32 {v(VAR,2)}, {v(VAR,2)}, {v(CC,2)}, {s(sEps,2)}
    ''')
    Z=t+18
    for c_ in range(4):
        a(f'v_pk_fma_f32 {v(Z+2*c_,2)}, {v(X+2*c_,2)}, {v(RS,2)}, {v(NM,2)} neg_lo:[0,0,1] neg_hi:[0,0,1]')
        if c_==0: a(f'v_rsq_f32_e64 {v(RS2)}, |{v(VAR)}|')
        if c_==1: a(f'v_rsq_f32_e64 {v(RS2+1)}, |{v(VAR+1)}|')
    for c_ in range(4):
        a(f'v_pk_add_f32 {v(X+2*c_,2)}, {v(X+2*c_,2)}, {v(Z+2*c_,2)}')
    for rho in (0,1):
        for k in (0,1):
            a(f'v_cvt_pk_bf16_f32 {v(LNP+2*rho+k)}, {v(Z+4*k+rho)}, {v(Z+4*k+2+rho)}')
    a(f'''
    s_cmp_eq_u32 {s(sIt)}, 2
    s_cbranch_scc1 L_tab2e ;!nd
    v_pk_mul_f32 {v(CC,2)}, {v(RS2,2)}, {s(sC16,2)}
    L_z:
    ;@F
    ''')
    ZP=t; D0=t+4; D1=t+8
    a(f'v_pk_mul_f32 {v(NM,2)}, {v(MM,2)}, {v(CC,2)}')
    for c_ in range(4):
        a(f'v_pk_fma_f32 {v(Z+2*c_,2)}, {v(X+2*c_,2)}, {v(CC,2)}, {v(NM,2)} neg_lo:[0,0,1] neg_hi:[0,0,1]')
    for c_ in range(4): a(f'v_cvt_pk_f16_f32 {v(ZP+c_)}, {v(Z+2*c_)}, {v(Z+2*c_+1)}')
    a(f'''
    v_mfma_f32_16x16x16_f16 {v(D0,4)}, {v(A8,2)}, {v(ZP,2)}, 0
    v_mfma_f32_16x16x16_f16 {v(D1,4)}, {v(A8,2)}, {v(ZP+2,2)}, 0
    s_nop 6
    v_cvt_pk_f16_f32 {v(ZP)}, {v(D0)}, {v(D0+1)}
    v_cvt_pk_f16_f32 {v(ZP+1)}, {v(D1)}, {v(D1+1)}
    v_cvt_pk_f16_f32 {v(ZP+2)}, {v(D0+2)}, {v(D0+3)}
    v_cvt_pk_f16_f32 {v(ZP+3)}, {v(D1+2)}, {v(D1+3)}
    ds_write_b64 {v(vUW)}, {v(ZP,2)}
    ds_write_b64 {v(vUW)}, {v(ZP+2,2)} offset:1024
    ;@F
    s_waitcnt lgkmcnt(0)
    s_barrier
    ;@F
    ds_read_b64_tr_b16 {v(t,2)}, {v(vUR)}
    ds_read_b64_tr_b16 {v(t+2,2)}, {v(vUR)} offset:512
    ds_read_b64_tr_b16 {v(t+4,2)}, {v(vUR)} offset:1024
    ds_read_b64_tr_b16 {v(t+6,2)}, {v(vUR)} offset:1536
    s_cmp_ge_u32 {s(sW)}, {s(sIt)}
    s_cbranch_scc1 L_tg1 ;!nd
    buffer_load_dwordx2 {v(t+24,2)}, {v(vL8)}, {WS}, {s(sTabLd)} offen sc1
    L_tg1:
    L_tg2:
    s_waitcnt lgkmcnt(0)
    ;@F
    ''')
    P=t
    fft_core(t, t+4, t+8, t+16, t+8, P)
    for r in range(4): a(f'v_bfi_b32 {v(P+r)}, 1, {s(sPh)}, {v(P+r)}')
    def lstores(fl):
        for r in range(4): a(f'buffer_store_dword {v(P+r)}, {v(vLst)}, {WS}, {s(sLst)} offen offset:{128*r} {fl}')
    TB=t+24
    W_=t+4
    a(f'''
    s_cmp_lg_u32 {s(sIt)}, 0
    s_cbranch_scc1 L_tab1e
    ''')
    lstores('')
    stamp()
    a(f'''
    s_branch L_pub
    L_tab1e:
    s_cmp_eq_u32 {s(sW)}, 0
    s_cbranch_scc1 L_tabw1
    s_branch L_tabbar
    L_tab2e:
    s_cmp_eq_u32 {s(sW)}, 0
    s_cbranch_scc1 L_tab
    s_branch L_tabbar
    L_tab:
    buffer_load_dwordx2 {v(TB,2)}, {v(vL8)}, {WS}, {s(sTabLd)} offen sc1
    L_tabw1:
    s_waitcnt vmcnt(0)
    v_cmp_ne_u32 vcc, {s(sTag)}, {v(TB)}
    ''')
    poll_branch('L_tab', cfg.slp_t, f'''s_cmp_lg_u32 {s(sIt)}, 0
        s_cselect_b32 {s(sT)}, 0, 1
        s_sub_u32 {s(sTry)}, {s(sTry)}, {s(sT)}
        s_cbranch_scc1 L_tab2''')
    a(f'''
    L_tabok:
    v_cmp_ne_u32 vcc, {s(sKey)}, {v(TB+1)}
    v_cmp_lt_u32 {s(sT,2)}, {s(sKey)}, {v(TB+1)}
    v_mov_b32 {v(TB)}, {L_FLAG}
    s_cmp_eq_u32 {s(sIt)}, 0
    s_cselect_b32 {s(sT)}, vcc_lo, {s(sT)}
    v_mov_b32 {v(TB+1)}, {s(sT)}
    ds_write_b32 {v(TB)}, {v(TB+1)}
    s_waitcnt lgkmcnt(0)
    s_barrier
    s_branch L_tabgot
    L_tabbar:
    v_mov_b32 {v(TB)}, {L_FLAG}
    s_barrier
    ds_read_b32 {v(TB+1)}, {v(TB)}
    s_waitcnt lgkmcnt(0)
    v_readfirstlane_b32 {s(sT)}, {v(TB+1)}
    L_tabgot:
    s_cmp_eq_u32 {s(sIt)}, 0
    s_cbranch_scc1 L_fastchk ;!nd
    s_mov_b32 {s(sT+9)}, 64
    s_cmp_lg_u32 {s(sT)}, 0
    s_cbranch_scc1 L_winback ;!nd
    L_pub:
    s_andn2_b32 {s(sT)}, {s(sM7FF)}, {s(sKey)}      ; idx
    s_lshr_b32 {s(sT+9)}, {s(sT)}, 8                ; s1
    s_bitcmp1_b32 {s(sT+9)}, 0
    s_cselect_b64 vcc, -1, 0
    s_lshl_b32 {s(sT+1)}, {s(sT+9)}, 3
    s_and_b32 {s(sT+1)}, {s(sT+1)}, 0x30
    v_cndmask_b32 {v(W_)}, {v(LNP)}, {v(LNP+2)}, vcc
    v_cndmask_b32 {v(W_+1)}, {v(LNP+1)}, {v(LNP+3)}, vcc
    v_and_b32 {v(W_+2)}, 0x3ff, {v(vXoff)}
    s_bfm_b64 exec, 16, {s(sT+1)}
    buffer_store_dwordx2 {v(W_,2)}, {v(W_+2)}, {WS}, {s(sSlot)} offen sc1
    s_cmp_lg_u32 {s(sW)}, 0
    s_cbranch_scc1 L_nohdr
    v_mov_b32 {v(W_+8)}, {s(sKey)}
    v_cndmask_b32 {v(W_+9)}, {v(MM)}, {v(MM+1)}, vcc
    v_cndmask_b32 {v(W_+10)}, {v(RS2)}, {v(RS2+1)}, vcc
    v_mov_b32 {v(W_+11)}, {s(sKey)}
    buffer_store_dwordx4 {v(W_+8,4)}, off, {WS}, {s(sSlot)} offset:3072 sc1
    buffer_store_dwordx4 {v(W_+8,4)}, off, {WS}, {s(sSlot)} offset:3200 sc1
    L_nohdr:
    ''')
    for c_ in range(4): a(f'v_cndmask_b32 {v(W_+4+c_)}, {v(X+2*c_)}, {v(X+2*c_+1)}, vcc')
    a(f'''
    v_lshlrev_b32 {v(W_+2)}, 1, {v(W_+2)}
    buffer_store_dwordx4 {v(W_+4,4)}, {v(W_+2)}, {WS}, {s(sSlot)} offen offset:1024 sc1
    s_mov_b64 exec, -1
    s_cmp_eq_u32 {s(sIt)}, 0
    s_cbranch_scc1 L_flag0
    L_winback:
    s_cmp_eq_u32 {s(sIt)}, 2
    s_cbranch_scc1 L_fin
    s_add_u32 {s(sSlot)}, {s(sSlot)}, {SLOTR}
    ''')
    lstores('')
    stamp()
    a(f'''
    s_waitcnt vmcnt(0)
    s_branch L_tabdone
    L_flag0:
    ;@F
    v_mov_b32 {v(t+22)}, {s(sTag)}
    v_mov_b32 {v(t+23)}, {s(sKey)}
    s_waitcnt vmcnt(0)
    ;@F
    s_cmp_eq_u32 {s(sW)}, 0
    s_barrier
    s_cbranch_scc0 L_tabbar
    s_mov_b64 exec, 1
    buffer_store_dwordx2 {v(t+22,2)}, off, {WS}, {s(sTabSt)}
    s_mov_b64 exec, -1
    s_branch L_tab
    L_fastchk:
    s_cmp_eq_u32 {s(sT)}, 0
    s_cselect_b32 {s(sFast)}, 1, 0
    L_tabdone:
    s_cmp_eq_u32 {s(sFast)}, 0
    s_cbranch_scc1 L_slow
    L_slowback:
    ;@F
    s_cmp_lt_u32 {s(sJ)}, 8
    s_cbranch_scc0 L_y
    s_branch L_yself
    L_y:
    buffer_load_dwordx4 {v(t,4)}, {v(vLld)}, {WS}, {s(sLld)} offen sc1
    s_waitcnt vmcnt(0)
    ds_write_b128 {v(vYIW)}, {v(t,4)}
    ''')
    phchk(range(t,t+4), t+8)
    poll_branch('L_y', cfg.slp_l, mask=True)
    a('L_yjoin:')
    stamp()
    a(f'''
    s_cmp_lg_u32 {s(sT+12)}, 0
    s_cbranch_scc1 L_noxf
    s_lshl_b32 {s(sT+12)}, {s(sX)}, 7
    s_add_u32 {s(sT+12)}, {s(sT+12)}, {TABG}
    v_lshrrev_b32 {v(t+8)}, 1, {v(vL8)}
    v_mov_b32 {v(t+9)}, {s(sTag)}
    s_mov_b32 exec_hi, 0
    buffer_store_dword {v(t+9)}, {v(t+8)}, {WS}, {s(sT+12)} offen sc1
    s_mov_b64 exec, -1
    L_noxf:
    s_cmp_eq_u32 {s(sIt)}, 0
    s_cbranch_scc1 {'L_g2d' if cfg.g2pos==5 else 'L_nohl'}
    v_and_b32 {v(BC)}, 7, {v(vLane)}
    v_lshlrev_b32 {v(BC)}, 12, {v(BC)}
    s_mov_b32 {s(sT+10)}, {SLOT}
    s_mov_b64 exec, 0xff
    buffer_load_dwordx4 {v(LNP,4)}, {v(BC)}, {WS}, {s(sT+10)} offen offset:3200 sc1
    s_mov_b64 exec, -1
    {'s_branch L_nohl' if cfg.g2pos==5 else ''}
    {'L_g2d:' if cfg.g2pos==5 else ''}
    {g2late() if cfg.g2pos==5 else ''}
    L_nohl:
    ''')
    A0,A1=t,t+4; P0,Q0,P1,Q1=t+8,t+12,t+16,t+20
    a(f'''
    s_waitcnt lgkmcnt(0)
    s_barrier
    ;@F
    ds_read_b64_tr_b16 {v(A0,2)}, {v(vYIR)}
    ds_read_b64_tr_b16 {v(A0+2,2)}, {v(vYIR)} offset:{16*YIS}
    ds_read_b64_tr_b16 {v(A1,2)}, {v(vYIR)} offset:8
    ds_read_b64_tr_b16 {v(A1+2,2)}, {v(vYIR)} offset:{16*YIS+8}
    s_add_u32 {s(sTabLd)}, {s(sTabLd)}, {ARGR}
    s_add_u32 {s(sTabSt)}, {s(sTabSt)}, {ARGR}
    s_waitcnt lgkmcnt(2)
    v_mfma_f32_16x16x32_f16 {v(P0,4)}, {v(A0,4)}, {v(YC,4)}, 0
    v_mfma_f32_16x16x32_f16 {v(Q0,4)}, {v(A0,4)}, {v(YS,4)}, 0
    s_waitcnt lgkmcnt(0)
    v_mfma_f32_16x16x32_f16 {v(P1,4)}, {v(A1,4)}, {v(YC,4)}, 0
    v_mfma_f32_16x16x32_f16 {v(Q1,4)}, {v(A1,4)}, {v(YS,4)}, 0
    ''')
    for P_,Q_ in ((P0,Q0),(P1,Q1)):
        for h in (0,2):
            a(f'v_pk_add_f32 {v(P_+h,2)}, {v(P_+h,2)}, {v(Q_+h,2)} op_sel:[0,1] op_sel_hi:[1,0] neg_hi:[0,1]')
    a(f'''
    v_cvt_pk_f16_f32 {v(t)}, {v(P0)}, {v(P0+1)}
    v_cvt_pk_f16_f32 {v(t+1)}, {v(P0+2)}, {v(P0+3)}
    v_cvt_pk_f16_f32 {v(t+2)}, {v(P1)}, {v(P1+1)}
    v_cvt_pk_f16_f32 {v(t+3)}, {v(P1+2)}, {v(P1+3)}
    ''')
    if cfg.gre:
        for r in range(4): a(f'v_bfi_b32 {v(t+r)}, 1, {s(sPh)}, {v(t+r)}')
    a(f'''
    ds_write_b128 {v(vYW)}, {v(t,4)}
    ;@F
    s_waitcnt lgkmcnt(0)
    s_barrier
    ;@F
    ds_read_b128 {v(t+4,4)}, {v(vYR)}
    s_cmp_lg_u32 {s(sIt)}, 0
    s_cbranch_scc1 L_hdr
    s_waitcnt lgkmcnt(0)
    buffer_store_dwordx4 {v(t+4,4)}, {v(vGst)}, {WS}, {s(sG0)} offen sc1
    ''')
    stamp()
    a(f'''
    {g2late() if cfg.g2pos==3 else ''}
    v_and_b32 {v(t+24)}, 7, {v(vLane)}
    v_lshlrev_b32 {v(t+24)}, 7, {v(t+24)}
    s_mov_b32 {s(sT+10)}, {TABG}
    v_mov_b32 {v(t+20)}, {s(sTag)}
    ''')
    a(f's_mov_b64 exec, 0xff\nbuffer_load_dword {v(t+20)}, {v(t+24)}, {WS}, {s(sT+10)} offen sc1\ns_mov_b64 exec, -1')
    xin_consts(t+8)
    a(';@F\nL_tg0w:\ns_waitcnt vmcnt(0)')
    a(f'v_cmp_ne_u32 vcc, {s(sTag)}, {v(t+20)}')
    a(f'''
    s_cbranch_vccnz L_tg0_r ;!nd
    ''')
    if cfg.g2pos==4: a(f'''
    buffer_load_dwordx4 {v(t,4)}, {v(vGld)}, {WS}, {s(sG0)} offen sc1
    buffer_load_dwordx4 {v(t+4,4)}, {v(vGld)}, {WS}, {s(sG4)} offen sc1
    {g2late()}
    s_cmp_lg_u32 {s(sMir)}, 0
    s_waitcnt vmcnt(1)
    s_branch L_gw2
    ''')
    else: a('s_branch L_g')
    a(f'''
    L_g:
    ''')
    C0,C1=t,t+4
    a(f'''
    buffer_load_dwordx4 {v(C0,4)}, {v(vGld)}, {WS}, {s(sG0)} offen sc1
    buffer_load_dwordx4 {v(C1,4)}, {v(vGld)}, {WS}, {s(sG4)} offen sc1
    L_gw:
    s_cmp_lg_u32 {s(sMir)}, 0
    s_waitcnt vmcnt(0)
    L_gw2:
    s_cbranch_scc1 L_xmir ;!nd
    ''')
    E0,E1=t+8,t+12
    a(f'''
    v_mfma_f32_16x16x16_f16 {v(E0,4)}, {v(XA,2)}, {v(C0,2)}, 0
    v_mfma_f32_16x16x16_f16 {v(E1,4)}, {v(XA,2)}, {v(C0+2,2)}, 0
    v_mfma_f32_16x16x16_f16 {v(E0,4)}, {v(XA+2,2)}, {v(C1,2)}, {v(E0,4)}
    v_mfma_f32_16x16x16_f16 {v(E1,4)}, {v(XA+2,2)}, {v(C1+2,2)}, {v(E1,4)}
    s_branch L_xjoin ;!nd
    L_xmir:
    ''')
    a.hist=[]
    a(f'''
    v_mfma_f32_16x16x16_f16 {v(E0,4)}, {v(XA,2)}, {v(C0+2,2)}, 0
    v_mfma_f32_16x16x16_f16 {v(E1,4)}, {v(XA,2)}, {v(C0,2)}, 0
    v_mfma_f32_16x16x16_f16 {v(E0,4)}, {v(XA+2,2)}, {v(C1+2,2)}, {v(E0,4)}
    v_mfma_f32_16x16x16_f16 {v(E1,4)}, {v(XA+2,2)}, {v(C1,2)}, {v(E1,4)}
    L_xjoin:
    ''')
    if cfg.gre: phchk(range(t,t+8), t+16)
    else: maxchk(range(t,t+8), t+16)
    poll_branch('L_g', cfg.slp_g, mask=True)
    stamp()
    a(f'''
    s_mov_b32 {s(sIt)}, 1
    s_mov_b32 {s(sPh)}, -1
    {f's_add_u32 {s(sG0)}, {s(sG0)}, {GR}' if not cfg.gre else ''}
    {f's_add_u32 {s(sG4)}, {s(sG4)}, {GR}' if not cfg.gre else ''}
    L_apply:
    s_cmp_eq_u32 {s(sNx)}, 0
    v_pk_fma_f32 {v(X,2)}, {v(E0,2)}, {v(vSc0,2)}, {v(X,2)}
    v_pk_fma_f32 {v(X+2,2)}, {v(E0+2,2)}, {s(sSc,2)}, {v(X+2,2)}
    v_pk_fma_f32 {v(X+4,2)}, {v(E1,2)}, {s(sSc,2)}, {v(X+4,2)}
    v_pk_fma_f32 {v(X+6,2)}, {v(E1+2,2)}, {s(sSc,2)}, {v(X+6,2)}
    s_cbranch_scc1 L_top ;!nd
    s_branch L_corr
    ''')
    a(f'''
    L_yself:
    buffer_load_dwordx4 {v(t,4)}, {v(vLld)}, {WS}, {s(sLld)} offen sc1
    buffer_load_dwordx4 {v(t+4,4)}, {v(vLldM)}, {WS}, {s(sLld)} offen sc1
    s_waitcnt vmcnt(0)
    ''')
    phchk(range(t,t+8), t+8)
    poll_branch('L_yself', cfg.slp_l, mask=True)
    a(f'''
    s_bitcmp1_b32 {s(sW)}, 0
    s_cbranch_scc1 L_yself4
    ''')
    for k in range(4): a(f'v_pk_add_f16 {v(t+k)}, {v(t+k)}, {v(t+7-k)} neg_hi:[0,1]')
    a(f'ds_write_b128 {v(vYIW)}, {v(t,4)}\ns_branch L_yjoin\nL_yself4:')
    for k in range(4): a(f'v_pk_add_f16 {v(t+k)}, {v(t+k)}, {v(t+7-k)} op_sel:[1,1] op_sel_hi:[0,0] neg_hi:[1,0]')
    a(f'ds_write_b128 {v(vYIW)}, {v(t,4)}\ns_branch L_yjoin')
    a(f'''
    L_s3w:
    v_pk_add_f32 {v(S3,2)}, {v(WV,2)}, {v(WV+2,2)}
    v_add_f32 {v(S3)}, {v(S3)}, {v(S3+1)}
    v_mov_b32 {v(S3+1)}, {v(S3)}
    s_branch L_s3ok
    L_it0:
    s_mov_b32 {s(sKey)}, {s(sXcc)}
    v_pk_mul_f32 {v(CC,2)}, {v(RS,2)}, {s(sC16,2)}
    v_mov_b32 {v(S1)}, 0x44000000
    v_pk_add_f32 {v(WV,2)}, {v(WV,2)}, {v(S3,2)} neg_lo:[0,1] neg_hi:[0,1]
    v_pk_add_f32 {v(WV+2,2)}, {v(WV+2,2)}, {v(S3,2)} neg_lo:[0,1] neg_hi:[0,1]
    v_pk_mul_f32 {v(WV,2)}, {v(WV,2)}, {v(S1,2)} op_sel_hi:[1,0]
    v_pk_mul_f32 {v(WV+2,2)}, {v(WV+2,2)}, {v(S1,2)} op_sel_hi:[1,0]
    ''')
    a('s_branch L_z')
    H=LNP
    sIdx=sT+11
    KA=BC+6; EK=BC+8; vYP=BC+9; SEL=BC+10; vDW,vDR=BC+12,BC+13
    YR=t+8; YL=t+12; YD=t+20
    gl=f'buffer_load_dwordx4 {v(C0,4)}, {v(vGld)}, {WS}, {s(sG0)} offen sc1\nbuffer_load_dwordx4 {v(C1,4)}, {v(vGld)}, {WS}, {s(sG4)} offen sc1'
    def hdrpoll(lbl, slp, issued=False, after=''):
        if not issued: a(f"""
        v_and_b32 {v(BC)}, 7, {v(vLane)}
        v_lshlrev_b32 {v(BC)}, 12, {v(BC)}
        """)
        a(f"""
        s_mov_b64 exec, 0xff
        {f's_waitcnt vmcnt({0 if cfg.gre else 1})' if issued else ''}
        {f's_branch {lbl}_c' if issued else ''}
        {lbl}:
        buffer_load_dwordx4 {v(H,4)}, {v(BC)}, {WS}, {s(sT+10)} offen offset:3200 sc1
        s_waitcnt vmcnt(0)
        {lbl}_c:
        """)
        maxchk(range(H,H+4), t+17)
        poll_branch(lbl, slp, skip=True)
        a('s_mov_b64 exec, -1')
        if after: a(after); stamp()
        a(f"""
        v_max_u32_dpp {v(H+3)}, {v(H)}, {v(H)} row_half_mirror {DPP}
        v_max_u32_dpp {v(H+3)}, {v(H+3)}, {v(H+3)} quad_perm:[1,0,3,2] {DPP}
        v_max_u32_dpp {v(H+3)}, {v(H+3)}, {v(H+3)} quad_perm:[2,3,0,1] {DPP}
        v_readfirstlane_b32 {s(sIdx)}, {v(H+3)}
        """)
    def owner():
        a(f"""
        s_sub_u32 {s(sT)}, 2047, {s(sIdx)}
        s_add_u32 {s(sT+1)}, {s(sT)}, 256
        v_cmp_eq_u32 vcc, {s(sT)}, {v(vInv)}
        v_cmp_eq_u32 {s(sT+2,2)}, {s(sT+1)}, {v(vInv)}
        v_cndmask_b32 {v(BC)}, 0, 1.0, vcc
        v_cndmask_b32 {v(BC+1)}, 0, 1.0, {s(sT+2,2)}
        """)
    gst=f's_waitcnt lgkmcnt(0)\nbuffer_store_dwordx4 {v(t+4,4)}, {v(vGst)}, {WS}, {s(sG0)} offen sc1'
    a(f'L_hdr:')
    if not cfg.gre: a(gst); stamp()
    hdrpoll('L_hdrp', 2, True, gst if cfg.gre else '')
    a(f"""
    v_and_b32 {v(vYP)}, 0x3ff, {v(vXoff)}
    v_lshlrev_b32 {v(t+16)}, 1, {v(vYP)}
    s_andn2_b32 {s(sIdx)}, {s(sM7FF)}, {s(sIdx)}
    s_and_b32 {s(sT)}, {s(sIdx)}, 7
    s_lshl_b32 {s(sT+1)}, {s(sT)}, 12
    s_add_u32 {s(sT+10)}, {s(sT+10)}, {s(sT+1)}
    buffer_load_dwordx4 {v(BC+2,4)}, {v(t+16)}, {WS}, {s(sT+10)} offen offset:1024 sc1
    v_readlane_b32 {s(sT+13)}, {v(H+1)}, {s(sT)}
    v_readlane_b32 {s(sT+14)}, {v(H+2)}, {s(sT)}
    v_mul_u32_u24 {v(t+17)}, {s(sIdx)}, {v(AD)}
    v_and_b32 {v(t+17)}, 0x7ff, {v(t+17)}
    v_cvt_f32_u32 {v(t+17)}, {v(t+17)}
    v_mul_f32 {v(t+17)}, {fbits(1/2048)}, {v(t+17)}
    v_cos_f32 {v(t+18)}, {v(t+17)}
    v_sin_f32 {v(t+19)}, {v(t+17)}
    v_and_b32 {v(t+17)}, 0x22, {v(vLane)}
    v_cvt_pk_f16_f32 {v(t+18)}, {v(t+18)}, {v(t+19)}
    v_cmp_eq_u32 vcc, 0, {v(t+17)}
    v_mov_b32 {v(KA)}, {s(sT+14)}
    v_mul_f32 {v(KA)}, {s(sC16)}, {v(KA)}
    v_cndmask_b32 {v(AD)}, 0, {v(t+18)}, vcc
    v_cmp_eq_u32 vcc, 2, {v(t+17)}
    v_mul_f32 {v(EK)}, {v(KA)}, {v(KA)}
    v_mul_f32 {v(EK)}, {s(sEps)}, {v(EK)}
    v_cndmask_b32 {v(AD+1)}, 0, {v(t+18)}, vcc
    """)
    owner()
    a(f"""
    v_lshlrev_b32 {v(t+17)}, 4, {v(vLane)}
    v_mov_b32 {v(t+18)}, 0x3f80
    v_and_b32 {v(t+17)}, 16, {v(t+17)}
    v_lshlrev_b32 {v(t+18)}, {v(t+17)}, {v(t+18)}
    v_and_b32 {v(t+17)}, 2, {v(vLane)}
    v_cmp_eq_u32 vcc, 0, {v(t+17)}
    v_lshl_add_u32 {v(vYP)}, {v(vQ)}, 10, {v(vYP)}
    s_lshl_b32 {s(sT+3)}, {s(sW)}, 8
    v_cndmask_b32 {v(SEL)}, 0, {v(t+18)}, vcc
    v_cndmask_b32 {v(SEL+1)}, {v(t+18)}, 0, vcc
    s_add_u32 {s(sT+3)}, {s(sT+3)}, {L_DH}
    v_lshl_add_u32 {v(vDR)}, {v(vN)}, 4, {s(sT+3)}
    v_and_b32 {v(t+17)}, 1, {v(vQ)}
    v_lshl_add_u32 {v(vDR)}, {v(t+17)}, 11, {v(vDR)}
    v_cmp_eq_u32 vcc, 0, {v(vQ)}
    v_add_u32 {v(vDW)}, {L_DH}, {v(vLst)}
    s_mov_b32 {s(sYo)}, {YP}
    s_lshl_b32 {s(sYh)}, {s(sX)}, 7
    s_add_u32 {s(sYh)}, {s(sYh)}, {YHINT}
    s_lshl_b32 {s(sSg)}, {s(sW)}, 30
    s_and_b32 {s(sSg)}, {s(sSg)}, {s(sTop)}
    s_xor_b32 {s(sSg)}, {s(sSg)}, {s(sDsc)}
    s_mov_b32 {s(sNx)}, 2
    v_cndmask_b32 {v(KA+1)}, 0, {v(KA)}, vcc
    s_waitcnt vmcnt(0)
    {gl if not cfg.hold else ''}
    L_basew:
    """)
    maxchk(range(BC+2,BC+6), t+17)
    a('s_cbranch_vccnz L_base_r ;!nd')
    for k in range(4): a(f'v_subrev_f32 {v(BC+2+k)}, {s(sT+13)}, {v(BC+2+k)}')
    for k in range(4): a(f'v_mul_f32 {v(BC+2+k)}, {v(KA)}, {v(BC+2+k)}')
    a(f"""
    s_branch {'L_ywait' if cfg.hold else 'L_gw'}
    L_corr:
    s_mov_b32 {s(sIt)}, 2
    s_mov_b32 {s(sNx)}, 0
    {'s_branch L_yc' if cfg.hold else ''}
    L_ywait:
    s_add_u32 {s(sT+2)}, {s(sYo)}, 4096
    s_cmp_lg_u32 {s(sW)}, 0
    s_cbranch_scc1 L_hintb
    s_movk_i32 {s(sTry)}, 500
    v_lshrrev_b32 {v(t)}, 1, {v(vL8)}
    """)
    if cfg.own: a(f"""
    s_cmp_eq_u32 {s(sIt)}, 3
    s_cbranch_scc1 L_hint
    s_lshl_b32 {s(sT)}, {s(sJ)}, 2
    v_mov_b32 {v(t)}, {s(sT)}
    """)
    a(f"""
    L_hint:
    buffer_load_dword {v(t+1)}, {v(t)}, {WS}, {s(sYh)} offen sc1
    s_waitcnt vmcnt(0)
    v_cmp_ne_u32 vcc, {s(sTag)}, {v(t+1)}
    """)
    poll_branch('L_hint', 1, giveup='L_hintb')
    if cfg.tim_y: a(f's_sleep {cfg.tim_y}')
    a(f"""
    L_hintb:
    s_barrier
    """)
    if cfg.hold: a(f"""
    s_cmp_eq_u32 {s(sIt)}, 3
    s_cbranch_scc1 L_yv3
    {gl}
    {f's_sleep {cfg.tim_gy}' if cfg.tim_gy else ''}
    buffer_load_dwordx2 {v(YD,2)}, {v(vYP)}, {WS}, {s(sYo)} offen sc1
    buffer_load_dwordx2 {v(YD+2,2)}, {v(vYP)}, {WS}, {s(sT+2)} offen sc1
    s_cmp_lg_u32 {s(sMir)}, 0
    s_waitcnt vmcnt(2)
    s_branch L_gw2
    L_yv3:
    {f's_sleep {cfg.tim_y3}' if cfg.tim_y3 else ''}
    s_branch L_yv
    """)
    a(f"""
    L_yv:
    buffer_load_dwordx2 {v(YD,2)}, {v(vYP)}, {WS}, {s(sYo)} offen sc1
    buffer_load_dwordx2 {v(YD+2,2)}, {v(vYP)}, {WS}, {s(sT+2)} offen sc1
    L_yc:
    s_waitcnt vmcnt(0)
    v_mfma_f32_16x16x16_bf16 {v(YR,4)}, {v(SEL,2)}, {v(YD,2)}, 0
    v_mfma_f32_16x16x16_bf16 {v(YR,4)}, {v(SEL,2)}, {v(YD+2,2)}, {v(YR,4)}
    """)
    maxchk(range(YD,YD+4), t+17)
    poll_branch('L_yv', 1, mask=True)
    stamp()
    own=[f'v_pk_fma_f32 {v(X,2)}, {v(BC,2)}, {v(YR,2)}, {v(X,2)} op_sel:[0,0,0] op_sel_hi:[1,0,1]',
         f'v_pk_fma_f32 {v(X+2,2)}, {v(BC,2)}, {v(YR,2)}, {v(X+2,2)} op_sel:[0,1,0] op_sel_hi:[1,1,1]',
         f'v_pk_fma_f32 {v(X+4,2)}, {v(BC,2)}, {v(YR+2,2)}, {v(X+4,2)} op_sel:[0,0,0] op_sel_hi:[1,0,1]',
         f'v_pk_fma_f32 {v(X+6,2)}, {v(BC,2)}, {v(YR+2,2)}, {v(X+6,2)} op_sel:[0,1,0] op_sel_hi:[1,1,1]']
    s1,s2=t+20,t+21
    a(f"""
    s_cmp_eq_u32 {s(sIt)}, 3
    s_cbranch_scc1 L_fin3
    L_pass:
    v_pk_fma_f32 {v(YL,2)}, {v(YR,2)}, {v(KA,2)}, {v(BC+2,2)} op_sel:[0,1,0]
    v_pk_fma_f32 {v(YL+2,2)}, {v(YR+2,2)}, {v(KA,2)}, {v(BC+4,2)} op_sel:[0,1,0]
    v_cvt_pk_f16_f32 {v(YL)}, {v(YL)}, {v(YL+1)}
    v_cvt_pk_f16_f32 {v(YL+1)}, {v(YL+2)}, {v(YL+3)}
    ds_write_b64 {v(vUW)}, {v(YL,2)}
    {own[0]}
    {own[1]}
    {own[2]}
    {own[3]}
    s_cmp_gt_u32 {s(sW)}, 3
    s_waitcnt lgkmcnt(0)
    s_barrier
    s_cbranch_scc1 L_dhb ;!nd
    ds_read_b64_tr_b16 {v(t+8,2)}, {v(vUR)}
    ds_read_b64_tr_b16 {v(t+10,2)}, {v(vUR)} offset:512
    v_mov_b32 {v(t+22)}, 0x3c003c00
    s_waitcnt lgkmcnt(0)
    ;@F
    """)
    XR=t+8; U_=t+12; V_=YC; PP=LNP
    Ur,Ui=U_,U_+4; Vr,Vi=V_,V_+4
    a(f"""
    v_mfma_f32_16x16x32_f16 {v(Ur,4)}, {v(XR,4)}, {v(B1C,4)}, 0
    v_mfma_f32_16x16x32_f16 {v(Ui,4)}, {v(XR,4)}, {v(B1N,4)}, 0
    v_dot2_f32_f16 {v(s1)}, {v(XR)}, {v(t+22)}, 0
    v_dot2_f32_f16 {v(s2)}, {v(XR)}, {v(XR)}, 0
    v_dot2_f32_f16 {v(s1)}, {v(XR+1)}, {v(t+22)}, {v(s1)}
    v_dot2_f32_f16 {v(s2)}, {v(XR+1)}, {v(XR+1)}, {v(s2)}
    v_dot2_f32_f16 {v(s1)}, {v(XR+2)}, {v(t+22)}, {v(s1)}
    v_dot2_f32_f16 {v(s2)}, {v(XR+2)}, {v(XR+2)}, {v(s2)}
    v_dot2_f32_f16 {v(s1)}, {v(XR+3)}, {v(t+22)}, {v(s1)}
    v_dot2_f32_f16 {v(s2)}, {v(XR+3)}, {v(XR+3)}, {v(s2)}
    v_pk_mul_f32 {v(Vi,2)}, {v(Ur,2)}, {v(TWS,2)}
    v_pk_mul_f32 {v(Vi+2,2)}, {v(Ur+2,2)}, {v(TWS+2,2)}
    v_pk_mul_f32 {v(Vr,2)}, {v(Ui,2)}, {v(TWS,2)}
    v_permlane32_swap_b32 {v(s1)}, {v(s2)}
    v_pk_mul_f32 {v(Vr+2,2)}, {v(Ui+2,2)}, {v(TWS+2,2)}
    v_add_f32 {v(s1)}, {v(s1)}, {v(s2)}
    v_pk_fma_f32 {v(Vr,2)}, {v(Ur,2)}, {v(TWC,2)}, {v(Vr,2)}
    v_pk_fma_f32 {v(Vi,2)}, {v(Ui,2)}, {v(TWC,2)}, {v(Vi,2)} neg_lo:[0,0,1] neg_hi:[0,0,1]
    v_add_f32_dpp {v(s1)}, {v(s1)}, {v(s1)} row_ror:8 {DPP}
    v_pk_fma_f32 {v(Vr+2,2)}, {v(Ur+2,2)}, {v(TWC+2,2)}, {v(Vr+2,2)}
    v_pk_fma_f32 {v(Vi+2,2)}, {v(Ui+2,2)}, {v(TWC+2,2)}, {v(Vi+2,2)} neg_lo:[0,0,1] neg_hi:[0,0,1]
    v_add_f32_dpp {v(s1)}, {v(s1)}, {v(s1)} row_ror:4 {DPP}
    v_cvt_pk_f16_f32 {v(PP)}, {v(Vr)}, {v(Vi)}
    v_cvt_pk_f16_f32 {v(PP+1)}, {v(Vr+1)}, {v(Vi+1)}
    v_add_f32_dpp {v(s1)}, {v(s1)}, {v(s1)} row_ror:2 {DPP}
    v_cvt_pk_f16_f32 {v(PP+2)}, {v(Vr+2)}, {v(Vi+2)}
    v_cvt_pk_f16_f32 {v(PP+3)}, {v(Vr+3)}, {v(Vi+3)}
    v_add_f32_dpp {v(s1)}, {v(s1)}, {v(s1)} row_ror:1 {DPP}
    v_mfma_f32_16x16x32_f16 {v(Ur,4)}, {v(A2R,4)}, {v(PP,4)}, 0
    v_mfma_f32_16x16x32_f16 {v(Ui,4)}, {v(A2I,4)}, {v(PP,4)}, 0
    v_add_f32_dpp {v(s1)}, {v(s1)}, {v(s1)} row_bcast:15 row_mask:0xa bank_mask:0xf
    v_mul_f32 {v(s1)}, {s(sK512)}, {v(s1)}
    v_readlane_b32 {s(sT+2)}, {v(s1)}, 63
    v_readlane_b32 {s(sT+1)}, {v(s1)}, 31
    v_add_f32 {v(s2)}, {s(sT+2)}, {v(EK)}
    v_mov_b32 {v(s1)}, {s(sT+1)}
    v_fma_f32 {v(s1)}, -{v(s1)}, {v(s1)}, {v(s2)}
    v_rsq_f32_e64 {v(s1)}, |{v(s1)}|
    v_mul_f32 {v(s1)}, {s(sSg)}, {v(s1)}
    """)
    for k in range(4): a(f'v_pk_mul_f32 {v(U_+2*k,2)}, {v(U_+2*k,2)}, {v(s1,2)} op_sel_hi:[1,0]')
    for r in range(4): a(f'v_cvt_pk_f16_f32 {v(PP+r)}, {v(Ur+r)}, {v(Ui+r)}')
    a(f"""
    ds_write2_b32 {v(vDW)}, {v(PP)}, {v(PP+1)} offset0:0 offset1:32
    ds_write2_b32 {v(vDW)}, {v(PP+2)}, {v(PP+3)} offset0:64 offset1:96
    s_waitcnt lgkmcnt(0)
    L_dhb:
    s_barrier
    ds_read_b128 {v(t+16,4)}, {v(vDR)}
    s_waitcnt lgkmcnt(0)
    v_mfma_f32_16x16x16_f16 {v(E0,4)}, {v(AD,2)}, {v(t+16,2)}, 0
    v_mfma_f32_16x16x16_f16 {v(E1,4)}, {v(AD,2)}, {v(t+18,2)}, 0
    s_nop 4
    s_branch L_apply ;!nd
    """)
    a('L_fin:')
    for rho in (0,1):
        for k in (0,1):
            a(f'v_cvt_pk_bf16_f32 {v(t+2*rho+k)}, {v(X+4*k+rho)}, {v(X+4*k+2+rho)}')
    a(f"""
    v_lshlrev_b32 {v(t+16)}, 1, {v(vQ)}
    v_mov_b32 {v(t+19)}, 0x200000
    s_sub_u32 {s(sT)}, {s(sT+9)}, 1
    v_cmp_eq_u32 vcc, {s(sT+9)}, {v(t+16)}
    v_cmp_eq_u32 {s(sT+2,2)}, {s(sT)}, {v(t+16)}
    v_cndmask_b32 {v(t+17)}, {v(vXoff)}, {v(t+19)}, vcc
    v_cndmask_b32 {v(t+18)}, {v(vXoff)}, {v(t+19)}, {s(sT+2,2)}
    buffer_store_dwordx2 {v(t,2)}, {v(t+17)}, {OS}, {s(sRow0)} offen sc1
    buffer_store_dwordx2 {v(t+2,2)}, {v(t+18)}, {OS}, {s(sRow1)} offen sc1
    v_cndmask_b32 {v(t+24)}, {v(t+19)}, {v(vXoff)}, vcc
    v_cndmask_b32 {v(t+25)}, {v(t+19)}, {v(vXoff)}, {s(sT+2,2)}
    s_or_b32 {s(sT)}, s2, {s(sW)}
    s_cbranch_scc1 L_fin2
    v_mov_b32 {v(t+20)}, {s(sTag)}
    buffer_store_dword {v(t+20)}, off, {WS}, 0 sc1
    L_fin2:
    s_cmp_eq_u32 {s(sT+9)}, 64
    s_cbranch_scc1 L_fin5
    s_mov_b32 {s(sT+10)}, {SLOT+SLOTR}
    s_sleep {cfg.tim_fh}
    """)
    hdrpoll('L_fhdr', 4)
    a(f"""
    s_cmp_lg_u32 {s(sIdx)}, {s(sKey)}
    s_cbranch_scc1 L_fin4
    s_andn2_b32 {s(sIdx)}, {s(sM7FF)}, {s(sIdx)}
    s_mov_b32 {s(sIt)}, 3
    s_add_u32 {s(sYo)}, {s(sYo)}, {YPR}
    s_add_u32 {s(sYh)}, {s(sYh)}, {YHR}
    """)
    owner()
    a('s_branch L_ywait\nL_fin3:')
    a('\n'.join(own))
    for rho in (0,1):
        for k in (0,1):
            a(f'v_cvt_pk_bf16_f32 {v(t+2*rho+k)}, {v(X+4*k+rho)}, {v(X+4*k+2+rho)}')
    a(f"""
    L_fin4:
    buffer_store_dwordx2 {v(t,2)}, {v(t+24)}, {OS}, {s(sRow0)} offen sc1
    buffer_store_dwordx2 {v(t+2,2)}, {v(t+25)}, {OS}, {s(sRow1)} offen sc1
    L_fin5:
    """)
    stamp(); dump_stamps()
    a('s_endpgm')
    a(f"""
    L_base_r:
    s_sub_u32 {s(sCnt)}, {s(sCnt)}, 1
    s_cbranch_scc1 L_end
    s_sleep 2
    buffer_load_dwordx4 {v(BC+2,4)}, {v(t+16)}, {WS}, {s(sT+10)} offen offset:1024 sc1
    s_waitcnt vmcnt(0)
    s_branch L_basew
    """)
    def pub2():
        a(f'''
        v_mov_b32 {v(t+4)}, {s(sTag)}
        v_mov_b32 {v(t+5)}, {s(sXcc)}
        s_add_u32 {s(sT)}, {s(sTabSt)}, {TAB2-TABL}
        buffer_store_dwordx2 {v(t+4,2)}, off, {WS}, {s(sT)} sc1
        ''')
    a(f'''
    L_tabst_slow:
    buffer_store_dwordx2 {v(K,2)}, off, {WS}, {s(sTabSt)} sc1
    s_branch L_tabst_back
    L_tg0_r:
    s_sub_u32 {s(sCnt)}, {s(sCnt)}, 1
    s_cbranch_scc1 L_end
    s_sleep 2
    ''')
    a(f's_mov_b64 exec, 0xff\nbuffer_load_dword {v(t+20)}, {v(t+24)}, {WS}, {s(sT+10)} offen sc1\ns_mov_b64 exec, -1')
    a('s_branch L_tg0w\nL_tab2:')
    pub2()
    a(f'''
    s_add_u32 {s(sT+1)}, {s(sTabLd)}, {TAB2-TABL}
    L_tab2p:
    buffer_load_dwordx2 {v(TB,2)}, {v(vL8)}, {WS}, {s(sTabLd)} offen sc1
    buffer_load_dwordx2 {v(t+6,2)}, {v(vL8)}, {WS}, {s(sT+1)} offen sc1
    s_waitcnt vmcnt(0)
    v_cmp_eq_u32 vcc, {s(sTag)}, {v(TB)}
    v_cndmask_b32 {v(TB)}, {v(t+6)}, {v(TB)}, vcc
    v_cndmask_b32 {v(TB+1)}, {v(t+7)}, {v(TB+1)}, vcc
    v_cmp_ne_u32 vcc, {s(sTag)}, {v(TB)}
    ''')
    poll_branch('L_tab2p', 4)
    a(f'''
    s_branch L_tabok
    L_slow:
    s_cmp_lg_u32 {s(sIt)}, 0
    s_cbranch_scc1 L_slow1
    ''')
    pub2()
    a('L_slow1:')
    lstores('sc1')
    a(f'''
    s_waitcnt vmcnt(0)
    s_barrier
    s_add_u32 {s(sT)}, {s(sTabSt)}, {SLOWF-TABL}
    s_add_u32 {s(sT+1)}, {s(sTabLd)}, {SLOWF-TABL}
    v_mov_b32 {v(t+4)}, {s(sTag)}
    s_cmp_lg_u32 {s(sW)}, 0
    s_cbranch_scc1 L_slowp
    buffer_store_dword {v(t+4)}, off, {WS}, {s(sT)} sc1
    L_slowp:
    buffer_load_dword {v(t+5)}, {v(vL8)}, {WS}, {s(sT+1)} offen sc1
    s_waitcnt vmcnt(0)
    v_cmp_ne_u32 vcc, {s(sTag)}, {v(t+5)}
    ''')
    poll_branch('L_slowp', 2)
    a('s_branch L_slowback')

def hint_store(vreg, soff, lbl):
    a(f'''
    s_mov_b64 exec, 1
    s_cmp_eq_u32 {s(sFast)}, 0
    s_cbranch_scc1 {lbl}_s
    buffer_store_dword {v(vreg)}, off, {WS}, {s(soff)}
    s_branch {lbl}_d
    {lbl}_s:
    buffer_store_dword {v(vreg)}, off, {WS}, {s(soff)} sc1
    {lbl}_d:
    s_mov_b64 exec, -1
    ''')

def ffn():
    WA=4; WD=20; t=40
    vXL=24; vXW=25; vXR=26; vPS=27; vPL=28; vHW=29; vHR=30; vDP=31; vTag=32; vSig=34; vFl=35
    sI=sJ; sRnd=sIt; sPo=sLst; sPs=sLld
    F_W=0; TS=4096+64; F_X=0x4400; F_KEY=0x4D00; F_H=0x4E00; F_D=0x5200; F_WD=0x5400
    a(f"""
    L_ffn:
    s_and_b32 {s(sI)}, {s(sJ)}, 31
    s_min_u32 {s(sT+2)}, {s(sI)}, 27
    s_and_b32 {s(sT)}, {s(sT+2)}, 3
    s_lshl_b32 {s(sT+8)}, {s(sT)}, 8              ; 256*ks
    s_mul_i32 {s(sT+9)}, {s(sT)}, {28*64}
    s_mul_i32 {s(sT)}, {s(sT)}, {128*3584}
    s_mul_i32 {s(sT+1)}, {s(sX)}, 448
    s_add_u32 {s(sT)}, {s(sT)}, {s(sT+1)}
    s_lshr_b32 {s(sT+2)}, {s(sT+2)}, 2
    s_lshl_b32 {s(sT+3)}, {s(sT+2)}, 6
    s_add_u32 {s(sT)}, {s(sT)}, {s(sT+3)}
    v_lshrrev_b32 {v(t+3)}, 2, v0
    v_mul_u32_u24 {v(t)}, 3584, {v(t+3)}
    v_and_b32 {v(t+4)}, 3, v0
    v_lshl_add_u32 {v(t)}, {v(t+4)}, 4, {v(t)}
    v_add_u32 {v(t)}, {s(sT)}, {v(t)}
    s_mul_i32 {s(sT)}, {s(sX)}, {224*1024}
    s_lshl_b32 {s(sT+1)}, {s(sI)}, 5
    s_add_u32 {s(sT)}, {s(sT)}, {s(sT+1)}
    v_lshrrev_b32 {v(t+1)}, 1, v0
    v_min_u32 {v(t+1)}, 223, {v(t+1)}
    v_lshlrev_b32 {v(t+1)}, 10, {v(t+1)}
    v_and_b32 {v(t+2)}, 1, v0
    v_lshl_add_u32 {v(t+1)}, {v(t+2)}, 4, {v(t+1)}
    v_add_u32 {v(t+1)}, {s(sT)}, {v(t+1)}
    s_add_u32 {s(sT+10)}, {s(sTabLd)}, {FTAB-TABL}
    s_waitcnt lgkmcnt(0)
    {f'v_lshlrev_b32 {v(T+25)}, {cfg.tlb}, v0' if cfg.tlb else ''}
    {f'buffer_load_dword {v(T+21)}, {v(T+25)}, {WS}, 0 offen sc1' if cfg.tlb else ''}
    {f'buffer_load_dword {v(T+21)}, {v(T+25)}, {OS}, 0 offen sc1' if cfg.tlb else ''}
    {f's_sleep {cfg.fdelay}' if cfg.fdelay else ''}
    {f'global_load_dwordx4 {v(T+8,4)}, {v(t)}, s[18:19]' if cfg.wdpos<2 else f'v_mov_b32 {v(T+24)}, {v(t)}'}
    {f'global_load_dwordx4 {v(T+12,4)}, {v(t)}, s[20:21]' if cfg.wdpos<2 else ''}
    {f'global_load_dwordx4 {v(T+16,4)}, {v(t+1)}, s[22:23]' if cfg.wdpos==0 else f'v_mov_b32 {v(T+23)}, {v(t+1)}'}
    buffer_load_dword {v(T+20)}, off, {WS}, 0 sc1
    buffer_load_dword {v(T+21)}, {v(vL8)}, {WS}, {s(sT+10)} offen sc1
    v_mul_u32_u24 {v(T+22)}, {TS}, {v(t+4)}
    v_lshl_add_u32 {v(T+22)}, {v(t+3)}, 5, {v(T+22)}
    v_lshlrev_b32 {v(t+5)}, 4, {v(vN)}
    s_and_b32 {s(sT)}, {s(sW)}, 1
    s_lshl_b32 {s(sT)}, {s(sT)}, 2
    v_add_u32 {v(t+6)}, {s(sT)}, {v(vQ)}
    v_lshl_add_u32 {v(vXL)}, {v(t+6)}, 12, {v(t+5)}
    v_add_u32 {v(vXL)}, {s(sT+8)}, {v(vXL)}
    v_mul_u32_u24 {v(vXW)}, 272, {v(t+6)}
    v_add_u32 {v(vXW)}, {v(vXW)}, {v(t+5)}
    v_and_b32 {v(t+6)}, 7, {v(vLane)}
    v_mul_u32_u24 {v(vXR)}, 272, {v(t+6)}
    v_lshl_add_u32 {v(vXR)}, {v(vQ)}, 4, {v(vXR)}
    s_cmp_lg_u32 {s(sW)}, 6
    s_cbranch_scc1 L_fa1
    v_lshlrev_b32 {v(vXL)}, 12, {v(t+6)}
    L_fa1:
    s_lshl2_add_u32 {s(sT)}, {s(sT+2)}, {s(sW)}
    s_lshl_b32 {s(sT)}, {s(sT)}, 6
    s_add_u32 {s(sT)}, {s(sT)}, {s(sT+9)}
    v_lshl_add_u32 {v(vPS)}, {v(vN)}, 2, {s(sT)}
    s_lshl_b32 {s(sT)}, {s(sW)}, 8
    v_mul_u32_u24 {v(vPL)}, 1792, {v(vQ)}
    v_add3_u32 {v(vPL)}, {v(vPL)}, {v(t+5)}, {s(sT)}
    s_lshl_b32 {s(sT)}, {s(sW)}, 7
    s_add_u32 {s(sT)}, {s(sT)}, {F_H}
    v_lshl_add_u32 {v(vHR)}, {v(vQ)}, 4, {s(sT)}
    v_and_b32 {v(t+6)}, 12, {v(vN)}
    v_lshl_add_u32 {v(vHW)}, {v(t+6)}, 2, {s(sT)}
    v_and_b32 {v(t+6)}, 1, {v(vN)}
    v_lshl_add_u32 {v(vHW)}, {v(t+6)}, 3, {v(vHW)}
    v_and_b32 {v(t+6)}, 2, {v(vN)}
    v_lshl_add_u32 {v(vHW)}, {v(t+6)}, 5, {v(vHW)}
    v_and_b32 {v(t+6)}, 2, {v(vQ)}
    v_add_u32 {v(vHW)}, {v(vHW)}, {v(t+6)}
    v_and_b32 {v(t+6)}, 1, {v(vQ)}
    v_lshl_add_u32 {v(vHW)}, {v(t+6)}, 2, {v(vHW)}
    s_lshl_b32 {s(sT)}, {s(sW)}, 2
    s_add_u32 {s(sT)}, {s(sT)}, {F_D}
    v_lshl_add_u32 {v(vDP)}, {v(vN)}, 5, {s(sT)}
    v_mov_b32 {v(vFl)}, {F_KEY}
    v_mov_b32 {v(vTag)}, 0
    s_mov_b32 {s(sFast)}, 0
    s_mov_b32 {s(sRnd)}, 2
    s_mov_b32 {s(sPo)}, {WSSZ}
    s_mov_b32 {s(sYo)}, {WSSZ}
    s_mov_b32 {s(sYh)}, {WSSZ}
    {'s_branch L_fb2' if cfg.dry else ''}
    L_finit:
    s_mov_b32 {s(sRnd)}, 0
    s_mov_b32 {s(sSlot)}, {SLOT}
    s_lshl_b32 {s(sPo)}, {s(sX)}, 13
    s_add_u32 {s(sPo)}, {s(sPo)}, {PART}
    s_lshl_b32 {s(sYo)}, {s(sX)}, 10
    s_lshl_b32 {s(sT)}, {s(sI)}, 5
    s_add_u32 {s(sYo)}, {s(sYo)}, {s(sT)}
    s_add_u32 {s(sYo)}, {s(sYo)}, {YP}
    s_lshl_b32 {s(sYh)}, {s(sX)}, 7
    s_lshl2_add_u32 {s(sYh)}, {s(sI)}, {s(sYh)}
    s_add_u32 {s(sYh)}, {s(sYh)}, {YHINT}
    s_lshl_b32 {s(sT)}, {s(sW)}, 10
    v_lshl_add_u32 {v(t)}, {v(vLane)}, 4, {s(sT)}
    v_lshl_add_u32 {v(t+1)}, {v(vQ)}, 8, {s(sT)}
    v_lshl_add_u32 {v(t+1)}, {v(vN)}, 3, {v(t+1)}
    s_and_b32 {s(sT)}, {s(sW)}, 3
    s_mul_i32 {s(sT)}, {s(sT)}, {TS}
    v_lshl_add_u32 {v(t+2)}, {v(vQ)}, 8, {s(sT)}
    v_lshl_add_u32 {v(t+2)}, {v(vN)}, 3, {v(t+2)}
    v_mov_b32 {v(vTag+1)}, {s(sXcc)}
    s_lshl3_add_u32 {s(sT+1)}, {s(sI)}, {s(sT+10)}
    s_waitcnt vmcnt(0)
    v_add_u32 {v(vTag)}, 1, {v(T+20)}
    ds_write_b128 {v(T+22)}, {v(T+8,4)}
    ds_write_b128 {v(T+22)}, {v(T+12,4)} offset:16
    {f'ds_write_b128 {v(t)}, {v(T+16,4)} offset:{F_WD}' if cfg.wdpos==0 else ''}
    v_readfirstlane_b32 {s(sTag)}, {v(vTag)}
    s_cmp_lg_u32 {s(sW)}, 0
    s_cbranch_scc1 L_fi1
    s_mov_b64 exec, 1
    buffer_store_dwordx2 {v(vTag,2)}, off, {WS}, {s(sT+1)}
    s_mov_b64 exec, -1
    L_fi1:
    s_waitcnt lgkmcnt(0)
    s_barrier
    """)
    if cfg.stamps: a(f's_mov_b32 {s(sStampI)}, 0')
    stamp()
    for k in range(4):
        a(f'ds_read_b64_tr_b16 {v(WA+4*k,2)}, {v(t+2)} offset:{1024*k}')
        a(f'ds_read_b64_tr_b16 {v(WA+4*k+2,2)}, {v(t+2)} offset:{1024*k+128}')
    a(f"""
    {f'ds_read_b64_tr_b16 {v(WD,2)}, {v(t+1)} offset:{F_WD}' if cfg.wdpos==0 else ''}
    {f'ds_read_b64_tr_b16 {v(WD+2,2)}, {v(t+1)} offset:{F_WD+128}' if cfg.wdpos==0 else ''}
    s_cmp_lg_u32 {s(sW)}, 0
    s_cbranch_scc1 L_fi3
    s_movk_i32 {s(sTry)}, 80
    L_fl:
    buffer_load_dwordx2 {v(t+4,2)}, {v(vL8)}, {WS}, {s(sTabLd)} offen sc1
    buffer_load_dwordx2 {v(t+6,2)}, {v(vL8)}, {WS}, {s(sT+10)} offen sc1
    s_waitcnt vmcnt(0)
    v_cmp_ne_u32 vcc, {s(sTag)}, {v(t+4)}
    v_cmp_ne_u32 {s(sT,2)}, {s(sTag)}, {v(t+6)}
    s_or_b64 vcc, vcc, {s(sT,2)}
    """)
    poll_branch('L_fl', 4, giveup='L_fslowtab', skip=True)
    a(f"""
    v_cmp_ne_u32 vcc, {s(sXcc)}, {v(t+5)}
    v_cmp_ne_u32 {s(sT,2)}, {s(sXcc)}, {v(t+7)}
    s_or_b64 vcc, vcc, {s(sT,2)}
    s_cbranch_vccnz L_fslowtab
    s_mov_b32 {s(sFast)}, 1
    v_and_b32 {v(t+4)}, 1, {v(vQ)}
    v_lshlrev_b32 {v(t+4)}, 16, {v(t+4)}
    v_lshl_add_u32 {v(t+4)}, {v(vN)}, 4, {v(t+4)}
    s_lshl_b32 {s(sT)}, {s(sI)}, 8
    s_add_u32 {s(sT)}, {s(sT)}, {s(sPo)}
    buffer_load_dword {v(t+5)}, {v(t+4)}, {WS}, {s(sT)} offen sc1
    L_fi2:
    v_mov_b32 {v(t+6)}, {s(sFast)}
    ds_write_b32 {v(vFl)}, {v(t+6)} offset:4
    L_fi3:
    s_waitcnt vmcnt(0) lgkmcnt(0)
    s_barrier
    ds_read_b32 {v(t+6)}, {v(vFl)} offset:4
    s_waitcnt lgkmcnt(0)
    v_readfirstlane_b32 {s(sFast)}, {v(t+6)}
    """)
    if cfg.wdpos==2:
        a(f"""
        {f's_sleep {cfg.gdelay}' if cfg.gdelay else ''}
        global_load_dwordx4 {v(T+8,4)}, {v(T+24)}, s[18:19]
        global_load_dwordx4 {v(T+12,4)}, {v(T+24)}, s[20:21]
        global_load_dwordx4 {v(T+16,4)}, {v(T+23)}, s[22:23]
        s_waitcnt vmcnt(0)
        ds_write_b128 {v(T+22)}, {v(T+8,4)}
        ds_write_b128 {v(T+22)}, {v(T+12,4)} offset:16
        ds_write_b128 {v(t)}, {v(T+16,4)} offset:{F_WD}
        s_waitcnt lgkmcnt(0)
        s_barrier
        """)
        for k in range(4):
            a(f'ds_read_b64_tr_b16 {v(WA+4*k,2)}, {v(t+2)} offset:{1024*k}')
            a(f'ds_read_b64_tr_b16 {v(WA+4*k+2,2)}, {v(t+2)} offset:{1024*k+128}')
        a(f"""
        ds_read_b64_tr_b16 {v(WD,2)}, {v(t+1)} offset:{F_WD}
        ds_read_b64_tr_b16 {v(WD+2,2)}, {v(t+1)} offset:{F_WD+128}
        s_waitcnt lgkmcnt(0)
        """)
    if cfg.wdpos==1: a(f"""
    {f's_sleep {cfg.gdelay}' if cfg.gdelay else ''}
    global_load_dwordx4 {v(T+16,4)}, {v(T+23)}, s[22:23]
    s_waitcnt vmcnt(0)
    ds_write_b128 {v(t)}, {v(T+16,4)} offset:{F_WD}
    ds_read_b64_tr_b16 {v(WD,2)}, {v(t+1)} offset:{F_WD}
    ds_read_b64_tr_b16 {v(WD+2,2)}, {v(t+1)} offset:{F_WD+128}
    s_waitcnt lgkmcnt(0)
    """)
    a(f"""
    L_frnd:
    s_add_u32 {s(sTabLd)}, {s(sTabLd)}, {ARGR}
    s_cmp_lg_u32 {s(sW)}, 0
    s_cbranch_scc1 L_fb1
    s_cmp_eq_u32 {s(sFast)}, 0
    s_cbranch_scc1 L_fb1
    L_ftrig:
    buffer_load_dword {v(t)}, {v(vL8)}, {WS}, {s(sTabLd)} offen sc1
    s_waitcnt vmcnt(0)
    v_cmp_ne_u32 vcc, {s(sTag)}, {v(t)}
    """)
    poll_branch('L_ftrig', cfg.slp_f)
    stamp()
    a(f"""
    s_sleep {cfg.tim_arg}
    L_fb1:
    s_sub_u32 {s(sT)}, {s(sW)}, 4
    s_cmp_lt_u32 {s(sT)}, 2
    s_barrier
    s_cbranch_scc1 L_fx
    s_cmp_lg_u32 {s(sW)}, 6
    s_cbranch_scc1 L_fb2
    s_mov_b64 exec, 0xff
    L_fhd:
    buffer_load_dword {v(t)}, {v(vXL)}, {WS}, {s(sSlot)} offen offset:3072 sc1
    s_waitcnt vmcnt(0)
    v_cmp_eq_u32 vcc, -1, {v(t)}
    """)
    poll_branch('L_fhd', 2, skip=True)
    a(f"""
    v_max_u32_dpp {v(t)}, {v(t)}, {v(t)} row_half_mirror {DPP}
    v_max_u32_dpp {v(t)}, {v(t)}, {v(t)} quad_perm:[1,0,3,2] {DPP}
    v_max_u32_dpp {v(t)}, {v(t)}, {v(t)} quad_perm:[2,3,0,1] {DPP}
    ds_write_b32 {v(vFl)}, {v(t)}
    s_mov_b64 exec, -1
    s_branch L_fb2
    L_fx:
    buffer_load_dwordx4 {v(t,4)}, {v(vXL)}, {WS}, {s(sSlot)} offen sc1
    s_waitcnt vmcnt(0)
    ds_write_b128 {v(vXW)}, {v(t,4)} offset:{F_X}
    """)
    maxchk(range(t,t+4), t+4)
    poll_branch('L_fx', 2, mask=True)
    Dd=t+16
    a(f"""
    L_fb2:
    s_cmp_gt_u32 {s(sW)}, 3
    s_waitcnt lgkmcnt(0)
    s_barrier
    s_cbranch_scc1 L_fnoa
    ds_read_b32 {v(t+20)}, {v(vFl)}
    """)
    for k in range(4): a(f'ds_read_b128 {v(t+4*k,4)}, {v(vXR)} offset:{F_X+64*k}')
    stamp()
    a(f"""
    s_cmp_lt_u32 {s(sI)}, 28
    s_cselect_b32 {s(sPs)}, {s(sPo)}, {WSSZ}
    s_waitcnt lgkmcnt(3)
    v_mfma_f32_16x16x32_bf16 {v(Dd,4)}, {v(t,4)}, {v(WA,4)}, 0
    v_readfirstlane_b32 {s(sKey)}, {v(t+20)}
    s_waitcnt lgkmcnt(2)
    v_mfma_f32_16x16x32_bf16 {v(Dd,4)}, {v(t+4,4)}, {v(WA+4,4)}, {v(Dd,4)}
    s_bitcmp0_b32 {s(sKey)}, 0
    s_cselect_b64 vcc, -1, 0
    s_waitcnt lgkmcnt(1)
    v_mfma_f32_16x16x32_bf16 {v(Dd,4)}, {v(t+8,4)}, {v(WA+8,4)}, {v(Dd,4)}
    s_bitcmp0_b32 {s(sKey)}, 1
    s_cselect_b64 {s(sT+2,2)}, -1, 0
    s_waitcnt lgkmcnt(0)
    v_mfma_f32_16x16x32_bf16 {v(Dd,4)}, {v(t+12,4)}, {v(WA+12,4)}, {v(Dd,4)}
    s_andn2_b32 {s(sT)}, 4, {s(sKey)}
    s_lshl_b32 {s(sT)}, {s(sT)}, 2
    s_bfm_b64 exec, 16, {s(sT)}
    s_cmp_eq_u32 {s(sFast)}, 0
    v_cndmask_b32 {v(Dd)}, {v(Dd)}, {v(Dd+1)}, vcc
    v_cndmask_b32 {v(Dd+2)}, {v(Dd+2)}, {v(Dd+3)}, vcc
    v_cndmask_b32 {v(Dd)}, {v(Dd)}, {v(Dd+2)}, {s(sT+2,2)}
    s_cbranch_scc1 L_fps_s ;!nd
    buffer_store_dword {v(Dd)}, {v(vPS)}, {WS}, {s(sPs)} offen
    L_fps_d:
    s_mov_b64 exec, -1
    s_cmp_eq_u32 {s(sRnd)}, 2
    s_cbranch_scc1 L_fpok
    s_waitcnt vmcnt(0)
    s_branch L_fp
    L_fps_s:
    buffer_store_dword {v(Dd)}, {v(vPS)}, {WS}, {s(sPs)} offen sc1
    s_branch L_fps_d
    L_fnoa:
    s_cmp_eq_u32 {s(sW)}, 7
    s_cbranch_scc1 L_f7
    s_cmp_eq_u32 {s(sRnd)}, 2
    s_cbranch_scc1 L_fpok
    s_sleep {cfg.tim_p}
    s_branch L_fp
    L_fp:
    buffer_load_dwordx4 {v(t,4)}, {v(vPL)}, {WS}, {s(sPo)} offen sc1
    s_waitcnt vmcnt(0)
    """)
    maxchk(range(t,t+4), t+4)
    poll_branch('L_fp', cfg.slp_p, mask=True)
    stamp()
    a(f"""
    L_fpok:
    v_permlane32_swap_b32 {v(t)}, {v(t+1)}
    v_permlane32_swap_b32 {v(t+2)}, {v(t+3)}
    v_add_f32 {v(t)}, {v(t)}, {v(t+1)}
    v_add_f32 {v(t+2)}, {v(t+2)}, {v(t+3)}
    v_permlane16_swap_b32 {v(t)}, {v(t+2)}
    v_add_f32 {v(t)}, {v(t)}, {v(t+2)}
    v_mul_f32 {v(t+1)}, 0xbfb8aa3b, {v(t)}
    v_exp_f32 {v(t+1)}, {v(t+1)}
    v_mul_f32_dpp {v(t+2)}, {v(t)}, {v(t)} quad_perm:[2,3,0,1] {DPP}
    v_add_f32 {v(t+1)}, 1.0, {v(t+1)}
    v_rcp_f32 {v(t+1)}, {v(t+1)}
    v_mul_f32 {v(t+1)}, {v(t+1)}, {v(t+2)}
    v_cvt_pk_bf16_f32 {v(t+1)}, {v(t+1)}, {v(t+1)}
    ds_write_b16 {v(vHW)}, {v(t+1)}
    ds_read_b128 {v(t+4,4)}, {v(vHR)}
    """)
    if cfg.eh:
        a(f's_cmp_lg_u32 {s(sW)}, 5\ns_cbranch_scc1 L_fyh_d')
        hint_store(vTag, sYh, 'L_fyh')
    a(f"""
    s_waitcnt lgkmcnt(0)
    v_mfma_f32_16x16x32_bf16 {v(t+8,4)}, {v(t+4,4)}, {v(WD,4)}, 0
    s_mov_b64 exec, 0xffff
    ds_write_b32 {v(vDP)}, {v(t+8)}
    s_mov_b64 exec, -1
    s_waitcnt lgkmcnt(0)
    s_barrier
    L_fnext:
    """)
    stamp()
    a(f"""
    s_cmp_eq_u32 {s(sRnd)}, 1
    s_cbranch_scc1 L_fend
    s_cmp_eq_u32 {s(sRnd)}, 2
    s_cbranch_scc1 L_finit
    """)
    if cfg.wb==1: a(f"""
    s_cmp_lg_u32 {s(sI)}, 28
    s_cbranch_scc1 L_nwb
    s_cmp_lg_u32 {s(sW)}, 3
    s_cbranch_scc1 L_nwb
    s_sleep {cfg.wbd}
    buffer_wbl2 sc1
    L_nwb:
    """)
    a(f"""
    s_mov_b32 {s(sRnd)}, 1
    s_add_u32 {s(sSlot)}, {s(sSlot)}, {SLOTR}
    s_add_u32 {s(sPo)}, {s(sPo)}, {PARTR}
    s_add_u32 {s(sYo)}, {s(sYo)}, {YPR}
    s_add_u32 {s(sYh)}, {s(sYh)}, {YHR}
    s_branch L_frnd
    L_f7:
    ds_read_b32 {v(t+20)}, {v(vFl)}
    v_mov_b32 {v(vSig)}, 0xbfb8aa3b
    v_add_u32 {v(t+8)}, -28, {v(vDP)}
    v_lshlrev_b32 {v(t+9)}, 1, {v(vN)}
    s_waitcnt lgkmcnt(0)
    v_readfirstlane_b32 {s(sKey)}, {v(t+20)}
    s_ashr_i32 {s(sT)}, {s(sKey)}, 31
    s_orn2_b32 {s(sT)}, 0x80000000, {s(sT)}
    s_xor_b32 {s(sT)}, {s(sT)}, {s(sKey)}
    v_mul_f32 {v(vSig)}, {s(sT)}, {v(vSig)}
    v_exp_f32 {v(vSig)}, {v(vSig)}
    v_add_f32 {v(vSig)}, 1.0, {v(vSig)}
    v_rcp_f32 {v(vSig)}, {v(vSig)}
    s_barrier
    ds_read_b128 {v(t,4)}, {v(t+8)}
    ds_read_b96 {v(t+4,3)}, {v(t+8)} offset:16
    s_waitcnt lgkmcnt(1)
    v_pk_add_f32 {v(t,2)}, {v(t,2)}, {v(t+2,2)}
    v_add_f32 {v(t)}, {v(t)}, {v(t+1)}
    s_waitcnt lgkmcnt(0)
    v_add_f32 {v(t+4)}, {v(t+4)}, {v(t+5)}
    v_add_f32 {v(t)}, {v(t)}, {v(t+6)}
    v_add_f32 {v(t)}, {v(t)}, {v(t+4)}
    v_mul_f32 {v(t)}, {v(t)}, {v(vSig)}
    v_mov_b32_dpp {v(t+1)}, {v(t)} quad_perm:[1,1,3,3] {DPP}
    s_mov_b64 exec, 0x5555
    v_cvt_pk_bf16_f32 {v(t)}, {v(t)}, {v(t+1)}
    buffer_store_dword {v(t)}, {v(t+9)}, {WS}, {s(sYo)} offen sc1
    """)
    if cfg.eh: a('s_mov_b64 exec, -1')
    else: hint_store(vTag, sYh, 'L_fyh')
    a(f"""
    s_branch L_fnext
    L_fslowtab:
    v_and_b32 {v(t+16)}, 7, {v(vLane)}
    v_lshlrev_b32 {v(t+16)}, 7, {v(t+16)}
    s_mov_b32 {s(sT+10)}, {TABG}
    L_ftab2:
    buffer_load_dword {v(t+4)}, {v(t+16)}, {WS}, {s(sT+10)} offen sc1
    s_waitcnt vmcnt(0)
    v_cmp_ne_u32 vcc, {s(sTag)}, {v(t+4)}
    """)
    poll_branch('L_ftab2', 8)
    a('s_branch L_fi2\nL_fend:')
    dump_stamps()
    a('s_endpgm')

def build():
    hdr=open('ref.txt').read().split('; @launch')[0]
    a.raw(hdr+f'; @launch grid=({NWG},1,1) block=(512,1,1) lds={LDS_TOTAL}')
    a.raw(f'''; generated by gen/gen.py (hand-written generator): persistent FFT-structured FNet + MoD kernel
.amdgcn_target "amdgcn-amd-amdhsa--gfx950"
.text
.globl {NAME}_kernel
.p2align 8
.type {NAME}_kernel,@function
{NAME}_kernel:''')
    if cfg.st0: a(f's_memrealtime s[88:89]\ns_waitcnt lgkmcnt(0)')
    a(f'''
    s_load_dwordx2 s[12:13], s[0:1], 0
    s_load_dwordx2 s[8:9], s[0:1], 96
    s_load_dwordx8 s[16:23], s[0:1], 48
    v_and_b32 {v(vN)}, 15, v0
    v_bfe_u32 {v(vQ)}, v0, 4, 2
    v_lshrrev_b32 v2, 6, v0
    v_lshlrev_b32 {v(vUW)}, 7, v2
    v_lshl_add_u32 {v(vUW)}, {v(vN)}, 3, {v(vUW)}                ; 128w+8n
    v_lshl_add_u32 {v(vXoff)}, {v(vQ)}, 19, {v(vUW)}
    s_lshl_b32 {s(sRow0)}, s2, 10
    s_add_u32 {s(sRow1)}, {s(sRow0)}, 0x40000
    s_mov_b32 s14, 0x200000
    s_mov_b32 s15, 0x20000
    v_readfirstlane_b32 {s(sW)}, v2
    ''')
    if cfg.codepf: a(f'''
    s_getpc_b64 {s(sT+6,2)}
    L_pc:
    v_lshlrev_b32 v3, 5, v0
    v_min_u32 v3, L_end-L_pc, v3
    {f'global_load_dword {v(vTG)}, v3, {s(sT+6,2)}' if cfg.codepf==1 else ''}
    ''')
    a(f'''
    s_cmp_ge_u32 s2, 256
    s_cbranch_scc1 L_nox ;!nd
    s_waitcnt lgkmcnt(0)
    buffer_load_dwordx2 {v(BC,2)}, {v(vXoff)}, {XS}, {s(sRow0)} offen
    buffer_load_dwordx2 {v(BC+2,2)}, {v(vXoff)}, {XS}, {s(sRow1)} offen
    L_nox:
    {f'global_load_dword {v(vTG)}, v3, {s(sT+6,2)}' if cfg.codepf==2 else ''}
    s_cmp_ge_u32 s2, {NWG}
    s_cbranch_scc1 L_end
    {'s_waitcnt lgkmcnt(0)' if cfg.wsoff else ''}
    {f's_add_u32 s8, s8, {cfg.wsoff<<20}' if cfg.wsoff else ''}
    {'s_addc_u32 s9, s9, 0' if cfg.wsoff else ''}
    s_load_dwordx2 s[28:29], s[0:1], 80
    v_and_b32 {v(vLane)}, 63, v0
    s_mov_b32 s10, {WSSZ}
    s_mov_b32 s11, 0x20000
    s_mov_b32 s30, 0x200000
    s_mov_b32 s31, 0x20000
    s_and_b32 {s(sX)}, s2, 7
    s_lshr_b32 {s(sJ)}, s2, 3
    v_mov_b32 {v(SENT)}, -1
    v_mov_b32 {v(SENT+1)}, -1
    v_mov_b32 {v(SENT+2)}, -1
    v_mov_b32 {v(SENT+3)}, -1
    v_lshlrev_b32 {v(vL8)}, 3, v0
    v_and_b32 {v(vL8)}, 0xf8, {v(vL8)}
    s_mov_b32 {s(sCnt)}, 200000
    s_mov_b32 {s(sM7FF)}, 0x7ff
    s_lshl_b32 {s(sTabLd)}, {s(sX)}, 8
    s_add_u32 {s(sTabLd)}, {s(sTabLd)}, {TABL}
    s_getreg_b32 {s(sXcc)}, hwreg(HW_REG_XCC_ID, 0, 4)
    ''')
    if cfg.force_slow: a(f's_mov_b32 {s(sXcc)}, {s(sJ)}')
    if cfg.stamps:
        a(f's_mov_b32 {s(sStampI)}, 0\nv_mov_b32 {v(vSTMP)}, 0')
        a(f's_memrealtime {s(sTS,2)}\ns_memtime {s(sTS+2,2)}\ns_waitcnt lgkmcnt(0)\nv_writelane_b32 {v(vSTMP)}, {s(sTS)}, 63\nv_writelane_b32 {v(vSTMP)}, {s(sTS+2)}, 62')
        if cfg.st0: a(f'v_writelane_b32 {v(vSTMP)}, {s(sTS)}, 58\nv_writelane_b32 {v(vSTMP)}, s88, 63\ns_memrealtime {s(sTS,2)}\ns_waitcnt lgkmcnt(0)\nv_writelane_b32 {v(vSTMP)}, {s(sTS)}, 59')
    a('''s_cmp_ge_u32 s2, 256
    s_cbranch_scc1 L_ffn''')
    if cfg.prio: a(f's_setprio 2\ns_cmp_gt_u32 {s(sW)}, 1\ns_cbranch_scc1 L_np\ns_setprio 3\nL_np:')
    main_prologue()
    main_loop()
    ffn()
    a('L_end:\ns_endpgm')
    a.raw(f'''.section .rodata,"a"
.p2align 6
.amdhsa_kernel {NAME}_kernel
  .amdhsa_next_free_vgpr 128
  .amdhsa_next_free_sgpr 96
  .amdhsa_accum_offset 128
  .amdhsa_group_segment_fixed_size 0
  .amdhsa_kernarg_size 104
  .amdhsa_user_sgpr_count 2
  .amdhsa_user_sgpr_kernarg_segment_ptr 1
  .amdhsa_system_sgpr_workgroup_id_x 1
.end_amdhsa_kernel''')
    return a.text()
if __name__=='__main__':
    out=sys.argv[1]
    for kv in sys.argv[2:]:
        k,val=kv.split('='); assert hasattr(cfg,k); setattr(cfg,k,int(val))
    open(out,'w').write(build())
    print('instrs',a.count,'nops',a.nops)
```

```python
import sys, struct
from asmlib import Asm
NAME='interleave_layers__spectral_fnet__moe_arch_mod__prompt'
def fbits(x): return '0x%08x' % struct.unpack('<I', struct.pack('<f', x))[0]

class Cfg:
    stamps=0
    tim_arg=16
    tim_y=0
    tim_h=0
    slp_g=2
    slp_l=1
    force_slow=0
    prio=1
    codepf=1
    exp=0
    gre=0
    cfl=0
    tlb=0
    wsoff=0
    st0=0
    cal=-1
    calwg=0
    dbgout=0
    dry=1
    wb=0
    fdelay=20
    gdelay=18
    osc=1
    odel=0
    pfm=7
    clr2=0
    nb0=0
    ehint=0
    post=0
    slp_t=0
    aft=0
    g2pos=3
    spr=1
    tim_fh=12
    wdpos=0
    slp_p=1
    tim_p=8
    hold=1
    tim_gy=12
    eh=1
    own=1
    tim_y3=8
    beh=1
    gbb=0
    slp_f=2
    early=4
    tim_a0=0
    wbd=12
    gbdelay=4
    late=1
    split=0
    tch=1
cfg=Cfg()

TABG=0x1000; TABGR=0x6000
TABL=0x2000; ARGR=0x800
TAB2=0x3800
SLOWF=0x4000
YHINT=0x5000; YHR=0x400
FTAB=0x6000
CLR0=0x8000
YP=0x8000; YPR=0x2000
PART=0x20000; PARTR=0x10000
SLOT=0x10000; SLOTR=0x8000
LBASE=0x40000; PS=8448; LX=32*PS
GBASE=0x260000; GS=262144+768; GR=0x210000
STAMP=0x700000
WSSZ=0x800000
NWG=512
NST=(13,9,7)
L_STAT=0; L_U=0x400; L_YI=0x2400; YIS=320; L_YT=0x4C00; L_DH=0x6E00; L_FLAG=0x7E00; LDS_TOTAL=0x7E80
L_CX=0x2400
def v(a,n=1): return f'v{a}' if n==1 else f'v[{a}:{a+n-1}]'
def s(a,n=1): return f's{a}' if n==1 else f's[{a}:{a+n-1}]'

WS='s[8:11]'; XS='s[12:15]'; OS='s[28:31]'
sW=3; sX=26; sJ=27; sIt=32; sTag=33; sFast=34; sKey=35; sMir=36; sDsc=38
sLst=39; sLld=40; sPh=41; sTabG=42; sG0=43; sG4=44; sTabSt=45; sTabLd=46; sSlot=47; sRow0=48; sRow1=49; sCnt=50
sXcc=51; sStampI=37
sK512=52
sTry=53
sEps=54
sC16=56
sSc=58
sM7FF=60; sTop=61
sQmask=62
sT=64
sNx=84; sSg=85; sYo=86; sYh=87
sTS=80
X=2; WV=10; A8=14; XA=16; B1C=20; B1S=24; B1N=28; TWC=32; TWS=36; A2R=40; A2I=44; YC=48; YS=52
AD=56; BC=58
vXoff=72; vStW=73; vStR=74; vUW=75; vUR=76; vLst=77; vLld=78; vLldM=79; vYIW=80; vYIR=81; vYW=82; vYR=83; vGst=84; vGld=85
vSc0=86; vL8=88; vInv=89; vN=90; vQ=91; vSTMP=1; vLane=92; vTG=93
LNP=94; MM=98; RS2=100
T=102
class Asm2(Asm):
    def __call__(self, text):
        parts=text.split(';@F')
        for i,p in enumerate(parts):
            if i: fstamp()
            Asm.__call__(self,p)
a=Asm2()
def poll_branch(lbl, sleep=1, pre='', giveup=None, skip=False, mask=False):
    k=a.lines.index(lbl+':')
    if mask:
        pre+='\ns_mov_b64 exec, vcc'; skip=True
        k2=next(i for i in range(k,len(a.lines)) if 's_waitcnt vmcnt(0)' in a.lines[i])
        k3=max(i for i in range(k,k2) if 'buffer_load' in a.lines[i])
        a.lines.insert(k3+1,'    s_mov_b64 exec, -1')
    if a.lines[k-1].strip().startswith(('s_branch','s_endpgm')): skip=False
    a(f's_cbranch_vccnz {lbl}_r ;!nd')
    st=[]
    if skip: st.append(f'    s_branch {lbl}')
    st.append(f'{lbl}_r:')
    if giveup: st+= [f'    s_sub_u32 {s(sTry)}, {s(sTry)}, 1', f'    s_cbranch_scc1 {giveup}']
    else: st+= [f'    s_sub_u32 {s(sCnt)}, {s(sCnt)}, 1', '    s_cbranch_scc1 L_end']
    st+= ['    '+x.strip() for x in pre.split('\n') if x.strip()]
    if sleep: st.append(f'    s_sleep {sleep}')
    a.lines[k:k]=st
def fstamp():
    if cfg.stamps>=2: stamp()
def stamp():
    if not cfg.stamps: return
    a(f'''{'s_memtime' if cfg.stamps==2 else 's_memrealtime'} {s(sTS,2)}
    s_waitcnt lgkmcnt(0)
    s_mov_b32 m0, {s(sStampI)}
    s_add_u32 {s(sStampI)}, {s(sStampI)}, 1
    v_writelane_b32 {v(vSTMP)}, {s(sTS)}, m0''')
def dump_stamps():
    if not cfg.stamps: return
    a(f's_memrealtime {s(sTS,2)}\ns_memtime {s(sTS+2,2)}\ns_waitcnt lgkmcnt(0)\nv_writelane_b32 {v(vSTMP)}, {s(sTS)}, 61\nv_writelane_b32 {v(vSTMP)}, {s(sTS+2)}, 60')
    if cfg.cal>=0:
        lab='L_cal%d'%len(a.lines)
        a(f'''s_cmp_lg_u32 s2, {cfg.calwg}
        s_cbranch_scc1 {lab}
        s_cmp_lg_u32 {s(sW)}, 0
        s_cbranch_scc1 {lab}
        v_readlane_b32 {s(sT)}, {v(vSTMP)}, {cfg.cal}
        v_readlane_b32 {s(sT+1)}, {v(vSTMP)}, 63
        s_sub_u32 {s(sT)}, {s(sT)}, {s(sT+1)}
        s_lshl_b32 {s(sT)}, {s(sT)}, 2
        s_add_u32 {s(sT)}, {s(sT)}, 3000
        s_min_u32 {s(sT)}, {s(sT)}, 50000
        {lab}_l:
        s_memrealtime {s(sTS,2)}
        s_waitcnt lgkmcnt(0)
        s_sub_u32 {s(sT+2)}, {s(sTS)}, {s(sT+1)}
        s_cmp_lt_u32 {s(sT+2)}, {s(sT)}
        s_cbranch_scc1 {lab}_l
        {lab}:''')
    a(f'''s_lshl_b32 {s(sT)}, s2, 11
    s_lshl_b32 {s(sT+1)}, {s(sW)}, 8
    s_add_u32 {s(sT)}, {s(sT)}, {s(sT+1)}
    s_add_u32 {s(sT)}, {s(sT)}, {STAMP}
    v_lshlrev_b32 {v(vLane)}, 2, {v(vLane)}
    buffer_store_dword {v(vSTMP)}, {v(vLane)}, {WS}, {s(sT)} offen''')
def maxchk(regs, t):
    regs=list(regs)
    a(f'v_max3_u32 {v(t)}, {v(regs[0])}, {v(regs[1])}, {v(regs[2])}')
    rest=regs[3:]
    while len(rest)>=2:
        a(f'v_max3_u32 {v(t)}, {v(t)}, {v(rest[0])}, {v(rest[1])}'); rest=rest[2:]
    if rest: a(f'v_max_u32 {v(t)}, {v(t)}, {v(rest[0])}')
    a(f'v_cmp_eq_u32 vcc, -1, {v(t)}')
def phchk(regs, t):
    regs=list(regs)
    a(f'v_bitop3_b32 {v(t)}, {v(regs[0])}, {v(regs[1])}, {s(sPh)} bitop3:0x7e')
    for r in regs[2:]: a(f'v_bitop3_b32 {v(t)}, {v(t)}, {v(r)}, {s(sPh)} bitop3:0xf6')
    a(f'v_and_b32 {v(t)}, 1, {v(t)}\nv_cmp_ne_u32 vcc, 0, {v(t)}')
def tag4chk(r):
    for k in range(4): a(f'v_xor_b32 {v(r+k)}, {s(sTag)}, {v(r+k)}')
    a(f'v_or3_b32 {v(r)}, {v(r)}, {v(r+1)}, {v(r+2)}\nv_or_b32 {v(r)}, {v(r)}, {v(r+3)}\nv_cmp_ne_u32 vcc, 0, {v(r)}')
DPP='row_mask:0xf bank_mask:0xf'

def fft_core(xr, xi, U, V, F, P, fill1='', fill2=''):
    Ur,Ui=U,U+4
    a(f'v_mfma_f32_16x16x32_f16 {v(Ur,4)}, {v(xr,4)}, {v(B1C,4)}, 0')
    a(f'v_mfma_f32_16x16x32_f16 {v(Ui,4)}, {v(xr,4)}, {v(B1N,4)}, 0')
    if xi is not None:
        a(f'v_mfma_f32_16x16x32_f16 {v(Ur,4)}, {v(xi,4)}, {v(B1S,4)}, {v(Ur,4)}')
        a(f'v_mfma_f32_16x16x32_f16 {v(Ui,4)}, {v(xi,4)}, {v(B1C,4)}, {v(Ui,4)}')
    a(fill1)
    Vr,Vi=V,V+4
    for h in (0,2):
        a(f'v_pk_mul_f32 {v(Vi+h,2)}, {v(Ur+h,2)}, {v(TWS+h,2)}')
    for h in (0,2):
        a(f'v_pk_mul_f32 {v(Vr+h,2)}, {v(Ui+h,2)}, {v(TWS+h,2)}')
    for h in (0,2):
        a(f'v_pk_fma_f32 {v(Vr+h,2)}, {v(Ur+h,2)}, {v(TWC+h,2)}, {v(Vr+h,2)}')
        a(f'v_pk_fma_f32 {v(Vi+h,2)}, {v(Ui+h,2)}, {v(TWC+h,2)}, {v(Vi+h,2)} neg_lo:[0,0,1] neg_hi:[0,0,1]')
    for r in range(4): a(f'v_cvt_pk_f16_f32 {v(P+r)}, {v(Vr+r)}, {v(Vi+r)}')
    a(f'v_mfma_f32_16x16x32_f16 {v(F,4)}, {v(A2R,4)}, {v(P,4)}, 0')
    a(f'v_mfma_f32_16x16x32_f16 {v(F+4,4)}, {v(A2I,4)}, {v(P,4)}, 0')
    a(fill2)
    for r in range(4): a(f'v_cvt_pk_f16_f32 {v(P+r)}, {v(F+r)}, {v(F+4+r)}')

SENT=T+4
def g2late():
    return '\n'.join(f'v_mov_b32 {v(LNP+k)}, -1' for k in range(4))+f'\ns_mov_b32 {s(sT+14)}, {GBASE+GR}\nbuffer_store_dwordx4 {v(LNP,4)}, {v(vGst)}, {WS}, {s(sT+14)} offen sc1'

def main_prologue():
    t=T
    X0=BC
    a(f'''
    s_mul_i32 {s(sLld)}, {s(sX)}, {LX}
    s_add_u32 {s(sLld)}, {s(sLld)}, {LBASE}
    s_mul_i32 {s(sLst)}, {s(sJ)}, {PS}
    s_add_u32 {s(sLst)}, {s(sLst)}, {s(sLld)}
    v_lshlrev_b32 {v(t)}, 4, v0
    v_lshrrev_b32 {v(t+1)}, 4, v0
    global_load_dwordx2 {v(X0+4,2)}, {v(vUW)}, s[16:17]
    buffer_load_dword {v(X0+6)}, off, {WS}, 0 sc1
    ''')
    tabt=f'buffer_load_dword {v(X0+7)}, {v(vL8)}, {WS}, {s(sTabLd)} offen sc1'
    ltch=f'buffer_load_dwordx4 {v(X0+8,4)}, {v(t)}, {WS}, {s(sLst) if not cfg.exp&1 else "s10"} offen sc1'
    lclr=f'buffer_store_dwordx4 {v(SENT,4)}, {v(t)}, {WS}, {s(sLst)} offen'
    if cfg.tch==0: a(tabt+'\n'+ltch+'\n'+lclr)
    if cfg.tch==1 and not cfg.aft&1: a(tabt+'\n'+ltch)
    if cfg.tch==2: a(tabt+'\n'+lclr+'\n'+ltch)
    if cfg.tch==3: a(ltch.replace(' sc1','')+'\n'+ltch.replace(' sc1','')+'\n'+lclr)
    a(f'''
    s_mov_b32 {s(sG0)}, {GBASE}
    s_mul_i32 {s(sT)}, {s(sX)}, {GS}
    s_add_u32 {s(sT+2)}, {s(sJ)}, 24
    s_and_b32 {s(sT+2)}, {s(sT+2)}, 24
    s_lshl_b32 {s(sT+2)}, {s(sT+2)}, 13
    s_add_u32 {s(sT)}, {s(sT)}, {s(sT+2)}
    s_and_b32 {s(sT+2)}, {s(sJ)}, 7
    s_cmp_lt_u32 {s(sJ)}, 8
    s_cselect_b32 {s(sT+3)}, 7, 8
    s_cselect_b32 {s(sT+4)}, 112, 0
    s_lshl_b32 {s(sT+2)}, {s(sT+2)}, {s(sT+3)}
    s_add_u32 {s(sT)}, {s(sT)}, {s(sT+2)}
    v_lshlrev_b32 {v(t+2)}, 4, {v(vN)}
    v_lshl_add_u32 {v(vGst)}, {v(t+1)}, 11, {v(t+2)}
    v_and_b32 {v(t+3)}, 8, {v(vN)}
    v_mad_u32_u24 {v(vGst)}, {v(t+3)}, {s(sT+4)}, {v(vGst)}
    v_add_u32 {v(vGst)}, {s(sT)}, {v(vGst)}
    ''')
    if cfg.spr: a(f'''
    s_and_b32 {s(sT+14)}, {s(sJ)}, 24
    s_add_u32 {s(sT+14)}, {s(sT+14)}, {s(sX)}
    s_lshl_b32 {s(sT+15)}, {s(sT+14)}, 13
    s_and_b32 {s(sT+13)}, {s(sJ)}, 7
    s_lshl_b32 {s(sT+13)}, {s(sT+13)}, 10
    s_add_u32 {s(sT+15)}, {s(sT+15)}, {s(sT+13)}
    s_cmp_lt_u32 {s(sT+14)}, 4
    s_cselect_b32 {s(sT+15)}, {WSSZ}, {s(sT+15)}
    s_cmp_lg_u32 {s(sW)}, 0
    s_cselect_b32 {s(sT+15)}, {WSSZ}, {s(sT+15)}
    ''')
    else: a(f'''
    s_lshl_b32 {s(sT+15)}, s2, 13
    s_sub_u32 {s(sT+14)}, s2, 4
    s_cmp_lt_u32 {s(sT+14)}, 28
    s_cselect_b32 {s(sT+15)}, {s(sT+15)}, {WSSZ}
    ''')
    clrs=f'''buffer_store_dwordx4 {v(SENT,4)}, {v(vGst)}, {WS}, {s(sG0)} offen {['sc1','sc0 sc1','sc1 nt'][cfg.cfl]}
    buffer_store_dwordx4 {v(SENT,4)}, {v(t)}, {WS}, {s(sT+15)} offen sc1'''
    g2c=f's_mov_b32 {s(sT+14)}, {GBASE+GR}\nbuffer_store_dwordx4 {v(SENT,4)}, {v(vGst)}, {WS}, {s(sT+14)} offen sc1'
    if not cfg.aft&2: a(clrs)
    if cfg.gre: cfg.g2pos=2
    if cfg.g2pos==0: a(g2c)
    c=t+8; co,si=c+8,c+12
    a(f'''
    s_lshr_b32 {s(sT)}, {s(sJ)}, 2
    s_and_b32 {s(sT)}, {s(sT)}, 6                 ; 2*(j>>3)
    s_lshl_b32 {s(sT+1)}, {s(sW)}, 2
    s_and_b32 {s(sT+1)}, {s(sT+1)}, 8             ; 2*4*((w>>1)&1)
    s_cmp_lt_u32 {s(sJ)}, 8
    s_cselect_b32 {s(sT)}, {s(sT+1)}, {s(sT)}
    s_lshl_b32 {s(sT+1)}, {s(sW)}, 4
    s_and_b32 {s(sT+1)}, {s(sT+1)}, 16            ; 16*(w&1)
    s_cmp_ge_u32 {s(sW)}, 4
    s_cselect_b32 {s(sT+2)}, {s(sT+1)}, 0         ; 16k
    s_cselect_b32 {s(sT)}, {s(sT)}, 0
    s_cmp_eq_u32 {s(sW)}, 3
    s_cselect_b32 {s(sT)}, 16, {s(sT)}
    s_lshl_b32 {s(sT+3)}, {s(sW)}, 2
    s_lshr_b32 {s(sT+3)}, 0x44440054, {s(sT+3)}
    s_and_b32 {s(sT+3)}, {s(sT+3)}, 15            ; log2 A
    v_lshlrev_b32 {v(c)}, {s(sT+3)}, {v(vN)}
    v_add_u32 {v(c)}, {s(sT)}, {v(c)}
    v_lshl_add_u32 {v(c+1)}, {v(vQ)}, 2, {s(sT+2)}
    v_cvt_f32_u32 {v(c)}, {v(c)}
    v_cvt_f32_u32 {v(c+1)}, {v(c+1)}
    s_mov_b32 {s(sK512)}, {fbits(1/512)}
    v_mul_f32 {v(c)}, {s(sK512)}, {v(c)}
    v_mul_f32 {v(c+4)}, {v(c+1)}, {v(c)}
    v_add_f32 {v(c+5)}, {v(c+4)}, {v(c)}
    v_add_f32 {v(c+6)}, {v(c+5)}, {v(c)}
    v_add_f32 {v(c+7)}, {v(c+6)}, {v(c)}
    ''')
    fill=[f's_mov_b32 {s(sEps)}, {fbits(1e-5)}', f's_mov_b32 {s(sEps+1)}, {fbits(1e-5)}', f's_mov_b32 {s(sC16)}, {fbits(1/16)}', f's_mov_b32 {s(sC16+1)}, {fbits(1/16)}',
          f's_mov_b32 {s(sTop)}, 0x80000000', f's_mov_b32 {s(sQmask)}, 0x11111111', f's_mov_b32 {s(sQmask+1)}, 0x11111111', f's_mov_b32 {s(sG4)}, {GBASE+4*GS}']
    for r in range(4):
        a(f'v_cos_f32 {v(co+r)}, {v(c+4+r)}'); a(fill[2*r])
        a(f'v_sin_f32 {v(si+r)}, {v(c+4+r)}'); a(fill[2*r+1])
    a(f'''
    s_lshl_b32 {s(sT)}, {s(sW)}, 11
    s_add_u32 {s(sT)}, {s(sT)}, {L_CX}
    v_lshlrev_b32 {v(c+2)}, 4, {v(vLane)}
    v_add_u32 {v(c+3)}, {s(sT)}, {v(c+2)}
    s_and_b32 {s(sT)}, {s(sW)}, 6
    s_cmp_eq_u32 {s(sT)}, 2
    s_cbranch_scc1 L_cw
    s_cmp_eq_u32 {s(sW)}, 1
    s_cbranch_scc1 L_cri
    v_cvt_pk_f16_f32 {v(co)}, {v(co)}, {v(co+1)}
    v_cvt_pk_f16_f32 {v(co+1)}, {v(co+2)}, {v(co+3)}
    v_cvt_pk_f16_f32 {v(co+2)}, {v(si)}, {v(si+1)}
    v_cvt_pk_f16_f32 {v(co+3)}, {v(si+2)}, {v(si+3)}
    s_branch L_cw
    L_cri:
    ''')
    for r in range(4):
        a(f'v_cvt_pk_f16_f32 {v(c+4)}, {v(co+r)}, {v(si+r)}')
        a(f'v_cvt_pk_f16_f32 {v(si+r)}, -{v(si+r)}, {v(co+r)}')
        a(f'v_mov_b32 {v(co+r)}, {v(c+4)}')
    a(f'''
    L_cw:
    ds_write_b128 {v(c+3)}, {v(co,4)}
    ds_write_b128 {v(c+3)}, {v(si,4)} offset:1024
    v_lshrrev_b32 {v(c+4)}, 2, {v(vN)}
    v_and_b32 {v(c+5)}, 2, {v(vN)}
    v_and_b32 {v(c+6)}, 14, {v(vN)}
    v_cmp_eq_u32 vcc, 2, {v(c+6)}
    v_mul_u32_u24 {v(vYIR)}, {YIS}, {v(c+4)}
    v_lshlrev_b32 {v(vStR)}, 8, {v(vQ)}
    v_cndmask_b32 {v(c+4)}, {v(c+4)}, 4, vcc
    v_cndmask_b32 {v(c+5)}, {v(c+5)}, 0, vcc
    v_mul_u32_u24 {v(c+6)}, {v(c+4)}, {v(vQ)}
    v_lshl_add_u32 {v(c+6)}, {v(c+6)}, 1, {v(c+5)}
    v_add_u32 {v(c+7)}, {v(c+6)}, {v(c+4)}
    v_cvt_f32_u32 {v(c+6)}, {v(c+6)}
    v_cvt_f32_u32 {v(c+7)}, {v(c+7)}
    v_mul_f32 {v(c+6)}, 0x3e000000, {v(c+6)}
    v_mul_f32 {v(c+7)}, 0x3e000000, {v(c+7)}
    v_cos_f32 {v(c+6)}, {v(c+6)}
    v_cos_f32 {v(c+7)}, {v(c+7)}
    v_and_b32 {v(c+5)}, 1, {v(vN)}
    v_cmp_eq_u32 vcc, 0, {v(c+5)}
    v_cvt_pk_f16_f32 {v(c+6)}, {v(c+6)}, {v(c+7)}
    v_mov_b32 {v(c+5)}, 0x80008000
    v_cndmask_b32 {v(A8)}, 0, {v(c+6)}, vcc
    v_cndmask_b32 {v(A8+1)}, {v(c+6)}, 0, vcc
    v_cndmask_b32 {v(c+5)}, {v(c+5)}, 0, vcc
    s_lshl_b32 {s(sT+1)}, {s(sT+1)}, 7            ; h*2048
    v_add_u32 {v(c+6)}, {s(sT+1)}, {v(c+2)}
    s_lshl_b32 {s(sT+2)}, {s(sW)}, 11
    s_and_b32 {s(sT+2)}, {s(sT+2)}, 4096          ; ((w>>1)&1)*4096
    v_add_u32 {v(c+7)}, {s(sT+2)}, {v(c+2)}
    s_waitcnt lgkmcnt(0)
    s_barrier
    ds_read_b128 {v(B1N,4)}, {v(c+2)} offset:{L_CX}
    ds_read_b128 {v(co,4)}, {v(c+7)} offset:{L_CX+4*2048}
    ds_read_b128 {v(si,4)}, {v(c+7)} offset:{L_CX+5*2048}
    ds_read_b128 {v(A2R,4)}, {v(c+2)} offset:{L_CX+2048}
    ds_read_b128 {v(A2I,4)}, {v(c+2)} offset:{L_CX+2048+1024}
    ds_read_b128 {v(TWC,4)}, {v(c+6)} offset:{L_CX+4096}
    ds_read_b128 {v(TWS,4)}, {v(c+6)} offset:{L_CX+4096+1024}
    v_and_b32 {v(c+4)}, 4, {v(vN)}
    s_lshl_b32 {s(sT)}, {s(sW)}, 2
    v_lshl_add_u32 {v(vStW)}, {v(t+3)}, 2, {v(vStR)}
    v_lshl_add_u32 {v(vStW)}, {v(c+4)}, 4, {v(vStW)}
    v_add_u32 {v(vStW)}, {s(sT)}, {v(vStW)}
    v_and_b32 {v(c+4)}, 7, {v(vN)}
    v_lshl_add_u32 {v(vStR)}, {v(c+4)}, 5, {v(vStR)}
    v_lshl_add_u32 {v(vUW)}, {v(vQ)}, 11, {v(vUW)}
    v_add_u32 {v(vUW)}, {L_U}, {v(vUW)}
    s_lshr_b32 {s(sT)}, {s(sW)}, 1
    s_lshl_b32 {s(sT)}, {s(sT)}, 11
    s_add_u32 {s(sT+2)}, {s(sT)}, {L_U}
    v_lshl_add_u32 {v(vUR)}, {v(vLane)}, 3, {s(sT+2)}
    ; vLst = w'*2048 + 512q + 64h + 4n
    s_lshr_b32 {s(sT+2)}, {s(sT+1)}, 5
    s_add_u32 {s(sT)}, {s(sT)}, {s(sT+2)}
    v_lshl_add_u32 {v(vLst)}, {v(vQ)}, 9, {s(sT)}
    v_lshl_add_u32 {v(vLst)}, {v(vN)}, 2, {v(vLst)}
    s_lshl_b32 {s(sT)}, {s(sJ)}, 3
    s_add_u32 {s(sTabSt)}, {s(sTabLd)}, {s(sT)}
    s_lshl_b32 {s(sT+3)}, {s(sW)}, 31             ; h sign
    s_lshl_b32 {s(sT+4)}, {s(sW)}, 29
    s_and_b32 {s(sT+4)}, {s(sT+4)}, {s(sTop)}
    s_mov_b32 {s(sT+5)}, 0x80008000
    s_mov_b32 {s(sIt)}, 0
    s_mov_b32 {s(sFast)}, 1
    s_mov_b32 {s(sPh)}, 0
    s_mov_b32 {s(sNx)}, 0
    s_mov_b32 {s(sSlot)}, {WSSZ}
    s_xor_b32 {s(sT+12)}, {s(sJ)}, 9
    s_or_b32 {s(sT+12)}, {s(sT+12)}, {s(sW)}
    s_mov_b32 {s(sTry)}, 64
    s_waitcnt lgkmcnt(4)
    v_xor_b32 {v(B1C)}, {s(sT+3)}, {v(B1N)}
    v_xor_b32 {v(B1C+1)}, {s(sT+3)}, {v(B1N+1)}
    v_xor_b32 {v(B1S)}, {s(sT+3)}, {v(B1N+2)}
    v_xor_b32 {v(B1S+1)}, {s(sT+3)}, {v(B1N+3)}
    v_xor_b32 {v(B1C+2)}, {v(B1C)}, {v(c+5)}
    v_xor_b32 {v(B1C+3)}, {v(B1C+1)}, {v(c+5)}
    v_xor_b32 {v(B1S+2)}, {v(B1S)}, {v(c+5)}
    v_xor_b32 {v(B1S+3)}, {v(B1S+1)}, {v(c+5)}
    ''')
    for r in range(4): a(f'v_xor_b32 {v(B1N+r)}, {s(sT+5)}, {v(B1S+r)}')
    for k,src in ((0,co),(1,si)):
        for r in range(2):
            a(f'v_xor_b32 {v(YC+2*k+r)}, {s(sT+4)}, {v(src+r)}')
            a(f'v_xor_b32 {v(YS+2*k+r)}, {s(sT+4)}, {v(src+2+r)}')
    a(f'''
    s_and_b32 {s(sT+1)}, {s(sW)}, 3
    s_lshl_b32 {s(sT+1)}, {s(sT+1)}, 6            ; 64cb
    s_lshr_b32 {s(sT)}, {s(sW)}, 2
    s_mul_i32 {s(sT)}, {s(sT)}, {16*272}
    s_add_u32 {s(sT)}, {s(sT)}, {s(sT+1)}
    s_add_u32 {s(sT)}, {s(sT)}, {L_YT}
    v_mul_u32_u24 {v(vYW)}, 272, {v(vN)}
    v_lshl_add_u32 {v(vYW)}, {v(vQ)}, 4, {v(vYW)}
    v_add_u32 {v(vYW)}, {s(sT)}, {v(vYW)}
    v_mul_u32_u24 {v(vYR)}, 272, {v(t+1)}
    v_add_u32 {v(vYR)}, {v(vYR)}, {v(t+2)}
    v_add_u32 {v(vYR)}, {L_YT}, {v(vYR)}
    s_add_u32 {s(sT+1)}, {s(sT+1)}, {L_YI}
    v_mul_u32_u24 {v(c+4)}, {4*YIS}, {v(vQ)}
    v_and_b32 {v(c+6)}, 0x30, {v(t+2)}
    v_add3_u32 {v(vYIR)}, {v(vYIR)}, {v(c+4)}, {v(c+6)}
    v_add_u32 {v(vYIR)}, {s(sT+1)}, {v(vYIR)}
    s_cmp_lt_u32 {s(sJ)}, 8
    s_cbranch_scc1 L_aself
    v_mul_u32_u24 {v(vLld)}, {PS}, {v(t+1)}
    v_mul_u32_u24 {v(vYIW)}, {YIS}, {v(t+1)}
    s_lshl_b32 {s(sT)}, {s(sJ)}, 8
    v_add3_u32 {v(vLld)}, {v(vLld)}, {v(t+2)}, {s(sT)}
    v_add_u32 {v(vYIW)}, {v(vYIW)}, {v(t+2)}
    v_mov_b32 {v(vLldM)}, 0
    s_branch L_adone
    L_aself:
    ; s2=(w>>1)*8+(l>>3), u=l&7, which=w&1
    s_lshl_b32 {s(sT)}, {s(sW)}, 2
    s_and_b32 {s(sT)}, {s(sT)}, 24
    v_lshrrev_b32 {v(c+4)}, 3, {v(vLane)}
    v_add_u32 {v(c+4)}, {s(sT)}, {v(c+4)}
    v_and_b32 {v(c+6)}, 0x70, {v(t+2)}
    v_mul_u32_u24 {v(vLldM)}, {PS}, {v(c+4)}
    v_mul_u32_u24 {v(vYIW)}, {YIS}, {v(c+4)}
    s_lshl_b32 {s(sT)}, {s(sJ)}, 7
    s_add_u32 {s(sT+1)}, {s(sT)}, 4
    s_sub_u32 {s(sT)}, {508*4}, {s(sT)}
    v_add3_u32 {v(vLld)}, {v(vLldM)}, {v(c+6)}, {s(sT+1)}
    v_sub_u32 {v(vLldM)}, {v(vLldM)}, {v(c+6)}
    v_add_u32 {v(vLldM)}, {s(sT)}, {v(vLldM)}
    s_lshr_b32 {s(sT)}, {s(sT+3)}, 24
    v_add3_u32 {v(vYIW)}, {v(vYIW)}, {v(c+6)}, {s(sT)}
    L_adone:
    v_add_u32 {v(vYIW)}, {L_YI}, {v(vYIW)}
    s_waitcnt vmcnt({(0 if cfg.aft&1 else 2)+(0 if cfg.aft&2 else 2)+(1 if cfg.g2pos==0 else 0)})
    {tabt if cfg.aft&1 else ''}
    {ltch if cfg.aft&1 else ''}
    {clrs if cfg.aft&2 else ''}
    {g2c if cfg.g2pos==1 else ''}
    v_readfirstlane_b32 {s(sTag)}, {v(X0+6)}
    ''')
    for rho in (0,1):
        for k in (0,1):
            src=X0+2*rho+k
            a(f'v_lshlrev_b32 {v(X+4*k+rho)}, 16, {v(src)}')
            a(f'v_and_b32 {v(X+4*k+2+rho)}, 0xffff0000, {v(src)}')
    for k in (0,1):
        a(f'v_lshlrev_b32 {v(WV+2*k)}, 16, {v(X0+4+k)}')
        a(f'v_and_b32 {v(WV+2*k+1)}, 0xffff0000, {v(X0+4+k)}')
    a(f's_add_u32 {s(sTag)}, {s(sTag)}, 1')

def xin_consts(c):
    a(f'''
    s_and_b32 {s(sT)}, {s(sX)}, 3                ; 0 => self
    s_lshr_b32 {s(sT+1)}, {s(sW)}, 2
    s_lshr_b32 {s(sT+2)}, {s(sX)}, 2
    s_mov_b32 {s(sSc)}, {fbits(16.0)}
    s_cmp_eq_u32 {s(sT)}, 0
    s_cselect_b32 {s(sMir)}, {s(sT+1)}, {s(sT+2)}
    s_cselect_b32 {s(sSc)}, {fbits(8.0)}, {s(sSc)}
    s_cselect_b32 {s(sDsc)}, {fbits(1/8)}, {s(sC16)}
    s_cselect_b32 {s(sT+3)}, -4, 0
    s_mov_b32 {s(sSc+1)}, {s(sSc)}
    s_sub_u32 {s(sT+4)}, 256, s2
    s_and_b32 {s(sT+4)}, {s(sT+4)}, 255
    s_cmp_eq_u32 {s(sMir)}, 0
    s_cselect_b32 {s(sT+4)}, s2, {s(sT+4)}       ; source g
    s_cselect_b32 {s(sT+5)}, 16, -16
    s_cselect_b32 {s(sT+6)}, 0, {509*4}
    s_cselect_b32 {s(sT+7)}, 1.0, -1.0
    s_add_u32 {s(sT+3)}, {s(sT+3)}, {s(sT+6)}
    s_mul_i32 {s(sT+6)}, {s(sT+5)}, {s(sW)}
    s_lshl_b32 {s(sT+6)}, {s(sT+6)}, 4
    s_add_u32 {s(sT+3)}, {s(sT+3)}, {s(sT+6)}
    s_lshr_b32 {s(sT+6)}, {s(sT+4)}, 3
    s_lshl_b32 {s(sT+6)}, {s(sT+6)}, 11
    s_add_u32 {s(sT+3)}, {s(sT+3)}, {s(sT+6)}
    s_add_u32 {s(sT+6)}, {s(sT+4)}, 3
    s_and_b32 {s(sT+6)}, {s(sT+6)}, 3
    s_lshl_b32 {s(sT+6)}, {s(sT+6)}, 16
    s_add_u32 {s(sT+3)}, {s(sT+3)}, {s(sT+6)}
    s_and_b32 {s(sT+6)}, {s(sT+4)}, 4
    s_lshl_b32 {s(sT+6)}, {s(sT+6)}, 8
    s_add_u32 {s(sT+3)}, {s(sT+3)}, {s(sT+6)}
    v_mul_i32_i24 {v(vGld)}, {s(sT+5)}, {v(vN)}
    v_mul_u32_u24 {v(c+4)}, {GS}, {v(vQ)}
    v_add3_u32 {v(vGld)}, {v(vGld)}, {v(c+4)}, {s(sT+3)}
    v_lshrrev_b32 {v(c+4)}, 1, {v(vN)}
    v_and_b32 {v(c+4)}, 6, {v(c+4)}
    v_and_or_b32 {v(c+4)}, {v(vN)}, 1, {v(c+4)}
    v_lshl_add_u32 {v(AD)}, {v(c+4)}, 8, s2
    v_cvt_f32_u32 {v(c+4)}, {v(AD)}
    v_cvt_f32_u32 {v(c+5)}, {v(vQ)}
    v_mul_f32 {v(c+4)}, {fbits(1/2048)}, {v(c+4)}
    v_mul_f32 {v(c+4)}, {s(sT+7)}, {v(c+4)}
    v_mul_f32 {v(c+5)}, {v(c+4)}, {v(c+5)}
    v_fma_f32 {v(c+6)}, {v(c+4)}, 4.0, {v(c+5)}
    v_cos_f32 {v(c+7)}, {v(c+5)}
    v_sin_f32 {v(c+8)}, {v(c+5)}
    v_cos_f32 {v(c+9)}, {v(c+6)}
    v_sin_f32 {v(c+10)}, {v(c+6)}
    v_bfe_u32 {v(c+4)}, {v(vN)}, 1, 1
    v_cmp_eq_u32 vcc, {s(sMir)}, {v(c+4)}
    v_cvt_pk_f16_f32 {v(c+7)}, {v(c+7)}, {v(c+8)}
    v_cvt_pk_f16_f32 {v(c+9)}, {v(c+9)}, {v(c+10)}
    v_cndmask_b32 {v(XA)}, 0, {v(c+7)}, vcc
    v_cndmask_b32 {v(XA+1)}, {v(c+7)}, 0, vcc
    v_cndmask_b32 {v(XA+2)}, 0, {v(c+9)}, vcc
    v_cndmask_b32 {v(XA+3)}, {v(c+9)}, 0, vcc
    v_and_b32 {v(c+4)}, 0x1cf, v0
    v_cmp_eq_u32 vcc, 0, {v(c+4)}
    v_mov_b32 {v(c+5)}, {s(sSc)}
    s_sub_u32 {s(sT)}, 2047, s2
    v_lshlrev_b32 {v(vInv)}, 9, {v(vQ)}
    v_cndmask_b32 {v(vSc0)}, {v(c+5)}, 0, vcc
    v_cndmask_b32 {v(vSc0+1)}, {v(c+5)}, 0, vcc
    v_sub_u32 {v(vInv)}, {s(sT)}, {v(vInv)}
    s_lshl_b32 {s(sSlot)}, {s(sX)}, 12
    s_add_u32 {s(sSlot)}, {s(sSlot)}, {SLOT}
    ''')

def main_loop():
    t=T
    S1,S2,S3=t,t+2,t+4
    a('L_top:')
    stamp()
    a(f'''
    v_pk_add_f32 {v(S1,2)}, {v(X,2)}, {v(X+2,2)}
    v_pk_add_f32 {v(t+6,2)}, {v(X+4,2)}, {v(X+6,2)}
    v_pk_mul_f32 {v(S2,2)}, {v(X,2)}, {v(X,2)}
    v_pk_mul_f32 {v(S3,2)}, {v(X,2)}, {v(WV,2)} op_sel:[0,0] op_sel_hi:[1,0]
    v_pk_add_f32 {v(S1,2)}, {v(S1,2)}, {v(t+6,2)}
    v_pk_fma_f32 {v(S2,2)}, {v(X+2,2)}, {v(X+2,2)}, {v(S2,2)}
    v_pk_fma_f32 {v(S3,2)}, {v(X+2,2)}, {v(WV,2)}, {v(S3,2)} op_sel:[0,1,0] op_sel_hi:[1,1,1]
    v_add_f32_dpp {v(S1)}, {v(S1)}, {v(S1)} row_ror:8 row_mask:0xf bank_mask:0x3
    v_pk_fma_f32 {v(S2,2)}, {v(X+4,2)}, {v(X+4,2)}, {v(S2,2)}
    v_pk_fma_f32 {v(S3,2)}, {v(X+4,2)}, {v(WV+2,2)}, {v(S3,2)} op_sel:[0,0,0] op_sel_hi:[1,0,1]
    v_add_f32_dpp {v(S1)}, {v(S1+1)}, {v(S1+1)} row_ror:8 row_mask:0xf bank_mask:0xc
    v_pk_fma_f32 {v(S2,2)}, {v(X+6,2)}, {v(X+6,2)}, {v(S2,2)}
    v_pk_fma_f32 {v(S3,2)}, {v(X+6,2)}, {v(WV+2,2)}, {v(S3,2)} op_sel:[0,1,0] op_sel_hi:[1,1,1]
    s_cmp_eq_u32 {s(sIt)}, 0
    s_cbranch_scc1 L_s3w
    L_s3ok:
    v_add_f32_dpp {v(S1)}, {v(S1)}, {v(S1)} row_half_mirror row_mask:0xf bank_mask:0x5
    v_add_f32_dpp {v(S2)}, {v(S2)}, {v(S2)} row_ror:8 row_mask:0xf bank_mask:0x3
    v_add_f32_dpp {v(S3)}, {v(S3)}, {v(S3)} row_ror:8 row_mask:0xf bank_mask:0x3
    v_add_f32_dpp {v(S2)}, {v(S2+1)}, {v(S2+1)} row_ror:8 row_mask:0xf bank_mask:0xc
    v_add_f32_dpp {v(S3)}, {v(S3+1)}, {v(S3+1)} row_ror:8 row_mask:0xf bank_mask:0xc
    v_add_f32_dpp {v(S1)}, {v(S2)}, {v(S2)} row_half_mirror row_mask:0xf bank_mask:0xa
    v_add_f32_dpp {v(S3)}, {v(S3)}, {v(S3)} row_half_mirror {DPP}
    v_add_f32_dpp {v(S1)}, {v(S1)}, {v(S1)} quad_perm:[1,0,3,2] {DPP}
    v_add_f32_dpp {v(S3)}, {v(S3)}, {v(S3)} quad_perm:[1,0,3,2] {DPP}
    v_add_f32_dpp {v(S1)}, {v(S1)}, {v(S1)} quad_perm:[2,3,0,1] {DPP}
    v_add_f32_dpp {v(S3)}, {v(S3)}, {v(S3)} quad_perm:[2,3,0,1] {DPP}
    s_mov_b64 exec, {s(sQmask,2)}
    ds_write2_b32 {v(vStW)}, {v(S1)}, {v(S3)} offset0:0 offset1:32
    s_mov_b64 exec, -1
    ;@F
    ''')
    if cfg.g2pos==4: a(f's_cmp_lg_u32 {s(sIt)}, 1\ns_cbranch_scc1 L_nw\ns_waitcnt vmcnt(0)\nL_nw:')
    a(f'''
    s_waitcnt lgkmcnt(0)
    s_barrier
    ;@F
    ds_read_b128 {v(t,4)}, {v(vStR)}
    ds_read_b128 {v(t+4,4)}, {v(vStR)} offset:16
    s_waitcnt lgkmcnt(0)
    v_pk_add_f32 {v(t,2)}, {v(t,2)}, {v(t+2,2)}
    v_pk_add_f32 {v(t+4,2)}, {v(t+4,2)}, {v(t+6,2)}
    v_pk_add_f32 {v(t,2)}, {v(t,2)}, {v(t+4,2)}
    v_add_f32 {v(t)}, {v(t)}, {v(t+1)}
    v_mul_f32 {v(t+7)}, {s(sK512)}, {v(t)}
    ''')
    VAR,RS,CC,NM=t+8,t+10,t+12,t+14
    K=t+16
    a(f'''
    v_mov_b32_dpp {v(MM)}, {v(t+7)} row_newbcast:0 {DPP}
    v_mov_b32_dpp {v(MM+1)}, {v(t+7)} row_newbcast:1 {DPP}
    v_mov_b32_dpp {v(S2)}, {v(t+7)} row_newbcast:2 {DPP}
    v_mov_b32_dpp {v(S2+1)}, {v(t+7)} row_newbcast:3 {DPP}
    v_mov_b32_dpp {v(S3)}, {v(t+7)} row_newbcast:4 {DPP}
    v_pk_fma_f32 {v(VAR,2)}, {v(MM,2)}, {v(MM,2)}, {v(S2,2)} neg_lo:[1,0,0] neg_hi:[1,0,0]
    v_mov_b32_dpp {v(S3+1)}, {v(t+7)} row_newbcast:5 {DPP}
    v_pk_add_f32 {v(S1,2)}, {v(VAR,2)}, {s(sEps,2)}
    s_cmp_eq_u32 {s(sIt)}, 0
    v_rsq_f32_e64 {v(RS)}, |{v(S1)}|
    v_rsq_f32_e64 {v(RS+1)}, |{v(S1+1)}|
    s_cbranch_scc1 L_it0 ;!nd
    v_pk_mul_f32 {v(S3,2)}, {v(S3,2)}, {v(RS,2)}
    v_add_u32 {v(K+2)}, 0xffffff00, {v(vInv)}
    v_ashrrev_i32 {v(K)}, 31, {v(S3)}
    v_ashrrev_i32 {v(K+1)}, 31, {v(S3+1)}
    v_bitop3_b32 {v(K)}, {v(S3)}, {v(K)}, {s(sTop)} bitop3:0x1e
    v_bitop3_b32 {v(K+1)}, {v(S3+1)}, {v(K+1)}, {s(sTop)} bitop3:0x1e
    v_bfi_b32 {v(K)}, {s(sM7FF)}, {v(vInv)}, {v(K)}
    v_bfi_b32 {v(K+1)}, {s(sM7FF)}, {v(K+2)}, {v(K+1)}
    v_max_u32 {v(K+1)}, {v(K)}, {v(K+1)}
    v_pk_add_f32 {v(CC,2)}, {v(RS,2)}, 1.0 op_sel_hi:[1,0]
    v_mov_b32 {v(K)}, {s(sTag)}
    v_max_u32_dpp {v(K+1)}, {v(K+1)}, {v(K+1)} row_bcast:15 row_mask:0xa bank_mask:0xf
    v_pk_mul_f32 {v(VAR,2)}, {v(VAR,2)}, {v(CC,2)}
    s_cmp_lg_u32 {s(sW)}, 0
    v_max_u32_dpp {v(K+1)}, {v(K+1)}, {v(K+1)} row_bcast:31 row_mask:0xc bank_mask:0xf
    s_cbranch_scc1 L_nost ;!nd
    s_mov_b32 exec_lo, 0
    s_mov_b32 exec_hi, {s(sTop)}
    s_cmp_eq_u32 {s(sFast)}, 0
    s_cbranch_scc1 L_tabst_slow ;!nd
    buffer_store_dwordx2 {v(K,2)}, off, {WS}, {s(sTabSt)}
    L_tabst_back:
    s_mov_b64 exec, -1
    L_nost:
    v_readlane_b32 {s(sKey)}, {v(K+1)}, 63
    v_pk_mul_f32 {v(NM,2)}, {v(MM,2)}, {v(RS,2)}
    v_pk_fma_f32 {v(VAR,2)}, {v(VAR,2)}, {v(CC,2)}, {s(sEps,2)}
    ''')
    Z=t+18
    for c_ in range(4):
        a(f'v_pk_fma_f32 {v(Z+2*c_,2)}, {v(X+2*c_,2)}, {v(RS,2)}, {v(NM,2)} neg_lo:[0,0,1] neg_hi:[0,0,1]')
        if c_==0: a(f'v_rsq_f32_e64 {v(RS2)}, |{v(VAR)}|')
        if c_==1: a(f'v_rsq_f32_e64 {v(RS2+1)}, |{v(VAR+1)}|')
    for c_ in range(4):
        a(f'v_pk_add_f32 {v(X+2*c_,2)}, {v(X+2*c_,2)}, {v(Z+2*c_,2)}')
    for rho in (0,1):
        for k in (0,1):
            a(f'v_cvt_pk_bf16_f32 {v(LNP+2*rho+k)}, {v(Z+4*k+rho)}, {v(Z+4*k+2+rho)}')
    a(f'''
    s_cmp_eq_u32 {s(sIt)}, 2
    s_cbranch_scc1 L_tab2e ;!nd
    v_pk_mul_f32 {v(CC,2)}, {v(RS2,2)}, {s(sC16,2)}
    L_z:
    ;@F
    ''')
    ZP=t; D0=t+4; D1=t+8
    a(f'v_pk_mul_f32 {v(NM,2)}, {v(MM,2)}, {v(CC,2)}')
    for c_ in range(4):
        a(f'v_pk_fma_f32 {v(Z+2*c_,2)}, {v(X+2*c_,2)}, {v(CC,2)}, {v(NM,2)} neg_lo:[0,0,1] neg_hi:[0,0,1]')
    for c_ in range(4): a(f'v_cvt_pk_f16_f32 {v(ZP+c_)}, {v(Z+2*c_)}, {v(Z+2*c_+1)}')
    a(f'''
    v_mfma_f32_16x16x16_f16 {v(D0,4)}, {v(A8,2)}, {v(ZP,2)}, 0
    v_mfma_f32_16x16x16_f16 {v(D1,4)}, {v(A8,2)}, {v(ZP+2,2)}, 0
    s_nop 6
    v_cvt_pk_f16_f32 {v(ZP)}, {v(D0)}, {v(D0+1)}
    v_cvt_pk_f16_f32 {v(ZP+1)}, {v(D1)}, {v(D1+1)}
    v_cvt_pk_f16_f32 {v(ZP+2)}, {v(D0+2)}, {v(D0+3)}
    v_cvt_pk_f16_f32 {v(ZP+3)}, {v(D1+2)}, {v(D1+3)}
    ds_write_b64 {v(vUW)}, {v(ZP,2)}
    ds_write_b64 {v(vUW)}, {v(ZP+2,2)} offset:1024
    ;@F
    s_waitcnt lgkmcnt(0)
    s_barrier
    ;@F
    ds_read_b64_tr_b16 {v(t,2)}, {v(vUR)}
    ds_read_b64_tr_b16 {v(t+2,2)}, {v(vUR)} offset:512
    ds_read_b64_tr_b16 {v(t+4,2)}, {v(vUR)} offset:1024
    ds_read_b64_tr_b16 {v(t+6,2)}, {v(vUR)} offset:1536
    s_cmp_ge_u32 {s(sW)}, {s(sIt)}
    s_cbranch_scc1 L_tg1 ;!nd
    buffer_load_dwordx2 {v(t+24,2)}, {v(vL8)}, {WS}, {s(sTabLd)} offen sc1
    L_tg1:
    L_tg2:
    s_waitcnt lgkmcnt(0)
    ;@F
    ''')
    P=t
    fft_core(t, t+4, t+8, t+16, t+8, P)
    for r in range(4): a(f'v_bfi_b32 {v(P+r)}, 1, {s(sPh)}, {v(P+r)}')
    def lstores(fl):
        for r in range(4): a(f'buffer_store_dword {v(P+r)}, {v(vLst)}, {WS}, {s(sLst)} offen offset:{128*r} {fl}')
    TB=t+24
    W_=t+4
    a(f'''
    s_cmp_lg_u32 {s(sIt)}, 0
    s_cbranch_scc1 L_tab1e
    ''')
    lstores('')
    stamp()
    a(f'''
    s_branch L_pub
    L_tab1e:
    s_cmp_eq_u32 {s(sW)}, 0
    s_cbranch_scc1 L_tabw1
    s_branch L_tabbar
    L_tab2e:
    s_cmp_eq_u32 {s(sW)}, 0
    s_cbranch_scc1 L_tab
    s_branch L_tabbar
    L_tab:
    buffer_load_dwordx2 {v(TB,2)}, {v(vL8)}, {WS}, {s(sTabLd)} offen sc1
    L_tabw1:
    s_waitcnt vmcnt(0)
    v_cmp_ne_u32 vcc, {s(sTag)}, {v(TB)}
    ''')
    poll_branch('L_tab', cfg.slp_t, f'''s_cmp_lg_u32 {s(sIt)}, 0
        s_cselect_b32 {s(sT)}, 0, 1
        s_sub_u32 {s(sTry)}, {s(sTry)}, {s(sT)}
        s_cbranch_scc1 L_tab2''')
    a(f'''
    L_tabok:
    v_cmp_ne_u32 vcc, {s(sKey)}, {v(TB+1)}
    v_cmp_lt_u32 {s(sT,2)}, {s(sKey)}, {v(TB+1)}
    v_mov_b32 {v(TB)}, {L_FLAG}
    s_cmp_eq_u32 {s(sIt)}, 0
    s_cselect_b32 {s(sT)}, vcc_lo, {s(sT)}
    v_mov_b32 {v(TB+1)}, {s(sT)}
    ds_write_b32 {v(TB)}, {v(TB+1)}
    s_waitcnt lgkmcnt(0)
    s_barrier
    s_branch L_tabgot
    L_tabbar:
    v_mov_b32 {v(TB)}, {L_FLAG}
    s_barrier
    ds_read_b32 {v(TB+1)}, {v(TB)}
    s_waitcnt lgkmcnt(0)
    v_readfirstlane_b32 {s(sT)}, {v(TB+1)}
    L_tabgot:
    s_cmp_eq_u32 {s(sIt)}, 0
    s_cbranch_scc1 L_fastchk ;!nd
    s_mov_b32 {s(sT+9)}, 64
    s_cmp_lg_u32 {s(sT)}, 0
    s_cbranch_scc1 L_winback ;!nd
    L_pub:
    s_andn2_b32 {s(sT)}, {s(sM7FF)}, {s(sKey)}      ; idx
    s_lshr_b32 {s(sT+9)}, {s(sT)}, 8                ; s1
    s_bitcmp1_b32 {s(sT+9)}, 0
    s_cselect_b64 vcc, -1, 0
    s_lshl_b32 {s(sT+1)}, {s(sT+9)}, 3
    s_and_b32 {s(sT+1)}, {s(sT+1)}, 0x30
    v_cndmask_b32 {v(W_)}, {v(LNP)}, {v(LNP+2)}, vcc
    v_cndmask_b32 {v(W_+1)}, {v(LNP+1)}, {v(LNP+3)}, vcc
    v_and_b32 {v(W_+2)}, 0x3ff, {v(vXoff)}
    s_bfm_b64 exec, 16, {s(sT+1)}
    buffer_store_dwordx2 {v(W_,2)}, {v(W_+2)}, {WS}, {s(sSlot)} offen sc1
    s_cmp_lg_u32 {s(sW)}, 0
    s_cbranch_scc1 L_nohdr
    v_mov_b32 {v(W_+8)}, {s(sKey)}
    v_cndmask_b32 {v(W_+9)}, {v(MM)}, {v(MM+1)}, vcc
    v_cndmask_b32 {v(W_+10)}, {v(RS2)}, {v(RS2+1)}, vcc
    v_mov_b32 {v(W_+11)}, {s(sKey)}
    buffer_store_dwordx4 {v(W_+8,4)}, off, {WS}, {s(sSlot)} offset:3072 sc1
    buffer_store_dwordx4 {v(W_+8,4)}, off, {WS}, {s(sSlot)} offset:3200 sc1
    L_nohdr:
    ''')
    for c_ in range(4): a(f'v_cndmask_b32 {v(W_+4+c_)}, {v(X+2*c_)}, {v(X+2*c_+1)}, vcc')
    a(f'''
    v_lshlrev_b32 {v(W_+2)}, 1, {v(W_+2)}
    buffer_store_dwordx4 {v(W_+4,4)}, {v(W_+2)}, {WS}, {s(sSlot)} offen offset:1024 sc1
    s_mov_b64 exec, -1
    s_cmp_eq_u32 {s(sIt)}, 0
    s_cbranch_scc1 L_flag0
    L_winback:
    s_cmp_eq_u32 {s(sIt)}, 2
    s_cbranch_scc1 L_fin
    s_add_u32 {s(sSlot)}, {s(sSlot)}, {SLOTR}
    ''')
    lstores('')
    stamp()
    a(f'''
    s_waitcnt vmcnt(0)
    s_branch L_tabdone
    L_flag0:
    ;@F
    v_mov_b32 {v(t+22)}, {s(sTag)}
    v_mov_b32 {v(t+23)}, {s(sKey)}
    s_waitcnt vmcnt(0)
    ;@F
    s_cmp_eq_u32 {s(sW)}, 0
    s_barrier
    s_cbranch_scc0 L_tabbar
    s_mov_b64 exec, 1
    buffer_store_dwordx2 {v(t+22,2)}, off, {WS}, {s(sTabSt)}
    s_mov_b64 exec, -1
    s_branch L_tab
    L_fastchk:
    s_cmp_eq_u32 {s(sT)}, 0
    s_cselect_b32 {s(sFast)}, 1, 0
    L_tabdone:
    s_cmp_eq_u32 {s(sFast)}, 0
    s_cbranch_scc1 L_slow
    L_slowback:
    ;@F
    s_cmp_lt_u32 {s(sJ)}, 8
    s_cbranch_scc0 L_y
    s_branch L_yself
    L_y:
    buffer_load_dwordx4 {v(t,4)}, {v(vLld)}, {WS}, {s(sLld)} offen sc1
    s_waitcnt vmcnt(0)
    ds_write_b128 {v(vYIW)}, {v(t,4)}
    ''')
    phchk(range(t,t+4), t+8)
    poll_branch('L_y', cfg.slp_l, mask=True)
    a('L_yjoin:')
    stamp()
    a(f'''
    s_cmp_lg_u32 {s(sT+12)}, 0
    s_cbranch_scc1 L_noxf
    s_lshl_b32 {s(sT+12)}, {s(sX)}, 7
    s_add_u32 {s(sT+12)}, {s(sT+12)}, {TABG}
    v_lshrrev_b32 {v(t+8)}, 1, {v(vL8)}
    v_mov_b32 {v(t+9)}, {s(sTag)}
    s_mov_b32 exec_hi, 0
    buffer_store_dword {v(t+9)}, {v(t+8)}, {WS}, {s(sT+12)} offen sc1
    s_mov_b64 exec, -1
    L_noxf:
    s_cmp_eq_u32 {s(sIt)}, 0
    s_cbranch_scc1 {'L_g2d' if cfg.g2pos==5 else 'L_nohl'}
    v_and_b32 {v(BC)}, 7, {v(vLane)}
    v_lshlrev_b32 {v(BC)}, 12, {v(BC)}
    s_mov_b32 {s(sT+10)}, {SLOT}
    s_mov_b64 exec, 0xff
    buffer_load_dwordx4 {v(LNP,4)}, {v(BC)}, {WS}, {s(sT+10)} offen offset:3200 sc1
    s_mov_b64 exec, -1
    {'s_branch L_nohl' if cfg.g2pos==5 else ''}
    {'L_g2d:' if cfg.g2pos==5 else ''}
    {g2late() if cfg.g2pos==5 else ''}
    L_nohl:
    ''')
    A0,A1=t,t+4; P0,Q0,P1,Q1=t+8,t+12,t+16,t+20
    a(f'''
    s_waitcnt lgkmcnt(0)
    s_barrier
    ;@F
    ds_read_b64_tr_b16 {v(A0,2)}, {v(vYIR)}
    ds_read_b64_tr_b16 {v(A0+2,2)}, {v(vYIR)} offset:{16*YIS}
    ds_read_b64_tr_b16 {v(A1,2)}, {v(vYIR)} offset:8
    ds_read_b64_tr_b16 {v(A1+2,2)}, {v(vYIR)} offset:{16*YIS+8}
    s_add_u32 {s(sTabLd)}, {s(sTabLd)}, {ARGR}
    s_add_u32 {s(sTabSt)}, {s(sTabSt)}, {ARGR}
    s_waitcnt lgkmcnt(2)
    v_mfma_f32_16x16x32_f16 {v(P0,4)}, {v(A0,4)}, {v(YC,4)}, 0
    v_mfma_f32_16x16x32_f16 {v(Q0,4)}, {v(A0,4)}, {v(YS,4)}, 0
    s_waitcnt lgkmcnt(0)
    v_mfma_f32_16x16x32_f16 {v(P1,4)}, {v(A1,4)}, {v(YC,4)}, 0
    v_mfma_f32_16x16x32_f16 {v(Q1,4)}, {v(A1,4)}, {v(YS,4)}, 0
    ''')
    for P_,Q_ in ((P0,Q0),(P1,Q1)):
        for h in (0,2):
            a(f'v_pk_add_f32 {v(P_+h,2)}, {v(P_+h,2)}, {v(Q_+h,2)} op_sel:[0,1] op_sel_hi:[1,0] neg_hi:[0,1]')
    a(f'''
    v_cvt_pk_f16_f32 {v(t)}, {v(P0)}, {v(P0+1)}
    v_cvt_pk_f16_f32 {v(t+1)}, {v(P0+2)}, {v(P0+3)}
    v_cvt_pk_f16_f32 {v(t+2)}, {v(P1)}, {v(P1+1)}
    v_cvt_pk_f16_f32 {v(t+3)}, {v(P1+2)}, {v(P1+3)}
    ''')
    if cfg.gre:
        for r in range(4): a(f'v_bfi_b32 {v(t+r)}, 1, {s(sPh)}, {v(t+r)}')
    a(f'''
    ds_write_b128 {v(vYW)}, {v(t,4)}
    ;@F
    s_waitcnt lgkmcnt(0)
    s_barrier
    ;@F
    ds_read_b128 {v(t+4,4)}, {v(vYR)}
    s_cmp_lg_u32 {s(sIt)}, 0
    s_cbranch_scc1 L_hdr
    s_waitcnt lgkmcnt(0)
    buffer_store_dwordx4 {v(t+4,4)}, {v(vGst)}, {WS}, {s(sG0)} offen sc1
    ''')
    stamp()
    a(f'''
    {g2late() if cfg.g2pos==3 else ''}
    v_and_b32 {v(t+24)}, 7, {v(vLane)}
    v_lshlrev_b32 {v(t+24)}, 7, {v(t+24)}
    s_mov_b32 {s(sT+10)}, {TABG}
    v_mov_b32 {v(t+20)}, {s(sTag)}
    ''')
    a(f's_mov_b64 exec, 0xff\nbuffer_load_dword {v(t+20)}, {v(t+24)}, {WS}, {s(sT+10)} offen sc1\ns_mov_b64 exec, -1')
    xin_consts(t+8)
    a(';@F\nL_tg0w:\ns_waitcnt vmcnt(0)')
    a(f'v_cmp_ne_u32 vcc, {s(sTag)}, {v(t+20)}')
    a(f'''
    s_cbranch_vccnz L_tg0_r ;!nd
    ''')
    if cfg.g2pos==4: a(f'''
    buffer_load_dwordx4 {v(t,4)}, {v(vGld)}, {WS}, {s(sG0)} offen sc1
    buffer_load_dwordx4 {v(t+4,4)}, {v(vGld)}, {WS}, {s(sG4)} offen sc1
    {g2late()}
    s_cmp_lg_u32 {s(sMir)}, 0
    s_waitcnt vmcnt(1)
    s_branch L_gw2
    ''')
    else: a('s_branch L_g')
    a(f'''
    L_g:
    ''')
    C0,C1=t,t+4
    a(f'''
    buffer_load_dwordx4 {v(C0,4)}, {v(vGld)}, {WS}, {s(sG0)} offen sc1
    buffer_load_dwordx4 {v(C1,4)}, {v(vGld)}, {WS}, {s(sG4)} offen sc1
    L_gw:
    s_cmp_lg_u32 {s(sMir)}, 0
    s_waitcnt vmcnt(0)
    L_gw2:
    s_cbranch_scc1 L_xmir ;!nd
    ''')
    E0,E1=t+8,t+12
    a(f'''
    v_mfma_f32_16x16x16_f16 {v(E0,4)}, {v(XA,2)}, {v(C0,2)}, 0
    v_mfma_f32_16x16x16_f16 {v(E1,4)}, {v(XA,2)}, {v(C0+2,2)}, 0
    v_mfma_f32_16x16x16_f16 {v(E0,4)}, {v(XA+2,2)}, {v(C1,2)}, {v(E0,4)}
    v_mfma_f32_16x16x16_f16 {v(E1,4)}, {v(XA+2,2)}, {v(C1+2,2)}, {v(E1,4)}
    s_branch L_xjoin ;!nd
    L_xmir:
    ''')
    a.hist=[]
    a(f'''
    v_mfma_f32_16x16x16_f16 {v(E0,4)}, {v(XA,2)}, {v(C0+2,2)}, 0
    v_mfma_f32_16x16x16_f16 {v(E1,4)}, {v(XA,2)}, {v(C0,2)}, 0
    v_mfma_f32_16x16x16_f16 {v(E0,4)}, {v(XA+2,2)}, {v(C1+2,2)}, {v(E0,4)}
    v_mfma_f32_16x16x16_f16 {v(E1,4)}, {v(XA+2,2)}, {v(C1,2)}, {v(E1,4)}
    L_xjoin:
    ''')
    if cfg.gre: phchk(range(t,t+8), t+16)
    else: maxchk(range(t,t+8), t+16)
    poll_branch('L_g', cfg.slp_g, mask=True)
    stamp()
    a(f'''
    s_mov_b32 {s(sIt)}, 1
    s_mov_b32 {s(sPh)}, -1
    {f's_add_u32 {s(sG0)}, {s(sG0)}, {GR}' if not cfg.gre else ''}
    {f's_add_u32 {s(sG4)}, {s(sG4)}, {GR}' if not cfg.gre else ''}
    L_apply:
    s_cmp_eq_u32 {s(sNx)}, 0
    v_pk_fma_f32 {v(X,2)}, {v(E0,2)}, {v(vSc0,2)}, {v(X,2)}
    v_pk_fma_f32 {v(X+2,2)}, {v(E0+2,2)}, {s(sSc,2)}, {v(X+2,2)}
    v_pk_fma_f32 {v(X+4,2)}, {v(E1,2)}, {s(sSc,2)}, {v(X+4,2)}
    v_pk_fma_f32 {v(X+6,2)}, {v(E1+2,2)}, {s(sSc,2)}, {v(X+6,2)}
    s_cbranch_scc1 L_top ;!nd
    s_branch L_corr
    ''')
    a(f'''
    L_yself:
    buffer_load_dwordx4 {v(t,4)}, {v(vLld)}, {WS}, {s(sLld)} offen sc1
    buffer_load_dwordx4 {v(t+4,4)}, {v(vLldM)}, {WS}, {s(sLld)} offen sc1
    s_waitcnt vmcnt(0)
    ''')
    phchk(range(t,t+8), t+8)
    poll_branch('L_yself', cfg.slp_l, mask=True)
    a(f'''
    s_bitcmp1_b32 {s(sW)}, 0
    s_cbranch_scc1 L_yself4
    ''')
    for k in range(4): a(f'v_pk_add_f16 {v(t+k)}, {v(t+k)}, {v(t+7-k)} neg_hi:[0,1]')
    a(f'ds_write_b128 {v(vYIW)}, {v(t,4)}\ns_branch L_yjoin\nL_yself4:')
    for k in range(4): a(f'v_pk_add_f16 {v(t+k)}, {v(t+k)}, {v(t+7-k)} op_sel:[1,1] op_sel_hi:[0,0] neg_hi:[1,0]')
    a(f'ds_write_b128 {v(vYIW)}, {v(t,4)}\ns_branch L_yjoin')
    a(f'''
    L_s3w:
    v_pk_add_f32 {v(S3,2)}, {v(WV,2)}, {v(WV+2,2)}
    v_add_f32 {v(S3)}, {v(S3)}, {v(S3+1)}
    v_mov_b32 {v(S3+1)}, {v(S3)}
    s_branch L_s3ok
    L_it0:
    s_mov_b32 {s(sKey)}, {s(sXcc)}
    v_pk_mul_f32 {v(CC,2)}, {v(RS,2)}, {s(sC16,2)}
    v_mov_b32 {v(S1)}, 0x44000000
    v_pk_add_f32 {v(WV,2)}, {v(WV,2)}, {v(S3,2)} neg_lo:[0,1] neg_hi:[0,1]
    v_pk_add_f32 {v(WV+2,2)}, {v(WV+2,2)}, {v(S3,2)} neg_lo:[0,1] neg_hi:[0,1]
    v_pk_mul_f32 {v(WV,2)}, {v(WV,2)}, {v(S1,2)} op_sel_hi:[1,0]
    v_pk_mul_f32 {v(WV+2,2)}, {v(WV+2,2)}, {v(S1,2)} op_sel_hi:[1,0]
    ''')
    a('s_branch L_z')
    H=LNP
    sIdx=sT+11
    KA=BC+6; EK=BC+8; vYP=BC+9; SEL=BC+10; vDW,vDR=BC+12,BC+13
    YR=t+8; YL=t+12; YD=t+20
    gl=f'buffer_load_dwordx4 {v(C0,4)}, {v(vGld)}, {WS}, {s(sG0)} offen sc1\nbuffer_load_dwordx4 {v(C1,4)}, {v(vGld)}, {WS}, {s(sG4)} offen sc1'
    def hdrpoll(lbl, slp, issued=False, after=''):
        if not issued: a(f"""
        v_and_b32 {v(BC)}, 7, {v(vLane)}
        v_lshlrev_b32 {v(BC)}, 12, {v(BC)}
        """)
        a(f"""
        s_mov_b64 exec, 0xff
        {f's_waitcnt vmcnt({0 if cfg.gre else 1})' if issued else ''}
        {f's_branch {lbl}_c' if issued else ''}
        {lbl}:
        buffer_load_dwordx4 {v(H,4)}, {v(BC)}, {WS}, {s(sT+10)} offen offset:3200 sc1
        s_waitcnt vmcnt(0)
        {lbl}_c:
        """)
        maxchk(range(H,H+4), t+17)
        poll_branch(lbl, slp, skip=True)
        a('s_mov_b64 exec, -1')
        if after: a(after); stamp()
        a(f"""
        v_max_u32_dpp {v(H+3)}, {v(H)}, {v(H)} row_half_mirror {DPP}
        v_max_u32_dpp {v(H+3)}, {v(H+3)}, {v(H+3)} quad_perm:[1,0,3,2] {DPP}
        v_max_u32_dpp {v(H+3)}, {v(H+3)}, {v(H+3)} quad_perm:[2,3,0,1] {DPP}
        v_readfirstlane_b32 {s(sIdx)}, {v(H+3)}
        """)
    def owner():
        a(f"""
        s_sub_u32 {s(sT)}, 2047, {s(sIdx)}
        s_add_u32 {s(sT+1)}, {s(sT)}, 256
        v_cmp_eq_u32 vcc, {s(sT)}, {v(vInv)}
        v_cmp_eq_u32 {s(sT+2,2)}, {s(sT+1)}, {v(vInv)}
        v_cndmask_b32 {v(BC)}, 0, 1.0, vcc
        v_cndmask_b32 {v(BC+1)}, 0, 1.0, {s(sT+2,2)}
        """)
    gst=f's_waitcnt lgkmcnt(0)\nbuffer_store_dwordx4 {v(t+4,4)}, {v(vGst)}, {WS}, {s(sG0)} offen sc1'
    a(f'L_hdr:')
    if not cfg.gre: a(gst); stamp()
    hdrpoll('L_hdrp', 2, True, gst if cfg.gre else '')
    a(f"""
    v_and_b32 {v(vYP)}, 0x3ff, {v(vXoff)}
    v_lshlrev_b32 {v(t+16)}, 1, {v(vYP)}
    s_andn2_b32 {s(sIdx)}, {s(sM7FF)}, {s(sIdx)}
    s_and_b32 {s(sT)}, {s(sIdx)}, 7
    s_lshl_b32 {s(sT+1)}, {s(sT)}, 12
    s_add_u32 {s(sT+10)}, {s(sT+10)}, {s(sT+1)}
    buffer_load_dwordx4 {v(BC+2,4)}, {v(t+16)}, {WS}, {s(sT+10)} offen offset:1024 sc1
    v_readlane_b32 {s(sT+13)}, {v(H+1)}, {s(sT)}
    v_readlane_b32 {s(sT+14)}, {v(H+2)}, {s(sT)}
    v_mul_u32_u24 {v(t+17)}, {s(sIdx)}, {v(AD)}
    v_and_b32 {v(t+17)}, 0x7ff, {v(t+17)}
    v_cvt_f32_u32 {v(t+17)}, {v(t+17)}
    v_mul_f32 {v(t+17)}, {fbits(1/2048)}, {v(t+17)}
    v_cos_f32 {v(t+18)}, {v(t+17)}
    v_sin_f32 {v(t+19)}, {v(t+17)}
    v_and_b32 {v(t+17)}, 0x22, {v(vLane)}
    v_cvt_pk_f16_f32 {v(t+18)}, {v(t+18)}, {v(t+19)}
    v_cmp_eq_u32 vcc, 0, {v(t+17)}
    v_mov_b32 {v(KA)}, {s(sT+14)}
    v_mul_f32 {v(KA)}, {s(sC16)}, {v(KA)}
    v_cndmask_b32 {v(AD)}, 0, {v(t+18)}, vcc
    v_cmp_eq_u32 vcc, 2, {v(t+17)}
    v_mul_f32 {v(EK)}, {v(KA)}, {v(KA)}
    v_mul_f32 {v(EK)}, {s(sEps)}, {v(EK)}
    v_cndmask_b32 {v(AD+1)}, 0, {v(t+18)}, vcc
    """)
    owner()
    a(f"""
    v_lshlrev_b32 {v(t+17)}, 4, {v(vLane)}
    v_mov_b32 {v(t+18)}, 0x3f80
    v_and_b32 {v(t+17)}, 16, {v(t+17)}
    v_lshlrev_b32 {v(t+18)}, {v(t+17)}, {v(t+18)}
    v_and_b32 {v(t+17)}, 2, {v(vLane)}
    v_cmp_eq_u32 vcc, 0, {v(t+17)}
    v_lshl_add_u32 {v(vYP)}, {v(vQ)}, 10, {v(vYP)}
    s_lshl_b32 {s(sT+3)}, {s(sW)}, 8
    v_cndmask_b32 {v(SEL)}, 0, {v(t+18)}, vcc
    v_cndmask_b32 {v(SEL+1)}, {v(t+18)}, 0, vcc
    s_add_u32 {s(sT+3)}, {s(sT+3)}, {L_DH}
    v_lshl_add_u32 {v(vDR)}, {v(vN)}, 4, {s(sT+3)}
    v_and_b32 {v(t+17)}, 1, {v(vQ)}
    v_lshl_add_u32 {v(vDR)}, {v(t+17)}, 11, {v(vDR)}
    v_cmp_eq_u32 vcc, 0, {v(vQ)}
    v_add_u32 {v(vDW)}, {L_DH}, {v(vLst)}
    s_mov_b32 {s(sYo)}, {YP}
    s_lshl_b32 {s(sYh)}, {s(sX)}, 7
    s_add_u32 {s(sYh)}, {s(sYh)}, {YHINT}
    s_lshl_b32 {s(sSg)}, {s(sW)}, 30
    s_and_b32 {s(sSg)}, {s(sSg)}, {s(sTop)}
    s_xor_b32 {s(sSg)}, {s(sSg)}, {s(sDsc)}
    s_mov_b32 {s(sNx)}, 2
    v_cndmask_b32 {v(KA+1)}, 0, {v(KA)}, vcc
    s_waitcnt vmcnt(0)
    {gl if not cfg.hold else ''}
    L_basew:
    """)
    maxchk(range(BC+2,BC+6), t+17)
    a('s_cbranch_vccnz L_base_r ;!nd')
    for k in range(4): a(f'v_subrev_f32 {v(BC+2+k)}, {s(sT+13)}, {v(BC+2+k)}')
    for k in range(4): a(f'v_mul_f32 {v(BC+2+k)}, {v(KA)}, {v(BC+2+k)}')
    a(f"""
    s_branch {'L_ywait' if cfg.hold else 'L_gw'}
    L_corr:
    s_mov_b32 {s(sIt)}, 2
    s_mov_b32 {s(sNx)}, 0
    {'s_branch L_yc' if cfg.hold else ''}
    L_ywait:
    s_add_u32 {s(sT+2)}, {s(sYo)}, 4096
    s_cmp_lg_u32 {s(sW)}, 0
    s_cbranch_scc1 L_hintb
    s_movk_i32 {s(sTry)}, 500
    v_lshrrev_b32 {v(t)}, 1, {v(vL8)}
    """)
    if cfg.own: a(f"""
    s_cmp_eq_u32 {s(sIt)}, 3
    s_cbranch_scc1 L_hint
    s_lshl_b32 {s(sT)}, {s(sJ)}, 2
    v_mov_b32 {v(t)}, {s(sT)}
    """)
    a(f"""
    L_hint:
    buffer_load_dword {v(t+1)}, {v(t)}, {WS}, {s(sYh)} offen sc1
    s_waitcnt vmcnt(0)
    v_cmp_ne_u32 vcc, {s(sTag)}, {v(t+1)}
    """)
    poll_branch('L_hint', 1, giveup='L_hintb')
    if cfg.tim_y: a(f's_sleep {cfg.tim_y}')
    a(f"""
    L_hintb:
    s_barrier
    """)
    if cfg.hold: a(f"""
    s_cmp_eq_u32 {s(sIt)}, 3
    s_cbranch_scc1 L_yv3
    {gl}
    {f's_sleep {cfg.tim_gy}' if cfg.tim_gy else ''}
    buffer_load_dwordx2 {v(YD,2)}, {v(vYP)}, {WS}, {s(sYo)} offen sc1
    buffer_load_dwordx2 {v(YD+2,2)}, {v(vYP)}, {WS}, {s(sT+2)} offen sc1
    s_cmp_lg_u32 {s(sMir)}, 0
    s_waitcnt vmcnt(2)
    s_branch L_gw2
    L_yv3:
    {f's_sleep {cfg.tim_y3}' if cfg.tim_y3 else ''}
    s_branch L_yv
    """)
    a(f"""
    L_yv:
    buffer_load_dwordx2 {v(YD,2)}, {v(vYP)}, {WS}, {s(sYo)} offen sc1
    buffer_load_dwordx2 {v(YD+2,2)}, {v(vYP)}, {WS}, {s(sT+2)} offen sc1
    L_yc:
    s_waitcnt vmcnt(0)
    v_mfma_f32_16x16x16_bf16 {v(YR,4)}, {v(SEL,2)}, {v(YD,2)}, 0
    v_mfma_f32_16x16x16_bf16 {v(YR,4)}, {v(SEL,2)}, {v(YD+2,2)}, {v(YR,4)}
    """)
    maxchk(range(YD,YD+4), t+17)
    poll_branch('L_yv', 1, mask=True)
    stamp()
    own=[f'v_pk_fma_f32 {v(X,2)}, {v(BC,2)}, {v(YR,2)}, {v(X,2)} op_sel:[0,0,0] op_sel_hi:[1,0,1]',
         f'v_pk_fma_f32 {v(X+2,2)}, {v(BC,2)}, {v(YR,2)}, {v(X+2,2)} op_sel:[0,1,0] op_sel_hi:[1,1,1]',
         f'v_pk_fma_f32 {v(X+4,2)}, {v(BC,2)}, {v(YR+2,2)}, {v(X+4,2)} op_sel:[0,0,0] op_sel_hi:[1,0,1]',
         f'v_pk_fma_f32 {v(X+6,2)}, {v(BC,2)}, {v(YR+2,2)}, {v(X+6,2)} op_sel:[0,1,0] op_sel_hi:[1,1,1]']
    s1,s2=t+20,t+21
    a(f"""
    s_cmp_eq_u32 {s(sIt)}, 3
    s_cbranch_scc1 L_fin3
    L_pass:
    v_pk_fma_f32 {v(YL,2)}, {v(YR,2)}, {v(KA,2)}, {v(BC+2,2)} op_sel:[0,1,0]
    v_pk_fma_f32 {v(YL+2,2)}, {v(YR+2,2)}, {v(KA,2)}, {v(BC+4,2)} op_sel:[0,1,0]
    v_cvt_pk_f16_f32 {v(YL)}, {v(YL)}, {v(YL+1)}
    v_cvt_pk_f16_f32 {v(YL+1)}, {v(YL+2)}, {v(YL+3)}
    ds_write_b64 {v(vUW)}, {v(YL,2)}
    {own[0]}
    {own[1]}
    {own[2]}
    {own[3]}
    s_cmp_gt_u32 {s(sW)}, 3
    s_waitcnt lgkmcnt(0)
    s_barrier
    s_cbranch_scc1 L_dhb ;!nd
    ds_read_b64_tr_b16 {v(t+8,2)}, {v(vUR)}
    ds_read_b64_tr_b16 {v(t+10,2)}, {v(vUR)} offset:512
    v_mov_b32 {v(t+22)}, 0x3c003c00
    s_waitcnt lgkmcnt(0)
    ;@F
    """)
    XR=t+8; U_=t+12; V_=YC; PP=LNP
    Ur,Ui=U_,U_+4; Vr,Vi=V_,V_+4
    a(f"""
    v_mfma_f32_16x16x32_f16 {v(Ur,4)}, {v(XR,4)}, {v(B1C,4)}, 0
    v_mfma_f32_16x16x32_f16 {v(Ui,4)}, {v(XR,4)}, {v(B1N,4)}, 0
    v_dot2_f32_f16 {v(s1)}, {v(XR)}, {v(t+22)}, 0
    v_dot2_f32_f16 {v(s2)}, {v(XR)}, {v(XR)}, 0
    v_dot2_f32_f16 {v(s1)}, {v(XR+1)}, {v(t+22)}, {v(s1)}
    v_dot2_f32_f16 {v(s2)}, {v(XR+1)}, {v(XR+1)}, {v(s2)}
    v_dot2_f32_f16 {v(s1)}, {v(XR+2)}, {v(t+22)}, {v(s1)}
    v_dot2_f32_f16 {v(s2)}, {v(XR+2)}, {v(XR+2)}, {v(s2)}
    v_dot2_f32_f16 {v(s1)}, {v(XR+3)}, {v(t+22)}, {v(s1)}
    v_dot2_f32_f16 {v(s2)}, {v(XR+3)}, {v(XR+3)}, {v(s2)}
    v_pk_mul_f32 {v(Vi,2)}, {v(Ur,2)}, {v(TWS,2)}
    v_pk_mul_f32 {v(Vi+2,2)}, {v(Ur+2,2)}, {v(TWS+2,2)}
    v_pk_mul_f32 {v(Vr,2)}, {v(Ui,2)}, {v(TWS,2)}
    v_permlane32_swap_b32 {v(s1)}, {v(s2)}
    v_pk_mul_f32 {v(Vr+2,2)}, {v(Ui+2,2)}, {v(TWS+2,2)}
    v_add_f32 {v(s1)}, {v(s1)}, {v(s2)}
    v_pk_fma_f32 {v(Vr,2)}, {v(Ur,2)}, {v(TWC,2)}, {v(Vr,2)}
    v_pk_fma_f32 {v(Vi,2)}, {v(Ui,2)}, {v(TWC,2)}, {v(Vi,2)} neg_lo:[0,0,1] neg_hi:[0,0,1]
    v_add_f32_dpp {v(s1)}, {v(s1)}, {v(s1)} row_ror:8 {DPP}
    v_pk_fma_f32 {v(Vr+2,2)}, {v(Ur+2,2)}, {v(TWC+2,2)}, {v(Vr+2,2)}
    v_pk_fma_f32 {v(Vi+2,2)}, {v(Ui+2,2)}, {v(TWC+2,2)}, {v(Vi+2,2)} neg_lo:[0,0,1] neg_hi:[0,0,1]
    v_add_f32_dpp {v(s1)}, {v(s1)}, {v(s1)} row_ror:4 {DPP}
    v_cvt_pk_f16_f32 {v(PP)}, {v(Vr)}, {v(Vi)}
    v_cvt_pk_f16_f32 {v(PP+1)}, {v(Vr+1)}, {v(Vi+1)}
    v_add_f32_dpp {v(s1)}, {v(s1)}, {v(s1)} row_ror:2 {DPP}
    v_cvt_pk_f16_f32 {v(PP+2)}, {v(Vr+2)}, {v(Vi+2)}
    v_cvt_pk_f16_f32 {v(PP+3)}, {v(Vr+3)}, {v(Vi+3)}
    v_add_f32_dpp {v(s1)}, {v(s1)}, {v(s1)} row_ror:1 {DPP}
    v_mfma_f32_16x16x32_f16 {v(Ur,4)}, {v(A2R,4)}, {v(PP,4)}, 0
    v_mfma_f32_16x16x32_f16 {v(Ui,4)}, {v(A2I,4)}, {v(PP,4)}, 0
    v_add_f32_dpp {v(s1)}, {v(s1)}, {v(s1)} row_bcast:15 row_mask:0xa bank_mask:0xf
    v_mul_f32 {v(s1)}, {s(sK512)}, {v(s1)}
    v_readlane_b32 {s(sT+2)}, {v(s1)}, 63
    v_readlane_b32 {s(sT+1)}, {v(s1)}, 31
    v_add_f32 {v(s2)}, {s(sT+2)}, {v(EK)}
    v_mov_b32 {v(s1)}, {s(sT+1)}
    v_fma_f32 {v(s1)}, -{v(s1)}, {v(s1)}, {v(s2)}
    v_rsq_f32_e64 {v(s1)}, |{v(s1)}|
    v_mul_f32 {v(s1)}, {s(sSg)}, {v(s1)}
    """)
    for k in range(4): a(f'v_pk_mul_f32 {v(U_+2*k,2)}, {v(U_+2*k,2)}, {v(s1,2)} op_sel_hi:[1,0]')
    for r in range(4): a(f'v_cvt_pk_f16_f32 {v(PP+r)}, {v(Ur+r)}, {v(Ui+r)}')
    a(f"""
    ds_write2_b32 {v(vDW)}, {v(PP)}, {v(PP+1)} offset0:0 offset1:32
    ds_write2_b32 {v(vDW)}, {v(PP+2)}, {v(PP+3)} offset0:64 offset1:96
    s_waitcnt lgkmcnt(0)
    L_dhb:
    s_barrier
    ds_read_b128 {v(t+16,4)}, {v(vDR)}
    s_waitcnt lgkmcnt(0)
    v_mfma_f32_16x16x16_f16 {v(E0,4)}, {v(AD,2)}, {v(t+16,2)}, 0
    v_mfma_f32_16x16x16_f16 {v(E1,4)}, {v(AD,2)}, {v(t+18,2)}, 0
    s_nop 4
    s_branch L_apply ;!nd
    """)
    a('L_fin:')
    for rho in (0,1):
        for k in (0,1):
            a(f'v_cvt_pk_bf16_f32 {v(t+2*rho+k)}, {v(X+4*k+rho)}, {v(X+4*k+2+rho)}')
    a(f"""
    v_lshlrev_b32 {v(t+16)}, 1, {v(vQ)}
    v_mov_b32 {v(t+19)}, 0x200000
    s_sub_u32 {s(sT)}, {s(sT+9)}, 1
    v_cmp_eq_u32 vcc, {s(sT+9)}, {v(t+16)}
    v_cmp_eq_u32 {s(sT+2,2)}, {s(sT)}, {v(t+16)}
    v_cndmask_b32 {v(t+17)}, {v(vXoff)}, {v(t+19)}, vcc
    v_cndmask_b32 {v(t+18)}, {v(vXoff)}, {v(t+19)}, {s(sT+2,2)}
    buffer_store_dwordx2 {v(t,2)}, {v(t+17)}, {OS}, {s(sRow0)} offen sc1
    buffer_store_dwordx2 {v(t+2,2)}, {v(t+18)}, {OS}, {s(sRow1)} offen sc1
    v_cndmask_b32 {v(t+24)}, {v(t+19)}, {v(vXoff)}, vcc
    v_cndmask_b32 {v(t+25)}, {v(t+19)}, {v(vXoff)}, {s(sT+2,2)}
    s_or_b32 {s(sT)}, s2, {s(sW)}
    s_cbranch_scc1 L_fin2
    v_mov_b32 {v(t+20)}, {s(sTag)}
    buffer_store_dword {v(t+20)}, off, {WS}, 0 sc1
    L_fin2:
    s_cmp_eq_u32 {s(sT+9)}, 64
    s_cbranch_scc1 L_fin5
    s_mov_b32 {s(sT+10)}, {SLOT+SLOTR}
    s_sleep {cfg.tim_fh}
    """)
    hdrpoll('L_fhdr', 4)
    a(f"""
    s_cmp_lg_u32 {s(sIdx)}, {s(sKey)}
    s_cbranch_scc1 L_fin4
    s_andn2_b32 {s(sIdx)}, {s(sM7FF)}, {s(sIdx)}
    s_mov_b32 {s(sIt)}, 3
    s_add_u32 {s(sYo)}, {s(sYo)}, {YPR}
    s_add_u32 {s(sYh)}, {s(sYh)}, {YHR}
    """)
    owner()
    a('s_branch L_ywait\nL_fin3:')
    a('\n'.join(own))
    for rho in (0,1):
        for k in (0,1):
            a(f'v_cvt_pk_bf16_f32 {v(t+2*rho+k)}, {v(X+4*k+rho)}, {v(X+4*k+2+rho)}')
    a(f"""
    L_fin4:
    buffer_store_dwordx2 {v(t,2)}, {v(t+24)}, {OS}, {s(sRow0)} offen sc1
    buffer_store_dwordx2 {v(t+2,2)}, {v(t+25)}, {OS}, {s(sRow1)} offen sc1
    L_fin5:
    """)
    stamp(); dump_stamps()
    a('s_endpgm')
    a(f"""
    L_base_r:
    s_sub_u32 {s(sCnt)}, {s(sCnt)}, 1
    s_cbranch_scc1 L_end
    s_sleep 2
    buffer_load_dwordx4 {v(BC+2,4)}, {v(t+16)}, {WS}, {s(sT+10)} offen offset:1024 sc1
    s_waitcnt vmcnt(0)
    s_branch L_basew
    """)
    def pub2():
        a(f'''
        v_mov_b32 {v(t+4)}, {s(sTag)}
        v_mov_b32 {v(t+5)}, {s(sXcc)}
        s_add_u32 {s(sT)}, {s(sTabSt)}, {TAB2-TABL}
        buffer_store_dwordx2 {v(t+4,2)}, off, {WS}, {s(sT)} sc1
        ''')
    a(f'''
    L_tabst_slow:
    buffer_store_dwordx2 {v(K,2)}, off, {WS}, {s(sTabSt)} sc1
    s_branch L_tabst_back
    L_tg0_r:
    s_sub_u32 {s(sCnt)}, {s(sCnt)}, 1
    s_cbranch_scc1 L_end
    s_sleep 2
    ''')
    a(f's_mov_b64 exec, 0xff\nbuffer_load_dword {v(t+20)}, {v(t+24)}, {WS}, {s(sT+10)} offen sc1\ns_mov_b64 exec, -1')
    a('s_branch L_tg0w\nL_tab2:')
    pub2()
    a(f'''
    s_add_u32 {s(sT+1)}, {s(sTabLd)}, {TAB2-TABL}
    L_tab2p:
    buffer_load_dwordx2 {v(TB,2)}, {v(vL8)}, {WS}, {s(sTabLd)} offen sc1
    buffer_load_dwordx2 {v(t+6,2)}, {v(vL8)}, {WS}, {s(sT+1)} offen sc1
    s_waitcnt vmcnt(0)
    v_cmp_eq_u32 vcc, {s(sTag)}, {v(TB)}
    v_cndmask_b32 {v(TB)}, {v(t+6)}, {v(TB)}, vcc
    v_cndmask_b32 {v(TB+1)}, {v(t+7)}, {v(TB+1)}, vcc
    v_cmp_ne_u32 vcc, {s(sTag)}, {v(TB)}
    ''')
    poll_branch('L_tab2p', 4)
    a(f'''
    s_branch L_tabok
    L_slow:
    s_cmp_lg_u32 {s(sIt)}, 0
    s_cbranch_scc1 L_slow1
    ''')
    pub2()
    a('L_slow1:')
    lstores('sc1')
    a(f'''
    s_waitcnt vmcnt(0)
    s_barrier
    s_add_u32 {s(sT)}, {s(sTabSt)}, {SLOWF-TABL}
    s_add_u32 {s(sT+1)}, {s(sTabLd)}, {SLOWF-TABL}
    v_mov_b32 {v(t+4)}, {s(sTag)}
    s_cmp_lg_u32 {s(sW)}, 0
    s_cbranch_scc1 L_slowp
    buffer_store_dword {v(t+4)}, off, {WS}, {s(sT)} sc1
    L_slowp:
    buffer_load_dword {v(t+5)}, {v(vL8)}, {WS}, {s(sT+1)} offen sc1
    s_waitcnt vmcnt(0)
    v_cmp_ne_u32 vcc, {s(sTag)}, {v(t+5)}
    ''')
    poll_branch('L_slowp', 2)
    a('s_branch L_slowback')

def hint_store(vreg, soff, lbl):
    a(f'''
    s_mov_b64 exec, 1
    s_cmp_eq_u32 {s(sFast)}, 0
    s_cbranch_scc1 {lbl}_s
    buffer_store_dword {v(vreg)}, off, {WS}, {s(soff)}
    s_branch {lbl}_d
    {lbl}_s:
    buffer_store_dword {v(vreg)}, off, {WS}, {s(soff)} sc1
    {lbl}_d:
    s_mov_b64 exec, -1
    ''')

def ffn():
    WA=4; WD=20; t=40
    vXL=24; vXW=25; vXR=26; vPS=27; vPL=28; vHW=29; vHR=30; vDP=31; vTag=32; vSig=34; vFl=35
    sI=sJ; sRnd=sIt; sPo=sLst; sPs=sLld
    F_W=0; TS=4096+64; F_X=0x4400; F_KEY=0x4D00; F_H=0x4E00; F_D=0x5200; F_WD=0x5400
    a(f"""
    L_ffn:
    s_and_b32 {s(sI)}, {s(sJ)}, 31
    s_min_u32 {s(sT+2)}, {s(sI)}, 27
    s_and_b32 {s(sT)}, {s(sT+2)}, 3
    s_lshl_b32 {s(sT+8)}, {s(sT)}, 8              ; 256*ks
    s_mul_i32 {s(sT+9)}, {s(sT)}, {28*64}
    s_mul_i32 {s(sT)}, {s(sT)}, {128*3584}
    s_mul_i32 {s(sT+1)}, {s(sX)}, 448
    s_add_u32 {s(sT)}, {s(sT)}, {s(sT+1)}
    s_lshr_b32 {s(sT+2)}, {s(sT+2)}, 2
    s_lshl_b32 {s(sT+3)}, {s(sT+2)}, 6
    s_add_u32 {s(sT)}, {s(sT)}, {s(sT+3)}
    v_lshrrev_b32 {v(t+3)}, 2, v0
    v_mul_u32_u24 {v(t)}, 3584, {v(t+3)}
    v_and_b32 {v(t+4)}, 3, v0
    v_lshl_add_u32 {v(t)}, {v(t+4)}, 4, {v(t)}
    v_add_u32 {v(t)}, {s(sT)}, {v(t)}
    s_mul_i32 {s(sT)}, {s(sX)}, {224*1024}
    s_lshl_b32 {s(sT+1)}, {s(sI)}, 5
    s_add_u32 {s(sT)}, {s(sT)}, {s(sT+1)}
    v_lshrrev_b32 {v(t+1)}, 1, v0
    v_min_u32 {v(t+1)}, 223, {v(t+1)}
    v_lshlrev_b32 {v(t+1)}, 10, {v(t+1)}
    v_and_b32 {v(t+2)}, 1, v0
    v_lshl_add_u32 {v(t+1)}, {v(t+2)}, 4, {v(t+1)}
    v_add_u32 {v(t+1)}, {s(sT)}, {v(t+1)}
    s_add_u32 {s(sT+10)}, {s(sTabLd)}, {FTAB-TABL}
    s_waitcnt lgkmcnt(0)
    {f'v_lshlrev_b32 {v(T+25)}, {cfg.tlb}, v0' if cfg.tlb else ''}
    {f'buffer_load_dword {v(T+21)}, {v(T+25)}, {WS}, 0 offen sc1' if cfg.tlb else ''}
    {f'buffer_load_dword {v(T+21)}, {v(T+25)}, {OS}, 0 offen sc1' if cfg.tlb else ''}
    {f's_sleep {cfg.fdelay}' if cfg.fdelay else ''}
    {f'global_load_dwordx4 {v(T+8,4)}, {v(t)}, s[18:19]' if cfg.wdpos<2 else f'v_mov_b32 {v(T+24)}, {v(t)}'}
    {f'global_load_dwordx4 {v(T+12,4)}, {v(t)}, s[20:21]' if cfg.wdpos<2 else ''}
    {f'global_load_dwordx4 {v(T+16,4)}, {v(t+1)}, s[22:23]' if cfg.wdpos==0 else f'v_mov_b32 {v(T+23)}, {v(t+1)}'}
    buffer_load_dword {v(T+20)}, off, {WS}, 0 sc1
    buffer_load_dword {v(T+21)}, {v(vL8)}, {WS}, {s(sT+10)} offen sc1
    v_mul_u32_u24 {v(T+22)}, {TS}, {v(t+4)}
    v_lshl_add_u32 {v(T+22)}, {v(t+3)}, 5, {v(T+22)}
    v_lshlrev_b32 {v(t+5)}, 4, {v(vN)}
    s_and_b32 {s(sT)}, {s(sW)}, 1
    s_lshl_b32 {s(sT)}, {s(sT)}, 2
    v_add_u32 {v(t+6)}, {s(sT)}, {v(vQ)}
    v_lshl_add_u32 {v(vXL)}, {v(t+6)}, 12, {v(t+5)}
    v_add_u32 {v(vXL)}, {s(sT+8)}, {v(vXL)}
    v_mul_u32_u24 {v(vXW)}, 272, {v(t+6)}
    v_add_u32 {v(vXW)}, {v(vXW)}, {v(t+5)}
    v_and_b32 {v(t+6)}, 7, {v(vLane)}
    v_mul_u32_u24 {v(vXR)}, 272, {v(t+6)}
    v_lshl_add_u32 {v(vXR)}, {v(vQ)}, 4, {v(vXR)}
    s_cmp_lg_u32 {s(sW)}, 6
    s_cbranch_scc1 L_fa1
    v_lshlrev_b32 {v(vXL)}, 12, {v(t+6)}
    L_fa1:
    s_lshl2_add_u32 {s(sT)}, {s(sT+2)}, {s(sW)}
    s_lshl_b32 {s(sT)}, {s(sT)}, 6
    s_add_u32 {s(sT)}, {s(sT)}, {s(sT+9)}
    v_lshl_add_u32 {v(vPS)}, {v(vN)}, 2, {s(sT)}
    s_lshl_b32 {s(sT)}, {s(sW)}, 8
    v_mul_u32_u24 {v(vPL)}, 1792, {v(vQ)}
    v_add3_u32 {v(vPL)}, {v(vPL)}, {v(t+5)}, {s(sT)}
    s_lshl_b32 {s(sT)}, {s(sW)}, 7
    s_add_u32 {s(sT)}, {s(sT)}, {F_H}
    v_lshl_add_u32 {v(vHR)}, {v(vQ)}, 4, {s(sT)}
    v_and_b32 {v(t+6)}, 12, {v(vN)}
    v_lshl_add_u32 {v(vHW)}, {v(t+6)}, 2, {s(sT)}
    v_and_b32 {v(t+6)}, 1, {v(vN)}
    v_lshl_add_u32 {v(vHW)}, {v(t+6)}, 3, {v(vHW)}
    v_and_b32 {v(t+6)}, 2, {v(vN)}
    v_lshl_add_u32 {v(vHW)}, {v(t+6)}, 5, {v(vHW)}
    v_and_b32 {v(t+6)}, 2, {v(vQ)}
    v_add_u32 {v(vHW)}, {v(vHW)}, {v(t+6)}
    v_and_b32 {v(t+6)}, 1, {v(vQ)}
    v_lshl_add_u32 {v(vHW)}, {v(t+6)}, 2, {v(vHW)}
    s_lshl_b32 {s(sT)}, {s(sW)}, 2
    s_add_u32 {s(sT)}, {s(sT)}, {F_D}
    v_lshl_add_u32 {v(vDP)}, {v(vN)}, 5, {s(sT)}
    v_mov_b32 {v(vFl)}, {F_KEY}
    v_mov_b32 {v(vTag)}, 0
    s_mov_b32 {s(sFast)}, 0
    s_mov_b32 {s(sRnd)}, 2
    s_mov_b32 {s(sPo)}, {WSSZ}
    s_mov_b32 {s(sYo)}, {WSSZ}
    s_mov_b32 {s(sYh)}, {WSSZ}
    {'s_branch L_fb2' if cfg.dry else ''}
    L_finit:
    s_mov_b32 {s(sRnd)}, 0
    s_mov_b32 {s(sSlot)}, {SLOT}
    s_lshl_b32 {s(sPo)}, {s(sX)}, 13
    s_add_u32 {s(sPo)}, {s(sPo)}, {PART}
    s_lshl_b32 {s(sYo)}, {s(sX)}, 10
    s_lshl_b32 {s(sT)}, {s(sI)}, 5
    s_add_u32 {s(sYo)}, {s(sYo)}, {s(sT)}
    s_add_u32 {s(sYo)}, {s(sYo)}, {YP}
    s_lshl_b32 {s(sYh)}, {s(sX)}, 7
    s_lshl2_add_u32 {s(sYh)}, {s(sI)}, {s(sYh)}
    s_add_u32 {s(sYh)}, {s(sYh)}, {YHINT}
    s_lshl_b32 {s(sT)}, {s(sW)}, 10
    v_lshl_add_u32 {v(t)}, {v(vLane)}, 4, {s(sT)}
    v_lshl_add_u32 {v(t+1)}, {v(vQ)}, 8, {s(sT)}
    v_lshl_add_u32 {v(t+1)}, {v(vN)}, 3, {v(t+1)}
    s_and_b32 {s(sT)}, {s(sW)}, 3
    s_mul_i32 {s(sT)}, {s(sT)}, {TS}
    v_lshl_add_u32 {v(t+2)}, {v(vQ)}, 8, {s(sT)}
    v_lshl_add_u32 {v(t+2)}, {v(vN)}, 3, {v(t+2)}
    v_mov_b32 {v(vTag+1)}, {s(sXcc)}
    s_lshl3_add_u32 {s(sT+1)}, {s(sI)}, {s(sT+10)}
    s_waitcnt vmcnt(0)
    v_add_u32 {v(vTag)}, 1, {v(T+20)}
    ds_write_b128 {v(T+22)}, {v(T+8,4)}
    ds_write_b128 {v(T+22)}, {v(T+12,4)} offset:16
    {f'ds_write_b128 {v(t)}, {v(T+16,4)} offset:{F_WD}' if cfg.wdpos==0 else ''}
    v_readfirstlane_b32 {s(sTag)}, {v(vTag)}
    s_cmp_lg_u32 {s(sW)}, 0
    s_cbranch_scc1 L_fi1
    s_mov_b64 exec, 1
    buffer_store_dwordx2 {v(vTag,2)}, off, {WS}, {s(sT+1)}
    s_mov_b64 exec, -1
    L_fi1:
    s_waitcnt lgkmcnt(0)
    s_barrier
    """)
    if cfg.stamps: a(f's_mov_b32 {s(sStampI)}, 0')
    stamp()
    for k in range(4):
        a(f'ds_read_b64_tr_b16 {v(WA+4*k,2)}, {v(t+2)} offset:{1024*k}')
        a(f'ds_read_b64_tr_b16 {v(WA+4*k+2,2)}, {v(t+2)} offset:{1024*k+128}')
    a(f"""
    {f'ds_read_b64_tr_b16 {v(WD,2)}, {v(t+1)} offset:{F_WD}' if cfg.wdpos==0 else ''}
    {f'ds_read_b64_tr_b16 {v(WD+2,2)}, {v(t+1)} offset:{F_WD+128}' if cfg.wdpos==0 else ''}
    s_cmp_lg_u32 {s(sW)}, 0
    s_cbranch_scc1 L_fi3
    s_movk_i32 {s(sTry)}, 80
    L_fl:
    buffer_load_dwordx2 {v(t+4,2)}, {v(vL8)}, {WS}, {s(sTabLd)} offen sc1
    buffer_load_dwordx2 {v(t+6,2)}, {v(vL8)}, {WS}, {s(sT+10)} offen sc1
    s_waitcnt vmcnt(0)
    v_cmp_ne_u32 vcc, {s(sTag)}, {v(t+4)}
    v_cmp_ne_u32 {s(sT,2)}, {s(sTag)}, {v(t+6)}
    s_or_b64 vcc, vcc, {s(sT,2)}
    """)
    poll_branch('L_fl', 4, giveup='L_fslowtab', skip=True)
    a(f"""
    v_cmp_ne_u32 vcc, {s(sXcc)}, {v(t+5)}
    v_cmp_ne_u32 {s(sT,2)}, {s(sXcc)}, {v(t+7)}
    s_or_b64 vcc, vcc, {s(sT,2)}
    s_cbranch_vccnz L_fslowtab
    s_mov_b32 {s(sFast)}, 1
    v_and_b32 {v(t+4)}, 1, {v(vQ)}
    v_lshlrev_b32 {v(t+4)}, 16, {v(t+4)}
    v_lshl_add_u32 {v(t+4)}, {v(vN)}, 4, {v(t+4)}
    s_lshl_b32 {s(sT)}, {s(sI)}, 8
    s_add_u32 {s(sT)}, {s(sT)}, {s(sPo)}
    buffer_load_dword {v(t+5)}, {v(t+4)}, {WS}, {s(sT)} offen sc1
    L_fi2:
    v_mov_b32 {v(t+6)}, {s(sFast)}
    ds_write_b32 {v(vFl)}, {v(t+6)} offset:4
    L_fi3:
    s_waitcnt vmcnt(0) lgkmcnt(0)
    s_barrier
    ds_read_b32 {v(t+6)}, {v(vFl)} offset:4
    s_waitcnt lgkmcnt(0)
    v_readfirstlane_b32 {s(sFast)}, {v(t+6)}
    """)
    if cfg.wdpos==2:
        a(f"""
        {f's_sleep {cfg.gdelay}' if cfg.gdelay else ''}
        global_load_dwordx4 {v(T+8,4)}, {v(T+24)}, s[18:19]
        global_load_dwordx4 {v(T+12,4)}, {v(T+24)}, s[20:21]
        global_load_dwordx4 {v(T+16,4)}, {v(T+23)}, s[22:23]
        s_waitcnt vmcnt(0)
        ds_write_b128 {v(T+22)}, {v(T+8,4)}
        ds_write_b128 {v(T+22)}, {v(T+12,4)} offset:16
        ds_write_b128 {v(t)}, {v(T+16,4)} offset:{F_WD}
        s_waitcnt lgkmcnt(0)
        s_barrier
        """)
        for k in range(4):
            a(f'ds_read_b64_tr_b16 {v(WA+4*k,2)}, {v(t+2)} offset:{1024*k}')
            a(f'ds_read_b64_tr_b16 {v(WA+4*k+2,2)}, {v(t+2)} offset:{1024*k+128}')
        a(f"""
        ds_read_b64_tr_b16 {v(WD,2)}, {v(t+1)} offset:{F_WD}
        ds_read_b64_tr_b16 {v(WD+2,2)}, {v(t+1)} offset:{F_WD+128}
        s_waitcnt lgkmcnt(0)
        """)
    if cfg.wdpos==1: a(f"""
    {f's_sleep {cfg.gdelay}' if cfg.gdelay else ''}
    global_load_dwordx4 {v(T+16,4)}, {v(T+23)}, s[22:23]
    s_waitcnt vmcnt(0)
    ds_write_b128 {v(t)}, {v(T+16,4)} offset:{F_WD}
    ds_read_b64_tr_b16 {v(WD,2)}, {v(t+1)} offset:{F_WD}
    ds_read_b64_tr_b16 {v(WD+2,2)}, {v(t+1)} offset:{F_WD+128}
    s_waitcnt lgkmcnt(0)
    """)
    a(f"""
    L_frnd:
    s_add_u32 {s(sTabLd)}, {s(sTabLd)}, {ARGR}
    s_cmp_lg_u32 {s(sW)}, 0
    s_cbranch_scc1 L_fb1
    s_cmp_eq_u32 {s(sFast)}, 0
    s_cbranch_scc1 L_fb1
    L_ftrig:
    buffer_load_dword {v(t)}, {v(vL8)}, {WS}, {s(sTabLd)} offen sc1
    s_waitcnt vmcnt(0)
    v_cmp_ne_u32 vcc, {s(sTag)}, {v(t)}
    """)
    poll_branch('L_ftrig', cfg.slp_f)
    stamp()
    a(f"""
    s_sleep {cfg.tim_arg}
    L_fb1:
    s_sub_u32 {s(sT)}, {s(sW)}, 4
    s_cmp_lt_u32 {s(sT)}, 2
    s_barrier
    s_cbranch_scc1 L_fx
    s_cmp_lg_u32 {s(sW)}, 6
    s_cbranch_scc1 L_fb2
    s_mov_b64 exec, 0xff
    L_fhd:
    buffer_load_dword {v(t)}, {v(vXL)}, {WS}, {s(sSlot)} offen offset:3072 sc1
    s_waitcnt vmcnt(0)
    v_cmp_eq_u32 vcc, -1, {v(t)}
    """)
    poll_branch('L_fhd', 2, skip=True)
    a(f"""
    v_max_u32_dpp {v(t)}, {v(t)}, {v(t)} row_half_mirror {DPP}
    v_max_u32_dpp {v(t)}, {v(t)}, {v(t)} quad_perm:[1,0,3,2] {DPP}
    v_max_u32_dpp {v(t)}, {v(t)}, {v(t)} quad_perm:[2,3,0,1] {DPP}
    ds_write_b32 {v(vFl)}, {v(t)}
    s_mov_b64 exec, -1
    s_branch L_fb2
    L_fx:
    buffer_load_dwordx4 {v(t,4)}, {v(vXL)}, {WS}, {s(sSlot)} offen sc1
    s_waitcnt vmcnt(0)
    ds_write_b128 {v(vXW)}, {v(t,4)} offset:{F_X}
    """)
    maxchk(range(t,t+4), t+4)
    poll_branch('L_fx', 2, mask=True)
    Dd=t+16
    a(f"""
    L_fb2:
    s_cmp_gt_u32 {s(sW)}, 3
    s_waitcnt lgkmcnt(0)
    s_barrier
    s_cbranch_scc1 L_fnoa
    ds_read_b32 {v(t+20)}, {v(vFl)}
    """)
    for k in range(4): a(f'ds_read_b128 {v(t+4*k,4)}, {v(vXR)} offset:{F_X+64*k}')
    stamp()
    a(f"""
    s_cmp_lt_u32 {s(sI)}, 28
    s_cselect_b32 {s(sPs)}, {s(sPo)}, {WSSZ}
    s_waitcnt lgkmcnt(3)
    v_mfma_f32_16x16x32_bf16 {v(Dd,4)}, {v(t,4)}, {v(WA,4)}, 0
    v_readfirstlane_b32 {s(sKey)}, {v(t+20)}
    s_waitcnt lgkmcnt(2)
    v_mfma_f32_16x16x32_bf16 {v(Dd,4)}, {v(t+4,4)}, {v(WA+4,4)}, {v(Dd,4)}
    s_bitcmp0_b32 {s(sKey)}, 0
    s_cselect_b64 vcc, -1, 0
    s_waitcnt lgkmcnt(1)
    v_mfma_f32_16x16x32_bf16 {v(Dd,4)}, {v(t+8,4)}, {v(WA+8,4)}, {v(Dd,4)}
    s_bitcmp0_b32 {s(sKey)}, 1
    s_cselect_b64 {s(sT+2,2)}, -1, 0
    s_waitcnt lgkmcnt(0)
    v_mfma_f32_16x16x32_bf16 {v(Dd,4)}, {v(t+12,4)}, {v(WA+12,4)}, {v(Dd,4)}
    s_andn2_b32 {s(sT)}, 4, {s(sKey)}
    s_lshl_b32 {s(sT)}, {s(sT)}, 2
    s_bfm_b64 exec, 16, {s(sT)}
    s_cmp_eq_u32 {s(sFast)}, 0
    v_cndmask_b32 {v(Dd)}, {v(Dd)}, {v(Dd+1)}, vcc
    v_cndmask_b32 {v(Dd+2)}, {v(Dd+2)}, {v(Dd+3)}, vcc
    v_cndmask_b32 {v(Dd)}, {v(Dd)}, {v(Dd+2)}, {s(sT+2,2)}
    s_cbranch_scc1 L_fps_s ;!nd
    buffer_store_dword {v(Dd)}, {v(vPS)}, {WS}, {s(sPs)} offen
    L_fps_d:
    s_mov_b64 exec, -1
    s_cmp_eq_u32 {s(sRnd)}, 2
    s_cbranch_scc1 L_fpok
    s_waitcnt vmcnt(0)
    s_branch L_fp
    L_fps_s:
    buffer_store_dword {v(Dd)}, {v(vPS)}, {WS}, {s(sPs)} offen sc1
    s_branch L_fps_d
    L_fnoa:
    s_cmp_eq_u32 {s(sW)}, 7
    s_cbranch_scc1 L_f7
    s_cmp_eq_u32 {s(sRnd)}, 2
    s_cbranch_scc1 L_fpok
    s_sleep {cfg.tim_p}
    s_branch L_fp
    L_fp:
    buffer_load_dwordx4 {v(t,4)}, {v(vPL)}, {WS}, {s(sPo)} offen sc1
    s_waitcnt vmcnt(0)
    """)
    maxchk(range(t,t+4), t+4)
    poll_branch('L_fp', cfg.slp_p, mask=True)
    stamp()
    a(f"""
    L_fpok:
    v_permlane32_swap_b32 {v(t)}, {v(t+1)}
    v_permlane32_swap_b32 {v(t+2)}, {v(t+3)}
    v_add_f32 {v(t)}, {v(t)}, {v(t+1)}
    v_add_f32 {v(t+2)}, {v(t+2)}, {v(t+3)}
    v_permlane16_swap_b32 {v(t)}, {v(t+2)}
    v_add_f32 {v(t)}, {v(t)}, {v(t+2)}
    v_mul_f32 {v(t+1)}, 0xbfb8aa3b, {v(t)}
    v_exp_f32 {v(t+1)}, {v(t+1)}
    v_mul_f32_dpp {v(t+2)}, {v(t)}, {v(t)} quad_perm:[2,3,0,1] {DPP}
    v_add_f32 {v(t+1)}, 1.0, {v(t+1)}
    v_rcp_f32 {v(t+1)}, {v(t+1)}
    v_mul_f32 {v(t+1)}, {v(t+1)}, {v(t+2)}
    v_cvt_pk_bf16_f32 {v(t+1)}, {v(t+1)}, {v(t+1)}
    ds_write_b16 {v(vHW)}, {v(t+1)}
    ds_read_b128 {v(t+4,4)}, {v(vHR)}
    """)
    if cfg.eh:
        a(f's_cmp_lg_u32 {s(sW)}, 5\ns_cbranch_scc1 L_fyh_d')
        hint_store(vTag, sYh, 'L_fyh')
    a(f"""
    s_waitcnt lgkmcnt(0)
    v_mfma_f32_16x16x32_bf16 {v(t+8,4)}, {v(t+4,4)}, {v(WD,4)}, 0
    s_mov_b64 exec, 0xffff
    ds_write_b32 {v(vDP)}, {v(t+8)}
    s_mov_b64 exec, -1
    s_waitcnt lgkmcnt(0)
    s_barrier
    L_fnext:
    """)
    stamp()
    a(f"""
    s_cmp_eq_u32 {s(sRnd)}, 1
    s_cbranch_scc1 L_fend
    s_cmp_eq_u32 {s(sRnd)}, 2
    s_cbranch_scc1 L_finit
    """)
    if cfg.wb==1: a(f"""
    s_cmp_lg_u32 {s(sI)}, 28
    s_cbranch_scc1 L_nwb
    s_cmp_lg_u32 {s(sW)}, 3
    s_cbranch_scc1 L_nwb
    s_sleep {cfg.wbd}
    buffer_wbl2 sc1
    L_nwb:
    """)
    a(f"""
    s_mov_b32 {s(sRnd)}, 1
    s_add_u32 {s(sSlot)}, {s(sSlot)}, {SLOTR}
    s_add_u32 {s(sPo)}, {s(sPo)}, {PARTR}
    s_add_u32 {s(sYo)}, {s(sYo)}, {YPR}
    s_add_u32 {s(sYh)}, {s(sYh)}, {YHR}
    s_branch L_frnd
    L_f7:
    ds_read_b32 {v(t+20)}, {v(vFl)}
    v_mov_b32 {v(vSig)}, 0xbfb8aa3b
    v_add_u32 {v(t+8)}, -28, {v(vDP)}
    v_lshlrev_b32 {v(t+9)}, 1, {v(vN)}
    s_waitcnt lgkmcnt(0)
    v_readfirstlane_b32 {s(sKey)}, {v(t+20)}
    s_ashr_i32 {s(sT)}, {s(sKey)}, 31
    s_orn2_b32 {s(sT)}, 0x80000000, {s(sT)}
    s_xor_b32 {s(sT)}, {s(sT)}, {s(sKey)}
    v_mul_f32 {v(vSig)}, {s(sT)}, {v(vSig)}
    v_exp_f32 {v(vSig)}, {v(vSig)}
    v_add_f32 {v(vSig)}, 1.0, {v(vSig)}
    v_rcp_f32 {v(vSig)}, {v(vSig)}
    s_barrier
    ds_read_b128 {v(t,4)}, {v(t+8)}
    ds_read_b96 {v(t+4,3)}, {v(t+8)} offset:16
    s_waitcnt lgkmcnt(1)
    v_pk_add_f32 {v(t,2)}, {v(t,2)}, {v(t+2,2)}
    v_add_f32 {v(t)}, {v(t)}, {v(t+1)}
    s_waitcnt lgkmcnt(0)
    v_add_f32 {v(t+4)}, {v(t+4)}, {v(t+5)}
    v_add_f32 {v(t)}, {v(t)}, {v(t+6)}
    v_add_f32 {v(t)}, {v(t)}, {v(t+4)}
    v_mul_f32 {v(t)}, {v(t)}, {v(vSig)}
    v_mov_b32_dpp {v(t+1)}, {v(t)} quad_perm:[1,1,3,3] {DPP}
    s_mov_b64 exec, 0x5555
    v_cvt_pk_bf16_f32 {v(t)}, {v(t)}, {v(t+1)}
    buffer_store_dword {v(t)}, {v(t+9)}, {WS}, {s(sYo)} offen sc1
    """)
    if cfg.eh: a('s_mov_b64 exec, -1')
    else: hint_store(vTag, sYh, 'L_fyh')
    a(f"""
    s_branch L_fnext
    L_fslowtab:
    v_and_b32 {v(t+16)}, 7, {v(vLane)}
    v_lshlrev_b32 {v(t+16)}, 7, {v(t+16)}
    s_mov_b32 {s(sT+10)}, {TABG}
    L_ftab2:
    buffer_load_dword {v(t+4)}, {v(t+16)}, {WS}, {s(sT+10)} offen sc1
    s_waitcnt vmcnt(0)
    v_cmp_ne_u32 vcc, {s(sTag)}, {v(t+4)}
    """)
    poll_branch('L_ftab2', 8)
    a('s_branch L_fi2\nL_fend:')
    dump_stamps()
    a('s_endpgm')

def build():
    hdr=open('ref.txt').read().split('; @launch')[0]
    a.raw(hdr+f'; @launch grid=({NWG},1,1) block=(512,1,1) lds={LDS_TOTAL}')
    a.raw(f'''; generated by gen/gen.py (hand-written generator): persistent FFT-structured FNet + MoD kernel
.amdgcn_target "amdgcn-amd-amdhsa--gfx950"
.text
.globl {NAME}_kernel
.p2align 8
.type {NAME}_kernel,@function
{NAME}_kernel:''')
    if cfg.st0: a(f's_memrealtime s[88:89]\ns_waitcnt lgkmcnt(0)')
    a(f'''
    s_load_dwordx2 s[12:13], s[0:1], 0
    s_load_dwordx2 s[8:9], s[0:1], 96
    s_load_dwordx8 s[16:23], s[0:1], 48
    v_and_b32 {v(vN)}, 15, v0
    v_bfe_u32 {v(vQ)}, v0, 4, 2
    v_lshrrev_b32 v2, 6, v0
    v_lshlrev_b32 {v(vUW)}, 7, v2
    v_lshl_add_u32 {v(vUW)}, {v(vN)}, 3, {v(vUW)}                ; 128w+8n
    v_lshl_add_u32 {v(vXoff)}, {v(vQ)}, 19, {v(vUW)}
    s_lshl_b32 {s(sRow0)}, s2, 10
    s_add_u32 {s(sRow1)}, {s(sRow0)}, 0x40000
    s_mov_b32 s14, 0x200000
    s_mov_b32 s15, 0x20000
    v_readfirstlane_b32 {s(sW)}, v2
    ''')
    if cfg.codepf: a(f'''
    s_getpc_b64 {s(sT+6,2)}
    L_pc:
    v_lshlrev_b32 v3, 5, v0
    v_min_u32 v3, L_end-L_pc, v3
    {f'global_load_dword {v(vTG)}, v3, {s(sT+6,2)}' if cfg.codepf==1 else ''}
    ''')
    a(f'''
    s_cmp_ge_u32 s2, 256
    s_cbranch_scc1 L_nox ;!nd
    s_waitcnt lgkmcnt(0)
    buffer_load_dwordx2 {v(BC,2)}, {v(vXoff)}, {XS}, {s(sRow0)} offen
    buffer_load_dwordx2 {v(BC+2,2)}, {v(vXoff)}, {XS}, {s(sRow1)} offen
    L_nox:
    {f'global_load_dword {v(vTG)}, v3, {s(sT+6,2)}' if cfg.codepf==2 else ''}
    s_cmp_ge_u32 s2, {NWG}
    s_cbranch_scc1 L_end
    {'s_waitcnt lgkmcnt(0)' if cfg.wsoff else ''}
    {f's_add_u32 s8, s8, {cfg.wsoff<<20}' if cfg.wsoff else ''}
    {'s_addc_u32 s9, s9, 0' if cfg.wsoff else ''}
    s_load_dwordx2 s[28:29], s[0:1], 80
    v_and_b32 {v(vLane)}, 63, v0
    s_mov_b32 s10, {WSSZ}
    s_mov_b32 s11, 0x20000
    s_mov_b32 s30, 0x200000
    s_mov_b32 s31, 0x20000
    s_and_b32 {s(sX)}, s2, 7
    s_lshr_b32 {s(sJ)}, s2, 3
    v_mov_b32 {v(SENT)}, -1
    v_mov_b32 {v(SENT+1)}, -1
    v_mov_b32 {v(SENT+2)}, -1
    v_mov_b32 {v(SENT+3)}, -1
    v_lshlrev_b32 {v(vL8)}, 3, v0
    v_and_b32 {v(vL8)}, 0xf8, {v(vL8)}
    s_mov_b32 {s(sCnt)}, 200000
    s_mov_b32 {s(sM7FF)}, 0x7ff
    s_lshl_b32 {s(sTabLd)}, {s(sX)}, 8
    s_add_u32 {s(sTabLd)}, {s(sTabLd)}, {TABL}
    s_getreg_b32 {s(sXcc)}, hwreg(HW_REG_XCC_ID, 0, 4)
    ''')
    if cfg.force_slow: a(f's_mov_b32 {s(sXcc)}, {s(sJ)}')
    if cfg.stamps:
        a(f's_mov_b32 {s(sStampI)}, 0\nv_mov_b32 {v(vSTMP)}, 0')
        a(f's_memrealtime {s(sTS,2)}\ns_memtime {s(sTS+2,2)}\ns_waitcnt lgkmcnt(0)\nv_writelane_b32 {v(vSTMP)}, {s(sTS)}, 63\nv_writelane_b32 {v(vSTMP)}, {s(sTS+2)}, 62')
        if cfg.st0: a(f'v_writelane_b32 {v(vSTMP)}, {s(sTS)}, 58\nv_writelane_b32 {v(vSTMP)}, s88, 63\ns_memrealtime {s(sTS,2)}\ns_waitcnt lgkmcnt(0)\nv_writelane_b32 {v(vSTMP)}, {s(sTS)}, 59')
    a('''s_cmp_ge_u32 s2, 256
    s_cbranch_scc1 L_ffn''')
    if cfg.prio: a(f's_setprio 2\ns_cmp_gt_u32 {s(sW)}, 1\ns_cbranch_scc1 L_np\ns_setprio 3\nL_np:')
    main_prologue()
    main_loop()
    ffn()
    a('L_end:\ns_endpgm')
    a.raw(f'''.section .rodata,"a"
.p2align 6
.amdhsa_kernel {NAME}_kernel
  .amdhsa_next_free_vgpr 128
  .amdhsa_next_free_sgpr 96
  .amdhsa_accum_offset 128
  .amdhsa_group_segment_fixed_size 0
  .amdhsa_kernarg_size 104
  .amdhsa_user_sgpr_count 2
  .amdhsa_user_sgpr_kernarg_segment_ptr 1
  .amdhsa_system_sgpr_workgroup_id_x 1
.end_amdhsa_kernel''')
    return a.text()
if __name__=='__main__':
    out=sys.argv[1]
    for kv in sys.argv[2:]:
        k,val=kv.split('='); assert hasattr(cfg,k); setattr(cfg,k,int(val))
    open(out,'w').write(build())
    print('instrs',a.count,'nops',a.nops)
```

```python
import sys, struct
from asmlib import Asm
NAME='interleave_layers__spectral_fnet__moe_arch_mod__prompt'
def fbits(x): return '0x%08x' % struct.unpack('<I', struct.pack('<f', x))[0]

class Cfg:
    stamps=0
    tim_arg=16
    tim_y=0
    tim_h=0
    slp_g=2
    slp_l=1
    force_slow=0
    prio=1
    codepf=1
    exp=0
    gre=0
    cfl=0
    tlb=0
    wsoff=0
    st0=0
    cal=-1
    calwg=0
    dbgout=0
    dry=1
    wb=0
    fdelay=20
    gdelay=18
    osc=1
    odel=0
    pfm=7
    clr2=0
    nb0=0
    ehint=0
    post=0
    slp_t=0
    aft=0
    g2pos=3
    spr=1
    twice=1
    lastp=0
    tim_fh=12
    wdpos=0
    slp_p=1
    tim_p=8
    hold=1
    tim_gy=12
    eh=1
    own=1
    tim_y3=8
    beh=1
    gbb=0
    slp_f=2
    early=4
    tim_a0=0
    wbd=12
    gbdelay=4
    late=1
    split=0
    tch=1
cfg=Cfg()

TABG=0x1000; TABGR=0x6000
TABL=0x2000; ARGR=0x800
TAB2=0x3800
SLOWF=0x4000
YHINT=0x5000; YHR=0x400
FTAB=0x6000
CLR0=0x8000
YP=0x8000; YPR=0x2000
PART=0x20000; PARTR=0x10000
SLOT=0x10000; SLOTR=0x8000
LBASE=0x40000; PS=8448; LX=32*PS
GBASE=0x260000; GS=262144+768; GR=0x210000
STAMP=0x700000
WSSZ=0x800000
NWG=512
NST=(13,9,7)
L_STAT=0; L_U=0x400; L_YI=0x2400; YIS=320; L_YT=0x4C00; L_DH=0x6E00; L_FLAG=0x7E00; LDS_TOTAL=0x7E80
L_CX=0x2400
def v(a,n=1): return f'v{a}' if n==1 else f'v[{a}:{a+n-1}]'
def s(a,n=1): return f's{a}' if n==1 else f's[{a}:{a+n-1}]'

WS='s[8:11]'; XS='s[12:15]'; OS='s[28:31]'
sW=3; sX=26; sJ=27; sIt=32; sTag=33; sFast=34; sKey=35; sMir=36; sDsc=38
sLst=39; sLld=40; sPh=41; sTabG=42; sG0=43; sG4=44; sTabSt=45; sTabLd=46; sSlot=47; sRow0=48; sRow1=49; sCnt=50
sXcc=51; sStampI=37
sK512=52
sTry=53
sEps=54
sC16=56
sSc=58
sM7FF=60; sTop=61
sQmask=62
sT=64
sNx=84; sSg=85; sYo=86; sYh=87
sTS=80
X=2; WV=10; A8=14; XA=16; B1C=20; B1S=24; B1N=28; TWC=32; TWS=36; A2R=40; A2I=44; YC=48; YS=52
AD=56; BC=58
vXoff=72; vStW=73; vStR=74; vUW=75; vUR=76; vLst=77; vLld=78; vLldM=79; vYIW=80; vYIR=81; vYW=82; vYR=83; vGst=84; vGld=85
vSc0=86; vL8=88; vInv=89; vN=90; vQ=91; vSTMP=1; vLane=92; vTG=93
LNP=94; MM=98; RS2=100
T=102
class Asm2(Asm):
    def __call__(self, text):
        parts=text.split(';@F')
        for i,p in enumerate(parts):
            if i: fstamp()
            Asm.__call__(self,p)
a=Asm2()
def poll_branch(lbl, sleep=1, pre='', giveup=None, skip=False, mask=False):
    k=a.lines.index(lbl+':')
    if mask:
        pre+='\ns_mov_b64 exec, vcc'; skip=True
        k2=next(i for i in range(k,len(a.lines)) if 's_waitcnt vmcnt(0)' in a.lines[i])
        k3=max(i for i in range(k,k2) if 'buffer_load' in a.lines[i])
        a.lines.insert(k3+1,'    s_mov_b64 exec, -1')
    if a.lines[k-1].strip().startswith(('s_branch','s_endpgm')): skip=False
    a(f's_cbranch_vccnz {lbl}_r ;!nd')
    st=[]
    if skip: st.append(f'    s_branch {lbl}')
    st.append(f'{lbl}_r:')
    if giveup: st+= [f'    s_sub_u32 {s(sTry)}, {s(sTry)}, 1', f'    s_cbranch_scc1 {giveup}']
    else: st+= [f'    s_sub_u32 {s(sCnt)}, {s(sCnt)}, 1', '    s_cbranch_scc1 L_end']
    st+= ['    '+x.strip() for x in pre.split('\n') if x.strip()]
    if sleep: st.append(f'    s_sleep {sleep}')
    a.lines[k:k]=st
def fstamp():
    if cfg.stamps>=2: stamp()
def stamp():
    if not cfg.stamps: return
    a(f'''{'s_memtime' if cfg.stamps==2 else 's_memrealtime'} {s(sTS,2)}
    s_waitcnt lgkmcnt(0)
    s_mov_b32 m0, {s(sStampI)}
    s_add_u32 {s(sStampI)}, {s(sStampI)}, 1
    v_writelane_b32 {v(vSTMP)}, {s(sTS)}, m0''')
def dump_stamps():
    if not cfg.stamps: return
    a(f's_memrealtime {s(sTS,2)}\ns_memtime {s(sTS+2,2)}\ns_waitcnt lgkmcnt(0)\nv_writelane_b32 {v(vSTMP)}, {s(sTS)}, 61\nv_writelane_b32 {v(vSTMP)}, {s(sTS+2)}, 60')
    if cfg.cal>=0:
        lab='L_cal%d'%len(a.lines)
        a(f'''s_cmp_lg_u32 s2, {cfg.calwg}
        s_cbranch_scc1 {lab}
        s_cmp_lg_u32 {s(sW)}, 0
        s_cbranch_scc1 {lab}
        v_readlane_b32 {s(sT)}, {v(vSTMP)}, {cfg.cal}
        v_readlane_b32 {s(sT+1)}, {v(vSTMP)}, 63
        s_sub_u32 {s(sT)}, {s(sT)}, {s(sT+1)}
        s_lshl_b32 {s(sT)}, {s(sT)}, 2
        s_add_u32 {s(sT)}, {s(sT)}, 3000
        s_min_u32 {s(sT)}, {s(sT)}, 50000
        {lab}_l:
        s_memrealtime {s(sTS,2)}
        s_waitcnt lgkmcnt(0)
        s_sub_u32 {s(sT+2)}, {s(sTS)}, {s(sT+1)}
        s_cmp_lt_u32 {s(sT+2)}, {s(sT)}
        s_cbranch_scc1 {lab}_l
        {lab}:''')
    a(f'''s_lshl_b32 {s(sT)}, s2, 11
    s_lshl_b32 {s(sT+1)}, {s(sW)}, 8
    s_add_u32 {s(sT)}, {s(sT)}, {s(sT+1)}
    s_add_u32 {s(sT)}, {s(sT)}, {STAMP}
    v_lshlrev_b32 {v(vLane)}, 2, {v(vLane)}
    buffer_store_dword {v(vSTMP)}, {v(vLane)}, {WS}, {s(sT)} offen''')
def maxchk(regs, t):
    regs=list(regs)
    a(f'v_max3_u32 {v(t)}, {v(regs[0])}, {v(regs[1])}, {v(regs[2])}')
    rest=regs[3:]
    while len(rest)>=2:
        a(f'v_max3_u32 {v(t)}, {v(t)}, {v(rest[0])}, {v(rest[1])}'); rest=rest[2:]
    if rest: a(f'v_max_u32 {v(t)}, {v(t)}, {v(rest[0])}')
    a(f'v_cmp_eq_u32 vcc, -1, {v(t)}')
def phchk(regs, t):
    regs=list(regs)
    a(f'v_bitop3_b32 {v(t)}, {v(regs[0])}, {v(regs[1])}, {s(sPh)} bitop3:0x7e')
    for r in regs[2:]: a(f'v_bitop3_b32 {v(t)}, {v(t)}, {v(r)}, {s(sPh)} bitop3:0xf6')
    a(f'v_and_b32 {v(t)}, 1, {v(t)}\nv_cmp_ne_u32 vcc, 0, {v(t)}')
def tag4chk(r):
    for k in range(4): a(f'v_xor_b32 {v(r+k)}, {s(sTag)}, {v(r+k)}')
    a(f'v_or3_b32 {v(r)}, {v(r)}, {v(r+1)}, {v(r+2)}\nv_or_b32 {v(r)}, {v(r)}, {v(r+3)}\nv_cmp_ne_u32 vcc, 0, {v(r)}')
DPP='row_mask:0xf bank_mask:0xf'

def fft_core(xr, xi, U, V, F, P, fill1='', fill2=''):
    Ur,Ui=U,U+4
    a(f'v_mfma_f32_16x16x32_f16 {v(Ur,4)}, {v(xr,4)}, {v(B1C,4)}, 0')
    a(f'v_mfma_f32_16x16x32_f16 {v(Ui,4)}, {v(xr,4)}, {v(B1N,4)}, 0')
    if xi is not None:
        a(f'v_mfma_f32_16x16x32_f16 {v(Ur,4)}, {v(xi,4)}, {v(B1S,4)}, {v(Ur,4)}')
        a(f'v_mfma_f32_16x16x32_f16 {v(Ui,4)}, {v(xi,4)}, {v(B1C,4)}, {v(Ui,4)}')
    a(fill1)
    Vr,Vi=V,V+4
    for h in (0,2):
        a(f'v_pk_mul_f32 {v(Vi+h,2)}, {v(Ur+h,2)}, {v(TWS+h,2)}')
    for h in (0,2):
        a(f'v_pk_mul_f32 {v(Vr+h,2)}, {v(Ui+h,2)}, {v(TWS+h,2)}')
    for h in (0,2):
        a(f'v_pk_fma_f32 {v(Vr+h,2)}, {v(Ur+h,2)}, {v(TWC+h,2)}, {v(Vr+h,2)}')
        a(f'v_pk_fma_f32 {v(Vi+h,2)}, {v(Ui+h,2)}, {v(TWC+h,2)}, {v(Vi+h,2)} neg_lo:[0,0,1] neg_hi:[0,0,1]')
    for r in range(4): a(f'v_cvt_pk_f16_f32 {v(P+r)}, {v(Vr+r)}, {v(Vi+r)}')
    a(f'v_mfma_f32_16x16x32_f16 {v(F,4)}, {v(A2R,4)}, {v(P,4)}, 0')
    a(f'v_mfma_f32_16x16x32_f16 {v(F+4,4)}, {v(A2I,4)}, {v(P,4)}, 0')
    a(fill2)
    for r in range(4): a(f'v_cvt_pk_f16_f32 {v(P+r)}, {v(F+r)}, {v(F+4+r)}')

SENT=T+4
def g2late():
    return '\n'.join(f'v_mov_b32 {v(LNP+k)}, -1' for k in range(4))+f'\ns_mov_b32 {s(sT+14)}, {GBASE+GR}\nbuffer_store_dwordx4 {v(LNP,4)}, {v(vGst)}, {WS}, {s(sT+14)} offen sc1'

def main_prologue():
    t=T
    X0=BC
    a(f'''
    s_mul_i32 {s(sLld)}, {s(sX)}, {LX}
    s_add_u32 {s(sLld)}, {s(sLld)}, {LBASE}
    s_mul_i32 {s(sLst)}, {s(sJ)}, {PS}
    s_add_u32 {s(sLst)}, {s(sLst)}, {s(sLld)}
    v_lshlrev_b32 {v(t)}, 4, v0
    v_lshrrev_b32 {v(t+1)}, 4, v0
    global_load_dwordx2 {v(X0+4,2)}, {v(vUW)}, s[16:17]
    buffer_load_dword {v(X0+6)}, off, {WS}, 0 sc1
    ''')
    tabt=f'buffer_load_dword {v(X0+7)}, {v(vL8)}, {WS}, {s(sTabLd)} offen sc1'
    ltch=f'buffer_load_dwordx4 {v(X0+8,4)}, {v(t)}, {WS}, {s(sLst) if not cfg.exp&1 else "s10"} offen sc1'
    lclr=f'buffer_store_dwordx4 {v(SENT,4)}, {v(t)}, {WS}, {s(sLst)} offen'
    if cfg.tch==0: a(tabt+'\n'+ltch+'\n'+lclr)
    if cfg.tch==1 and not cfg.aft&1: a(tabt+'\n'+ltch)
    if cfg.tch==2: a(tabt+'\n'+lclr+'\n'+ltch)
    if cfg.tch==3: a(ltch.replace(' sc1','')+'\n'+ltch.replace(' sc1','')+'\n'+lclr)
    a(f'''
    s_mov_b32 {s(sG0)}, {GBASE}
    s_mul_i32 {s(sT)}, {s(sX)}, {GS}
    s_add_u32 {s(sT+2)}, {s(sJ)}, 24
    s_and_b32 {s(sT+2)}, {s(sT+2)}, 24
    s_lshl_b32 {s(sT+2)}, {s(sT+2)}, 13
    s_add_u32 {s(sT)}, {s(sT)}, {s(sT+2)}
    s_and_b32 {s(sT+2)}, {s(sJ)}, 7
    s_cmp_lt_u32 {s(sJ)}, 8
    s_cselect_b32 {s(sT+3)}, 7, 8
    s_cselect_b32 {s(sT+4)}, 112, 0
    s_lshl_b32 {s(sT+2)}, {s(sT+2)}, {s(sT+3)}
    s_add_u32 {s(sT)}, {s(sT)}, {s(sT+2)}
    v_lshlrev_b32 {v(t+2)}, 4, {v(vN)}
    v_lshl_add_u32 {v(vGst)}, {v(t+1)}, 11, {v(t+2)}
    v_and_b32 {v(t+3)}, 8, {v(vN)}
    v_mad_u32_u24 {v(vGst)}, {v(t+3)}, {s(sT+4)}, {v(vGst)}
    v_add_u32 {v(vGst)}, {s(sT)}, {v(vGst)}
    ''')
    if cfg.spr: a(f'''
    s_and_b32 {s(sT+14)}, {s(sJ)}, 24
    s_add_u32 {s(sT+14)}, {s(sT+14)}, {s(sX)}
    s_lshl_b32 {s(sT+15)}, {s(sT+14)}, 13
    s_and_b32 {s(sT+13)}, {s(sJ)}, 7
    s_lshl_b32 {s(sT+13)}, {s(sT+13)}, 10
    s_add_u32 {s(sT+15)}, {s(sT+15)}, {s(sT+13)}
    s_cmp_lt_u32 {s(sT+14)}, 4
    s_cselect_b32 {s(sT+15)}, {WSSZ}, {s(sT+15)}
    s_cmp_lg_u32 {s(sW)}, 0
    s_cselect_b32 {s(sT+15)}, {WSSZ}, {s(sT+15)}
    ''')
    else: a(f'''
    s_lshl_b32 {s(sT+15)}, s2, 13
    s_sub_u32 {s(sT+14)}, s2, 4
    s_cmp_lt_u32 {s(sT+14)}, 28
    s_cselect_b32 {s(sT+15)}, {s(sT+15)}, {WSSZ}
    ''')
    clrs=f'''buffer_store_dwordx4 {v(SENT,4)}, {v(vGst)}, {WS}, {s(sG0)} offen {['sc1','sc0 sc1','sc1 nt'][cfg.cfl]}
    buffer_store_dwordx4 {v(SENT,4)}, {v(t)}, {WS}, {s(sT+15)} offen sc1'''
    g2c=f's_mov_b32 {s(sT+14)}, {GBASE+GR}\nbuffer_store_dwordx4 {v(SENT,4)}, {v(vGst)}, {WS}, {s(sT+14)} offen sc1'
    if not cfg.aft&2: a(clrs)
    if cfg.gre: cfg.g2pos=2
    if cfg.g2pos==0: a(g2c)
    c=t+8; co,si=c+8,c+12
    a(f'''
    s_lshr_b32 {s(sT)}, {s(sJ)}, 2
    s_and_b32 {s(sT)}, {s(sT)}, 6                 ; 2*(j>>3)
    s_lshl_b32 {s(sT+1)}, {s(sW)}, 2
    s_and_b32 {s(sT+1)}, {s(sT+1)}, 8             ; 2*4*((w>>1)&1)
    s_cmp_lt_u32 {s(sJ)}, 8
    s_cselect_b32 {s(sT)}, {s(sT+1)}, {s(sT)}
    s_lshl_b32 {s(sT+1)}, {s(sW)}, 4
    s_and_b32 {s(sT+1)}, {s(sT+1)}, 16            ; 16*(w&1)
    s_cmp_ge_u32 {s(sW)}, 4
    s_cselect_b32 {s(sT+2)}, {s(sT+1)}, 0         ; 16k
    s_cselect_b32 {s(sT)}, {s(sT)}, 0
    s_cmp_eq_u32 {s(sW)}, 3
    s_cselect_b32 {s(sT)}, 16, {s(sT)}
    s_lshl_b32 {s(sT+3)}, {s(sW)}, 2
    s_lshr_b32 {s(sT+3)}, 0x44440054, {s(sT+3)}
    s_and_b32 {s(sT+3)}, {s(sT+3)}, 15            ; log2 A
    v_lshlrev_b32 {v(c)}, {s(sT+3)}, {v(vN)}
    v_add_u32 {v(c)}, {s(sT)}, {v(c)}
    v_lshl_add_u32 {v(c+1)}, {v(vQ)}, 2, {s(sT+2)}
    v_cvt_f32_u32 {v(c)}, {v(c)}
    v_cvt_f32_u32 {v(c+1)}, {v(c+1)}
    s_mov_b32 {s(sK512)}, {fbits(1/512)}
    v_mul_f32 {v(c)}, {s(sK512)}, {v(c)}
    v_mul_f32 {v(c+4)}, {v(c+1)}, {v(c)}
    v_add_f32 {v(c+5)}, {v(c+4)}, {v(c)}
    v_add_f32 {v(c+6)}, {v(c+5)}, {v(c)}
    v_add_f32 {v(c+7)}, {v(c+6)}, {v(c)}
    ''')
    fill=[f's_mov_b32 {s(sEps)}, {fbits(1e-5)}', f's_mov_b32 {s(sEps+1)}, {fbits(1e-5)}', f's_mov_b32 {s(sC16)}, {fbits(1/16)}', f's_mov_b32 {s(sC16+1)}, {fbits(1/16)}',
          f's_mov_b32 {s(sTop)}, 0x80000000', f's_mov_b32 {s(sQmask)}, 0x11111111', f's_mov_b32 {s(sQmask+1)}, 0x11111111', f's_mov_b32 {s(sG4)}, {GBASE+4*GS}']
    for r in range(4):
        a(f'v_cos_f32 {v(co+r)}, {v(c+4+r)}'); a(fill[2*r])
        a(f'v_sin_f32 {v(si+r)}, {v(c+4+r)}'); a(fill[2*r+1])
    a(f'''
    s_lshl_b32 {s(sT)}, {s(sW)}, 11
    s_add_u32 {s(sT)}, {s(sT)}, {L_CX}
    v_lshlrev_b32 {v(c+2)}, 4, {v(vLane)}
    v_add_u32 {v(c+3)}, {s(sT)}, {v(c+2)}
    s_and_b32 {s(sT)}, {s(sW)}, 6
    s_cmp_eq_u32 {s(sT)}, 2
    s_cbranch_scc1 L_cw
    s_cmp_eq_u32 {s(sW)}, 1
    s_cbranch_scc1 L_cri
    v_cvt_pk_f16_f32 {v(co)}, {v(co)}, {v(co+1)}
    v_cvt_pk_f16_f32 {v(co+1)}, {v(co+2)}, {v(co+3)}
    v_cvt_pk_f16_f32 {v(co+2)}, {v(si)}, {v(si+1)}
    v_cvt_pk_f16_f32 {v(co+3)}, {v(si+2)}, {v(si+3)}
    s_branch L_cw
    L_cri:
    ''')
    for r in range(4):
        a(f'v_cvt_pk_f16_f32 {v(c+4)}, {v(co+r)}, {v(si+r)}')
        a(f'v_cvt_pk_f16_f32 {v(si+r)}, -{v(si+r)}, {v(co+r)}')
        a(f'v_mov_b32 {v(co+r)}, {v(c+4)}')
    a(f'''
    L_cw:
    ds_write_b128 {v(c+3)}, {v(co,4)}
    ds_write_b128 {v(c+3)}, {v(si,4)} offset:1024
    v_lshrrev_b32 {v(c+4)}, 2, {v(vN)}
    v_and_b32 {v(c+5)}, 2, {v(vN)}
    v_and_b32 {v(c+6)}, 14, {v(vN)}
    v_cmp_eq_u32 vcc, 2, {v(c+6)}
    v_mul_u32_u24 {v(vYIR)}, {YIS}, {v(c+4)}
    v_lshlrev_b32 {v(vStR)}, 8, {v(vQ)}
    v_cndmask_b32 {v(c+4)}, {v(c+4)}, 4, vcc
    v_cndmask_b32 {v(c+5)}, {v(c+5)}, 0, vcc
    v_mul_u32_u24 {v(c+6)}, {v(c+4)}, {v(vQ)}
    v_lshl_add_u32 {v(c+6)}, {v(c+6)}, 1, {v(c+5)}
    v_add_u32 {v(c+7)}, {v(c+6)}, {v(c+4)}
    v_cvt_f32_u32 {v(c+6)}, {v(c+6)}
    v_cvt_f32_u32 {v(c+7)}, {v(c+7)}
    v_mul_f32 {v(c+6)}, 0x3e000000, {v(c+6)}
    v_mul_f32 {v(c+7)}, 0x3e000000, {v(c+7)}
    v_cos_f32 {v(c+6)}, {v(c+6)}
    v_cos_f32 {v(c+7)}, {v(c+7)}
    v_and_b32 {v(c+5)}, 1, {v(vN)}
    v_cmp_eq_u32 vcc, 0, {v(c+5)}
    v_cvt_pk_f16_f32 {v(c+6)}, {v(c+6)}, {v(c+7)}
    v_mov_b32 {v(c+5)}, 0x80008000
    v_cndmask_b32 {v(A8)}, 0, {v(c+6)}, vcc
    v_cndmask_b32 {v(A8+1)}, {v(c+6)}, 0, vcc
    v_cndmask_b32 {v(c+5)}, {v(c+5)}, 0, vcc
    s_lshl_b32 {s(sT+1)}, {s(sT+1)}, 7            ; h*2048
    v_add_u32 {v(c+6)}, {s(sT+1)}, {v(c+2)}
    s_lshl_b32 {s(sT+2)}, {s(sW)}, 11
    s_and_b32 {s(sT+2)}, {s(sT+2)}, 4096          ; ((w>>1)&1)*4096
    v_add_u32 {v(c+7)}, {s(sT+2)}, {v(c+2)}
    s_waitcnt lgkmcnt(0)
    s_barrier
    ds_read_b128 {v(B1N,4)}, {v(c+2)} offset:{L_CX}
    ds_read_b128 {v(co,4)}, {v(c+7)} offset:{L_CX+4*2048}
    ds_read_b128 {v(si,4)}, {v(c+7)} offset:{L_CX+5*2048}
    ds_read_b128 {v(A2R,4)}, {v(c+2)} offset:{L_CX+2048}
    ds_read_b128 {v(A2I,4)}, {v(c+2)} offset:{L_CX+2048+1024}
    ds_read_b128 {v(TWC,4)}, {v(c+6)} offset:{L_CX+4096}
    ds_read_b128 {v(TWS,4)}, {v(c+6)} offset:{L_CX+4096+1024}
    v_and_b32 {v(c+4)}, 4, {v(vN)}
    s_lshl_b32 {s(sT)}, {s(sW)}, 2
    v_lshl_add_u32 {v(vStW)}, {v(t+3)}, 2, {v(vStR)}
    v_lshl_add_u32 {v(vStW)}, {v(c+4)}, 4, {v(vStW)}
    v_add_u32 {v(vStW)}, {s(sT)}, {v(vStW)}
    v_and_b32 {v(c+4)}, 7, {v(vN)}
    v_lshl_add_u32 {v(vStR)}, {v(c+4)}, 5, {v(vStR)}
    v_lshl_add_u32 {v(vUW)}, {v(vQ)}, 11, {v(vUW)}
    v_add_u32 {v(vUW)}, {L_U}, {v(vUW)}
    s_lshr_b32 {s(sT)}, {s(sW)}, 1
    s_lshl_b32 {s(sT)}, {s(sT)}, 11
    s_add_u32 {s(sT+2)}, {s(sT)}, {L_U}
    v_lshl_add_u32 {v(vUR)}, {v(vLane)}, 3, {s(sT+2)}
    ; vLst = w'*2048 + 512q + 64h + 4n
    s_lshr_b32 {s(sT+2)}, {s(sT+1)}, 5
    s_add_u32 {s(sT)}, {s(sT)}, {s(sT+2)}
    v_lshl_add_u32 {v(vLst)}, {v(vQ)}, 9, {s(sT)}
    v_lshl_add_u32 {v(vLst)}, {v(vN)}, 2, {v(vLst)}
    s_lshl_b32 {s(sT)}, {s(sJ)}, 3
    s_add_u32 {s(sTabSt)}, {s(sTabLd)}, {s(sT)}
    s_lshl_b32 {s(sT+3)}, {s(sW)}, 31             ; h sign
    s_lshl_b32 {s(sT+4)}, {s(sW)}, 29
    s_and_b32 {s(sT+4)}, {s(sT+4)}, {s(sTop)}
    s_mov_b32 {s(sT+5)}, 0x80008000
    s_mov_b32 {s(sIt)}, 0
    s_mov_b32 {s(sFast)}, 1
    s_mov_b32 {s(sPh)}, 0
    s_mov_b32 {s(sNx)}, 0
    s_mov_b32 {s(sSlot)}, {WSSZ}
    s_xor_b32 {s(sT+12)}, {s(sJ)}, 9
    s_or_b32 {s(sT+12)}, {s(sT+12)}, {s(sW)}
    s_mov_b32 {s(sTry)}, 64
    s_waitcnt lgkmcnt(4)
    v_xor_b32 {v(B1C)}, {s(sT+3)}, {v(B1N)}
    v_xor_b32 {v(B1C+1)}, {s(sT+3)}, {v(B1N+1)}
    v_xor_b32 {v(B1S)}, {s(sT+3)}, {v(B1N+2)}
    v_xor_b32 {v(B1S+1)}, {s(sT+3)}, {v(B1N+3)}
    v_xor_b32 {v(B1C+2)}, {v(B1C)}, {v(c+5)}
    v_xor_b32 {v(B1C+3)}, {v(B1C+1)}, {v(c+5)}
    v_xor_b32 {v(B1S+2)}, {v(B1S)}, {v(c+5)}
    v_xor_b32 {v(B1S+3)}, {v(B1S+1)}, {v(c+5)}
    ''')
    for r in range(4): a(f'v_xor_b32 {v(B1N+r)}, {s(sT+5)}, {v(B1S+r)}')
    for k,src in ((0,co),(1,si)):
        for r in range(2):
            a(f'v_xor_b32 {v(YC+2*k+r)}, {s(sT+4)}, {v(src+r)}')
            a(f'v_xor_b32 {v(YS+2*k+r)}, {s(sT+4)}, {v(src+2+r)}')
    a(f'''
    s_and_b32 {s(sT+1)}, {s(sW)}, 3
    s_lshl_b32 {s(sT+1)}, {s(sT+1)}, 6            ; 64cb
    s_lshr_b32 {s(sT)}, {s(sW)}, 2
    s_mul_i32 {s(sT)}, {s(sT)}, {16*272}
    s_add_u32 {s(sT)}, {s(sT)}, {s(sT+1)}
    s_add_u32 {s(sT)}, {s(sT)}, {L_YT}
    v_mul_u32_u24 {v(vYW)}, 272, {v(vN)}
    v_lshl_add_u32 {v(vYW)}, {v(vQ)}, 4, {v(vYW)}
    v_add_u32 {v(vYW)}, {s(sT)}, {v(vYW)}
    v_mul_u32_u24 {v(vYR)}, 272, {v(t+1)}
    v_add_u32 {v(vYR)}, {v(vYR)}, {v(t+2)}
    v_add_u32 {v(vYR)}, {L_YT}, {v(vYR)}
    s_add_u32 {s(sT+1)}, {s(sT+1)}, {L_YI}
    v_mul_u32_u24 {v(c+4)}, {4*YIS}, {v(vQ)}
    v_and_b32 {v(c+6)}, 0x30, {v(t+2)}
    v_add3_u32 {v(vYIR)}, {v(vYIR)}, {v(c+4)}, {v(c+6)}
    v_add_u32 {v(vYIR)}, {s(sT+1)}, {v(vYIR)}
    s_cmp_lt_u32 {s(sJ)}, 8
    s_cbranch_scc1 L_aself
    v_mul_u32_u24 {v(vLld)}, {PS}, {v(t+1)}
    v_mul_u32_u24 {v(vYIW)}, {YIS}, {v(t+1)}
    s_lshl_b32 {s(sT)}, {s(sJ)}, 8
    v_add3_u32 {v(vLld)}, {v(vLld)}, {v(t+2)}, {s(sT)}
    v_add_u32 {v(vYIW)}, {v(vYIW)}, {v(t+2)}
    v_mov_b32 {v(vLldM)}, 0
    s_branch L_adone
    L_aself:
    ; s2=(w>>1)*8+(l>>3), u=l&7, which=w&1
    s_lshl_b32 {s(sT)}, {s(sW)}, 2
    s_and_b32 {s(sT)}, {s(sT)}, 24
    v_lshrrev_b32 {v(c+4)}, 3, {v(vLane)}
    v_add_u32 {v(c+4)}, {s(sT)}, {v(c+4)}
    v_and_b32 {v(c+6)}, 0x70, {v(t+2)}
    v_mul_u32_u24 {v(vLldM)}, {PS}, {v(c+4)}
    v_mul_u32_u24 {v(vYIW)}, {YIS}, {v(c+4)}
    s_lshl_b32 {s(sT)}, {s(sJ)}, 7
    s_add_u32 {s(sT+1)}, {s(sT)}, 4
    s_sub_u32 {s(sT)}, {508*4}, {s(sT)}
    v_add3_u32 {v(vLld)}, {v(vLldM)}, {v(c+6)}, {s(sT+1)}
    v_sub_u32 {v(vLldM)}, {v(vLldM)}, {v(c+6)}
    v_add_u32 {v(vLldM)}, {s(sT)}, {v(vLldM)}
    s_lshr_b32 {s(sT)}, {s(sT+3)}, 24
    v_add3_u32 {v(vYIW)}, {v(vYIW)}, {v(c+6)}, {s(sT)}
    L_adone:
    v_add_u32 {v(vYIW)}, {L_YI}, {v(vYIW)}
    s_waitcnt vmcnt({(0 if cfg.aft&1 else 2)+(0 if cfg.aft&2 else 2)+(1 if cfg.g2pos==0 else 0)})
    {tabt if cfg.aft&1 else ''}
    {ltch if cfg.aft&1 else ''}
    {clrs if cfg.aft&2 else ''}
    {g2c if cfg.g2pos==1 else ''}
    v_readfirstlane_b32 {s(sTag)}, {v(X0+6)}
    ''')
    for rho in (0,1):
        for k in (0,1):
            src=X0+2*rho+k
            a(f'v_lshlrev_b32 {v(X+4*k+rho)}, 16, {v(src)}')
            a(f'v_and_b32 {v(X+4*k+2+rho)}, 0xffff0000, {v(src)}')
    for k in (0,1):
        a(f'v_lshlrev_b32 {v(WV+2*k)}, 16, {v(X0+4+k)}')
        a(f'v_and_b32 {v(WV+2*k+1)}, 0xffff0000, {v(X0+4+k)}')
    a(f's_add_u32 {s(sTag)}, {s(sTag)}, 1')

def xin_consts(c):
    a(f'''
    s_and_b32 {s(sT)}, {s(sX)}, 3                ; 0 => self
    s_lshr_b32 {s(sT+1)}, {s(sW)}, 2
    s_lshr_b32 {s(sT+2)}, {s(sX)}, 2
    s_mov_b32 {s(sSc)}, {fbits(16.0)}
    s_cmp_eq_u32 {s(sT)}, 0
    s_cselect_b32 {s(sMir)}, {s(sT+1)}, {s(sT+2)}
    s_cselect_b32 {s(sSc)}, {fbits(8.0)}, {s(sSc)}
    s_cselect_b32 {s(sDsc)}, {fbits(1/8)}, {s(sC16)}
    s_cselect_b32 {s(sT+3)}, -4, 0
    s_mov_b32 {s(sSc+1)}, {s(sSc)}
    s_sub_u32 {s(sT+4)}, 256, s2
    s_and_b32 {s(sT+4)}, {s(sT+4)}, 255
    s_cmp_eq_u32 {s(sMir)}, 0
    s_cselect_b32 {s(sT+4)}, s2, {s(sT+4)}       ; source g
    s_cselect_b32 {s(sT+5)}, 16, -16
    s_cselect_b32 {s(sT+6)}, 0, {509*4}
    s_cselect_b32 {s(sT+7)}, 1.0, -1.0
    s_add_u32 {s(sT+3)}, {s(sT+3)}, {s(sT+6)}
    s_mul_i32 {s(sT+6)}, {s(sT+5)}, {s(sW)}
    s_lshl_b32 {s(sT+6)}, {s(sT+6)}, 4
    s_add_u32 {s(sT+3)}, {s(sT+3)}, {s(sT+6)}
    s_lshr_b32 {s(sT+6)}, {s(sT+4)}, 3
    s_lshl_b32 {s(sT+6)}, {s(sT+6)}, 11
    s_add_u32 {s(sT+3)}, {s(sT+3)}, {s(sT+6)}
    s_add_u32 {s(sT+6)}, {s(sT+4)}, 3
    s_and_b32 {s(sT+6)}, {s(sT+6)}, 3
    s_lshl_b32 {s(sT+6)}, {s(sT+6)}, 16
    s_add_u32 {s(sT+3)}, {s(sT+3)}, {s(sT+6)}
    s_and_b32 {s(sT+6)}, {s(sT+4)}, 4
    s_lshl_b32 {s(sT+6)}, {s(sT+6)}, 8
    s_add_u32 {s(sT+3)}, {s(sT+3)}, {s(sT+6)}
    v_mul_i32_i24 {v(vGld)}, {s(sT+5)}, {v(vN)}
    v_mul_u32_u24 {v(c+4)}, {GS}, {v(vQ)}
    v_add3_u32 {v(vGld)}, {v(vGld)}, {v(c+4)}, {s(sT+3)}
    v_lshrrev_b32 {v(c+4)}, 1, {v(vN)}
    v_and_b32 {v(c+4)}, 6, {v(c+4)}
    v_and_or_b32 {v(c+4)}, {v(vN)}, 1, {v(c+4)}
    v_lshl_add_u32 {v(AD)}, {v(c+4)}, 8, s2
    v_cvt_f32_u32 {v(c+4)}, {v(AD)}
    v_cvt_f32_u32 {v(c+5)}, {v(vQ)}
    v_mul_f32 {v(c+4)}, {fbits(1/2048)}, {v(c+4)}
    v_mul_f32 {v(c+4)}, {s(sT+7)}, {v(c+4)}
    v_mul_f32 {v(c+5)}, {v(c+4)}, {v(c+5)}
    v_fma_f32 {v(c+6)}, {v(c+4)}, 4.0, {v(c+5)}
    v_cos_f32 {v(c+7)}, {v(c+5)}
    v_sin_f32 {v(c+8)}, {v(c+5)}
    v_cos_f32 {v(c+9)}, {v(c+6)}
    v_sin_f32 {v(c+10)}, {v(c+6)}
    v_bfe_u32 {v(c+4)}, {v(vN)}, 1, 1
    v_cmp_eq_u32 vcc, {s(sMir)}, {v(c+4)}
    v_cvt_pk_f16_f32 {v(c+7)}, {v(c+7)}, {v(c+8)}
    v_cvt_pk_f16_f32 {v(c+9)}, {v(c+9)}, {v(c+10)}
    v_cndmask_b32 {v(XA)}, 0, {v(c+7)}, vcc
    v_cndmask_b32 {v(XA+1)}, {v(c+7)}, 0, vcc
    v_cndmask_b32 {v(XA+2)}, 0, {v(c+9)}, vcc
    v_cndmask_b32 {v(XA+3)}, {v(c+9)}, 0, vcc
    v_and_b32 {v(c+4)}, 0x1cf, v0
    v_cmp_eq_u32 vcc, 0, {v(c+4)}
    v_mov_b32 {v(c+5)}, {s(sSc)}
    s_sub_u32 {s(sT)}, 2047, s2
    v_lshlrev_b32 {v(vInv)}, 9, {v(vQ)}
    v_cndmask_b32 {v(vSc0)}, {v(c+5)}, 0, vcc
    v_cndmask_b32 {v(vSc0+1)}, {v(c+5)}, 0, vcc
    v_sub_u32 {v(vInv)}, {s(sT)}, {v(vInv)}
    s_lshl_b32 {s(sSlot)}, {s(sX)}, 12
    s_add_u32 {s(sSlot)}, {s(sSlot)}, {SLOT}
    ''')

def main_loop():
    t=T
    S1,S2,S3=t,t+2,t+4
    a('L_top:')
    stamp()
    a(f'''
    v_pk_add_f32 {v(S1,2)}, {v(X,2)}, {v(X+2,2)}
    v_pk_add_f32 {v(t+6,2)}, {v(X+4,2)}, {v(X+6,2)}
    v_pk_mul_f32 {v(S2,2)}, {v(X,2)}, {v(X,2)}
    v_pk_mul_f32 {v(S3,2)}, {v(X,2)}, {v(WV,2)} op_sel:[0,0] op_sel_hi:[1,0]
    v_pk_add_f32 {v(S1,2)}, {v(S1,2)}, {v(t+6,2)}
    v_pk_fma_f32 {v(S2,2)}, {v(X+2,2)}, {v(X+2,2)}, {v(S2,2)}
    v_pk_fma_f32 {v(S3,2)}, {v(X+2,2)}, {v(WV,2)}, {v(S3,2)} op_sel:[0,1,0] op_sel_hi:[1,1,1]
    v_add_f32_dpp {v(S1)}, {v(S1)}, {v(S1)} row_ror:8 row_mask:0xf bank_mask:0x3
    v_pk_fma_f32 {v(S2,2)}, {v(X+4,2)}, {v(X+4,2)}, {v(S2,2)}
    v_pk_fma_f32 {v(S3,2)}, {v(X+4,2)}, {v(WV+2,2)}, {v(S3,2)} op_sel:[0,0,0] op_sel_hi:[1,0,1]
    v_add_f32_dpp {v(S1)}, {v(S1+1)}, {v(S1+1)} row_ror:8 row_mask:0xf bank_mask:0xc
    v_pk_fma_f32 {v(S2,2)}, {v(X+6,2)}, {v(X+6,2)}, {v(S2,2)}
    v_pk_fma_f32 {v(S3,2)}, {v(X+6,2)}, {v(WV+2,2)}, {v(S3,2)} op_sel:[0,1,0] op_sel_hi:[1,1,1]
    s_cmp_eq_u32 {s(sIt)}, 0
    s_cbranch_scc1 L_s3w
    L_s3ok:
    v_add_f32_dpp {v(S1)}, {v(S1)}, {v(S1)} row_half_mirror row_mask:0xf bank_mask:0x5
    v_add_f32_dpp {v(S2)}, {v(S2)}, {v(S2)} row_ror:8 row_mask:0xf bank_mask:0x3
    v_add_f32_dpp {v(S3)}, {v(S3)}, {v(S3)} row_ror:8 row_mask:0xf bank_mask:0x3
    v_add_f32_dpp {v(S2)}, {v(S2+1)}, {v(S2+1)} row_ror:8 row_mask:0xf bank_mask:0xc
    v_add_f32_dpp {v(S3)}, {v(S3+1)}, {v(S3+1)} row_ror:8 row_mask:0xf bank_mask:0xc
    v_add_f32_dpp {v(S1)}, {v(S2)}, {v(S2)} row_half_mirror row_mask:0xf bank_mask:0xa
    v_add_f32_dpp {v(S3)}, {v(S3)}, {v(S3)} row_half_mirror {DPP}
    v_add_f32_dpp {v(S1)}, {v(S1)}, {v(S1)} quad_perm:[1,0,3,2] {DPP}
    v_add_f32_dpp {v(S3)}, {v(S3)}, {v(S3)} quad_perm:[1,0,3,2] {DPP}
    v_add_f32_dpp {v(S1)}, {v(S1)}, {v(S1)} quad_perm:[2,3,0,1] {DPP}
    v_add_f32_dpp {v(S3)}, {v(S3)}, {v(S3)} quad_perm:[2,3,0,1] {DPP}
    s_mov_b64 exec, {s(sQmask,2)}
    ds_write2_b32 {v(vStW)}, {v(S1)}, {v(S3)} offset0:0 offset1:32
    s_mov_b64 exec, -1
    ;@F
    ''')
    if cfg.g2pos==4: a(f's_cmp_lg_u32 {s(sIt)}, 1\ns_cbranch_scc1 L_nw\ns_waitcnt vmcnt(0)\nL_nw:')
    a(f'''
    s_waitcnt lgkmcnt(0)
    s_barrier
    ;@F
    ds_read_b128 {v(t,4)}, {v(vStR)}
    ds_read_b128 {v(t+4,4)}, {v(vStR)} offset:16
    s_waitcnt lgkmcnt(0)
    v_pk_add_f32 {v(t,2)}, {v(t,2)}, {v(t+2,2)}
    v_pk_add_f32 {v(t+4,2)}, {v(t+4,2)}, {v(t+6,2)}
    v_pk_add_f32 {v(t,2)}, {v(t,2)}, {v(t+4,2)}
    v_add_f32 {v(t)}, {v(t)}, {v(t+1)}
    v_mul_f32 {v(t+7)}, {s(sK512)}, {v(t)}
    ''')
    VAR,RS,CC,NM=t+8,t+10,t+12,t+14
    K=t+16
    a(f'''
    v_mov_b32_dpp {v(MM)}, {v(t+7)} row_newbcast:0 {DPP}
    v_mov_b32_dpp {v(MM+1)}, {v(t+7)} row_newbcast:1 {DPP}
    v_mov_b32_dpp {v(S2)}, {v(t+7)} row_newbcast:2 {DPP}
    v_mov_b32_dpp {v(S2+1)}, {v(t+7)} row_newbcast:3 {DPP}
    v_mov_b32_dpp {v(S3)}, {v(t+7)} row_newbcast:4 {DPP}
    v_pk_fma_f32 {v(VAR,2)}, {v(MM,2)}, {v(MM,2)}, {v(S2,2)} neg_lo:[1,0,0] neg_hi:[1,0,0]
    v_mov_b32_dpp {v(S3+1)}, {v(t+7)} row_newbcast:5 {DPP}
    v_pk_add_f32 {v(S1,2)}, {v(VAR,2)}, {s(sEps,2)}
    s_cmp_eq_u32 {s(sIt)}, 0
    v_rsq_f32_e64 {v(RS)}, |{v(S1)}|
    v_rsq_f32_e64 {v(RS+1)}, |{v(S1+1)}|
    s_cbranch_scc1 L_it0 ;!nd
    v_pk_mul_f32 {v(S3,2)}, {v(S3,2)}, {v(RS,2)}
    v_add_u32 {v(K+2)}, 0xffffff00, {v(vInv)}
    v_ashrrev_i32 {v(K)}, 31, {v(S3)}
    v_ashrrev_i32 {v(K+1)}, 31, {v(S3+1)}
    v_bitop3_b32 {v(K)}, {v(S3)}, {v(K)}, {s(sTop)} bitop3:0x1e
    v_bitop3_b32 {v(K+1)}, {v(S3+1)}, {v(K+1)}, {s(sTop)} bitop3:0x1e
    v_bfi_b32 {v(K)}, {s(sM7FF)}, {v(vInv)}, {v(K)}
    v_bfi_b32 {v(K+1)}, {s(sM7FF)}, {v(K+2)}, {v(K+1)}
    v_max_u32 {v(K+1)}, {v(K)}, {v(K+1)}
    v_pk_add_f32 {v(CC,2)}, {v(RS,2)}, 1.0 op_sel_hi:[1,0]
    v_mov_b32 {v(K)}, {s(sTag)}
    v_max_u32_dpp {v(K+1)}, {v(K+1)}, {v(K+1)} row_bcast:15 row_mask:0xa bank_mask:0xf
    v_pk_mul_f32 {v(VAR,2)}, {v(VAR,2)}, {v(CC,2)}
    s_cmp_lg_u32 {s(sW)}, 0
    v_max_u32_dpp {v(K+1)}, {v(K+1)}, {v(K+1)} row_bcast:31 row_mask:0xc bank_mask:0xf
    s_cbranch_scc1 L_nost ;!nd
    s_mov_b32 exec_lo, 0
    s_mov_b32 exec_hi, {s(sTop)}
    s_cmp_eq_u32 {s(sFast)}, 0
    s_cbranch_scc1 L_tabst_slow ;!nd
    buffer_store_dwordx2 {v(K,2)}, off, {WS}, {s(sTabSt)}
    L_tabst_back:
    s_mov_b64 exec, -1
    L_nost:
    v_readlane_b32 {s(sKey)}, {v(K+1)}, 63
    v_pk_mul_f32 {v(NM,2)}, {v(MM,2)}, {v(RS,2)}
    v_pk_fma_f32 {v(VAR,2)}, {v(VAR,2)}, {v(CC,2)}, {s(sEps,2)}
    ''')
    Z=t+18
    for c_ in range(4):
        a(f'v_pk_fma_f32 {v(Z+2*c_,2)}, {v(X+2*c_,2)}, {v(RS,2)}, {v(NM,2)} neg_lo:[0,0,1] neg_hi:[0,0,1]')
        if c_==0: a(f'v_rsq_f32_e64 {v(RS2)}, |{v(VAR)}|')
        if c_==1: a(f'v_rsq_f32_e64 {v(RS2+1)}, |{v(VAR+1)}|')
    for c_ in range(4):
        a(f'v_pk_add_f32 {v(X+2*c_,2)}, {v(X+2*c_,2)}, {v(Z+2*c_,2)}')
    for rho in (0,1):
        for k in (0,1):
            a(f'v_cvt_pk_bf16_f32 {v(LNP+2*rho+k)}, {v(Z+4*k+rho)}, {v(Z+4*k+2+rho)}')
    a(f'''
    s_cmp_eq_u32 {s(sIt)}, 2
    s_cbranch_scc1 L_tab2e ;!nd
    v_pk_mul_f32 {v(CC,2)}, {v(RS2,2)}, {s(sC16,2)}
    L_z:
    ;@F
    ''')
    ZP=t; D0=t+4; D1=t+8
    a(f'v_pk_mul_f32 {v(NM,2)}, {v(MM,2)}, {v(CC,2)}')
    for c_ in range(4):
        a(f'v_pk_fma_f32 {v(Z+2*c_,2)}, {v(X+2*c_,2)}, {v(CC,2)}, {v(NM,2)} neg_lo:[0,0,1] neg_hi:[0,0,1]')
    for c_ in range(4): a(f'v_cvt_pk_f16_f32 {v(ZP+c_)}, {v(Z+2*c_)}, {v(Z+2*c_+1)}')
    a(f'''
    v_mfma_f32_16x16x16_f16 {v(D0,4)}, {v(A8,2)}, {v(ZP,2)}, 0
    v_mfma_f32_16x16x16_f16 {v(D1,4)}, {v(A8,2)}, {v(ZP+2,2)}, 0
    s_nop 6
    v_cvt_pk_f16_f32 {v(ZP)}, {v(D0)}, {v(D0+1)}
    v_cvt_pk_f16_f32 {v(ZP+1)}, {v(D1)}, {v(D1+1)}
    v_cvt_pk_f16_f32 {v(ZP+2)}, {v(D0+2)}, {v(D0+3)}
    v_cvt_pk_f16_f32 {v(ZP+3)}, {v(D1+2)}, {v(D1+3)}
    ds_write_b64 {v(vUW)}, {v(ZP,2)}
    ds_write_b64 {v(vUW)}, {v(ZP+2,2)} offset:1024
    ;@F
    s_waitcnt lgkmcnt(0)
    s_barrier
    ;@F
    ds_read_b64_tr_b16 {v(t,2)}, {v(vUR)}
    ds_read_b64_tr_b16 {v(t+2,2)}, {v(vUR)} offset:512
    ds_read_b64_tr_b16 {v(t+4,2)}, {v(vUR)} offset:1024
    ds_read_b64_tr_b16 {v(t+6,2)}, {v(vUR)} offset:1536
    s_cmp_ge_u32 {s(sW)}, {s(sIt)}
    s_cbranch_scc1 L_tg1 ;!nd
    buffer_load_dwordx2 {v(t+24,2)}, {v(vL8)}, {WS}, {s(sTabLd)} offen sc1
    L_tg1:
    L_tg2:
    s_waitcnt lgkmcnt(0)
    ;@F
    ''')
    P=t
    fft_core(t, t+4, t+8, t+16, t+8, P)
    for r in range(4): a(f'v_bfi_b32 {v(P+r)}, 1, {s(sPh)}, {v(P+r)}')
    def lstores(fl):
        for r in range(4): a(f'buffer_store_dword {v(P+r)}, {v(vLst)}, {WS}, {s(sLst)} offen offset:{128*r} {fl}')
    TB=t+24
    W_=t+4
    a(f'''
    s_cmp_lg_u32 {s(sIt)}, 0
    s_cbranch_scc1 L_tab1e
    ''')
    lstores('')
    stamp()
    a(f'''
    s_branch L_pub
    L_tab1e:
    s_cmp_eq_u32 {s(sW)}, 0
    s_cbranch_scc1 L_tabw1
    s_branch L_tabbar
    L_tab2e:
    s_cmp_eq_u32 {s(sW)}, 0
    s_cbranch_scc1 L_tab
    s_branch L_tabbar
    L_tab:
    buffer_load_dwordx2 {v(TB,2)}, {v(vL8)}, {WS}, {s(sTabLd)} offen sc1
    L_tabw1:
    s_waitcnt vmcnt(0)
    v_cmp_ne_u32 vcc, {s(sTag)}, {v(TB)}
    ''')
    poll_branch('L_tab', cfg.slp_t, f'''s_cmp_lg_u32 {s(sIt)}, 0
        s_cselect_b32 {s(sT)}, 0, 1
        s_sub_u32 {s(sTry)}, {s(sTry)}, {s(sT)}
        s_cbranch_scc1 L_tab2''')
    a(f'''
    L_tabok:
    v_cmp_ne_u32 vcc, {s(sKey)}, {v(TB+1)}
    v_cmp_lt_u32 {s(sT,2)}, {s(sKey)}, {v(TB+1)}
    v_mov_b32 {v(TB)}, {L_FLAG}
    s_cmp_eq_u32 {s(sIt)}, 0
    s_cselect_b32 {s(sT)}, vcc_lo, {s(sT)}
    v_mov_b32 {v(TB+1)}, {s(sT)}
    ds_write_b32 {v(TB)}, {v(TB+1)}
    s_waitcnt lgkmcnt(0)
    s_barrier
    s_branch L_tabgot
    L_tabbar:
    v_mov_b32 {v(TB)}, {L_FLAG}
    s_barrier
    ds_read_b32 {v(TB+1)}, {v(TB)}
    s_waitcnt lgkmcnt(0)
    v_readfirstlane_b32 {s(sT)}, {v(TB+1)}
    L_tabgot:
    s_cmp_eq_u32 {s(sIt)}, 0
    s_cbranch_scc1 L_fastchk ;!nd
    s_mov_b32 {s(sT+9)}, 64
    s_cmp_lg_u32 {s(sT)}, 0
    s_cbranch_scc1 L_winback ;!nd
    L_pub:
    s_andn2_b32 {s(sT)}, {s(sM7FF)}, {s(sKey)}      ; idx
    s_lshr_b32 {s(sT+9)}, {s(sT)}, 8                ; s1
    s_bitcmp1_b32 {s(sT+9)}, 0
    s_cselect_b64 vcc, -1, 0
    s_lshl_b32 {s(sT+1)}, {s(sT+9)}, 3
    s_and_b32 {s(sT+1)}, {s(sT+1)}, 0x30
    v_cndmask_b32 {v(W_)}, {v(LNP)}, {v(LNP+2)}, vcc
    v_cndmask_b32 {v(W_+1)}, {v(LNP+1)}, {v(LNP+3)}, vcc
    v_and_b32 {v(W_+2)}, 0x3ff, {v(vXoff)}
    s_bfm_b64 exec, 16, {s(sT+1)}
    buffer_store_dwordx2 {v(W_,2)}, {v(W_+2)}, {WS}, {s(sSlot)} offen sc1
    s_cmp_lg_u32 {s(sW)}, 0
    s_cbranch_scc1 L_nohdr
    v_mov_b32 {v(W_+8)}, {s(sKey)}
    v_cndmask_b32 {v(W_+9)}, {v(MM)}, {v(MM+1)}, vcc
    v_cndmask_b32 {v(W_+10)}, {v(RS2)}, {v(RS2+1)}, vcc
    v_mov_b32 {v(W_+11)}, {s(sKey)}
    buffer_store_dwordx4 {v(W_+8,4)}, off, {WS}, {s(sSlot)} offset:3072 sc1
    buffer_store_dwordx4 {v(W_+8,4)}, off, {WS}, {s(sSlot)} offset:3200 sc1
    L_nohdr:
    ''')
    for c_ in range(4): a(f'v_cndmask_b32 {v(W_+4+c_)}, {v(X+2*c_)}, {v(X+2*c_+1)}, vcc')
    a(f'''
    v_lshlrev_b32 {v(W_+2)}, 1, {v(W_+2)}
    buffer_store_dwordx4 {v(W_+4,4)}, {v(W_+2)}, {WS}, {s(sSlot)} offen offset:1024 sc1
    s_mov_b64 exec, -1
    s_cmp_eq_u32 {s(sIt)}, 0
    s_cbranch_scc1 L_flag0
    L_winback:
    s_cmp_eq_u32 {s(sIt)}, 2
    s_cbranch_scc1 L_fin
    s_add_u32 {s(sSlot)}, {s(sSlot)}, {SLOTR}
    ''')
    lstores('')
    stamp()
    a(f'''
    s_waitcnt vmcnt(0)
    s_branch L_tabdone
    L_flag0:
    ;@F
    v_mov_b32 {v(t+22)}, {s(sTag)}
    v_mov_b32 {v(t+23)}, {s(sKey)}
    s_waitcnt vmcnt(0)
    ;@F
    s_cmp_eq_u32 {s(sW)}, 0
    s_barrier
    s_cbranch_scc0 L_tabbar
    s_mov_b64 exec, 1
    buffer_store_dwordx2 {v(t+22,2)}, off, {WS}, {s(sTabSt)}
    s_mov_b64 exec, -1
    s_branch L_tab
    L_fastchk:
    s_cmp_eq_u32 {s(sT)}, 0
    s_cselect_b32 {s(sFast)}, 1, 0
    L_tabdone:
    s_cmp_eq_u32 {s(sFast)}, 0
    s_cbranch_scc1 L_slow
    L_slowback:
    ;@F
    s_cmp_lt_u32 {s(sJ)}, 8
    s_cbranch_scc0 L_y
    s_branch L_yself
    L_y:
    buffer_load_dwordx4 {v(t,4)}, {v(vLld)}, {WS}, {s(sLld)} offen sc1
    s_waitcnt vmcnt(0)
    ds_write_b128 {v(vYIW)}, {v(t,4)}
    ''')
    phchk(range(t,t+4), t+8)
    poll_branch('L_y', cfg.slp_l, mask=True)
    a('L_yjoin:')
    stamp()
    a(f'''
    s_cmp_lg_u32 {s(sT+12)}, 0
    s_cbranch_scc1 L_noxf
    s_lshl_b32 {s(sT+12)}, {s(sX)}, 7
    s_add_u32 {s(sT+12)}, {s(sT+12)}, {TABG}
    v_lshrrev_b32 {v(t+8)}, 1, {v(vL8)}
    v_mov_b32 {v(t+9)}, {s(sTag)}
    s_mov_b32 exec_hi, 0
    buffer_store_dword {v(t+9)}, {v(t+8)}, {WS}, {s(sT+12)} offen sc1
    s_mov_b64 exec, -1
    L_noxf:
    s_cmp_eq_u32 {s(sIt)}, 0
    s_cbranch_scc1 {'L_g2d' if cfg.g2pos==5 else 'L_nohl'}
    v_and_b32 {v(BC)}, 7, {v(vLane)}
    v_lshlrev_b32 {v(BC)}, 12, {v(BC)}
    s_mov_b32 {s(sT+10)}, {SLOT}
    s_mov_b64 exec, 0xff
    buffer_load_dwordx4 {v(LNP,4)}, {v(BC)}, {WS}, {s(sT+10)} offen offset:3200 sc1
    s_mov_b64 exec, -1
    {'s_branch L_nohl' if cfg.g2pos==5 else ''}
    {'L_g2d:' if cfg.g2pos==5 else ''}
    {g2late() if cfg.g2pos==5 else ''}
    L_nohl:
    ''')
    A0,A1=t,t+4; P0,Q0,P1,Q1=t+8,t+12,t+16,t+20
    a(f'''
    s_waitcnt lgkmcnt(0)
    s_barrier
    ;@F
    ds_read_b64_tr_b16 {v(A0,2)}, {v(vYIR)}
    ds_read_b64_tr_b16 {v(A0+2,2)}, {v(vYIR)} offset:{16*YIS}
    ds_read_b64_tr_b16 {v(A1,2)}, {v(vYIR)} offset:8
    ds_read_b64_tr_b16 {v(A1+2,2)}, {v(vYIR)} offset:{16*YIS+8}
    s_add_u32 {s(sTabLd)}, {s(sTabLd)}, {ARGR}
    s_add_u32 {s(sTabSt)}, {s(sTabSt)}, {ARGR}
    s_waitcnt lgkmcnt(2)
    v_mfma_f32_16x16x32_f16 {v(P0,4)}, {v(A0,4)}, {v(YC,4)}, 0
    v_mfma_f32_16x16x32_f16 {v(Q0,4)}, {v(A0,4)}, {v(YS,4)}, 0
    s_waitcnt lgkmcnt(0)
    v_mfma_f32_16x16x32_f16 {v(P1,4)}, {v(A1,4)}, {v(YC,4)}, 0
    v_mfma_f32_16x16x32_f16 {v(Q1,4)}, {v(A1,4)}, {v(YS,4)}, 0
    ''')
    for P_,Q_ in ((P0,Q0),(P1,Q1)):
        for h in (0,2):
            a(f'v_pk_add_f32 {v(P_+h,2)}, {v(P_+h,2)}, {v(Q_+h,2)} op_sel:[0,1] op_sel_hi:[1,0] neg_hi:[0,1]')
    a(f'''
    v_cvt_pk_f16_f32 {v(t)}, {v(P0)}, {v(P0+1)}
    v_cvt_pk_f16_f32 {v(t+1)}, {v(P0+2)}, {v(P0+3)}
    v_cvt_pk_f16_f32 {v(t+2)}, {v(P1)}, {v(P1+1)}
    v_cvt_pk_f16_f32 {v(t+3)}, {v(P1+2)}, {v(P1+3)}
    ''')
    if cfg.gre:
        for r in range(4): a(f'v_bfi_b32 {v(t+r)}, 1, {s(sPh)}, {v(t+r)}')
    a(f'''
    ds_write_b128 {v(vYW)}, {v(t,4)}
    ;@F
    s_waitcnt lgkmcnt(0)
    s_barrier
    ;@F
    ds_read_b128 {v(t+4,4)}, {v(vYR)}
    s_cmp_lg_u32 {s(sIt)}, 0
    s_cbranch_scc1 L_hdr
    s_waitcnt lgkmcnt(0)
    buffer_store_dwordx4 {v(t+4,4)}, {v(vGst)}, {WS}, {s(sG0)} offen sc1
    ''')
    stamp()
    a(f'''
    {g2late() if cfg.g2pos==3 else ''}
    v_and_b32 {v(t+24)}, 7, {v(vLane)}
    v_lshlrev_b32 {v(t+24)}, 7, {v(t+24)}
    s_mov_b32 {s(sT+10)}, {TABG}
    v_mov_b32 {v(t+20)}, {s(sTag)}
    ''')
    a(f's_mov_b64 exec, 0xff\nbuffer_load_dword {v(t+20)}, {v(t+24)}, {WS}, {s(sT+10)} offen sc1\ns_mov_b64 exec, -1')
    xin_consts(t+8)
    a(';@F\nL_tg0w:\ns_waitcnt vmcnt(0)')
    a(f'v_cmp_ne_u32 vcc, {s(sTag)}, {v(t+20)}')
    a(f'''
    s_cbranch_vccnz L_tg0_r ;!nd
    ''')
    if cfg.g2pos==4: a(f'''
    buffer_load_dwordx4 {v(t,4)}, {v(vGld)}, {WS}, {s(sG0)} offen sc1
    buffer_load_dwordx4 {v(t+4,4)}, {v(vGld)}, {WS}, {s(sG4)} offen sc1
    {g2late()}
    s_cmp_lg_u32 {s(sMir)}, 0
    s_waitcnt vmcnt(1)
    s_branch L_gw2
    ''')
    else: a('s_branch L_g')
    a(f'''
    L_g:
    ''')
    C0,C1=t,t+4
    a(f'''
    buffer_load_dwordx4 {v(C0,4)}, {v(vGld)}, {WS}, {s(sG0)} offen sc1
    buffer_load_dwordx4 {v(C1,4)}, {v(vGld)}, {WS}, {s(sG4)} offen sc1
    L_gw:
    s_cmp_lg_u32 {s(sMir)}, 0
    s_waitcnt vmcnt(0)
    L_gw2:
    s_cbranch_scc1 L_xmir ;!nd
    ''')
    E0,E1=t+8,t+12
    a(f'''
    v_mfma_f32_16x16x16_f16 {v(E0,4)}, {v(XA,2)}, {v(C0,2)}, 0
    v_mfma_f32_16x16x16_f16 {v(E1,4)}, {v(XA,2)}, {v(C0+2,2)}, 0
    v_mfma_f32_16x16x16_f16 {v(E0,4)}, {v(XA+2,2)}, {v(C1,2)}, {v(E0,4)}
    v_mfma_f32_16x16x16_f16 {v(E1,4)}, {v(XA+2,2)}, {v(C1+2,2)}, {v(E1,4)}
    s_branch L_xjoin ;!nd
    L_xmir:
    ''')
    a.hist=[]
    a(f'''
    v_mfma_f32_16x16x16_f16 {v(E0,4)}, {v(XA,2)}, {v(C0+2,2)}, 0
    v_mfma_f32_16x16x16_f16 {v(E1,4)}, {v(XA,2)}, {v(C0,2)}, 0
    v_mfma_f32_16x16x16_f16 {v(E0,4)}, {v(XA+2,2)}, {v(C1+2,2)}, {v(E0,4)}
    v_mfma_f32_16x16x16_f16 {v(E1,4)}, {v(XA+2,2)}, {v(C1,2)}, {v(E1,4)}
    L_xjoin:
    ''')
    if cfg.gre: phchk(range(t,t+8), t+16)
    else: maxchk(range(t,t+8), t+16)
    poll_branch('L_g', cfg.slp_g, mask=True)
    stamp()
    a(f'''
    s_mov_b32 {s(sIt)}, 1
    s_mov_b32 {s(sPh)}, -1
    {f's_add_u32 {s(sG0)}, {s(sG0)}, {GR}' if not cfg.gre else ''}
    {f's_add_u32 {s(sG4)}, {s(sG4)}, {GR}' if not cfg.gre else ''}
    L_apply:
    s_cmp_eq_u32 {s(sNx)}, 0
    v_pk_fma_f32 {v(X,2)}, {v(E0,2)}, {v(vSc0,2)}, {v(X,2)}
    v_pk_fma_f32 {v(X+2,2)}, {v(E0+2,2)}, {s(sSc,2)}, {v(X+2,2)}
    v_pk_fma_f32 {v(X+4,2)}, {v(E1,2)}, {s(sSc,2)}, {v(X+4,2)}
    v_pk_fma_f32 {v(X+6,2)}, {v(E1+2,2)}, {s(sSc,2)}, {v(X+6,2)}
    s_cbranch_scc1 L_top ;!nd
    s_branch L_corr
    ''')
    a(f'''
    L_yself:
    buffer_load_dwordx4 {v(t,4)}, {v(vLld)}, {WS}, {s(sLld)} offen sc1
    buffer_load_dwordx4 {v(t+4,4)}, {v(vLldM)}, {WS}, {s(sLld)} offen sc1
    s_waitcnt vmcnt(0)
    ''')
    phchk(range(t,t+8), t+8)
    poll_branch('L_yself', cfg.slp_l, mask=True)
    a(f'''
    s_bitcmp1_b32 {s(sW)}, 0
    s_cbranch_scc1 L_yself4
    ''')
    for k in range(4): a(f'v_pk_add_f16 {v(t+k)}, {v(t+k)}, {v(t+7-k)} neg_hi:[0,1]')
    a(f'ds_write_b128 {v(vYIW)}, {v(t,4)}\ns_branch L_yjoin\nL_yself4:')
    for k in range(4): a(f'v_pk_add_f16 {v(t+k)}, {v(t+k)}, {v(t+7-k)} op_sel:[1,1] op_sel_hi:[0,0] neg_hi:[1,0]')
    a(f'ds_write_b128 {v(vYIW)}, {v(t,4)}\ns_branch L_yjoin')
    a(f'''
    L_s3w:
    v_pk_add_f32 {v(S3,2)}, {v(WV,2)}, {v(WV+2,2)}
    v_add_f32 {v(S3)}, {v(S3)}, {v(S3+1)}
    v_mov_b32 {v(S3+1)}, {v(S3)}
    s_branch L_s3ok
    L_it0:
    s_mov_b32 {s(sKey)}, {s(sXcc)}
    v_pk_mul_f32 {v(CC,2)}, {v(RS,2)}, {s(sC16,2)}
    v_mov_b32 {v(S1)}, 0x44000000
    v_pk_add_f32 {v(WV,2)}, {v(WV,2)}, {v(S3,2)} neg_lo:[0,1] neg_hi:[0,1]
    v_pk_add_f32 {v(WV+2,2)}, {v(WV+2,2)}, {v(S3,2)} neg_lo:[0,1] neg_hi:[0,1]
    v_pk_mul_f32 {v(WV,2)}, {v(WV,2)}, {v(S1,2)} op_sel_hi:[1,0]
    v_pk_mul_f32 {v(WV+2,2)}, {v(WV+2,2)}, {v(S1,2)} op_sel_hi:[1,0]
    ''')
    a('s_branch L_z')
    H=LNP
    sIdx=sT+11
    KA=BC+6; EK=BC+8; vYP=BC+9; SEL=BC+10; vDW,vDR=BC+12,BC+13
    YR=t+8; YL=t+12; YD=t+20
    gl=f'buffer_load_dwordx4 {v(C0,4)}, {v(vGld)}, {WS}, {s(sG0)} offen sc1\nbuffer_load_dwordx4 {v(C1,4)}, {v(vGld)}, {WS}, {s(sG4)} offen sc1'
    def hdrpoll(lbl, slp, issued=False, after=''):
        if not issued: a(f"""
        v_and_b32 {v(BC)}, 7, {v(vLane)}
        v_lshlrev_b32 {v(BC)}, 12, {v(BC)}
        """)
        a(f"""
        s_mov_b64 exec, 0xff
        {f's_waitcnt vmcnt({0 if cfg.gre else 1})' if issued else ''}
        {f's_branch {lbl}_c' if issued else ''}
        {lbl}:
        buffer_load_dwordx4 {v(H,4)}, {v(BC)}, {WS}, {s(sT+10)} offen offset:3200 sc1
        s_waitcnt vmcnt(0)
        {lbl}_c:
        """)
        maxchk(range(H,H+4), t+17)
        poll_branch(lbl, slp, skip=True)
        a('s_mov_b64 exec, -1')
        if after: a(after); stamp()
        a(f"""
        v_max_u32_dpp {v(H+3)}, {v(H)}, {v(H)} row_half_mirror {DPP}
        v_max_u32_dpp {v(H+3)}, {v(H+3)}, {v(H+3)} quad_perm:[1,0,3,2] {DPP}
        v_max_u32_dpp {v(H+3)}, {v(H+3)}, {v(H+3)} quad_perm:[2,3,0,1] {DPP}
        v_readfirstlane_b32 {s(sIdx)}, {v(H+3)}
        """)
    def owner():
        a(f"""
        s_sub_u32 {s(sT)}, 2047, {s(sIdx)}
        s_add_u32 {s(sT+1)}, {s(sT)}, 256
        v_cmp_eq_u32 vcc, {s(sT)}, {v(vInv)}
        v_cmp_eq_u32 {s(sT+2,2)}, {s(sT+1)}, {v(vInv)}
        v_cndmask_b32 {v(BC)}, 0, 1.0, vcc
        v_cndmask_b32 {v(BC+1)}, 0, 1.0, {s(sT+2,2)}
        """)
    gst=f's_waitcnt lgkmcnt(0)\nbuffer_store_dwordx4 {v(t+4,4)}, {v(vGst)}, {WS}, {s(sG0)} offen sc1'
    a(f'L_hdr:')
    if not cfg.gre: a(gst); stamp()
    hdrpoll('L_hdrp', 2, True, gst if cfg.gre else '')
    a(f"""
    v_and_b32 {v(vYP)}, 0x3ff, {v(vXoff)}
    v_lshlrev_b32 {v(t+16)}, 1, {v(vYP)}
    s_andn2_b32 {s(sIdx)}, {s(sM7FF)}, {s(sIdx)}
    s_and_b32 {s(sT)}, {s(sIdx)}, 7
    s_lshl_b32 {s(sT+1)}, {s(sT)}, 12
    s_add_u32 {s(sT+10)}, {s(sT+10)}, {s(sT+1)}
    buffer_load_dwordx4 {v(BC+2,4)}, {v(t+16)}, {WS}, {s(sT+10)} offen offset:1024 sc1
    v_readlane_b32 {s(sT+13)}, {v(H+1)}, {s(sT)}
    v_readlane_b32 {s(sT+14)}, {v(H+2)}, {s(sT)}
    v_mul_u32_u24 {v(t+17)}, {s(sIdx)}, {v(AD)}
    v_and_b32 {v(t+17)}, 0x7ff, {v(t+17)}
    v_cvt_f32_u32 {v(t+17)}, {v(t+17)}
    v_mul_f32 {v(t+17)}, {fbits(1/2048)}, {v(t+17)}
    v_cos_f32 {v(t+18)}, {v(t+17)}
    v_sin_f32 {v(t+19)}, {v(t+17)}
    v_and_b32 {v(t+17)}, 0x22, {v(vLane)}
    v_cvt_pk_f16_f32 {v(t+18)}, {v(t+18)}, {v(t+19)}
    v_cmp_eq_u32 vcc, 0, {v(t+17)}
    v_mov_b32 {v(KA)}, {s(sT+14)}
    v_mul_f32 {v(KA)}, {s(sC16)}, {v(KA)}
    v_cndmask_b32 {v(AD)}, 0, {v(t+18)}, vcc
    v_cmp_eq_u32 vcc, 2, {v(t+17)}
    v_mul_f32 {v(EK)}, {v(KA)}, {v(KA)}
    v_mul_f32 {v(EK)}, {s(sEps)}, {v(EK)}
    v_cndmask_b32 {v(AD+1)}, 0, {v(t+18)}, vcc
    """)
    owner()
    a(f"""
    v_lshlrev_b32 {v(t+17)}, 4, {v(vLane)}
    v_mov_b32 {v(t+18)}, 0x3f80
    v_and_b32 {v(t+17)}, 16, {v(t+17)}
    v_lshlrev_b32 {v(t+18)}, {v(t+17)}, {v(t+18)}
    v_and_b32 {v(t+17)}, 2, {v(vLane)}
    v_cmp_eq_u32 vcc, 0, {v(t+17)}
    v_lshl_add_u32 {v(vYP)}, {v(vQ)}, 10, {v(vYP)}
    s_lshl_b32 {s(sT+3)}, {s(sW)}, 8
    v_cndmask_b32 {v(SEL)}, 0, {v(t+18)}, vcc
    v_cndmask_b32 {v(SEL+1)}, {v(t+18)}, 0, vcc
    s_add_u32 {s(sT+3)}, {s(sT+3)}, {L_DH}
    v_lshl_add_u32 {v(vDR)}, {v(vN)}, 4, {s(sT+3)}
    v_and_b32 {v(t+17)}, 1, {v(vQ)}
    v_lshl_add_u32 {v(vDR)}, {v(t+17)}, 11, {v(vDR)}
    v_cmp_eq_u32 vcc, 0, {v(vQ)}
    v_add_u32 {v(vDW)}, {L_DH}, {v(vLst)}
    s_mov_b32 {s(sYo)}, {YP}
    s_lshl_b32 {s(sYh)}, {s(sX)}, 7
    s_add_u32 {s(sYh)}, {s(sYh)}, {YHINT}
    s_lshl_b32 {s(sSg)}, {s(sW)}, 30
    s_and_b32 {s(sSg)}, {s(sSg)}, {s(sTop)}
    s_xor_b32 {s(sSg)}, {s(sSg)}, {s(sDsc)}
    s_mov_b32 {s(sNx)}, 2
    v_cndmask_b32 {v(KA+1)}, 0, {v(KA)}, vcc
    s_waitcnt vmcnt(0)
    {gl if not cfg.hold else ''}
    L_basew:
    """)
    maxchk(range(BC+2,BC+6), t+17)
    a('s_cbranch_vccnz L_base_r ;!nd')
    for k in range(4): a(f'v_subrev_f32 {v(BC+2+k)}, {s(sT+13)}, {v(BC+2+k)}')
    for k in range(4): a(f'v_mul_f32 {v(BC+2+k)}, {v(KA)}, {v(BC+2+k)}')
    a(f"""
    s_branch {'L_ywait' if cfg.hold else 'L_gw'}
    L_corr:
    s_mov_b32 {s(sIt)}, 2
    s_mov_b32 {s(sNx)}, 0
    {'s_branch L_yc' if cfg.hold else ''}
    L_ywait:
    s_add_u32 {s(sT+2)}, {s(sYo)}, 4096
    s_cmp_lg_u32 {s(sW)}, 0
    s_cbranch_scc1 L_hintb
    s_movk_i32 {s(sTry)}, 500
    v_lshrrev_b32 {v(t)}, 1, {v(vL8)}
    """)
    if cfg.own: a(f"""
    s_cmp_eq_u32 {s(sIt)}, 3
    s_cbranch_scc1 L_hint
    s_lshl_b32 {s(sT)}, {s(sJ)}, 2
    v_mov_b32 {v(t)}, {s(sT)}
    """)
    a(f"""
    L_hint:
    buffer_load_dword {v(t+1)}, {v(t)}, {WS}, {s(sYh)} offen sc1
    s_waitcnt vmcnt(0)
    v_cmp_ne_u32 vcc, {s(sTag)}, {v(t+1)}
    """)
    poll_branch('L_hint', 1, giveup='L_hintb')
    if cfg.tim_y: a(f's_sleep {cfg.tim_y}')
    a(f"""
    L_hintb:
    s_barrier
    """)
    if cfg.hold: a(f"""
    s_cmp_eq_u32 {s(sIt)}, 3
    s_cbranch_scc1 L_yv3
    {gl}
    {f's_sleep {cfg.tim_gy}' if cfg.tim_gy else ''}
    buffer_load_dwordx2 {v(YD,2)}, {v(vYP)}, {WS}, {s(sYo)} offen sc1
    buffer_load_dwordx2 {v(YD+2,2)}, {v(vYP)}, {WS}, {s(sT+2)} offen sc1
    s_cmp_lg_u32 {s(sMir)}, 0
    s_waitcnt vmcnt(2)
    s_branch L_gw2
    L_yv3:
    {f's_sleep {cfg.tim_y3}' if cfg.tim_y3 else ''}
    s_branch L_yv
    """)
    a(f"""
    L_yv:
    buffer_load_dwordx2 {v(YD,2)}, {v(vYP)}, {WS}, {s(sYo)} offen sc1
    buffer_load_dwordx2 {v(YD+2,2)}, {v(vYP)}, {WS}, {s(sT+2)} offen sc1
    L_yc:
    s_waitcnt vmcnt(0)
    v_mfma_f32_16x16x16_bf16 {v(YR,4)}, {v(SEL,2)}, {v(YD,2)}, 0
    v_mfma_f32_16x16x16_bf16 {v(YR,4)}, {v(SEL,2)}, {v(YD+2,2)}, {v(YR,4)}
    """)
    maxchk(range(YD,YD+4), t+17)
    poll_branch('L_yv', 1, mask=True)
    stamp()
    own=[f'v_pk_fma_f32 {v(X,2)}, {v(BC,2)}, {v(YR,2)}, {v(X,2)} op_sel:[0,0,0] op_sel_hi:[1,0,1]',
         f'v_pk_fma_f32 {v(X+2,2)}, {v(BC,2)}, {v(YR,2)}, {v(X+2,2)} op_sel:[0,1,0] op_sel_hi:[1,1,1]',
         f'v_pk_fma_f32 {v(X+4,2)}, {v(BC,2)}, {v(YR+2,2)}, {v(X+4,2)} op_sel:[0,0,0] op_sel_hi:[1,0,1]',
         f'v_pk_fma_f32 {v(X+6,2)}, {v(BC,2)}, {v(YR+2,2)}, {v(X+6,2)} op_sel:[0,1,0] op_sel_hi:[1,1,1]']
    s1,s2=t+20,t+21
    a(f"""
    s_cmp_eq_u32 {s(sIt)}, 3
    s_cbranch_scc1 L_fin3
    L_pass:
    v_pk_fma_f32 {v(YL,2)}, {v(YR,2)}, {v(KA,2)}, {v(BC+2,2)} op_sel:[0,1,0]
    v_pk_fma_f32 {v(YL+2,2)}, {v(YR+2,2)}, {v(KA,2)}, {v(BC+4,2)} op_sel:[0,1,0]
    v_cvt_pk_f16_f32 {v(YL)}, {v(YL)}, {v(YL+1)}
    v_cvt_pk_f16_f32 {v(YL+1)}, {v(YL+2)}, {v(YL+3)}
    ds_write_b64 {v(vUW)}, {v(YL,2)}
    {own[0]}
    {own[1]}
    {own[2]}
    {own[3]}
    s_cmp_gt_u32 {s(sW)}, 3
    s_waitcnt lgkmcnt(0)
    s_barrier
    s_cbranch_scc1 L_dhb ;!nd
    ds_read_b64_tr_b16 {v(t+8,2)}, {v(vUR)}
    ds_read_b64_tr_b16 {v(t+10,2)}, {v(vUR)} offset:512
    v_mov_b32 {v(t+22)}, 0x3c003c00
    s_waitcnt lgkmcnt(0)
    ;@F
    """)
    XR=t+8; U_=t+12; V_=YC; PP=LNP
    Ur,Ui=U_,U_+4; Vr,Vi=V_,V_+4
    a(f"""
    v_mfma_f32_16x16x32_f16 {v(Ur,4)}, {v(XR,4)}, {v(B1C,4)}, 0
    v_mfma_f32_16x16x32_f16 {v(Ui,4)}, {v(XR,4)}, {v(B1N,4)}, 0
    v_dot2_f32_f16 {v(s1)}, {v(XR)}, {v(t+22)}, 0
    v_dot2_f32_f16 {v(s2)}, {v(XR)}, {v(XR)}, 0
    v_dot2_f32_f16 {v(s1)}, {v(XR+1)}, {v(t+22)}, {v(s1)}
    v_dot2_f32_f16 {v(s2)}, {v(XR+1)}, {v(XR+1)}, {v(s2)}
    v_dot2_f32_f16 {v(s1)}, {v(XR+2)}, {v(t+22)}, {v(s1)}
    v_dot2_f32_f16 {v(s2)}, {v(XR+2)}, {v(XR+2)}, {v(s2)}
    v_dot2_f32_f16 {v(s1)}, {v(XR+3)}, {v(t+22)}, {v(s1)}
    v_dot2_f32_f16 {v(s2)}, {v(XR+3)}, {v(XR+3)}, {v(s2)}
    v_pk_mul_f32 {v(Vi,2)}, {v(Ur,2)}, {v(TWS,2)}
    v_pk_mul_f32 {v(Vi+2,2)}, {v(Ur+2,2)}, {v(TWS+2,2)}
    v_pk_mul_f32 {v(Vr,2)}, {v(Ui,2)}, {v(TWS,2)}
    v_permlane32_swap_b32 {v(s1)}, {v(s2)}
    v_pk_mul_f32 {v(Vr+2,2)}, {v(Ui+2,2)}, {v(TWS+2,2)}
    v_add_f32 {v(s1)}, {v(s1)}, {v(s2)}
    v_pk_fma_f32 {v(Vr,2)}, {v(Ur,2)}, {v(TWC,2)}, {v(Vr,2)}
    v_pk_fma_f32 {v(Vi,2)}, {v(Ui,2)}, {v(TWC,2)}, {v(Vi,2)} neg_lo:[0,0,1] neg_hi:[0,0,1]
    v_add_f32_dpp {v(s1)}, {v(s1)}, {v(s1)} row_ror:8 {DPP}
    v_pk_fma_f32 {v(Vr+2,2)}, {v(Ur+2,2)}, {v(TWC+2,2)}, {v(Vr+2,2)}
    v_pk_fma_f32 {v(Vi+2,2)}, {v(Ui+2,2)}, {v(TWC+2,2)}, {v(Vi+2,2)} neg_lo:[0,0,1] neg_hi:[0,0,1]
    v_add_f32_dpp {v(s1)}, {v(s1)}, {v(s1)} row_ror:4 {DPP}
    v_cvt_pk_f16_f32 {v(PP)}, {v(Vr)}, {v(Vi)}
    v_cvt_pk_f16_f32 {v(PP+1)}, {v(Vr+1)}, {v(Vi+1)}
    v_add_f32_dpp {v(s1)}, {v(s1)}, {v(s1)} row_ror:2 {DPP}
    v_cvt_pk_f16_f32 {v(PP+2)}, {v(Vr+2)}, {v(Vi+2)}
    v_cvt_pk_f16_f32 {v(PP+3)}, {v(Vr+3)}, {v(Vi+3)}
    v_add_f32_dpp {v(s1)}, {v(s1)}, {v(s1)} row_ror:1 {DPP}
    v_mfma_f32_16x16x32_f16 {v(Ur,4)}, {v(A2R,4)}, {v(PP,4)}, 0
    v_mfma_f32_16x16x32_f16 {v(Ui,4)}, {v(A2I,4)}, {v(PP,4)}, 0
    v_add_f32_dpp {v(s1)}, {v(s1)}, {v(s1)} row_bcast:15 row_mask:0xa bank_mask:0xf
    v_mul_f32 {v(s1)}, {s(sK512)}, {v(s1)}
    v_readlane_b32 {s(sT+2)}, {v(s1)}, 63
    v_readlane_b32 {s(sT+1)}, {v(s1)}, 31
    v_add_f32 {v(s2)}, {s(sT+2)}, {v(EK)}
    v_mov_b32 {v(s1)}, {s(sT+1)}
    v_fma_f32 {v(s1)}, -{v(s1)}, {v(s1)}, {v(s2)}
    v_rsq_f32_e64 {v(s1)}, |{v(s1)}|
    v_mul_f32 {v(s1)}, {s(sSg)}, {v(s1)}
    """)
    for k in range(4): a(f'v_pk_mul_f32 {v(U_+2*k,2)}, {v(U_+2*k,2)}, {v(s1,2)} op_sel_hi:[1,0]')
    for r in range(4): a(f'v_cvt_pk_f16_f32 {v(PP+r)}, {v(Ur+r)}, {v(Ui+r)}')
    a(f"""
    ds_write2_b32 {v(vDW)}, {v(PP)}, {v(PP+1)} offset0:0 offset1:32
    ds_write2_b32 {v(vDW)}, {v(PP+2)}, {v(PP+3)} offset0:64 offset1:96
    s_waitcnt lgkmcnt(0)
    L_dhb:
    s_barrier
    ds_read_b128 {v(t+16,4)}, {v(vDR)}
    s_waitcnt lgkmcnt(0)
    v_mfma_f32_16x16x16_f16 {v(E0,4)}, {v(AD,2)}, {v(t+16,2)}, 0
    v_mfma_f32_16x16x16_f16 {v(E1,4)}, {v(AD,2)}, {v(t+18,2)}, 0
    s_nop 4
    s_branch L_apply ;!nd
    """)
    a('L_fin:')
    for rho in (0,1):
        for k in (0,1):
            a(f'v_cvt_pk_bf16_f32 {v(t+2*rho+k)}, {v(X+4*k+rho)}, {v(X+4*k+2+rho)}')
    a(f"""
    v_lshlrev_b32 {v(t+16)}, 1, {v(vQ)}
    v_mov_b32 {v(t+19)}, 0x200000
    s_sub_u32 {s(sT)}, {s(sT+9)}, 1
    v_cmp_eq_u32 vcc, {s(sT+9)}, {v(t+16)}
    v_cmp_eq_u32 {s(sT+2,2)}, {s(sT)}, {v(t+16)}
    v_cndmask_b32 {v(t+17)}, {v(vXoff)}, {v(t+19)}, vcc
    v_cndmask_b32 {v(t+18)}, {v(vXoff)}, {v(t+19)}, {s(sT+2,2)}
    buffer_store_dwordx2 {v(t,2)}, {v(vXoff if cfg.twice else t+17)}, {OS}, {s(sRow0)} offen sc1
    buffer_store_dwordx2 {v(t+2,2)}, {v(vXoff if cfg.twice else t+18)}, {OS}, {s(sRow1)} offen sc1
    """)
    if cfg.wb==3: a(f"""
    s_xor_b32 {s(sT+4)}, {s(sJ)}, 9
    s_or_b32 {s(sT+4)}, {s(sT+4)}, {s(sW)}
    s_cbranch_scc1 L_nwb3
    {f's_sleep {cfg.wbd}' if cfg.wbd else ''}
    buffer_wbl2 sc1
    L_nwb3:
    """)
    a(f"""
    v_cndmask_b32 {v(t+24)}, {v(t+19)}, {v(vXoff)}, vcc
    v_cndmask_b32 {v(t+25)}, {v(t+19)}, {v(vXoff)}, {s(sT+2,2)}
    s_or_b32 {s(sT)}, s2, {s(sW)}
    s_cbranch_scc1 L_fin2
    v_mov_b32 {v(t+20)}, {s(sTag)}
    buffer_store_dword {v(t+20)}, off, {WS}, 0 sc1
    L_fin2:
    s_cmp_eq_u32 {s(sT+9)}, 64
    s_cbranch_scc1 L_fin5
    s_mov_b32 {s(sT+10)}, {SLOT+SLOTR}
    s_sleep {cfg.tim_fh}
    """)
    hdrpoll('L_fhdr', 4)
    a(f"""
    s_cmp_lg_u32 {s(sIdx)}, {s(sKey)}
    s_cbranch_scc1 {'L_fin5' if cfg.twice else 'L_fin4'}
    s_andn2_b32 {s(sIdx)}, {s(sM7FF)}, {s(sIdx)}
    s_mov_b32 {s(sIt)}, 3
    s_add_u32 {s(sYo)}, {s(sYo)}, {YPR}
    s_add_u32 {s(sYh)}, {s(sYh)}, {YHR}
    """)
    owner()
    a('s_branch L_ywait\nL_fin3:')
    a('\n'.join(own))
    for rho in (0,1):
        for k in (0,1):
            a(f'v_cvt_pk_bf16_f32 {v(t+2*rho+k)}, {v(X+4*k+rho)}, {v(X+4*k+2+rho)}')
    a(f"""
    L_fin4:
    buffer_store_dwordx2 {v(t,2)}, {v(t+24)}, {OS}, {s(sRow0)} offen {'' if cfg.lastp else 'sc1'}
    buffer_store_dwordx2 {v(t+2,2)}, {v(t+25)}, {OS}, {s(sRow1)} offen {'' if cfg.lastp else 'sc1'}
    L_fin5:
    """)
    stamp(); dump_stamps()
    a('s_endpgm')
    a(f"""
    L_base_r:
    s_sub_u32 {s(sCnt)}, {s(sCnt)}, 1
    s_cbranch_scc1 L_end
    s_sleep 2
    buffer_load_dwordx4 {v(BC+2,4)}, {v(t+16)}, {WS}, {s(sT+10)} offen offset:1024 sc1
    s_waitcnt vmcnt(0)
    s_branch L_basew
    """)
    def pub2():
        a(f'''
        v_mov_b32 {v(t+4)}, {s(sTag)}
        v_mov_b32 {v(t+5)}, {s(sXcc)}
        s_add_u32 {s(sT)}, {s(sTabSt)}, {TAB2-TABL}
        buffer_store_dwordx2 {v(t+4,2)}, off, {WS}, {s(sT)} sc1
        ''')
    a(f'''
    L_tabst_slow:
    buffer_store_dwordx2 {v(K,2)}, off, {WS}, {s(sTabSt)} sc1
    s_branch L_tabst_back
    L_tg0_r:
    s_sub_u32 {s(sCnt)}, {s(sCnt)}, 1
    s_cbranch_scc1 L_end
    s_sleep 2
    ''')
    a(f's_mov_b64 exec, 0xff\nbuffer_load_dword {v(t+20)}, {v(t+24)}, {WS}, {s(sT+10)} offen sc1\ns_mov_b64 exec, -1')
    a('s_branch L_tg0w\nL_tab2:')
    pub2()
    a(f'''
    s_add_u32 {s(sT+1)}, {s(sTabLd)}, {TAB2-TABL}
    L_tab2p:
    buffer_load_dwordx2 {v(TB,2)}, {v(vL8)}, {WS}, {s(sTabLd)} offen sc1
    buffer_load_dwordx2 {v(t+6,2)}, {v(vL8)}, {WS}, {s(sT+1)} offen sc1
    s_waitcnt vmcnt(0)
    v_cmp_eq_u32 vcc, {s(sTag)}, {v(TB)}
    v_cndmask_b32 {v(TB)}, {v(t+6)}, {v(TB)}, vcc
    v_cndmask_b32 {v(TB+1)}, {v(t+7)}, {v(TB+1)}, vcc
    v_cmp_ne_u32 vcc, {s(sTag)}, {v(TB)}
    ''')
    poll_branch('L_tab2p', 4)
    a(f'''
    s_branch L_tabok
    L_slow:
    s_cmp_lg_u32 {s(sIt)}, 0
    s_cbranch_scc1 L_slow1
    ''')
    pub2()
    a('L_slow1:')
    lstores('sc1')
    a(f'''
    s_waitcnt vmcnt(0)
    s_barrier
    s_add_u32 {s(sT)}, {s(sTabSt)}, {SLOWF-TABL}
    s_add_u32 {s(sT+1)}, {s(sTabLd)}, {SLOWF-TABL}
    v_mov_b32 {v(t+4)}, {s(sTag)}
    s_cmp_lg_u32 {s(sW)}, 0
    s_cbranch_scc1 L_slowp
    buffer_store_dword {v(t+4)}, off, {WS}, {s(sT)} sc1
    L_slowp:
    buffer_load_dword {v(t+5)}, {v(vL8)}, {WS}, {s(sT+1)} offen sc1
    s_waitcnt vmcnt(0)
    v_cmp_ne_u32 vcc, {s(sTag)}, {v(t+5)}
    ''')
    poll_branch('L_slowp', 2)
    a('s_branch L_slowback')

def hint_store(vreg, soff, lbl):
    a(f'''
    s_mov_b64 exec, 1
    s_cmp_eq_u32 {s(sFast)}, 0
    s_cbranch_scc1 {lbl}_s
    buffer_store_dword {v(vreg)}, off, {WS}, {s(soff)}
    s_branch {lbl}_d
    {lbl}_s:
    buffer_store_dword {v(vreg)}, off, {WS}, {s(soff)} sc1
    {lbl}_d:
    s_mov_b64 exec, -1
    ''')

def ffn():
    WA=4; WD=20; t=40
    vXL=24; vXW=25; vXR=26; vPS=27; vPL=28; vHW=29; vHR=30; vDP=31; vTag=32; vSig=34; vFl=35
    sI=sJ; sRnd=sIt; sPo=sLst; sPs=sLld
    F_W=0; TS=4096+64; F_X=0x4400; F_KEY=0x4D00; F_H=0x4E00; F_D=0x5200; F_WD=0x5400
    a(f"""
    L_ffn:
    s_and_b32 {s(sI)}, {s(sJ)}, 31
    s_min_u32 {s(sT+2)}, {s(sI)}, 27
    s_and_b32 {s(sT)}, {s(sT+2)}, 3
    s_lshl_b32 {s(sT+8)}, {s(sT)}, 8              ; 256*ks
    s_mul_i32 {s(sT+9)}, {s(sT)}, {28*64}
    s_mul_i32 {s(sT)}, {s(sT)}, {128*3584}
    s_mul_i32 {s(sT+1)}, {s(sX)}, 448
    s_add_u32 {s(sT)}, {s(sT)}, {s(sT+1)}
    s_lshr_b32 {s(sT+2)}, {s(sT+2)}, 2
    s_lshl_b32 {s(sT+3)}, {s(sT+2)}, 6
    s_add_u32 {s(sT)}, {s(sT)}, {s(sT+3)}
    v_lshrrev_b32 {v(t+3)}, 2, v0
    v_mul_u32_u24 {v(t)}, 3584, {v(t+3)}
    v_and_b32 {v(t+4)}, 3, v0
    v_lshl_add_u32 {v(t)}, {v(t+4)}, 4, {v(t)}
    v_add_u32 {v(t)}, {s(sT)}, {v(t)}
    s_mul_i32 {s(sT)}, {s(sX)}, {224*1024}
    s_lshl_b32 {s(sT+1)}, {s(sI)}, 5
    s_add_u32 {s(sT)}, {s(sT)}, {s(sT+1)}
    v_lshrrev_b32 {v(t+1)}, 1, v0
    v_min_u32 {v(t+1)}, 223, {v(t+1)}
    v_lshlrev_b32 {v(t+1)}, 10, {v(t+1)}
    v_and_b32 {v(t+2)}, 1, v0
    v_lshl_add_u32 {v(t+1)}, {v(t+2)}, 4, {v(t+1)}
    v_add_u32 {v(t+1)}, {s(sT)}, {v(t+1)}
    s_add_u32 {s(sT+10)}, {s(sTabLd)}, {FTAB-TABL}
    s_waitcnt lgkmcnt(0)
    {f'v_lshlrev_b32 {v(T+25)}, {cfg.tlb}, v0' if cfg.tlb else ''}
    {f'buffer_load_dword {v(T+21)}, {v(T+25)}, {WS}, 0 offen sc1' if cfg.tlb else ''}
    {f'buffer_load_dword {v(T+21)}, {v(T+25)}, {OS}, 0 offen sc1' if cfg.tlb else ''}
    {f's_sleep {cfg.fdelay}' if cfg.fdelay else ''}
    {f'global_load_dwordx4 {v(T+8,4)}, {v(t)}, s[18:19]' if cfg.wdpos<2 else f'v_mov_b32 {v(T+24)}, {v(t)}'}
    {f'global_load_dwordx4 {v(T+12,4)}, {v(t)}, s[20:21]' if cfg.wdpos<2 else ''}
    {f'global_load_dwordx4 {v(T+16,4)}, {v(t+1)}, s[22:23]' if cfg.wdpos==0 else f'v_mov_b32 {v(T+23)}, {v(t+1)}'}
    buffer_load_dword {v(T+20)}, off, {WS}, 0 sc1
    buffer_load_dword {v(T+21)}, {v(vL8)}, {WS}, {s(sT+10)} offen sc1
    v_mul_u32_u24 {v(T+22)}, {TS}, {v(t+4)}
    v_lshl_add_u32 {v(T+22)}, {v(t+3)}, 5, {v(T+22)}
    v_lshlrev_b32 {v(t+5)}, 4, {v(vN)}
    s_and_b32 {s(sT)}, {s(sW)}, 1
    s_lshl_b32 {s(sT)}, {s(sT)}, 2
    v_add_u32 {v(t+6)}, {s(sT)}, {v(vQ)}
    v_lshl_add_u32 {v(vXL)}, {v(t+6)}, 12, {v(t+5)}
    v_add_u32 {v(vXL)}, {s(sT+8)}, {v(vXL)}
    v_mul_u32_u24 {v(vXW)}, 272, {v(t+6)}
    v_add_u32 {v(vXW)}, {v(vXW)}, {v(t+5)}
    v_and_b32 {v(t+6)}, 7, {v(vLane)}
    v_mul_u32_u24 {v(vXR)}, 272, {v(t+6)}
    v_lshl_add_u32 {v(vXR)}, {v(vQ)}, 4, {v(vXR)}
    s_cmp_lg_u32 {s(sW)}, 6
    s_cbranch_scc1 L_fa1
    v_lshlrev_b32 {v(vXL)}, 12, {v(t+6)}
    L_fa1:
    s_lshl2_add_u32 {s(sT)}, {s(sT+2)}, {s(sW)}
    s_lshl_b32 {s(sT)}, {s(sT)}, 6
    s_add_u32 {s(sT)}, {s(sT)}, {s(sT+9)}
    v_lshl_add_u32 {v(vPS)}, {v(vN)}, 2, {s(sT)}
    s_lshl_b32 {s(sT)}, {s(sW)}, 8
    v_mul_u32_u24 {v(vPL)}, 1792, {v(vQ)}
    v_add3_u32 {v(vPL)}, {v(vPL)}, {v(t+5)}, {s(sT)}
    s_lshl_b32 {s(sT)}, {s(sW)}, 7
    s_add_u32 {s(sT)}, {s(sT)}, {F_H}
    v_lshl_add_u32 {v(vHR)}, {v(vQ)}, 4, {s(sT)}
    v_and_b32 {v(t+6)}, 12, {v(vN)}
    v_lshl_add_u32 {v(vHW)}, {v(t+6)}, 2, {s(sT)}
    v_and_b32 {v(t+6)}, 1, {v(vN)}
    v_lshl_add_u32 {v(vHW)}, {v(t+6)}, 3, {v(vHW)}
    v_and_b32 {v(t+6)}, 2, {v(vN)}
    v_lshl_add_u32 {v(vHW)}, {v(t+6)}, 5, {v(vHW)}
    v_and_b32 {v(t+6)}, 2, {v(vQ)}
    v_add_u32 {v(vHW)}, {v(vHW)}, {v(t+6)}
    v_and_b32 {v(t+6)}, 1, {v(vQ)}
    v_lshl_add_u32 {v(vHW)}, {v(t+6)}, 2, {v(vHW)}
    s_lshl_b32 {s(sT)}, {s(sW)}, 2
    s_add_u32 {s(sT)}, {s(sT)}, {F_D}
    v_lshl_add_u32 {v(vDP)}, {v(vN)}, 5, {s(sT)}
    v_mov_b32 {v(vFl)}, {F_KEY}
    v_mov_b32 {v(vTag)}, 0
    s_mov_b32 {s(sFast)}, 0
    s_mov_b32 {s(sRnd)}, 2
    s_mov_b32 {s(sPo)}, {WSSZ}
    s_mov_b32 {s(sYo)}, {WSSZ}
    s_mov_b32 {s(sYh)}, {WSSZ}
    {'s_branch L_fb2' if cfg.dry else ''}
    L_finit:
    s_mov_b32 {s(sRnd)}, 0
    s_mov_b32 {s(sSlot)}, {SLOT}
    s_lshl_b32 {s(sPo)}, {s(sX)}, 13
    s_add_u32 {s(sPo)}, {s(sPo)}, {PART}
    s_lshl_b32 {s(sYo)}, {s(sX)}, 10
    s_lshl_b32 {s(sT)}, {s(sI)}, 5
    s_add_u32 {s(sYo)}, {s(sYo)}, {s(sT)}
    s_add_u32 {s(sYo)}, {s(sYo)}, {YP}
    s_lshl_b32 {s(sYh)}, {s(sX)}, 7
    s_lshl2_add_u32 {s(sYh)}, {s(sI)}, {s(sYh)}
    s_add_u32 {s(sYh)}, {s(sYh)}, {YHINT}
    s_lshl_b32 {s(sT)}, {s(sW)}, 10
    v_lshl_add_u32 {v(t)}, {v(vLane)}, 4, {s(sT)}
    v_lshl_add_u32 {v(t+1)}, {v(vQ)}, 8, {s(sT)}
    v_lshl_add_u32 {v(t+1)}, {v(vN)}, 3, {v(t+1)}
    s_and_b32 {s(sT)}, {s(sW)}, 3
    s_mul_i32 {s(sT)}, {s(sT)}, {TS}
    v_lshl_add_u32 {v(t+2)}, {v(vQ)}, 8, {s(sT)}
    v_lshl_add_u32 {v(t+2)}, {v(vN)}, 3, {v(t+2)}
    v_mov_b32 {v(vTag+1)}, {s(sXcc)}
    s_lshl3_add_u32 {s(sT+1)}, {s(sI)}, {s(sT+10)}
    s_waitcnt vmcnt(0)
    v_add_u32 {v(vTag)}, 1, {v(T+20)}
    ds_write_b128 {v(T+22)}, {v(T+8,4)}
    ds_write_b128 {v(T+22)}, {v(T+12,4)} offset:16
    {f'ds_write_b128 {v(t)}, {v(T+16,4)} offset:{F_WD}' if cfg.wdpos==0 else ''}
    v_readfirstlane_b32 {s(sTag)}, {v(vTag)}
    s_cmp_lg_u32 {s(sW)}, 0
    s_cbranch_scc1 L_fi1
    s_mov_b64 exec, 1
    buffer_store_dwordx2 {v(vTag,2)}, off, {WS}, {s(sT+1)}
    s_mov_b64 exec, -1
    L_fi1:
    s_waitcnt lgkmcnt(0)
    s_barrier
    """)
    if cfg.stamps: a(f's_mov_b32 {s(sStampI)}, 0')
    stamp()
    for k in range(4):
        a(f'ds_read_b64_tr_b16 {v(WA+4*k,2)}, {v(t+2)} offset:{1024*k}')
        a(f'ds_read_b64_tr_b16 {v(WA+4*k+2,2)}, {v(t+2)} offset:{1024*k+128}')
    a(f"""
    {f'ds_read_b64_tr_b16 {v(WD,2)}, {v(t+1)} offset:{F_WD}' if cfg.wdpos==0 else ''}
    {f'ds_read_b64_tr_b16 {v(WD+2,2)}, {v(t+1)} offset:{F_WD+128}' if cfg.wdpos==0 else ''}
    s_cmp_lg_u32 {s(sW)}, 0
    s_cbranch_scc1 L_fi3
    s_movk_i32 {s(sTry)}, 80
    L_fl:
    buffer_load_dwordx2 {v(t+4,2)}, {v(vL8)}, {WS}, {s(sTabLd)} offen sc1
    buffer_load_dwordx2 {v(t+6,2)}, {v(vL8)}, {WS}, {s(sT+10)} offen sc1
    s_waitcnt vmcnt(0)
    v_cmp_ne_u32 vcc, {s(sTag)}, {v(t+4)}
    v_cmp_ne_u32 {s(sT,2)}, {s(sTag)}, {v(t+6)}
    s_or_b64 vcc, vcc, {s(sT,2)}
    """)
    poll_branch('L_fl', 4, giveup='L_fslowtab', skip=True)
    a(f"""
    v_cmp_ne_u32 vcc, {s(sXcc)}, {v(t+5)}
    v_cmp_ne_u32 {s(sT,2)}, {s(sXcc)}, {v(t+7)}
    s_or_b64 vcc, vcc, {s(sT,2)}
    s_cbranch_vccnz L_fslowtab
    s_mov_b32 {s(sFast)}, 1
    v_and_b32 {v(t+4)}, 1, {v(vQ)}
    v_lshlrev_b32 {v(t+4)}, 16, {v(t+4)}
    v_lshl_add_u32 {v(t+4)}, {v(vN)}, 4, {v(t+4)}
    s_lshl_b32 {s(sT)}, {s(sI)}, 8
    s_add_u32 {s(sT)}, {s(sT)}, {s(sPo)}
    buffer_load_dword {v(t+5)}, {v(t+4)}, {WS}, {s(sT)} offen sc1
    L_fi2:
    v_mov_b32 {v(t+6)}, {s(sFast)}
    ds_write_b32 {v(vFl)}, {v(t+6)} offset:4
    L_fi3:
    s_waitcnt vmcnt(0) lgkmcnt(0)
    s_barrier
    ds_read_b32 {v(t+6)}, {v(vFl)} offset:4
    s_waitcnt lgkmcnt(0)
    v_readfirstlane_b32 {s(sFast)}, {v(t+6)}
    """)
    if cfg.wdpos==2:
        a(f"""
        {f's_sleep {cfg.gdelay}' if cfg.gdelay else ''}
        global_load_dwordx4 {v(T+8,4)}, {v(T+24)}, s[18:19]
        global_load_dwordx4 {v(T+12,4)}, {v(T+24)}, s[20:21]
        global_load_dwordx4 {v(T+16,4)}, {v(T+23)}, s[22:23]
        s_waitcnt vmcnt(0)
        ds_write_b128 {v(T+22)}, {v(T+8,4)}
        ds_write_b128 {v(T+22)}, {v(T+12,4)} offset:16
        ds_write_b128 {v(t)}, {v(T+16,4)} offset:{F_WD}
        s_waitcnt lgkmcnt(0)
        s_barrier
        """)
        for k in range(4):
            a(f'ds_read_b64_tr_b16 {v(WA+4*k,2)}, {v(t+2)} offset:{1024*k}')
            a(f'ds_read_b64_tr_b16 {v(WA+4*k+2,2)}, {v(t+2)} offset:{1024*k+128}')
        a(f"""
        ds_read_b64_tr_b16 {v(WD,2)}, {v(t+1)} offset:{F_WD}
        ds_read_b64_tr_b16 {v(WD+2,2)}, {v(t+1)} offset:{F_WD+128}
        s_waitcnt lgkmcnt(0)
        """)
    if cfg.wdpos==1: a(f"""
    {f's_sleep {cfg.gdelay}' if cfg.gdelay else ''}
    global_load_dwordx4 {v(T+16,4)}, {v(T+23)}, s[22:23]
    s_waitcnt vmcnt(0)
    ds_write_b128 {v(t)}, {v(T+16,4)} offset:{F_WD}
    ds_read_b64_tr_b16 {v(WD,2)}, {v(t+1)} offset:{F_WD}
    ds_read_b64_tr_b16 {v(WD+2,2)}, {v(t+1)} offset:{F_WD+128}
    s_waitcnt lgkmcnt(0)
    """)
    a(f"""
    L_frnd:
    s_add_u32 {s(sTabLd)}, {s(sTabLd)}, {ARGR}
    s_cmp_lg_u32 {s(sW)}, 0
    s_cbranch_scc1 L_fb1
    s_cmp_eq_u32 {s(sFast)}, 0
    s_cbranch_scc1 L_fb1
    L_ftrig:
    buffer_load_dword {v(t)}, {v(vL8)}, {WS}, {s(sTabLd)} offen sc1
    s_waitcnt vmcnt(0)
    v_cmp_ne_u32 vcc, {s(sTag)}, {v(t)}
    """)
    poll_branch('L_ftrig', cfg.slp_f)
    stamp()
    a(f"""
    s_sleep {cfg.tim_arg}
    L_fb1:
    s_sub_u32 {s(sT)}, {s(sW)}, 4
    s_cmp_lt_u32 {s(sT)}, 2
    s_barrier
    s_cbranch_scc1 L_fx
    s_cmp_lg_u32 {s(sW)}, 6
    s_cbranch_scc1 L_fb2
    s_mov_b64 exec, 0xff
    L_fhd:
    buffer_load_dword {v(t)}, {v(vXL)}, {WS}, {s(sSlot)} offen offset:3072 sc1
    s_waitcnt vmcnt(0)
    v_cmp_eq_u32 vcc, -1, {v(t)}
    """)
    poll_branch('L_fhd', 2, skip=True)
    a(f"""
    v_max_u32_dpp {v(t)}, {v(t)}, {v(t)} row_half_mirror {DPP}
    v_max_u32_dpp {v(t)}, {v(t)}, {v(t)} quad_perm:[1,0,3,2] {DPP}
    v_max_u32_dpp {v(t)}, {v(t)}, {v(t)} quad_perm:[2,3,0,1] {DPP}
    ds_write_b32 {v(vFl)}, {v(t)}
    s_mov_b64 exec, -1
    s_branch L_fb2
    L_fx:
    buffer_load_dwordx4 {v(t,4)}, {v(vXL)}, {WS}, {s(sSlot)} offen sc1
    s_waitcnt vmcnt(0)
    ds_write_b128 {v(vXW)}, {v(t,4)} offset:{F_X}
    """)
    maxchk(range(t,t+4), t+4)
    poll_branch('L_fx', 2, mask=True)
    Dd=t+16
    a(f"""
    L_fb2:
    s_cmp_gt_u32 {s(sW)}, 3
    s_waitcnt lgkmcnt(0)
    s_barrier
    s_cbranch_scc1 L_fnoa
    ds_read_b32 {v(t+20)}, {v(vFl)}
    """)
    for k in range(4): a(f'ds_read_b128 {v(t+4*k,4)}, {v(vXR)} offset:{F_X+64*k}')
    stamp()
    a(f"""
    s_cmp_lt_u32 {s(sI)}, 28
    s_cselect_b32 {s(sPs)}, {s(sPo)}, {WSSZ}
    s_waitcnt lgkmcnt(3)
    v_mfma_f32_16x16x32_bf16 {v(Dd,4)}, {v(t,4)}, {v(WA,4)}, 0
    v_readfirstlane_b32 {s(sKey)}, {v(t+20)}
    s_waitcnt lgkmcnt(2)
    v_mfma_f32_16x16x32_bf16 {v(Dd,4)}, {v(t+4,4)}, {v(WA+4,4)}, {v(Dd,4)}
    s_bitcmp0_b32 {s(sKey)}, 0
    s_cselect_b64 vcc, -1, 0
    s_waitcnt lgkmcnt(1)
    v_mfma_f32_16x16x32_bf16 {v(Dd,4)}, {v(t+8,4)}, {v(WA+8,4)}, {v(Dd,4)}
    s_bitcmp0_b32 {s(sKey)}, 1
    s_cselect_b64 {s(sT+2,2)}, -1, 0
    s_waitcnt lgkmcnt(0)
    v_mfma_f32_16x16x32_bf16 {v(Dd,4)}, {v(t+12,4)}, {v(WA+12,4)}, {v(Dd,4)}
    s_andn2_b32 {s(sT)}, 4, {s(sKey)}
    s_lshl_b32 {s(sT)}, {s(sT)}, 2
    s_bfm_b64 exec, 16, {s(sT)}
    s_cmp_eq_u32 {s(sFast)}, 0
    v_cndmask_b32 {v(Dd)}, {v(Dd)}, {v(Dd+1)}, vcc
    v_cndmask_b32 {v(Dd+2)}, {v(Dd+2)}, {v(Dd+3)}, vcc
    v_cndmask_b32 {v(Dd)}, {v(Dd)}, {v(Dd+2)}, {s(sT+2,2)}
    s_cbranch_scc1 L_fps_s ;!nd
    buffer_store_dword {v(Dd)}, {v(vPS)}, {WS}, {s(sPs)} offen
    L_fps_d:
    s_mov_b64 exec, -1
    s_cmp_eq_u32 {s(sRnd)}, 2
    s_cbranch_scc1 L_fpok
    s_waitcnt vmcnt(0)
    s_branch L_fp
    L_fps_s:
    buffer_store_dword {v(Dd)}, {v(vPS)}, {WS}, {s(sPs)} offen sc1
    s_branch L_fps_d
    L_fnoa:
    s_cmp_eq_u32 {s(sW)}, 7
    s_cbranch_scc1 L_f7
    s_cmp_eq_u32 {s(sRnd)}, 2
    s_cbranch_scc1 L_fpok
    s_sleep {cfg.tim_p}
    s_branch L_fp
    L_fp:
    buffer_load_dwordx4 {v(t,4)}, {v(vPL)}, {WS}, {s(sPo)} offen sc1
    s_waitcnt vmcnt(0)
    """)
    maxchk(range(t,t+4), t+4)
    poll_branch('L_fp', cfg.slp_p, mask=True)
    stamp()
    a(f"""
    L_fpok:
    v_permlane32_swap_b32 {v(t)}, {v(t+1)}
    v_permlane32_swap_b32 {v(t+2)}, {v(t+3)}
    v_add_f32 {v(t)}, {v(t)}, {v(t+1)}
    v_add_f32 {v(t+2)}, {v(t+2)}, {v(t+3)}
    v_permlane16_swap_b32 {v(t)}, {v(t+2)}
    v_add_f32 {v(t)}, {v(t)}, {v(t+2)}
    v_mul_f32 {v(t+1)}, 0xbfb8aa3b, {v(t)}
    v_exp_f32 {v(t+1)}, {v(t+1)}
    v_mul_f32_dpp {v(t+2)}, {v(t)}, {v(t)} quad_perm:[2,3,0,1] {DPP}
    v_add_f32 {v(t+1)}, 1.0, {v(t+1)}
    v_rcp_f32 {v(t+1)}, {v(t+1)}
    v_mul_f32 {v(t+1)}, {v(t+1)}, {v(t+2)}
    v_cvt_pk_bf16_f32 {v(t+1)}, {v(t+1)}, {v(t+1)}
    ds_write_b16 {v(vHW)}, {v(t+1)}
    ds_read_b128 {v(t+4,4)}, {v(vHR)}
    """)
    if cfg.eh:
        a(f's_cmp_lg_u32 {s(sW)}, 5\ns_cbranch_scc1 L_fyh_d')
        hint_store(vTag, sYh, 'L_fyh')
    a(f"""
    s_waitcnt lgkmcnt(0)
    v_mfma_f32_16x16x32_bf16 {v(t+8,4)}, {v(t+4,4)}, {v(WD,4)}, 0
    s_mov_b64 exec, 0xffff
    ds_write_b32 {v(vDP)}, {v(t+8)}
    s_mov_b64 exec, -1
    s_waitcnt lgkmcnt(0)
    s_barrier
    L_fnext:
    """)
    stamp()
    a(f"""
    s_cmp_eq_u32 {s(sRnd)}, 1
    s_cbranch_scc1 L_fend
    s_cmp_eq_u32 {s(sRnd)}, 2
    s_cbranch_scc1 L_finit
    """)
    if cfg.wb==1: a(f"""
    s_cmp_lg_u32 {s(sI)}, 28
    s_cbranch_scc1 L_nwb
    s_cmp_lg_u32 {s(sW)}, 3
    s_cbranch_scc1 L_nwb
    s_sleep {cfg.wbd}
    buffer_wbl2 sc1
    L_nwb:
    """)
    a(f"""
    s_mov_b32 {s(sRnd)}, 1
    s_add_u32 {s(sSlot)}, {s(sSlot)}, {SLOTR}
    s_add_u32 {s(sPo)}, {s(sPo)}, {PARTR}
    s_add_u32 {s(sYo)}, {s(sYo)}, {YPR}
    s_add_u32 {s(sYh)}, {s(sYh)}, {YHR}
    s_branch L_frnd
    L_f7:
    ds_read_b32 {v(t+20)}, {v(vFl)}
    v_mov_b32 {v(vSig)}, 0xbfb8aa3b
    v_add_u32 {v(t+8)}, -28, {v(vDP)}
    v_lshlrev_b32 {v(t+9)}, 1, {v(vN)}
    s_waitcnt lgkmcnt(0)
    v_readfirstlane_b32 {s(sKey)}, {v(t+20)}
    s_ashr_i32 {s(sT)}, {s(sKey)}, 31
    s_orn2_b32 {s(sT)}, 0x80000000, {s(sT)}
    s_xor_b32 {s(sT)}, {s(sT)}, {s(sKey)}
    v_mul_f32 {v(vSig)}, {s(sT)}, {v(vSig)}
    v_exp_f32 {v(vSig)}, {v(vSig)}
    v_add_f32 {v(vSig)}, 1.0, {v(vSig)}
    v_rcp_f32 {v(vSig)}, {v(vSig)}
    s_barrier
    ds_read_b128 {v(t,4)}, {v(t+8)}
    ds_read_b96 {v(t+4,3)}, {v(t+8)} offset:16
    s_waitcnt lgkmcnt(1)
    v_pk_add_f32 {v(t,2)}, {v(t,2)}, {v(t+2,2)}
    v_add_f32 {v(t)}, {v(t)}, {v(t+1)}
    s_waitcnt lgkmcnt(0)
    v_add_f32 {v(t+4)}, {v(t+4)}, {v(t+5)}
    v_add_f32 {v(t)}, {v(t)}, {v(t+6)}
    v_add_f32 {v(t)}, {v(t)}, {v(t+4)}
    v_mul_f32 {v(t)}, {v(t)}, {v(vSig)}
    v_mov_b32_dpp {v(t+1)}, {v(t)} quad_perm:[1,1,3,3] {DPP}
    s_mov_b64 exec, 0x5555
    v_cvt_pk_bf16_f32 {v(t)}, {v(t)}, {v(t+1)}
    buffer_store_dword {v(t)}, {v(t+9)}, {WS}, {s(sYo)} offen sc1
    """)
    if cfg.eh: a('s_mov_b64 exec, -1')
    else: hint_store(vTag, sYh, 'L_fyh')
    a(f"""
    s_branch L_fnext
    L_fslowtab:
    v_and_b32 {v(t+16)}, 7, {v(vLane)}
    v_lshlrev_b32 {v(t+16)}, 7, {v(t+16)}
    s_mov_b32 {s(sT+10)}, {TABG}
    L_ftab2:
    buffer_load_dword {v(t+4)}, {v(t+16)}, {WS}, {s(sT+10)} offen sc1
    s_waitcnt vmcnt(0)
    v_cmp_ne_u32 vcc, {s(sTag)}, {v(t+4)}
    """)
    poll_branch('L_ftab2', 8)
    a('s_branch L_fi2\nL_fend:')
    dump_stamps()
    a('s_endpgm')

def build():
    hdr=open('ref.txt').read().split('; @launch')[0]
    a.raw(hdr+f'; @launch grid=({NWG},1,1) block=(512,1,1) lds={LDS_TOTAL}')
    a.raw(f'''; generated by gen/gen.py (hand-written generator): persistent FFT-structured FNet + MoD kernel
.amdgcn_target "amdgcn-amd-amdhsa--gfx950"
.text
.globl {NAME}_kernel
.p2align 8
.type {NAME}_kernel,@function
{NAME}_kernel:''')
    if cfg.st0: a(f's_memrealtime s[88:89]\ns_waitcnt lgkmcnt(0)')
    a(f'''
    s_load_dwordx2 s[12:13], s[0:1], 0
    s_load_dwordx2 s[8:9], s[0:1], 96
    s_load_dwordx8 s[16:23], s[0:1], 48
    v_and_b32 {v(vN)}, 15, v0
    v_bfe_u32 {v(vQ)}, v0, 4, 2
    v_lshrrev_b32 v2, 6, v0
    v_lshlrev_b32 {v(vUW)}, 7, v2
    v_lshl_add_u32 {v(vUW)}, {v(vN)}, 3, {v(vUW)}                ; 128w+8n
    v_lshl_add_u32 {v(vXoff)}, {v(vQ)}, 19, {v(vUW)}
    s_lshl_b32 {s(sRow0)}, s2, 10
    s_add_u32 {s(sRow1)}, {s(sRow0)}, 0x40000
    s_mov_b32 s14, 0x200000
    s_mov_b32 s15, 0x20000
    v_readfirstlane_b32 {s(sW)}, v2
    ''')
    if cfg.codepf: a(f'''
    s_getpc_b64 {s(sT+6,2)}
    L_pc:
    v_lshlrev_b32 v3, 5, v0
    v_min_u32 v3, L_end-L_pc, v3
    {f'global_load_dword {v(vTG)}, v3, {s(sT+6,2)}' if cfg.codepf==1 else ''}
    ''')
    a(f'''
    s_cmp_ge_u32 s2, 256
    s_cbranch_scc1 L_nox ;!nd
    s_waitcnt lgkmcnt(0)
    buffer_load_dwordx2 {v(BC,2)}, {v(vXoff)}, {XS}, {s(sRow0)} offen
    buffer_load_dwordx2 {v(BC+2,2)}, {v(vXoff)}, {XS}, {s(sRow1)} offen
    L_nox:
    {f'global_load_dword {v(vTG)}, v3, {s(sT+6,2)}' if cfg.codepf==2 else ''}
    s_cmp_ge_u32 s2, {NWG}
    s_cbranch_scc1 L_end
    {'s_waitcnt lgkmcnt(0)' if cfg.wsoff else ''}
    {f's_add_u32 s8, s8, {cfg.wsoff<<20}' if cfg.wsoff else ''}
    {'s_addc_u32 s9, s9, 0' if cfg.wsoff else ''}
    s_load_dwordx2 s[28:29], s[0:1], 80
    v_and_b32 {v(vLane)}, 63, v0
    s_mov_b32 s10, {WSSZ}
    s_mov_b32 s11, 0x20000
    s_mov_b32 s30, 0x200000
    s_mov_b32 s31, 0x20000
    s_and_b32 {s(sX)}, s2, 7
    s_lshr_b32 {s(sJ)}, s2, 3
    v_mov_b32 {v(SENT)}, -1
    v_mov_b32 {v(SENT+1)}, -1
    v_mov_b32 {v(SENT+2)}, -1
    v_mov_b32 {v(SENT+3)}, -1
    v_lshlrev_b32 {v(vL8)}, 3, v0
    v_and_b32 {v(vL8)}, 0xf8, {v(vL8)}
    s_mov_b32 {s(sCnt)}, 200000
    s_mov_b32 {s(sM7FF)}, 0x7ff
    s_lshl_b32 {s(sTabLd)}, {s(sX)}, 8
    s_add_u32 {s(sTabLd)}, {s(sTabLd)}, {TABL}
    s_getreg_b32 {s(sXcc)}, hwreg(HW_REG_XCC_ID, 0, 4)
    ''')
    if cfg.force_slow: a(f's_mov_b32 {s(sXcc)}, {s(sJ)}')
    if cfg.stamps:
        a(f's_mov_b32 {s(sStampI)}, 0\nv_mov_b32 {v(vSTMP)}, 0')
        a(f's_memrealtime {s(sTS,2)}\ns_memtime {s(sTS+2,2)}\ns_waitcnt lgkmcnt(0)\nv_writelane_b32 {v(vSTMP)}, {s(sTS)}, 63\nv_writelane_b32 {v(vSTMP)}, {s(sTS+2)}, 62')
        if cfg.st0: a(f'v_writelane_b32 {v(vSTMP)}, {s(sTS)}, 58\nv_writelane_b32 {v(vSTMP)}, s88, 63\ns_memrealtime {s(sTS,2)}\ns_waitcnt lgkmcnt(0)\nv_writelane_b32 {v(vSTMP)}, {s(sTS)}, 59')
    a('''s_cmp_ge_u32 s2, 256
    s_cbranch_scc1 L_ffn''')
    if cfg.prio: a(f's_setprio 2\ns_cmp_gt_u32 {s(sW)}, 1\ns_cbranch_scc1 L_np\ns_setprio 3\nL_np:')
    main_prologue()
    main_loop()
    ffn()
    a('L_end:\ns_endpgm')
    a.raw(f'''.section .rodata,"a"
.p2align 6
.amdhsa_kernel {NAME}_kernel
  .amdhsa_next_free_vgpr 128
  .amdhsa_next_free_sgpr 96
  .amdhsa_accum_offset 128
  .amdhsa_group_segment_fixed_size 0
  .amdhsa_kernarg_size 104
  .amdhsa_user_sgpr_count 2
  .amdhsa_user_sgpr_kernarg_segment_ptr 1
  .amdhsa_system_sgpr_workgroup_id_x 1
.end_amdhsa_kernel''')
    return a.text()
if __name__=='__main__':
    out=sys.argv[1]
    for kv in sys.argv[2:]:
        k,val=kv.split('='); assert hasattr(cfg,k); setattr(cfg,k,int(val))
    open(out,'w').write(build())
    print('instrs',a.count,'nops',a.nops)
```

```python
import sys, struct
from asmlib import Asm
NAME='interleave_layers__spectral_fnet__moe_arch_mod__prompt'
def fbits(x): return '0x%08x' % struct.unpack('<I', struct.pack('<f', x))[0]

class Cfg:
    stamps=0
    tim_arg=14
    tim_y=0
    tim_h=0
    slp_g=2
    slp_l=1
    force_slow=0
    prio=1
    codepf=1
    exp=0
    gre=0
    cfl=0
    tlb=0
    wsoff=0
    st0=0
    cal=-1
    calwg=0
    dbgout=0
    dry=1
    wb=0
    fdelay=20
    gdelay=18
    osc=1
    odel=0
    pfm=7
    clr2=0
    nb0=0
    ehint=0
    post=0
    slp_t=0
    aft=0
    g2pos=3
    spr=1
    twice=1
    lastp=1
    hot=1
    gw=0
    gul=0
    xpos=1
    tdel=18
    pub0=1
    tim_a1=14
    tim_wd=3
    tim_fh=12
    wdpos=3
    slp_p=1
    tim_p=8
    hold=1
    tim_gy=14
    eh=1
    own=1
    tim_y3=3
    beh=1
    gbb=0
    slp_f=2
    early=4
    tim_a0=0
    wbd=12
    gbdelay=4
    late=1
    split=0
    tch=1
cfg=Cfg()

TABG=0x1000; TABGR=0x6000
TABL=0x2000; ARGR=0x800
TAB2=0x3800
SLOWF=0x4000
YHINT=0x5000; YHR=0x400
FTAB=0x6000
CLR0=0x8000
YP=0x8000; YPR=0x2000
PART=0x20000; PARTR=0x10000
SLOT=0x10000; SLOTR=0x8000
LBASE=0x40000; PS=8448; LX=32*PS
GBASE=0x260000; GS=262144+768; GR=0x210000
STAMP=0x700000
WSSZ=0x800000
NWG=512
NST=(13,9,7)
L_STAT=0; L_U=0x400; L_YI=0x2400; YIS=320; L_YT=0x4C00; L_DH=0x6E00; L_FLAG=0x7E00; L_ROW=0x7E80; LDS_TOTAL=0x8280
L_CX=0x2400
def v(a,n=1): return f'v{a}' if n==1 else f'v[{a}:{a+n-1}]'
def s(a,n=1): return f's{a}' if n==1 else f's[{a}:{a+n-1}]'

WS='s[8:11]'; XS='s[12:15]'; OS='s[28:31]'
sW=3; sX=26; sJ=27; sIt=32; sTag=33; sFast=34; sKey=35; sMir=36; sDsc=38
sLst=39; sLld=40; sPh=41; sTabG=42; sG0=43; sG4=44; sTabSt=45; sTabLd=46; sSlot=47; sRow0=48; sRow1=49; sCnt=50
sXcc=51; sStampI=37
sK512=52
sTry=53
sEps=54
sC16=56
sSc=58
sM7FF=60; sTop=61
sQmask=62
sT=64
sNx=84; sSg=85; sYo=86; sYh=87
sTS=80
X=2; WV=10; A8=14; XA=16; B1C=20; B1S=24; B1N=28; TWC=32; TWS=36; A2R=40; A2I=44; YC=48; YS=52
AD=56; BC=58
vXoff=72; vStW=73; vStR=74; vUW=75; vUR=76; vLst=77; vLld=78; vLldM=79; vYIW=80; vYIR=81; vYW=82; vYR=83; vGst=84; vGld=85
vSc0=86; vL8=88; vInv=89; vN=90; vQ=91; vSTMP=1; vLane=92; vTG=93
LNP=94; MM=98; RS2=100
T=102
class Asm2(Asm):
    def __call__(self, text):
        parts=text.split(';@F')
        for i,p in enumerate(parts):
            if i: fstamp()
            Asm.__call__(self,p)
a=Asm2()
def poll_branch(lbl, sleep=1, pre='', giveup=None, skip=False, mask=False):
    k=a.lines.index(lbl+':')
    if mask:
        pre+='\ns_mov_b64 exec, vcc'; skip=True
        k2=next(i for i in range(k,len(a.lines)) if 's_waitcnt vmcnt(0)' in a.lines[i])
        k3=max(i for i in range(k,k2) if 'buffer_load' in a.lines[i])
        a.lines.insert(k3+1,'    s_mov_b64 exec, -1')
    if a.lines[k-1].strip().startswith(('s_branch','s_endpgm')): skip=False
    a(f's_cbranch_vccnz {lbl}_r ;!nd')
    st=[]
    if skip: st.append(f'    s_branch {lbl}')
    st.append(f'{lbl}_r:')
    if giveup: st+= [f'    s_sub_u32 {s(sTry)}, {s(sTry)}, 1', f'    s_cbranch_scc1 {giveup}']
    else: st+= [f'    s_sub_u32 {s(sCnt)}, {s(sCnt)}, 1', '    s_cbranch_scc1 L_end']
    st+= ['    '+x.strip() for x in pre.split('\n') if x.strip()]
    if sleep: st.append(f'    s_sleep {sleep}')
    a.lines[k:k]=st
def fstamp():
    if cfg.stamps in (2,3): stamp()
def stamp():
    if not cfg.stamps or cfg.stamps==4: return
    a(f'''{'s_memtime' if cfg.stamps==2 else 's_memrealtime'} {s(sTS,2)}
    s_waitcnt lgkmcnt(0)
    s_mov_b32 m0, {s(sStampI)}
    s_add_u32 {s(sStampI)}, {s(sStampI)}, 1
    v_writelane_b32 {v(vSTMP)}, {s(sTS)}, m0''')
def dump_stamps():
    if not cfg.stamps: return
    a(f's_memrealtime {s(sTS,2)}\ns_memtime {s(sTS+2,2)}\ns_waitcnt lgkmcnt(0)\nv_writelane_b32 {v(vSTMP)}, {s(sTS)}, 61\nv_writelane_b32 {v(vSTMP)}, {s(sTS+2)}, 60')
    if cfg.cal>=0:
        lab='L_cal%d'%len(a.lines)
        a(f'''s_cmp_lg_u32 s2, {cfg.calwg}
        s_cbranch_scc1 {lab}
        s_cmp_lg_u32 {s(sW)}, 0
        s_cbranch_scc1 {lab}
        v_readlane_b32 {s(sT)}, {v(vSTMP)}, {cfg.cal}
        v_readlane_b32 {s(sT+1)}, {v(vSTMP)}, 63
        s_sub_u32 {s(sT)}, {s(sT)}, {s(sT+1)}
        s_lshl_b32 {s(sT)}, {s(sT)}, 2
        s_add_u32 {s(sT)}, {s(sT)}, 3000
        s_min_u32 {s(sT)}, {s(sT)}, 50000
        {lab}_l:
        s_memrealtime {s(sTS,2)}
        s_waitcnt lgkmcnt(0)
        s_sub_u32 {s(sT+2)}, {s(sTS)}, {s(sT+1)}
        s_cmp_lt_u32 {s(sT+2)}, {s(sT)}
        s_cbranch_scc1 {lab}_l
        {lab}:''')
    a(f'''s_lshl_b32 {s(sT)}, s2, 11
    s_lshl_b32 {s(sT+1)}, {s(sW)}, 8
    s_add_u32 {s(sT)}, {s(sT)}, {s(sT+1)}
    s_add_u32 {s(sT)}, {s(sT)}, {STAMP}
    v_lshlrev_b32 {v(vLane)}, 2, {v(vLane)}
    buffer_store_dword {v(vSTMP)}, {v(vLane)}, {WS}, {s(sT)} offen''')
def maxchk(regs, t):
    regs=list(regs)
    a(f'v_max3_u32 {v(t)}, {v(regs[0])}, {v(regs[1])}, {v(regs[2])}')
    rest=regs[3:]
    while len(rest)>=2:
        a(f'v_max3_u32 {v(t)}, {v(t)}, {v(rest[0])}, {v(rest[1])}'); rest=rest[2:]
    if rest: a(f'v_max_u32 {v(t)}, {v(t)}, {v(rest[0])}')
    a(f'v_cmp_eq_u32 vcc, -1, {v(t)}')
def phchk(regs, t):
    regs=list(regs)
    a(f'v_bitop3_b32 {v(t)}, {v(regs[0])}, {v(regs[1])}, {s(sPh)} bitop3:0x7e')
    for r in regs[2:]: a(f'v_bitop3_b32 {v(t)}, {v(t)}, {v(r)}, {s(sPh)} bitop3:0xf6')
    a(f'v_and_b32 {v(t)}, 1, {v(t)}\nv_cmp_ne_u32 vcc, 0, {v(t)}')
def tag4chk(r):
    for k in range(4): a(f'v_xor_b32 {v(r+k)}, {s(sTag)}, {v(r+k)}')
    a(f'v_or3_b32 {v(r)}, {v(r)}, {v(r+1)}, {v(r+2)}\nv_or_b32 {v(r)}, {v(r)}, {v(r+3)}\nv_cmp_ne_u32 vcc, 0, {v(r)}')
DPP='row_mask:0xf bank_mask:0xf'

def fft_core(xr, xi, U, V, F, P, fill1='', fill2=''):
    Ur,Ui=U,U+4
    a(f'v_mfma_f32_16x16x32_f16 {v(Ur,4)}, {v(xr,4)}, {v(B1C,4)}, 0')
    a(f'v_mfma_f32_16x16x32_f16 {v(Ui,4)}, {v(xr,4)}, {v(B1N,4)}, 0')
    if xi is not None:
        a(f'v_mfma_f32_16x16x32_f16 {v(Ur,4)}, {v(xi,4)}, {v(B1S,4)}, {v(Ur,4)}')
        a(f'v_mfma_f32_16x16x32_f16 {v(Ui,4)}, {v(xi,4)}, {v(B1C,4)}, {v(Ui,4)}')
    a(fill1)
    Vr,Vi=V,V+4
    for h in (0,2):
        a(f'v_pk_mul_f32 {v(Vi+h,2)}, {v(Ur+h,2)}, {v(TWS+h,2)}')
    for h in (0,2):
        a(f'v_pk_mul_f32 {v(Vr+h,2)}, {v(Ui+h,2)}, {v(TWS+h,2)}')
    for h in (0,2):
        a(f'v_pk_fma_f32 {v(Vr+h,2)}, {v(Ur+h,2)}, {v(TWC+h,2)}, {v(Vr+h,2)}')
        a(f'v_pk_fma_f32 {v(Vi+h,2)}, {v(Ui+h,2)}, {v(TWC+h,2)}, {v(Vi+h,2)} neg_lo:[0,0,1] neg_hi:[0,0,1]')
    for r in range(4): a(f'v_cvt_pk_f16_f32 {v(P+r)}, {v(Vr+r)}, {v(Vi+r)}')
    a(f'v_mfma_f32_16x16x32_f16 {v(F,4)}, {v(A2R,4)}, {v(P,4)}, 0')
    a(f'v_mfma_f32_16x16x32_f16 {v(F+4,4)}, {v(A2I,4)}, {v(P,4)}, 0')
    a(fill2)
    for r in range(4): a(f'v_cvt_pk_f16_f32 {v(P+r)}, {v(F+r)}, {v(F+4+r)}')

SENT=T+4
def g2late():
    return '\n'.join(f'v_mov_b32 {v(LNP+k)}, -1' for k in range(4))+f'\ns_mov_b32 {s(sT+14)}, {GBASE+GR}\nbuffer_store_dwordx4 {v(LNP,4)}, {v(vGst)}, {WS}, {s(sT+14)} offen sc1'

def main_prologue():
    t=T
    X0=BC
    a(f'''
    s_mul_i32 {s(sLld)}, {s(sX)}, {LX}
    s_add_u32 {s(sLld)}, {s(sLld)}, {LBASE}
    s_mul_i32 {s(sLst)}, {s(sJ)}, {PS}
    s_add_u32 {s(sLst)}, {s(sLst)}, {s(sLld)}
    v_lshlrev_b32 {v(t)}, 4, v0
    v_lshrrev_b32 {v(t+1)}, 4, v0
    {f'buffer_load_dword {v(X0+6)}, off, {WS}, 0 sc1' if not cfg.hot else f's_load_dword {s(sTag)}, s[8:9], 0'}
    ''')
    tabt=f'buffer_load_dword {v(X0+7)}, {v(vL8)}, {WS}, {s(sTabLd)} offen sc1'
    if cfg.hot: tabt=f's_cmp_eq_u32 {s(sW)}, 0\ns_cselect_b32 {s(sT)}, {s(sTabLd)}, s10\nbuffer_load_dword {v(X0+7)}, {v(vL8)}, {WS}, {s(sT)} offen sc1'
    ltch=f'buffer_load_dwordx4 {v(X0+8,4)}, {v(t)}, {WS}, {s(sLst) if not cfg.exp&1 else "s10"} offen sc1'
    lclr=f'buffer_store_dwordx4 {v(SENT,4)}, {v(t)}, {WS}, {s(sLst)} offen'
    if cfg.tch==0: a(tabt+'\n'+ltch+'\n'+lclr)
    if cfg.tch==1 and not cfg.aft&1: a(tabt+'\n'+ltch)
    if cfg.tch==2: a(tabt+'\n'+lclr+'\n'+ltch)
    if cfg.tch==3: a(ltch.replace(' sc1','')+'\n'+ltch.replace(' sc1','')+'\n'+lclr)
    a(f'''
    s_mov_b32 {s(sG0)}, {GBASE}
    s_mul_i32 {s(sT)}, {s(sX)}, {GS}
    s_add_u32 {s(sT+2)}, {s(sJ)}, 24
    s_and_b32 {s(sT+2)}, {s(sT+2)}, 24
    s_lshl_b32 {s(sT+2)}, {s(sT+2)}, 13
    s_add_u32 {s(sT)}, {s(sT)}, {s(sT+2)}
    s_and_b32 {s(sT+2)}, {s(sJ)}, 7
    s_cmp_lt_u32 {s(sJ)}, 8
    s_cselect_b32 {s(sT+3)}, 7, 8
    s_cselect_b32 {s(sT+4)}, 112, 0
    s_lshl_b32 {s(sT+2)}, {s(sT+2)}, {s(sT+3)}
    s_add_u32 {s(sT)}, {s(sT)}, {s(sT+2)}
    v_lshlrev_b32 {v(t+2)}, 4, {v(vN)}
    v_lshl_add_u32 {v(vGst)}, {v(t+1)}, 11, {v(t+2)}
    v_and_b32 {v(t+3)}, 8, {v(vN)}
    v_mad_u32_u24 {v(vGst)}, {v(t+3)}, {s(sT+4)}, {v(vGst)}
    v_add_u32 {v(vGst)}, {s(sT)}, {v(vGst)}
    ''')
    if cfg.spr: a(f'''
    s_and_b32 {s(sT+14)}, {s(sJ)}, 24
    s_add_u32 {s(sT+14)}, {s(sT+14)}, {s(sX)}
    s_lshl_b32 {s(sT+15)}, {s(sT+14)}, 13
    s_and_b32 {s(sT+13)}, {s(sJ)}, 7
    s_lshl_b32 {s(sT+13)}, {s(sT+13)}, 10
    s_add_u32 {s(sT+15)}, {s(sT+15)}, {s(sT+13)}
    s_cmp_lt_u32 {s(sT+14)}, 4
    s_cselect_b32 {s(sT+15)}, {WSSZ}, {s(sT+15)}
    s_cmp_lg_u32 {s(sW)}, 0
    s_cselect_b32 {s(sT+15)}, {WSSZ}, {s(sT+15)}
    ''')
    else: a(f'''
    s_lshl_b32 {s(sT+15)}, s2, 13
    s_sub_u32 {s(sT+14)}, s2, 4
    s_cmp_lt_u32 {s(sT+14)}, 28
    s_cselect_b32 {s(sT+15)}, {s(sT+15)}, {WSSZ}
    ''')
    clrs=f'''buffer_store_dwordx4 {v(SENT,4)}, {v(vGst)}, {WS}, {s(sG0)} offen {['sc1','sc0 sc1','sc1 nt'][cfg.cfl]}
    buffer_store_dwordx4 {v(SENT,4)}, {v(t)}, {WS}, {s(sT+15)} offen sc1'''
    g2c=f's_mov_b32 {s(sT+14)}, {GBASE+GR}\nbuffer_store_dwordx4 {v(SENT,4)}, {v(vGst)}, {WS}, {s(sT+14)} offen sc1'
    if not cfg.aft&2: a(clrs)
    a(f'v_and_b32 {v(BC+6)}, 0x3f0, {v(t)}\nglobal_load_dwordx2 {v(BC+4,2)}, {v(vUW)}, s[16:17]\nglobal_load_dwordx4 {v(WV,4)}, {v(BC+6)}, s[16:17]')
    if cfg.gre: cfg.g2pos=2
    if cfg.g2pos==0: a(g2c)
    if cfg.exp&2: stamp(); a('s_waitcnt vmcnt(4)'); stamp()
    c=t+8; co,si=c+8,c+12
    a(f'''
    s_lshr_b32 {s(sT)}, {s(sJ)}, 2
    s_and_b32 {s(sT)}, {s(sT)}, 6                 ; 2*(j>>3)
    s_lshl_b32 {s(sT+1)}, {s(sW)}, 2
    s_and_b32 {s(sT+1)}, {s(sT+1)}, 8             ; 2*4*((w>>1)&1)
    s_cmp_lt_u32 {s(sJ)}, 8
    s_cselect_b32 {s(sT)}, {s(sT+1)}, {s(sT)}
    s_lshl_b32 {s(sT+1)}, {s(sW)}, 4
    s_and_b32 {s(sT+1)}, {s(sT+1)}, 16            ; 16*(w&1)
    s_cmp_ge_u32 {s(sW)}, 4
    s_cselect_b32 {s(sT+2)}, {s(sT+1)}, 0         ; 16k
    s_cselect_b32 {s(sT)}, {s(sT)}, 0
    s_cmp_eq_u32 {s(sW)}, 3
    s_cselect_b32 {s(sT)}, 16, {s(sT)}
    s_lshl_b32 {s(sT+3)}, {s(sW)}, 2
    s_lshr_b32 {s(sT+3)}, 0x44440054, {s(sT+3)}
    s_and_b32 {s(sT+3)}, {s(sT+3)}, 15            ; log2 A
    v_lshlrev_b32 {v(c)}, {s(sT+3)}, {v(vN)}
    v_add_u32 {v(c)}, {s(sT)}, {v(c)}
    v_lshl_add_u32 {v(c+1)}, {v(vQ)}, 2, {s(sT+2)}
    v_cvt_f32_u32 {v(c)}, {v(c)}
    v_cvt_f32_u32 {v(c+1)}, {v(c+1)}
    s_mov_b32 {s(sK512)}, {fbits(1/512)}
    v_mul_f32 {v(c)}, {s(sK512)}, {v(c)}
    v_mul_f32 {v(c+4)}, {v(c+1)}, {v(c)}
    v_add_f32 {v(c+5)}, {v(c+4)}, {v(c)}
    v_add_f32 {v(c+6)}, {v(c+5)}, {v(c)}
    v_add_f32 {v(c+7)}, {v(c+6)}, {v(c)}
    ''')
    fill=[f's_mov_b32 {s(sEps)}, {fbits(1e-5)}', f's_mov_b32 {s(sEps+1)}, {fbits(1e-5)}', f's_mov_b32 {s(sC16)}, {fbits(1/16)}', f's_mov_b32 {s(sC16+1)}, {fbits(1/16)}',
          f's_mov_b32 {s(sTop)}, 0x80000000', f's_mov_b32 {s(sQmask)}, 0x11111111', f's_mov_b32 {s(sQmask+1)}, 0x11111111', f's_mov_b32 {s(sG4)}, {GBASE+4*GS}']
    for r in range(4):
        a(f'v_cos_f32 {v(co+r)}, {v(c+4+r)}'); a(fill[2*r])
        a(f'v_sin_f32 {v(si+r)}, {v(c+4+r)}'); a(fill[2*r+1])
    a(f'''
    s_lshl_b32 {s(sT)}, {s(sW)}, 11
    s_add_u32 {s(sT)}, {s(sT)}, {L_CX}
    v_lshlrev_b32 {v(c+2)}, 4, {v(vLane)}
    v_add_u32 {v(c+3)}, {s(sT)}, {v(c+2)}
    s_and_b32 {s(sT)}, {s(sW)}, 6
    s_cmp_eq_u32 {s(sT)}, 2
    s_cbranch_scc1 L_cw
    s_cmp_eq_u32 {s(sW)}, 1
    s_cbranch_scc1 L_cri
    v_cvt_pk_f16_f32 {v(co)}, {v(co)}, {v(co+1)}
    v_cvt_pk_f16_f32 {v(co+1)}, {v(co+2)}, {v(co+3)}
    v_cvt_pk_f16_f32 {v(co+2)}, {v(si)}, {v(si+1)}
    v_cvt_pk_f16_f32 {v(co+3)}, {v(si+2)}, {v(si+3)}
    s_branch L_cw
    L_cri:
    ''')
    for r in range(4):
        a(f'v_cvt_pk_f16_f32 {v(c+4)}, {v(co+r)}, {v(si+r)}')
        a(f'v_cvt_pk_f16_f32 {v(si+r)}, -{v(si+r)}, {v(co+r)}')
        a(f'v_mov_b32 {v(co+r)}, {v(c+4)}')
    a(f'''
    L_cw:
    ds_write_b128 {v(c+3)}, {v(co,4)}
    ds_write_b128 {v(c+3)}, {v(si,4)} offset:1024
    v_lshrrev_b32 {v(c+4)}, 2, {v(vN)}
    v_and_b32 {v(c+5)}, 2, {v(vN)}
    v_and_b32 {v(c+6)}, 14, {v(vN)}
    v_cmp_eq_u32 vcc, 2, {v(c+6)}
    v_mul_u32_u24 {v(vYIR)}, {YIS}, {v(c+4)}
    v_lshlrev_b32 {v(vStR)}, 8, {v(vQ)}
    v_cndmask_b32 {v(c+4)}, {v(c+4)}, 4, vcc
    v_cndmask_b32 {v(c+5)}, {v(c+5)}, 0, vcc
    v_mul_u32_u24 {v(c+6)}, {v(c+4)}, {v(vQ)}
    v_lshl_add_u32 {v(c+6)}, {v(c+6)}, 1, {v(c+5)}
    v_add_u32 {v(c+7)}, {v(c+6)}, {v(c+4)}
    v_cvt_f32_u32 {v(c+6)}, {v(c+6)}
    v_cvt_f32_u32 {v(c+7)}, {v(c+7)}
    v_mul_f32 {v(c+6)}, 0x3e000000, {v(c+6)}
    v_mul_f32 {v(c+7)}, 0x3e000000, {v(c+7)}
    v_cos_f32 {v(c+6)}, {v(c+6)}
    v_cos_f32 {v(c+7)}, {v(c+7)}
    v_and_b32 {v(c+5)}, 1, {v(vN)}
    v_cmp_eq_u32 vcc, 0, {v(c+5)}
    v_cvt_pk_f16_f32 {v(c+6)}, {v(c+6)}, {v(c+7)}
    v_mov_b32 {v(c+5)}, 0x80008000
    v_cndmask_b32 {v(A8)}, 0, {v(c+6)}, vcc
    v_cndmask_b32 {v(A8+1)}, {v(c+6)}, 0, vcc
    v_cndmask_b32 {v(c+5)}, {v(c+5)}, 0, vcc
    s_lshl_b32 {s(sT+1)}, {s(sT+1)}, 7            ; h*2048
    v_add_u32 {v(c+6)}, {s(sT+1)}, {v(c+2)}
    s_lshl_b32 {s(sT+2)}, {s(sW)}, 11
    s_and_b32 {s(sT+2)}, {s(sT+2)}, 4096          ; ((w>>1)&1)*4096
    v_add_u32 {v(c+7)}, {s(sT+2)}, {v(c+2)}
    ''')
    if cfg.exp&4: stamp()
    a(f'''
    s_waitcnt lgkmcnt(0)
    s_barrier
    ''')
    if cfg.exp&4: stamp()
    a(f'''
    ds_read_b128 {v(B1N,4)}, {v(c+2)} offset:{L_CX}
    ds_read_b128 {v(co,4)}, {v(c+7)} offset:{L_CX+4*2048}
    ds_read_b128 {v(si,4)}, {v(c+7)} offset:{L_CX+5*2048}
    ds_read_b128 {v(A2R,4)}, {v(c+2)} offset:{L_CX+2048}
    ds_read_b128 {v(A2I,4)}, {v(c+2)} offset:{L_CX+2048+1024}
    ds_read_b128 {v(TWC,4)}, {v(c+6)} offset:{L_CX+4096}
    ds_read_b128 {v(TWS,4)}, {v(c+6)} offset:{L_CX+4096+1024}
    v_and_b32 {v(c+4)}, 4, {v(vN)}
    s_lshl_b32 {s(sT)}, {s(sW)}, 2
    v_lshl_add_u32 {v(vStW)}, {v(t+3)}, 2, {v(vStR)}
    v_lshl_add_u32 {v(vStW)}, {v(c+4)}, 4, {v(vStW)}
    v_add_u32 {v(vStW)}, {s(sT)}, {v(vStW)}
    v_and_b32 {v(c+4)}, 7, {v(vN)}
    v_lshl_add_u32 {v(vStR)}, {v(c+4)}, 5, {v(vStR)}
    v_lshl_add_u32 {v(vUW)}, {v(vQ)}, 11, {v(vUW)}
    v_add_u32 {v(vUW)}, {L_U}, {v(vUW)}
    s_lshr_b32 {s(sT)}, {s(sW)}, 1
    s_lshl_b32 {s(sT)}, {s(sT)}, 11
    s_add_u32 {s(sT+2)}, {s(sT)}, {L_U}
    v_lshl_add_u32 {v(vUR)}, {v(vLane)}, 3, {s(sT+2)}
    ; vLst = w'*2048 + 512q + 64h + 4n
    s_lshr_b32 {s(sT+2)}, {s(sT+1)}, 5
    s_add_u32 {s(sT)}, {s(sT)}, {s(sT+2)}
    v_lshl_add_u32 {v(vLst)}, {v(vQ)}, 9, {s(sT)}
    v_lshl_add_u32 {v(vLst)}, {v(vN)}, 2, {v(vLst)}
    s_lshl_b32 {s(sT)}, {s(sJ)}, 3
    s_add_u32 {s(sTabSt)}, {s(sTabLd)}, {s(sT)}
    s_lshl_b32 {s(sT+3)}, {s(sW)}, 31             ; h sign
    s_lshl_b32 {s(sT+4)}, {s(sW)}, 29
    s_and_b32 {s(sT+4)}, {s(sT+4)}, {s(sTop)}
    s_mov_b32 {s(sT+5)}, 0x80008000
    s_mov_b32 {s(sIt)}, 0
    s_mov_b32 {s(sFast)}, 1
    s_mov_b32 {s(sPh)}, 0
    s_mov_b32 {s(sNx)}, 0
    s_mov_b32 {s(sKey)}, {s(sXcc)}
    s_mov_b32 {s(sSlot)}, {WSSZ}
    s_xor_b32 {s(sT+12)}, {s(sJ)}, 9
    s_or_b32 {s(sT+12)}, {s(sT+12)}, {s(sW)}
    s_mov_b32 {s(sTry)}, 64
    s_waitcnt lgkmcnt(4)
    v_xor_b32 {v(B1C)}, {s(sT+3)}, {v(B1N)}
    v_xor_b32 {v(B1C+1)}, {s(sT+3)}, {v(B1N+1)}
    v_xor_b32 {v(B1S)}, {s(sT+3)}, {v(B1N+2)}
    v_xor_b32 {v(B1S+1)}, {s(sT+3)}, {v(B1N+3)}
    v_xor_b32 {v(B1C+2)}, {v(B1C)}, {v(c+5)}
    v_xor_b32 {v(B1C+3)}, {v(B1C+1)}, {v(c+5)}
    v_xor_b32 {v(B1S+2)}, {v(B1S)}, {v(c+5)}
    v_xor_b32 {v(B1S+3)}, {v(B1S+1)}, {v(c+5)}
    ''')
    for r in range(4): a(f'v_xor_b32 {v(B1N+r)}, {s(sT+5)}, {v(B1S+r)}')
    for k,src in ((0,co),(1,si)):
        for r in range(2):
            a(f'v_xor_b32 {v(YC+2*k+r)}, {s(sT+4)}, {v(src+r)}')
            a(f'v_xor_b32 {v(YS+2*k+r)}, {s(sT+4)}, {v(src+2+r)}')
    a(f'''
    s_and_b32 {s(sT+1)}, {s(sW)}, 3
    s_lshl_b32 {s(sT+1)}, {s(sT+1)}, 6            ; 64cb
    s_lshr_b32 {s(sT)}, {s(sW)}, 2
    s_mul_i32 {s(sT)}, {s(sT)}, {16*272}
    s_add_u32 {s(sT)}, {s(sT)}, {s(sT+1)}
    s_add_u32 {s(sT)}, {s(sT)}, {L_YT}
    v_mul_u32_u24 {v(vYW)}, 272, {v(vN)}
    v_lshl_add_u32 {v(vYW)}, {v(vQ)}, 4, {v(vYW)}
    v_add_u32 {v(vYW)}, {s(sT)}, {v(vYW)}
    v_mul_u32_u24 {v(vYR)}, 272, {v(t+1)}
    v_add_u32 {v(vYR)}, {v(vYR)}, {v(t+2)}
    v_add_u32 {v(vYR)}, {L_YT}, {v(vYR)}
    s_add_u32 {s(sT+1)}, {s(sT+1)}, {L_YI}
    v_mul_u32_u24 {v(c+4)}, {4*YIS}, {v(vQ)}
    v_and_b32 {v(c+6)}, 0x30, {v(t+2)}
    v_add3_u32 {v(vYIR)}, {v(vYIR)}, {v(c+4)}, {v(c+6)}
    v_add_u32 {v(vYIR)}, {s(sT+1)}, {v(vYIR)}
    s_cmp_lt_u32 {s(sJ)}, 8
    s_cbranch_scc1 L_aself
    v_mul_u32_u24 {v(vLld)}, {PS}, {v(t+1)}
    v_mul_u32_u24 {v(vYIW)}, {YIS}, {v(t+1)}
    s_lshl_b32 {s(sT)}, {s(sJ)}, 8
    v_add3_u32 {v(vLld)}, {v(vLld)}, {v(t+2)}, {s(sT)}
    v_add_u32 {v(vYIW)}, {v(vYIW)}, {v(t+2)}
    v_mov_b32 {v(vLldM)}, 0
    s_branch L_adone
    L_aself:
    ; s2=(w>>1)*8+(l>>3), u=l&7, which=w&1
    s_lshl_b32 {s(sT)}, {s(sW)}, 2
    s_and_b32 {s(sT)}, {s(sT)}, 24
    v_lshrrev_b32 {v(c+4)}, 3, {v(vLane)}
    v_add_u32 {v(c+4)}, {s(sT)}, {v(c+4)}
    v_and_b32 {v(c+6)}, 0x70, {v(t+2)}
    v_mul_u32_u24 {v(vLldM)}, {PS}, {v(c+4)}
    v_mul_u32_u24 {v(vYIW)}, {YIS}, {v(c+4)}
    s_lshl_b32 {s(sT)}, {s(sJ)}, 7
    s_add_u32 {s(sT+1)}, {s(sT)}, 4
    s_sub_u32 {s(sT)}, {508*4}, {s(sT)}
    v_add3_u32 {v(vLld)}, {v(vLldM)}, {v(c+6)}, {s(sT+1)}
    v_sub_u32 {v(vLldM)}, {v(vLldM)}, {v(c+6)}
    v_add_u32 {v(vLldM)}, {s(sT)}, {v(vLldM)}
    s_lshr_b32 {s(sT)}, {s(sT+3)}, 24
    v_add3_u32 {v(vYIW)}, {v(vYIW)}, {v(c+6)}, {s(sT)}
    L_adone:
    v_add_u32 {v(vYIW)}, {L_YI}, {v(vYIW)}
    s_waitcnt vmcnt({(0 if cfg.aft&1 else 2)+(0 if cfg.aft&2 else 2)+(1 if cfg.g2pos==0 else 0)+2})
    {tabt if cfg.aft&1 else ''}
    {ltch if cfg.aft&1 else ''}
    {clrs if cfg.aft&2 else ''}
    {g2c if cfg.g2pos==1 else ''}
    {f'v_readfirstlane_b32 {s(sTag)}, {v(X0+6)}' if not cfg.hot else ''}
    ''')
    for rho in (0,1):
        for k in (0,1):
            src=X0+2*rho+k
            a(f'v_lshlrev_b32 {v(X+4*k+rho)}, 16, {v(src)}')
            a(f'v_and_b32 {v(X+4*k+2+rho)}, 0xffff0000, {v(src)}')
    a(f's_add_u32 {s(sTag)}, {s(sTag)}, 1')

def xin_consts(c):
    a(f'''
    s_and_b32 {s(sT)}, {s(sX)}, 3                ; 0 => self
    s_lshr_b32 {s(sT+1)}, {s(sW)}, 2
    s_lshr_b32 {s(sT+2)}, {s(sX)}, 2
    s_mov_b32 {s(sSc)}, {fbits(16.0)}
    s_cmp_eq_u32 {s(sT)}, 0
    s_cselect_b32 {s(sMir)}, {s(sT+1)}, {s(sT+2)}
    s_cselect_b32 {s(sSc)}, {fbits(8.0)}, {s(sSc)}
    s_cselect_b32 {s(sDsc)}, {fbits(1/8)}, {s(sC16)}
    s_cselect_b32 {s(sT+3)}, -4, 0
    s_mov_b32 {s(sSc+1)}, {s(sSc)}
    s_sub_u32 {s(sT+4)}, 256, s2
    s_and_b32 {s(sT+4)}, {s(sT+4)}, 255
    s_cmp_eq_u32 {s(sMir)}, 0
    s_cselect_b32 {s(sT+4)}, s2, {s(sT+4)}       ; source g
    s_cselect_b32 {s(sT+5)}, 16, -16
    s_cselect_b32 {s(sT+6)}, 0, {509*4}
    s_cselect_b32 {s(sT+7)}, 1.0, -1.0
    s_add_u32 {s(sT+3)}, {s(sT+3)}, {s(sT+6)}
    s_mul_i32 {s(sT+6)}, {s(sT+5)}, {s(sW)}
    s_lshl_b32 {s(sT+6)}, {s(sT+6)}, 4
    s_add_u32 {s(sT+3)}, {s(sT+3)}, {s(sT+6)}
    s_lshr_b32 {s(sT+6)}, {s(sT+4)}, 3
    s_lshl_b32 {s(sT+6)}, {s(sT+6)}, 11
    s_add_u32 {s(sT+3)}, {s(sT+3)}, {s(sT+6)}
    s_add_u32 {s(sT+6)}, {s(sT+4)}, 3
    s_and_b32 {s(sT+6)}, {s(sT+6)}, 3
    s_lshl_b32 {s(sT+6)}, {s(sT+6)}, 16
    s_add_u32 {s(sT+3)}, {s(sT+3)}, {s(sT+6)}
    s_and_b32 {s(sT+6)}, {s(sT+4)}, 4
    s_lshl_b32 {s(sT+6)}, {s(sT+6)}, 8
    s_add_u32 {s(sT+3)}, {s(sT+3)}, {s(sT+6)}
    v_mul_i32_i24 {v(vGld)}, {s(sT+5)}, {v(vN)}
    v_mul_u32_u24 {v(c+4)}, {GS}, {v(vQ)}
    v_add3_u32 {v(vGld)}, {v(vGld)}, {v(c+4)}, {s(sT+3)}
    v_lshrrev_b32 {v(c+4)}, 1, {v(vN)}
    v_and_b32 {v(c+4)}, 6, {v(c+4)}
    v_and_or_b32 {v(c+4)}, {v(vN)}, 1, {v(c+4)}
    v_lshl_add_u32 {v(AD)}, {v(c+4)}, 8, s2
    v_cvt_f32_u32 {v(c+4)}, {v(AD)}
    v_cvt_f32_u32 {v(c+5)}, {v(vQ)}
    v_mul_f32 {v(c+4)}, {fbits(1/2048)}, {v(c+4)}
    v_mul_f32 {v(c+4)}, {s(sT+7)}, {v(c+4)}
    v_mul_f32 {v(c+5)}, {v(c+4)}, {v(c+5)}
    v_fma_f32 {v(c+6)}, {v(c+4)}, 4.0, {v(c+5)}
    v_cos_f32 {v(c+7)}, {v(c+5)}
    v_sin_f32 {v(c+8)}, {v(c+5)}
    v_cos_f32 {v(c+9)}, {v(c+6)}
    v_sin_f32 {v(c+10)}, {v(c+6)}
    v_bfe_u32 {v(c+4)}, {v(vN)}, 1, 1
    v_cmp_eq_u32 vcc, {s(sMir)}, {v(c+4)}
    v_cvt_pk_f16_f32 {v(c+7)}, {v(c+7)}, {v(c+8)}
    v_cvt_pk_f16_f32 {v(c+9)}, {v(c+9)}, {v(c+10)}
    v_cndmask_b32 {v(XA)}, 0, {v(c+7)}, vcc
    v_cndmask_b32 {v(XA+1)}, {v(c+7)}, 0, vcc
    v_cndmask_b32 {v(XA+2)}, 0, {v(c+9)}, vcc
    v_cndmask_b32 {v(XA+3)}, {v(c+9)}, 0, vcc
    v_and_b32 {v(c+4)}, 0x1cf, v0
    v_cmp_eq_u32 vcc, 0, {v(c+4)}
    v_mov_b32 {v(c+5)}, {s(sSc)}
    s_sub_u32 {s(sT)}, 2047, s2
    v_lshlrev_b32 {v(vInv)}, 9, {v(vQ)}
    v_cndmask_b32 {v(vSc0)}, {v(c+5)}, 0, vcc
    v_cndmask_b32 {v(vSc0+1)}, {v(c+5)}, 0, vcc
    v_sub_u32 {v(vInv)}, {s(sT)}, {v(vInv)}
    s_lshl_b32 {s(sSlot)}, {s(sX)}, 12
    s_add_u32 {s(sSlot)}, {s(sSlot)}, {SLOT}
    ''')

def main_loop():
    t=T
    S1,S2,S3=t,t+2,t+4
    a('L_top:')
    stamp()
    a(f'''
    v_pk_add_f32 {v(S1,2)}, {v(X,2)}, {v(X+2,2)}
    v_pk_add_f32 {v(t+6,2)}, {v(X+4,2)}, {v(X+6,2)}
    v_pk_mul_f32 {v(S2,2)}, {v(X,2)}, {v(X,2)}
    v_pk_mul_f32 {v(S3,2)}, {v(X,2)}, {v(WV,2)} op_sel:[0,0] op_sel_hi:[1,0]
    v_pk_add_f32 {v(S1,2)}, {v(S1,2)}, {v(t+6,2)}
    v_pk_fma_f32 {v(S2,2)}, {v(X+2,2)}, {v(X+2,2)}, {v(S2,2)}
    v_pk_fma_f32 {v(S3,2)}, {v(X+2,2)}, {v(WV,2)}, {v(S3,2)} op_sel:[0,1,0] op_sel_hi:[1,1,1]
    v_add_f32_dpp {v(S1)}, {v(S1)}, {v(S1)} row_ror:8 row_mask:0xf bank_mask:0x3
    v_pk_fma_f32 {v(S2,2)}, {v(X+4,2)}, {v(X+4,2)}, {v(S2,2)}
    v_pk_fma_f32 {v(S3,2)}, {v(X+4,2)}, {v(WV+2,2)}, {v(S3,2)} op_sel:[0,0,0] op_sel_hi:[1,0,1]
    v_add_f32_dpp {v(S1)}, {v(S1+1)}, {v(S1+1)} row_ror:8 row_mask:0xf bank_mask:0xc
    v_pk_fma_f32 {v(S2,2)}, {v(X+6,2)}, {v(X+6,2)}, {v(S2,2)}
    v_pk_fma_f32 {v(S3,2)}, {v(X+6,2)}, {v(WV+2,2)}, {v(S3,2)} op_sel:[0,1,0] op_sel_hi:[1,1,1]
    v_add_f32_dpp {v(S1)}, {v(S1)}, {v(S1)} row_half_mirror row_mask:0xf bank_mask:0x5
    v_add_f32_dpp {v(S2)}, {v(S2)}, {v(S2)} row_ror:8 row_mask:0xf bank_mask:0x3
    v_add_f32_dpp {v(S3)}, {v(S3)}, {v(S3)} row_ror:8 row_mask:0xf bank_mask:0x3
    v_add_f32_dpp {v(S2)}, {v(S2+1)}, {v(S2+1)} row_ror:8 row_mask:0xf bank_mask:0xc
    v_add_f32_dpp {v(S3)}, {v(S3+1)}, {v(S3+1)} row_ror:8 row_mask:0xf bank_mask:0xc
    v_add_f32_dpp {v(S1)}, {v(S2)}, {v(S2)} row_half_mirror row_mask:0xf bank_mask:0xa
    v_add_f32_dpp {v(S3)}, {v(S3)}, {v(S3)} row_half_mirror {DPP}
    v_add_f32_dpp {v(S1)}, {v(S1)}, {v(S1)} quad_perm:[1,0,3,2] {DPP}
    v_add_f32_dpp {v(S3)}, {v(S3)}, {v(S3)} quad_perm:[1,0,3,2] {DPP}
    v_add_f32_dpp {v(S1)}, {v(S1)}, {v(S1)} quad_perm:[2,3,0,1] {DPP}
    v_add_f32_dpp {v(S3)}, {v(S3)}, {v(S3)} quad_perm:[2,3,0,1] {DPP}
    s_mov_b64 exec, {s(sQmask,2)}
    ds_write2_b32 {v(vStW)}, {v(S1)}, {v(S3)} offset0:0 offset1:32
    s_mov_b64 exec, -1
    ;@F
    ''')
    if cfg.g2pos==4: a(f's_cmp_lg_u32 {s(sIt)}, 1\ns_cbranch_scc1 L_nw\ns_waitcnt vmcnt(0)\nL_nw:')
    a(f'''
    s_waitcnt lgkmcnt(0)
    s_barrier
    ;@F
    ds_read_b128 {v(t,4)}, {v(vStR)}
    ds_read_b128 {v(t+4,4)}, {v(vStR)} offset:16
    s_waitcnt lgkmcnt(0)
    v_pk_add_f32 {v(t,2)}, {v(t,2)}, {v(t+2,2)}
    v_pk_add_f32 {v(t+4,2)}, {v(t+4,2)}, {v(t+6,2)}
    v_pk_add_f32 {v(t,2)}, {v(t,2)}, {v(t+4,2)}
    v_add_f32 {v(t)}, {v(t)}, {v(t+1)}
    v_mul_f32 {v(t+7)}, {s(sK512)}, {v(t)}
    ''')
    VAR,RS,CC,NM=t+8,t+10,t+12,t+14
    K=t+16
    a(f'''
    v_mov_b32_dpp {v(MM)}, {v(t+7)} row_newbcast:0 {DPP}
    v_mov_b32_dpp {v(MM+1)}, {v(t+7)} row_newbcast:1 {DPP}
    v_mov_b32_dpp {v(S2)}, {v(t+7)} row_newbcast:2 {DPP}
    v_mov_b32_dpp {v(S2+1)}, {v(t+7)} row_newbcast:3 {DPP}
    v_mov_b32_dpp {v(S3)}, {v(t+7)} row_newbcast:4 {DPP}
    v_pk_fma_f32 {v(VAR,2)}, {v(MM,2)}, {v(MM,2)}, {v(S2,2)} neg_lo:[1,0,0] neg_hi:[1,0,0]
    v_mov_b32_dpp {v(S3+1)}, {v(t+7)} row_newbcast:5 {DPP}
    v_pk_add_f32 {v(S1,2)}, {v(VAR,2)}, {s(sEps,2)}
    s_cmp_eq_u32 {s(sIt)}, 0
    v_rsq_f32_e64 {v(RS)}, |{v(S1)}|
    v_rsq_f32_e64 {v(RS+1)}, |{v(S1+1)}|
    s_cbranch_scc1 L_z0 ;!nd
    v_pk_mul_f32 {v(S3,2)}, {v(S3,2)}, {v(RS,2)}
    v_add_u32 {v(K+2)}, 0xffffff00, {v(vInv)}
    v_ashrrev_i32 {v(K)}, 31, {v(S3)}
    v_ashrrev_i32 {v(K+1)}, 31, {v(S3+1)}
    v_bitop3_b32 {v(K)}, {v(S3)}, {v(K)}, {s(sTop)} bitop3:0x1e
    v_bitop3_b32 {v(K+1)}, {v(S3+1)}, {v(K+1)}, {s(sTop)} bitop3:0x1e
    v_bfi_b32 {v(K)}, {s(sM7FF)}, {v(vInv)}, {v(K)}
    v_bfi_b32 {v(K+1)}, {s(sM7FF)}, {v(K+2)}, {v(K+1)}
    v_max_u32 {v(K+1)}, {v(K)}, {v(K+1)}
    v_pk_add_f32 {v(CC,2)}, {v(RS,2)}, 1.0 op_sel_hi:[1,0]
    v_mov_b32 {v(K)}, {s(sTag)}
    v_max_u32_dpp {v(K+1)}, {v(K+1)}, {v(K+1)} row_bcast:15 row_mask:0xa bank_mask:0xf
    v_pk_mul_f32 {v(VAR,2)}, {v(VAR,2)}, {v(CC,2)}
    s_cmp_lg_u32 {s(sW)}, 0
    v_max_u32_dpp {v(K+1)}, {v(K+1)}, {v(K+1)} row_bcast:31 row_mask:0xc bank_mask:0xf
    s_cbranch_scc1 L_nost ;!nd
    s_mov_b32 exec_lo, 0
    s_mov_b32 exec_hi, {s(sTop)}
    s_cmp_eq_u32 {s(sFast)}, 0
    s_cbranch_scc1 L_tabst_slow ;!nd
    buffer_store_dwordx2 {v(K,2)}, off, {WS}, {s(sTabSt)}
    L_tabst_back:
    s_mov_b64 exec, -1
    L_nost:
    v_readlane_b32 {s(sKey)}, {v(K+1)}, 63
    v_pk_mul_f32 {v(NM,2)}, {v(MM,2)}, {v(RS,2)}
    v_pk_fma_f32 {v(VAR,2)}, {v(VAR,2)}, {v(CC,2)}, {s(sEps,2)}
    ''')
    Z=t+18
    for c_ in range(4):
        a(f'v_pk_fma_f32 {v(Z+2*c_,2)}, {v(X+2*c_,2)}, {v(RS,2)}, {v(NM,2)} neg_lo:[0,0,1] neg_hi:[0,0,1]')
        if c_==0: a(f'v_rsq_f32_e64 {v(RS2)}, |{v(VAR)}|')
        if c_==1: a(f'v_rsq_f32_e64 {v(RS2+1)}, |{v(VAR+1)}|')
    for c_ in range(4):
        a(f'v_pk_add_f32 {v(X+2*c_,2)}, {v(X+2*c_,2)}, {v(Z+2*c_,2)}')
    for rho in (0,1):
        for k in (0,1):
            a(f'v_cvt_pk_bf16_f32 {v(LNP+2*rho+k)}, {v(Z+4*k+rho)}, {v(Z+4*k+2+rho)}')
    a(f'''
    ''')
    if cfg.pub0: a(f'''
    s_bitcmp0_b32 {s(sKey)}, 8
    s_cselect_b64 vcc, -1, 0
    s_andn2_b32 {s(sT+1)}, 0x600, {s(sKey)}
    s_lshr_b32 {s(sT+1)}, {s(sT+1)}, 5
    v_and_b32 {v(K)}, 0x3ff, {v(vXoff)}
    v_cndmask_b32 {v(LNP)}, {v(LNP)}, {v(LNP+2)}, vcc
    v_cndmask_b32 {v(LNP+1)}, {v(LNP+1)}, {v(LNP+3)}, vcc
    s_bfm_b64 exec, 16, {s(sT+1)}
    ds_write_b64 {v(K)}, {v(LNP,2)} offset:{L_ROW}
    s_mov_b64 exec, -1
    ''')
    a(f'''
    s_cmp_eq_u32 {s(sIt)}, 2
    s_cbranch_scc1 L_tab2e ;!nd
    v_mov_b32 {v(RS)}, {v(RS2)}
    v_mov_b32 {v(RS+1)}, {v(RS2+1)}
    L_z0:
    v_pk_mul_f32 {v(CC,2)}, {v(RS,2)}, {s(sC16,2)}
    L_z:
    ;@F
    ''')
    ZP=t; D0=t+4; D1=t+8
    a(f'v_pk_mul_f32 {v(NM,2)}, {v(MM,2)}, {v(CC,2)}')
    for c_ in range(4):
        a(f'v_pk_fma_f32 {v(Z+2*c_,2)}, {v(X+2*c_,2)}, {v(CC,2)}, {v(NM,2)} neg_lo:[0,0,1] neg_hi:[0,0,1]')
    for c_ in range(4): a(f'v_cvt_pk_f16_f32 {v(ZP+c_)}, {v(Z+2*c_)}, {v(Z+2*c_+1)}')
    a(f'''
    v_mfma_f32_16x16x16_f16 {v(D0,4)}, {v(A8,2)}, {v(ZP,2)}, 0
    v_mfma_f32_16x16x16_f16 {v(D1,4)}, {v(A8,2)}, {v(ZP+2,2)}, 0
    s_nop 6
    v_cvt_pk_f16_f32 {v(ZP)}, {v(D0)}, {v(D0+1)}
    v_cvt_pk_f16_f32 {v(ZP+1)}, {v(D1)}, {v(D1+1)}
    v_cvt_pk_f16_f32 {v(ZP+2)}, {v(D0+2)}, {v(D0+3)}
    v_cvt_pk_f16_f32 {v(ZP+3)}, {v(D1+2)}, {v(D1+3)}
    ds_write_b64 {v(vUW)}, {v(ZP,2)}
    ds_write_b64 {v(vUW)}, {v(ZP+2,2)} offset:1024
    ;@F
    s_waitcnt lgkmcnt(0)
    s_barrier
    ;@F
    ds_read_b64_tr_b16 {v(t,2)}, {v(vUR)}
    ds_read_b64_tr_b16 {v(t+2,2)}, {v(vUR)} offset:512
    ds_read_b64_tr_b16 {v(t+4,2)}, {v(vUR)} offset:1024
    ds_read_b64_tr_b16 {v(t+6,2)}, {v(vUR)} offset:1536
    s_cmp_ge_u32 {s(sW)}, {s(sIt)}
    s_cbranch_scc1 L_tg1 ;!nd
    buffer_load_dwordx2 {v(t+24,2)}, {v(vL8)}, {WS}, {s(sTabLd)} offen sc1
    {f'ds_read_b128 {v(LNP,4)}, {v(vTG)} offset:{L_ROW}' if cfg.pub0 else ''}
    L_tg1:
    L_tg2:
    s_waitcnt lgkmcnt(0)
    ;@F
    ''')
    P=t
    fft_core(t, t+4, t+8, t+16, t+8, P)
    def lstores(fl, ph=None):
        for r in range(4):
            if ph==0: a(f'v_and_b32 {v(P+r)}, -2, {v(P+r)}')
            if ph==1: a(f'v_or_b32 {v(P+r)}, 1, {v(P+r)}')
            a(f'buffer_store_dword {v(P+r)}, {v(vLst)}, {WS}, {s(sLst)} offen offset:{128*r} {fl}')
    TB=t+24
    W_=t+4
    a(f'''
    s_cmp_lg_u32 {s(sIt)}, 0
    s_cbranch_scc1 L_tab1e
    ''')
    lstores('',0)
    stamp()
    a(f'''
    s_branch {'L_flag0' if cfg.pub0 else 'L_pub'}
    L_tab1e:
    s_cmp_eq_u32 {s(sW)}, 0
    s_cbranch_scc1 L_tabw1
    s_branch L_tabbar
    L_tab2e:
    s_cmp_eq_u32 {s(sW)}, 0
    {'s_waitcnt lgkmcnt(0)' if cfg.pub0 else ''}
    {'s_barrier' if cfg.pub0 else ''}
    s_cbranch_scc0 L_tabbar
    {f'ds_read_b128 {v(LNP,4)}, {v(vTG)} offset:{L_ROW}' if cfg.pub0 else ''}
    s_branch L_tab
    L_tab:
    buffer_load_dwordx2 {v(TB,2)}, {v(vL8)}, {WS}, {s(sTabLd)} offen sc1
    L_tabw1:
    s_waitcnt vmcnt(0)
    v_cmp_ne_u32 vcc, {s(sTag)}, {v(TB)}
    ''')
    poll_branch('L_tab', cfg.slp_t, f'''s_cmp_lg_u32 {s(sIt)}, 0
        s_cselect_b32 {s(sT)}, 0, 1
        s_sub_u32 {s(sTry)}, {s(sTry)}, {s(sT)}
        s_cbranch_scc1 L_tab2''')
    a(f'''
    L_tabok:
    v_cmp_ne_u32 vcc, {s(sKey)}, {v(TB+1)}
    v_cmp_lt_u32 {s(sT,2)}, {s(sKey)}, {v(TB+1)}
    v_mov_b32 {v(TB)}, {L_FLAG}
    s_cmp_eq_u32 {s(sIt)}, 0
    s_cselect_b32 {s(sT)}, vcc_lo, {s(sT)}
    ''')
    if cfg.pub0: a(f'''
    s_cselect_b32 {s(sT+1)}, 1, {s(sT)}
    s_cmp_lg_u32 {s(sT+1)}, 0
    s_cbranch_scc1 L_np0 ;!nd
    v_mov_b32 {v(TB+1)}, {s(sKey)}
    s_waitcnt lgkmcnt(0)
    buffer_store_dwordx4 {v(LNP,4)}, {v(vTG)}, {WS}, {s(sSlot)} offen sc1
    s_mov_b64 exec, 1
    buffer_store_dword {v(TB+1)}, off, {WS}, {s(sSlot)} offset:3072 sc1
    s_mov_b64 exec, -1
    L_np0:
    ''')
    a(f'''
    v_mov_b32 {v(TB+1)}, {s(sT)}
    ds_write_b32 {v(TB)}, {v(TB+1)}
    s_waitcnt lgkmcnt(0)
    s_barrier
    s_branch L_tabgot
    L_tabbar:
    v_mov_b32 {v(TB)}, {L_FLAG}
    s_barrier
    ds_read_b32 {v(TB+1)}, {v(TB)}
    s_waitcnt lgkmcnt(0)
    v_readfirstlane_b32 {s(sT)}, {v(TB+1)}
    L_tabgot:
    s_cmp_eq_u32 {s(sIt)}, 0
    s_cbranch_scc1 L_fastchk ;!nd
    s_mov_b32 {s(sT+9)}, 64
    s_cmp_lg_u32 {s(sT)}, 0
    s_cbranch_scc1 L_winback ;!nd
    L_pub:
    s_andn2_b32 {s(sT)}, {s(sM7FF)}, {s(sKey)}      ; idx
    s_lshr_b32 {s(sT+9)}, {s(sT)}, 8                ; s1
    s_bitcmp1_b32 {s(sT+9)}, 0
    s_cselect_b64 vcc, -1, 0
    s_lshl_b32 {s(sT+1)}, {s(sT+9)}, 3
    s_and_b32 {s(sT+1)}, {s(sT+1)}, 0x30
    {f'v_cndmask_b32 {v(W_)}, {v(LNP)}, {v(LNP+2)}, vcc' if not cfg.pub0 else ''}
    {f'v_cndmask_b32 {v(W_+1)}, {v(LNP+1)}, {v(LNP+3)}, vcc' if not cfg.pub0 else ''}
    v_and_b32 {v(W_+2)}, 0x3ff, {v(vXoff)}
    s_bfm_b64 exec, 16, {s(sT+1)}
    {f'buffer_store_dwordx2 {v(W_,2)}, {v(W_+2)}, {WS}, {s(sSlot)} offen sc1' if not cfg.pub0 else ''}
    s_cmp_lg_u32 {s(sW)}, 0
    s_cbranch_scc1 L_nohdr
    v_mov_b32 {v(W_+8)}, {s(sKey)}
    v_cndmask_b32 {v(W_+9)}, {v(MM)}, {v(MM+1)}, vcc
    v_cndmask_b32 {v(W_+10)}, {v(RS2)}, {v(RS2+1)}, vcc
    v_mov_b32 {v(W_+11)}, {s(sKey)}
    {f'buffer_store_dwordx4 {v(W_+8,4)}, off, {WS}, {s(sSlot)} offset:3072 sc1' if not cfg.pub0 else ''}
    buffer_store_dwordx4 {v(W_+8,4)}, off, {WS}, {s(sSlot)} offset:3200 sc1
    L_nohdr:
    ''')
    for c_ in range(4): a(f'v_cndmask_b32 {v(W_+4+c_)}, {v(X+2*c_)}, {v(X+2*c_+1)}, vcc')
    a(f'''
    v_lshlrev_b32 {v(W_+2)}, 1, {v(W_+2)}
    buffer_store_dwordx4 {v(W_+4,4)}, {v(W_+2)}, {WS}, {s(sSlot)} offen offset:1024 sc1
    s_mov_b64 exec, -1
    s_cmp_eq_u32 {s(sIt)}, 0
    s_cbranch_scc1 L_flag0
    L_winback:
    s_cmp_eq_u32 {s(sIt)}, 2
    s_cbranch_scc1 L_fin
    s_add_u32 {s(sSlot)}, {s(sSlot)}, {SLOTR}
    ''')
    lstores('',1)
    stamp()
    a(f'''
    s_waitcnt vmcnt(0)
    s_branch L_tabdone
    L_flag0:
    ;@F
    v_mov_b32 {v(t+22)}, {s(sTag)}
    v_mov_b32 {v(t+23)}, {s(sKey)}
    s_waitcnt vmcnt(0)
    ;@F
    s_cmp_eq_u32 {s(sW)}, 0
    s_barrier
    s_cbranch_scc0 L_flag1
    s_mov_b64 exec, 1
    buffer_store_dwordx2 {v(t+22,2)}, off, {WS}, {s(sTabSt)}
    s_mov_b64 exec, -1
    L_flag1:
    v_lshlrev_b32 {v(vTG)}, 4, {v(vLane)}
    ''')
    if cfg.xpos==0: xin_consts(t+4)
    w=BC+8
    a(f'''
    v_mov_b32 {v(w+1)}, 0x3f803f80
    v_dot2_f32_bf16 {v(w)}, {v(WV)}, {v(w+1)}, 0
    v_dot2_f32_bf16 {v(w)}, {v(WV+1)}, {v(w+1)}, {v(w)}
    v_dot2_f32_bf16 {v(w)}, {v(WV+2)}, {v(w+1)}, {v(w)}
    v_dot2_f32_bf16 {v(w)}, {v(WV+3)}, {v(w+1)}, {v(w)}
    v_lshlrev_b32 {v(WV)}, 16, {v(BC+4)}
    v_and_b32 {v(WV+1)}, 0xffff0000, {v(BC+4)}
    v_lshlrev_b32 {v(WV+2)}, 16, {v(BC+5)}
    v_add_f32_dpp {v(w)}, {v(w)}, {v(w)} row_ror:8 {DPP}
    v_and_b32 {v(WV+3)}, 0xffff0000, {v(BC+5)}
    v_mul_f32 {v(WV)}, 0x44000000, {v(WV)}
    v_add_f32_dpp {v(w)}, {v(w)}, {v(w)} row_ror:4 {DPP}
    v_mul_f32 {v(WV+1)}, 0x44000000, {v(WV+1)}
    v_mul_f32 {v(WV+2)}, 0x44000000, {v(WV+2)}
    v_add_f32_dpp {v(w)}, {v(w)}, {v(w)} row_ror:2 {DPP}
    v_mul_f32 {v(WV+3)}, 0x44000000, {v(WV+3)}
    v_add_f32_dpp {v(w)}, {v(w)}, {v(w)} row_ror:1 {DPP}
    v_add_f32_dpp {v(w)}, {v(w)}, {v(w)} row_bcast:15 row_mask:0xa bank_mask:0xf
    v_add_f32_dpp {v(w)}, {v(w)}, {v(w)} row_bcast:31 row_mask:0xc bank_mask:0xf
    v_readlane_b32 {s(sT)}, {v(w)}, 63
    ''')
    for k in range(4): a(f'v_subrev_f32 {v(WV+k)}, {s(sT)}, {v(WV+k)}')
    a(f'''
    s_cmp_eq_u32 {s(sW)}, 0
    s_cbranch_scc1 L_tab
    s_branch L_tabbar
    L_fastchk:
    s_cmp_eq_u32 {s(sT)}, 0
    s_cselect_b32 {s(sFast)}, 1, 0
    L_tabdone:
    s_cmp_eq_u32 {s(sFast)}, 0
    s_cbranch_scc1 L_slow
    L_slowback:
    ;@F
    s_cmp_lt_u32 {s(sJ)}, 8
    s_cbranch_scc0 L_y
    s_branch L_yself
    L_y:
    buffer_load_dwordx4 {v(t,4)}, {v(vLld)}, {WS}, {s(sLld)} offen sc1
    s_waitcnt vmcnt(0)
    ds_write_b128 {v(vYIW)}, {v(t,4)}
    ''')
    phchk(range(t,t+4), t+8)
    poll_branch('L_y', cfg.slp_l, mask=True)
    a('L_yjoin:')
    stamp()
    a(f'''
    s_cmp_lg_u32 {s(sT+12)}, 0
    s_cbranch_scc1 L_noxf
    s_lshl_b32 {s(sT+12)}, {s(sX)}, 7
    s_add_u32 {s(sT+12)}, {s(sT+12)}, {TABG}
    v_lshrrev_b32 {v(t+8)}, 1, {v(vL8)}
    v_mov_b32 {v(t+9)}, {s(sTag)}
    s_mov_b32 exec_hi, 0
    buffer_store_dword {v(t+9)}, {v(t+8)}, {WS}, {s(sT+12)} offen sc1
    s_mov_b64 exec, -1
    L_noxf:
    s_cmp_eq_u32 {s(sIt)}, 0
    s_cbranch_scc1 L_nohl
    v_and_b32 {v(BC)}, 7, {v(vLane)}
    v_lshlrev_b32 {v(BC)}, 12, {v(BC)}
    s_mov_b32 {s(sT+10)}, {SLOT}
    s_mov_b64 exec, 0xff
    buffer_load_dwordx4 {v(LNP,4)}, {v(BC)}, {WS}, {s(sT+10)} offen offset:3200 sc1
    s_mov_b64 exec, -1
    L_nohl:
    ''')
    A0,A1=t,t+4; P0,Q0,P1,Q1=t+8,t+12,t+16,t+20
    a(f'''
    s_waitcnt lgkmcnt(0)
    s_barrier
    ;@F
    ds_read_b64_tr_b16 {v(A0,2)}, {v(vYIR)}
    ds_read_b64_tr_b16 {v(A0+2,2)}, {v(vYIR)} offset:{16*YIS}
    ds_read_b64_tr_b16 {v(A1,2)}, {v(vYIR)} offset:8
    ds_read_b64_tr_b16 {v(A1+2,2)}, {v(vYIR)} offset:{16*YIS+8}
    s_add_u32 {s(sTabLd)}, {s(sTabLd)}, {ARGR}
    s_add_u32 {s(sTabSt)}, {s(sTabSt)}, {ARGR}
    s_waitcnt lgkmcnt(2)
    v_mfma_f32_16x16x32_f16 {v(P0,4)}, {v(A0,4)}, {v(YC,4)}, 0
    v_mfma_f32_16x16x32_f16 {v(Q0,4)}, {v(A0,4)}, {v(YS,4)}, 0
    s_waitcnt lgkmcnt(0)
    v_mfma_f32_16x16x32_f16 {v(P1,4)}, {v(A1,4)}, {v(YC,4)}, 0
    v_mfma_f32_16x16x32_f16 {v(Q1,4)}, {v(A1,4)}, {v(YS,4)}, 0
    ''')
    for P_,Q_ in ((P0,Q0),(P1,Q1)):
        for h in (0,2):
            a(f'v_pk_add_f32 {v(P_+h,2)}, {v(P_+h,2)}, {v(Q_+h,2)} op_sel:[0,1] op_sel_hi:[1,0] neg_hi:[0,1]')
    a(f'''
    v_cvt_pk_f16_f32 {v(t)}, {v(P0)}, {v(P0+1)}
    v_cvt_pk_f16_f32 {v(t+1)}, {v(P0+2)}, {v(P0+3)}
    v_cvt_pk_f16_f32 {v(t+2)}, {v(P1)}, {v(P1+1)}
    v_cvt_pk_f16_f32 {v(t+3)}, {v(P1+2)}, {v(P1+3)}
    ''')
    if cfg.gre:
        for r in range(4): a(f'v_bfi_b32 {v(t+r)}, 1, {s(sPh)}, {v(t+r)}')
    a(f'''
    ds_write_b128 {v(vYW)}, {v(t,4)}
    ;@F
    s_waitcnt lgkmcnt(0)
    s_barrier
    ;@F
    ds_read_b128 {v(t+4,4)}, {v(vYR)}
    s_cmp_lg_u32 {s(sIt)}, 0
    s_cbranch_scc1 L_hdr
    ''')
    xfl=f'''v_and_b32 {v(t+24)}, 7, {v(vLane)}
    v_lshlrev_b32 {v(t+24)}, 7, {v(t+24)}
    s_mov_b32 {s(sT+10)}, {TABG}
    v_mov_b32 {v(t+20)}, {s(sTag)}
    s_mov_b64 exec, 0xff
    buffer_load_dword {v(t+20)}, {v(t+24)}, {WS}, {s(sT+10)} offen sc1
    s_mov_b64 exec, -1'''
    if cfg.gw in (1,2): a(xfl)
    a(f'''
    s_waitcnt lgkmcnt(0)
    buffer_store_dwordx4 {v(t+4,4)}, {v(vGst)}, {WS}, {s(sG0)} offen sc1
    ''')
    stamp()
    a(f'''
    {xfl if cfg.gw==3 else ''}
    {g2late() if cfg.g2pos==3 else ''}
    {xfl if not cfg.gw else ''}
    ''')
    if cfg.xpos==1: xin_consts(t+8)
    if cfg.gw: a(f's_waitcnt vmcnt({[0,2,1,1][cfg.gw]})\ns_branch L_tg0c')
    a('L_tg0w:\ns_waitcnt vmcnt(0)\nL_tg0c:\n;@F')
    a(f'v_cmp_ne_u32 vcc, {s(sTag)}, {v(t+20)}')
    a(f'''
    s_cbranch_vccnz L_tg0_r ;!nd
    ''')
    if cfg.g2pos==4: a(f'''
    buffer_load_dwordx4 {v(t,4)}, {v(vGld)}, {WS}, {s(sG0)} offen sc1
    buffer_load_dwordx4 {v(t+4,4)}, {v(vGld)}, {WS}, {s(sG4)} offen sc1
    {g2late()}
    s_cmp_lg_u32 {s(sMir)}, 0
    s_waitcnt vmcnt(1)
    s_branch L_gw2
    ''')
    else: a('s_branch L_g')
    a(f'''
    L_g:
    ''')
    C0,C1=t,t+4
    a(f'''
    buffer_load_dwordx4 {v(C0,4)}, {v(vGld)}, {WS}, {s(sG0)} offen sc1
    buffer_load_dwordx4 {v(C1,4)}, {v(vGld)}, {WS}, {s(sG4)} offen sc1
    L_gw:
    s_cmp_lg_u32 {s(sMir)}, 0
    s_waitcnt vmcnt(0)
    L_gw2:
    s_cbranch_scc1 L_xmir ;!nd
    ''')
    E0,E1=t+8,t+12
    a(f'''
    v_mfma_f32_16x16x16_f16 {v(E0,4)}, {v(XA,2)}, {v(C0,2)}, 0
    v_mfma_f32_16x16x16_f16 {v(E1,4)}, {v(XA,2)}, {v(C0+2,2)}, 0
    v_mfma_f32_16x16x16_f16 {v(E0,4)}, {v(XA+2,2)}, {v(C1,2)}, {v(E0,4)}
    v_mfma_f32_16x16x16_f16 {v(E1,4)}, {v(XA+2,2)}, {v(C1+2,2)}, {v(E1,4)}
    s_branch L_xjoin ;!nd
    L_xmir:
    ''')
    a.hist=[]
    a(f'''
    v_mfma_f32_16x16x16_f16 {v(E0,4)}, {v(XA,2)}, {v(C0+2,2)}, 0
    v_mfma_f32_16x16x16_f16 {v(E1,4)}, {v(XA,2)}, {v(C0,2)}, 0
    v_mfma_f32_16x16x16_f16 {v(E0,4)}, {v(XA+2,2)}, {v(C1+2,2)}, {v(E0,4)}
    v_mfma_f32_16x16x16_f16 {v(E1,4)}, {v(XA+2,2)}, {v(C1,2)}, {v(E1,4)}
    L_xjoin:
    ''')
    if cfg.gre: phchk(range(t,t+8), t+16)
    else: maxchk(range(t,t+8), t+16)
    poll_branch('L_g', cfg.slp_g, mask=True)
    stamp()
    a(f'''
    s_mov_b32 {s(sIt)}, 1
    s_mov_b32 {s(sPh)}, -1
    {f's_add_u32 {s(sG0)}, {s(sG0)}, {GR}' if not cfg.gre else ''}
    {f's_add_u32 {s(sG4)}, {s(sG4)}, {GR}' if not cfg.gre else ''}
    L_apply:
    s_cmp_eq_u32 {s(sNx)}, 0
    v_pk_fma_f32 {v(X,2)}, {v(E0,2)}, {v(vSc0,2)}, {v(X,2)}
    v_pk_fma_f32 {v(X+2,2)}, {v(E0+2,2)}, {s(sSc,2)}, {v(X+2,2)}
    v_pk_fma_f32 {v(X+4,2)}, {v(E1,2)}, {s(sSc,2)}, {v(X+4,2)}
    v_pk_fma_f32 {v(X+6,2)}, {v(E1+2,2)}, {s(sSc,2)}, {v(X+6,2)}
    s_cbranch_scc1 L_top ;!nd
    s_branch L_corr
    ''')
    a(f'''
    L_yself:
    buffer_load_dwordx4 {v(t,4)}, {v(vLld)}, {WS}, {s(sLld)} offen sc1
    buffer_load_dwordx4 {v(t+4,4)}, {v(vLldM)}, {WS}, {s(sLld)} offen sc1
    s_waitcnt vmcnt(0)
    ''')
    phchk(range(t,t+8), t+8)
    poll_branch('L_yself', cfg.slp_l, mask=True)
    a(f'''
    s_bitcmp1_b32 {s(sW)}, 0
    s_cbranch_scc1 L_yself4
    ''')
    for k in range(4): a(f'v_pk_add_f16 {v(t+k)}, {v(t+k)}, {v(t+7-k)} neg_hi:[0,1]')
    a(f'ds_write_b128 {v(vYIW)}, {v(t,4)}\ns_branch L_yjoin\nL_yself4:')
    for k in range(4): a(f'v_pk_add_f16 {v(t+k)}, {v(t+k)}, {v(t+7-k)} op_sel:[1,1] op_sel_hi:[0,0] neg_hi:[1,0]')
    a(f'ds_write_b128 {v(vYIW)}, {v(t,4)}\ns_branch L_yjoin')
    H=LNP
    sIdx=sT+11
    KA=BC+6; EK=BC+8; vYP=BC+9; SEL=BC+10; vDW,vDR=BC+12,BC+13
    YR=t+8; YL=t+12; YD=t+20
    gl=f'buffer_load_dwordx4 {v(C0,4)}, {v(vGld)}, {WS}, {s(sG0)} offen sc1\nbuffer_load_dwordx4 {v(C1,4)}, {v(vGld)}, {WS}, {s(sG4)} offen sc1'
    def hdrpoll(lbl, slp, issued=False, after=''):
        if not issued: a(f"""
        v_and_b32 {v(BC)}, 7, {v(vLane)}
        v_lshlrev_b32 {v(BC)}, 12, {v(BC)}
        """)
        a(f"""
        s_mov_b64 exec, 0xff
        {f's_waitcnt vmcnt({0 if cfg.gre else 1})' if issued else ''}
        {f's_branch {lbl}_c' if issued else ''}
        {lbl}:
        buffer_load_dwordx4 {v(H,4)}, {v(BC)}, {WS}, {s(sT+10)} offen offset:3200 sc1
        s_waitcnt vmcnt(0)
        {lbl}_c:
        """)
        maxchk(range(H,H+4), t+17)
        poll_branch(lbl, slp, skip=True)
        a('s_mov_b64 exec, -1')
        if after: a(after); stamp()
        a(f"""
        v_max_u32_dpp {v(H+3)}, {v(H)}, {v(H)} row_half_mirror {DPP}
        v_max_u32_dpp {v(H+3)}, {v(H+3)}, {v(H+3)} quad_perm:[1,0,3,2] {DPP}
        v_max_u32_dpp {v(H+3)}, {v(H+3)}, {v(H+3)} quad_perm:[2,3,0,1] {DPP}
        v_readfirstlane_b32 {s(sIdx)}, {v(H+3)}
        """)
    def owner():
        a(f"""
        s_sub_u32 {s(sT)}, 2047, {s(sIdx)}
        s_add_u32 {s(sT+1)}, {s(sT)}, 256
        v_cmp_eq_u32 vcc, {s(sT)}, {v(vInv)}
        v_cmp_eq_u32 {s(sT+2,2)}, {s(sT+1)}, {v(vInv)}
        v_cndmask_b32 {v(BC)}, 0, 1.0, vcc
        v_cndmask_b32 {v(BC+1)}, 0, 1.0, {s(sT+2,2)}
        """)
    gst=f's_waitcnt lgkmcnt(0)\nbuffer_store_dwordx4 {v(t+4,4)}, {v(vGst)}, {WS}, {s(sG0)} offen sc1'
    a(f'L_hdr:')
    if not cfg.gre: a(gst); stamp()
    hdrpoll('L_hdrp', 2, True, gst if cfg.gre else '')
    a(f"""
    v_and_b32 {v(vYP)}, 0x3ff, {v(vXoff)}
    v_lshlrev_b32 {v(t+16)}, 1, {v(vYP)}
    s_andn2_b32 {s(sIdx)}, {s(sM7FF)}, {s(sIdx)}
    s_and_b32 {s(sT)}, {s(sIdx)}, 7
    s_lshl_b32 {s(sT+1)}, {s(sT)}, 12
    s_add_u32 {s(sT+10)}, {s(sT+10)}, {s(sT+1)}
    buffer_load_dwordx4 {v(BC+2,4)}, {v(t+16)}, {WS}, {s(sT+10)} offen offset:1024 sc1
    v_readlane_b32 {s(sT+13)}, {v(H+1)}, {s(sT)}
    v_readlane_b32 {s(sT+14)}, {v(H+2)}, {s(sT)}
    v_mul_u32_u24 {v(t+17)}, {s(sIdx)}, {v(AD)}
    v_and_b32 {v(t+17)}, 0x7ff, {v(t+17)}
    v_cvt_f32_u32 {v(t+17)}, {v(t+17)}
    v_mul_f32 {v(t+17)}, {fbits(1/2048)}, {v(t+17)}
    v_cos_f32 {v(t+18)}, {v(t+17)}
    v_sin_f32 {v(t+19)}, {v(t+17)}
    v_and_b32 {v(t+17)}, 0x22, {v(vLane)}
    v_cvt_pk_f16_f32 {v(t+18)}, {v(t+18)}, {v(t+19)}
    v_cmp_eq_u32 vcc, 0, {v(t+17)}
    v_mov_b32 {v(KA)}, {s(sT+14)}
    v_mul_f32 {v(KA)}, {s(sC16)}, {v(KA)}
    v_cndmask_b32 {v(AD)}, 0, {v(t+18)}, vcc
    v_cmp_eq_u32 vcc, 2, {v(t+17)}
    v_mul_f32 {v(EK)}, {v(KA)}, {v(KA)}
    v_mul_f32 {v(EK)}, {s(sEps)}, {v(EK)}
    v_cndmask_b32 {v(AD+1)}, 0, {v(t+18)}, vcc
    """)
    owner()
    a(f"""
    v_lshlrev_b32 {v(t+17)}, 4, {v(vLane)}
    v_mov_b32 {v(t+18)}, 0x3f80
    v_and_b32 {v(t+17)}, 16, {v(t+17)}
    v_lshlrev_b32 {v(t+18)}, {v(t+17)}, {v(t+18)}
    v_and_b32 {v(t+17)}, 2, {v(vLane)}
    v_cmp_eq_u32 vcc, 0, {v(t+17)}
    v_lshl_add_u32 {v(vYP)}, {v(vQ)}, 10, {v(vYP)}
    s_lshl_b32 {s(sT+3)}, {s(sW)}, 8
    v_cndmask_b32 {v(SEL)}, 0, {v(t+18)}, vcc
    v_cndmask_b32 {v(SEL+1)}, {v(t+18)}, 0, vcc
    s_add_u32 {s(sT+3)}, {s(sT+3)}, {L_DH}
    v_lshl_add_u32 {v(vDR)}, {v(vN)}, 4, {s(sT+3)}
    v_and_b32 {v(t+17)}, 1, {v(vQ)}
    v_lshl_add_u32 {v(vDR)}, {v(t+17)}, 11, {v(vDR)}
    v_cmp_eq_u32 vcc, 0, {v(vQ)}
    v_add_u32 {v(vDW)}, {L_DH}, {v(vLst)}
    s_mov_b32 {s(sYo)}, {YP}
    s_lshl_b32 {s(sYh)}, {s(sX)}, 7
    s_add_u32 {s(sYh)}, {s(sYh)}, {YHINT}
    s_lshl_b32 {s(sSg)}, {s(sW)}, 30
    s_and_b32 {s(sSg)}, {s(sSg)}, {s(sTop)}
    s_xor_b32 {s(sSg)}, {s(sSg)}, {s(sDsc)}
    s_mov_b32 {s(sNx)}, 2
    v_cndmask_b32 {v(KA+1)}, 0, {v(KA)}, vcc
    s_waitcnt vmcnt(0)
    {gl if not cfg.hold else ''}
    L_basew:
    """)
    maxchk(range(BC+2,BC+6), t+17)
    a('s_cbranch_vccnz L_base_r ;!nd')
    for k in range(4): a(f'v_subrev_f32 {v(BC+2+k)}, {s(sT+13)}, {v(BC+2+k)}')
    for k in range(4): a(f'v_mul_f32 {v(BC+2+k)}, {v(KA)}, {v(BC+2+k)}')
    a(f"""
    s_branch {'L_ywait' if cfg.hold else 'L_gw'}
    L_corr:
    s_mov_b32 {s(sIt)}, 2
    s_mov_b32 {s(sNx)}, 0
    {'s_branch L_yc' if cfg.hold else ''}
    L_ywait:
    s_add_u32 {s(sT+2)}, {s(sYo)}, 4096
    s_cmp_lg_u32 {s(sW)}, 0
    s_cbranch_scc1 L_hintb
    s_movk_i32 {s(sTry)}, 500
    v_lshrrev_b32 {v(t)}, 1, {v(vL8)}
    """)
    if cfg.own: a(f"""
    s_cmp_eq_u32 {s(sIt)}, 3
    s_cbranch_scc1 L_hint
    s_lshl_b32 {s(sT)}, {s(sJ)}, 2
    v_mov_b32 {v(t)}, {s(sT)}
    """)
    a(f"""
    L_hint:
    buffer_load_dword {v(t+1)}, {v(t)}, {WS}, {s(sYh)} offen sc1
    s_waitcnt vmcnt(0)
    v_cmp_ne_u32 vcc, {s(sTag)}, {v(t+1)}
    """)
    poll_branch('L_hint', 1, giveup='L_hintb')
    if cfg.tim_y: a(f's_sleep {cfg.tim_y}')
    a(f"""
    L_hintb:
    s_barrier
    """)
    if cfg.hold: a(f"""
    s_cmp_eq_u32 {s(sIt)}, 3
    s_cbranch_scc1 L_yv3
    {gl}
    {f's_sleep {cfg.tim_gy}' if cfg.tim_gy else ''}
    buffer_load_dwordx2 {v(YD,2)}, {v(vYP)}, {WS}, {s(sYo)} offen sc1
    buffer_load_dwordx2 {v(YD+2,2)}, {v(vYP)}, {WS}, {s(sT+2)} offen sc1
    s_cmp_lg_u32 {s(sMir)}, 0
    s_waitcnt vmcnt(2)
    s_branch L_gw2
    L_yv3:
    {f's_sleep {cfg.tim_y3}' if cfg.tim_y3 else ''}
    s_branch L_yv
    """)
    a(f"""
    L_yv:
    buffer_load_dwordx2 {v(YD,2)}, {v(vYP)}, {WS}, {s(sYo)} offen sc1
    buffer_load_dwordx2 {v(YD+2,2)}, {v(vYP)}, {WS}, {s(sT+2)} offen sc1
    L_yc:
    s_waitcnt vmcnt(0)
    v_mfma_f32_16x16x16_bf16 {v(YR,4)}, {v(SEL,2)}, {v(YD,2)}, 0
    v_mfma_f32_16x16x16_bf16 {v(YR,4)}, {v(SEL,2)}, {v(YD+2,2)}, {v(YR,4)}
    """)
    maxchk(range(YD,YD+4), t+17)
    poll_branch('L_yv', 1, mask=True)
    stamp()
    own=[f'v_pk_fma_f32 {v(X,2)}, {v(BC,2)}, {v(YR,2)}, {v(X,2)} op_sel:[0,0,0] op_sel_hi:[1,0,1]',
         f'v_pk_fma_f32 {v(X+2,2)}, {v(BC,2)}, {v(YR,2)}, {v(X+2,2)} op_sel:[0,1,0] op_sel_hi:[1,1,1]',
         f'v_pk_fma_f32 {v(X+4,2)}, {v(BC,2)}, {v(YR+2,2)}, {v(X+4,2)} op_sel:[0,0,0] op_sel_hi:[1,0,1]',
         f'v_pk_fma_f32 {v(X+6,2)}, {v(BC,2)}, {v(YR+2,2)}, {v(X+6,2)} op_sel:[0,1,0] op_sel_hi:[1,1,1]']
    s1,s2=t+20,t+21
    a(f"""
    s_cmp_eq_u32 {s(sIt)}, 3
    s_cbranch_scc1 L_fin3
    L_pass:
    v_pk_fma_f32 {v(YL,2)}, {v(YR,2)}, {v(KA,2)}, {v(BC+2,2)} op_sel:[0,1,0]
    v_pk_fma_f32 {v(YL+2,2)}, {v(YR+2,2)}, {v(KA,2)}, {v(BC+4,2)} op_sel:[0,1,0]
    v_cvt_pk_f16_f32 {v(YL)}, {v(YL)}, {v(YL+1)}
    v_cvt_pk_f16_f32 {v(YL+1)}, {v(YL+2)}, {v(YL+3)}
    ds_write_b64 {v(vUW)}, {v(YL,2)}
    {own[0]}
    {own[1]}
    {own[2]}
    {own[3]}
    s_cmp_gt_u32 {s(sW)}, 3
    s_waitcnt lgkmcnt(0)
    s_barrier
    s_cbranch_scc1 L_dhb ;!nd
    ds_read_b64_tr_b16 {v(t+8,2)}, {v(vUR)}
    ds_read_b64_tr_b16 {v(t+10,2)}, {v(vUR)} offset:512
    v_mov_b32 {v(t+22)}, 0x3c003c00
    s_waitcnt lgkmcnt(0)
    ;@F
    """)
    XR=t+8; U_=t+12; V_=YC; PP=LNP
    Ur,Ui=U_,U_+4; Vr,Vi=V_,V_+4
    a(f"""
    v_mfma_f32_16x16x32_f16 {v(Ur,4)}, {v(XR,4)}, {v(B1C,4)}, 0
    v_mfma_f32_16x16x32_f16 {v(Ui,4)}, {v(XR,4)}, {v(B1N,4)}, 0
    v_dot2_f32_f16 {v(s1)}, {v(XR)}, {v(t+22)}, 0
    v_dot2_f32_f16 {v(s2)}, {v(XR)}, {v(XR)}, 0
    v_dot2_f32_f16 {v(s1)}, {v(XR+1)}, {v(t+22)}, {v(s1)}
    v_dot2_f32_f16 {v(s2)}, {v(XR+1)}, {v(XR+1)}, {v(s2)}
    v_dot2_f32_f16 {v(s1)}, {v(XR+2)}, {v(t+22)}, {v(s1)}
    v_dot2_f32_f16 {v(s2)}, {v(XR+2)}, {v(XR+2)}, {v(s2)}
    v_dot2_f32_f16 {v(s1)}, {v(XR+3)}, {v(t+22)}, {v(s1)}
    v_dot2_f32_f16 {v(s2)}, {v(XR+3)}, {v(XR+3)}, {v(s2)}
    v_pk_mul_f32 {v(Vi,2)}, {v(Ur,2)}, {v(TWS,2)}
    v_pk_mul_f32 {v(Vi+2,2)}, {v(Ur+2,2)}, {v(TWS+2,2)}
    v_pk_mul_f32 {v(Vr,2)}, {v(Ui,2)}, {v(TWS,2)}
    v_permlane32_swap_b32 {v(s1)}, {v(s2)}
    v_pk_mul_f32 {v(Vr+2,2)}, {v(Ui+2,2)}, {v(TWS+2,2)}
    v_add_f32 {v(s1)}, {v(s1)}, {v(s2)}
    v_pk_fma_f32 {v(Vr,2)}, {v(Ur,2)}, {v(TWC,2)}, {v(Vr,2)}
    v_pk_fma_f32 {v(Vi,2)}, {v(Ui,2)}, {v(TWC,2)}, {v(Vi,2)} neg_lo:[0,0,1] neg_hi:[0,0,1]
    v_add_f32_dpp {v(s1)}, {v(s1)}, {v(s1)} row_ror:8 {DPP}
    v_pk_fma_f32 {v(Vr+2,2)}, {v(Ur+2,2)}, {v(TWC+2,2)}, {v(Vr+2,2)}
    v_pk_fma_f32 {v(Vi+2,2)}, {v(Ui+2,2)}, {v(TWC+2,2)}, {v(Vi+2,2)} neg_lo:[0,0,1] neg_hi:[0,0,1]
    v_add_f32_dpp {v(s1)}, {v(s1)}, {v(s1)} row_ror:4 {DPP}
    v_cvt_pk_f16_f32 {v(PP)}, {v(Vr)}, {v(Vi)}
    v_cvt_pk_f16_f32 {v(PP+1)}, {v(Vr+1)}, {v(Vi+1)}
    v_add_f32_dpp {v(s1)}, {v(s1)}, {v(s1)} row_ror:2 {DPP}
    v_cvt_pk_f16_f32 {v(PP+2)}, {v(Vr+2)}, {v(Vi+2)}
    v_cvt_pk_f16_f32 {v(PP+3)}, {v(Vr+3)}, {v(Vi+3)}
    v_add_f32_dpp {v(s1)}, {v(s1)}, {v(s1)} row_ror:1 {DPP}
    v_mfma_f32_16x16x32_f16 {v(Ur,4)}, {v(A2R,4)}, {v(PP,4)}, 0
    v_mfma_f32_16x16x32_f16 {v(Ui,4)}, {v(A2I,4)}, {v(PP,4)}, 0
    v_add_f32_dpp {v(s1)}, {v(s1)}, {v(s1)} row_bcast:15 row_mask:0xa bank_mask:0xf
    v_mul_f32 {v(s1)}, {s(sK512)}, {v(s1)}
    v_readlane_b32 {s(sT+2)}, {v(s1)}, 63
    v_readlane_b32 {s(sT+1)}, {v(s1)}, 31
    v_add_f32 {v(s2)}, {s(sT+2)}, {v(EK)}
    v_mov_b32 {v(s1)}, {s(sT+1)}
    v_fma_f32 {v(s1)}, -{v(s1)}, {v(s1)}, {v(s2)}
    v_rsq_f32_e64 {v(s1)}, |{v(s1)}|
    v_mul_f32 {v(s1)}, {s(sSg)}, {v(s1)}
    """)
    for k in range(4): a(f'v_pk_mul_f32 {v(U_+2*k,2)}, {v(U_+2*k,2)}, {v(s1,2)} op_sel_hi:[1,0]')
    for r in range(4): a(f'v_cvt_pk_f16_f32 {v(PP+r)}, {v(Ur+r)}, {v(Ui+r)}')
    a(f"""
    ds_write2_b32 {v(vDW)}, {v(PP)}, {v(PP+1)} offset0:0 offset1:32
    ds_write2_b32 {v(vDW)}, {v(PP+2)}, {v(PP+3)} offset0:64 offset1:96
    s_waitcnt lgkmcnt(0)
    L_dhb:
    s_barrier
    ds_read_b128 {v(t+16,4)}, {v(vDR)}
    s_waitcnt lgkmcnt(0)
    v_mfma_f32_16x16x16_f16 {v(E0,4)}, {v(AD,2)}, {v(t+16,2)}, 0
    v_mfma_f32_16x16x16_f16 {v(E1,4)}, {v(AD,2)}, {v(t+18,2)}, 0
    s_nop 4
    s_branch L_apply ;!nd
    """)
    a('L_fin:')
    for rho in (0,1):
        for k in (0,1):
            a(f'v_cvt_pk_bf16_f32 {v(t+2*rho+k)}, {v(X+4*k+rho)}, {v(X+4*k+2+rho)}')
    a(f"""
    v_lshlrev_b32 {v(t+16)}, 1, {v(vQ)}
    v_mov_b32 {v(t+19)}, 0x200000
    s_sub_u32 {s(sT)}, {s(sT+9)}, 1
    v_cmp_eq_u32 vcc, {s(sT+9)}, {v(t+16)}
    v_cmp_eq_u32 {s(sT+2,2)}, {s(sT)}, {v(t+16)}
    v_cndmask_b32 {v(t+17)}, {v(vXoff)}, {v(t+19)}, vcc
    v_cndmask_b32 {v(t+18)}, {v(vXoff)}, {v(t+19)}, {s(sT+2,2)}
    buffer_store_dwordx2 {v(t,2)}, {v(vXoff if cfg.twice else t+17)}, {OS}, {s(sRow0)} offen sc1
    buffer_store_dwordx2 {v(t+2,2)}, {v(vXoff if cfg.twice else t+18)}, {OS}, {s(sRow1)} offen sc1
    """)
    if cfg.wb==3: a(f"""
    s_xor_b32 {s(sT+4)}, {s(sJ)}, 9
    s_or_b32 {s(sT+4)}, {s(sT+4)}, {s(sW)}
    s_cbranch_scc1 L_nwb3
    {f's_sleep {cfg.wbd}' if cfg.wbd else ''}
    buffer_wbl2 sc1
    L_nwb3:
    """)
    a(f"""
    v_cndmask_b32 {v(t+24)}, {v(t+19)}, {v(vXoff)}, vcc
    v_cndmask_b32 {v(t+25)}, {v(t+19)}, {v(vXoff)}, {s(sT+2,2)}
    s_or_b32 {s(sT)}, s2, {s(sW)}
    s_cbranch_scc1 L_fin2
    v_mov_b32 {v(t+20)}, {s(sTag)}
    buffer_store_dword {v(t+20)}, off, {WS}, 0 sc1
    L_fin2:
    s_cmp_eq_u32 {s(sT+9)}, 64
    s_cbranch_scc1 L_fin5
    s_mov_b32 {s(sT+10)}, {SLOT+SLOTR}
    s_sleep {cfg.tim_fh}
    """)
    hdrpoll('L_fhdr', 4)
    a(f"""
    s_cmp_lg_u32 {s(sIdx)}, {s(sKey)}
    s_cbranch_scc1 {'L_fin5' if cfg.twice else 'L_fin4'}
    s_andn2_b32 {s(sIdx)}, {s(sM7FF)}, {s(sIdx)}
    s_mov_b32 {s(sIt)}, 3
    s_add_u32 {s(sYo)}, {s(sYo)}, {YPR}
    s_add_u32 {s(sYh)}, {s(sYh)}, {YHR}
    """)
    owner()
    a('s_branch L_ywait\nL_fin3:')
    a('\n'.join(own))
    for rho in (0,1):
        for k in (0,1):
            a(f'v_cvt_pk_bf16_f32 {v(t+2*rho+k)}, {v(X+4*k+rho)}, {v(X+4*k+2+rho)}')
    a(f"""
    L_fin4:
    buffer_store_dwordx2 {v(t,2)}, {v(t+24)}, {OS}, {s(sRow0)} offen {'' if cfg.lastp else 'sc1'}
    buffer_store_dwordx2 {v(t+2,2)}, {v(t+25)}, {OS}, {s(sRow1)} offen {'' if cfg.lastp else 'sc1'}
    L_fin5:
    """)
    stamp(); dump_stamps()
    a('s_endpgm')
    a(f"""
    L_base_r:
    s_sub_u32 {s(sCnt)}, {s(sCnt)}, 1
    s_cbranch_scc1 L_end
    s_sleep 2
    buffer_load_dwordx4 {v(BC+2,4)}, {v(t+16)}, {WS}, {s(sT+10)} offen offset:1024 sc1
    s_waitcnt vmcnt(0)
    s_branch L_basew
    """)
    def pub2():
        a(f'''
        v_mov_b32 {v(t+4)}, {s(sTag)}
        v_mov_b32 {v(t+5)}, {s(sXcc)}
        s_add_u32 {s(sT)}, {s(sTabSt)}, {TAB2-TABL}
        buffer_store_dwordx2 {v(t+4,2)}, off, {WS}, {s(sT)} sc1
        ''')
    a(f'''
    L_tabst_slow:
    buffer_store_dwordx2 {v(K,2)}, off, {WS}, {s(sTabSt)} sc1
    s_branch L_tabst_back
    L_tg0_r:
    s_sub_u32 {s(sCnt)}, {s(sCnt)}, 1
    s_cbranch_scc1 L_end
    s_sleep 2
    ''')
    a(f's_mov_b64 exec, 0xff\nbuffer_load_dword {v(t+20)}, {v(t+24)}, {WS}, {s(sT+10)} offen sc1\ns_mov_b64 exec, -1')
    a('s_branch L_tg0w\nL_tab2:')
    pub2()
    a(f'''
    s_add_u32 {s(sT+1)}, {s(sTabLd)}, {TAB2-TABL}
    L_tab2p:
    buffer_load_dwordx2 {v(TB,2)}, {v(vL8)}, {WS}, {s(sTabLd)} offen sc1
    buffer_load_dwordx2 {v(t+6,2)}, {v(vL8)}, {WS}, {s(sT+1)} offen sc1
    s_waitcnt vmcnt(0)
    v_cmp_eq_u32 vcc, {s(sTag)}, {v(TB)}
    v_cndmask_b32 {v(TB)}, {v(t+6)}, {v(TB)}, vcc
    v_cndmask_b32 {v(TB+1)}, {v(t+7)}, {v(TB+1)}, vcc
    v_cmp_ne_u32 vcc, {s(sTag)}, {v(TB)}
    ''')
    poll_branch('L_tab2p', 4)
    a(f'''
    s_branch L_tabok
    L_slow:
    s_cmp_lg_u32 {s(sIt)}, 0
    s_cbranch_scc1 L_slow1
    ''')
    pub2()
    a('L_slow1:')
    lstores('sc1')
    a(f'''
    s_waitcnt vmcnt(0)
    s_barrier
    s_add_u32 {s(sT)}, {s(sTabSt)}, {SLOWF-TABL}
    s_add_u32 {s(sT+1)}, {s(sTabLd)}, {SLOWF-TABL}
    v_mov_b32 {v(t+4)}, {s(sTag)}
    s_cmp_lg_u32 {s(sW)}, 0
    s_cbranch_scc1 L_slowp
    buffer_store_dword {v(t+4)}, off, {WS}, {s(sT)} sc1
    L_slowp:
    buffer_load_dword {v(t+5)}, {v(vL8)}, {WS}, {s(sT+1)} offen sc1
    s_waitcnt vmcnt(0)
    v_cmp_ne_u32 vcc, {s(sTag)}, {v(t+5)}
    ''')
    poll_branch('L_slowp', 2)
    a('s_branch L_slowback')

def hint_store(vreg, soff, lbl):
    a(f'''
    s_mov_b64 exec, 1
    s_cmp_eq_u32 {s(sFast)}, 0
    s_cbranch_scc1 {lbl}_s
    buffer_store_dword {v(vreg)}, off, {WS}, {s(soff)}
    s_branch {lbl}_d
    {lbl}_s:
    buffer_store_dword {v(vreg)}, off, {WS}, {s(soff)} sc1
    {lbl}_d:
    s_mov_b64 exec, -1
    ''')

def ffn():
    WA=4; WD=20; t=40
    vXL=24; vXW=25; vXR=26; vPS=27; vPL=28; vHW=29; vHR=30; vDP=31; vTag=32; vSig=34; vFl=35
    sI=sJ; sRnd=sIt; sPo=sLst; sPs=sLld
    F_W=0; TS=4096+64; F_X=0x4400; F_KEY=0x4D00; F_H=0x4E00; F_D=0x5200; F_WD=0x5400
    a(f"""
    L_ffn:
    s_and_b32 {s(sI)}, {s(sJ)}, 31
    s_min_u32 {s(sT+2)}, {s(sI)}, 27
    s_and_b32 {s(sT)}, {s(sT+2)}, 3
    s_lshl_b32 {s(sT+8)}, {s(sT)}, 8              ; 256*ks
    s_mul_i32 {s(sT+9)}, {s(sT)}, {28*64}
    s_mul_i32 {s(sT)}, {s(sT)}, {128*3584}
    s_mul_i32 {s(sT+1)}, {s(sX)}, 448
    s_add_u32 {s(sT)}, {s(sT)}, {s(sT+1)}
    s_lshr_b32 {s(sT+2)}, {s(sT+2)}, 2
    s_lshl_b32 {s(sT+3)}, {s(sT+2)}, 6
    s_add_u32 {s(sT)}, {s(sT)}, {s(sT+3)}
    v_lshrrev_b32 {v(t+3)}, 2, v0
    v_mul_u32_u24 {v(t)}, 3584, {v(t+3)}
    v_and_b32 {v(t+4)}, 3, v0
    v_lshl_add_u32 {v(t)}, {v(t+4)}, 4, {v(t)}
    v_add_u32 {v(t)}, {s(sT)}, {v(t)}
    s_mul_i32 {s(sT)}, {s(sX)}, {224*1024}
    s_lshl_b32 {s(sT+1)}, {s(sI)}, 5
    s_add_u32 {s(sT)}, {s(sT)}, {s(sT+1)}
    v_lshrrev_b32 {v(t+1)}, 1, v0
    v_min_u32 {v(t+1)}, 223, {v(t+1)}
    v_lshlrev_b32 {v(t+1)}, 10, {v(t+1)}
    v_and_b32 {v(t+2)}, 1, v0
    v_lshl_add_u32 {v(t+1)}, {v(t+2)}, 4, {v(t+1)}
    v_add_u32 {v(t+1)}, {s(sT)}, {v(t+1)}
    s_add_u32 {s(sT+10)}, {s(sTabLd)}, {FTAB-TABL}
    s_waitcnt lgkmcnt(0)
    {f'v_lshlrev_b32 {v(T+25)}, {cfg.tlb}, v0' if cfg.tlb else ''}
    {f'buffer_load_dword {v(T+21)}, {v(T+25)}, {WS}, 0 offen sc1' if cfg.tlb else ''}
    {f'buffer_load_dword {v(T+21)}, {v(T+25)}, {OS}, 0 offen sc1' if cfg.tlb else ''}
    {f's_sleep {cfg.fdelay}' if cfg.fdelay else ''}
    {f'global_load_dwordx4 {v(T+8,4)}, {v(t)}, s[18:19]' if cfg.wdpos!=2 and cfg.gul<2 else ''}
    v_mov_b32 {v(T+24)}, {v(t)}
    {f'global_load_dwordx4 {v(T+12,4)}, {v(t)}, s[20:21]' if cfg.wdpos!=2 and not cfg.gul else ''}
    {f'global_load_dwordx4 {v(T+16,4)}, {v(t+1)}, s[22:23]' if cfg.wdpos==0 else f'v_mov_b32 {v(T+23)}, {v(t+1)}'}
    {f'buffer_load_dword {v(T+20)}, off, {WS}, 0 sc1' if not cfg.hot else f's_load_dword {s(sTag)}, s[8:9], 0'}
    s_cmp_eq_u32 {s(sW)}, 0
    s_cselect_b32 {s(sT)}, {s(sT+10)}, s10
    buffer_load_dword {v(T+21)}, {v(vL8)}, {WS}, {s(sT if cfg.hot else sT+10)} offen sc1
    v_mul_u32_u24 {v(T+22)}, {TS}, {v(t+4)}
    v_lshl_add_u32 {v(T+22)}, {v(t+3)}, 5, {v(T+22)}
    v_lshlrev_b32 {v(t+5)}, 4, {v(vN)}
    s_and_b32 {s(sT)}, {s(sW)}, 1
    s_lshl_b32 {s(sT)}, {s(sT)}, 2
    v_add_u32 {v(t+6)}, {s(sT)}, {v(vQ)}
    v_lshl_add_u32 {v(vXL)}, {v(t+6)}, 12, {v(t+5)}
    v_add_u32 {v(vXL)}, {s(sT+8)}, {v(vXL)}
    v_mul_u32_u24 {v(vXW)}, 272, {v(t+6)}
    v_add_u32 {v(vXW)}, {v(vXW)}, {v(t+5)}
    v_and_b32 {v(t+6)}, 7, {v(vLane)}
    v_mul_u32_u24 {v(vXR)}, 272, {v(t+6)}
    v_lshl_add_u32 {v(vXR)}, {v(vQ)}, 4, {v(vXR)}
    s_cmp_lg_u32 {s(sW)}, 6
    s_cbranch_scc1 L_fa1
    v_lshlrev_b32 {v(vXL)}, 12, {v(t+6)}
    L_fa1:
    s_lshl2_add_u32 {s(sT)}, {s(sT+2)}, {s(sW)}
    s_lshl_b32 {s(sT)}, {s(sT)}, 6
    s_add_u32 {s(sT)}, {s(sT)}, {s(sT+9)}
    v_lshl_add_u32 {v(vPS)}, {v(vN)}, 2, {s(sT)}
    s_lshl_b32 {s(sT)}, {s(sW)}, 8
    v_mul_u32_u24 {v(vPL)}, 1792, {v(vQ)}
    v_add3_u32 {v(vPL)}, {v(vPL)}, {v(t+5)}, {s(sT)}
    s_lshl_b32 {s(sT)}, {s(sW)}, 7
    s_add_u32 {s(sT)}, {s(sT)}, {F_H}
    v_lshl_add_u32 {v(vHR)}, {v(vQ)}, 4, {s(sT)}
    v_and_b32 {v(t+6)}, 12, {v(vN)}
    v_lshl_add_u32 {v(vHW)}, {v(t+6)}, 2, {s(sT)}
    v_and_b32 {v(t+6)}, 1, {v(vN)}
    v_lshl_add_u32 {v(vHW)}, {v(t+6)}, 3, {v(vHW)}
    v_and_b32 {v(t+6)}, 2, {v(vN)}
    v_lshl_add_u32 {v(vHW)}, {v(t+6)}, 5, {v(vHW)}
    v_and_b32 {v(t+6)}, 2, {v(vQ)}
    v_add_u32 {v(vHW)}, {v(vHW)}, {v(t+6)}
    v_and_b32 {v(t+6)}, 1, {v(vQ)}
    v_lshl_add_u32 {v(vHW)}, {v(t+6)}, 2, {v(vHW)}
    s_lshl_b32 {s(sT)}, {s(sW)}, 2
    s_add_u32 {s(sT)}, {s(sT)}, {F_D}
    v_lshl_add_u32 {v(vDP)}, {v(vN)}, 5, {s(sT)}
    v_mov_b32 {v(vFl)}, {F_KEY}
    v_mov_b32 {v(vTag)}, 0
    s_mov_b32 {s(sFast)}, 0
    s_mov_b32 {s(sRnd)}, 2
    s_mov_b32 {s(sPo)}, {WSSZ}
    s_mov_b32 {s(sYo)}, {WSSZ}
    s_mov_b32 {s(sYh)}, {WSSZ}
    s_waitcnt lgkmcnt(0)
    {'s_branch L_fb2' if cfg.dry else ''}
    L_finit:
    s_mov_b32 {s(sRnd)}, 0
    s_mov_b32 {s(sSlot)}, {SLOT}
    s_lshl_b32 {s(sPo)}, {s(sX)}, 13
    s_add_u32 {s(sPo)}, {s(sPo)}, {PART}
    s_lshl_b32 {s(sYo)}, {s(sX)}, 10
    s_lshl_b32 {s(sT)}, {s(sI)}, 5
    s_add_u32 {s(sYo)}, {s(sYo)}, {s(sT)}
    s_add_u32 {s(sYo)}, {s(sYo)}, {YP}
    s_lshl_b32 {s(sYh)}, {s(sX)}, 7
    s_lshl2_add_u32 {s(sYh)}, {s(sI)}, {s(sYh)}
    s_add_u32 {s(sYh)}, {s(sYh)}, {YHINT}
    s_lshl_b32 {s(sT)}, {s(sW)}, 10
    v_lshl_add_u32 {v(t)}, {v(vLane)}, 4, {s(sT)}
    v_lshl_add_u32 {v(t+1)}, {v(vQ)}, 8, {s(sT)}
    v_lshl_add_u32 {v(t+1)}, {v(vN)}, 3, {v(t+1)}
    s_and_b32 {s(sT)}, {s(sW)}, 3
    s_mul_i32 {s(sT)}, {s(sT)}, {TS}
    v_lshl_add_u32 {v(t+2)}, {v(vQ)}, 8, {s(sT)}
    v_lshl_add_u32 {v(t+2)}, {v(vN)}, 3, {v(t+2)}
    v_mov_b32 {v(vTag+1)}, {s(sXcc)}
    s_lshl3_add_u32 {s(sT+1)}, {s(sI)}, {s(sT+10)}
    s_waitcnt vmcnt(0)
    {f'v_mov_b32 {v(T+20)}, {s(sTag)}' if cfg.hot else ''}
    v_add_u32 {v(vTag)}, 1, {v(T+20)}
    ds_write_b128 {v(T+22)}, {v(T+8,4)}
    ds_write_b128 {v(T+22)}, {v(T+12,4)} offset:16
    {f'ds_write_b128 {v(t)}, {v(T+16,4)} offset:{F_WD}' if cfg.wdpos==0 else ''}
    v_readfirstlane_b32 {s(sTag)}, {v(vTag)}
    s_cmp_lg_u32 {s(sW)}, 0
    s_cbranch_scc1 L_fi1
    s_mov_b64 exec, 1
    buffer_store_dwordx2 {v(vTag,2)}, off, {WS}, {s(sT+1)}
    s_mov_b64 exec, -1
    L_fi1:
    s_waitcnt lgkmcnt(0)
    s_barrier
    """)
    if cfg.stamps: a(f's_mov_b32 {s(sStampI)}, 0')
    stamp()
    for k in range(4):
        a(f'ds_read_b64_tr_b16 {v(WA+4*k,2)}, {v(t+2)} offset:{1024*k}')
        a(f'ds_read_b64_tr_b16 {v(WA+4*k+2,2)}, {v(t+2)} offset:{1024*k+128}')
    a(f"""
    {f'ds_read_b64_tr_b16 {v(WD,2)}, {v(t+1)} offset:{F_WD}' if cfg.wdpos==0 else ''}
    {f'ds_read_b64_tr_b16 {v(WD+2,2)}, {v(t+1)} offset:{F_WD+128}' if cfg.wdpos==0 else ''}
    s_cmp_lg_u32 {s(sW)}, 0
    s_cbranch_scc1 L_fi3
    s_movk_i32 {s(sTry)}, 80
    L_fl:
    buffer_load_dwordx2 {v(t+4,2)}, {v(vL8)}, {WS}, {s(sTabLd)} offen sc1
    buffer_load_dwordx2 {v(t+6,2)}, {v(vL8)}, {WS}, {s(sT+10)} offen sc1
    s_waitcnt vmcnt(0)
    v_cmp_ne_u32 vcc, {s(sTag)}, {v(t+4)}
    v_cmp_ne_u32 {s(sT,2)}, {s(sTag)}, {v(t+6)}
    s_or_b64 vcc, vcc, {s(sT,2)}
    """)
    poll_branch('L_fl', 4, giveup='L_fslowtab', skip=True)
    a(f"""
    v_cmp_ne_u32 vcc, {s(sXcc)}, {v(t+5)}
    v_cmp_ne_u32 {s(sT,2)}, {s(sXcc)}, {v(t+7)}
    s_or_b64 vcc, vcc, {s(sT,2)}
    s_cbranch_vccnz L_fslowtab
    s_mov_b32 {s(sFast)}, 1
    {f's_sleep {cfg.tdel}' if cfg.tdel else ''}
    v_and_b32 {v(t+4)}, 1, {v(vQ)}
    v_lshlrev_b32 {v(t+4)}, 16, {v(t+4)}
    v_lshl_add_u32 {v(t+4)}, {v(vN)}, 4, {v(t+4)}
    s_lshl_b32 {s(sT)}, {s(sI)}, 8
    s_add_u32 {s(sT)}, {s(sT)}, {s(sPo)}
    buffer_load_dword {v(t+5)}, {v(t+4)}, {WS}, {s(sT)} offen sc1
    L_fi2:
    v_mov_b32 {v(t+6)}, {s(sFast)}
    ds_write_b32 {v(vFl)}, {v(t+6)} offset:4
    L_fi3:
    s_waitcnt vmcnt(0) lgkmcnt(0)
    s_barrier
    ds_read_b32 {v(t+6)}, {v(vFl)} offset:4
    s_waitcnt lgkmcnt(0)
    v_readfirstlane_b32 {s(sFast)}, {v(t+6)}
    """)
    if cfg.gul:
        a(f"""
        {f's_sleep {cfg.gdelay}' if cfg.gdelay else ''}
        {f'global_load_dwordx4 {v(T+8,4)}, {v(T+24)}, s[18:19]' if cfg.gul==2 else ''}
        global_load_dwordx4 {v(T+12,4)}, {v(T+24)}, s[20:21]
        s_waitcnt vmcnt(0)
        ds_write_b128 {v(T+22)}, {v(T+8,4)}
        ds_write_b128 {v(T+22)}, {v(T+12,4)} offset:16
        s_waitcnt lgkmcnt(0)
        s_barrier
        """)
        for k in range(4):
            a(f'ds_read_b64_tr_b16 {v(WA+4*k,2)}, {v(t+2)} offset:{1024*k}')
            a(f'ds_read_b64_tr_b16 {v(WA+4*k+2,2)}, {v(t+2)} offset:{1024*k+128}')
        a('s_waitcnt lgkmcnt(0)')
    if cfg.wdpos==3: a(f'v_mov_b32 {v(T+8)}, {v(t)}\nv_mov_b32 {v(T+9)}, {v(t+1)}')
    if cfg.wdpos==2:
        a(f"""
        {f's_sleep {cfg.gdelay}' if cfg.gdelay else ''}
        global_load_dwordx4 {v(T+8,4)}, {v(T+24)}, s[18:19]
        global_load_dwordx4 {v(T+12,4)}, {v(T+24)}, s[20:21]
        global_load_dwordx4 {v(T+16,4)}, {v(T+23)}, s[22:23]
        s_waitcnt vmcnt(0)
        ds_write_b128 {v(T+22)}, {v(T+8,4)}
        ds_write_b128 {v(T+22)}, {v(T+12,4)} offset:16
        ds_write_b128 {v(t)}, {v(T+16,4)} offset:{F_WD}
        s_waitcnt lgkmcnt(0)
        s_barrier
        """)
        for k in range(4):
            a(f'ds_read_b64_tr_b16 {v(WA+4*k,2)}, {v(t+2)} offset:{1024*k}')
            a(f'ds_read_b64_tr_b16 {v(WA+4*k+2,2)}, {v(t+2)} offset:{1024*k+128}')
        a(f"""
        ds_read_b64_tr_b16 {v(WD,2)}, {v(t+1)} offset:{F_WD}
        ds_read_b64_tr_b16 {v(WD+2,2)}, {v(t+1)} offset:{F_WD+128}
        s_waitcnt lgkmcnt(0)
        """)
    if cfg.wdpos==1: a(f"""
    {f's_sleep {cfg.gdelay}' if cfg.gdelay else ''}
    global_load_dwordx4 {v(T+16,4)}, {v(T+23)}, s[22:23]
    s_waitcnt vmcnt(0)
    ds_write_b128 {v(t)}, {v(T+16,4)} offset:{F_WD}
    ds_read_b64_tr_b16 {v(WD,2)}, {v(t+1)} offset:{F_WD}
    ds_read_b64_tr_b16 {v(WD+2,2)}, {v(t+1)} offset:{F_WD+128}
    s_waitcnt lgkmcnt(0)
    """)
    a(f"""
    L_frnd:
    s_add_u32 {s(sTabLd)}, {s(sTabLd)}, {ARGR}
    s_cmp_lg_u32 {s(sW)}, 0
    s_cbranch_scc1 L_fb1
    s_cmp_eq_u32 {s(sFast)}, 0
    s_cbranch_scc1 L_fb1
    L_ftrig:
    buffer_load_dword {v(t)}, {v(vL8)}, {WS}, {s(sTabLd)} offen sc1
    s_waitcnt vmcnt(0)
    v_cmp_ne_u32 vcc, {s(sTag)}, {v(t)}
    """)
    poll_branch('L_ftrig', cfg.slp_f)
    stamp()
    a(f"""
    s_cmp_eq_u32 {s(sRnd)}, 0
    s_cbranch_scc1 L_ft0
    s_sleep {cfg.tim_a1}
    s_branch L_fb1
    L_ft0:
    s_sleep {cfg.tim_arg if cfg.wdpos!=3 else cfg.tim_wd}
    L_fb1:
    """)
    if cfg.wdpos==3: a(f"""
    s_cmp_lg_u32 {s(sRnd)}, 0
    s_cbranch_scc1 L_fb1b
    s_barrier
    global_load_dwordx4 {v(T+16,4)}, {v(T+23)}, s[22:23]
    s_sleep {cfg.tim_arg-cfg.tim_wd}
    L_fb1b:
    """)
    a(f"""
    s_sub_u32 {s(sT)}, {s(sW)}, 4
    s_cmp_lt_u32 {s(sT)}, 2
    s_barrier
    s_cbranch_scc1 L_fx
    s_cmp_lg_u32 {s(sW)}, 6
    s_cbranch_scc1 L_fb2
    s_mov_b64 exec, 0xff
    L_fhd:
    buffer_load_dword {v(t)}, {v(vXL)}, {WS}, {s(sSlot)} offen offset:3072 sc1
    s_waitcnt vmcnt(0)
    v_cmp_eq_u32 vcc, -1, {v(t)}
    """)
    poll_branch('L_fhd', 2, skip=True)
    a(f"""
    v_max_u32_dpp {v(t)}, {v(t)}, {v(t)} row_half_mirror {DPP}
    v_max_u32_dpp {v(t)}, {v(t)}, {v(t)} quad_perm:[1,0,3,2] {DPP}
    v_max_u32_dpp {v(t)}, {v(t)}, {v(t)} quad_perm:[2,3,0,1] {DPP}
    ds_write_b32 {v(vFl)}, {v(t)}
    s_mov_b64 exec, -1
    s_branch L_fb2
    L_fx:
    buffer_load_dwordx4 {v(t,4)}, {v(vXL)}, {WS}, {s(sSlot)} offen sc1
    s_waitcnt vmcnt(0)
    ds_write_b128 {v(vXW)}, {v(t,4)} offset:{F_X}
    """)
    maxchk(range(t,t+4), t+4)
    poll_branch('L_fx', 2, mask=True)
    Dd=t+16
    a(f"""
    L_fb2:
    """)
    if cfg.wdpos==3: a(f"""
    s_cmp_lg_u32 {s(sRnd)}, 0
    s_cbranch_scc1 L_fb2b
    s_waitcnt vmcnt(0)
    ds_write_b128 {v(T+8)}, {v(T+16,4)} offset:{F_WD}
    ds_read_b64_tr_b16 {v(WD,2)}, {v(T+9)} offset:{F_WD}
    ds_read_b64_tr_b16 {v(WD+2,2)}, {v(T+9)} offset:{F_WD+128}
    L_fb2b:
    """)
    a(f"""
    s_cmp_gt_u32 {s(sW)}, 3
    s_waitcnt lgkmcnt(0)
    s_barrier
    s_cbranch_scc1 L_fnoa
    ds_read_b32 {v(t+20)}, {v(vFl)}
    """)
    for k in range(4): a(f'ds_read_b128 {v(t+4*k,4)}, {v(vXR)} offset:{F_X+64*k}')
    stamp()
    a(f"""
    s_cmp_lt_u32 {s(sI)}, 28
    s_cselect_b32 {s(sPs)}, {s(sPo)}, {WSSZ}
    s_waitcnt lgkmcnt(3)
    v_mfma_f32_16x16x32_bf16 {v(Dd,4)}, {v(t,4)}, {v(WA,4)}, 0
    v_readfirstlane_b32 {s(sKey)}, {v(t+20)}
    s_waitcnt lgkmcnt(2)
    v_mfma_f32_16x16x32_bf16 {v(Dd,4)}, {v(t+4,4)}, {v(WA+4,4)}, {v(Dd,4)}
    s_bitcmp0_b32 {s(sKey)}, 0
    s_cselect_b64 vcc, -1, 0
    s_waitcnt lgkmcnt(1)
    v_mfma_f32_16x16x32_bf16 {v(Dd,4)}, {v(t+8,4)}, {v(WA+8,4)}, {v(Dd,4)}
    s_bitcmp0_b32 {s(sKey)}, 1
    s_cselect_b64 {s(sT+2,2)}, -1, 0
    s_waitcnt lgkmcnt(0)
    v_mfma_f32_16x16x32_bf16 {v(Dd,4)}, {v(t+12,4)}, {v(WA+12,4)}, {v(Dd,4)}
    s_andn2_b32 {s(sT)}, 4, {s(sKey)}
    s_lshl_b32 {s(sT)}, {s(sT)}, 2
    s_bfm_b64 exec, 16, {s(sT)}
    s_cmp_eq_u32 {s(sFast)}, 0
    v_cndmask_b32 {v(Dd)}, {v(Dd)}, {v(Dd+1)}, vcc
    v_cndmask_b32 {v(Dd+2)}, {v(Dd+2)}, {v(Dd+3)}, vcc
    v_cndmask_b32 {v(Dd)}, {v(Dd)}, {v(Dd+2)}, {s(sT+2,2)}
    s_cbranch_scc1 L_fps_s ;!nd
    buffer_store_dword {v(Dd)}, {v(vPS)}, {WS}, {s(sPs)} offen
    L_fps_d:
    s_mov_b64 exec, -1
    s_cmp_eq_u32 {s(sRnd)}, 2
    s_cbranch_scc1 L_fpok
    s_waitcnt vmcnt(0)
    s_branch L_fp
    L_fps_s:
    buffer_store_dword {v(Dd)}, {v(vPS)}, {WS}, {s(sPs)} offen sc1
    s_branch L_fps_d
    L_fnoa:
    s_cmp_eq_u32 {s(sW)}, 7
    s_cbranch_scc1 L_f7
    s_cmp_eq_u32 {s(sRnd)}, 2
    s_cbranch_scc1 L_fpok
    s_sleep {cfg.tim_p}
    s_branch L_fp
    L_fp:
    buffer_load_dwordx4 {v(t,4)}, {v(vPL)}, {WS}, {s(sPo)} offen sc1
    s_waitcnt vmcnt(0)
    """)
    maxchk(range(t,t+4), t+4)
    poll_branch('L_fp', cfg.slp_p, mask=True)
    stamp()
    a(f"""
    L_fpok:
    v_permlane32_swap_b32 {v(t)}, {v(t+1)}
    v_permlane32_swap_b32 {v(t+2)}, {v(t+3)}
    v_add_f32 {v(t)}, {v(t)}, {v(t+1)}
    v_add_f32 {v(t+2)}, {v(t+2)}, {v(t+3)}
    v_permlane16_swap_b32 {v(t)}, {v(t+2)}
    v_add_f32 {v(t)}, {v(t)}, {v(t+2)}
    v_mul_f32 {v(t+1)}, 0xbfb8aa3b, {v(t)}
    v_exp_f32 {v(t+1)}, {v(t+1)}
    v_mul_f32_dpp {v(t+2)}, {v(t)}, {v(t)} quad_perm:[2,3,0,1] {DPP}
    v_add_f32 {v(t+1)}, 1.0, {v(t+1)}
    v_rcp_f32 {v(t+1)}, {v(t+1)}
    v_mul_f32 {v(t+1)}, {v(t+1)}, {v(t+2)}
    v_cvt_pk_bf16_f32 {v(t+1)}, {v(t+1)}, {v(t+1)}
    ds_write_b16 {v(vHW)}, {v(t+1)}
    ds_read_b128 {v(t+4,4)}, {v(vHR)}
    """)
    if cfg.eh:
        a(f's_cmp_lg_u32 {s(sW)}, 5\ns_cbranch_scc1 L_fyh_d')
        hint_store(vTag, sYh, 'L_fyh')
    a(f"""
    s_waitcnt lgkmcnt(0)
    v_mfma_f32_16x16x32_bf16 {v(t+8,4)}, {v(t+4,4)}, {v(WD,4)}, 0
    s_mov_b64 exec, 0xffff
    ds_write_b32 {v(vDP)}, {v(t+8)}
    s_mov_b64 exec, -1
    s_waitcnt lgkmcnt(0)
    s_barrier
    L_fnext:
    """)
    stamp()
    a(f"""
    s_cmp_eq_u32 {s(sRnd)}, 1
    s_cbranch_scc1 L_fend
    s_cmp_eq_u32 {s(sRnd)}, 2
    s_cbranch_scc1 L_finit
    """)
    if cfg.wb==1: a(f"""
    s_cmp_lg_u32 {s(sI)}, 28
    s_cbranch_scc1 L_nwb
    s_cmp_lg_u32 {s(sW)}, 3
    s_cbranch_scc1 L_nwb
    s_sleep {cfg.wbd}
    buffer_wbl2 sc1
    L_nwb:
    """)
    a(f"""
    s_mov_b32 {s(sRnd)}, 1
    s_add_u32 {s(sSlot)}, {s(sSlot)}, {SLOTR}
    s_add_u32 {s(sPo)}, {s(sPo)}, {PARTR}
    s_add_u32 {s(sYo)}, {s(sYo)}, {YPR}
    s_add_u32 {s(sYh)}, {s(sYh)}, {YHR}
    s_branch L_frnd
    L_f7:
    ds_read_b32 {v(t+20)}, {v(vFl)}
    v_mov_b32 {v(vSig)}, 0xbfb8aa3b
    v_add_u32 {v(t+8)}, -28, {v(vDP)}
    v_lshlrev_b32 {v(t+9)}, 1, {v(vN)}
    s_waitcnt lgkmcnt(0)
    v_readfirstlane_b32 {s(sKey)}, {v(t+20)}
    s_ashr_i32 {s(sT)}, {s(sKey)}, 31
    s_orn2_b32 {s(sT)}, 0x80000000, {s(sT)}
    s_xor_b32 {s(sT)}, {s(sT)}, {s(sKey)}
    v_mul_f32 {v(vSig)}, {s(sT)}, {v(vSig)}
    v_exp_f32 {v(vSig)}, {v(vSig)}
    v_add_f32 {v(vSig)}, 1.0, {v(vSig)}
    v_rcp_f32 {v(vSig)}, {v(vSig)}
    s_barrier
    ds_read_b128 {v(t,4)}, {v(t+8)}
    ds_read_b96 {v(t+4,3)}, {v(t+8)} offset:16
    s_waitcnt lgkmcnt(1)
    v_pk_add_f32 {v(t,2)}, {v(t,2)}, {v(t+2,2)}
    v_add_f32 {v(t)}, {v(t)}, {v(t+1)}
    s_waitcnt lgkmcnt(0)
    v_add_f32 {v(t+4)}, {v(t+4)}, {v(t+5)}
    v_add_f32 {v(t)}, {v(t)}, {v(t+6)}
    v_add_f32 {v(t)}, {v(t)}, {v(t+4)}
    v_mul_f32 {v(t)}, {v(t)}, {v(vSig)}
    v_mov_b32_dpp {v(t+1)}, {v(t)} quad_perm:[1,1,3,3] {DPP}
    s_mov_b64 exec, 0x5555
    v_cvt_pk_bf16_f32 {v(t)}, {v(t)}, {v(t+1)}
    buffer_store_dword {v(t)}, {v(t+9)}, {WS}, {s(sYo)} offen sc1
    """)
    if cfg.eh: a('s_mov_b64 exec, -1')
    else: hint_store(vTag, sYh, 'L_fyh')
    a(f"""
    s_branch L_fnext
    L_fslowtab:
    v_and_b32 {v(t+16)}, 7, {v(vLane)}
    v_lshlrev_b32 {v(t+16)}, 7, {v(t+16)}
    s_mov_b32 {s(sT+10)}, {TABG}
    L_ftab2:
    buffer_load_dword {v(t+4)}, {v(t+16)}, {WS}, {s(sT+10)} offen sc1
    s_waitcnt vmcnt(0)
    v_cmp_ne_u32 vcc, {s(sTag)}, {v(t+4)}
    """)
    poll_branch('L_ftab2', 8)
    a('s_branch L_fi2\nL_fend:')
    dump_stamps()
    a('s_endpgm')

def build():
    hdr=open('ref.txt').read().split('; @launch')[0]
    a.raw(hdr+f'; @launch grid=({NWG},1,1) block=(512,1,1) lds={LDS_TOTAL}')
    a.raw(f'''; generated by gen/gen.py (hand-written generator): persistent FFT-structured FNet + MoD kernel
.amdgcn_target "amdgcn-amd-amdhsa--gfx950"
.text
.globl {NAME}_kernel
.p2align 8
.type {NAME}_kernel,@function
{NAME}_kernel:''')
    if cfg.st0: a(f's_memrealtime s[88:89]\ns_waitcnt lgkmcnt(0)')
    a(f'''
    s_load_dwordx2 s[12:13], s[0:1], 0
    s_load_dwordx2 s[8:9], s[0:1], 96
    s_load_dwordx8 s[16:23], s[0:1], 48
    v_and_b32 {v(vN)}, 15, v0
    v_bfe_u32 {v(vQ)}, v0, 4, 2
    v_lshrrev_b32 v2, 6, v0
    v_lshlrev_b32 {v(vUW)}, 7, v2
    v_lshl_add_u32 {v(vUW)}, {v(vN)}, 3, {v(vUW)}                ; 128w+8n
    v_lshl_add_u32 {v(vXoff)}, {v(vQ)}, 19, {v(vUW)}
    s_lshl_b32 {s(sRow0)}, s2, 10
    s_add_u32 {s(sRow1)}, {s(sRow0)}, 0x40000
    s_mov_b32 s14, 0x200000
    s_mov_b32 s15, 0x20000
    v_readfirstlane_b32 {s(sW)}, v2
    ''')
    if cfg.codepf: a(f'''
    s_getpc_b64 {s(sT+6,2)}
    L_pc:
    v_lshlrev_b32 v3, {6 if cfg.hot else 5}, v0
    ''')
    if cfg.codepf and cfg.hot: a(f'''
    v_cmp_gt_u32 vcc, L_end-L_pc, v3
    s_and_b32 {s(sT)}, s2, 0x118
    s_cselect_b64 vcc, 0, vcc
    s_cbranch_vccz L_npf ;!nd
    s_mov_b64 exec, vcc
    global_load_dword {v(vTG)}, v3, {s(sT+6,2)}
    s_mov_b64 exec, -1
    L_npf:
    ''')
    elif cfg.codepf: a(f'''
    v_min_u32 v3, L_end-L_pc, v3
    {f'global_load_dword {v(vTG)}, v3, {s(sT+6,2)}' if cfg.codepf==1 else ''}
    ''')
    a(f'''
    s_cmp_ge_u32 s2, 256
    s_cbranch_scc1 L_nox ;!nd
    s_waitcnt lgkmcnt(0)
    buffer_load_dwordx2 {v(BC,2)}, {v(vXoff)}, {XS}, {s(sRow0)} offen
    buffer_load_dwordx2 {v(BC+2,2)}, {v(vXoff)}, {XS}, {s(sRow1)} offen
    L_nox:
    {f'global_load_dword {v(vTG)}, v3, {s(sT+6,2)}' if cfg.codepf==2 else ''}
    s_cmp_ge_u32 s2, {NWG}
    s_cbranch_scc1 L_end
    {'s_waitcnt lgkmcnt(0)' if cfg.wsoff else ''}
    {f's_add_u32 s8, s8, {cfg.wsoff<<20}' if cfg.wsoff else ''}
    {'s_addc_u32 s9, s9, 0' if cfg.wsoff else ''}
    s_load_dwordx2 s[28:29], s[0:1], 80
    v_and_b32 {v(vLane)}, 63, v0
    s_mov_b32 s10, {WSSZ}
    s_mov_b32 s11, 0x20000
    s_mov_b32 s30, 0x200000
    s_mov_b32 s31, 0x20000
    s_and_b32 {s(sX)}, s2, 7
    s_lshr_b32 {s(sJ)}, s2, 3
    v_mov_b32 {v(SENT)}, -1
    v_mov_b32 {v(SENT+1)}, -1
    v_mov_b32 {v(SENT+2)}, -1
    v_mov_b32 {v(SENT+3)}, -1
    v_lshlrev_b32 {v(vL8)}, 3, v0
    v_and_b32 {v(vL8)}, 0xf8, {v(vL8)}
    s_mov_b32 {s(sCnt)}, 200000
    s_mov_b32 {s(sM7FF)}, 0x7ff
    s_lshl_b32 {s(sTabLd)}, {s(sX)}, 8
    s_add_u32 {s(sTabLd)}, {s(sTabLd)}, {TABL}
    s_getreg_b32 {s(sXcc)}, hwreg(HW_REG_XCC_ID, 0, 4)
    ''')
    if cfg.force_slow: a(f's_mov_b32 {s(sXcc)}, {s(sJ)}')
    if cfg.stamps:
        a(f's_mov_b32 {s(sStampI)}, 0\nv_mov_b32 {v(vSTMP)}, 0')
        a(f's_memrealtime {s(sTS,2)}\ns_memtime {s(sTS+2,2)}\ns_waitcnt lgkmcnt(0)\nv_writelane_b32 {v(vSTMP)}, {s(sTS)}, 63\nv_writelane_b32 {v(vSTMP)}, {s(sTS+2)}, 62')
        if cfg.st0: a(f'v_writelane_b32 {v(vSTMP)}, {s(sTS)}, 58\nv_writelane_b32 {v(vSTMP)}, s88, 63\ns_memrealtime {s(sTS,2)}\ns_waitcnt lgkmcnt(0)\nv_writelane_b32 {v(vSTMP)}, {s(sTS)}, 59')
    a('''s_cmp_ge_u32 s2, 256
    s_cbranch_scc1 L_ffn''')
    if cfg.prio: a(f's_setprio 2\ns_cmp_gt_u32 {s(sW)}, 1\ns_cbranch_scc1 L_np\ns_setprio 3\nL_np:')
    main_prologue()
    main_loop()
    ffn()
    a('L_end:\ns_endpgm')
    a.raw(f'''.section .rodata,"a"
.p2align 6
.amdhsa_kernel {NAME}_kernel
  .amdhsa_next_free_vgpr 128
  .amdhsa_next_free_sgpr 96
  .amdhsa_accum_offset 128
  .amdhsa_group_segment_fixed_size 0
  .amdhsa_kernarg_size 104
  .amdhsa_user_sgpr_count 2
  .amdhsa_user_sgpr_kernarg_segment_ptr 1
  .amdhsa_system_sgpr_workgroup_id_x 1
.end_amdhsa_kernel''')
    return a.text()
if __name__=='__main__':
    out=sys.argv[1]
    for kv in sys.argv[2:]:
        k,val=kv.split('='); assert hasattr(cfg,k); setattr(cfg,k,int(val))
    open(out,'w').write(build())
    print('instrs',a.count,'nops',a.nops)
```

```python
import sys, struct
from asmlib import Asm
NAME='interleave_layers__spectral_fnet__moe_arch_mod__prompt'
def fbits(x): return '0x%08x' % struct.unpack('<I', struct.pack('<f', x))[0]

class Cfg:
    stamps=0
    tim_arg=14
    tim_y=0
    tim_h=0
    slp_g=2
    slp_l=1
    force_slow=0
    prio=1
    codepf=1
    exp=0
    gre=0
    cfl=0
    tlb=0
    wsoff=0
    st0=0
    cal=-1
    calwg=0
    dbgout=0
    dry=1
    wb=0
    fdelay=10
    gdelay=18
    osc=1
    odel=0
    pfm=7
    clr2=0
    nb0=0
    ehint=0
    post=0
    slp_t=0
    aft=0
    g2pos=3
    spr=1
    twice=1
    lastp=1
    hot=1
    gw=0
    gul=0
    xpos=1
    tdel=18
    pub0=1
    al=12
    ep0=1
    ypos=1
    tim_a1=14
    tim_wd=3
    tim_fh=12
    wdpos=3
    slp_p=1
    tim_p=8
    hold=1
    tim_gy=14
    eh=1
    own=1
    tim_y3=3
    beh=1
    gbb=0
    slp_f=2
    early=4
    tim_a0=0
    wbd=12
    gbdelay=4
    late=1
    split=0
    tch=1
cfg=Cfg()

TABG=0x1000; TABGR=0x6000
TABL=0x2000; ARGR=0x800
TAB2=0x3800
SLOWF=0x4000
YHINT=0x5000; YHR=0x400
FTAB=0x6000
CLR0=0x8000
YP=0x8000; YPR=0x2000
PART=0x20000; PARTR=0x10000
SLOT=0x10000; SLOTR=0x8000
LBASE=0x40000; PS=8448; LX=32*PS
GBASE=0x260000; GS=262144+768; GR=0x210000
STAMP=0x700000
WSSZ=0x800000
NWG=512
NST=(13,9,7)
L_STAT=0; L_U=0x400; L_YI=0x2400; YIS=320; L_YT=0x4C00; L_DH=0x6E00; L_FLAG=0x7E00; L_ROW=0x7E80; LDS_TOTAL=0x8280
L_CX=0x2400
def v(a,n=1): return f'v{a}' if n==1 else f'v[{a}:{a+n-1}]'
def s(a,n=1): return f's{a}' if n==1 else f's[{a}:{a+n-1}]'

WS='s[8:11]'; XS='s[12:15]'; OS='s[28:31]'
sW=3; sX=26; sJ=27; sIt=32; sTag=33; sFast=34; sKey=35; sMir=36; sDsc=38
sLst=39; sLld=40; sPh=41; sTabG=42; sG0=43; sG4=44; sTabSt=45; sTabLd=46; sSlot=47; sRow0=48; sRow1=49; sCnt=50
sXcc=51; sStampI=37
sK512=52
sTry=53
sEps=54
sC16=56
sSc=58
sM7FF=60; sTop=61
sQmask=62
sT=64
sNx=84; sSg=85; sYo=86; sYh=87
sTS=80
X=2; WV=10; A8=14; XA=16; B1C=20; B1S=24; B1N=28; TWC=32; TWS=36; A2R=40; A2I=44; YC=48; YS=52
AD=56; BC=58
vXoff=72; vStW=73; vStR=74; vUW=75; vUR=76; vLst=77; vLld=78; vLldM=79; vYIW=80; vYIR=81; vYW=82; vYR=83; vGst=84; vGld=85
vSc0=86; vL8=88; vInv=89; vN=90; vQ=91; vSTMP=1; vLane=92; vTG=93
LNP=94; MM=98; RS2=100
T=102
class Asm2(Asm):
    def __call__(self, text):
        parts=text.split(';@F')
        for i,p in enumerate(parts):
            if i: fstamp()
            Asm.__call__(self,p)
a=Asm2()
def poll_branch(lbl, sleep=1, pre='', giveup=None, skip=False, mask=False):
    k=a.lines.index(lbl+':')
    if mask:
        pre+='\ns_mov_b64 exec, vcc'; skip=True
        k2=next(i for i in range(k,len(a.lines)) if 's_waitcnt vmcnt(0)' in a.lines[i])
        k3=max(i for i in range(k,k2) if 'buffer_load' in a.lines[i])
        a.lines.insert(k3+1,'    s_mov_b64 exec, -1')
    if a.lines[k-1].strip().startswith(('s_branch','s_endpgm')): skip=False
    a(f's_cbranch_vccnz {lbl}_r ;!nd')
    st=[]
    if skip: st.append(f'    s_branch {lbl}')
    st.append(f'{lbl}_r:')
    if giveup: st+= [f'    s_sub_u32 {s(sTry)}, {s(sTry)}, 1', f'    s_cbranch_scc1 {giveup}']
    else: st+= [f'    s_sub_u32 {s(sCnt)}, {s(sCnt)}, 1', '    s_cbranch_scc1 L_end']
    st+= ['    '+x.strip() for x in pre.split('\n') if x.strip()]
    if sleep: st.append(f'    s_sleep {sleep}')
    a.lines[k:k]=st
def fstamp():
    if cfg.stamps in (2,3): stamp()
def stamp():
    if not cfg.stamps or cfg.stamps==4: return
    a(f'''{'s_memtime' if cfg.stamps==2 else 's_memrealtime'} {s(sTS,2)}
    s_waitcnt lgkmcnt(0)
    s_mov_b32 m0, {s(sStampI)}
    s_add_u32 {s(sStampI)}, {s(sStampI)}, 1
    v_writelane_b32 {v(vSTMP)}, {s(sTS)}, m0''')
def dump_stamps():
    if not cfg.stamps: return
    a(f's_memrealtime {s(sTS,2)}\ns_memtime {s(sTS+2,2)}\ns_waitcnt lgkmcnt(0)\nv_writelane_b32 {v(vSTMP)}, {s(sTS)}, 61\nv_writelane_b32 {v(vSTMP)}, {s(sTS+2)}, 60')
    if cfg.cal>=0:
        lab='L_cal%d'%len(a.lines)
        a(f'''s_cmp_lg_u32 s2, {cfg.calwg}
        s_cbranch_scc1 {lab}
        s_cmp_lg_u32 {s(sW)}, 0
        s_cbranch_scc1 {lab}
        v_readlane_b32 {s(sT)}, {v(vSTMP)}, {cfg.cal}
        v_readlane_b32 {s(sT+1)}, {v(vSTMP)}, 63
        s_sub_u32 {s(sT)}, {s(sT)}, {s(sT+1)}
        s_lshl_b32 {s(sT)}, {s(sT)}, 2
        s_add_u32 {s(sT)}, {s(sT)}, 3000
        s_min_u32 {s(sT)}, {s(sT)}, 50000
        {lab}_l:
        s_memrealtime {s(sTS,2)}
        s_waitcnt lgkmcnt(0)
        s_sub_u32 {s(sT+2)}, {s(sTS)}, {s(sT+1)}
        s_cmp_lt_u32 {s(sT+2)}, {s(sT)}
        s_cbranch_scc1 {lab}_l
        {lab}:''')
    a(f'''s_lshl_b32 {s(sT)}, s2, 11
    s_lshl_b32 {s(sT+1)}, {s(sW)}, 8
    s_add_u32 {s(sT)}, {s(sT)}, {s(sT+1)}
    s_add_u32 {s(sT)}, {s(sT)}, {STAMP}
    v_lshlrev_b32 {v(vLane)}, 2, {v(vLane)}
    buffer_store_dword {v(vSTMP)}, {v(vLane)}, {WS}, {s(sT)} offen''')
def maxchk(regs, t):
    regs=list(regs)
    a(f'v_max3_u32 {v(t)}, {v(regs[0])}, {v(regs[1])}, {v(regs[2])}')
    rest=regs[3:]
    while len(rest)>=2:
        a(f'v_max3_u32 {v(t)}, {v(t)}, {v(rest[0])}, {v(rest[1])}'); rest=rest[2:]
    if rest: a(f'v_max_u32 {v(t)}, {v(t)}, {v(rest[0])}')
    a(f'v_cmp_eq_u32 vcc, -1, {v(t)}')
def phchk(regs, t):
    regs=list(regs)
    a(f'v_bitop3_b32 {v(t)}, {v(regs[0])}, {v(regs[1])}, {s(sPh)} bitop3:0x7e')
    for r in regs[2:]: a(f'v_bitop3_b32 {v(t)}, {v(t)}, {v(r)}, {s(sPh)} bitop3:0xf6')
    a(f'v_and_b32 {v(t)}, 1, {v(t)}\nv_cmp_ne_u32 vcc, 0, {v(t)}')
def tag4chk(r):
    for k in range(4): a(f'v_xor_b32 {v(r+k)}, {s(sTag)}, {v(r+k)}')
    a(f'v_or3_b32 {v(r)}, {v(r)}, {v(r+1)}, {v(r+2)}\nv_or_b32 {v(r)}, {v(r)}, {v(r+3)}\nv_cmp_ne_u32 vcc, 0, {v(r)}')
DPP='row_mask:0xf bank_mask:0xf'

def fft_core(xr, xi, U, V, F, P, fill1='', fill2=''):
    Ur,Ui=U,U+4
    a(f'v_mfma_f32_16x16x32_f16 {v(Ur,4)}, {v(xr,4)}, {v(B1C,4)}, 0')
    a(f'v_mfma_f32_16x16x32_f16 {v(Ui,4)}, {v(xr,4)}, {v(B1N,4)}, 0')
    if xi is not None:
        a(f'v_mfma_f32_16x16x32_f16 {v(Ur,4)}, {v(xi,4)}, {v(B1S,4)}, {v(Ur,4)}')
        a(f'v_mfma_f32_16x16x32_f16 {v(Ui,4)}, {v(xi,4)}, {v(B1C,4)}, {v(Ui,4)}')
    a(fill1)
    Vr,Vi=V,V+4
    for h in (0,2):
        a(f'v_pk_mul_f32 {v(Vi+h,2)}, {v(Ur+h,2)}, {v(TWS+h,2)}')
    for h in (0,2):
        a(f'v_pk_mul_f32 {v(Vr+h,2)}, {v(Ui+h,2)}, {v(TWS+h,2)}')
    for h in (0,2):
        a(f'v_pk_fma_f32 {v(Vr+h,2)}, {v(Ur+h,2)}, {v(TWC+h,2)}, {v(Vr+h,2)}')
        a(f'v_pk_fma_f32 {v(Vi+h,2)}, {v(Ui+h,2)}, {v(TWC+h,2)}, {v(Vi+h,2)} neg_lo:[0,0,1] neg_hi:[0,0,1]')
    for r in range(4): a(f'v_cvt_pk_f16_f32 {v(P+r)}, {v(Vr+r)}, {v(Vi+r)}')
    a(f'v_mfma_f32_16x16x32_f16 {v(F,4)}, {v(A2R,4)}, {v(P,4)}, 0')
    a(f'v_mfma_f32_16x16x32_f16 {v(F+4,4)}, {v(A2I,4)}, {v(P,4)}, 0')
    a(fill2)
    for r in range(4): a(f'v_cvt_pk_f16_f32 {v(P+r)}, {v(F+r)}, {v(F+4+r)}')

SENT=T+4
def g2late():
    return '\n'.join(f'v_mov_b32 {v(LNP+k)}, -1' for k in range(4))+f'\ns_mov_b32 {s(sT+14)}, {GBASE+GR}\nbuffer_store_dwordx4 {v(LNP,4)}, {v(vGst)}, {WS}, {s(sT+14)} offen sc1'

def main_prologue():
    t=T
    X0=BC
    a(f'''
    s_mul_i32 {s(sLld)}, {s(sX)}, {LX}
    s_add_u32 {s(sLld)}, {s(sLld)}, {LBASE}
    s_mul_i32 {s(sLst)}, {s(sJ)}, {PS}
    s_add_u32 {s(sLst)}, {s(sLst)}, {s(sLld)}
    v_lshlrev_b32 {v(t)}, 4, v0
    v_lshrrev_b32 {v(t+1)}, 4, v0
    {f's_load_dword {s(sTag)}, s[8:9], 0' if not cfg.ep0 else ''}
    ''')
    a(f'''
    buffer_load_dwordx4 {v(X0+8,4)}, {v(t)}, {WS}, {s(sLst)} offen sc1
    s_mov_b32 {s(sG0)}, {GBASE}
    s_mul_i32 {s(sT)}, {s(sX)}, {GS}
    s_add_u32 {s(sT+2)}, {s(sJ)}, 24
    s_and_b32 {s(sT+2)}, {s(sT+2)}, 24
    s_lshl_b32 {s(sT+2)}, {s(sT+2)}, 13
    s_add_u32 {s(sT)}, {s(sT)}, {s(sT+2)}
    s_and_b32 {s(sT+2)}, {s(sJ)}, 7
    s_cmp_lt_u32 {s(sJ)}, 8
    s_cselect_b32 {s(sT+3)}, 7, 8
    s_cselect_b32 {s(sT+4)}, 112, 0
    s_lshl_b32 {s(sT+2)}, {s(sT+2)}, {s(sT+3)}
    s_add_u32 {s(sT)}, {s(sT)}, {s(sT+2)}
    v_lshlrev_b32 {v(t+2)}, 4, {v(vN)}
    v_lshl_add_u32 {v(vGst)}, {v(t+1)}, 11, {v(t+2)}
    v_and_b32 {v(t+3)}, 8, {v(vN)}
    v_mad_u32_u24 {v(vGst)}, {v(t+3)}, {s(sT+4)}, {v(vGst)}
    v_add_u32 {v(vGst)}, {s(sT)}, {v(vGst)}
    ''')
    a(f'''
    buffer_store_dwordx4 {v(SENT,4)}, {v(vGst)}, {WS}, {s(sG0)} offen sc1
    v_and_b32 {v(BC+6)}, 0x3f0, {v(t)}
    global_load_dwordx2 {v(BC+4,2)}, {v(vUW)}, s[16:17]
    global_load_dwordx4 {v(WV,4)}, {v(BC+6)}, s[16:17]
    s_cmp_lg_u32 {s(sW)}, 0
    s_cbranch_scc1 L_nw0 ;!nd
    buffer_load_dword {v(BC+12)}, off, {WS}, 0 sc1
    buffer_load_dword {v(X0+7)}, {v(vL8)}, {WS}, {s(sTabLd)} offen sc1
    s_and_b32 {s(sT+14)}, {s(sJ)}, 24
    s_add_u32 {s(sT+14)}, {s(sT+14)}, {s(sX)}
    s_and_b32 {s(sT+13)}, {s(sJ)}, 7
    s_lshl3_add_u32 {s(sT+15)}, {s(sT+14)}, {s(sT+13)}
    s_lshl_b32 {s(sT+15)}, {s(sT+15)}, 10
    s_cmp_lt_u32 {s(sT+14)}, 4
    s_cselect_b32 {s(sT+15)}, s10, {s(sT+15)}
    buffer_store_dwordx4 {v(SENT,4)}, {v(t)}, {WS}, {s(sT+15)} offen sc1
    L_nw0:
    ''')
    if cfg.exp&2: stamp(); a('s_waitcnt vmcnt(4)'); stamp()
    c=t+8; co,si=c+8,c+12
    a(f'''
    s_lshr_b32 {s(sT)}, {s(sJ)}, 2
    s_and_b32 {s(sT)}, {s(sT)}, 6                 ; 2*(j>>3)
    s_lshl_b32 {s(sT+1)}, {s(sW)}, 2
    s_and_b32 {s(sT+1)}, {s(sT+1)}, 8             ; 2*4*((w>>1)&1)
    s_cmp_lt_u32 {s(sJ)}, 8
    s_cselect_b32 {s(sT)}, {s(sT+1)}, {s(sT)}
    s_lshl_b32 {s(sT+1)}, {s(sW)}, 4
    s_and_b32 {s(sT+1)}, {s(sT+1)}, 16            ; 16*(w&1)
    s_cmp_ge_u32 {s(sW)}, 4
    s_cselect_b32 {s(sT+2)}, {s(sT+1)}, 0         ; 16k
    s_cselect_b32 {s(sT)}, {s(sT)}, 0
    s_cmp_eq_u32 {s(sW)}, 3
    s_cselect_b32 {s(sT)}, 16, {s(sT)}
    s_lshl_b32 {s(sT+3)}, {s(sW)}, 2
    s_lshr_b32 {s(sT+3)}, 0x44440054, {s(sT+3)}
    s_and_b32 {s(sT+3)}, {s(sT+3)}, 15            ; log2 A
    v_lshlrev_b32 {v(c)}, {s(sT+3)}, {v(vN)}
    v_add_u32 {v(c)}, {s(sT)}, {v(c)}
    v_lshl_add_u32 {v(c+1)}, {v(vQ)}, 2, {s(sT+2)}
    v_cvt_f32_u32 {v(c)}, {v(c)}
    v_cvt_f32_u32 {v(c+1)}, {v(c+1)}
    s_mov_b32 {s(sK512)}, {fbits(1/512)}
    v_mul_f32 {v(c)}, {s(sK512)}, {v(c)}
    v_mul_f32 {v(c+4)}, {v(c+1)}, {v(c)}
    v_add_f32 {v(c+5)}, {v(c+4)}, {v(c)}
    v_add_f32 {v(c+6)}, {v(c+5)}, {v(c)}
    v_add_f32 {v(c+7)}, {v(c+6)}, {v(c)}
    ''')
    fill=[f's_mov_b32 {s(sEps)}, {fbits(1e-5)}', f's_mov_b32 {s(sEps+1)}, {fbits(1e-5)}', f's_mov_b32 {s(sC16)}, {fbits(1/16)}', f's_mov_b32 {s(sC16+1)}, {fbits(1/16)}',
          f's_mov_b32 {s(sTop)}, 0x80000000', f's_mov_b32 {s(sQmask)}, 0x11111111', f's_mov_b32 {s(sQmask+1)}, 0x11111111', f's_mov_b32 {s(sG4)}, {GBASE+4*GS}']
    for r in range(4):
        a(f'v_cos_f32 {v(co+r)}, {v(c+4+r)}'); a(fill[2*r])
        a(f'v_sin_f32 {v(si+r)}, {v(c+4+r)}'); a(fill[2*r+1])
    a(f'''
    s_lshl_b32 {s(sT)}, {s(sW)}, 11
    s_add_u32 {s(sT)}, {s(sT)}, {L_CX}
    v_lshlrev_b32 {v(c+2)}, 4, {v(vLane)}
    v_add_u32 {v(c+3)}, {s(sT)}, {v(c+2)}
    s_and_b32 {s(sT)}, {s(sW)}, 6
    s_cmp_eq_u32 {s(sT)}, 2
    s_cbranch_scc1 L_cw
    s_cmp_eq_u32 {s(sW)}, 1
    s_cbranch_scc1 L_cri
    v_cvt_pk_f16_f32 {v(co)}, {v(co)}, {v(co+1)}
    v_cvt_pk_f16_f32 {v(co+1)}, {v(co+2)}, {v(co+3)}
    v_cvt_pk_f16_f32 {v(co+2)}, {v(si)}, {v(si+1)}
    v_cvt_pk_f16_f32 {v(co+3)}, {v(si+2)}, {v(si+3)}
    s_branch L_cw
    L_cri:
    ''')
    for r in range(4):
        a(f'v_cvt_pk_f16_f32 {v(c+4)}, {v(co+r)}, {v(si+r)}')
        a(f'v_cvt_pk_f16_f32 {v(si+r)}, -{v(si+r)}, {v(co+r)}')
        a(f'v_mov_b32 {v(co+r)}, {v(c+4)}')
    a(f'''
    L_cw:
    ds_write_b128 {v(c+3)}, {v(co,4)}
    ds_write_b128 {v(c+3)}, {v(si,4)} offset:1024
    v_lshrrev_b32 {v(c+4)}, 2, {v(vN)}
    v_and_b32 {v(c+5)}, 2, {v(vN)}
    v_and_b32 {v(c+6)}, 14, {v(vN)}
    v_cmp_eq_u32 vcc, 2, {v(c+6)}
    v_lshlrev_b32 {v(vStR)}, 8, {v(vQ)}
    v_cndmask_b32 {v(c+4)}, {v(c+4)}, 4, vcc
    v_cndmask_b32 {v(c+5)}, {v(c+5)}, 0, vcc
    v_mul_u32_u24 {v(c+6)}, {v(c+4)}, {v(vQ)}
    v_lshl_add_u32 {v(c+6)}, {v(c+6)}, 1, {v(c+5)}
    v_add_u32 {v(c+7)}, {v(c+6)}, {v(c+4)}
    v_cvt_f32_u32 {v(c+6)}, {v(c+6)}
    v_cvt_f32_u32 {v(c+7)}, {v(c+7)}
    v_mul_f32 {v(c+6)}, 0x3e000000, {v(c+6)}
    v_mul_f32 {v(c+7)}, 0x3e000000, {v(c+7)}
    v_cos_f32 {v(c+6)}, {v(c+6)}
    v_cos_f32 {v(c+7)}, {v(c+7)}
    v_and_b32 {v(c+5)}, 1, {v(vN)}
    v_cmp_eq_u32 vcc, 0, {v(c+5)}
    v_cvt_pk_f16_f32 {v(c+6)}, {v(c+6)}, {v(c+7)}
    v_mov_b32 {v(c+5)}, 0x80008000
    v_cndmask_b32 {v(A8)}, 0, {v(c+6)}, vcc
    v_cndmask_b32 {v(A8+1)}, {v(c+6)}, 0, vcc
    v_cndmask_b32 {v(c+5)}, {v(c+5)}, 0, vcc
    s_lshl_b32 {s(sT+1)}, {s(sT+1)}, 7            ; h*2048
    v_add_u32 {v(c+6)}, {s(sT+1)}, {v(c+2)}
    s_lshl_b32 {s(sT+2)}, {s(sW)}, 11
    s_and_b32 {s(sT+2)}, {s(sT+2)}, 4096          ; ((w>>1)&1)*4096
    v_add_u32 {v(c+7)}, {s(sT+2)}, {v(c+2)}
    ''')
    if cfg.exp&4: stamp()
    a(f'''
    s_waitcnt lgkmcnt(0)
    s_barrier
    ''')
    if cfg.exp&4: stamp()
    a(f'''
    ds_read_b128 {v(B1N,4)}, {v(c+2)} offset:{L_CX}
    ds_read_b128 {v(A2R,4)}, {v(c+2)} offset:{L_CX+2048}
    ds_read_b128 {v(A2I,4)}, {v(c+2)} offset:{L_CX+2048+1024}
    ds_read_b128 {v(TWC,4)}, {v(c+6)} offset:{L_CX+4096}
    ds_read_b128 {v(TWS,4)}, {v(c+6)} offset:{L_CX+4096+1024}
    ds_read2st64_b64 {v(YC,4)}, {v(c+7)} offset0:{(L_CX+4*2048)//512} offset1:{(L_CX+5*2048)//512}
    v_add_u32 {v(c+7)}, 8, {v(c+7)}
    ds_read2st64_b64 {v(YS,4)}, {v(c+7)} offset0:{(L_CX+4*2048)//512} offset1:{(L_CX+5*2048)//512}
    v_and_b32 {v(c+4)}, 4, {v(vN)}
    s_lshl_b32 {s(sT)}, {s(sW)}, 2
    v_lshl_add_u32 {v(vStW)}, {v(t+3)}, 2, {v(vStR)}
    v_lshl_add_u32 {v(vStW)}, {v(c+4)}, 4, {v(vStW)}
    v_add_u32 {v(vStW)}, {s(sT)}, {v(vStW)}
    v_and_b32 {v(c+4)}, 7, {v(vN)}
    v_lshl_add_u32 {v(vStR)}, {v(c+4)}, 5, {v(vStR)}
    v_lshl_add_u32 {v(vUW)}, {v(vQ)}, 11, {v(vUW)}
    v_add_u32 {v(vUW)}, {L_U}, {v(vUW)}
    s_lshr_b32 {s(sT)}, {s(sW)}, 1
    s_lshl_b32 {s(sT)}, {s(sT)}, 11
    s_add_u32 {s(sT+2)}, {s(sT)}, {L_U}
    v_lshl_add_u32 {v(vUR)}, {v(vLane)}, 3, {s(sT+2)}
    ; vLst = w'*2048 + 512q + 64h + 4n
    s_lshr_b32 {s(sT+2)}, {s(sT+1)}, 5
    s_add_u32 {s(sT)}, {s(sT)}, {s(sT+2)}
    v_lshl_add_u32 {v(vLst)}, {v(vQ)}, 9, {s(sT)}
    v_lshl_add_u32 {v(vLst)}, {v(vN)}, 2, {v(vLst)}
    s_lshl_b32 {s(sT+3)}, {s(sW)}, 31             ; h sign
    s_mov_b32 {s(sT+5)}, 0x80008000
    s_mov_b32 {s(sIt)}, 0
    s_waitcnt lgkmcnt(6)
    v_xor_b32 {v(B1C)}, {s(sT+3)}, {v(B1N)}
    v_xor_b32 {v(B1C+1)}, {s(sT+3)}, {v(B1N+1)}
    v_xor_b32 {v(B1S)}, {s(sT+3)}, {v(B1N+2)}
    v_xor_b32 {v(B1S+1)}, {s(sT+3)}, {v(B1N+3)}
    v_xor_b32 {v(B1C+2)}, {v(B1C)}, {v(c+5)}
    v_xor_b32 {v(B1C+3)}, {v(B1C+1)}, {v(c+5)}
    v_xor_b32 {v(B1S+2)}, {v(B1S)}, {v(c+5)}
    v_xor_b32 {v(B1S+3)}, {v(B1S+1)}, {v(c+5)}
    ''')
    for r in range(4): a(f'v_xor_b32 {v(B1N+r)}, {s(sT+5)}, {v(B1S+r)}')
    a(f'''
    s_waitcnt vmcnt(7)
    s_cmp_eq_u32 {s(sW)}, 0
    s_cbranch_scc1 L_x0 ;!nd
    s_waitcnt vmcnt(4)
    L_x0:
    ''')
    for rho in (0,1):
        for k in (0,1):
            src=X0+2*rho+k
            a(f'v_lshlrev_b32 {v(X+4*k+rho)}, 16, {v(src)}')
            a(f'v_and_b32 {v(X+4*k+2+rho)}, 0xffff0000, {v(src)}')
    if not cfg.ep0: a(f's_add_u32 {s(sTag)}, {s(sTag)}, 1')

def y_setup(u):
    a(f'''
    s_lshl_b32 {s(sT+4)}, {s(sW)}, 29
    s_and_b32 {s(sT+4)}, {s(sT+4)}, {s(sTop)}
    v_lshrrev_b32 {v(u+1)}, 4, v0
    v_lshlrev_b32 {v(u+2)}, 4, {v(vN)}
    v_lshrrev_b32 {v(vYIR)}, 2, {v(vN)}
    v_mul_u32_u24 {v(vYIR)}, {YIS}, {v(vYIR)}
    ''')
    for r in range(8): a(f'v_xor_b32 {v(YC+r)}, {s(sT+4)}, {v(YC+r)}')
    a(f'''
    s_and_b32 {s(sT+1)}, {s(sW)}, 3
    s_lshl_b32 {s(sT+1)}, {s(sT+1)}, 6            ; 64cb
    s_lshr_b32 {s(sT)}, {s(sW)}, 2
    s_mul_i32 {s(sT)}, {s(sT)}, {16*272}
    s_add_u32 {s(sT)}, {s(sT)}, {s(sT+1)}
    s_add_u32 {s(sT)}, {s(sT)}, {L_YT}
    v_mul_u32_u24 {v(vYW)}, 272, {v(vN)}
    v_lshl_add_u32 {v(vYW)}, {v(vQ)}, 4, {v(vYW)}
    v_add_u32 {v(vYW)}, {s(sT)}, {v(vYW)}
    v_mul_u32_u24 {v(vYR)}, 272, {v(u+1)}
    v_add_u32 {v(vYR)}, {v(vYR)}, {v(u+2)}
    v_add_u32 {v(vYR)}, {L_YT}, {v(vYR)}
    s_add_u32 {s(sT+1)}, {s(sT+1)}, {L_YI}
    v_mul_u32_u24 {v(u+3)}, {4*YIS}, {v(vQ)}
    v_and_b32 {v(u+4)}, 0x30, {v(u+2)}
    v_add3_u32 {v(vYIR)}, {v(vYIR)}, {v(u+3)}, {v(u+4)}
    v_add_u32 {v(vYIR)}, {s(sT+1)}, {v(vYIR)}
    s_cmp_lt_u32 {s(sJ)}, 8
    s_cbranch_scc1 L_aself
    v_mul_u32_u24 {v(vLld)}, {PS}, {v(u+1)}
    v_mul_u32_u24 {v(vYIW)}, {YIS}, {v(u+1)}
    s_lshl_b32 {s(sT)}, {s(sJ)}, 8
    v_add3_u32 {v(vLld)}, {v(vLld)}, {v(u+2)}, {s(sT)}
    v_add_u32 {v(vYIW)}, {v(vYIW)}, {v(u+2)}
    v_mov_b32 {v(vLldM)}, 0
    s_branch L_adone
    L_aself:
    ; s2=(w>>1)*8+(l>>3), u=l&7, which=w&1
    s_lshl_b32 {s(sT)}, {s(sW)}, 2
    s_and_b32 {s(sT)}, {s(sT)}, 24
    v_lshrrev_b32 {v(u+3)}, 3, {v(vLane)}
    v_add_u32 {v(u+3)}, {s(sT)}, {v(u+3)}
    v_and_b32 {v(u+4)}, 0x70, {v(u+2)}
    v_mul_u32_u24 {v(vLldM)}, {PS}, {v(u+3)}
    v_mul_u32_u24 {v(vYIW)}, {YIS}, {v(u+3)}
    s_lshl_b32 {s(sT)}, {s(sJ)}, 7
    s_add_u32 {s(sT+1)}, {s(sT)}, 4
    s_sub_u32 {s(sT)}, {508*4}, {s(sT)}
    v_add3_u32 {v(vLld)}, {v(vLldM)}, {v(u+4)}, {s(sT+1)}
    v_sub_u32 {v(vLldM)}, {v(vLldM)}, {v(u+4)}
    v_add_u32 {v(vLldM)}, {s(sT)}, {v(vLldM)}
    s_and_b32 {s(sT)}, {s(sW)}, 1
    s_lshl_b32 {s(sT)}, {s(sT)}, 7
    v_add3_u32 {v(vYIW)}, {v(vYIW)}, {v(u+4)}, {s(sT)}
    L_adone:
    v_add_u32 {v(vYIW)}, {L_YI}, {v(vYIW)}
    ''')

def xin_consts(c):
    a(f'''
    s_and_b32 {s(sT)}, {s(sX)}, 3                ; 0 => self
    s_lshr_b32 {s(sT+1)}, {s(sW)}, 2
    s_lshr_b32 {s(sT+2)}, {s(sX)}, 2
    s_mov_b32 {s(sSc)}, {fbits(16.0)}
    s_cmp_eq_u32 {s(sT)}, 0
    s_cselect_b32 {s(sMir)}, {s(sT+1)}, {s(sT+2)}
    s_cselect_b32 {s(sSc)}, {fbits(8.0)}, {s(sSc)}
    s_cselect_b32 {s(sDsc)}, {fbits(1/8)}, {s(sC16)}
    s_cselect_b32 {s(sT+3)}, -4, 0
    s_mov_b32 {s(sSc+1)}, {s(sSc)}
    s_sub_u32 {s(sT+4)}, 256, s2
    s_and_b32 {s(sT+4)}, {s(sT+4)}, 255
    s_cmp_eq_u32 {s(sMir)}, 0
    s_cselect_b32 {s(sT+4)}, s2, {s(sT+4)}       ; source g
    s_cselect_b32 {s(sT+5)}, 16, -16
    s_cselect_b32 {s(sT+6)}, 0, {509*4}
    s_cselect_b32 {s(sT+7)}, 1.0, -1.0
    s_add_u32 {s(sT+3)}, {s(sT+3)}, {s(sT+6)}
    s_mul_i32 {s(sT+6)}, {s(sT+5)}, {s(sW)}
    s_lshl_b32 {s(sT+6)}, {s(sT+6)}, 4
    s_add_u32 {s(sT+3)}, {s(sT+3)}, {s(sT+6)}
    s_lshr_b32 {s(sT+6)}, {s(sT+4)}, 3
    s_lshl_b32 {s(sT+6)}, {s(sT+6)}, 11
    s_add_u32 {s(sT+3)}, {s(sT+3)}, {s(sT+6)}
    s_add_u32 {s(sT+6)}, {s(sT+4)}, 3
    s_and_b32 {s(sT+6)}, {s(sT+6)}, 3
    s_lshl_b32 {s(sT+6)}, {s(sT+6)}, 16
    s_add_u32 {s(sT+3)}, {s(sT+3)}, {s(sT+6)}
    s_and_b32 {s(sT+6)}, {s(sT+4)}, 4
    s_lshl_b32 {s(sT+6)}, {s(sT+6)}, 8
    s_add_u32 {s(sT+3)}, {s(sT+3)}, {s(sT+6)}
    v_mul_i32_i24 {v(vGld)}, {s(sT+5)}, {v(vN)}
    v_mul_u32_u24 {v(c+4)}, {GS}, {v(vQ)}
    v_add3_u32 {v(vGld)}, {v(vGld)}, {v(c+4)}, {s(sT+3)}
    v_lshrrev_b32 {v(c+4)}, 1, {v(vN)}
    v_and_b32 {v(c+4)}, 6, {v(c+4)}
    v_and_or_b32 {v(c+4)}, {v(vN)}, 1, {v(c+4)}
    v_lshl_add_u32 {v(AD)}, {v(c+4)}, 8, s2
    v_cvt_f32_u32 {v(c+4)}, {v(AD)}
    v_cvt_f32_u32 {v(c+5)}, {v(vQ)}
    v_mul_f32 {v(c+4)}, {fbits(1/2048)}, {v(c+4)}
    v_mul_f32 {v(c+4)}, {s(sT+7)}, {v(c+4)}
    v_mul_f32 {v(c+5)}, {v(c+4)}, {v(c+5)}
    v_fma_f32 {v(c+6)}, {v(c+4)}, 4.0, {v(c+5)}
    v_cos_f32 {v(c+7)}, {v(c+5)}
    v_sin_f32 {v(c+8)}, {v(c+5)}
    v_cos_f32 {v(c+9)}, {v(c+6)}
    v_sin_f32 {v(c+10)}, {v(c+6)}
    v_bfe_u32 {v(c+4)}, {v(vN)}, 1, 1
    v_cmp_eq_u32 vcc, {s(sMir)}, {v(c+4)}
    v_cvt_pk_f16_f32 {v(c+7)}, {v(c+7)}, {v(c+8)}
    v_cvt_pk_f16_f32 {v(c+9)}, {v(c+9)}, {v(c+10)}
    v_cndmask_b32 {v(XA)}, 0, {v(c+7)}, vcc
    v_cndmask_b32 {v(XA+1)}, {v(c+7)}, 0, vcc
    v_cndmask_b32 {v(XA+2)}, 0, {v(c+9)}, vcc
    v_cndmask_b32 {v(XA+3)}, {v(c+9)}, 0, vcc
    v_and_b32 {v(c+4)}, 0x1cf, v0
    v_cmp_eq_u32 vcc, 0, {v(c+4)}
    v_mov_b32 {v(c+5)}, {s(sSc)}
    s_sub_u32 {s(sT)}, 2047, s2
    v_lshlrev_b32 {v(vInv)}, 9, {v(vQ)}
    v_cndmask_b32 {v(vSc0)}, {v(c+5)}, 0, vcc
    v_cndmask_b32 {v(vSc0+1)}, {v(c+5)}, 0, vcc
    v_sub_u32 {v(vInv)}, {s(sT)}, {v(vInv)}
    s_lshl_b32 {s(sSlot)}, {s(sX)}, 12
    s_add_u32 {s(sSlot)}, {s(sSlot)}, {SLOT}
    ''')

def main_loop():
    t=T
    S1,S2,S3=t,t+2,t+4
    a('L_top:')
    stamp()
    a(f'''
    v_pk_add_f32 {v(S1,2)}, {v(X,2)}, {v(X+2,2)}
    v_pk_add_f32 {v(t+6,2)}, {v(X+4,2)}, {v(X+6,2)}
    v_pk_mul_f32 {v(S2,2)}, {v(X,2)}, {v(X,2)}
    v_pk_mul_f32 {v(S3,2)}, {v(X,2)}, {v(WV,2)} op_sel:[0,0] op_sel_hi:[1,0]
    v_pk_add_f32 {v(S1,2)}, {v(S1,2)}, {v(t+6,2)}
    v_pk_fma_f32 {v(S2,2)}, {v(X+2,2)}, {v(X+2,2)}, {v(S2,2)}
    v_pk_fma_f32 {v(S3,2)}, {v(X+2,2)}, {v(WV,2)}, {v(S3,2)} op_sel:[0,1,0] op_sel_hi:[1,1,1]
    v_add_f32_dpp {v(S1)}, {v(S1)}, {v(S1)} row_ror:8 row_mask:0xf bank_mask:0x3
    v_pk_fma_f32 {v(S2,2)}, {v(X+4,2)}, {v(X+4,2)}, {v(S2,2)}
    v_pk_fma_f32 {v(S3,2)}, {v(X+4,2)}, {v(WV+2,2)}, {v(S3,2)} op_sel:[0,0,0] op_sel_hi:[1,0,1]
    v_add_f32_dpp {v(S1)}, {v(S1+1)}, {v(S1+1)} row_ror:8 row_mask:0xf bank_mask:0xc
    v_pk_fma_f32 {v(S2,2)}, {v(X+6,2)}, {v(X+6,2)}, {v(S2,2)}
    v_pk_fma_f32 {v(S3,2)}, {v(X+6,2)}, {v(WV+2,2)}, {v(S3,2)} op_sel:[0,1,0] op_sel_hi:[1,1,1]
    v_add_f32_dpp {v(S1)}, {v(S1)}, {v(S1)} row_half_mirror row_mask:0xf bank_mask:0x5
    v_add_f32_dpp {v(S2)}, {v(S2)}, {v(S2)} row_ror:8 row_mask:0xf bank_mask:0x3
    v_add_f32_dpp {v(S3)}, {v(S3)}, {v(S3)} row_ror:8 row_mask:0xf bank_mask:0x3
    v_add_f32_dpp {v(S2)}, {v(S2+1)}, {v(S2+1)} row_ror:8 row_mask:0xf bank_mask:0xc
    v_add_f32_dpp {v(S3)}, {v(S3+1)}, {v(S3+1)} row_ror:8 row_mask:0xf bank_mask:0xc
    v_add_f32_dpp {v(S1)}, {v(S2)}, {v(S2)} row_half_mirror row_mask:0xf bank_mask:0xa
    v_add_f32_dpp {v(S3)}, {v(S3)}, {v(S3)} row_half_mirror {DPP}
    v_add_f32_dpp {v(S1)}, {v(S1)}, {v(S1)} quad_perm:[1,0,3,2] {DPP}
    v_add_f32_dpp {v(S3)}, {v(S3)}, {v(S3)} quad_perm:[1,0,3,2] {DPP}
    v_add_f32_dpp {v(S1)}, {v(S1)}, {v(S1)} quad_perm:[2,3,0,1] {DPP}
    v_add_f32_dpp {v(S3)}, {v(S3)}, {v(S3)} quad_perm:[2,3,0,1] {DPP}
    s_mov_b64 exec, {s(sQmask,2)}
    ds_write2_b32 {v(vStW)}, {v(S1)}, {v(S3)} offset0:0 offset1:32
    s_mov_b64 exec, -1
    ;@F
    ''')
    if cfg.g2pos==4: a(f's_cmp_lg_u32 {s(sIt)}, 1\ns_cbranch_scc1 L_nw\ns_waitcnt vmcnt(0)\nL_nw:')
    a(f'''
    s_waitcnt lgkmcnt(0)
    s_barrier
    ;@F
    ds_read_b128 {v(t,4)}, {v(vStR)}
    ds_read_b128 {v(t+4,4)}, {v(vStR)} offset:16
    s_waitcnt lgkmcnt(0)
    v_pk_add_f32 {v(t,2)}, {v(t,2)}, {v(t+2,2)}
    v_pk_add_f32 {v(t+4,2)}, {v(t+4,2)}, {v(t+6,2)}
    v_pk_add_f32 {v(t,2)}, {v(t,2)}, {v(t+4,2)}
    v_add_f32 {v(t)}, {v(t)}, {v(t+1)}
    v_mul_f32 {v(t+7)}, {s(sK512)}, {v(t)}
    ''')
    VAR,RS,CC,NM=t+8,t+10,t+12,t+14
    K=t+16
    a(f'''
    v_mov_b32_dpp {v(MM)}, {v(t+7)} row_newbcast:0 {DPP}
    v_mov_b32_dpp {v(MM+1)}, {v(t+7)} row_newbcast:1 {DPP}
    v_mov_b32_dpp {v(S2)}, {v(t+7)} row_newbcast:2 {DPP}
    v_mov_b32_dpp {v(S2+1)}, {v(t+7)} row_newbcast:3 {DPP}
    v_mov_b32_dpp {v(S3)}, {v(t+7)} row_newbcast:4 {DPP}
    v_pk_fma_f32 {v(VAR,2)}, {v(MM,2)}, {v(MM,2)}, {v(S2,2)} neg_lo:[1,0,0] neg_hi:[1,0,0]
    v_mov_b32_dpp {v(S3+1)}, {v(t+7)} row_newbcast:5 {DPP}
    v_pk_add_f32 {v(S1,2)}, {v(VAR,2)}, {s(sEps,2)}
    s_cmp_eq_u32 {s(sIt)}, 0
    v_rsq_f32_e64 {v(RS)}, |{v(S1)}|
    v_rsq_f32_e64 {v(RS+1)}, |{v(S1+1)}|
    s_cbranch_scc1 L_z0 ;!nd
    v_pk_mul_f32 {v(S3,2)}, {v(S3,2)}, {v(RS,2)}
    v_add_u32 {v(K+2)}, 0xffffff00, {v(vInv)}
    v_ashrrev_i32 {v(K)}, 31, {v(S3)}
    v_ashrrev_i32 {v(K+1)}, 31, {v(S3+1)}
    v_bitop3_b32 {v(K)}, {v(S3)}, {v(K)}, {s(sTop)} bitop3:0x1e
    v_bitop3_b32 {v(K+1)}, {v(S3+1)}, {v(K+1)}, {s(sTop)} bitop3:0x1e
    v_bfi_b32 {v(K)}, {s(sM7FF)}, {v(vInv)}, {v(K)}
    v_bfi_b32 {v(K+1)}, {s(sM7FF)}, {v(K+2)}, {v(K+1)}
    v_max_u32 {v(K+1)}, {v(K)}, {v(K+1)}
    v_pk_add_f32 {v(CC,2)}, {v(RS,2)}, 1.0 op_sel_hi:[1,0]
    v_mov_b32 {v(K)}, {s(sTag)}
    v_max_u32_dpp {v(K+1)}, {v(K+1)}, {v(K+1)} row_bcast:15 row_mask:0xa bank_mask:0xf
    v_pk_mul_f32 {v(VAR,2)}, {v(VAR,2)}, {v(CC,2)}
    s_cmp_lg_u32 {s(sW)}, 0
    v_max_u32_dpp {v(K+1)}, {v(K+1)}, {v(K+1)} row_bcast:31 row_mask:0xc bank_mask:0xf
    s_cbranch_scc1 L_nost ;!nd
    s_mov_b32 exec_lo, 0
    s_mov_b32 exec_hi, {s(sTop)}
    s_cmp_eq_u32 {s(sFast)}, 0
    s_cbranch_scc1 L_tabst_slow ;!nd
    buffer_store_dwordx2 {v(K,2)}, off, {WS}, {s(sTabSt)}
    L_tabst_back:
    s_mov_b64 exec, -1
    L_nost:
    v_readlane_b32 {s(sKey)}, {v(K+1)}, 63
    v_pk_mul_f32 {v(NM,2)}, {v(MM,2)}, {v(RS,2)}
    v_pk_fma_f32 {v(VAR,2)}, {v(VAR,2)}, {v(CC,2)}, {s(sEps,2)}
    ''')
    Z=t+18
    for c_ in range(4):
        a(f'v_pk_fma_f32 {v(Z+2*c_,2)}, {v(X+2*c_,2)}, {v(RS,2)}, {v(NM,2)} neg_lo:[0,0,1] neg_hi:[0,0,1]')
        if c_==0: a(f'v_rsq_f32_e64 {v(RS2)}, |{v(VAR)}|')
        if c_==1: a(f'v_rsq_f32_e64 {v(RS2+1)}, |{v(VAR+1)}|')
    for c_ in range(4):
        a(f'v_pk_add_f32 {v(X+2*c_,2)}, {v(X+2*c_,2)}, {v(Z+2*c_,2)}')
    for rho in (0,1):
        for k in (0,1):
            a(f'v_cvt_pk_bf16_f32 {v(LNP+2*rho+k)}, {v(Z+4*k+rho)}, {v(Z+4*k+2+rho)}')
    a(f'''
    ''')
    if cfg.pub0: a(f'''
    s_bitcmp0_b32 {s(sKey)}, 8
    s_cselect_b64 vcc, -1, 0
    s_andn2_b32 {s(sT+1)}, 0x600, {s(sKey)}
    s_lshr_b32 {s(sT+1)}, {s(sT+1)}, 5
    v_and_b32 {v(K)}, 0x3ff, {v(vXoff)}
    v_cndmask_b32 {v(LNP)}, {v(LNP)}, {v(LNP+2)}, vcc
    v_cndmask_b32 {v(LNP+1)}, {v(LNP+1)}, {v(LNP+3)}, vcc
    s_bfm_b64 exec, 16, {s(sT+1)}
    ds_write_b64 {v(K)}, {v(LNP,2)} offset:{L_ROW}
    s_mov_b64 exec, -1
    ''')
    a(f'''
    s_cmp_eq_u32 {s(sIt)}, 2
    s_cbranch_scc1 L_tab2e ;!nd
    v_mov_b32 {v(RS)}, {v(RS2)}
    v_mov_b32 {v(RS+1)}, {v(RS2+1)}
    L_z0:
    v_pk_mul_f32 {v(CC,2)}, {v(RS,2)}, {s(sC16,2)}
    L_z:
    ;@F
    ''')
    ZP=t; D0=t+4; D1=t+8
    a(f'v_pk_mul_f32 {v(NM,2)}, {v(MM,2)}, {v(CC,2)}')
    for c_ in range(4):
        a(f'v_pk_fma_f32 {v(Z+2*c_,2)}, {v(X+2*c_,2)}, {v(CC,2)}, {v(NM,2)} neg_lo:[0,0,1] neg_hi:[0,0,1]')
    for c_ in range(4): a(f'v_cvt_pk_f16_f32 {v(ZP+c_)}, {v(Z+2*c_)}, {v(Z+2*c_+1)}')
    a(f'''
    v_mfma_f32_16x16x16_f16 {v(D0,4)}, {v(A8,2)}, {v(ZP,2)}, 0
    v_mfma_f32_16x16x16_f16 {v(D1,4)}, {v(A8,2)}, {v(ZP+2,2)}, 0
    s_nop 6
    v_cvt_pk_f16_f32 {v(ZP)}, {v(D0)}, {v(D0+1)}
    v_cvt_pk_f16_f32 {v(ZP+1)}, {v(D1)}, {v(D1+1)}
    v_cvt_pk_f16_f32 {v(ZP+2)}, {v(D0+2)}, {v(D0+3)}
    v_cvt_pk_f16_f32 {v(ZP+3)}, {v(D1+2)}, {v(D1+3)}
    ds_write_b64 {v(vUW)}, {v(ZP,2)}
    ds_write_b64 {v(vUW)}, {v(ZP+2,2)} offset:1024
    ;@F
    s_waitcnt lgkmcnt(0)
    s_barrier
    ;@F
    ds_read_b64_tr_b16 {v(t,2)}, {v(vUR)}
    ds_read_b64_tr_b16 {v(t+2,2)}, {v(vUR)} offset:512
    ds_read_b64_tr_b16 {v(t+4,2)}, {v(vUR)} offset:1024
    ds_read_b64_tr_b16 {v(t+6,2)}, {v(vUR)} offset:1536
    s_cmp_ge_u32 {s(sW)}, {s(sIt)}
    s_cbranch_scc1 L_tg1 ;!nd
    buffer_load_dwordx2 {v(t+24,2)}, {v(vL8)}, {WS}, {s(sTabLd)} offen sc1
    {f'ds_read_b128 {v(LNP,4)}, {v(vTG)} offset:{L_ROW}' if cfg.pub0 else ''}
    L_tg1:
    L_tg2:
    s_waitcnt lgkmcnt(0)
    ;@F
    ''')
    P=t
    fft_core(t, t+4, t+8, t+16, t+8, P)
    def lstores(fl, ph=None):
        for r in range(4):
            if ph==0: a(f'v_and_b32 {v(P+r)}, -2, {v(P+r)}')
            if ph==1: a(f'v_or_b32 {v(P+r)}, 1, {v(P+r)}')
            a(f'buffer_store_dword {v(P+r)}, {v(vLst)}, {WS}, {s(sLst)} offen offset:{128*r} {fl}')
    TB=t+24
    W_=t+4
    a(f'''
    s_cmp_lg_u32 {s(sIt)}, 0
    s_cbranch_scc1 L_tab1e
    ''')
    lstores('',0)
    stamp()
    a(f'''
    s_branch {'L_flag0' if cfg.pub0 else 'L_pub'}
    L_tab1e:
    s_cmp_eq_u32 {s(sW)}, 0
    s_cbranch_scc1 L_tabw1
    s_branch L_tabbar
    L_tab2e:
    s_cmp_eq_u32 {s(sW)}, 0
    {'s_waitcnt lgkmcnt(0)' if cfg.pub0 else ''}
    {'s_barrier' if cfg.pub0 else ''}
    s_cbranch_scc0 L_tabbar
    {f'ds_read_b128 {v(LNP,4)}, {v(vTG)} offset:{L_ROW}' if cfg.pub0 else ''}
    s_branch L_tab
    L_tab:
    buffer_load_dwordx2 {v(TB,2)}, {v(vL8)}, {WS}, {s(sTabLd)} offen sc1
    L_tabw1:
    s_waitcnt vmcnt(0)
    v_cmp_ne_u32 vcc, {s(sTag)}, {v(TB)}
    ''')
    poll_branch('L_tab', cfg.slp_t, f'''s_cmp_lg_u32 {s(sIt)}, 0
        s_cselect_b32 {s(sT)}, 0, 1
        s_sub_u32 {s(sTry)}, {s(sTry)}, {s(sT)}
        s_cbranch_scc1 L_tab2''')
    a(f'''
    L_tabok:
    v_cmp_ne_u32 vcc, {s(sKey)}, {v(TB+1)}
    v_cmp_lt_u32 {s(sT,2)}, {s(sKey)}, {v(TB+1)}
    v_mov_b32 {v(TB)}, {L_FLAG}
    s_cmp_eq_u32 {s(sIt)}, 0
    s_cselect_b32 {s(sT)}, vcc_lo, {s(sT)}
    ''')
    if cfg.pub0: a(f'''
    s_cselect_b32 {s(sT+1)}, 1, {s(sT)}
    s_cmp_lg_u32 {s(sT+1)}, 0
    s_cbranch_scc1 L_np0 ;!nd
    v_mov_b32 {v(TB+1)}, {s(sKey)}
    s_waitcnt lgkmcnt(0)
    buffer_store_dwordx4 {v(LNP,4)}, {v(vTG)}, {WS}, {s(sSlot)} offen sc1
    s_mov_b64 exec, 1
    buffer_store_dword {v(TB+1)}, off, {WS}, {s(sSlot)} offset:3072 sc1
    s_mov_b64 exec, -1
    L_np0:
    ''')
    a(f'''
    v_mov_b32 {v(TB+1)}, {s(sT)}
    ds_write_b32 {v(TB)}, {v(TB+1)}
    s_waitcnt lgkmcnt(0)
    s_barrier
    s_branch L_tabgot
    L_tabbar:
    v_mov_b32 {v(TB)}, {L_FLAG}
    s_barrier
    ds_read_b64 {v(TB,2)}, {v(TB)}
    s_waitcnt lgkmcnt(0)
    v_readfirstlane_b32 {s(sT)}, {v(TB)}
    {f'v_readfirstlane_b32 {s(sTag)}, {v(TB+1)}' if cfg.ep0 else ''}
    L_tabgot:
    s_cmp_eq_u32 {s(sIt)}, 0
    s_cbranch_scc1 L_fastchk ;!nd
    s_mov_b32 {s(sT+9)}, 64
    s_cmp_lg_u32 {s(sT)}, 0
    s_cbranch_scc1 L_winback ;!nd
    L_pub:
    s_andn2_b32 {s(sT)}, {s(sM7FF)}, {s(sKey)}      ; idx
    s_lshr_b32 {s(sT+9)}, {s(sT)}, 8                ; s1
    s_bitcmp1_b32 {s(sT+9)}, 0
    s_cselect_b64 vcc, -1, 0
    s_lshl_b32 {s(sT+1)}, {s(sT+9)}, 3
    s_and_b32 {s(sT+1)}, {s(sT+1)}, 0x30
    {f'v_cndmask_b32 {v(W_)}, {v(LNP)}, {v(LNP+2)}, vcc' if not cfg.pub0 else ''}
    {f'v_cndmask_b32 {v(W_+1)}, {v(LNP+1)}, {v(LNP+3)}, vcc' if not cfg.pub0 else ''}
    v_and_b32 {v(W_+2)}, 0x3ff, {v(vXoff)}
    s_bfm_b64 exec, 16, {s(sT+1)}
    {f'buffer_store_dwordx2 {v(W_,2)}, {v(W_+2)}, {WS}, {s(sSlot)} offen sc1' if not cfg.pub0 else ''}
    s_cmp_lg_u32 {s(sW)}, 0
    s_cbranch_scc1 L_nohdr
    v_mov_b32 {v(W_+8)}, {s(sKey)}
    v_cndmask_b32 {v(W_+9)}, {v(MM)}, {v(MM+1)}, vcc
    v_cndmask_b32 {v(W_+10)}, {v(RS2)}, {v(RS2+1)}, vcc
    v_mov_b32 {v(W_+11)}, {s(sKey)}
    {f'buffer_store_dwordx4 {v(W_+8,4)}, off, {WS}, {s(sSlot)} offset:3072 sc1' if not cfg.pub0 else ''}
    buffer_store_dwordx4 {v(W_+8,4)}, off, {WS}, {s(sSlot)} offset:3200 sc1
    L_nohdr:
    ''')
    for c_ in range(4): a(f'v_cndmask_b32 {v(W_+4+c_)}, {v(X+2*c_)}, {v(X+2*c_+1)}, vcc')
    a(f'''
    v_lshlrev_b32 {v(W_+2)}, 1, {v(W_+2)}
    buffer_store_dwordx4 {v(W_+4,4)}, {v(W_+2)}, {WS}, {s(sSlot)} offen offset:1024 sc1
    s_mov_b64 exec, -1
    s_cmp_eq_u32 {s(sIt)}, 0
    s_cbranch_scc1 L_flag0
    L_winback:
    s_cmp_eq_u32 {s(sIt)}, 2
    s_cbranch_scc1 L_fin
    s_add_u32 {s(sSlot)}, {s(sSlot)}, {SLOTR}
    ''')
    lstores('',1)
    stamp()
    a(f'''
    s_waitcnt vmcnt(0)
    s_branch L_tabdone
    L_flag0:
    ;@F
    s_mov_b32 {s(sFast)}, 1
    s_mov_b32 {s(sPh)}, 0
    s_mov_b32 {s(sNx)}, 0
    s_mov_b32 {s(sKey)}, {s(sXcc)}
    s_mov_b32 {s(sSlot)}, {WSSZ}
    s_xor_b32 {s(sT+12)}, {s(sJ)}, 9
    s_or_b32 {s(sT+12)}, {s(sT+12)}, {s(sW)}
    s_mov_b32 {s(sTry)}, 64
    s_lshl_b32 {s(sT)}, {s(sJ)}, 3
    s_add_u32 {s(sTabSt)}, {s(sTabLd)}, {s(sT)}
    {f'v_mov_b32 {v(t+22)}, {s(sTag)}' if not cfg.ep0 else ''}
    v_mov_b32 {v(t+23)}, {s(sKey)}
    ''')
    if cfg.ypos==1: y_setup(t+4)
    a(f'''
    s_waitcnt vmcnt(0)
    {f'v_add_u32 {v(t+22)}, 1, {v(BC+12)}' if cfg.ep0 else ''}
    ;@F
    s_cmp_eq_u32 {s(sW)}, 0
    s_barrier
    s_cbranch_scc0 L_flag1
    s_mov_b64 exec, 1
    buffer_store_dwordx2 {v(t+22,2)}, off, {WS}, {s(sTabSt)}
    s_mov_b64 exec, -1
    {f'v_mov_b32 {v(t+21)}, {L_FLAG}' if cfg.ep0 else ''}
    {f'ds_write_b32 {v(t+21)}, {v(t+22)} offset:4' if cfg.ep0 else ''}
    {f'v_readfirstlane_b32 {s(sTag)}, {v(t+22)}' if cfg.ep0 else ''}
    L_flag1:
    v_lshlrev_b32 {v(vTG)}, 4, {v(vLane)}
    ''')
    if cfg.ypos==0: y_setup(t+4)
    if cfg.xpos==0: xin_consts(t+4)
    w=BC+8
    a(f'''
    v_mov_b32 {v(w+1)}, 0x3f803f80
    v_dot2_f32_bf16 {v(w)}, {v(WV)}, {v(w+1)}, 0
    v_dot2_f32_bf16 {v(w)}, {v(WV+1)}, {v(w+1)}, {v(w)}
    v_dot2_f32_bf16 {v(w)}, {v(WV+2)}, {v(w+1)}, {v(w)}
    v_dot2_f32_bf16 {v(w)}, {v(WV+3)}, {v(w+1)}, {v(w)}
    v_lshlrev_b32 {v(WV)}, 16, {v(BC+4)}
    v_and_b32 {v(WV+1)}, 0xffff0000, {v(BC+4)}
    v_lshlrev_b32 {v(WV+2)}, 16, {v(BC+5)}
    v_add_f32_dpp {v(w)}, {v(w)}, {v(w)} row_ror:8 {DPP}
    v_and_b32 {v(WV+3)}, 0xffff0000, {v(BC+5)}
    v_mul_f32 {v(WV)}, 0x44000000, {v(WV)}
    v_add_f32_dpp {v(w)}, {v(w)}, {v(w)} row_ror:4 {DPP}
    v_mul_f32 {v(WV+1)}, 0x44000000, {v(WV+1)}
    v_mul_f32 {v(WV+2)}, 0x44000000, {v(WV+2)}
    v_add_f32_dpp {v(w)}, {v(w)}, {v(w)} row_ror:2 {DPP}
    v_mul_f32 {v(WV+3)}, 0x44000000, {v(WV+3)}
    v_add_f32_dpp {v(w)}, {v(w)}, {v(w)} row_ror:1 {DPP}
    v_add_f32_dpp {v(w)}, {v(w)}, {v(w)} row_bcast:15 row_mask:0xa bank_mask:0xf
    v_add_f32_dpp {v(w)}, {v(w)}, {v(w)} row_bcast:31 row_mask:0xc bank_mask:0xf
    v_readlane_b32 {s(sT)}, {v(w)}, 63
    ''')
    for k in range(4): a(f'v_subrev_f32 {v(WV+k)}, {s(sT)}, {v(WV+k)}')
    a(f'''
    s_cmp_eq_u32 {s(sW)}, 0
    s_cbranch_scc1 L_tab
    s_branch L_tabbar
    L_fastchk:
    s_cmp_eq_u32 {s(sT)}, 0
    s_cselect_b32 {s(sFast)}, 1, 0
    L_tabdone:
    s_cmp_eq_u32 {s(sFast)}, 0
    s_cbranch_scc1 L_slow
    L_slowback:
    ;@F
    s_cmp_lt_u32 {s(sJ)}, 8
    s_cbranch_scc0 L_y
    s_branch L_yself
    L_y:
    buffer_load_dwordx4 {v(t,4)}, {v(vLld)}, {WS}, {s(sLld)} offen sc1
    s_waitcnt vmcnt(0)
    ds_write_b128 {v(vYIW)}, {v(t,4)}
    ''')
    phchk(range(t,t+4), t+8)
    poll_branch('L_y', cfg.slp_l, mask=True)
    a('L_yjoin:')
    stamp()
    a(f'''
    s_cmp_lg_u32 {s(sT+12)}, 0
    s_cbranch_scc1 L_noxf
    s_lshl_b32 {s(sT+12)}, {s(sX)}, 7
    s_add_u32 {s(sT+12)}, {s(sT+12)}, {TABG}
    v_lshrrev_b32 {v(t+8)}, 1, {v(vL8)}
    v_mov_b32 {v(t+9)}, {s(sTag)}
    s_mov_b32 exec_hi, 0
    buffer_store_dword {v(t+9)}, {v(t+8)}, {WS}, {s(sT+12)} offen sc1
    s_mov_b64 exec, -1
    L_noxf:
    s_cmp_eq_u32 {s(sIt)}, 0
    s_cbranch_scc1 L_nohl
    v_and_b32 {v(BC)}, 7, {v(vLane)}
    v_lshlrev_b32 {v(BC)}, 12, {v(BC)}
    s_mov_b32 {s(sT+10)}, {SLOT}
    s_mov_b64 exec, 0xff
    buffer_load_dwordx4 {v(LNP,4)}, {v(BC)}, {WS}, {s(sT+10)} offen offset:3200 sc1
    s_mov_b64 exec, -1
    L_nohl:
    ''')
    A0,A1=t,t+4; P0,Q0,P1,Q1=t+8,t+12,t+16,t+20
    a(f'''
    s_waitcnt lgkmcnt(0)
    s_barrier
    ;@F
    ds_read_b64_tr_b16 {v(A0,2)}, {v(vYIR)}
    ds_read_b64_tr_b16 {v(A0+2,2)}, {v(vYIR)} offset:{16*YIS}
    ds_read_b64_tr_b16 {v(A1,2)}, {v(vYIR)} offset:8
    ds_read_b64_tr_b16 {v(A1+2,2)}, {v(vYIR)} offset:{16*YIS+8}
    s_add_u32 {s(sTabLd)}, {s(sTabLd)}, {ARGR}
    s_add_u32 {s(sTabSt)}, {s(sTabSt)}, {ARGR}
    s_waitcnt lgkmcnt(2)
    v_mfma_f32_16x16x32_f16 {v(P0,4)}, {v(A0,4)}, {v(YC,4)}, 0
    v_mfma_f32_16x16x32_f16 {v(Q0,4)}, {v(A0,4)}, {v(YS,4)}, 0
    s_waitcnt lgkmcnt(0)
    v_mfma_f32_16x16x32_f16 {v(P1,4)}, {v(A1,4)}, {v(YC,4)}, 0
    v_mfma_f32_16x16x32_f16 {v(Q1,4)}, {v(A1,4)}, {v(YS,4)}, 0
    ''')
    for P_,Q_ in ((P0,Q0),(P1,Q1)):
        for h in (0,2):
            a(f'v_pk_add_f32 {v(P_+h,2)}, {v(P_+h,2)}, {v(Q_+h,2)} op_sel:[0,1] op_sel_hi:[1,0] neg_hi:[0,1]')
    a(f'''
    v_cvt_pk_f16_f32 {v(t)}, {v(P0)}, {v(P0+1)}
    v_cvt_pk_f16_f32 {v(t+1)}, {v(P0+2)}, {v(P0+3)}
    v_cvt_pk_f16_f32 {v(t+2)}, {v(P1)}, {v(P1+1)}
    v_cvt_pk_f16_f32 {v(t+3)}, {v(P1+2)}, {v(P1+3)}
    ''')
    if cfg.gre:
        for r in range(4): a(f'v_bfi_b32 {v(t+r)}, 1, {s(sPh)}, {v(t+r)}')
    a(f'''
    ds_write_b128 {v(vYW)}, {v(t,4)}
    ;@F
    s_waitcnt lgkmcnt(0)
    s_barrier
    ;@F
    ds_read_b128 {v(t+4,4)}, {v(vYR)}
    s_cmp_lg_u32 {s(sIt)}, 0
    s_cbranch_scc1 L_hdr
    ''')
    xfl=f'''v_and_b32 {v(t+24)}, 7, {v(vLane)}
    v_lshlrev_b32 {v(t+24)}, 7, {v(t+24)}
    s_mov_b32 {s(sT+10)}, {TABG}
    v_mov_b32 {v(t+20)}, {s(sTag)}
    s_mov_b64 exec, 0xff
    buffer_load_dword {v(t+20)}, {v(t+24)}, {WS}, {s(sT+10)} offen sc1
    s_mov_b64 exec, -1'''
    if cfg.gw in (1,2): a(xfl)
    a(f'''
    s_waitcnt lgkmcnt(0)
    buffer_store_dwordx4 {v(t+4,4)}, {v(vGst)}, {WS}, {s(sG0)} offen sc1
    ''')
    stamp()
    a(f'''
    {xfl if cfg.gw==3 else ''}
    {g2late() if cfg.g2pos==3 else ''}
    {xfl if not cfg.gw else ''}
    ''')
    if cfg.xpos==1: xin_consts(t+8)
    if cfg.gw: a(f's_waitcnt vmcnt({[0,2,1,1][cfg.gw]})\ns_branch L_tg0c')
    a('L_tg0w:\ns_waitcnt vmcnt(0)\nL_tg0c:\n;@F')
    a(f'v_cmp_ne_u32 vcc, {s(sTag)}, {v(t+20)}')
    a(f'''
    s_cbranch_vccnz L_tg0_r ;!nd
    ''')
    if cfg.g2pos==4: a(f'''
    buffer_load_dwordx4 {v(t,4)}, {v(vGld)}, {WS}, {s(sG0)} offen sc1
    buffer_load_dwordx4 {v(t+4,4)}, {v(vGld)}, {WS}, {s(sG4)} offen sc1
    {g2late()}
    s_cmp_lg_u32 {s(sMir)}, 0
    s_waitcnt vmcnt(1)
    s_branch L_gw2
    ''')
    else: a('s_branch L_g')
    a(f'''
    L_g:
    ''')
    C0,C1=t,t+4
    a(f'''
    buffer_load_dwordx4 {v(C0,4)}, {v(vGld)}, {WS}, {s(sG0)} offen sc1
    buffer_load_dwordx4 {v(C1,4)}, {v(vGld)}, {WS}, {s(sG4)} offen sc1
    L_gw:
    s_cmp_lg_u32 {s(sMir)}, 0
    s_waitcnt vmcnt(0)
    L_gw2:
    s_cbranch_scc1 L_xmir ;!nd
    ''')
    E0,E1=t+8,t+12
    a(f'''
    v_mfma_f32_16x16x16_f16 {v(E0,4)}, {v(XA,2)}, {v(C0,2)}, 0
    v_mfma_f32_16x16x16_f16 {v(E1,4)}, {v(XA,2)}, {v(C0+2,2)}, 0
    v_mfma_f32_16x16x16_f16 {v(E0,4)}, {v(XA+2,2)}, {v(C1,2)}, {v(E0,4)}
    v_mfma_f32_16x16x16_f16 {v(E1,4)}, {v(XA+2,2)}, {v(C1+2,2)}, {v(E1,4)}
    s_branch L_xjoin ;!nd
    L_xmir:
    ''')
    a.hist=[]
    a(f'''
    v_mfma_f32_16x16x16_f16 {v(E0,4)}, {v(XA,2)}, {v(C0+2,2)}, 0
    v_mfma_f32_16x16x16_f16 {v(E1,4)}, {v(XA,2)}, {v(C0,2)}, 0
    v_mfma_f32_16x16x16_f16 {v(E0,4)}, {v(XA+2,2)}, {v(C1+2,2)}, {v(E0,4)}
    v_mfma_f32_16x16x16_f16 {v(E1,4)}, {v(XA+2,2)}, {v(C1,2)}, {v(E1,4)}
    L_xjoin:
    ''')
    if cfg.gre: phchk(range(t,t+8), t+16)
    else: maxchk(range(t,t+8), t+16)
    poll_branch('L_g', cfg.slp_g, mask=True)
    stamp()
    a(f'''
    s_mov_b32 {s(sIt)}, 1
    s_mov_b32 {s(sPh)}, -1
    {f's_add_u32 {s(sG0)}, {s(sG0)}, {GR}' if not cfg.gre else ''}
    {f's_add_u32 {s(sG4)}, {s(sG4)}, {GR}' if not cfg.gre else ''}
    L_apply:
    s_cmp_eq_u32 {s(sNx)}, 0
    v_pk_fma_f32 {v(X,2)}, {v(E0,2)}, {v(vSc0,2)}, {v(X,2)}
    v_pk_fma_f32 {v(X+2,2)}, {v(E0+2,2)}, {s(sSc,2)}, {v(X+2,2)}
    v_pk_fma_f32 {v(X+4,2)}, {v(E1,2)}, {s(sSc,2)}, {v(X+4,2)}
    v_pk_fma_f32 {v(X+6,2)}, {v(E1+2,2)}, {s(sSc,2)}, {v(X+6,2)}
    s_cbranch_scc1 L_top ;!nd
    s_branch L_corr
    ''')
    a(f'''
    L_yself:
    buffer_load_dwordx4 {v(t,4)}, {v(vLld)}, {WS}, {s(sLld)} offen sc1
    buffer_load_dwordx4 {v(t+4,4)}, {v(vLldM)}, {WS}, {s(sLld)} offen sc1
    s_waitcnt vmcnt(0)
    ''')
    phchk(range(t,t+8), t+8)
    poll_branch('L_yself', cfg.slp_l, mask=True)
    a(f'''
    s_bitcmp1_b32 {s(sW)}, 0
    s_cbranch_scc1 L_yself4
    ''')
    for k in range(4): a(f'v_pk_add_f16 {v(t+k)}, {v(t+k)}, {v(t+7-k)} neg_hi:[0,1]')
    a(f'ds_write_b128 {v(vYIW)}, {v(t,4)}\ns_branch L_yjoin\nL_yself4:')
    for k in range(4): a(f'v_pk_add_f16 {v(t+k)}, {v(t+k)}, {v(t+7-k)} op_sel:[1,1] op_sel_hi:[0,0] neg_hi:[1,0]')
    a(f'ds_write_b128 {v(vYIW)}, {v(t,4)}\ns_branch L_yjoin')
    H=LNP
    sIdx=sT+11
    KA=BC+6; EK=BC+8; vYP=BC+9; SEL=BC+10; vDW,vDR=BC+12,BC+13
    YR=t+8; YL=t+12; YD=t+20
    gl=f'buffer_load_dwordx4 {v(C0,4)}, {v(vGld)}, {WS}, {s(sG0)} offen sc1\nbuffer_load_dwordx4 {v(C1,4)}, {v(vGld)}, {WS}, {s(sG4)} offen sc1'
    def hdrpoll(lbl, slp, issued=False, after=''):
        if not issued: a(f"""
        v_and_b32 {v(BC)}, 7, {v(vLane)}
        v_lshlrev_b32 {v(BC)}, 12, {v(BC)}
        """)
        a(f"""
        s_mov_b64 exec, 0xff
        {f's_waitcnt vmcnt({0 if cfg.gre else 1})' if issued else ''}
        {f's_branch {lbl}_c' if issued else ''}
        {lbl}:
        buffer_load_dwordx4 {v(H,4)}, {v(BC)}, {WS}, {s(sT+10)} offen offset:3200 sc1
        s_waitcnt vmcnt(0)
        {lbl}_c:
        """)
        maxchk(range(H,H+4), t+17)
        poll_branch(lbl, slp, skip=True)
        a('s_mov_b64 exec, -1')
        if after: a(after); stamp()
        a(f"""
        v_max_u32_dpp {v(H+3)}, {v(H)}, {v(H)} row_half_mirror {DPP}
        v_max_u32_dpp {v(H+3)}, {v(H+3)}, {v(H+3)} quad_perm:[1,0,3,2] {DPP}
        v_max_u32_dpp {v(H+3)}, {v(H+3)}, {v(H+3)} quad_perm:[2,3,0,1] {DPP}
        v_readfirstlane_b32 {s(sIdx)}, {v(H+3)}
        """)
    def owner():
        a(f"""
        s_sub_u32 {s(sT)}, 2047, {s(sIdx)}
        s_add_u32 {s(sT+1)}, {s(sT)}, 256
        v_cmp_eq_u32 vcc, {s(sT)}, {v(vInv)}
        v_cmp_eq_u32 {s(sT+2,2)}, {s(sT+1)}, {v(vInv)}
        v_cndmask_b32 {v(BC)}, 0, 1.0, vcc
        v_cndmask_b32 {v(BC+1)}, 0, 1.0, {s(sT+2,2)}
        """)
    gst=f's_waitcnt lgkmcnt(0)\nbuffer_store_dwordx4 {v(t+4,4)}, {v(vGst)}, {WS}, {s(sG0)} offen sc1'
    a(f'L_hdr:')
    if not cfg.gre: a(gst); stamp()
    hdrpoll('L_hdrp', 2, True, gst if cfg.gre else '')
    a(f"""
    v_and_b32 {v(vYP)}, 0x3ff, {v(vXoff)}
    v_lshlrev_b32 {v(t+16)}, 1, {v(vYP)}
    s_andn2_b32 {s(sIdx)}, {s(sM7FF)}, {s(sIdx)}
    s_and_b32 {s(sT)}, {s(sIdx)}, 7
    s_lshl_b32 {s(sT+1)}, {s(sT)}, 12
    s_add_u32 {s(sT+10)}, {s(sT+10)}, {s(sT+1)}
    buffer_load_dwordx4 {v(BC+2,4)}, {v(t+16)}, {WS}, {s(sT+10)} offen offset:1024 sc1
    v_readlane_b32 {s(sT+13)}, {v(H+1)}, {s(sT)}
    v_readlane_b32 {s(sT+14)}, {v(H+2)}, {s(sT)}
    v_mul_u32_u24 {v(t+17)}, {s(sIdx)}, {v(AD)}
    v_and_b32 {v(t+17)}, 0x7ff, {v(t+17)}
    v_cvt_f32_u32 {v(t+17)}, {v(t+17)}
    v_mul_f32 {v(t+17)}, {fbits(1/2048)}, {v(t+17)}
    v_cos_f32 {v(t+18)}, {v(t+17)}
    v_sin_f32 {v(t+19)}, {v(t+17)}
    v_and_b32 {v(t+17)}, 0x22, {v(vLane)}
    v_cvt_pk_f16_f32 {v(t+18)}, {v(t+18)}, {v(t+19)}
    v_cmp_eq_u32 vcc, 0, {v(t+17)}
    v_mov_b32 {v(KA)}, {s(sT+14)}
    v_mul_f32 {v(KA)}, {s(sC16)}, {v(KA)}
    v_cndmask_b32 {v(AD)}, 0, {v(t+18)}, vcc
    v_cmp_eq_u32 vcc, 2, {v(t+17)}
    v_mul_f32 {v(EK)}, {v(KA)}, {v(KA)}
    v_mul_f32 {v(EK)}, {s(sEps)}, {v(EK)}
    v_cndmask_b32 {v(AD+1)}, 0, {v(t+18)}, vcc
    """)
    owner()
    a(f"""
    v_lshlrev_b32 {v(t+17)}, 4, {v(vLane)}
    v_mov_b32 {v(t+18)}, 0x3f80
    v_and_b32 {v(t+17)}, 16, {v(t+17)}
    v_lshlrev_b32 {v(t+18)}, {v(t+17)}, {v(t+18)}
    v_and_b32 {v(t+17)}, 2, {v(vLane)}
    v_cmp_eq_u32 vcc, 0, {v(t+17)}
    v_lshl_add_u32 {v(vYP)}, {v(vQ)}, 10, {v(vYP)}
    s_lshl_b32 {s(sT+3)}, {s(sW)}, 8
    v_cndmask_b32 {v(SEL)}, 0, {v(t+18)}, vcc
    v_cndmask_b32 {v(SEL+1)}, {v(t+18)}, 0, vcc
    s_add_u32 {s(sT+3)}, {s(sT+3)}, {L_DH}
    v_lshl_add_u32 {v(vDR)}, {v(vN)}, 4, {s(sT+3)}
    v_and_b32 {v(t+17)}, 1, {v(vQ)}
    v_lshl_add_u32 {v(vDR)}, {v(t+17)}, 11, {v(vDR)}
    v_cmp_eq_u32 vcc, 0, {v(vQ)}
    v_add_u32 {v(vDW)}, {L_DH}, {v(vLst)}
    s_mov_b32 {s(sYo)}, {YP}
    s_lshl_b32 {s(sYh)}, {s(sX)}, 7
    s_add_u32 {s(sYh)}, {s(sYh)}, {YHINT}
    s_lshl_b32 {s(sSg)}, {s(sW)}, 30
    s_and_b32 {s(sSg)}, {s(sSg)}, {s(sTop)}
    s_xor_b32 {s(sSg)}, {s(sSg)}, {s(sDsc)}
    s_mov_b32 {s(sNx)}, 2
    v_cndmask_b32 {v(KA+1)}, 0, {v(KA)}, vcc
    s_waitcnt vmcnt(0)
    {gl if not cfg.hold else ''}
    L_basew:
    """)
    maxchk(range(BC+2,BC+6), t+17)
    a('s_cbranch_vccnz L_base_r ;!nd')
    for k in range(4): a(f'v_subrev_f32 {v(BC+2+k)}, {s(sT+13)}, {v(BC+2+k)}')
    for k in range(4): a(f'v_mul_f32 {v(BC+2+k)}, {v(KA)}, {v(BC+2+k)}')
    a(f"""
    s_branch {'L_ywait' if cfg.hold else 'L_gw'}
    L_corr:
    s_mov_b32 {s(sIt)}, 2
    s_mov_b32 {s(sNx)}, 0
    {'s_branch L_yc' if cfg.hold else ''}
    L_ywait:
    s_add_u32 {s(sT+2)}, {s(sYo)}, 4096
    s_cmp_lg_u32 {s(sW)}, 0
    s_cbranch_scc1 L_hintb
    s_movk_i32 {s(sTry)}, 500
    v_lshrrev_b32 {v(t)}, 1, {v(vL8)}
    """)
    if cfg.own: a(f"""
    s_cmp_eq_u32 {s(sIt)}, 3
    s_cbranch_scc1 L_hint
    s_lshl_b32 {s(sT)}, {s(sJ)}, 2
    v_mov_b32 {v(t)}, {s(sT)}
    """)
    a(f"""
    L_hint:
    buffer_load_dword {v(t+1)}, {v(t)}, {WS}, {s(sYh)} offen sc1
    s_waitcnt vmcnt(0)
    v_cmp_ne_u32 vcc, {s(sTag)}, {v(t+1)}
    """)
    poll_branch('L_hint', 1, giveup='L_hintb')
    if cfg.tim_y: a(f's_sleep {cfg.tim_y}')
    a(f"""
    L_hintb:
    s_barrier
    """)
    if cfg.hold: a(f"""
    s_cmp_eq_u32 {s(sIt)}, 3
    s_cbranch_scc1 L_yv3
    {gl}
    {f's_sleep {cfg.tim_gy}' if cfg.tim_gy else ''}
    buffer_load_dwordx2 {v(YD,2)}, {v(vYP)}, {WS}, {s(sYo)} offen sc1
    buffer_load_dwordx2 {v(YD+2,2)}, {v(vYP)}, {WS}, {s(sT+2)} offen sc1
    s_cmp_lg_u32 {s(sMir)}, 0
    s_waitcnt vmcnt(2)
    s_branch L_gw2
    L_yv3:
    {f's_sleep {cfg.tim_y3}' if cfg.tim_y3 else ''}
    s_branch L_yv
    """)
    a(f"""
    L_yv:
    buffer_load_dwordx2 {v(YD,2)}, {v(vYP)}, {WS}, {s(sYo)} offen sc1
    buffer_load_dwordx2 {v(YD+2,2)}, {v(vYP)}, {WS}, {s(sT+2)} offen sc1
    L_yc:
    s_waitcnt vmcnt(0)
    v_mfma_f32_16x16x16_bf16 {v(YR,4)}, {v(SEL,2)}, {v(YD,2)}, 0
    v_mfma_f32_16x16x16_bf16 {v(YR,4)}, {v(SEL,2)}, {v(YD+2,2)}, {v(YR,4)}
    """)
    maxchk(range(YD,YD+4), t+17)
    poll_branch('L_yv', 1, mask=True)
    stamp()
    own=[f'v_pk_fma_f32 {v(X,2)}, {v(BC,2)}, {v(YR,2)}, {v(X,2)} op_sel:[0,0,0] op_sel_hi:[1,0,1]',
         f'v_pk_fma_f32 {v(X+2,2)}, {v(BC,2)}, {v(YR,2)}, {v(X+2,2)} op_sel:[0,1,0] op_sel_hi:[1,1,1]',
         f'v_pk_fma_f32 {v(X+4,2)}, {v(BC,2)}, {v(YR+2,2)}, {v(X+4,2)} op_sel:[0,0,0] op_sel_hi:[1,0,1]',
         f'v_pk_fma_f32 {v(X+6,2)}, {v(BC,2)}, {v(YR+2,2)}, {v(X+6,2)} op_sel:[0,1,0] op_sel_hi:[1,1,1]']
    s1,s2=t+20,t+21
    a(f"""
    s_cmp_eq_u32 {s(sIt)}, 3
    s_cbranch_scc1 L_fin3
    L_pass:
    v_pk_fma_f32 {v(YL,2)}, {v(YR,2)}, {v(KA,2)}, {v(BC+2,2)} op_sel:[0,1,0]
    v_pk_fma_f32 {v(YL+2,2)}, {v(YR+2,2)}, {v(KA,2)}, {v(BC+4,2)} op_sel:[0,1,0]
    v_cvt_pk_f16_f32 {v(YL)}, {v(YL)}, {v(YL+1)}
    v_cvt_pk_f16_f32 {v(YL+1)}, {v(YL+2)}, {v(YL+3)}
    ds_write_b64 {v(vUW)}, {v(YL,2)}
    {own[0]}
    {own[1]}
    {own[2]}
    {own[3]}
    s_cmp_gt_u32 {s(sW)}, 3
    s_waitcnt lgkmcnt(0)
    s_barrier
    s_cbranch_scc1 L_dhb ;!nd
    ds_read_b64_tr_b16 {v(t+8,2)}, {v(vUR)}
    ds_read_b64_tr_b16 {v(t+10,2)}, {v(vUR)} offset:512
    v_mov_b32 {v(t+22)}, 0x3c003c00
    s_waitcnt lgkmcnt(0)
    ;@F
    """)
    XR=t+8; U_=t+12; V_=YC; PP=LNP
    Ur,Ui=U_,U_+4; Vr,Vi=V_,V_+4
    a(f"""
    v_mfma_f32_16x16x32_f16 {v(Ur,4)}, {v(XR,4)}, {v(B1C,4)}, 0
    v_mfma_f32_16x16x32_f16 {v(Ui,4)}, {v(XR,4)}, {v(B1N,4)}, 0
    v_dot2_f32_f16 {v(s1)}, {v(XR)}, {v(t+22)}, 0
    v_dot2_f32_f16 {v(s2)}, {v(XR)}, {v(XR)}, 0
    v_dot2_f32_f16 {v(s1)}, {v(XR+1)}, {v(t+22)}, {v(s1)}
    v_dot2_f32_f16 {v(s2)}, {v(XR+1)}, {v(XR+1)}, {v(s2)}
    v_dot2_f32_f16 {v(s1)}, {v(XR+2)}, {v(t+22)}, {v(s1)}
    v_dot2_f32_f16 {v(s2)}, {v(XR+2)}, {v(XR+2)}, {v(s2)}
    v_dot2_f32_f16 {v(s1)}, {v(XR+3)}, {v(t+22)}, {v(s1)}
    v_dot2_f32_f16 {v(s2)}, {v(XR+3)}, {v(XR+3)}, {v(s2)}
    v_pk_mul_f32 {v(Vi,2)}, {v(Ur,2)}, {v(TWS,2)}
    v_pk_mul_f32 {v(Vi+2,2)}, {v(Ur+2,2)}, {v(TWS+2,2)}
    v_pk_mul_f32 {v(Vr,2)}, {v(Ui,2)}, {v(TWS,2)}
    v_permlane32_swap_b32 {v(s1)}, {v(s2)}
    v_pk_mul_f32 {v(Vr+2,2)}, {v(Ui+2,2)}, {v(TWS+2,2)}
    v_add_f32 {v(s1)}, {v(s1)}, {v(s2)}
    v_pk_fma_f32 {v(Vr,2)}, {v(Ur,2)}, {v(TWC,2)}, {v(Vr,2)}
    v_pk_fma_f32 {v(Vi,2)}, {v(Ui,2)}, {v(TWC,2)}, {v(Vi,2)} neg_lo:[0,0,1] neg_hi:[0,0,1]
    v_add_f32_dpp {v(s1)}, {v(s1)}, {v(s1)} row_ror:8 {DPP}
    v_pk_fma_f32 {v(Vr+2,2)}, {v(Ur+2,2)}, {v(TWC+2,2)}, {v(Vr+2,2)}
    v_pk_fma_f32 {v(Vi+2,2)}, {v(Ui+2,2)}, {v(TWC+2,2)}, {v(Vi+2,2)} neg_lo:[0,0,1] neg_hi:[0,0,1]
    v_add_f32_dpp {v(s1)}, {v(s1)}, {v(s1)} row_ror:4 {DPP}
    v_cvt_pk_f16_f32 {v(PP)}, {v(Vr)}, {v(Vi)}
    v_cvt_pk_f16_f32 {v(PP+1)}, {v(Vr+1)}, {v(Vi+1)}
    v_add_f32_dpp {v(s1)}, {v(s1)}, {v(s1)} row_ror:2 {DPP}
    v_cvt_pk_f16_f32 {v(PP+2)}, {v(Vr+2)}, {v(Vi+2)}
    v_cvt_pk_f16_f32 {v(PP+3)}, {v(Vr+3)}, {v(Vi+3)}
    v_add_f32_dpp {v(s1)}, {v(s1)}, {v(s1)} row_ror:1 {DPP}
    v_mfma_f32_16x16x32_f16 {v(Ur,4)}, {v(A2R,4)}, {v(PP,4)}, 0
    v_mfma_f32_16x16x32_f16 {v(Ui,4)}, {v(A2I,4)}, {v(PP,4)}, 0
    v_add_f32_dpp {v(s1)}, {v(s1)}, {v(s1)} row_bcast:15 row_mask:0xa bank_mask:0xf
    v_mul_f32 {v(s1)}, {s(sK512)}, {v(s1)}
    v_readlane_b32 {s(sT+2)}, {v(s1)}, 63
    v_readlane_b32 {s(sT+1)}, {v(s1)}, 31
    v_add_f32 {v(s2)}, {s(sT+2)}, {v(EK)}
    v_mov_b32 {v(s1)}, {s(sT+1)}
    v_fma_f32 {v(s1)}, -{v(s1)}, {v(s1)}, {v(s2)}
    v_rsq_f32_e64 {v(s1)}, |{v(s1)}|
    v_mul_f32 {v(s1)}, {s(sSg)}, {v(s1)}
    """)
    for k in range(4): a(f'v_pk_mul_f32 {v(U_+2*k,2)}, {v(U_+2*k,2)}, {v(s1,2)} op_sel_hi:[1,0]')
    for r in range(4): a(f'v_cvt_pk_f16_f32 {v(PP+r)}, {v(Ur+r)}, {v(Ui+r)}')
    a(f"""
    ds_write2_b32 {v(vDW)}, {v(PP)}, {v(PP+1)} offset0:0 offset1:32
    ds_write2_b32 {v(vDW)}, {v(PP+2)}, {v(PP+3)} offset0:64 offset1:96
    s_waitcnt lgkmcnt(0)
    L_dhb:
    s_barrier
    ds_read_b128 {v(t+16,4)}, {v(vDR)}
    s_waitcnt lgkmcnt(0)
    v_mfma_f32_16x16x16_f16 {v(E0,4)}, {v(AD,2)}, {v(t+16,2)}, 0
    v_mfma_f32_16x16x16_f16 {v(E1,4)}, {v(AD,2)}, {v(t+18,2)}, 0
    s_nop 4
    s_branch L_apply ;!nd
    """)
    a('L_fin:')
    if cfg.odel: a(f's_sleep {cfg.odel}')
    for rho in (0,1):
        for k in (0,1):
            a(f'v_cvt_pk_bf16_f32 {v(t+2*rho+k)}, {v(X+4*k+rho)}, {v(X+4*k+2+rho)}')
    a(f"""
    v_lshlrev_b32 {v(t+16)}, 1, {v(vQ)}
    v_mov_b32 {v(t+19)}, 0x200000
    s_sub_u32 {s(sT)}, {s(sT+9)}, 1
    v_cmp_eq_u32 vcc, {s(sT+9)}, {v(t+16)}
    v_cmp_eq_u32 {s(sT+2,2)}, {s(sT)}, {v(t+16)}
    v_cndmask_b32 {v(t+17)}, {v(vXoff)}, {v(t+19)}, vcc
    v_cndmask_b32 {v(t+18)}, {v(vXoff)}, {v(t+19)}, {s(sT+2,2)}
    buffer_store_dwordx2 {v(t,2)}, {v(vXoff if cfg.twice else t+17)}, {OS}, {s(sRow0)} offen {['','sc1','nt'][cfg.osc]}
    buffer_store_dwordx2 {v(t+2,2)}, {v(vXoff if cfg.twice else t+18)}, {OS}, {s(sRow1)} offen {['','sc1','nt'][cfg.osc]}
    """)
    if cfg.wb==3: a(f"""
    s_xor_b32 {s(sT+4)}, {s(sJ)}, 9
    s_or_b32 {s(sT+4)}, {s(sT+4)}, {s(sW)}
    s_cbranch_scc1 L_nwb3
    {f's_sleep {cfg.wbd}' if cfg.wbd else ''}
    buffer_wbl2 sc1
    L_nwb3:
    """)
    a(f"""
    v_cndmask_b32 {v(t+24)}, {v(t+19)}, {v(vXoff)}, vcc
    v_cndmask_b32 {v(t+25)}, {v(t+19)}, {v(vXoff)}, {s(sT+2,2)}
    s_or_b32 {s(sT)}, s2, {s(sW)}
    s_cbranch_scc1 L_fin2
    v_mov_b32 {v(t+20)}, {s(sTag)}
    buffer_store_dword {v(t+20)}, off, {WS}, 0 sc1
    L_fin2:
    s_cmp_eq_u32 {s(sT+9)}, 64
    s_cbranch_scc1 L_fin5
    s_mov_b32 {s(sT+10)}, {SLOT+SLOTR}
    s_sleep {cfg.tim_fh}
    """)
    hdrpoll('L_fhdr', 4)
    a(f"""
    s_cmp_lg_u32 {s(sIdx)}, {s(sKey)}
    s_cbranch_scc1 {'L_fin5' if cfg.twice else 'L_fin4'}
    s_andn2_b32 {s(sIdx)}, {s(sM7FF)}, {s(sIdx)}
    s_mov_b32 {s(sIt)}, 3
    s_add_u32 {s(sYo)}, {s(sYo)}, {YPR}
    s_add_u32 {s(sYh)}, {s(sYh)}, {YHR}
    """)
    owner()
    a('s_branch L_ywait\nL_fin3:')
    a('\n'.join(own))
    for rho in (0,1):
        for k in (0,1):
            a(f'v_cvt_pk_bf16_f32 {v(t+2*rho+k)}, {v(X+4*k+rho)}, {v(X+4*k+2+rho)}')
    a(f"""
    L_fin4:
    buffer_store_dwordx2 {v(t,2)}, {v(t+24)}, {OS}, {s(sRow0)} offen {'' if cfg.lastp else 'sc1'}
    buffer_store_dwordx2 {v(t+2,2)}, {v(t+25)}, {OS}, {s(sRow1)} offen {'' if cfg.lastp else 'sc1'}
    L_fin5:
    """)
    stamp(); dump_stamps()
    a('s_endpgm')
    a(f"""
    L_base_r:
    s_sub_u32 {s(sCnt)}, {s(sCnt)}, 1
    s_cbranch_scc1 L_end
    s_sleep 2
    buffer_load_dwordx4 {v(BC+2,4)}, {v(t+16)}, {WS}, {s(sT+10)} offen offset:1024 sc1
    s_waitcnt vmcnt(0)
    s_branch L_basew
    """)
    def pub2():
        a(f'''
        v_mov_b32 {v(t+4)}, {s(sTag)}
        v_mov_b32 {v(t+5)}, {s(sXcc)}
        s_add_u32 {s(sT)}, {s(sTabSt)}, {TAB2-TABL}
        buffer_store_dwordx2 {v(t+4,2)}, off, {WS}, {s(sT)} sc1
        ''')
    a(f'''
    L_tabst_slow:
    buffer_store_dwordx2 {v(K,2)}, off, {WS}, {s(sTabSt)} sc1
    s_branch L_tabst_back
    L_tg0_r:
    s_sub_u32 {s(sCnt)}, {s(sCnt)}, 1
    s_cbranch_scc1 L_end
    s_sleep 2
    ''')
    a(f's_mov_b64 exec, 0xff\nbuffer_load_dword {v(t+20)}, {v(t+24)}, {WS}, {s(sT+10)} offen sc1\ns_mov_b64 exec, -1')
    a('s_branch L_tg0w\nL_tab2:')
    pub2()
    a(f'''
    s_add_u32 {s(sT+1)}, {s(sTabLd)}, {TAB2-TABL}
    L_tab2p:
    buffer_load_dwordx2 {v(TB,2)}, {v(vL8)}, {WS}, {s(sTabLd)} offen sc1
    buffer_load_dwordx2 {v(t+6,2)}, {v(vL8)}, {WS}, {s(sT+1)} offen sc1
    s_waitcnt vmcnt(0)
    v_cmp_eq_u32 vcc, {s(sTag)}, {v(TB)}
    v_cndmask_b32 {v(TB)}, {v(t+6)}, {v(TB)}, vcc
    v_cndmask_b32 {v(TB+1)}, {v(t+7)}, {v(TB+1)}, vcc
    v_cmp_ne_u32 vcc, {s(sTag)}, {v(TB)}
    ''')
    poll_branch('L_tab2p', 4)
    a(f'''
    s_branch L_tabok
    L_slow:
    s_cmp_lg_u32 {s(sIt)}, 0
    s_cbranch_scc1 L_slow1
    ''')
    pub2()
    a('L_slow1:')
    lstores('sc1')
    a(f'''
    s_waitcnt vmcnt(0)
    s_barrier
    s_add_u32 {s(sT)}, {s(sTabSt)}, {SLOWF-TABL}
    s_add_u32 {s(sT+1)}, {s(sTabLd)}, {SLOWF-TABL}
    v_mov_b32 {v(t+4)}, {s(sTag)}
    s_cmp_lg_u32 {s(sW)}, 0
    s_cbranch_scc1 L_slowp
    buffer_store_dword {v(t+4)}, off, {WS}, {s(sT)} sc1
    L_slowp:
    buffer_load_dword {v(t+5)}, {v(vL8)}, {WS}, {s(sT+1)} offen sc1
    s_waitcnt vmcnt(0)
    v_cmp_ne_u32 vcc, {s(sTag)}, {v(t+5)}
    ''')
    poll_branch('L_slowp', 2)
    a('s_branch L_slowback')

def hint_store(vreg, soff, lbl):
    a(f'''
    s_mov_b64 exec, 1
    s_cmp_eq_u32 {s(sFast)}, 0
    s_cbranch_scc1 {lbl}_s
    buffer_store_dword {v(vreg)}, off, {WS}, {s(soff)}
    s_branch {lbl}_d
    {lbl}_s:
    buffer_store_dword {v(vreg)}, off, {WS}, {s(soff)} sc1
    {lbl}_d:
    s_mov_b64 exec, -1
    ''')

def ffn():
    WA=4; WD=20; t=40
    vXL=24; vXW=25; vXR=26; vPS=27; vPL=28; vHW=29; vHR=30; vDP=31; vTag=32; vSig=34; vFl=35
    sI=sJ; sRnd=sIt; sPo=sLst; sPs=sLld
    F_W=0; TS=4096+64; F_X=0x4400; F_KEY=0x4D00; F_H=0x4E00; F_D=0x5200; F_WD=0x5400
    a(f"""
    L_ffn:
    s_and_b32 {s(sI)}, {s(sJ)}, 31
    s_min_u32 {s(sT+2)}, {s(sI)}, 27
    s_and_b32 {s(sT)}, {s(sT+2)}, 3
    s_lshl_b32 {s(sT+8)}, {s(sT)}, 8              ; 256*ks
    s_mul_i32 {s(sT+9)}, {s(sT)}, {28*64}
    s_mul_i32 {s(sT)}, {s(sT)}, {128*3584}
    s_mul_i32 {s(sT+1)}, {s(sX)}, 448
    s_add_u32 {s(sT)}, {s(sT)}, {s(sT+1)}
    s_lshr_b32 {s(sT+2)}, {s(sT+2)}, 2
    s_lshl_b32 {s(sT+3)}, {s(sT+2)}, 6
    s_add_u32 {s(sT)}, {s(sT)}, {s(sT+3)}
    v_lshrrev_b32 {v(t+3)}, 2, v0
    v_mul_u32_u24 {v(t)}, 3584, {v(t+3)}
    v_and_b32 {v(t+4)}, 3, v0
    v_lshl_add_u32 {v(t)}, {v(t+4)}, 4, {v(t)}
    v_add_u32 {v(t)}, {s(sT)}, {v(t)}
    s_mul_i32 {s(sT)}, {s(sX)}, {224*1024}
    s_lshl_b32 {s(sT+1)}, {s(sI)}, 5
    s_add_u32 {s(sT)}, {s(sT)}, {s(sT+1)}
    v_lshrrev_b32 {v(t+1)}, 1, v0
    v_min_u32 {v(t+1)}, 223, {v(t+1)}
    v_lshlrev_b32 {v(t+1)}, 10, {v(t+1)}
    v_and_b32 {v(t+2)}, 1, v0
    v_lshl_add_u32 {v(t+1)}, {v(t+2)}, 4, {v(t+1)}
    v_add_u32 {v(t+1)}, {s(sT)}, {v(t+1)}
    s_add_u32 {s(sT+10)}, {s(sTabLd)}, {FTAB-TABL}
    s_waitcnt lgkmcnt(0)
    {f'v_lshlrev_b32 {v(T+25)}, {cfg.tlb}, v0' if cfg.tlb else ''}
    {f'buffer_load_dword {v(T+21)}, {v(T+25)}, {WS}, 0 offen sc1' if cfg.tlb else ''}
    {f'buffer_load_dword {v(T+21)}, {v(T+25)}, {OS}, 0 offen sc1' if cfg.tlb else ''}
    {f's_sleep {cfg.fdelay}' if cfg.fdelay else ''}
    {f'global_load_dwordx4 {v(T+8,4)}, {v(t)}, s[18:19]' if cfg.wdpos!=2 and cfg.gul<2 else ''}
    v_mov_b32 {v(T+24)}, {v(t)}
    {f'global_load_dwordx4 {v(T+12,4)}, {v(t)}, s[20:21]' if cfg.wdpos!=2 and not cfg.gul else ''}
    {f'global_load_dwordx4 {v(T+16,4)}, {v(t+1)}, s[22:23]' if cfg.wdpos==0 else f'v_mov_b32 {v(T+23)}, {v(t+1)}'}
    {f'buffer_load_dword {v(T+20)}, off, {WS}, 0 sc1' if not cfg.hot else f's_load_dword {s(sTag)}, s[8:9], 0'}
    s_cmp_eq_u32 {s(sW)}, 0
    s_cselect_b32 {s(sT)}, {s(sT+10)}, s10
    buffer_load_dword {v(T+21)}, {v(vL8)}, {WS}, {s(sT if cfg.hot else sT+10)} offen sc1
    v_mul_u32_u24 {v(T+22)}, {TS}, {v(t+4)}
    v_lshl_add_u32 {v(T+22)}, {v(t+3)}, 5, {v(T+22)}
    v_lshlrev_b32 {v(t+5)}, 4, {v(vN)}
    s_and_b32 {s(sT)}, {s(sW)}, 1
    s_lshl_b32 {s(sT)}, {s(sT)}, 2
    v_add_u32 {v(t+6)}, {s(sT)}, {v(vQ)}
    v_lshl_add_u32 {v(vXL)}, {v(t+6)}, 12, {v(t+5)}
    v_add_u32 {v(vXL)}, {s(sT+8)}, {v(vXL)}
    v_mul_u32_u24 {v(vXW)}, 272, {v(t+6)}
    v_add_u32 {v(vXW)}, {v(vXW)}, {v(t+5)}
    v_and_b32 {v(t+6)}, 7, {v(vLane)}
    v_mul_u32_u24 {v(vXR)}, 272, {v(t+6)}
    v_lshl_add_u32 {v(vXR)}, {v(vQ)}, 4, {v(vXR)}
    s_cmp_lg_u32 {s(sW)}, 6
    s_cbranch_scc1 L_fa1
    v_lshlrev_b32 {v(vXL)}, 12, {v(t+6)}
    L_fa1:
    s_lshl2_add_u32 {s(sT)}, {s(sT+2)}, {s(sW)}
    s_lshl_b32 {s(sT)}, {s(sT)}, 6
    s_add_u32 {s(sT)}, {s(sT)}, {s(sT+9)}
    v_lshl_add_u32 {v(vPS)}, {v(vN)}, 2, {s(sT)}
    s_lshl_b32 {s(sT)}, {s(sW)}, 8
    v_mul_u32_u24 {v(vPL)}, 1792, {v(vQ)}
    v_add3_u32 {v(vPL)}, {v(vPL)}, {v(t+5)}, {s(sT)}
    s_lshl_b32 {s(sT)}, {s(sW)}, 7
    s_add_u32 {s(sT)}, {s(sT)}, {F_H}
    v_lshl_add_u32 {v(vHR)}, {v(vQ)}, 4, {s(sT)}
    v_and_b32 {v(t+6)}, 12, {v(vN)}
    v_lshl_add_u32 {v(vHW)}, {v(t+6)}, 2, {s(sT)}
    v_and_b32 {v(t+6)}, 1, {v(vN)}
    v_lshl_add_u32 {v(vHW)}, {v(t+6)}, 3, {v(vHW)}
    v_and_b32 {v(t+6)}, 2, {v(vN)}
    v_lshl_add_u32 {v(vHW)}, {v(t+6)}, 5, {v(vHW)}
    v_and_b32 {v(t+6)}, 2, {v(vQ)}
    v_add_u32 {v(vHW)}, {v(vHW)}, {v(t+6)}
    v_and_b32 {v(t+6)}, 1, {v(vQ)}
    v_lshl_add_u32 {v(vHW)}, {v(t+6)}, 2, {v(vHW)}
    s_lshl_b32 {s(sT)}, {s(sW)}, 2
    s_add_u32 {s(sT)}, {s(sT)}, {F_D}
    v_lshl_add_u32 {v(vDP)}, {v(vN)}, 5, {s(sT)}
    v_mov_b32 {v(vFl)}, {F_KEY}
    v_mov_b32 {v(vTag)}, 0
    s_mov_b32 {s(sFast)}, 0
    s_mov_b32 {s(sRnd)}, 2
    s_mov_b32 {s(sPo)}, {WSSZ}
    s_mov_b32 {s(sYo)}, {WSSZ}
    s_mov_b32 {s(sYh)}, {WSSZ}
    s_waitcnt lgkmcnt(0)
    {'s_branch L_fb2' if cfg.dry else ''}
    L_finit:
    s_mov_b32 {s(sRnd)}, 0
    s_mov_b32 {s(sSlot)}, {SLOT}
    s_lshl_b32 {s(sPo)}, {s(sX)}, 13
    s_add_u32 {s(sPo)}, {s(sPo)}, {PART}
    s_lshl_b32 {s(sYo)}, {s(sX)}, 10
    s_lshl_b32 {s(sT)}, {s(sI)}, 5
    s_add_u32 {s(sYo)}, {s(sYo)}, {s(sT)}
    s_add_u32 {s(sYo)}, {s(sYo)}, {YP}
    s_lshl_b32 {s(sYh)}, {s(sX)}, 7
    s_lshl2_add_u32 {s(sYh)}, {s(sI)}, {s(sYh)}
    s_add_u32 {s(sYh)}, {s(sYh)}, {YHINT}
    s_lshl_b32 {s(sT)}, {s(sW)}, 10
    v_lshl_add_u32 {v(t)}, {v(vLane)}, 4, {s(sT)}
    v_lshl_add_u32 {v(t+1)}, {v(vQ)}, 8, {s(sT)}
    v_lshl_add_u32 {v(t+1)}, {v(vN)}, 3, {v(t+1)}
    s_and_b32 {s(sT)}, {s(sW)}, 3
    s_mul_i32 {s(sT)}, {s(sT)}, {TS}
    v_lshl_add_u32 {v(t+2)}, {v(vQ)}, 8, {s(sT)}
    v_lshl_add_u32 {v(t+2)}, {v(vN)}, 3, {v(t+2)}
    v_mov_b32 {v(vTag+1)}, {s(sXcc)}
    s_lshl3_add_u32 {s(sT+1)}, {s(sI)}, {s(sT+10)}
    s_waitcnt vmcnt(0)
    {f'v_mov_b32 {v(T+20)}, {s(sTag)}' if cfg.hot else ''}
    v_add_u32 {v(vTag)}, 1, {v(T+20)}
    ds_write_b128 {v(T+22)}, {v(T+8,4)}
    ds_write_b128 {v(T+22)}, {v(T+12,4)} offset:16
    {f'ds_write_b128 {v(t)}, {v(T+16,4)} offset:{F_WD}' if cfg.wdpos==0 else ''}
    v_readfirstlane_b32 {s(sTag)}, {v(vTag)}
    s_cmp_lg_u32 {s(sW)}, 0
    s_cbranch_scc1 L_fi1
    s_mov_b64 exec, 1
    buffer_store_dwordx2 {v(vTag,2)}, off, {WS}, {s(sT+1)}
    s_mov_b64 exec, -1
    L_fi1:
    s_waitcnt lgkmcnt(0)
    s_barrier
    """)
    if cfg.stamps: a(f's_mov_b32 {s(sStampI)}, 0')
    stamp()
    for k in range(4):
        a(f'ds_read_b64_tr_b16 {v(WA+4*k,2)}, {v(t+2)} offset:{1024*k}')
        a(f'ds_read_b64_tr_b16 {v(WA+4*k+2,2)}, {v(t+2)} offset:{1024*k+128}')
    a(f"""
    {f'ds_read_b64_tr_b16 {v(WD,2)}, {v(t+1)} offset:{F_WD}' if cfg.wdpos==0 else ''}
    {f'ds_read_b64_tr_b16 {v(WD+2,2)}, {v(t+1)} offset:{F_WD+128}' if cfg.wdpos==0 else ''}
    s_cmp_lg_u32 {s(sW)}, 0
    s_cbranch_scc1 L_fi3
    s_movk_i32 {s(sTry)}, 80
    L_fl:
    buffer_load_dwordx2 {v(t+4,2)}, {v(vL8)}, {WS}, {s(sTabLd)} offen sc1
    buffer_load_dwordx2 {v(t+6,2)}, {v(vL8)}, {WS}, {s(sT+10)} offen sc1
    s_waitcnt vmcnt(0)
    v_cmp_ne_u32 vcc, {s(sTag)}, {v(t+4)}
    v_cmp_ne_u32 {s(sT,2)}, {s(sTag)}, {v(t+6)}
    s_or_b64 vcc, vcc, {s(sT,2)}
    """)
    poll_branch('L_fl', 4, giveup='L_fslowtab', skip=True)
    a(f"""
    v_cmp_ne_u32 vcc, {s(sXcc)}, {v(t+5)}
    v_cmp_ne_u32 {s(sT,2)}, {s(sXcc)}, {v(t+7)}
    s_or_b64 vcc, vcc, {s(sT,2)}
    s_cbranch_vccnz L_fslowtab
    s_mov_b32 {s(sFast)}, 1
    {f's_sleep {cfg.tdel}' if cfg.tdel else ''}
    v_and_b32 {v(t+4)}, 1, {v(vQ)}
    v_lshlrev_b32 {v(t+4)}, 16, {v(t+4)}
    v_lshl_add_u32 {v(t+4)}, {v(vN)}, 4, {v(t+4)}
    s_lshl_b32 {s(sT)}, {s(sI)}, 8
    s_add_u32 {s(sT)}, {s(sT)}, {s(sPo)}
    buffer_load_dword {v(t+5)}, {v(t+4)}, {WS}, {s(sT)} offen sc1
    L_fi2:
    v_mov_b32 {v(t+6)}, {s(sFast)}
    ds_write_b32 {v(vFl)}, {v(t+6)} offset:4
    L_fi3:
    s_waitcnt vmcnt(0) lgkmcnt(0)
    s_barrier
    ds_read_b32 {v(t+6)}, {v(vFl)} offset:4
    s_waitcnt lgkmcnt(0)
    v_readfirstlane_b32 {s(sFast)}, {v(t+6)}
    """)
    if cfg.gul:
        a(f"""
        {f's_sleep {cfg.gdelay}' if cfg.gdelay else ''}
        {f'global_load_dwordx4 {v(T+8,4)}, {v(T+24)}, s[18:19]' if cfg.gul==2 else ''}
        global_load_dwordx4 {v(T+12,4)}, {v(T+24)}, s[20:21]
        s_waitcnt vmcnt(0)
        ds_write_b128 {v(T+22)}, {v(T+8,4)}
        ds_write_b128 {v(T+22)}, {v(T+12,4)} offset:16
        s_waitcnt lgkmcnt(0)
        s_barrier
        """)
        for k in range(4):
            a(f'ds_read_b64_tr_b16 {v(WA+4*k,2)}, {v(t+2)} offset:{1024*k}')
            a(f'ds_read_b64_tr_b16 {v(WA+4*k+2,2)}, {v(t+2)} offset:{1024*k+128}')
        a('s_waitcnt lgkmcnt(0)')
    if cfg.wdpos==3: a(f'v_mov_b32 {v(T+8)}, {v(t)}\nv_mov_b32 {v(T+9)}, {v(t+1)}')
    if cfg.wdpos==2:
        a(f"""
        {f's_sleep {cfg.gdelay}' if cfg.gdelay else ''}
        global_load_dwordx4 {v(T+8,4)}, {v(T+24)}, s[18:19]
        global_load_dwordx4 {v(T+12,4)}, {v(T+24)}, s[20:21]
        global_load_dwordx4 {v(T+16,4)}, {v(T+23)}, s[22:23]
        s_waitcnt vmcnt(0)
        ds_write_b128 {v(T+22)}, {v(T+8,4)}
        ds_write_b128 {v(T+22)}, {v(T+12,4)} offset:16
        ds_write_b128 {v(t)}, {v(T+16,4)} offset:{F_WD}
        s_waitcnt lgkmcnt(0)
        s_barrier
        """)
        for k in range(4):
            a(f'ds_read_b64_tr_b16 {v(WA+4*k,2)}, {v(t+2)} offset:{1024*k}')
            a(f'ds_read_b64_tr_b16 {v(WA+4*k+2,2)}, {v(t+2)} offset:{1024*k+128}')
        a(f"""
        ds_read_b64_tr_b16 {v(WD,2)}, {v(t+1)} offset:{F_WD}
        ds_read_b64_tr_b16 {v(WD+2,2)}, {v(t+1)} offset:{F_WD+128}
        s_waitcnt lgkmcnt(0)
        """)
    if cfg.wdpos==1: a(f"""
    {f's_sleep {cfg.gdelay}' if cfg.gdelay else ''}
    global_load_dwordx4 {v(T+16,4)}, {v(T+23)}, s[22:23]
    s_waitcnt vmcnt(0)
    ds_write_b128 {v(t)}, {v(T+16,4)} offset:{F_WD}
    ds_read_b64_tr_b16 {v(WD,2)}, {v(t+1)} offset:{F_WD}
    ds_read_b64_tr_b16 {v(WD+2,2)}, {v(t+1)} offset:{F_WD+128}
    s_waitcnt lgkmcnt(0)
    """)
    a(f"""
    L_frnd:
    s_add_u32 {s(sTabLd)}, {s(sTabLd)}, {ARGR}
    s_cmp_lg_u32 {s(sW)}, 0
    s_cbranch_scc1 L_fb1
    s_cmp_eq_u32 {s(sFast)}, 0
    s_cbranch_scc1 L_fb1
    L_ftrig:
    buffer_load_dword {v(t)}, {v(vL8)}, {WS}, {s(sTabLd)} offen sc1
    s_waitcnt vmcnt(0)
    v_cmp_ne_u32 vcc, {s(sTag)}, {v(t)}
    """)
    poll_branch('L_ftrig', cfg.slp_f)
    stamp()
    a(f"""
    s_cmp_eq_u32 {s(sRnd)}, 0
    s_cbranch_scc1 L_ft0
    s_sleep {cfg.tim_a1}
    s_branch L_fb1
    L_ft0:
    s_sleep {cfg.tim_arg if cfg.wdpos!=3 else cfg.tim_wd}
    L_fb1:
    """)
    if cfg.wdpos==3: a(f"""
    s_cmp_lg_u32 {s(sRnd)}, 0
    s_cbranch_scc1 L_fb1b
    s_barrier
    global_load_dwordx4 {v(T+16,4)}, {v(T+23)}, s[22:23]
    s_sleep {cfg.tim_arg-cfg.tim_wd}
    L_fb1b:
    """)
    a(f"""
    s_sub_u32 {s(sT)}, {s(sW)}, 4
    s_cmp_lt_u32 {s(sT)}, 2
    s_barrier
    s_cbranch_scc1 L_fx
    s_cmp_lg_u32 {s(sW)}, 6
    s_cbranch_scc1 L_fb2
    s_mov_b64 exec, 0xff
    L_fhd:
    buffer_load_dword {v(t)}, {v(vXL)}, {WS}, {s(sSlot)} offen offset:3072 sc1
    s_waitcnt vmcnt(0)
    v_cmp_eq_u32 vcc, -1, {v(t)}
    """)
    poll_branch('L_fhd', 2, skip=True)
    a(f"""
    v_max_u32_dpp {v(t)}, {v(t)}, {v(t)} row_half_mirror {DPP}
    v_max_u32_dpp {v(t)}, {v(t)}, {v(t)} quad_perm:[1,0,3,2] {DPP}
    v_max_u32_dpp {v(t)}, {v(t)}, {v(t)} quad_perm:[2,3,0,1] {DPP}
    ds_write_b32 {v(vFl)}, {v(t)}
    s_mov_b64 exec, -1
    s_branch L_fb2
    L_fx:
    buffer_load_dwordx4 {v(t,4)}, {v(vXL)}, {WS}, {s(sSlot)} offen sc1
    s_waitcnt vmcnt(0)
    ds_write_b128 {v(vXW)}, {v(t,4)} offset:{F_X}
    """)
    maxchk(range(t,t+4), t+4)
    poll_branch('L_fx', 2, mask=True)
    Dd=t+16
    a(f"""
    L_fb2:
    """)
    if cfg.wdpos==3: a(f"""
    s_cmp_lg_u32 {s(sRnd)}, 0
    s_cbranch_scc1 L_fb2b
    s_waitcnt vmcnt(0)
    ds_write_b128 {v(T+8)}, {v(T+16,4)} offset:{F_WD}
    ds_read_b64_tr_b16 {v(WD,2)}, {v(T+9)} offset:{F_WD}
    ds_read_b64_tr_b16 {v(WD+2,2)}, {v(T+9)} offset:{F_WD+128}
    L_fb2b:
    """)
    a(f"""
    s_cmp_gt_u32 {s(sW)}, 3
    s_waitcnt lgkmcnt(0)
    s_barrier
    s_cbranch_scc1 L_fnoa
    ds_read_b32 {v(t+20)}, {v(vFl)}
    """)
    for k in range(4): a(f'ds_read_b128 {v(t+4*k,4)}, {v(vXR)} offset:{F_X+64*k}')
    stamp()
    a(f"""
    s_cmp_lt_u32 {s(sI)}, 28
    s_cselect_b32 {s(sPs)}, {s(sPo)}, {WSSZ}
    s_waitcnt lgkmcnt(3)
    v_mfma_f32_16x16x32_bf16 {v(Dd,4)}, {v(t,4)}, {v(WA,4)}, 0
    v_readfirstlane_b32 {s(sKey)}, {v(t+20)}
    s_waitcnt lgkmcnt(2)
    v_mfma_f32_16x16x32_bf16 {v(Dd,4)}, {v(t+4,4)}, {v(WA+4,4)}, {v(Dd,4)}
    s_bitcmp0_b32 {s(sKey)}, 0
    s_cselect_b64 vcc, -1, 0
    s_waitcnt lgkmcnt(1)
    v_mfma_f32_16x16x32_bf16 {v(Dd,4)}, {v(t+8,4)}, {v(WA+8,4)}, {v(Dd,4)}
    s_bitcmp0_b32 {s(sKey)}, 1
    s_cselect_b64 {s(sT+2,2)}, -1, 0
    s_waitcnt lgkmcnt(0)
    v_mfma_f32_16x16x32_bf16 {v(Dd,4)}, {v(t+12,4)}, {v(WA+12,4)}, {v(Dd,4)}
    s_andn2_b32 {s(sT)}, 4, {s(sKey)}
    s_lshl_b32 {s(sT)}, {s(sT)}, 2
    s_bfm_b64 exec, 16, {s(sT)}
    s_cmp_eq_u32 {s(sFast)}, 0
    v_cndmask_b32 {v(Dd)}, {v(Dd)}, {v(Dd+1)}, vcc
    v_cndmask_b32 {v(Dd+2)}, {v(Dd+2)}, {v(Dd+3)}, vcc
    v_cndmask_b32 {v(Dd)}, {v(Dd)}, {v(Dd+2)}, {s(sT+2,2)}
    s_cbranch_scc1 L_fps_s ;!nd
    buffer_store_dword {v(Dd)}, {v(vPS)}, {WS}, {s(sPs)} offen
    L_fps_d:
    s_mov_b64 exec, -1
    s_cmp_eq_u32 {s(sRnd)}, 2
    s_cbranch_scc1 L_fpok
    s_waitcnt vmcnt(0)
    s_branch L_fp
    L_fps_s:
    buffer_store_dword {v(Dd)}, {v(vPS)}, {WS}, {s(sPs)} offen sc1
    s_branch L_fps_d
    L_fnoa:
    s_cmp_eq_u32 {s(sW)}, 7
    s_cbranch_scc1 L_f7
    s_cmp_eq_u32 {s(sRnd)}, 2
    s_cbranch_scc1 L_fpok
    s_sleep {cfg.tim_p}
    s_branch L_fp
    L_fp:
    buffer_load_dwordx4 {v(t,4)}, {v(vPL)}, {WS}, {s(sPo)} offen sc1
    s_waitcnt vmcnt(0)
    """)
    maxchk(range(t,t+4), t+4)
    poll_branch('L_fp', cfg.slp_p, mask=True)
    stamp()
    a(f"""
    L_fpok:
    v_permlane32_swap_b32 {v(t)}, {v(t+1)}
    v_permlane32_swap_b32 {v(t+2)}, {v(t+3)}
    v_add_f32 {v(t)}, {v(t)}, {v(t+1)}
    v_add_f32 {v(t+2)}, {v(t+2)}, {v(t+3)}
    v_permlane16_swap_b32 {v(t)}, {v(t+2)}
    v_add_f32 {v(t)}, {v(t)}, {v(t+2)}
    v_mul_f32 {v(t+1)}, 0xbfb8aa3b, {v(t)}
    v_exp_f32 {v(t+1)}, {v(t+1)}
    v_mul_f32_dpp {v(t+2)}, {v(t)}, {v(t)} quad_perm:[2,3,0,1] {DPP}
    v_add_f32 {v(t+1)}, 1.0, {v(t+1)}
    v_rcp_f32 {v(t+1)}, {v(t+1)}
    v_mul_f32 {v(t+1)}, {v(t+1)}, {v(t+2)}
    v_cvt_pk_bf16_f32 {v(t+1)}, {v(t+1)}, {v(t+1)}
    ds_write_b16 {v(vHW)}, {v(t+1)}
    ds_read_b128 {v(t+4,4)}, {v(vHR)}
    """)
    if cfg.eh:
        a(f's_cmp_lg_u32 {s(sW)}, 5\ns_cbranch_scc1 L_fyh_d')
        hint_store(vTag, sYh, 'L_fyh')
    a(f"""
    s_waitcnt lgkmcnt(0)
    v_mfma_f32_16x16x32_bf16 {v(t+8,4)}, {v(t+4,4)}, {v(WD,4)}, 0
    s_mov_b64 exec, 0xffff
    ds_write_b32 {v(vDP)}, {v(t+8)}
    s_mov_b64 exec, -1
    s_waitcnt lgkmcnt(0)
    s_barrier
    L_fnext:
    """)
    stamp()
    a(f"""
    s_cmp_eq_u32 {s(sRnd)}, 1
    s_cbranch_scc1 L_fend
    s_cmp_eq_u32 {s(sRnd)}, 2
    s_cbranch_scc1 L_finit
    """)
    if cfg.wb==1: a(f"""
    s_cmp_lg_u32 {s(sI)}, 28
    s_cbranch_scc1 L_nwb
    s_cmp_lg_u32 {s(sW)}, 3
    s_cbranch_scc1 L_nwb
    s_sleep {cfg.wbd}
    buffer_wbl2 sc1
    L_nwb:
    """)
    a(f"""
    s_mov_b32 {s(sRnd)}, 1
    s_add_u32 {s(sSlot)}, {s(sSlot)}, {SLOTR}
    s_add_u32 {s(sPo)}, {s(sPo)}, {PARTR}
    s_add_u32 {s(sYo)}, {s(sYo)}, {YPR}
    s_add_u32 {s(sYh)}, {s(sYh)}, {YHR}
    s_branch L_frnd
    L_f7:
    ds_read_b32 {v(t+20)}, {v(vFl)}
    v_mov_b32 {v(vSig)}, 0xbfb8aa3b
    v_add_u32 {v(t+8)}, -28, {v(vDP)}
    v_lshlrev_b32 {v(t+9)}, 1, {v(vN)}
    s_waitcnt lgkmcnt(0)
    v_readfirstlane_b32 {s(sKey)}, {v(t+20)}
    s_ashr_i32 {s(sT)}, {s(sKey)}, 31
    s_orn2_b32 {s(sT)}, 0x80000000, {s(sT)}
    s_xor_b32 {s(sT)}, {s(sT)}, {s(sKey)}
    v_mul_f32 {v(vSig)}, {s(sT)}, {v(vSig)}
    v_exp_f32 {v(vSig)}, {v(vSig)}
    v_add_f32 {v(vSig)}, 1.0, {v(vSig)}
    v_rcp_f32 {v(vSig)}, {v(vSig)}
    s_barrier
    ds_read_b128 {v(t,4)}, {v(t+8)}
    ds_read_b96 {v(t+4,3)}, {v(t+8)} offset:16
    s_waitcnt lgkmcnt(1)
    v_pk_add_f32 {v(t,2)}, {v(t,2)}, {v(t+2,2)}
    v_add_f32 {v(t)}, {v(t)}, {v(t+1)}
    s_waitcnt lgkmcnt(0)
    v_add_f32 {v(t+4)}, {v(t+4)}, {v(t+5)}
    v_add_f32 {v(t)}, {v(t)}, {v(t+6)}
    v_add_f32 {v(t)}, {v(t)}, {v(t+4)}
    v_mul_f32 {v(t)}, {v(t)}, {v(vSig)}
    v_mov_b32_dpp {v(t+1)}, {v(t)} quad_perm:[1,1,3,3] {DPP}
    s_mov_b64 exec, 0x5555
    v_cvt_pk_bf16_f32 {v(t)}, {v(t)}, {v(t+1)}
    buffer_store_dword {v(t)}, {v(t+9)}, {WS}, {s(sYo)} offen sc1
    """)
    if cfg.eh: a('s_mov_b64 exec, -1')
    else: hint_store(vTag, sYh, 'L_fyh')
    a(f"""
    s_branch L_fnext
    L_fslowtab:
    v_and_b32 {v(t+16)}, 7, {v(vLane)}
    v_lshlrev_b32 {v(t+16)}, 7, {v(t+16)}
    s_mov_b32 {s(sT+10)}, {TABG}
    L_ftab2:
    buffer_load_dword {v(t+4)}, {v(t+16)}, {WS}, {s(sT+10)} offen sc1
    s_waitcnt vmcnt(0)
    v_cmp_ne_u32 vcc, {s(sTag)}, {v(t+4)}
    """)
    poll_branch('L_ftab2', 8)
    a('s_branch L_fi2\nL_fend:')
    dump_stamps()
    a('s_endpgm')

def build():
    hdr=open('ref.txt').read().split('; @launch')[0]
    a.raw(hdr+f'; @launch grid=({NWG},1,1) block=(512,1,1) lds={LDS_TOTAL}')
    a.raw(f'''; generated by gen/gen.py (hand-written generator): persistent FFT-structured FNet + MoD kernel
.amdgcn_target "amdgcn-amd-amdhsa--gfx950"
.text
.globl {NAME}_kernel
.p2align {cfg.al}
.p2align 8
.type {NAME}_kernel,@function
{NAME}_kernel:''')
    if cfg.st0: a(f's_memrealtime s[88:89]\ns_waitcnt lgkmcnt(0)')
    a(f'''
    s_load_dwordx2 s[12:13], s[0:1], 0
    s_load_dwordx2 s[8:9], s[0:1], 96
    s_load_dwordx8 s[16:23], s[0:1], 48
    s_load_dwordx2 s[28:29], s[0:1], 80
    v_and_b32 {v(vN)}, 15, v0
    v_bfe_u32 {v(vQ)}, v0, 4, 2
    v_lshrrev_b32 v2, 6, v0
    v_lshlrev_b32 {v(vUW)}, 7, v2
    v_lshl_add_u32 {v(vUW)}, {v(vN)}, 3, {v(vUW)}                ; 128w+8n
    v_lshl_add_u32 {v(vXoff)}, {v(vQ)}, 19, {v(vUW)}
    s_lshl_b32 {s(sRow0)}, s2, 10
    s_add_u32 {s(sRow1)}, {s(sRow0)}, 0x40000
    s_mov_b32 s14, 0x200000
    s_mov_b32 s15, 0x20000
    v_readfirstlane_b32 {s(sW)}, v2
    ''')
    if cfg.codepf: a(f'''
    s_getpc_b64 {s(sT+6,2)}
    L_pc:
    v_lshlrev_b32 v3, {6 if cfg.hot else 5}, v0
    ''')
    if cfg.codepf and cfg.hot: a(f'''
    v_cmp_gt_u32 vcc, L_end-L_pc, v3
    s_and_b32 {s(sT)}, s2, 0x118
    s_cselect_b64 vcc, 0, vcc
    s_cbranch_vccz L_npf ;!nd
    s_mov_b64 exec, vcc
    global_load_dword {v(vTG)}, v3, {s(sT+6,2)}
    s_mov_b64 exec, -1
    L_npf:
    ''')
    elif cfg.codepf: a(f'''
    v_min_u32 v3, L_end-L_pc, v3
    {f'global_load_dword {v(vTG)}, v3, {s(sT+6,2)}' if cfg.codepf==1 else ''}
    ''')
    a(f'''
    s_cmp_ge_u32 s2, 256
    s_cbranch_scc1 L_nox ;!nd
    s_waitcnt lgkmcnt(0)
    buffer_load_dwordx2 {v(BC,2)}, {v(vXoff)}, {XS}, {s(sRow0)} offen
    buffer_load_dwordx2 {v(BC+2,2)}, {v(vXoff)}, {XS}, {s(sRow1)} offen
    L_nox:
    {f'global_load_dword {v(vTG)}, v3, {s(sT+6,2)}' if cfg.codepf==2 else ''}
    s_cmp_ge_u32 s2, {NWG}
    s_cbranch_scc1 L_end
    {'s_waitcnt lgkmcnt(0)' if cfg.wsoff else ''}
    {f's_add_u32 s8, s8, {cfg.wsoff<<20}' if cfg.wsoff else ''}
    {'s_addc_u32 s9, s9, 0' if cfg.wsoff else ''}
    v_and_b32 {v(vLane)}, 63, v0
    s_mov_b32 s10, {WSSZ}
    s_mov_b32 s11, 0x20000
    s_mov_b32 s30, 0x200000
    s_mov_b32 s31, 0x20000
    s_and_b32 {s(sX)}, s2, 7
    s_lshr_b32 {s(sJ)}, s2, 3
    v_mov_b32 {v(SENT)}, -1
    v_mov_b32 {v(SENT+1)}, -1
    v_mov_b32 {v(SENT+2)}, -1
    v_mov_b32 {v(SENT+3)}, -1
    v_lshlrev_b32 {v(vL8)}, 3, v0
    v_and_b32 {v(vL8)}, 0xf8, {v(vL8)}
    s_mov_b32 {s(sCnt)}, 200000
    s_mov_b32 {s(sM7FF)}, 0x7ff
    s_lshl_b32 {s(sTabLd)}, {s(sX)}, 8
    s_add_u32 {s(sTabLd)}, {s(sTabLd)}, {TABL}
    s_getreg_b32 {s(sXcc)}, hwreg(HW_REG_XCC_ID, 0, 4)
    ''')
    if cfg.force_slow: a(f's_mov_b32 {s(sXcc)}, {s(sJ)}')
    if cfg.stamps:
        a(f's_mov_b32 {s(sStampI)}, 0\nv_mov_b32 {v(vSTMP)}, 0')
        a(f's_memrealtime {s(sTS,2)}\ns_memtime {s(sTS+2,2)}\ns_waitcnt lgkmcnt(0)\nv_writelane_b32 {v(vSTMP)}, {s(sTS)}, 63\nv_writelane_b32 {v(vSTMP)}, {s(sTS+2)}, 62')
        a(f'v_writelane_b32 {v(vSTMP)}, {s(sT+6)}, 57')
        if cfg.st0: a(f'v_writelane_b32 {v(vSTMP)}, {s(sTS)}, 58\nv_writelane_b32 {v(vSTMP)}, s88, 63\ns_memrealtime {s(sTS,2)}\ns_waitcnt lgkmcnt(0)\nv_writelane_b32 {v(vSTMP)}, {s(sTS)}, 59')
    a('''s_cmp_ge_u32 s2, 256
    s_cbranch_scc1 L_ffn''')
    if cfg.prio: a(f's_setprio 2\ns_cmp_gt_u32 {s(sW)}, 1\ns_cbranch_scc1 L_np\ns_setprio 3\nL_np:')
    main_prologue()
    main_loop()
    ffn()
    a('L_end:\ns_endpgm')
    a.raw(f'''.section .rodata,"a"
.p2align 6
.amdhsa_kernel {NAME}_kernel
  .amdhsa_next_free_vgpr 128
  .amdhsa_next_free_sgpr 96
  .amdhsa_accum_offset 128
  .amdhsa_group_segment_fixed_size 0
  .amdhsa_kernarg_size 104
  .amdhsa_user_sgpr_count 2
  .amdhsa_user_sgpr_kernarg_segment_ptr 1
  .amdhsa_system_sgpr_workgroup_id_x 1
.end_amdhsa_kernel''')
    return a.text()
if __name__=='__main__':
    out=sys.argv[1]
    for kv in sys.argv[2:]:
        k,val=kv.split('='); assert hasattr(cfg,k); setattr(cfg,k,int(val))
    open(out,'w').write(build())
    print('instrs',a.count,'nops',a.nops)
```

```python
import sys, struct
from asmlib import Asm
NAME='interleave_layers__spectral_fnet__moe_arch_mod__prompt'
def fbits(x): return '0x%08x' % struct.unpack('<I', struct.pack('<f', x))[0]

class Cfg:
    stamps=0
    tim_arg=14
    tim_y=0
    tim_h=0
    slp_g=2
    slp_l=1
    force_slow=0
    prio=1
    codepf=1
    exp=0
    gre=0
    cfl=0
    tlb=0
    wsoff=0
    st0=0
    cal=-1
    calwg=0
    dbgout=0
    dry=1
    wb=0
    fdelay=10
    gdelay=18
    osc=1
    odel=0
    pfm=7
    clr2=0
    nb0=0
    ehint=0
    post=0
    slp_t=0
    aft=0
    g2pos=3
    spr=1
    twice=1
    lastp=1
    hot=1
    gw=0
    gul=0
    xpos=1
    tdel=18
    pub0=1
    al=12
    ep0=1
    ypos=1
    lnt=0
    tim_a1=14
    tim_wd=3
    tim_fh=12
    wdpos=3
    slp_p=1
    tim_p=8
    hold=1
    tim_gy=14
    eh=1
    own=1
    tim_y3=3
    beh=1
    gbb=0
    slp_f=2
    early=4
    tim_a0=0
    wbd=12
    gbdelay=4
    late=1
    split=0
    tch=1
cfg=Cfg()

TABG=0x1000; TABGR=0x6000
TABL=0x2000; ARGR=0x800
TAB2=0x3800
SLOWF=0x4000
YHINT=0x5000; YHR=0x400
FTAB=0x6000
CLR0=0x8000
YP=0x8000; YPR=0x2000
PART=0x20000; PARTR=0x10000
SLOT=0x10000; SLOTR=0x8000
LBASE=0x40000; PS=8448; LX=32*PS
GBASE=0x260000; GS=262144+768; GR=0x210000
STAMP=0x700000
WSSZ=0x800000
NWG=512
NST=(13,9,7)
L_STAT=0; L_U=0x400; L_YI=0x2400; YIS=320; L_YT=0x4C00; L_DH=0x6E00; L_FLAG=0x7E00; L_ROW=0x7E80; LDS_TOTAL=0x8280
L_CX=0x2400
def v(a,n=1): return f'v{a}' if n==1 else f'v[{a}:{a+n-1}]'
def s(a,n=1): return f's{a}' if n==1 else f's[{a}:{a+n-1}]'

WS='s[8:11]'; XS='s[12:15]'; OS='s[28:31]'
sW=3; sX=26; sJ=27; sIt=32; sTag=33; sFast=34; sKey=35; sMir=36; sDsc=38
sLst=39; sLld=40; sPh=41; sTabG=42; sG0=43; sG4=44; sTabSt=45; sTabLd=46; sSlot=47; sRow0=48; sRow1=49; sCnt=50
sXcc=51; sStampI=37
sK512=52
sTry=53
sEps=54
sC16=56
sSc=58
sM7FF=60; sTop=61
sQmask=62
sT=64
sNx=84; sSg=85; sYo=86; sYh=87
sTS=80
X=2; WV=10; A8=14; XA=16; B1C=20; B1S=24; B1N=28; TWC=32; TWS=36; A2R=40; A2I=44; YC=48; YS=52
AD=56; BC=58
vXoff=72; vStW=73; vStR=74; vUW=75; vUR=76; vLst=77; vLld=78; vLldM=79; vYIW=80; vYIR=81; vYW=82; vYR=83; vGst=84; vGld=85
vSc0=86; vL8=88; vInv=89; vN=90; vQ=91; vSTMP=1; vLane=92; vTG=93
LNP=94; MM=98; RS2=100
T=102
class Asm2(Asm):
    def __call__(self, text):
        parts=text.split(';@F')
        for i,p in enumerate(parts):
            if i: fstamp()
            Asm.__call__(self,p)
a=Asm2()
def poll_branch(lbl, sleep=1, pre='', giveup=None, skip=False, mask=False):
    k=a.lines.index(lbl+':')
    if mask:
        pre+='\ns_mov_b64 exec, vcc'; skip=True
        k2=next(i for i in range(k,len(a.lines)) if 's_waitcnt vmcnt(0)' in a.lines[i])
        k3=max(i for i in range(k,k2) if 'buffer_load' in a.lines[i])
        a.lines.insert(k3+1,'    s_mov_b64 exec, -1')
    if a.lines[k-1].strip().startswith(('s_branch','s_endpgm')): skip=False
    a(f's_cbranch_vccnz {lbl}_r ;!nd')
    st=[]
    if skip: st.append(f'    s_branch {lbl}')
    st.append(f'{lbl}_r:')
    if giveup: st+= [f'    s_sub_u32 {s(sTry)}, {s(sTry)}, 1', f'    s_cbranch_scc1 {giveup}']
    else: st+= [f'    s_sub_u32 {s(sCnt)}, {s(sCnt)}, 1', '    s_cbranch_scc1 L_end']
    st+= ['    '+x.strip() for x in pre.split('\n') if x.strip()]
    if sleep: st.append(f'    s_sleep {sleep}')
    a.lines[k:k]=st
def fstamp():
    if cfg.stamps in (2,3): stamp()
def stamp():
    if not cfg.stamps or cfg.stamps==4: return
    a(f'''{'s_memtime' if cfg.stamps==2 else 's_memrealtime'} {s(sTS,2)}
    s_waitcnt lgkmcnt(0)
    s_mov_b32 m0, {s(sStampI)}
    s_add_u32 {s(sStampI)}, {s(sStampI)}, 1
    v_writelane_b32 {v(vSTMP)}, {s(sTS)}, m0''')
def dump_stamps():
    if not cfg.stamps: return
    a(f's_memrealtime {s(sTS,2)}\ns_memtime {s(sTS+2,2)}\ns_waitcnt lgkmcnt(0)\nv_writelane_b32 {v(vSTMP)}, {s(sTS)}, 61\nv_writelane_b32 {v(vSTMP)}, {s(sTS+2)}, 60')
    if cfg.cal>=0:
        lab='L_cal%d'%len(a.lines)
        a(f'''s_cmp_lg_u32 s2, {cfg.calwg}
        s_cbranch_scc1 {lab}
        s_cmp_lg_u32 {s(sW)}, 0
        s_cbranch_scc1 {lab}
        v_readlane_b32 {s(sT)}, {v(vSTMP)}, {cfg.cal}
        v_readlane_b32 {s(sT+1)}, {v(vSTMP)}, 63
        s_sub_u32 {s(sT)}, {s(sT)}, {s(sT+1)}
        s_lshl_b32 {s(sT)}, {s(sT)}, 2
        s_add_u32 {s(sT)}, {s(sT)}, 3000
        s_min_u32 {s(sT)}, {s(sT)}, 50000
        {lab}_l:
        s_memrealtime {s(sTS,2)}
        s_waitcnt lgkmcnt(0)
        s_sub_u32 {s(sT+2)}, {s(sTS)}, {s(sT+1)}
        s_cmp_lt_u32 {s(sT+2)}, {s(sT)}
        s_cbranch_scc1 {lab}_l
        {lab}:''')
        return
    a(f'''s_lshl_b32 {s(sT)}, s2, 11
    s_lshl_b32 {s(sT+1)}, {s(sW)}, 8
    s_add_u32 {s(sT)}, {s(sT)}, {s(sT+1)}
    s_add_u32 {s(sT)}, {s(sT)}, {STAMP}
    v_lshlrev_b32 {v(vLane)}, 2, {v(vLane)}
    buffer_store_dword {v(vSTMP)}, {v(vLane)}, {WS}, {s(sT)} offen''')
def maxchk(regs, t):
    regs=list(regs)
    a(f'v_max3_u32 {v(t)}, {v(regs[0])}, {v(regs[1])}, {v(regs[2])}')
    rest=regs[3:]
    while len(rest)>=2:
        a(f'v_max3_u32 {v(t)}, {v(t)}, {v(rest[0])}, {v(rest[1])}'); rest=rest[2:]
    if rest: a(f'v_max_u32 {v(t)}, {v(t)}, {v(rest[0])}')
    a(f'v_cmp_eq_u32 vcc, -1, {v(t)}')
def phchk(regs, t):
    regs=list(regs)
    a(f'v_bitop3_b32 {v(t)}, {v(regs[0])}, {v(regs[1])}, {s(sPh)} bitop3:0x7e')
    for r in regs[2:]: a(f'v_bitop3_b32 {v(t)}, {v(t)}, {v(r)}, {s(sPh)} bitop3:0xf6')
    a(f'v_and_b32 {v(t)}, 1, {v(t)}\nv_cmp_ne_u32 vcc, 0, {v(t)}')
def tag4chk(r):
    for k in range(4): a(f'v_xor_b32 {v(r+k)}, {s(sTag)}, {v(r+k)}')
    a(f'v_or3_b32 {v(r)}, {v(r)}, {v(r+1)}, {v(r+2)}\nv_or_b32 {v(r)}, {v(r)}, {v(r+3)}\nv_cmp_ne_u32 vcc, 0, {v(r)}')
DPP='row_mask:0xf bank_mask:0xf'

def fft_core(xr, xi, U, V, F, P, fill1='', fill2=''):
    Ur,Ui=U,U+4
    a(f'v_mfma_f32_16x16x32_f16 {v(Ur,4)}, {v(xr,4)}, {v(B1C,4)}, 0')
    a(f'v_mfma_f32_16x16x32_f16 {v(Ui,4)}, {v(xr,4)}, {v(B1N,4)}, 0')
    if xi is not None:
        a(f'v_mfma_f32_16x16x32_f16 {v(Ur,4)}, {v(xi,4)}, {v(B1S,4)}, {v(Ur,4)}')
        a(f'v_mfma_f32_16x16x32_f16 {v(Ui,4)}, {v(xi,4)}, {v(B1C,4)}, {v(Ui,4)}')
    a(fill1)
    Vr,Vi=V,V+4
    for h in (0,2):
        a(f'v_pk_mul_f32 {v(Vi+h,2)}, {v(Ur+h,2)}, {v(TWS+h,2)}')
    for h in (0,2):
        a(f'v_pk_mul_f32 {v(Vr+h,2)}, {v(Ui+h,2)}, {v(TWS+h,2)}')
    for h in (0,2):
        a(f'v_pk_fma_f32 {v(Vr+h,2)}, {v(Ur+h,2)}, {v(TWC+h,2)}, {v(Vr+h,2)}')
        a(f'v_pk_fma_f32 {v(Vi+h,2)}, {v(Ui+h,2)}, {v(TWC+h,2)}, {v(Vi+h,2)} neg_lo:[0,0,1] neg_hi:[0,0,1]')
    for r in range(4): a(f'v_cvt_pk_f16_f32 {v(P+r)}, {v(Vr+r)}, {v(Vi+r)}')
    a(f'v_mfma_f32_16x16x32_f16 {v(F,4)}, {v(A2R,4)}, {v(P,4)}, 0')
    a(f'v_mfma_f32_16x16x32_f16 {v(F+4,4)}, {v(A2I,4)}, {v(P,4)}, 0')
    a(fill2)
    for r in range(4): a(f'v_cvt_pk_f16_f32 {v(P+r)}, {v(F+r)}, {v(F+4+r)}')

SENT=T+4
def g2late():
    return '\n'.join(f'v_mov_b32 {v(LNP+k)}, -1' for k in range(4))+f'\ns_mov_b32 {s(sT+14)}, {GBASE+GR}\nbuffer_store_dwordx4 {v(LNP,4)}, {v(vGst)}, {WS}, {s(sT+14)} offen sc1'

def main_prologue():
    t=T
    X0=BC
    a(f'''
    s_mul_i32 {s(sLld)}, {s(sX)}, {LX}
    s_add_u32 {s(sLld)}, {s(sLld)}, {LBASE}
    s_mul_i32 {s(sLst)}, {s(sJ)}, {PS}
    s_add_u32 {s(sLst)}, {s(sLst)}, {s(sLld)}
    v_lshlrev_b32 {v(t)}, 4, v0
    v_lshrrev_b32 {v(t+1)}, 4, v0
    {f's_load_dword {s(sTag)}, s[8:9], 0' if not cfg.ep0 else ''}
    ''')
    a(f'''
    buffer_load_dwordx4 {v(X0+8,4)}, {v(t)}, {WS}, {s(sLst)} offen sc1
    s_mov_b32 {s(sG0)}, {GBASE}
    s_mul_i32 {s(sT)}, {s(sX)}, {GS}
    s_add_u32 {s(sT+2)}, {s(sJ)}, 24
    s_and_b32 {s(sT+2)}, {s(sT+2)}, 24
    s_lshl_b32 {s(sT+2)}, {s(sT+2)}, 13
    s_add_u32 {s(sT)}, {s(sT)}, {s(sT+2)}
    s_and_b32 {s(sT+2)}, {s(sJ)}, 7
    s_cmp_lt_u32 {s(sJ)}, 8
    s_cselect_b32 {s(sT+3)}, 7, 8
    s_cselect_b32 {s(sT+4)}, 112, 0
    s_lshl_b32 {s(sT+2)}, {s(sT+2)}, {s(sT+3)}
    s_add_u32 {s(sT)}, {s(sT)}, {s(sT+2)}
    v_lshlrev_b32 {v(t+2)}, 4, {v(vN)}
    v_lshl_add_u32 {v(vGst)}, {v(t+1)}, 11, {v(t+2)}
    v_and_b32 {v(t+3)}, 8, {v(vN)}
    v_mad_u32_u24 {v(vGst)}, {v(t+3)}, {s(sT+4)}, {v(vGst)}
    v_add_u32 {v(vGst)}, {s(sT)}, {v(vGst)}
    ''')
    a(f'''
    buffer_store_dwordx4 {v(SENT,4)}, {v(vGst)}, {WS}, {s(sG0)} offen sc1
    v_and_b32 {v(BC+6)}, 0x3f0, {v(t)}
    global_load_dwordx2 {v(BC+4,2)}, {v(vUW)}, s[16:17]
    global_load_dwordx4 {v(WV,4)}, {v(BC+6)}, s[16:17]
    s_cmp_lg_u32 {s(sW)}, 0
    s_cbranch_scc1 L_nw0 ;!nd
    buffer_load_dword {v(BC+12)}, off, {WS}, 0 sc1
    buffer_load_dword {v(X0+7)}, {v(vL8)}, {WS}, {s(sTabLd)} offen sc1
    s_and_b32 {s(sT+14)}, {s(sJ)}, 24
    s_add_u32 {s(sT+14)}, {s(sT+14)}, {s(sX)}
    s_and_b32 {s(sT+13)}, {s(sJ)}, 7
    s_lshl3_add_u32 {s(sT+15)}, {s(sT+14)}, {s(sT+13)}
    s_lshl_b32 {s(sT+15)}, {s(sT+15)}, 10
    s_cmp_lt_u32 {s(sT+14)}, 4
    s_cselect_b32 {s(sT+15)}, s10, {s(sT+15)}
    buffer_store_dwordx4 {v(SENT,4)}, {v(t)}, {WS}, {s(sT+15)} offen sc1
    L_nw0:
    ''')
    if cfg.exp&2: stamp(); a('s_waitcnt vmcnt(4)'); stamp()
    c=t+8; co,si=c+8,c+12
    a(f'''
    s_lshr_b32 {s(sT)}, {s(sJ)}, 2
    s_and_b32 {s(sT)}, {s(sT)}, 6                 ; 2*(j>>3)
    s_lshl_b32 {s(sT+1)}, {s(sW)}, 2
    s_and_b32 {s(sT+1)}, {s(sT+1)}, 8             ; 2*4*((w>>1)&1)
    s_cmp_lt_u32 {s(sJ)}, 8
    s_cselect_b32 {s(sT)}, {s(sT+1)}, {s(sT)}
    s_lshl_b32 {s(sT+1)}, {s(sW)}, 4
    s_and_b32 {s(sT+1)}, {s(sT+1)}, 16            ; 16*(w&1)
    s_cmp_ge_u32 {s(sW)}, 4
    s_cselect_b32 {s(sT+2)}, {s(sT+1)}, 0         ; 16k
    s_cselect_b32 {s(sT)}, {s(sT)}, 0
    s_cmp_eq_u32 {s(sW)}, 3
    s_cselect_b32 {s(sT)}, 16, {s(sT)}
    s_lshl_b32 {s(sT+3)}, {s(sW)}, 2
    s_lshr_b32 {s(sT+3)}, 0x44440054, {s(sT+3)}
    s_and_b32 {s(sT+3)}, {s(sT+3)}, 15            ; log2 A
    v_lshlrev_b32 {v(c)}, {s(sT+3)}, {v(vN)}
    v_add_u32 {v(c)}, {s(sT)}, {v(c)}
    v_lshl_add_u32 {v(c+1)}, {v(vQ)}, 2, {s(sT+2)}
    v_cvt_f32_u32 {v(c)}, {v(c)}
    v_cvt_f32_u32 {v(c+1)}, {v(c+1)}
    s_mov_b32 {s(sK512)}, {fbits(1/512)}
    v_mul_f32 {v(c)}, {s(sK512)}, {v(c)}
    v_mul_f32 {v(c+4)}, {v(c+1)}, {v(c)}
    v_add_f32 {v(c+5)}, {v(c+4)}, {v(c)}
    v_add_f32 {v(c+6)}, {v(c+5)}, {v(c)}
    v_add_f32 {v(c+7)}, {v(c+6)}, {v(c)}
    ''')
    fill=[f's_mov_b32 {s(sEps)}, {fbits(1e-5)}', f's_mov_b32 {s(sEps+1)}, {fbits(1e-5)}', f's_mov_b32 {s(sC16)}, {fbits(1/16)}', f's_mov_b32 {s(sC16+1)}, {fbits(1/16)}',
          f's_mov_b32 {s(sTop)}, 0x80000000', f's_mov_b32 {s(sQmask)}, 0x11111111', f's_mov_b32 {s(sQmask+1)}, 0x11111111', f's_mov_b32 {s(sG4)}, {GBASE+4*GS}']
    for r in range(4):
        a(f'v_cos_f32 {v(co+r)}, {v(c+4+r)}'); a(fill[2*r])
        a(f'v_sin_f32 {v(si+r)}, {v(c+4+r)}'); a(fill[2*r+1])
    a(f'''
    s_lshl_b32 {s(sT)}, {s(sW)}, 11
    s_add_u32 {s(sT)}, {s(sT)}, {L_CX}
    v_lshlrev_b32 {v(c+2)}, 4, {v(vLane)}
    v_add_u32 {v(c+3)}, {s(sT)}, {v(c+2)}
    s_and_b32 {s(sT)}, {s(sW)}, 6
    s_cmp_eq_u32 {s(sT)}, 2
    s_cbranch_scc1 L_cw
    s_cmp_eq_u32 {s(sW)}, 1
    s_cbranch_scc1 L_cri
    v_cvt_pk_f16_f32 {v(co)}, {v(co)}, {v(co+1)}
    v_cvt_pk_f16_f32 {v(co+1)}, {v(co+2)}, {v(co+3)}
    v_cvt_pk_f16_f32 {v(co+2)}, {v(si)}, {v(si+1)}
    v_cvt_pk_f16_f32 {v(co+3)}, {v(si+2)}, {v(si+3)}
    s_branch L_cw
    L_cri:
    ''')
    for r in range(4):
        a(f'v_cvt_pk_f16_f32 {v(c+4)}, {v(co+r)}, {v(si+r)}')
        a(f'v_cvt_pk_f16_f32 {v(si+r)}, -{v(si+r)}, {v(co+r)}')
        a(f'v_mov_b32 {v(co+r)}, {v(c+4)}')
    a(f'''
    L_cw:
    ds_write_b128 {v(c+3)}, {v(co,4)}
    ds_write_b128 {v(c+3)}, {v(si,4)} offset:1024
    v_lshrrev_b32 {v(c+4)}, 2, {v(vN)}
    v_and_b32 {v(c+5)}, 2, {v(vN)}
    v_and_b32 {v(c+6)}, 14, {v(vN)}
    v_cmp_eq_u32 vcc, 2, {v(c+6)}
    v_lshlrev_b32 {v(vStR)}, 8, {v(vQ)}
    v_cndmask_b32 {v(c+4)}, {v(c+4)}, 4, vcc
    v_cndmask_b32 {v(c+5)}, {v(c+5)}, 0, vcc
    v_mul_u32_u24 {v(c+6)}, {v(c+4)}, {v(vQ)}
    v_lshl_add_u32 {v(c+6)}, {v(c+6)}, 1, {v(c+5)}
    v_add_u32 {v(c+7)}, {v(c+6)}, {v(c+4)}
    v_cvt_f32_u32 {v(c+6)}, {v(c+6)}
    v_cvt_f32_u32 {v(c+7)}, {v(c+7)}
    v_mul_f32 {v(c+6)}, 0x3e000000, {v(c+6)}
    v_mul_f32 {v(c+7)}, 0x3e000000, {v(c+7)}
    v_cos_f32 {v(c+6)}, {v(c+6)}
    v_cos_f32 {v(c+7)}, {v(c+7)}
    v_and_b32 {v(c+5)}, 1, {v(vN)}
    v_cmp_eq_u32 vcc, 0, {v(c+5)}
    v_cvt_pk_f16_f32 {v(c+6)}, {v(c+6)}, {v(c+7)}
    v_mov_b32 {v(c+5)}, 0x80008000
    v_cndmask_b32 {v(A8)}, 0, {v(c+6)}, vcc
    v_cndmask_b32 {v(A8+1)}, {v(c+6)}, 0, vcc
    v_cndmask_b32 {v(c+5)}, {v(c+5)}, 0, vcc
    s_lshl_b32 {s(sT+1)}, {s(sT+1)}, 7            ; h*2048
    v_add_u32 {v(c+6)}, {s(sT+1)}, {v(c+2)}
    s_lshl_b32 {s(sT+2)}, {s(sW)}, 11
    s_and_b32 {s(sT+2)}, {s(sT+2)}, 4096          ; ((w>>1)&1)*4096
    v_add_u32 {v(c+7)}, {s(sT+2)}, {v(c+2)}
    ''')
    if cfg.exp&4: stamp()
    a(f'''
    s_waitcnt lgkmcnt(0)
    s_barrier
    ''')
    if cfg.exp&4: stamp()
    a(f'''
    ds_read_b128 {v(B1N,4)}, {v(c+2)} offset:{L_CX}
    ds_read_b128 {v(A2R,4)}, {v(c+2)} offset:{L_CX+2048}
    ds_read_b128 {v(A2I,4)}, {v(c+2)} offset:{L_CX+2048+1024}
    ds_read_b128 {v(TWC,4)}, {v(c+6)} offset:{L_CX+4096}
    ds_read_b128 {v(TWS,4)}, {v(c+6)} offset:{L_CX+4096+1024}
    ds_read2st64_b64 {v(YC,4)}, {v(c+7)} offset0:{(L_CX+4*2048)//512} offset1:{(L_CX+5*2048)//512}
    v_add_u32 {v(c+7)}, 8, {v(c+7)}
    ds_read2st64_b64 {v(YS,4)}, {v(c+7)} offset0:{(L_CX+4*2048)//512} offset1:{(L_CX+5*2048)//512}
    v_and_b32 {v(c+4)}, 4, {v(vN)}
    s_lshl_b32 {s(sT)}, {s(sW)}, 2
    v_lshl_add_u32 {v(vStW)}, {v(t+3)}, 2, {v(vStR)}
    v_lshl_add_u32 {v(vStW)}, {v(c+4)}, 4, {v(vStW)}
    v_add_u32 {v(vStW)}, {s(sT)}, {v(vStW)}
    v_and_b32 {v(c+4)}, 7, {v(vN)}
    v_lshl_add_u32 {v(vStR)}, {v(c+4)}, 5, {v(vStR)}
    v_lshl_add_u32 {v(vUW)}, {v(vQ)}, 11, {v(vUW)}
    v_add_u32 {v(vUW)}, {L_U}, {v(vUW)}
    s_lshr_b32 {s(sT)}, {s(sW)}, 1
    s_lshl_b32 {s(sT)}, {s(sT)}, 11
    s_add_u32 {s(sT+2)}, {s(sT)}, {L_U}
    v_lshl_add_u32 {v(vUR)}, {v(vLane)}, 3, {s(sT+2)}
    ; vLst = w'*2048 + 512q + 64h + 4n
    s_lshr_b32 {s(sT+2)}, {s(sT+1)}, 5
    s_add_u32 {s(sT)}, {s(sT)}, {s(sT+2)}
    v_lshl_add_u32 {v(vLst)}, {v(vQ)}, 9, {s(sT)}
    v_lshl_add_u32 {v(vLst)}, {v(vN)}, 2, {v(vLst)}
    s_lshl_b32 {s(sT+3)}, {s(sW)}, 31             ; h sign
    s_mov_b32 {s(sT+5)}, 0x80008000
    s_mov_b32 {s(sIt)}, 0
    s_waitcnt lgkmcnt(6)
    v_xor_b32 {v(B1C)}, {s(sT+3)}, {v(B1N)}
    v_xor_b32 {v(B1C+1)}, {s(sT+3)}, {v(B1N+1)}
    v_xor_b32 {v(B1S)}, {s(sT+3)}, {v(B1N+2)}
    v_xor_b32 {v(B1S+1)}, {s(sT+3)}, {v(B1N+3)}
    v_xor_b32 {v(B1C+2)}, {v(B1C)}, {v(c+5)}
    v_xor_b32 {v(B1C+3)}, {v(B1C+1)}, {v(c+5)}
    v_xor_b32 {v(B1S+2)}, {v(B1S)}, {v(c+5)}
    v_xor_b32 {v(B1S+3)}, {v(B1S+1)}, {v(c+5)}
    ''')
    for r in range(4): a(f'v_xor_b32 {v(B1N+r)}, {s(sT+5)}, {v(B1S+r)}')
    a(f'''
    s_waitcnt vmcnt(7)
    s_cmp_eq_u32 {s(sW)}, 0
    s_cbranch_scc1 L_x0 ;!nd
    s_waitcnt vmcnt(4)
    L_x0:
    ''')
    for rho in (0,1):
        for k in (0,1):
            src=X0+2*rho+k
            a(f'v_lshlrev_b32 {v(X+4*k+rho)}, 16, {v(src)}')
            a(f'v_and_b32 {v(X+4*k+2+rho)}, 0xffff0000, {v(src)}')
    if not cfg.ep0: a(f's_add_u32 {s(sTag)}, {s(sTag)}, 1')

def y_setup(u):
    a(f'''
    s_lshl_b32 {s(sT+4)}, {s(sW)}, 29
    s_and_b32 {s(sT+4)}, {s(sT+4)}, {s(sTop)}
    v_lshrrev_b32 {v(u+1)}, 4, v0
    v_lshlrev_b32 {v(u+2)}, 4, {v(vN)}
    v_lshrrev_b32 {v(vYIR)}, 2, {v(vN)}
    v_mul_u32_u24 {v(vYIR)}, {YIS}, {v(vYIR)}
    ''')
    for r in range(8): a(f'v_xor_b32 {v(YC+r)}, {s(sT+4)}, {v(YC+r)}')
    a(f'''
    s_and_b32 {s(sT+1)}, {s(sW)}, 3
    s_lshl_b32 {s(sT+1)}, {s(sT+1)}, 6            ; 64cb
    s_lshr_b32 {s(sT)}, {s(sW)}, 2
    s_mul_i32 {s(sT)}, {s(sT)}, {16*272}
    s_add_u32 {s(sT)}, {s(sT)}, {s(sT+1)}
    s_add_u32 {s(sT)}, {s(sT)}, {L_YT}
    v_mul_u32_u24 {v(vYW)}, 272, {v(vN)}
    v_lshl_add_u32 {v(vYW)}, {v(vQ)}, 4, {v(vYW)}
    v_add_u32 {v(vYW)}, {s(sT)}, {v(vYW)}
    v_mul_u32_u24 {v(vYR)}, 272, {v(u+1)}
    v_add_u32 {v(vYR)}, {v(vYR)}, {v(u+2)}
    v_add_u32 {v(vYR)}, {L_YT}, {v(vYR)}
    s_add_u32 {s(sT+1)}, {s(sT+1)}, {L_YI}
    v_mul_u32_u24 {v(u+3)}, {4*YIS}, {v(vQ)}
    v_and_b32 {v(u+4)}, 0x30, {v(u+2)}
    v_add3_u32 {v(vYIR)}, {v(vYIR)}, {v(u+3)}, {v(u+4)}
    v_add_u32 {v(vYIR)}, {s(sT+1)}, {v(vYIR)}
    s_cmp_lt_u32 {s(sJ)}, 8
    s_cbranch_scc1 L_aself
    v_mul_u32_u24 {v(vLld)}, {PS}, {v(u+1)}
    v_mul_u32_u24 {v(vYIW)}, {YIS}, {v(u+1)}
    s_lshl_b32 {s(sT)}, {s(sJ)}, 8
    v_add3_u32 {v(vLld)}, {v(vLld)}, {v(u+2)}, {s(sT)}
    v_add_u32 {v(vYIW)}, {v(vYIW)}, {v(u+2)}
    v_mov_b32 {v(vLldM)}, 0
    s_branch L_adone
    L_aself:
    ; s2=(w>>1)*8+(l>>3), u=l&7, which=w&1
    s_lshl_b32 {s(sT)}, {s(sW)}, 2
    s_and_b32 {s(sT)}, {s(sT)}, 24
    v_lshrrev_b32 {v(u+3)}, 3, {v(vLane)}
    v_add_u32 {v(u+3)}, {s(sT)}, {v(u+3)}
    v_and_b32 {v(u+4)}, 0x70, {v(u+2)}
    v_mul_u32_u24 {v(vLldM)}, {PS}, {v(u+3)}
    v_mul_u32_u24 {v(vYIW)}, {YIS}, {v(u+3)}
    s_lshl_b32 {s(sT)}, {s(sJ)}, 7
    s_add_u32 {s(sT+1)}, {s(sT)}, 4
    s_sub_u32 {s(sT)}, {508*4}, {s(sT)}
    v_add3_u32 {v(vLld)}, {v(vLldM)}, {v(u+4)}, {s(sT+1)}
    v_sub_u32 {v(vLldM)}, {v(vLldM)}, {v(u+4)}
    v_add_u32 {v(vLldM)}, {s(sT)}, {v(vLldM)}
    s_and_b32 {s(sT)}, {s(sW)}, 1
    s_lshl_b32 {s(sT)}, {s(sT)}, 7
    v_add3_u32 {v(vYIW)}, {v(vYIW)}, {v(u+4)}, {s(sT)}
    L_adone:
    v_add_u32 {v(vYIW)}, {L_YI}, {v(vYIW)}
    ''')

def xin_consts(c):
    a(f'''
    s_and_b32 {s(sT)}, {s(sX)}, 3                ; 0 => self
    s_lshr_b32 {s(sT+1)}, {s(sW)}, 2
    s_lshr_b32 {s(sT+2)}, {s(sX)}, 2
    s_mov_b32 {s(sSc)}, {fbits(16.0)}
    s_cmp_eq_u32 {s(sT)}, 0
    s_cselect_b32 {s(sMir)}, {s(sT+1)}, {s(sT+2)}
    s_cselect_b32 {s(sSc)}, {fbits(8.0)}, {s(sSc)}
    s_cselect_b32 {s(sDsc)}, {fbits(1/8)}, {s(sC16)}
    s_cselect_b32 {s(sT+3)}, -4, 0
    s_mov_b32 {s(sSc+1)}, {s(sSc)}
    s_sub_u32 {s(sT+4)}, 256, s2
    s_and_b32 {s(sT+4)}, {s(sT+4)}, 255
    s_cmp_eq_u32 {s(sMir)}, 0
    s_cselect_b32 {s(sT+4)}, s2, {s(sT+4)}       ; source g
    s_cselect_b32 {s(sT+5)}, 16, -16
    s_cselect_b32 {s(sT+6)}, 0, {509*4}
    s_cselect_b32 {s(sT+7)}, 1.0, -1.0
    s_add_u32 {s(sT+3)}, {s(sT+3)}, {s(sT+6)}
    s_mul_i32 {s(sT+6)}, {s(sT+5)}, {s(sW)}
    s_lshl_b32 {s(sT+6)}, {s(sT+6)}, 4
    s_add_u32 {s(sT+3)}, {s(sT+3)}, {s(sT+6)}
    s_lshr_b32 {s(sT+6)}, {s(sT+4)}, 3
    s_lshl_b32 {s(sT+6)}, {s(sT+6)}, 11
    s_add_u32 {s(sT+3)}, {s(sT+3)}, {s(sT+6)}
    s_add_u32 {s(sT+6)}, {s(sT+4)}, 3
    s_and_b32 {s(sT+6)}, {s(sT+6)}, 3
    s_lshl_b32 {s(sT+6)}, {s(sT+6)}, 16
    s_add_u32 {s(sT+3)}, {s(sT+3)}, {s(sT+6)}
    s_and_b32 {s(sT+6)}, {s(sT+4)}, 4
    s_lshl_b32 {s(sT+6)}, {s(sT+6)}, 8
    s_add_u32 {s(sT+3)}, {s(sT+3)}, {s(sT+6)}
    v_mul_i32_i24 {v(vGld)}, {s(sT+5)}, {v(vN)}
    v_mul_u32_u24 {v(c+4)}, {GS}, {v(vQ)}
    v_add3_u32 {v(vGld)}, {v(vGld)}, {v(c+4)}, {s(sT+3)}
    v_lshrrev_b32 {v(c+4)}, 1, {v(vN)}
    v_and_b32 {v(c+4)}, 6, {v(c+4)}
    v_and_or_b32 {v(c+4)}, {v(vN)}, 1, {v(c+4)}
    v_lshl_add_u32 {v(AD)}, {v(c+4)}, 8, s2
    v_cvt_f32_u32 {v(c+4)}, {v(AD)}
    v_cvt_f32_u32 {v(c+5)}, {v(vQ)}
    v_mul_f32 {v(c+4)}, {fbits(1/2048)}, {v(c+4)}
    v_mul_f32 {v(c+4)}, {s(sT+7)}, {v(c+4)}
    v_mul_f32 {v(c+5)}, {v(c+4)}, {v(c+5)}
    v_fma_f32 {v(c+6)}, {v(c+4)}, 4.0, {v(c+5)}
    v_cos_f32 {v(c+7)}, {v(c+5)}
    v_sin_f32 {v(c+8)}, {v(c+5)}
    v_cos_f32 {v(c+9)}, {v(c+6)}
    v_sin_f32 {v(c+10)}, {v(c+6)}
    v_bfe_u32 {v(c+4)}, {v(vN)}, 1, 1
    v_cmp_eq_u32 vcc, {s(sMir)}, {v(c+4)}
    v_cvt_pk_f16_f32 {v(c+7)}, {v(c+7)}, {v(c+8)}
    v_cvt_pk_f16_f32 {v(c+9)}, {v(c+9)}, {v(c+10)}
    v_cndmask_b32 {v(XA)}, 0, {v(c+7)}, vcc
    v_cndmask_b32 {v(XA+1)}, {v(c+7)}, 0, vcc
    v_cndmask_b32 {v(XA+2)}, 0, {v(c+9)}, vcc
    v_cndmask_b32 {v(XA+3)}, {v(c+9)}, 0, vcc
    v_and_b32 {v(c+4)}, 0x1cf, v0
    v_cmp_eq_u32 vcc, 0, {v(c+4)}
    v_mov_b32 {v(c+5)}, {s(sSc)}
    s_sub_u32 {s(sT)}, 2047, s2
    v_lshlrev_b32 {v(vInv)}, 9, {v(vQ)}
    v_cndmask_b32 {v(vSc0)}, {v(c+5)}, 0, vcc
    v_cndmask_b32 {v(vSc0+1)}, {v(c+5)}, 0, vcc
    v_sub_u32 {v(vInv)}, {s(sT)}, {v(vInv)}
    s_lshl_b32 {s(sSlot)}, {s(sX)}, 12
    s_add_u32 {s(sSlot)}, {s(sSlot)}, {SLOT}
    ''')

def main_loop():
    t=T
    S1,S2,S3=t,t+2,t+4
    a('L_top:')
    stamp()
    a(f'''
    v_pk_add_f32 {v(S1,2)}, {v(X,2)}, {v(X+2,2)}
    v_pk_add_f32 {v(t+6,2)}, {v(X+4,2)}, {v(X+6,2)}
    v_pk_mul_f32 {v(S2,2)}, {v(X,2)}, {v(X,2)}
    v_pk_mul_f32 {v(S3,2)}, {v(X,2)}, {v(WV,2)} op_sel:[0,0] op_sel_hi:[1,0]
    v_pk_add_f32 {v(S1,2)}, {v(S1,2)}, {v(t+6,2)}
    v_pk_fma_f32 {v(S2,2)}, {v(X+2,2)}, {v(X+2,2)}, {v(S2,2)}
    v_pk_fma_f32 {v(S3,2)}, {v(X+2,2)}, {v(WV,2)}, {v(S3,2)} op_sel:[0,1,0] op_sel_hi:[1,1,1]
    v_add_f32_dpp {v(S1)}, {v(S1)}, {v(S1)} row_ror:8 row_mask:0xf bank_mask:0x3
    v_pk_fma_f32 {v(S2,2)}, {v(X+4,2)}, {v(X+4,2)}, {v(S2,2)}
    v_pk_fma_f32 {v(S3,2)}, {v(X+4,2)}, {v(WV+2,2)}, {v(S3,2)} op_sel:[0,0,0] op_sel_hi:[1,0,1]
    v_add_f32_dpp {v(S1)}, {v(S1+1)}, {v(S1+1)} row_ror:8 row_mask:0xf bank_mask:0xc
    v_pk_fma_f32 {v(S2,2)}, {v(X+6,2)}, {v(X+6,2)}, {v(S2,2)}
    v_pk_fma_f32 {v(S3,2)}, {v(X+6,2)}, {v(WV+2,2)}, {v(S3,2)} op_sel:[0,1,0] op_sel_hi:[1,1,1]
    v_add_f32_dpp {v(S1)}, {v(S1)}, {v(S1)} row_half_mirror row_mask:0xf bank_mask:0x5
    v_add_f32_dpp {v(S2)}, {v(S2)}, {v(S2)} row_ror:8 row_mask:0xf bank_mask:0x3
    v_add_f32_dpp {v(S3)}, {v(S3)}, {v(S3)} row_ror:8 row_mask:0xf bank_mask:0x3
    v_add_f32_dpp {v(S2)}, {v(S2+1)}, {v(S2+1)} row_ror:8 row_mask:0xf bank_mask:0xc
    v_add_f32_dpp {v(S3)}, {v(S3+1)}, {v(S3+1)} row_ror:8 row_mask:0xf bank_mask:0xc
    v_add_f32_dpp {v(S1)}, {v(S2)}, {v(S2)} row_half_mirror row_mask:0xf bank_mask:0xa
    v_add_f32_dpp {v(S3)}, {v(S3)}, {v(S3)} row_half_mirror {DPP}
    v_add_f32_dpp {v(S1)}, {v(S1)}, {v(S1)} quad_perm:[1,0,3,2] {DPP}
    v_add_f32_dpp {v(S3)}, {v(S3)}, {v(S3)} quad_perm:[1,0,3,2] {DPP}
    v_add_f32_dpp {v(S1)}, {v(S1)}, {v(S1)} quad_perm:[2,3,0,1] {DPP}
    v_add_f32_dpp {v(S3)}, {v(S3)}, {v(S3)} quad_perm:[2,3,0,1] {DPP}
    s_mov_b64 exec, {s(sQmask,2)}
    ds_write2_b32 {v(vStW)}, {v(S1)}, {v(S3)} offset0:0 offset1:32
    s_mov_b64 exec, -1
    ;@F
    ''')
    if cfg.g2pos==4: a(f's_cmp_lg_u32 {s(sIt)}, 1\ns_cbranch_scc1 L_nw\ns_waitcnt vmcnt(0)\nL_nw:')
    a(f'''
    s_waitcnt lgkmcnt(0)
    s_barrier
    ;@F
    ds_read_b128 {v(t,4)}, {v(vStR)}
    ds_read_b128 {v(t+4,4)}, {v(vStR)} offset:16
    s_waitcnt lgkmcnt(0)
    v_pk_add_f32 {v(t,2)}, {v(t,2)}, {v(t+2,2)}
    v_pk_add_f32 {v(t+4,2)}, {v(t+4,2)}, {v(t+6,2)}
    v_pk_add_f32 {v(t,2)}, {v(t,2)}, {v(t+4,2)}
    v_add_f32 {v(t)}, {v(t)}, {v(t+1)}
    v_mul_f32 {v(t+7)}, {s(sK512)}, {v(t)}
    ''')
    VAR,RS,CC,NM=t+8,t+10,t+12,t+14
    K=t+16
    a(f'''
    v_mov_b32_dpp {v(MM)}, {v(t+7)} row_newbcast:0 {DPP}
    v_mov_b32_dpp {v(MM+1)}, {v(t+7)} row_newbcast:1 {DPP}
    v_mov_b32_dpp {v(S2)}, {v(t+7)} row_newbcast:2 {DPP}
    v_mov_b32_dpp {v(S2+1)}, {v(t+7)} row_newbcast:3 {DPP}
    v_mov_b32_dpp {v(S3)}, {v(t+7)} row_newbcast:4 {DPP}
    v_pk_fma_f32 {v(VAR,2)}, {v(MM,2)}, {v(MM,2)}, {v(S2,2)} neg_lo:[1,0,0] neg_hi:[1,0,0]
    v_mov_b32_dpp {v(S3+1)}, {v(t+7)} row_newbcast:5 {DPP}
    v_pk_add_f32 {v(S1,2)}, {v(VAR,2)}, {s(sEps,2)}
    s_cmp_eq_u32 {s(sIt)}, 0
    v_rsq_f32_e64 {v(RS)}, |{v(S1)}|
    v_rsq_f32_e64 {v(RS+1)}, |{v(S1+1)}|
    s_cbranch_scc1 L_z0 ;!nd
    v_pk_mul_f32 {v(S3,2)}, {v(S3,2)}, {v(RS,2)}
    v_add_u32 {v(K+2)}, 0xffffff00, {v(vInv)}
    v_ashrrev_i32 {v(K)}, 31, {v(S3)}
    v_ashrrev_i32 {v(K+1)}, 31, {v(S3+1)}
    v_bitop3_b32 {v(K)}, {v(S3)}, {v(K)}, {s(sTop)} bitop3:0x1e
    v_bitop3_b32 {v(K+1)}, {v(S3+1)}, {v(K+1)}, {s(sTop)} bitop3:0x1e
    v_bfi_b32 {v(K)}, {s(sM7FF)}, {v(vInv)}, {v(K)}
    v_bfi_b32 {v(K+1)}, {s(sM7FF)}, {v(K+2)}, {v(K+1)}
    v_max_u32 {v(K+1)}, {v(K)}, {v(K+1)}
    v_pk_add_f32 {v(CC,2)}, {v(RS,2)}, 1.0 op_sel_hi:[1,0]
    v_mov_b32 {v(K)}, {s(sTag)}
    v_max_u32_dpp {v(K+1)}, {v(K+1)}, {v(K+1)} row_bcast:15 row_mask:0xa bank_mask:0xf
    v_pk_mul_f32 {v(VAR,2)}, {v(VAR,2)}, {v(CC,2)}
    s_cmp_lg_u32 {s(sW)}, 0
    v_max_u32_dpp {v(K+1)}, {v(K+1)}, {v(K+1)} row_bcast:31 row_mask:0xc bank_mask:0xf
    s_cbranch_scc1 L_nost ;!nd
    s_mov_b32 exec_lo, 0
    s_mov_b32 exec_hi, {s(sTop)}
    s_cmp_eq_u32 {s(sFast)}, 0
    s_cbranch_scc1 L_tabst_slow ;!nd
    buffer_store_dwordx2 {v(K,2)}, off, {WS}, {s(sTabSt)}
    L_tabst_back:
    s_mov_b64 exec, -1
    L_nost:
    v_readlane_b32 {s(sKey)}, {v(K+1)}, 63
    v_pk_mul_f32 {v(NM,2)}, {v(MM,2)}, {v(RS,2)}
    v_pk_fma_f32 {v(VAR,2)}, {v(VAR,2)}, {v(CC,2)}, {s(sEps,2)}
    ''')
    Z=t+18
    for c_ in range(4):
        a(f'v_pk_fma_f32 {v(Z+2*c_,2)}, {v(X+2*c_,2)}, {v(RS,2)}, {v(NM,2)} neg_lo:[0,0,1] neg_hi:[0,0,1]')
        if c_==0: a(f'v_rsq_f32_e64 {v(RS2)}, |{v(VAR)}|')
        if c_==1: a(f'v_rsq_f32_e64 {v(RS2+1)}, |{v(VAR+1)}|')
    for c_ in range(4):
        a(f'v_pk_add_f32 {v(X+2*c_,2)}, {v(X+2*c_,2)}, {v(Z+2*c_,2)}')
    for rho in (0,1):
        for k in (0,1):
            a(f'v_cvt_pk_bf16_f32 {v(LNP+2*rho+k)}, {v(Z+4*k+rho)}, {v(Z+4*k+2+rho)}')
    a(f'''
    ''')
    if cfg.pub0: a(f'''
    s_bitcmp0_b32 {s(sKey)}, 8
    s_cselect_b64 vcc, -1, 0
    s_andn2_b32 {s(sT+1)}, 0x600, {s(sKey)}
    s_lshr_b32 {s(sT+1)}, {s(sT+1)}, 5
    v_and_b32 {v(K)}, 0x3ff, {v(vXoff)}
    v_cndmask_b32 {v(LNP)}, {v(LNP)}, {v(LNP+2)}, vcc
    v_cndmask_b32 {v(LNP+1)}, {v(LNP+1)}, {v(LNP+3)}, vcc
    s_bfm_b64 exec, 16, {s(sT+1)}
    ds_write_b64 {v(K)}, {v(LNP,2)} offset:{L_ROW}
    s_mov_b64 exec, -1
    ''')
    a(f'''
    s_cmp_eq_u32 {s(sIt)}, 2
    s_cbranch_scc1 L_tab2e ;!nd
    v_mov_b32 {v(RS)}, {v(RS2)}
    v_mov_b32 {v(RS+1)}, {v(RS2+1)}
    L_z0:
    v_pk_mul_f32 {v(CC,2)}, {v(RS,2)}, {s(sC16,2)}
    L_z:
    ;@F
    ''')
    ZP=t; D0=t+4; D1=t+8
    a(f'v_pk_mul_f32 {v(NM,2)}, {v(MM,2)}, {v(CC,2)}')
    for c_ in range(4):
        a(f'v_pk_fma_f32 {v(Z+2*c_,2)}, {v(X+2*c_,2)}, {v(CC,2)}, {v(NM,2)} neg_lo:[0,0,1] neg_hi:[0,0,1]')
    for c_ in range(4): a(f'v_cvt_pk_f16_f32 {v(ZP+c_)}, {v(Z+2*c_)}, {v(Z+2*c_+1)}')
    a(f'''
    v_mfma_f32_16x16x16_f16 {v(D0,4)}, {v(A8,2)}, {v(ZP,2)}, 0
    v_mfma_f32_16x16x16_f16 {v(D1,4)}, {v(A8,2)}, {v(ZP+2,2)}, 0
    s_nop 6
    v_cvt_pk_f16_f32 {v(ZP)}, {v(D0)}, {v(D0+1)}
    v_cvt_pk_f16_f32 {v(ZP+1)}, {v(D1)}, {v(D1+1)}
    v_cvt_pk_f16_f32 {v(ZP+2)}, {v(D0+2)}, {v(D0+3)}
    v_cvt_pk_f16_f32 {v(ZP+3)}, {v(D1+2)}, {v(D1+3)}
    ds_write_b64 {v(vUW)}, {v(ZP,2)}
    ds_write_b64 {v(vUW)}, {v(ZP+2,2)} offset:1024
    ;@F
    s_waitcnt lgkmcnt(0)
    s_barrier
    ;@F
    ds_read_b64_tr_b16 {v(t,2)}, {v(vUR)}
    ds_read_b64_tr_b16 {v(t+2,2)}, {v(vUR)} offset:512
    ds_read_b64_tr_b16 {v(t+4,2)}, {v(vUR)} offset:1024
    ds_read_b64_tr_b16 {v(t+6,2)}, {v(vUR)} offset:1536
    s_cmp_ge_u32 {s(sW)}, {s(sIt)}
    s_cbranch_scc1 L_tg1 ;!nd
    buffer_load_dwordx2 {v(t+24,2)}, {v(vL8)}, {WS}, {s(sTabLd)} offen sc1
    {f'ds_read_b128 {v(LNP,4)}, {v(vTG)} offset:{L_ROW}' if cfg.pub0 else ''}
    L_tg1:
    L_tg2:
    s_waitcnt lgkmcnt(0)
    ;@F
    ''')
    P=t
    fft_core(t, t+4, t+8, t+16, t+8, P)
    def lstores(fl, ph=None):
        for r in range(4):
            if ph==0: a(f'v_and_b32 {v(P+r)}, -2, {v(P+r)}')
            if ph==1: a(f'v_or_b32 {v(P+r)}, 1, {v(P+r)}')
            a(f'buffer_store_dword {v(P+r)}, {v(vLst)}, {WS}, {s(sLst)} offen offset:{128*r} {fl}')
    TB=t+24
    W_=t+4
    a(f'''
    s_cmp_lg_u32 {s(sIt)}, 0
    s_cbranch_scc1 L_tab1e
    ''')
    lstores('nt' if cfg.lnt&1 else '',0)
    stamp()
    a(f'''
    s_branch {'L_flag0' if cfg.pub0 else 'L_pub'}
    L_tab1e:
    s_cmp_eq_u32 {s(sW)}, 0
    s_cbranch_scc1 L_tabw1
    s_branch L_tabbar
    L_tab2e:
    s_cmp_eq_u32 {s(sW)}, 0
    {'s_waitcnt lgkmcnt(0)' if cfg.pub0 else ''}
    {'s_barrier' if cfg.pub0 else ''}
    s_cbranch_scc0 L_tabbar
    {f'ds_read_b128 {v(LNP,4)}, {v(vTG)} offset:{L_ROW}' if cfg.pub0 else ''}
    s_branch L_tab
    L_tab:
    buffer_load_dwordx2 {v(TB,2)}, {v(vL8)}, {WS}, {s(sTabLd)} offen sc1
    L_tabw1:
    s_waitcnt vmcnt(0)
    v_cmp_ne_u32 vcc, {s(sTag)}, {v(TB)}
    ''')
    poll_branch('L_tab', cfg.slp_t, f'''s_cmp_lg_u32 {s(sIt)}, 0
        s_cselect_b32 {s(sT)}, 0, 1
        s_sub_u32 {s(sTry)}, {s(sTry)}, {s(sT)}
        s_cbranch_scc1 L_tab2''')
    a(f'''
    L_tabok:
    v_cmp_ne_u32 vcc, {s(sKey)}, {v(TB+1)}
    v_cmp_lt_u32 {s(sT,2)}, {s(sKey)}, {v(TB+1)}
    v_mov_b32 {v(TB)}, {L_FLAG}
    s_cmp_eq_u32 {s(sIt)}, 0
    s_cselect_b32 {s(sT)}, vcc_lo, {s(sT)}
    ''')
    if cfg.pub0: a(f'''
    s_cselect_b32 {s(sT+1)}, 1, {s(sT)}
    s_cmp_lg_u32 {s(sT+1)}, 0
    s_cbranch_scc1 L_np0 ;!nd
    v_mov_b32 {v(TB+1)}, {s(sKey)}
    s_waitcnt lgkmcnt(0)
    buffer_store_dwordx4 {v(LNP,4)}, {v(vTG)}, {WS}, {s(sSlot)} offen sc1
    s_mov_b64 exec, 1
    buffer_store_dword {v(TB+1)}, off, {WS}, {s(sSlot)} offset:3072 sc1
    s_mov_b64 exec, -1
    L_np0:
    ''')
    a(f'''
    v_mov_b32 {v(TB+1)}, {s(sT)}
    ds_write_b32 {v(TB)}, {v(TB+1)}
    s_waitcnt lgkmcnt(0)
    s_barrier
    s_branch L_tabgot
    L_tabbar:
    v_mov_b32 {v(TB)}, {L_FLAG}
    s_barrier
    ds_read_b64 {v(TB,2)}, {v(TB)}
    s_waitcnt lgkmcnt(0)
    v_readfirstlane_b32 {s(sT)}, {v(TB)}
    {f'v_readfirstlane_b32 {s(sTag)}, {v(TB+1)}' if cfg.ep0 else ''}
    L_tabgot:
    s_cmp_eq_u32 {s(sIt)}, 0
    s_cbranch_scc1 L_fastchk ;!nd
    s_mov_b32 {s(sT+9)}, 64
    s_cmp_lg_u32 {s(sT)}, 0
    s_cbranch_scc1 L_winback ;!nd
    L_pub:
    s_andn2_b32 {s(sT)}, {s(sM7FF)}, {s(sKey)}      ; idx
    s_lshr_b32 {s(sT+9)}, {s(sT)}, 8                ; s1
    s_bitcmp1_b32 {s(sT+9)}, 0
    s_cselect_b64 vcc, -1, 0
    s_lshl_b32 {s(sT+1)}, {s(sT+9)}, 3
    s_and_b32 {s(sT+1)}, {s(sT+1)}, 0x30
    {f'v_cndmask_b32 {v(W_)}, {v(LNP)}, {v(LNP+2)}, vcc' if not cfg.pub0 else ''}
    {f'v_cndmask_b32 {v(W_+1)}, {v(LNP+1)}, {v(LNP+3)}, vcc' if not cfg.pub0 else ''}
    v_and_b32 {v(W_+2)}, 0x3ff, {v(vXoff)}
    s_bfm_b64 exec, 16, {s(sT+1)}
    {f'buffer_store_dwordx2 {v(W_,2)}, {v(W_+2)}, {WS}, {s(sSlot)} offen sc1' if not cfg.pub0 else ''}
    s_cmp_lg_u32 {s(sW)}, 0
    s_cbranch_scc1 L_nohdr
    v_mov_b32 {v(W_+8)}, {s(sKey)}
    v_cndmask_b32 {v(W_+9)}, {v(MM)}, {v(MM+1)}, vcc
    v_cndmask_b32 {v(W_+10)}, {v(RS2)}, {v(RS2+1)}, vcc
    v_mov_b32 {v(W_+11)}, {s(sKey)}
    {f'buffer_store_dwordx4 {v(W_+8,4)}, off, {WS}, {s(sSlot)} offset:3072 sc1' if not cfg.pub0 else ''}
    buffer_store_dwordx4 {v(W_+8,4)}, off, {WS}, {s(sSlot)} offset:3200 sc1
    L_nohdr:
    ''')
    for c_ in range(4): a(f'v_cndmask_b32 {v(W_+4+c_)}, {v(X+2*c_)}, {v(X+2*c_+1)}, vcc')
    a(f'''
    v_lshlrev_b32 {v(W_+2)}, 1, {v(W_+2)}
    buffer_store_dwordx4 {v(W_+4,4)}, {v(W_+2)}, {WS}, {s(sSlot)} offen offset:1024 sc1
    s_mov_b64 exec, -1
    s_cmp_eq_u32 {s(sIt)}, 0
    s_cbranch_scc1 L_flag0
    L_winback:
    s_cmp_eq_u32 {s(sIt)}, 2
    s_cbranch_scc1 L_fin
    s_add_u32 {s(sSlot)}, {s(sSlot)}, {SLOTR}
    ''')
    lstores('nt' if cfg.lnt&2 else '',1)
    stamp()
    a(f'''
    s_waitcnt vmcnt(0)
    s_branch L_tabdone
    L_flag0:
    ;@F
    s_mov_b32 {s(sFast)}, 1
    s_mov_b32 {s(sPh)}, 0
    s_mov_b32 {s(sNx)}, 0
    s_mov_b32 {s(sKey)}, {s(sXcc)}
    s_mov_b32 {s(sSlot)}, {WSSZ}
    s_xor_b32 {s(sT+12)}, {s(sJ)}, 9
    s_or_b32 {s(sT+12)}, {s(sT+12)}, {s(sW)}
    s_mov_b32 {s(sTry)}, 64
    s_lshl_b32 {s(sT)}, {s(sJ)}, 3
    s_add_u32 {s(sTabSt)}, {s(sTabLd)}, {s(sT)}
    {f'v_mov_b32 {v(t+22)}, {s(sTag)}' if not cfg.ep0 else ''}
    v_mov_b32 {v(t+23)}, {s(sKey)}
    ''')
    if cfg.ypos==1: y_setup(t+4)
    a(f'''
    s_waitcnt vmcnt(0)
    {f'v_add_u32 {v(t+22)}, 1, {v(BC+12)}' if cfg.ep0 else ''}
    ;@F
    s_cmp_eq_u32 {s(sW)}, 0
    s_barrier
    s_cbranch_scc0 L_flag1
    s_mov_b64 exec, 1
    buffer_store_dwordx2 {v(t+22,2)}, off, {WS}, {s(sTabSt)}
    s_mov_b64 exec, -1
    {f'v_mov_b32 {v(t+21)}, {L_FLAG}' if cfg.ep0 else ''}
    {f'ds_write_b32 {v(t+21)}, {v(t+22)} offset:4' if cfg.ep0 else ''}
    {f'v_readfirstlane_b32 {s(sTag)}, {v(t+22)}' if cfg.ep0 else ''}
    L_flag1:
    v_lshlrev_b32 {v(vTG)}, 4, {v(vLane)}
    ''')
    if cfg.ypos==0: y_setup(t+4)
    if cfg.xpos==0: xin_consts(t+4)
    w=BC+8
    a(f'''
    v_mov_b32 {v(w+1)}, 0x3f803f80
    v_dot2_f32_bf16 {v(w)}, {v(WV)}, {v(w+1)}, 0
    v_dot2_f32_bf16 {v(w)}, {v(WV+1)}, {v(w+1)}, {v(w)}
    v_dot2_f32_bf16 {v(w)}, {v(WV+2)}, {v(w+1)}, {v(w)}
    v_dot2_f32_bf16 {v(w)}, {v(WV+3)}, {v(w+1)}, {v(w)}
    v_lshlrev_b32 {v(WV)}, 16, {v(BC+4)}
    v_and_b32 {v(WV+1)}, 0xffff0000, {v(BC+4)}
    v_lshlrev_b32 {v(WV+2)}, 16, {v(BC+5)}
    v_add_f32_dpp {v(w)}, {v(w)}, {v(w)} row_ror:8 {DPP}
    v_and_b32 {v(WV+3)}, 0xffff0000, {v(BC+5)}
    v_mul_f32 {v(WV)}, 0x44000000, {v(WV)}
    v_add_f32_dpp {v(w)}, {v(w)}, {v(w)} row_ror:4 {DPP}
    v_mul_f32 {v(WV+1)}, 0x44000000, {v(WV+1)}
    v_mul_f32 {v(WV+2)}, 0x44000000, {v(WV+2)}
    v_add_f32_dpp {v(w)}, {v(w)}, {v(w)} row_ror:2 {DPP}
    v_mul_f32 {v(WV+3)}, 0x44000000, {v(WV+3)}
    v_add_f32_dpp {v(w)}, {v(w)}, {v(w)} row_ror:1 {DPP}
    v_add_f32_dpp {v(w)}, {v(w)}, {v(w)} row_bcast:15 row_mask:0xa bank_mask:0xf
    v_add_f32_dpp {v(w)}, {v(w)}, {v(w)} row_bcast:31 row_mask:0xc bank_mask:0xf
    v_readlane_b32 {s(sT)}, {v(w)}, 63
    ''')
    for k in range(4): a(f'v_subrev_f32 {v(WV+k)}, {s(sT)}, {v(WV+k)}')
    a(f'''
    s_cmp_eq_u32 {s(sW)}, 0
    s_cbranch_scc1 L_tab
    s_branch L_tabbar
    L_fastchk:
    s_cmp_eq_u32 {s(sT)}, 0
    s_cselect_b32 {s(sFast)}, 1, 0
    L_tabdone:
    s_cmp_eq_u32 {s(sFast)}, 0
    s_cbranch_scc1 L_slow
    L_slowback:
    ;@F
    s_cmp_lt_u32 {s(sJ)}, 8
    s_cbranch_scc0 L_y
    s_branch L_yself
    L_y:
    buffer_load_dwordx4 {v(t,4)}, {v(vLld)}, {WS}, {s(sLld)} offen sc1
    s_waitcnt vmcnt(0)
    ds_write_b128 {v(vYIW)}, {v(t,4)}
    ''')
    phchk(range(t,t+4), t+8)
    poll_branch('L_y', cfg.slp_l, mask=True)
    a('L_yjoin:')
    stamp()
    a(f'''
    s_cmp_lg_u32 {s(sT+12)}, 0
    s_cbranch_scc1 L_noxf
    s_lshl_b32 {s(sT+12)}, {s(sX)}, 7
    s_add_u32 {s(sT+12)}, {s(sT+12)}, {TABG}
    v_lshrrev_b32 {v(t+8)}, 1, {v(vL8)}
    v_mov_b32 {v(t+9)}, {s(sTag)}
    s_mov_b32 exec_hi, 0
    buffer_store_dword {v(t+9)}, {v(t+8)}, {WS}, {s(sT+12)} offen sc1
    s_mov_b64 exec, -1
    L_noxf:
    s_cmp_eq_u32 {s(sIt)}, 0
    s_cbranch_scc1 L_nohl
    v_and_b32 {v(BC)}, 7, {v(vLane)}
    v_lshlrev_b32 {v(BC)}, 12, {v(BC)}
    s_mov_b32 {s(sT+10)}, {SLOT}
    s_mov_b64 exec, 0xff
    buffer_load_dwordx4 {v(LNP,4)}, {v(BC)}, {WS}, {s(sT+10)} offen offset:3200 sc1
    s_mov_b64 exec, -1
    L_nohl:
    ''')
    A0,A1=t,t+4; P0,Q0,P1,Q1=t+8,t+12,t+16,t+20
    a(f'''
    s_waitcnt lgkmcnt(0)
    s_barrier
    ;@F
    ds_read_b64_tr_b16 {v(A0,2)}, {v(vYIR)}
    ds_read_b64_tr_b16 {v(A0+2,2)}, {v(vYIR)} offset:{16*YIS}
    ds_read_b64_tr_b16 {v(A1,2)}, {v(vYIR)} offset:8
    ds_read_b64_tr_b16 {v(A1+2,2)}, {v(vYIR)} offset:{16*YIS+8}
    s_add_u32 {s(sTabLd)}, {s(sTabLd)}, {ARGR}
    s_add_u32 {s(sTabSt)}, {s(sTabSt)}, {ARGR}
    s_waitcnt lgkmcnt(2)
    v_mfma_f32_16x16x32_f16 {v(P0,4)}, {v(A0,4)}, {v(YC,4)}, 0
    v_mfma_f32_16x16x32_f16 {v(Q0,4)}, {v(A0,4)}, {v(YS,4)}, 0
    s_waitcnt lgkmcnt(0)
    v_mfma_f32_16x16x32_f16 {v(P1,4)}, {v(A1,4)}, {v(YC,4)}, 0
    v_mfma_f32_16x16x32_f16 {v(Q1,4)}, {v(A1,4)}, {v(YS,4)}, 0
    ''')
    for P_,Q_ in ((P0,Q0),(P1,Q1)):
        for h in (0,2):
            a(f'v_pk_add_f32 {v(P_+h,2)}, {v(P_+h,2)}, {v(Q_+h,2)} op_sel:[0,1] op_sel_hi:[1,0] neg_hi:[0,1]')
    a(f'''
    v_cvt_pk_f16_f32 {v(t)}, {v(P0)}, {v(P0+1)}
    v_cvt_pk_f16_f32 {v(t+1)}, {v(P0+2)}, {v(P0+3)}
    v_cvt_pk_f16_f32 {v(t+2)}, {v(P1)}, {v(P1+1)}
    v_cvt_pk_f16_f32 {v(t+3)}, {v(P1+2)}, {v(P1+3)}
    ''')
    if cfg.gre:
        for r in range(4): a(f'v_bfi_b32 {v(t+r)}, 1, {s(sPh)}, {v(t+r)}')
    a(f'''
    ds_write_b128 {v(vYW)}, {v(t,4)}
    ;@F
    s_waitcnt lgkmcnt(0)
    s_barrier
    ;@F
    ds_read_b128 {v(t+4,4)}, {v(vYR)}
    s_cmp_lg_u32 {s(sIt)}, 0
    s_cbranch_scc1 L_hdr
    ''')
    xfl=f'''v_and_b32 {v(t+24)}, 7, {v(vLane)}
    v_lshlrev_b32 {v(t+24)}, 7, {v(t+24)}
    s_mov_b32 {s(sT+10)}, {TABG}
    v_mov_b32 {v(t+20)}, {s(sTag)}
    s_mov_b64 exec, 0xff
    buffer_load_dword {v(t+20)}, {v(t+24)}, {WS}, {s(sT+10)} offen sc1
    s_mov_b64 exec, -1'''
    if cfg.gw in (1,2): a(xfl)
    a(f'''
    s_waitcnt lgkmcnt(0)
    buffer_store_dwordx4 {v(t+4,4)}, {v(vGst)}, {WS}, {s(sG0)} offen sc1
    ''')
    stamp()
    a(f'''
    {xfl if cfg.gw==3 else ''}
    {g2late() if cfg.g2pos==3 else ''}
    {xfl if not cfg.gw else ''}
    ''')
    if cfg.xpos==1: xin_consts(t+8)
    if cfg.gw: a(f's_waitcnt vmcnt({[0,2,1,1][cfg.gw]})\ns_branch L_tg0c')
    a('L_tg0w:\ns_waitcnt vmcnt(0)\nL_tg0c:\n;@F')
    a(f'v_cmp_ne_u32 vcc, {s(sTag)}, {v(t+20)}')
    a(f'''
    s_cbranch_vccnz L_tg0_r ;!nd
    ''')
    if cfg.g2pos==4: a(f'''
    buffer_load_dwordx4 {v(t,4)}, {v(vGld)}, {WS}, {s(sG0)} offen sc1
    buffer_load_dwordx4 {v(t+4,4)}, {v(vGld)}, {WS}, {s(sG4)} offen sc1
    {g2late()}
    s_cmp_lg_u32 {s(sMir)}, 0
    s_waitcnt vmcnt(1)
    s_branch L_gw2
    ''')
    else: a('s_branch L_g')
    a(f'''
    L_g:
    ''')
    C0,C1=t,t+4
    a(f'''
    buffer_load_dwordx4 {v(C0,4)}, {v(vGld)}, {WS}, {s(sG0)} offen sc1
    buffer_load_dwordx4 {v(C1,4)}, {v(vGld)}, {WS}, {s(sG4)} offen sc1
    L_gw:
    s_cmp_lg_u32 {s(sMir)}, 0
    s_waitcnt vmcnt(0)
    L_gw2:
    s_cbranch_scc1 L_xmir ;!nd
    ''')
    E0,E1=t+8,t+12
    a(f'''
    v_mfma_f32_16x16x16_f16 {v(E0,4)}, {v(XA,2)}, {v(C0,2)}, 0
    v_mfma_f32_16x16x16_f16 {v(E1,4)}, {v(XA,2)}, {v(C0+2,2)}, 0
    v_mfma_f32_16x16x16_f16 {v(E0,4)}, {v(XA+2,2)}, {v(C1,2)}, {v(E0,4)}
    v_mfma_f32_16x16x16_f16 {v(E1,4)}, {v(XA+2,2)}, {v(C1+2,2)}, {v(E1,4)}
    s_branch L_xjoin ;!nd
    L_xmir:
    ''')
    a.hist=[]
    a(f'''
    v_mfma_f32_16x16x16_f16 {v(E0,4)}, {v(XA,2)}, {v(C0+2,2)}, 0
    v_mfma_f32_16x16x16_f16 {v(E1,4)}, {v(XA,2)}, {v(C0,2)}, 0
    v_mfma_f32_16x16x16_f16 {v(E0,4)}, {v(XA+2,2)}, {v(C1+2,2)}, {v(E0,4)}
    v_mfma_f32_16x16x16_f16 {v(E1,4)}, {v(XA+2,2)}, {v(C1,2)}, {v(E1,4)}
    L_xjoin:
    ''')
    if cfg.gre: phchk(range(t,t+8), t+16)
    else: maxchk(range(t,t+8), t+16)
    poll_branch('L_g', cfg.slp_g, mask=True)
    stamp()
    a(f'''
    s_mov_b32 {s(sIt)}, 1
    s_mov_b32 {s(sPh)}, -1
    {f's_add_u32 {s(sG0)}, {s(sG0)}, {GR}' if not cfg.gre else ''}
    {f's_add_u32 {s(sG4)}, {s(sG4)}, {GR}' if not cfg.gre else ''}
    L_apply:
    s_cmp_eq_u32 {s(sNx)}, 0
    v_pk_fma_f32 {v(X,2)}, {v(E0,2)}, {v(vSc0,2)}, {v(X,2)}
    v_pk_fma_f32 {v(X+2,2)}, {v(E0+2,2)}, {s(sSc,2)}, {v(X+2,2)}
    v_pk_fma_f32 {v(X+4,2)}, {v(E1,2)}, {s(sSc,2)}, {v(X+4,2)}
    v_pk_fma_f32 {v(X+6,2)}, {v(E1+2,2)}, {s(sSc,2)}, {v(X+6,2)}
    s_cbranch_scc1 L_top ;!nd
    s_branch L_corr
    ''')
    a(f'''
    L_yself:
    buffer_load_dwordx4 {v(t,4)}, {v(vLld)}, {WS}, {s(sLld)} offen sc1
    buffer_load_dwordx4 {v(t+4,4)}, {v(vLldM)}, {WS}, {s(sLld)} offen sc1
    s_waitcnt vmcnt(0)
    ''')
    phchk(range(t,t+8), t+8)
    poll_branch('L_yself', cfg.slp_l, mask=True)
    a(f'''
    s_bitcmp1_b32 {s(sW)}, 0
    s_cbranch_scc1 L_yself4
    ''')
    for k in range(4): a(f'v_pk_add_f16 {v(t+k)}, {v(t+k)}, {v(t+7-k)} neg_hi:[0,1]')
    a(f'ds_write_b128 {v(vYIW)}, {v(t,4)}\ns_branch L_yjoin\nL_yself4:')
    for k in range(4): a(f'v_pk_add_f16 {v(t+k)}, {v(t+k)}, {v(t+7-k)} op_sel:[1,1] op_sel_hi:[0,0] neg_hi:[1,0]')
    a(f'ds_write_b128 {v(vYIW)}, {v(t,4)}\ns_branch L_yjoin')
    H=LNP
    sIdx=sT+11
    KA=BC+6; EK=BC+8; vYP=BC+9; SEL=BC+10; vDW,vDR=BC+12,BC+13
    YR=t+8; YL=t+12; YD=t+20
    gl=f'buffer_load_dwordx4 {v(C0,4)}, {v(vGld)}, {WS}, {s(sG0)} offen sc1\nbuffer_load_dwordx4 {v(C1,4)}, {v(vGld)}, {WS}, {s(sG4)} offen sc1'
    def hdrpoll(lbl, slp, issued=False, after=''):
        if not issued: a(f"""
        v_and_b32 {v(BC)}, 7, {v(vLane)}
        v_lshlrev_b32 {v(BC)}, 12, {v(BC)}
        """)
        a(f"""
        s_mov_b64 exec, 0xff
        {f's_waitcnt vmcnt({0 if cfg.gre else 1})' if issued else ''}
        {f's_branch {lbl}_c' if issued else ''}
        {lbl}:
        buffer_load_dwordx4 {v(H,4)}, {v(BC)}, {WS}, {s(sT+10)} offen offset:3200 sc1
        s_waitcnt vmcnt(0)
        {lbl}_c:
        """)
        maxchk(range(H,H+4), t+17)
        poll_branch(lbl, slp, skip=True)
        a('s_mov_b64 exec, -1')
        if after: a(after); stamp()
        a(f"""
        v_max_u32_dpp {v(H+3)}, {v(H)}, {v(H)} row_half_mirror {DPP}
        v_max_u32_dpp {v(H+3)}, {v(H+3)}, {v(H+3)} quad_perm:[1,0,3,2] {DPP}
        v_max_u32_dpp {v(H+3)}, {v(H+3)}, {v(H+3)} quad_perm:[2,3,0,1] {DPP}
        v_readfirstlane_b32 {s(sIdx)}, {v(H+3)}
        """)
    def owner():
        a(f"""
        s_sub_u32 {s(sT)}, 2047, {s(sIdx)}
        s_add_u32 {s(sT+1)}, {s(sT)}, 256
        v_cmp_eq_u32 vcc, {s(sT)}, {v(vInv)}
        v_cmp_eq_u32 {s(sT+2,2)}, {s(sT+1)}, {v(vInv)}
        v_cndmask_b32 {v(BC)}, 0, 1.0, vcc
        v_cndmask_b32 {v(BC+1)}, 0, 1.0, {s(sT+2,2)}
        """)
    gst=f's_waitcnt lgkmcnt(0)\nbuffer_store_dwordx4 {v(t+4,4)}, {v(vGst)}, {WS}, {s(sG0)} offen sc1'
    a(f'L_hdr:')
    if not cfg.gre: a(gst); stamp()
    hdrpoll('L_hdrp', 2, True, gst if cfg.gre else '')
    a(f"""
    v_and_b32 {v(vYP)}, 0x3ff, {v(vXoff)}
    v_lshlrev_b32 {v(t+16)}, 1, {v(vYP)}
    s_andn2_b32 {s(sIdx)}, {s(sM7FF)}, {s(sIdx)}
    s_and_b32 {s(sT)}, {s(sIdx)}, 7
    s_lshl_b32 {s(sT+1)}, {s(sT)}, 12
    s_add_u32 {s(sT+10)}, {s(sT+10)}, {s(sT+1)}
    buffer_load_dwordx4 {v(BC+2,4)}, {v(t+16)}, {WS}, {s(sT+10)} offen offset:1024 sc1
    v_readlane_b32 {s(sT+13)}, {v(H+1)}, {s(sT)}
    v_readlane_b32 {s(sT+14)}, {v(H+2)}, {s(sT)}
    v_mul_u32_u24 {v(t+17)}, {s(sIdx)}, {v(AD)}
    v_and_b32 {v(t+17)}, 0x7ff, {v(t+17)}
    v_cvt_f32_u32 {v(t+17)}, {v(t+17)}
    v_mul_f32 {v(t+17)}, {fbits(1/2048)}, {v(t+17)}
    v_cos_f32 {v(t+18)}, {v(t+17)}
    v_sin_f32 {v(t+19)}, {v(t+17)}
    v_and_b32 {v(t+17)}, 0x22, {v(vLane)}
    v_cvt_pk_f16_f32 {v(t+18)}, {v(t+18)}, {v(t+19)}
    v_cmp_eq_u32 vcc, 0, {v(t+17)}
    v_mov_b32 {v(KA)}, {s(sT+14)}
    v_mul_f32 {v(KA)}, {s(sC16)}, {v(KA)}
    v_cndmask_b32 {v(AD)}, 0, {v(t+18)}, vcc
    v_cmp_eq_u32 vcc, 2, {v(t+17)}
    v_mul_f32 {v(EK)}, {v(KA)}, {v(KA)}
    v_mul_f32 {v(EK)}, {s(sEps)}, {v(EK)}
    v_cndmask_b32 {v(AD+1)}, 0, {v(t+18)}, vcc
    """)
    owner()
    a(f"""
    v_lshlrev_b32 {v(t+17)}, 4, {v(vLane)}
    v_mov_b32 {v(t+18)}, 0x3f80
    v_and_b32 {v(t+17)}, 16, {v(t+17)}
    v_lshlrev_b32 {v(t+18)}, {v(t+17)}, {v(t+18)}
    v_and_b32 {v(t+17)}, 2, {v(vLane)}
    v_cmp_eq_u32 vcc, 0, {v(t+17)}
    v_lshl_add_u32 {v(vYP)}, {v(vQ)}, 10, {v(vYP)}
    s_lshl_b32 {s(sT+3)}, {s(sW)}, 8
    v_cndmask_b32 {v(SEL)}, 0, {v(t+18)}, vcc
    v_cndmask_b32 {v(SEL+1)}, {v(t+18)}, 0, vcc
    s_add_u32 {s(sT+3)}, {s(sT+3)}, {L_DH}
    v_lshl_add_u32 {v(vDR)}, {v(vN)}, 4, {s(sT+3)}
    v_and_b32 {v(t+17)}, 1, {v(vQ)}
    v_lshl_add_u32 {v(vDR)}, {v(t+17)}, 11, {v(vDR)}
    v_cmp_eq_u32 vcc, 0, {v(vQ)}
    v_add_u32 {v(vDW)}, {L_DH}, {v(vLst)}
    s_mov_b32 {s(sYo)}, {YP}
    s_lshl_b32 {s(sYh)}, {s(sX)}, 7
    s_add_u32 {s(sYh)}, {s(sYh)}, {YHINT}
    s_lshl_b32 {s(sSg)}, {s(sW)}, 30
    s_and_b32 {s(sSg)}, {s(sSg)}, {s(sTop)}
    s_xor_b32 {s(sSg)}, {s(sSg)}, {s(sDsc)}
    s_mov_b32 {s(sNx)}, 2
    v_cndmask_b32 {v(KA+1)}, 0, {v(KA)}, vcc
    s_waitcnt vmcnt(0)
    {gl if not cfg.hold else ''}
    L_basew:
    """)
    maxchk(range(BC+2,BC+6), t+17)
    a('s_cbranch_vccnz L_base_r ;!nd')
    for k in range(4): a(f'v_subrev_f32 {v(BC+2+k)}, {s(sT+13)}, {v(BC+2+k)}')
    for k in range(4): a(f'v_mul_f32 {v(BC+2+k)}, {v(KA)}, {v(BC+2+k)}')
    a(f"""
    s_branch {'L_ywait' if cfg.hold else 'L_gw'}
    L_corr:
    s_mov_b32 {s(sIt)}, 2
    s_mov_b32 {s(sNx)}, 0
    {'s_branch L_yc' if cfg.hold else ''}
    L_ywait:
    s_add_u32 {s(sT+2)}, {s(sYo)}, 4096
    s_cmp_lg_u32 {s(sW)}, 0
    s_cbranch_scc1 L_hintb
    s_movk_i32 {s(sTry)}, 500
    v_lshrrev_b32 {v(t)}, 1, {v(vL8)}
    """)
    if cfg.own: a(f"""
    s_cmp_eq_u32 {s(sIt)}, 3
    s_cbranch_scc1 L_hint
    s_lshl_b32 {s(sT)}, {s(sJ)}, 2
    v_mov_b32 {v(t)}, {s(sT)}
    """)
    a(f"""
    L_hint:
    buffer_load_dword {v(t+1)}, {v(t)}, {WS}, {s(sYh)} offen sc1
    s_waitcnt vmcnt(0)
    v_cmp_ne_u32 vcc, {s(sTag)}, {v(t+1)}
    """)
    poll_branch('L_hint', 1, giveup='L_hintb')
    if cfg.tim_y: a(f's_sleep {cfg.tim_y}')
    a(f"""
    L_hintb:
    s_barrier
    """)
    if cfg.hold: a(f"""
    s_cmp_eq_u32 {s(sIt)}, 3
    s_cbranch_scc1 L_yv3
    {gl}
    {f's_sleep {cfg.tim_gy}' if cfg.tim_gy else ''}
    buffer_load_dwordx2 {v(YD,2)}, {v(vYP)}, {WS}, {s(sYo)} offen sc1
    buffer_load_dwordx2 {v(YD+2,2)}, {v(vYP)}, {WS}, {s(sT+2)} offen sc1
    s_cmp_lg_u32 {s(sMir)}, 0
    s_waitcnt vmcnt(2)
    s_branch L_gw2
    L_yv3:
    {f's_sleep {cfg.tim_y3}' if cfg.tim_y3 else ''}
    s_branch L_yv
    """)
    a(f"""
    L_yv:
    buffer_load_dwordx2 {v(YD,2)}, {v(vYP)}, {WS}, {s(sYo)} offen sc1
    buffer_load_dwordx2 {v(YD+2,2)}, {v(vYP)}, {WS}, {s(sT+2)} offen sc1
    L_yc:
    s_waitcnt vmcnt(0)
    v_mfma_f32_16x16x16_bf16 {v(YR,4)}, {v(SEL,2)}, {v(YD,2)}, 0
    v_mfma_f32_16x16x16_bf16 {v(YR,4)}, {v(SEL,2)}, {v(YD+2,2)}, {v(YR,4)}
    """)
    maxchk(range(YD,YD+4), t+17)
    poll_branch('L_yv', 1, mask=True)
    stamp()
    own=[f'v_pk_fma_f32 {v(X,2)}, {v(BC,2)}, {v(YR,2)}, {v(X,2)} op_sel:[0,0,0] op_sel_hi:[1,0,1]',
         f'v_pk_fma_f32 {v(X+2,2)}, {v(BC,2)}, {v(YR,2)}, {v(X+2,2)} op_sel:[0,1,0] op_sel_hi:[1,1,1]',
         f'v_pk_fma_f32 {v(X+4,2)}, {v(BC,2)}, {v(YR+2,2)}, {v(X+4,2)} op_sel:[0,0,0] op_sel_hi:[1,0,1]',
         f'v_pk_fma_f32 {v(X+6,2)}, {v(BC,2)}, {v(YR+2,2)}, {v(X+6,2)} op_sel:[0,1,0] op_sel_hi:[1,1,1]']
    s1,s2=t+20,t+21
    a(f"""
    s_cmp_eq_u32 {s(sIt)}, 3
    s_cbranch_scc1 L_fin3
    L_pass:
    v_pk_fma_f32 {v(YL,2)}, {v(YR,2)}, {v(KA,2)}, {v(BC+2,2)} op_sel:[0,1,0]
    v_pk_fma_f32 {v(YL+2,2)}, {v(YR+2,2)}, {v(KA,2)}, {v(BC+4,2)} op_sel:[0,1,0]
    v_cvt_pk_f16_f32 {v(YL)}, {v(YL)}, {v(YL+1)}
    v_cvt_pk_f16_f32 {v(YL+1)}, {v(YL+2)}, {v(YL+3)}
    ds_write_b64 {v(vUW)}, {v(YL,2)}
    {own[0]}
    {own[1]}
    {own[2]}
    {own[3]}
    s_cmp_gt_u32 {s(sW)}, 3
    s_waitcnt lgkmcnt(0)
    s_barrier
    s_cbranch_scc1 L_dhb ;!nd
    ds_read_b64_tr_b16 {v(t+8,2)}, {v(vUR)}
    ds_read_b64_tr_b16 {v(t+10,2)}, {v(vUR)} offset:512
    v_mov_b32 {v(t+22)}, 0x3c003c00
    s_waitcnt lgkmcnt(0)
    ;@F
    """)
    XR=t+8; U_=t+12; V_=YC; PP=LNP
    Ur,Ui=U_,U_+4; Vr,Vi=V_,V_+4
    a(f"""
    v_mfma_f32_16x16x32_f16 {v(Ur,4)}, {v(XR,4)}, {v(B1C,4)}, 0
    v_mfma_f32_16x16x32_f16 {v(Ui,4)}, {v(XR,4)}, {v(B1N,4)}, 0
    v_dot2_f32_f16 {v(s1)}, {v(XR)}, {v(t+22)}, 0
    v_dot2_f32_f16 {v(s2)}, {v(XR)}, {v(XR)}, 0
    v_dot2_f32_f16 {v(s1)}, {v(XR+1)}, {v(t+22)}, {v(s1)}
    v_dot2_f32_f16 {v(s2)}, {v(XR+1)}, {v(XR+1)}, {v(s2)}
    v_dot2_f32_f16 {v(s1)}, {v(XR+2)}, {v(t+22)}, {v(s1)}
    v_dot2_f32_f16 {v(s2)}, {v(XR+2)}, {v(XR+2)}, {v(s2)}
    v_dot2_f32_f16 {v(s1)}, {v(XR+3)}, {v(t+22)}, {v(s1)}
    v_dot2_f32_f16 {v(s2)}, {v(XR+3)}, {v(XR+3)}, {v(s2)}
    v_pk_mul_f32 {v(Vi,2)}, {v(Ur,2)}, {v(TWS,2)}
    v_pk_mul_f32 {v(Vi+2,2)}, {v(Ur+2,2)}, {v(TWS+2,2)}
    v_pk_mul_f32 {v(Vr,2)}, {v(Ui,2)}, {v(TWS,2)}
    v_permlane32_swap_b32 {v(s1)}, {v(s2)}
    v_pk_mul_f32 {v(Vr+2,2)}, {v(Ui+2,2)}, {v(TWS+2,2)}
    v_add_f32 {v(s1)}, {v(s1)}, {v(s2)}
    v_pk_fma_f32 {v(Vr,2)}, {v(Ur,2)}, {v(TWC,2)}, {v(Vr,2)}
    v_pk_fma_f32 {v(Vi,2)}, {v(Ui,2)}, {v(TWC,2)}, {v(Vi,2)} neg_lo:[0,0,1] neg_hi:[0,0,1]
    v_add_f32_dpp {v(s1)}, {v(s1)}, {v(s1)} row_ror:8 {DPP}
    v_pk_fma_f32 {v(Vr+2,2)}, {v(Ur+2,2)}, {v(TWC+2,2)}, {v(Vr+2,2)}
    v_pk_fma_f32 {v(Vi+2,2)}, {v(Ui+2,2)}, {v(TWC+2,2)}, {v(Vi+2,2)} neg_lo:[0,0,1] neg_hi:[0,0,1]
    v_add_f32_dpp {v(s1)}, {v(s1)}, {v(s1)} row_ror:4 {DPP}
    v_cvt_pk_f16_f32 {v(PP)}, {v(Vr)}, {v(Vi)}
    v_cvt_pk_f16_f32 {v(PP+1)}, {v(Vr+1)}, {v(Vi+1)}
    v_add_f32_dpp {v(s1)}, {v(s1)}, {v(s1)} row_ror:2 {DPP}
    v_cvt_pk_f16_f32 {v(PP+2)}, {v(Vr+2)}, {v(Vi+2)}
    v_cvt_pk_f16_f32 {v(PP+3)}, {v(Vr+3)}, {v(Vi+3)}
    v_add_f32_dpp {v(s1)}, {v(s1)}, {v(s1)} row_ror:1 {DPP}
    v_mfma_f32_16x16x32_f16 {v(Ur,4)}, {v(A2R,4)}, {v(PP,4)}, 0
    v_mfma_f32_16x16x32_f16 {v(Ui,4)}, {v(A2I,4)}, {v(PP,4)}, 0
    v_add_f32_dpp {v(s1)}, {v(s1)}, {v(s1)} row_bcast:15 row_mask:0xa bank_mask:0xf
    v_mul_f32 {v(s1)}, {s(sK512)}, {v(s1)}
    v_readlane_b32 {s(sT+2)}, {v(s1)}, 63
    v_readlane_b32 {s(sT+1)}, {v(s1)}, 31
    v_add_f32 {v(s2)}, {s(sT+2)}, {v(EK)}
    v_mov_b32 {v(s1)}, {s(sT+1)}
    v_fma_f32 {v(s1)}, -{v(s1)}, {v(s1)}, {v(s2)}
    v_rsq_f32_e64 {v(s1)}, |{v(s1)}|
    v_mul_f32 {v(s1)}, {s(sSg)}, {v(s1)}
    """)
    for k in range(4): a(f'v_pk_mul_f32 {v(U_+2*k,2)}, {v(U_+2*k,2)}, {v(s1,2)} op_sel_hi:[1,0]')
    for r in range(4): a(f'v_cvt_pk_f16_f32 {v(PP+r)}, {v(Ur+r)}, {v(Ui+r)}')
    a(f"""
    ds_write2_b32 {v(vDW)}, {v(PP)}, {v(PP+1)} offset0:0 offset1:32
    ds_write2_b32 {v(vDW)}, {v(PP+2)}, {v(PP+3)} offset0:64 offset1:96
    s_waitcnt lgkmcnt(0)
    L_dhb:
    s_barrier
    ds_read_b128 {v(t+16,4)}, {v(vDR)}
    s_waitcnt lgkmcnt(0)
    v_mfma_f32_16x16x16_f16 {v(E0,4)}, {v(AD,2)}, {v(t+16,2)}, 0
    v_mfma_f32_16x16x16_f16 {v(E1,4)}, {v(AD,2)}, {v(t+18,2)}, 0
    s_nop 4
    s_branch L_apply ;!nd
    """)
    a('L_fin:')
    if cfg.odel: a(f's_sleep {cfg.odel}')
    for rho in (0,1):
        for k in (0,1):
            a(f'v_cvt_pk_bf16_f32 {v(t+2*rho+k)}, {v(X+4*k+rho)}, {v(X+4*k+2+rho)}')
    a(f"""
    v_lshlrev_b32 {v(t+16)}, 1, {v(vQ)}
    v_mov_b32 {v(t+19)}, 0x200000
    s_sub_u32 {s(sT)}, {s(sT+9)}, 1
    v_cmp_eq_u32 vcc, {s(sT+9)}, {v(t+16)}
    v_cmp_eq_u32 {s(sT+2,2)}, {s(sT)}, {v(t+16)}
    v_cndmask_b32 {v(t+17)}, {v(vXoff)}, {v(t+19)}, vcc
    v_cndmask_b32 {v(t+18)}, {v(vXoff)}, {v(t+19)}, {s(sT+2,2)}
    buffer_store_dwordx2 {v(t,2)}, {v(vXoff if cfg.twice else t+17)}, {OS}, {s(sRow0)} offen {['','sc1','nt'][cfg.osc]}
    buffer_store_dwordx2 {v(t+2,2)}, {v(vXoff if cfg.twice else t+18)}, {OS}, {s(sRow1)} offen {['','sc1','nt'][cfg.osc]}
    """)
    if cfg.wb==3: a(f"""
    s_xor_b32 {s(sT+4)}, {s(sJ)}, 9
    s_or_b32 {s(sT+4)}, {s(sT+4)}, {s(sW)}
    s_cbranch_scc1 L_nwb3
    {f's_sleep {cfg.wbd}' if cfg.wbd else ''}
    buffer_wbl2 sc1
    L_nwb3:
    """)
    a(f"""
    v_cndmask_b32 {v(t+24)}, {v(t+19)}, {v(vXoff)}, vcc
    v_cndmask_b32 {v(t+25)}, {v(t+19)}, {v(vXoff)}, {s(sT+2,2)}
    s_or_b32 {s(sT)}, s2, {s(sW)}
    s_cbranch_scc1 L_fin2
    v_mov_b32 {v(t+20)}, {s(sTag)}
    buffer_store_dword {v(t+20)}, off, {WS}, 0 sc1
    L_fin2:
    s_cmp_eq_u32 {s(sT+9)}, 64
    s_cbranch_scc1 L_fin5
    s_mov_b32 {s(sT+10)}, {SLOT+SLOTR}
    s_sleep {cfg.tim_fh}
    """)
    hdrpoll('L_fhdr', 4)
    a(f"""
    s_cmp_lg_u32 {s(sIdx)}, {s(sKey)}
    s_cbranch_scc1 {'L_fin5' if cfg.twice else 'L_fin4'}
    s_andn2_b32 {s(sIdx)}, {s(sM7FF)}, {s(sIdx)}
    s_mov_b32 {s(sIt)}, 3
    s_add_u32 {s(sYo)}, {s(sYo)}, {YPR}
    s_add_u32 {s(sYh)}, {s(sYh)}, {YHR}
    """)
    owner()
    a('s_branch L_ywait\nL_fin3:')
    a('\n'.join(own))
    for rho in (0,1):
        for k in (0,1):
            a(f'v_cvt_pk_bf16_f32 {v(t+2*rho+k)}, {v(X+4*k+rho)}, {v(X+4*k+2+rho)}')
    a(f"""
    L_fin4:
    buffer_store_dwordx2 {v(t,2)}, {v(t+24)}, {OS}, {s(sRow0)} offen {['sc1','','nt'][cfg.lastp]}
    buffer_store_dwordx2 {v(t+2,2)}, {v(t+25)}, {OS}, {s(sRow1)} offen {['sc1','','nt'][cfg.lastp]}
    L_fin5:
    """)
    stamp(); dump_stamps()
    a('s_endpgm')
    a(f"""
    L_base_r:
    s_sub_u32 {s(sCnt)}, {s(sCnt)}, 1
    s_cbranch_scc1 L_end
    s_sleep 2
    buffer_load_dwordx4 {v(BC+2,4)}, {v(t+16)}, {WS}, {s(sT+10)} offen offset:1024 sc1
    s_waitcnt vmcnt(0)
    s_branch L_basew
    """)
    def pub2():
        a(f'''
        v_mov_b32 {v(t+4)}, {s(sTag)}
        v_mov_b32 {v(t+5)}, {s(sXcc)}
        s_add_u32 {s(sT)}, {s(sTabSt)}, {TAB2-TABL}
        buffer_store_dwordx2 {v(t+4,2)}, off, {WS}, {s(sT)} sc1
        ''')
    a(f'''
    L_tabst_slow:
    buffer_store_dwordx2 {v(K,2)}, off, {WS}, {s(sTabSt)} sc1
    s_branch L_tabst_back
    L_tg0_r:
    s_sub_u32 {s(sCnt)}, {s(sCnt)}, 1
    s_cbranch_scc1 L_end
    s_sleep 2
    ''')
    a(f's_mov_b64 exec, 0xff\nbuffer_load_dword {v(t+20)}, {v(t+24)}, {WS}, {s(sT+10)} offen sc1\ns_mov_b64 exec, -1')
    a('s_branch L_tg0w\nL_tab2:')
    pub2()
    a(f'''
    s_add_u32 {s(sT+1)}, {s(sTabLd)}, {TAB2-TABL}
    L_tab2p:
    buffer_load_dwordx2 {v(TB,2)}, {v(vL8)}, {WS}, {s(sTabLd)} offen sc1
    buffer_load_dwordx2 {v(t+6,2)}, {v(vL8)}, {WS}, {s(sT+1)} offen sc1
    s_waitcnt vmcnt(0)
    v_cmp_eq_u32 vcc, {s(sTag)}, {v(TB)}
    v_cndmask_b32 {v(TB)}, {v(t+6)}, {v(TB)}, vcc
    v_cndmask_b32 {v(TB+1)}, {v(t+7)}, {v(TB+1)}, vcc
    v_cmp_ne_u32 vcc, {s(sTag)}, {v(TB)}
    ''')
    poll_branch('L_tab2p', 4)
    a(f'''
    s_branch L_tabok
    L_slow:
    s_cmp_lg_u32 {s(sIt)}, 0
    s_cbranch_scc1 L_slow1
    ''')
    pub2()
    a('L_slow1:')
    lstores('sc1')
    a(f'''
    s_waitcnt vmcnt(0)
    s_barrier
    s_add_u32 {s(sT)}, {s(sTabSt)}, {SLOWF-TABL}
    s_add_u32 {s(sT+1)}, {s(sTabLd)}, {SLOWF-TABL}
    v_mov_b32 {v(t+4)}, {s(sTag)}
    s_cmp_lg_u32 {s(sW)}, 0
    s_cbranch_scc1 L_slowp
    buffer_store_dword {v(t+4)}, off, {WS}, {s(sT)} sc1
    L_slowp:
    buffer_load_dword {v(t+5)}, {v(vL8)}, {WS}, {s(sT+1)} offen sc1
    s_waitcnt vmcnt(0)
    v_cmp_ne_u32 vcc, {s(sTag)}, {v(t+5)}
    ''')
    poll_branch('L_slowp', 2)
    a('s_branch L_slowback')

def hint_store(vreg, soff, lbl):
    a(f'''
    s_mov_b64 exec, 1
    s_cmp_eq_u32 {s(sFast)}, 0
    s_cbranch_scc1 {lbl}_s
    buffer_store_dword {v(vreg)}, off, {WS}, {s(soff)}
    s_branch {lbl}_d
    {lbl}_s:
    buffer_store_dword {v(vreg)}, off, {WS}, {s(soff)} sc1
    {lbl}_d:
    s_mov_b64 exec, -1
    ''')

def ffn():
    WA=4; WD=20; t=40
    vXL=24; vXW=25; vXR=26; vPS=27; vPL=28; vHW=29; vHR=30; vDP=31; vTag=32; vSig=34; vFl=35
    sI=sJ; sRnd=sIt; sPo=sLst; sPs=sLld
    F_W=0; TS=4096+64; F_X=0x4400; F_KEY=0x4D00; F_H=0x4E00; F_D=0x5200; F_WD=0x5400
    a(f"""
    L_ffn:
    s_and_b32 {s(sI)}, {s(sJ)}, 31
    s_min_u32 {s(sT+2)}, {s(sI)}, 27
    s_and_b32 {s(sT)}, {s(sT+2)}, 3
    s_lshl_b32 {s(sT+8)}, {s(sT)}, 8              ; 256*ks
    s_mul_i32 {s(sT+9)}, {s(sT)}, {28*64}
    s_mul_i32 {s(sT)}, {s(sT)}, {128*3584}
    s_mul_i32 {s(sT+1)}, {s(sX)}, 448
    s_add_u32 {s(sT)}, {s(sT)}, {s(sT+1)}
    s_lshr_b32 {s(sT+2)}, {s(sT+2)}, 2
    s_lshl_b32 {s(sT+3)}, {s(sT+2)}, 6
    s_add_u32 {s(sT)}, {s(sT)}, {s(sT+3)}
    v_lshrrev_b32 {v(t+3)}, 2, v0
    v_mul_u32_u24 {v(t)}, 3584, {v(t+3)}
    v_and_b32 {v(t+4)}, 3, v0
    v_lshl_add_u32 {v(t)}, {v(t+4)}, 4, {v(t)}
    v_add_u32 {v(t)}, {s(sT)}, {v(t)}
    s_mul_i32 {s(sT)}, {s(sX)}, {224*1024}
    s_lshl_b32 {s(sT+1)}, {s(sI)}, 5
    s_add_u32 {s(sT)}, {s(sT)}, {s(sT+1)}
    v_lshrrev_b32 {v(t+1)}, 1, v0
    v_min_u32 {v(t+1)}, 223, {v(t+1)}
    v_lshlrev_b32 {v(t+1)}, 10, {v(t+1)}
    v_and_b32 {v(t+2)}, 1, v0
    v_lshl_add_u32 {v(t+1)}, {v(t+2)}, 4, {v(t+1)}
    v_add_u32 {v(t+1)}, {s(sT)}, {v(t+1)}
    s_add_u32 {s(sT+10)}, {s(sTabLd)}, {FTAB-TABL}
    s_waitcnt lgkmcnt(0)
    {f'v_lshlrev_b32 {v(T+25)}, {cfg.tlb}, v0' if cfg.tlb else ''}
    {f'buffer_load_dword {v(T+21)}, {v(T+25)}, {WS}, 0 offen sc1' if cfg.tlb else ''}
    {f'buffer_load_dword {v(T+21)}, {v(T+25)}, {OS}, 0 offen sc1' if cfg.tlb else ''}
    {f's_sleep {cfg.fdelay}' if cfg.fdelay else ''}
    {f'global_load_dwordx4 {v(T+8,4)}, {v(t)}, s[18:19]' if cfg.wdpos!=2 and cfg.gul<2 else ''}
    v_mov_b32 {v(T+24)}, {v(t)}
    {f'global_load_dwordx4 {v(T+12,4)}, {v(t)}, s[20:21]' if cfg.wdpos!=2 and not cfg.gul else ''}
    {f'global_load_dwordx4 {v(T+16,4)}, {v(t+1)}, s[22:23]' if cfg.wdpos==0 else f'v_mov_b32 {v(T+23)}, {v(t+1)}'}
    {f'buffer_load_dword {v(T+20)}, off, {WS}, 0 sc1' if not cfg.hot else f's_load_dword {s(sTag)}, s[8:9], 0'}
    s_cmp_eq_u32 {s(sW)}, 0
    s_cselect_b32 {s(sT)}, {s(sT+10)}, s10
    buffer_load_dword {v(T+21)}, {v(vL8)}, {WS}, {s(sT if cfg.hot else sT+10)} offen sc1
    v_mul_u32_u24 {v(T+22)}, {TS}, {v(t+4)}
    v_lshl_add_u32 {v(T+22)}, {v(t+3)}, 5, {v(T+22)}
    v_lshlrev_b32 {v(t+5)}, 4, {v(vN)}
    s_and_b32 {s(sT)}, {s(sW)}, 1
    s_lshl_b32 {s(sT)}, {s(sT)}, 2
    v_add_u32 {v(t+6)}, {s(sT)}, {v(vQ)}
    v_lshl_add_u32 {v(vXL)}, {v(t+6)}, 12, {v(t+5)}
    v_add_u32 {v(vXL)}, {s(sT+8)}, {v(vXL)}
    v_mul_u32_u24 {v(vXW)}, 272, {v(t+6)}
    v_add_u32 {v(vXW)}, {v(vXW)}, {v(t+5)}
    v_and_b32 {v(t+6)}, 7, {v(vLane)}
    v_mul_u32_u24 {v(vXR)}, 272, {v(t+6)}
    v_lshl_add_u32 {v(vXR)}, {v(vQ)}, 4, {v(vXR)}
    s_cmp_lg_u32 {s(sW)}, 6
    s_cbranch_scc1 L_fa1
    v_lshlrev_b32 {v(vXL)}, 12, {v(t+6)}
    L_fa1:
    s_lshl2_add_u32 {s(sT)}, {s(sT+2)}, {s(sW)}
    s_lshl_b32 {s(sT)}, {s(sT)}, 6
    s_add_u32 {s(sT)}, {s(sT)}, {s(sT+9)}
    v_lshl_add_u32 {v(vPS)}, {v(vN)}, 2, {s(sT)}
    s_lshl_b32 {s(sT)}, {s(sW)}, 8
    v_mul_u32_u24 {v(vPL)}, 1792, {v(vQ)}
    v_add3_u32 {v(vPL)}, {v(vPL)}, {v(t+5)}, {s(sT)}
    s_lshl_b32 {s(sT)}, {s(sW)}, 7
    s_add_u32 {s(sT)}, {s(sT)}, {F_H}
    v_lshl_add_u32 {v(vHR)}, {v(vQ)}, 4, {s(sT)}
    v_and_b32 {v(t+6)}, 12, {v(vN)}
    v_lshl_add_u32 {v(vHW)}, {v(t+6)}, 2, {s(sT)}
    v_and_b32 {v(t+6)}, 1, {v(vN)}
    v_lshl_add_u32 {v(vHW)}, {v(t+6)}, 3, {v(vHW)}
    v_and_b32 {v(t+6)}, 2, {v(vN)}
    v_lshl_add_u32 {v(vHW)}, {v(t+6)}, 5, {v(vHW)}
    v_and_b32 {v(t+6)}, 2, {v(vQ)}
    v_add_u32 {v(vHW)}, {v(vHW)}, {v(t+6)}
    v_and_b32 {v(t+6)}, 1, {v(vQ)}
    v_lshl_add_u32 {v(vHW)}, {v(t+6)}, 2, {v(vHW)}
    s_lshl_b32 {s(sT)}, {s(sW)}, 2
    s_add_u32 {s(sT)}, {s(sT)}, {F_D}
    v_lshl_add_u32 {v(vDP)}, {v(vN)}, 5, {s(sT)}
    v_mov_b32 {v(vFl)}, {F_KEY}
    v_mov_b32 {v(vTag)}, 0
    s_mov_b32 {s(sFast)}, 0
    s_mov_b32 {s(sRnd)}, 2
    s_mov_b32 {s(sPo)}, {WSSZ}
    s_mov_b32 {s(sYo)}, {WSSZ}
    s_mov_b32 {s(sYh)}, {WSSZ}
    s_waitcnt lgkmcnt(0)
    {'s_branch L_fb2' if cfg.dry else ''}
    L_finit:
    s_mov_b32 {s(sRnd)}, 0
    s_mov_b32 {s(sSlot)}, {SLOT}
    s_lshl_b32 {s(sPo)}, {s(sX)}, 13
    s_add_u32 {s(sPo)}, {s(sPo)}, {PART}
    s_lshl_b32 {s(sYo)}, {s(sX)}, 10
    s_lshl_b32 {s(sT)}, {s(sI)}, 5
    s_add_u32 {s(sYo)}, {s(sYo)}, {s(sT)}
    s_add_u32 {s(sYo)}, {s(sYo)}, {YP}
    s_lshl_b32 {s(sYh)}, {s(sX)}, 7
    s_lshl2_add_u32 {s(sYh)}, {s(sI)}, {s(sYh)}
    s_add_u32 {s(sYh)}, {s(sYh)}, {YHINT}
    s_lshl_b32 {s(sT)}, {s(sW)}, 10
    v_lshl_add_u32 {v(t)}, {v(vLane)}, 4, {s(sT)}
    v_lshl_add_u32 {v(t+1)}, {v(vQ)}, 8, {s(sT)}
    v_lshl_add_u32 {v(t+1)}, {v(vN)}, 3, {v(t+1)}
    s_and_b32 {s(sT)}, {s(sW)}, 3
    s_mul_i32 {s(sT)}, {s(sT)}, {TS}
    v_lshl_add_u32 {v(t+2)}, {v(vQ)}, 8, {s(sT)}
    v_lshl_add_u32 {v(t+2)}, {v(vN)}, 3, {v(t+2)}
    v_mov_b32 {v(vTag+1)}, {s(sXcc)}
    s_lshl3_add_u32 {s(sT+1)}, {s(sI)}, {s(sT+10)}
    s_waitcnt vmcnt(0)
    {f'v_mov_b32 {v(T+20)}, {s(sTag)}' if cfg.hot else ''}
    v_add_u32 {v(vTag)}, 1, {v(T+20)}
    ds_write_b128 {v(T+22)}, {v(T+8,4)}
    ds_write_b128 {v(T+22)}, {v(T+12,4)} offset:16
    {f'ds_write_b128 {v(t)}, {v(T+16,4)} offset:{F_WD}' if cfg.wdpos==0 else ''}
    v_readfirstlane_b32 {s(sTag)}, {v(vTag)}
    s_cmp_lg_u32 {s(sW)}, 0
    s_cbranch_scc1 L_fi1
    s_mov_b64 exec, 1
    buffer_store_dwordx2 {v(vTag,2)}, off, {WS}, {s(sT+1)}
    s_mov_b64 exec, -1
    L_fi1:
    s_waitcnt lgkmcnt(0)
    s_barrier
    """)
    if cfg.stamps: a(f's_mov_b32 {s(sStampI)}, 0')
    stamp()
    for k in range(4):
        a(f'ds_read_b64_tr_b16 {v(WA+4*k,2)}, {v(t+2)} offset:{1024*k}')
        a(f'ds_read_b64_tr_b16 {v(WA+4*k+2,2)}, {v(t+2)} offset:{1024*k+128}')
    a(f"""
    {f'ds_read_b64_tr_b16 {v(WD,2)}, {v(t+1)} offset:{F_WD}' if cfg.wdpos==0 else ''}
    {f'ds_read_b64_tr_b16 {v(WD+2,2)}, {v(t+1)} offset:{F_WD+128}' if cfg.wdpos==0 else ''}
    s_cmp_lg_u32 {s(sW)}, 0
    s_cbranch_scc1 L_fi3
    s_movk_i32 {s(sTry)}, 80
    L_fl:
    buffer_load_dwordx2 {v(t+4,2)}, {v(vL8)}, {WS}, {s(sTabLd)} offen sc1
    buffer_load_dwordx2 {v(t+6,2)}, {v(vL8)}, {WS}, {s(sT+10)} offen sc1
    s_waitcnt vmcnt(0)
    v_cmp_ne_u32 vcc, {s(sTag)}, {v(t+4)}
    v_cmp_ne_u32 {s(sT,2)}, {s(sTag)}, {v(t+6)}
    s_or_b64 vcc, vcc, {s(sT,2)}
    """)
    poll_branch('L_fl', 4, giveup='L_fslowtab', skip=True)
    a(f"""
    v_cmp_ne_u32 vcc, {s(sXcc)}, {v(t+5)}
    v_cmp_ne_u32 {s(sT,2)}, {s(sXcc)}, {v(t+7)}
    s_or_b64 vcc, vcc, {s(sT,2)}
    s_cbranch_vccnz L_fslowtab
    s_mov_b32 {s(sFast)}, 1
    {f's_sleep {cfg.tdel}' if cfg.tdel else ''}
    v_and_b32 {v(t+4)}, 1, {v(vQ)}
    v_lshlrev_b32 {v(t+4)}, 16, {v(t+4)}
    v_lshl_add_u32 {v(t+4)}, {v(vN)}, 4, {v(t+4)}
    s_lshl_b32 {s(sT)}, {s(sI)}, 8
    s_add_u32 {s(sT)}, {s(sT)}, {s(sPo)}
    buffer_load_dword {v(t+5)}, {v(t+4)}, {WS}, {s(sT)} offen sc1
    L_fi2:
    v_mov_b32 {v(t+6)}, {s(sFast)}
    ds_write_b32 {v(vFl)}, {v(t+6)} offset:4
    L_fi3:
    s_waitcnt vmcnt(0) lgkmcnt(0)
    s_barrier
    ds_read_b32 {v(t+6)}, {v(vFl)} offset:4
    s_waitcnt lgkmcnt(0)
    v_readfirstlane_b32 {s(sFast)}, {v(t+6)}
    """)
    if cfg.gul:
        a(f"""
        {f's_sleep {cfg.gdelay}' if cfg.gdelay else ''}
        {f'global_load_dwordx4 {v(T+8,4)}, {v(T+24)}, s[18:19]' if cfg.gul==2 else ''}
        global_load_dwordx4 {v(T+12,4)}, {v(T+24)}, s[20:21]
        s_waitcnt vmcnt(0)
        ds_write_b128 {v(T+22)}, {v(T+8,4)}
        ds_write_b128 {v(T+22)}, {v(T+12,4)} offset:16
        s_waitcnt lgkmcnt(0)
        s_barrier
        """)
        for k in range(4):
            a(f'ds_read_b64_tr_b16 {v(WA+4*k,2)}, {v(t+2)} offset:{1024*k}')
            a(f'ds_read_b64_tr_b16 {v(WA+4*k+2,2)}, {v(t+2)} offset:{1024*k+128}')
        a('s_waitcnt lgkmcnt(0)')
    if cfg.wdpos==3: a(f'v_mov_b32 {v(T+8)}, {v(t)}\nv_mov_b32 {v(T+9)}, {v(t+1)}')
    if cfg.wdpos==2:
        a(f"""
        {f's_sleep {cfg.gdelay}' if cfg.gdelay else ''}
        global_load_dwordx4 {v(T+8,4)}, {v(T+24)}, s[18:19]
        global_load_dwordx4 {v(T+12,4)}, {v(T+24)}, s[20:21]
        global_load_dwordx4 {v(T+16,4)}, {v(T+23)}, s[22:23]
        s_waitcnt vmcnt(0)
        ds_write_b128 {v(T+22)}, {v(T+8,4)}
        ds_write_b128 {v(T+22)}, {v(T+12,4)} offset:16
        ds_write_b128 {v(t)}, {v(T+16,4)} offset:{F_WD}
        s_waitcnt lgkmcnt(0)
        s_barrier
        """)
        for k in range(4):
            a(f'ds_read_b64_tr_b16 {v(WA+4*k,2)}, {v(t+2)} offset:{1024*k}')
            a(f'ds_read_b64_tr_b16 {v(WA+4*k+2,2)}, {v(t+2)} offset:{1024*k+128}')
        a(f"""
        ds_read_b64_tr_b16 {v(WD,2)}, {v(t+1)} offset:{F_WD}
        ds_read_b64_tr_b16 {v(WD+2,2)}, {v(t+1)} offset:{F_WD+128}
        s_waitcnt lgkmcnt(0)
        """)
    if cfg.wdpos==1: a(f"""
    {f's_sleep {cfg.gdelay}' if cfg.gdelay else ''}
    global_load_dwordx4 {v(T+16,4)}, {v(T+23)}, s[22:23]
    s_waitcnt vmcnt(0)
    ds_write_b128 {v(t)}, {v(T+16,4)} offset:{F_WD}
    ds_read_b64_tr_b16 {v(WD,2)}, {v(t+1)} offset:{F_WD}
    ds_read_b64_tr_b16 {v(WD+2,2)}, {v(t+1)} offset:{F_WD+128}
    s_waitcnt lgkmcnt(0)
    """)
    a(f"""
    L_frnd:
    s_add_u32 {s(sTabLd)}, {s(sTabLd)}, {ARGR}
    s_cmp_lg_u32 {s(sW)}, 0
    s_cbranch_scc1 L_fb1
    s_cmp_eq_u32 {s(sFast)}, 0
    s_cbranch_scc1 L_fb1
    L_ftrig:
    buffer_load_dword {v(t)}, {v(vL8)}, {WS}, {s(sTabLd)} offen sc1
    s_waitcnt vmcnt(0)
    v_cmp_ne_u32 vcc, {s(sTag)}, {v(t)}
    """)
    poll_branch('L_ftrig', cfg.slp_f)
    stamp()
    a(f"""
    s_cmp_eq_u32 {s(sRnd)}, 0
    s_cbranch_scc1 L_ft0
    s_sleep {cfg.tim_a1}
    s_branch L_fb1
    L_ft0:
    s_sleep {cfg.tim_arg if cfg.wdpos!=3 else cfg.tim_wd}
    L_fb1:
    """)
    if cfg.wdpos==3: a(f"""
    s_cmp_lg_u32 {s(sRnd)}, 0
    s_cbranch_scc1 L_fb1b
    s_barrier
    global_load_dwordx4 {v(T+16,4)}, {v(T+23)}, s[22:23]
    s_sleep {cfg.tim_arg-cfg.tim_wd}
    L_fb1b:
    """)
    a(f"""
    s_sub_u32 {s(sT)}, {s(sW)}, 4
    s_cmp_lt_u32 {s(sT)}, 2
    s_barrier
    s_cbranch_scc1 L_fx
    s_cmp_lg_u32 {s(sW)}, 6
    s_cbranch_scc1 L_fb2
    s_mov_b64 exec, 0xff
    L_fhd:
    buffer_load_dword {v(t)}, {v(vXL)}, {WS}, {s(sSlot)} offen offset:3072 sc1
    s_waitcnt vmcnt(0)
    v_cmp_eq_u32 vcc, -1, {v(t)}
    """)
    poll_branch('L_fhd', 2, skip=True)
    a(f"""
    v_max_u32_dpp {v(t)}, {v(t)}, {v(t)} row_half_mirror {DPP}
    v_max_u32_dpp {v(t)}, {v(t)}, {v(t)} quad_perm:[1,0,3,2] {DPP}
    v_max_u32_dpp {v(t)}, {v(t)}, {v(t)} quad_perm:[2,3,0,1] {DPP}
    ds_write_b32 {v(vFl)}, {v(t)}
    s_mov_b64 exec, -1
    s_branch L_fb2
    L_fx:
    buffer_load_dwordx4 {v(t,4)}, {v(vXL)}, {WS}, {s(sSlot)} offen sc1
    s_waitcnt vmcnt(0)
    ds_write_b128 {v(vXW)}, {v(t,4)} offset:{F_X}
    """)
    maxchk(range(t,t+4), t+4)
    poll_branch('L_fx', 2, mask=True)
    Dd=t+16
    a(f"""
    L_fb2:
    """)
    if cfg.wdpos==3: a(f"""
    s_cmp_lg_u32 {s(sRnd)}, 0
    s_cbranch_scc1 L_fb2b
    s_waitcnt vmcnt(0)
    ds_write_b128 {v(T+8)}, {v(T+16,4)} offset:{F_WD}
    ds_read_b64_tr_b16 {v(WD,2)}, {v(T+9)} offset:{F_WD}
    ds_read_b64_tr_b16 {v(WD+2,2)}, {v(T+9)} offset:{F_WD+128}
    L_fb2b:
    """)
    a(f"""
    s_cmp_gt_u32 {s(sW)}, 3
    s_waitcnt lgkmcnt(0)
    s_barrier
    s_cbranch_scc1 L_fnoa
    ds_read_b32 {v(t+20)}, {v(vFl)}
    """)
    for k in range(4): a(f'ds_read_b128 {v(t+4*k,4)}, {v(vXR)} offset:{F_X+64*k}')
    stamp()
    a(f"""
    s_cmp_lt_u32 {s(sI)}, 28
    s_cselect_b32 {s(sPs)}, {s(sPo)}, {WSSZ}
    s_waitcnt lgkmcnt(3)
    v_mfma_f32_16x16x32_bf16 {v(Dd,4)}, {v(t,4)}, {v(WA,4)}, 0
    v_readfirstlane_b32 {s(sKey)}, {v(t+20)}
    s_waitcnt lgkmcnt(2)
    v_mfma_f32_16x16x32_bf16 {v(Dd,4)}, {v(t+4,4)}, {v(WA+4,4)}, {v(Dd,4)}
    s_bitcmp0_b32 {s(sKey)}, 0
    s_cselect_b64 vcc, -1, 0
    s_waitcnt lgkmcnt(1)
    v_mfma_f32_16x16x32_bf16 {v(Dd,4)}, {v(t+8,4)}, {v(WA+8,4)}, {v(Dd,4)}
    s_bitcmp0_b32 {s(sKey)}, 1
    s_cselect_b64 {s(sT+2,2)}, -1, 0
    s_waitcnt lgkmcnt(0)
    v_mfma_f32_16x16x32_bf16 {v(Dd,4)}, {v(t+12,4)}, {v(WA+12,4)}, {v(Dd,4)}
    s_andn2_b32 {s(sT)}, 4, {s(sKey)}
    s_lshl_b32 {s(sT)}, {s(sT)}, 2
    s_bfm_b64 exec, 16, {s(sT)}
    s_cmp_eq_u32 {s(sFast)}, 0
    v_cndmask_b32 {v(Dd)}, {v(Dd)}, {v(Dd+1)}, vcc
    v_cndmask_b32 {v(Dd+2)}, {v(Dd+2)}, {v(Dd+3)}, vcc
    v_cndmask_b32 {v(Dd)}, {v(Dd)}, {v(Dd+2)}, {s(sT+2,2)}
    s_cbranch_scc1 L_fps_s ;!nd
    buffer_store_dword {v(Dd)}, {v(vPS)}, {WS}, {s(sPs)} offen
    L_fps_d:
    s_mov_b64 exec, -1
    s_cmp_eq_u32 {s(sRnd)}, 2
    s_cbranch_scc1 L_fpok
    s_waitcnt vmcnt(0)
    s_branch L_fp
    L_fps_s:
    buffer_store_dword {v(Dd)}, {v(vPS)}, {WS}, {s(sPs)} offen sc1
    s_branch L_fps_d
    L_fnoa:
    s_cmp_eq_u32 {s(sW)}, 7
    s_cbranch_scc1 L_f7
    s_cmp_eq_u32 {s(sRnd)}, 2
    s_cbranch_scc1 L_fpok
    s_sleep {cfg.tim_p}
    s_branch L_fp
    L_fp:
    buffer_load_dwordx4 {v(t,4)}, {v(vPL)}, {WS}, {s(sPo)} offen sc1
    s_waitcnt vmcnt(0)
    """)
    maxchk(range(t,t+4), t+4)
    poll_branch('L_fp', cfg.slp_p, mask=True)
    stamp()
    a(f"""
    L_fpok:
    v_permlane32_swap_b32 {v(t)}, {v(t+1)}
    v_permlane32_swap_b32 {v(t+2)}, {v(t+3)}
    v_add_f32 {v(t)}, {v(t)}, {v(t+1)}
    v_add_f32 {v(t+2)}, {v(t+2)}, {v(t+3)}
    v_permlane16_swap_b32 {v(t)}, {v(t+2)}
    v_add_f32 {v(t)}, {v(t)}, {v(t+2)}
    v_mul_f32 {v(t+1)}, 0xbfb8aa3b, {v(t)}
    v_exp_f32 {v(t+1)}, {v(t+1)}
    v_mul_f32_dpp {v(t+2)}, {v(t)}, {v(t)} quad_perm:[2,3,0,1] {DPP}
    v_add_f32 {v(t+1)}, 1.0, {v(t+1)}
    v_rcp_f32 {v(t+1)}, {v(t+1)}
    v_mul_f32 {v(t+1)}, {v(t+1)}, {v(t+2)}
    v_cvt_pk_bf16_f32 {v(t+1)}, {v(t+1)}, {v(t+1)}
    ds_write_b16 {v(vHW)}, {v(t+1)}
    ds_read_b128 {v(t+4,4)}, {v(vHR)}
    """)
    if cfg.eh:
        a(f's_cmp_lg_u32 {s(sW)}, 5\ns_cbranch_scc1 L_fyh_d')
        hint_store(vTag, sYh, 'L_fyh')
    a(f"""
    s_waitcnt lgkmcnt(0)
    v_mfma_f32_16x16x32_bf16 {v(t+8,4)}, {v(t+4,4)}, {v(WD,4)}, 0
    s_mov_b64 exec, 0xffff
    ds_write_b32 {v(vDP)}, {v(t+8)}
    s_mov_b64 exec, -1
    s_waitcnt lgkmcnt(0)
    s_barrier
    L_fnext:
    """)
    stamp()
    a(f"""
    s_cmp_eq_u32 {s(sRnd)}, 1
    s_cbranch_scc1 L_fend
    s_cmp_eq_u32 {s(sRnd)}, 2
    s_cbranch_scc1 L_finit
    """)
    if cfg.wb==1: a(f"""
    s_cmp_lg_u32 {s(sI)}, 28
    s_cbranch_scc1 L_nwb
    s_cmp_lg_u32 {s(sW)}, 3
    s_cbranch_scc1 L_nwb
    s_sleep {cfg.wbd}
    buffer_wbl2 sc1
    L_nwb:
    """)
    a(f"""
    s_mov_b32 {s(sRnd)}, 1
    s_add_u32 {s(sSlot)}, {s(sSlot)}, {SLOTR}
    s_add_u32 {s(sPo)}, {s(sPo)}, {PARTR}
    s_add_u32 {s(sYo)}, {s(sYo)}, {YPR}
    s_add_u32 {s(sYh)}, {s(sYh)}, {YHR}
    s_branch L_frnd
    L_f7:
    ds_read_b32 {v(t+20)}, {v(vFl)}
    v_mov_b32 {v(vSig)}, 0xbfb8aa3b
    v_add_u32 {v(t+8)}, -28, {v(vDP)}
    v_lshlrev_b32 {v(t+9)}, 1, {v(vN)}
    s_waitcnt lgkmcnt(0)
    v_readfirstlane_b32 {s(sKey)}, {v(t+20)}
    s_ashr_i32 {s(sT)}, {s(sKey)}, 31
    s_orn2_b32 {s(sT)}, 0x80000000, {s(sT)}
    s_xor_b32 {s(sT)}, {s(sT)}, {s(sKey)}
    v_mul_f32 {v(vSig)}, {s(sT)}, {v(vSig)}
    v_exp_f32 {v(vSig)}, {v(vSig)}
    v_add_f32 {v(vSig)}, 1.0, {v(vSig)}
    v_rcp_f32 {v(vSig)}, {v(vSig)}
    s_barrier
    ds_read_b128 {v(t,4)}, {v(t+8)}
    ds_read_b96 {v(t+4,3)}, {v(t+8)} offset:16
    s_waitcnt lgkmcnt(1)
    v_pk_add_f32 {v(t,2)}, {v(t,2)}, {v(t+2,2)}
    v_add_f32 {v(t)}, {v(t)}, {v(t+1)}
    s_waitcnt lgkmcnt(0)
    v_add_f32 {v(t+4)}, {v(t+4)}, {v(t+5)}
    v_add_f32 {v(t)}, {v(t)}, {v(t+6)}
    v_add_f32 {v(t)}, {v(t)}, {v(t+4)}
    v_mul_f32 {v(t)}, {v(t)}, {v(vSig)}
    v_mov_b32_dpp {v(t+1)}, {v(t)} quad_perm:[1,1,3,3] {DPP}
    s_mov_b64 exec, 0x5555
    v_cvt_pk_bf16_f32 {v(t)}, {v(t)}, {v(t+1)}
    buffer_store_dword {v(t)}, {v(t+9)}, {WS}, {s(sYo)} offen sc1
    """)
    if cfg.eh: a('s_mov_b64 exec, -1')
    else: hint_store(vTag, sYh, 'L_fyh')
    a(f"""
    s_branch L_fnext
    L_fslowtab:
    v_and_b32 {v(t+16)}, 7, {v(vLane)}
    v_lshlrev_b32 {v(t+16)}, 7, {v(t+16)}
    s_mov_b32 {s(sT+10)}, {TABG}
    L_ftab2:
    buffer_load_dword {v(t+4)}, {v(t+16)}, {WS}, {s(sT+10)} offen sc1
    s_waitcnt vmcnt(0)
    v_cmp_ne_u32 vcc, {s(sTag)}, {v(t+4)}
    """)
    poll_branch('L_ftab2', 8)
    a('s_branch L_fi2\nL_fend:')
    dump_stamps()
    a('s_endpgm')

def build():
    hdr=open('ref.txt').read().split('; @launch')[0]
    a.raw(hdr+f'; @launch grid=({NWG},1,1) block=(512,1,1) lds={LDS_TOTAL}')
    a.raw(f'''; generated by gen/gen.py (hand-written generator): persistent FFT-structured FNet + MoD kernel
.amdgcn_target "amdgcn-amd-amdhsa--gfx950"
.text
.globl {NAME}_kernel
.p2align {cfg.al}
.p2align 8
.type {NAME}_kernel,@function
{NAME}_kernel:''')
    if cfg.st0: a(f's_memrealtime s[88:89]\ns_waitcnt lgkmcnt(0)')
    a(f'''
    s_load_dwordx2 s[12:13], s[0:1], 0
    s_load_dwordx2 s[8:9], s[0:1], 96
    s_load_dwordx8 s[16:23], s[0:1], 48
    s_load_dwordx2 s[28:29], s[0:1], 80
    v_and_b32 {v(vN)}, 15, v0
    v_bfe_u32 {v(vQ)}, v0, 4, 2
    v_lshrrev_b32 v2, 6, v0
    v_lshlrev_b32 {v(vUW)}, 7, v2
    v_lshl_add_u32 {v(vUW)}, {v(vN)}, 3, {v(vUW)}                ; 128w+8n
    v_lshl_add_u32 {v(vXoff)}, {v(vQ)}, 19, {v(vUW)}
    s_lshl_b32 {s(sRow0)}, s2, 10
    s_add_u32 {s(sRow1)}, {s(sRow0)}, 0x40000
    s_mov_b32 s14, 0x200000
    s_mov_b32 s15, 0x20000
    v_readfirstlane_b32 {s(sW)}, v2
    ''')
    if cfg.codepf: a(f'''
    s_getpc_b64 {s(sT+6,2)}
    L_pc:
    v_lshlrev_b32 v3, {6 if cfg.hot else 5}, v0
    ''')
    if cfg.codepf and cfg.hot: a(f'''
    v_cmp_gt_u32 vcc, L_end-L_pc, v3
    s_and_b32 {s(sT)}, s2, 0x118
    s_cselect_b64 vcc, 0, vcc
    s_cbranch_vccz L_npf ;!nd
    s_mov_b64 exec, vcc
    global_load_dword {v(vTG)}, v3, {s(sT+6,2)}
    s_mov_b64 exec, -1
    L_npf:
    ''')
    elif cfg.codepf: a(f'''
    v_min_u32 v3, L_end-L_pc, v3
    {f'global_load_dword {v(vTG)}, v3, {s(sT+6,2)}' if cfg.codepf==1 else ''}
    ''')
    a(f'''
    s_cmp_ge_u32 s2, 256
    s_cbranch_scc1 L_nox ;!nd
    s_waitcnt lgkmcnt(0)
    buffer_load_dwordx2 {v(BC,2)}, {v(vXoff)}, {XS}, {s(sRow0)} offen
    buffer_load_dwordx2 {v(BC+2,2)}, {v(vXoff)}, {XS}, {s(sRow1)} offen
    L_nox:
    {f'global_load_dword {v(vTG)}, v3, {s(sT+6,2)}' if cfg.codepf==2 else ''}
    s_cmp_ge_u32 s2, {NWG}
    s_cbranch_scc1 L_end
    {'s_waitcnt lgkmcnt(0)' if cfg.wsoff else ''}
    {f's_add_u32 s8, s8, {cfg.wsoff<<20}' if cfg.wsoff else ''}
    {'s_addc_u32 s9, s9, 0' if cfg.wsoff else ''}
    v_and_b32 {v(vLane)}, 63, v0
    s_mov_b32 s10, {WSSZ}
    s_mov_b32 s11, 0x20000
    s_mov_b32 s30, 0x200000
    s_mov_b32 s31, 0x20000
    s_and_b32 {s(sX)}, s2, 7
    s_lshr_b32 {s(sJ)}, s2, 3
    v_mov_b32 {v(SENT)}, -1
    v_mov_b32 {v(SENT+1)}, -1
    v_mov_b32 {v(SENT+2)}, -1
    v_mov_b32 {v(SENT+3)}, -1
    v_lshlrev_b32 {v(vL8)}, 3, v0
    v_and_b32 {v(vL8)}, 0xf8, {v(vL8)}
    s_mov_b32 {s(sCnt)}, 200000
    s_mov_b32 {s(sM7FF)}, 0x7ff
    s_lshl_b32 {s(sTabLd)}, {s(sX)}, 8
    s_add_u32 {s(sTabLd)}, {s(sTabLd)}, {TABL}
    s_getreg_b32 {s(sXcc)}, hwreg(HW_REG_XCC_ID, 0, 4)
    ''')
    if cfg.force_slow: a(f's_mov_b32 {s(sXcc)}, {s(sJ)}')
    if cfg.stamps:
        a(f's_mov_b32 {s(sStampI)}, 0\nv_mov_b32 {v(vSTMP)}, 0')
        a(f's_memrealtime {s(sTS,2)}\ns_memtime {s(sTS+2,2)}\ns_waitcnt lgkmcnt(0)\nv_writelane_b32 {v(vSTMP)}, {s(sTS)}, 63\nv_writelane_b32 {v(vSTMP)}, {s(sTS+2)}, 62')
        a(f'v_writelane_b32 {v(vSTMP)}, {s(sT+6)}, 57')
        if cfg.st0: a(f'v_writelane_b32 {v(vSTMP)}, {s(sTS)}, 58\nv_writelane_b32 {v(vSTMP)}, s88, 63\ns_memrealtime {s(sTS,2)}\ns_waitcnt lgkmcnt(0)\nv_writelane_b32 {v(vSTMP)}, {s(sTS)}, 59')
    a('''s_cmp_ge_u32 s2, 256
    s_cbranch_scc1 L_ffn''')
    if cfg.prio: a(f's_setprio 2\ns_cmp_gt_u32 {s(sW)}, 1\ns_cbranch_scc1 L_np\ns_setprio 3\nL_np:')
    main_prologue()
    main_loop()
    ffn()
    a('L_end:\ns_endpgm')
    a.raw(f'''.section .rodata,"a"
.p2align 6
.amdhsa_kernel {NAME}_kernel
  .amdhsa_next_free_vgpr 128
  .amdhsa_next_free_sgpr 96
  .amdhsa_accum_offset 128
  .amdhsa_group_segment_fixed_size 0
  .amdhsa_kernarg_size 104
  .amdhsa_user_sgpr_count 2
  .amdhsa_user_sgpr_kernarg_segment_ptr 1
  .amdhsa_system_sgpr_workgroup_id_x 1
.end_amdhsa_kernel''')
    return a.text()
if __name__=='__main__':
    out=sys.argv[1]
    for kv in sys.argv[2:]:
        k,val=kv.split('='); assert hasattr(cfg,k); setattr(cfg,k,int(val))
    open(out,'w').write(build())
    print('instrs',a.count,'nops',a.nops)
```

```python
import sys, struct
from asmlib import Asm
NAME='interleave_layers__spectral_fnet__moe_arch_mod__prompt'
def fbits(x): return '0x%08x' % struct.unpack('<I', struct.pack('<f', x))[0]

class Cfg:
    stamps=0
    tim_arg=14
    tim_y=0
    tim_h=0
    slp_g=2
    slp_l=1
    force_slow=0
    prio=1
    codepf=1
    exp=0
    gre=0
    cfl=0
    tlb=0
    wsoff=0
    st0=0
    cal=-1
    calwg=0
    dbgout=0
    dry=1
    wb=0
    fdelay=10
    gdelay=4
    osc=1
    odel=0
    pfm=7
    clr2=0
    nb0=0
    ehint=0
    post=0
    slp_t=0
    aft=0
    g2pos=3
    spr=1
    twice=1
    lastp=1
    hot=1
    gw=0
    gul=0
    xpos=1
    tdel=18
    pub0=1
    al=12
    ep0=1
    ypos=1
    lnt=3
    dg=0
    ht=0
    nw=0
    pfx=0
    pfm2=0x118
    xw=0
    dr=0
    xe=0
    wpos=0
    wpf=1
    dl=0
    smask=0
    dp=0
    dx=0
    tim_a1=14
    tim_wd=3
    tim_fh=12
    wdpos=1
    slp_p=1
    tim_p=8
    hold=1
    tim_gy=14
    eh=1
    own=1
    tim_y3=3
    beh=1
    gbb=0
    slp_f=2
    early=4
    tim_a0=0
    wbd=12
    gbdelay=4
    late=1
    split=0
    tch=1
cfg=Cfg()

TABG=0x1000; TABGR=0x6000
TABL=0x2000; ARGR=0x800
TAB2=0x3800
SLOWF=0x4000
YHINT=0x5000; YHR=0x400
FTAB=0x6000
CLR0=0x8000
YP=0x8000; YPR=0x2000
PART=0x20000; PARTR=0x10000
SLOT=0x10000; SLOTR=0x8000
LBASE=0x40000; PS=8448; LX=32*PS
GBASE=0x260000; GS=131072+768; GR=0x110000
STAMP=0x700000
WSSZ=0x800000
NWG=512
NST=(13,9,7)
L_STAT=0; L_U=0x400; L_YI=0x2400; YIS=288; L_YT=0x4C00; L_DH=0x6E00; L_FLAG=0x7E00; L_ROW=0x7E80; LDS_TOTAL=0x8280
L_CX=0x2400
def v(a,n=1): return f'v{a}' if n==1 else f'v[{a}:{a+n-1}]'
def s(a,n=1): return f's{a}' if n==1 else f's[{a}:{a+n-1}]'

WS='s[8:11]'; XS='s[12:15]'; OS='s[28:31]'
sW=3; sX=26; sJ=27; sIt=32; sTag=33; sFast=34; sKey=35; sMir=36; sDsc=38
sLst=39; sLld=40; sPh=41; sTabG=42; sG0=43; sG4=44; sTabSt=45; sTabLd=46; sSlot=47; sRow0=48; sRow1=49; sCnt=50
sXcc=51; sStampI=37
sK512=52
sTry=53
sEps=54
sC16=56
sSc=58
sM7FF=60; sTop=61
sQmask=62
sT=64
sNx=84; sSg=85; sYo=86; sYh=87
sGg=4; sMP=5
sTS=80
X=2; WV=10; A8=14; XA=16; B1C=20; B1S=24; B1N=28; TWC=32; TWS=36; A2R=40; A2I=44; YC=48; YS=52
AD=56; BC=58
vXoff=72; vStW=73; vStR=74; vUW=75; vUR=76; vLst=77; vLld=78; vLldM=79; vYIW=80; vYIR=81; vYW=82; vYR=83; vGst=84; vGld=85
vSc0=86; vL8=88; vInv=89; vN=90; vQ=91; vSTMP=1; vLane=92; vTG=93
LNP=94; MM=98; RS2=100
T=102
class Asm2(Asm):
    def __call__(self, text):
        parts=text.split(';@F')
        for i,p in enumerate(parts):
            if i: fstamp()
            Asm.__call__(self,p)
a=Asm2()
def poll_branch(lbl, sleep=1, pre='', giveup=None, skip=False, mask=False):
    k=a.lines.index(lbl+':')
    if mask:
        pre+='\ns_mov_b64 exec, vcc'; skip=True
        k2=next(i for i in range(k,len(a.lines)) if 's_waitcnt vmcnt(0)' in a.lines[i])
        k3=max(i for i in range(k,k2) if 'buffer_load' in a.lines[i])
        a.lines.insert(k3+1,'    s_mov_b64 exec, -1')
    if a.lines[k-1].strip().startswith(('s_branch','s_endpgm')): skip=False
    a(f's_cbranch_vccnz {lbl}_r ;!nd')
    st=[]
    if skip: st.append(f'    s_branch {lbl}')
    st.append(f'{lbl}_r:')
    if giveup: st+= [f'    s_sub_u32 {s(sTry)}, {s(sTry)}, 1', f'    s_cbranch_scc1 {giveup}']
    else: st+= [f'    s_sub_u32 {s(sCnt)}, {s(sCnt)}, 1', '    s_cbranch_scc1 L_end']
    st+= ['    '+x.strip() for x in pre.split('\n') if x.strip()]
    if sleep: st.append(f'    s_sleep {sleep}')
    a.lines[k:k]=st
nst=0
def fstamp():
    if cfg.stamps in (2,3): stamp()
def stamp():
    global nst
    nst+=1
    if not cfg.stamps or (cfg.stamps==4 and not (cfg.smask>>(nst-1))&1): return
    a(f'''{'s_memtime' if cfg.stamps==2 else 's_memrealtime'} {s(sTS,2)}
    s_waitcnt lgkmcnt(0)
    s_mov_b32 m0, {s(sStampI)}
    s_add_u32 {s(sStampI)}, {s(sStampI)}, 1
    v_writelane_b32 {v(vSTMP)}, {s(sTS)}, m0''')
def dump_stamps():
    if not cfg.stamps: return
    a(f's_memrealtime {s(sTS,2)}\ns_memtime {s(sTS+2,2)}\ns_waitcnt lgkmcnt(0)\nv_writelane_b32 {v(vSTMP)}, {s(sTS)}, 61\nv_writelane_b32 {v(vSTMP)}, {s(sTS+2)}, 60')
    if cfg.cal>=0:
        lab='L_cal%d'%len(a.lines)
        a(f'''s_cmp_lg_u32 s2, {cfg.calwg}
        s_cbranch_scc1 {lab}
        s_cmp_lg_u32 {s(sW)}, 0
        s_cbranch_scc1 {lab}
        v_readlane_b32 {s(sT)}, {v(vSTMP)}, {cfg.cal}
        v_readlane_b32 {s(sT+1)}, {v(vSTMP)}, 63
        s_sub_u32 {s(sT)}, {s(sT)}, {s(sT+1)}
        s_lshl_b32 {s(sT)}, {s(sT)}, 2
        s_add_u32 {s(sT)}, {s(sT)}, 3000
        s_min_u32 {s(sT)}, {s(sT)}, 50000
        {lab}_l:
        s_memrealtime {s(sTS,2)}
        s_waitcnt lgkmcnt(0)
        s_sub_u32 {s(sT+2)}, {s(sTS)}, {s(sT+1)}
        s_cmp_lt_u32 {s(sT+2)}, {s(sT)}
        s_cbranch_scc1 {lab}_l
        {lab}:''')
        return
    a(f'''s_lshl_b32 {s(sT)}, s2, 11
    s_lshl_b32 {s(sT+1)}, {s(sW)}, 8
    s_add_u32 {s(sT)}, {s(sT)}, {s(sT+1)}
    s_add_u32 {s(sT)}, {s(sT)}, {STAMP}
    v_lshlrev_b32 {v(vLane)}, 2, {v(vLane)}
    buffer_store_dword {v(vSTMP)}, {v(vLane)}, {WS}, {s(sT)} offen''')
def maxchk(regs, t):
    regs=list(regs)
    a(f'v_max3_u32 {v(t)}, {v(regs[0])}, {v(regs[1])}, {v(regs[2])}')
    rest=regs[3:]
    while len(rest)>=2:
        a(f'v_max3_u32 {v(t)}, {v(t)}, {v(rest[0])}, {v(rest[1])}'); rest=rest[2:]
    if rest: a(f'v_max_u32 {v(t)}, {v(t)}, {v(rest[0])}')
    a(f'v_cmp_eq_u32 vcc, -1, {v(t)}')
def phchk(regs, t):
    regs=list(regs)
    a(f'v_bitop3_b32 {v(t)}, {v(regs[0])}, {v(regs[1])}, {s(sPh)} bitop3:0x7e')
    for r in regs[2:]: a(f'v_bitop3_b32 {v(t)}, {v(t)}, {v(r)}, {s(sPh)} bitop3:0xf6')
    a(f'v_and_b32 {v(t)}, 1, {v(t)}\nv_cmp_ne_u32 vcc, 0, {v(t)}')
def tag4chk(r):
    for k in range(4): a(f'v_xor_b32 {v(r+k)}, {s(sTag)}, {v(r+k)}')
    a(f'v_or3_b32 {v(r)}, {v(r)}, {v(r+1)}, {v(r+2)}\nv_or_b32 {v(r)}, {v(r)}, {v(r+3)}\nv_cmp_ne_u32 vcc, 0, {v(r)}')
DPP='row_mask:0xf bank_mask:0xf'

def fft_core(xr, xi, U, V, F, P, fill1='', fill2=''):
    Ur,Ui=U,U+4
    a(f'v_mfma_f32_16x16x32_f16 {v(Ur,4)}, {v(xr,4)}, {v(B1C,4)}, 0')
    a(f'v_mfma_f32_16x16x32_f16 {v(Ui,4)}, {v(xr,4)}, {v(B1N,4)}, 0')
    if xi is not None:
        a(f'v_mfma_f32_16x16x32_f16 {v(Ur,4)}, {v(xi,4)}, {v(B1S,4)}, {v(Ur,4)}')
        a(f'v_mfma_f32_16x16x32_f16 {v(Ui,4)}, {v(xi,4)}, {v(B1C,4)}, {v(Ui,4)}')
    a(fill1)
    Vr,Vi=V,V+4
    for h in (0,2):
        a(f'v_pk_mul_f32 {v(Vi+h,2)}, {v(Ur+h,2)}, {v(TWS+h,2)}')
    for h in (0,2):
        a(f'v_pk_mul_f32 {v(Vr+h,2)}, {v(Ui+h,2)}, {v(TWS+h,2)}')
    for h in (0,2):
        a(f'v_pk_fma_f32 {v(Vr+h,2)}, {v(Ur+h,2)}, {v(TWC+h,2)}, {v(Vr+h,2)}')
        a(f'v_pk_fma_f32 {v(Vi+h,2)}, {v(Ui+h,2)}, {v(TWC+h,2)}, {v(Vi+h,2)} neg_lo:[0,0,1] neg_hi:[0,0,1]')
    for r in range(4): a(f'v_cvt_pk_f16_f32 {v(P+r)}, {v(Vr+r)}, {v(Vi+r)}')
    a(f'v_mfma_f32_16x16x32_f16 {v(F,4)}, {v(A2R,4)}, {v(P,4)}, 0')
    a(f'v_mfma_f32_16x16x32_f16 {v(F+4,4)}, {v(A2I,4)}, {v(P,4)}, 0')
    a(fill2)
    for r in range(4): a(f'v_cvt_pk_f16_f32 {v(P+r)}, {v(F+r)}, {v(F+4+r)}')

SENT=T+4
def g2late():
    return '\n'.join(f'v_mov_b32 {v(LNP+k)}, -1' for k in range(4))+f'\ns_mov_b32 {s(sT+14)}, {GBASE+GR}\nbuffer_store_dwordx4 {v(LNP,4)}, {v(vGst)}, {WS}, {s(sT+14)} offen sc1'

def main_prologue():
    t=T
    X0=BC
    a(f'''
    s_mul_i32 {s(sLld)}, {s(sX)}, {LX}
    s_add_u32 {s(sLld)}, {s(sLld)}, {LBASE}
    s_mul_i32 {s(sLst)}, {s(sJ)}, {PS}
    s_add_u32 {s(sLst)}, {s(sLst)}, {s(sLld)}
    v_lshlrev_b32 {v(t)}, 4, v0
    v_lshrrev_b32 {v(t+1)}, 4, v0
    {f's_load_dword {s(sTag)}, s[8:9], 0' if not cfg.ep0 else ''}
    ''')
    a(f'''
    buffer_load_dwordx4 {v(X0+8,4)}, {v(t)}, {WS}, {s(sLst)} offen sc1
    s_mov_b32 {s(sG0)}, {GBASE}
    s_mul_i32 {s(sT)}, {s(sX)}, {GS}
    s_add_u32 {s(sT+2)}, {s(sJ)}, 24
    s_and_b32 {s(sT+2)}, {s(sT+2)}, 24
    s_lshl_b32 {s(sT+2)}, {s(sT+2)}, 12
    s_add_u32 {s(sT)}, {s(sT)}, {s(sT+2)}
    s_cmp_gt_u32 {s(sW)}, 3
    {f's_cselect_b32 {s(sT)}, s10, {s(sT)}' if cfg.g2pos!=7 else ''}
    {f's_cselect_b32 {s(sT+5)}, {GBASE+GR-32768}, {s(sG0)}' if cfg.g2pos==7 else ''}
    {f's_cselect_b32 {s(sT+6)}, s10, 0' if cfg.g2pos==7 else ''}
    s_and_b32 {s(sT+2)}, {s(sJ)}, 7
    s_cmp_lt_u32 {s(sJ)}, 8
    s_cselect_b32 {s(sT+3)}, 7, 8
    s_cselect_b32 {s(sT+4)}, 112, 0
    s_lshl_b32 {s(sT+2)}, {s(sT+2)}, {s(sT+3)}
    s_add_u32 {s(sT)}, {s(sT)}, {s(sT+2)}
    v_lshlrev_b32 {v(t+2)}, 4, {v(vN)}
    v_lshl_add_u32 {v(vGst)}, {v(t+1)}, 11, {v(t+2)}
    v_and_b32 {v(t+3)}, 8, {v(vN)}
    v_mad_u32_u24 {v(vGst)}, {v(t+3)}, {s(sT+4)}, {v(vGst)}
    v_add_u32 {v(vGst)}, {s(sT)}, {v(vGst)}
    ''')
    a(f'''
    buffer_store_dwordx4 {v(SENT,4)}, {v(vGst)}, {WS}, {s(sG0 if cfg.g2pos!=7 else sT+5)} offen sc1
    {f'v_add_u32 {v(vGst)}, {s(sT+6)}, {v(vGst)}' if cfg.g2pos==7 else ''}
    v_and_b32 {v(BC+6)}, 0x3f0, {v(t)}
    global_load_dwordx2 {v(BC+4,2)}, {v(vUW)}, s[16:17]
    global_load_dwordx4 {v(WV,4)}, {v(BC+6)}, s[16:17]
    s_cmp_lg_u32 {s(sW)}, 0
    s_cbranch_scc1 L_nw0 ;!nd
    buffer_load_dword {v(BC+12)}, off, {WS}, 0 sc1
    buffer_load_dword {v(X0+7)}, {v(vL8)}, {WS}, {s(sTabLd)} offen sc1
    s_and_b32 {s(sT+14)}, {s(sJ)}, 24
    s_add_u32 {s(sT+14)}, {s(sT+14)}, {s(sX)}
    s_and_b32 {s(sT+13)}, {s(sJ)}, 7
    s_lshl3_add_u32 {s(sT+15)}, {s(sT+14)}, {s(sT+13)}
    s_lshl_b32 {s(sT+15)}, {s(sT+15)}, 10
    s_cmp_lt_u32 {s(sT+14)}, 4
    s_cselect_b32 {s(sT+15)}, s10, {s(sT+15)}
    buffer_store_dwordx4 {v(SENT,4)}, {v(t)}, {WS}, {s(sT+15)} offen sc1
    L_nw0:
    ''')
    if cfg.exp&2: stamp(); a('s_waitcnt vmcnt(4)'); stamp()
    c=t+8; co,si=c+8,c+12
    a(f'''
    s_lshr_b32 {s(sT)}, {s(sJ)}, 2
    s_and_b32 {s(sT)}, {s(sT)}, 6                 ; 2*(j>>3)
    s_lshl_b32 {s(sT+1)}, {s(sW)}, 2
    s_and_b32 {s(sT+1)}, {s(sT+1)}, 8             ; 2*4*((w>>1)&1)
    s_cmp_lt_u32 {s(sJ)}, 8
    s_cselect_b32 {s(sT)}, {s(sT+1)}, {s(sT)}
    s_cselect_b32 {s(sT+4)}, 0, -1
    s_mov_b32 {s(sT+5)}, 0x44440054
    s_cmp_eq_u32 {s(sX)}, 0
    s_cselect_b32 {s(sT+4)}, 1, {s(sT+4)}
    s_cselect_b32 {s(sT+5)}, {s(sT+5)}, 0x55550054
    s_cselect_b32 {s(sT+2)}, 0, 1
    s_lshl_b32 {s(sT)}, {s(sT)}, {s(sT+2)}
    s_lshl_b32 {s(sT+1)}, {s(sW)}, 4
    s_and_b32 {s(sT+1)}, {s(sT+1)}, 16            ; 16*(w&1)
    s_mul_i32 {s(sT+2)}, {s(sT+1)}, {s(sT+4)}
    s_cmp_ge_u32 {s(sW)}, 4
    s_cselect_b32 {s(sT+2)}, {s(sT+2)}, 0         ; +-16k
    s_cselect_b32 {s(sT)}, {s(sT)}, 0
    s_cmp_eq_u32 {s(sW)}, 3
    s_cselect_b32 {s(sT)}, 16, {s(sT)}
    s_lshl_b32 {s(sT+3)}, {s(sW)}, 2
    s_lshr_b32 {s(sT+3)}, {s(sT+5)}, {s(sT+3)}
    s_and_b32 {s(sT+3)}, {s(sT+3)}, 15            ; log2 A
    v_lshlrev_b32 {v(c)}, {s(sT+3)}, {v(vN)}
    v_add_u32 {v(c)}, {s(sT)}, {v(c)}
    v_lshl_add_u32 {v(c+1)}, {v(vQ)}, 2, {s(sT+2)}
    v_cvt_f32_u32 {v(c)}, {v(c)}
    v_cvt_f32_i32 {v(c+1)}, {v(c+1)}
    s_mov_b32 {s(sK512)}, {fbits(1/512)}
    v_mul_f32 {v(c)}, {s(sK512)}, {v(c)}
    v_mul_f32 {v(c+4)}, {v(c+1)}, {v(c)}
    v_add_f32 {v(c+5)}, {v(c+4)}, {v(c)}
    v_add_f32 {v(c+6)}, {v(c+5)}, {v(c)}
    v_add_f32 {v(c+7)}, {v(c+6)}, {v(c)}
    ''')
    fill=[f's_mov_b32 {s(sEps)}, {fbits(1e-5)}', f's_mov_b32 {s(sEps+1)}, {fbits(1e-5)}', f's_mov_b32 {s(sC16)}, {fbits(1/16)}', f's_mov_b32 {s(sC16+1)}, {fbits(1/16)}',
          f's_mov_b32 {s(sTop)}, 0x80000000', f's_mov_b32 {s(sQmask)}, 0x11111111', f's_mov_b32 {s(sQmask+1)}, 0x11111111', f's_mov_b32 {s(sG4)}, {GBASE+4*GS}']
    for r in range(4):
        a(f'v_cos_f32 {v(co+r)}, {v(c+4+r)}'); a(fill[2*r])
        a(f'v_sin_f32 {v(si+r)}, {v(c+4+r)}'); a(fill[2*r+1])
    a(f'''
    s_lshl_b32 {s(sT)}, {s(sW)}, 11
    s_add_u32 {s(sT)}, {s(sT)}, {L_CX}
    v_lshlrev_b32 {v(c+2)}, 4, {v(vLane)}
    v_add_u32 {v(c+3)}, {s(sT)}, {v(c+2)}
    s_and_b32 {s(sT)}, {s(sW)}, 6
    s_cmp_eq_u32 {s(sT)}, 2
    s_cbranch_scc1 L_cw
    s_cmp_eq_u32 {s(sW)}, 1
    s_cbranch_scc1 L_cri
    v_cvt_pk_f16_f32 {v(co)}, {v(co)}, {v(co+1)}
    v_cvt_pk_f16_f32 {v(co+1)}, {v(co+2)}, {v(co+3)}
    v_cvt_pk_f16_f32 {v(co+2)}, {v(si)}, {v(si+1)}
    v_cvt_pk_f16_f32 {v(co+3)}, {v(si+2)}, {v(si+3)}
    s_branch L_cw
    L_cri:
    ''')
    for r in range(4):
        a(f'v_cvt_pk_f16_f32 {v(c+4)}, {v(co+r)}, {v(si+r)}')
        a(f'v_cvt_pk_f16_f32 {v(si+r)}, -{v(si+r)}, {v(co+r)}')
        a(f'v_mov_b32 {v(co+r)}, {v(c+4)}')
        a(f'v_xor_b32 {v(si+r)}, {s(sMP)}, {v(si+r)}')
    a(f'''
    L_cw:
    ds_write_b128 {v(c+3)}, {v(co,4)}
    ds_write_b128 {v(c+3)}, {v(si,4)} offset:1024
    v_lshrrev_b32 {v(c+4)}, 2, {v(vN)}
    v_and_b32 {v(c+5)}, 2, {v(vN)}
    v_and_b32 {v(c+6)}, 14, {v(vN)}
    v_cmp_eq_u32 vcc, 2, {v(c+6)}
    v_lshlrev_b32 {v(vStR)}, 8, {v(vQ)}
    v_cndmask_b32 {v(c+4)}, {v(c+4)}, 4, vcc
    v_cndmask_b32 {v(c+5)}, {v(c+5)}, 0, vcc
    v_mul_u32_u24 {v(c+6)}, {v(c+4)}, {v(vQ)}
    v_lshl_add_u32 {v(c+6)}, {v(c+6)}, 1, {v(c+5)}
    v_add_u32 {v(c+7)}, {v(c+6)}, {v(c+4)}
    v_cvt_f32_u32 {v(c+6)}, {v(c+6)}
    v_cvt_f32_u32 {v(c+7)}, {v(c+7)}
    v_mul_f32 {v(c+6)}, 0x3e000000, {v(c+6)}
    v_mul_f32 {v(c+7)}, 0x3e000000, {v(c+7)}
    v_cos_f32 {v(c+6)}, {v(c+6)}
    v_cos_f32 {v(c+7)}, {v(c+7)}
    v_and_b32 {v(c+5)}, 1, {v(vN)}
    v_cmp_eq_u32 vcc, 0, {v(c+5)}
    v_cvt_pk_f16_f32 {v(c+6)}, {v(c+6)}, {v(c+7)}
    v_mov_b32 {v(c+5)}, 0x80008000
    v_cndmask_b32 {v(A8)}, 0, {v(c+6)}, vcc
    v_cndmask_b32 {v(A8+1)}, {v(c+6)}, 0, vcc
    v_cndmask_b32 {v(c+5)}, {v(c+5)}, 0, vcc
    s_lshl_b32 {s(sT+1)}, {s(sT+1)}, 7            ; h*2048
    v_add_u32 {v(c+6)}, {s(sT+1)}, {v(c+2)}
    s_lshl_b32 {s(sT+2)}, {s(sW)}, 10
    s_and_b32 {s(sT+2)}, {s(sT+2)}, 4096          ; (w>>2)*4096
    v_add_u32 {v(c+7)}, {s(sT+2)}, {v(c+2)}
    ''')
    if cfg.exp&4: stamp()
    a(f'''
    s_waitcnt lgkmcnt(0)
    s_barrier
    ''')
    if cfg.exp&4: stamp()
    a(f'''
    ds_read_b128 {v(B1N,4)}, {v(c+2)} offset:{L_CX}
    ds_read_b128 {v(A2R,4)}, {v(c+2)} offset:{L_CX+2048}
    ds_read_b128 {v(A2I,4)}, {v(c+2)} offset:{L_CX+2048+1024}
    ds_read_b128 {v(TWC,4)}, {v(c+6)} offset:{L_CX+4096}
    ds_read_b128 {v(TWS,4)}, {v(c+6)} offset:{L_CX+4096+1024}
    ds_read2st64_b64 {v(YC,4)}, {v(c+7)} offset0:{(L_CX+4*2048)//512} offset1:{(L_CX+5*2048)//512}
    v_add_u32 {v(c+7)}, 8, {v(c+7)}
    ds_read2st64_b64 {v(YS,4)}, {v(c+7)} offset0:{(L_CX+4*2048)//512} offset1:{(L_CX+5*2048)//512}
    v_and_b32 {v(c+4)}, 4, {v(vN)}
    s_lshl_b32 {s(sT)}, {s(sW)}, 2
    v_lshl_add_u32 {v(vStW)}, {v(t+3)}, 2, {v(vStR)}
    v_lshl_add_u32 {v(vStW)}, {v(c+4)}, 4, {v(vStW)}
    v_add_u32 {v(vStW)}, {s(sT)}, {v(vStW)}
    v_and_b32 {v(c+4)}, 7, {v(vN)}
    v_lshl_add_u32 {v(vStR)}, {v(c+4)}, 5, {v(vStR)}
    v_lshl_add_u32 {v(vUW)}, {v(vQ)}, 11, {v(vUW)}
    v_add_u32 {v(vUW)}, {L_U}, {v(vUW)}
    s_lshr_b32 {s(sT)}, {s(sW)}, 1
    s_lshl_b32 {s(sT)}, {s(sT)}, 11
    s_add_u32 {s(sT+2)}, {s(sT)}, {L_U}
    v_lshl_add_u32 {v(vUR)}, {v(vLane)}, 3, {s(sT+2)}
    ; vLst = w'*2048 + 512q + 64h + 4n
    s_lshr_b32 {s(sT+2)}, {s(sT+1)}, 5
    s_add_u32 {s(sT)}, {s(sT)}, {s(sT+2)}
    v_lshl_add_u32 {v(vLst)}, {v(vQ)}, 9, {s(sT)}
    v_lshl_add_u32 {v(vLst)}, {v(vN)}, 2, {v(vLst)}
    s_lshl_b32 {s(sT+3)}, {s(sW)}, 31             ; h sign
    s_mov_b32 {s(sT+5)}, 0x80008000
    s_mov_b32 {s(sIt)}, 0
    s_waitcnt lgkmcnt(6)
    v_xor_b32 {v(B1C)}, {s(sT+3)}, {v(B1N)}
    v_xor_b32 {v(B1C+1)}, {s(sT+3)}, {v(B1N+1)}
    v_xor_b32 {v(B1S)}, {s(sT+3)}, {v(B1N+2)}
    v_xor_b32 {v(B1S+1)}, {s(sT+3)}, {v(B1N+3)}
    v_xor_b32 {v(B1C+2)}, {v(B1C)}, {v(c+5)}
    v_xor_b32 {v(B1C+3)}, {v(B1C+1)}, {v(c+5)}
    v_xor_b32 {v(B1S+2)}, {v(B1S)}, {v(c+5)}
    v_xor_b32 {v(B1S+3)}, {v(B1S+1)}, {v(c+5)}
    ''')
    for r in range(4): a(f'v_xor_b32 {v(B1N+r)}, {s(sT+5)}, {v(B1S+r)}')
    if cfg.ypos==2: a('s_waitcnt lgkmcnt(0)'); y_setup(c)
    a(f'''
    s_waitcnt vmcnt(7)
    s_cmp_eq_u32 {s(sW)}, 0
    s_cbranch_scc1 L_x0 ;!nd
    s_waitcnt vmcnt(4)
    L_x0:
    ''')
    for rho in (0,1):
        for k in (0,1):
            src=X0+2*rho+k
            a(f'v_lshlrev_b32 {v(X+4*k+rho)}, 16, {v(src)}')
            a(f'v_and_b32 {v(X+4*k+2+rho)}, 0xffff0000, {v(src)}')
    if not cfg.ep0: a(f's_add_u32 {s(sTag)}, {s(sTag)}, 1')

def y_setup(u):
    a(f'''
    v_lshrrev_b32 {v(u+1)}, 4, v0
    v_lshlrev_b32 {v(u+2)}, 4, {v(vN)}
    v_lshrrev_b32 {v(vYIR)}, 2, {v(vN)}
    v_mul_u32_u24 {v(vYIR)}, {YIS}, {v(vYIR)}
    ''')
    a(f'''
    s_lshl_b32 {s(sT+1)}, {s(sW)}, 5              ; 32w
    s_add_u32 {s(sT)}, {s(sT+1)}, {L_YT}
    v_mul_u32_u24 {v(vYW)}, 272, {v(vN)}
    v_lshl_add_u32 {v(vYW)}, {v(vQ)}, 3, {v(vYW)}
    v_add_u32 {v(vYW)}, {s(sT)}, {v(vYW)}
    v_mul_u32_u24 {v(vYR)}, 272, {v(u+1)}
    v_add_u32 {v(vYR)}, {v(vYR)}, {v(u+2)}
    v_add_u32 {v(vYR)}, {L_YT}, {v(vYR)}
    s_add_u32 {s(sT+1)}, {s(sT+1)}, {L_YI}
    v_mul_u32_u24 {v(u+3)}, {4*YIS}, {v(vQ)}
    v_and_b32 {v(u+4)}, 0x18, {v(vL8)}
    v_add3_u32 {v(vYIR)}, {v(vYIR)}, {v(u+3)}, {v(u+4)}
    v_add_u32 {v(vYIR)}, {s(sT+1)}, {v(vYIR)}
    s_cmp_lt_u32 {s(sJ)}, 8
    s_cbranch_scc1 L_aself
    v_mul_u32_u24 {v(vLld)}, {PS}, {v(u+1)}
    v_mul_u32_u24 {v(vYIW)}, {YIS}, {v(u+1)}
    s_lshl_b32 {s(sT)}, {s(sJ)}, 8
    v_add3_u32 {v(vLld)}, {v(vLld)}, {v(u+2)}, {s(sT)}
    v_add_u32 {v(vYIW)}, {v(vYIW)}, {v(u+2)}
    v_mov_b32 {v(vLldM)}, 0
    s_branch L_adone
    L_aself:
    ; s2=(w>>1)*8+(l>>3), u=l&7, which=w&1
    s_lshl_b32 {s(sT)}, {s(sW)}, 2
    s_and_b32 {s(sT)}, {s(sT)}, 24
    v_lshrrev_b32 {v(u+3)}, 3, {v(vLane)}
    v_add_u32 {v(u+3)}, {s(sT)}, {v(u+3)}
    v_and_b32 {v(u+4)}, 0x70, {v(u+2)}
    v_mul_u32_u24 {v(vLldM)}, {PS}, {v(u+3)}
    v_mul_u32_u24 {v(vYIW)}, {YIS}, {v(u+3)}
    s_lshl_b32 {s(sT)}, {s(sJ)}, 7
    s_add_u32 {s(sT+1)}, {s(sT)}, 4
    s_sub_u32 {s(sT)}, {508*4}, {s(sT)}
    v_add3_u32 {v(vLld)}, {v(vLldM)}, {v(u+4)}, {s(sT+1)}
    v_sub_u32 {v(vLldM)}, {v(vLldM)}, {v(u+4)}
    v_add_u32 {v(vLldM)}, {s(sT)}, {v(vLldM)}
    s_and_b32 {s(sT)}, {s(sW)}, 1
    s_lshl_b32 {s(sT)}, {s(sT)}, 7
    v_add3_u32 {v(vYIW)}, {v(vYIW)}, {v(u+4)}, {s(sT)}
    L_adone:
    v_add_u32 {v(vYIW)}, {L_YI}, {v(vYIW)}
    ''')

def w_setup():
    w=BC+8
    a(f'''
    v_mov_b32 {v(w+1)}, 0x3f803f80
    v_dot2_f32_bf16 {v(w)}, {v(WV)}, {v(w+1)}, 0
    v_dot2_f32_bf16 {v(w)}, {v(WV+1)}, {v(w+1)}, {v(w)}
    v_dot2_f32_bf16 {v(w)}, {v(WV+2)}, {v(w+1)}, {v(w)}
    v_dot2_f32_bf16 {v(w)}, {v(WV+3)}, {v(w+1)}, {v(w)}
    v_lshlrev_b32 {v(WV)}, 16, {v(BC+4)}
    v_and_b32 {v(WV+1)}, 0xffff0000, {v(BC+4)}
    v_lshlrev_b32 {v(WV+2)}, 16, {v(BC+5)}
    v_add_f32_dpp {v(w)}, {v(w)}, {v(w)} row_ror:8 {DPP}
    v_and_b32 {v(WV+3)}, 0xffff0000, {v(BC+5)}
    v_mul_f32 {v(WV)}, 0x44000000, {v(WV)}
    v_add_f32_dpp {v(w)}, {v(w)}, {v(w)} row_ror:4 {DPP}
    v_mul_f32 {v(WV+1)}, 0x44000000, {v(WV+1)}
    v_mul_f32 {v(WV+2)}, 0x44000000, {v(WV+2)}
    v_add_f32_dpp {v(w)}, {v(w)}, {v(w)} row_ror:2 {DPP}
    v_mul_f32 {v(WV+3)}, 0x44000000, {v(WV+3)}
    v_add_f32_dpp {v(w)}, {v(w)}, {v(w)} row_ror:1 {DPP}
    v_add_f32_dpp {v(w)}, {v(w)}, {v(w)} row_bcast:15 row_mask:0xa bank_mask:0xf
    v_add_f32_dpp {v(w)}, {v(w)}, {v(w)} row_bcast:31 row_mask:0xc bank_mask:0xf
    v_readlane_b32 {s(sT)}, {v(w)}, 63
    ''')
    for k in range(4): a(f'v_subrev_f32 {v(WV+k)}, {s(sT)}, {v(WV+k)}')

def xin_consts(c):
    a(f'''
    s_and_b32 {s(sT)}, {s(sGg)}, 3               ; 0 => self
    s_lshr_b32 {s(sT+1)}, {s(sW)}, 2
    s_bfe_u32 {s(sT+2)}, {s(sGg)}, 0x10002
    s_mov_b32 {s(sSc)}, {fbits(16.0)}
    s_cmp_eq_u32 {s(sT)}, 0
    s_cselect_b32 {s(sMir)}, {s(sT+1)}, {s(sT+2)}
    s_cselect_b32 {s(sSc)}, {fbits(8.0)}, {s(sSc)}
    s_cselect_b32 {s(sDsc)}, {fbits(1/8)}, {s(sC16)}
    s_cselect_b32 {s(sT+3)}, -4, 0
    s_mov_b32 {s(sSc+1)}, {s(sSc)}
    s_sub_u32 {s(sT+4)}, 256, {s(sGg)}
    s_and_b32 {s(sT+4)}, {s(sT+4)}, 255
    s_cmp_eq_u32 {s(sMir)}, 0
    s_cselect_b32 {s(sT+4)}, {s(sGg)}, {s(sT+4)}       ; source g
    s_cselect_b32 {s(sT+5)}, 16, -16
    s_cselect_b32 {s(sT+6)}, 0, {509*4}
    s_cselect_b32 {s(sT+7)}, 1.0, -1.0
    s_add_u32 {s(sT+3)}, {s(sT+3)}, {s(sT+6)}
    s_mul_i32 {s(sT+6)}, {s(sT+5)}, {s(sW)}
    s_lshl_b32 {s(sT+6)}, {s(sT+6)}, 4
    s_add_u32 {s(sT+3)}, {s(sT+3)}, {s(sT+6)}
    s_and_b32 {s(sT+6)}, {s(sT+4)}, 0x78
    s_lshl_b32 {s(sT+6)}, {s(sT+6)}, 8
    s_add_u32 {s(sT+3)}, {s(sT+3)}, {s(sT+6)}
    s_add_u32 {s(sT+6)}, {s(sT+4)}, 3
    s_and_b32 {s(sT+6)}, {s(sT+6)}, 3
    s_lshl_b32 {s(sT+6)}, {s(sT+6)}, 15
    s_add_u32 {s(sT+3)}, {s(sT+3)}, {s(sT+6)}
    s_and_b32 {s(sT+6)}, {s(sT+4)}, 4
    s_lshl_b32 {s(sT+6)}, {s(sT+6)}, 8
    s_add_u32 {s(sT+3)}, {s(sT+3)}, {s(sT+6)}
    v_mul_i32_i24 {v(vGld)}, {s(sT+5)}, {v(vN)}
    v_mul_u32_u24 {v(c+4)}, {GS}, {v(vQ)}
    v_add3_u32 {v(vGld)}, {v(vGld)}, {v(c+4)}, {s(sT+3)}
    v_lshrrev_b32 {v(c+4)}, 1, {v(vN)}
    v_and_b32 {v(c+4)}, 6, {v(c+4)}
    v_and_or_b32 {v(c+4)}, {v(vN)}, 1, {v(c+4)}
    v_lshl_add_u32 {v(AD)}, {v(c+4)}, 8, {s(sGg)}
    v_cvt_f32_u32 {v(c+4)}, {v(AD)}
    v_cvt_f32_u32 {v(c+5)}, {v(vQ)}
    v_mul_f32 {v(c+4)}, {fbits(1/2048)}, {v(c+4)}
    v_mul_f32 {v(c+4)}, {s(sT+7)}, {v(c+4)}
    v_mul_f32 {v(c+5)}, {v(c+4)}, {v(c+5)}
    v_fma_f32 {v(c+6)}, {v(c+4)}, 4.0, {v(c+5)}
    v_cos_f32 {v(c+7)}, {v(c+5)}
    v_sin_f32 {v(c+8)}, {v(c+5)}
    v_cos_f32 {v(c+9)}, {v(c+6)}
    v_sin_f32 {v(c+10)}, {v(c+6)}
    v_bfe_u32 {v(c+4)}, {v(vN)}, 1, 1
    v_cmp_eq_u32 vcc, {s(sMir)}, {v(c+4)}
    v_cvt_pk_f16_f32 {v(c+7)}, {v(c+7)}, {v(c+8)}
    s_lshr_b32 {s(sT+6)}, {s(sT+4)}, 3
    s_and_b32 {s(sT+6)}, {s(sT+6)}, 16
    s_lshl_b32 {s(sT+6)}, 0x3c00, {s(sT+6)}
    s_mov_b64 exec, 0xffff
    v_mov_b32 {v(c+7)}, {s(sT+6)}
    s_mov_b64 exec, -1
    v_cvt_pk_f16_f32 {v(c+9)}, {v(c+9)}, {v(c+10)}
    v_cndmask_b32 {v(XA)}, 0, {v(c+7)}, vcc
    v_cndmask_b32 {v(XA+1)}, {v(c+7)}, 0, vcc
    v_cndmask_b32 {v(XA+2)}, 0, {v(c+9)}, vcc
    v_cndmask_b32 {v(XA+3)}, {v(c+9)}, 0, vcc
    v_and_b32 {v(c+4)}, 0x1cf, v0
    v_cmp_eq_u32 vcc, 0, {v(c+4)}
    v_mov_b32 {v(c+5)}, {s(sSc)}
    s_sub_u32 {s(sT)}, 2047, {s(sGg)}
    v_lshlrev_b32 {v(vInv)}, 9, {v(vQ)}
    v_cndmask_b32 {v(vSc0)}, {v(c+5)}, 0, vcc
    v_cndmask_b32 {v(vSc0+1)}, {v(c+5)}, 0, vcc
    v_sub_u32 {v(vInv)}, {s(sT)}, {v(vInv)}
    s_lshl_b32 {s(sSlot)}, {s(sX)}, 12
    s_add_u32 {s(sSlot)}, {s(sSlot)}, {SLOT}
    ''')

def main_loop():
    t=T
    S1,S2,S3=t,t+2,t+4
    a('L_top:')
    stamp()
    a(f'''
    v_pk_add_f32 {v(S1,2)}, {v(X,2)}, {v(X+2,2)}
    v_pk_add_f32 {v(t+6,2)}, {v(X+4,2)}, {v(X+6,2)}
    v_pk_mul_f32 {v(S2,2)}, {v(X,2)}, {v(X,2)}
    v_pk_mul_f32 {v(S3,2)}, {v(X,2)}, {v(WV,2)} op_sel:[0,0] op_sel_hi:[1,0]
    v_pk_add_f32 {v(S1,2)}, {v(S1,2)}, {v(t+6,2)}
    v_pk_fma_f32 {v(S2,2)}, {v(X+2,2)}, {v(X+2,2)}, {v(S2,2)}
    v_pk_fma_f32 {v(S3,2)}, {v(X+2,2)}, {v(WV,2)}, {v(S3,2)} op_sel:[0,1,0] op_sel_hi:[1,1,1]
    v_add_f32_dpp {v(S1)}, {v(S1)}, {v(S1)} row_ror:8 row_mask:0xf bank_mask:0x3
    v_pk_fma_f32 {v(S2,2)}, {v(X+4,2)}, {v(X+4,2)}, {v(S2,2)}
    v_pk_fma_f32 {v(S3,2)}, {v(X+4,2)}, {v(WV+2,2)}, {v(S3,2)} op_sel:[0,0,0] op_sel_hi:[1,0,1]
    v_add_f32_dpp {v(S1)}, {v(S1+1)}, {v(S1+1)} row_ror:8 row_mask:0xf bank_mask:0xc
    v_pk_fma_f32 {v(S2,2)}, {v(X+6,2)}, {v(X+6,2)}, {v(S2,2)}
    v_pk_fma_f32 {v(S3,2)}, {v(X+6,2)}, {v(WV+2,2)}, {v(S3,2)} op_sel:[0,1,0] op_sel_hi:[1,1,1]
    v_add_f32_dpp {v(S1)}, {v(S1)}, {v(S1)} row_half_mirror row_mask:0xf bank_mask:0x5
    v_add_f32_dpp {v(S2)}, {v(S2)}, {v(S2)} row_ror:8 row_mask:0xf bank_mask:0x3
    v_add_f32_dpp {v(S3)}, {v(S3)}, {v(S3)} row_ror:8 row_mask:0xf bank_mask:0x3
    v_add_f32_dpp {v(S2)}, {v(S2+1)}, {v(S2+1)} row_ror:8 row_mask:0xf bank_mask:0xc
    v_add_f32_dpp {v(S3)}, {v(S3+1)}, {v(S3+1)} row_ror:8 row_mask:0xf bank_mask:0xc
    v_add_f32_dpp {v(S1)}, {v(S2)}, {v(S2)} row_half_mirror row_mask:0xf bank_mask:0xa
    v_add_f32_dpp {v(S3)}, {v(S3)}, {v(S3)} row_half_mirror {DPP}
    v_add_f32_dpp {v(S1)}, {v(S1)}, {v(S1)} quad_perm:[1,0,3,2] {DPP}
    v_add_f32_dpp {v(S3)}, {v(S3)}, {v(S3)} quad_perm:[1,0,3,2] {DPP}
    v_add_f32_dpp {v(S1)}, {v(S1)}, {v(S1)} quad_perm:[2,3,0,1] {DPP}
    v_add_f32_dpp {v(S3)}, {v(S3)}, {v(S3)} quad_perm:[2,3,0,1] {DPP}
    s_mov_b64 exec, {s(sQmask,2)}
    ds_write2_b32 {v(vStW)}, {v(S1)}, {v(S3)} offset0:0 offset1:32
    s_mov_b64 exec, -1
    ;@F
    ''')
    if cfg.g2pos==4: a(f's_cmp_lg_u32 {s(sIt)}, 1\ns_cbranch_scc1 L_nw\ns_waitcnt vmcnt(0)\nL_nw:')
    a(f'''
    s_waitcnt lgkmcnt(0)
    s_barrier
    ;@F
    ds_read_b128 {v(t,4)}, {v(vStR)}
    ds_read_b128 {v(t+4,4)}, {v(vStR)} offset:16
    s_waitcnt lgkmcnt(0)
    v_pk_add_f32 {v(t,2)}, {v(t,2)}, {v(t+2,2)}
    v_pk_add_f32 {v(t+4,2)}, {v(t+4,2)}, {v(t+6,2)}
    v_pk_add_f32 {v(t,2)}, {v(t,2)}, {v(t+4,2)}
    v_add_f32 {v(t)}, {v(t)}, {v(t+1)}
    v_mul_f32 {v(t+7)}, {s(sK512)}, {v(t)}
    ''')
    VAR,RS,CC,NM=t+8,t+10,t+12,t+14
    K=t+16
    a(f'''
    v_mov_b32_dpp {v(MM)}, {v(t+7)} row_newbcast:0 {DPP}
    v_mov_b32_dpp {v(MM+1)}, {v(t+7)} row_newbcast:1 {DPP}
    v_mov_b32_dpp {v(S2)}, {v(t+7)} row_newbcast:2 {DPP}
    v_mov_b32_dpp {v(S2+1)}, {v(t+7)} row_newbcast:3 {DPP}
    v_mov_b32_dpp {v(S3)}, {v(t+7)} row_newbcast:4 {DPP}
    v_pk_fma_f32 {v(VAR,2)}, {v(MM,2)}, {v(MM,2)}, {v(S2,2)} neg_lo:[1,0,0] neg_hi:[1,0,0]
    v_mov_b32_dpp {v(S3+1)}, {v(t+7)} row_newbcast:5 {DPP}
    v_pk_add_f32 {v(S1,2)}, {v(VAR,2)}, {s(sEps,2)}
    s_cmp_eq_u32 {s(sIt)}, 0
    v_rsq_f32_e64 {v(RS)}, |{v(S1)}|
    v_rsq_f32_e64 {v(RS+1)}, |{v(S1+1)}|
    s_cbranch_scc1 L_z0 ;!nd
    v_pk_mul_f32 {v(S3,2)}, {v(S3,2)}, {v(RS,2)}
    v_add_u32 {v(K+2)}, 0xffffff00, {v(vInv)}
    v_ashrrev_i32 {v(K)}, 31, {v(S3)}
    v_ashrrev_i32 {v(K+1)}, 31, {v(S3+1)}
    v_bitop3_b32 {v(K)}, {v(S3)}, {v(K)}, {s(sTop)} bitop3:0x1e
    v_bitop3_b32 {v(K+1)}, {v(S3+1)}, {v(K+1)}, {s(sTop)} bitop3:0x1e
    v_bfi_b32 {v(K)}, {s(sM7FF)}, {v(vInv)}, {v(K)}
    v_bfi_b32 {v(K+1)}, {s(sM7FF)}, {v(K+2)}, {v(K+1)}
    v_max_u32 {v(K+1)}, {v(K)}, {v(K+1)}
    v_pk_add_f32 {v(CC,2)}, {v(RS,2)}, 1.0 op_sel_hi:[1,0]
    v_mov_b32 {v(K)}, {s(sTag)}
    v_max_u32_dpp {v(K+1)}, {v(K+1)}, {v(K+1)} row_bcast:15 row_mask:0xa bank_mask:0xf
    v_pk_mul_f32 {v(VAR,2)}, {v(VAR,2)}, {v(CC,2)}
    s_cmp_lg_u32 {s(sW)}, 0
    v_max_u32_dpp {v(K+1)}, {v(K+1)}, {v(K+1)} row_bcast:31 row_mask:0xc bank_mask:0xf
    s_cbranch_scc1 L_nost ;!nd
    s_mov_b32 exec_lo, 0
    s_mov_b32 exec_hi, {s(sTop)}
    s_cmp_eq_u32 {s(sFast)}, 0
    s_cbranch_scc1 L_tabst_slow ;!nd
    buffer_store_dwordx2 {v(K,2)}, off, {WS}, {s(sTabSt)}
    L_tabst_back:
    s_mov_b64 exec, -1
    L_nost:
    v_readlane_b32 {s(sKey)}, {v(K+1)}, 63
    v_pk_mul_f32 {v(NM,2)}, {v(MM,2)}, {v(RS,2)}
    v_pk_fma_f32 {v(VAR,2)}, {v(VAR,2)}, {v(CC,2)}, {s(sEps,2)}
    ''')
    Z=t+18
    for c_ in range(4):
        a(f'v_pk_fma_f32 {v(Z+2*c_,2)}, {v(X+2*c_,2)}, {v(RS,2)}, {v(NM,2)} neg_lo:[0,0,1] neg_hi:[0,0,1]')
        if c_==0: a(f'v_rsq_f32_e64 {v(RS2)}, |{v(VAR)}|')
        if c_==1: a(f'v_rsq_f32_e64 {v(RS2+1)}, |{v(VAR+1)}|')
    for c_ in range(4):
        a(f'v_pk_add_f32 {v(X+2*c_,2)}, {v(X+2*c_,2)}, {v(Z+2*c_,2)}')
    for rho in (0,1):
        for k in (0,1):
            a(f'v_cvt_pk_bf16_f32 {v(LNP+2*rho+k)}, {v(Z+4*k+rho)}, {v(Z+4*k+2+rho)}')
    a(f'''
    ''')
    if cfg.pub0: a(f'''
    s_bitcmp0_b32 {s(sKey)}, 8
    s_cselect_b64 vcc, -1, 0
    s_andn2_b32 {s(sT+1)}, 0x600, {s(sKey)}
    s_lshr_b32 {s(sT+1)}, {s(sT+1)}, 5
    v_and_b32 {v(K)}, 0x3ff, {v(vXoff)}
    v_cndmask_b32 {v(LNP)}, {v(LNP)}, {v(LNP+2)}, vcc
    v_cndmask_b32 {v(LNP+1)}, {v(LNP+1)}, {v(LNP+3)}, vcc
    s_bfm_b64 exec, 16, {s(sT+1)}
    ds_write_b64 {v(K)}, {v(LNP,2)} offset:{L_ROW}
    s_mov_b64 exec, -1
    ''')
    a(f'''
    s_cmp_eq_u32 {s(sIt)}, 2
    s_cbranch_scc1 L_tab2e ;!nd
    v_mov_b32 {v(RS)}, {v(RS2)}
    v_mov_b32 {v(RS+1)}, {v(RS2+1)}
    L_z0:
    v_pk_mul_f32 {v(CC,2)}, {v(RS,2)}, {s(sC16,2)}
    L_z:
    ;@F
    ''')
    ZP=t; D0=t+4; D1=t+8
    a(f'v_pk_mul_f32 {v(NM,2)}, {v(MM,2)}, {v(CC,2)}')
    for c_ in range(4):
        a(f'v_pk_fma_f32 {v(Z+2*c_,2)}, {v(X+2*c_,2)}, {v(CC,2)}, {v(NM,2)} neg_lo:[0,0,1] neg_hi:[0,0,1]')
    for c_ in range(4): a(f'v_cvt_pk_f16_f32 {v(ZP+c_)}, {v(Z+2*c_)}, {v(Z+2*c_+1)}')
    a(f'''
    v_mfma_f32_16x16x16_f16 {v(D0,4)}, {v(A8,2)}, {v(ZP,2)}, 0
    v_mfma_f32_16x16x16_f16 {v(D1,4)}, {v(A8,2)}, {v(ZP+2,2)}, 0
    s_nop 6
    v_cvt_pk_f16_f32 {v(ZP)}, {v(D0)}, {v(D0+1)}
    v_cvt_pk_f16_f32 {v(ZP+1)}, {v(D1)}, {v(D1+1)}
    v_cvt_pk_f16_f32 {v(ZP+2)}, {v(D0+2)}, {v(D0+3)}
    v_cvt_pk_f16_f32 {v(ZP+3)}, {v(D1+2)}, {v(D1+3)}
    ds_write_b64 {v(vUW)}, {v(ZP,2)}
    ds_write_b64 {v(vUW)}, {v(ZP+2,2)} offset:1024
    ;@F
    s_waitcnt lgkmcnt(0)
    s_barrier
    ;@F
    ds_read_b64_tr_b16 {v(t,2)}, {v(vUR)}
    ds_read_b64_tr_b16 {v(t+2,2)}, {v(vUR)} offset:512
    ds_read_b64_tr_b16 {v(t+4,2)}, {v(vUR)} offset:1024
    ds_read_b64_tr_b16 {v(t+6,2)}, {v(vUR)} offset:1536
    s_cmp_ge_u32 {s(sW)}, {s(sIt)}
    s_cbranch_scc1 L_tg1 ;!nd
    buffer_load_dwordx2 {v(t+24,2)}, {v(vL8)}, {WS}, {s(sTabLd)} offen sc1
    {f'ds_read_b128 {v(LNP,4)}, {v(vTG)} offset:{L_ROW}' if cfg.pub0 else ''}
    L_tg1:
    L_tg2:
    s_waitcnt lgkmcnt(0)
    ;@F
    ''')
    P=t
    fft_core(t, t+4, t+8, t+16, t+8, P)
    def lstores(fl, ph=None):
        for r in range(4):
            if ph==0: a(f'v_and_b32 {v(P+r)}, -2, {v(P+r)}')
            if ph==1: a(f'v_or_b32 {v(P+r)}, 1, {v(P+r)}')
            a(f'buffer_store_dword {v(P+r)}, {v(vLst)}, {WS}, {s(sLst)} offen offset:{128*r} {fl}')
    TB=t+24
    xfs=f'''s_cmp_lg_u32 {s(sT+12)}, 0
    s_cbranch_scc1 L_noxf
    s_lshl_b32 {s(sT+12)}, {s(sX)}, 7
    s_add_u32 {s(sT+12)}, {s(sT+12)}, {TABG}
    v_lshrrev_b32 {v(t+8)}, 1, {v(vL8)}
    v_mov_b32 {v(t+9)}, {s(sTag)}
    s_mov_b32 exec_hi, 0
    buffer_store_dword {v(t+9)}, {v(t+8)}, {WS}, {s(sT+12)} offen sc1
    s_mov_b64 exec, -1
    L_noxf:'''
    W_=t+4
    a(f'''
    s_cmp_lg_u32 {s(sIt)}, 0
    s_cbranch_scc1 L_tab1e
    ''')
    lstores('nt' if cfg.lnt&1 else '',0)
    stamp()
    a(f'''
    s_branch {'L_flag0' if cfg.pub0 else 'L_pub'}
    L_tab1e:
    s_cmp_eq_u32 {s(sW)}, 0
    s_cbranch_scc1 L_tabw1
    s_branch L_tabbar
    L_tab2e:
    s_cmp_eq_u32 {s(sW)}, 0
    {'s_waitcnt lgkmcnt(0)' if cfg.pub0 else ''}
    {'s_barrier' if cfg.pub0 else ''}
    s_cbranch_scc0 L_tabbar
    {f'ds_read_b128 {v(LNP,4)}, {v(vTG)} offset:{L_ROW}' if cfg.pub0 else ''}
    s_branch L_tab
    L_tab:
    buffer_load_dwordx2 {v(TB,2)}, {v(vL8)}, {WS}, {s(sTabLd)} offen sc1
    L_tabw1:
    s_waitcnt vmcnt(0)
    v_cmp_ne_u32 vcc, {s(sTag)}, {v(TB)}
    ''')
    poll_branch('L_tab', cfg.slp_t, f'''s_cmp_lg_u32 {s(sIt)}, 0
        s_cselect_b32 {s(sT)}, 0, 1
        s_sub_u32 {s(sTry)}, {s(sTry)}, {s(sT)}
        s_cbranch_scc1 L_tab2''')
    a(f'''
    L_tabok:
    v_cmp_ne_u32 vcc, {s(sKey)}, {v(TB+1)}
    v_cmp_lt_u32 {s(sT,2)}, {s(sKey)}, {v(TB+1)}
    v_mov_b32 {v(TB)}, {L_FLAG}
    s_cmp_eq_u32 {s(sIt)}, 0
    s_cselect_b32 {s(sT)}, vcc_lo, {s(sT)}
    ''')
    if cfg.pub0: a(f'''
    s_cselect_b32 {s(sT+1)}, 1, {s(sT)}
    s_cmp_lg_u32 {s(sT+1)}, 0
    s_cbranch_scc1 L_np0 ;!nd
    v_mov_b32 {v(TB+1)}, {s(sKey)}
    s_waitcnt lgkmcnt(0)
    buffer_store_dwordx4 {v(LNP,4)}, {v(vTG)}, {WS}, {s(sSlot)} offen sc1
    s_mov_b64 exec, 1
    buffer_store_dword {v(TB+1)}, off, {WS}, {s(sSlot)} offset:3072 sc1
    s_mov_b64 exec, -1
    L_np0:
    ''')
    a(f'''
    v_mov_b32 {v(TB+1)}, {s(sT)}
    ds_write_b32 {v(TB)}, {v(TB+1)}
    s_waitcnt lgkmcnt(0)
    s_barrier
    s_branch L_tabgot
    L_tabbar:
    v_mov_b32 {v(TB)}, {L_FLAG}
    {'s_waitcnt vmcnt(0)' if cfg.g2pos==6 else ''}
    s_barrier
    ds_read_b64 {v(TB,2)}, {v(TB)}
    s_waitcnt lgkmcnt(0)
    v_readfirstlane_b32 {s(sT)}, {v(TB)}
    {f'v_readfirstlane_b32 {s(sTag)}, {v(TB+1)}' if cfg.ep0 else ''}
    L_tabgot:
    s_cmp_eq_u32 {s(sIt)}, 0
    s_cbranch_scc1 L_fastchk ;!nd
    s_mov_b32 {s(sT+9)}, 64
    s_cmp_lg_u32 {s(sT)}, 0
    s_cbranch_scc1 L_winback ;!nd
    L_pub:
    s_andn2_b32 {s(sT)}, {s(sM7FF)}, {s(sKey)}      ; idx
    s_lshr_b32 {s(sT+9)}, {s(sT)}, 8                ; s1
    s_bitcmp1_b32 {s(sT+9)}, 0
    s_cselect_b64 vcc, -1, 0
    s_lshl_b32 {s(sT+1)}, {s(sT+9)}, 3
    s_and_b32 {s(sT+1)}, {s(sT+1)}, 0x30
    {f'v_cndmask_b32 {v(W_)}, {v(LNP)}, {v(LNP+2)}, vcc' if not cfg.pub0 else ''}
    {f'v_cndmask_b32 {v(W_+1)}, {v(LNP+1)}, {v(LNP+3)}, vcc' if not cfg.pub0 else ''}
    v_and_b32 {v(W_+2)}, 0x3ff, {v(vXoff)}
    s_bfm_b64 exec, 16, {s(sT+1)}
    {f'buffer_store_dwordx2 {v(W_,2)}, {v(W_+2)}, {WS}, {s(sSlot)} offen sc1' if not cfg.pub0 else ''}
    s_cmp_lg_u32 {s(sW)}, 0
    s_cbranch_scc1 L_nohdr
    v_mov_b32 {v(W_+8)}, {s(sKey)}
    v_cndmask_b32 {v(W_+9)}, {v(MM)}, {v(MM+1)}, vcc
    v_cndmask_b32 {v(W_+10)}, {v(RS2)}, {v(RS2+1)}, vcc
    v_mov_b32 {v(W_+11)}, {s(sKey)}
    {f'buffer_store_dwordx4 {v(W_+8,4)}, off, {WS}, {s(sSlot)} offset:3072 sc1' if not cfg.pub0 else ''}
    buffer_store_dwordx4 {v(W_+8,4)}, off, {WS}, {s(sSlot)} offset:3200 sc1
    L_nohdr:
    ''')
    for c_ in range(4): a(f'v_cndmask_b32 {v(W_+4+c_)}, {v(X+2*c_)}, {v(X+2*c_+1)}, vcc')
    a(f'''
    v_lshlrev_b32 {v(W_+2)}, 1, {v(W_+2)}
    buffer_store_dwordx4 {v(W_+4,4)}, {v(W_+2)}, {WS}, {s(sSlot)} offen offset:1024 sc1
    s_mov_b64 exec, -1
    s_cmp_eq_u32 {s(sIt)}, 0
    s_cbranch_scc1 L_flag0
    L_winback:
    s_cmp_eq_u32 {s(sIt)}, 2
    s_cbranch_scc1 L_fin
    s_add_u32 {s(sSlot)}, {s(sSlot)}, {SLOTR}
    ''')
    lstores('nt' if cfg.lnt&2 else '',1)
    stamp()
    a(f'''
    {'s_waitcnt vmcnt(0)' if not cfg.nw&2 else f's_sleep {cfg.dl}' if cfg.dl else ''}
    s_branch L_tabdone
    L_flag0:
    ;@F
    s_mov_b32 {s(sFast)}, 1
    s_mov_b32 {s(sPh)}, 0
    s_mov_b32 {s(sNx)}, 0
    s_mov_b32 {s(sKey)}, {s(sXcc)}
    s_mov_b32 {s(sSlot)}, {WSSZ}
    s_xor_b32 {s(sT+12)}, {s(sJ)}, 9
    s_or_b32 {s(sT+12)}, {s(sT+12)}, {s(sW)}
    s_mov_b32 {s(sTry)}, 64
    s_lshl_b32 {s(sT)}, {s(sJ)}, 3
    s_add_u32 {s(sTabSt)}, {s(sTabLd)}, {s(sT)}
    {f'v_mov_b32 {v(t+22)}, {s(sTag)}' if not cfg.ep0 else ''}
    v_mov_b32 {v(t+23)}, {s(sKey)}
    ''')
    if cfg.ypos==1: y_setup(t+4)
    a(f'''
    s_waitcnt vmcnt(0)
    {f'v_add_u32 {v(t+22)}, 1, {v(BC+12)}' if cfg.ep0 else ''}
    ;@F
    s_cmp_eq_u32 {s(sW)}, 0
    s_barrier
    s_cbranch_scc0 L_flag1
    s_mov_b64 exec, 1
    buffer_store_dwordx2 {v(t+22,2)}, off, {WS}, {s(sTabSt)}
    s_mov_b64 exec, -1
    {f'v_mov_b32 {v(t+21)}, {L_FLAG}' if cfg.ep0 else ''}
    {f'ds_write_b32 {v(t+21)}, {v(t+22)} offset:4' if cfg.ep0 else ''}
    {f'v_readfirstlane_b32 {s(sTag)}, {v(t+22)}' if cfg.ep0 else ''}
    L_flag1:
    v_lshlrev_b32 {v(vTG)}, 4, {v(vLane)}
    ''')
    if cfg.ypos==0: y_setup(t+4)
    if cfg.xpos==0: xin_consts(t+4)
    if cfg.wpos==0: w_setup()
    a(f'''
    s_cmp_eq_u32 {s(sW)}, 0
    s_cbranch_scc1 L_tab
    s_branch L_tabbar
    L_fastchk:
    s_cmp_eq_u32 {s(sT)}, 0
    s_cselect_b32 {s(sFast)}, 1, 0
    L_tabdone:
    s_cmp_eq_u32 {s(sFast)}, 0
    s_cbranch_scc1 L_slow
    L_slowback:
    ;@F
    {xfs if cfg.xe else ''}
    s_cmp_lt_u32 {s(sJ)}, 8
    s_cbranch_scc0 L_y
    s_branch L_yself
    L_y:
    buffer_load_dwordx4 {v(t,4)}, {v(vLld)}, {WS}, {s(sLld)} offen sc1
    s_waitcnt vmcnt(0)
    ds_write_b128 {v(vYIW)}, {v(t,4)}
    ''')
    phchk(range(t,t+4), t+8)
    poll_branch('L_y', cfg.slp_l, mask=True)
    a('L_yjoin:')
    stamp()
    a(f'''
    {xfs if not cfg.xe else ''}
    s_cmp_eq_u32 {s(sIt)}, 0
    s_cbranch_scc1 L_nohl
    v_and_b32 {v(BC)}, 7, {v(vLane)}
    v_lshlrev_b32 {v(BC)}, 12, {v(BC)}
    s_mov_b32 {s(sT+10)}, {SLOT}
    s_mov_b64 exec, 0xff
    buffer_load_dwordx4 {v(LNP,4)}, {v(BC)}, {WS}, {s(sT+10)} offen offset:3200 sc1
    s_mov_b64 exec, -1
    L_nohl:
    ''')
    A0,A1=t,t+4; P0,Q0,P1,Q1=t+8,t+12,t+16,t+20
    a(f'''
    s_waitcnt lgkmcnt(0)
    s_barrier
    ;@F
    ds_read_b64_tr_b16 {v(A0,2)}, {v(vYIR)}
    ds_read_b64_tr_b16 {v(A0+2,2)}, {v(vYIR)} offset:{16*YIS}
    ''')
    if cfg.g2pos==6: a(f'''
    s_mul_i32 {s(sT)}, {s(sT+12)}, {s(sIt)}
    s_cmp_lt_u32 {s(sT)}, {TABG}
    s_cbranch_scc1 L_nox2 ;!nd
    v_lshrrev_b32 {v(t+24)}, 1, {v(vL8)}
    v_mov_b32 {v(t+25)}, {s(sTag)}
    s_mov_b32 exec_hi, 0
    buffer_store_dword {v(t+25)}, {v(t+24)}, {WS}, {s(sT)} offen offset:1024 sc1
    s_mov_b64 exec, -1
    L_nox2:
    ''')
    a(f'''
    s_add_u32 {s(sTabLd)}, {s(sTabLd)}, {ARGR}
    s_add_u32 {s(sTabSt)}, {s(sTabSt)}, {ARGR}
    s_cmp_eq_u32 {s(sX)}, 0
    s_cbranch_scc1 L_y0 ;!nd
    s_waitcnt lgkmcnt(0)
    v_mfma_f32_16x16x32_f16 {v(P0,4)}, {v(A0,4)}, {v(YC,4)}, 0
    v_mfma_f32_16x16x32_f16 {v(Q0,4)}, {v(A0,4)}, {v(YS,4)}, 0
    v_pk_add_f32 {v(P0,2)}, {v(P0,2)}, {v(Q0,2)} op_sel:[0,1] op_sel_hi:[1,0] neg_hi:[0,1]
    v_pk_add_f32 {v(P0+2,2)}, {v(P0+2,2)}, {v(Q0+2,2)} op_sel:[0,1] op_sel_hi:[1,0] neg_hi:[0,1]
    L_y0b:
    v_cvt_pk_f16_f32 {v(t)}, {v(P0)}, {v(P0+1)}
    v_cvt_pk_f16_f32 {v(t+1)}, {v(P0+2)}, {v(P0+3)}
    ds_write_b64 {v(vYW)}, {v(t,2)}
    ;@F
    s_waitcnt lgkmcnt(0)
    s_barrier
    ;@F
    ds_read_b128 {v(t+4,4)}, {v(vYR)}
    s_cmp_lg_u32 {s(sIt)}, 0
    s_cbranch_scc1 L_hdr
    ''')
    xfl=f'''v_and_b32 {v(t+24)}, 7, {v(vLane)}
    v_lshlrev_b32 {v(t+24)}, 7, {v(t+24)}
    s_mov_b32 {s(sT+10)}, {TABG}
    v_mov_b32 {v(t+20)}, {s(sTag)}
    {f's_cmp_lg_u32 {s(sW)}, 0' if cfg.xw else ''}
    {'s_cbranch_scc1 L_nxl' if cfg.xw else ''}
    s_mov_b64 exec, 0xff
    buffer_load_dword {v(t+20)}, {v(t+24)}, {WS}, {s(sT+10)} offen sc1
    s_mov_b64 exec, -1
    L_nxl:'''
    if cfg.gw in (1,2): a(xfl)
    a(f'''
    s_waitcnt lgkmcnt(0)
    buffer_store_dwordx4 {v(t+4,4)}, {v(vGst)}, {WS}, {s(sG0)} offen sc1
    ''')
    stamp()
    a(f'''
    {xfl if cfg.gw==3 else ''}
    {g2late() if cfg.g2pos==3 else ''}
    {f's_sleep {cfg.dx}' if cfg.dx else ''}
    {xfl if not cfg.gw else ''}
    ''')
    if cfg.xpos==1: xin_consts(t+8)
    if cfg.wpos==1: w_setup()
    if cfg.g2pos==6: a('\n'.join(f'v_mov_b32 {v(BC+8+k)}, -1' for k in range(4))+f'\ns_mov_b32 {s(sT+14)}, {GBASE+GR}')
    if cfg.gw: a(f's_waitcnt vmcnt({[0,2,1,1][cfg.gw]})\ns_branch L_tg0c')
    a('L_tg0w:\ns_waitcnt vmcnt(0)\nL_tg0c:\n;@F')
    a(f'v_cmp_ne_u32 vcc, {s(sTag)}, {v(t+20)}')
    a(f'''
    s_cbranch_vccnz L_tg0_r ;!nd
    ''')
    if cfg.g2pos==4: a(f'''
    buffer_load_dwordx4 {v(t,4)}, {v(vGld)}, {WS}, {s(sG0)} offen sc1
    buffer_load_dwordx4 {v(t+4,4)}, {v(vGld)}, {WS}, {s(sG4)} offen sc1
    {g2late()}
    s_cmp_lg_u32 {s(sMir)}, 0
    s_waitcnt vmcnt(1)
    s_branch L_gw2
    ''')
    else: a(('s_barrier\n' if cfg.xw else '')+(f's_sleep {cfg.dg}\n' if cfg.dg else '')+'s_branch L_g')
    a(f'''
    L_g:
    ''')
    C0,C1=t,t+4
    a(f'''
    buffer_load_dwordx4 {v(C0,4)}, {v(vGld)}, {WS}, {s(sG0)} offen sc1
    buffer_load_dwordx4 {v(C1,4)}, {v(vGld)}, {WS}, {s(sG4)} offen sc1
    L_gw:
    s_cmp_lg_u32 {s(sMir)}, 0
    s_waitcnt vmcnt(0)
    L_gw2:
    s_cbranch_scc1 L_xmir ;!nd
    ''')
    E0,E1=t+8,t+12
    a(f'''
    v_mfma_f32_16x16x16_f16 {v(E0,4)}, {v(XA,2)}, {v(C0,2)}, 0
    v_mfma_f32_16x16x16_f16 {v(E1,4)}, {v(XA,2)}, {v(C0+2,2)}, 0
    v_mfma_f32_16x16x16_f16 {v(E0,4)}, {v(XA+2,2)}, {v(C1,2)}, {v(E0,4)}
    v_mfma_f32_16x16x16_f16 {v(E1,4)}, {v(XA+2,2)}, {v(C1+2,2)}, {v(E1,4)}
    s_branch L_xjoin ;!nd
    L_xmir:
    ''')
    a.hist=[]
    a(f'''
    v_mfma_f32_16x16x16_f16 {v(E0,4)}, {v(XA,2)}, {v(C0+2,2)}, 0
    v_mfma_f32_16x16x16_f16 {v(E1,4)}, {v(XA,2)}, {v(C0,2)}, 0
    v_mfma_f32_16x16x16_f16 {v(E0,4)}, {v(XA+2,2)}, {v(C1+2,2)}, {v(E0,4)}
    v_mfma_f32_16x16x16_f16 {v(E1,4)}, {v(XA+2,2)}, {v(C1,2)}, {v(E1,4)}
    L_xjoin:
    ''')
    if cfg.gre: phchk(range(t,t+8), t+16)
    else: maxchk(range(t,t+8), t+16)
    poll_branch('L_g', cfg.slp_g, mask=True)
    stamp()
    a(f'''
    ''')
    if cfg.g2pos==6: a(f'''
    s_cmp_lg_u32 {s(sIt)}, 0
    s_cbranch_scc1 L_ng6 ;!nd
    buffer_store_dwordx4 {v(BC+8,4)}, {v(vGst)}, {WS}, {s(sT+14)} offen sc1
    L_ng6:
    ''')
    a(f'''
    s_mov_b32 {s(sIt)}, 1
    s_mov_b32 {s(sPh)}, -1
    {f's_add_u32 {s(sG0)}, {s(sG0)}, {GR}' if not cfg.gre else ''}
    {f's_add_u32 {s(sG4)}, {s(sG4)}, {GR}' if not cfg.gre else ''}
    L_apply:
    s_cmp_eq_u32 {s(sNx)}, 0
    v_pk_fma_f32 {v(X,2)}, {v(E0,2)}, {v(vSc0,2)}, {v(X,2)}
    v_pk_fma_f32 {v(X+2,2)}, {v(E0+2,2)}, {s(sSc,2)}, {v(X+2,2)}
    v_pk_fma_f32 {v(X+4,2)}, {v(E1,2)}, {s(sSc,2)}, {v(X+4,2)}
    v_pk_fma_f32 {v(X+6,2)}, {v(E1+2,2)}, {s(sSc,2)}, {v(X+6,2)}
    s_cbranch_scc1 L_top ;!nd
    s_branch L_corr
    ''')
    a(f'''
    L_y0:
    s_waitcnt lgkmcnt(0)
    v_mfma_f32_16x16x32_f16 {v(P0,4)}, {v(A0,4)}, {v(YC,4)}, 0
    v_xor_b32 {v(A1)}, {s(sTop)}, {v(A0)}
    v_xor_b32 {v(A1+1)}, {s(sTop)}, {v(A0+1)}
    v_mfma_f32_16x16x32_f16 {v(Q0,4)}, {v(A0,4)}, {v(YS,4)}, 0
    v_xor_b32 {v(A1+2)}, {s(sTop)}, {v(A0+2)}
    v_xor_b32 {v(A1+3)}, {s(sTop)}, {v(A0+3)}
    v_mfma_f32_16x16x32_f16 {v(P1,4)}, {v(A1,4)}, {v(YC,4)}, 0
    v_mfma_f32_16x16x32_f16 {v(Q1,4)}, {v(A1,4)}, {v(YS,4)}, 0
    v_add_f32 {v(P0)}, {v(P0)}, {v(Q0+1)}
    v_add_f32 {v(P0+2)}, {v(P0+2)}, {v(Q0+3)}
    v_add_f32 {v(P0+1)}, {v(P1)}, {v(Q1+1)}
    v_add_f32 {v(P0+3)}, {v(P1+2)}, {v(Q1+3)}
    s_branch L_y0b
    ''')
    a(f'''
    L_yself:
    buffer_load_dwordx4 {v(t,4)}, {v(vLld)}, {WS}, {s(sLld)} offen sc1
    buffer_load_dwordx4 {v(t+4,4)}, {v(vLldM)}, {WS}, {s(sLld)} offen sc1
    s_waitcnt vmcnt(0)
    ''')
    phchk(range(t,t+8), t+8)
    poll_branch('L_yself', cfg.slp_l, mask=True)
    a(f'''
    s_bitcmp1_b32 {s(sW)}, 0
    s_cbranch_scc1 L_yself4
    ''')
    for k in range(4): a(f'v_pk_add_f16 {v(t+k)}, {v(t+k)}, {v(t+7-k)} neg_hi:[0,1]')
    a(f'ds_write_b128 {v(vYIW)}, {v(t,4)}\ns_branch L_yjoin\nL_yself4:')
    for k in range(4): a(f'v_pk_add_f16 {v(t+k)}, {v(t+k)}, {v(t+7-k)} op_sel:[1,1] op_sel_hi:[0,0] neg_hi:[1,0]')
    a(f'ds_write_b128 {v(vYIW)}, {v(t,4)}\ns_branch L_yjoin')
    H=LNP
    sIdx=sT+11
    KA=BC+6; EK=BC+8; vYP=BC+9; SEL=BC+10; vDW,vDR=BC+12,BC+13
    YR=t+8; YL=t+12; YD=t+20
    gl=f'buffer_load_dwordx4 {v(C0,4)}, {v(vGld)}, {WS}, {s(sG0)} offen sc1\nbuffer_load_dwordx4 {v(C1,4)}, {v(vGld)}, {WS}, {s(sG4)} offen sc1'
    def hdrpoll(lbl, slp, issued=False, after=''):
        if not issued: a(f"""
        v_and_b32 {v(BC)}, 7, {v(vLane)}
        v_lshlrev_b32 {v(BC)}, 12, {v(BC)}
        """)
        a(f"""
        s_mov_b64 exec, 0xff
        {f's_waitcnt vmcnt({0 if cfg.gre else 1})' if issued else ''}
        {f's_branch {lbl}_c' if issued else ''}
        {lbl}:
        buffer_load_dwordx4 {v(H,4)}, {v(BC)}, {WS}, {s(sT+10)} offen offset:3200 sc1
        s_waitcnt vmcnt(0)
        {lbl}_c:
        """)
        maxchk(range(H,H+4), t+17)
        poll_branch(lbl, slp, skip=True)
        a('s_mov_b64 exec, -1')
        if after: a(after); stamp()
        a(f"""
        v_max_u32_dpp {v(H+3)}, {v(H)}, {v(H)} row_half_mirror {DPP}
        v_max_u32_dpp {v(H+3)}, {v(H+3)}, {v(H+3)} quad_perm:[1,0,3,2] {DPP}
        v_max_u32_dpp {v(H+3)}, {v(H+3)}, {v(H+3)} quad_perm:[2,3,0,1] {DPP}
        v_readfirstlane_b32 {s(sIdx)}, {v(H+3)}
        """)
    def owner():
        a(f"""
        s_sub_u32 {s(sT)}, 2047, {s(sIdx)}
        s_add_u32 {s(sT+1)}, {s(sT)}, 256
        v_cmp_eq_u32 vcc, {s(sT)}, {v(vInv)}
        v_cmp_eq_u32 {s(sT+2,2)}, {s(sT+1)}, {v(vInv)}
        v_cndmask_b32 {v(BC)}, 0, 1.0, vcc
        v_cndmask_b32 {v(BC+1)}, 0, 1.0, {s(sT+2,2)}
        """)
    gst=f's_waitcnt lgkmcnt(0)\nbuffer_store_dwordx4 {v(t+4,4)}, {v(vGst)}, {WS}, {s(sG0)} offen sc1'
    a(f'L_hdr:')
    if not cfg.gre: a(gst); stamp()
    hdrpoll('L_hdrp', 2, True, gst if cfg.gre else '')
    a(f"""
    v_and_b32 {v(vYP)}, 0x3ff, {v(vXoff)}
    v_lshlrev_b32 {v(t+16)}, 1, {v(vYP)}
    s_andn2_b32 {s(sIdx)}, {s(sM7FF)}, {s(sIdx)}
    s_and_b32 {s(sT)}, {s(sIdx)}, 15
    s_sub_u32 {s(sT+1)}, 16, {s(sT)}
    s_min_u32 {s(sT)}, {s(sT)}, {s(sT+1)}
    s_and_b32 {s(sT)}, {s(sT)}, 7
    s_lshl_b32 {s(sT+1)}, {s(sT)}, 12
    s_add_u32 {s(sT+10)}, {s(sT+10)}, {s(sT+1)}
    buffer_load_dwordx4 {v(BC+2,4)}, {v(t+16)}, {WS}, {s(sT+10)} offen offset:1024 sc1
    """)
    if cfg.g2pos==6: a(f"""
    s_cmp_lg_u32 {s(sW)}, 0
    s_cbranch_scc1 L_nx2l ;!nd
    v_and_b32 {v(t+24)}, 7, {v(vLane)}
    v_lshlrev_b32 {v(t+24)}, 7, {v(t+24)}
    s_movk_i32 {s(sT+1)}, {TABG+1024}
    s_mov_b64 exec, 0xff
    buffer_load_dword {v(t+25)}, {v(t+24)}, {WS}, {s(sT+1)} offen sc1
    s_mov_b64 exec, -1
    L_nx2l:
    """)
    a(f"""
    v_readlane_b32 {s(sT+13)}, {v(H+1)}, {s(sT)}
    v_readlane_b32 {s(sT+14)}, {v(H+2)}, {s(sT)}
    v_mul_u32_u24 {v(t+17)}, {s(sIdx)}, {v(AD)}
    v_and_b32 {v(t+17)}, 0x7ff, {v(t+17)}
    v_cvt_f32_u32 {v(t+17)}, {v(t+17)}
    v_mul_f32 {v(t+17)}, {fbits(1/2048)}, {v(t+17)}
    v_cos_f32 {v(t+18)}, {v(t+17)}
    v_sin_f32 {v(t+19)}, {v(t+17)}
    v_and_b32 {v(t+17)}, 0x22, {v(vLane)}
    v_cvt_pk_f16_f32 {v(t+18)}, {v(t+18)}, {v(t+19)}
    s_and_b32 {s(sT+1)}, {s(sMP)}, {s(sTop)}
    v_xor_b32 {v(t+18)}, {s(sT+1)}, {v(t+18)}
    v_cmp_eq_u32 vcc, 0, {v(t+17)}
    v_mov_b32 {v(KA)}, {s(sT+14)}
    v_mul_f32 {v(KA)}, {s(sC16)}, {v(KA)}
    v_cndmask_b32 {v(AD)}, 0, {v(t+18)}, vcc
    v_cmp_eq_u32 vcc, 2, {v(t+17)}
    v_mul_f32 {v(EK)}, {v(KA)}, {v(KA)}
    v_mul_f32 {v(EK)}, {s(sEps)}, {v(EK)}
    v_cndmask_b32 {v(AD+1)}, 0, {v(t+18)}, vcc
    """)
    owner()
    a(f"""
    v_lshlrev_b32 {v(t+17)}, 4, {v(vLane)}
    v_mov_b32 {v(t+18)}, 0x3f80
    v_and_b32 {v(t+17)}, 16, {v(t+17)}
    v_lshlrev_b32 {v(t+18)}, {v(t+17)}, {v(t+18)}
    v_and_b32 {v(t+17)}, 2, {v(vLane)}
    v_cmp_eq_u32 vcc, 0, {v(t+17)}
    v_lshl_add_u32 {v(vYP)}, {v(vQ)}, 10, {v(vYP)}
    s_lshl_b32 {s(sT+3)}, {s(sW)}, 8
    v_cndmask_b32 {v(SEL)}, 0, {v(t+18)}, vcc
    v_cndmask_b32 {v(SEL+1)}, {v(t+18)}, 0, vcc
    s_add_u32 {s(sT+3)}, {s(sT+3)}, {L_DH}
    v_lshl_add_u32 {v(vDR)}, {v(vN)}, 4, {s(sT+3)}
    v_and_b32 {v(t+17)}, 1, {v(vQ)}
    v_lshl_add_u32 {v(vDR)}, {v(t+17)}, 11, {v(vDR)}
    v_cmp_eq_u32 vcc, 0, {v(vQ)}
    v_add_u32 {v(vDW)}, {L_DH}, {v(vLst)}
    s_mov_b32 {s(sYo)}, {YP}
    s_lshl_b32 {s(sYh)}, {s(sX)}, 7
    s_add_u32 {s(sYh)}, {s(sYh)}, {YHINT}
    s_lshl_b32 {s(sSg)}, {s(sW)}, 30
    s_and_b32 {s(sSg)}, {s(sSg)}, {s(sTop)}
    s_xor_b32 {s(sSg)}, {s(sSg)}, {s(sDsc)}
    s_mov_b32 {s(sNx)}, 2
    v_cndmask_b32 {v(KA+1)}, 0, {v(KA)}, vcc
    s_waitcnt vmcnt(0)
    {gl if not cfg.hold else ''}
    L_basew:
    """)
    maxchk(range(BC+2,BC+6), t+17)
    a('s_cbranch_vccnz L_base_r ;!nd')
    for k in range(4): a(f'v_subrev_f32 {v(BC+2+k)}, {s(sT+13)}, {v(BC+2+k)}')
    for k in range(4): a(f'v_mul_f32 {v(BC+2+k)}, {v(KA)}, {v(BC+2+k)}')
    a(f"""
    s_branch {'L_ywait' if cfg.hold else 'L_gw'}
    L_corr:
    s_mov_b32 {s(sIt)}, 2
    s_mov_b32 {s(sNx)}, 0
    {'s_branch L_yc' if cfg.hold else ''}
    L_ywait:
    s_add_u32 {s(sT+2)}, {s(sYo)}, 4096
    s_cmp_lg_u32 {s(sW)}, 0
    s_cbranch_scc1 L_hintb
    """)
    if cfg.g2pos==6:
        a(f"""
        s_cmp_eq_u32 {s(sIt)}, 3
        s_cbranch_scc1 L_x2d
        v_and_b32 {v(t)}, 7, {v(vLane)}
        v_lshlrev_b32 {v(t)}, 7, {v(t)}
        s_movk_i32 {s(sT)}, {TABG+1024}
        s_branch L_x2c
        L_x2:
        s_mov_b64 exec, 0xff
        buffer_load_dword {v(t+25)}, {v(t)}, {WS}, {s(sT)} offen sc1
        s_waitcnt vmcnt(0)
        L_x2c:
        s_mov_b64 exec, 0xff
        v_cmp_ne_u32 vcc, {s(sTag)}, {v(t+25)}
        s_mov_b64 exec, -1
        """)
        poll_branch('L_x2', 2)
        a('L_x2d:')
    a(f"""
    s_movk_i32 {s(sTry)}, 500
    v_lshrrev_b32 {v(t)}, 1, {v(vL8)}
    """)
    if cfg.own: a(f"""
    s_cmp_eq_u32 {s(sIt)}, 3
    s_cbranch_scc1 L_hint
    s_lshl_b32 {s(sT)}, {s(sJ)}, 2
    v_mov_b32 {v(t)}, {s(sT)}
    """)
    a(f"""
    L_hint:
    buffer_load_dword {v(t+1)}, {v(t)}, {WS}, {s(sYh)} offen sc1
    s_waitcnt vmcnt(0)
    v_cmp_ne_u32 vcc, {s(sTag)}, {v(t+1)}
    """)
    poll_branch('L_hint', 1, giveup='L_hintb')
    if cfg.tim_y: a(f's_sleep {cfg.tim_y}')
    a(f"""
    L_hintb:
    s_barrier
    """)
    if cfg.hold: a(f"""
    s_cmp_eq_u32 {s(sIt)}, 3
    s_cbranch_scc1 L_yv3
    {gl}
    {f's_sleep {cfg.tim_gy}' if cfg.tim_gy else ''}
    buffer_load_dwordx2 {v(YD,2)}, {v(vYP)}, {WS}, {s(sYo)} offen sc1
    buffer_load_dwordx2 {v(YD+2,2)}, {v(vYP)}, {WS}, {s(sT+2)} offen sc1
    s_cmp_lg_u32 {s(sMir)}, 0
    s_waitcnt vmcnt(2)
    s_branch L_gw2
    L_yv3:
    {f's_sleep {cfg.tim_y3}' if cfg.tim_y3 else ''}
    s_branch L_yv
    """)
    a(f"""
    L_yv:
    buffer_load_dwordx2 {v(YD,2)}, {v(vYP)}, {WS}, {s(sYo)} offen sc1
    buffer_load_dwordx2 {v(YD+2,2)}, {v(vYP)}, {WS}, {s(sT+2)} offen sc1
    L_yc:
    s_waitcnt vmcnt(0)
    v_mfma_f32_16x16x16_bf16 {v(YR,4)}, {v(SEL,2)}, {v(YD,2)}, 0
    v_mfma_f32_16x16x16_bf16 {v(YR,4)}, {v(SEL,2)}, {v(YD+2,2)}, {v(YR,4)}
    """)
    maxchk(range(YD,YD+4), t+17)
    poll_branch('L_yv', 1, mask=True)
    stamp()
    own=[f'v_pk_fma_f32 {v(X,2)}, {v(BC,2)}, {v(YR,2)}, {v(X,2)} op_sel:[0,0,0] op_sel_hi:[1,0,1]',
         f'v_pk_fma_f32 {v(X+2,2)}, {v(BC,2)}, {v(YR,2)}, {v(X+2,2)} op_sel:[0,1,0] op_sel_hi:[1,1,1]',
         f'v_pk_fma_f32 {v(X+4,2)}, {v(BC,2)}, {v(YR+2,2)}, {v(X+4,2)} op_sel:[0,0,0] op_sel_hi:[1,0,1]',
         f'v_pk_fma_f32 {v(X+6,2)}, {v(BC,2)}, {v(YR+2,2)}, {v(X+6,2)} op_sel:[0,1,0] op_sel_hi:[1,1,1]']
    s1,s2=t+20,t+21
    a(f"""
    s_cmp_eq_u32 {s(sIt)}, 3
    s_cbranch_scc1 L_fin3
    L_pass:
    v_pk_fma_f32 {v(YL,2)}, {v(YR,2)}, {v(KA,2)}, {v(BC+2,2)} op_sel:[0,1,0]
    v_pk_fma_f32 {v(YL+2,2)}, {v(YR+2,2)}, {v(KA,2)}, {v(BC+4,2)} op_sel:[0,1,0]
    v_cvt_pk_f16_f32 {v(YL)}, {v(YL)}, {v(YL+1)}
    v_cvt_pk_f16_f32 {v(YL+1)}, {v(YL+2)}, {v(YL+3)}
    ds_write_b64 {v(vUW)}, {v(YL,2)}
    {own[0]}
    {own[1]}
    {own[2]}
    {own[3]}
    s_cmp_gt_u32 {s(sW)}, 3
    s_waitcnt lgkmcnt(0)
    s_barrier
    s_cbranch_scc1 L_dhb ;!nd
    ds_read_b64_tr_b16 {v(t+8,2)}, {v(vUR)}
    ds_read_b64_tr_b16 {v(t+10,2)}, {v(vUR)} offset:512
    v_mov_b32 {v(t+22)}, 0x3c003c00
    s_waitcnt lgkmcnt(0)
    ;@F
    """)
    XR=t+8; U_=t+12; V_=YC; PP=LNP
    Ur,Ui=U_,U_+4; Vr,Vi=V_,V_+4
    a(f"""
    v_mfma_f32_16x16x32_f16 {v(Ur,4)}, {v(XR,4)}, {v(B1C,4)}, 0
    v_mfma_f32_16x16x32_f16 {v(Ui,4)}, {v(XR,4)}, {v(B1N,4)}, 0
    v_dot2_f32_f16 {v(s1)}, {v(XR)}, {v(t+22)}, 0
    v_dot2_f32_f16 {v(s2)}, {v(XR)}, {v(XR)}, 0
    v_dot2_f32_f16 {v(s1)}, {v(XR+1)}, {v(t+22)}, {v(s1)}
    v_dot2_f32_f16 {v(s2)}, {v(XR+1)}, {v(XR+1)}, {v(s2)}
    v_dot2_f32_f16 {v(s1)}, {v(XR+2)}, {v(t+22)}, {v(s1)}
    v_dot2_f32_f16 {v(s2)}, {v(XR+2)}, {v(XR+2)}, {v(s2)}
    v_dot2_f32_f16 {v(s1)}, {v(XR+3)}, {v(t+22)}, {v(s1)}
    v_dot2_f32_f16 {v(s2)}, {v(XR+3)}, {v(XR+3)}, {v(s2)}
    v_pk_mul_f32 {v(Vi,2)}, {v(Ur,2)}, {v(TWS,2)}
    v_pk_mul_f32 {v(Vi+2,2)}, {v(Ur+2,2)}, {v(TWS+2,2)}
    v_pk_mul_f32 {v(Vr,2)}, {v(Ui,2)}, {v(TWS,2)}
    v_permlane32_swap_b32 {v(s1)}, {v(s2)}
    v_pk_mul_f32 {v(Vr+2,2)}, {v(Ui+2,2)}, {v(TWS+2,2)}
    v_add_f32 {v(s1)}, {v(s1)}, {v(s2)}
    v_pk_fma_f32 {v(Vr,2)}, {v(Ur,2)}, {v(TWC,2)}, {v(Vr,2)}
    v_pk_fma_f32 {v(Vi,2)}, {v(Ui,2)}, {v(TWC,2)}, {v(Vi,2)} neg_lo:[0,0,1] neg_hi:[0,0,1]
    v_add_f32_dpp {v(s1)}, {v(s1)}, {v(s1)} row_ror:8 {DPP}
    v_pk_fma_f32 {v(Vr+2,2)}, {v(Ur+2,2)}, {v(TWC+2,2)}, {v(Vr+2,2)}
    v_pk_fma_f32 {v(Vi+2,2)}, {v(Ui+2,2)}, {v(TWC+2,2)}, {v(Vi+2,2)} neg_lo:[0,0,1] neg_hi:[0,0,1]
    v_add_f32_dpp {v(s1)}, {v(s1)}, {v(s1)} row_ror:4 {DPP}
    v_cvt_pk_f16_f32 {v(PP)}, {v(Vr)}, {v(Vi)}
    v_cvt_pk_f16_f32 {v(PP+1)}, {v(Vr+1)}, {v(Vi+1)}
    v_add_f32_dpp {v(s1)}, {v(s1)}, {v(s1)} row_ror:2 {DPP}
    v_cvt_pk_f16_f32 {v(PP+2)}, {v(Vr+2)}, {v(Vi+2)}
    v_cvt_pk_f16_f32 {v(PP+3)}, {v(Vr+3)}, {v(Vi+3)}
    v_add_f32_dpp {v(s1)}, {v(s1)}, {v(s1)} row_ror:1 {DPP}
    v_mfma_f32_16x16x32_f16 {v(Ur,4)}, {v(A2R,4)}, {v(PP,4)}, 0
    v_mfma_f32_16x16x32_f16 {v(Ui,4)}, {v(A2I,4)}, {v(PP,4)}, 0
    v_add_f32_dpp {v(s1)}, {v(s1)}, {v(s1)} row_bcast:15 row_mask:0xa bank_mask:0xf
    v_mul_f32 {v(s1)}, {s(sK512)}, {v(s1)}
    v_readlane_b32 {s(sT+2)}, {v(s1)}, 63
    v_readlane_b32 {s(sT+1)}, {v(s1)}, 31
    v_add_f32 {v(s2)}, {s(sT+2)}, {v(EK)}
    v_mov_b32 {v(s1)}, {s(sT+1)}
    v_fma_f32 {v(s1)}, -{v(s1)}, {v(s1)}, {v(s2)}
    v_rsq_f32_e64 {v(s1)}, |{v(s1)}|
    v_mul_f32 {v(s1)}, {s(sSg)}, {v(s1)}
    """)
    for k in range(4): a(f'v_pk_mul_f32 {v(U_+2*k,2)}, {v(U_+2*k,2)}, {v(s1,2)} op_sel_hi:[1,0]')
    for r in range(4): a(f'v_cvt_pk_f16_f32 {v(PP+r)}, {v(Ur+r)}, {v(Ui+r)}')
    a(f"""
    ds_write2_b32 {v(vDW)}, {v(PP)}, {v(PP+1)} offset0:0 offset1:32
    ds_write2_b32 {v(vDW)}, {v(PP+2)}, {v(PP+3)} offset0:64 offset1:96
    s_waitcnt lgkmcnt(0)
    L_dhb:
    s_barrier
    ds_read_b128 {v(t+16,4)}, {v(vDR)}
    s_waitcnt lgkmcnt(0)
    v_mfma_f32_16x16x16_f16 {v(E0,4)}, {v(AD,2)}, {v(t+16,2)}, 0
    v_mfma_f32_16x16x16_f16 {v(E1,4)}, {v(AD,2)}, {v(t+18,2)}, 0
    s_nop 4
    s_branch L_apply ;!nd
    """)
    a('L_fin:')
    if cfg.odel: a(f's_sleep {cfg.odel}')
    for rho in (0,1):
        for k in (0,1):
            a(f'v_cvt_pk_bf16_f32 {v(t+2*rho+k)}, {v(X+4*k+rho)}, {v(X+4*k+2+rho)}')
    a(f"""
    v_lshlrev_b32 {v(t+16)}, 1, {v(vQ)}
    v_mov_b32 {v(t+19)}, 0x200000
    s_sub_u32 {s(sT)}, {s(sT+9)}, 1
    v_cmp_eq_u32 vcc, {s(sT+9)}, {v(t+16)}
    v_cmp_eq_u32 {s(sT+2,2)}, {s(sT)}, {v(t+16)}
    v_cndmask_b32 {v(t+17)}, {v(vXoff)}, {v(t+19)}, vcc
    v_cndmask_b32 {v(t+18)}, {v(vXoff)}, {v(t+19)}, {s(sT+2,2)}
    buffer_store_dwordx2 {v(t,2)}, {v(vXoff if cfg.twice else t+17)}, {OS}, {s(sRow0)} offen {['','sc1','nt'][cfg.osc]}
    buffer_store_dwordx2 {v(t+2,2)}, {v(vXoff if cfg.twice else t+18)}, {OS}, {s(sRow1)} offen {['','sc1','nt'][cfg.osc]}
    """)
    if cfg.wb==3: a(f"""
    s_xor_b32 {s(sT+4)}, {s(sJ)}, 9
    s_or_b32 {s(sT+4)}, {s(sT+4)}, {s(sW)}
    s_cbranch_scc1 L_nwb3
    {f's_sleep {cfg.wbd}' if cfg.wbd else ''}
    buffer_wbl2 sc1
    L_nwb3:
    """)
    a(f"""
    v_cndmask_b32 {v(t+24)}, {v(t+19)}, {v(vXoff)}, vcc
    v_cndmask_b32 {v(t+25)}, {v(t+19)}, {v(vXoff)}, {s(sT+2,2)}
    s_or_b32 {s(sT)}, s2, {s(sW)}
    s_cbranch_scc1 L_fin2
    v_mov_b32 {v(t+20)}, {s(sTag)}
    buffer_store_dword {v(t+20)}, off, {WS}, 0 sc1
    L_fin2:
    s_cmp_eq_u32 {s(sT+9)}, 64
    s_cbranch_scc1 L_fin5
    s_mov_b32 {s(sT+10)}, {SLOT+SLOTR}
    s_sleep {cfg.tim_fh}
    """)
    hdrpoll('L_fhdr', 4)
    a(f"""
    s_cmp_lg_u32 {s(sIdx)}, {s(sKey)}
    s_cbranch_scc1 {'L_fin5' if cfg.twice else 'L_fin4'}
    s_andn2_b32 {s(sIdx)}, {s(sM7FF)}, {s(sIdx)}
    s_mov_b32 {s(sIt)}, 3
    s_add_u32 {s(sYo)}, {s(sYo)}, {YPR}
    s_add_u32 {s(sYh)}, {s(sYh)}, {YHR}
    """)
    owner()
    a('s_branch L_ywait\nL_fin3:')
    a('\n'.join(own))
    for rho in (0,1):
        for k in (0,1):
            a(f'v_cvt_pk_bf16_f32 {v(t+2*rho+k)}, {v(X+4*k+rho)}, {v(X+4*k+2+rho)}')
    a(f"""
    L_fin4:
    buffer_store_dwordx2 {v(t,2)}, {v(t+24)}, {OS}, {s(sRow0)} offen {['sc1','','nt'][cfg.lastp]}
    buffer_store_dwordx2 {v(t+2,2)}, {v(t+25)}, {OS}, {s(sRow1)} offen {['sc1','','nt'][cfg.lastp]}
    L_fin5:
    """)
    stamp(); dump_stamps()
    a('s_endpgm')
    a(f"""
    L_base_r:
    s_sub_u32 {s(sCnt)}, {s(sCnt)}, 1
    s_cbranch_scc1 L_end
    s_sleep 2
    buffer_load_dwordx4 {v(BC+2,4)}, {v(t+16)}, {WS}, {s(sT+10)} offen offset:1024 sc1
    s_waitcnt vmcnt(0)
    s_branch L_basew
    """)
    def pub2():
        a(f'''
        v_mov_b32 {v(t+4)}, {s(sTag)}
        v_mov_b32 {v(t+5)}, {s(sXcc)}
        s_add_u32 {s(sT)}, {s(sTabSt)}, {TAB2-TABL}
        buffer_store_dwordx2 {v(t+4,2)}, off, {WS}, {s(sT)} sc1
        ''')
    a(f'''
    L_tabst_slow:
    buffer_store_dwordx2 {v(K,2)}, off, {WS}, {s(sTabSt)} sc1
    s_branch L_tabst_back
    L_tg0_r:
    s_sub_u32 {s(sCnt)}, {s(sCnt)}, 1
    s_cbranch_scc1 L_end
    s_sleep 2
    ''')
    a(f's_mov_b64 exec, 0xff\nbuffer_load_dword {v(t+20)}, {v(t+24)}, {WS}, {s(sT+10)} offen sc1\ns_mov_b64 exec, -1')
    if cfg.dr: a(f's_waitcnt vmcnt(0)\nv_cmp_ne_u32 vcc, {s(sTag)}, {v(t+20)}\ns_cbranch_vccnz L_tg0_r\ns_sleep {cfg.dr}\ns_branch L_g')
    a('s_branch L_tg0w\nL_tab2:')
    pub2()
    a(f'''
    s_add_u32 {s(sT+1)}, {s(sTabLd)}, {TAB2-TABL}
    L_tab2p:
    buffer_load_dwordx2 {v(TB,2)}, {v(vL8)}, {WS}, {s(sTabLd)} offen sc1
    buffer_load_dwordx2 {v(t+6,2)}, {v(vL8)}, {WS}, {s(sT+1)} offen sc1
    s_waitcnt vmcnt(0)
    v_cmp_eq_u32 vcc, {s(sTag)}, {v(TB)}
    v_cndmask_b32 {v(TB)}, {v(t+6)}, {v(TB)}, vcc
    v_cndmask_b32 {v(TB+1)}, {v(t+7)}, {v(TB+1)}, vcc
    v_cmp_ne_u32 vcc, {s(sTag)}, {v(TB)}
    ''')
    poll_branch('L_tab2p', 4)
    a(f'''
    s_branch L_tabok
    L_slow:
    s_cmp_lg_u32 {s(sIt)}, 0
    s_cbranch_scc1 L_slow1
    ''')
    pub2()
    a('L_slow1:')
    lstores('sc1')
    a(f'''
    s_waitcnt vmcnt(0)
    s_barrier
    s_add_u32 {s(sT)}, {s(sTabSt)}, {SLOWF-TABL}
    s_add_u32 {s(sT+1)}, {s(sTabLd)}, {SLOWF-TABL}
    v_mov_b32 {v(t+4)}, {s(sTag)}
    s_cmp_lg_u32 {s(sW)}, 0
    s_cbranch_scc1 L_slowp
    buffer_store_dword {v(t+4)}, off, {WS}, {s(sT)} sc1
    L_slowp:
    buffer_load_dword {v(t+5)}, {v(vL8)}, {WS}, {s(sT+1)} offen sc1
    s_waitcnt vmcnt(0)
    v_cmp_ne_u32 vcc, {s(sTag)}, {v(t+5)}
    ''')
    poll_branch('L_slowp', 2)
    a('s_branch L_slowback')

def hint_store(vreg, soff, lbl):
    a(f'''
    s_mov_b64 exec, 1
    s_cmp_eq_u32 {s(sFast)}, 0
    s_cbranch_scc1 {lbl}_s
    buffer_store_dword {v(vreg)}, off, {WS}, {s(soff)}
    s_branch {lbl}_d
    {lbl}_s:
    buffer_store_dword {v(vreg)}, off, {WS}, {s(soff)} sc1
    {lbl}_d:
    s_mov_b64 exec, -1
    ''')

def ffn():
    WA=4; WD=20; t=40
    vXL=24; vXW=25; vXR=26; vPS=27; vPL=28; vHW=29; vHR=30; vDP=31; vTag=32; vSig=34; vFl=35
    sI=sJ; sRnd=sIt; sPo=sLst; sPs=sLld
    F_W=0; TS=4096+64; F_X=0x4400; F_KEY=0x4D00; F_H=0x4E00; F_D=0x5200; F_WD=0x5400
    a(f"""
    L_ffn:
    s_and_b32 {s(sI)}, {s(sJ)}, 31
    s_min_u32 {s(sT+2)}, {s(sI)}, 27
    s_and_b32 {s(sT)}, {s(sT+2)}, 3
    s_lshl_b32 {s(sT+8)}, {s(sT)}, 8              ; 256*ks
    s_mul_i32 {s(sT+9)}, {s(sT)}, {28*64}
    s_mul_i32 {s(sT)}, {s(sT)}, {128*3584}
    s_mul_i32 {s(sT+1)}, {s(sX)}, 448
    s_add_u32 {s(sT)}, {s(sT)}, {s(sT+1)}
    s_lshr_b32 {s(sT+2)}, {s(sT+2)}, 2
    s_lshl_b32 {s(sT+3)}, {s(sT+2)}, 6
    s_add_u32 {s(sT)}, {s(sT)}, {s(sT+3)}
    v_lshrrev_b32 {v(t+3)}, 2, v0
    v_mul_u32_u24 {v(t)}, 3584, {v(t+3)}
    v_and_b32 {v(t+4)}, 3, v0
    v_lshl_add_u32 {v(t)}, {v(t+4)}, 4, {v(t)}
    v_add_u32 {v(t)}, {s(sT)}, {v(t)}
    s_mul_i32 {s(sT)}, {s(sX)}, {224*1024}
    s_lshl_b32 {s(sT+1)}, {s(sI)}, 5
    s_add_u32 {s(sT)}, {s(sT)}, {s(sT+1)}
    v_lshrrev_b32 {v(t+1)}, 1, v0
    v_min_u32 {v(t+1)}, 223, {v(t+1)}
    v_lshlrev_b32 {v(t+1)}, 10, {v(t+1)}
    v_and_b32 {v(t+2)}, 1, v0
    v_lshl_add_u32 {v(t+1)}, {v(t+2)}, 4, {v(t+1)}
    v_add_u32 {v(t+1)}, {s(sT)}, {v(t+1)}
    s_add_u32 {s(sT+10)}, {s(sTabLd)}, {FTAB-TABL}
    s_waitcnt lgkmcnt(0)
    {f'v_lshlrev_b32 {v(T+25)}, {cfg.tlb}, v0' if cfg.tlb else ''}
    {f'buffer_load_dword {v(T+21)}, {v(T+25)}, {WS}, 0 offen sc1' if cfg.tlb else ''}
    {f'buffer_load_dword {v(T+21)}, {v(T+25)}, {OS}, 0 offen sc1' if cfg.tlb else ''}
    {f's_sleep {cfg.fdelay}' if cfg.fdelay else ''}
    {f'global_load_dwordx4 {v(T+8,4)}, {v(t)}, s[18:19]' if cfg.wdpos!=2 and cfg.gul<2 else ''}
    v_mov_b32 {v(T+24)}, {v(t)}
    {f'global_load_dwordx4 {v(T+12,4)}, {v(t)}, s[20:21]' if cfg.wdpos!=2 and not cfg.gul else ''}
    {f'global_load_dwordx4 {v(T+16,4)}, {v(t+1)}, s[22:23]' if cfg.wdpos==0 else f'v_mov_b32 {v(T+23)}, {v(t+1)}'}
    """)
    if cfg.wpf: a(f"""
    s_mul_i32 {s(sT)}, {s(sX)}, 224
    s_mul_i32 {s(sT+1)}, {s(sI)}, 7
    s_add_u32 {s(sT)}, {s(sT)}, {s(sT+1)}
    s_min_u32 {s(sT+1)}, {s(sW)}, 6
    s_add_u32 {s(sT)}, {s(sT)}, {s(sT+1)}
    s_lshl_b32 {s(sT)}, {s(sT)}, 10
    v_lshl_add_u32 {v(t+7)}, {v(vLane)}, 4, {s(sT)}
    global_load_dwordx4 {v(T+16,4)}, {v(t+7)}, s[22:23]
    """)
    a(f"""
    {f'buffer_load_dword {v(T+20)}, off, {WS}, 0 sc1' if not cfg.hot else f's_load_dword {s(sTag)}, s[8:9], 0'}
    s_cmp_eq_u32 {s(sW)}, 0
    s_cselect_b32 {s(sT)}, {s(sT+10)}, s10
    buffer_load_dword {v(T+21)}, {v(vL8)}, {WS}, {s(sT if cfg.hot else sT+10)} offen sc1
    v_mul_u32_u24 {v(T+22)}, {TS}, {v(t+4)}
    v_lshl_add_u32 {v(T+22)}, {v(t+3)}, 5, {v(T+22)}
    v_lshlrev_b32 {v(t+5)}, 4, {v(vN)}
    s_and_b32 {s(sT)}, {s(sW)}, 1
    s_lshl_b32 {s(sT)}, {s(sT)}, 2
    v_add_u32 {v(t+6)}, {s(sT)}, {v(vQ)}
    v_lshl_add_u32 {v(vXL)}, {v(t+6)}, 12, {v(t+5)}
    v_add_u32 {v(vXL)}, {s(sT+8)}, {v(vXL)}
    v_mul_u32_u24 {v(vXW)}, 272, {v(t+6)}
    v_add_u32 {v(vXW)}, {v(vXW)}, {v(t+5)}
    v_and_b32 {v(t+6)}, 7, {v(vLane)}
    v_mul_u32_u24 {v(vXR)}, 272, {v(t+6)}
    v_lshl_add_u32 {v(vXR)}, {v(vQ)}, 4, {v(vXR)}
    s_cmp_lg_u32 {s(sW)}, 6
    s_cbranch_scc1 L_fa1
    v_lshlrev_b32 {v(vXL)}, 12, {v(t+6)}
    L_fa1:
    s_lshl2_add_u32 {s(sT)}, {s(sT+2)}, {s(sW)}
    s_lshl_b32 {s(sT)}, {s(sT)}, 6
    s_add_u32 {s(sT)}, {s(sT)}, {s(sT+9)}
    v_lshl_add_u32 {v(vPS)}, {v(vN)}, 2, {s(sT)}
    s_lshl_b32 {s(sT)}, {s(sW)}, 8
    v_mul_u32_u24 {v(vPL)}, 1792, {v(vQ)}
    v_add3_u32 {v(vPL)}, {v(vPL)}, {v(t+5)}, {s(sT)}
    s_lshl_b32 {s(sT)}, {s(sW)}, 7
    s_add_u32 {s(sT)}, {s(sT)}, {F_H}
    v_lshl_add_u32 {v(vHR)}, {v(vQ)}, 4, {s(sT)}
    v_and_b32 {v(t+6)}, 12, {v(vN)}
    v_lshl_add_u32 {v(vHW)}, {v(t+6)}, 2, {s(sT)}
    v_and_b32 {v(t+6)}, 1, {v(vN)}
    v_lshl_add_u32 {v(vHW)}, {v(t+6)}, 3, {v(vHW)}
    v_and_b32 {v(t+6)}, 2, {v(vN)}
    v_lshl_add_u32 {v(vHW)}, {v(t+6)}, 5, {v(vHW)}
    v_and_b32 {v(t+6)}, 2, {v(vQ)}
    v_add_u32 {v(vHW)}, {v(vHW)}, {v(t+6)}
    v_and_b32 {v(t+6)}, 1, {v(vQ)}
    v_lshl_add_u32 {v(vHW)}, {v(t+6)}, 2, {v(vHW)}
    s_lshl_b32 {s(sT)}, {s(sW)}, 2
    s_add_u32 {s(sT)}, {s(sT)}, {F_D}
    v_lshl_add_u32 {v(vDP)}, {v(vN)}, 5, {s(sT)}
    v_mov_b32 {v(vFl)}, {F_KEY}
    v_mov_b32 {v(vTag)}, 0
    s_mov_b32 {s(sFast)}, 0
    s_mov_b32 {s(sRnd)}, 2
    s_mov_b32 {s(sPo)}, {WSSZ}
    s_mov_b32 {s(sYo)}, {WSSZ}
    s_mov_b32 {s(sYh)}, {WSSZ}
    s_waitcnt lgkmcnt(0)
    {'s_branch L_fb2' if cfg.dry else ''}
    L_finit:
    s_mov_b32 {s(sRnd)}, 0
    s_mov_b32 {s(sSlot)}, {SLOT}
    s_lshl_b32 {s(sPo)}, {s(sX)}, 13
    s_add_u32 {s(sPo)}, {s(sPo)}, {PART}
    s_lshl_b32 {s(sYo)}, {s(sX)}, 10
    s_lshl_b32 {s(sT)}, {s(sI)}, 5
    s_add_u32 {s(sYo)}, {s(sYo)}, {s(sT)}
    s_add_u32 {s(sYo)}, {s(sYo)}, {YP}
    s_lshl_b32 {s(sYh)}, {s(sX)}, 7
    s_lshl2_add_u32 {s(sYh)}, {s(sI)}, {s(sYh)}
    s_add_u32 {s(sYh)}, {s(sYh)}, {YHINT}
    s_lshl_b32 {s(sT)}, {s(sW)}, 10
    v_lshl_add_u32 {v(t)}, {v(vLane)}, 4, {s(sT)}
    v_lshl_add_u32 {v(t+1)}, {v(vQ)}, 8, {s(sT)}
    v_lshl_add_u32 {v(t+1)}, {v(vN)}, 3, {v(t+1)}
    s_and_b32 {s(sT)}, {s(sW)}, 3
    s_mul_i32 {s(sT)}, {s(sT)}, {TS}
    v_lshl_add_u32 {v(t+2)}, {v(vQ)}, 8, {s(sT)}
    v_lshl_add_u32 {v(t+2)}, {v(vN)}, 3, {v(t+2)}
    v_mov_b32 {v(vTag+1)}, {s(sXcc)}
    s_lshl3_add_u32 {s(sT+1)}, {s(sI)}, {s(sT+10)}
    s_waitcnt vmcnt(0)
    {f'v_mov_b32 {v(T+20)}, {s(sTag)}' if cfg.hot else ''}
    v_add_u32 {v(vTag)}, 1, {v(T+20)}
    ds_write_b128 {v(T+22)}, {v(T+8,4)}
    ds_write_b128 {v(T+22)}, {v(T+12,4)} offset:16
    {f'ds_write_b128 {v(t)}, {v(T+16,4)} offset:{F_WD}' if cfg.wdpos==0 else ''}
    v_readfirstlane_b32 {s(sTag)}, {v(vTag)}
    s_cmp_lg_u32 {s(sW)}, 0
    s_cbranch_scc1 L_fi1
    s_mov_b64 exec, 1
    buffer_store_dwordx2 {v(vTag,2)}, off, {WS}, {s(sT+1)}
    s_mov_b64 exec, -1
    L_fi1:
    s_waitcnt lgkmcnt(0)
    s_barrier
    """)
    if cfg.stamps: a(f's_mov_b32 {s(sStampI)}, 0')
    stamp()
    for k in range(4):
        a(f'ds_read_b64_tr_b16 {v(WA+4*k,2)}, {v(t+2)} offset:{1024*k}')
        a(f'ds_read_b64_tr_b16 {v(WA+4*k+2,2)}, {v(t+2)} offset:{1024*k+128}')
    a(f"""
    {f'ds_read_b64_tr_b16 {v(WD,2)}, {v(t+1)} offset:{F_WD}' if cfg.wdpos==0 else ''}
    {f'ds_read_b64_tr_b16 {v(WD+2,2)}, {v(t+1)} offset:{F_WD+128}' if cfg.wdpos==0 else ''}
    s_cmp_lg_u32 {s(sW)}, 0
    s_cbranch_scc1 L_fi3
    s_movk_i32 {s(sTry)}, 80
    L_fl:
    buffer_load_dwordx2 {v(t+4,2)}, {v(vL8)}, {WS}, {s(sTabLd)} offen sc1
    buffer_load_dwordx2 {v(t+6,2)}, {v(vL8)}, {WS}, {s(sT+10)} offen sc1
    s_waitcnt vmcnt(0)
    v_cmp_ne_u32 vcc, {s(sTag)}, {v(t+4)}
    v_cmp_ne_u32 {s(sT,2)}, {s(sTag)}, {v(t+6)}
    s_or_b64 vcc, vcc, {s(sT,2)}
    """)
    poll_branch('L_fl', 4, giveup='L_fslowtab', skip=True)
    a(f"""
    v_cmp_ne_u32 vcc, {s(sXcc)}, {v(t+5)}
    v_cmp_ne_u32 {s(sT,2)}, {s(sXcc)}, {v(t+7)}
    s_or_b64 vcc, vcc, {s(sT,2)}
    s_cbranch_vccnz L_fslowtab
    s_mov_b32 {s(sFast)}, 1
    {f's_sleep {cfg.tdel}' if cfg.tdel else ''}
    v_and_b32 {v(t+4)}, 1, {v(vQ)}
    v_lshlrev_b32 {v(t+4)}, 16, {v(t+4)}
    v_lshl_add_u32 {v(t+4)}, {v(vN)}, 4, {v(t+4)}
    s_lshl_b32 {s(sT)}, {s(sI)}, 8
    s_add_u32 {s(sT)}, {s(sT)}, {s(sPo)}
    buffer_load_dword {v(t+5)}, {v(t+4)}, {WS}, {s(sT)} offen sc1
    {f'buffer_load_dword {v(t+7)}, off, {WS}, {s(sYh)} sc1' if cfg.ht else ''}
    {f'buffer_load_dword {v(t+8)}, off, {WS}, {s(sYh)} offset:{YHR} sc1' if cfg.ht else ''}
    L_fi2:
    v_mov_b32 {v(t+6)}, {s(sFast)}
    ds_write_b32 {v(vFl)}, {v(t+6)} offset:4
    L_fi3:
    s_waitcnt vmcnt(0) lgkmcnt(0)
    s_barrier
    ds_read_b32 {v(t+6)}, {v(vFl)} offset:4
    s_waitcnt lgkmcnt(0)
    v_readfirstlane_b32 {s(sFast)}, {v(t+6)}
    """)
    if cfg.gul:
        a(f"""
        {f's_sleep {cfg.gdelay}' if cfg.gdelay else ''}
        {f'global_load_dwordx4 {v(T+8,4)}, {v(T+24)}, s[18:19]' if cfg.gul==2 else ''}
        global_load_dwordx4 {v(T+12,4)}, {v(T+24)}, s[20:21]
        s_waitcnt vmcnt(0)
        ds_write_b128 {v(T+22)}, {v(T+8,4)}
        ds_write_b128 {v(T+22)}, {v(T+12,4)} offset:16
        s_waitcnt lgkmcnt(0)
        s_barrier
        """)
        for k in range(4):
            a(f'ds_read_b64_tr_b16 {v(WA+4*k,2)}, {v(t+2)} offset:{1024*k}')
            a(f'ds_read_b64_tr_b16 {v(WA+4*k+2,2)}, {v(t+2)} offset:{1024*k+128}')
        a('s_waitcnt lgkmcnt(0)')
    if cfg.wdpos==3: a(f'v_mov_b32 {v(T+8)}, {v(t)}\nv_mov_b32 {v(T+9)}, {v(t+1)}')
    if cfg.wdpos==2:
        a(f"""
        {f's_sleep {cfg.gdelay}' if cfg.gdelay else ''}
        global_load_dwordx4 {v(T+8,4)}, {v(T+24)}, s[18:19]
        global_load_dwordx4 {v(T+12,4)}, {v(T+24)}, s[20:21]
        global_load_dwordx4 {v(T+16,4)}, {v(T+23)}, s[22:23]
        s_waitcnt vmcnt(0)
        ds_write_b128 {v(T+22)}, {v(T+8,4)}
        ds_write_b128 {v(T+22)}, {v(T+12,4)} offset:16
        ds_write_b128 {v(t)}, {v(T+16,4)} offset:{F_WD}
        s_waitcnt lgkmcnt(0)
        s_barrier
        """)
        for k in range(4):
            a(f'ds_read_b64_tr_b16 {v(WA+4*k,2)}, {v(t+2)} offset:{1024*k}')
            a(f'ds_read_b64_tr_b16 {v(WA+4*k+2,2)}, {v(t+2)} offset:{1024*k+128}')
        a(f"""
        ds_read_b64_tr_b16 {v(WD,2)}, {v(t+1)} offset:{F_WD}
        ds_read_b64_tr_b16 {v(WD+2,2)}, {v(t+1)} offset:{F_WD+128}
        s_waitcnt lgkmcnt(0)
        """)
    if cfg.wdpos==1: a(f"""
    {f's_sleep {cfg.gdelay}' if cfg.gdelay else ''}
    global_load_dwordx4 {v(T+16,4)}, {v(T+23)}, s[22:23]
    s_waitcnt vmcnt(0)
    ds_write_b128 {v(t)}, {v(T+16,4)} offset:{F_WD}
    ds_read_b64_tr_b16 {v(WD,2)}, {v(t+1)} offset:{F_WD}
    ds_read_b64_tr_b16 {v(WD+2,2)}, {v(t+1)} offset:{F_WD+128}
    s_waitcnt lgkmcnt(0)
    """)
    a(f"""
    L_frnd:
    s_add_u32 {s(sTabLd)}, {s(sTabLd)}, {ARGR}
    s_cmp_lg_u32 {s(sW)}, 0
    s_cbranch_scc1 L_fb1
    s_cmp_eq_u32 {s(sFast)}, 0
    s_cbranch_scc1 L_fb1
    L_ftrig:
    buffer_load_dword {v(t)}, {v(vL8)}, {WS}, {s(sTabLd)} offen sc1
    s_waitcnt vmcnt(0)
    v_cmp_ne_u32 vcc, {s(sTag)}, {v(t)}
    """)
    poll_branch('L_ftrig', cfg.slp_f)
    stamp()
    a(f"""
    s_cmp_eq_u32 {s(sRnd)}, 0
    s_cbranch_scc1 L_ft0
    s_sleep {cfg.tim_a1}
    s_branch L_fb1
    L_ft0:
    s_sleep {cfg.tim_arg if cfg.wdpos!=3 else cfg.tim_wd}
    L_fb1:
    """)
    if cfg.wdpos==3: a(f"""
    s_cmp_lg_u32 {s(sRnd)}, 0
    s_cbranch_scc1 L_fb1b
    s_barrier
    global_load_dwordx4 {v(T+16,4)}, {v(T+23)}, s[22:23]
    s_sleep {cfg.tim_arg-cfg.tim_wd}
    L_fb1b:
    """)
    a(f"""
    s_sub_u32 {s(sT)}, {s(sW)}, 4
    s_cmp_lt_u32 {s(sT)}, 2
    s_barrier
    s_cbranch_scc1 L_fx
    s_cmp_lg_u32 {s(sW)}, 6
    s_cbranch_scc1 L_fb2
    s_mov_b64 exec, 0xff
    L_fhd:
    buffer_load_dword {v(t)}, {v(vXL)}, {WS}, {s(sSlot)} offen offset:3072 sc1
    s_waitcnt vmcnt(0)
    v_cmp_eq_u32 vcc, -1, {v(t)}
    """)
    poll_branch('L_fhd', 2, skip=True)
    a(f"""
    v_max_u32_dpp {v(t)}, {v(t)}, {v(t)} row_half_mirror {DPP}
    v_max_u32_dpp {v(t)}, {v(t)}, {v(t)} quad_perm:[1,0,3,2] {DPP}
    v_max_u32_dpp {v(t)}, {v(t)}, {v(t)} quad_perm:[2,3,0,1] {DPP}
    ds_write_b32 {v(vFl)}, {v(t)}
    s_mov_b64 exec, -1
    s_branch L_fb2
    L_fx:
    buffer_load_dwordx4 {v(t,4)}, {v(vXL)}, {WS}, {s(sSlot)} offen sc1
    s_waitcnt vmcnt(0)
    ds_write_b128 {v(vXW)}, {v(t,4)} offset:{F_X}
    """)
    maxchk(range(t,t+4), t+4)
    poll_branch('L_fx', 2, mask=True)
    Dd=t+16
    a(f"""
    L_fb2:
    """)
    if cfg.wdpos==3: a(f"""
    s_cmp_lg_u32 {s(sRnd)}, 0
    s_cbranch_scc1 L_fb2b
    s_waitcnt vmcnt(0)
    ds_write_b128 {v(T+8)}, {v(T+16,4)} offset:{F_WD}
    ds_read_b64_tr_b16 {v(WD,2)}, {v(T+9)} offset:{F_WD}
    ds_read_b64_tr_b16 {v(WD+2,2)}, {v(T+9)} offset:{F_WD+128}
    L_fb2b:
    """)
    a(f"""
    s_cmp_gt_u32 {s(sW)}, 3
    s_waitcnt lgkmcnt(0)
    s_barrier
    s_cbranch_scc1 L_fnoa
    ds_read_b32 {v(t+20)}, {v(vFl)}
    """)
    for k in range(4): a(f'ds_read_b128 {v(t+4*k,4)}, {v(vXR)} offset:{F_X+64*k}')
    stamp()
    a(f"""
    s_cmp_lt_u32 {s(sI)}, 28
    s_cselect_b32 {s(sPs)}, {s(sPo)}, {WSSZ}
    s_waitcnt lgkmcnt(3)
    v_mfma_f32_16x16x32_bf16 {v(Dd,4)}, {v(t,4)}, {v(WA,4)}, 0
    v_readfirstlane_b32 {s(sKey)}, {v(t+20)}
    s_waitcnt lgkmcnt(2)
    v_mfma_f32_16x16x32_bf16 {v(Dd,4)}, {v(t+4,4)}, {v(WA+4,4)}, {v(Dd,4)}
    s_andn2_b32 {s(sT)}, 15, {s(sKey)}
    s_sub_u32 {s(sT+1)}, 16, {s(sT)}
    s_min_u32 {s(sT)}, {s(sT)}, {s(sT+1)}
    s_waitcnt lgkmcnt(1)
    v_mfma_f32_16x16x32_bf16 {v(Dd,4)}, {v(t+8,4)}, {v(WA+8,4)}, {v(Dd,4)}
    s_bitcmp1_b32 {s(sT)}, 0
    s_cselect_b64 vcc, -1, 0
    s_waitcnt lgkmcnt(0)
    v_mfma_f32_16x16x32_bf16 {v(Dd,4)}, {v(t+12,4)}, {v(WA+12,4)}, {v(Dd,4)}
    s_bitcmp1_b32 {s(sT)}, 1
    s_cselect_b64 {s(sT+2,2)}, -1, 0
    s_and_b32 {s(sT)}, {s(sT)}, 4
    s_lshl_b32 {s(sT)}, {s(sT)}, 2
    s_bfm_b64 exec, 16, {s(sT)}
    s_cmp_eq_u32 {s(sFast)}, 0
    v_cndmask_b32 {v(Dd)}, {v(Dd)}, {v(Dd+1)}, vcc
    v_cndmask_b32 {v(Dd+2)}, {v(Dd+2)}, {v(Dd+3)}, vcc
    v_cndmask_b32 {v(Dd)}, {v(Dd)}, {v(Dd+2)}, {s(sT+2,2)}
    s_cbranch_scc1 L_fps_s ;!nd
    buffer_store_dword {v(Dd)}, {v(vPS)}, {WS}, {s(sPs)} offen
    L_fps_d:
    s_mov_b64 exec, -1
    s_cmp_eq_u32 {s(sRnd)}, 2
    s_cbranch_scc1 L_fpok
    {'s_waitcnt vmcnt(0)' if not cfg.nw&1 else ''}
    {f's_sleep {cfg.dp}' if cfg.dp else ''}
    s_branch L_fp
    L_fps_s:
    buffer_store_dword {v(Dd)}, {v(vPS)}, {WS}, {s(sPs)} offen sc1
    s_branch L_fps_d
    L_fnoa:
    s_cmp_eq_u32 {s(sW)}, 7
    s_cbranch_scc1 L_f7
    s_cmp_eq_u32 {s(sRnd)}, 2
    s_cbranch_scc1 L_fpok
    s_sleep {cfg.tim_p}
    s_branch L_fp
    L_fp:
    buffer_load_dwordx4 {v(t,4)}, {v(vPL)}, {WS}, {s(sPo)} offen sc1
    s_waitcnt vmcnt(0)
    """)
    maxchk(range(t,t+4), t+4)
    poll_branch('L_fp', cfg.slp_p, mask=True)
    stamp()
    a(f"""
    L_fpok:
    v_permlane32_swap_b32 {v(t)}, {v(t+1)}
    v_permlane32_swap_b32 {v(t+2)}, {v(t+3)}
    v_add_f32 {v(t)}, {v(t)}, {v(t+1)}
    v_add_f32 {v(t+2)}, {v(t+2)}, {v(t+3)}
    v_permlane16_swap_b32 {v(t)}, {v(t+2)}
    v_add_f32 {v(t)}, {v(t)}, {v(t+2)}
    v_mul_f32 {v(t+1)}, 0xbfb8aa3b, {v(t)}
    v_exp_f32 {v(t+1)}, {v(t+1)}
    v_mul_f32_dpp {v(t+2)}, {v(t)}, {v(t)} quad_perm:[2,3,0,1] {DPP}
    v_add_f32 {v(t+1)}, 1.0, {v(t+1)}
    v_rcp_f32 {v(t+1)}, {v(t+1)}
    v_mul_f32 {v(t+1)}, {v(t+1)}, {v(t+2)}
    v_cvt_pk_bf16_f32 {v(t+1)}, {v(t+1)}, {v(t+1)}
    ds_write_b16 {v(vHW)}, {v(t+1)}
    ds_read_b128 {v(t+4,4)}, {v(vHR)}
    """)
    if cfg.eh:
        a(f's_cmp_lg_u32 {s(sW)}, 5\ns_cbranch_scc1 L_fyh_d')
        hint_store(vTag, sYh, 'L_fyh')
    a(f"""
    s_waitcnt lgkmcnt(0)
    v_mfma_f32_16x16x32_bf16 {v(t+8,4)}, {v(t+4,4)}, {v(WD,4)}, 0
    s_mov_b64 exec, 0xffff
    ds_write_b32 {v(vDP)}, {v(t+8)}
    s_mov_b64 exec, -1
    s_waitcnt lgkmcnt(0)
    s_barrier
    L_fnext:
    """)
    stamp()
    a(f"""
    s_cmp_eq_u32 {s(sRnd)}, 1
    s_cbranch_scc1 L_fend
    s_cmp_eq_u32 {s(sRnd)}, 2
    s_cbranch_scc1 L_finit
    """)
    if cfg.wb==1: a(f"""
    s_cmp_lg_u32 {s(sI)}, 28
    s_cbranch_scc1 L_nwb
    s_cmp_lg_u32 {s(sW)}, 3
    s_cbranch_scc1 L_nwb
    s_sleep {cfg.wbd}
    buffer_wbl2 sc1
    L_nwb:
    """)
    a(f"""
    s_mov_b32 {s(sRnd)}, 1
    s_add_u32 {s(sSlot)}, {s(sSlot)}, {SLOTR}
    s_add_u32 {s(sPo)}, {s(sPo)}, {PARTR}
    s_add_u32 {s(sYo)}, {s(sYo)}, {YPR}
    s_add_u32 {s(sYh)}, {s(sYh)}, {YHR}
    s_branch L_frnd
    L_f7:
    ds_read_b32 {v(t+20)}, {v(vFl)}
    v_mov_b32 {v(vSig)}, 0xbfb8aa3b
    v_add_u32 {v(t+8)}, -28, {v(vDP)}
    v_lshlrev_b32 {v(t+9)}, 1, {v(vN)}
    s_waitcnt lgkmcnt(0)
    v_readfirstlane_b32 {s(sKey)}, {v(t+20)}
    s_ashr_i32 {s(sT)}, {s(sKey)}, 31
    s_orn2_b32 {s(sT)}, 0x80000000, {s(sT)}
    s_xor_b32 {s(sT)}, {s(sT)}, {s(sKey)}
    v_mul_f32 {v(vSig)}, {s(sT)}, {v(vSig)}
    v_exp_f32 {v(vSig)}, {v(vSig)}
    v_add_f32 {v(vSig)}, 1.0, {v(vSig)}
    v_rcp_f32 {v(vSig)}, {v(vSig)}
    s_barrier
    ds_read_b128 {v(t,4)}, {v(t+8)}
    ds_read_b96 {v(t+4,3)}, {v(t+8)} offset:16
    s_waitcnt lgkmcnt(1)
    v_pk_add_f32 {v(t,2)}, {v(t,2)}, {v(t+2,2)}
    v_add_f32 {v(t)}, {v(t)}, {v(t+1)}
    s_waitcnt lgkmcnt(0)
    v_add_f32 {v(t+4)}, {v(t+4)}, {v(t+5)}
    v_add_f32 {v(t)}, {v(t)}, {v(t+6)}
    v_add_f32 {v(t)}, {v(t)}, {v(t+4)}
    v_mul_f32 {v(t)}, {v(t)}, {v(vSig)}
    v_mov_b32_dpp {v(t+1)}, {v(t)} quad_perm:[1,1,3,3] {DPP}
    s_mov_b64 exec, 0x5555
    v_cvt_pk_bf16_f32 {v(t)}, {v(t)}, {v(t+1)}
    buffer_store_dword {v(t)}, {v(t+9)}, {WS}, {s(sYo)} offen sc1
    """)
    if cfg.eh: a('s_mov_b64 exec, -1')
    else: hint_store(vTag, sYh, 'L_fyh')
    a(f"""
    s_branch L_fnext
    L_fslowtab:
    v_and_b32 {v(t+16)}, 7, {v(vLane)}
    v_lshlrev_b32 {v(t+16)}, 7, {v(t+16)}
    s_mov_b32 {s(sT+10)}, {TABG}
    L_ftab2:
    buffer_load_dword {v(t+4)}, {v(t+16)}, {WS}, {s(sT+10)} offen sc1
    s_waitcnt vmcnt(0)
    v_cmp_ne_u32 vcc, {s(sTag)}, {v(t+4)}
    """)
    poll_branch('L_ftab2', 8)
    a('s_branch L_fi2\nL_fend:')
    dump_stamps()
    a('s_endpgm')

def build():
    hdr=open('ref.txt').read().split('; @launch')[0]
    a.raw(hdr+f'; @launch grid=({NWG},1,1) block=(512,1,1) lds={LDS_TOTAL}')
    a.raw(f'''; generated by gen/gen.py (hand-written generator): persistent FFT-structured FNet + MoD kernel
.amdgcn_target "amdgcn-amd-amdhsa--gfx950"
.text
.globl {NAME}_kernel
.p2align {cfg.al}
.p2align 8
.type {NAME}_kernel,@function
{NAME}_kernel:''')
    if cfg.st0: a(f's_memrealtime s[88:89]\ns_waitcnt lgkmcnt(0)')
    a(f'''
    s_load_dwordx2 s[12:13], s[0:1], 0
    s_load_dwordx2 s[8:9], s[0:1], 96
    s_load_dwordx8 s[16:23], s[0:1], 48
    s_load_dwordx2 s[28:29], s[0:1], 80
    v_and_b32 {v(vN)}, 15, v0
    v_bfe_u32 {v(vQ)}, v0, 4, 2
    v_lshrrev_b32 v2, 6, v0
    v_lshlrev_b32 {v(vUW)}, 7, v2
    v_lshl_add_u32 {v(vUW)}, {v(vN)}, 3, {v(vUW)}                ; 128w+8n
    v_lshl_add_u32 {v(vXoff)}, {v(vQ)}, 19, {v(vUW)}
    s_and_b32 {s(sX)}, s2, 7
    s_lshr_b32 {s(sJ)}, s2, 3
    s_and_b32 {s(sGg)}, {s(sJ)}, 15
    s_lshl4_add_u32 {s(sGg)}, {s(sGg)}, {s(sX)}
    s_sub_u32 {s(sMP)}, 256, {s(sGg)}
    s_bitcmp1_b32 {s(sJ)}, 4
    s_cselect_b32 {s(sGg)}, {s(sMP)}, {s(sGg)}
    s_cselect_b32 {s(sMP)}, 0x80008000, 0
    s_cmp_eq_u32 {s(sX)}, 0
    s_cselect_b32 {s(sGg)}, s2, {s(sGg)}
    s_cselect_b32 {s(sMP)}, 0, {s(sMP)}
    s_lshl_b32 {s(sRow0)}, {s(sGg)}, 10
    s_add_u32 {s(sRow1)}, {s(sRow0)}, 0x40000
    s_mov_b32 s14, 0x200000
    s_mov_b32 s15, 0x20000
    v_readfirstlane_b32 {s(sW)}, v2
    ''')
    pfc=f'''
    s_getpc_b64 {s(sT+6,2)}
    L_pc:
    v_lshlrev_b32 v3, 6, v0
    v_cmp_gt_u32 vcc, L_end-L_pc, v3
    s_xor_b32 {s(sT)}, s2, {cfg.pfx}
    s_and_b32 {s(sT)}, {s(sT)}, {cfg.pfm2}
    s_cselect_b64 vcc, 0, vcc
    s_cbranch_vccz L_npf ;!nd
    s_mov_b64 exec, vcc
    global_load_dword {v(vTG)}, v3, {s(sT+6,2)}
    s_mov_b64 exec, -1
    L_npf:
    '''
    if cfg.codepf==1: a(pfc)
    a(f'''
    s_cmp_ge_u32 s2, 256
    s_cbranch_scc1 L_nox ;!nd
    s_waitcnt lgkmcnt(0)
    buffer_load_dwordx2 {v(BC,2)}, {v(vXoff)}, {XS}, {s(sRow0)} offen
    buffer_load_dwordx2 {v(BC+2,2)}, {v(vXoff)}, {XS}, {s(sRow1)} offen
    L_nox:
    {pfc if cfg.codepf==2 else ''}
    s_cmp_ge_u32 s2, {NWG}
    s_cbranch_scc1 L_end
    {'s_waitcnt lgkmcnt(0)' if cfg.wsoff else ''}
    {f's_add_u32 s8, s8, {cfg.wsoff<<20}' if cfg.wsoff else ''}
    {'s_addc_u32 s9, s9, 0' if cfg.wsoff else ''}
    v_and_b32 {v(vLane)}, 63, v0
    s_mov_b32 s10, {WSSZ}
    s_mov_b32 s11, 0x20000
    s_mov_b32 s30, 0x200000
    s_mov_b32 s31, 0x20000
    v_mov_b32 {v(SENT)}, -1
    v_mov_b32 {v(SENT+1)}, -1
    v_mov_b32 {v(SENT+2)}, -1
    v_mov_b32 {v(SENT+3)}, -1
    v_lshlrev_b32 {v(vL8)}, 3, v0
    v_and_b32 {v(vL8)}, 0xf8, {v(vL8)}
    s_mov_b32 {s(sCnt)}, 200000
    s_mov_b32 {s(sM7FF)}, 0x7ff
    s_lshl_b32 {s(sTabLd)}, {s(sX)}, 8
    s_add_u32 {s(sTabLd)}, {s(sTabLd)}, {TABL}
    s_getreg_b32 {s(sXcc)}, hwreg(HW_REG_XCC_ID, 0, 4)
    ''')
    if cfg.force_slow: a(f's_mov_b32 {s(sXcc)}, {s(sJ)}')
    if cfg.stamps:
        a(f's_mov_b32 {s(sStampI)}, 0\nv_mov_b32 {v(vSTMP)}, 0')
        a(f's_memrealtime {s(sTS,2)}\ns_memtime {s(sTS+2,2)}\ns_waitcnt lgkmcnt(0)\nv_writelane_b32 {v(vSTMP)}, {s(sTS)}, 63\nv_writelane_b32 {v(vSTMP)}, {s(sTS+2)}, 62')
        a(f'v_writelane_b32 {v(vSTMP)}, {s(sT+6)}, 57')
        if cfg.st0: a(f'v_writelane_b32 {v(vSTMP)}, {s(sTS)}, 58\nv_writelane_b32 {v(vSTMP)}, s88, 63\ns_memrealtime {s(sTS,2)}\ns_waitcnt lgkmcnt(0)\nv_writelane_b32 {v(vSTMP)}, {s(sTS)}, 59')
    a('''s_cmp_ge_u32 s2, 256
    s_cbranch_scc1 L_ffn''')
    if cfg.prio: a(f's_setprio 2\ns_cmp_gt_u32 {s(sW)}, 1\ns_cbranch_scc1 L_np\ns_setprio 3\nL_np:')
    main_prologue()
    main_loop()
    ffn()
    a('L_end:\ns_endpgm')
    a.raw(f'''.section .rodata,"a"
.p2align 6
.amdhsa_kernel {NAME}_kernel
  .amdhsa_next_free_vgpr 128
  .amdhsa_next_free_sgpr 96
  .amdhsa_accum_offset 128
  .amdhsa_group_segment_fixed_size 0
  .amdhsa_kernarg_size 104
  .amdhsa_user_sgpr_count 2
  .amdhsa_user_sgpr_kernarg_segment_ptr 1
  .amdhsa_system_sgpr_workgroup_id_x 1
.end_amdhsa_kernel''')
    return a.text()
if __name__=='__main__':
    out=sys.argv[1]
    for kv in sys.argv[2:]:
        k,val=kv.split('='); assert hasattr(cfg,k); setattr(cfg,k,int(val))
    open(out,'w').write(build())
    print('instrs',a.count,'nops',a.nops)
```

```python
import sys, struct
from asmlib import Asm
NAME='interleave_layers__spectral_fnet__moe_arch_mod__prompt'
def fbits(x): return '0x%08x' % struct.unpack('<I', struct.pack('<f', x))[0]

class Cfg:
    stamps=0
    tim_arg=14
    tim_y=0
    tim_h=0
    slp_g=2
    slp_l=1
    force_slow=0
    prio=1
    codepf=1
    exp=0
    gre=0
    cfl=0
    tlb=0
    wsoff=0
    st0=0
    cal=-1
    calwg=0
    dbgout=0
    dry=1
    wb=0
    fdelay=3
    gdelay=3
    osc=1
    odel=0
    pfm=7
    clr2=0
    nb0=0
    ehint=0
    post=0
    slp_t=0
    aft=0
    g2pos=3
    spr=1
    twice=1
    lastp=1
    hot=1
    gw=0
    gul=0
    xpos=1
    tdel=18
    pub0=1
    al=12
    ep0=1
    ypos=1
    lnt=3
    dg=0
    hs=0
    ub=1
    dg2=0
    ehd=0
    dgl=0
    ht=1
    nw=3
    pfx=0
    pfn=16
    pfm2=0x118
    xw=0
    dr=0
    xe=0
    wpos=0
    wpf=2
    dl=2
    smask=0
    dp=2
    dx=0
    tim_a1=14
    tim_wd=3
    tim_fh=12
    wdpos=3
    slp_p=1
    tim_p=6
    hold=1
    tim_gy=0
    eh=3
    own=1
    tim_y3=0
    beh=1
    gbb=0
    slp_f=2
    early=4
    tim_a0=0
    wbd=12
    gbdelay=4
    late=1
    split=0
    tch=1
cfg=Cfg()

TABG=0x1000; TABGR=0x6000
TABL=0x2000; ARGR=0x800
TAB2=0x3800
SLOWF=0x4000
YHINT=0x5000; YHR=0x800
FTAB=0x6000
CLR0=0x8000
YP=0x8000; YPR=0x2000
PART=0x20000; PARTR=0x10000
SLOT=0x10000; SLOTR=0x8000
LBASE=0x40000; PS=8448; LX=32*PS
GBASE=0x260000; GS=131072+768; GR=0x110000
STAMP=0x700000
WSSZ=0x800000
NWG=512
NST=(13,9,7)
L_STAT=0; L_U=0x400; L_YI=0x2400; YIS=288; L_YT=0x4C00; L_DH=0x6E00; L_FLAG=0x7E00; L_ROW=0x7E80; LDS_TOTAL=0x8280
L_CX=0x2400
def v(a,n=1): return f'v{a}' if n==1 else f'v[{a}:{a+n-1}]'
def s(a,n=1): return f's{a}' if n==1 else f's[{a}:{a+n-1}]'

WS='s[8:11]'; XS='s[12:15]'; OS='s[28:31]'
sW=3; sX=26; sJ=27; sIt=32; sTag=33; sFast=34; sKey=35; sMir=36; sDsc=38
sLst=39; sLld=40; sPh=41; sTabG=42; sG0=43; sG4=44; sTabSt=45; sTabLd=46; sSlot=47; sRow0=48; sRow1=49; sCnt=50
sXcc=51; sStampI=37
sK512=52
sTry=53
sEps=54
sC16=56
sSc=58
sM7FF=60; sTop=61
sQmask=62
sT=64
sNx=84; sSg=85; sYo=86; sYh=87
sGg=4; sMP=5
sTS=80
X=2; WV=10; A8=14; XA=16; B1C=20; B1S=24; B1N=28; TWC=32; TWS=36; A2R=40; A2I=44; YC=48; YS=52
AD=56; BC=58
vXoff=72; vStW=73; vStR=74; vUW=75; vUR=76; vLst=77; vLld=78; vLldM=79; vYIW=80; vYIR=81; vYW=82; vYR=83; vGst=84; vGld=85
vSc0=86; vL8=88; vInv=89; vN=90; vQ=91; vSTMP=1; vLane=92; vTG=93
LNP=94; MM=98; RS2=100
T=102
class Asm2(Asm):
    def __call__(self, text):
        parts=text.split(';@F')
        for i,p in enumerate(parts):
            if i: fstamp()
            Asm.__call__(self,p)
a=Asm2()
def poll_branch(lbl, sleep=1, pre='', giveup=None, skip=False, mask=False):
    k=a.lines.index(lbl+':')
    if mask:
        pre+='\ns_mov_b64 exec, vcc'; skip=True
        k2=next(i for i in range(k,len(a.lines)) if 's_waitcnt vmcnt(0)' in a.lines[i])
        k3=max(i for i in range(k,k2) if 'buffer_load' in a.lines[i])
        a.lines.insert(k3+1,'    s_mov_b64 exec, -1')
    if a.lines[k-1].strip().startswith(('s_branch','s_endpgm')): skip=False
    a(f's_cbranch_vccnz {lbl}_r ;!nd')
    st=[]
    if skip: st.append(f'    s_branch {lbl}')
    st.append(f'{lbl}_r:')
    if giveup: st+= [f'    s_sub_u32 {s(sTry)}, {s(sTry)}, 1', f'    s_cbranch_scc1 {giveup}']
    else: st+= [f'    s_sub_u32 {s(sCnt)}, {s(sCnt)}, 1', '    s_cbranch_scc1 L_end']
    st+= ['    '+x.strip() for x in pre.split('\n') if x.strip()]
    if sleep: st.append(f'    s_sleep {sleep}')
    a.lines[k:k]=st
nst=0
def fstamp():
    if cfg.stamps in (2,3): stamp()
def stamp():
    global nst
    nst+=1
    if not cfg.stamps or (cfg.stamps==4 and not (cfg.smask>>(nst-1))&1): return
    a(f'''{'s_memtime' if cfg.stamps==2 else 's_memrealtime'} {s(sTS,2)}
    s_waitcnt lgkmcnt(0)
    s_mov_b32 m0, {s(sStampI)}
    s_add_u32 {s(sStampI)}, {s(sStampI)}, 1
    v_writelane_b32 {v(vSTMP)}, {s(sTS)}, m0''')
def dump_stamps():
    if not cfg.stamps: return
    a(f's_memrealtime {s(sTS,2)}\ns_memtime {s(sTS+2,2)}\ns_waitcnt lgkmcnt(0)\nv_writelane_b32 {v(vSTMP)}, {s(sTS)}, 61\nv_writelane_b32 {v(vSTMP)}, {s(sTS+2)}, 60')
    if cfg.cal>=0:
        lab='L_cal%d'%len(a.lines)
        a(f'''s_cmp_lg_u32 s2, {cfg.calwg}
        s_cbranch_scc1 {lab}
        s_cmp_lg_u32 {s(sW)}, 0
        s_cbranch_scc1 {lab}
        v_readlane_b32 {s(sT)}, {v(vSTMP)}, {cfg.cal}
        v_readlane_b32 {s(sT+1)}, {v(vSTMP)}, 63
        s_sub_u32 {s(sT)}, {s(sT)}, {s(sT+1)}
        s_lshl_b32 {s(sT)}, {s(sT)}, 2
        s_add_u32 {s(sT)}, {s(sT)}, 3000
        s_min_u32 {s(sT)}, {s(sT)}, 50000
        {lab}_l:
        s_memrealtime {s(sTS,2)}
        s_waitcnt lgkmcnt(0)
        s_sub_u32 {s(sT+2)}, {s(sTS)}, {s(sT+1)}
        s_cmp_lt_u32 {s(sT+2)}, {s(sT)}
        s_cbranch_scc1 {lab}_l
        {lab}:''')
        return
    a(f'''s_lshl_b32 {s(sT)}, s2, 11
    s_lshl_b32 {s(sT+1)}, {s(sW)}, 8
    s_add_u32 {s(sT)}, {s(sT)}, {s(sT+1)}
    s_add_u32 {s(sT)}, {s(sT)}, {STAMP}
    v_lshlrev_b32 {v(vLane)}, 2, {v(vLane)}
    buffer_store_dword {v(vSTMP)}, {v(vLane)}, {WS}, {s(sT)} offen''')
def maxchk(regs, t):
    regs=list(regs)
    a(f'v_max3_u32 {v(t)}, {v(regs[0])}, {v(regs[1])}, {v(regs[2])}')
    rest=regs[3:]
    while len(rest)>=2:
        a(f'v_max3_u32 {v(t)}, {v(t)}, {v(rest[0])}, {v(rest[1])}'); rest=rest[2:]
    if rest: a(f'v_max_u32 {v(t)}, {v(t)}, {v(rest[0])}')
    a(f'v_cmp_eq_u32 vcc, -1, {v(t)}')
def phchk(regs, t):
    regs=list(regs)
    a(f'v_bitop3_b32 {v(t)}, {v(regs[0])}, {v(regs[1])}, {s(sPh)} bitop3:0x7e')
    for r in regs[2:]: a(f'v_bitop3_b32 {v(t)}, {v(t)}, {v(r)}, {s(sPh)} bitop3:0xf6')
    a(f'v_and_b32 {v(t)}, 1, {v(t)}\nv_cmp_ne_u32 vcc, 0, {v(t)}')
def tag4chk(r):
    for k in range(4): a(f'v_xor_b32 {v(r+k)}, {s(sTag)}, {v(r+k)}')
    a(f'v_or3_b32 {v(r)}, {v(r)}, {v(r+1)}, {v(r+2)}\nv_or_b32 {v(r)}, {v(r)}, {v(r+3)}\nv_cmp_ne_u32 vcc, 0, {v(r)}')
DPP='row_mask:0xf bank_mask:0xf'

def fft_core(xr, xi, U, V, F, P, fill1='', fill2=''):
    Ur,Ui=U,U+4
    a(f'v_mfma_f32_16x16x32_f16 {v(Ur,4)}, {v(xr,4)}, {v(B1C,4)}, 0')
    a(f'v_mfma_f32_16x16x32_f16 {v(Ui,4)}, {v(xr,4)}, {v(B1N,4)}, 0')
    if xi is not None:
        a(f'v_mfma_f32_16x16x32_f16 {v(Ur,4)}, {v(xi,4)}, {v(B1S,4)}, {v(Ur,4)}')
        a(f'v_mfma_f32_16x16x32_f16 {v(Ui,4)}, {v(xi,4)}, {v(B1C,4)}, {v(Ui,4)}')
    a(fill1)
    Vr,Vi=V,V+4
    for h in (0,2):
        a(f'v_pk_mul_f32 {v(Vi+h,2)}, {v(Ur+h,2)}, {v(TWS+h,2)}')
    for h in (0,2):
        a(f'v_pk_mul_f32 {v(Vr+h,2)}, {v(Ui+h,2)}, {v(TWS+h,2)}')
    for h in (0,2):
        a(f'v_pk_fma_f32 {v(Vr+h,2)}, {v(Ur+h,2)}, {v(TWC+h,2)}, {v(Vr+h,2)}')
        a(f'v_pk_fma_f32 {v(Vi+h,2)}, {v(Ui+h,2)}, {v(TWC+h,2)}, {v(Vi+h,2)} neg_lo:[0,0,1] neg_hi:[0,0,1]')
    for r in range(4): a(f'v_cvt_pk_f16_f32 {v(P+r)}, {v(Vr+r)}, {v(Vi+r)}')
    a(f'v_mfma_f32_16x16x32_f16 {v(F,4)}, {v(A2R,4)}, {v(P,4)}, 0')
    a(f'v_mfma_f32_16x16x32_f16 {v(F+4,4)}, {v(A2I,4)}, {v(P,4)}, 0')
    a(fill2)
    for r in range(4): a(f'v_cvt_pk_f16_f32 {v(P+r)}, {v(F+r)}, {v(F+4+r)}')

SENT=T+4
def g2late():
    return '\n'.join(f'v_mov_b32 {v(LNP+k)}, -1' for k in range(4))+f'\ns_mov_b32 {s(sT+14)}, {GBASE+GR}\nbuffer_store_dwordx4 {v(LNP,4)}, {v(vGst)}, {WS}, {s(sT+14)} offen sc1'

def main_prologue():
    t=T
    X0=BC
    a(f'''
    s_mul_i32 {s(sLld)}, {s(sX)}, {LX}
    s_add_u32 {s(sLld)}, {s(sLld)}, {LBASE}
    s_mul_i32 {s(sLst)}, {s(sJ)}, {PS}
    s_add_u32 {s(sLst)}, {s(sLst)}, {s(sLld)}
    v_lshlrev_b32 {v(t)}, 4, v0
    v_lshrrev_b32 {v(t+1)}, 4, v0
    {f's_load_dword {s(sTag)}, s[8:9], 0' if not cfg.ep0 else ''}
    ''')
    a(f'''
    buffer_load_dwordx4 {v(X0+8,4)}, {v(t)}, {WS}, {s(sLst)} offen sc1
    s_mov_b32 {s(sG0)}, {GBASE}
    s_mul_i32 {s(sT)}, {s(sX)}, {GS}
    s_add_u32 {s(sT+2)}, {s(sJ)}, 24
    s_and_b32 {s(sT+2)}, {s(sT+2)}, 24
    s_lshl_b32 {s(sT+2)}, {s(sT+2)}, 12
    s_add_u32 {s(sT)}, {s(sT)}, {s(sT+2)}
    s_cmp_gt_u32 {s(sW)}, 3
    {f's_cselect_b32 {s(sT)}, s10, {s(sT)}' if cfg.g2pos!=7 else ''}
    {f's_cselect_b32 {s(sT+5)}, {GBASE+GR-32768}, {s(sG0)}' if cfg.g2pos==7 else ''}
    {f's_cselect_b32 {s(sT+6)}, s10, 0' if cfg.g2pos==7 else ''}
    s_and_b32 {s(sT+2)}, {s(sJ)}, 7
    s_cmp_lt_u32 {s(sJ)}, 8
    s_cselect_b32 {s(sT+3)}, 7, 8
    s_cselect_b32 {s(sT+4)}, 112, 0
    s_lshl_b32 {s(sT+2)}, {s(sT+2)}, {s(sT+3)}
    s_add_u32 {s(sT)}, {s(sT)}, {s(sT+2)}
    v_lshlrev_b32 {v(t+2)}, 4, {v(vN)}
    v_lshl_add_u32 {v(vGst)}, {v(t+1)}, 11, {v(t+2)}
    v_and_b32 {v(t+3)}, 8, {v(vN)}
    v_mad_u32_u24 {v(vGst)}, {v(t+3)}, {s(sT+4)}, {v(vGst)}
    v_add_u32 {v(vGst)}, {s(sT)}, {v(vGst)}
    ''')
    a(f'''
    buffer_store_dwordx4 {v(SENT,4)}, {v(vGst)}, {WS}, {s(sG0 if cfg.g2pos!=7 else sT+5)} offen sc1
    {f'v_add_u32 {v(vGst)}, {s(sT+6)}, {v(vGst)}' if cfg.g2pos==7 else ''}
    v_and_b32 {v(BC+6)}, 0x3f0, {v(t)}
    global_load_dwordx2 {v(BC+4,2)}, {v(vUW)}, s[16:17]
    global_load_dwordx4 {v(WV,4)}, {v(BC+6)}, s[16:17]
    s_cmp_lg_u32 {s(sW)}, 0
    s_cbranch_scc1 L_nw0 ;!nd
    buffer_load_dword {v(BC+12)}, off, {WS}, 0 sc1
    buffer_load_dword {v(X0+7)}, {v(vL8)}, {WS}, {s(sTabLd)} offen sc1
    s_and_b32 {s(sT+14)}, {s(sJ)}, 24
    s_add_u32 {s(sT+14)}, {s(sT+14)}, {s(sX)}
    s_and_b32 {s(sT+13)}, {s(sJ)}, 7
    s_lshl3_add_u32 {s(sT+15)}, {s(sT+14)}, {s(sT+13)}
    s_lshl_b32 {s(sT+15)}, {s(sT+15)}, 10
    s_cmp_lt_u32 {s(sT+14)}, 4
    s_cselect_b32 {s(sT+15)}, s10, {s(sT+15)}
    buffer_store_dwordx4 {v(SENT,4)}, {v(t)}, {WS}, {s(sT+15)} offen sc1
    L_nw0:
    ''')
    if cfg.exp&2: stamp(); a('s_waitcnt vmcnt(4)'); stamp()
    c=t+8; co,si=c+8,c+12
    a(f'''
    s_lshr_b32 {s(sT)}, {s(sJ)}, 2
    s_and_b32 {s(sT)}, {s(sT)}, 6                 ; 2*(j>>3)
    s_lshl_b32 {s(sT+1)}, {s(sW)}, 2
    s_and_b32 {s(sT+1)}, {s(sT+1)}, 8             ; 2*4*((w>>1)&1)
    s_cmp_lt_u32 {s(sJ)}, 8
    s_cselect_b32 {s(sT)}, {s(sT+1)}, {s(sT)}
    s_cselect_b32 {s(sT+4)}, 0, -1
    s_mov_b32 {s(sT+5)}, 0x44440054
    s_cmp_eq_u32 {s(sX)}, 0
    s_cselect_b32 {s(sT+4)}, 1, {s(sT+4)}
    s_cselect_b32 {s(sT+5)}, {s(sT+5)}, 0x55550054
    s_cselect_b32 {s(sT+2)}, 0, 1
    s_lshl_b32 {s(sT)}, {s(sT)}, {s(sT+2)}
    s_lshl_b32 {s(sT+1)}, {s(sW)}, 4
    s_and_b32 {s(sT+1)}, {s(sT+1)}, 16            ; 16*(w&1)
    s_mul_i32 {s(sT+2)}, {s(sT+1)}, {s(sT+4)}
    s_cmp_ge_u32 {s(sW)}, 4
    s_cselect_b32 {s(sT+2)}, {s(sT+2)}, 0         ; +-16k
    s_cselect_b32 {s(sT)}, {s(sT)}, 0
    s_cmp_eq_u32 {s(sW)}, 3
    s_cselect_b32 {s(sT)}, 16, {s(sT)}
    s_lshl_b32 {s(sT+3)}, {s(sW)}, 2
    s_lshr_b32 {s(sT+3)}, {s(sT+5)}, {s(sT+3)}
    s_and_b32 {s(sT+3)}, {s(sT+3)}, 15            ; log2 A
    v_lshlrev_b32 {v(c)}, {s(sT+3)}, {v(vN)}
    v_add_u32 {v(c)}, {s(sT)}, {v(c)}
    v_lshl_add_u32 {v(c+1)}, {v(vQ)}, 2, {s(sT+2)}
    v_cvt_f32_u32 {v(c)}, {v(c)}
    v_cvt_f32_i32 {v(c+1)}, {v(c+1)}
    s_mov_b32 {s(sK512)}, {fbits(1/512)}
    v_mul_f32 {v(c)}, {s(sK512)}, {v(c)}
    v_mul_f32 {v(c+4)}, {v(c+1)}, {v(c)}
    v_add_f32 {v(c+5)}, {v(c+4)}, {v(c)}
    v_add_f32 {v(c+6)}, {v(c+5)}, {v(c)}
    v_add_f32 {v(c+7)}, {v(c+6)}, {v(c)}
    ''')
    fill=[f's_mov_b32 {s(sEps)}, {fbits(1e-5)}', f's_mov_b32 {s(sEps+1)}, {fbits(1e-5)}', f's_mov_b32 {s(sC16)}, {fbits(1/16)}', f's_mov_b32 {s(sC16+1)}, {fbits(1/16)}',
          f's_mov_b32 {s(sTop)}, 0x80000000', f's_mov_b32 {s(sQmask)}, 0x11111111', f's_mov_b32 {s(sQmask+1)}, 0x11111111', f's_mov_b32 {s(sG4)}, {GBASE+4*GS}']
    for r in range(4):
        a(f'v_cos_f32 {v(co+r)}, {v(c+4+r)}'); a(fill[2*r])
        a(f'v_sin_f32 {v(si+r)}, {v(c+4+r)}'); a(fill[2*r+1])
    a(f'''
    s_lshl_b32 {s(sT)}, {s(sW)}, 11
    s_add_u32 {s(sT)}, {s(sT)}, {L_CX}
    v_lshlrev_b32 {v(c+2)}, 4, {v(vLane)}
    v_add_u32 {v(c+3)}, {s(sT)}, {v(c+2)}
    s_and_b32 {s(sT)}, {s(sW)}, 6
    s_cmp_eq_u32 {s(sT)}, 2
    s_cbranch_scc1 L_cw
    s_cmp_eq_u32 {s(sW)}, 1
    s_cbranch_scc1 L_cri
    v_cvt_pk_f16_f32 {v(co)}, {v(co)}, {v(co+1)}
    v_cvt_pk_f16_f32 {v(co+1)}, {v(co+2)}, {v(co+3)}
    v_cvt_pk_f16_f32 {v(co+2)}, {v(si)}, {v(si+1)}
    v_cvt_pk_f16_f32 {v(co+3)}, {v(si+2)}, {v(si+3)}
    s_branch L_cw
    L_cri:
    ''')
    for r in range(4):
        a(f'v_cvt_pk_f16_f32 {v(c+4)}, {v(co+r)}, {v(si+r)}')
        a(f'v_cvt_pk_f16_f32 {v(si+r)}, -{v(si+r)}, {v(co+r)}')
        a(f'v_mov_b32 {v(co+r)}, {v(c+4)}')
        a(f'v_xor_b32 {v(si+r)}, {s(sMP)}, {v(si+r)}')
    a(f'''
    L_cw:
    ds_write_b128 {v(c+3)}, {v(co,4)}
    ds_write_b128 {v(c+3)}, {v(si,4)} offset:1024
    v_lshrrev_b32 {v(c+4)}, 2, {v(vN)}
    v_and_b32 {v(c+5)}, 2, {v(vN)}
    v_and_b32 {v(c+6)}, 14, {v(vN)}
    v_cmp_eq_u32 vcc, 2, {v(c+6)}
    v_lshlrev_b32 {v(vStR)}, 8, {v(vQ)}
    v_cndmask_b32 {v(c+4)}, {v(c+4)}, 4, vcc
    v_cndmask_b32 {v(c+5)}, {v(c+5)}, 0, vcc
    v_mul_u32_u24 {v(c+6)}, {v(c+4)}, {v(vQ)}
    v_lshl_add_u32 {v(c+6)}, {v(c+6)}, 1, {v(c+5)}
    v_add_u32 {v(c+7)}, {v(c+6)}, {v(c+4)}
    v_cvt_f32_u32 {v(c+6)}, {v(c+6)}
    v_cvt_f32_u32 {v(c+7)}, {v(c+7)}
    v_mul_f32 {v(c+6)}, 0x3e000000, {v(c+6)}
    v_mul_f32 {v(c+7)}, 0x3e000000, {v(c+7)}
    v_cos_f32 {v(c+6)}, {v(c+6)}
    v_cos_f32 {v(c+7)}, {v(c+7)}
    v_and_b32 {v(c+5)}, 1, {v(vN)}
    v_cmp_eq_u32 vcc, 0, {v(c+5)}
    v_cvt_pk_f16_f32 {v(c+6)}, {v(c+6)}, {v(c+7)}
    v_mov_b32 {v(c+5)}, 0x80008000
    v_cndmask_b32 {v(A8)}, 0, {v(c+6)}, vcc
    v_cndmask_b32 {v(A8+1)}, {v(c+6)}, 0, vcc
    v_cndmask_b32 {v(c+5)}, {v(c+5)}, 0, vcc
    s_lshl_b32 {s(sT+1)}, {s(sT+1)}, 7            ; h*2048
    v_add_u32 {v(c+6)}, {s(sT+1)}, {v(c+2)}
    s_lshl_b32 {s(sT+2)}, {s(sW)}, 10
    s_and_b32 {s(sT+2)}, {s(sT+2)}, 4096          ; (w>>2)*4096
    v_add_u32 {v(c+7)}, {s(sT+2)}, {v(c+2)}
    ''')
    if cfg.exp&4: stamp()
    a(f'''
    s_waitcnt lgkmcnt(0)
    s_barrier
    ''')
    if cfg.exp&4: stamp()
    a(f'''
    ds_read_b128 {v(B1N,4)}, {v(c+2)} offset:{L_CX}
    ds_read_b128 {v(A2R,4)}, {v(c+2)} offset:{L_CX+2048}
    ds_read_b128 {v(A2I,4)}, {v(c+2)} offset:{L_CX+2048+1024}
    ds_read_b128 {v(TWC,4)}, {v(c+6)} offset:{L_CX+4096}
    ds_read_b128 {v(TWS,4)}, {v(c+6)} offset:{L_CX+4096+1024}
    ds_read2st64_b64 {v(YC,4)}, {v(c+7)} offset0:{(L_CX+4*2048)//512} offset1:{(L_CX+5*2048)//512}
    v_add_u32 {v(c+7)}, 8, {v(c+7)}
    ds_read2st64_b64 {v(YS,4)}, {v(c+7)} offset0:{(L_CX+4*2048)//512} offset1:{(L_CX+5*2048)//512}
    v_and_b32 {v(c+4)}, 4, {v(vN)}
    s_lshl_b32 {s(sT)}, {s(sW)}, 2
    v_lshl_add_u32 {v(vStW)}, {v(t+3)}, 2, {v(vStR)}
    v_lshl_add_u32 {v(vStW)}, {v(c+4)}, 4, {v(vStW)}
    v_add_u32 {v(vStW)}, {s(sT)}, {v(vStW)}
    v_and_b32 {v(c+4)}, 7, {v(vN)}
    v_lshl_add_u32 {v(vStR)}, {v(c+4)}, 5, {v(vStR)}
    v_lshl_add_u32 {v(vUW)}, {v(vQ)}, 11, {v(vUW)}
    v_add_u32 {v(vUW)}, {L_U}, {v(vUW)}
    s_lshr_b32 {s(sT)}, {s(sW)}, 1
    s_lshl_b32 {s(sT)}, {s(sT)}, 11
    s_add_u32 {s(sT+2)}, {s(sT)}, {L_U}
    v_lshl_add_u32 {v(vUR)}, {v(vLane)}, 3, {s(sT+2)}
    ; vLst = w'*2048 + 512q + 64h + 4n
    s_lshr_b32 {s(sT+2)}, {s(sT+1)}, 5
    s_add_u32 {s(sT)}, {s(sT)}, {s(sT+2)}
    v_lshl_add_u32 {v(vLst)}, {v(vQ)}, 9, {s(sT)}
    v_lshl_add_u32 {v(vLst)}, {v(vN)}, 2, {v(vLst)}
    s_lshl_b32 {s(sT+3)}, {s(sW)}, 31             ; h sign
    s_mov_b32 {s(sT+5)}, 0x80008000
    s_mov_b32 {s(sIt)}, 0
    s_waitcnt lgkmcnt(6)
    v_xor_b32 {v(B1C)}, {s(sT+3)}, {v(B1N)}
    v_xor_b32 {v(B1C+1)}, {s(sT+3)}, {v(B1N+1)}
    v_xor_b32 {v(B1S)}, {s(sT+3)}, {v(B1N+2)}
    v_xor_b32 {v(B1S+1)}, {s(sT+3)}, {v(B1N+3)}
    v_xor_b32 {v(B1C+2)}, {v(B1C)}, {v(c+5)}
    v_xor_b32 {v(B1C+3)}, {v(B1C+1)}, {v(c+5)}
    v_xor_b32 {v(B1S+2)}, {v(B1S)}, {v(c+5)}
    v_xor_b32 {v(B1S+3)}, {v(B1S+1)}, {v(c+5)}
    ''')
    for r in range(4): a(f'v_xor_b32 {v(B1N+r)}, {s(sT+5)}, {v(B1S+r)}')
    if cfg.ypos==2: a('s_waitcnt lgkmcnt(0)'); y_setup(c)
    a(f'''
    s_waitcnt vmcnt(7)
    s_cmp_eq_u32 {s(sW)}, 0
    s_cbranch_scc1 L_x0 ;!nd
    s_waitcnt vmcnt(4)
    L_x0:
    ''')
    for rho in (0,1):
        for k in (0,1):
            src=X0+2*rho+k
            a(f'v_lshlrev_b32 {v(X+4*k+rho)}, 16, {v(src)}')
            a(f'v_and_b32 {v(X+4*k+2+rho)}, 0xffff0000, {v(src)}')
    if not cfg.ep0: a(f's_add_u32 {s(sTag)}, {s(sTag)}, 1')

def y_setup(u):
    a(f'''
    v_lshrrev_b32 {v(u+1)}, 4, v0
    v_lshlrev_b32 {v(u+2)}, 4, {v(vN)}
    v_lshrrev_b32 {v(vYIR)}, 2, {v(vN)}
    v_mul_u32_u24 {v(vYIR)}, {YIS}, {v(vYIR)}
    ''')
    a(f'''
    s_lshl_b32 {s(sT+1)}, {s(sW)}, 5              ; 32w
    s_add_u32 {s(sT)}, {s(sT+1)}, {L_YT}
    v_mul_u32_u24 {v(vYW)}, 272, {v(vN)}
    v_lshl_add_u32 {v(vYW)}, {v(vQ)}, 3, {v(vYW)}
    v_add_u32 {v(vYW)}, {s(sT)}, {v(vYW)}
    v_mul_u32_u24 {v(vYR)}, 272, {v(u+1)}
    v_add_u32 {v(vYR)}, {v(vYR)}, {v(u+2)}
    v_add_u32 {v(vYR)}, {L_YT}, {v(vYR)}
    s_add_u32 {s(sT+1)}, {s(sT+1)}, {L_YI}
    v_mul_u32_u24 {v(u+3)}, {4*YIS}, {v(vQ)}
    v_and_b32 {v(u+4)}, 0x18, {v(vL8)}
    v_add3_u32 {v(vYIR)}, {v(vYIR)}, {v(u+3)}, {v(u+4)}
    v_add_u32 {v(vYIR)}, {s(sT+1)}, {v(vYIR)}
    s_cmp_lt_u32 {s(sJ)}, 8
    s_cbranch_scc1 L_aself
    v_mul_u32_u24 {v(vLld)}, {PS}, {v(u+1)}
    v_mul_u32_u24 {v(vYIW)}, {YIS}, {v(u+1)}
    s_lshl_b32 {s(sT)}, {s(sJ)}, 8
    v_add3_u32 {v(vLld)}, {v(vLld)}, {v(u+2)}, {s(sT)}
    v_add_u32 {v(vYIW)}, {v(vYIW)}, {v(u+2)}
    v_mov_b32 {v(vLldM)}, 0
    s_branch L_adone
    L_aself:
    ; s2=(w>>1)*8+(l>>3), u=l&7, which=w&1
    s_lshl_b32 {s(sT)}, {s(sW)}, 2
    s_and_b32 {s(sT)}, {s(sT)}, 24
    v_lshrrev_b32 {v(u+3)}, 3, {v(vLane)}
    v_add_u32 {v(u+3)}, {s(sT)}, {v(u+3)}
    v_and_b32 {v(u+4)}, 0x70, {v(u+2)}
    v_mul_u32_u24 {v(vLldM)}, {PS}, {v(u+3)}
    v_mul_u32_u24 {v(vYIW)}, {YIS}, {v(u+3)}
    s_lshl_b32 {s(sT)}, {s(sJ)}, 7
    s_add_u32 {s(sT+1)}, {s(sT)}, 4
    s_sub_u32 {s(sT)}, {508*4}, {s(sT)}
    v_add3_u32 {v(vLld)}, {v(vLldM)}, {v(u+4)}, {s(sT+1)}
    v_sub_u32 {v(vLldM)}, {v(vLldM)}, {v(u+4)}
    v_add_u32 {v(vLldM)}, {s(sT)}, {v(vLldM)}
    s_and_b32 {s(sT)}, {s(sW)}, 1
    s_lshl_b32 {s(sT)}, {s(sT)}, 7
    v_add3_u32 {v(vYIW)}, {v(vYIW)}, {v(u+4)}, {s(sT)}
    L_adone:
    v_add_u32 {v(vYIW)}, {L_YI}, {v(vYIW)}
    ''')

def w_setup():
    w=BC+8
    a(f'''
    v_mov_b32 {v(w+1)}, 0x3f803f80
    v_dot2_f32_bf16 {v(w)}, {v(WV)}, {v(w+1)}, 0
    v_dot2_f32_bf16 {v(w)}, {v(WV+1)}, {v(w+1)}, {v(w)}
    v_dot2_f32_bf16 {v(w)}, {v(WV+2)}, {v(w+1)}, {v(w)}
    v_dot2_f32_bf16 {v(w)}, {v(WV+3)}, {v(w+1)}, {v(w)}
    v_lshlrev_b32 {v(WV)}, 16, {v(BC+4)}
    v_and_b32 {v(WV+1)}, 0xffff0000, {v(BC+4)}
    v_lshlrev_b32 {v(WV+2)}, 16, {v(BC+5)}
    v_add_f32_dpp {v(w)}, {v(w)}, {v(w)} row_ror:8 {DPP}
    v_and_b32 {v(WV+3)}, 0xffff0000, {v(BC+5)}
    v_mul_f32 {v(WV)}, 0x44000000, {v(WV)}
    v_add_f32_dpp {v(w)}, {v(w)}, {v(w)} row_ror:4 {DPP}
    v_mul_f32 {v(WV+1)}, 0x44000000, {v(WV+1)}
    v_mul_f32 {v(WV+2)}, 0x44000000, {v(WV+2)}
    v_add_f32_dpp {v(w)}, {v(w)}, {v(w)} row_ror:2 {DPP}
    v_mul_f32 {v(WV+3)}, 0x44000000, {v(WV+3)}
    v_add_f32_dpp {v(w)}, {v(w)}, {v(w)} row_ror:1 {DPP}
    v_add_f32_dpp {v(w)}, {v(w)}, {v(w)} row_bcast:15 row_mask:0xa bank_mask:0xf
    v_add_f32_dpp {v(w)}, {v(w)}, {v(w)} row_bcast:31 row_mask:0xc bank_mask:0xf
    v_readlane_b32 {s(sT)}, {v(w)}, 63
    ''')
    for k in range(4): a(f'v_subrev_f32 {v(WV+k)}, {s(sT)}, {v(WV+k)}')

def xin_consts(c):
    a(f'''
    s_and_b32 {s(sT)}, {s(sGg)}, 3               ; 0 => self
    s_lshr_b32 {s(sT+1)}, {s(sW)}, 2
    s_bfe_u32 {s(sT+2)}, {s(sGg)}, 0x10002
    s_mov_b32 {s(sSc)}, {fbits(16.0)}
    s_cmp_eq_u32 {s(sT)}, 0
    s_cselect_b32 {s(sMir)}, {s(sT+1)}, {s(sT+2)}
    s_cselect_b32 {s(sSc)}, {fbits(8.0)}, {s(sSc)}
    s_cselect_b32 {s(sDsc)}, {fbits(1/8)}, {s(sC16)}
    s_cselect_b32 {s(sT+3)}, -4, 0
    s_mov_b32 {s(sSc+1)}, {s(sSc)}
    s_sub_u32 {s(sT+4)}, 256, {s(sGg)}
    s_and_b32 {s(sT+4)}, {s(sT+4)}, 255
    s_cmp_eq_u32 {s(sMir)}, 0
    s_cselect_b32 {s(sT+4)}, {s(sGg)}, {s(sT+4)}       ; source g
    s_cselect_b32 {s(sT+5)}, 16, -16
    s_cselect_b32 {s(sT+6)}, 0, {509*4}
    s_cselect_b32 {s(sT+7)}, 1.0, -1.0
    s_add_u32 {s(sT+3)}, {s(sT+3)}, {s(sT+6)}
    s_mul_i32 {s(sT+6)}, {s(sT+5)}, {s(sW)}
    s_lshl_b32 {s(sT+6)}, {s(sT+6)}, 4
    s_add_u32 {s(sT+3)}, {s(sT+3)}, {s(sT+6)}
    s_and_b32 {s(sT+6)}, {s(sT+4)}, 0x78
    s_lshl_b32 {s(sT+6)}, {s(sT+6)}, 8
    s_add_u32 {s(sT+3)}, {s(sT+3)}, {s(sT+6)}
    s_add_u32 {s(sT+6)}, {s(sT+4)}, 3
    s_and_b32 {s(sT+6)}, {s(sT+6)}, 3
    s_lshl_b32 {s(sT+6)}, {s(sT+6)}, 15
    s_add_u32 {s(sT+3)}, {s(sT+3)}, {s(sT+6)}
    s_and_b32 {s(sT+6)}, {s(sT+4)}, 4
    s_lshl_b32 {s(sT+6)}, {s(sT+6)}, 8
    s_add_u32 {s(sT+3)}, {s(sT+3)}, {s(sT+6)}
    v_mul_i32_i24 {v(vGld)}, {s(sT+5)}, {v(vN)}
    v_mul_u32_u24 {v(c+4)}, {GS}, {v(vQ)}
    v_add3_u32 {v(vGld)}, {v(vGld)}, {v(c+4)}, {s(sT+3)}
    v_lshrrev_b32 {v(c+4)}, 1, {v(vN)}
    v_and_b32 {v(c+4)}, 6, {v(c+4)}
    v_and_or_b32 {v(c+4)}, {v(vN)}, 1, {v(c+4)}
    v_lshl_add_u32 {v(AD)}, {v(c+4)}, 8, {s(sGg)}
    v_cvt_f32_u32 {v(c+4)}, {v(AD)}
    v_cvt_f32_u32 {v(c+5)}, {v(vQ)}
    v_mul_f32 {v(c+4)}, {fbits(1/2048)}, {v(c+4)}
    v_mul_f32 {v(c+4)}, {s(sT+7)}, {v(c+4)}
    v_mul_f32 {v(c+5)}, {v(c+4)}, {v(c+5)}
    v_fma_f32 {v(c+6)}, {v(c+4)}, 4.0, {v(c+5)}
    v_cos_f32 {v(c+7)}, {v(c+5)}
    v_sin_f32 {v(c+8)}, {v(c+5)}
    v_cos_f32 {v(c+9)}, {v(c+6)}
    v_sin_f32 {v(c+10)}, {v(c+6)}
    v_bfe_u32 {v(c+4)}, {v(vN)}, 1, 1
    v_cmp_eq_u32 vcc, {s(sMir)}, {v(c+4)}
    v_cvt_pk_f16_f32 {v(c+7)}, {v(c+7)}, {v(c+8)}
    s_lshr_b32 {s(sT+6)}, {s(sT+4)}, 3
    s_and_b32 {s(sT+6)}, {s(sT+6)}, 16
    s_lshl_b32 {s(sT+6)}, 0x3c00, {s(sT+6)}
    s_mov_b64 exec, 0xffff
    v_mov_b32 {v(c+7)}, {s(sT+6)}
    s_mov_b64 exec, -1
    v_cvt_pk_f16_f32 {v(c+9)}, {v(c+9)}, {v(c+10)}
    v_cndmask_b32 {v(XA)}, 0, {v(c+7)}, vcc
    v_cndmask_b32 {v(XA+1)}, {v(c+7)}, 0, vcc
    v_cndmask_b32 {v(XA+2)}, 0, {v(c+9)}, vcc
    v_cndmask_b32 {v(XA+3)}, {v(c+9)}, 0, vcc
    v_and_b32 {v(c+4)}, 0x1cf, v0
    v_cmp_eq_u32 vcc, 0, {v(c+4)}
    v_mov_b32 {v(c+5)}, {s(sSc)}
    s_sub_u32 {s(sT)}, 2047, {s(sGg)}
    v_lshlrev_b32 {v(vInv)}, 9, {v(vQ)}
    v_cndmask_b32 {v(vSc0)}, {v(c+5)}, 0, vcc
    v_cndmask_b32 {v(vSc0+1)}, {v(c+5)}, 0, vcc
    v_sub_u32 {v(vInv)}, {s(sT)}, {v(vInv)}
    s_lshl_b32 {s(sSlot)}, {s(sX)}, 12
    s_add_u32 {s(sSlot)}, {s(sSlot)}, {SLOT}
    ''')

def main_loop():
    t=T
    S1,S2,S3=t,t+2,t+4
    a('L_top:')
    stamp()
    a(f'''
    v_pk_add_f32 {v(S1,2)}, {v(X,2)}, {v(X+2,2)}
    v_pk_add_f32 {v(t+6,2)}, {v(X+4,2)}, {v(X+6,2)}
    v_pk_mul_f32 {v(S2,2)}, {v(X,2)}, {v(X,2)}
    v_pk_mul_f32 {v(S3,2)}, {v(X,2)}, {v(WV,2)} op_sel:[0,0] op_sel_hi:[1,0]
    v_pk_add_f32 {v(S1,2)}, {v(S1,2)}, {v(t+6,2)}
    v_pk_fma_f32 {v(S2,2)}, {v(X+2,2)}, {v(X+2,2)}, {v(S2,2)}
    v_pk_fma_f32 {v(S3,2)}, {v(X+2,2)}, {v(WV,2)}, {v(S3,2)} op_sel:[0,1,0] op_sel_hi:[1,1,1]
    v_add_f32_dpp {v(S1)}, {v(S1)}, {v(S1)} row_ror:8 row_mask:0xf bank_mask:0x3
    v_pk_fma_f32 {v(S2,2)}, {v(X+4,2)}, {v(X+4,2)}, {v(S2,2)}
    v_pk_fma_f32 {v(S3,2)}, {v(X+4,2)}, {v(WV+2,2)}, {v(S3,2)} op_sel:[0,0,0] op_sel_hi:[1,0,1]
    v_add_f32_dpp {v(S1)}, {v(S1+1)}, {v(S1+1)} row_ror:8 row_mask:0xf bank_mask:0xc
    v_pk_fma_f32 {v(S2,2)}, {v(X+6,2)}, {v(X+6,2)}, {v(S2,2)}
    v_pk_fma_f32 {v(S3,2)}, {v(X+6,2)}, {v(WV+2,2)}, {v(S3,2)} op_sel:[0,1,0] op_sel_hi:[1,1,1]
    v_add_f32_dpp {v(S1)}, {v(S1)}, {v(S1)} row_half_mirror row_mask:0xf bank_mask:0x5
    v_add_f32_dpp {v(S2)}, {v(S2)}, {v(S2)} row_ror:8 row_mask:0xf bank_mask:0x3
    v_add_f32_dpp {v(S3)}, {v(S3)}, {v(S3)} row_ror:8 row_mask:0xf bank_mask:0x3
    v_add_f32_dpp {v(S2)}, {v(S2+1)}, {v(S2+1)} row_ror:8 row_mask:0xf bank_mask:0xc
    v_add_f32_dpp {v(S3)}, {v(S3+1)}, {v(S3+1)} row_ror:8 row_mask:0xf bank_mask:0xc
    v_add_f32_dpp {v(S1)}, {v(S2)}, {v(S2)} row_half_mirror row_mask:0xf bank_mask:0xa
    v_add_f32_dpp {v(S3)}, {v(S3)}, {v(S3)} row_half_mirror {DPP}
    v_add_f32_dpp {v(S1)}, {v(S1)}, {v(S1)} quad_perm:[1,0,3,2] {DPP}
    v_add_f32_dpp {v(S3)}, {v(S3)}, {v(S3)} quad_perm:[1,0,3,2] {DPP}
    v_add_f32_dpp {v(S1)}, {v(S1)}, {v(S1)} quad_perm:[2,3,0,1] {DPP}
    v_add_f32_dpp {v(S3)}, {v(S3)}, {v(S3)} quad_perm:[2,3,0,1] {DPP}
    s_mov_b64 exec, {s(sQmask,2)}
    ds_write2_b32 {v(vStW)}, {v(S1)}, {v(S3)} offset0:0 offset1:32
    s_mov_b64 exec, -1
    ;@F
    ''')
    if cfg.g2pos==4: a(f's_cmp_lg_u32 {s(sIt)}, 1\ns_cbranch_scc1 L_nw\ns_waitcnt vmcnt(0)\nL_nw:')
    a(f'''
    s_waitcnt lgkmcnt(0)
    s_barrier
    ;@F
    ds_read_b128 {v(t,4)}, {v(vStR)}
    ds_read_b128 {v(t+4,4)}, {v(vStR)} offset:16
    s_waitcnt lgkmcnt(0)
    v_pk_add_f32 {v(t,2)}, {v(t,2)}, {v(t+2,2)}
    v_pk_add_f32 {v(t+4,2)}, {v(t+4,2)}, {v(t+6,2)}
    v_pk_add_f32 {v(t,2)}, {v(t,2)}, {v(t+4,2)}
    v_add_f32 {v(t)}, {v(t)}, {v(t+1)}
    v_mul_f32 {v(t+7)}, {s(sK512)}, {v(t)}
    ''')
    VAR,RS,CC,NM=t+8,t+10,t+12,t+14
    K=t+16
    a(f'''
    v_mov_b32_dpp {v(MM)}, {v(t+7)} row_newbcast:0 {DPP}
    v_mov_b32_dpp {v(MM+1)}, {v(t+7)} row_newbcast:1 {DPP}
    v_mov_b32_dpp {v(S2)}, {v(t+7)} row_newbcast:2 {DPP}
    v_mov_b32_dpp {v(S2+1)}, {v(t+7)} row_newbcast:3 {DPP}
    v_mov_b32_dpp {v(S3)}, {v(t+7)} row_newbcast:4 {DPP}
    v_pk_fma_f32 {v(VAR,2)}, {v(MM,2)}, {v(MM,2)}, {v(S2,2)} neg_lo:[1,0,0] neg_hi:[1,0,0]
    v_mov_b32_dpp {v(S3+1)}, {v(t+7)} row_newbcast:5 {DPP}
    v_pk_add_f32 {v(S1,2)}, {v(VAR,2)}, {s(sEps,2)}
    s_cmp_eq_u32 {s(sIt)}, 0
    v_rsq_f32_e64 {v(RS)}, |{v(S1)}|
    v_rsq_f32_e64 {v(RS+1)}, |{v(S1+1)}|
    s_cbranch_scc1 L_z0 ;!nd
    v_pk_mul_f32 {v(S3,2)}, {v(S3,2)}, {v(RS,2)}
    v_add_u32 {v(K+2)}, 0xffffff00, {v(vInv)}
    v_ashrrev_i32 {v(K)}, 31, {v(S3)}
    v_ashrrev_i32 {v(K+1)}, 31, {v(S3+1)}
    v_bitop3_b32 {v(K)}, {v(S3)}, {v(K)}, {s(sTop)} bitop3:0x1e
    v_bitop3_b32 {v(K+1)}, {v(S3+1)}, {v(K+1)}, {s(sTop)} bitop3:0x1e
    v_bfi_b32 {v(K)}, {s(sM7FF)}, {v(vInv)}, {v(K)}
    v_bfi_b32 {v(K+1)}, {s(sM7FF)}, {v(K+2)}, {v(K+1)}
    v_max_u32 {v(K+1)}, {v(K)}, {v(K+1)}
    v_pk_add_f32 {v(CC,2)}, {v(RS,2)}, 1.0 op_sel_hi:[1,0]
    v_mov_b32 {v(K)}, {s(sTag)}
    v_max_u32_dpp {v(K+1)}, {v(K+1)}, {v(K+1)} row_bcast:15 row_mask:0xa bank_mask:0xf
    v_pk_mul_f32 {v(VAR,2)}, {v(VAR,2)}, {v(CC,2)}
    s_cmp_lg_u32 {s(sW)}, 0
    v_max_u32_dpp {v(K+1)}, {v(K+1)}, {v(K+1)} row_bcast:31 row_mask:0xc bank_mask:0xf
    s_cbranch_scc1 L_nost ;!nd
    s_mov_b32 exec_lo, 0
    s_mov_b32 exec_hi, {s(sTop)}
    s_cmp_eq_u32 {s(sFast)}, 0
    s_cbranch_scc1 L_tabst_slow ;!nd
    buffer_store_dwordx2 {v(K,2)}, off, {WS}, {s(sTabSt)}
    L_tabst_back:
    s_mov_b64 exec, -1
    L_nost:
    v_readlane_b32 {s(sKey)}, {v(K+1)}, 63
    v_pk_mul_f32 {v(NM,2)}, {v(MM,2)}, {v(RS,2)}
    v_pk_fma_f32 {v(VAR,2)}, {v(VAR,2)}, {v(CC,2)}, {s(sEps,2)}
    ''')
    Z=t+18
    for c_ in range(4):
        a(f'v_pk_fma_f32 {v(Z+2*c_,2)}, {v(X+2*c_,2)}, {v(RS,2)}, {v(NM,2)} neg_lo:[0,0,1] neg_hi:[0,0,1]')
        if c_==0: a(f'v_rsq_f32_e64 {v(RS2)}, |{v(VAR)}|')
        if c_==1: a(f'v_rsq_f32_e64 {v(RS2+1)}, |{v(VAR+1)}|')
    for c_ in range(4):
        a(f'v_pk_add_f32 {v(X+2*c_,2)}, {v(X+2*c_,2)}, {v(Z+2*c_,2)}')
    for rho in (0,1):
        for k in (0,1):
            a(f'v_cvt_pk_bf16_f32 {v(LNP+2*rho+k)}, {v(Z+4*k+rho)}, {v(Z+4*k+2+rho)}')
    a(f'''
    ''')
    if cfg.pub0: a(f'''
    s_bitcmp0_b32 {s(sKey)}, 8
    s_cselect_b64 vcc, -1, 0
    s_andn2_b32 {s(sT+1)}, 0x600, {s(sKey)}
    s_lshr_b32 {s(sT+1)}, {s(sT+1)}, 5
    v_and_b32 {v(K)}, 0x3ff, {v(vXoff)}
    v_cndmask_b32 {v(LNP)}, {v(LNP)}, {v(LNP+2)}, vcc
    v_cndmask_b32 {v(LNP+1)}, {v(LNP+1)}, {v(LNP+3)}, vcc
    v_cndmask_b32 {v(LNP+2)}, {v(RS)}, {v(RS+1)}, vcc
    v_mov_b32 {v(K+1)}, {L_FLAG}
    s_bfm_b64 exec, 16, {s(sT+1)}
    ds_write_b64 {v(K)}, {v(LNP,2)} offset:{L_ROW}
    ds_write_b32 {v(K+1)}, {v(LNP+2)} offset:12
    s_mov_b64 exec, -1
    ''')
    a(f'''
    s_cmp_eq_u32 {s(sIt)}, 2
    s_cbranch_scc1 L_tab2e ;!nd
    v_mov_b32 {v(RS)}, {v(RS2)}
    v_mov_b32 {v(RS+1)}, {v(RS2+1)}
    L_z0:
    v_pk_mul_f32 {v(CC,2)}, {v(RS,2)}, {s(sC16,2)}
    L_z:
    ;@F
    ''')
    ZP=t; D0=t+4; D1=t+8
    a(f'v_pk_mul_f32 {v(NM,2)}, {v(MM,2)}, {v(CC,2)}')
    for c_ in range(4):
        a(f'v_pk_fma_f32 {v(Z+2*c_,2)}, {v(X+2*c_,2)}, {v(CC,2)}, {v(NM,2)} neg_lo:[0,0,1] neg_hi:[0,0,1]')
    for c_ in range(4): a(f'v_cvt_pk_f16_f32 {v(ZP+c_)}, {v(Z+2*c_)}, {v(Z+2*c_+1)}')
    a(f'''
    v_mfma_f32_16x16x16_f16 {v(D0,4)}, {v(A8,2)}, {v(ZP,2)}, 0
    v_mfma_f32_16x16x16_f16 {v(D1,4)}, {v(A8,2)}, {v(ZP+2,2)}, 0
    s_nop 6
    v_cvt_pk_f16_f32 {v(ZP)}, {v(D0)}, {v(D0+1)}
    v_cvt_pk_f16_f32 {v(ZP+1)}, {v(D1)}, {v(D1+1)}
    v_cvt_pk_f16_f32 {v(ZP+2)}, {v(D0+2)}, {v(D0+3)}
    v_cvt_pk_f16_f32 {v(ZP+3)}, {v(D1+2)}, {v(D1+3)}
    ds_write_b64 {v(vUW)}, {v(ZP,2)}
    ds_write_b64 {v(vUW)}, {v(ZP+2,2)} offset:1024
    ;@F
    ''')
    if cfg.ub:
        a(f'''
        s_cmp_ge_u32 {s(sW)}, {s(sIt)}
        s_cbranch_scc1 L_ub ;!nd
        L_ut:
        buffer_load_dwordx2 {v(t+24,2)}, {v(vL8)}, {WS}, {s(sTabLd)} offen sc1
        s_waitcnt vmcnt(0)
        v_cmp_ne_u32 vcc, {s(sTag)}, {v(t+24)}
        ''')
        poll_branch('L_ut', cfg.slp_t)
        a(f'''
        v_cmp_lt_u32 vcc, {s(sKey)}, {v(t+25)}
        v_mov_b32 {v(t+24)}, {s(sKey)}
        v_lshlrev_b32 {v(vTG)}, 4, {v(vLane)}
        s_waitcnt lgkmcnt(0)
        s_barrier
        s_cbranch_vccnz L_ub2 ;!nd
        ds_read_b128 {v(LNP,4)}, {v(vTG)} offset:{L_ROW}
        ds_read_b32 {v(t+25)}, {v(K+1)} offset:12
        s_waitcnt lgkmcnt(0)
        buffer_store_dwordx4 {v(LNP,4)}, {v(vTG)}, {WS}, {s(sSlot)} offen sc1
        s_mov_b64 exec, 1
        buffer_store_dwordx2 {v(t+24,2)}, off, {WS}, {s(sSlot)} offset:3072 sc1
        s_mov_b64 exec, -1
        s_branch L_ub2 ;!nd
        L_ub:
        ''')
    a(f'''
    s_waitcnt lgkmcnt(0)
    s_barrier
    L_ub2:
    ;@F
    ds_read_b64_tr_b16 {v(t,2)}, {v(vUR)}
    ds_read_b64_tr_b16 {v(t+2,2)}, {v(vUR)} offset:512
    ds_read_b64_tr_b16 {v(t+4,2)}, {v(vUR)} offset:1024
    ds_read_b64_tr_b16 {v(t+6,2)}, {v(vUR)} offset:1536
    ''')
    if not cfg.ub: a(f'''
    s_cmp_ge_u32 {s(sW)}, {s(sIt)}
    s_cbranch_scc1 L_tg1 ;!nd
    buffer_load_dwordx2 {v(t+24,2)}, {v(vL8)}, {WS}, {s(sTabLd)} offen sc1
    {f'ds_read_b128 {v(LNP,4)}, {v(vTG)} offset:{L_ROW}' if cfg.pub0 else ''}
    ''')
    a(f'''
    L_tg1:
    L_tg2:
    s_waitcnt lgkmcnt(0)
    ;@F
    ''')
    P=t
    fft_core(t, t+4, t+8, t+16, t+8, P)
    def lstores(fl, ph=None):
        for r in range(4):
            if ph==0: a(f'v_and_b32 {v(P+r)}, -2, {v(P+r)}')
            if ph==1: a(f'v_or_b32 {v(P+r)}, 1, {v(P+r)}')
            a(f'buffer_store_dword {v(P+r)}, {v(vLst)}, {WS}, {s(sLst)} offen offset:{128*r} {fl}')
    TB=t+24
    xfs=f'''s_cmp_lg_u32 {s(sT+12)}, 0
    s_cbranch_scc1 L_noxf
    s_lshl_b32 {s(sT+12)}, {s(sX)}, 7
    s_add_u32 {s(sT+12)}, {s(sT+12)}, {TABG}
    v_lshrrev_b32 {v(t+8)}, 1, {v(vL8)}
    v_mov_b32 {v(t+9)}, {s(sTag)}
    s_mov_b32 exec_hi, 0
    buffer_store_dword {v(t+9)}, {v(t+8)}, {WS}, {s(sT+12)} offen sc1
    s_mov_b64 exec, -1
    L_noxf:'''
    W_=t+4
    a(f'''
    s_cmp_lg_u32 {s(sIt)}, 0
    s_cbranch_scc1 L_tab1e
    ''')
    lstores('nt' if cfg.lnt&1 else '',0)
    stamp()
    a(f'''
    s_branch {'L_flag0' if cfg.pub0 else 'L_pub'}
    L_tab1e:
    ''')
    if cfg.ub:
        lstores('nt' if cfg.lnt&2 else '',1); stamp()
        a(f's_add_u32 {s(sSlot)}, {s(sSlot)}, {SLOTR}\n'+(f's_sleep {cfg.dl}\n' if cfg.dl else '')+'s_branch L_tabdone')
    a(f'''
    L_tab2e:
    s_cmp_eq_u32 {s(sW)}, 0
    {'s_waitcnt lgkmcnt(0)' if cfg.pub0 else ''}
    {'s_barrier' if cfg.pub0 else ''}
    s_cbranch_scc0 L_tabbar
    {f'ds_read_b128 {v(LNP,4)}, {v(vTG)} offset:{L_ROW}' if cfg.pub0 else ''}
    s_branch L_tab
    L_tab:
    buffer_load_dwordx2 {v(TB,2)}, {v(vL8)}, {WS}, {s(sTabLd)} offen sc1
    L_tabw1:
    s_waitcnt vmcnt(0)
    v_cmp_ne_u32 vcc, {s(sTag)}, {v(TB)}
    ''')
    poll_branch('L_tab', cfg.slp_t, f'''s_cmp_lg_u32 {s(sIt)}, 0
        s_cselect_b32 {s(sT)}, 0, 1
        s_sub_u32 {s(sTry)}, {s(sTry)}, {s(sT)}
        s_cbranch_scc1 L_tab2''')
    a(f'''
    L_tabok:
    v_cmp_ne_u32 vcc, {s(sKey)}, {v(TB+1)}
    v_cmp_lt_u32 {s(sT,2)}, {s(sKey)}, {v(TB+1)}
    v_mov_b32 {v(TB)}, {L_FLAG}
    s_cmp_eq_u32 {s(sIt)}, 0
    s_cselect_b32 {s(sT)}, vcc_lo, {s(sT)}
    ''')
    if cfg.pub0: a(f'''
    s_cselect_b32 {s(sT+1)}, 1, {s(sT)}
    s_cmp_lg_u32 {s(sT+1)}, 0
    s_cbranch_scc1 L_np0 ;!nd
    v_mov_b32 {v(TB+1)}, {s(sKey)}
    s_waitcnt lgkmcnt(0)
    buffer_store_dwordx4 {v(LNP,4)}, {v(vTG)}, {WS}, {s(sSlot)} offen sc1
    s_mov_b64 exec, 1
    buffer_store_dword {v(TB+1)}, off, {WS}, {s(sSlot)} offset:3072 sc1
    s_mov_b64 exec, -1
    L_np0:
    ''')
    a(f'''
    v_mov_b32 {v(TB+1)}, {s(sT)}
    ds_write_b32 {v(TB)}, {v(TB+1)}
    s_waitcnt lgkmcnt(0)
    s_barrier
    s_branch L_tabgot
    L_tabbar:
    v_mov_b32 {v(TB)}, {L_FLAG}
    {'s_waitcnt vmcnt(0)' if cfg.g2pos==6 else ''}
    s_barrier
    ds_read_b64 {v(TB,2)}, {v(TB)}
    s_waitcnt lgkmcnt(0)
    v_readfirstlane_b32 {s(sT)}, {v(TB)}
    {f'v_readfirstlane_b32 {s(sTag)}, {v(TB+1)}' if cfg.ep0 else ''}
    L_tabgot:
    s_cmp_eq_u32 {s(sIt)}, 0
    s_cbranch_scc1 L_fastchk ;!nd
    s_mov_b32 {s(sT+9)}, 64
    s_cmp_lg_u32 {s(sT)}, 0
    s_cbranch_scc1 L_fin ;!nd
    s_andn2_b32 {s(sT)}, {s(sM7FF)}, {s(sKey)}      ; idx
    s_lshr_b32 {s(sT+9)}, {s(sT)}, 8                ; s1
    s_branch L_fin
    L_flag0:
    ;@F
    s_mov_b32 {s(sFast)}, 1
    s_mov_b32 {s(sPh)}, 0
    s_mov_b32 {s(sNx)}, 0
    s_mov_b32 {s(sKey)}, {s(sXcc)}
    s_mov_b32 {s(sSlot)}, {WSSZ}
    s_xor_b32 {s(sT+12)}, {s(sJ)}, 9
    s_or_b32 {s(sT+12)}, {s(sT+12)}, {s(sW)}
    s_mov_b32 {s(sTry)}, 64
    s_lshl_b32 {s(sT)}, {s(sJ)}, 3
    s_add_u32 {s(sTabSt)}, {s(sTabLd)}, {s(sT)}
    {f'v_mov_b32 {v(t+22)}, {s(sTag)}' if not cfg.ep0 else ''}
    v_mov_b32 {v(t+23)}, {s(sKey)}
    ''')
    if cfg.ypos==1: y_setup(t+4)
    a(f'''
    s_waitcnt vmcnt(0)
    {f'v_add_u32 {v(t+22)}, 1, {v(BC+12)}' if cfg.ep0 else ''}
    ;@F
    s_cmp_eq_u32 {s(sW)}, 0
    s_barrier
    s_cbranch_scc0 L_flag1
    s_mov_b64 exec, 1
    buffer_store_dwordx2 {v(t+22,2)}, off, {WS}, {s(sTabSt)}
    s_mov_b64 exec, -1
    {f'v_mov_b32 {v(t+21)}, {L_FLAG}' if cfg.ep0 else ''}
    {f'ds_write_b32 {v(t+21)}, {v(t+22)} offset:4' if cfg.ep0 else ''}
    {f'v_readfirstlane_b32 {s(sTag)}, {v(t+22)}' if cfg.ep0 else ''}
    L_flag1:
    v_lshlrev_b32 {v(vTG)}, 4, {v(vLane)}
    ''')
    if cfg.ypos==0: y_setup(t+4)
    if cfg.xpos==0: xin_consts(t+4)
    if cfg.wpos==0: w_setup()
    a(f'''
    s_cmp_eq_u32 {s(sW)}, 0
    s_cbranch_scc1 L_tab
    s_branch L_tabbar
    L_fastchk:
    s_cmp_eq_u32 {s(sT)}, 0
    s_cselect_b32 {s(sFast)}, 1, 0
    L_tabdone:
    s_cmp_eq_u32 {s(sFast)}, 0
    s_cbranch_scc1 L_slow
    L_slowback:
    ;@F
    {xfs if cfg.xe else ''}
    s_cmp_lt_u32 {s(sJ)}, 8
    s_cbranch_scc0 L_y
    s_branch L_yself
    L_y:
    buffer_load_dwordx4 {v(t,4)}, {v(vLld)}, {WS}, {s(sLld)} offen sc1
    s_waitcnt vmcnt(0)
    ds_write_b128 {v(vYIW)}, {v(t,4)}
    ''')
    phchk(range(t,t+4), t+8)
    poll_branch('L_y', cfg.slp_l, mask=True)
    a('L_yjoin:')
    stamp()
    a(f'''
    {xfs if not cfg.xe else ''}
    ''')
    A0,A1=t,t+4; P0,Q0,P1,Q1=t+8,t+12,t+16,t+20
    a(f'''
    s_waitcnt lgkmcnt(0)
    s_barrier
    ;@F
    ds_read_b64_tr_b16 {v(A0,2)}, {v(vYIR)}
    ds_read_b64_tr_b16 {v(A0+2,2)}, {v(vYIR)} offset:{16*YIS}
    ''')
    if cfg.g2pos==6: a(f'''
    s_mul_i32 {s(sT)}, {s(sT+12)}, {s(sIt)}
    s_cmp_lt_u32 {s(sT)}, {TABG}
    s_cbranch_scc1 L_nox2 ;!nd
    v_lshrrev_b32 {v(t+24)}, 1, {v(vL8)}
    v_mov_b32 {v(t+25)}, {s(sTag)}
    s_mov_b32 exec_hi, 0
    buffer_store_dword {v(t+25)}, {v(t+24)}, {WS}, {s(sT)} offen offset:1024 sc1
    s_mov_b64 exec, -1
    L_nox2:
    ''')
    a(f'''
    s_add_u32 {s(sTabLd)}, {s(sTabLd)}, {ARGR}
    s_add_u32 {s(sTabSt)}, {s(sTabSt)}, {ARGR}
    s_cmp_eq_u32 {s(sX)}, 0
    s_cbranch_scc1 L_y0 ;!nd
    s_waitcnt lgkmcnt(0)
    v_mfma_f32_16x16x32_f16 {v(P0,4)}, {v(A0,4)}, {v(YC,4)}, 0
    v_mfma_f32_16x16x32_f16 {v(Q0,4)}, {v(A0,4)}, {v(YS,4)}, 0
    v_pk_add_f32 {v(P0,2)}, {v(P0,2)}, {v(Q0,2)} op_sel:[0,1] op_sel_hi:[1,0] neg_hi:[0,1]
    v_pk_add_f32 {v(P0+2,2)}, {v(P0+2,2)}, {v(Q0+2,2)} op_sel:[0,1] op_sel_hi:[1,0] neg_hi:[0,1]
    L_y0b:
    v_cvt_pk_f16_f32 {v(t)}, {v(P0)}, {v(P0+1)}
    v_cvt_pk_f16_f32 {v(t+1)}, {v(P0+2)}, {v(P0+3)}
    ds_write_b64 {v(vYW)}, {v(t,2)}
    ;@F
    s_waitcnt lgkmcnt(0)
    s_barrier
    ;@F
    ds_read_b128 {v(t+4,4)}, {v(vYR)}
    s_cmp_lg_u32 {s(sIt)}, 0
    s_cbranch_scc1 L_hdr
    ''')
    xfl=f'''v_and_b32 {v(t+24)}, 7, {v(vLane)}
    v_lshlrev_b32 {v(t+24)}, 7, {v(t+24)}
    s_mov_b32 {s(sT+10)}, {TABG}
    v_mov_b32 {v(t+20)}, {s(sTag)}
    {f's_cmp_lg_u32 {s(sW)}, 0' if cfg.xw else ''}
    {'s_cbranch_scc1 L_nxl' if cfg.xw else ''}
    s_mov_b64 exec, 0xff
    buffer_load_dword {v(t+20)}, {v(t+24)}, {WS}, {s(sT+10)} offen sc1
    s_mov_b64 exec, -1
    L_nxl:'''
    if cfg.gw in (1,2): a(xfl)
    a(f'''
    s_waitcnt lgkmcnt(0)
    buffer_store_dwordx4 {v(t+4,4)}, {v(vGst)}, {WS}, {s(sG0)} offen sc1
    ''')
    stamp()
    a(f'''
    {xfl if cfg.gw==3 else ''}
    {g2late() if cfg.g2pos==3 else ''}
    {f's_sleep {cfg.dx}' if cfg.dx else ''}
    {xfl if not cfg.gw else ''}
    ''')
    if cfg.xpos==1: xin_consts(t+8)
    if cfg.wpos==1: w_setup()
    if cfg.g2pos==6: a('\n'.join(f'v_mov_b32 {v(BC+8+k)}, -1' for k in range(4))+f'\ns_mov_b32 {s(sT+14)}, {GBASE+GR}')
    if cfg.gw: a(f's_waitcnt vmcnt({[0,2,1,1][cfg.gw]})\ns_branch L_tg0c')
    a('L_tg0w:\ns_waitcnt vmcnt(0)\nL_tg0c:\n;@F')
    a(f'v_cmp_ne_u32 vcc, {s(sTag)}, {v(t+20)}')
    a(f'''
    s_cbranch_vccnz L_tg0_r ;!nd
    ''')
    if cfg.g2pos==4: a(f'''
    buffer_load_dwordx4 {v(t,4)}, {v(vGld)}, {WS}, {s(sG0)} offen sc1
    buffer_load_dwordx4 {v(t+4,4)}, {v(vGld)}, {WS}, {s(sG4)} offen sc1
    {g2late()}
    s_cmp_lg_u32 {s(sMir)}, 0
    s_waitcnt vmcnt(1)
    s_branch L_gw2
    ''')
    else: a(('s_barrier\n' if cfg.xw else '')+(f's_sleep {cfg.dg}\n' if cfg.dg else '')+'s_branch L_g')
    a(f'''
    L_g:
    ''')
    C0,C1=t,t+4
    a(f'''
    buffer_load_dwordx4 {v(C0,4)}, {v(vGld)}, {WS}, {s(sG0)} offen sc1
    buffer_load_dwordx4 {v(C1,4)}, {v(vGld)}, {WS}, {s(sG4)} offen sc1
    L_gw:
    s_cmp_lg_u32 {s(sMir)}, 0
    s_waitcnt vmcnt(0)
    L_gw2:
    s_cbranch_scc1 L_xmir ;!nd
    ''')
    E0,E1=t+8,t+12
    a(f'''
    v_mfma_f32_16x16x16_f16 {v(E0,4)}, {v(XA,2)}, {v(C0,2)}, 0
    v_mfma_f32_16x16x16_f16 {v(E1,4)}, {v(XA,2)}, {v(C0+2,2)}, 0
    v_mfma_f32_16x16x16_f16 {v(E0,4)}, {v(XA+2,2)}, {v(C1,2)}, {v(E0,4)}
    v_mfma_f32_16x16x16_f16 {v(E1,4)}, {v(XA+2,2)}, {v(C1+2,2)}, {v(E1,4)}
    s_branch L_xjoin ;!nd
    L_xmir:
    ''')
    a.hist=[]
    a(f'''
    v_mfma_f32_16x16x16_f16 {v(E0,4)}, {v(XA,2)}, {v(C0+2,2)}, 0
    v_mfma_f32_16x16x16_f16 {v(E1,4)}, {v(XA,2)}, {v(C0,2)}, 0
    v_mfma_f32_16x16x16_f16 {v(E0,4)}, {v(XA+2,2)}, {v(C1+2,2)}, {v(E0,4)}
    v_mfma_f32_16x16x16_f16 {v(E1,4)}, {v(XA+2,2)}, {v(C1,2)}, {v(E1,4)}
    L_xjoin:
    ''')
    if cfg.gre: phchk(range(t,t+8), t+16)
    else: maxchk(range(t,t+8), t+16)
    poll_branch('L_g', cfg.slp_g, mask=True)
    stamp()
    a(f'''
    ''')
    if cfg.g2pos==6: a(f'''
    s_cmp_lg_u32 {s(sIt)}, 0
    s_cbranch_scc1 L_ng6 ;!nd
    buffer_store_dwordx4 {v(BC+8,4)}, {v(vGst)}, {WS}, {s(sT+14)} offen sc1
    L_ng6:
    ''')
    a(f'''
    s_mov_b32 {s(sIt)}, 1
    s_mov_b32 {s(sPh)}, -1
    {f's_add_u32 {s(sG0)}, {s(sG0)}, {GR}' if not cfg.gre else ''}
    {f's_add_u32 {s(sG4)}, {s(sG4)}, {GR}' if not cfg.gre else ''}
    L_apply:
    s_cmp_eq_u32 {s(sNx)}, 0
    v_pk_fma_f32 {v(X,2)}, {v(E0,2)}, {v(vSc0,2)}, {v(X,2)}
    v_pk_fma_f32 {v(X+2,2)}, {v(E0+2,2)}, {s(sSc,2)}, {v(X+2,2)}
    v_pk_fma_f32 {v(X+4,2)}, {v(E1,2)}, {s(sSc,2)}, {v(X+4,2)}
    v_pk_fma_f32 {v(X+6,2)}, {v(E1+2,2)}, {s(sSc,2)}, {v(X+6,2)}
    s_cbranch_scc1 L_top ;!nd
    s_branch L_corr
    ''')
    a(f'''
    L_y0:
    s_waitcnt lgkmcnt(0)
    v_mfma_f32_16x16x32_f16 {v(P0,4)}, {v(A0,4)}, {v(YC,4)}, 0
    v_xor_b32 {v(A1)}, {s(sTop)}, {v(A0)}
    v_xor_b32 {v(A1+1)}, {s(sTop)}, {v(A0+1)}
    v_mfma_f32_16x16x32_f16 {v(Q0,4)}, {v(A0,4)}, {v(YS,4)}, 0
    v_xor_b32 {v(A1+2)}, {s(sTop)}, {v(A0+2)}
    v_xor_b32 {v(A1+3)}, {s(sTop)}, {v(A0+3)}
    v_mfma_f32_16x16x32_f16 {v(P1,4)}, {v(A1,4)}, {v(YC,4)}, 0
    v_mfma_f32_16x16x32_f16 {v(Q1,4)}, {v(A1,4)}, {v(YS,4)}, 0
    v_add_f32 {v(P0)}, {v(P0)}, {v(Q0+1)}
    v_add_f32 {v(P0+2)}, {v(P0+2)}, {v(Q0+3)}
    v_add_f32 {v(P0+1)}, {v(P1)}, {v(Q1+1)}
    v_add_f32 {v(P0+3)}, {v(P1+2)}, {v(Q1+3)}
    s_branch L_y0b
    ''')
    a(f'''
    L_yself:
    buffer_load_dwordx4 {v(t,4)}, {v(vLld)}, {WS}, {s(sLld)} offen sc1
    buffer_load_dwordx4 {v(t+4,4)}, {v(vLldM)}, {WS}, {s(sLld)} offen sc1
    s_waitcnt vmcnt(0)
    ''')
    phchk(range(t,t+8), t+8)
    poll_branch('L_yself', cfg.slp_l, mask=True)
    a(f'''
    s_bitcmp1_b32 {s(sW)}, 0
    s_cbranch_scc1 L_yself4
    ''')
    for k in range(4): a(f'v_pk_add_f16 {v(t+k)}, {v(t+k)}, {v(t+7-k)} neg_hi:[0,1]')
    a(f'ds_write_b128 {v(vYIW)}, {v(t,4)}\ns_branch L_yjoin\nL_yself4:')
    for k in range(4): a(f'v_pk_add_f16 {v(t+k)}, {v(t+k)}, {v(t+7-k)} op_sel:[1,1] op_sel_hi:[0,0] neg_hi:[1,0]')
    a(f'ds_write_b128 {v(vYIW)}, {v(t,4)}\ns_branch L_yjoin')
    H=LNP
    sIdx=sT+11
    KA=BC+6; EK=BC+8; vYP=BC+9; SEL=BC+10; vDW,vDR=BC+12,BC+13
    YR=t+8; YL=t+12; YD=t+20
    gl=f'buffer_load_dwordx4 {v(C0,4)}, {v(vGld)}, {WS}, {s(sG0)} offen sc1\nbuffer_load_dwordx4 {v(C1,4)}, {v(vGld)}, {WS}, {s(sG4)} offen sc1'
    def hdrpoll(lbl, slp, issued=False, after=''):
        if not issued: a(f"""
        v_and_b32 {v(BC)}, 7, {v(vLane)}
        v_lshlrev_b32 {v(BC)}, 12, {v(BC)}
        """)
        a(f"""
        s_mov_b64 exec, 0xff
        {f's_waitcnt vmcnt({0 if cfg.gre else 1})' if issued else ''}
        {f's_branch {lbl}_c' if issued else ''}
        {lbl}:
        buffer_load_dwordx4 {v(H,4)}, {v(BC)}, {WS}, {s(sT+10)} offen offset:3200 sc1
        s_waitcnt vmcnt(0)
        {lbl}_c:
        """)
        maxchk(range(H,H+4), t+17)
        poll_branch(lbl, slp, skip=True)
        a('s_mov_b64 exec, -1')
        if after: a(after); stamp()
        a(f"""
        v_max_u32_dpp {v(H+3)}, {v(H)}, {v(H)} row_half_mirror {DPP}
        v_max_u32_dpp {v(H+3)}, {v(H+3)}, {v(H+3)} quad_perm:[1,0,3,2] {DPP}
        v_max_u32_dpp {v(H+3)}, {v(H+3)}, {v(H+3)} quad_perm:[2,3,0,1] {DPP}
        v_readfirstlane_b32 {s(sIdx)}, {v(H+3)}
        """)
    def owner():
        a(f"""
        s_sub_u32 {s(sT)}, 2047, {s(sIdx)}
        s_add_u32 {s(sT+1)}, {s(sT)}, 256
        v_cmp_eq_u32 vcc, {s(sT)}, {v(vInv)}
        v_cmp_eq_u32 {s(sT+2,2)}, {s(sT+1)}, {v(vInv)}
        v_cndmask_b32 {v(BC)}, 0, 1.0, vcc
        v_cndmask_b32 {v(BC+1)}, 0, 1.0, {s(sT+2,2)}
        """)
    gst=f'buffer_store_dwordx4 {v(t+4,4)}, {v(vGst)}, {WS}, {s(sG0)} offen sc1'
    a(f"""
    L_hdr:
    s_waitcnt lgkmcnt(0)
    {gst if not cfg.hs else ''}
    """)
    stamp()
    a(f"""
    v_and_b32 {v(vYP)}, 0x3ff, {v(vXoff)}
    v_mov_b32 {v(t+24)}, {v(vYP)}
    v_lshlrev_b32 {v(t+17)}, 4, {v(vLane)}
    v_mov_b32 {v(t+18)}, 0x3f80
    v_and_b32 {v(t+17)}, 16, {v(t+17)}
    v_lshlrev_b32 {v(t+18)}, {v(t+17)}, {v(t+18)}
    v_and_b32 {v(t+17)}, 2, {v(vLane)}
    v_cmp_eq_u32 vcc, 0, {v(t+17)}
    v_lshl_add_u32 {v(vYP)}, {v(vQ)}, 10, {v(vYP)}
    s_lshl_b32 {s(sT+3)}, {s(sW)}, 8
    v_cndmask_b32 {v(SEL)}, 0, {v(t+18)}, vcc
    v_cndmask_b32 {v(SEL+1)}, {v(t+18)}, 0, vcc
    s_add_u32 {s(sT+3)}, {s(sT+3)}, {L_DH}
    v_lshl_add_u32 {v(vDR)}, {v(vN)}, 4, {s(sT+3)}
    v_and_b32 {v(t+17)}, 1, {v(vQ)}
    v_lshl_add_u32 {v(vDR)}, {v(t+17)}, 11, {v(vDR)}
    v_add_u32 {v(vDW)}, {L_DH}, {v(vLst)}
    s_mov_b32 {s(sYo)}, {YP}
    s_lshl_b32 {s(sYh)}, {s(sX)}, 8
    s_add_u32 {s(sYh)}, {s(sYh)}, {YHINT}
    s_lshl_b32 {s(sSg)}, {s(sW)}, 30
    s_and_b32 {s(sSg)}, {s(sSg)}, {s(sTop)}
    s_xor_b32 {s(sSg)}, {s(sSg)}, {s(sDsc)}
    s_mov_b32 {s(sNx)}, 2
    s_lshl_b32 {s(sT)}, {s(sJ)}, 3
    v_mov_b32 {v(t+8)}, {s(sT)}
    L_ywait:
    v_mov_b32 {v(t+9)}, {L_FLAG}
    s_cmp_lg_u32 {s(sW)}, 0
    s_cbranch_scc1 L_hintb
    L_hint:
    buffer_load_dwordx2 {v(t+10,2)}, {v(t+8)}, {WS}, {s(sYh)} offen sc1
    s_waitcnt vmcnt(0)
    v_cmp_ne_u32 vcc, {s(sTag)}, {v(t+10)}
    """)
    poll_branch('L_hint', 1)
    a(f"""
    ds_write_b32 {v(t+9)}, {v(t+11)} offset:8
    s_waitcnt lgkmcnt(0)
    L_hintb:
    s_barrier
    ds_read_b32 {v(t+11)}, {v(t+9)} offset:8
    s_cmp_eq_u32 {s(sIt)}, 2
    s_cbranch_scc1 L_yv3
    {f's_sleep {cfg.dgl}' if cfg.dgl else ''}
    {gl if not cfg.hs else gst}
    s_add_u32 {s(sT+8)}, {s(sYo)}, 4096
    s_waitcnt lgkmcnt(0)
    v_readfirstlane_b32 {s(sIdx)}, {v(t+11)}
    s_andn2_b32 {s(sIdx)}, {s(sM7FF)}, {s(sIdx)}
    s_and_b32 {s(sT+10)}, {s(sIdx)}, 15
    s_sub_u32 {s(sT+1)}, 16, {s(sT+10)}
    s_min_u32 {s(sT+10)}, {s(sT+10)}, {s(sT+1)}
    s_and_b32 {s(sT+10)}, {s(sT+10)}, 7
    s_lshl_b32 {s(sT+10)}, {s(sT+10)}, 12
    s_add_u32 {s(sT+10)}, {s(sT+10)}, {SLOT}
    buffer_load_dwordx2 {v(BC+4,2)}, {v(t+24)}, {WS}, {s(sT+10)} offen sc1
    buffer_load_dword {v(KA)}, off, {WS}, {s(sT+10)} offset:3076 sc1
    v_mul_u32_u24 {v(t+17)}, {s(sIdx)}, {v(AD)}
    v_and_b32 {v(t+17)}, 0x7ff, {v(t+17)}
    v_cvt_f32_u32 {v(t+17)}, {v(t+17)}
    v_mul_f32 {v(t+17)}, {fbits(1/2048)}, {v(t+17)}
    v_cos_f32 {v(t+18)}, {v(t+17)}
    v_sin_f32 {v(t+19)}, {v(t+17)}
    v_and_b32 {v(t+17)}, 0x22, {v(vLane)}
    v_cvt_pk_f16_f32 {v(t+18)}, {v(t+18)}, {v(t+19)}
    s_and_b32 {s(sT+1)}, {s(sMP)}, {s(sTop)}
    v_xor_b32 {v(t+18)}, {s(sT+1)}, {v(t+18)}
    v_cmp_eq_u32 vcc, 0, {v(t+17)}
    v_cmp_eq_u32 {s(sT+2,2)}, 2, {v(t+17)}
    v_cndmask_b32 {v(AD)}, 0, {v(t+18)}, vcc
    v_cndmask_b32 {v(AD+1)}, 0, {v(t+18)}, {s(sT+2,2)}
    """)
    owner()
    a(f"""
    {'s_waitcnt vmcnt(0)' if cfg.hs else ''}
    {f's_sleep {cfg.dg2}' if cfg.dg2 else ''}
    {gl if cfg.hs else ''}
    {f's_sleep {cfg.tim_gy}' if cfg.tim_gy else ''}
    buffer_load_dwordx2 {v(YD,2)}, {v(vYP)}, {WS}, {s(sYo)} offen sc1
    buffer_load_dwordx2 {v(YD+2,2)}, {v(vYP)}, {WS}, {s(sT+8)} offen sc1
    s_cmp_lg_u32 {s(sMir)}, 0
    s_waitcnt vmcnt({2 if cfg.hs else 4})
    s_branch L_gw2
    L_corr:
    s_mov_b32 {s(sIt)}, 2
    s_mov_b32 {s(sNx)}, 0
    s_waitcnt vmcnt(2)
    L_basew:
    """)
    maxchk(range(BC+4,BC+7), t+17)
    a('s_cbranch_vccnz L_base_r ;!nd')
    a(f"""
    v_add_f32 {v(KA+1)}, 1.0, {v(KA)}
    v_rcp_f32 {v(KA+1)}, {v(KA+1)}
    v_lshlrev_b32 {v(BC+2)}, 16, {v(BC+4)}
    v_and_b32 {v(BC+3)}, 0xffff0000, {v(BC+4)}
    v_lshlrev_b32 {v(BC+4)}, 16, {v(BC+5)}
    v_and_b32 {v(BC+5)}, 0xffff0000, {v(BC+5)}
    v_mul_f32 {v(KA)}, {s(sC16)}, {v(KA)}
    v_cmp_eq_u32 vcc, 0, {v(vQ)}
    v_mul_f32 {v(KA+1)}, {v(KA)}, {v(KA+1)}
    v_pk_mul_f32 {v(BC+2,2)}, {v(BC+2,2)}, {s(sC16,2)}
    v_pk_mul_f32 {v(BC+4,2)}, {v(BC+4,2)}, {s(sC16,2)}
    v_mul_f32 {v(EK)}, {v(KA+1)}, {v(KA+1)}
    v_mul_f32 {v(EK)}, {s(sEps)}, {v(EK)}
    v_cndmask_b32 {v(KA+1)}, 0, {v(KA+1)}, vcc
    s_branch L_yc
    L_yv3:
    s_add_u32 {s(sT+8)}, {s(sYo)}, 4096
    s_waitcnt lgkmcnt(0)
    v_readfirstlane_b32 {s(sIdx)}, {v(t+11)}
    s_mov_b32 {s(sIt)}, 3
    s_cmp_lg_u32 {s(sIdx)}, {s(sKey)}
    s_cbranch_scc1 L_fin5
    {f's_sleep {cfg.tim_y3}' if cfg.tim_y3 else ''}
    s_branch L_yv
    """)
    a(f"""
    L_yv:
    buffer_load_dwordx2 {v(YD,2)}, {v(vYP)}, {WS}, {s(sYo)} offen sc1
    buffer_load_dwordx2 {v(YD+2,2)}, {v(vYP)}, {WS}, {s(sT+8)} offen sc1
    L_yc:
    s_waitcnt vmcnt(0)
    v_mfma_f32_16x16x16_bf16 {v(YR,4)}, {v(SEL,2)}, {v(YD,2)}, 0
    v_mfma_f32_16x16x16_bf16 {v(YR,4)}, {v(SEL,2)}, {v(YD+2,2)}, {v(YR,4)}
    """)
    maxchk(range(YD,YD+4), t+17)
    poll_branch('L_yv', 1, mask=True)
    stamp()
    own=[f'v_pk_fma_f32 {v(X,2)}, {v(BC,2)}, {v(YR,2)}, {v(X,2)} op_sel:[0,0,0] op_sel_hi:[1,0,1]',
         f'v_pk_fma_f32 {v(X+2,2)}, {v(BC,2)}, {v(YR,2)}, {v(X+2,2)} op_sel:[0,1,0] op_sel_hi:[1,1,1]',
         f'v_pk_fma_f32 {v(X+4,2)}, {v(BC,2)}, {v(YR+2,2)}, {v(X+4,2)} op_sel:[0,0,0] op_sel_hi:[1,0,1]',
         f'v_pk_fma_f32 {v(X+6,2)}, {v(BC,2)}, {v(YR+2,2)}, {v(X+6,2)} op_sel:[0,1,0] op_sel_hi:[1,1,1]']
    s1,s2=t+20,t+21
    a(f"""
    s_cmp_eq_u32 {s(sIt)}, 3
    s_cbranch_scc1 L_fin3
    L_pass:
    v_pk_fma_f32 {v(YL,2)}, {v(YR,2)}, {v(KA,2)}, {v(BC+2,2)} op_sel:[0,1,0]
    v_pk_fma_f32 {v(YL+2,2)}, {v(YR+2,2)}, {v(KA,2)}, {v(BC+4,2)} op_sel:[0,1,0]
    v_cvt_pk_f16_f32 {v(YL)}, {v(YL)}, {v(YL+1)}
    v_cvt_pk_f16_f32 {v(YL+1)}, {v(YL+2)}, {v(YL+3)}
    ds_write_b64 {v(vUW)}, {v(YL,2)}
    {own[0]}
    {own[1]}
    {own[2]}
    {own[3]}
    s_cmp_gt_u32 {s(sW)}, 3
    s_waitcnt lgkmcnt(0)
    s_barrier
    s_cbranch_scc1 L_dhb ;!nd
    ds_read_b64_tr_b16 {v(t+8,2)}, {v(vUR)}
    ds_read_b64_tr_b16 {v(t+10,2)}, {v(vUR)} offset:512
    v_mov_b32 {v(t+22)}, 0x3c003c00
    s_waitcnt lgkmcnt(0)
    ;@F
    """)
    XR=t+8; U_=t+12; V_=YC; PP=LNP
    Ur,Ui=U_,U_+4; Vr,Vi=V_,V_+4
    a(f"""
    v_mfma_f32_16x16x32_f16 {v(Ur,4)}, {v(XR,4)}, {v(B1C,4)}, 0
    v_mfma_f32_16x16x32_f16 {v(Ui,4)}, {v(XR,4)}, {v(B1N,4)}, 0
    v_dot2_f32_f16 {v(s1)}, {v(XR)}, {v(t+22)}, 0
    v_dot2_f32_f16 {v(s2)}, {v(XR)}, {v(XR)}, 0
    v_dot2_f32_f16 {v(s1)}, {v(XR+1)}, {v(t+22)}, {v(s1)}
    v_dot2_f32_f16 {v(s2)}, {v(XR+1)}, {v(XR+1)}, {v(s2)}
    v_dot2_f32_f16 {v(s1)}, {v(XR+2)}, {v(t+22)}, {v(s1)}
    v_dot2_f32_f16 {v(s2)}, {v(XR+2)}, {v(XR+2)}, {v(s2)}
    v_dot2_f32_f16 {v(s1)}, {v(XR+3)}, {v(t+22)}, {v(s1)}
    v_dot2_f32_f16 {v(s2)}, {v(XR+3)}, {v(XR+3)}, {v(s2)}
    v_pk_mul_f32 {v(Vi,2)}, {v(Ur,2)}, {v(TWS,2)}
    v_pk_mul_f32 {v(Vi+2,2)}, {v(Ur+2,2)}, {v(TWS+2,2)}
    v_pk_mul_f32 {v(Vr,2)}, {v(Ui,2)}, {v(TWS,2)}
    v_permlane32_swap_b32 {v(s1)}, {v(s2)}
    v_pk_mul_f32 {v(Vr+2,2)}, {v(Ui+2,2)}, {v(TWS+2,2)}
    v_add_f32 {v(s1)}, {v(s1)}, {v(s2)}
    v_pk_fma_f32 {v(Vr,2)}, {v(Ur,2)}, {v(TWC,2)}, {v(Vr,2)}
    v_pk_fma_f32 {v(Vi,2)}, {v(Ui,2)}, {v(TWC,2)}, {v(Vi,2)} neg_lo:[0,0,1] neg_hi:[0,0,1]
    v_add_f32_dpp {v(s1)}, {v(s1)}, {v(s1)} row_ror:8 {DPP}
    v_pk_fma_f32 {v(Vr+2,2)}, {v(Ur+2,2)}, {v(TWC+2,2)}, {v(Vr+2,2)}
    v_pk_fma_f32 {v(Vi+2,2)}, {v(Ui+2,2)}, {v(TWC+2,2)}, {v(Vi+2,2)} neg_lo:[0,0,1] neg_hi:[0,0,1]
    v_add_f32_dpp {v(s1)}, {v(s1)}, {v(s1)} row_ror:4 {DPP}
    v_cvt_pk_f16_f32 {v(PP)}, {v(Vr)}, {v(Vi)}
    v_cvt_pk_f16_f32 {v(PP+1)}, {v(Vr+1)}, {v(Vi+1)}
    v_add_f32_dpp {v(s1)}, {v(s1)}, {v(s1)} row_ror:2 {DPP}
    v_cvt_pk_f16_f32 {v(PP+2)}, {v(Vr+2)}, {v(Vi+2)}
    v_cvt_pk_f16_f32 {v(PP+3)}, {v(Vr+3)}, {v(Vi+3)}
    v_add_f32_dpp {v(s1)}, {v(s1)}, {v(s1)} row_ror:1 {DPP}
    v_mfma_f32_16x16x32_f16 {v(Ur,4)}, {v(A2R,4)}, {v(PP,4)}, 0
    v_mfma_f32_16x16x32_f16 {v(Ui,4)}, {v(A2I,4)}, {v(PP,4)}, 0
    v_add_f32_dpp {v(s1)}, {v(s1)}, {v(s1)} row_bcast:15 row_mask:0xa bank_mask:0xf
    v_mul_f32 {v(s1)}, {s(sK512)}, {v(s1)}
    v_readlane_b32 {s(sT+2)}, {v(s1)}, 63
    v_readlane_b32 {s(sT+1)}, {v(s1)}, 31
    v_add_f32 {v(s2)}, {s(sT+2)}, {v(EK)}
    v_mov_b32 {v(s1)}, {s(sT+1)}
    v_fma_f32 {v(s1)}, -{v(s1)}, {v(s1)}, {v(s2)}
    v_rsq_f32_e64 {v(s1)}, |{v(s1)}|
    v_mul_f32 {v(s1)}, {s(sSg)}, {v(s1)}
    """)
    for k in range(4): a(f'v_pk_mul_f32 {v(U_+2*k,2)}, {v(U_+2*k,2)}, {v(s1,2)} op_sel_hi:[1,0]')
    for r in range(4): a(f'v_cvt_pk_f16_f32 {v(PP+r)}, {v(Ur+r)}, {v(Ui+r)}')
    a(f"""
    ds_write2_b32 {v(vDW)}, {v(PP)}, {v(PP+1)} offset0:0 offset1:32
    ds_write2_b32 {v(vDW)}, {v(PP+2)}, {v(PP+3)} offset0:64 offset1:96
    s_waitcnt lgkmcnt(0)
    L_dhb:
    s_barrier
    ds_read_b128 {v(t+16,4)}, {v(vDR)}
    s_waitcnt lgkmcnt(0)
    v_mfma_f32_16x16x16_f16 {v(E0,4)}, {v(AD,2)}, {v(t+16,2)}, 0
    v_mfma_f32_16x16x16_f16 {v(E1,4)}, {v(AD,2)}, {v(t+18,2)}, 0
    s_nop 4
    s_branch L_apply ;!nd
    """)
    a('L_fin:')
    if cfg.odel: a(f's_sleep {cfg.odel}')
    for rho in (0,1):
        for k in (0,1):
            a(f'v_cvt_pk_bf16_f32 {v(t+2*rho+k)}, {v(X+4*k+rho)}, {v(X+4*k+2+rho)}')
    a(f"""
    v_lshlrev_b32 {v(t+16)}, 1, {v(vQ)}
    v_mov_b32 {v(t+19)}, 0x200000
    s_sub_u32 {s(sT)}, {s(sT+9)}, 1
    v_cmp_eq_u32 vcc, {s(sT+9)}, {v(t+16)}
    v_cmp_eq_u32 {s(sT+2,2)}, {s(sT)}, {v(t+16)}
    v_cndmask_b32 {v(t+17)}, {v(vXoff)}, {v(t+19)}, vcc
    v_cndmask_b32 {v(t+18)}, {v(vXoff)}, {v(t+19)}, {s(sT+2,2)}
    buffer_store_dwordx2 {v(t,2)}, {v(vXoff if cfg.twice else t+17)}, {OS}, {s(sRow0)} offen {['','sc1','nt'][cfg.osc]}
    buffer_store_dwordx2 {v(t+2,2)}, {v(vXoff if cfg.twice else t+18)}, {OS}, {s(sRow1)} offen {['','sc1','nt'][cfg.osc]}
    """)
    if cfg.wb==3: a(f"""
    s_xor_b32 {s(sT+4)}, {s(sJ)}, 9
    s_or_b32 {s(sT+4)}, {s(sT+4)}, {s(sW)}
    s_cbranch_scc1 L_nwb3
    {f's_sleep {cfg.wbd}' if cfg.wbd else ''}
    buffer_wbl2 sc1
    L_nwb3:
    """)
    a(f"""
    v_cndmask_b32 {v(t+24)}, {v(t+19)}, {v(vXoff)}, vcc
    v_cndmask_b32 {v(t+25)}, {v(t+19)}, {v(vXoff)}, {s(sT+2,2)}
    s_or_b32 {s(sT)}, s2, {s(sW)}
    s_cbranch_scc1 L_fin2
    v_mov_b32 {v(t+20)}, {s(sTag)}
    buffer_store_dword {v(t+20)}, off, {WS}, 0 sc1
    L_fin2:
    s_cmp_eq_u32 {s(sT+9)}, 64
    s_cbranch_scc1 L_fin5
    s_andn2_b32 {s(sIdx)}, {s(sM7FF)}, {s(sKey)}
    s_add_u32 {s(sYo)}, {s(sYo)}, {YPR}
    s_add_u32 {s(sYh)}, {s(sYh)}, {YHR}
    v_mov_b32 {v(t+8)}, {v(vL8)}
    """)
    owner()
    a('s_branch L_ywait\nL_fin3:')
    a('\n'.join(own))
    for rho in (0,1):
        for k in (0,1):
            a(f'v_cvt_pk_bf16_f32 {v(t+2*rho+k)}, {v(X+4*k+rho)}, {v(X+4*k+2+rho)}')
    a(f"""
    L_fin4:
    buffer_store_dwordx2 {v(t,2)}, {v(t+24)}, {OS}, {s(sRow0)} offen {['sc1','','nt'][cfg.lastp]}
    buffer_store_dwordx2 {v(t+2,2)}, {v(t+25)}, {OS}, {s(sRow1)} offen {['sc1','','nt'][cfg.lastp]}
    L_fin5:
    """)
    stamp(); dump_stamps()
    a('s_endpgm')
    a(f"""
    L_base_r:
    s_sub_u32 {s(sCnt)}, {s(sCnt)}, 1
    s_cbranch_scc1 L_end
    s_sleep 2
    buffer_load_dwordx2 {v(BC+4,2)}, {v(t+24)}, {WS}, {s(sT+10)} offen sc1
    buffer_load_dword {v(KA)}, off, {WS}, {s(sT+10)} offset:3076 sc1
    s_waitcnt vmcnt(0)
    s_branch L_basew
    """)
    def pub2():
        a(f'''
        v_mov_b32 {v(t+4)}, {s(sTag)}
        v_mov_b32 {v(t+5)}, {s(sXcc)}
        s_add_u32 {s(sT)}, {s(sTabSt)}, {TAB2-TABL}
        buffer_store_dwordx2 {v(t+4,2)}, off, {WS}, {s(sT)} sc1
        ''')
    a(f'''
    L_tabst_slow:
    buffer_store_dwordx2 {v(K,2)}, off, {WS}, {s(sTabSt)} sc1
    s_branch L_tabst_back
    L_tg0_r:
    s_sub_u32 {s(sCnt)}, {s(sCnt)}, 1
    s_cbranch_scc1 L_end
    s_sleep 2
    ''')
    a(f's_mov_b64 exec, 0xff\nbuffer_load_dword {v(t+20)}, {v(t+24)}, {WS}, {s(sT+10)} offen sc1\ns_mov_b64 exec, -1')
    if cfg.dr: a(f's_waitcnt vmcnt(0)\nv_cmp_ne_u32 vcc, {s(sTag)}, {v(t+20)}\ns_cbranch_vccnz L_tg0_r\ns_sleep {cfg.dr}\ns_branch L_g')
    a('s_branch L_tg0w\nL_tab2:')
    pub2()
    a(f'''
    s_add_u32 {s(sT+1)}, {s(sTabLd)}, {TAB2-TABL}
    L_tab2p:
    buffer_load_dwordx2 {v(TB,2)}, {v(vL8)}, {WS}, {s(sTabLd)} offen sc1
    buffer_load_dwordx2 {v(t+6,2)}, {v(vL8)}, {WS}, {s(sT+1)} offen sc1
    s_waitcnt vmcnt(0)
    v_cmp_eq_u32 vcc, {s(sTag)}, {v(TB)}
    v_cndmask_b32 {v(TB)}, {v(t+6)}, {v(TB)}, vcc
    v_cndmask_b32 {v(TB+1)}, {v(t+7)}, {v(TB+1)}, vcc
    v_cmp_ne_u32 vcc, {s(sTag)}, {v(TB)}
    ''')
    poll_branch('L_tab2p', 4)
    a(f'''
    s_branch L_tabok
    L_slow:
    s_cmp_lg_u32 {s(sIt)}, 0
    s_cbranch_scc1 L_slow1
    ''')
    pub2()
    a('L_slow1:')
    lstores('sc1')
    a(f'''
    s_waitcnt vmcnt(0)
    s_barrier
    s_add_u32 {s(sT)}, {s(sTabSt)}, {SLOWF-TABL}
    s_add_u32 {s(sT+1)}, {s(sTabLd)}, {SLOWF-TABL}
    v_mov_b32 {v(t+4)}, {s(sTag)}
    s_cmp_lg_u32 {s(sW)}, 0
    s_cbranch_scc1 L_slowp
    buffer_store_dword {v(t+4)}, off, {WS}, {s(sT)} sc1
    L_slowp:
    buffer_load_dword {v(t+5)}, {v(vL8)}, {WS}, {s(sT+1)} offen sc1
    s_waitcnt vmcnt(0)
    v_cmp_ne_u32 vcc, {s(sTag)}, {v(t+5)}
    ''')
    poll_branch('L_slowp', 2)
    a('s_branch L_slowback')

def hint_store(vreg, soff, lbl):
    a(f'''
    s_mov_b64 exec, 1
    s_cmp_eq_u32 {s(sFast)}, 0
    s_cbranch_scc1 {lbl}_s
    buffer_store_dwordx2 {v(vreg,2)}, off, {WS}, {s(soff)}
    s_branch {lbl}_d
    {lbl}_s:
    buffer_store_dwordx2 {v(vreg,2)}, off, {WS}, {s(soff)} sc1
    {lbl}_d:
    s_mov_b64 exec, -1
    ''')

def ffn():
    WA=4; WD=20; t=40
    vXL=24; vXW=25; vXR=26; vPS=27; vPL=28; vHW=29; vHR=30; vDP=31; vTag=32; vSig=34; vFl=35
    sI=sJ; sRnd=sIt; sPo=sLst; sPs=sLld
    F_W=0; TS=4096+64; F_X=0x4400; F_KEY=0x4D00; F_H=0x4E00; F_D=0x5200; F_WD=0x5400
    a(f"""
    L_ffn:
    s_and_b32 {s(sI)}, {s(sJ)}, 31
    s_min_u32 {s(sT+2)}, {s(sI)}, 27
    s_and_b32 {s(sT)}, {s(sT+2)}, 3
    s_lshl_b32 {s(sT+8)}, {s(sT)}, 8              ; 256*ks
    s_mul_i32 {s(sT+9)}, {s(sT)}, {28*64}
    s_mul_i32 {s(sT)}, {s(sT)}, {128*3584}
    s_mul_i32 {s(sT+1)}, {s(sX)}, 448
    s_add_u32 {s(sT)}, {s(sT)}, {s(sT+1)}
    s_lshr_b32 {s(sT+2)}, {s(sT+2)}, 2
    s_lshl_b32 {s(sT+3)}, {s(sT+2)}, 6
    s_add_u32 {s(sT)}, {s(sT)}, {s(sT+3)}
    v_lshrrev_b32 {v(t+3)}, 2, v0
    v_mul_u32_u24 {v(t)}, 3584, {v(t+3)}
    v_and_b32 {v(t+4)}, 3, v0
    v_lshl_add_u32 {v(t)}, {v(t+4)}, 4, {v(t)}
    v_add_u32 {v(t)}, {s(sT)}, {v(t)}
    s_mul_i32 {s(sT)}, {s(sX)}, {224*1024}
    s_lshl_b32 {s(sT+1)}, {s(sI)}, 5
    s_add_u32 {s(sT)}, {s(sT)}, {s(sT+1)}
    v_lshrrev_b32 {v(t+1)}, 1, v0
    v_min_u32 {v(t+1)}, 223, {v(t+1)}
    v_lshlrev_b32 {v(t+1)}, 10, {v(t+1)}
    v_and_b32 {v(t+2)}, 1, v0
    v_lshl_add_u32 {v(t+1)}, {v(t+2)}, 4, {v(t+1)}
    v_add_u32 {v(t+1)}, {s(sT)}, {v(t+1)}
    s_add_u32 {s(sT+10)}, {s(sTabLd)}, {FTAB-TABL}
    s_waitcnt lgkmcnt(0)
    {f'v_lshlrev_b32 {v(T+25)}, {cfg.tlb}, v0' if cfg.tlb else ''}
    {f'buffer_load_dword {v(T+21)}, {v(T+25)}, {WS}, 0 offen sc1' if cfg.tlb else ''}
    {f'buffer_load_dword {v(T+21)}, {v(T+25)}, {OS}, 0 offen sc1' if cfg.tlb else ''}
    {f's_sleep {cfg.fdelay}' if cfg.fdelay else ''}
    {f'global_load_dwordx4 {v(T+8,4)}, {v(t)}, s[18:19]' if cfg.wdpos!=2 and cfg.gul<2 else ''}
    v_mov_b32 {v(T+24)}, {v(t)}
    {f'global_load_dwordx4 {v(T+12,4)}, {v(t)}, s[20:21]' if cfg.wdpos!=2 and not cfg.gul else ''}
    {f'global_load_dwordx4 {v(T+16,4)}, {v(t+1)}, s[22:23]' if cfg.wdpos==0 else f'v_mov_b32 {v(T+23)}, {v(t+1)}'}
    """)
    if cfg.wpf: a(f"""
    s_mul_i32 {s(sT)}, {s(sX)}, 224
    s_mul_i32 {s(sT+1)}, {s(sI)}, 7
    s_add_u32 {s(sT)}, {s(sT)}, {s(sT+1)}
    s_min_u32 {s(sT+1)}, {s(sW)}, 6
    s_add_u32 {s(sT)}, {s(sT)}, {s(sT+1)}
    s_lshl_b32 {s(sT)}, {s(sT)}, 10
    v_lshl_add_u32 {v(T+25)}, {v(vLane)}, 4, {s(sT)}
    {f'global_load_dwordx4 {v(T+16,4)}, {v(T+25)}, s[22:23]' if cfg.wpf==1 else ''}
    """)
    a(f"""
    {f'buffer_load_dword {v(T+20)}, off, {WS}, 0 sc1' if not cfg.hot else f's_load_dword {s(sTag)}, s[8:9], 0'}
    s_cmp_eq_u32 {s(sW)}, 0
    s_cselect_b32 {s(sT)}, {s(sT+10)}, s10
    buffer_load_dword {v(T+21)}, {v(vL8)}, {WS}, {s(sT if cfg.hot else sT+10)} offen sc1
    v_mul_u32_u24 {v(T+22)}, {TS}, {v(t+4)}
    v_lshl_add_u32 {v(T+22)}, {v(t+3)}, 5, {v(T+22)}
    v_lshlrev_b32 {v(t+5)}, 4, {v(vN)}
    s_and_b32 {s(sT)}, {s(sW)}, 1
    s_lshl_b32 {s(sT)}, {s(sT)}, 2
    v_add_u32 {v(t+6)}, {s(sT)}, {v(vQ)}
    v_lshl_add_u32 {v(vXL)}, {v(t+6)}, 12, {v(t+5)}
    v_add_u32 {v(vXL)}, {s(sT+8)}, {v(vXL)}
    v_mul_u32_u24 {v(vXW)}, 272, {v(t+6)}
    v_add_u32 {v(vXW)}, {v(vXW)}, {v(t+5)}
    v_and_b32 {v(t+6)}, 7, {v(vLane)}
    v_mul_u32_u24 {v(vXR)}, 272, {v(t+6)}
    v_lshl_add_u32 {v(vXR)}, {v(vQ)}, 4, {v(vXR)}
    s_cmp_lg_u32 {s(sW)}, 6
    s_cbranch_scc1 L_fa1
    v_lshlrev_b32 {v(vXL)}, 12, {v(t+6)}
    L_fa1:
    s_lshl2_add_u32 {s(sT)}, {s(sT+2)}, {s(sW)}
    s_lshl_b32 {s(sT)}, {s(sT)}, 6
    s_add_u32 {s(sT)}, {s(sT)}, {s(sT+9)}
    v_lshl_add_u32 {v(vPS)}, {v(vN)}, 2, {s(sT)}
    s_lshl_b32 {s(sT)}, {s(sW)}, 8
    v_mul_u32_u24 {v(vPL)}, 1792, {v(vQ)}
    v_add3_u32 {v(vPL)}, {v(vPL)}, {v(t+5)}, {s(sT)}
    s_lshl_b32 {s(sT)}, {s(sW)}, 7
    s_add_u32 {s(sT)}, {s(sT)}, {F_H}
    v_lshl_add_u32 {v(vHR)}, {v(vQ)}, 4, {s(sT)}
    v_and_b32 {v(t+6)}, 12, {v(vN)}
    v_lshl_add_u32 {v(vHW)}, {v(t+6)}, 2, {s(sT)}
    v_and_b32 {v(t+6)}, 1, {v(vN)}
    v_lshl_add_u32 {v(vHW)}, {v(t+6)}, 3, {v(vHW)}
    v_and_b32 {v(t+6)}, 2, {v(vN)}
    v_lshl_add_u32 {v(vHW)}, {v(t+6)}, 5, {v(vHW)}
    v_and_b32 {v(t+6)}, 2, {v(vQ)}
    v_add_u32 {v(vHW)}, {v(vHW)}, {v(t+6)}
    v_and_b32 {v(t+6)}, 1, {v(vQ)}
    v_lshl_add_u32 {v(vHW)}, {v(t+6)}, 2, {v(vHW)}
    s_lshl_b32 {s(sT)}, {s(sW)}, 2
    s_add_u32 {s(sT)}, {s(sT)}, {F_D}
    v_lshl_add_u32 {v(vDP)}, {v(vN)}, 5, {s(sT)}
    v_mov_b32 {v(vFl)}, {F_KEY}
    v_mov_b32 {v(vTag)}, 0
    s_mov_b32 {s(sFast)}, 0
    s_mov_b32 {s(sRnd)}, 2
    s_mov_b32 {s(sPo)}, {WSSZ}
    s_mov_b32 {s(sYo)}, {WSSZ}
    s_mov_b32 {s(sYh)}, {WSSZ}
    s_waitcnt lgkmcnt(0)
    {'s_branch L_fb2' if cfg.dry else ''}
    L_finit:
    s_mov_b32 {s(sRnd)}, 0
    s_mov_b32 {s(sSlot)}, {SLOT}
    s_lshl_b32 {s(sPo)}, {s(sX)}, 13
    s_add_u32 {s(sPo)}, {s(sPo)}, {PART}
    s_lshl_b32 {s(sYo)}, {s(sX)}, 10
    s_lshl_b32 {s(sT)}, {s(sI)}, 5
    s_add_u32 {s(sYo)}, {s(sYo)}, {s(sT)}
    s_add_u32 {s(sYo)}, {s(sYo)}, {YP}
    s_lshl_b32 {s(sYh)}, {s(sX)}, 8
    s_lshl3_add_u32 {s(sYh)}, {s(sI)}, {s(sYh)}
    s_add_u32 {s(sYh)}, {s(sYh)}, {YHINT}
    s_lshl_b32 {s(sT)}, {s(sW)}, 10
    v_lshl_add_u32 {v(t)}, {v(vLane)}, 4, {s(sT)}
    v_lshl_add_u32 {v(t+1)}, {v(vQ)}, 8, {s(sT)}
    v_lshl_add_u32 {v(t+1)}, {v(vN)}, 3, {v(t+1)}
    s_and_b32 {s(sT)}, {s(sW)}, 3
    s_mul_i32 {s(sT)}, {s(sT)}, {TS}
    v_lshl_add_u32 {v(t+2)}, {v(vQ)}, 8, {s(sT)}
    v_lshl_add_u32 {v(t+2)}, {v(vN)}, 3, {v(t+2)}
    v_mov_b32 {v(vTag+1)}, {s(sXcc)}
    s_lshl3_add_u32 {s(sT+1)}, {s(sI)}, {s(sT+10)}
    s_waitcnt vmcnt(0)
    {f'v_mov_b32 {v(T+20)}, {s(sTag)}' if cfg.hot else ''}
    v_add_u32 {v(vTag)}, 1, {v(T+20)}
    ds_write_b128 {v(T+22)}, {v(T+8,4)}
    ds_write_b128 {v(T+22)}, {v(T+12,4)} offset:16
    {f'ds_write_b128 {v(t)}, {v(T+16,4)} offset:{F_WD}' if cfg.wdpos==0 else ''}
    v_readfirstlane_b32 {s(sTag)}, {v(vTag)}
    s_cmp_lg_u32 {s(sW)}, 0
    s_cbranch_scc1 L_fi1
    s_mov_b64 exec, 1
    buffer_store_dwordx2 {v(vTag,2)}, off, {WS}, {s(sT+1)}
    s_mov_b64 exec, -1
    L_fi1:
    s_waitcnt lgkmcnt(0)
    s_barrier
    """)
    if cfg.stamps: a(f's_mov_b32 {s(sStampI)}, 0')
    stamp()
    for k in range(4):
        a(f'ds_read_b64_tr_b16 {v(WA+4*k,2)}, {v(t+2)} offset:{1024*k}')
        a(f'ds_read_b64_tr_b16 {v(WA+4*k+2,2)}, {v(t+2)} offset:{1024*k+128}')
    a(f"""
    {f'ds_read_b64_tr_b16 {v(WD,2)}, {v(t+1)} offset:{F_WD}' if cfg.wdpos==0 else ''}
    {f'ds_read_b64_tr_b16 {v(WD+2,2)}, {v(t+1)} offset:{F_WD+128}' if cfg.wdpos==0 else ''}
    s_cmp_lg_u32 {s(sW)}, 0
    s_cbranch_scc1 L_fi3
    s_movk_i32 {s(sTry)}, 80
    L_fl:
    buffer_load_dwordx2 {v(t+4,2)}, {v(vL8)}, {WS}, {s(sTabLd)} offen sc1
    buffer_load_dwordx2 {v(t+6,2)}, {v(vL8)}, {WS}, {s(sT+10)} offen sc1
    s_waitcnt vmcnt(0)
    v_cmp_ne_u32 vcc, {s(sTag)}, {v(t+4)}
    v_cmp_ne_u32 {s(sT,2)}, {s(sTag)}, {v(t+6)}
    s_or_b64 vcc, vcc, {s(sT,2)}
    """)
    poll_branch('L_fl', 4, giveup='L_fslowtab', skip=True)
    a(f"""
    v_cmp_ne_u32 vcc, {s(sXcc)}, {v(t+5)}
    v_cmp_ne_u32 {s(sT,2)}, {s(sXcc)}, {v(t+7)}
    s_or_b64 vcc, vcc, {s(sT,2)}
    s_cbranch_vccnz L_fslowtab
    s_mov_b32 {s(sFast)}, 1
    {f's_sleep {cfg.tdel}' if cfg.tdel else ''}
    v_and_b32 {v(t+4)}, 1, {v(vQ)}
    v_lshlrev_b32 {v(t+4)}, 16, {v(t+4)}
    v_lshl_add_u32 {v(t+4)}, {v(vN)}, 4, {v(t+4)}
    s_lshl_b32 {s(sT)}, {s(sI)}, 8
    s_add_u32 {s(sT)}, {s(sT)}, {s(sPo)}
    buffer_load_dword {v(t+5)}, {v(t+4)}, {WS}, {s(sT)} offen sc1
    {f'buffer_load_dword {v(t+7)}, off, {WS}, {s(sYh)} sc1' if cfg.ht else ''}
    {f'buffer_load_dword {v(t+8)}, off, {WS}, {s(sYh)} offset:{YHR} sc1' if cfg.ht else ''}
    L_fi2:
    v_mov_b32 {v(t+6)}, {s(sFast)}
    ds_write_b32 {v(vFl)}, {v(t+6)} offset:4
    L_fi3:
    s_waitcnt vmcnt(0) lgkmcnt(0)
    s_barrier
    ds_read_b32 {v(t+6)}, {v(vFl)} offset:4
    s_waitcnt lgkmcnt(0)
    v_readfirstlane_b32 {s(sFast)}, {v(t+6)}
    """)
    if cfg.wpf==2: a((f's_sleep {cfg.gdelay}\n' if cfg.gdelay else '')+f'global_load_dwordx4 {v(T+16,4)}, {v(T+25)}, s[22:23]\ns_waitcnt vmcnt(0)')
    if cfg.gul:
        a(f"""
        {f's_sleep {cfg.gdelay}' if cfg.gdelay else ''}
        {f'global_load_dwordx4 {v(T+8,4)}, {v(T+24)}, s[18:19]' if cfg.gul==2 else ''}
        global_load_dwordx4 {v(T+12,4)}, {v(T+24)}, s[20:21]
        s_waitcnt vmcnt(0)
        ds_write_b128 {v(T+22)}, {v(T+8,4)}
        ds_write_b128 {v(T+22)}, {v(T+12,4)} offset:16
        s_waitcnt lgkmcnt(0)
        s_barrier
        """)
        for k in range(4):
            a(f'ds_read_b64_tr_b16 {v(WA+4*k,2)}, {v(t+2)} offset:{1024*k}')
            a(f'ds_read_b64_tr_b16 {v(WA+4*k+2,2)}, {v(t+2)} offset:{1024*k+128}')
        a('s_waitcnt lgkmcnt(0)')
    if cfg.wdpos==3: a(f'v_mov_b32 {v(T+8)}, {v(t)}\nv_mov_b32 {v(T+9)}, {v(t+1)}')
    if cfg.wdpos==2:
        a(f"""
        {f's_sleep {cfg.gdelay}' if cfg.gdelay else ''}
        global_load_dwordx4 {v(T+8,4)}, {v(T+24)}, s[18:19]
        global_load_dwordx4 {v(T+12,4)}, {v(T+24)}, s[20:21]
        global_load_dwordx4 {v(T+16,4)}, {v(T+23)}, s[22:23]
        s_waitcnt vmcnt(0)
        ds_write_b128 {v(T+22)}, {v(T+8,4)}
        ds_write_b128 {v(T+22)}, {v(T+12,4)} offset:16
        ds_write_b128 {v(t)}, {v(T+16,4)} offset:{F_WD}
        s_waitcnt lgkmcnt(0)
        s_barrier
        """)
        for k in range(4):
            a(f'ds_read_b64_tr_b16 {v(WA+4*k,2)}, {v(t+2)} offset:{1024*k}')
            a(f'ds_read_b64_tr_b16 {v(WA+4*k+2,2)}, {v(t+2)} offset:{1024*k+128}')
        a(f"""
        ds_read_b64_tr_b16 {v(WD,2)}, {v(t+1)} offset:{F_WD}
        ds_read_b64_tr_b16 {v(WD+2,2)}, {v(t+1)} offset:{F_WD+128}
        s_waitcnt lgkmcnt(0)
        """)
    if cfg.wdpos==1: a(f"""
    {f's_sleep {cfg.gdelay}' if cfg.gdelay else ''}
    global_load_dwordx4 {v(T+16,4)}, {v(T+23)}, s[22:23]
    s_waitcnt vmcnt(0)
    ds_write_b128 {v(t)}, {v(T+16,4)} offset:{F_WD}
    ds_read_b64_tr_b16 {v(WD,2)}, {v(t+1)} offset:{F_WD}
    ds_read_b64_tr_b16 {v(WD+2,2)}, {v(t+1)} offset:{F_WD+128}
    s_waitcnt lgkmcnt(0)
    """)
    a(f"""
    L_frnd:
    s_add_u32 {s(sTabLd)}, {s(sTabLd)}, {ARGR}
    s_cmp_lg_u32 {s(sW)}, 0
    s_cbranch_scc1 L_fb1
    s_cmp_eq_u32 {s(sFast)}, 0
    s_cbranch_scc1 L_fb1
    L_ftrig:
    buffer_load_dword {v(t)}, {v(vL8)}, {WS}, {s(sTabLd)} offen sc1
    s_waitcnt vmcnt(0)
    v_cmp_ne_u32 vcc, {s(sTag)}, {v(t)}
    """)
    poll_branch('L_ftrig', cfg.slp_f)
    stamp()
    a(f"""
    s_cmp_eq_u32 {s(sRnd)}, 0
    s_cbranch_scc1 L_ft0
    s_sleep {cfg.tim_a1}
    s_branch L_fb1
    L_ft0:
    s_sleep {cfg.tim_arg if cfg.wdpos!=3 else cfg.tim_wd}
    L_fb1:
    """)
    if cfg.wdpos==3: a(f"""
    s_cmp_lg_u32 {s(sRnd)}, 0
    s_cbranch_scc1 L_fb1b
    s_barrier
    global_load_dwordx4 {v(T+16,4)}, {v(T+23)}, s[22:23]
    s_sleep {cfg.tim_arg-cfg.tim_wd}
    L_fb1b:
    """)
    a(f"""
    s_sub_u32 {s(sT)}, {s(sW)}, 4
    s_cmp_lt_u32 {s(sT)}, 2
    s_barrier
    s_cbranch_scc1 L_fx
    s_cmp_lg_u32 {s(sW)}, 6
    s_cbranch_scc1 L_fb2
    s_mov_b64 exec, 0xff
    L_fhd:
    buffer_load_dword {v(t)}, {v(vXL)}, {WS}, {s(sSlot)} offen offset:3072 sc1
    s_waitcnt vmcnt(0)
    v_cmp_eq_u32 vcc, -1, {v(t)}
    """)
    poll_branch('L_fhd', 2, skip=True)
    a(f"""
    v_max_u32_dpp {v(t)}, {v(t)}, {v(t)} row_half_mirror {DPP}
    v_max_u32_dpp {v(t)}, {v(t)}, {v(t)} quad_perm:[1,0,3,2] {DPP}
    v_max_u32_dpp {v(t)}, {v(t)}, {v(t)} quad_perm:[2,3,0,1] {DPP}
    ds_write_b32 {v(vFl)}, {v(t)}
    s_mov_b64 exec, -1
    s_branch L_fb2
    L_fx:
    buffer_load_dwordx4 {v(t,4)}, {v(vXL)}, {WS}, {s(sSlot)} offen sc1
    s_waitcnt vmcnt(0)
    ds_write_b128 {v(vXW)}, {v(t,4)} offset:{F_X}
    """)
    maxchk(range(t,t+4), t+4)
    poll_branch('L_fx', 2, mask=True)
    Dd=t+16
    a(f"""
    L_fb2:
    """)
    if cfg.wdpos==3: a(f"""
    s_cmp_lg_u32 {s(sRnd)}, 0
    s_cbranch_scc1 L_fb2b
    s_waitcnt vmcnt(0)
    ds_write_b128 {v(T+8)}, {v(T+16,4)} offset:{F_WD}
    ds_read_b64_tr_b16 {v(WD,2)}, {v(T+9)} offset:{F_WD}
    ds_read_b64_tr_b16 {v(WD+2,2)}, {v(T+9)} offset:{F_WD+128}
    L_fb2b:
    """)
    a(f"""
    s_cmp_gt_u32 {s(sW)}, 3
    s_waitcnt lgkmcnt(0)
    s_barrier
    s_cbranch_scc1 L_fnoa
    ds_read_b32 {v(t+20)}, {v(vFl)}
    """)
    for k in range(4): a(f'ds_read_b128 {v(t+4*k,4)}, {v(vXR)} offset:{F_X+64*k}')
    stamp()
    a(f"""
    s_cmp_lt_u32 {s(sI)}, 28
    s_cselect_b32 {s(sPs)}, {s(sPo)}, {WSSZ}
    s_waitcnt lgkmcnt(3)
    v_mfma_f32_16x16x32_bf16 {v(Dd,4)}, {v(t,4)}, {v(WA,4)}, 0
    v_readfirstlane_b32 {s(sKey)}, {v(t+20)}
    s_waitcnt lgkmcnt(2)
    v_mfma_f32_16x16x32_bf16 {v(Dd,4)}, {v(t+4,4)}, {v(WA+4,4)}, {v(Dd,4)}
    s_andn2_b32 {s(sT)}, 15, {s(sKey)}
    s_sub_u32 {s(sT+1)}, 16, {s(sT)}
    s_min_u32 {s(sT)}, {s(sT)}, {s(sT+1)}
    s_waitcnt lgkmcnt(1)
    v_mfma_f32_16x16x32_bf16 {v(Dd,4)}, {v(t+8,4)}, {v(WA+8,4)}, {v(Dd,4)}
    s_bitcmp1_b32 {s(sT)}, 0
    s_cselect_b64 vcc, -1, 0
    s_waitcnt lgkmcnt(0)
    v_mfma_f32_16x16x32_bf16 {v(Dd,4)}, {v(t+12,4)}, {v(WA+12,4)}, {v(Dd,4)}
    s_bitcmp1_b32 {s(sT)}, 1
    s_cselect_b64 {s(sT+2,2)}, -1, 0
    s_and_b32 {s(sT)}, {s(sT)}, 4
    s_lshl_b32 {s(sT)}, {s(sT)}, 2
    s_bfm_b64 exec, 16, {s(sT)}
    s_cmp_eq_u32 {s(sFast)}, 0
    v_cndmask_b32 {v(Dd)}, {v(Dd)}, {v(Dd+1)}, vcc
    v_cndmask_b32 {v(Dd+2)}, {v(Dd+2)}, {v(Dd+3)}, vcc
    v_cndmask_b32 {v(Dd)}, {v(Dd)}, {v(Dd+2)}, {s(sT+2,2)}
    s_cbranch_scc1 L_fps_s ;!nd
    buffer_store_dword {v(Dd)}, {v(vPS)}, {WS}, {s(sPs)} offen
    L_fps_d:
    s_mov_b64 exec, -1
    s_cmp_eq_u32 {s(sRnd)}, 2
    s_cbranch_scc1 L_fpok
    {'s_waitcnt vmcnt(0)' if not cfg.nw&1 else ''}
    {f's_sleep {cfg.dp}' if cfg.dp else ''}
    s_branch L_fp
    L_fps_s:
    buffer_store_dword {v(Dd)}, {v(vPS)}, {WS}, {s(sPs)} offen sc1
    s_branch L_fps_d
    L_fnoa:
    s_cmp_eq_u32 {s(sW)}, 7
    s_cbranch_scc1 L_f7
    ds_read_b32 {v(vTag+1)}, {v(vFl)}
    s_waitcnt lgkmcnt(0)
    """)
    if cfg.eh==2:
        a(f's_cmp_lg_u32 {s(sW)}, 5\ns_cbranch_scc1 L_fyh_d\n'+(f's_sleep {cfg.ehd}' if cfg.ehd else ''))
        hint_store(vTag, sYh, 'L_fyh')
    a(f"""
    s_cmp_eq_u32 {s(sRnd)}, 2
    s_cbranch_scc1 L_fpok
    s_sleep {cfg.tim_p}
    s_branch L_fp
    L_fp:
    buffer_load_dwordx4 {v(t,4)}, {v(vPL)}, {WS}, {s(sPo)} offen sc1
    s_waitcnt vmcnt(0)
    """)
    maxchk(range(t,t+4), t+4)
    poll_branch('L_fp', cfg.slp_p, mask=True)
    stamp()
    a(f"""
    L_fpok:
    v_permlane32_swap_b32 {v(t)}, {v(t+1)}
    v_permlane32_swap_b32 {v(t+2)}, {v(t+3)}
    v_add_f32 {v(t)}, {v(t)}, {v(t+1)}
    v_add_f32 {v(t+2)}, {v(t+2)}, {v(t+3)}
    v_permlane16_swap_b32 {v(t)}, {v(t+2)}
    v_add_f32 {v(t)}, {v(t)}, {v(t+2)}
    v_mul_f32 {v(t+1)}, 0xbfb8aa3b, {v(t)}
    v_exp_f32 {v(t+1)}, {v(t+1)}
    v_mul_f32_dpp {v(t+2)}, {v(t)}, {v(t)} quad_perm:[2,3,0,1] {DPP}
    v_add_f32 {v(t+1)}, 1.0, {v(t+1)}
    v_rcp_f32 {v(t+1)}, {v(t+1)}
    v_mul_f32 {v(t+1)}, {v(t+1)}, {v(t+2)}
    v_cvt_pk_bf16_f32 {v(t+1)}, {v(t+1)}, {v(t+1)}
    ds_write_b16 {v(vHW)}, {v(t+1)}
    ds_read_b128 {v(t+4,4)}, {v(vHR)}
    """)
    if cfg.eh==1:
        a(f's_cmp_lg_u32 {s(sW)}, 5\ns_cbranch_scc1 L_fyh_d')
        hint_store(vTag, sYh, 'L_fyh')
    a(f"""
    s_waitcnt lgkmcnt(0)
    v_mfma_f32_16x16x32_bf16 {v(t+8,4)}, {v(t+4,4)}, {v(WD,4)}, 0
    s_mov_b64 exec, 0xffff
    ds_write_b32 {v(vDP)}, {v(t+8)}
    s_mov_b64 exec, -1
    s_waitcnt lgkmcnt(0)
    s_barrier
    L_fnext:
    """)
    stamp()
    a(f"""
    s_cmp_eq_u32 {s(sRnd)}, 1
    s_cbranch_scc1 L_fend
    s_cmp_eq_u32 {s(sRnd)}, 2
    s_cbranch_scc1 L_finit
    """)
    if cfg.wb==1: a(f"""
    s_cmp_lg_u32 {s(sI)}, 28
    s_cbranch_scc1 L_nwb
    s_cmp_lg_u32 {s(sW)}, 3
    s_cbranch_scc1 L_nwb
    s_sleep {cfg.wbd}
    buffer_wbl2 sc1
    L_nwb:
    """)
    a(f"""
    s_mov_b32 {s(sRnd)}, 1
    s_add_u32 {s(sSlot)}, {s(sSlot)}, {SLOTR}
    s_add_u32 {s(sPo)}, {s(sPo)}, {PARTR}
    s_add_u32 {s(sYo)}, {s(sYo)}, {YPR}
    s_add_u32 {s(sYh)}, {s(sYh)}, {YHR}
    s_branch L_frnd
    L_f7:
    ds_read_b32 {v(t+20)}, {v(vFl)}
    v_mov_b32 {v(vSig)}, 0xbfb8aa3b
    v_add_u32 {v(t+8)}, -28, {v(vDP)}
    v_lshlrev_b32 {v(t+9)}, 1, {v(vN)}
    s_waitcnt lgkmcnt(0)
    v_readfirstlane_b32 {s(sKey)}, {v(t+20)}
    v_mov_b32 {v(vTag+1)}, {v(t+20)}
    s_ashr_i32 {s(sT)}, {s(sKey)}, 31
    s_orn2_b32 {s(sT)}, 0x80000000, {s(sT)}
    s_xor_b32 {s(sT)}, {s(sT)}, {s(sKey)}
    v_mul_f32 {v(vSig)}, {s(sT)}, {v(vSig)}
    v_exp_f32 {v(vSig)}, {v(vSig)}
    v_add_f32 {v(vSig)}, 1.0, {v(vSig)}
    v_rcp_f32 {v(vSig)}, {v(vSig)}
    s_barrier
    ds_read_b128 {v(t,4)}, {v(t+8)}
    ds_read_b96 {v(t+4,3)}, {v(t+8)} offset:16
    """)
    if cfg.eh==3: hint_store(vTag, sYh, 'L_fyh')
    a(f"""
    s_waitcnt lgkmcnt(1)
    v_pk_add_f32 {v(t,2)}, {v(t,2)}, {v(t+2,2)}
    v_add_f32 {v(t)}, {v(t)}, {v(t+1)}
    s_waitcnt lgkmcnt(0)
    v_add_f32 {v(t+4)}, {v(t+4)}, {v(t+5)}
    v_add_f32 {v(t)}, {v(t)}, {v(t+6)}
    v_add_f32 {v(t)}, {v(t)}, {v(t+4)}
    v_mul_f32 {v(t)}, {v(t)}, {v(vSig)}
    v_mov_b32_dpp {v(t+1)}, {v(t)} quad_perm:[1,1,3,3] {DPP}
    s_mov_b64 exec, 0x5555
    v_cvt_pk_bf16_f32 {v(t)}, {v(t)}, {v(t+1)}
    buffer_store_dword {v(t)}, {v(t+9)}, {WS}, {s(sYo)} offen sc1
    """)
    if cfg.eh: a('s_mov_b64 exec, -1')
    else: hint_store(vTag, sYh, 'L_fyh')
    a(f"""
    s_branch L_fnext
    L_fslowtab:
    v_and_b32 {v(t+16)}, 7, {v(vLane)}
    v_lshlrev_b32 {v(t+16)}, 7, {v(t+16)}
    s_mov_b32 {s(sT+10)}, {TABG}
    L_ftab2:
    buffer_load_dword {v(t+4)}, {v(t+16)}, {WS}, {s(sT+10)} offen sc1
    s_waitcnt vmcnt(0)
    v_cmp_ne_u32 vcc, {s(sTag)}, {v(t+4)}
    """)
    poll_branch('L_ftab2', 8)
    a('s_branch L_fi2\nL_fend:')
    dump_stamps()
    a('s_endpgm')

def build():
    hdr=open('ref.txt').read().split('; @launch')[0]
    a.raw(hdr+f'; @launch grid=({NWG},1,1) block=(512,1,1) lds={LDS_TOTAL}')
    a.raw(f'''; generated by gen/gen.py (hand-written generator): persistent FFT-structured FNet + MoD kernel
.amdgcn_target "amdgcn-amd-amdhsa--gfx950"
.text
.globl {NAME}_kernel
.p2align {cfg.al}
.p2align 8
.type {NAME}_kernel,@function
{NAME}_kernel:''')
    if cfg.st0: a(f's_memrealtime s[88:89]\ns_waitcnt lgkmcnt(0)')
    a(f'''
    s_load_dwordx2 s[12:13], s[0:1], 0
    s_load_dwordx2 s[8:9], s[0:1], 96
    ''')
    if cfg.codepf==3: a(f'''
    s_getpc_b64 {s(sT+6,2)}
    L_pc:
    v_lshlrev_b32 v3, 6, v0
    v_cmp_gt_u32 vcc, L_end-L_pc, v3
    s_cmp_lt_u32 s2, {cfg.pfn}
    s_cselect_b64 exec, vcc, 0
    s_cbranch_execz L_npf ;!nd
    global_load_dword {v(vTG)}, v3, {s(sT+6,2)}
    L_npf:
    s_mov_b64 exec, -1
    ''')
    a(f'''
    s_load_dwordx8 s[16:23], s[0:1], 48
    s_load_dwordx2 s[28:29], s[0:1], 80
    v_and_b32 {v(vN)}, 15, v0
    v_bfe_u32 {v(vQ)}, v0, 4, 2
    v_lshrrev_b32 v2, 6, v0
    v_lshlrev_b32 {v(vUW)}, 7, v2
    v_lshl_add_u32 {v(vUW)}, {v(vN)}, 3, {v(vUW)}                ; 128w+8n
    v_lshl_add_u32 {v(vXoff)}, {v(vQ)}, 19, {v(vUW)}
    s_and_b32 {s(sX)}, s2, 7
    s_lshr_b32 {s(sJ)}, s2, 3
    s_and_b32 {s(sGg)}, {s(sJ)}, 15
    s_lshl4_add_u32 {s(sGg)}, {s(sGg)}, {s(sX)}
    s_sub_u32 {s(sMP)}, 256, {s(sGg)}
    s_bitcmp1_b32 {s(sJ)}, 4
    s_cselect_b32 {s(sGg)}, {s(sMP)}, {s(sGg)}
    s_cselect_b32 {s(sMP)}, 0x80008000, 0
    s_cmp_eq_u32 {s(sX)}, 0
    s_cselect_b32 {s(sGg)}, s2, {s(sGg)}
    s_cselect_b32 {s(sMP)}, 0, {s(sMP)}
    s_lshl_b32 {s(sRow0)}, {s(sGg)}, 10
    s_add_u32 {s(sRow1)}, {s(sRow0)}, 0x40000
    s_mov_b32 s14, 0x200000
    s_mov_b32 s15, 0x20000
    v_readfirstlane_b32 {s(sW)}, v2
    ''')
    pfc=f'''
    s_getpc_b64 {s(sT+6,2)}
    L_pc:
    v_lshlrev_b32 v3, 6, v0
    v_cmp_gt_u32 vcc, L_end-L_pc, v3
    s_xor_b32 {s(sT)}, s2, {cfg.pfx}
    s_and_b32 {s(sT)}, {s(sT)}, {cfg.pfm2}
    s_cselect_b64 vcc, 0, vcc
    s_cbranch_vccz L_npf ;!nd
    s_mov_b64 exec, vcc
    global_load_dword {v(vTG)}, v3, {s(sT+6,2)}
    s_mov_b64 exec, -1
    L_npf:
    '''
    if cfg.codepf==1: a(pfc)
    a(f'''
    s_cmp_ge_u32 s2, 256
    s_cbranch_scc1 L_nox ;!nd
    s_waitcnt lgkmcnt(0)
    buffer_load_dwordx2 {v(BC,2)}, {v(vXoff)}, {XS}, {s(sRow0)} offen
    buffer_load_dwordx2 {v(BC+2,2)}, {v(vXoff)}, {XS}, {s(sRow1)} offen
    L_nox:
    {pfc if cfg.codepf==2 else ''}
    s_cmp_ge_u32 s2, {NWG}
    s_cbranch_scc1 L_end
    {'s_waitcnt lgkmcnt(0)' if cfg.wsoff else ''}
    {f's_add_u32 s8, s8, {cfg.wsoff<<20}' if cfg.wsoff else ''}
    {'s_addc_u32 s9, s9, 0' if cfg.wsoff else ''}
    v_and_b32 {v(vLane)}, 63, v0
    s_mov_b32 s10, {WSSZ}
    s_mov_b32 s11, 0x20000
    s_mov_b32 s30, 0x200000
    s_mov_b32 s31, 0x20000
    v_mov_b32 {v(SENT)}, -1
    v_mov_b32 {v(SENT+1)}, -1
    v_mov_b32 {v(SENT+2)}, -1
    v_mov_b32 {v(SENT+3)}, -1
    v_lshlrev_b32 {v(vL8)}, 3, v0
    v_and_b32 {v(vL8)}, 0xf8, {v(vL8)}
    s_mov_b32 {s(sCnt)}, 200000
    s_mov_b32 {s(sM7FF)}, 0x7ff
    s_lshl_b32 {s(sTabLd)}, {s(sX)}, 8
    s_add_u32 {s(sTabLd)}, {s(sTabLd)}, {TABL}
    s_getreg_b32 {s(sXcc)}, hwreg(HW_REG_XCC_ID, 0, 4)
    ''')
    if cfg.force_slow: a(f's_mov_b32 {s(sXcc)}, {s(sJ)}')
    if cfg.stamps:
        a(f's_mov_b32 {s(sStampI)}, 0\nv_mov_b32 {v(vSTMP)}, 0')
        a(f's_memrealtime {s(sTS,2)}\ns_memtime {s(sTS+2,2)}\ns_waitcnt lgkmcnt(0)\nv_writelane_b32 {v(vSTMP)}, {s(sTS)}, 63\nv_writelane_b32 {v(vSTMP)}, {s(sTS+2)}, 62')
        a(f'v_writelane_b32 {v(vSTMP)}, {s(sT+6)}, 57')
        if cfg.st0: a(f'v_writelane_b32 {v(vSTMP)}, {s(sTS)}, 58\nv_writelane_b32 {v(vSTMP)}, s88, 63\ns_memrealtime {s(sTS,2)}\ns_waitcnt lgkmcnt(0)\nv_writelane_b32 {v(vSTMP)}, {s(sTS)}, 59')
    a('''s_cmp_ge_u32 s2, 256
    s_cbranch_scc1 L_ffn''')
    if cfg.prio: a(f's_setprio 2\ns_cmp_gt_u32 {s(sW)}, 1\ns_cbranch_scc1 L_np\ns_setprio 3\nL_np:')
    main_prologue()
    main_loop()
    ffn()
    a('L_end:\ns_endpgm')
    a.raw(f'''.section .rodata,"a"
.p2align 6
.amdhsa_kernel {NAME}_kernel
  .amdhsa_next_free_vgpr 128
  .amdhsa_next_free_sgpr 96
  .amdhsa_accum_offset 128
  .amdhsa_group_segment_fixed_size 0
  .amdhsa_kernarg_size 104
  .amdhsa_user_sgpr_count 2
  .amdhsa_user_sgpr_kernarg_segment_ptr 1
  .amdhsa_system_sgpr_workgroup_id_x 1
.end_amdhsa_kernel''')
    return a.text()
if __name__=='__main__':
    out=sys.argv[1]
    for kv in sys.argv[2:]:
        k,val=kv.split('='); assert hasattr(cfg,k); setattr(cfg,k,int(val))
    open(out,'w').write(build())
    print('instrs',a.count,'nops',a.nops)
```

```python
import sys, struct
from asmlib import Asm
NAME='interleave_layers__spectral_fnet__moe_arch_mod__prompt'
def fbits(x): return '0x%08x' % struct.unpack('<I', struct.pack('<f', x))[0]

class Cfg:
    stamps=0
    tim_arg=14
    tim_y=0
    tim_h=0
    slp_g=2
    slp_l=1
    force_slow=0
    prio=1
    codepf=1
    exp=0
    gre=0
    cfl=0
    tlb=0
    wsoff=0
    st0=0
    cal=-1
    calwg=0
    dbgout=0
    dry=0
    wb=0
    fdelay=0
    gdelay=0
    osc=1
    odel=0
    pfm=7
    clr2=0
    nb0=0
    ehint=0
    post=0
    slp_t=0
    aft=0
    g2pos=3
    spr=1
    twice=1
    lastp=1
    hot=1
    gw=0
    gul=0
    xpos=1
    tdel=26
    pub0=1
    al=12
    ep0=1
    ypos=1
    lnt=3
    dg=0
    hs=0
    ub=1
    dg2=0
    ehd=0
    dgl=0
    tim_r=0
    sb=0
    mg=1
    w7=0
    ff=1
    ht=1
    nw=3
    pfx=0
    pfn=16
    pfm2=0x118
    xw=0
    dr=0
    xe=0
    wpos=0
    wpf=2
    dl=0
    smask=0
    dp=2
    dx=0
    tim_a1=14
    tim_wd=1
    tim_fh=12
    wdpos=3
    slp_p=1
    tim_p=6
    hold=1
    tim_gy=0
    eh=3
    own=1
    tim_y3=0
    beh=1
    gbb=0
    slp_f=2
    early=4
    tim_a0=0
    wbd=12
    gbdelay=4
    late=1
    split=0
    tch=1
cfg=Cfg()

TABG=0x1000; TABGR=0x6000
TABL=0x2000; ARGR=0x800
TAB2=0x3800
SLOWF=0x4000
YHINT=0x5000; YHR=0x800
FTAB=0x6000
CLR0=0x8000
YP=0x8000; YPR=0x2000
PART=0x20000; PARTR=0x10000
SLOT=0x10000; SLOTR=0x8000
LBASE=0x40000; PS=8448; LX=32*PS
GBASE=0x260000; GS=131072+768; GR=0x110000
STAMP=0x700000
WSSZ=0x800000
NWG=512
NST=(13,9,7)
L_STAT=0; L_U=0x400; L_YI=0x2400; YIS=288; L_YT=0x4C00; L_DH=0x6E00; L_FLAG=0x7E00; L_ROW=0x7E80; LDS_TOTAL=0x8280
L_CX=0x2400
def v(a,n=1): return f'v{a}' if n==1 else f'v[{a}:{a+n-1}]'
def s(a,n=1): return f's{a}' if n==1 else f's[{a}:{a+n-1}]'

WS='s[8:11]'; XS='s[12:15]'; OS='s[28:31]'
sW=3; sX=26; sJ=27; sIt=32; sTag=33; sFast=34; sKey=35; sMir=36; sDsc=38
sLst=39; sLld=40; sPh=41; sTabG=42; sG0=43; sG4=44; sTabSt=45; sTabLd=46; sSlot=47; sRow0=48; sRow1=49; sCnt=50
sXcc=51; sStampI=37
sK512=52
sTry=53
sEps=54
sC16=56
sSc=58
sM7FF=60; sTop=61
sQmask=62
sT=64
sNx=84; sSg=85; sYo=86; sYh=87
sGg=4; sMP=5
sTS=80
X=2; WV=10; A8=14; XA=16; B1C=20; B1S=24; B1N=28; TWC=32; TWS=36; A2R=40; A2I=44; YC=48; YS=52
AD=56; BC=58
vXoff=72; vStW=73; vStR=74; vUW=75; vUR=76; vLst=77; vLld=78; vLldM=79; vYIW=80; vYIR=81; vYW=82; vYR=83; vGst=84; vGld=85
vSc0=86; vL8=88; vInv=89; vN=90; vQ=91; vSTMP=1; vLane=92; vTG=93
LNP=94; MM=98; RS2=100
T=102
class Asm2(Asm):
    def __call__(self, text):
        parts=text.split(';@F')
        for i,p in enumerate(parts):
            if i: fstamp()
            Asm.__call__(self,p)
a=Asm2()
def poll_branch(lbl, sleep=1, pre='', giveup=None, skip=False, mask=False):
    k=a.lines.index(lbl+':')
    if mask:
        pre+='\ns_mov_b64 exec, vcc'; skip=True
        k2=next(i for i in range(k,len(a.lines)) if 's_waitcnt vmcnt(0)' in a.lines[i])
        k3=max(i for i in range(k,k2) if 'buffer_load' in a.lines[i])
        a.lines.insert(k3+1,'    s_mov_b64 exec, -1')
    if a.lines[k-1].strip().startswith(('s_branch','s_endpgm')): skip=False
    a(f's_cbranch_vccnz {lbl}_r ;!nd')
    st=[]
    if skip: st.append(f'    s_branch {lbl}')
    st.append(f'{lbl}_r:')
    if giveup: st+= [f'    s_sub_u32 {s(sTry)}, {s(sTry)}, 1', f'    s_cbranch_scc1 {giveup}']
    else: st+= [f'    s_sub_u32 {s(sCnt)}, {s(sCnt)}, 1', '    s_cbranch_scc1 L_end']
    st+= ['    '+x.strip() for x in pre.split('\n') if x.strip()]
    if sleep: st.append(f'    s_sleep {sleep}')
    a.lines[k:k]=st
nst=0
def fstamp():
    if cfg.stamps in (2,3): stamp()
def stamp():
    global nst
    nst+=1
    if not cfg.stamps or (cfg.stamps==4 and not (cfg.smask>>(nst-1))&1): return
    a(f'''{'s_memtime' if cfg.stamps==2 else 's_memrealtime'} {s(sTS,2)}
    s_waitcnt lgkmcnt(0)
    s_mov_b32 m0, {s(sStampI)}
    s_add_u32 {s(sStampI)}, {s(sStampI)}, 1
    v_writelane_b32 {v(vSTMP)}, {s(sTS)}, m0''')
def dump_stamps():
    if not cfg.stamps: return
    a(f's_memrealtime {s(sTS,2)}\ns_memtime {s(sTS+2,2)}\ns_waitcnt lgkmcnt(0)\nv_writelane_b32 {v(vSTMP)}, {s(sTS)}, 61\nv_writelane_b32 {v(vSTMP)}, {s(sTS+2)}, 60')
    if cfg.cal>=0:
        lab='L_cal%d'%len(a.lines)
        a(f'''s_cmp_lg_u32 s2, {cfg.calwg}
        s_cbranch_scc1 {lab}
        s_cmp_lg_u32 {s(sW)}, 0
        s_cbranch_scc1 {lab}
        v_readlane_b32 {s(sT)}, {v(vSTMP)}, {cfg.cal}
        v_readlane_b32 {s(sT+1)}, {v(vSTMP)}, 63
        s_sub_u32 {s(sT)}, {s(sT)}, {s(sT+1)}
        s_lshl_b32 {s(sT)}, {s(sT)}, 2
        s_add_u32 {s(sT)}, {s(sT)}, 3000
        s_min_u32 {s(sT)}, {s(sT)}, 50000
        {lab}_l:
        s_memrealtime {s(sTS,2)}
        s_waitcnt lgkmcnt(0)
        s_sub_u32 {s(sT+2)}, {s(sTS)}, {s(sT+1)}
        s_cmp_lt_u32 {s(sT+2)}, {s(sT)}
        s_cbranch_scc1 {lab}_l
        {lab}:''')
        return
    a(f'''s_lshl_b32 {s(sT)}, s2, 11
    s_lshl_b32 {s(sT+1)}, {s(sW)}, 8
    s_add_u32 {s(sT)}, {s(sT)}, {s(sT+1)}
    s_add_u32 {s(sT)}, {s(sT)}, {STAMP}
    v_lshlrev_b32 {v(vLane)}, 2, {v(vLane)}
    buffer_store_dword {v(vSTMP)}, {v(vLane)}, {WS}, {s(sT)} offen''')
def maxchk(regs, t):
    regs=list(regs)
    a(f'v_max3_u32 {v(t)}, {v(regs[0])}, {v(regs[1])}, {v(regs[2])}')
    rest=regs[3:]
    while len(rest)>=2:
        a(f'v_max3_u32 {v(t)}, {v(t)}, {v(rest[0])}, {v(rest[1])}'); rest=rest[2:]
    if rest: a(f'v_max_u32 {v(t)}, {v(t)}, {v(rest[0])}')
    a(f'v_cmp_eq_u32 vcc, -1, {v(t)}')
def phchk(regs, t):
    regs=list(regs)
    a(f'v_bitop3_b32 {v(t)}, {v(regs[0])}, {v(regs[1])}, {s(sPh)} bitop3:0x7e')
    for r in regs[2:]: a(f'v_bitop3_b32 {v(t)}, {v(t)}, {v(r)}, {s(sPh)} bitop3:0xf6')
    a(f'v_and_b32 {v(t)}, 1, {v(t)}\nv_cmp_ne_u32 vcc, 0, {v(t)}')
def tag4chk(r):
    for k in range(4): a(f'v_xor_b32 {v(r+k)}, {s(sTag)}, {v(r+k)}')
    a(f'v_or3_b32 {v(r)}, {v(r)}, {v(r+1)}, {v(r+2)}\nv_or_b32 {v(r)}, {v(r)}, {v(r+3)}\nv_cmp_ne_u32 vcc, 0, {v(r)}')
DPP='row_mask:0xf bank_mask:0xf'

def fft_core(xr, xi, U, V, F, P):
    Ur,Ui=U,U+4; Vr,Vi=V,V+4
    if cfg.ff:
        a(f"""
        s_waitcnt lgkmcnt(2)
        v_mfma_f32_16x16x32_f16 {v(Ur,4)}, {v(xr,4)}, {v(B1C,4)}, 0
        v_mfma_f32_16x16x32_f16 {v(Ui,4)}, {v(xr,4)}, {v(B1N,4)}, 0
        s_waitcnt lgkmcnt(0)
        v_mfma_f32_16x16x32_f16 {v(Ur,4)}, {v(xi,4)}, {v(B1S,4)}, {v(Ur,4)}
        v_mfma_f32_16x16x32_f16 {v(Ui,4)}, {v(xi,4)}, {v(B1C,4)}, {v(Ui,4)}
        v_pk_mul_f32 {v(Vi,2)}, {v(Ur,2)}, {v(TWS,2)}
        v_pk_mul_f32 {v(Vr,2)}, {v(Ur,2)}, {v(TWC,2)}
        v_pk_fma_f32 {v(Vi,2)}, {v(Ui,2)}, {v(TWC,2)}, {v(Vi,2)} neg_lo:[0,0,1] neg_hi:[0,0,1]
        v_pk_fma_f32 {v(Vr,2)}, {v(Ui,2)}, {v(TWS,2)}, {v(Vr,2)}
        v_pk_mul_f32 {v(Vi+2,2)}, {v(Ur+2,2)}, {v(TWS+2,2)}
        v_pk_mul_f32 {v(Vr+2,2)}, {v(Ur+2,2)}, {v(TWC+2,2)}
        v_pk_fma_f32 {v(Vi+2,2)}, {v(Ui+2,2)}, {v(TWC+2,2)}, {v(Vi+2,2)} neg_lo:[0,0,1] neg_hi:[0,0,1]
        v_pk_fma_f32 {v(Vr+2,2)}, {v(Ui+2,2)}, {v(TWS+2,2)}, {v(Vr+2,2)}
        """)
    else:
        a('s_waitcnt lgkmcnt(0)')
        a(f'v_mfma_f32_16x16x32_f16 {v(Ur,4)}, {v(xr,4)}, {v(B1C,4)}, 0')
        a(f'v_mfma_f32_16x16x32_f16 {v(Ui,4)}, {v(xr,4)}, {v(B1N,4)}, 0')
        a(f'v_mfma_f32_16x16x32_f16 {v(Ur,4)}, {v(xi,4)}, {v(B1S,4)}, {v(Ur,4)}')
        a(f'v_mfma_f32_16x16x32_f16 {v(Ui,4)}, {v(xi,4)}, {v(B1C,4)}, {v(Ui,4)}')
        for h in (0,2): a(f'v_pk_mul_f32 {v(Vi+h,2)}, {v(Ur+h,2)}, {v(TWS+h,2)}')
        for h in (0,2): a(f'v_pk_mul_f32 {v(Vr+h,2)}, {v(Ui+h,2)}, {v(TWS+h,2)}')
        for h in (0,2):
            a(f'v_pk_fma_f32 {v(Vr+h,2)}, {v(Ur+h,2)}, {v(TWC+h,2)}, {v(Vr+h,2)}')
            a(f'v_pk_fma_f32 {v(Vi+h,2)}, {v(Ui+h,2)}, {v(TWC+h,2)}, {v(Vi+h,2)} neg_lo:[0,0,1] neg_hi:[0,0,1]')
    for r in range(4): a(f'v_cvt_pk_f16_f32 {v(P+r)}, {v(Vr+r)}, {v(Vi+r)}')
    a(f'v_mfma_f32_16x16x32_f16 {v(F,4)}, {v(A2R,4)}, {v(P,4)}, 0')
    a(f'v_mfma_f32_16x16x32_f16 {v(F+4,4)}, {v(A2I,4)}, {v(P,4)}, 0')

SENT=T+4
def g2late():
    return '\n'.join(f'v_mov_b32 {v(LNP+k)}, -1' for k in range(4))+f'\ns_mov_b32 {s(sT+14)}, {GBASE+GR}\nbuffer_store_dwordx4 {v(LNP,4)}, {v(vGst)}, {WS}, {s(sT+14)} offen sc1'

def main_prologue():
    t=T
    X0=BC
    a(f'''
    s_mul_i32 {s(sLld)}, {s(sX)}, {LX}
    s_add_u32 {s(sLld)}, {s(sLld)}, {LBASE}
    s_mul_i32 {s(sLst)}, {s(sJ)}, {PS}
    s_add_u32 {s(sLst)}, {s(sLst)}, {s(sLld)}
    v_lshlrev_b32 {v(t)}, 4, v0
    v_lshrrev_b32 {v(t+1)}, 4, v0
    {f's_load_dword {s(sTag)}, s[8:9], 0' if not cfg.ep0 else ''}
    ''')
    a(f'''
    buffer_load_dwordx4 {v(X0+8,4)}, {v(t)}, {WS}, {s(sLst)} offen sc1
    s_mov_b32 {s(sG0)}, {GBASE}
    s_mul_i32 {s(sT)}, {s(sX)}, {GS}
    s_add_u32 {s(sT+2)}, {s(sJ)}, 24
    s_and_b32 {s(sT+2)}, {s(sT+2)}, 24
    s_lshl_b32 {s(sT+2)}, {s(sT+2)}, 12
    s_add_u32 {s(sT)}, {s(sT)}, {s(sT+2)}
    s_cmp_gt_u32 {s(sW)}, 3
    {f's_cselect_b32 {s(sT)}, s10, {s(sT)}' if cfg.g2pos!=7 else ''}
    {f's_cselect_b32 {s(sT+5)}, {GBASE+GR-32768}, {s(sG0)}' if cfg.g2pos==7 else ''}
    {f's_cselect_b32 {s(sT+6)}, s10, 0' if cfg.g2pos==7 else ''}
    s_and_b32 {s(sT+2)}, {s(sJ)}, 7
    s_cmp_lt_u32 {s(sJ)}, 8
    s_cselect_b32 {s(sT+3)}, 7, 8
    s_cselect_b32 {s(sT+4)}, 112, 0
    s_lshl_b32 {s(sT+2)}, {s(sT+2)}, {s(sT+3)}
    s_add_u32 {s(sT)}, {s(sT)}, {s(sT+2)}
    v_lshlrev_b32 {v(t+2)}, 4, {v(vN)}
    v_lshl_add_u32 {v(vGst)}, {v(t+1)}, 11, {v(t+2)}
    v_and_b32 {v(t+3)}, 8, {v(vN)}
    v_mad_u32_u24 {v(vGst)}, {v(t+3)}, {s(sT+4)}, {v(vGst)}
    v_add_u32 {v(vGst)}, {s(sT)}, {v(vGst)}
    ''')
    a(f'''
    buffer_store_dwordx4 {v(SENT,4)}, {v(vGst)}, {WS}, {s(sG0 if cfg.g2pos!=7 else sT+5)} offen sc1
    {f'v_add_u32 {v(vGst)}, {s(sT+6)}, {v(vGst)}' if cfg.g2pos==7 else ''}
    v_and_b32 {v(BC+6)}, 0x3f0, {v(t)}
    global_load_dwordx2 {v(BC+4,2)}, {v(vUW)}, s[16:17]
    global_load_dwordx4 {v(WV,4)}, {v(BC+6)}, s[16:17]
    s_cmp_lg_u32 {s(sW)}, 0
    s_cbranch_scc1 L_nw0 ;!nd
    buffer_load_dword {v(BC+12)}, off, {WS}, 0 sc1
    buffer_load_dword {v(X0+7)}, {v(vL8)}, {WS}, {s(sTabLd)} offen sc1
    s_and_b32 {s(sT+14)}, {s(sJ)}, 24
    s_add_u32 {s(sT+14)}, {s(sT+14)}, {s(sX)}
    s_and_b32 {s(sT+13)}, {s(sJ)}, 7
    s_lshl3_add_u32 {s(sT+15)}, {s(sT+14)}, {s(sT+13)}
    s_lshl_b32 {s(sT+15)}, {s(sT+15)}, 10
    s_cmp_lt_u32 {s(sT+14)}, 4
    s_cselect_b32 {s(sT+15)}, s10, {s(sT+15)}
    buffer_store_dwordx4 {v(SENT,4)}, {v(t)}, {WS}, {s(sT+15)} offen sc1
    L_nw0:
    ''')
    if cfg.exp&2: stamp(); a('s_waitcnt vmcnt(4)'); stamp()
    c=t+8; co,si=c+8,c+12
    a(f'''
    s_lshr_b32 {s(sT)}, {s(sJ)}, 2
    s_and_b32 {s(sT)}, {s(sT)}, 6                 ; 2*(j>>3)
    s_lshl_b32 {s(sT+1)}, {s(sW)}, 2
    s_and_b32 {s(sT+1)}, {s(sT+1)}, 8             ; 2*4*((w>>1)&1)
    s_cmp_lt_u32 {s(sJ)}, 8
    s_cselect_b32 {s(sT)}, {s(sT+1)}, {s(sT)}
    s_cselect_b32 {s(sT+4)}, 0, -1
    s_mov_b32 {s(sT+5)}, 0x44440054
    s_cmp_eq_u32 {s(sX)}, 0
    s_cselect_b32 {s(sT+4)}, 1, {s(sT+4)}
    s_cselect_b32 {s(sT+5)}, {s(sT+5)}, 0x55550054
    s_cselect_b32 {s(sT+2)}, 0, 1
    s_lshl_b32 {s(sT)}, {s(sT)}, {s(sT+2)}
    s_lshl_b32 {s(sT+1)}, {s(sW)}, 4
    s_and_b32 {s(sT+1)}, {s(sT+1)}, 16            ; 16*(w&1)
    s_mul_i32 {s(sT+2)}, {s(sT+1)}, {s(sT+4)}
    s_cmp_ge_u32 {s(sW)}, 4
    s_cselect_b32 {s(sT+2)}, {s(sT+2)}, 0         ; +-16k
    s_cselect_b32 {s(sT)}, {s(sT)}, 0
    s_cmp_eq_u32 {s(sW)}, 3
    s_cselect_b32 {s(sT)}, 16, {s(sT)}
    s_lshl_b32 {s(sT+3)}, {s(sW)}, 2
    s_lshr_b32 {s(sT+3)}, {s(sT+5)}, {s(sT+3)}
    s_and_b32 {s(sT+3)}, {s(sT+3)}, 15            ; log2 A
    v_lshlrev_b32 {v(c)}, {s(sT+3)}, {v(vN)}
    v_add_u32 {v(c)}, {s(sT)}, {v(c)}
    v_lshl_add_u32 {v(c+1)}, {v(vQ)}, 2, {s(sT+2)}
    v_cvt_f32_u32 {v(c)}, {v(c)}
    v_cvt_f32_i32 {v(c+1)}, {v(c+1)}
    s_mov_b32 {s(sK512)}, {fbits(1/512)}
    v_mul_f32 {v(c)}, {s(sK512)}, {v(c)}
    v_mul_f32 {v(c+4)}, {v(c+1)}, {v(c)}
    v_add_f32 {v(c+5)}, {v(c+4)}, {v(c)}
    v_add_f32 {v(c+6)}, {v(c+5)}, {v(c)}
    v_add_f32 {v(c+7)}, {v(c+6)}, {v(c)}
    ''')
    fill=[f's_mov_b32 {s(sEps)}, {fbits(1e-5)}', f's_mov_b32 {s(sEps+1)}, {fbits(1e-5)}', f's_mov_b32 {s(sC16)}, {fbits(1/16)}', f's_mov_b32 {s(sC16+1)}, {fbits(1/16)}',
          f's_mov_b32 {s(sTop)}, 0x80000000', f's_mov_b32 {s(sQmask)}, 0x11111111', f's_mov_b32 {s(sQmask+1)}, 0x11111111', f's_mov_b32 {s(sG4)}, {GBASE+4*GS}']
    for r in range(4):
        a(f'v_cos_f32 {v(co+r)}, {v(c+4+r)}'); a(fill[2*r])
        a(f'v_sin_f32 {v(si+r)}, {v(c+4+r)}'); a(fill[2*r+1])
    a(f'''
    s_lshl_b32 {s(sT)}, {s(sW)}, 11
    s_add_u32 {s(sT)}, {s(sT)}, {L_CX}
    v_lshlrev_b32 {v(c+2)}, 4, {v(vLane)}
    v_add_u32 {v(c+3)}, {s(sT)}, {v(c+2)}
    s_and_b32 {s(sT)}, {s(sW)}, 6
    s_cmp_eq_u32 {s(sT)}, 2
    s_cbranch_scc1 L_cw
    s_cmp_eq_u32 {s(sW)}, 1
    s_cbranch_scc1 L_cri
    v_cvt_pk_f16_f32 {v(co)}, {v(co)}, {v(co+1)}
    v_cvt_pk_f16_f32 {v(co+1)}, {v(co+2)}, {v(co+3)}
    v_cvt_pk_f16_f32 {v(co+2)}, {v(si)}, {v(si+1)}
    v_cvt_pk_f16_f32 {v(co+3)}, {v(si+2)}, {v(si+3)}
    s_branch L_cw
    L_cri:
    ''')
    for r in range(4):
        a(f'v_cvt_pk_f16_f32 {v(c+4)}, {v(co+r)}, {v(si+r)}')
        a(f'v_cvt_pk_f16_f32 {v(si+r)}, -{v(si+r)}, {v(co+r)}')
        a(f'v_mov_b32 {v(co+r)}, {v(c+4)}')
        a(f'v_xor_b32 {v(si+r)}, {s(sMP)}, {v(si+r)}')
    a(f'''
    L_cw:
    ds_write_b128 {v(c+3)}, {v(co,4)}
    ds_write_b128 {v(c+3)}, {v(si,4)} offset:1024
    v_lshrrev_b32 {v(c+4)}, 2, {v(vN)}
    v_and_b32 {v(c+5)}, 2, {v(vN)}
    v_and_b32 {v(c+6)}, 14, {v(vN)}
    v_cmp_eq_u32 vcc, 2, {v(c+6)}
    v_lshlrev_b32 {v(vStR)}, 8, {v(vQ)}
    v_cndmask_b32 {v(c+4)}, {v(c+4)}, 4, vcc
    v_cndmask_b32 {v(c+5)}, {v(c+5)}, 0, vcc
    v_mul_u32_u24 {v(c+6)}, {v(c+4)}, {v(vQ)}
    v_lshl_add_u32 {v(c+6)}, {v(c+6)}, 1, {v(c+5)}
    v_add_u32 {v(c+7)}, {v(c+6)}, {v(c+4)}
    v_cvt_f32_u32 {v(c+6)}, {v(c+6)}
    v_cvt_f32_u32 {v(c+7)}, {v(c+7)}
    v_mul_f32 {v(c+6)}, 0x3e000000, {v(c+6)}
    v_mul_f32 {v(c+7)}, 0x3e000000, {v(c+7)}
    v_cos_f32 {v(c+6)}, {v(c+6)}
    v_cos_f32 {v(c+7)}, {v(c+7)}
    v_and_b32 {v(c+5)}, 1, {v(vN)}
    v_cmp_eq_u32 vcc, 0, {v(c+5)}
    v_cvt_pk_f16_f32 {v(c+6)}, {v(c+6)}, {v(c+7)}
    v_mov_b32 {v(c+5)}, 0x80008000
    v_cndmask_b32 {v(A8)}, 0, {v(c+6)}, vcc
    v_cndmask_b32 {v(A8+1)}, {v(c+6)}, 0, vcc
    v_cndmask_b32 {v(c+5)}, {v(c+5)}, 0, vcc
    s_lshl_b32 {s(sT+1)}, {s(sT+1)}, 7            ; h*2048
    v_add_u32 {v(c+6)}, {s(sT+1)}, {v(c+2)}
    s_lshl_b32 {s(sT+2)}, {s(sW)}, 10
    s_and_b32 {s(sT+2)}, {s(sT+2)}, 4096          ; (w>>2)*4096
    v_add_u32 {v(c+7)}, {s(sT+2)}, {v(c+2)}
    ''')
    if cfg.exp&4: stamp()
    a(f'''
    s_waitcnt lgkmcnt(0)
    s_barrier
    ''')
    if cfg.exp&4: stamp()
    a(f'''
    ds_read_b128 {v(B1N,4)}, {v(c+2)} offset:{L_CX}
    ds_read_b128 {v(A2R,4)}, {v(c+2)} offset:{L_CX+2048}
    ds_read_b128 {v(A2I,4)}, {v(c+2)} offset:{L_CX+2048+1024}
    ds_read_b128 {v(TWC,4)}, {v(c+6)} offset:{L_CX+4096}
    ds_read_b128 {v(TWS,4)}, {v(c+6)} offset:{L_CX+4096+1024}
    ds_read2st64_b64 {v(YC,4)}, {v(c+7)} offset0:{(L_CX+4*2048)//512} offset1:{(L_CX+5*2048)//512}
    v_add_u32 {v(c+7)}, 8, {v(c+7)}
    ds_read2st64_b64 {v(YS,4)}, {v(c+7)} offset0:{(L_CX+4*2048)//512} offset1:{(L_CX+5*2048)//512}
    v_and_b32 {v(c+4)}, 4, {v(vN)}
    s_lshl_b32 {s(sT)}, {s(sW)}, 2
    v_lshl_add_u32 {v(vStW)}, {v(t+3)}, 2, {v(vStR)}
    v_lshl_add_u32 {v(vStW)}, {v(c+4)}, 4, {v(vStW)}
    v_add_u32 {v(vStW)}, {s(sT)}, {v(vStW)}
    v_and_b32 {v(c+4)}, 7, {v(vN)}
    v_lshl_add_u32 {v(vStR)}, {v(c+4)}, 5, {v(vStR)}
    v_lshl_add_u32 {v(vUW)}, {v(vQ)}, 11, {v(vUW)}
    v_add_u32 {v(vUW)}, {L_U}, {v(vUW)}
    s_lshr_b32 {s(sT)}, {s(sW)}, 1
    s_lshl_b32 {s(sT)}, {s(sT)}, 11
    s_add_u32 {s(sT+2)}, {s(sT)}, {L_U}
    v_lshl_add_u32 {v(vUR)}, {v(vLane)}, 3, {s(sT+2)}
    ; vLst = w'*2048 + 512q + 64h + 4n
    s_lshr_b32 {s(sT+2)}, {s(sT+1)}, 5
    s_add_u32 {s(sT)}, {s(sT)}, {s(sT+2)}
    v_lshl_add_u32 {v(vLst)}, {v(vQ)}, 9, {s(sT)}
    v_lshl_add_u32 {v(vLst)}, {v(vN)}, 2, {v(vLst)}
    s_lshl_b32 {s(sT+3)}, {s(sW)}, 31             ; h sign
    s_mov_b32 {s(sT+5)}, 0x80008000
    s_mov_b32 {s(sIt)}, 0
    s_waitcnt lgkmcnt(6)
    v_xor_b32 {v(B1C)}, {s(sT+3)}, {v(B1N)}
    v_xor_b32 {v(B1C+1)}, {s(sT+3)}, {v(B1N+1)}
    v_xor_b32 {v(B1S)}, {s(sT+3)}, {v(B1N+2)}
    v_xor_b32 {v(B1S+1)}, {s(sT+3)}, {v(B1N+3)}
    v_xor_b32 {v(B1C+2)}, {v(B1C)}, {v(c+5)}
    v_xor_b32 {v(B1C+3)}, {v(B1C+1)}, {v(c+5)}
    v_xor_b32 {v(B1S+2)}, {v(B1S)}, {v(c+5)}
    v_xor_b32 {v(B1S+3)}, {v(B1S+1)}, {v(c+5)}
    ''')
    for r in range(4): a(f'v_xor_b32 {v(B1N+r)}, {s(sT+5)}, {v(B1S+r)}')
    if cfg.ypos==2: a('s_waitcnt lgkmcnt(0)'); y_setup(c)
    a(f'''
    s_waitcnt vmcnt(7)
    s_cmp_eq_u32 {s(sW)}, 0
    s_cbranch_scc1 L_x0 ;!nd
    s_waitcnt vmcnt(4)
    L_x0:
    ''')
    for rho in (0,1):
        for k in (0,1):
            src=X0+2*rho+k
            a(f'v_lshlrev_b32 {v(X+4*k+rho)}, 16, {v(src)}')
            a(f'v_and_b32 {v(X+4*k+2+rho)}, 0xffff0000, {v(src)}')
    if not cfg.ep0: a(f's_add_u32 {s(sTag)}, {s(sTag)}, 1')

def y_setup(u):
    a(f'''
    v_lshrrev_b32 {v(u+1)}, 4, v0
    v_lshlrev_b32 {v(u+2)}, 4, {v(vN)}
    v_lshrrev_b32 {v(vYIR)}, 2, {v(vN)}
    v_mul_u32_u24 {v(vYIR)}, {YIS}, {v(vYIR)}
    ''')
    a(f'''
    s_lshl_b32 {s(sT+1)}, {s(sW)}, 5              ; 32w
    s_add_u32 {s(sT)}, {s(sT+1)}, {L_YT}
    v_mul_u32_u24 {v(vYW)}, 272, {v(vN)}
    v_lshl_add_u32 {v(vYW)}, {v(vQ)}, 3, {v(vYW)}
    v_add_u32 {v(vYW)}, {s(sT)}, {v(vYW)}
    v_mul_u32_u24 {v(vYR)}, 272, {v(u+1)}
    v_add_u32 {v(vYR)}, {v(vYR)}, {v(u+2)}
    v_add_u32 {v(vYR)}, {L_YT}, {v(vYR)}
    s_add_u32 {s(sT+1)}, {s(sT+1)}, {L_YI}
    v_mul_u32_u24 {v(u+3)}, {4*YIS}, {v(vQ)}
    v_and_b32 {v(u+4)}, 0x18, {v(vL8)}
    v_add3_u32 {v(vYIR)}, {v(vYIR)}, {v(u+3)}, {v(u+4)}
    v_add_u32 {v(vYIR)}, {s(sT+1)}, {v(vYIR)}
    s_cmp_lt_u32 {s(sJ)}, 8
    s_cbranch_scc1 L_aself
    v_mul_u32_u24 {v(vLld)}, {PS}, {v(u+1)}
    v_mul_u32_u24 {v(vYIW)}, {YIS}, {v(u+1)}
    s_lshl_b32 {s(sT)}, {s(sJ)}, 8
    v_add3_u32 {v(vLld)}, {v(vLld)}, {v(u+2)}, {s(sT)}
    v_add_u32 {v(vYIW)}, {v(vYIW)}, {v(u+2)}
    v_mov_b32 {v(vLldM)}, 0
    s_branch L_adone
    L_aself:
    ; s2=(w>>1)*8+(l>>3), u=l&7, which=w&1
    s_lshl_b32 {s(sT)}, {s(sW)}, 2
    s_and_b32 {s(sT)}, {s(sT)}, 24
    v_lshrrev_b32 {v(u+3)}, 3, {v(vLane)}
    v_add_u32 {v(u+3)}, {s(sT)}, {v(u+3)}
    v_and_b32 {v(u+4)}, 0x70, {v(u+2)}
    v_mul_u32_u24 {v(vLldM)}, {PS}, {v(u+3)}
    v_mul_u32_u24 {v(vYIW)}, {YIS}, {v(u+3)}
    s_lshl_b32 {s(sT)}, {s(sJ)}, 7
    s_add_u32 {s(sT+1)}, {s(sT)}, 4
    s_sub_u32 {s(sT)}, {508*4}, {s(sT)}
    v_add3_u32 {v(vLld)}, {v(vLldM)}, {v(u+4)}, {s(sT+1)}
    v_sub_u32 {v(vLldM)}, {v(vLldM)}, {v(u+4)}
    v_add_u32 {v(vLldM)}, {s(sT)}, {v(vLldM)}
    s_and_b32 {s(sT)}, {s(sW)}, 1
    s_lshl_b32 {s(sT)}, {s(sT)}, 7
    v_add3_u32 {v(vYIW)}, {v(vYIW)}, {v(u+4)}, {s(sT)}
    L_adone:
    v_add_u32 {v(vYIW)}, {L_YI}, {v(vYIW)}
    ''')

def w_setup():
    w=BC+8
    a(f'''
    v_mov_b32 {v(w+1)}, 0x3f803f80
    v_dot2_f32_bf16 {v(w)}, {v(WV)}, {v(w+1)}, 0
    v_dot2_f32_bf16 {v(w)}, {v(WV+1)}, {v(w+1)}, {v(w)}
    v_dot2_f32_bf16 {v(w)}, {v(WV+2)}, {v(w+1)}, {v(w)}
    v_dot2_f32_bf16 {v(w)}, {v(WV+3)}, {v(w+1)}, {v(w)}
    v_lshlrev_b32 {v(WV)}, 16, {v(BC+4)}
    v_and_b32 {v(WV+1)}, 0xffff0000, {v(BC+4)}
    v_lshlrev_b32 {v(WV+2)}, 16, {v(BC+5)}
    v_add_f32_dpp {v(w)}, {v(w)}, {v(w)} row_ror:8 {DPP}
    v_and_b32 {v(WV+3)}, 0xffff0000, {v(BC+5)}
    v_mul_f32 {v(WV)}, 0x44000000, {v(WV)}
    v_add_f32_dpp {v(w)}, {v(w)}, {v(w)} row_ror:4 {DPP}
    v_mul_f32 {v(WV+1)}, 0x44000000, {v(WV+1)}
    v_mul_f32 {v(WV+2)}, 0x44000000, {v(WV+2)}
    v_add_f32_dpp {v(w)}, {v(w)}, {v(w)} row_ror:2 {DPP}
    v_mul_f32 {v(WV+3)}, 0x44000000, {v(WV+3)}
    v_add_f32_dpp {v(w)}, {v(w)}, {v(w)} row_ror:1 {DPP}
    v_add_f32_dpp {v(w)}, {v(w)}, {v(w)} row_bcast:15 row_mask:0xa bank_mask:0xf
    v_add_f32_dpp {v(w)}, {v(w)}, {v(w)} row_bcast:31 row_mask:0xc bank_mask:0xf
    v_readlane_b32 {s(sT)}, {v(w)}, 63
    ''')
    for k in range(4): a(f'v_subrev_f32 {v(WV+k)}, {s(sT)}, {v(WV+k)}')

def xin_consts(c):
    a(f'''
    s_and_b32 {s(sT)}, {s(sGg)}, 3               ; 0 => self
    s_lshr_b32 {s(sT+1)}, {s(sW)}, 2
    s_bfe_u32 {s(sT+2)}, {s(sGg)}, 0x10002
    s_mov_b32 {s(sSc)}, {fbits(16.0)}
    s_cmp_eq_u32 {s(sT)}, 0
    s_cselect_b32 {s(sMir)}, {s(sT+1)}, {s(sT+2)}
    s_cselect_b32 {s(sSc)}, {fbits(8.0)}, {s(sSc)}
    s_cselect_b32 {s(sDsc)}, {fbits(1/8)}, {s(sC16)}
    s_cselect_b32 {s(sT+3)}, -4, 0
    s_mov_b32 {s(sSc+1)}, {s(sSc)}
    s_sub_u32 {s(sT+4)}, 256, {s(sGg)}
    s_and_b32 {s(sT+4)}, {s(sT+4)}, 255
    s_cmp_eq_u32 {s(sMir)}, 0
    s_cselect_b32 {s(sT+4)}, {s(sGg)}, {s(sT+4)}       ; source g
    s_cselect_b32 {s(sT+5)}, 16, -16
    s_cselect_b32 {s(sT+6)}, 0, {509*4}
    s_cselect_b32 {s(sT+7)}, 1.0, -1.0
    s_add_u32 {s(sT+3)}, {s(sT+3)}, {s(sT+6)}
    s_mul_i32 {s(sT+6)}, {s(sT+5)}, {s(sW)}
    s_lshl_b32 {s(sT+6)}, {s(sT+6)}, 4
    s_add_u32 {s(sT+3)}, {s(sT+3)}, {s(sT+6)}
    s_and_b32 {s(sT+6)}, {s(sT+4)}, 0x78
    s_lshl_b32 {s(sT+6)}, {s(sT+6)}, 8
    s_add_u32 {s(sT+3)}, {s(sT+3)}, {s(sT+6)}
    s_add_u32 {s(sT+6)}, {s(sT+4)}, 3
    s_and_b32 {s(sT+6)}, {s(sT+6)}, 3
    s_lshl_b32 {s(sT+6)}, {s(sT+6)}, 15
    s_add_u32 {s(sT+3)}, {s(sT+3)}, {s(sT+6)}
    s_and_b32 {s(sT+6)}, {s(sT+4)}, 4
    s_lshl_b32 {s(sT+6)}, {s(sT+6)}, 8
    s_add_u32 {s(sT+3)}, {s(sT+3)}, {s(sT+6)}
    v_mul_i32_i24 {v(vGld)}, {s(sT+5)}, {v(vN)}
    v_mul_u32_u24 {v(c+4)}, {GS}, {v(vQ)}
    v_add3_u32 {v(vGld)}, {v(vGld)}, {v(c+4)}, {s(sT+3)}
    v_lshrrev_b32 {v(c+4)}, 1, {v(vN)}
    v_and_b32 {v(c+4)}, 6, {v(c+4)}
    v_and_or_b32 {v(c+4)}, {v(vN)}, 1, {v(c+4)}
    v_lshl_add_u32 {v(AD)}, {v(c+4)}, 8, {s(sGg)}
    v_cvt_f32_u32 {v(c+4)}, {v(AD)}
    v_cvt_f32_u32 {v(c+5)}, {v(vQ)}
    v_mul_f32 {v(c+4)}, {fbits(1/2048)}, {v(c+4)}
    v_mul_f32 {v(c+4)}, {s(sT+7)}, {v(c+4)}
    v_mul_f32 {v(c+5)}, {v(c+4)}, {v(c+5)}
    v_fma_f32 {v(c+6)}, {v(c+4)}, 4.0, {v(c+5)}
    v_cos_f32 {v(c+7)}, {v(c+5)}
    v_sin_f32 {v(c+8)}, {v(c+5)}
    v_cos_f32 {v(c+9)}, {v(c+6)}
    v_sin_f32 {v(c+10)}, {v(c+6)}
    v_bfe_u32 {v(c+4)}, {v(vN)}, 1, 1
    v_cmp_eq_u32 vcc, {s(sMir)}, {v(c+4)}
    v_cvt_pk_f16_f32 {v(c+7)}, {v(c+7)}, {v(c+8)}
    s_lshr_b32 {s(sT+6)}, {s(sT+4)}, 3
    s_and_b32 {s(sT+6)}, {s(sT+6)}, 16
    s_lshl_b32 {s(sT+6)}, 0x3c00, {s(sT+6)}
    s_mov_b64 exec, 0xffff
    v_mov_b32 {v(c+7)}, {s(sT+6)}
    s_mov_b64 exec, -1
    v_cvt_pk_f16_f32 {v(c+9)}, {v(c+9)}, {v(c+10)}
    v_cndmask_b32 {v(XA)}, 0, {v(c+7)}, vcc
    v_cndmask_b32 {v(XA+1)}, {v(c+7)}, 0, vcc
    v_cndmask_b32 {v(XA+2)}, 0, {v(c+9)}, vcc
    v_cndmask_b32 {v(XA+3)}, {v(c+9)}, 0, vcc
    v_and_b32 {v(c+4)}, 0x1cf, v0
    v_cmp_eq_u32 vcc, 0, {v(c+4)}
    v_mov_b32 {v(c+5)}, {s(sSc)}
    s_sub_u32 {s(sT)}, 2047, {s(sGg)}
    v_lshlrev_b32 {v(vInv)}, 9, {v(vQ)}
    v_cndmask_b32 {v(vSc0)}, {v(c+5)}, 0, vcc
    v_cndmask_b32 {v(vSc0+1)}, {v(c+5)}, 0, vcc
    v_sub_u32 {v(vInv)}, {s(sT)}, {v(vInv)}
    v_add_u32 v0, 0xffffff00, {v(vInv)}
    s_lshl_b32 {s(sSlot)}, {s(sX)}, 12
    s_add_u32 {s(sSlot)}, {s(sSlot)}, {SLOT}
    ''')

def main_loop():
    t=T
    S1,S2,S3=t,t+2,t+4
    a('L_top:')
    stamp()
    a(f'''
    v_pk_add_f32 {v(S1,2)}, {v(X,2)}, {v(X+2,2)}
    v_pk_add_f32 {v(t+6,2)}, {v(X+4,2)}, {v(X+6,2)}
    v_pk_mul_f32 {v(S2,2)}, {v(X,2)}, {v(X,2)}
    v_pk_mul_f32 {v(S3,2)}, {v(X,2)}, {v(WV,2)} op_sel:[0,0] op_sel_hi:[1,0]
    v_pk_add_f32 {v(S1,2)}, {v(S1,2)}, {v(t+6,2)}
    v_pk_fma_f32 {v(S2,2)}, {v(X+2,2)}, {v(X+2,2)}, {v(S2,2)}
    v_pk_fma_f32 {v(S3,2)}, {v(X+2,2)}, {v(WV,2)}, {v(S3,2)} op_sel:[0,1,0] op_sel_hi:[1,1,1]
    v_add_f32_dpp {v(S1)}, {v(S1)}, {v(S1)} row_ror:8 row_mask:0xf bank_mask:0x3
    v_pk_fma_f32 {v(S2,2)}, {v(X+4,2)}, {v(X+4,2)}, {v(S2,2)}
    v_pk_fma_f32 {v(S3,2)}, {v(X+4,2)}, {v(WV+2,2)}, {v(S3,2)} op_sel:[0,0,0] op_sel_hi:[1,0,1]
    v_add_f32_dpp {v(S1)}, {v(S1+1)}, {v(S1+1)} row_ror:8 row_mask:0xf bank_mask:0xc
    v_pk_fma_f32 {v(S2,2)}, {v(X+6,2)}, {v(X+6,2)}, {v(S2,2)}
    v_pk_fma_f32 {v(S3,2)}, {v(X+6,2)}, {v(WV+2,2)}, {v(S3,2)} op_sel:[0,1,0] op_sel_hi:[1,1,1]
    v_add_f32_dpp {v(S1)}, {v(S1)}, {v(S1)} row_half_mirror row_mask:0xf bank_mask:0x5
    v_add_f32_dpp {v(S2)}, {v(S2)}, {v(S2)} row_ror:8 row_mask:0xf bank_mask:0x3
    v_add_f32_dpp {v(S3)}, {v(S3)}, {v(S3)} row_ror:8 row_mask:0xf bank_mask:0x3
    v_add_f32_dpp {v(S2)}, {v(S2+1)}, {v(S2+1)} row_ror:8 row_mask:0xf bank_mask:0xc
    v_add_f32_dpp {v(S3)}, {v(S3+1)}, {v(S3+1)} row_ror:8 row_mask:0xf bank_mask:0xc
    v_add_f32_dpp {v(S1)}, {v(S2)}, {v(S2)} row_half_mirror row_mask:0xf bank_mask:0xa
    v_add_f32_dpp {v(S3)}, {v(S3)}, {v(S3)} row_half_mirror {DPP}
    v_add_f32_dpp {v(S1)}, {v(S1)}, {v(S1)} quad_perm:[1,0,3,2] {DPP}
    v_add_f32_dpp {v(S3)}, {v(S3)}, {v(S3)} quad_perm:[1,0,3,2] {DPP}
    v_add_f32_dpp {v(S1)}, {v(S1)}, {v(S1)} quad_perm:[2,3,0,1] {DPP}
    v_add_f32_dpp {v(S3)}, {v(S3)}, {v(S3)} quad_perm:[2,3,0,1] {DPP}
    s_mov_b64 exec, {s(sQmask,2)}
    ds_write2_b32 {v(vStW)}, {v(S1)}, {v(S3)} offset0:0 offset1:32
    s_mov_b64 exec, -1
    ;@F
    ''')
    if cfg.g2pos==4: a(f's_cmp_lg_u32 {s(sIt)}, 1\ns_cbranch_scc1 L_nw\ns_waitcnt vmcnt(0)\nL_nw:')
    a(f'''
    s_waitcnt lgkmcnt(0)
    s_barrier
    ;@F
    ds_read_b128 {v(t,4)}, {v(vStR)}
    ds_read_b128 {v(t+4,4)}, {v(vStR)} offset:16
    s_waitcnt lgkmcnt(0)
    v_pk_add_f32 {v(t,2)}, {v(t,2)}, {v(t+2,2)}
    v_pk_add_f32 {v(t+4,2)}, {v(t+4,2)}, {v(t+6,2)}
    v_pk_add_f32 {v(t,2)}, {v(t,2)}, {v(t+4,2)}
    v_add_f32 {v(t)}, {v(t)}, {v(t+1)}
    v_mul_f32 {v(t+7)}, {s(sK512)}, {v(t)}
    ''')
    VAR,RS,CC,NM=t+8,t+10,t+12,t+14
    K=t+16; Z=t+18; K1=RS2; NR=BC
    a(f'''
    v_mov_b32_dpp {v(MM)}, {v(t+7)} row_newbcast:0 {DPP}
    v_mov_b32_dpp {v(MM+1)}, {v(t+7)} row_newbcast:1 {DPP}
    v_mov_b32_dpp {v(S2)}, {v(t+7)} row_newbcast:2 {DPP}
    v_mov_b32_dpp {v(S2+1)}, {v(t+7)} row_newbcast:3 {DPP}
    v_pk_fma_f32 {v(VAR,2)}, {v(MM,2)}, {v(MM,2)}, {v(S2,2)} neg_lo:[1,0,0] neg_hi:[1,0,0]
    v_pk_add_f32 {v(S1,2)}, {v(VAR,2)}, {s(sEps,2)}
    s_cmp_eq_u32 {s(sIt)}, 0
    v_rsq_f32_e64 {v(RS)}, |{v(S1)}|
    v_rsq_f32_e64 {v(RS+1)}, |{v(S1+1)}|
    s_cbranch_scc1 L_z0 ;!nd
    v_mul_f32_dpp {v(S3)}, {v(t+7)}, {v(RS)} row_newbcast:4 {DPP}
    v_mul_f32_dpp {v(S3+1)}, {v(t+7)}, {v(RS+1)} row_newbcast:5 {DPP}
    v_ashrrev_i32 {v(K)}, 31, {v(S3)}
    v_ashrrev_i32 {v(K+1)}, 31, {v(S3+1)}
    v_bitop3_b32 {v(K)}, {v(S3)}, {v(K)}, {s(sTop)} bitop3:0x1e
    v_bitop3_b32 {v(K+1)}, {v(S3+1)}, {v(K+1)}, {s(sTop)} bitop3:0x1e
    v_bfi_b32 {v(K)}, {s(sM7FF)}, {v(vInv)}, {v(K)}
    v_bfi_b32 {v(K+1)}, {s(sM7FF)}, v0, {v(K+1)}
    v_max_u32 {v(K+1)}, {v(K)}, {v(K+1)}
    v_pk_add_f32 {v(K1,2)}, {v(RS,2)}, 1.0 op_sel_hi:[1,0]
    v_mov_b32 {v(K)}, {s(sTag)}
    v_max_u32_dpp {v(K+1)}, {v(K+1)}, {v(K+1)} row_bcast:15 row_mask:0xa bank_mask:0xf
    v_pk_mul_f32 {v(VAR,2)}, {v(VAR,2)}, {v(K1,2)}
    s_cmp_lg_u32 {s(sW)}, 0
    v_max_u32_dpp {v(K+1)}, {v(K+1)}, {v(K+1)} row_bcast:31 row_mask:0xc bank_mask:0xf
    s_cbranch_scc1 L_nost ;!nd
    s_mov_b32 exec_lo, 0
    s_mov_b32 exec_hi, {s(sTop)}
    s_cmp_eq_u32 {s(sFast)}, 0
    s_cbranch_scc1 L_tabst_slow ;!nd
    buffer_store_dwordx2 {v(K,2)}, off, {WS}, {s(sTabSt)}
    L_tabst_back:
    s_mov_b64 exec, -1
    L_nost:
    v_readlane_b32 {s(sKey)}, {v(K+1)}, 63
    v_pk_mul_f32 {v(NR,2)}, {v(MM,2)}, {v(RS,2)}
    v_pk_fma_f32 {v(VAR,2)}, {v(VAR,2)}, {v(K1,2)}, {s(sEps,2)}
    s_bitcmp0_b32 {s(sKey)}, 8
    s_cselect_b64 vcc, -1, 0
    v_rsq_f32_e64 {v(VAR)}, |{v(VAR)}|
    v_rsq_f32_e64 {v(VAR+1)}, |{v(VAR+1)}|
    s_andn2_b32 {s(sT+1)}, 0x600, {s(sKey)}
    s_lshr_b32 {s(sT+1)}, {s(sT+1)}, 5
    v_cndmask_b32 {v(S1)}, {v(RS)}, {v(RS+1)}, vcc
    v_cndmask_b32 {v(S1+1)}, {v(NR)}, {v(NR+1)}, vcc
    v_cndmask_b32 {v(Z)}, {v(X)}, {v(X+1)}, vcc
    v_cndmask_b32 {v(Z+1)}, {v(X+2)}, {v(X+3)}, vcc
    v_cndmask_b32 {v(Z+2)}, {v(X+4)}, {v(X+5)}, vcc
    v_cndmask_b32 {v(Z+3)}, {v(X+6)}, {v(X+7)}, vcc
    v_pk_fma_f32 {v(Z,2)}, {v(Z,2)}, {v(S1,2)}, {v(S1,2)} op_sel:[0,0,1] op_sel_hi:[1,0,1] neg_lo:[0,0,1] neg_hi:[0,0,1]
    v_pk_fma_f32 {v(Z+2,2)}, {v(Z+2,2)}, {v(S1,2)}, {v(S1,2)} op_sel:[0,0,1] op_sel_hi:[1,0,1] neg_lo:[0,0,1] neg_hi:[0,0,1]
    v_and_b32 {v(K)}, 0x3ff, {v(vXoff)}
    v_mov_b32 {v(K+1)}, {L_FLAG}
    v_cvt_pk_bf16_f32 {v(S2)}, {v(Z)}, {v(Z+1)}
    v_cvt_pk_bf16_f32 {v(S2+1)}, {v(Z+2)}, {v(Z+3)}
    s_bfm_b64 exec, 16, {s(sT+1)}
    ds_write_b64 {v(K)}, {v(S2,2)} offset:{L_ROW}
    ds_write_b32 {v(K+1)}, {v(S1)} offset:12
    s_mov_b64 exec, -1
    s_cmp_eq_u32 {s(sIt)}, 2
    s_cbranch_scc1 L_tab2e ;!nd
    v_pk_mul_f32 {v(RS,2)}, {v(VAR,2)}, {v(K1,2)}
    L_z0:
    v_pk_mul_f32 {v(CC,2)}, {v(RS,2)}, {s(sC16,2)}
    ;@F
    ''')
    ZP=t; D0=t+4; D1=t+8
    xupd='\n'.join(f'v_pk_fma_f32 {v(X+2*c_,2)}, {v(X+2*c_,2)}, {v(K1,2)}, {v(NR,2)} neg_lo:[0,0,1] neg_hi:[0,0,1]' for c_ in range(4))
    a(f'v_pk_mul_f32 {v(NM,2)}, {v(MM,2)}, {v(CC,2)}')
    for c_ in range(4):
        a(f'v_pk_fma_f32 {v(Z+2*c_,2)}, {v(X+2*c_,2)}, {v(CC,2)}, {v(NM,2)} neg_lo:[0,0,1] neg_hi:[0,0,1]')
    for c_ in range(4): a(f'v_cvt_pk_f16_f32 {v(ZP+c_)}, {v(Z+2*c_)}, {v(Z+2*c_+1)}')
    a(f'''
    v_mfma_f32_16x16x16_f16 {v(D0,4)}, {v(A8,2)}, {v(ZP,2)}, 0
    v_mfma_f32_16x16x16_f16 {v(D1,4)}, {v(A8,2)}, {v(ZP+2,2)}, 0
    v_cvt_pk_f16_f32 {v(ZP)}, {v(D0)}, {v(D0+1)}
    v_cvt_pk_f16_f32 {v(ZP+1)}, {v(D1)}, {v(D1+1)}
    v_cvt_pk_f16_f32 {v(ZP+2)}, {v(D0+2)}, {v(D0+3)}
    v_cvt_pk_f16_f32 {v(ZP+3)}, {v(D1+2)}, {v(D1+3)}
    ds_write_b64 {v(vUW)}, {v(ZP,2)}
    ds_write_b64 {v(vUW)}, {v(ZP+2,2)} offset:1024
    ;@F
    ''')
    if cfg.ub:
        a(f'''
        s_cmp_ge_u32 {s(sW)}, {s(sIt)}
        s_cbranch_scc1 L_ub ;!nd
        L_ut:
        buffer_load_dwordx2 {v(t+24,2)}, {v(vL8)}, {WS}, {s(sTabLd)} offen sc1
        s_waitcnt vmcnt(0)
        v_cmp_ne_u32 vcc, {s(sTag)}, {v(t+24)}
        ''')
        poll_branch('L_ut', cfg.slp_t)
        a(f'''
        v_cmp_lt_u32 vcc, {s(sKey)}, {v(t+25)}
        v_mov_b32 {v(t+24)}, {s(sKey)}
        v_lshlrev_b32 {v(vTG)}, 4, {v(vLane)}
        s_waitcnt lgkmcnt(0)
        s_barrier
        s_cbranch_vccnz L_ub2 ;!nd
        ds_read_b128 {v(LNP,4)}, {v(vTG)} offset:{L_ROW}
        ds_read_b32 {v(t+25)}, {v(K+1)} offset:12
        s_waitcnt lgkmcnt(0)
        buffer_store_dwordx4 {v(LNP,4)}, {v(vTG)}, {WS}, {s(sSlot)} offen sc1
        s_mov_b64 exec, 1
        buffer_store_dwordx2 {v(t+24,2)}, off, {WS}, {s(sSlot)} offset:3072 sc1
        s_mov_b64 exec, -1
        s_branch L_ub2 ;!nd
        L_ub:
        ''')
    a(f'''
    s_waitcnt lgkmcnt(0)
    s_barrier
    L_ub2:
    ;@F
    ds_read_b64_tr_b16 {v(t,2)}, {v(vUR)}
    ds_read_b64_tr_b16 {v(t+2,2)}, {v(vUR)} offset:512
    ds_read_b64_tr_b16 {v(t+4,2)}, {v(vUR)} offset:1024
    ds_read_b64_tr_b16 {v(t+6,2)}, {v(vUR)} offset:1536
    ''')
    if not cfg.ub: a(f'''
    s_cmp_ge_u32 {s(sW)}, {s(sIt)}
    s_cbranch_scc1 L_tg1 ;!nd
    buffer_load_dwordx2 {v(t+24,2)}, {v(vL8)}, {WS}, {s(sTabLd)} offen sc1
    {f'ds_read_b128 {v(LNP,4)}, {v(vTG)} offset:{L_ROW}' if cfg.pub0 else ''}
    ''')
    a(f'''
    L_tg1:
    L_tg2:
    ;@F
    ''')
    P=t
    fft_core(t, t+4, t+8, t+16, t+8, P)
    def lstores(fl, ph=None):
        for r in range(4):
            if ph is not None: a(f'v_cvt_pk_f16_f32 {v(P+r)}, {v(t+8+r)}, {v(t+12+r)}')
            if ph==0: a(f'v_and_b32 {v(P+r)}, -2, {v(P+r)}')
            if ph==1: a(f'v_or_b32 {v(P+r)}, 1, {v(P+r)}')
            a(f'buffer_store_dword {v(P+r)}, {v(vLst)}, {WS}, {s(sLst)} offen offset:{128*r} {fl}')
    TB=t+24
    LD=t+8
    xfs=f's_cmp_eq_u32 {s(sT+12)}, 0\ns_cbranch_scc1 L_xf ;!nd\nL_noxf:'
    xfo=f'''L_xf:
    s_lshl_b32 {s(sT+12)}, {s(sX)}, 7
    s_add_u32 {s(sT+12)}, {s(sT+12)}, {TABG}
    v_lshrrev_b32 {v(t+16)}, 1, {v(vL8)}
    v_mov_b32 {v(t+17)}, {s(sTag)}
    s_mov_b32 exec_hi, 0
    buffer_store_dword {v(t+17)}, {v(t+16)}, {WS}, {s(sT+12)} offen sc1
    s_mov_b64 exec, -1
    s_branch L_noxf'''
    W_=t+4
    a(f'''
    s_cmp_lg_u32 {s(sIt)}, 0
    s_cbranch_scc1 L_tab1e ;!nd
    ''')
    lstores('nt' if cfg.lnt&1 else '',0)
    stamp()
    a(f'''
    s_branch {'L_flag0' if cfg.pub0 else 'L_pub'}
    L_tab1e:
    s_nop 5
    ''')
    if cfg.ub:
        lstores('nt' if cfg.lnt&2 else '',1); stamp()
        a(xupd+f'\ns_add_u32 {s(sSlot)}, {s(sSlot)}, {SLOTR}\n'+(f's_sleep {cfg.dl}\n' if cfg.dl else '')+'s_branch L_tabdone')
    a(f'''
    L_tab2e:
    s_cmp_eq_u32 {s(sW)}, 0
    {'s_waitcnt lgkmcnt(0)' if cfg.pub0 else ''}
    {'s_barrier' if cfg.pub0 else ''}
    s_cbranch_scc0 L_tabbar
    {f'ds_read_b128 {v(LNP,4)}, {v(vTG)} offset:{L_ROW}' if cfg.pub0 else ''}
    s_branch L_tab
    L_tab:
    buffer_load_dwordx2 {v(TB,2)}, {v(vL8)}, {WS}, {s(sTabLd)} offen sc1
    L_tabw1:
    s_waitcnt vmcnt(0)
    v_cmp_ne_u32 vcc, {s(sTag)}, {v(TB)}
    ''')
    poll_branch('L_tab', cfg.slp_t)
    a(f'''
    L_tabok:
    v_cmp_lt_u32 {s(sT,2)}, {s(sKey)}, {v(TB+1)}
    v_mov_b32 {v(TB)}, {L_FLAG}
    ''')
    if cfg.pub0: a(f'''
    s_cmp_lg_u32 {s(sT)}, 0
    s_cbranch_scc1 L_np0 ;!nd
    v_mov_b32 {v(TB+1)}, {s(sKey)}
    s_waitcnt lgkmcnt(0)
    buffer_store_dwordx4 {v(LNP,4)}, {v(vTG)}, {WS}, {s(sSlot)} offen sc1
    s_mov_b64 exec, 1
    buffer_store_dword {v(TB+1)}, off, {WS}, {s(sSlot)} offset:3072 sc1
    s_mov_b64 exec, -1
    L_np0:
    ''')
    a(f'''
    v_mov_b32 {v(TB+1)}, {s(sT)}
    ds_write_b32 {v(TB)}, {v(TB+1)}
    s_waitcnt lgkmcnt(0)
    s_barrier
    s_branch L_tabgot
    L_tabbar:
    v_mov_b32 {v(TB)}, {L_FLAG}
    {'s_waitcnt vmcnt(0)' if cfg.g2pos==6 else ''}
    s_barrier
    ds_read_b64 {v(TB,2)}, {v(TB)}
    s_waitcnt lgkmcnt(0)
    v_readfirstlane_b32 {s(sT)}, {v(TB)}
    L_tabgot:
    s_mov_b32 {s(sT+9)}, 64
    s_cmp_lg_u32 {s(sT)}, 0
    s_cbranch_scc1 L_fin ;!nd
    s_andn2_b32 {s(sT)}, {s(sM7FF)}, {s(sKey)}      ; idx
    s_lshr_b32 {s(sT+9)}, {s(sT)}, 8                ; s1
    s_branch L_fin
    L_flag0:
    ;@F
    s_mov_b32 {s(sFast)}, 1
    s_mov_b32 {s(sPh)}, 0
    s_mov_b32 {s(sNx)}, 0
    s_mov_b32 {s(sKey)}, {s(sXcc)}
    s_mov_b32 {s(sSlot)}, {WSSZ}
    s_xor_b32 {s(sT+12)}, {s(sJ)}, 9
    s_or_b32 {s(sT+12)}, {s(sT+12)}, {s(sW)}
    s_mov_b32 {s(sTry)}, 64
    s_lshl_b32 {s(sT)}, {s(sJ)}, 3
    s_add_u32 {s(sTabSt)}, {s(sTabLd)}, {s(sT)}
    {f'v_mov_b32 {v(t+22)}, {s(sTag)}' if not cfg.ep0 else ''}
    v_mov_b32 {v(t+23)}, {s(sKey)}
    ''')
    if cfg.ypos==1: y_setup(t+4)
    a(f'''
    s_waitcnt vmcnt(0)
    {f'v_add_u32 {v(t+22)}, 1, {v(BC+12)}' if cfg.ep0 else ''}
    ;@F
    s_cmp_eq_u32 {s(sW)}, 0
    s_barrier
    s_cbranch_scc0 L_flag1
    s_mov_b64 exec, 1
    buffer_store_dwordx2 {v(t+22,2)}, off, {WS}, {s(sTabSt)}
    s_mov_b64 exec, -1
    {f'v_mov_b32 {v(t+21)}, {L_FLAG}' if cfg.ep0 else ''}
    {f'ds_write_b32 {v(t+21)}, {v(t+22)} offset:4' if cfg.ep0 else ''}
    {f'v_readfirstlane_b32 {s(sTag)}, {v(t+22)}' if cfg.ep0 else ''}
    L_flag1:
    v_lshlrev_b32 {v(vTG)}, 4, {v(vLane)}
    ''')
    if cfg.ypos==0: y_setup(t+4)
    if cfg.xpos==0: xin_consts(t+4)
    if cfg.wpos==0: w_setup()
    a(f'''
    v_mov_b32 {v(t+21)}, {L_FLAG}
    s_cmp_lg_u32 {s(sW)}, 0
    s_cbranch_scc1 L_t0b
    L_t0:
    buffer_load_dwordx2 {v(TB,2)}, {v(vL8)}, {WS}, {s(sTabLd)} offen sc1
    s_waitcnt vmcnt(0)
    v_cmp_ne_u32 vcc, {s(sTag)}, {v(TB)}
    ''')
    poll_branch('L_t0', cfg.slp_t, giveup='L_tab2', skip=True)
    a(f'''
    L_t0ok:
    v_cmp_ne_u32 vcc, {s(sKey)}, {v(TB+1)}
    v_mov_b32 {v(TB+1)}, vcc_lo
    ds_write_b32 {v(t+21)}, {v(TB+1)}
    s_waitcnt lgkmcnt(0)
    L_t0b:
    s_cmp_lt_u32 {s(sJ)}, 8
    s_barrier
    buffer_load_dwordx4 {v(LD,4)}, {v(vLld)}, {WS}, {s(sLld)} offen sc1
    s_cbranch_scc0 L_t0c ;!nd
    buffer_load_dwordx4 {v(LD+4,4)}, {v(vLldM)}, {WS}, {s(sLld)} offen sc1
    L_t0c:
    ds_read_b64 {v(TB,2)}, {v(t+21)}
    s_waitcnt lgkmcnt(0)
    v_readfirstlane_b32 {s(sT)}, {v(TB)}
    v_readfirstlane_b32 {s(sTag)}, {v(TB+1)}
    s_cmp_eq_u32 {s(sT)}, 0
    s_cselect_b32 {s(sFast)}, 1, 0
    s_cbranch_scc0 L_slow
    s_cmp_lt_u32 {s(sJ)}, 8
    s_cbranch_scc0 L_yw
    s_branch L_yselfw
    L_tabdone:
    s_cmp_eq_u32 {s(sFast)}, 0
    s_cbranch_scc1 L_slow
    L_slowback:
    ;@F
    {xfs if cfg.xe else ''}
    s_cmp_lt_u32 {s(sJ)}, 8
    s_cbranch_scc0 L_y
    s_branch L_yself
    L_y:
    buffer_load_dwordx4 {v(LD,4)}, {v(vLld)}, {WS}, {s(sLld)} offen sc1
    L_yw:
    s_waitcnt vmcnt(0)
    ds_write_b128 {v(vYIW)}, {v(LD,4)}
    ''')
    phchk(range(LD,LD+4), t+16)
    poll_branch('L_y', cfg.slp_l, mask=True)
    a('L_yjoin:')
    stamp()
    a(f'''
    {xfs if not cfg.xe else ''}
    ''')
    A0,A1=t,t+4; P0,Q0,P1,Q1=t+8,t+12,t+16,t+20
    a(f'''
    s_waitcnt lgkmcnt(0)
    s_barrier
    ;@F
    ds_read_b64_tr_b16 {v(A0,2)}, {v(vYIR)}
    ds_read_b64_tr_b16 {v(A0+2,2)}, {v(vYIR)} offset:{16*YIS}
    ''')
    if cfg.g2pos==6: a(f'''
    s_mul_i32 {s(sT)}, {s(sT+12)}, {s(sIt)}
    s_cmp_lt_u32 {s(sT)}, {TABG}
    s_cbranch_scc1 L_nox2 ;!nd
    v_lshrrev_b32 {v(t+24)}, 1, {v(vL8)}
    v_mov_b32 {v(t+25)}, {s(sTag)}
    s_mov_b32 exec_hi, 0
    buffer_store_dword {v(t+25)}, {v(t+24)}, {WS}, {s(sT)} offen offset:1024 sc1
    s_mov_b64 exec, -1
    L_nox2:
    ''')
    a(f'''
    s_add_u32 {s(sTabLd)}, {s(sTabLd)}, {ARGR}
    s_add_u32 {s(sTabSt)}, {s(sTabSt)}, {ARGR}
    s_cmp_eq_u32 {s(sX)}, 0
    s_cbranch_scc1 L_y0 ;!nd
    s_waitcnt lgkmcnt(0)
    v_mfma_f32_16x16x32_f16 {v(P0,4)}, {v(A0,4)}, {v(YC,4)}, 0
    v_mfma_f32_16x16x32_f16 {v(Q0,4)}, {v(A0,4)}, {v(YS,4)}, 0
    v_pk_add_f32 {v(P0,2)}, {v(P0,2)}, {v(Q0,2)} op_sel:[0,1] op_sel_hi:[1,0] neg_hi:[0,1]
    v_pk_add_f32 {v(P0+2,2)}, {v(P0+2,2)}, {v(Q0+2,2)} op_sel:[0,1] op_sel_hi:[1,0] neg_hi:[0,1]
    L_y0b:
    v_cvt_pk_f16_f32 {v(t)}, {v(P0)}, {v(P0+1)}
    v_cvt_pk_f16_f32 {v(t+1)}, {v(P0+2)}, {v(P0+3)}
    ds_write_b64 {v(vYW)}, {v(t,2)}
    ;@F
    s_waitcnt lgkmcnt(0)
    s_barrier
    ;@F
    ds_read_b128 {v(t+4,4)}, {v(vYR)}
    s_cmp_lg_u32 {s(sIt)}, 0
    s_cbranch_scc1 L_hdr
    ''')
    xfl=f'''v_and_b32 {v(t+24)}, 7, {v(vLane)}
    v_lshlrev_b32 {v(t+24)}, 7, {v(t+24)}
    s_mov_b32 {s(sT+10)}, {TABG}
    v_mov_b32 {v(t+20)}, {s(sTag)}
    {f's_cmp_lg_u32 {s(sW)}, 0' if cfg.xw else ''}
    {'s_cbranch_scc1 L_nxl' if cfg.xw else ''}
    s_mov_b64 exec, 0xff
    buffer_load_dword {v(t+20)}, {v(t+24)}, {WS}, {s(sT+10)} offen sc1
    s_mov_b64 exec, -1
    L_nxl:'''
    if cfg.gw in (1,2): a(xfl)
    a(f'''
    s_waitcnt lgkmcnt(0)
    buffer_store_dwordx4 {v(t+4,4)}, {v(vGst)}, {WS}, {s(sG0)} offen sc1
    ''')
    stamp()
    a(f'''
    {xfl if cfg.gw==3 else ''}
    {g2late() if cfg.g2pos==3 else ''}
    {f's_sleep {cfg.dx}' if cfg.dx else ''}
    {xfl if not cfg.gw else ''}
    ''')
    if cfg.xpos==1: xin_consts(t+8)
    if cfg.wpos==1: w_setup()
    if cfg.g2pos==6: a('\n'.join(f'v_mov_b32 {v(BC+8+k)}, -1' for k in range(4))+f'\ns_mov_b32 {s(sT+14)}, {GBASE+GR}')
    if cfg.gw: a(f's_waitcnt vmcnt({[0,2,1,1][cfg.gw]})\ns_branch L_tg0c')
    a('L_tg0w:\ns_waitcnt vmcnt(0)\nL_tg0c:\n;@F')
    a(f'v_cmp_ne_u32 vcc, {s(sTag)}, {v(t+20)}')
    a(f'''
    s_cbranch_vccnz L_tg0_r ;!nd
    ''')
    if cfg.g2pos==4: a(f'''
    buffer_load_dwordx4 {v(t,4)}, {v(vGld)}, {WS}, {s(sG0)} offen sc1
    buffer_load_dwordx4 {v(t+4,4)}, {v(vGld)}, {WS}, {s(sG4)} offen sc1
    {g2late()}
    s_cmp_lg_u32 {s(sMir)}, 0
    s_waitcnt vmcnt(1)
    s_branch L_gw2
    ''')
    else: a(('s_barrier\n' if cfg.xw else '')+(f's_sleep {cfg.dg}\n' if cfg.dg else '')+'s_branch L_g')
    a(f'''
    L_g:
    ''')
    C0,C1=t,t+4
    a(f'''
    buffer_load_dwordx4 {v(C0,4)}, {v(vGld)}, {WS}, {s(sG0)} offen sc1
    buffer_load_dwordx4 {v(C1,4)}, {v(vGld)}, {WS}, {s(sG4)} offen sc1
    L_gw:
    s_cmp_lg_u32 {s(sMir)}, 0
    s_cbranch_scc1 L_xmir0 ;!nd
    s_waitcnt vmcnt(0)
    L_xdir:
    ''')
    E0,E1=t+8,t+12
    a(f'''
    v_mfma_f32_16x16x16_f16 {v(E0,4)}, {v(XA,2)}, {v(C0,2)}, 0
    v_mfma_f32_16x16x16_f16 {v(E1,4)}, {v(XA,2)}, {v(C0+2,2)}, 0
    v_mfma_f32_16x16x16_f16 {v(E0,4)}, {v(XA+2,2)}, {v(C1,2)}, {v(E0,4)}
    v_mfma_f32_16x16x16_f16 {v(E1,4)}, {v(XA+2,2)}, {v(C1+2,2)}, {v(E1,4)}
    s_branch L_xjoin ;!nd
    L_xmir0:
    s_waitcnt vmcnt(0)
    L_xmir:
    ''')
    a.hist=[]
    a(f'''
    v_mfma_f32_16x16x16_f16 {v(E0,4)}, {v(XA,2)}, {v(C0+2,2)}, 0
    v_mfma_f32_16x16x16_f16 {v(E1,4)}, {v(XA,2)}, {v(C0,2)}, 0
    v_mfma_f32_16x16x16_f16 {v(E0,4)}, {v(XA+2,2)}, {v(C1+2,2)}, {v(E0,4)}
    v_mfma_f32_16x16x16_f16 {v(E1,4)}, {v(XA+2,2)}, {v(C1,2)}, {v(E1,4)}
    L_xjoin:
    ''')
    if cfg.gre: phchk(range(t,t+8), t+16)
    else: maxchk(range(t,t+8), t+16)
    poll_branch('L_g', cfg.slp_g, mask=True)
    stamp()
    a(f'''
    ''')
    if cfg.g2pos==6: a(f'''
    s_cmp_lg_u32 {s(sIt)}, 0
    s_cbranch_scc1 L_ng6 ;!nd
    buffer_store_dwordx4 {v(BC+8,4)}, {v(vGst)}, {WS}, {s(sT+14)} offen sc1
    L_ng6:
    ''')
    a(f'''
    s_mov_b32 {s(sIt)}, 1
    s_mov_b32 {s(sPh)}, -1
    {f's_add_u32 {s(sG0)}, {s(sG0)}, {GR}' if not cfg.gre else ''}
    {f's_add_u32 {s(sG4)}, {s(sG4)}, {GR}' if not cfg.gre else ''}
    L_apply:
    s_cmp_eq_u32 {s(sNx)}, 0
    v_pk_fma_f32 {v(X,2)}, {v(E0,2)}, {v(vSc0,2)}, {v(X,2)}
    v_pk_fma_f32 {v(X+2,2)}, {v(E0+2,2)}, {s(sSc,2)}, {v(X+2,2)}
    v_pk_fma_f32 {v(X+4,2)}, {v(E1,2)}, {s(sSc,2)}, {v(X+4,2)}
    v_pk_fma_f32 {v(X+6,2)}, {v(E1+2,2)}, {s(sSc,2)}, {v(X+6,2)}
    s_cbranch_scc1 L_top ;!nd
    s_branch L_corr
    ''')
    a(xfo)
    a(f'''
    L_y0:
    s_waitcnt lgkmcnt(0)
    v_mfma_f32_16x16x32_f16 {v(P0,4)}, {v(A0,4)}, {v(YC,4)}, 0
    v_xor_b32 {v(A1)}, {s(sTop)}, {v(A0)}
    v_xor_b32 {v(A1+1)}, {s(sTop)}, {v(A0+1)}
    v_mfma_f32_16x16x32_f16 {v(Q0,4)}, {v(A0,4)}, {v(YS,4)}, 0
    v_xor_b32 {v(A1+2)}, {s(sTop)}, {v(A0+2)}
    v_xor_b32 {v(A1+3)}, {s(sTop)}, {v(A0+3)}
    v_mfma_f32_16x16x32_f16 {v(P1,4)}, {v(A1,4)}, {v(YC,4)}, 0
    v_mfma_f32_16x16x32_f16 {v(Q1,4)}, {v(A1,4)}, {v(YS,4)}, 0
    v_add_f32 {v(P0)}, {v(P0)}, {v(Q0+1)}
    v_add_f32 {v(P0+2)}, {v(P0+2)}, {v(Q0+3)}
    v_add_f32 {v(P0+1)}, {v(P1)}, {v(Q1+1)}
    v_add_f32 {v(P0+3)}, {v(P1+2)}, {v(Q1+3)}
    s_branch L_y0b
    ''')
    a(f'''
    L_yself:
    buffer_load_dwordx4 {v(LD,4)}, {v(vLld)}, {WS}, {s(sLld)} offen sc1
    buffer_load_dwordx4 {v(LD+4,4)}, {v(vLldM)}, {WS}, {s(sLld)} offen sc1
    L_yselfw:
    s_bitcmp1_b32 {s(sW)}, 0
    s_cbranch_scc1 L_yself4
    s_waitcnt vmcnt(0)
    ''')
    for k in range(4): a(f'v_pk_add_f16 {v(t+4+k)}, {v(LD+k)}, {v(LD+7-k)} neg_hi:[0,1]')
    a(f'ds_write_b128 {v(vYIW)}, {v(t+4,4)}\ns_branch L_yselfc\nL_yself4:\ns_waitcnt vmcnt(0)')
    for k in range(4): a(f'v_pk_add_f16 {v(t+4+k)}, {v(LD+k)}, {v(LD+7-k)} op_sel:[1,1] op_sel_hi:[0,0] neg_hi:[1,0]')
    a(f'ds_write_b128 {v(vYIW)}, {v(t+4,4)}\nL_yselfc:')
    phchk(range(LD,LD+8), t+16)
    poll_branch('L_yself', cfg.slp_l, mask=True)
    a('s_branch L_yjoin')
    H=LNP
    sIdx=sT+11
    KA=BC+6; EK=BC+8; vYP=BC+9; SEL=BC+10; vDW,vDR=BC+12,BC+13
    YR=t+8; YL=t+12; YD=t+20
    gl=f'buffer_load_dwordx4 {v(C0,4)}, {v(vGld)}, {WS}, {s(sG0)} offen sc1\nbuffer_load_dwordx4 {v(C1,4)}, {v(vGld)}, {WS}, {s(sG4)} offen sc1'
    def hdrpoll(lbl, slp, issued=False, after=''):
        if not issued: a(f"""
        v_and_b32 {v(BC)}, 7, {v(vLane)}
        v_lshlrev_b32 {v(BC)}, 12, {v(BC)}
        """)
        a(f"""
        s_mov_b64 exec, 0xff
        {f's_waitcnt vmcnt({0 if cfg.gre else 1})' if issued else ''}
        {f's_branch {lbl}_c' if issued else ''}
        {lbl}:
        buffer_load_dwordx4 {v(H,4)}, {v(BC)}, {WS}, {s(sT+10)} offen offset:3200 sc1
        s_waitcnt vmcnt(0)
        {lbl}_c:
        """)
        maxchk(range(H,H+4), t+17)
        poll_branch(lbl, slp, skip=True)
        a('s_mov_b64 exec, -1')
        if after: a(after); stamp()
        a(f"""
        v_max_u32_dpp {v(H+3)}, {v(H)}, {v(H)} row_half_mirror {DPP}
        v_max_u32_dpp {v(H+3)}, {v(H+3)}, {v(H+3)} quad_perm:[1,0,3,2] {DPP}
        v_max_u32_dpp {v(H+3)}, {v(H+3)}, {v(H+3)} quad_perm:[2,3,0,1] {DPP}
        v_readfirstlane_b32 {s(sIdx)}, {v(H+3)}
        """)
    def owner():
        a(f"""
        s_sub_u32 {s(sT)}, 2047, {s(sIdx)}
        s_add_u32 {s(sT+1)}, {s(sT)}, 256
        v_cmp_eq_u32 vcc, {s(sT)}, {v(vInv)}
        v_cmp_eq_u32 {s(sT+2,2)}, {s(sT+1)}, {v(vInv)}
        v_cndmask_b32 {v(BC)}, 0, 1.0, vcc
        v_cndmask_b32 {v(BC+1)}, 0, 1.0, {s(sT+2,2)}
        """)
    gst=f'buffer_store_dwordx4 {v(t+4,4)}, {v(vGst)}, {WS}, {s(sG0)} offen sc1'
    a(f"""
    L_hdr:
    s_waitcnt lgkmcnt(0)
    {gst if not cfg.hs else ''}
    """)
    stamp()
    a(f"""
    v_and_b32 {v(vYP)}, 0x3ff, {v(vXoff)}
    v_mov_b32 {v(t+24)}, {v(vYP)}
    v_lshlrev_b32 {v(t+17)}, 4, {v(vLane)}
    v_mov_b32 {v(t+18)}, 0x3f80
    v_and_b32 {v(t+17)}, 16, {v(t+17)}
    v_lshlrev_b32 {v(t+18)}, {v(t+17)}, {v(t+18)}
    v_and_b32 {v(t+17)}, 2, {v(vLane)}
    v_cmp_eq_u32 vcc, 0, {v(t+17)}
    v_lshl_add_u32 {v(vYP)}, {v(vQ)}, 10, {v(vYP)}
    s_lshl_b32 {s(sT+3)}, {s(sW)}, 8
    v_cndmask_b32 {v(SEL)}, 0, {v(t+18)}, vcc
    v_cndmask_b32 {v(SEL+1)}, {v(t+18)}, 0, vcc
    s_add_u32 {s(sT+3)}, {s(sT+3)}, {L_DH}
    v_lshl_add_u32 {v(vDR)}, {v(vN)}, 4, {s(sT+3)}
    v_and_b32 {v(t+17)}, 1, {v(vQ)}
    v_lshl_add_u32 {v(vDR)}, {v(t+17)}, 11, {v(vDR)}
    v_add_u32 {v(vDW)}, {L_DH}, {v(vLst)}
    s_mov_b32 {s(sYo)}, {YP}
    s_lshl_b32 {s(sYh)}, {s(sX)}, 8
    s_add_u32 {s(sYh)}, {s(sYh)}, {YHINT}
    s_lshl_b32 {s(sSg)}, {s(sW)}, 30
    s_and_b32 {s(sSg)}, {s(sSg)}, {s(sTop)}
    s_xor_b32 {s(sSg)}, {s(sSg)}, {s(sDsc)}
    s_mov_b32 {s(sNx)}, 2
    s_lshl_b32 {s(sT)}, {s(sJ)}, 3
    v_mov_b32 {v(t+8)}, {s(sT)}
    {f's_cmp_eq_u32 {s(sW)}, 7' if cfg.w7 else ''}
    {'s_cbranch_scc1 L_pf' if cfg.w7 else ''}
    L_ywait:
    v_mov_b32 {v(t+9)}, {L_FLAG}
    s_cmp_lg_u32 {s(sW)}, 0
    s_cbranch_scc1 L_hintb
    L_hint:
    buffer_load_dwordx2 {v(t+10,2)}, {v(t+8)}, {WS}, {s(sYh)} offen sc1
    s_waitcnt vmcnt(0)
    v_cmp_ne_u32 vcc, {s(sTag)}, {v(t+10)}
    """)
    poll_branch('L_hint', 1)
    a(f"""
    ds_write_b32 {v(t+9)}, {v(t+11)} offset:8
    s_waitcnt lgkmcnt(0)
    L_hintb:
    s_barrier
    ds_read_b32 {v(t+11)}, {v(t+9)} offset:8
    s_cmp_eq_u32 {s(sIt)}, 2
    s_cbranch_scc1 L_yv3
    {f's_sleep {cfg.dgl}' if cfg.dgl else ''}
    {gl if not cfg.hs else gst}
    s_add_u32 {s(sT+8)}, {s(sYo)}, 4096
    s_waitcnt lgkmcnt(0)
    v_readfirstlane_b32 {s(sIdx)}, {v(t+11)}
    s_andn2_b32 {s(sIdx)}, {s(sM7FF)}, {s(sIdx)}
    s_and_b32 {s(sT+10)}, {s(sIdx)}, 15
    s_sub_u32 {s(sT+1)}, 16, {s(sT+10)}
    s_min_u32 {s(sT+10)}, {s(sT+10)}, {s(sT+1)}
    s_and_b32 {s(sT+10)}, {s(sT+10)}, 7
    s_lshl_b32 {s(sT+10)}, {s(sT+10)}, 12
    s_add_u32 {s(sT+10)}, {s(sT+10)}, {SLOT}
    buffer_load_dwordx2 {v(BC+4,2)}, {v(t+24)}, {WS}, {s(sT+10)} offen sc1
    buffer_load_dword {v(KA)}, off, {WS}, {s(sT+10)} offset:3076 sc1
    v_mul_u32_u24 {v(t+17)}, {s(sIdx)}, {v(AD)}
    v_and_b32 {v(t+17)}, 0x7ff, {v(t+17)}
    v_cvt_f32_u32 {v(t+17)}, {v(t+17)}
    v_mul_f32 {v(t+17)}, {fbits(1/2048)}, {v(t+17)}
    v_cos_f32 {v(t+18)}, {v(t+17)}
    v_sin_f32 {v(t+19)}, {v(t+17)}
    v_and_b32 {v(t+17)}, 0x22, {v(vLane)}
    v_cvt_pk_f16_f32 {v(t+18)}, {v(t+18)}, {v(t+19)}
    s_and_b32 {s(sT+1)}, {s(sMP)}, {s(sTop)}
    v_xor_b32 {v(t+18)}, {s(sT+1)}, {v(t+18)}
    v_cmp_eq_u32 vcc, 0, {v(t+17)}
    v_cmp_eq_u32 {s(sT+2,2)}, 2, {v(t+17)}
    v_cndmask_b32 {v(AD)}, 0, {v(t+18)}, vcc
    v_cndmask_b32 {v(AD+1)}, 0, {v(t+18)}, {s(sT+2,2)}
    """)
    owner()
    a(f"""
    {'s_waitcnt vmcnt(0)' if cfg.hs else ''}
    {f's_sleep {cfg.dg2}' if cfg.dg2 else ''}
    {gl if cfg.hs else ''}
    {f's_sleep {cfg.tim_gy}' if cfg.tim_gy else ''}
    buffer_load_dwordx2 {v(YD,2)}, {v(vYP)}, {WS}, {s(sYo)} offen sc1
    buffer_load_dwordx2 {v(YD+2,2)}, {v(vYP)}, {WS}, {s(sT+8)} offen sc1
    s_cmp_lg_u32 {s(sMir)}, 0
    s_waitcnt vmcnt({2 if cfg.hs else 4})
    s_cbranch_scc1 L_xmir ;!nd
    s_branch L_xdir
    L_corr:
    s_mov_b32 {s(sIt)}, 2
    s_mov_b32 {s(sNx)}, 0
    s_waitcnt vmcnt(2)
    L_basew:
    """)
    maxchk(range(BC+4,BC+7), t+17)
    a('s_cbranch_vccnz L_base_r ;!nd')
    a(f"""
    v_add_f32 {v(KA+1)}, 1.0, {v(KA)}
    v_rcp_f32 {v(KA+1)}, {v(KA+1)}
    v_lshlrev_b32 {v(BC+2)}, 16, {v(BC+4)}
    v_and_b32 {v(BC+3)}, 0xffff0000, {v(BC+4)}
    v_lshlrev_b32 {v(BC+4)}, 16, {v(BC+5)}
    v_and_b32 {v(BC+5)}, 0xffff0000, {v(BC+5)}
    v_mul_f32 {v(KA)}, {s(sC16)}, {v(KA)}
    v_cmp_eq_u32 vcc, 0, {v(vQ)}
    v_mul_f32 {v(KA+1)}, {v(KA)}, {v(KA+1)}
    v_pk_mul_f32 {v(BC+2,2)}, {v(BC+2,2)}, {s(sC16,2)}
    v_pk_mul_f32 {v(BC+4,2)}, {v(BC+4,2)}, {s(sC16,2)}
    v_mul_f32 {v(EK)}, {v(KA+1)}, {v(KA+1)}
    v_mul_f32 {v(EK)}, {s(sEps)}, {v(EK)}
    v_cndmask_b32 {v(KA+1)}, 0, {v(KA+1)}, vcc
    s_branch L_yc
    L_yv3:
    s_add_u32 {s(sT+8)}, {s(sYo)}, 4096
    s_waitcnt lgkmcnt(0)
    v_readfirstlane_b32 {s(sIdx)}, {v(t+11)}
    s_mov_b32 {s(sIt)}, 3
    s_cmp_lg_u32 {s(sIdx)}, {s(sKey)}
    s_cbranch_scc1 L_fin5
    {f's_sleep {cfg.tim_y3}' if cfg.tim_y3 else ''}
    s_branch L_yv
    """)
    a(f"""
    L_yv:
    buffer_load_dwordx2 {v(YD,2)}, {v(vYP)}, {WS}, {s(sYo)} offen sc1
    buffer_load_dwordx2 {v(YD+2,2)}, {v(vYP)}, {WS}, {s(sT+8)} offen sc1
    L_yc:
    s_waitcnt vmcnt(0)
    v_mfma_f32_16x16x16_bf16 {v(YR,4)}, {v(SEL,2)}, {v(YD,2)}, 0
    v_mfma_f32_16x16x16_bf16 {v(YR,4)}, {v(SEL,2)}, {v(YD+2,2)}, {v(YR,4)}
    """)
    maxchk(range(YD,YD+4), t+17)
    poll_branch('L_yv', 1, mask=True)
    stamp()
    own=[f'v_pk_fma_f32 {v(X,2)}, {v(BC,2)}, {v(YR,2)}, {v(X,2)} op_sel:[0,0,0] op_sel_hi:[1,0,1]',
         f'v_pk_fma_f32 {v(X+2,2)}, {v(BC,2)}, {v(YR,2)}, {v(X+2,2)} op_sel:[0,1,0] op_sel_hi:[1,1,1]',
         f'v_pk_fma_f32 {v(X+4,2)}, {v(BC,2)}, {v(YR+2,2)}, {v(X+4,2)} op_sel:[0,0,0] op_sel_hi:[1,0,1]',
         f'v_pk_fma_f32 {v(X+6,2)}, {v(BC,2)}, {v(YR+2,2)}, {v(X+6,2)} op_sel:[0,1,0] op_sel_hi:[1,1,1]']
    s1,s2=t+20,t+21
    a(f"""
    s_cmp_eq_u32 {s(sIt)}, 3
    s_cbranch_scc1 L_fin3
    L_pass:
    v_pk_fma_f32 {v(YL,2)}, {v(YR,2)}, {v(KA,2)}, {v(BC+2,2)} op_sel:[0,1,0]
    v_pk_fma_f32 {v(YL+2,2)}, {v(YR+2,2)}, {v(KA,2)}, {v(BC+4,2)} op_sel:[0,1,0]
    v_cvt_pk_f16_f32 {v(YL)}, {v(YL)}, {v(YL+1)}
    v_cvt_pk_f16_f32 {v(YL+1)}, {v(YL+2)}, {v(YL+3)}
    ds_write_b64 {v(vUW)}, {v(YL,2)}
    {own[0]}
    {own[1]}
    {own[2]}
    {own[3]}
    s_cmp_gt_u32 {s(sW)}, 3
    s_waitcnt lgkmcnt(0)
    s_barrier
    s_cbranch_scc1 L_dhb ;!nd
    L_pf:
    ds_read_b64_tr_b16 {v(t+8,2)}, {v(vUR)}
    ds_read_b64_tr_b16 {v(t+10,2)}, {v(vUR)} offset:512
    v_mov_b32 {v(t+22)}, 0x3c003c00
    s_waitcnt lgkmcnt(0)
    ;@F
    """)
    XR=t+8; U_=t+12; V_=YC; PP=LNP
    Ur,Ui=U_,U_+4; Vr,Vi=V_,V_+4
    a(f"""
    v_mfma_f32_16x16x32_f16 {v(Ur,4)}, {v(XR,4)}, {v(B1C,4)}, 0
    v_mfma_f32_16x16x32_f16 {v(Ui,4)}, {v(XR,4)}, {v(B1N,4)}, 0
    v_dot2_f32_f16 {v(s1)}, {v(XR)}, {v(t+22)}, 0
    v_dot2_f32_f16 {v(s2)}, {v(XR)}, {v(XR)}, 0
    v_dot2_f32_f16 {v(s1)}, {v(XR+1)}, {v(t+22)}, {v(s1)}
    v_dot2_f32_f16 {v(s2)}, {v(XR+1)}, {v(XR+1)}, {v(s2)}
    v_dot2_f32_f16 {v(s1)}, {v(XR+2)}, {v(t+22)}, {v(s1)}
    v_dot2_f32_f16 {v(s2)}, {v(XR+2)}, {v(XR+2)}, {v(s2)}
    v_dot2_f32_f16 {v(s1)}, {v(XR+3)}, {v(t+22)}, {v(s1)}
    v_dot2_f32_f16 {v(s2)}, {v(XR+3)}, {v(XR+3)}, {v(s2)}
    v_pk_mul_f32 {v(Vi,2)}, {v(Ur,2)}, {v(TWS,2)}
    v_pk_mul_f32 {v(Vi+2,2)}, {v(Ur+2,2)}, {v(TWS+2,2)}
    v_pk_mul_f32 {v(Vr,2)}, {v(Ui,2)}, {v(TWS,2)}
    v_permlane32_swap_b32 {v(s1)}, {v(s2)}
    v_pk_mul_f32 {v(Vr+2,2)}, {v(Ui+2,2)}, {v(TWS+2,2)}
    v_add_f32 {v(s1)}, {v(s1)}, {v(s2)}
    v_pk_fma_f32 {v(Vr,2)}, {v(Ur,2)}, {v(TWC,2)}, {v(Vr,2)}
    v_pk_fma_f32 {v(Vi,2)}, {v(Ui,2)}, {v(TWC,2)}, {v(Vi,2)} neg_lo:[0,0,1] neg_hi:[0,0,1]
    v_add_f32_dpp {v(s1)}, {v(s1)}, {v(s1)} row_ror:8 {DPP}
    v_pk_fma_f32 {v(Vr+2,2)}, {v(Ur+2,2)}, {v(TWC+2,2)}, {v(Vr+2,2)}
    v_pk_fma_f32 {v(Vi+2,2)}, {v(Ui+2,2)}, {v(TWC+2,2)}, {v(Vi+2,2)} neg_lo:[0,0,1] neg_hi:[0,0,1]
    v_add_f32_dpp {v(s1)}, {v(s1)}, {v(s1)} row_ror:4 {DPP}
    v_cvt_pk_f16_f32 {v(PP)}, {v(Vr)}, {v(Vi)}
    v_cvt_pk_f16_f32 {v(PP+1)}, {v(Vr+1)}, {v(Vi+1)}
    v_add_f32_dpp {v(s1)}, {v(s1)}, {v(s1)} row_ror:2 {DPP}
    v_cvt_pk_f16_f32 {v(PP+2)}, {v(Vr+2)}, {v(Vi+2)}
    v_cvt_pk_f16_f32 {v(PP+3)}, {v(Vr+3)}, {v(Vi+3)}
    v_add_f32_dpp {v(s1)}, {v(s1)}, {v(s1)} row_ror:1 {DPP}
    v_mfma_f32_16x16x32_f16 {v(Ur,4)}, {v(A2R,4)}, {v(PP,4)}, 0
    v_mfma_f32_16x16x32_f16 {v(Ui,4)}, {v(A2I,4)}, {v(PP,4)}, 0
    v_add_f32_dpp {v(s1)}, {v(s1)}, {v(s1)} row_bcast:15 row_mask:0xa bank_mask:0xf
    v_mul_f32 {v(s1)}, {s(sK512)}, {v(s1)}
    v_readlane_b32 {s(sT+2)}, {v(s1)}, 63
    v_readlane_b32 {s(sT+1)}, {v(s1)}, 31
    v_add_f32 {v(s2)}, {s(sT+2)}, {v(EK)}
    v_mov_b32 {v(s1)}, {s(sT+1)}
    v_fma_f32 {v(s1)}, -{v(s1)}, {v(s1)}, {v(s2)}
    v_rsq_f32_e64 {v(s1)}, |{v(s1)}|
    v_mul_f32 {v(s1)}, {s(sSg)}, {v(s1)}
    """)
    for k in range(4): a(f'v_pk_mul_f32 {v(U_+2*k,2)}, {v(U_+2*k,2)}, {v(s1,2)} op_sel_hi:[1,0]')
    for r in range(4): a(f'v_cvt_pk_f16_f32 {v(PP+r)}, {v(Ur+r)}, {v(Ui+r)}')
    a(f"""
    {'s_cbranch_scc1 L_ywait ;!nd' if cfg.w7 else ''}
    ds_write2_b32 {v(vDW)}, {v(PP)}, {v(PP+1)} offset0:0 offset1:32
    ds_write2_b32 {v(vDW)}, {v(PP+2)}, {v(PP+3)} offset0:64 offset1:96
    s_waitcnt lgkmcnt(0)
    L_dhb:
    s_barrier
    ds_read_b128 {v(t+16,4)}, {v(vDR)}
    s_waitcnt lgkmcnt(0)
    v_mfma_f32_16x16x16_f16 {v(E0,4)}, {v(AD,2)}, {v(t+16,2)}, 0
    v_mfma_f32_16x16x16_f16 {v(E1,4)}, {v(AD,2)}, {v(t+18,2)}, 0
    s_nop 4
    s_branch L_apply ;!nd
    """)
    a('L_fin:')
    a(xupd)
    if cfg.odel: a(f's_sleep {cfg.odel}')
    for rho in (0,1):
        for k in (0,1):
            a(f'v_cvt_pk_bf16_f32 {v(t+2*rho+k)}, {v(X+4*k+rho)}, {v(X+4*k+2+rho)}')
    a(f"""
    v_lshlrev_b32 {v(t+16)}, 1, {v(vQ)}
    v_mov_b32 {v(t+19)}, 0x200000
    s_sub_u32 {s(sT)}, {s(sT+9)}, 1
    v_cmp_eq_u32 vcc, {s(sT+9)}, {v(t+16)}
    v_cmp_eq_u32 {s(sT+2,2)}, {s(sT)}, {v(t+16)}
    v_cndmask_b32 {v(t+17)}, {v(vXoff)}, {v(t+19)}, vcc
    v_cndmask_b32 {v(t+18)}, {v(vXoff)}, {v(t+19)}, {s(sT+2,2)}
    buffer_store_dwordx2 {v(t,2)}, {v(vXoff if cfg.twice else t+17)}, {OS}, {s(sRow0)} offen {['','sc1','nt'][cfg.osc]}
    buffer_store_dwordx2 {v(t+2,2)}, {v(vXoff if cfg.twice else t+18)}, {OS}, {s(sRow1)} offen {['','sc1','nt'][cfg.osc]}
    """)
    if cfg.wb==3: a(f"""
    s_xor_b32 {s(sT+4)}, {s(sJ)}, 9
    s_or_b32 {s(sT+4)}, {s(sT+4)}, {s(sW)}
    s_cbranch_scc1 L_nwb3
    {f's_sleep {cfg.wbd}' if cfg.wbd else ''}
    buffer_wbl2 sc1
    L_nwb3:
    """)
    a(f"""
    v_cndmask_b32 {v(t+24)}, {v(t+19)}, {v(vXoff)}, vcc
    v_cndmask_b32 {v(t+25)}, {v(t+19)}, {v(vXoff)}, {s(sT+2,2)}
    s_or_b32 {s(sT)}, s2, {s(sW)}
    s_cbranch_scc1 L_fin2
    v_mov_b32 {v(t+20)}, {s(sTag)}
    buffer_store_dword {v(t+20)}, off, {WS}, 0 sc1
    L_fin2:
    s_cmp_eq_u32 {s(sT+9)}, 64
    s_cbranch_scc1 L_fin5
    s_andn2_b32 {s(sIdx)}, {s(sM7FF)}, {s(sKey)}
    s_add_u32 {s(sYo)}, {s(sYo)}, {YPR}
    s_add_u32 {s(sYh)}, {s(sYh)}, {YHR}
    v_mov_b32 {v(t+8)}, {v(vL8)}
    """)
    owner()
    a('s_branch L_ywait\nL_fin3:')
    a('\n'.join(own))
    for rho in (0,1):
        for k in (0,1):
            a(f'v_cvt_pk_bf16_f32 {v(t+2*rho+k)}, {v(X+4*k+rho)}, {v(X+4*k+2+rho)}')
    a(f"""
    L_fin4:
    buffer_store_dwordx2 {v(t,2)}, {v(t+24)}, {OS}, {s(sRow0)} offen {['sc1','','nt'][cfg.lastp]}
    buffer_store_dwordx2 {v(t+2,2)}, {v(t+25)}, {OS}, {s(sRow1)} offen {['sc1','','nt'][cfg.lastp]}
    L_fin5:
    """)
    stamp(); dump_stamps()
    a('s_endpgm')
    a(f"""
    L_base_r:
    s_sub_u32 {s(sCnt)}, {s(sCnt)}, 1
    s_cbranch_scc1 L_end
    s_sleep 2
    buffer_load_dwordx2 {v(BC+4,2)}, {v(t+24)}, {WS}, {s(sT+10)} offen sc1
    buffer_load_dword {v(KA)}, off, {WS}, {s(sT+10)} offset:3076 sc1
    s_waitcnt vmcnt(0)
    s_branch L_basew
    """)
    def pub2():
        a(f'''
        v_mov_b32 {v(t+4)}, {s(sTag)}
        v_mov_b32 {v(t+5)}, {s(sXcc)}
        s_add_u32 {s(sT)}, {s(sTabSt)}, {TAB2-TABL}
        buffer_store_dwordx2 {v(t+4,2)}, off, {WS}, {s(sT)} sc1
        ''')
    a(f'''
    L_tabst_slow:
    buffer_store_dwordx2 {v(K,2)}, off, {WS}, {s(sTabSt)} sc1
    s_branch L_tabst_back
    L_tg0_r:
    s_sub_u32 {s(sCnt)}, {s(sCnt)}, 1
    s_cbranch_scc1 L_end
    s_sleep 2
    ''')
    a(f's_mov_b64 exec, 0xff\nbuffer_load_dword {v(t+20)}, {v(t+24)}, {WS}, {s(sT+10)} offen sc1\ns_mov_b64 exec, -1')
    if cfg.dr: a(f's_waitcnt vmcnt(0)\nv_cmp_ne_u32 vcc, {s(sTag)}, {v(t+20)}\ns_cbranch_vccnz L_tg0_r\ns_sleep {cfg.dr}\ns_branch L_g')
    a('s_branch L_tg0w\nL_tab2:')
    pub2()
    a(f'''
    s_add_u32 {s(sT+1)}, {s(sTabLd)}, {TAB2-TABL}
    L_tab2p:
    buffer_load_dwordx2 {v(TB,2)}, {v(vL8)}, {WS}, {s(sTabLd)} offen sc1
    buffer_load_dwordx2 {v(t+6,2)}, {v(vL8)}, {WS}, {s(sT+1)} offen sc1
    s_waitcnt vmcnt(0)
    v_cmp_eq_u32 vcc, {s(sTag)}, {v(TB)}
    v_cndmask_b32 {v(TB)}, {v(t+6)}, {v(TB)}, vcc
    v_cndmask_b32 {v(TB+1)}, {v(t+7)}, {v(TB+1)}, vcc
    v_cmp_ne_u32 vcc, {s(sTag)}, {v(TB)}
    ''')
    poll_branch('L_tab2p', 4)
    a(f'''
    s_branch L_t0ok
    L_slow:
    s_cmp_lg_u32 {s(sIt)}, 0
    s_cbranch_scc1 L_slow1
    ''')
    pub2()
    a('L_slow1:')
    lstores('sc1')
    a(f'''
    s_waitcnt vmcnt(0)
    s_barrier
    s_add_u32 {s(sT)}, {s(sTabSt)}, {SLOWF-TABL}
    s_add_u32 {s(sT+1)}, {s(sTabLd)}, {SLOWF-TABL}
    v_mov_b32 {v(t+4)}, {s(sTag)}
    s_cmp_lg_u32 {s(sW)}, 0
    s_cbranch_scc1 L_slowp
    buffer_store_dword {v(t+4)}, off, {WS}, {s(sT)} sc1
    L_slowp:
    buffer_load_dword {v(t+5)}, {v(vL8)}, {WS}, {s(sT+1)} offen sc1
    s_waitcnt vmcnt(0)
    v_cmp_ne_u32 vcc, {s(sTag)}, {v(t+5)}
    ''')
    poll_branch('L_slowp', 2)
    a('s_branch L_slowback')

def hint_store(vreg, soff, lbl):
    a(f'''
    s_mov_b64 exec, 1
    s_cmp_eq_u32 {s(sFast)}, 0
    s_cbranch_scc1 {lbl}_s
    buffer_store_dwordx2 {v(vreg,2)}, off, {WS}, {s(soff)}
    s_branch {lbl}_d
    {lbl}_s:
    buffer_store_dwordx2 {v(vreg,2)}, off, {WS}, {s(soff)} sc1
    {lbl}_d:
    s_mov_b64 exec, -1
    ''')

def ffn():
    WA=4; WD=20; t=40
    vXL=24; vXW=25; vXR=26; vPS=27; vPL=28; vHW=29; vHR=30; vDP=31; vTag=32; vSig=34; vFl=35
    sI=sJ; sRnd=sIt; sPo=sLst; sPs=sLld
    tch=f"""; bring this WG's share of the partial-sum mailboxes into L2
    {f's_sleep {cfg.tdel}' if cfg.tdel and not cfg.mg else ''}
    v_and_b32 {v(t+4)}, 1, {v(vQ)}
    v_lshlrev_b32 {v(t+4)}, 16, {v(t+4)}
    v_lshl_add_u32 {v(t+4)}, {v(vN)}, 4, {v(t+4)}
    s_lshl_b32 {s(sT)}, {s(sI)}, 8
    s_add_u32 {s(sT)}, {s(sT)}, {s(sPo)}
    buffer_load_dword {v(t+5)}, {v(t+4)}, {WS}, {s(sT)} offen sc1
    {f'buffer_load_dword {v(t+7)}, off, {WS}, {s(sYh)} sc1' if cfg.ht else ''}
    {f'buffer_load_dword {v(t+8)}, off, {WS}, {s(sYh)} offset:{YHR} sc1' if cfg.ht else ''}"""
    F_W=0; TS=4096+64; F_X=0x4400; F_KEY=0x4D00; F_H=0x4E00; F_D=0x5200; F_WD=0x5400
    a(f"""
    L_ffn:
    s_and_b32 {s(sI)}, {s(sJ)}, 31
    s_min_u32 {s(sT+2)}, {s(sI)}, 27
    s_and_b32 {s(sT)}, {s(sT+2)}, 3
    s_lshl_b32 {s(sT+8)}, {s(sT)}, 8              ; 256*ks
    s_mul_i32 {s(sT+9)}, {s(sT)}, {28*64}
    s_mul_i32 {s(sT)}, {s(sT)}, {128*3584}
    s_mul_i32 {s(sT+1)}, {s(sX)}, 448
    s_add_u32 {s(sT)}, {s(sT)}, {s(sT+1)}
    s_lshr_b32 {s(sT+2)}, {s(sT+2)}, 2
    s_lshl_b32 {s(sT+3)}, {s(sT+2)}, 6
    s_add_u32 {s(sT)}, {s(sT)}, {s(sT+3)}
    v_lshrrev_b32 {v(t+3)}, 2, v0
    v_mul_u32_u24 {v(t)}, 3584, {v(t+3)}
    v_and_b32 {v(t+4)}, 3, v0
    v_lshl_add_u32 {v(t)}, {v(t+4)}, 4, {v(t)}
    v_add_u32 {v(t)}, {s(sT)}, {v(t)}
    s_mul_i32 {s(sT)}, {s(sX)}, {224*1024}
    s_lshl_b32 {s(sT+1)}, {s(sI)}, 5
    s_add_u32 {s(sT)}, {s(sT)}, {s(sT+1)}
    v_lshrrev_b32 {v(t+1)}, 1, v0
    v_min_u32 {v(t+1)}, 223, {v(t+1)}
    v_lshlrev_b32 {v(t+1)}, 10, {v(t+1)}
    v_and_b32 {v(t+2)}, 1, v0
    v_lshl_add_u32 {v(t+1)}, {v(t+2)}, 4, {v(t+1)}
    v_add_u32 {v(t+1)}, {s(sT)}, {v(t+1)}
    s_add_u32 {s(sT+10)}, {s(sTabLd)}, {FTAB-TABL}
    s_waitcnt lgkmcnt(0)
    {f'v_lshlrev_b32 {v(T+25)}, {cfg.tlb}, v0' if cfg.tlb else ''}
    {f'buffer_load_dword {v(T+21)}, {v(T+25)}, {WS}, 0 offen sc1' if cfg.tlb else ''}
    {f'buffer_load_dword {v(T+21)}, {v(T+25)}, {OS}, 0 offen sc1' if cfg.tlb else ''}
    {f's_sleep {cfg.fdelay}' if cfg.fdelay else ''}
    {f'global_load_dwordx4 {v(T+8,4)}, {v(t)}, s[18:19]' if cfg.wdpos!=2 and cfg.gul<2 else ''}
    v_mov_b32 {v(T+24)}, {v(t)}
    {f'global_load_dwordx4 {v(T+12,4)}, {v(t)}, s[20:21]' if cfg.wdpos!=2 and not cfg.gul else ''}
    {f'global_load_dwordx4 {v(T+16,4)}, {v(t+1)}, s[22:23]' if cfg.wdpos==0 else f'v_mov_b32 {v(T+23)}, {v(t+1)}'}
    """)
    if cfg.wpf: a(f"""
    s_mul_i32 {s(sT)}, {s(sX)}, 224
    s_mul_i32 {s(sT+1)}, {s(sI)}, 7
    s_add_u32 {s(sT)}, {s(sT)}, {s(sT+1)}
    s_min_u32 {s(sT+1)}, {s(sW)}, 6
    s_add_u32 {s(sT)}, {s(sT)}, {s(sT+1)}
    s_lshl_b32 {s(sT)}, {s(sT)}, 10
    v_lshl_add_u32 {v(T+25)}, {v(vLane)}, 4, {s(sT)}
    {f'global_load_dwordx4 {v(T+16,4)}, {v(T+25)}, s[22:23]' if cfg.wpf==1 else ''}
    """)
    a(f"""
    {f'buffer_load_dword {v(T+20)}, off, {WS}, 0 sc1' if not cfg.hot else f's_load_dword {s(sTag)}, s[8:9], 0'}
    s_cmp_eq_u32 {s(sW)}, 0
    s_cselect_b32 {s(sT)}, {s(sT+10)}, s10
    buffer_load_dword {v(T+21)}, {v(vL8)}, {WS}, {s(sT if cfg.hot else sT+10)} offen sc1
    v_mul_u32_u24 {v(T+22)}, {TS}, {v(t+4)}
    v_lshl_add_u32 {v(T+22)}, {v(t+3)}, 5, {v(T+22)}
    v_lshlrev_b32 {v(t+5)}, 4, {v(vN)}
    s_and_b32 {s(sT)}, {s(sW)}, 1
    s_lshl_b32 {s(sT)}, {s(sT)}, 2
    v_add_u32 {v(t+6)}, {s(sT)}, {v(vQ)}
    v_lshl_add_u32 {v(vXL)}, {v(t+6)}, 12, {v(t+5)}
    v_add_u32 {v(vXL)}, {s(sT+8)}, {v(vXL)}
    v_mul_u32_u24 {v(vXW)}, 272, {v(t+6)}
    v_add_u32 {v(vXW)}, {v(vXW)}, {v(t+5)}
    v_and_b32 {v(t+6)}, 7, {v(vLane)}
    v_mul_u32_u24 {v(vXR)}, 272, {v(t+6)}
    v_lshl_add_u32 {v(vXR)}, {v(vQ)}, 4, {v(vXR)}
    s_cmp_lg_u32 {s(sW)}, 6
    s_cbranch_scc1 L_fa1
    v_lshlrev_b32 {v(vXL)}, 12, {v(t+6)}
    L_fa1:
    s_lshl2_add_u32 {s(sT)}, {s(sT+2)}, {s(sW)}
    s_lshl_b32 {s(sT)}, {s(sT)}, 6
    s_add_u32 {s(sT)}, {s(sT)}, {s(sT+9)}
    v_lshl_add_u32 {v(vPS)}, {v(vN)}, 2, {s(sT)}
    s_lshl_b32 {s(sT)}, {s(sW)}, 8
    v_mul_u32_u24 {v(vPL)}, 1792, {v(vQ)}
    v_add3_u32 {v(vPL)}, {v(vPL)}, {v(t+5)}, {s(sT)}
    s_lshl_b32 {s(sT)}, {s(sW)}, 7
    s_add_u32 {s(sT)}, {s(sT)}, {F_H}
    v_lshl_add_u32 {v(vHR)}, {v(vQ)}, 4, {s(sT)}
    v_and_b32 {v(t+6)}, 12, {v(vN)}
    v_lshl_add_u32 {v(vHW)}, {v(t+6)}, 2, {s(sT)}
    v_and_b32 {v(t+6)}, 1, {v(vN)}
    v_lshl_add_u32 {v(vHW)}, {v(t+6)}, 3, {v(vHW)}
    v_and_b32 {v(t+6)}, 2, {v(vN)}
    v_lshl_add_u32 {v(vHW)}, {v(t+6)}, 5, {v(vHW)}
    v_and_b32 {v(t+6)}, 2, {v(vQ)}
    v_add_u32 {v(vHW)}, {v(vHW)}, {v(t+6)}
    v_and_b32 {v(t+6)}, 1, {v(vQ)}
    v_lshl_add_u32 {v(vHW)}, {v(t+6)}, 2, {v(vHW)}
    s_lshl_b32 {s(sT)}, {s(sW)}, 2
    s_add_u32 {s(sT)}, {s(sT)}, {F_D}
    v_lshl_add_u32 {v(vDP)}, {v(vN)}, 5, {s(sT)}
    v_mov_b32 {v(vFl)}, {F_KEY}
    v_mov_b32 {v(vTag)}, 0
    s_mov_b32 {s(sFast)}, 0
    s_mov_b32 {s(sRnd)}, 2
    s_mov_b32 {s(sPo)}, {WSSZ}
    s_mov_b32 {s(sYo)}, {WSSZ}
    s_mov_b32 {s(sYh)}, {WSSZ}
    s_waitcnt lgkmcnt(0)
    {'s_branch L_fb2' if cfg.dry else ''}
    L_finit:
    s_mov_b32 {s(sRnd)}, 0
    s_mov_b32 {s(sSlot)}, {SLOT}
    s_lshl_b32 {s(sPo)}, {s(sX)}, 13
    s_add_u32 {s(sPo)}, {s(sPo)}, {PART}
    s_lshl_b32 {s(sYo)}, {s(sX)}, 10
    s_lshl_b32 {s(sT)}, {s(sI)}, 5
    s_add_u32 {s(sYo)}, {s(sYo)}, {s(sT)}
    s_add_u32 {s(sYo)}, {s(sYo)}, {YP}
    s_lshl_b32 {s(sYh)}, {s(sX)}, 8
    s_lshl3_add_u32 {s(sYh)}, {s(sI)}, {s(sYh)}
    s_add_u32 {s(sYh)}, {s(sYh)}, {YHINT}
    s_lshl_b32 {s(sT)}, {s(sW)}, 10
    v_lshl_add_u32 {v(t)}, {v(vLane)}, 4, {s(sT)}
    v_lshl_add_u32 {v(t+1)}, {v(vQ)}, 8, {s(sT)}
    v_lshl_add_u32 {v(t+1)}, {v(vN)}, 3, {v(t+1)}
    s_and_b32 {s(sT)}, {s(sW)}, 3
    s_mul_i32 {s(sT)}, {s(sT)}, {TS}
    v_lshl_add_u32 {v(t+2)}, {v(vQ)}, 8, {s(sT)}
    v_lshl_add_u32 {v(t+2)}, {v(vN)}, 3, {v(t+2)}
    v_mov_b32 {v(vTag+1)}, {s(sXcc)}
    s_lshl3_add_u32 {s(sT+1)}, {s(sI)}, {s(sT+10)}
    s_waitcnt vmcnt(0)
    {f'v_mov_b32 {v(T+20)}, {s(sTag)}' if cfg.hot else ''}
    v_add_u32 {v(vTag)}, 1, {v(T+20)}
    ds_write_b128 {v(T+22)}, {v(T+8,4)}
    ds_write_b128 {v(T+22)}, {v(T+12,4)} offset:16
    {f'ds_write_b128 {v(t)}, {v(T+16,4)} offset:{F_WD}' if cfg.wdpos==0 else ''}
    v_readfirstlane_b32 {s(sTag)}, {v(vTag)}
    s_cmp_lg_u32 {s(sW)}, 0
    s_cbranch_scc1 L_fi1
    s_mov_b64 exec, 1
    buffer_store_dwordx2 {v(vTag,2)}, off, {WS}, {s(sT+1)}
    s_mov_b64 exec, -1
    L_fi1:
    s_waitcnt lgkmcnt(0)
    s_barrier
    """)
    if cfg.stamps: a(f's_mov_b32 {s(sStampI)}, 0')
    stamp()
    for k in range(4):
        a(f'ds_read_b64_tr_b16 {v(WA+4*k,2)}, {v(t+2)} offset:{1024*k}')
        a(f'ds_read_b64_tr_b16 {v(WA+4*k+2,2)}, {v(t+2)} offset:{1024*k+128}')
    a(f"""
    {f'ds_read_b64_tr_b16 {v(WD,2)}, {v(t+1)} offset:{F_WD}' if cfg.wdpos==0 else ''}
    {f'ds_read_b64_tr_b16 {v(WD+2,2)}, {v(t+1)} offset:{F_WD+128}' if cfg.wdpos==0 else ''}
    s_cmp_lg_u32 {s(sW)}, 0
    s_cbranch_scc1 L_fi3
    s_movk_i32 {s(sTry)}, 80
    L_fl:
    buffer_load_dwordx2 {v(t+4,2)}, {v(vL8)}, {WS}, {s(sTabLd)} offen sc1
    buffer_load_dwordx2 {v(t+6,2)}, {v(vL8)}, {WS}, {s(sT+10)} offen sc1
    s_waitcnt vmcnt(0)
    v_cmp_ne_u32 vcc, {s(sTag)}, {v(t+4)}
    v_cmp_ne_u32 {s(sT,2)}, {s(sTag)}, {v(t+6)}
    s_or_b64 vcc, vcc, {s(sT,2)}
    """)
    poll_branch('L_fl', 4, giveup='L_fslowtab', skip=True)
    a(f"""
    v_cmp_ne_u32 vcc, {s(sXcc)}, {v(t+5)}
    v_cmp_ne_u32 {s(sT,2)}, {s(sXcc)}, {v(t+7)}
    s_or_b64 vcc, vcc, {s(sT,2)}
    s_cbranch_vccnz L_fslowtab
    s_mov_b32 {s(sFast)}, 1
    {tch if not cfg.mg else ''}
    L_fi2:
    v_mov_b32 {v(t+6)}, {s(sFast)}
    ds_write_b32 {v(vFl)}, {v(t+6)} offset:4
    L_fi3:
    s_waitcnt vmcnt(0) lgkmcnt(0)
    s_barrier
    ds_read_b32 {v(t+6)}, {v(vFl)} offset:4
    s_waitcnt lgkmcnt(0)
    v_readfirstlane_b32 {s(sFast)}, {v(t+6)}
    """)
    if cfg.mg: a(f's_sleep {cfg.tdel}\ns_cmp_lg_u32 {s(sW)}, 7\ns_cbranch_scc1 L_nt7\n'+tch+'\nL_nt7:')
    if cfg.wpf==2: a((f's_sleep {cfg.gdelay}\n' if cfg.gdelay else '')+f'global_load_dwordx4 {v(T+16,4)}, {v(T+25)}, s[22:23]\ns_waitcnt vmcnt(0)')
    if cfg.gul:
        a(f"""
        {f's_sleep {cfg.gdelay}' if cfg.gdelay else ''}
        {f'global_load_dwordx4 {v(T+8,4)}, {v(T+24)}, s[18:19]' if cfg.gul==2 else ''}
        global_load_dwordx4 {v(T+12,4)}, {v(T+24)}, s[20:21]
        s_waitcnt vmcnt(0)
        ds_write_b128 {v(T+22)}, {v(T+8,4)}
        ds_write_b128 {v(T+22)}, {v(T+12,4)} offset:16
        s_waitcnt lgkmcnt(0)
        s_barrier
        """)
        for k in range(4):
            a(f'ds_read_b64_tr_b16 {v(WA+4*k,2)}, {v(t+2)} offset:{1024*k}')
            a(f'ds_read_b64_tr_b16 {v(WA+4*k+2,2)}, {v(t+2)} offset:{1024*k+128}')
        a('s_waitcnt lgkmcnt(0)')
    if cfg.wdpos==3: a(f'v_mov_b32 {v(T+8)}, {v(t)}\nv_mov_b32 {v(T+9)}, {v(t+1)}')
    if cfg.wdpos==2:
        a(f"""
        {f's_sleep {cfg.gdelay}' if cfg.gdelay else ''}
        global_load_dwordx4 {v(T+8,4)}, {v(T+24)}, s[18:19]
        global_load_dwordx4 {v(T+12,4)}, {v(T+24)}, s[20:21]
        global_load_dwordx4 {v(T+16,4)}, {v(T+23)}, s[22:23]
        s_waitcnt vmcnt(0)
        ds_write_b128 {v(T+22)}, {v(T+8,4)}
        ds_write_b128 {v(T+22)}, {v(T+12,4)} offset:16
        ds_write_b128 {v(t)}, {v(T+16,4)} offset:{F_WD}
        s_waitcnt lgkmcnt(0)
        s_barrier
        """)
        for k in range(4):
            a(f'ds_read_b64_tr_b16 {v(WA+4*k,2)}, {v(t+2)} offset:{1024*k}')
            a(f'ds_read_b64_tr_b16 {v(WA+4*k+2,2)}, {v(t+2)} offset:{1024*k+128}')
        a(f"""
        ds_read_b64_tr_b16 {v(WD,2)}, {v(t+1)} offset:{F_WD}
        ds_read_b64_tr_b16 {v(WD+2,2)}, {v(t+1)} offset:{F_WD+128}
        s_waitcnt lgkmcnt(0)
        """)
    if cfg.wdpos==1: a(f"""
    {f's_sleep {cfg.gdelay}' if cfg.gdelay else ''}
    global_load_dwordx4 {v(T+16,4)}, {v(T+23)}, s[22:23]
    s_waitcnt vmcnt(0)
    ds_write_b128 {v(t)}, {v(T+16,4)} offset:{F_WD}
    ds_read_b64_tr_b16 {v(WD,2)}, {v(t+1)} offset:{F_WD}
    ds_read_b64_tr_b16 {v(WD+2,2)}, {v(t+1)} offset:{F_WD+128}
    s_waitcnt lgkmcnt(0)
    """)
    a(f"""
    L_frnd:
    s_add_u32 {s(sTabLd)}, {s(sTabLd)}, {ARGR}
    s_cmp_lg_u32 {s(sW)}, 0
    s_cbranch_scc1 L_fb1
    s_cmp_eq_u32 {s(sFast)}, 0
    s_cbranch_scc1 L_fb1
    L_ftrig:
    buffer_load_dword {v(t)}, {v(vL8)}, {WS}, {s(sTabLd)} offen sc1
    s_waitcnt vmcnt(0)
    v_cmp_ne_u32 vcc, {s(sTag)}, {v(t)}
    """)
    poll_branch('L_ftrig', cfg.slp_f)
    stamp()
    a(f"""
    s_cmp_eq_u32 {s(sRnd)}, 0
    s_cbranch_scc1 L_ft0
    s_sleep {cfg.tim_a1}
    s_branch L_fb1
    L_ft0:
    s_sleep {cfg.tim_arg if cfg.wdpos!=3 else cfg.tim_wd}
    L_fb1:
    """)
    if cfg.wdpos==3: a(f"""
    s_cmp_lg_u32 {s(sRnd)}, 0
    s_cbranch_scc1 L_fb1b
    s_barrier
    global_load_dwordx4 {v(T+16,4)}, {v(T+23)}, s[22:23]
    s_waitcnt vmcnt(0)
    ds_write_b128 {v(T+8)}, {v(T+16,4)} offset:{F_WD}
    {f'ds_read_b64_tr_b16 {v(WD,2)}, {v(T+9)} offset:{F_WD}' if not cfg.sb else ''}
    {f'ds_read_b64_tr_b16 {v(WD+2,2)}, {v(T+9)} offset:{F_WD+128}' if not cfg.sb else ''}
    {f's_sleep {cfg.tim_r}' if cfg.tim_r else ''}
    s_waitcnt lgkmcnt(0)
    L_fb1b:
    """)
    a(f"""
    s_sub_u32 {s(sT)}, {s(sW)}, 4
    s_cmp_lt_u32 {s(sT)}, 2
    s_barrier
    s_cbranch_scc1 L_fx
    s_cmp_lg_u32 {s(sW)}, 6
    s_cbranch_scc1 L_fb2
    s_mov_b64 exec, 0xff
    v_mov_b32 {v(t+1)}, 0
    ds_write_b32 {v(vFl)}, {v(t+1)}
    L_fhd:
    buffer_load_dword {v(t)}, {v(vXL)}, {WS}, {s(sSlot)} offen offset:3072 sc1
    s_waitcnt vmcnt(0)
    v_cmp_eq_u32 vcc, -1, {v(t)}
    """)
    poll_branch('L_fhd', 2, skip=True)
    a(f"""
    ds_max_u32 {v(vFl)}, {v(t)}
    s_mov_b64 exec, -1
    s_branch L_fb2
    L_fx:
    buffer_load_dwordx4 {v(t,4)}, {v(vXL)}, {WS}, {s(sSlot)} offen sc1
    s_waitcnt vmcnt(0)
    ds_write_b128 {v(vXW)}, {v(t,4)} offset:{F_X}
    """)
    maxchk(range(t,t+4), t+4)
    poll_branch('L_fx', 2, mask=True)
    Dd=t+16
    a(f"""
    L_fb2:
    """)
    a(f"""
    s_cmp_gt_u32 {s(sW)}, 3
    s_waitcnt lgkmcnt(0)
    s_barrier
    s_cbranch_scc1 L_fnoa
    ds_read_b32 {v(t+20)}, {v(vFl)}
    """)
    for k in range(4): a(f'ds_read_b128 {v(t+4*k,4)}, {v(vXR)} offset:{F_X+64*k}')
    stamp()
    a(f"""
    s_cmp_lt_u32 {s(sI)}, 28
    s_cselect_b32 {s(sPs)}, {s(sPo)}, {WSSZ}
    s_waitcnt lgkmcnt(3)
    v_mfma_f32_16x16x32_bf16 {v(Dd,4)}, {v(t,4)}, {v(WA,4)}, 0
    v_readfirstlane_b32 {s(sKey)}, {v(t+20)}
    s_waitcnt lgkmcnt(2)
    v_mfma_f32_16x16x32_bf16 {v(Dd,4)}, {v(t+4,4)}, {v(WA+4,4)}, {v(Dd,4)}
    s_andn2_b32 {s(sT)}, 15, {s(sKey)}
    s_sub_u32 {s(sT+1)}, 16, {s(sT)}
    s_min_u32 {s(sT)}, {s(sT)}, {s(sT+1)}
    s_waitcnt lgkmcnt(1)
    v_mfma_f32_16x16x32_bf16 {v(Dd,4)}, {v(t+8,4)}, {v(WA+8,4)}, {v(Dd,4)}
    s_bitcmp1_b32 {s(sT)}, 0
    s_cselect_b64 vcc, -1, 0
    s_waitcnt lgkmcnt(0)
    v_mfma_f32_16x16x32_bf16 {v(Dd,4)}, {v(t+12,4)}, {v(WA+12,4)}, {v(Dd,4)}
    s_bitcmp1_b32 {s(sT)}, 1
    s_cselect_b64 {s(sT+2,2)}, -1, 0
    s_and_b32 {s(sT)}, {s(sT)}, 4
    s_lshl_b32 {s(sT)}, {s(sT)}, 2
    s_bfm_b64 exec, 16, {s(sT)}
    s_cmp_eq_u32 {s(sFast)}, 0
    v_cndmask_b32 {v(Dd)}, {v(Dd)}, {v(Dd+1)}, vcc
    v_cndmask_b32 {v(Dd+2)}, {v(Dd+2)}, {v(Dd+3)}, vcc
    v_cndmask_b32 {v(Dd)}, {v(Dd)}, {v(Dd+2)}, {s(sT+2,2)}
    s_cbranch_scc1 L_fps_s ;!nd
    buffer_store_dword {v(Dd)}, {v(vPS)}, {WS}, {s(sPs)} offen
    L_fps_d:
    s_mov_b64 exec, -1
    s_cmp_eq_u32 {s(sRnd)}, 2
    s_cbranch_scc1 L_fpok
    {'s_waitcnt vmcnt(0)' if not cfg.nw&1 else ''}
    {f's_sleep {cfg.dp}' if cfg.dp else ''}
    s_branch L_fp
    L_fps_s:
    buffer_store_dword {v(Dd)}, {v(vPS)}, {WS}, {s(sPs)} offen sc1
    s_branch L_fps_d
    L_fnoa:
    s_cmp_eq_u32 {s(sW)}, 7
    s_cbranch_scc1 L_f7
    """)
    if cfg.eh==2:
        a(f's_cmp_lg_u32 {s(sW)}, 5\ns_cbranch_scc1 L_fyh_d\n'+(f's_sleep {cfg.ehd}' if cfg.ehd else ''))
        hint_store(vTag, sYh, 'L_fyh')
    a(f"""
    s_cmp_eq_u32 {s(sRnd)}, 2
    s_cbranch_scc1 L_fpok
    s_sleep {cfg.tim_p}
    s_branch L_fp
    L_fp:
    buffer_load_dwordx4 {v(t,4)}, {v(vPL)}, {WS}, {s(sPo)} offen sc1
    s_waitcnt vmcnt(0)
    """)
    maxchk(range(t,t+4), t+4)
    poll_branch('L_fp', cfg.slp_p, mask=True)
    stamp()
    a(f"""
    L_fpok:
    v_permlane32_swap_b32 {v(t)}, {v(t+1)}
    v_permlane32_swap_b32 {v(t+2)}, {v(t+3)}
    v_add_f32 {v(t)}, {v(t)}, {v(t+1)}
    v_add_f32 {v(t+2)}, {v(t+2)}, {v(t+3)}
    v_permlane16_swap_b32 {v(t)}, {v(t+2)}
    v_add_f32 {v(t)}, {v(t)}, {v(t+2)}
    v_mul_f32 {v(t+1)}, 0xbfb8aa3b, {v(t)}
    v_exp_f32 {v(t+1)}, {v(t+1)}
    v_mul_f32_dpp {v(t+2)}, {v(t)}, {v(t)} quad_perm:[2,3,0,1] {DPP}
    v_add_f32 {v(t+1)}, 1.0, {v(t+1)}
    v_rcp_f32 {v(t+1)}, {v(t+1)}
    v_mul_f32 {v(t+1)}, {v(t+1)}, {v(t+2)}
    v_cvt_pk_bf16_f32 {v(t+1)}, {v(t+1)}, {v(t+1)}
    ds_write_b16 {v(vHW)}, {v(t+1)}
    """)
    if not cfg.sb: a(f"""
    ds_read_b128 {v(t+4,4)}, {v(vHR)}
    s_waitcnt lgkmcnt(0)
    v_mfma_f32_16x16x32_bf16 {v(t+8,4)}, {v(t+4,4)}, {v(WD,4)}, 0
    s_mov_b64 exec, 0xffff
    ds_write_b32 {v(vDP)}, {v(t+8)}
    s_mov_b64 exec, -1
    """)
    a(f"""
    s_waitcnt lgkmcnt(0)
    s_barrier
    L_fnext:
    """)
    stamp()
    a(f"""
    s_cmp_eq_u32 {s(sRnd)}, 1
    s_cbranch_scc1 L_fend
    s_cmp_eq_u32 {s(sRnd)}, 2
    s_cbranch_scc1 L_finit
    """)
    if cfg.wb==1: a(f"""
    s_cmp_lg_u32 {s(sI)}, 28
    s_cbranch_scc1 L_nwb
    s_cmp_lg_u32 {s(sW)}, 3
    s_cbranch_scc1 L_nwb
    s_sleep {cfg.wbd}
    buffer_wbl2 sc1
    L_nwb:
    """)
    a(f"""
    s_mov_b32 {s(sRnd)}, 1
    s_add_u32 {s(sSlot)}, {s(sSlot)}, {SLOTR}
    s_add_u32 {s(sPo)}, {s(sPo)}, {PARTR}
    s_add_u32 {s(sYo)}, {s(sYo)}, {YPR}
    s_add_u32 {s(sYh)}, {s(sYh)}, {YHR}
    s_branch L_frnd
    L_f7:
    ds_read_b32 {v(vTag+1)}, {v(vFl)}
    v_mov_b32 {v(vSig)}, 0xbfb8aa3b
    {f'v_add_u32 {v(t+8)}, -28, {v(vDP)}' if not cfg.sb else ''}
    v_lshlrev_b32 {v(t+9)}, 1, {v(vN)}
    s_waitcnt lgkmcnt(0)
    v_readfirstlane_b32 {s(sKey)}, {v(vTag+1)}
    s_ashr_i32 {s(sT)}, {s(sKey)}, 31
    s_orn2_b32 {s(sT)}, 0x80000000, {s(sT)}
    s_xor_b32 {s(sT)}, {s(sT)}, {s(sKey)}
    v_mul_f32 {v(vSig)}, {s(sT)}, {v(vSig)}
    v_exp_f32 {v(vSig)}, {v(vSig)}
    v_add_f32 {v(vSig)}, 1.0, {v(vSig)}
    v_rcp_f32 {v(vSig)}, {v(vSig)}
    """)
    W7=T-6
    if cfg.sb:
        a(f'v_add_u32 {v(t+8)}, {-7*128}, {v(vHR)}\ns_cmp_lg_u32 {s(sRnd)}, 0\ns_cbranch_scc1 L_f7b\nv_add_u32 {v(t+10)}, {-7*1024}, {v(T+9)}')
        for k in range(7):
            a(f'ds_read_b64_tr_b16 {v(t+12+4*k,2)}, {v(t+10)} offset:{F_WD+1024*k}\nds_read_b64_tr_b16 {v(t+14+4*k,2)}, {v(t+10)} offset:{F_WD+1024*k+128}')
        a(f'L_f7b:\ns_waitcnt lgkmcnt(0)\ns_barrier')
        for k in range(7): a(f'ds_read_b128 {v(WA+4*k if k<5 else 80+4*(k-5),4)}, {v(t+8)} offset:{128*k}')
        hint_store(vTag, sYh, 'L_fyh')
        for k in range(7):
            a(f's_waitcnt lgkmcnt({6-k})\nv_mfma_f32_16x16x32_bf16 {v(t,4)}, {v(WA+4*k if k<5 else 80+4*(k-5),4)}, {v(t+12+4*k,4)}, '+('0' if k==0 else v(t,4)))
    else:
        a(f's_barrier\nds_read_b128 {v(t,4)}, {v(t+8)}\nds_read_b96 {v(t+4,3)}, {v(t+8)} offset:16')
        hint_store(vTag, sYh, 'L_fyh')
        a(f"""
        s_waitcnt lgkmcnt(1)
        v_pk_add_f32 {v(t,2)}, {v(t,2)}, {v(t+2,2)}
        v_add_f32 {v(t)}, {v(t)}, {v(t+1)}
        s_waitcnt lgkmcnt(0)
        v_add_f32 {v(t+4)}, {v(t+4)}, {v(t+5)}
        v_add_f32 {v(t)}, {v(t)}, {v(t+6)}
        v_add_f32 {v(t)}, {v(t)}, {v(t+4)}
        """)
    a(f"""
    v_mul_f32 {v(t)}, {v(t)}, {v(vSig)}
    v_mov_b32_dpp {v(t+1)}, {v(t)} quad_perm:[1,1,3,3] {DPP}
    s_mov_b64 exec, 0x5555
    v_cvt_pk_bf16_f32 {v(t)}, {v(t)}, {v(t+1)}
    buffer_store_dword {v(t)}, {v(t+9)}, {WS}, {s(sYo)} offen sc1
    """)
    if cfg.eh: a('s_mov_b64 exec, -1')
    else: hint_store(vTag, sYh, 'L_fyh')
    a(f"""
    s_branch L_fnext
    L_fslowtab:
    v_and_b32 {v(t+16)}, 7, {v(vLane)}
    v_lshlrev_b32 {v(t+16)}, 7, {v(t+16)}
    s_mov_b32 {s(sT+10)}, {TABG}
    L_ftab2:
    buffer_load_dword {v(t+4)}, {v(t+16)}, {WS}, {s(sT+10)} offen sc1
    s_waitcnt vmcnt(0)
    v_cmp_ne_u32 vcc, {s(sTag)}, {v(t+4)}
    """)
    poll_branch('L_ftab2', 8)
    a('s_branch L_fi2\nL_fend:')
    dump_stamps()
    a('s_endpgm')

def build():
    hdr=open('ref.txt').read().split('; @launch')[0]
    a.raw(hdr+f'; @launch grid=({NWG},1,1) block=(512,1,1) lds={LDS_TOTAL}')
    a.raw(f'''; generated by gen/gen.py (hand-written generator): persistent FFT-structured FNet + MoD kernel
.amdgcn_target "amdgcn-amd-amdhsa--gfx950"
.text
.globl {NAME}_kernel
.p2align {cfg.al}
.p2align 8
.type {NAME}_kernel,@function
{NAME}_kernel:''')
    if cfg.st0: a(f's_memrealtime s[88:89]\ns_waitcnt lgkmcnt(0)')
    a(f'''
    s_load_dwordx2 s[12:13], s[0:1], 0
    s_load_dwordx2 s[8:9], s[0:1], 96
    ''')
    if cfg.codepf==3: a(f'''
    s_getpc_b64 {s(sT+6,2)}
    L_pc:
    v_lshlrev_b32 v3, 6, v0
    v_cmp_gt_u32 vcc, L_end-L_pc, v3
    s_cmp_lt_u32 s2, {cfg.pfn}
    s_cselect_b64 exec, vcc, 0
    s_cbranch_execz L_npf ;!nd
    global_load_dword {v(vTG)}, v3, {s(sT+6,2)}
    L_npf:
    s_mov_b64 exec, -1
    ''')
    a(f'''
    s_load_dwordx8 s[16:23], s[0:1], 48
    s_load_dwordx2 s[28:29], s[0:1], 80
    v_and_b32 {v(vN)}, 15, v0
    v_bfe_u32 {v(vQ)}, v0, 4, 2
    v_lshrrev_b32 v2, 6, v0
    v_lshlrev_b32 {v(vUW)}, 7, v2
    v_lshl_add_u32 {v(vUW)}, {v(vN)}, 3, {v(vUW)}                ; 128w+8n
    v_lshl_add_u32 {v(vXoff)}, {v(vQ)}, 19, {v(vUW)}
    s_and_b32 {s(sX)}, s2, 7
    s_lshr_b32 {s(sJ)}, s2, 3
    s_and_b32 {s(sGg)}, {s(sJ)}, 15
    s_lshl4_add_u32 {s(sGg)}, {s(sGg)}, {s(sX)}
    s_sub_u32 {s(sMP)}, 256, {s(sGg)}
    s_bitcmp1_b32 {s(sJ)}, 4
    s_cselect_b32 {s(sGg)}, {s(sMP)}, {s(sGg)}
    s_cselect_b32 {s(sMP)}, 0x80008000, 0
    s_cmp_eq_u32 {s(sX)}, 0
    s_cselect_b32 {s(sGg)}, s2, {s(sGg)}
    s_cselect_b32 {s(sMP)}, 0, {s(sMP)}
    s_lshl_b32 {s(sRow0)}, {s(sGg)}, 10
    s_add_u32 {s(sRow1)}, {s(sRow0)}, 0x40000
    s_mov_b32 s14, 0x200000
    s_mov_b32 s15, 0x20000
    v_readfirstlane_b32 {s(sW)}, v2
    ''')
    pfc=f'''
    s_getpc_b64 {s(sT+6,2)}
    L_pc:
    v_lshlrev_b32 v3, 6, v0
    v_cmp_gt_u32 vcc, L_end-L_pc, v3
    s_xor_b32 {s(sT)}, s2, {cfg.pfx}
    s_and_b32 {s(sT)}, {s(sT)}, {cfg.pfm2}
    s_cselect_b64 vcc, 0, vcc
    s_cbranch_vccz L_npf ;!nd
    s_mov_b64 exec, vcc
    global_load_dword {v(vTG)}, v3, {s(sT+6,2)}
    s_mov_b64 exec, -1
    L_npf:
    '''
    if cfg.codepf==1: a(pfc)
    a(f'''
    s_cmp_ge_u32 s2, 256
    s_cbranch_scc1 L_nox ;!nd
    s_waitcnt lgkmcnt(0)
    buffer_load_dwordx2 {v(BC,2)}, {v(vXoff)}, {XS}, {s(sRow0)} offen
    buffer_load_dwordx2 {v(BC+2,2)}, {v(vXoff)}, {XS}, {s(sRow1)} offen
    L_nox:
    {pfc if cfg.codepf==2 else ''}
    s_cmp_ge_u32 s2, {NWG}
    s_cbranch_scc1 L_end
    {'s_waitcnt lgkmcnt(0)' if cfg.wsoff else ''}
    {f's_add_u32 s8, s8, {cfg.wsoff<<20}' if cfg.wsoff else ''}
    {'s_addc_u32 s9, s9, 0' if cfg.wsoff else ''}
    v_and_b32 {v(vLane)}, 63, v0
    s_mov_b32 s10, {WSSZ}
    s_mov_b32 s11, 0x20000
    s_mov_b32 s30, 0x200000
    s_mov_b32 s31, 0x20000
    v_mov_b32 {v(SENT)}, -1
    v_mov_b32 {v(SENT+1)}, -1
    v_mov_b32 {v(SENT+2)}, -1
    v_mov_b32 {v(SENT+3)}, -1
    v_lshlrev_b32 {v(vL8)}, 3, v0
    v_and_b32 {v(vL8)}, 0xf8, {v(vL8)}
    s_mov_b32 {s(sCnt)}, 200000
    s_mov_b32 {s(sM7FF)}, 0x7ff
    s_lshl_b32 {s(sTabLd)}, {s(sX)}, 8
    s_add_u32 {s(sTabLd)}, {s(sTabLd)}, {TABL}
    s_getreg_b32 {s(sXcc)}, hwreg(HW_REG_XCC_ID, 0, 4)
    ''')
    if cfg.force_slow: a(f's_mov_b32 {s(sXcc)}, {s(sJ)}')
    if cfg.stamps:
        a(f's_mov_b32 {s(sStampI)}, 0\nv_mov_b32 {v(vSTMP)}, 0')
        a(f's_memrealtime {s(sTS,2)}\ns_memtime {s(sTS+2,2)}\ns_waitcnt lgkmcnt(0)\nv_writelane_b32 {v(vSTMP)}, {s(sTS)}, 63\nv_writelane_b32 {v(vSTMP)}, {s(sTS+2)}, 62')
        a(f'v_writelane_b32 {v(vSTMP)}, {s(sT+6)}, 57')
        if cfg.st0: a(f'v_writelane_b32 {v(vSTMP)}, {s(sTS)}, 58\nv_writelane_b32 {v(vSTMP)}, s88, 63\ns_memrealtime {s(sTS,2)}\ns_waitcnt lgkmcnt(0)\nv_writelane_b32 {v(vSTMP)}, {s(sTS)}, 59')
    a('''s_cmp_ge_u32 s2, 256
    s_cbranch_scc1 L_ffn''')
    if cfg.prio: a(f's_setprio 2\ns_cmp_gt_u32 {s(sW)}, 1\ns_cbranch_scc1 L_np\ns_setprio 3\nL_np:')
    main_prologue()
    main_loop()
    ffn()
    a('L_end:\ns_endpgm')
    a.raw(f'''.section .rodata,"a"
.p2align 6
.amdhsa_kernel {NAME}_kernel
  .amdhsa_next_free_vgpr 128
  .amdhsa_next_free_sgpr 96
  .amdhsa_accum_offset 128
  .amdhsa_group_segment_fixed_size 0
  .amdhsa_kernarg_size 104
  .amdhsa_user_sgpr_count 2
  .amdhsa_user_sgpr_kernarg_segment_ptr 1
  .amdhsa_system_sgpr_workgroup_id_x 1
.end_amdhsa_kernel''')
    return a.text()
if __name__=='__main__':
    out=sys.argv[1]
    for kv in sys.argv[2:]:
        k,val=kv.split('='); assert hasattr(cfg,k); setattr(cfg,k,int(val))
    open(out,'w').write(build())
    print('instrs',a.count,'nops',a.nops)
```

```python
import sys, struct
from asmlib import Asm
NAME='interleave_layers__spectral_fnet__moe_arch_mod__prompt'
def fbits(x): return '0x%08x' % struct.unpack('<I', struct.pack('<f', x))[0]

class Cfg:
    stamps=0
    tim_arg=14
    tim_y=0
    tim_h=0
    slp_g=2
    slp_l=1
    force_slow=0
    prio=1
    codepf=1
    exp=0
    gre=0
    cfl=0
    tlb=0
    wsoff=0
    st0=0
    cal=-1
    calwg=0
    dbgout=0
    dry=0
    wb=0
    fdelay=0
    gdelay=0
    osc=1
    odel=0
    pfm=7
    clr2=0
    nb0=0
    ehint=0
    post=0
    slp_t=0
    aft=0
    g2pos=3
    spr=1
    twice=1
    lastp=2
    hot=1
    gw=0
    gul=0
    xpos=1
    tdel=26
    pub0=1
    al=12
    ep0=1
    ypos=2
    lnt=3
    dg=0
    hs=0
    ub=1
    dg2=0
    ehd=0
    dgl=0
    tim_r=0
    sb=0
    mg=1
    w7=0
    ff=1
    ht=1
    nw=3
    pfx=0
    pfn=16
    pfm2=0x118
    xw=0
    dr=0
    xe=0
    wpos=0
    wpf=2
    dl=0
    smask=0
    dp=2
    dx=0
    tim_a1=14
    tim_wd=1
    tim_fh=12
    wdpos=3
    slp_p=1
    tim_p=6
    hold=1
    tim_gy=0
    eh=3
    own=1
    tim_y3=0
    beh=1
    gbb=0
    slp_f=2
    early=4
    tim_a0=0
    wbd=12
    gbdelay=4
    late=1
    split=0
    tch=1
cfg=Cfg()

TABG=0x1000; TABGR=0x6000
TABL=0x2000; ARGR=0x800
TAB2=0x3800
SLOWF=0x4000
YHINT=0x5000; YHR=0x800
FTAB=0x6000
CLR0=0x8000
YP=0x8000; YPR=0x2000
PART=0x20000; PARTR=0x10000
SLOT=0x10000; SLOTR=0x8000
LBASE=0x40000; PS=8448; LX=32*PS
GBASE=0x260000; GS=131072+768; GR=0x110000
STAMP=0x700000
WSSZ=0x800000
NWG=512
NST=(13,9,7)
L_STAT=0; L_U=0x400; L_YI=0x2400; YIS=288; L_YT=0x4C00; L_DH=0x6E00; L_FLAG=0x7E00; L_ROW=0x7E80; LDS_TOTAL=0x8280
L_CX=0x2400
def v(a,n=1): return f'v{a}' if n==1 else f'v[{a}:{a+n-1}]'
def s(a,n=1): return f's{a}' if n==1 else f's[{a}:{a+n-1}]'

WS='s[8:11]'; XS='s[12:15]'; OS='s[28:31]'
sW=3; sX=26; sJ=27; sIt=32; sTag=33; sFast=34; sKey=35; sMir=36; sDsc=38
sLst=39; sLld=40; sPh=41; sTabG=42; sG0=43; sG4=44; sTabSt=45; sTabLd=46; sSlot=47; sRow0=48; sRow1=49; sCnt=50
sXcc=51; sStampI=37
sK512=52
sTry=53
sEps=54
sC16=56
sSc=58
sM7FF=60; sTop=61
sQmask=62
sT=64
sNx=84; sSg=85; sYo=86; sYh=87
sGg=4; sMP=5
sTS=80
X=2; WV=10; A8=14; XA=16; B1C=20; B1S=24; B1N=28; TWC=32; TWS=36; A2R=40; A2I=44; YC=48; YS=52
AD=56; BC=58
vXoff=72; vStW=73; vStR=74; vUW=75; vUR=76; vLst=77; vLld=78; vLldM=79; vYIW=80; vYIR=81; vYW=82; vYR=83; vGst=84; vGld=85
vSc0=86; vL8=88; vInv=89; vN=90; vQ=91; vSTMP=1; vLane=92; vTG=93
LNP=94; MM=98; RS2=100
T=102
class Asm2(Asm):
    def __call__(self, text):
        parts=text.split(';@F')
        for i,p in enumerate(parts):
            if i: fstamp()
            Asm.__call__(self,p)
a=Asm2()
def poll_branch(lbl, sleep=1, pre='', giveup=None, skip=False, mask=False):
    k=a.lines.index(lbl+':')
    if mask:
        pre+='\ns_mov_b64 exec, vcc'; skip=True
        k2=next(i for i in range(k,len(a.lines)) if 's_waitcnt vmcnt(0)' in a.lines[i])
        k3=max(i for i in range(k,k2) if 'buffer_load' in a.lines[i])
        a.lines.insert(k3+1,'    s_mov_b64 exec, -1')
    if a.lines[k-1].strip().startswith(('s_branch','s_endpgm')): skip=False
    a(f's_cbranch_vccnz {lbl}_r ;!nd')
    st=[]
    if skip: st.append(f'    s_branch {lbl}')
    st.append(f'{lbl}_r:')
    if giveup: st+= [f'    s_sub_u32 {s(sTry)}, {s(sTry)}, 1', f'    s_cbranch_scc1 {giveup}']
    else: st+= [f'    s_sub_u32 {s(sCnt)}, {s(sCnt)}, 1', '    s_cbranch_scc1 L_end']
    st+= ['    '+x.strip() for x in pre.split('\n') if x.strip()]
    if sleep: st.append(f'    s_sleep {sleep}')
    a.lines[k:k]=st
nst=0
def fstamp():
    if cfg.stamps in (2,3): stamp()
def stamp():
    global nst
    nst+=1
    if not cfg.stamps or (cfg.stamps==4 and not (cfg.smask>>(nst-1))&1): return
    a(f'''{'s_memtime' if cfg.stamps==2 else 's_memrealtime'} {s(sTS,2)}
    s_waitcnt lgkmcnt(0)
    s_mov_b32 m0, {s(sStampI)}
    s_add_u32 {s(sStampI)}, {s(sStampI)}, 1
    v_writelane_b32 {v(vSTMP)}, {s(sTS)}, m0''')
def dump_stamps():
    if not cfg.stamps: return
    a(f's_memrealtime {s(sTS,2)}\ns_memtime {s(sTS+2,2)}\ns_waitcnt lgkmcnt(0)\nv_writelane_b32 {v(vSTMP)}, {s(sTS)}, 61\nv_writelane_b32 {v(vSTMP)}, {s(sTS+2)}, 60')
    if cfg.cal>=0:
        lab='L_cal%d'%len(a.lines)
        a(f'''s_cmp_lg_u32 s2, {cfg.calwg}
        s_cbranch_scc1 {lab}
        s_cmp_lg_u32 {s(sW)}, 0
        s_cbranch_scc1 {lab}
        v_readlane_b32 {s(sT)}, {v(vSTMP)}, {cfg.cal}
        v_readlane_b32 {s(sT+1)}, {v(vSTMP)}, 63
        s_sub_u32 {s(sT)}, {s(sT)}, {s(sT+1)}
        s_lshl_b32 {s(sT)}, {s(sT)}, 2
        s_add_u32 {s(sT)}, {s(sT)}, 3000
        s_min_u32 {s(sT)}, {s(sT)}, 50000
        {lab}_l:
        s_memrealtime {s(sTS,2)}
        s_waitcnt lgkmcnt(0)
        s_sub_u32 {s(sT+2)}, {s(sTS)}, {s(sT+1)}
        s_cmp_lt_u32 {s(sT+2)}, {s(sT)}
        s_cbranch_scc1 {lab}_l
        {lab}:''')
        return
    a(f'''s_lshl_b32 {s(sT)}, s2, 11
    s_lshl_b32 {s(sT+1)}, {s(sW)}, 8
    s_add_u32 {s(sT)}, {s(sT)}, {s(sT+1)}
    s_add_u32 {s(sT)}, {s(sT)}, {STAMP}
    v_lshlrev_b32 {v(vLane)}, 2, {v(vLane)}
    buffer_store_dword {v(vSTMP)}, {v(vLane)}, {WS}, {s(sT)} offen''')
def maxchk(regs, t):
    regs=list(regs)
    a(f'v_max3_u32 {v(t)}, {v(regs[0])}, {v(regs[1])}, {v(regs[2])}')
    rest=regs[3:]
    while len(rest)>=2:
        a(f'v_max3_u32 {v(t)}, {v(t)}, {v(rest[0])}, {v(rest[1])}'); rest=rest[2:]
    if rest: a(f'v_max_u32 {v(t)}, {v(t)}, {v(rest[0])}')
    a(f'v_cmp_eq_u32 vcc, -1, {v(t)}')
def phchk(regs, t):
    regs=list(regs)
    a(f'v_bitop3_b32 {v(t)}, {v(regs[0])}, {v(regs[1])}, {s(sPh)} bitop3:0x7e')
    for r in regs[2:]: a(f'v_bitop3_b32 {v(t)}, {v(t)}, {v(r)}, {s(sPh)} bitop3:0xf6')
    a(f'v_and_b32 {v(t)}, 1, {v(t)}\nv_cmp_ne_u32 vcc, 0, {v(t)}')
def tag4chk(r):
    for k in range(4): a(f'v_xor_b32 {v(r+k)}, {s(sTag)}, {v(r+k)}')
    a(f'v_or3_b32 {v(r)}, {v(r)}, {v(r+1)}, {v(r+2)}\nv_or_b32 {v(r)}, {v(r)}, {v(r+3)}\nv_cmp_ne_u32 vcc, 0, {v(r)}')
DPP='row_mask:0xf bank_mask:0xf'

def fft_core(xr, xi, U, V, F, P):
    Ur,Ui=U,U+4; Vr,Vi=V,V+4
    if cfg.ff:
        a(f"""
        s_waitcnt lgkmcnt(2)
        v_mfma_f32_16x16x32_f16 {v(Ur,4)}, {v(xr,4)}, {v(B1C,4)}, 0
        v_mfma_f32_16x16x32_f16 {v(Ui,4)}, {v(xr,4)}, {v(B1N,4)}, 0
        s_waitcnt lgkmcnt(0)
        v_mfma_f32_16x16x32_f16 {v(Ur,4)}, {v(xi,4)}, {v(B1S,4)}, {v(Ur,4)}
        v_mfma_f32_16x16x32_f16 {v(Ui,4)}, {v(xi,4)}, {v(B1C,4)}, {v(Ui,4)}
        v_pk_mul_f32 {v(Vi,2)}, {v(Ur,2)}, {v(TWS,2)}
        v_pk_mul_f32 {v(Vr,2)}, {v(Ur,2)}, {v(TWC,2)}
        v_pk_fma_f32 {v(Vi,2)}, {v(Ui,2)}, {v(TWC,2)}, {v(Vi,2)} neg_lo:[0,0,1] neg_hi:[0,0,1]
        v_pk_fma_f32 {v(Vr,2)}, {v(Ui,2)}, {v(TWS,2)}, {v(Vr,2)}
        v_pk_mul_f32 {v(Vi+2,2)}, {v(Ur+2,2)}, {v(TWS+2,2)}
        v_pk_mul_f32 {v(Vr+2,2)}, {v(Ur+2,2)}, {v(TWC+2,2)}
        v_pk_fma_f32 {v(Vi+2,2)}, {v(Ui+2,2)}, {v(TWC+2,2)}, {v(Vi+2,2)} neg_lo:[0,0,1] neg_hi:[0,0,1]
        v_pk_fma_f32 {v(Vr+2,2)}, {v(Ui+2,2)}, {v(TWS+2,2)}, {v(Vr+2,2)}
        """)
    else:
        a('s_waitcnt lgkmcnt(0)')
        a(f'v_mfma_f32_16x16x32_f16 {v(Ur,4)}, {v(xr,4)}, {v(B1C,4)}, 0')
        a(f'v_mfma_f32_16x16x32_f16 {v(Ui,4)}, {v(xr,4)}, {v(B1N,4)}, 0')
        a(f'v_mfma_f32_16x16x32_f16 {v(Ur,4)}, {v(xi,4)}, {v(B1S,4)}, {v(Ur,4)}')
        a(f'v_mfma_f32_16x16x32_f16 {v(Ui,4)}, {v(xi,4)}, {v(B1C,4)}, {v(Ui,4)}')
        for h in (0,2): a(f'v_pk_mul_f32 {v(Vi+h,2)}, {v(Ur+h,2)}, {v(TWS+h,2)}')
        for h in (0,2): a(f'v_pk_mul_f32 {v(Vr+h,2)}, {v(Ui+h,2)}, {v(TWS+h,2)}')
        for h in (0,2):
            a(f'v_pk_fma_f32 {v(Vr+h,2)}, {v(Ur+h,2)}, {v(TWC+h,2)}, {v(Vr+h,2)}')
            a(f'v_pk_fma_f32 {v(Vi+h,2)}, {v(Ui+h,2)}, {v(TWC+h,2)}, {v(Vi+h,2)} neg_lo:[0,0,1] neg_hi:[0,0,1]')
    for r in range(4): a(f'v_cvt_pk_f16_f32 {v(P+r)}, {v(Vr+r)}, {v(Vi+r)}')
    a(f'v_mfma_f32_16x16x32_f16 {v(F,4)}, {v(A2R,4)}, {v(P,4)}, 0')
    a(f'v_mfma_f32_16x16x32_f16 {v(F+4,4)}, {v(A2I,4)}, {v(P,4)}, 0')

SENT=T+4
def g2late():
    return '\n'.join(f'v_mov_b32 {v(LNP+k)}, -1' for k in range(4))+f'\ns_mov_b32 {s(sT+14)}, {GBASE+GR}\nbuffer_store_dwordx4 {v(LNP,4)}, {v(vGst)}, {WS}, {s(sT+14)} offen sc1'

def main_prologue():
    t=T
    X0=BC
    a(f'''
    s_mul_i32 {s(sLld)}, {s(sX)}, {LX}
    s_add_u32 {s(sLld)}, {s(sLld)}, {LBASE}
    s_mul_i32 {s(sLst)}, {s(sJ)}, {PS}
    s_add_u32 {s(sLst)}, {s(sLst)}, {s(sLld)}
    v_lshlrev_b32 {v(t)}, 4, v0
    v_lshrrev_b32 {v(t+1)}, 4, v0
    {f's_load_dword {s(sTag)}, s[8:9], 0' if not cfg.ep0 else ''}
    ''')
    a(f'''
    buffer_load_dwordx4 {v(X0+8,4)}, {v(t)}, {WS}, {s(sLst)} offen sc1
    s_mov_b32 {s(sG0)}, {GBASE}
    s_mul_i32 {s(sT)}, {s(sX)}, {GS}
    s_add_u32 {s(sT+2)}, {s(sJ)}, 24
    s_and_b32 {s(sT+2)}, {s(sT+2)}, 24
    s_lshl_b32 {s(sT+2)}, {s(sT+2)}, 12
    s_add_u32 {s(sT)}, {s(sT)}, {s(sT+2)}
    s_cmp_gt_u32 {s(sW)}, 3
    {f's_cselect_b32 {s(sT)}, s10, {s(sT)}' if cfg.g2pos!=7 else ''}
    {f's_cselect_b32 {s(sT+5)}, {GBASE+GR-32768}, {s(sG0)}' if cfg.g2pos==7 else ''}
    {f's_cselect_b32 {s(sT+6)}, s10, 0' if cfg.g2pos==7 else ''}
    s_and_b32 {s(sT+2)}, {s(sJ)}, 7
    s_cmp_lt_u32 {s(sJ)}, 8
    s_cselect_b32 {s(sT+3)}, 7, 8
    s_cselect_b32 {s(sT+4)}, 112, 0
    s_lshl_b32 {s(sT+2)}, {s(sT+2)}, {s(sT+3)}
    s_add_u32 {s(sT)}, {s(sT)}, {s(sT+2)}
    v_lshlrev_b32 {v(t+2)}, 4, {v(vN)}
    v_lshl_add_u32 {v(vGst)}, {v(t+1)}, 11, {v(t+2)}
    v_and_b32 {v(t+3)}, 8, {v(vN)}
    v_mad_u32_u24 {v(vGst)}, {v(t+3)}, {s(sT+4)}, {v(vGst)}
    v_add_u32 {v(vGst)}, {s(sT)}, {v(vGst)}
    ''')
    a(f'''
    buffer_store_dwordx4 {v(SENT,4)}, {v(vGst)}, {WS}, {s(sG0 if cfg.g2pos!=7 else sT+5)} offen sc1
    {f'v_add_u32 {v(vGst)}, {s(sT+6)}, {v(vGst)}' if cfg.g2pos==7 else ''}
    v_and_b32 {v(BC+6)}, 0x3f0, {v(t)}
    global_load_dwordx2 {v(BC+4,2)}, {v(vUW)}, s[16:17]
    global_load_dwordx4 {v(WV,4)}, {v(BC+6)}, s[16:17]
    s_cmp_lg_u32 {s(sW)}, 0
    s_cbranch_scc1 L_nw0 ;!nd
    buffer_load_dword {v(BC+12)}, off, {WS}, 0 sc1
    buffer_load_dword {v(X0+7)}, {v(vL8)}, {WS}, {s(sTabLd)} offen sc1
    s_and_b32 {s(sT+14)}, {s(sJ)}, 24
    s_add_u32 {s(sT+14)}, {s(sT+14)}, {s(sX)}
    s_and_b32 {s(sT+13)}, {s(sJ)}, 7
    s_lshl3_add_u32 {s(sT+15)}, {s(sT+14)}, {s(sT+13)}
    s_lshl_b32 {s(sT+15)}, {s(sT+15)}, 10
    s_cmp_lt_u32 {s(sT+14)}, 4
    s_cselect_b32 {s(sT+15)}, s10, {s(sT+15)}
    buffer_store_dwordx4 {v(SENT,4)}, {v(t)}, {WS}, {s(sT+15)} offen sc1
    L_nw0:
    ''')
    if cfg.exp&2: stamp(); a('s_waitcnt vmcnt(4)'); stamp()
    c=t+8; co,si=c+8,c+12
    a(f'''
    s_lshr_b32 {s(sT)}, {s(sJ)}, 2
    s_and_b32 {s(sT)}, {s(sT)}, 6                 ; 2*(j>>3)
    s_lshl_b32 {s(sT+1)}, {s(sW)}, 2
    s_and_b32 {s(sT+1)}, {s(sT+1)}, 8             ; 2*4*((w>>1)&1)
    s_cmp_lt_u32 {s(sJ)}, 8
    s_cselect_b32 {s(sT)}, {s(sT+1)}, {s(sT)}
    s_cselect_b32 {s(sT+4)}, 0, -1
    s_mov_b32 {s(sT+5)}, 0x44440054
    s_cmp_eq_u32 {s(sX)}, 0
    s_cselect_b32 {s(sT+4)}, 1, {s(sT+4)}
    s_cselect_b32 {s(sT+5)}, {s(sT+5)}, 0x55550054
    s_cselect_b32 {s(sT+2)}, 0, 1
    s_lshl_b32 {s(sT)}, {s(sT)}, {s(sT+2)}
    s_lshl_b32 {s(sT+1)}, {s(sW)}, 4
    s_and_b32 {s(sT+1)}, {s(sT+1)}, 16            ; 16*(w&1)
    s_mul_i32 {s(sT+2)}, {s(sT+1)}, {s(sT+4)}
    s_cmp_ge_u32 {s(sW)}, 4
    s_cselect_b32 {s(sT+2)}, {s(sT+2)}, 0         ; +-16k
    s_cselect_b32 {s(sT)}, {s(sT)}, 0
    s_cmp_eq_u32 {s(sW)}, 3
    s_cselect_b32 {s(sT)}, 16, {s(sT)}
    s_lshl_b32 {s(sT+3)}, {s(sW)}, 2
    s_lshr_b32 {s(sT+3)}, {s(sT+5)}, {s(sT+3)}
    s_and_b32 {s(sT+3)}, {s(sT+3)}, 15            ; log2 A
    v_lshlrev_b32 {v(c)}, {s(sT+3)}, {v(vN)}
    v_add_u32 {v(c)}, {s(sT)}, {v(c)}
    v_lshl_add_u32 {v(c+1)}, {v(vQ)}, 2, {s(sT+2)}
    v_cvt_f32_u32 {v(c)}, {v(c)}
    v_cvt_f32_i32 {v(c+1)}, {v(c+1)}
    s_mov_b32 {s(sK512)}, {fbits(1/512)}
    v_mul_f32 {v(c)}, {s(sK512)}, {v(c)}
    v_mul_f32 {v(c+4)}, {v(c+1)}, {v(c)}
    v_add_f32 {v(c+5)}, {v(c+4)}, {v(c)}
    v_add_f32 {v(c+6)}, {v(c+5)}, {v(c)}
    v_add_f32 {v(c+7)}, {v(c+6)}, {v(c)}
    ''')
    fill=[f's_mov_b32 {s(sEps)}, {fbits(1e-5)}', f's_mov_b32 {s(sEps+1)}, {fbits(1e-5)}', f's_mov_b32 {s(sC16)}, {fbits(1/16)}', f's_mov_b32 {s(sC16+1)}, {fbits(1/16)}',
          f's_mov_b32 {s(sTop)}, 0x80000000', f's_mov_b32 {s(sQmask)}, 0x11111111', f's_mov_b32 {s(sQmask+1)}, 0x11111111', f's_mov_b32 {s(sG4)}, {GBASE+4*GS}']
    for r in range(4):
        a(f'v_cos_f32 {v(co+r)}, {v(c+4+r)}'); a(fill[2*r])
        a(f'v_sin_f32 {v(si+r)}, {v(c+4+r)}'); a(fill[2*r+1])
    a(f'''
    s_lshl_b32 {s(sT)}, {s(sW)}, 11
    s_add_u32 {s(sT)}, {s(sT)}, {L_CX}
    v_lshlrev_b32 {v(c+2)}, 4, {v(vLane)}
    v_add_u32 {v(c+3)}, {s(sT)}, {v(c+2)}
    s_and_b32 {s(sT)}, {s(sW)}, 6
    s_cmp_eq_u32 {s(sT)}, 2
    s_cbranch_scc1 L_cw
    s_cmp_eq_u32 {s(sW)}, 1
    s_cbranch_scc1 L_cri
    v_cvt_pk_f16_f32 {v(co)}, {v(co)}, {v(co+1)}
    v_cvt_pk_f16_f32 {v(co+1)}, {v(co+2)}, {v(co+3)}
    v_cvt_pk_f16_f32 {v(co+2)}, {v(si)}, {v(si+1)}
    v_cvt_pk_f16_f32 {v(co+3)}, {v(si+2)}, {v(si+3)}
    s_branch L_cw
    L_cri:
    ''')
    for r in range(4):
        a(f'v_cvt_pk_f16_f32 {v(c+4)}, {v(co+r)}, {v(si+r)}')
        a(f'v_cvt_pk_f16_f32 {v(si+r)}, -{v(si+r)}, {v(co+r)}')
        a(f'v_mov_b32 {v(co+r)}, {v(c+4)}')
        a(f'v_xor_b32 {v(si+r)}, {s(sMP)}, {v(si+r)}')
    a(f'''
    L_cw:
    ds_write_b128 {v(c+3)}, {v(co,4)}
    ds_write_b128 {v(c+3)}, {v(si,4)} offset:1024
    v_lshrrev_b32 {v(c+4)}, 2, {v(vN)}
    v_and_b32 {v(c+5)}, 2, {v(vN)}
    v_and_b32 {v(c+6)}, 14, {v(vN)}
    v_cmp_eq_u32 vcc, 2, {v(c+6)}
    v_lshlrev_b32 {v(vStR)}, 8, {v(vQ)}
    v_cndmask_b32 {v(c+4)}, {v(c+4)}, 4, vcc
    v_cndmask_b32 {v(c+5)}, {v(c+5)}, 0, vcc
    v_mul_u32_u24 {v(c+6)}, {v(c+4)}, {v(vQ)}
    v_lshl_add_u32 {v(c+6)}, {v(c+6)}, 1, {v(c+5)}
    v_add_u32 {v(c+7)}, {v(c+6)}, {v(c+4)}
    v_cvt_f32_u32 {v(c+6)}, {v(c+6)}
    v_cvt_f32_u32 {v(c+7)}, {v(c+7)}
    v_mul_f32 {v(c+6)}, 0x3e000000, {v(c+6)}
    v_mul_f32 {v(c+7)}, 0x3e000000, {v(c+7)}
    v_cos_f32 {v(c+6)}, {v(c+6)}
    v_cos_f32 {v(c+7)}, {v(c+7)}
    v_and_b32 {v(c+5)}, 1, {v(vN)}
    v_cmp_eq_u32 vcc, 0, {v(c+5)}
    v_cvt_pk_f16_f32 {v(c+6)}, {v(c+6)}, {v(c+7)}
    v_mov_b32 {v(c+5)}, 0x80008000
    v_cndmask_b32 {v(A8)}, 0, {v(c+6)}, vcc
    v_cndmask_b32 {v(A8+1)}, {v(c+6)}, 0, vcc
    v_cndmask_b32 {v(c+5)}, {v(c+5)}, 0, vcc
    s_lshl_b32 {s(sT+1)}, {s(sT+1)}, 7            ; h*2048
    v_add_u32 {v(c+6)}, {s(sT+1)}, {v(c+2)}
    s_lshl_b32 {s(sT+2)}, {s(sW)}, 10
    s_and_b32 {s(sT+2)}, {s(sT+2)}, 4096          ; (w>>2)*4096
    v_add_u32 {v(c+7)}, {s(sT+2)}, {v(c+2)}
    ''')
    if cfg.exp&4: stamp()
    a(f'''
    s_waitcnt lgkmcnt(0)
    s_barrier
    ''')
    if cfg.exp&4: stamp()
    a(f'''
    ds_read_b128 {v(B1N,4)}, {v(c+2)} offset:{L_CX}
    ds_read_b128 {v(A2R,4)}, {v(c+2)} offset:{L_CX+2048}
    ds_read_b128 {v(A2I,4)}, {v(c+2)} offset:{L_CX+2048+1024}
    ds_read_b128 {v(TWC,4)}, {v(c+6)} offset:{L_CX+4096}
    ds_read_b128 {v(TWS,4)}, {v(c+6)} offset:{L_CX+4096+1024}
    ds_read2st64_b64 {v(YC,4)}, {v(c+7)} offset0:{(L_CX+4*2048)//512} offset1:{(L_CX+5*2048)//512}
    v_add_u32 {v(c+7)}, 8, {v(c+7)}
    ds_read2st64_b64 {v(YS,4)}, {v(c+7)} offset0:{(L_CX+4*2048)//512} offset1:{(L_CX+5*2048)//512}
    v_and_b32 {v(c+4)}, 4, {v(vN)}
    s_lshl_b32 {s(sT)}, {s(sW)}, 2
    v_lshl_add_u32 {v(vStW)}, {v(t+3)}, 2, {v(vStR)}
    v_lshl_add_u32 {v(vStW)}, {v(c+4)}, 4, {v(vStW)}
    v_add_u32 {v(vStW)}, {s(sT)}, {v(vStW)}
    v_and_b32 {v(c+4)}, 7, {v(vN)}
    v_lshl_add_u32 {v(vStR)}, {v(c+4)}, 5, {v(vStR)}
    v_lshl_add_u32 {v(vUW)}, {v(vQ)}, 11, {v(vUW)}
    v_add_u32 {v(vUW)}, {L_U}, {v(vUW)}
    s_lshr_b32 {s(sT)}, {s(sW)}, 1
    s_lshl_b32 {s(sT)}, {s(sT)}, 11
    s_add_u32 {s(sT+2)}, {s(sT)}, {L_U}
    v_lshl_add_u32 {v(vUR)}, {v(vLane)}, 3, {s(sT+2)}
    ; vLst = w'*2048 + 512q + 64h + 4n
    s_lshr_b32 {s(sT+2)}, {s(sT+1)}, 5
    s_add_u32 {s(sT)}, {s(sT)}, {s(sT+2)}
    v_lshl_add_u32 {v(vLst)}, {v(vQ)}, 9, {s(sT)}
    v_lshl_add_u32 {v(vLst)}, {v(vN)}, 2, {v(vLst)}
    s_lshl_b32 {s(sT+3)}, {s(sW)}, 31             ; h sign
    s_mov_b32 {s(sT+5)}, 0x80008000
    s_mov_b32 {s(sIt)}, 0
    s_waitcnt lgkmcnt(6)
    v_xor_b32 {v(B1C)}, {s(sT+3)}, {v(B1N)}
    v_xor_b32 {v(B1C+1)}, {s(sT+3)}, {v(B1N+1)}
    v_xor_b32 {v(B1S)}, {s(sT+3)}, {v(B1N+2)}
    v_xor_b32 {v(B1S+1)}, {s(sT+3)}, {v(B1N+3)}
    v_xor_b32 {v(B1C+2)}, {v(B1C)}, {v(c+5)}
    v_xor_b32 {v(B1C+3)}, {v(B1C+1)}, {v(c+5)}
    v_xor_b32 {v(B1S+2)}, {v(B1S)}, {v(c+5)}
    v_xor_b32 {v(B1S+3)}, {v(B1S+1)}, {v(c+5)}
    ''')
    for r in range(4): a(f'v_xor_b32 {v(B1N+r)}, {s(sT+5)}, {v(B1S+r)}')
    if cfg.ypos==2: a('s_waitcnt lgkmcnt(0)'); y_setup(c)
    a(f'''
    s_waitcnt vmcnt(7)
    s_cmp_eq_u32 {s(sW)}, 0
    s_cbranch_scc1 L_x0 ;!nd
    s_waitcnt vmcnt(4)
    L_x0:
    ''')
    for rho in (0,1):
        for k in (0,1):
            src=X0+2*rho+k
            a(f'v_lshlrev_b32 {v(X+4*k+rho)}, 16, {v(src)}')
            a(f'v_and_b32 {v(X+4*k+2+rho)}, 0xffff0000, {v(src)}')
    if not cfg.ep0: a(f's_add_u32 {s(sTag)}, {s(sTag)}, 1')

def y_setup(u):
    a(f'''
    v_lshrrev_b32 {v(u+1)}, 4, v0
    v_lshlrev_b32 {v(u+2)}, 4, {v(vN)}
    v_lshrrev_b32 {v(vYIR)}, 2, {v(vN)}
    v_mul_u32_u24 {v(vYIR)}, {YIS}, {v(vYIR)}
    ''')
    a(f'''
    s_lshl_b32 {s(sT+1)}, {s(sW)}, 5              ; 32w
    s_add_u32 {s(sT)}, {s(sT+1)}, {L_YT}
    v_mul_u32_u24 {v(vYW)}, 272, {v(vN)}
    v_lshl_add_u32 {v(vYW)}, {v(vQ)}, 3, {v(vYW)}
    v_add_u32 {v(vYW)}, {s(sT)}, {v(vYW)}
    v_mul_u32_u24 {v(vYR)}, 272, {v(u+1)}
    v_add_u32 {v(vYR)}, {v(vYR)}, {v(u+2)}
    v_add_u32 {v(vYR)}, {L_YT}, {v(vYR)}
    s_add_u32 {s(sT+1)}, {s(sT+1)}, {L_YI}
    v_mul_u32_u24 {v(u+3)}, {4*YIS}, {v(vQ)}
    v_and_b32 {v(u+4)}, 0x18, {v(vL8)}
    v_add3_u32 {v(vYIR)}, {v(vYIR)}, {v(u+3)}, {v(u+4)}
    v_add_u32 {v(vYIR)}, {s(sT+1)}, {v(vYIR)}
    s_cmp_lt_u32 {s(sJ)}, 8
    s_cbranch_scc1 L_aself
    v_mul_u32_u24 {v(vLld)}, {PS}, {v(u+1)}
    v_mul_u32_u24 {v(vYIW)}, {YIS}, {v(u+1)}
    s_lshl_b32 {s(sT)}, {s(sJ)}, 8
    v_add3_u32 {v(vLld)}, {v(vLld)}, {v(u+2)}, {s(sT)}
    v_add_u32 {v(vYIW)}, {v(vYIW)}, {v(u+2)}
    v_mov_b32 {v(vLldM)}, 0
    s_branch L_adone
    L_aself:
    ; s2=(w>>1)*8+(l>>3), u=l&7, which=w&1
    s_lshl_b32 {s(sT)}, {s(sW)}, 2
    s_and_b32 {s(sT)}, {s(sT)}, 24
    v_lshrrev_b32 {v(u+3)}, 3, {v(vLane)}
    v_add_u32 {v(u+3)}, {s(sT)}, {v(u+3)}
    v_and_b32 {v(u+4)}, 0x70, {v(u+2)}
    v_mul_u32_u24 {v(vLldM)}, {PS}, {v(u+3)}
    v_mul_u32_u24 {v(vYIW)}, {YIS}, {v(u+3)}
    s_lshl_b32 {s(sT)}, {s(sJ)}, 7
    s_add_u32 {s(sT+1)}, {s(sT)}, 4
    s_sub_u32 {s(sT)}, {508*4}, {s(sT)}
    v_add3_u32 {v(vLld)}, {v(vLldM)}, {v(u+4)}, {s(sT+1)}
    v_sub_u32 {v(vLldM)}, {v(vLldM)}, {v(u+4)}
    v_add_u32 {v(vLldM)}, {s(sT)}, {v(vLldM)}
    s_and_b32 {s(sT)}, {s(sW)}, 1
    s_lshl_b32 {s(sT)}, {s(sT)}, 7
    v_add3_u32 {v(vYIW)}, {v(vYIW)}, {v(u+4)}, {s(sT)}
    L_adone:
    v_add_u32 {v(vYIW)}, {L_YI}, {v(vYIW)}
    ''')

def w_setup():
    w=BC+8
    a(f'''
    v_mov_b32 {v(w+1)}, 0x3f803f80
    v_dot2_f32_bf16 {v(w)}, {v(WV)}, {v(w+1)}, 0
    v_dot2_f32_bf16 {v(w)}, {v(WV+1)}, {v(w+1)}, {v(w)}
    v_dot2_f32_bf16 {v(w)}, {v(WV+2)}, {v(w+1)}, {v(w)}
    v_dot2_f32_bf16 {v(w)}, {v(WV+3)}, {v(w+1)}, {v(w)}
    v_lshlrev_b32 {v(WV)}, 16, {v(BC+4)}
    v_and_b32 {v(WV+1)}, 0xffff0000, {v(BC+4)}
    v_lshlrev_b32 {v(WV+2)}, 16, {v(BC+5)}
    v_add_f32_dpp {v(w)}, {v(w)}, {v(w)} row_ror:8 {DPP}
    v_and_b32 {v(WV+3)}, 0xffff0000, {v(BC+5)}
    v_mul_f32 {v(WV)}, 0x44000000, {v(WV)}
    v_add_f32_dpp {v(w)}, {v(w)}, {v(w)} row_ror:4 {DPP}
    v_mul_f32 {v(WV+1)}, 0x44000000, {v(WV+1)}
    v_mul_f32 {v(WV+2)}, 0x44000000, {v(WV+2)}
    v_add_f32_dpp {v(w)}, {v(w)}, {v(w)} row_ror:2 {DPP}
    v_mul_f32 {v(WV+3)}, 0x44000000, {v(WV+3)}
    v_add_f32_dpp {v(w)}, {v(w)}, {v(w)} row_ror:1 {DPP}
    v_add_f32_dpp {v(w)}, {v(w)}, {v(w)} row_bcast:15 row_mask:0xa bank_mask:0xf
    v_add_f32_dpp {v(w)}, {v(w)}, {v(w)} row_bcast:31 row_mask:0xc bank_mask:0xf
    v_readlane_b32 {s(sT)}, {v(w)}, 63
    ''')
    for k in range(4): a(f'v_subrev_f32 {v(WV+k)}, {s(sT)}, {v(WV+k)}')

def xin_consts(c):
    a(f'''
    s_and_b32 {s(sT)}, {s(sGg)}, 3               ; 0 => self
    s_lshr_b32 {s(sT+1)}, {s(sW)}, 2
    s_bfe_u32 {s(sT+2)}, {s(sGg)}, 0x10002
    s_mov_b32 {s(sSc)}, {fbits(16.0)}
    s_cmp_eq_u32 {s(sT)}, 0
    s_cselect_b32 {s(sMir)}, {s(sT+1)}, {s(sT+2)}
    s_cselect_b32 {s(sSc)}, {fbits(8.0)}, {s(sSc)}
    s_cselect_b32 {s(sDsc)}, {fbits(1/8)}, {s(sC16)}
    s_cselect_b32 {s(sT+3)}, -4, 0
    s_mov_b32 {s(sSc+1)}, {s(sSc)}
    s_sub_u32 {s(sT+4)}, 256, {s(sGg)}
    s_and_b32 {s(sT+4)}, {s(sT+4)}, 255
    s_cmp_eq_u32 {s(sMir)}, 0
    s_cselect_b32 {s(sT+4)}, {s(sGg)}, {s(sT+4)}       ; source g
    s_cselect_b32 {s(sT+5)}, 16, -16
    s_cselect_b32 {s(sT+6)}, 0, {509*4}
    s_cselect_b32 {s(sT+7)}, 1.0, -1.0
    s_add_u32 {s(sT+3)}, {s(sT+3)}, {s(sT+6)}
    s_mul_i32 {s(sT+6)}, {s(sT+5)}, {s(sW)}
    s_lshl_b32 {s(sT+6)}, {s(sT+6)}, 4
    s_add_u32 {s(sT+3)}, {s(sT+3)}, {s(sT+6)}
    s_and_b32 {s(sT+6)}, {s(sT+4)}, 0x78
    s_lshl_b32 {s(sT+6)}, {s(sT+6)}, 8
    s_add_u32 {s(sT+3)}, {s(sT+3)}, {s(sT+6)}
    s_add_u32 {s(sT+6)}, {s(sT+4)}, 3
    s_and_b32 {s(sT+6)}, {s(sT+6)}, 3
    s_lshl_b32 {s(sT+6)}, {s(sT+6)}, 15
    s_add_u32 {s(sT+3)}, {s(sT+3)}, {s(sT+6)}
    s_and_b32 {s(sT+6)}, {s(sT+4)}, 4
    s_lshl_b32 {s(sT+6)}, {s(sT+6)}, 8
    s_add_u32 {s(sT+3)}, {s(sT+3)}, {s(sT+6)}
    v_mul_i32_i24 {v(vGld)}, {s(sT+5)}, {v(vN)}
    v_mul_u32_u24 {v(c+4)}, {GS}, {v(vQ)}
    v_add3_u32 {v(vGld)}, {v(vGld)}, {v(c+4)}, {s(sT+3)}
    v_lshrrev_b32 {v(c+4)}, 1, {v(vN)}
    v_and_b32 {v(c+4)}, 6, {v(c+4)}
    v_and_or_b32 {v(c+4)}, {v(vN)}, 1, {v(c+4)}
    v_lshl_add_u32 {v(AD)}, {v(c+4)}, 8, {s(sGg)}
    v_cvt_f32_u32 {v(c+4)}, {v(AD)}
    v_cvt_f32_u32 {v(c+5)}, {v(vQ)}
    v_mul_f32 {v(c+4)}, {fbits(1/2048)}, {v(c+4)}
    v_mul_f32 {v(c+4)}, {s(sT+7)}, {v(c+4)}
    v_mul_f32 {v(c+5)}, {v(c+4)}, {v(c+5)}
    v_fma_f32 {v(c+6)}, {v(c+4)}, 4.0, {v(c+5)}
    v_cos_f32 {v(c+7)}, {v(c+5)}
    v_sin_f32 {v(c+8)}, {v(c+5)}
    v_cos_f32 {v(c+9)}, {v(c+6)}
    v_sin_f32 {v(c+10)}, {v(c+6)}
    v_bfe_u32 {v(c+4)}, {v(vN)}, 1, 1
    v_cmp_eq_u32 vcc, {s(sMir)}, {v(c+4)}
    v_cvt_pk_f16_f32 {v(c+7)}, {v(c+7)}, {v(c+8)}
    s_lshr_b32 {s(sT+6)}, {s(sT+4)}, 3
    s_and_b32 {s(sT+6)}, {s(sT+6)}, 16
    s_lshl_b32 {s(sT+6)}, 0x3c00, {s(sT+6)}
    s_mov_b64 exec, 0xffff
    v_mov_b32 {v(c+7)}, {s(sT+6)}
    s_mov_b64 exec, -1
    v_cvt_pk_f16_f32 {v(c+9)}, {v(c+9)}, {v(c+10)}
    v_cndmask_b32 {v(XA)}, 0, {v(c+7)}, vcc
    v_cndmask_b32 {v(XA+1)}, {v(c+7)}, 0, vcc
    v_cndmask_b32 {v(XA+2)}, 0, {v(c+9)}, vcc
    v_cndmask_b32 {v(XA+3)}, {v(c+9)}, 0, vcc
    v_and_b32 {v(c+4)}, 0x1cf, v0
    v_cmp_eq_u32 vcc, 0, {v(c+4)}
    v_mov_b32 {v(c+5)}, {s(sSc)}
    s_sub_u32 {s(sT)}, 2047, {s(sGg)}
    v_lshlrev_b32 {v(vInv)}, 9, {v(vQ)}
    v_cndmask_b32 {v(vSc0)}, {v(c+5)}, 0, vcc
    v_cndmask_b32 {v(vSc0+1)}, {v(c+5)}, 0, vcc
    v_sub_u32 {v(vInv)}, {s(sT)}, {v(vInv)}
    v_add_u32 v0, 0xffffff00, {v(vInv)}
    s_lshl_b32 {s(sSlot)}, {s(sX)}, 12
    s_add_u32 {s(sSlot)}, {s(sSlot)}, {SLOT}
    ''')

def main_loop():
    t=T
    S1,S2,S3=t,t+2,t+4
    a('L_top:')
    stamp()
    a(f'''
    v_pk_add_f32 {v(S1,2)}, {v(X,2)}, {v(X+2,2)}
    v_pk_add_f32 {v(t+6,2)}, {v(X+4,2)}, {v(X+6,2)}
    v_pk_mul_f32 {v(S2,2)}, {v(X,2)}, {v(X,2)}
    v_pk_mul_f32 {v(S3,2)}, {v(X,2)}, {v(WV,2)} op_sel:[0,0] op_sel_hi:[1,0]
    v_pk_add_f32 {v(S1,2)}, {v(S1,2)}, {v(t+6,2)}
    v_pk_fma_f32 {v(S2,2)}, {v(X+2,2)}, {v(X+2,2)}, {v(S2,2)}
    v_pk_fma_f32 {v(S3,2)}, {v(X+2,2)}, {v(WV,2)}, {v(S3,2)} op_sel:[0,1,0] op_sel_hi:[1,1,1]
    v_add_f32_dpp {v(S1)}, {v(S1)}, {v(S1)} row_ror:8 row_mask:0xf bank_mask:0x3
    v_pk_fma_f32 {v(S2,2)}, {v(X+4,2)}, {v(X+4,2)}, {v(S2,2)}
    v_pk_fma_f32 {v(S3,2)}, {v(X+4,2)}, {v(WV+2,2)}, {v(S3,2)} op_sel:[0,0,0] op_sel_hi:[1,0,1]
    v_add_f32_dpp {v(S1)}, {v(S1+1)}, {v(S1+1)} row_ror:8 row_mask:0xf bank_mask:0xc
    v_pk_fma_f32 {v(S2,2)}, {v(X+6,2)}, {v(X+6,2)}, {v(S2,2)}
    v_pk_fma_f32 {v(S3,2)}, {v(X+6,2)}, {v(WV+2,2)}, {v(S3,2)} op_sel:[0,1,0] op_sel_hi:[1,1,1]
    v_add_f32_dpp {v(S1)}, {v(S1)}, {v(S1)} row_half_mirror row_mask:0xf bank_mask:0x5
    v_add_f32_dpp {v(S2)}, {v(S2)}, {v(S2)} row_ror:8 row_mask:0xf bank_mask:0x3
    v_add_f32_dpp {v(S3)}, {v(S3)}, {v(S3)} row_ror:8 row_mask:0xf bank_mask:0x3
    v_add_f32_dpp {v(S2)}, {v(S2+1)}, {v(S2+1)} row_ror:8 row_mask:0xf bank_mask:0xc
    v_add_f32_dpp {v(S3)}, {v(S3+1)}, {v(S3+1)} row_ror:8 row_mask:0xf bank_mask:0xc
    v_add_f32_dpp {v(S1)}, {v(S2)}, {v(S2)} row_half_mirror row_mask:0xf bank_mask:0xa
    v_add_f32_dpp {v(S3)}, {v(S3)}, {v(S3)} row_half_mirror {DPP}
    v_add_f32_dpp {v(S1)}, {v(S1)}, {v(S1)} quad_perm:[1,0,3,2] {DPP}
    v_add_f32_dpp {v(S3)}, {v(S3)}, {v(S3)} quad_perm:[1,0,3,2] {DPP}
    v_add_f32_dpp {v(S1)}, {v(S1)}, {v(S1)} quad_perm:[2,3,0,1] {DPP}
    v_add_f32_dpp {v(S3)}, {v(S3)}, {v(S3)} quad_perm:[2,3,0,1] {DPP}
    s_mov_b64 exec, {s(sQmask,2)}
    ds_write2_b32 {v(vStW)}, {v(S1)}, {v(S3)} offset0:0 offset1:32
    s_mov_b64 exec, -1
    ;@F
    ''')
    if cfg.g2pos==4: a(f's_cmp_lg_u32 {s(sIt)}, 1\ns_cbranch_scc1 L_nw\ns_waitcnt vmcnt(0)\nL_nw:')
    a(f'''
    s_waitcnt lgkmcnt(0)
    s_barrier
    ;@F
    ds_read_b128 {v(t,4)}, {v(vStR)}
    ds_read_b128 {v(t+4,4)}, {v(vStR)} offset:16
    s_waitcnt lgkmcnt(0)
    v_pk_add_f32 {v(t,2)}, {v(t,2)}, {v(t+2,2)}
    v_pk_add_f32 {v(t+4,2)}, {v(t+4,2)}, {v(t+6,2)}
    v_pk_add_f32 {v(t,2)}, {v(t,2)}, {v(t+4,2)}
    v_add_f32 {v(t)}, {v(t)}, {v(t+1)}
    v_mul_f32 {v(t+7)}, {s(sK512)}, {v(t)}
    ''')
    VAR,RS,CC,NM=t+8,t+10,t+12,t+14
    K=t+16; Z=t+18; K1=RS2; NR=BC
    a(f'''
    v_mov_b32_dpp {v(MM)}, {v(t+7)} row_newbcast:0 {DPP}
    v_mov_b32_dpp {v(MM+1)}, {v(t+7)} row_newbcast:1 {DPP}
    v_mov_b32_dpp {v(S2)}, {v(t+7)} row_newbcast:2 {DPP}
    v_mov_b32_dpp {v(S2+1)}, {v(t+7)} row_newbcast:3 {DPP}
    v_pk_fma_f32 {v(VAR,2)}, {v(MM,2)}, {v(MM,2)}, {v(S2,2)} neg_lo:[1,0,0] neg_hi:[1,0,0]
    v_pk_add_f32 {v(S1,2)}, {v(VAR,2)}, {s(sEps,2)}
    s_cmp_eq_u32 {s(sIt)}, 0
    v_rsq_f32_e64 {v(RS)}, |{v(S1)}|
    v_rsq_f32_e64 {v(RS+1)}, |{v(S1+1)}|
    s_cbranch_scc1 L_z0 ;!nd
    v_mul_f32_dpp {v(S3)}, {v(t+7)}, {v(RS)} row_newbcast:4 {DPP}
    v_mul_f32_dpp {v(S3+1)}, {v(t+7)}, {v(RS+1)} row_newbcast:5 {DPP}
    v_ashrrev_i32 {v(K)}, 31, {v(S3)}
    v_ashrrev_i32 {v(K+1)}, 31, {v(S3+1)}
    v_bitop3_b32 {v(K)}, {v(S3)}, {v(K)}, {s(sTop)} bitop3:0x1e
    v_bitop3_b32 {v(K+1)}, {v(S3+1)}, {v(K+1)}, {s(sTop)} bitop3:0x1e
    v_bfi_b32 {v(K)}, {s(sM7FF)}, {v(vInv)}, {v(K)}
    v_bfi_b32 {v(K+1)}, {s(sM7FF)}, v0, {v(K+1)}
    v_max_u32 {v(K+1)}, {v(K)}, {v(K+1)}
    v_pk_add_f32 {v(K1,2)}, {v(RS,2)}, 1.0 op_sel_hi:[1,0]
    v_mov_b32 {v(K)}, {s(sTag)}
    v_max_u32_dpp {v(K+1)}, {v(K+1)}, {v(K+1)} row_bcast:15 row_mask:0xa bank_mask:0xf
    v_pk_mul_f32 {v(VAR,2)}, {v(VAR,2)}, {v(K1,2)}
    s_cmp_lg_u32 {s(sW)}, 0
    v_max_u32_dpp {v(K+1)}, {v(K+1)}, {v(K+1)} row_bcast:31 row_mask:0xc bank_mask:0xf
    s_cbranch_scc1 L_nost ;!nd
    s_mov_b32 exec_lo, 0
    s_mov_b32 exec_hi, {s(sTop)}
    s_cmp_eq_u32 {s(sFast)}, 0
    s_cbranch_scc1 L_tabst_slow ;!nd
    buffer_store_dwordx2 {v(K,2)}, off, {WS}, {s(sTabSt)}
    L_tabst_back:
    s_mov_b64 exec, -1
    L_nost:
    v_readlane_b32 {s(sKey)}, {v(K+1)}, 63
    v_pk_mul_f32 {v(NR,2)}, {v(MM,2)}, {v(RS,2)}
    v_pk_fma_f32 {v(VAR,2)}, {v(VAR,2)}, {v(K1,2)}, {s(sEps,2)}
    s_bitcmp0_b32 {s(sKey)}, 8
    s_cselect_b64 vcc, -1, 0
    v_rsq_f32_e64 {v(VAR)}, |{v(VAR)}|
    v_rsq_f32_e64 {v(VAR+1)}, |{v(VAR+1)}|
    s_andn2_b32 {s(sT+1)}, 0x600, {s(sKey)}
    s_lshr_b32 {s(sT+1)}, {s(sT+1)}, 5
    v_cndmask_b32 {v(S1)}, {v(RS)}, {v(RS+1)}, vcc
    v_cndmask_b32 {v(S1+1)}, {v(NR)}, {v(NR+1)}, vcc
    v_cndmask_b32 {v(Z)}, {v(X)}, {v(X+1)}, vcc
    v_cndmask_b32 {v(Z+1)}, {v(X+2)}, {v(X+3)}, vcc
    v_cndmask_b32 {v(Z+2)}, {v(X+4)}, {v(X+5)}, vcc
    v_cndmask_b32 {v(Z+3)}, {v(X+6)}, {v(X+7)}, vcc
    v_pk_fma_f32 {v(Z,2)}, {v(Z,2)}, {v(S1,2)}, {v(S1,2)} op_sel:[0,0,1] op_sel_hi:[1,0,1] neg_lo:[0,0,1] neg_hi:[0,0,1]
    v_pk_fma_f32 {v(Z+2,2)}, {v(Z+2,2)}, {v(S1,2)}, {v(S1,2)} op_sel:[0,0,1] op_sel_hi:[1,0,1] neg_lo:[0,0,1] neg_hi:[0,0,1]
    v_and_b32 {v(K)}, 0x3ff, {v(vXoff)}
    v_mov_b32 {v(K+1)}, {L_FLAG}
    v_cvt_pk_bf16_f32 {v(S2)}, {v(Z)}, {v(Z+1)}
    v_cvt_pk_bf16_f32 {v(S2+1)}, {v(Z+2)}, {v(Z+3)}
    s_bfm_b64 exec, 16, {s(sT+1)}
    ds_write_b64 {v(K)}, {v(S2,2)} offset:{L_ROW}
    ds_write_b32 {v(K+1)}, {v(S1)} offset:12
    s_mov_b64 exec, -1
    s_cmp_eq_u32 {s(sIt)}, 2
    s_cbranch_scc1 L_tab2e ;!nd
    v_pk_mul_f32 {v(RS,2)}, {v(VAR,2)}, {v(K1,2)}
    L_z0:
    v_pk_mul_f32 {v(CC,2)}, {v(RS,2)}, {s(sC16,2)}
    ;@F
    ''')
    ZP=t; D0=t+4; D1=t+8
    xupd='\n'.join(f'v_pk_fma_f32 {v(X+2*c_,2)}, {v(X+2*c_,2)}, {v(K1,2)}, {v(NR,2)} neg_lo:[0,0,1] neg_hi:[0,0,1]' for c_ in range(4))
    a(f'v_pk_mul_f32 {v(NM,2)}, {v(MM,2)}, {v(CC,2)}')
    for c_ in range(4):
        a(f'v_pk_fma_f32 {v(Z+2*c_,2)}, {v(X+2*c_,2)}, {v(CC,2)}, {v(NM,2)} neg_lo:[0,0,1] neg_hi:[0,0,1]')
    for c_ in range(4): a(f'v_cvt_pk_f16_f32 {v(ZP+c_)}, {v(Z+2*c_)}, {v(Z+2*c_+1)}')
    a(f'''
    v_mfma_f32_16x16x16_f16 {v(D0,4)}, {v(A8,2)}, {v(ZP,2)}, 0
    v_mfma_f32_16x16x16_f16 {v(D1,4)}, {v(A8,2)}, {v(ZP+2,2)}, 0
    v_cvt_pk_f16_f32 {v(ZP)}, {v(D0)}, {v(D0+1)}
    v_cvt_pk_f16_f32 {v(ZP+1)}, {v(D1)}, {v(D1+1)}
    v_cvt_pk_f16_f32 {v(ZP+2)}, {v(D0+2)}, {v(D0+3)}
    v_cvt_pk_f16_f32 {v(ZP+3)}, {v(D1+2)}, {v(D1+3)}
    ds_write_b64 {v(vUW)}, {v(ZP,2)}
    ds_write_b64 {v(vUW)}, {v(ZP+2,2)} offset:1024
    ;@F
    ''')
    if cfg.ub:
        a(f'''
        s_cmp_ge_u32 {s(sW)}, {s(sIt)}
        s_cbranch_scc1 L_ub ;!nd
        L_ut:
        buffer_load_dwordx2 {v(t+24,2)}, {v(vL8)}, {WS}, {s(sTabLd)} offen sc1
        s_waitcnt vmcnt(0)
        v_cmp_ne_u32 vcc, {s(sTag)}, {v(t+24)}
        ''')
        poll_branch('L_ut', cfg.slp_t)
        a(f'''
        v_cmp_lt_u32 vcc, {s(sKey)}, {v(t+25)}
        v_mov_b32 {v(t+24)}, {s(sKey)}
        v_lshlrev_b32 {v(vTG)}, 4, {v(vLane)}
        s_waitcnt lgkmcnt(0)
        s_barrier
        s_cbranch_vccnz L_ub2 ;!nd
        ds_read_b128 {v(LNP,4)}, {v(vTG)} offset:{L_ROW}
        ds_read_b32 {v(t+25)}, {v(K+1)} offset:12
        s_waitcnt lgkmcnt(0)
        buffer_store_dwordx4 {v(LNP,4)}, {v(vTG)}, {WS}, {s(sSlot)} offen sc1
        s_mov_b64 exec, 1
        buffer_store_dwordx2 {v(t+24,2)}, off, {WS}, {s(sSlot)} offset:3072 sc1
        s_mov_b64 exec, -1
        s_branch L_ub2 ;!nd
        L_ub:
        ''')
    a(f'''
    s_waitcnt lgkmcnt(0)
    s_barrier
    L_ub2:
    ;@F
    ds_read_b64_tr_b16 {v(t,2)}, {v(vUR)}
    ds_read_b64_tr_b16 {v(t+2,2)}, {v(vUR)} offset:512
    ds_read_b64_tr_b16 {v(t+4,2)}, {v(vUR)} offset:1024
    ds_read_b64_tr_b16 {v(t+6,2)}, {v(vUR)} offset:1536
    ''')
    if not cfg.ub: a(f'''
    s_cmp_ge_u32 {s(sW)}, {s(sIt)}
    s_cbranch_scc1 L_tg1 ;!nd
    buffer_load_dwordx2 {v(t+24,2)}, {v(vL8)}, {WS}, {s(sTabLd)} offen sc1
    {f'ds_read_b128 {v(LNP,4)}, {v(vTG)} offset:{L_ROW}' if cfg.pub0 else ''}
    ''')
    a(f'''
    L_tg1:
    L_tg2:
    ;@F
    ''')
    P=t
    fft_core(t, t+4, t+8, t+16, t+8, P)
    def lstores(fl, ph=None):
        for r in range(4):
            if ph is not None: a(f'v_cvt_pk_f16_f32 {v(P+r)}, {v(t+8+r)}, {v(t+12+r)}')
            if ph==0: a(f'v_and_b32 {v(P+r)}, -2, {v(P+r)}')
            if ph==1: a(f'v_or_b32 {v(P+r)}, 1, {v(P+r)}')
            a(f'buffer_store_dword {v(P+r)}, {v(vLst)}, {WS}, {s(sLst)} offen offset:{128*r} {fl}')
    TB=t+24
    LD=t+8
    xfs=f's_cmp_eq_u32 {s(sT+12)}, 0\ns_cbranch_scc1 L_xf ;!nd\nL_noxf:'
    xfo=f'''L_xf:
    s_lshl_b32 {s(sT+12)}, {s(sX)}, 7
    s_add_u32 {s(sT+12)}, {s(sT+12)}, {TABG}
    v_lshrrev_b32 {v(t+16)}, 1, {v(vL8)}
    v_mov_b32 {v(t+17)}, {s(sTag)}
    s_mov_b32 exec_hi, 0
    buffer_store_dword {v(t+17)}, {v(t+16)}, {WS}, {s(sT+12)} offen sc1
    s_mov_b64 exec, -1
    s_branch L_noxf'''
    W_=t+4
    a(f'''
    s_cmp_lg_u32 {s(sIt)}, 0
    s_cbranch_scc1 L_tab1e ;!nd
    ''')
    lstores('nt' if cfg.lnt&1 else '',0)
    stamp()
    a(f'''
    s_branch {'L_flag0' if cfg.pub0 else 'L_pub'}
    L_tab1e:
    s_nop 5
    ''')
    if cfg.ub:
        lstores('nt' if cfg.lnt&2 else '',1); stamp()
        a(xupd+f'\ns_add_u32 {s(sSlot)}, {s(sSlot)}, {SLOTR}\n'+(f's_sleep {cfg.dl}\n' if cfg.dl else '')+'s_branch L_tabdone')
    a(f'''
    L_tab2e:
    s_cmp_eq_u32 {s(sW)}, 0
    {'s_waitcnt lgkmcnt(0)' if cfg.pub0 else ''}
    {'s_barrier' if cfg.pub0 else ''}
    s_cbranch_scc0 L_tabbar
    {f'ds_read_b128 {v(LNP,4)}, {v(vTG)} offset:{L_ROW}' if cfg.pub0 else ''}
    s_branch L_tab
    L_tab:
    buffer_load_dwordx2 {v(TB,2)}, {v(vL8)}, {WS}, {s(sTabLd)} offen sc1
    L_tabw1:
    s_waitcnt vmcnt(0)
    v_cmp_ne_u32 vcc, {s(sTag)}, {v(TB)}
    ''')
    poll_branch('L_tab', cfg.slp_t)
    a(f'''
    L_tabok:
    v_cmp_lt_u32 {s(sT,2)}, {s(sKey)}, {v(TB+1)}
    v_mov_b32 {v(TB)}, {L_FLAG}
    ''')
    if cfg.pub0: a(f'''
    s_cmp_lg_u32 {s(sT)}, 0
    s_cbranch_scc1 L_np0 ;!nd
    v_mov_b32 {v(TB+1)}, {s(sKey)}
    s_waitcnt lgkmcnt(0)
    buffer_store_dwordx4 {v(LNP,4)}, {v(vTG)}, {WS}, {s(sSlot)} offen sc1
    s_mov_b64 exec, 1
    buffer_store_dword {v(TB+1)}, off, {WS}, {s(sSlot)} offset:3072 sc1
    s_mov_b64 exec, -1
    L_np0:
    ''')
    a(f'''
    v_mov_b32 {v(TB+1)}, {s(sT)}
    ds_write_b32 {v(TB)}, {v(TB+1)}
    s_waitcnt lgkmcnt(0)
    s_barrier
    s_branch L_tabgot
    L_tabbar:
    v_mov_b32 {v(TB)}, {L_FLAG}
    {'s_waitcnt vmcnt(0)' if cfg.g2pos==6 else ''}
    s_barrier
    ds_read_b64 {v(TB,2)}, {v(TB)}
    s_waitcnt lgkmcnt(0)
    v_readfirstlane_b32 {s(sT)}, {v(TB)}
    L_tabgot:
    s_mov_b32 {s(sT+9)}, 64
    s_cmp_lg_u32 {s(sT)}, 0
    s_cbranch_scc1 L_fin ;!nd
    s_andn2_b32 {s(sT)}, {s(sM7FF)}, {s(sKey)}      ; idx
    s_lshr_b32 {s(sT+9)}, {s(sT)}, 8                ; s1
    s_branch L_fin
    L_flag0:
    ;@F
    s_mov_b32 {s(sFast)}, 1
    s_mov_b32 {s(sPh)}, 0
    s_mov_b32 {s(sNx)}, 0
    s_mov_b32 {s(sKey)}, {s(sXcc)}
    s_mov_b32 {s(sSlot)}, {WSSZ}
    s_xor_b32 {s(sT+12)}, {s(sJ)}, 9
    s_or_b32 {s(sT+12)}, {s(sT+12)}, {s(sW)}
    s_mov_b32 {s(sTry)}, 64
    s_lshl_b32 {s(sT)}, {s(sJ)}, 3
    s_add_u32 {s(sTabSt)}, {s(sTabLd)}, {s(sT)}
    {f'v_mov_b32 {v(t+22)}, {s(sTag)}' if not cfg.ep0 else ''}
    v_mov_b32 {v(t+23)}, {s(sKey)}
    ''')
    if cfg.ypos==1: y_setup(t+4)
    a(f'''
    s_waitcnt vmcnt(0)
    {f'v_add_u32 {v(t+22)}, 1, {v(BC+12)}' if cfg.ep0 else ''}
    ;@F
    s_cmp_eq_u32 {s(sW)}, 0
    s_barrier
    s_cbranch_scc0 L_flag1
    s_mov_b64 exec, 1
    buffer_store_dwordx2 {v(t+22,2)}, off, {WS}, {s(sTabSt)}
    s_mov_b64 exec, -1
    {f'v_mov_b32 {v(t+21)}, {L_FLAG}' if cfg.ep0 else ''}
    {f'ds_write_b32 {v(t+21)}, {v(t+22)} offset:4' if cfg.ep0 else ''}
    {f'v_readfirstlane_b32 {s(sTag)}, {v(t+22)}' if cfg.ep0 else ''}
    L_flag1:
    v_lshlrev_b32 {v(vTG)}, 4, {v(vLane)}
    ''')
    if cfg.ypos==0: y_setup(t+4)
    if cfg.xpos==0: xin_consts(t+4)
    if cfg.wpos==0: w_setup()
    a(f'''
    v_mov_b32 {v(t+21)}, {L_FLAG}
    s_cmp_lg_u32 {s(sW)}, 0
    s_cbranch_scc1 L_t0b
    L_t0:
    buffer_load_dwordx2 {v(TB,2)}, {v(vL8)}, {WS}, {s(sTabLd)} offen sc1
    s_waitcnt vmcnt(0)
    v_cmp_ne_u32 vcc, {s(sTag)}, {v(TB)}
    ''')
    poll_branch('L_t0', cfg.slp_t, giveup='L_tab2', skip=True)
    a(f'''
    L_t0ok:
    v_cmp_ne_u32 vcc, {s(sKey)}, {v(TB+1)}
    v_mov_b32 {v(TB+1)}, vcc_lo
    ds_write_b32 {v(t+21)}, {v(TB+1)}
    s_waitcnt lgkmcnt(0)
    L_t0b:
    s_cmp_lt_u32 {s(sJ)}, 8
    s_barrier
    buffer_load_dwordx4 {v(LD,4)}, {v(vLld)}, {WS}, {s(sLld)} offen sc1
    s_cbranch_scc0 L_t0c ;!nd
    buffer_load_dwordx4 {v(LD+4,4)}, {v(vLldM)}, {WS}, {s(sLld)} offen sc1
    L_t0c:
    ds_read_b64 {v(TB,2)}, {v(t+21)}
    s_waitcnt lgkmcnt(0)
    v_readfirstlane_b32 {s(sT)}, {v(TB)}
    v_readfirstlane_b32 {s(sTag)}, {v(TB+1)}
    s_cmp_eq_u32 {s(sT)}, 0
    s_cselect_b32 {s(sFast)}, 1, 0
    s_cbranch_scc0 L_slow
    s_cmp_lt_u32 {s(sJ)}, 8
    s_cbranch_scc0 L_yw
    s_branch L_yselfw
    L_tabdone:
    s_cmp_eq_u32 {s(sFast)}, 0
    s_cbranch_scc1 L_slow
    L_slowback:
    ;@F
    {xfs if cfg.xe else ''}
    s_cmp_lt_u32 {s(sJ)}, 8
    s_cbranch_scc0 L_y
    s_branch L_yself
    L_y:
    buffer_load_dwordx4 {v(LD,4)}, {v(vLld)}, {WS}, {s(sLld)} offen sc1
    L_yw:
    s_waitcnt vmcnt(0)
    ds_write_b128 {v(vYIW)}, {v(LD,4)}
    ''')
    phchk(range(LD,LD+4), t+16)
    poll_branch('L_y', cfg.slp_l, mask=True)
    a('L_yjoin:')
    stamp()
    a(f'''
    {xfs if not cfg.xe else ''}
    ''')
    A0,A1=t,t+4; P0,Q0,P1,Q1=t+8,t+12,t+16,t+20
    a(f'''
    s_waitcnt lgkmcnt(0)
    s_barrier
    ;@F
    ds_read_b64_tr_b16 {v(A0,2)}, {v(vYIR)}
    ds_read_b64_tr_b16 {v(A0+2,2)}, {v(vYIR)} offset:{16*YIS}
    ''')
    if cfg.g2pos==6: a(f'''
    s_mul_i32 {s(sT)}, {s(sT+12)}, {s(sIt)}
    s_cmp_lt_u32 {s(sT)}, {TABG}
    s_cbranch_scc1 L_nox2 ;!nd
    v_lshrrev_b32 {v(t+24)}, 1, {v(vL8)}
    v_mov_b32 {v(t+25)}, {s(sTag)}
    s_mov_b32 exec_hi, 0
    buffer_store_dword {v(t+25)}, {v(t+24)}, {WS}, {s(sT)} offen offset:1024 sc1
    s_mov_b64 exec, -1
    L_nox2:
    ''')
    a(f'''
    s_add_u32 {s(sTabLd)}, {s(sTabLd)}, {ARGR}
    s_add_u32 {s(sTabSt)}, {s(sTabSt)}, {ARGR}
    s_cmp_eq_u32 {s(sX)}, 0
    s_cbranch_scc1 L_y0 ;!nd
    s_waitcnt lgkmcnt(0)
    v_mfma_f32_16x16x32_f16 {v(P0,4)}, {v(A0,4)}, {v(YC,4)}, 0
    v_mfma_f32_16x16x32_f16 {v(Q0,4)}, {v(A0,4)}, {v(YS,4)}, 0
    v_pk_add_f32 {v(P0,2)}, {v(P0,2)}, {v(Q0,2)} op_sel:[0,1] op_sel_hi:[1,0] neg_hi:[0,1]
    v_pk_add_f32 {v(P0+2,2)}, {v(P0+2,2)}, {v(Q0+2,2)} op_sel:[0,1] op_sel_hi:[1,0] neg_hi:[0,1]
    L_y0b:
    v_cvt_pk_f16_f32 {v(t)}, {v(P0)}, {v(P0+1)}
    v_cvt_pk_f16_f32 {v(t+1)}, {v(P0+2)}, {v(P0+3)}
    ds_write_b64 {v(vYW)}, {v(t,2)}
    ;@F
    s_waitcnt lgkmcnt(0)
    s_barrier
    ;@F
    ds_read_b128 {v(t+4,4)}, {v(vYR)}
    s_cmp_lg_u32 {s(sIt)}, 0
    s_cbranch_scc1 L_hdr
    ''')
    xfl=f'''v_and_b32 {v(t+24)}, 7, {v(vLane)}
    v_lshlrev_b32 {v(t+24)}, 7, {v(t+24)}
    s_mov_b32 {s(sT+10)}, {TABG}
    v_mov_b32 {v(t+20)}, {s(sTag)}
    {f's_cmp_lg_u32 {s(sW)}, 0' if cfg.xw else ''}
    {'s_cbranch_scc1 L_nxl' if cfg.xw else ''}
    s_mov_b64 exec, 0xff
    buffer_load_dword {v(t+20)}, {v(t+24)}, {WS}, {s(sT+10)} offen sc1
    s_mov_b64 exec, -1
    L_nxl:'''
    if cfg.gw in (1,2): a(xfl)
    a(f'''
    s_waitcnt lgkmcnt(0)
    buffer_store_dwordx4 {v(t+4,4)}, {v(vGst)}, {WS}, {s(sG0)} offen sc1
    ''')
    stamp()
    a(f'''
    {xfl if cfg.gw==3 else ''}
    {g2late() if cfg.g2pos==3 else ''}
    {f's_sleep {cfg.dx}' if cfg.dx else ''}
    {xfl if not cfg.gw else ''}
    ''')
    if cfg.xpos==1: xin_consts(t+8)
    if cfg.wpos==1: w_setup()
    if cfg.g2pos==6: a('\n'.join(f'v_mov_b32 {v(BC+8+k)}, -1' for k in range(4))+f'\ns_mov_b32 {s(sT+14)}, {GBASE+GR}')
    if cfg.gw: a(f's_waitcnt vmcnt({[0,2,1,1][cfg.gw]})\ns_branch L_tg0c')
    a('L_tg0w:\ns_waitcnt vmcnt(0)\nL_tg0c:\n;@F')
    a(f'v_cmp_ne_u32 vcc, {s(sTag)}, {v(t+20)}')
    a(f'''
    s_cbranch_vccnz L_tg0_r ;!nd
    ''')
    if cfg.g2pos==4: a(f'''
    buffer_load_dwordx4 {v(t,4)}, {v(vGld)}, {WS}, {s(sG0)} offen sc1
    buffer_load_dwordx4 {v(t+4,4)}, {v(vGld)}, {WS}, {s(sG4)} offen sc1
    {g2late()}
    s_cmp_lg_u32 {s(sMir)}, 0
    s_waitcnt vmcnt(1)
    s_branch L_gw2
    ''')
    else: a(('s_barrier\n' if cfg.xw else '')+(f's_sleep {cfg.dg}\n' if cfg.dg else '')+'s_branch L_g')
    a(f'''
    L_g:
    ''')
    C0,C1=t,t+4
    a(f'''
    buffer_load_dwordx4 {v(C0,4)}, {v(vGld)}, {WS}, {s(sG0)} offen sc1
    buffer_load_dwordx4 {v(C1,4)}, {v(vGld)}, {WS}, {s(sG4)} offen sc1
    L_gw:
    s_cmp_lg_u32 {s(sMir)}, 0
    s_cbranch_scc1 L_xmir0 ;!nd
    s_waitcnt vmcnt(0)
    L_xdir:
    ''')
    E0,E1=t+8,t+12
    a(f'''
    v_mfma_f32_16x16x16_f16 {v(E0,4)}, {v(XA,2)}, {v(C0,2)}, 0
    v_mfma_f32_16x16x16_f16 {v(E1,4)}, {v(XA,2)}, {v(C0+2,2)}, 0
    v_mfma_f32_16x16x16_f16 {v(E0,4)}, {v(XA+2,2)}, {v(C1,2)}, {v(E0,4)}
    v_mfma_f32_16x16x16_f16 {v(E1,4)}, {v(XA+2,2)}, {v(C1+2,2)}, {v(E1,4)}
    s_branch L_xjoin ;!nd
    L_xmir0:
    s_waitcnt vmcnt(0)
    L_xmir:
    ''')
    a.hist=[]
    a(f'''
    v_mfma_f32_16x16x16_f16 {v(E0,4)}, {v(XA,2)}, {v(C0+2,2)}, 0
    v_mfma_f32_16x16x16_f16 {v(E1,4)}, {v(XA,2)}, {v(C0,2)}, 0
    v_mfma_f32_16x16x16_f16 {v(E0,4)}, {v(XA+2,2)}, {v(C1+2,2)}, {v(E0,4)}
    v_mfma_f32_16x16x16_f16 {v(E1,4)}, {v(XA+2,2)}, {v(C1,2)}, {v(E1,4)}
    L_xjoin:
    ''')
    if cfg.gre: phchk(range(t,t+8), t+16)
    else: maxchk(range(t,t+8), t+16)
    poll_branch('L_g', cfg.slp_g, mask=True)
    stamp()
    a(f'''
    ''')
    if cfg.g2pos==6: a(f'''
    s_cmp_lg_u32 {s(sIt)}, 0
    s_cbranch_scc1 L_ng6 ;!nd
    buffer_store_dwordx4 {v(BC+8,4)}, {v(vGst)}, {WS}, {s(sT+14)} offen sc1
    L_ng6:
    ''')
    a(f'''
    s_mov_b32 {s(sIt)}, 1
    s_mov_b32 {s(sPh)}, -1
    {f's_add_u32 {s(sG0)}, {s(sG0)}, {GR}' if not cfg.gre else ''}
    {f's_add_u32 {s(sG4)}, {s(sG4)}, {GR}' if not cfg.gre else ''}
    L_apply:
    s_cmp_eq_u32 {s(sNx)}, 0
    v_pk_fma_f32 {v(X,2)}, {v(E0,2)}, {v(vSc0,2)}, {v(X,2)}
    v_pk_fma_f32 {v(X+2,2)}, {v(E0+2,2)}, {s(sSc,2)}, {v(X+2,2)}
    v_pk_fma_f32 {v(X+4,2)}, {v(E1,2)}, {s(sSc,2)}, {v(X+4,2)}
    v_pk_fma_f32 {v(X+6,2)}, {v(E1+2,2)}, {s(sSc,2)}, {v(X+6,2)}
    s_cbranch_scc1 L_top ;!nd
    s_branch L_corr
    ''')
    a(xfo)
    a(f'''
    L_y0:
    s_waitcnt lgkmcnt(0)
    v_mfma_f32_16x16x32_f16 {v(P0,4)}, {v(A0,4)}, {v(YC,4)}, 0
    v_xor_b32 {v(A1)}, {s(sTop)}, {v(A0)}
    v_xor_b32 {v(A1+1)}, {s(sTop)}, {v(A0+1)}
    v_mfma_f32_16x16x32_f16 {v(Q0,4)}, {v(A0,4)}, {v(YS,4)}, 0
    v_xor_b32 {v(A1+2)}, {s(sTop)}, {v(A0+2)}
    v_xor_b32 {v(A1+3)}, {s(sTop)}, {v(A0+3)}
    v_mfma_f32_16x16x32_f16 {v(P1,4)}, {v(A1,4)}, {v(YC,4)}, 0
    v_mfma_f32_16x16x32_f16 {v(Q1,4)}, {v(A1,4)}, {v(YS,4)}, 0
    v_add_f32 {v(P0)}, {v(P0)}, {v(Q0+1)}
    v_add_f32 {v(P0+2)}, {v(P0+2)}, {v(Q0+3)}
    v_add_f32 {v(P0+1)}, {v(P1)}, {v(Q1+1)}
    v_add_f32 {v(P0+3)}, {v(P1+2)}, {v(Q1+3)}
    s_branch L_y0b
    ''')
    a(f'''
    L_yself:
    buffer_load_dwordx4 {v(LD,4)}, {v(vLld)}, {WS}, {s(sLld)} offen sc1
    buffer_load_dwordx4 {v(LD+4,4)}, {v(vLldM)}, {WS}, {s(sLld)} offen sc1
    L_yselfw:
    s_bitcmp1_b32 {s(sW)}, 0
    s_cbranch_scc1 L_yself4
    s_waitcnt vmcnt(0)
    ''')
    for k in range(4): a(f'v_pk_add_f16 {v(t+4+k)}, {v(LD+k)}, {v(LD+7-k)} neg_hi:[0,1]')
    a(f'ds_write_b128 {v(vYIW)}, {v(t+4,4)}\ns_branch L_yselfc\nL_yself4:\ns_waitcnt vmcnt(0)')
    for k in range(4): a(f'v_pk_add_f16 {v(t+4+k)}, {v(LD+k)}, {v(LD+7-k)} op_sel:[1,1] op_sel_hi:[0,0] neg_hi:[1,0]')
    a(f'ds_write_b128 {v(vYIW)}, {v(t+4,4)}\nL_yselfc:')
    phchk(range(LD,LD+8), t+16)
    poll_branch('L_yself', cfg.slp_l, mask=True)
    a('s_branch L_yjoin')
    H=LNP
    sIdx=sT+11
    KA=BC+6; EK=BC+8; vYP=BC+9; SEL=BC+10; vDW,vDR=BC+12,BC+13
    YR=t+8; YL=t+12; YD=t+20
    gl=f'buffer_load_dwordx4 {v(C0,4)}, {v(vGld)}, {WS}, {s(sG0)} offen sc1\nbuffer_load_dwordx4 {v(C1,4)}, {v(vGld)}, {WS}, {s(sG4)} offen sc1'
    def hdrpoll(lbl, slp, issued=False, after=''):
        if not issued: a(f"""
        v_and_b32 {v(BC)}, 7, {v(vLane)}
        v_lshlrev_b32 {v(BC)}, 12, {v(BC)}
        """)
        a(f"""
        s_mov_b64 exec, 0xff
        {f's_waitcnt vmcnt({0 if cfg.gre else 1})' if issued else ''}
        {f's_branch {lbl}_c' if issued else ''}
        {lbl}:
        buffer_load_dwordx4 {v(H,4)}, {v(BC)}, {WS}, {s(sT+10)} offen offset:3200 sc1
        s_waitcnt vmcnt(0)
        {lbl}_c:
        """)
        maxchk(range(H,H+4), t+17)
        poll_branch(lbl, slp, skip=True)
        a('s_mov_b64 exec, -1')
        if after: a(after); stamp()
        a(f"""
        v_max_u32_dpp {v(H+3)}, {v(H)}, {v(H)} row_half_mirror {DPP}
        v_max_u32_dpp {v(H+3)}, {v(H+3)}, {v(H+3)} quad_perm:[1,0,3,2] {DPP}
        v_max_u32_dpp {v(H+3)}, {v(H+3)}, {v(H+3)} quad_perm:[2,3,0,1] {DPP}
        v_readfirstlane_b32 {s(sIdx)}, {v(H+3)}
        """)
    def owner():
        a(f"""
        s_sub_u32 {s(sT)}, 2047, {s(sIdx)}
        s_add_u32 {s(sT+1)}, {s(sT)}, 256
        v_cmp_eq_u32 vcc, {s(sT)}, {v(vInv)}
        v_cmp_eq_u32 {s(sT+2,2)}, {s(sT+1)}, {v(vInv)}
        v_cndmask_b32 {v(BC)}, 0, 1.0, vcc
        v_cndmask_b32 {v(BC+1)}, 0, 1.0, {s(sT+2,2)}
        """)
    gst=f'buffer_store_dwordx4 {v(t+4,4)}, {v(vGst)}, {WS}, {s(sG0)} offen sc1'
    a(f"""
    L_hdr:
    s_waitcnt lgkmcnt(0)
    {gst if not cfg.hs else ''}
    """)
    stamp()
    a(f"""
    v_and_b32 {v(vYP)}, 0x3ff, {v(vXoff)}
    v_mov_b32 {v(t+24)}, {v(vYP)}
    v_lshlrev_b32 {v(t+17)}, 4, {v(vLane)}
    v_mov_b32 {v(t+18)}, 0x3f80
    v_and_b32 {v(t+17)}, 16, {v(t+17)}
    v_lshlrev_b32 {v(t+18)}, {v(t+17)}, {v(t+18)}
    v_and_b32 {v(t+17)}, 2, {v(vLane)}
    v_cmp_eq_u32 vcc, 0, {v(t+17)}
    v_lshl_add_u32 {v(vYP)}, {v(vQ)}, 10, {v(vYP)}
    s_lshl_b32 {s(sT+3)}, {s(sW)}, 8
    v_cndmask_b32 {v(SEL)}, 0, {v(t+18)}, vcc
    v_cndmask_b32 {v(SEL+1)}, {v(t+18)}, 0, vcc
    s_add_u32 {s(sT+3)}, {s(sT+3)}, {L_DH}
    v_lshl_add_u32 {v(vDR)}, {v(vN)}, 4, {s(sT+3)}
    v_and_b32 {v(t+17)}, 1, {v(vQ)}
    v_lshl_add_u32 {v(vDR)}, {v(t+17)}, 11, {v(vDR)}
    v_add_u32 {v(vDW)}, {L_DH}, {v(vLst)}
    s_mov_b32 {s(sYo)}, {YP}
    s_lshl_b32 {s(sYh)}, {s(sX)}, 8
    s_add_u32 {s(sYh)}, {s(sYh)}, {YHINT}
    s_lshl_b32 {s(sSg)}, {s(sW)}, 30
    s_and_b32 {s(sSg)}, {s(sSg)}, {s(sTop)}
    s_xor_b32 {s(sSg)}, {s(sSg)}, {s(sDsc)}
    s_mov_b32 {s(sNx)}, 2
    s_lshl_b32 {s(sT)}, {s(sJ)}, 3
    v_mov_b32 {v(t+8)}, {s(sT)}
    {f's_cmp_eq_u32 {s(sW)}, 7' if cfg.w7 else ''}
    {'s_cbranch_scc1 L_pf' if cfg.w7 else ''}
    L_ywait:
    v_mov_b32 {v(t+9)}, {L_FLAG}
    s_cmp_lg_u32 {s(sW)}, 0
    s_cbranch_scc1 L_hintb
    L_hint:
    buffer_load_dwordx2 {v(t+10,2)}, {v(t+8)}, {WS}, {s(sYh)} offen sc1
    s_waitcnt vmcnt(0)
    v_cmp_ne_u32 vcc, {s(sTag)}, {v(t+10)}
    """)
    poll_branch('L_hint', 1)
    a(f"""
    ds_write_b32 {v(t+9)}, {v(t+11)} offset:8
    s_waitcnt lgkmcnt(0)
    L_hintb:
    s_barrier
    ds_read_b32 {v(t+11)}, {v(t+9)} offset:8
    s_cmp_eq_u32 {s(sIt)}, 2
    s_cbranch_scc1 L_yv3
    {f's_sleep {cfg.dgl}' if cfg.dgl else ''}
    {gl if not cfg.hs else gst}
    s_add_u32 {s(sT+8)}, {s(sYo)}, 4096
    s_waitcnt lgkmcnt(0)
    v_readfirstlane_b32 {s(sIdx)}, {v(t+11)}
    s_andn2_b32 {s(sIdx)}, {s(sM7FF)}, {s(sIdx)}
    s_and_b32 {s(sT+10)}, {s(sIdx)}, 15
    s_sub_u32 {s(sT+1)}, 16, {s(sT+10)}
    s_min_u32 {s(sT+10)}, {s(sT+10)}, {s(sT+1)}
    s_and_b32 {s(sT+10)}, {s(sT+10)}, 7
    s_lshl_b32 {s(sT+10)}, {s(sT+10)}, 12
    s_add_u32 {s(sT+10)}, {s(sT+10)}, {SLOT}
    buffer_load_dwordx2 {v(BC+4,2)}, {v(t+24)}, {WS}, {s(sT+10)} offen sc1
    buffer_load_dword {v(KA)}, off, {WS}, {s(sT+10)} offset:3076 sc1
    v_mul_u32_u24 {v(t+17)}, {s(sIdx)}, {v(AD)}
    v_and_b32 {v(t+17)}, 0x7ff, {v(t+17)}
    v_cvt_f32_u32 {v(t+17)}, {v(t+17)}
    v_mul_f32 {v(t+17)}, {fbits(1/2048)}, {v(t+17)}
    v_cos_f32 {v(t+18)}, {v(t+17)}
    v_sin_f32 {v(t+19)}, {v(t+17)}
    v_and_b32 {v(t+17)}, 0x22, {v(vLane)}
    v_cvt_pk_f16_f32 {v(t+18)}, {v(t+18)}, {v(t+19)}
    s_and_b32 {s(sT+1)}, {s(sMP)}, {s(sTop)}
    v_xor_b32 {v(t+18)}, {s(sT+1)}, {v(t+18)}
    v_cmp_eq_u32 vcc, 0, {v(t+17)}
    v_cmp_eq_u32 {s(sT+2,2)}, 2, {v(t+17)}
    v_cndmask_b32 {v(AD)}, 0, {v(t+18)}, vcc
    v_cndmask_b32 {v(AD+1)}, 0, {v(t+18)}, {s(sT+2,2)}
    """)
    owner()
    a(f"""
    {'s_waitcnt vmcnt(0)' if cfg.hs else ''}
    {f's_sleep {cfg.dg2}' if cfg.dg2 else ''}
    {gl if cfg.hs else ''}
    {f's_sleep {cfg.tim_gy}' if cfg.tim_gy else ''}
    buffer_load_dwordx2 {v(YD,2)}, {v(vYP)}, {WS}, {s(sYo)} offen sc1
    buffer_load_dwordx2 {v(YD+2,2)}, {v(vYP)}, {WS}, {s(sT+8)} offen sc1
    s_cmp_lg_u32 {s(sMir)}, 0
    s_waitcnt vmcnt({2 if cfg.hs else 4})
    s_cbranch_scc1 L_xmir ;!nd
    s_branch L_xdir
    L_corr:
    s_mov_b32 {s(sIt)}, 2
    s_mov_b32 {s(sNx)}, 0
    s_waitcnt vmcnt(2)
    L_basew:
    """)
    maxchk(range(BC+4,BC+7), t+17)
    a('s_cbranch_vccnz L_base_r ;!nd')
    a(f"""
    v_add_f32 {v(KA+1)}, 1.0, {v(KA)}
    v_rcp_f32 {v(KA+1)}, {v(KA+1)}
    v_lshlrev_b32 {v(BC+2)}, 16, {v(BC+4)}
    v_and_b32 {v(BC+3)}, 0xffff0000, {v(BC+4)}
    v_lshlrev_b32 {v(BC+4)}, 16, {v(BC+5)}
    v_and_b32 {v(BC+5)}, 0xffff0000, {v(BC+5)}
    v_mul_f32 {v(KA)}, {s(sC16)}, {v(KA)}
    v_cmp_eq_u32 vcc, 0, {v(vQ)}
    v_mul_f32 {v(KA+1)}, {v(KA)}, {v(KA+1)}
    v_pk_mul_f32 {v(BC+2,2)}, {v(BC+2,2)}, {s(sC16,2)}
    v_pk_mul_f32 {v(BC+4,2)}, {v(BC+4,2)}, {s(sC16,2)}
    v_mul_f32 {v(EK)}, {v(KA+1)}, {v(KA+1)}
    v_mul_f32 {v(EK)}, {s(sEps)}, {v(EK)}
    v_cndmask_b32 {v(KA+1)}, 0, {v(KA+1)}, vcc
    s_branch L_yc
    L_yv3:
    s_add_u32 {s(sT+8)}, {s(sYo)}, 4096
    s_waitcnt lgkmcnt(0)
    v_readfirstlane_b32 {s(sIdx)}, {v(t+11)}
    s_mov_b32 {s(sIt)}, 3
    s_cmp_lg_u32 {s(sIdx)}, {s(sKey)}
    s_cbranch_scc1 L_fin5
    {f's_sleep {cfg.tim_y3}' if cfg.tim_y3 else ''}
    s_branch L_yv
    """)
    a(f"""
    L_yv:
    buffer_load_dwordx2 {v(YD,2)}, {v(vYP)}, {WS}, {s(sYo)} offen sc1
    buffer_load_dwordx2 {v(YD+2,2)}, {v(vYP)}, {WS}, {s(sT+8)} offen sc1
    L_yc:
    s_waitcnt vmcnt(0)
    v_mfma_f32_16x16x16_bf16 {v(YR,4)}, {v(SEL,2)}, {v(YD,2)}, 0
    v_mfma_f32_16x16x16_bf16 {v(YR,4)}, {v(SEL,2)}, {v(YD+2,2)}, {v(YR,4)}
    """)
    maxchk(range(YD,YD+4), t+17)
    poll_branch('L_yv', 1, mask=True)
    stamp()
    own=[f'v_pk_fma_f32 {v(X,2)}, {v(BC,2)}, {v(YR,2)}, {v(X,2)} op_sel:[0,0,0] op_sel_hi:[1,0,1]',
         f'v_pk_fma_f32 {v(X+2,2)}, {v(BC,2)}, {v(YR,2)}, {v(X+2,2)} op_sel:[0,1,0] op_sel_hi:[1,1,1]',
         f'v_pk_fma_f32 {v(X+4,2)}, {v(BC,2)}, {v(YR+2,2)}, {v(X+4,2)} op_sel:[0,0,0] op_sel_hi:[1,0,1]',
         f'v_pk_fma_f32 {v(X+6,2)}, {v(BC,2)}, {v(YR+2,2)}, {v(X+6,2)} op_sel:[0,1,0] op_sel_hi:[1,1,1]']
    s1,s2=t+20,t+21
    a(f"""
    s_cmp_eq_u32 {s(sIt)}, 3
    s_cbranch_scc1 L_fin3
    L_pass:
    v_pk_fma_f32 {v(YL,2)}, {v(YR,2)}, {v(KA,2)}, {v(BC+2,2)} op_sel:[0,1,0]
    v_pk_fma_f32 {v(YL+2,2)}, {v(YR+2,2)}, {v(KA,2)}, {v(BC+4,2)} op_sel:[0,1,0]
    v_cvt_pk_f16_f32 {v(YL)}, {v(YL)}, {v(YL+1)}
    v_cvt_pk_f16_f32 {v(YL+1)}, {v(YL+2)}, {v(YL+3)}
    ds_write_b64 {v(vUW)}, {v(YL,2)}
    {own[0]}
    {own[1]}
    {own[2]}
    {own[3]}
    s_cmp_gt_u32 {s(sW)}, 3
    s_waitcnt lgkmcnt(0)
    s_barrier
    s_cbranch_scc1 L_dhb ;!nd
    L_pf:
    ds_read_b64_tr_b16 {v(t+8,2)}, {v(vUR)}
    ds_read_b64_tr_b16 {v(t+10,2)}, {v(vUR)} offset:512
    v_mov_b32 {v(t+22)}, 0x3c003c00
    s_waitcnt lgkmcnt(0)
    ;@F
    """)
    XR=t+8; U_=t+12; V_=YC; PP=LNP
    Ur,Ui=U_,U_+4; Vr,Vi=V_,V_+4
    a(f"""
    v_mfma_f32_16x16x32_f16 {v(Ur,4)}, {v(XR,4)}, {v(B1C,4)}, 0
    v_mfma_f32_16x16x32_f16 {v(Ui,4)}, {v(XR,4)}, {v(B1N,4)}, 0
    v_dot2_f32_f16 {v(s1)}, {v(XR)}, {v(t+22)}, 0
    v_dot2_f32_f16 {v(s2)}, {v(XR)}, {v(XR)}, 0
    v_dot2_f32_f16 {v(s1)}, {v(XR+1)}, {v(t+22)}, {v(s1)}
    v_dot2_f32_f16 {v(s2)}, {v(XR+1)}, {v(XR+1)}, {v(s2)}
    v_dot2_f32_f16 {v(s1)}, {v(XR+2)}, {v(t+22)}, {v(s1)}
    v_dot2_f32_f16 {v(s2)}, {v(XR+2)}, {v(XR+2)}, {v(s2)}
    v_dot2_f32_f16 {v(s1)}, {v(XR+3)}, {v(t+22)}, {v(s1)}
    v_dot2_f32_f16 {v(s2)}, {v(XR+3)}, {v(XR+3)}, {v(s2)}
    v_pk_mul_f32 {v(Vi,2)}, {v(Ur,2)}, {v(TWS,2)}
    v_pk_mul_f32 {v(Vi+2,2)}, {v(Ur+2,2)}, {v(TWS+2,2)}
    v_pk_mul_f32 {v(Vr,2)}, {v(Ui,2)}, {v(TWS,2)}
    v_permlane32_swap_b32 {v(s1)}, {v(s2)}
    v_pk_mul_f32 {v(Vr+2,2)}, {v(Ui+2,2)}, {v(TWS+2,2)}
    v_add_f32 {v(s1)}, {v(s1)}, {v(s2)}
    v_pk_fma_f32 {v(Vr,2)}, {v(Ur,2)}, {v(TWC,2)}, {v(Vr,2)}
    v_pk_fma_f32 {v(Vi,2)}, {v(Ui,2)}, {v(TWC,2)}, {v(Vi,2)} neg_lo:[0,0,1] neg_hi:[0,0,1]
    v_add_f32_dpp {v(s1)}, {v(s1)}, {v(s1)} row_ror:8 {DPP}
    v_pk_fma_f32 {v(Vr+2,2)}, {v(Ur+2,2)}, {v(TWC+2,2)}, {v(Vr+2,2)}
    v_pk_fma_f32 {v(Vi+2,2)}, {v(Ui+2,2)}, {v(TWC+2,2)}, {v(Vi+2,2)} neg_lo:[0,0,1] neg_hi:[0,0,1]
    v_add_f32_dpp {v(s1)}, {v(s1)}, {v(s1)} row_ror:4 {DPP}
    v_cvt_pk_f16_f32 {v(PP)}, {v(Vr)}, {v(Vi)}
    v_cvt_pk_f16_f32 {v(PP+1)}, {v(Vr+1)}, {v(Vi+1)}
    v_add_f32_dpp {v(s1)}, {v(s1)}, {v(s1)} row_ror:2 {DPP}
    v_cvt_pk_f16_f32 {v(PP+2)}, {v(Vr+2)}, {v(Vi+2)}
    v_cvt_pk_f16_f32 {v(PP+3)}, {v(Vr+3)}, {v(Vi+3)}
    v_add_f32_dpp {v(s1)}, {v(s1)}, {v(s1)} row_ror:1 {DPP}
    v_mfma_f32_16x16x32_f16 {v(Ur,4)}, {v(A2R,4)}, {v(PP,4)}, 0
    v_mfma_f32_16x16x32_f16 {v(Ui,4)}, {v(A2I,4)}, {v(PP,4)}, 0
    v_add_f32_dpp {v(s1)}, {v(s1)}, {v(s1)} row_bcast:15 row_mask:0xa bank_mask:0xf
    v_mul_f32 {v(s1)}, {s(sK512)}, {v(s1)}
    v_readlane_b32 {s(sT+2)}, {v(s1)}, 63
    v_readlane_b32 {s(sT+1)}, {v(s1)}, 31
    v_add_f32 {v(s2)}, {s(sT+2)}, {v(EK)}
    v_mov_b32 {v(s1)}, {s(sT+1)}
    v_fma_f32 {v(s1)}, -{v(s1)}, {v(s1)}, {v(s2)}
    v_rsq_f32_e64 {v(s1)}, |{v(s1)}|
    v_mul_f32 {v(s1)}, {s(sSg)}, {v(s1)}
    """)
    for k in range(4): a(f'v_pk_mul_f32 {v(U_+2*k,2)}, {v(U_+2*k,2)}, {v(s1,2)} op_sel_hi:[1,0]')
    for r in range(4): a(f'v_cvt_pk_f16_f32 {v(PP+r)}, {v(Ur+r)}, {v(Ui+r)}')
    a(f"""
    {'s_cbranch_scc1 L_ywait ;!nd' if cfg.w7 else ''}
    ds_write2_b32 {v(vDW)}, {v(PP)}, {v(PP+1)} offset0:0 offset1:32
    ds_write2_b32 {v(vDW)}, {v(PP+2)}, {v(PP+3)} offset0:64 offset1:96
    s_waitcnt lgkmcnt(0)
    L_dhb:
    s_barrier
    ds_read_b128 {v(t+16,4)}, {v(vDR)}
    s_waitcnt lgkmcnt(0)
    v_mfma_f32_16x16x16_f16 {v(E0,4)}, {v(AD,2)}, {v(t+16,2)}, 0
    v_mfma_f32_16x16x16_f16 {v(E1,4)}, {v(AD,2)}, {v(t+18,2)}, 0
    s_nop 4
    s_branch L_apply ;!nd
    """)
    a('L_fin:')
    a(xupd)
    if cfg.odel: a(f's_sleep {cfg.odel}')
    for rho in (0,1):
        for k in (0,1):
            a(f'v_cvt_pk_bf16_f32 {v(t+2*rho+k)}, {v(X+4*k+rho)}, {v(X+4*k+2+rho)}')
    a(f"""
    v_lshlrev_b32 {v(t+16)}, 1, {v(vQ)}
    v_mov_b32 {v(t+19)}, 0x200000
    s_sub_u32 {s(sT)}, {s(sT+9)}, 1
    v_cmp_eq_u32 vcc, {s(sT+9)}, {v(t+16)}
    v_cmp_eq_u32 {s(sT+2,2)}, {s(sT)}, {v(t+16)}
    v_cndmask_b32 {v(t+17)}, {v(vXoff)}, {v(t+19)}, vcc
    v_cndmask_b32 {v(t+18)}, {v(vXoff)}, {v(t+19)}, {s(sT+2,2)}
    buffer_store_dwordx2 {v(t,2)}, {v(vXoff if cfg.twice else t+17)}, {OS}, {s(sRow0)} offen {['','sc1','nt'][cfg.osc]}
    buffer_store_dwordx2 {v(t+2,2)}, {v(vXoff if cfg.twice else t+18)}, {OS}, {s(sRow1)} offen {['','sc1','nt'][cfg.osc]}
    """)
    if cfg.wb==3: a(f"""
    s_xor_b32 {s(sT+4)}, {s(sJ)}, 9
    s_or_b32 {s(sT+4)}, {s(sT+4)}, {s(sW)}
    s_cbranch_scc1 L_nwb3
    {f's_sleep {cfg.wbd}' if cfg.wbd else ''}
    buffer_wbl2 sc1
    L_nwb3:
    """)
    a(f"""
    v_cndmask_b32 {v(t+24)}, {v(t+19)}, {v(vXoff)}, vcc
    v_cndmask_b32 {v(t+25)}, {v(t+19)}, {v(vXoff)}, {s(sT+2,2)}
    s_or_b32 {s(sT)}, s2, {s(sW)}
    s_cbranch_scc1 L_fin2
    v_mov_b32 {v(t+20)}, {s(sTag)}
    buffer_store_dword {v(t+20)}, off, {WS}, 0 sc1
    L_fin2:
    s_cmp_eq_u32 {s(sT+9)}, 64
    s_cbranch_scc1 L_fin5
    s_andn2_b32 {s(sIdx)}, {s(sM7FF)}, {s(sKey)}
    s_add_u32 {s(sYo)}, {s(sYo)}, {YPR}
    s_add_u32 {s(sYh)}, {s(sYh)}, {YHR}
    v_mov_b32 {v(t+8)}, {v(vL8)}
    """)
    owner()
    a('s_branch L_ywait\nL_fin3:')
    a('\n'.join(own))
    for rho in (0,1):
        for k in (0,1):
            a(f'v_cvt_pk_bf16_f32 {v(t+2*rho+k)}, {v(X+4*k+rho)}, {v(X+4*k+2+rho)}')
    a(f"""
    L_fin4:
    buffer_store_dwordx2 {v(t,2)}, {v(t+24)}, {OS}, {s(sRow0)} offen {['sc1','','nt'][cfg.lastp]}
    buffer_store_dwordx2 {v(t+2,2)}, {v(t+25)}, {OS}, {s(sRow1)} offen {['sc1','','nt'][cfg.lastp]}
    L_fin5:
    """)
    stamp(); dump_stamps()
    a('s_endpgm')
    a(f"""
    L_base_r:
    s_sub_u32 {s(sCnt)}, {s(sCnt)}, 1
    s_cbranch_scc1 L_end
    s_sleep 2
    buffer_load_dwordx2 {v(BC+4,2)}, {v(t+24)}, {WS}, {s(sT+10)} offen sc1
    buffer_load_dword {v(KA)}, off, {WS}, {s(sT+10)} offset:3076 sc1
    s_waitcnt vmcnt(0)
    s_branch L_basew
    """)
    def pub2():
        a(f'''
        v_mov_b32 {v(t+4)}, {s(sTag)}
        v_mov_b32 {v(t+5)}, {s(sXcc)}
        s_add_u32 {s(sT)}, {s(sTabSt)}, {TAB2-TABL}
        buffer_store_dwordx2 {v(t+4,2)}, off, {WS}, {s(sT)} sc1
        ''')
    a(f'''
    L_tabst_slow:
    buffer_store_dwordx2 {v(K,2)}, off, {WS}, {s(sTabSt)} sc1
    s_branch L_tabst_back
    L_tg0_r:
    s_sub_u32 {s(sCnt)}, {s(sCnt)}, 1
    s_cbranch_scc1 L_end
    s_sleep 2
    ''')
    a(f's_mov_b64 exec, 0xff\nbuffer_load_dword {v(t+20)}, {v(t+24)}, {WS}, {s(sT+10)} offen sc1\ns_mov_b64 exec, -1')
    if cfg.dr: a(f's_waitcnt vmcnt(0)\nv_cmp_ne_u32 vcc, {s(sTag)}, {v(t+20)}\ns_cbranch_vccnz L_tg0_r\ns_sleep {cfg.dr}\ns_branch L_g')
    a('s_branch L_tg0w\nL_tab2:')
    pub2()
    a(f'''
    s_add_u32 {s(sT+1)}, {s(sTabLd)}, {TAB2-TABL}
    L_tab2p:
    buffer_load_dwordx2 {v(TB,2)}, {v(vL8)}, {WS}, {s(sTabLd)} offen sc1
    buffer_load_dwordx2 {v(t+6,2)}, {v(vL8)}, {WS}, {s(sT+1)} offen sc1
    s_waitcnt vmcnt(0)
    v_cmp_eq_u32 vcc, {s(sTag)}, {v(TB)}
    v_cndmask_b32 {v(TB)}, {v(t+6)}, {v(TB)}, vcc
    v_cndmask_b32 {v(TB+1)}, {v(t+7)}, {v(TB+1)}, vcc
    v_cmp_ne_u32 vcc, {s(sTag)}, {v(TB)}
    ''')
    poll_branch('L_tab2p', 4)
    a(f'''
    s_branch L_t0ok
    L_slow:
    s_cmp_lg_u32 {s(sIt)}, 0
    s_cbranch_scc1 L_slow1
    ''')
    pub2()
    a('L_slow1:')
    lstores('sc1')
    a(f'''
    s_waitcnt vmcnt(0)
    s_barrier
    s_add_u32 {s(sT)}, {s(sTabSt)}, {SLOWF-TABL}
    s_add_u32 {s(sT+1)}, {s(sTabLd)}, {SLOWF-TABL}
    v_mov_b32 {v(t+4)}, {s(sTag)}
    s_cmp_lg_u32 {s(sW)}, 0
    s_cbranch_scc1 L_slowp
    buffer_store_dword {v(t+4)}, off, {WS}, {s(sT)} sc1
    L_slowp:
    buffer_load_dword {v(t+5)}, {v(vL8)}, {WS}, {s(sT+1)} offen sc1
    s_waitcnt vmcnt(0)
    v_cmp_ne_u32 vcc, {s(sTag)}, {v(t+5)}
    ''')
    poll_branch('L_slowp', 2)
    a('s_branch L_slowback')

def hint_store(vreg, soff, lbl):
    a(f'''
    s_mov_b64 exec, 1
    s_cmp_eq_u32 {s(sFast)}, 0
    s_cbranch_scc1 {lbl}_s
    buffer_store_dwordx2 {v(vreg,2)}, off, {WS}, {s(soff)}
    s_branch {lbl}_d
    {lbl}_s:
    buffer_store_dwordx2 {v(vreg,2)}, off, {WS}, {s(soff)} sc1
    {lbl}_d:
    s_mov_b64 exec, -1
    ''')

def ffn():
    WA=4; WD=20; t=40
    vXL=24; vXW=25; vXR=26; vPS=27; vPL=28; vHW=29; vHR=30; vDP=31; vTag=32; vSig=34; vFl=35
    sI=sJ; sRnd=sIt; sPo=sLst; sPs=sLld
    tch=f"""; bring this WG's share of the partial-sum mailboxes into L2
    {f's_sleep {cfg.tdel}' if cfg.tdel and not cfg.mg else ''}
    v_and_b32 {v(t+4)}, 1, {v(vQ)}
    v_lshlrev_b32 {v(t+4)}, 16, {v(t+4)}
    v_lshl_add_u32 {v(t+4)}, {v(vN)}, 4, {v(t+4)}
    s_lshl_b32 {s(sT)}, {s(sI)}, 8
    s_add_u32 {s(sT)}, {s(sT)}, {s(sPo)}
    buffer_load_dword {v(t+5)}, {v(t+4)}, {WS}, {s(sT)} offen sc1
    {f'buffer_load_dword {v(t+7)}, off, {WS}, {s(sYh)} sc1' if cfg.ht else ''}
    {f'buffer_load_dword {v(t+8)}, off, {WS}, {s(sYh)} offset:{YHR} sc1' if cfg.ht else ''}"""
    F_W=0; TS=4096+64; F_X=0x4400; F_KEY=0x4D00; F_H=0x4E00; F_D=0x5200; F_WD=0x5400
    a(f"""
    L_ffn:
    s_and_b32 {s(sI)}, {s(sJ)}, 31
    s_min_u32 {s(sT+2)}, {s(sI)}, 27
    s_and_b32 {s(sT)}, {s(sT+2)}, 3
    s_lshl_b32 {s(sT+8)}, {s(sT)}, 8              ; 256*ks
    s_mul_i32 {s(sT+9)}, {s(sT)}, {28*64}
    s_mul_i32 {s(sT)}, {s(sT)}, {128*3584}
    s_mul_i32 {s(sT+1)}, {s(sX)}, 448
    s_add_u32 {s(sT)}, {s(sT)}, {s(sT+1)}
    s_lshr_b32 {s(sT+2)}, {s(sT+2)}, 2
    s_lshl_b32 {s(sT+3)}, {s(sT+2)}, 6
    s_add_u32 {s(sT)}, {s(sT)}, {s(sT+3)}
    v_lshrrev_b32 {v(t+3)}, 2, v0
    v_mul_u32_u24 {v(t)}, 3584, {v(t+3)}
    v_and_b32 {v(t+4)}, 3, v0
    v_lshl_add_u32 {v(t)}, {v(t+4)}, 4, {v(t)}
    v_add_u32 {v(t)}, {s(sT)}, {v(t)}
    s_mul_i32 {s(sT)}, {s(sX)}, {224*1024}
    s_lshl_b32 {s(sT+1)}, {s(sI)}, 5
    s_add_u32 {s(sT)}, {s(sT)}, {s(sT+1)}
    v_lshrrev_b32 {v(t+1)}, 1, v0
    v_min_u32 {v(t+1)}, 223, {v(t+1)}
    v_lshlrev_b32 {v(t+1)}, 10, {v(t+1)}
    v_and_b32 {v(t+2)}, 1, v0
    v_lshl_add_u32 {v(t+1)}, {v(t+2)}, 4, {v(t+1)}
    v_add_u32 {v(t+1)}, {s(sT)}, {v(t+1)}
    s_add_u32 {s(sT+10)}, {s(sTabLd)}, {FTAB-TABL}
    s_waitcnt lgkmcnt(0)
    {f'v_lshlrev_b32 {v(T+25)}, {cfg.tlb}, v0' if cfg.tlb else ''}
    {f'buffer_load_dword {v(T+21)}, {v(T+25)}, {WS}, 0 offen sc1' if cfg.tlb else ''}
    {f'buffer_load_dword {v(T+21)}, {v(T+25)}, {OS}, 0 offen sc1' if cfg.tlb else ''}
    {f's_sleep {cfg.fdelay}' if cfg.fdelay else ''}
    {f'global_load_dwordx4 {v(T+8,4)}, {v(t)}, s[18:19]' if cfg.wdpos!=2 and cfg.gul<2 else ''}
    v_mov_b32 {v(T+24)}, {v(t)}
    {f'global_load_dwordx4 {v(T+12,4)}, {v(t)}, s[20:21]' if cfg.wdpos!=2 and not cfg.gul else ''}
    {f'global_load_dwordx4 {v(T+16,4)}, {v(t+1)}, s[22:23]' if cfg.wdpos==0 else f'v_mov_b32 {v(T+23)}, {v(t+1)}'}
    """)
    if cfg.wpf: a(f"""
    s_mul_i32 {s(sT)}, {s(sX)}, 224
    s_mul_i32 {s(sT+1)}, {s(sI)}, 7
    s_add_u32 {s(sT)}, {s(sT)}, {s(sT+1)}
    s_min_u32 {s(sT+1)}, {s(sW)}, 6
    s_add_u32 {s(sT)}, {s(sT)}, {s(sT+1)}
    s_lshl_b32 {s(sT)}, {s(sT)}, 10
    v_lshl_add_u32 {v(T+25)}, {v(vLane)}, 4, {s(sT)}
    {f'global_load_dwordx4 {v(T+16,4)}, {v(T+25)}, s[22:23]' if cfg.wpf==1 else ''}
    """)
    a(f"""
    {f'buffer_load_dword {v(T+20)}, off, {WS}, 0 sc1' if not cfg.hot else f's_load_dword {s(sTag)}, s[8:9], 0'}
    s_cmp_eq_u32 {s(sW)}, 0
    s_cselect_b32 {s(sT)}, {s(sT+10)}, s10
    buffer_load_dword {v(T+21)}, {v(vL8)}, {WS}, {s(sT if cfg.hot else sT+10)} offen sc1
    v_mul_u32_u24 {v(T+22)}, {TS}, {v(t+4)}
    v_lshl_add_u32 {v(T+22)}, {v(t+3)}, 5, {v(T+22)}
    v_lshlrev_b32 {v(t+5)}, 4, {v(vN)}
    s_and_b32 {s(sT)}, {s(sW)}, 1
    s_lshl_b32 {s(sT)}, {s(sT)}, 2
    v_add_u32 {v(t+6)}, {s(sT)}, {v(vQ)}
    v_lshl_add_u32 {v(vXL)}, {v(t+6)}, 12, {v(t+5)}
    v_add_u32 {v(vXL)}, {s(sT+8)}, {v(vXL)}
    v_mul_u32_u24 {v(vXW)}, 272, {v(t+6)}
    v_add_u32 {v(vXW)}, {v(vXW)}, {v(t+5)}
    v_and_b32 {v(t+6)}, 7, {v(vLane)}
    v_mul_u32_u24 {v(vXR)}, 272, {v(t+6)}
    v_lshl_add_u32 {v(vXR)}, {v(vQ)}, 4, {v(vXR)}
    s_cmp_lg_u32 {s(sW)}, 6
    s_cbranch_scc1 L_fa1
    v_lshlrev_b32 {v(vXL)}, 12, {v(t+6)}
    L_fa1:
    s_lshl2_add_u32 {s(sT)}, {s(sT+2)}, {s(sW)}
    s_lshl_b32 {s(sT)}, {s(sT)}, 6
    s_add_u32 {s(sT)}, {s(sT)}, {s(sT+9)}
    v_lshl_add_u32 {v(vPS)}, {v(vN)}, 2, {s(sT)}
    s_lshl_b32 {s(sT)}, {s(sW)}, 8
    v_mul_u32_u24 {v(vPL)}, 1792, {v(vQ)}
    v_add3_u32 {v(vPL)}, {v(vPL)}, {v(t+5)}, {s(sT)}
    s_lshl_b32 {s(sT)}, {s(sW)}, 7
    s_add_u32 {s(sT)}, {s(sT)}, {F_H}
    v_lshl_add_u32 {v(vHR)}, {v(vQ)}, 4, {s(sT)}
    v_and_b32 {v(t+6)}, 12, {v(vN)}
    v_lshl_add_u32 {v(vHW)}, {v(t+6)}, 2, {s(sT)}
    v_and_b32 {v(t+6)}, 1, {v(vN)}
    v_lshl_add_u32 {v(vHW)}, {v(t+6)}, 3, {v(vHW)}
    v_and_b32 {v(t+6)}, 2, {v(vN)}
    v_lshl_add_u32 {v(vHW)}, {v(t+6)}, 5, {v(vHW)}
    v_and_b32 {v(t+6)}, 2, {v(vQ)}
    v_add_u32 {v(vHW)}, {v(vHW)}, {v(t+6)}
    v_and_b32 {v(t+6)}, 1, {v(vQ)}
    v_lshl_add_u32 {v(vHW)}, {v(t+6)}, 2, {v(vHW)}
    s_lshl_b32 {s(sT)}, {s(sW)}, 2
    s_add_u32 {s(sT)}, {s(sT)}, {F_D}
    v_lshl_add_u32 {v(vDP)}, {v(vN)}, 5, {s(sT)}
    v_mov_b32 {v(vFl)}, {F_KEY}
    v_mov_b32 {v(vTag)}, 0
    s_mov_b32 {s(sFast)}, 0
    s_mov_b32 {s(sRnd)}, 2
    s_mov_b32 {s(sPo)}, {WSSZ}
    s_mov_b32 {s(sYo)}, {WSSZ}
    s_mov_b32 {s(sYh)}, {WSSZ}
    s_waitcnt lgkmcnt(0)
    {'s_branch L_fb2' if cfg.dry else ''}
    L_finit:
    s_mov_b32 {s(sRnd)}, 0
    s_mov_b32 {s(sSlot)}, {SLOT}
    s_lshl_b32 {s(sPo)}, {s(sX)}, 13
    s_add_u32 {s(sPo)}, {s(sPo)}, {PART}
    s_lshl_b32 {s(sYo)}, {s(sX)}, 10
    s_lshl_b32 {s(sT)}, {s(sI)}, 5
    s_add_u32 {s(sYo)}, {s(sYo)}, {s(sT)}
    s_add_u32 {s(sYo)}, {s(sYo)}, {YP}
    s_lshl_b32 {s(sYh)}, {s(sX)}, 8
    s_lshl3_add_u32 {s(sYh)}, {s(sI)}, {s(sYh)}
    s_add_u32 {s(sYh)}, {s(sYh)}, {YHINT}
    s_lshl_b32 {s(sT)}, {s(sW)}, 10
    v_lshl_add_u32 {v(t)}, {v(vLane)}, 4, {s(sT)}
    v_lshl_add_u32 {v(t+1)}, {v(vQ)}, 8, {s(sT)}
    v_lshl_add_u32 {v(t+1)}, {v(vN)}, 3, {v(t+1)}
    s_and_b32 {s(sT)}, {s(sW)}, 3
    s_mul_i32 {s(sT)}, {s(sT)}, {TS}
    v_lshl_add_u32 {v(t+2)}, {v(vQ)}, 8, {s(sT)}
    v_lshl_add_u32 {v(t+2)}, {v(vN)}, 3, {v(t+2)}
    v_mov_b32 {v(vTag+1)}, {s(sXcc)}
    s_lshl3_add_u32 {s(sT+1)}, {s(sI)}, {s(sT+10)}
    s_waitcnt vmcnt(0)
    {f'v_mov_b32 {v(T+20)}, {s(sTag)}' if cfg.hot else ''}
    v_add_u32 {v(vTag)}, 1, {v(T+20)}
    ds_write_b128 {v(T+22)}, {v(T+8,4)}
    ds_write_b128 {v(T+22)}, {v(T+12,4)} offset:16
    {f'ds_write_b128 {v(t)}, {v(T+16,4)} offset:{F_WD}' if cfg.wdpos==0 else ''}
    v_readfirstlane_b32 {s(sTag)}, {v(vTag)}
    s_cmp_lg_u32 {s(sW)}, 0
    s_cbranch_scc1 L_fi1
    s_mov_b64 exec, 1
    buffer_store_dwordx2 {v(vTag,2)}, off, {WS}, {s(sT+1)}
    s_mov_b64 exec, -1
    L_fi1:
    s_waitcnt lgkmcnt(0)
    s_barrier
    """)
    if cfg.stamps: a(f's_mov_b32 {s(sStampI)}, 0')
    stamp()
    for k in range(4):
        a(f'ds_read_b64_tr_b16 {v(WA+4*k,2)}, {v(t+2)} offset:{1024*k}')
        a(f'ds_read_b64_tr_b16 {v(WA+4*k+2,2)}, {v(t+2)} offset:{1024*k+128}')
    a(f"""
    {f'ds_read_b64_tr_b16 {v(WD,2)}, {v(t+1)} offset:{F_WD}' if cfg.wdpos==0 else ''}
    {f'ds_read_b64_tr_b16 {v(WD+2,2)}, {v(t+1)} offset:{F_WD+128}' if cfg.wdpos==0 else ''}
    s_cmp_lg_u32 {s(sW)}, 0
    s_cbranch_scc1 L_fi3
    s_movk_i32 {s(sTry)}, 80
    L_fl:
    buffer_load_dwordx2 {v(t+4,2)}, {v(vL8)}, {WS}, {s(sTabLd)} offen sc1
    buffer_load_dwordx2 {v(t+6,2)}, {v(vL8)}, {WS}, {s(sT+10)} offen sc1
    s_waitcnt vmcnt(0)
    v_cmp_ne_u32 vcc, {s(sTag)}, {v(t+4)}
    v_cmp_ne_u32 {s(sT,2)}, {s(sTag)}, {v(t+6)}
    s_or_b64 vcc, vcc, {s(sT,2)}
    """)
    poll_branch('L_fl', 4, giveup='L_fslowtab', skip=True)
    a(f"""
    v_cmp_ne_u32 vcc, {s(sXcc)}, {v(t+5)}
    v_cmp_ne_u32 {s(sT,2)}, {s(sXcc)}, {v(t+7)}
    s_or_b64 vcc, vcc, {s(sT,2)}
    s_cbranch_vccnz L_fslowtab
    s_mov_b32 {s(sFast)}, 1
    {tch if not cfg.mg else ''}
    L_fi2:
    v_mov_b32 {v(t+6)}, {s(sFast)}
    ds_write_b32 {v(vFl)}, {v(t+6)} offset:4
    L_fi3:
    s_waitcnt vmcnt(0) lgkmcnt(0)
    s_barrier
    ds_read_b32 {v(t+6)}, {v(vFl)} offset:4
    s_waitcnt lgkmcnt(0)
    v_readfirstlane_b32 {s(sFast)}, {v(t+6)}
    """)
    if cfg.mg: a(f's_sleep {cfg.tdel}\ns_cmp_lg_u32 {s(sW)}, 7\ns_cbranch_scc1 L_nt7\n'+tch+'\nL_nt7:')
    if cfg.wpf==2: a((f's_sleep {cfg.gdelay}\n' if cfg.gdelay else '')+f'global_load_dwordx4 {v(T+16,4)}, {v(T+25)}, s[22:23]\ns_waitcnt vmcnt(0)')
    if cfg.gul:
        a(f"""
        {f's_sleep {cfg.gdelay}' if cfg.gdelay else ''}
        {f'global_load_dwordx4 {v(T+8,4)}, {v(T+24)}, s[18:19]' if cfg.gul==2 else ''}
        global_load_dwordx4 {v(T+12,4)}, {v(T+24)}, s[20:21]
        s_waitcnt vmcnt(0)
        ds_write_b128 {v(T+22)}, {v(T+8,4)}
        ds_write_b128 {v(T+22)}, {v(T+12,4)} offset:16
        s_waitcnt lgkmcnt(0)
        s_barrier
        """)
        for k in range(4):
            a(f'ds_read_b64_tr_b16 {v(WA+4*k,2)}, {v(t+2)} offset:{1024*k}')
            a(f'ds_read_b64_tr_b16 {v(WA+4*k+2,2)}, {v(t+2)} offset:{1024*k+128}')
        a('s_waitcnt lgkmcnt(0)')
    if cfg.wdpos==3: a(f'v_mov_b32 {v(T+8)}, {v(t)}\nv_mov_b32 {v(T+9)}, {v(t+1)}')
    if cfg.wdpos==2:
        a(f"""
        {f's_sleep {cfg.gdelay}' if cfg.gdelay else ''}
        global_load_dwordx4 {v(T+8,4)}, {v(T+24)}, s[18:19]
        global_load_dwordx4 {v(T+12,4)}, {v(T+24)}, s[20:21]
        global_load_dwordx4 {v(T+16,4)}, {v(T+23)}, s[22:23]
        s_waitcnt vmcnt(0)
        ds_write_b128 {v(T+22)}, {v(T+8,4)}
        ds_write_b128 {v(T+22)}, {v(T+12,4)} offset:16
        ds_write_b128 {v(t)}, {v(T+16,4)} offset:{F_WD}
        s_waitcnt lgkmcnt(0)
        s_barrier
        """)
        for k in range(4):
            a(f'ds_read_b64_tr_b16 {v(WA+4*k,2)}, {v(t+2)} offset:{1024*k}')
            a(f'ds_read_b64_tr_b16 {v(WA+4*k+2,2)}, {v(t+2)} offset:{1024*k+128}')
        a(f"""
        ds_read_b64_tr_b16 {v(WD,2)}, {v(t+1)} offset:{F_WD}
        ds_read_b64_tr_b16 {v(WD+2,2)}, {v(t+1)} offset:{F_WD+128}
        s_waitcnt lgkmcnt(0)
        """)
    if cfg.wdpos==1: a(f"""
    {f's_sleep {cfg.gdelay}' if cfg.gdelay else ''}
    global_load_dwordx4 {v(T+16,4)}, {v(T+23)}, s[22:23]
    s_waitcnt vmcnt(0)
    ds_write_b128 {v(t)}, {v(T+16,4)} offset:{F_WD}
    ds_read_b64_tr_b16 {v(WD,2)}, {v(t+1)} offset:{F_WD}
    ds_read_b64_tr_b16 {v(WD+2,2)}, {v(t+1)} offset:{F_WD+128}
    s_waitcnt lgkmcnt(0)
    """)
    a(f"""
    L_frnd:
    s_add_u32 {s(sTabLd)}, {s(sTabLd)}, {ARGR}
    s_cmp_lg_u32 {s(sW)}, 0
    s_cbranch_scc1 L_fb1
    s_cmp_eq_u32 {s(sFast)}, 0
    s_cbranch_scc1 L_fb1
    L_ftrig:
    buffer_load_dword {v(t)}, {v(vL8)}, {WS}, {s(sTabLd)} offen sc1
    s_waitcnt vmcnt(0)
    v_cmp_ne_u32 vcc, {s(sTag)}, {v(t)}
    """)
    poll_branch('L_ftrig', cfg.slp_f)
    stamp()
    a(f"""
    s_cmp_eq_u32 {s(sRnd)}, 0
    s_cbranch_scc1 L_ft0
    s_sleep {cfg.tim_a1}
    s_branch L_fb1
    L_ft0:
    s_sleep {cfg.tim_arg if cfg.wdpos!=3 else cfg.tim_wd}
    L_fb1:
    """)
    if cfg.wdpos==3: a(f"""
    s_cmp_lg_u32 {s(sRnd)}, 0
    s_cbranch_scc1 L_fb1b
    s_barrier
    global_load_dwordx4 {v(T+16,4)}, {v(T+23)}, s[22:23]
    s_waitcnt vmcnt(0)
    ds_write_b128 {v(T+8)}, {v(T+16,4)} offset:{F_WD}
    {f'ds_read_b64_tr_b16 {v(WD,2)}, {v(T+9)} offset:{F_WD}' if not cfg.sb else ''}
    {f'ds_read_b64_tr_b16 {v(WD+2,2)}, {v(T+9)} offset:{F_WD+128}' if not cfg.sb else ''}
    {f's_sleep {cfg.tim_r}' if cfg.tim_r else ''}
    s_waitcnt lgkmcnt(0)
    L_fb1b:
    """)
    a(f"""
    s_sub_u32 {s(sT)}, {s(sW)}, 4
    s_cmp_lt_u32 {s(sT)}, 2
    s_barrier
    s_cbranch_scc1 L_fx
    s_cmp_lg_u32 {s(sW)}, 6
    s_cbranch_scc1 L_fb2
    s_mov_b64 exec, 0xff
    v_mov_b32 {v(t+1)}, 0
    ds_write_b32 {v(vFl)}, {v(t+1)}
    L_fhd:
    buffer_load_dword {v(t)}, {v(vXL)}, {WS}, {s(sSlot)} offen offset:3072 sc1
    s_waitcnt vmcnt(0)
    v_cmp_eq_u32 vcc, -1, {v(t)}
    """)
    poll_branch('L_fhd', 2, skip=True)
    a(f"""
    ds_max_u32 {v(vFl)}, {v(t)}
    s_mov_b64 exec, -1
    s_branch L_fb2
    L_fx:
    buffer_load_dwordx4 {v(t,4)}, {v(vXL)}, {WS}, {s(sSlot)} offen sc1
    s_waitcnt vmcnt(0)
    ds_write_b128 {v(vXW)}, {v(t,4)} offset:{F_X}
    """)
    maxchk(range(t,t+4), t+4)
    poll_branch('L_fx', 2, mask=True)
    Dd=t+16
    a(f"""
    L_fb2:
    """)
    a(f"""
    s_cmp_gt_u32 {s(sW)}, 3
    s_waitcnt lgkmcnt(0)
    s_barrier
    s_cbranch_scc1 L_fnoa
    ds_read_b32 {v(t+20)}, {v(vFl)}
    """)
    for k in range(4): a(f'ds_read_b128 {v(t+4*k,4)}, {v(vXR)} offset:{F_X+64*k}')
    stamp()
    a(f"""
    s_cmp_lt_u32 {s(sI)}, 28
    s_cselect_b32 {s(sPs)}, {s(sPo)}, {WSSZ}
    s_waitcnt lgkmcnt(3)
    v_mfma_f32_16x16x32_bf16 {v(Dd,4)}, {v(t,4)}, {v(WA,4)}, 0
    v_readfirstlane_b32 {s(sKey)}, {v(t+20)}
    s_waitcnt lgkmcnt(2)
    v_mfma_f32_16x16x32_bf16 {v(Dd,4)}, {v(t+4,4)}, {v(WA+4,4)}, {v(Dd,4)}
    s_andn2_b32 {s(sT)}, 15, {s(sKey)}
    s_sub_u32 {s(sT+1)}, 16, {s(sT)}
    s_min_u32 {s(sT)}, {s(sT)}, {s(sT+1)}
    s_waitcnt lgkmcnt(1)
    v_mfma_f32_16x16x32_bf16 {v(Dd,4)}, {v(t+8,4)}, {v(WA+8,4)}, {v(Dd,4)}
    s_bitcmp1_b32 {s(sT)}, 0
    s_cselect_b64 vcc, -1, 0
    s_waitcnt lgkmcnt(0)
    v_mfma_f32_16x16x32_bf16 {v(Dd,4)}, {v(t+12,4)}, {v(WA+12,4)}, {v(Dd,4)}
    s_bitcmp1_b32 {s(sT)}, 1
    s_cselect_b64 {s(sT+2,2)}, -1, 0
    s_and_b32 {s(sT)}, {s(sT)}, 4
    s_lshl_b32 {s(sT)}, {s(sT)}, 2
    s_bfm_b64 exec, 16, {s(sT)}
    s_cmp_eq_u32 {s(sFast)}, 0
    v_cndmask_b32 {v(Dd)}, {v(Dd)}, {v(Dd+1)}, vcc
    v_cndmask_b32 {v(Dd+2)}, {v(Dd+2)}, {v(Dd+3)}, vcc
    v_cndmask_b32 {v(Dd)}, {v(Dd)}, {v(Dd+2)}, {s(sT+2,2)}
    s_cbranch_scc1 L_fps_s ;!nd
    buffer_store_dword {v(Dd)}, {v(vPS)}, {WS}, {s(sPs)} offen
    L_fps_d:
    s_mov_b64 exec, -1
    s_cmp_eq_u32 {s(sRnd)}, 2
    s_cbranch_scc1 L_fpok
    {'s_waitcnt vmcnt(0)' if not cfg.nw&1 else ''}
    {f's_sleep {cfg.dp}' if cfg.dp else ''}
    s_branch L_fp
    L_fps_s:
    buffer_store_dword {v(Dd)}, {v(vPS)}, {WS}, {s(sPs)} offen sc1
    s_branch L_fps_d
    L_fnoa:
    s_cmp_eq_u32 {s(sW)}, 7
    s_cbranch_scc1 L_f7
    """)
    if cfg.eh==2:
        a(f's_cmp_lg_u32 {s(sW)}, 5\ns_cbranch_scc1 L_fyh_d\n'+(f's_sleep {cfg.ehd}' if cfg.ehd else ''))
        hint_store(vTag, sYh, 'L_fyh')
    a(f"""
    s_cmp_eq_u32 {s(sRnd)}, 2
    s_cbranch_scc1 L_fpok
    s_sleep {cfg.tim_p}
    s_branch L_fp
    L_fp:
    buffer_load_dwordx4 {v(t,4)}, {v(vPL)}, {WS}, {s(sPo)} offen sc1
    s_waitcnt vmcnt(0)
    """)
    maxchk(range(t,t+4), t+4)
    poll_branch('L_fp', cfg.slp_p, mask=True)
    stamp()
    a(f"""
    L_fpok:
    v_permlane32_swap_b32 {v(t)}, {v(t+1)}
    v_permlane32_swap_b32 {v(t+2)}, {v(t+3)}
    v_add_f32 {v(t)}, {v(t)}, {v(t+1)}
    v_add_f32 {v(t+2)}, {v(t+2)}, {v(t+3)}
    v_permlane16_swap_b32 {v(t)}, {v(t+2)}
    v_add_f32 {v(t)}, {v(t)}, {v(t+2)}
    v_mul_f32 {v(t+1)}, 0xbfb8aa3b, {v(t)}
    v_exp_f32 {v(t+1)}, {v(t+1)}
    v_mul_f32_dpp {v(t+2)}, {v(t)}, {v(t)} quad_perm:[2,3,0,1] {DPP}
    v_add_f32 {v(t+1)}, 1.0, {v(t+1)}
    v_rcp_f32 {v(t+1)}, {v(t+1)}
    v_mul_f32 {v(t+1)}, {v(t+1)}, {v(t+2)}
    v_cvt_pk_bf16_f32 {v(t+1)}, {v(t+1)}, {v(t+1)}
    ds_write_b16 {v(vHW)}, {v(t+1)}
    """)
    if not cfg.sb: a(f"""
    ds_read_b128 {v(t+4,4)}, {v(vHR)}
    s_waitcnt lgkmcnt(0)
    v_mfma_f32_16x16x32_bf16 {v(t+8,4)}, {v(t+4,4)}, {v(WD,4)}, 0
    s_mov_b64 exec, 0xffff
    ds_write_b32 {v(vDP)}, {v(t+8)}
    s_mov_b64 exec, -1
    """)
    a(f"""
    s_waitcnt lgkmcnt(0)
    s_barrier
    L_fnext:
    """)
    stamp()
    a(f"""
    s_cmp_eq_u32 {s(sRnd)}, 1
    s_cbranch_scc1 L_fend
    s_cmp_eq_u32 {s(sRnd)}, 2
    s_cbranch_scc1 L_finit
    """)
    if cfg.wb==1: a(f"""
    s_cmp_lg_u32 {s(sI)}, 28
    s_cbranch_scc1 L_nwb
    s_cmp_lg_u32 {s(sW)}, 3
    s_cbranch_scc1 L_nwb
    s_sleep {cfg.wbd}
    buffer_wbl2 sc1
    L_nwb:
    """)
    a(f"""
    s_mov_b32 {s(sRnd)}, 1
    s_add_u32 {s(sSlot)}, {s(sSlot)}, {SLOTR}
    s_add_u32 {s(sPo)}, {s(sPo)}, {PARTR}
    s_add_u32 {s(sYo)}, {s(sYo)}, {YPR}
    s_add_u32 {s(sYh)}, {s(sYh)}, {YHR}
    s_branch L_frnd
    L_f7:
    ds_read_b32 {v(vTag+1)}, {v(vFl)}
    v_mov_b32 {v(vSig)}, 0xbfb8aa3b
    {f'v_add_u32 {v(t+8)}, -28, {v(vDP)}' if not cfg.sb else ''}
    v_lshlrev_b32 {v(t+9)}, 1, {v(vN)}
    s_waitcnt lgkmcnt(0)
    v_readfirstlane_b32 {s(sKey)}, {v(vTag+1)}
    s_ashr_i32 {s(sT)}, {s(sKey)}, 31
    s_orn2_b32 {s(sT)}, 0x80000000, {s(sT)}
    s_xor_b32 {s(sT)}, {s(sT)}, {s(sKey)}
    v_mul_f32 {v(vSig)}, {s(sT)}, {v(vSig)}
    v_exp_f32 {v(vSig)}, {v(vSig)}
    v_add_f32 {v(vSig)}, 1.0, {v(vSig)}
    v_rcp_f32 {v(vSig)}, {v(vSig)}
    """)
    W7=T-6
    if cfg.sb:
        a(f'v_add_u32 {v(t+8)}, {-7*128}, {v(vHR)}\ns_cmp_lg_u32 {s(sRnd)}, 0\ns_cbranch_scc1 L_f7b\nv_add_u32 {v(t+10)}, {-7*1024}, {v(T+9)}')
        for k in range(7):
            a(f'ds_read_b64_tr_b16 {v(t+12+4*k,2)}, {v(t+10)} offset:{F_WD+1024*k}\nds_read_b64_tr_b16 {v(t+14+4*k,2)}, {v(t+10)} offset:{F_WD+1024*k+128}')
        a(f'L_f7b:\ns_waitcnt lgkmcnt(0)\ns_barrier')
        for k in range(7): a(f'ds_read_b128 {v(WA+4*k if k<5 else 80+4*(k-5),4)}, {v(t+8)} offset:{128*k}')
        hint_store(vTag, sYh, 'L_fyh')
        for k in range(7):
            a(f's_waitcnt lgkmcnt({6-k})\nv_mfma_f32_16x16x32_bf16 {v(t,4)}, {v(WA+4*k if k<5 else 80+4*(k-5),4)}, {v(t+12+4*k,4)}, '+('0' if k==0 else v(t,4)))
    else:
        a(f's_barrier\nds_read_b128 {v(t,4)}, {v(t+8)}\nds_read_b96 {v(t+4,3)}, {v(t+8)} offset:16')
        hint_store(vTag, sYh, 'L_fyh')
        a(f"""
        s_waitcnt lgkmcnt(1)
        v_pk_add_f32 {v(t,2)}, {v(t,2)}, {v(t+2,2)}
        v_add_f32 {v(t)}, {v(t)}, {v(t+1)}
        s_waitcnt lgkmcnt(0)
        v_add_f32 {v(t+4)}, {v(t+4)}, {v(t+5)}
        v_add_f32 {v(t)}, {v(t)}, {v(t+6)}
        v_add_f32 {v(t)}, {v(t)}, {v(t+4)}
        """)
    a(f"""
    v_mul_f32 {v(t)}, {v(t)}, {v(vSig)}
    v_mov_b32_dpp {v(t+1)}, {v(t)} quad_perm:[1,1,3,3] {DPP}
    s_mov_b64 exec, 0x5555
    v_cvt_pk_bf16_f32 {v(t)}, {v(t)}, {v(t+1)}
    buffer_store_dword {v(t)}, {v(t+9)}, {WS}, {s(sYo)} offen sc1
    """)
    if cfg.eh: a('s_mov_b64 exec, -1')
    else: hint_store(vTag, sYh, 'L_fyh')
    a(f"""
    s_branch L_fnext
    L_fslowtab:
    v_and_b32 {v(t+16)}, 7, {v(vLane)}
    v_lshlrev_b32 {v(t+16)}, 7, {v(t+16)}
    s_mov_b32 {s(sT+10)}, {TABG}
    L_ftab2:
    buffer_load_dword {v(t+4)}, {v(t+16)}, {WS}, {s(sT+10)} offen sc1
    s_waitcnt vmcnt(0)
    v_cmp_ne_u32 vcc, {s(sTag)}, {v(t+4)}
    """)
    poll_branch('L_ftab2', 8)
    a('s_branch L_fi2\nL_fend:')
    if cfg.wb==4: a(f's_cmp_lg_u32 {s(sI)}, 28\ns_cbranch_scc1 L_nwb4\ns_cmp_lg_u32 {s(sW)}, 3\ns_cbranch_scc1 L_nwb4\n'+(f's_sleep {cfg.wbd}\n' if cfg.wbd else '')+'buffer_wbl2 sc1\nL_nwb4:')
    dump_stamps()
    a('s_endpgm')

def build():
    hdr=open('ref.txt').read().split('; @launch')[0]
    a.raw(hdr+f'; @launch grid=({NWG},1,1) block=(512,1,1) lds={LDS_TOTAL}')
    a.raw(f'''; Hand-written (own generator script) persistent kernel, one launch:
;  * every s_sleep is a back-off in front of a mailbox poll or keeps bulk loads out of a hand-off window.
.amdgcn_target "amdgcn-amd-amdhsa--gfx950"
.text
.globl {NAME}_kernel
.p2align {cfg.al}
.p2align 8
.type {NAME}_kernel,@function
{NAME}_kernel:''')
    if cfg.st0: a(f's_memrealtime s[88:89]\ns_waitcnt lgkmcnt(0)')
    a(f'''
    s_load_dwordx2 s[12:13], s[0:1], 0
    s_load_dwordx2 s[8:9], s[0:1], 96
    ''')
    if cfg.codepf==3: a(f'''
    s_getpc_b64 {s(sT+6,2)}
    L_pc:
    v_lshlrev_b32 v3, 6, v0
    v_cmp_gt_u32 vcc, L_end-L_pc, v3
    s_cmp_lt_u32 s2, {cfg.pfn}
    s_cselect_b64 exec, vcc, 0
    s_cbranch_execz L_npf ;!nd
    global_load_dword {v(vTG)}, v3, {s(sT+6,2)}
    L_npf:
    s_mov_b64 exec, -1
    ''')
    a(f'''
    s_load_dwordx8 s[16:23], s[0:1], 48
    s_load_dwordx2 s[28:29], s[0:1], 80
    v_and_b32 {v(vN)}, 15, v0
    v_bfe_u32 {v(vQ)}, v0, 4, 2
    v_lshrrev_b32 v2, 6, v0
    v_lshlrev_b32 {v(vUW)}, 7, v2
    v_lshl_add_u32 {v(vUW)}, {v(vN)}, 3, {v(vUW)}                ; 128w+8n
    v_lshl_add_u32 {v(vXoff)}, {v(vQ)}, 19, {v(vUW)}
    s_and_b32 {s(sX)}, s2, 7
    s_lshr_b32 {s(sJ)}, s2, 3
    s_and_b32 {s(sGg)}, {s(sJ)}, 15
    s_lshl4_add_u32 {s(sGg)}, {s(sGg)}, {s(sX)}
    s_sub_u32 {s(sMP)}, 256, {s(sGg)}
    s_bitcmp1_b32 {s(sJ)}, 4
    s_cselect_b32 {s(sGg)}, {s(sMP)}, {s(sGg)}
    s_cselect_b32 {s(sMP)}, 0x80008000, 0
    s_cmp_eq_u32 {s(sX)}, 0
    s_cselect_b32 {s(sGg)}, s2, {s(sGg)}
    s_cselect_b32 {s(sMP)}, 0, {s(sMP)}
    s_lshl_b32 {s(sRow0)}, {s(sGg)}, 10
    s_add_u32 {s(sRow1)}, {s(sRow0)}, 0x40000
    s_mov_b32 s14, 0x200000
    s_mov_b32 s15, 0x20000
    v_readfirstlane_b32 {s(sW)}, v2
    ''')
    pfc=f'''
    s_getpc_b64 {s(sT+6,2)}
    L_pc:
    v_lshlrev_b32 v3, 6, v0
    v_cmp_gt_u32 vcc, L_end-L_pc, v3
    s_xor_b32 {s(sT)}, s2, {cfg.pfx}
    s_and_b32 {s(sT)}, {s(sT)}, {cfg.pfm2}
    s_cselect_b64 vcc, 0, vcc
    s_cbranch_vccz L_npf ;!nd
    s_mov_b64 exec, vcc
    global_load_dword {v(vTG)}, v3, {s(sT+6,2)}
    s_mov_b64 exec, -1
    L_npf:
    '''
    if cfg.codepf==1: a(pfc)
    a(f'''
    s_cmp_ge_u32 s2, 256
    s_cbranch_scc1 L_nox ;!nd
    s_waitcnt lgkmcnt(0)
    buffer_load_dwordx2 {v(BC,2)}, {v(vXoff)}, {XS}, {s(sRow0)} offen
    buffer_load_dwordx2 {v(BC+2,2)}, {v(vXoff)}, {XS}, {s(sRow1)} offen
    L_nox:
    {pfc if cfg.codepf==2 else ''}
    s_cmp_ge_u32 s2, {NWG}
    s_cbranch_scc1 L_end
    {'s_waitcnt lgkmcnt(0)' if cfg.wsoff else ''}
    {f's_add_u32 s8, s8, {cfg.wsoff<<20}' if cfg.wsoff else ''}
    {'s_addc_u32 s9, s9, 0' if cfg.wsoff else ''}
    v_and_b32 {v(vLane)}, 63, v0
    s_mov_b32 s10, {WSSZ}
    s_mov_b32 s11, 0x20000
    s_mov_b32 s30, 0x200000
    s_mov_b32 s31, 0x20000
    v_mov_b32 {v(SENT)}, -1
    v_mov_b32 {v(SENT+1)}, -1
    v_mov_b32 {v(SENT+2)}, -1
    v_mov_b32 {v(SENT+3)}, -1
    v_lshlrev_b32 {v(vL8)}, 3, v0
    v_and_b32 {v(vL8)}, 0xf8, {v(vL8)}
    s_mov_b32 {s(sCnt)}, 200000
    s_mov_b32 {s(sM7FF)}, 0x7ff
    s_lshl_b32 {s(sTabLd)}, {s(sX)}, 8
    s_add_u32 {s(sTabLd)}, {s(sTabLd)}, {TABL}
    s_getreg_b32 {s(sXcc)}, hwreg(HW_REG_XCC_ID, 0, 4)
    ''')
    if cfg.force_slow: a(f's_mov_b32 {s(sXcc)}, {s(sJ)}')
    if cfg.stamps:
        a(f's_mov_b32 {s(sStampI)}, 0\nv_mov_b32 {v(vSTMP)}, 0')
        a(f's_memrealtime {s(sTS,2)}\ns_memtime {s(sTS+2,2)}\ns_waitcnt lgkmcnt(0)\nv_writelane_b32 {v(vSTMP)}, {s(sTS)}, 63\nv_writelane_b32 {v(vSTMP)}, {s(sTS+2)}, 62')
        a(f'v_writelane_b32 {v(vSTMP)}, {s(sT+6)}, 57')
        if cfg.st0: a(f'v_writelane_b32 {v(vSTMP)}, {s(sTS)}, 58\nv_writelane_b32 {v(vSTMP)}, s88, 63\ns_memrealtime {s(sTS,2)}\ns_waitcnt lgkmcnt(0)\nv_writelane_b32 {v(vSTMP)}, {s(sTS)}, 59')
    a('''s_cmp_ge_u32 s2, 256
    s_cbranch_scc1 L_ffn''')
    if cfg.prio: a(f's_setprio 2\ns_cmp_gt_u32 {s(sW)}, 1\ns_cbranch_scc1 L_np\ns_setprio 3\nL_np:')
    main_prologue()
    main_loop()
    ffn()
    a('L_end:\ns_endpgm')
    a.raw(f'''.section .rodata,"a"
.p2align 6
.amdhsa_kernel {NAME}_kernel
  .amdhsa_next_free_vgpr 128
  .amdhsa_next_free_sgpr 96
  .amdhsa_accum_offset 128
  .amdhsa_group_segment_fixed_size 0
  .amdhsa_kernarg_size 104
  .amdhsa_user_sgpr_count 2
  .amdhsa_user_sgpr_kernarg_segment_ptr 1
  .amdhsa_system_sgpr_workgroup_id_x 1
.end_amdhsa_kernel''')
    return '\n'.join(l+'                  ; poll back-off' if l.strip().startswith('s_sleep') else l.replace(' ;!nd','') for l in a.text().split('\n'))
if __name__=='__main__':
    out=sys.argv[1]
    for kv in sys.argv[2:]:
        k,val=kv.split('='); assert hasattr(cfg,k); setattr(cfg,k,int(val))
    open(out,'w').write(build())
    print('instrs',a.count,'nops',a.nops)
```
